```python
import torch

def _softmax(x, axis=-1):
    return torch.softmax(x, dim=axis)
def _gelu(x):
    return torch.nn.functional.gelu(x, approximate="tanh")
def _silu(x):
    return torch.nn.functional.silu(x)
def _sigmoid(x):
    return torch.sigmoid(x)
def _layernorm(x, axis=-1, eps=1e-5):
    m = x.mean(dim=axis, keepdim=True)
    v = x.var(dim=axis, keepdim=True, unbiased=False)
    return (x - m) / torch.sqrt(v + eps)
def _scatter_add(tgt, idx, src, axis=0):
    return tgt.clone().index_add_(axis, idx, src)
def _segment_sum(src, seg, n):
    out = torch.zeros((n,) + src.shape[1:], dtype=src.dtype)
    return out.index_add_(0, seg, src)
def _pad(x, pw):
    flat = tuple(v for pair in reversed(pw) for v in pair)
    return torch.nn.functional.pad(x, flat)

kernel_name = 'parallel_sum__ssm_conv_s5__mixer_token_mlp__prompt'

def setup_inputs():

    _w = (lambda a: (lambda t: t.to(torch.bfloat16) if t.is_floating_point() else t)(torch.as_tensor(a)))
    def _A_setup():
        B, S, D = 1, 2048, 448
        P = D
        Lambda_re = -0.5 * (lambda _x: torch.exp(torch.as_tensor(_x)))((lambda *s: torch.randn(*s, dtype=torch.bfloat16) * 0.1)(P))
        Lambda_im = (lambda *s: torch.randn(*s, dtype=torch.bfloat16) * 0.4)(P) * 1.0
        B_re = (lambda *s: torch.randn(*s, dtype=torch.bfloat16) * 0.2)(P, D) * (D ** -0.5)
        B_im = (lambda *s: torch.randn(*s, dtype=torch.bfloat16) * 0.2)(P, D) * (D ** -0.5)
        C_re = (lambda *s: torch.randn(*s, dtype=torch.bfloat16) * 0.2)(D, P) * (P ** -0.5)
        C_im = (lambda *s: torch.randn(*s, dtype=torch.bfloat16) * 0.2)(D, P) * (P ** -0.5)
        log_dt = (lambda *s: torch.randn(*s, dtype=torch.bfloat16) * 0.1)(P) * 0.3 - 2.0
        Dskip = (lambda *s: torch.randn(*s, dtype=torch.bfloat16) * 0.05)(D)
        return {
            "x": _w((lambda *s: torch.randn(*s, dtype=torch.bfloat16) * 0.05)(B, S, D)),
            "Lambda_re": _w(Lambda_re),
            "Lambda_im": _w(Lambda_im),
            "B_re": _w(B_re),
            "B_im": _w(B_im),
            "C_re": _w(C_re),
            "C_im": _w(C_im),
            "log_dt": _w(log_dt),
            "Dskip": _w(Dskip),
        }
    _A_in = _A_setup()

    def _B_setup():
        B, S, D, F = 1, 2048, 448, 1792
        return {
            "x": _w((lambda *s: torch.randn(*s, dtype=torch.bfloat16) * 0.05)(B, S, D)),
            "w1": _w((lambda *s: torch.randn(*s, dtype=torch.bfloat16) * 0.8)(S, F) * (S ** -0.5)),
            "b1": _w((lambda *s: torch.randn(*s, dtype=torch.bfloat16) * 3.2)(F) * 0.02),
            "w2": _w((lambda *s: torch.randn(*s, dtype=torch.bfloat16) * 0.4)(F, S) * (F ** -0.5)),
            "b2": _w((lambda *s: torch.randn(*s, dtype=torch.bfloat16) * 1.6)(S) * 0.02),
        }
    _B_in = _B_setup()

    return {
        "A_x": _A_in["x"],
        "A_Lambda_re": _A_in["Lambda_re"],
        "A_Lambda_im": _A_in["Lambda_im"],
        "A_B_re": _A_in["B_re"],
        "A_B_im": _A_in["B_im"],
        "A_C_re": _A_in["C_re"],
        "A_C_im": _A_in["C_im"],
        "A_log_dt": _A_in["log_dt"],
        "A_Dskip": _A_in["Dskip"],
        "B_x": _B_in["x"],
        "B_w1": _B_in["w1"],
        "B_b1": _B_in["b1"],
        "B_w2": _B_in["w2"],
        "B_b2": _B_in["b2"],
    }

def reference(A_x, A_Lambda_re, A_Lambda_im, A_B_re, A_B_im, A_C_re, A_C_im, A_log_dt, A_Dskip, B_x, B_w1, B_b1, B_w2, B_b2):
    def _A_ref(x, Lambda_re, Lambda_im, B_re, B_im, C_re, C_im, log_dt, Dskip):
        Bsz, L, H = x.shape
        Lam = Lambda_re + 1j * Lambda_im
        Bmat = B_re + 1j * B_im
        Cmat = C_re + 1j * C_im
        dt = torch.exp(log_dt)
        Lam_bar = torch.exp(dt * Lam)
        B_bar = ((Lam_bar - 1.0) / Lam)[:, None] * Bmat
        Bu = torch.einsum("bld,pd->blp", x + 0j, B_bar)
        h = torch.zeros_like(Bu[:, 0, :])
        hs = []
        for t in range(L):
            h = Lam_bar[None, :] * h + Bu[:, t, :]
            hs.append(h)
        hseq = torch.stack(hs, 1)
        y = 2.0 * torch.einsum("blp,dp->bld", hseq, Cmat).real + x * Dskip[None, None, :]
        return y

    def _B_ref(x, w1, b1, w2, b2):
        B, S, D = x.shape
        h = _layernorm(x, axis=-1)
        u = torch.einsum("bsd,sf->bdf", h, w1) + b1
        u = _gelu(u)
        y = torch.einsum("bdf,fs->bds", u, w2) + b2
        return (lambda x, *d: x.permute(*d))(y, 0, 2, 1)

    x = A_x
    xn = _layernorm(x, axis=-1)
    return x + _A_ref(xn, A_Lambda_re, A_Lambda_im, A_B_re, A_B_im, A_C_re, A_C_im, A_log_dt, A_Dskip) + _B_ref(xn, B_w1, B_b1, B_w2, B_b2)
```

```python
import re

REG_RE = re.compile(r'^-?\|?(?:abs\()?([vas])(?:(\d+)|\[(\d+):(\d+)\])\)?\|?$')
TRANS = ('v_exp_','v_log_','v_rcp_','v_rsq_','v_sqrt_','v_sin_','v_cos_')
NO_DST_S = ('s_cmp','s_waitcnt','s_barrier','s_branch','s_cbranch','s_nop','s_setprio','s_sleep','s_endpgm','s_bitcmp','s_setpc','s_sethalt')

def regs_of(op):
    op = op.strip()
    if op in ('vcc',): return {('s','vcc_lo'),('s','vcc_hi')}
    if op in ('vcc_lo','vcc_hi'): return {('s',op)}
    if op == 'exec': return {('s','exec_lo'),('s','exec_hi')}
    if op in ('exec_lo','exec_hi'): return {('s',op)}
    if op == 'm0': return {('s','m0')}
    m = REG_RE.match(op)
    if not m: return set()
    k = m.group(1)
    if m.group(2) is not None: return {(k,int(m.group(2)))}
    return {(k,i) for i in range(int(m.group(3)), int(m.group(4))+1)}

class Ins:
    __slots__=('text','mn','ops','mods','dst','src','cls','passes','srcC','trans','dpp','lds','wide_store','is_branch','target','uncond','label','states','perm','lane','srcAB')
    def __init__(self, text):
        self.text=text; self.label=None; self.states=1
        self.is_branch=False; self.target=None; self.uncond=False
        self.dst=set(); self.src=set(); self.cls=None; self.passes=0; self.srcC=set(); self.srcAB=set()
        self.trans=False; self.dpp=False; self.lds=False; self.wide_store=False; self.perm=False; self.lane=False
        t=text.strip()
        if t.endswith(':'):
            self.label=t[:-1]; self.states=0; self.cls='label'; self.mn=''; self.ops=[]; return
        if t.startswith(';') or t.startswith('.') or t=='':
            self.cls='comment'; self.states=0; self.mn=''; self.ops=[]; return
        t=t.split(';')[0].strip()
        parts=t.split(None,1)
        self.mn=mn=parts[0]
        rest=parts[1] if len(parts)>1 else ''
        ops=[]; cur=''; depth=0
        for ch in rest:
            if ch in '[(': depth+=1
            if ch in '])': depth-=1
            if ch==',' and depth==0: ops.append(cur.strip()); cur=''
            else: cur+=ch
        if cur.strip(): ops.append(cur.strip())
        mods=''
        if ops:
            last=ops[-1].split(None,1)
            if len(last)>1: ops[-1]=last[0]; mods=last[1]
        self.ops=ops; self.mods=mods
        R=[regs_of(o) for o in ops]
        allr=lambda l:set().union(*l) if l else set()
        if mn.startswith('v_mfma'):
            self.cls='mfma'
            self.passes = 8 if '32x32' in mn else 4
            self.dst=R[0]; self.srcAB=R[1]|R[2]; self.srcC=R[3]; self.src=self.srcAB|self.srcC
        elif mn.startswith('v_'):
            self.cls='valu'
            self.trans=mn.startswith(TRANS)
            self.dpp=('_dpp' in mn) or ('row_' in mods) or ('quad_perm' in mods)
            self.perm=mn.startswith('v_permlane')
            self.lane=mn.startswith(('v_readlane','v_readfirstlane','v_writelane'))
            if mn.startswith(('v_add_co','v_sub_co','v_addc_co','v_subb_co','v_subrev_co','v_mad_u64','v_div_scale')):
                self.dst=R[0]|R[1]; self.src=allr(R[2:])
            elif self.perm:
                self.dst=R[0]|R[1]; self.src=R[0]|R[1]
            else:
                self.dst=R[0]; self.src=allr(R[1:])
                if mn.startswith(('v_fmac','v_dot2c','v_mac','v_writelane','v_pk_fmac')) or self.dpp: self.src|=R[0]
        elif mn.startswith('ds_'):
            self.cls='ds'
            if mn.startswith(('ds_read','ds_bpermute','ds_permute','ds_swizzle')):
                self.dst=R[0]; self.src=allr(R[1:])
            else:
                self.src=allr(R)
        elif mn.startswith(('buffer_','global_','flat_')):
            self.cls='vmem'
            toks=(mods+' '+(ops[-1] if ops else '')).split()
            self.lds=('lds' in mods.split())
            if 'load' in mn and not self.lds:
                self.dst=R[0]; self.src=allr(R[1:])
            elif 'atomic' in mn and 'sc0' in mods.split():
                self.dst=R[0] ; self.src=allr(R)
            else:
                self.src=allr(R)
            if 'store' in mn and ('x3' in mn or 'x4' in mn):
                self.wide_store=True
            if self.lds: self.src|={('s','m0')}
        elif mn.startswith('s_'):
            self.cls='salu'
            if mn=='s_nop': self.states=int(ops[0],0)+1
            if mn.startswith(('s_branch','s_cbranch')):
                self.is_branch=True; self.target=ops[0]; self.uncond=(mn=='s_branch')
            if mn.startswith(NO_DST_S): self.src=allr(R)
            else:
                self.dst=R[0] if R else set(); self.src=allr(R[1:])
                if 'saveexec' in mn: self.dst|={('s','exec_lo'),('s','exec_hi')}
        else:
            raise ValueError('unknown instr: '+text)

def store_data(i):
    if i.mn.startswith('buffer_'): return regs_of(i.ops[0])
    return regs_of(i.ops[1])

def need(p, c):
    n=0
    vreg=lambda s:{r for r in s if r[0] in 'va'}
    sreg=lambda s:{r for r in s if r[0]=='s'}
    if p.cls=='valu':
        pv=vreg(p.dst); ps=sreg(p.dst)
        if c.cls=='mfma' and pv & c.src: n=max(n,2)
        if c.cls=='valu':
            if c.dpp and pv & c.src: n=max(n,2)
            if c.perm and pv & c.src: n=max(n,2)
            if c.lane and pv & c.src: n=max(n,1)
            if p.trans and not c.trans and pv & c.src: n=max(n,1)
            if ps & c.src: n=max(n, 4 if c.lane else 2)
        if p.mn.startswith('v_dot'):
            same = (c.mn==p.mn)
            if same:
                ab=set()
                for o in c.ops[1:3]: ab|=regs_of(o)
                if pv & ab: n=max(n,3)
            elif pv & (c.src|c.dst): n=max(n,3)
        if c.cls=='vmem' and ps & c.src: n=max(n,5)
        if p.trans and c.cls in('ds','vmem') and pv & c.src: n=max(n,1)
    if p.cls=='mfma':
        raw = 8 if p.passes==4 else 12
        if c.cls=='mfma':
            if c.srcAB & p.dst: n=max(n,raw)
            if c.srcC & p.dst:
                if not (c.srcC==p.dst and c.mn==p.mn): n=max(n, 6 if p.passes==4 else 10)
            if (c.dst & p.dst) and not (c.srcC & p.dst): n=max(n, 6 if p.passes==4 else 10)
        elif c.cls in ('valu','ds','vmem'):
            if (c.src|c.dst) & p.dst: n=max(n,raw)
            if c.cls=='valu' and c.dst & p.srcC: n=max(n, 3 if p.passes==4 else 7)
    if p.cls=='salu':
        if ('s','m0') in p.dst and c.lds: n=max(n,1)
    if p.cls=='vmem' and p.wide_store:
        d=store_data(p)
        if c.cls=='valu' and c.dst & d: n=max(n,2)
        elif c.dst & d: n=max(n,1)
    return n

def hazard_pass(lines, verbose=False):
    ins=[Ins(l) for l in lines]
    total=0
    def cfg():
        labels={i.label:k for k,i in enumerate(ins) if i.label}
        preds={}
        for k,i in enumerate(ins):
            if i.is_branch and i.target in labels:
                preds.setdefault(labels[i.target],[]).append(k)
        return preds
    for rounds in range(10):
        changed=False
        preds=cfg()
        k=0
        while k<len(ins):
            c=ins[k]
            if c.cls in ('label','comment'):
                k+=1; continue
            stack=[(k-1,0)]; seen={}
            worst=0
            while stack:
                j,d=stack.pop()
                if j<0 or d>=13: continue
                if seen.get(j,99)<=d: continue
                seen[j]=d
                p=ins[j]
                if p.cls=='label':
                    for q in preds.get(j,[]): stack.append((q,d))
                    jj=j-1
                    while jj>=0 and ins[jj].cls=='comment': jj-=1
                    if jj>=0 and (ins[jj].uncond or ins[jj].mn in('s_endpgm','s_setpc_b64')): continue
                    stack.append((j-1,d)); continue
                if p.cls=='comment':
                    stack.append((j-1,d)); continue
                r=need(p,c)
                if r>d: worst=max(worst,r-d)
                stack.append((j-1,d+p.states))
            if worst>0:
                if verbose: print('hazard: insert',worst,'before',c.text)
                ins.insert(k,Ins('  s_nop %d'%(worst-1))); total+=worst
                preds=cfg(); changed=True
                k+=1
            k+=1
        if not changed: break
    return [i.text for i in ins], total

class Gen:
    def __init__(self):
        self.lines=[]; self.vm={}; self.lg={}; self.uid=0; self.smem=False
    def raw(self,t): self.lines.append(t)
    def c(self,t): self.lines.append('; '+t)
    def label(self,n): self.lines.append(n+':')
    def newlabel(self,base):
        self.uid+=1; return 'L_%s_%d'%(base,self.uid)
    def I(self,t,tag=None):
        mn=t.split()[0]
        if mn.startswith(('buffer_','global_')):
            for k in self.vm: self.vm[k]+=1
            if tag is not None: self.vm[tag]=0
        elif mn.startswith('ds_'):
            assert not self.smem, 'DS op with SMEM outstanding'
            for k in self.lg: self.lg[k]+=1
            if tag is not None: self.lg[tag]=0
        elif mn.startswith('s_load') or mn.startswith('s_memtime') or mn.startswith('s_memrealtime'):
            self.smem=True
        self.lines.append('  '+t)
    def _done(self,d,n):
        for k in [k for k,v in d.items() if v>=n]: del d[k]
    def wait(self,vm=None,lg=None):
        parts=[]
        if vm is not None:
            tags = vm if isinstance(vm,(list,tuple)) else [vm]
            if 'all' in tags: n=0
            else:
                ns=[self.vm[t] for t in tags if t in self.vm]
                n=min(ns) if ns else None
            if n is not None and n<63:
                parts.append('vmcnt(%d)'%n); self._done(self.vm,n)
            elif n is not None: self._done(self.vm,63)
        if lg is not None:
            tags = lg if isinstance(lg,(list,tuple)) else [lg]
            if 'all' in tags: n=0; self.smem=False
            else:
                ns=[self.lg[t] for t in tags if t in self.lg]
                n=min(ns) if ns else None
            if n is not None and n<15:
                assert n==0 or not self.smem
                parts.append('lgkmcnt(%d)'%n); self._done(self.lg,n)
            elif n is not None: self._done(self.lg,15)
        if parts: self.lines.append('  s_waitcnt '+' '.join(parts))
    def snapshot(self): return (dict(self.vm),dict(self.lg))
    def restore(self,s): self.vm,self.lg=dict(s[0]),dict(s[1])
    def merge(self,s):
        for a,b in ((self.vm,s[0]),(self.lg,s[1])):
            for k,v in b.items():
                a[k]=min(a[k],v) if k in a else v
    def text(self, verbose=False):
        l,n=hazard_pass(self.lines,verbose)
        return '\n'.join(l)+'\n', n
```

```python
import sys, os, argparse
from asmgen import Gen

KN = "parallel_sum__ssm_conv_s5__mixer_token_mlp__prompt_kernel"

WS_HT    = 0x000000
WS_STAT  = 0x1C0000
WS_E     = 0x1C4000
WS_FH    = 0x1E0000
WS_FG    = 0x1E4000
WS_GT    = 0x200000
WS_HP    = 0x400000
WS_DBG   = 0x800000

RING   = 6
LDS_X  = 0
LDS_R  = 57344
LDS_TOTAL = LDS_R + 4*RING*4096

P_X, P_LRE, P_LIM, P_BRE, P_BIM, P_CRE, P_CIM, P_LDT = 4,6,8,10,12,14,16,18
P_DSK = 20
P_W1, P_B1, P_W2, P_B2 = 24,26,28,30
P_OUT, P_DBG, P_WS = 32,34,36
SRD_X, SRD_WS, SRD_1, SRD_2, SRD_W, SRD_OUT = 40,44,48,52,56,60
S_W, S_WH, S_WL, S_C, S_G, S_DT1, S_FT, S_HASG1 = 64,65,66,67,68,69,70,71
S_MASK, S_ONES = 72, 73
S_A, S_B, S_WO, S_T0, S_T1, S_T2, S_T3, S_BOUND = 76,77,78,79,80,81,82,83
S_STAMP0 = 84
def sp(n): return f's[{n}:{n+1}]'
def srd(n): return f's[{n}:{n+3}]'
def vr(a,n): return f'v[{a}:{a+n-1}]' if n>1 else f'v{a}'
def ar(a,n): return f'a[{a}:{a+n-1}]' if n>1 else f'a{a}'

V_LANE, V_L16 = 0, 1
V_TR = 2
V_DMA = 6
V_T = 16
V_LR,V_LI,V_K1,V_K2,V_SR,V_SI,V_PR,V_PI,V_L64R,V_L64I,V_L512R,V_L512I = range(40,52)
V_IN = 52
V_X64 = 56
V_BF = 112
V_RAW = 224
V_ACC = 56
V_RING = 120

class K(Gen):
    def __init__(self, opt):
        super().__init__(); self.opt=opt; self.nstamp=0
    def stamp(self, name):
        if not self.opt.stamps: return
        i=self.nstamp; self.nstamp+=1
        assert i<14
        self.c(f'stamp {i}: {name}')
        self.wait(lg='all')
        self.I('s_memrealtime s[98:99]'); self.I('s_waitcnt lgkmcnt(0)'); self.smem=False
        self.I(f's_mov_b32 s{S_STAMP0+i}, s98')
        self.stampnames=getattr(self,'stampnames',[])+[name]
    def rnd_bf16(self, v):
        self.I(f'v_cvt_pk_bf16_f32 v{v}, v{v}, v{v}')
        self.I(f'v_lshlrev_b32 v{v}, 16, v{v}')
    def make_srd(self, s, ptr, nbytes):
        self.I(f's_mov_b32 s{s}, s{ptr}'); self.I(f's_and_b32 s{s+1}, s{ptr+1}, 0xffff')
        self.I(f's_mov_b32 s{s+2}, {nbytes}'); self.I(f's_mov_b32 s{s+3}, 0x20000')
    def ln_stats(self, SUM, SSQ, R, C, T):
        I=self.I
        I(f'v_mul_f32 v{SUM}, 0x3b124925, v{SUM}')
        I(f'v_mul_f32 v{SSQ}, 0x3b124925, v{SSQ}')
        I(f'v_fma_f32 v{SSQ}, -v{SUM}, v{SUM}, v{SSQ}')
        I(f'v_max_f32 v{SSQ}, 0, v{SSQ}')
        I(f'v_cvt_pk_bf16_f32 v{SUM}, v{SUM}, v{SUM}')
        I(f'v_cvt_pk_bf16_f32 v{SSQ}, v{SSQ}, v{SSQ}')
        I(f'v_lshlrev_b32 v{SUM}, 16, v{SUM}')
        I(f'v_lshlrev_b32 v{SSQ}, 16, v{SSQ}')
        I(f'v_add_f32 v{SSQ}, 0x3727c5ac, v{SSQ}')
        self.rnd_bf16(SSQ)
        I(f'v_sqrt_f32 v{SSQ}, v{SSQ}')
        self.rnd_bf16(SSQ)
        I(f'v_rcp_f32 v{R}, v{SSQ}')
        I(f'v_mul_f32 v{C}, v{SUM}, v{R}')
        I(f'v_sub_f32 v{C}, 0, v{C}')
    def dot_sums(self, regs, accs):
        I=self.I
        for n,d in enumerate(regs):
            s,q = accs[2*(n&1)], accs[2*(n&1)+1]
            if n<2:
                I(f'v_dot2_f32_bf16 v{s}, v{d}, s{S_ONES}, 0')
                I(f'v_dot2_f32_bf16 v{q}, v{d}, v{d}, 0')
            else:
                I(f'v_dot2_f32_bf16 v{s}, v{d}, s{S_ONES}, v{s}')
                I(f'v_dot2_f32_bf16 v{q}, v{d}, v{d}, v{q}')
        I(f'v_add_f32 v{accs[0]}, v{accs[0]}, v{accs[2]}')
        I(f'v_add_f32 v{accs[1]}, v{accs[1]}, v{accs[3]}')
    def normalize(self, regs, R, C, tmps, hook=None):
        I=self.I
        n=len(tmps)
        for b in range(0,len(regs),n):
            grp=regs[b:b+n]
            for d,t in zip(grp,tmps):
                I(f'v_lshlrev_b32 v{t}, 16, v{d}')
                I(f'v_and_b32 v{t+1}, s{S_MASK}, v{d}')
            for d,t in zip(grp,tmps):
                I(f'v_pk_fma_f32 v[{t}:{t+1}], v[{t}:{t+1}], v[{R}:{R+1}], v[{C}:{C+1}] op_sel_hi:[1,0,0]')
            for d,t in zip(grp,tmps):
                I(f'v_cvt_pk_bf16_f32 v{d}, v{t}, v{t+1}')
            if hook: hook(b//n)
    def cmul(self, dr, di, xr, xi, yr, yi, t0, t1):
        I=self.I
        I(f'v_mul_f32 v{t0}, v{xi}, v{yi}')
        I(f'v_mul_f32 v{t1}, v{xi}, v{yr}')
        I(f'v_fma_f32 v{t0}, v{xr}, v{yr}, -v{t0}')
        I(f'v_fma_f32 v{di}, v{xr}, v{yi}, v{t1}')
        I(f'v_mov_b32 v{dr}, v{t0}')
    def cfma(self, dr, di, xr, xi, yr, yi, zr, zi, t0, t1):
        I=self.I
        I(f'v_fma_f32 v{t0}, v{xr}, v{yr}, v{zr}')
        I(f'v_fma_f32 v{t1}, v{xr}, v{yi}, v{zi}')
        I(f'v_fma_f32 v{t0}, -v{xi}, v{yi}, v{t0}')
        I(f'v_fma_f32 v{di}, v{xi}, v{yr}, v{t1}')
        I(f'v_mov_b32 v{dr}, v{t0}')
    def csq(self, dr, di, xr, xi, t0):
        I=self.I
        I(f'v_mul_f32 v{t0}, v{xi}, v{xi}')
        I(f'v_mul_f32 v{di}, v{xr}, v{xi}')
        I(f'v_fma_f32 v{dr}, v{xr}, v{xr}, -v{t0}')
        I(f'v_add_f32 v{di}, v{di}, v{di}')
    def allgather_q(self, v, g0, g1, g2, g3):
        I=self.I
        I(f'v_mov_b32 v{g0}, v{v}'); I(f'v_mov_b32 v{g1}, v{v}')
        I(f'v_permlane16_swap_b32 v{g0}, v{g1}')
        I(f'v_mov_b32 v{g2}, v{g0}'); I(f'v_mov_b32 v{g3}, v{g1}')
        I(f'v_permlane32_swap_b32 v{g0}, v{g2}')
        I(f'v_permlane32_swap_b32 v{g1}, v{g3}')
    def exec_full(self): self.I('s_mov_b64 exec, -1')
    def exec_set(self, lo, hi):
        self.I(f's_mov_b32 exec_lo, {lo}'); self.I(f's_mov_b32 exec_hi, {hi}')
    def poll(self, name, voff, base, cmp_ge, nlanes_lo=None):
        I=self.I
        L=self.newlabel('poll'); D=self.newlabel('polld')
        I(f's_mov_b32 s{S_BOUND}, 0x200000')
        self.label(L)
        I(f'global_load_dword v7, v{voff}, {sp(base)} sc1')
        I('s_waitcnt vmcnt(0)'); self.vm={}
        I(f'v_cmp_gt_u32 vcc, {cmp_ge}, v7')
        I(f's_cbranch_vccz {D}')
        I(f's_sub_u32 s{S_BOUND}, s{S_BOUND}, 1')
        I(f's_cbranch_scc0 {L}')
        self.label(D)

    def ring_setup(self, pitch, xorsel):
        I=self.I
        I(f'v_lshrrev_b32 v7, 3, v{V_LANE}'); I(f'v_and_b32 v8, 7, v{V_LANE}')
        I('v_and_b32 v9, 6, v7'); I('v_xor_b32 v8, v8, v9'); I('v_lshlrev_b32 v8, 4, v8')
        I(f'v_mul_u32_u24 v7, {pitch}, v7'); I(f'v_add_u32 v{V_DMA}, v7, v8')
        I(f'v_lshrrev_b32 v7, 2, v{V_LANE}'); I('v_and_b32 v8, 6, v7')
        I(f'v_bfe_u32 v9, v{V_LANE}, 1, 1'); I('v_xor_b32 v8, v8, v9'); I('v_lshlrev_b32 v8, 4, v8')
        I('v_lshlrev_b32 v7, 7, v7'); I('v_add_u32 v7, v7, v8')
        I(f'v_and_b32 v9, 1, v{V_LANE}'); I('v_lshlrev_b32 v9, 3, v9'); I('v_add_u32 v7, v7, v9')
        I(f's_lshl_b32 s{S_T0}, s{xorsel}, 6')
        I(f'v_xor_b32 v7, s{S_T0}, v7')
        I(f's_mul_i32 s{S_T0}, s{S_W}, {RING*4096}'); I(f's_add_u32 s{S_T0}, s{S_T0}, {LDS_R}')
        I(f'v_add_u32 v{V_TR}, s{S_T0}, v7')
        for x in range(1,4):
            I(f'v_xor_b32 v{V_TR+x}, {x<<5}, v{V_TR}')
    def ring_issue(self, kl, pitch, tagp):
        I=self.I
        slot=kl%RING
        for j in range(4):
            if j==0:
                I(f's_mul_i32 s{S_T0}, s{S_W}, {RING*4096}')
                I(f's_add_u32 m0, s{S_T0}, {LDS_R+slot*4096}')
            else:
                I('s_add_u32 m0, m0, 0x400')
            if not (kl==0 and j==0): I(f's_add_u32 s{S_WO}, s{S_WO}, {8*pitch}')
            else: I('s_nop 0')
            I(f'buffer_load_dwordx4 v{V_DMA}, {srd(SRD_W)}, s{S_WO} offen lds', tag=(tagp,kl))
    def ring_read(self, kl, tagp):
        I=self.I
        slot=kl%RING
        self.wait(vm=[(tagp,kl)])
        for x in range(4):
            b=16*kl+4*x
            I(f'ds_read_b64_tr_b16 {ar(b,2)}, v{V_TR+x} offset:{slot*4096}', tag=(tagp,'r',kl))
            I(f'ds_read_b64_tr_b16 {ar(b+2,2)}, v{V_TR+x} offset:{slot*4096+2048}', tag=(tagp,'r',kl))
    def ring_service(self, kl, nsteps, pitch, tagp):
        self.ring_read(kl, tagp)
        if kl+RING<nsteps:
            self.wait(lg=[(tagp,'r',kl)])
            self.ring_issue(kl+RING, pitch, tagp)

    def reduce(self, tmp):
        I=self.I
        for e in (1,2,3):
            I(f's_xor_b32 s{S_T0}, s{S_W}, {e}'); I(f's_mul_i32 s{S_T0}, s{S_T0}, {3*4096}')
            I(f's_add_u32 s{S_T0}, s{S_T0}, {LDS_X+(e-1)*4096}')
            I(f'v_add_u32 v7, s{S_T0}, v{V_L16}')
            xh,yh=e>>1,e&1
            for xl in range(2):
                for yl in range(2):
                    a=V_ACC+16*(2*xh+xl)+4*(2*yh+yl)
                    I(f'ds_write_b128 v7, {vr(a,4)} offset:{(2*xl+yl)*1024}', tag='redw')
        self.wait(lg='all'); I('s_barrier')
        I(f's_mul_i32 s{S_T0}, s{S_W}, {3*4096}'); I(f'v_add_u32 v7, s{S_T0}, v{V_L16}')
        for e in range(3):
            for sub in range(4):
                I(f'ds_read_b128 {vr(tmp+16*e+4*sub,4)}, v7 offset:{LDS_X+e*4096+sub*1024}', tag=('red',e))
        for e in range(3):
            self.wait(lg=[('red',e)])
            for sub in range(4):
                a=V_ACC+16*(sub>>1)+4*(sub&1)
                for h in range(2):
                    I(f'v_pk_add_f32 v[{a+2*h}:{a+2*h+1}], v[{a+2*h}:{a+2*h+1}], v[{tmp+16*e+4*sub+2*h}:{tmp+16*e+4*sub+2*h+1}]')

    def prologue(self):
        I=self.I
        I('s_cmp_ge_u32 s2, 256'); I('s_cbranch_scc1 L_exit')
        I('s_load_dwordx16 s[4:19], s[0:1], 0')
        I('s_load_dwordx2 s[20:21], s[0:1], 64')
        I('s_load_dwordx8 s[24:31], s[0:1], 80')
        I('s_load_dwordx4 s[32:35], s[0:1], 112')
        I('s_load_dwordx2 s[36:37], s[0:1], 128')
        I('v_lshrrev_b32 v7, 6, v0'); I(f'v_and_b32 v{V_LANE}, 63, v0')
        I(f'v_readfirstlane_b32 s{S_W}, v7')
        I(f'v_lshlrev_b32 v{V_L16}, 4, v{V_LANE}')
        I(f's_mov_b32 s{S_MASK}, 0xffff0000'); I(f's_mov_b32 s{S_ONES}, 0x3f803f80')
        I('s_and_b32 s22, s2, 7')
        I('s_lshr_b32 s23, s2, 3')
        I('s_and_b32 s38, s22, 1')
        I('s_lshr_b32 s39, s22, 1')
        I(f's_lshr_b32 s{S_WH}, s{S_W}, 1'); I(f's_and_b32 s{S_WL}, s{S_W}, 1')
        I(f's_and_b32 s{S_T0}, s23, 7'); I(f's_lshl_b32 s{S_T1}, s39, 3'); I(f's_add_u32 s{S_C}, s{S_T0}, s{S_T1}')
        I(f's_lshr_b32 s{S_T0}, s23, 3'); I(f's_lshl_b32 s{S_T1}, s38, 2'); I(f's_add_u32 s{S_G}, s{S_T0}, s{S_T1}')
        I(f's_mul_i32 s{S_T0}, s23, 37'); I(f's_lshr_b32 s{S_T0}, s{S_T0}, 8')
        I(f's_add_u32 s{S_DT1}, s{S_T0}, s{S_T1}'); I(f's_min_u32 s{S_DT1}, s{S_DT1}, 6')
        I(f's_mul_i32 s{S_T0}, s{S_T0}, 7'); I(f's_sub_u32 s{S_T0}, s23, s{S_T0}')
        I(f's_mul_i32 s{S_T1}, s39, 7'); I(f's_add_u32 s{S_FT}, s{S_T0}, s{S_T1}')
        I(f's_mul_i32 s{S_T0}, s38, 7'); I(f's_sub_u32 s{S_T0}, 28, s{S_T0}')
        I(f's_cmp_lt_u32 s23, s{S_T0}'); I(f's_cselect_b32 s{S_HASG1}, 1, 0')
        I(f's_lshl_b32 s{S_T0}, s38, 3'); I(f's_sub_u32 s{S_T0}, 32, s{S_T0}')
        I(f's_cmp_lt_u32 s23, s{S_T0}'); I('s_cselect_b32 s74, 1, 0')
        I('s_lshr_b32 s3, s2, 2'); I('s_lshl_b32 s3, s3, 5')
        I(f's_lshl_b32 s{S_T0}, s{S_WH}, 4'); I(f's_add_u32 s3, s3, s{S_T0}')
        I(f's_and_b32 s{S_T0}, s2, 3'); I(f's_lshl_b32 s{S_T0}, s{S_T0}, 2'); I(f's_add_u32 s3, s3, s{S_T0}')
        I(f's_lshl_b32 s{S_T0}, s{S_WL}, 1'); I(f's_add_u32 s75, s3, s{S_T0}')
        I(f's_mul_i32 s{S_T2}, s75, 896')
        I(f'v_and_b32 v7, 31, v{V_LANE}'); I(f'v_lshrrev_b32 v8, 5, v{V_LANE}')
        I('v_mul_u32_u24 v8, 896, v8'); I('v_lshlrev_b32 v9, 5, v7'); I('v_add_u32 v8, v8, v9')
        I('v_mov_b32 v9, 0x7ffffff0'); I('v_cmp_gt_u32 vcc, 28, v7'); I('v_cndmask_b32 v8, v9, v8, vcc')
        self.wait(lg='all')
        self.make_srd(SRD_X, P_X, 2048*896)
        I(f'buffer_load_dwordx4 {vr(V_T,4)}, v8, {srd(SRD_X)}, s{S_T2} offen', tag='x8')
        I(f'buffer_load_dwordx4 {vr(V_T+4,4)}, v8, {srd(SRD_X)}, s{S_T2} offen offset:16', tag='x8')
        I('s_getpc_b64 s[98:99]'); self.label('L_pc0')
        I(f's_sub_u32 s98, s98, L_pc0-{KN}'); I('s_subb_u32 s99, s99, 0')
        I(f's_and_b32 s{S_T0}, s23, 15'); I(f's_lshl_b32 s{S_T0}, s{S_T0}, 12')
        I(f's_lshl_b32 s{S_T1}, s{S_W}, 10'); I(f's_add_u32 s{S_T0}, s{S_T0}, s{S_T1}')
        I(f'v_add_u32 v9, s{S_T0}, v{V_L16}')
        I(f'v_min_u32 v9, L_code_end-{KN}-16, v9')
        I('global_load_dwordx4 v[12:15], v9, s[98:99]', tag='pf')
        self.make_srd(SRD_WS, P_WS, 0x10000000)
        self.stamp('start')

    def issue_phase0_loads(self):
        I=self.I
        I(f'v_and_b32 v7, 15, v{V_LANE}'); I('v_lshrrev_b32 v8, 2, v7'); I('v_lshlrev_b32 v8, 4, v8')
        I('v_and_b32 v9, 3, v7'); I('v_add_u32 v8, v8, v9'); I('v_mul_u32_u24 v8, 896, v8')
        I(f'v_lshrrev_b32 v9, 4, v{V_LANE}'); I('v_lshlrev_b32 v9, 4, v9'); I('v_add_u32 v8, v8, v9')
        I(f's_lshl_b32 s{S_T0}, s{S_C}, 6'); I(f's_lshl_b32 s{S_T1}, s{S_W}, 2'); I(f's_add_u32 s{S_T0}, s{S_T0}, s{S_T1}')
        I(f's_mul_i32 s{S_T0}, s{S_T0}, 896')
        for j in range(14):
            I(f'buffer_load_dwordx4 {vr(V_X64+4*j,4)}, v8, {srd(SRD_X)}, s{S_T0} offen offset:{64*j}', tag='x64')
        self.make_srd(SRD_1, P_BRE, 448*896); self.make_srd(SRD_2, P_BIM, 448*896)
        I('v_mul_u32_u24 v8, 896, v7'); I('v_add_u32 v8, v8, v9')
        I(f's_lshl_b32 s{S_T0}, s{S_G}, 6'); I(f's_lshl_b32 s{S_T1}, s{S_W}, 4'); I(f's_add_u32 s{S_T0}, s{S_T0}, s{S_T1}')
        I(f's_mul_i32 s{S_T1}, s{S_T0}, 896')
        I(f'v_add_u32 v10, s{S_T0}, v7'); I('v_lshlrev_b32 v10, 1, v10')
        I(f'global_load_ushort v{V_IN}, v10, {sp(P_LRE)}', tag='lam')
        I(f'global_load_ushort v{V_IN+1}, v10, {sp(P_LIM)}', tag='lam')
        I(f'global_load_ushort v{V_IN+2}, v10, {sp(P_LDT)}', tag='lam')
        for j in range(14):
            I(f'buffer_load_dwordx4 {vr(V_BF+4*j,4)}, v8, {srd(SRD_1)}, s{S_T1} offen offset:{64*j}', tag=('bf',j))
            I(f'buffer_load_dwordx4 {vr(V_BF+56+4*j,4)}, v8, {srd(SRD_2)}, s{S_T1} offen offset:{64*j}', tag=('bf',j))

    def ln8(self):
        I=self.I
        D=list(range(V_T,V_T+8)); SUM,SSQ,S2,Q2=24,25,26,27; R,C=28,30; TM=[32,34,36,38]
        self.wait(vm=['x8'])
        def reduce32():
            for rot in (8,4,2,1):
                I(f'v_add_f32_dpp v{SUM}, v{SUM}, v{SUM} row_ror:{rot} row_mask:0xf bank_mask:0xf')
                I(f'v_add_f32_dpp v{SSQ}, v{SSQ}, v{SSQ} row_ror:{rot} row_mask:0xf bank_mask:0xf')
            I(f'v_mov_b32 v{S2}, v{SUM}'); I(f'v_mov_b32 v{Q2}, v{SSQ}')
            I(f'v_permlane16_swap_b32 v{SUM}, v{S2}'); I(f'v_permlane16_swap_b32 v{SSQ}, v{Q2}')
            I(f'v_add_f32 v{SUM}, v{SUM}, v{S2}'); I(f'v_add_f32 v{SSQ}, v{SSQ}, v{Q2}')
        self.dot_sums(D,[SUM,SSQ,S2,Q2]); reduce32()
        self.ln_stats(SUM,SSQ,R,C,None)
        I(f'v_mov_b32 v10, v{SUM}'); I(f'v_mov_b32 v11, v{R}')
        I(f'v_lshrrev_b32 v8, 5, v{V_LANE}'); I('v_lshlrev_b32 v8, 3, v8')
        I(f's_lshl_b32 s{S_T0}, s75, 3'); I(f's_add_u32 s{S_T0}, s{S_T0}, {WS_STAT}')
        self.exec_set(1,1)
        I(f'buffer_store_dwordx2 v[10:11], v8, {srd(SRD_WS)}, s{S_T0} offen sc1', tag='st0')
        self.exec_full()
        I(f'v_and_b32 v7, 31, v{V_LANE}'); I('v_cmp_gt_u32 vcc, 28, v7')
        I(f'v_cndmask_b32 v{R}, 0, v{R}, vcc'); I(f'v_cndmask_b32 v{C}, 0, v{C}, vcc')
        self.normalize(D,R,C,TM)
        self.dot_sums(D,[SUM,SSQ,S2,Q2]); reduce32()
        self.ln_stats(SUM,SSQ,R,C,None)
        self.normalize(D,R,C,TM)
        I(f'v_lshrrev_b32 v8, 5, v{V_LANE}'); I(f's_lshl_b32 s{S_T0}, s{S_W}, 1'); I(f'v_add_u32 v8, s{S_T0}, v8')
        I('v_mul_u32_u24 v8, 960, v8'); I('v_lshlrev_b32 v9, 5, v7'); I('v_add_u32 v8, v8, v9')
        self.exec_set('0x0fffffff','0x0fffffff')
        I(f'ds_write_b128 v8, {vr(V_T,4)} offset:{LDS_X}'); I(f'ds_write_b128 v8, {vr(V_T+4,4)} offset:{LDS_X+16}')
        self.exec_full()
        self.wait(lg='all'); I('s_barrier')
        I(f'v_and_b32 v7, 15, v{V_LANE}'); I('v_lshrrev_b32 v8, 2, v7'); I('v_mul_u32_u24 v8, 960, v8')
        I(f'v_lshrrev_b32 v9, 4, v{V_LANE}'); I('v_lshlrev_b32 v10, 5, v9'); I('v_add_u32 v8, v8, v10')
        I(f'v_and_b32 v10, 3, v{V_LANE}'); I('v_lshlrev_b32 v10, 3, v10'); I('v_add_u32 v8, v8, v10')
        I(f's_lshl_b32 s{S_T0}, s{S_W}, 7'); I(f'v_add_u32 v8, s{S_T0}, v8')
        I('v_lshlrev_b32 v9, 10, v9'); I('v_lshlrev_b32 v7, 4, v7'); I('v_add_u32 v9, v9, v7')
        I(f's_lshr_b32 s{S_T0}, s2, 2'); I(f's_lshl_b32 s{S_T0}, s{S_T0}, 12')
        I(f's_and_b32 s{S_T1}, s2, 3'); I(f's_lshl_b32 s{S_T1}, s{S_T1}, 8'); I(f's_add_u32 s{S_T0}, s{S_T0}, s{S_T1}')
        I(f's_lshl_b32 s{S_T1}, s{S_W}, 18'); I(f's_add_u32 s{S_T0}, s{S_T0}, s{S_T1}')
        I(f'ds_read_b64_tr_b16 v[16:17], v8 offset:{LDS_X}', tag='t0')
        I(f'ds_read_b64_tr_b16 v[18:19], v8 offset:{LDS_X+3840}', tag='t0')
        Lskip=self.newlabel('ln8skip')
        I(f's_cmp_eq_u32 s{S_W}, 3'); I(f's_cbranch_scc1 {Lskip}')
        snap=self.snapshot()
        I(f'ds_read_b64_tr_b16 v[20:21], v8 offset:{LDS_X+512}', tag='t1')
        I(f'ds_read_b64_tr_b16 v[22:23], v8 offset:{LDS_X+512+3840}', tag='t1')
        I(f's_add_u32 s{S_T1}, s{S_T0}, {4*262144}')
        self.wait(lg='all')
        I(f'buffer_store_dwordx4 v[20:23], v9, {srd(SRD_WS)}, s{S_T1} offen sc1', tag='st0')
        self.label(Lskip); self.merge(snap)
        self.wait(lg='all')
        I(f'buffer_store_dwordx4 v[16:19], v9, {srd(SRD_WS)}, s{S_T0} offen sc1', tag='st0')
        Ln=self.newlabel('noclr')
        I(f's_cmp_lg_u32 s{S_W}, 3'); I(f's_cbranch_scc1 {Ln}')
        I('s_cmp_eq_u32 s74, 0'); I(f's_cbranch_scc1 {Ln}')
        snap=self.snapshot()
        I('v_mov_b32 v10, -1'); I('v_mov_b32 v11, -1'); I(f'v_lshlrev_b32 v8, 3, v{V_LANE}')
        I(f's_lshl_b32 s{S_T0}, s{S_G}, 5'); I(f's_add_u32 s{S_T0}, s{S_T0}, s{S_C}'); I(f's_lshl_b32 s{S_T0}, s{S_T0}, 9')
        I(f's_add_u32 s{S_T0}, s{S_T0}, {WS_E}')
        I(f'buffer_store_dwordx2 v[10:11], v8, {srd(SRD_WS)}, s{S_T0} offen sc1', tag='st0')
        I(f's_mul_i32 s{S_T0}, s{S_C}, 7'); I(f's_add_u32 s{S_T0}, s{S_T0}, s{S_G}'); I(f's_lshl_b32 s{S_T0}, s{S_T0}, 6')
        I(f's_add_u32 s{S_T0}, s{S_T0}, {WS_FH}')
        I('v_mov_b32 v10, 0'); I('v_mov_b32 v8, 0')
        self.exec_set(1,0)
        I(f'buffer_store_dword v10, v8, {srd(SRD_WS)}, s{S_T0} offen sc1', tag='st0')
        Lg=self.newlabel('nog1clr')
        I(f's_cmp_eq_u32 s{S_HASG1}, 0'); I(f's_cbranch_scc1 {Lg}')
        snap2=self.snapshot()
        I(f's_mul_i32 s{S_T0}, s{S_DT1}, 28'); I(f's_add_u32 s{S_T0}, s{S_T0}, s{S_FT}'); I(f's_lshl_b32 s{S_T0}, s{S_T0}, 6')
        I(f's_add_u32 s{S_T0}, s{S_T0}, {WS_FG}')
        I(f'buffer_store_dword v10, v8, {srd(SRD_WS)}, s{S_T0} offen sc1', tag='st0')
        self.label(Lg); self.merge(snap2)
        self.exec_full()
        self.label(Ln); self.merge(snap)

    def arrive0(self):
        I=self.I
        self.wait(vm=['st0']); I('s_barrier')
        L=self.newlabel('arr')
        I(f's_cmp_lg_u32 s{S_W}, 0'); I(f's_cbranch_scc1 {L}')
        snap=self.snapshot()
        I('s_and_b32 s3, s2, 3'); I('s_lshl_b32 s3, s3, 6'); I('v_mov_b32 v8, s3'); I('v_mov_b32 v9, 1')
        self.exec_set(1,0)
        I(f'global_atomic_add v8, v9, {sp(P_DBG)} sc1')
        self.exec_full()
        self.label(L); self.merge(snap)

    def w1_setup(self):
        I=self.I
        self.make_srd(SRD_W, P_W1, 2048*3584)
        self.ring_setup(3584, S_WH)
        I(f's_mul_i32 s{S_WO}, s{S_W}, {512*3584}'); I(f's_lshl_b32 s{S_T0}, s{S_FT}, 7'); I(f's_add_u32 s{S_WO}, s{S_WO}, s{S_T0}')

    def lam_consts(self):
        I=self.I
        LRE,LIM,LDT=V_IN,V_IN+1,V_IN+2
        t=list(range(16,40))
        self.wait(vm=['lam'])
        for r in (LRE,LIM,LDT): I(f'v_lshlrev_b32 v{r}, 16, v{r}')
        I(f'v_mul_f32 v{LDT}, 0x3fb8aa3b, v{LDT}'); I(f'v_exp_f32 v{LDT}, v{LDT}')
        self.rnd_bf16(LDT)
        I(f'v_mul_f32 v16, v{LDT}, v{LRE}'); I(f'v_mul_f32 v17, v{LDT}, v{LIM}')
        I('v_mul_f32 v16, 0x3fb8aa3b, v16'); I('v_mul_f32 v17, 0.15915494, v17')
        I('v_exp_f32 v16, v16'); I('v_fract_f32 v17, v17')
        I('v_cos_f32 v18, v17'); I('v_sin_f32 v19, v17')
        I(f'v_mul_f32 v{V_LR}, v16, v18'); I(f'v_mul_f32 v{V_LI}, v16, v19')
        I(f'v_add_f32 v16, -1.0, v{V_LR}')
        I(f'v_mul_f32 v17, v{LRE}, v{LRE}'); I(f'v_fma_f32 v17, v{LIM}, v{LIM}, v17'); I('v_rcp_f32 v17, v17')
        I(f'v_mul_f32 v18, v16, v{LRE}'); I(f'v_fma_f32 v18, v{V_LI}, v{LIM}, v18')
        I(f'v_mul_f32 v19, v16, v{LIM}'); I(f'v_fma_f32 v19, v{V_LI}, v{LRE}, -v19')
        I('v_add_f32 v17, v17, v17')
        I(f'v_mul_f32 v{V_K1}, v18, v17'); I(f'v_mul_f32 v{V_K2}, v19, v17'); I(f'v_sub_f32 v{V_K2}, 0, v{V_K2}')
        self.csq(16,17,V_LR,V_LI,30); self.csq(18,19,16,17,30); self.csq(16,17,18,19,30); self.csq(20,21,16,17,30)
        self.csq(22,23,20,21,30)
        self.cmul(24,25,22,23,20,21,30,31)
        self.csq(V_L64R,V_L64I,22,23,30)
        self.csq(16,17,V_L64R,V_L64I,30); self.csq(18,19,16,17,30); self.csq(V_L512R,V_L512I,18,19,30)
        I(f'v_mov_b32 v{V_PR}, 1.0'); I(f'v_mov_b32 v{V_PI}, 0')
        for (lo,hi,r) in (('0xffff0000','-1',20),('0','-1',22),('0','0xffff0000',24)):
            self.exec_set(lo,hi); I(f'v_mov_b32 v{V_PR}, v{r}'); I(f'v_mov_b32 v{V_PI}, v{r+1}')
        self.exec_full()
        I(f'v_mov_b32 v{V_IN}, v20'); I(f'v_mov_b32 v{V_IN+1}, v21')

    def ln64(self, hook=None):
        I=self.I
        D=list(range(V_X64,V_X64+56)); SUM,SSQ,S2,Q2=24,25,26,27; R,C=28,30; TM=[32,34,36,38]
        self.wait(vm=['x64'])
        self.dot_sums(D,[SUM,SSQ,S2,Q2])
        for sw in ('16','32'):
            I(f'v_mov_b32 v{S2}, v{SUM}'); I(f'v_mov_b32 v{Q2}, v{SSQ}')
            I(f'v_permlane{sw}_swap_b32 v{SUM}, v{S2}'); I(f'v_permlane{sw}_swap_b32 v{SSQ}, v{Q2}')
            I(f'v_add_f32 v{SUM}, v{SUM}, v{S2}'); I(f'v_add_f32 v{SSQ}, v{SSQ}, v{Q2}')
        self.ln_stats(SUM,SSQ,R,C,None)
        I(f's_mul_i32 s{S_T0}, s{S_W}, {14*1024}'); I(f'v_add_u32 v8, s{S_T0}, v{V_L16}')
        def h(n):
            I(f'ds_write_b128 v8, {vr(V_X64+4*n,4)} offset:{LDS_X+n*1024}')
            if hook: hook(n)
        self.normalize(D,R,C,TM,hook=h)
        self.wait(lg='all'); I('s_barrier')

    def bu_gemm(self, hook=None):
        I=self.I
        BUF=[V_X64, V_X64+16, V_X64+32]
        def rd(j):
            for i in range(4):
                I(f'ds_read_b128 {vr(BUF[j%3]+4*i,4)}, v{V_L16} offset:{LDS_X+(i*14+j)*1024}', tag=('xa',j))
        rd(0); rd(1)
        for j in range(14):
            if j+2<14: rd(j+2)
            self.wait(vm=[('bf',j)], lg=[('xa',j)])
            for i in range(4):
                for im in range(2):
                    d=V_RAW+16*im+4*i
                    cin = vr(d,4) if j else '0'
                    I(f'v_mfma_f32_16x16x32_bf16 {vr(d,4)}, {vr(BUF[j%3]+4*i,4)}, {vr(V_BF+56*im+4*j,4)}, {cin}')
            if hook: hook(j)

    def scan1(self):
        I=self.I
        ER,EI,T0,T1=16,17,18,19
        L16R,L16I=V_IN,V_IN+1
        I(f'v_mov_b32 v{ER}, v{V_RAW}'); I(f'v_mov_b32 v{EI}, v{V_RAW+16}')
        for t in range(1,16):
            I(f'v_fma_f32 v{T0}, v{V_LR}, v{ER}, v{V_RAW+t}')
            I(f'v_fma_f32 v{T1}, v{V_LR}, v{EI}, v{V_RAW+16+t}')
            I(f'v_fma_f32 v{T0}, -v{V_LI}, v{EI}, v{T0}')
            I(f'v_fma_f32 v{EI}, v{V_LI}, v{ER}, v{T1}')
            ER,T0=T0,ER
        GR=[20,21,22,23]; GI=[24,25,26,27]
        self.allgather_q(ER,*GR); self.allgather_q(EI,*GI)
        for q in range(1,4):
            self.cfma(GR[q],GI[q],L16R,L16I,GR[q-1],GI[q-1],GR[q],GI[q],28,29)
        I(f'v_mov_b32 v{V_SR}, 0'); I(f'v_mov_b32 v{V_SI}, 0')
        for n,(lo,hi) in enumerate((('0xffff0000','-1'),('0','-1'),('0','0xffff0000'))):
            self.exec_set(lo,hi); I(f'v_mov_b32 v{V_SR}, v{GR[n]}'); I(f'v_mov_b32 v{V_SI}, v{GI[n]}')
        self.exec_full()
        I(f'v_mov_b32 v10, v{GR[3]}'); I(f'v_mov_b32 v11, v{GI[3]}')
        I(f'v_lshlrev_b32 v8, 3, v{V_LANE}')
        I(f's_lshl_b32 s{S_T0}, s{S_G}, 5'); I(f's_add_u32 s{S_T0}, s{S_T0}, s{S_C}'); I(f's_lshl_b32 s{S_T0}, s{S_T0}, 9')
        I(f's_lshl_b32 s{S_T1}, s{S_W}, 7'); I(f's_add_u32 s{S_T0}, s{S_T0}, s{S_T1}'); I(f's_add_u32 s{S_T0}, s{S_T0}, {WS_E}')
        self.exec_set('0xffff',0)
        I(f'buffer_store_dwordx2 v[10:11], v8, {srd(SRD_WS)}, s{S_T0} offen sc1', tag='stE')
        self.exec_full()

    def wait_e0(self):
        I=self.I
        I(f'v_and_b32 v8, 3, v{V_LANE}'); I('v_lshlrev_b32 v8, 6, v8')
        self.poll('e0', 8, P_DBG, 64)

    def gemm1(self):
        I=self.I
        DEP=6
        I(f's_mul_i32 s{S_A}, s{S_DT1}, 262144'); I(f's_lshl_b32 s{S_T0}, s{S_W}, 16'); I(f's_add_u32 s{S_A}, s{S_A}, s{S_T0}')
        I(f's_lshl_b32 s{S_T0}, s{S_WL}, 11'); I(f's_xor_b32 s{S_T1}, s{S_T0}, 2048')
        I(f's_add_u32 s{S_B}, s{S_A}, s{S_T1}'); I(f's_add_u32 s{S_A}, s{S_A}, s{S_T0}')
        def ld(k):
            r=V_RING+16*(k%DEP)
            for y in range(4):
                s=S_A if y<2 else S_B
                I(f'buffer_load_dwordx4 {vr(r+4*y,4)}, v{V_L16}, {srd(SRD_WS)}, s{s} offen offset:{(y&1)*1024} sc1', tag=('ht',k))
            if k<15:
                I(f's_add_u32 s{S_A}, s{S_A}, 4096'); I(f's_add_u32 s{S_B}, s{S_B}, 4096')
        for k in range(DEP): ld(k)
        for k in range(16):
            self.wait(vm=[('ht',k)])
            r=V_RING+16*(k%DEP)
            for x in range(4):
                for y in range(4):
                    d=V_ACC+16*x+4*y
                    cin=vr(d,4) if k else '0'
                    I(f'v_mfma_f32_16x16x32_bf16 {vr(d,4)}, {ar(16*k+4*x,4)}, {vr(r+4*y,4)}, {cin}')
            if k+DEP<16: ld(k+DEP)

    def finalize(self):
        I=self.I
        T=V_RING
        EL=T
        OF=T+16
        I(f's_lshl_b32 s{S_T0}, s{S_G}, 14'); I(f's_add_u32 s{S_T0}, s{S_T0}, {WS_E}')
        I(f's_add_u32 s{SRD_1}, s{P_WS}, s{S_T0}'); I(f's_addc_u32 s{SRD_1+1}, s{P_WS+1}, 0')
        I(f's_and_b32 s{SRD_1+1}, s{SRD_1+1}, 0xffff'); I(f's_mov_b32 s{SRD_1+2}, 16384'); I(f's_mov_b32 s{SRD_1+3}, 0x20000')
        I(f'v_lshrrev_b32 v8, 4, v{V_LANE}'); I('v_lshlrev_b32 v8, 12, v8')
        I(f'v_and_b32 v9, 15, v{V_LANE}'); I('v_lshlrev_b32 v9, 3, v9'); I('v_add_u32 v8, v8, v9')
        I(f's_sub_u32 s{S_T0}, s{S_C}, 32'); I(f's_lshl_b32 s{S_T0}, s{S_T0}, 9'); I(f's_lshl_b32 s{S_T1}, s{S_W}, 7')
        I(f's_add_u32 s{S_T0}, s{S_T0}, s{S_T1}'); I(f'v_add_u32 v8, s{S_T0}, v8')
        for i in range(8): I(f'v_add_u32 v{OF+i}, {512*i}, v8')
        L=self.newlabel('pollE'); Dn=self.newlabel('pollEd')
        I(f's_mov_b32 s{S_BOUND}, 0x200000')
        self.label(L)
        for i in range(8):
            I(f'buffer_load_dwordx2 {vr(EL+2*i,2)}, v{OF+i}, {srd(SRD_1)}, 0 offen sc1')
        I('s_waitcnt vmcnt(0)'); self.vm={}
        I(f'v_max3_u32 v8, v{EL}, v{EL+1}, v{EL+2}')
        for i in range(3,15,2): I(f'v_max3_u32 v8, v8, v{EL+i}, v{EL+i+1}')
        I(f'v_max_u32 v8, v8, v{EL+15}')
        I('v_cmp_eq_u32 vcc, -1, v8')
        I(f's_cbranch_vccz {Dn}')
        I(f's_sub_u32 s{S_BOUND}, s{S_BOUND}, 1'); I(f's_cbranch_scc0 {L}')
        self.label(Dn)
        QR,QI=EL,EL+1
        for i in range(1,8):
            self.cfma(QR,QI,V_L64R,V_L64I,QR,QI,EL+2*i,EL+2*i+1,16,17)
        GR=[20,21,22,23]; GI=[24,25,26,27]
        self.allgather_q(QR,*GR); self.allgather_q(QI,*GI)
        for q in range(1,4):
            self.cfma(GR[q],GI[q],V_L512R,V_L512I,GR[q-1],GI[q-1],GR[q],GI[q],28,29)
        self.cfma(V_SR,V_SI,V_PR,V_PI,GR[3],GI[3],V_SR,V_SI,28,29)
        HR,HI,T0,T1=V_SR,V_SI,16,17
        OR,OI=T+32,T+48
        for t in range(16):
            I(f'v_fma_f32 v{T0}, v{V_LR}, v{HR}, v{V_RAW+t}')
            I(f'v_fma_f32 v{T1}, v{V_LR}, v{HI}, v{V_RAW+16+t}')
            I(f'v_fma_f32 v{T0}, -v{V_LI}, v{HI}, v{T0}')
            I(f'v_fma_f32 v{HI}, v{V_LI}, v{HR}, v{T1}')
            HR,T0=T0,HR
            I(f'v_mul_f32 v{OR+t}, v{V_K1}, v{HR}'); I(f'v_mul_f32 v{OI+t}, v{V_K2}, v{HR}')
            I(f'v_fma_f32 v{OR+t}, v{V_K2}, v{HI}, v{OR+t}'); I(f'v_fma_f32 v{OI+t}, -v{V_K1}, v{HI}, v{OI+t}')
        PKR,PKI=T,T+8
        for t in range(8):
            I(f'v_cvt_pk_bf16_f32 v{PKR+t}, v{OR+2*t}, v{OR+2*t+1}'); I(f'v_cvt_pk_bf16_f32 v{PKI+t}, v{OI+2*t}, v{OI+2*t+1}')
        I(f'v_and_b32 v8, 15, v{V_LANE}'); I(f's_lshl_b32 s{S_T0}, s{S_WL}, 4'); I(f'v_add_u32 v8, s{S_T0}, v8')
        I('v_lshrrev_b32 v9, 3, v8'); I('v_lshlrev_b32 v9, 2, v9')
        I('v_and_b32 v10, 3, v8'); I('v_add_u32 v9, v9, v10')
        I('v_bfe_u32 v10, v8, 2, 1'); I('v_lshlrev_b32 v11, 4, v10'); I('v_add_u32 v9, v9, v11')
        I('v_and_b32 v11, 7, v9'); I('v_lshlrev_b32 v10, 2, v10'); I('v_xor_b32 v11, v11, v10')
        I(f'v_lshrrev_b32 v10, 4, v{V_LANE}'); I('v_lshlrev_b32 v10, 1, v10')
        I('v_xor_b32 v10, v10, v11'); I('v_lshlrev_b32 v10, 4, v10')
        I('v_lshlrev_b32 v9, 7, v9'); I('v_add_u32 v9, v9, v10')
        I(f's_lshl_b32 s{S_T0}, s{S_WH}, 12'); I(f'v_add_u32 v9, s{S_T0}, v9')
        I('v_xor_b32 v10, 16, v9')
        I('s_barrier')
        I(f'ds_write_b128 v9, {vr(PKR,4)} offset:{LDS_X}'); I(f'ds_write_b128 v10, {vr(PKR+4,4)} offset:{LDS_X}')
        I(f'ds_write_b128 v9, {vr(PKI,4)} offset:{LDS_X+8192}'); I(f'ds_write_b128 v10, {vr(PKI+4,4)} offset:{LDS_X+8192}')
        self.wait(lg='all'); I('s_barrier')
        I(f'v_lshrrev_b32 v8, 2, v{V_LANE}'); I('v_and_b32 v9, 7, v8'); I(f'v_bfe_u32 v10, v{V_LANE}, 1, 1')
        I('v_xor_b32 v9, v9, v10'); I('v_lshlrev_b32 v9, 4, v9'); I('v_lshlrev_b32 v8, 7, v8'); I('v_add_u32 v8, v8, v9')
        I(f'v_and_b32 v9, 1, v{V_LANE}'); I('v_lshlrev_b32 v9, 3, v9'); I('v_add_u32 v8, v8, v9')
        I(f's_lshl_b32 s{S_T0}, s{S_W}, 12'); I(f'v_add_u32 v8, s{S_T0}, v8')
        FR=T+32
        for nb in range(4):
            I(f'v_xor_b32 v9, {nb<<5}, v8'); I('v_xor_b32 v10, 64, v9')
            I(f'ds_read_b64_tr_b16 {vr(FR+4*nb,2)}, v9 offset:{LDS_X}', tag=('hp',nb))
            I(f'ds_read_b64_tr_b16 {vr(FR+4*nb+2,2)}, v10 offset:{LDS_X+2048}', tag=('hp',nb))
        I(f's_mul_i32 s{S_T0}, s{S_C}, {28*4096}'); I(f's_lshl_b32 s{S_T1}, s{S_G}, 14'); I(f's_add_u32 s{S_T0}, s{S_T0}, s{S_T1}')
        I(f's_lshl_b32 s{S_T1}, s{S_W}, 12'); I(f's_add_u32 s{S_T0}, s{S_T0}, s{S_T1}'); I(f's_add_u32 s{S_T0}, s{S_T0}, {WS_HP}')
        for nb in range(4):
            self.wait(lg=[('hp',nb)])
            I(f'buffer_store_dwordx4 {vr(FR+4*nb,4)}, v{V_L16}, {srd(SRD_WS)}, s{S_T0} offen offset:{nb*1024} sc1', tag='stH')
        self.wait(vm=['stH']); I('s_barrier')
        self.flag_set(S_C,7,S_G,WS_FH)

    def flag_set(self, sa, mul, sb, base):
        I=self.I
        L=self.newlabel('flag')
        I(f's_cmp_lg_u32 s{S_W}, 0'); I(f's_cbranch_scc1 {L}')
        snap=self.snapshot()
        I(f's_mul_i32 s{S_T0}, s{sa}, {mul}'); I(f's_add_u32 s{S_T0}, s{S_T0}, s{sb}'); I(f's_lshl_b32 s{S_T0}, s{S_T0}, 6')
        I(f's_add_u32 s{S_T0}, s{S_T0}, {base}')
        I('v_mov_b32 v8, 0'); I('v_mov_b32 v9, 1')
        self.exec_set(1,0)
        I(f'buffer_store_dword v9, v8, {srd(SRD_WS)}, s{S_T0} offen sc1')
        self.exec_full()
        self.label(L); self.merge(snap)

    def g_bias_load(self):
        I=self.I
        I(f'v_lshrrev_b32 v8, 4, v{V_LANE}'); I('v_lshlrev_b32 v8, 3, v8')
        I(f's_lshl_b32 s{S_T0}, s{S_FT}, 7'); I(f's_lshl_b32 s{S_T1}, s{S_WH}, 6'); I(f's_add_u32 s{S_T0}, s{S_T0}, s{S_T1}')
        I(f'v_add_u32 v8, s{S_T0}, v8')
        I(f'global_load_dwordx2 v[32:33], v8, {sp(P_B1)}', tag='b1')
        I(f'global_load_dwordx2 v[34:35], v8, {sp(P_B1)} offset:32', tag='b1')

    def g_epilogue(self):
        I=self.I
        self.reduce(V_RING)
        self.wait(vm=['b1'])
        for x in range(2):
            for h in range(2):
                I(f'v_lshlrev_b32 v{16+4*x+2*h}, 16, v{32+2*x+h}'); I(f'v_and_b32 v{17+4*x+2*h}, s{S_MASK}, v{32+2*x+h}')
        C1=-2.0*0.7978845608028654*1.4426950408889634
        C3=C1*0.044715
        import struct
        f2h=lambda f:'0x%08x'%struct.unpack('<I',struct.pack('<f',f))[0]
        I(f's_mov_b32 s{S_T2}, {f2h(C1)}'); I(f's_mov_b32 s{S_T3}, {f2h(C3)}')
        I(f'v_mov_b32 v31, s{S_T2}')
        U=[]
        for x in range(2):
            for y in range(2):
                for r in range(4):
                    U.append((V_ACC+16*x+4*y+r, 16+4*x+r))
        TT=V_RING
        for n,(u,b) in enumerate(U): I(f'v_add_f32 v{u}, v{u}, v{b}')
        for n,(u,b) in enumerate(U): I(f'v_mul_f32 v{TT+n}, v{u}, v{u}')
        for n,(u,b) in enumerate(U): I(f'v_fma_f32 v{TT+n}, v{TT+n}, s{S_T3}, v31')
        for n,(u,b) in enumerate(U): I(f'v_mul_f32 v{TT+n}, v{TT+n}, v{u}')
        for n,(u,b) in enumerate(U): I(f'v_exp_f32 v{TT+n}, v{TT+n}')
        for n,(u,b) in enumerate(U): I(f'v_add_f32 v{TT+n}, 1.0, v{TT+n}')
        for n,(u,b) in enumerate(U): I(f'v_rcp_f32 v{TT+n}, v{TT+n}')
        for n,(u,b) in enumerate(U): I(f'v_mul_f32 v{u}, v{u}, v{TT+n}')
        F=V_RING+16
        for y in range(2):
            for x in range(2):
                a=V_ACC+16*x+4*y
                I(f'v_cvt_pk_bf16_f32 v{F+4*y+2*x}, v{a}, v{a+1}'); I(f'v_cvt_pk_bf16_f32 v{F+4*y+2*x+1}, v{a+2}, v{a+3}')
        I(f's_mul_i32 s{S_T0}, s{S_DT1}, {56*4096}'); I(f's_lshl_b32 s{S_T1}, s{S_FT}, 13'); I(f's_add_u32 s{S_T0}, s{S_T0}, s{S_T1}')
        I(f's_lshl_b32 s{S_T1}, s{S_WH}, 12'); I(f's_add_u32 s{S_T0}, s{S_T0}, s{S_T1}')
        I(f's_lshl_b32 s{S_T1}, s{S_WL}, 11'); I(f's_add_u32 s{S_T0}, s{S_T0}, s{S_T1}'); I(f's_add_u32 s{S_T0}, s{S_T0}, {WS_GT}')
        for y in range(2):
            I(f'buffer_store_dwordx4 {vr(F+4*y,4)}, v{V_L16}, {srd(SRD_WS)}, s{S_T0} offen offset:{y*1024} sc1', tag='stG')
        self.wait(vm=['stG']); I('s_barrier')
        self.flag_set(S_DT1,28,S_FT,WS_FG)

    def w2_setup(self):
        I=self.I
        self.make_srd(SRD_W, P_W2, 1792*4096)
        self.ring_setup(4096, S_WL)
        I(f's_mul_i32 s{S_WO}, s{S_W}, {448*4096}'); I(f's_lshl_b32 s{S_T0}, s{S_C}, 7'); I(f's_add_u32 s{S_WO}, s{S_WO}, s{S_T0}')

    def p2_resid_loads(self):
        I=self.I
        self.make_srd(SRD_OUT, P_OUT, 2048*1792)
        I(f'v_and_b32 v7, 15, v{V_LANE}'); I(f'v_lshrrev_b32 v8, 4, v{V_LANE}')
        I('v_mul_u32_u24 v9, 896, v7'); I('v_lshlrev_b32 v10, 3, v8'); I('v_add_u32 v9, v9, v10')
        I(f's_lshl_b32 s{S_T0}, s{S_C}, 6'); I(f's_lshl_b32 s{S_T1}, s{S_WL}, 5'); I(f's_add_u32 s{S_T0}, s{S_T0}, s{S_T1}')
        I(f's_lshl_b32 s{S_T1}, s{S_G}, 6'); I(f's_lshl_b32 s{S_T2}, s{S_WH}, 5'); I(f's_add_u32 s{S_T1}, s{S_T1}, s{S_T2}')
        for y in range(2):
            for x in range(2):
                I(f's_add_u32 s{S_T2}, s{S_T0}, {16*y}'); I(f's_mul_i32 s{S_T2}, s{S_T2}, 896')
                I(f's_add_u32 s{S_T3}, s{S_T1}, {16*x}'); I(f's_lshl_b32 s{S_T3}, s{S_T3}, 1'); I(f's_add_u32 s{S_T2}, s{S_T2}, s{S_T3}')
                I(f'buffer_load_dwordx2 {vr(16+4*y+2*x,2)}, v9, {srd(SRD_X)}, s{S_T2} offen', tag='res')
        I('v_lshlrev_b32 v9, 3, v7')
        for y in range(2):
            I(f's_add_u32 s{S_T2}, s{S_T0}, {16*y}'); I(f's_lshl_b32 s{S_T2}, s{S_T2}, 3'); I(f's_add_u32 s{S_T2}, s{S_T2}, {WS_STAT}')
            I(f'buffer_load_dwordx2 {vr(24+2*y,2)}, v9, {srd(SRD_WS)}, s{S_T2} offen sc1', tag='res')
        I(f's_lshl_b32 s{S_T2}, s{S_T1}, 1'); I(f'v_add_u32 v9, s{S_T2}, v10')
        I(f'global_load_dwordx2 v[28:29], v9, {sp(P_DSK)}', tag='res')
        I(f'global_load_dwordx2 v[30:31], v9, {sp(P_DSK)} offset:32', tag='res')
        I(f'v_add_u32 v9, s{S_T0}, v7'); I('v_lshlrev_b32 v9, 1, v9')
        I(f'global_load_ushort v32, v9, {sp(P_B2)}', tag='res')
        I(f'global_load_ushort v33, v9, {sp(P_B2)} offset:32', tag='res')

    def wait_flags(self, base, idx_expr_sgpr, n):
        I=self.I
        I(f'v_min_u32 v8, {n-1}, v{V_LANE}'); I(f'v_add_u32 v8, s{idx_expr_sgpr}, v8'); I('v_lshlrev_b32 v8, 6, v8')
        I(f'v_add_u32 v8, {base}, v8')
        self.poll('f', 8, P_WS, 1)

    def p2_ssm(self):
        I=self.I
        I(f's_mul_i32 s{S_T0}, s{S_W}, 7'); I(f's_lshr_b32 s{S_T1}, s{S_T0}, 2')
        I(f's_mul_i32 s{S_T2}, s{S_C}, 7'); I(f's_add_u32 s{S_T2}, s{S_T2}, s{S_T1}')
        I(f's_add_u32 s{S_T3}, s{S_T0}, 6'); I(f's_lshr_b32 s{S_T3}, s{S_T3}, 2'); I(f's_sub_u32 s{S_T3}, s{S_T3}, s{S_T1}')
        I(f'v_min_u32 v8, s{S_T3}, v{V_LANE}'); I(f'v_add_u32 v8, s{S_T2}, v8'); I('v_lshlrev_b32 v8, 6, v8')
        I(f'v_add_u32 v8, {WS_FH}, v8')
        I(f's_mov_b32 s{SRD_1+2}, {448*896}'); I(f's_mov_b32 s{SRD_1+3}, 0x20000')
        I(f'v_and_b32 v9, 15, v{V_LANE}'); I('v_mul_u32_u24 v9, 896, v9'); I(f'v_lshrrev_b32 v10, 4, v{V_LANE}')
        I('v_lshlrev_b32 v10, 4, v10'); I('v_add_u32 v10, v9, v10'); I(f'v_add_u32 v11, {16*896}, v10')
        self.poll('fh', 8, P_WS, 1)
        SL=[V_RING+32*i for i in range(4)]
        I(f's_mul_i32 s{S_A}, s{S_C}, {28*4096}'); I(f's_mul_i32 s{S_T0}, s{S_W}, {7*4096}'); I(f's_add_u32 s{S_A}, s{S_A}, s{S_T0}')
        I(f's_add_u32 s{S_A}, s{S_A}, {WS_HP}')
        I(f's_lshl_b32 s{S_T0}, s{S_WL}, 11'); I(f's_xor_b32 s{S_T1}, s{S_T0}, 2048')
        I(f's_add_u32 s{S_B}, s{S_A}, s{S_T1}'); I(f's_add_u32 s{S_A}, s{S_A}, s{S_T0}')
        I(f's_lshl_b32 s{S_T0}, s{S_G}, 6'); I(f's_lshl_b32 s{S_T1}, s{S_WH}, 5')
        I(f's_add_u32 s22, s{S_T0}, s{S_T1}'); I('s_mul_i32 s22, s22, 896')
        I(f's_xor_b32 s{S_T1}, s{S_T1}, 32'); I(f's_add_u32 s23, s{S_T0}, s{S_T1}'); I('s_mul_i32 s23, s23, 896')
        I(f's_mul_i32 s38, s{S_W}, 7')
        def ld(i):
            r=SL[i%4]
            I(f's_lshr_b32 s{S_T0}, s38, 2'); I(f's_lshl_b32 s{S_T0}, s{S_T0}, 7')
            I(f's_and_b32 s{S_T1}, s38, 1'); I(f's_lshl_b32 s{S_T1}, s{S_T1}, 6'); I(f's_add_u32 s{S_T0}, s{S_T0}, s{S_T1}')
            I(f's_add_u32 s{S_T2}, s22, s{S_T0}'); I(f's_add_u32 s{S_T3}, s23, s{S_T0}')
            I('s_bitcmp1_b32 s38, 1')
            I(f's_cselect_b32 s{SRD_1}, s{P_CIM}, s{P_CRE}'); I(f's_cselect_b32 s{SRD_1+1}, s{P_CIM+1}, s{P_CRE+1}')
            for x in range(4):
                s=S_T2 if x<2 else S_T3
                I(f'buffer_load_dwordx4 {vr(r+4*x,4)}, v{10+(x&1)}, {srd(SRD_1)}, s{s} offen', tag=('ss',i))
            for y in range(4):
                s=S_A if y<2 else S_B
                I(f'buffer_load_dwordx4 {vr(r+16+4*y,4)}, v{V_L16}, {srd(SRD_WS)}, s{s} offen offset:{(y&1)*1024} sc1', tag=('ss',i))
            I(f's_add_u32 s{S_A}, s{S_A}, 4096'); I(f's_add_u32 s{S_B}, s{S_B}, 4096'); I('s_add_u32 s38, s38, 1')
        for i in range(4): ld(i)
        for i in range(7):
            self.wait(vm=[('ss',i)])
            r=SL[i%4]
            for x in range(4):
                for y in range(4):
                    d=V_ACC+16*x+4*y
                    cin=vr(d,4) if i else '0'
                    I(f'v_mfma_f32_16x16x32_bf16 {vr(d,4)}, {vr(r+4*x,4)}, {vr(r+16+4*y,4)}, {cin}')
            if i+4<7: ld(i+4)

    def p2_g(self):
        I=self.I
        I(f's_mul_i32 s{S_T0}, s{S_G}, 28'); I(f's_mul_i32 s{S_T1}, s{S_W}, 7'); I(f's_add_u32 s{S_T0}, s{S_T0}, s{S_T1}')
        self.wait_flags(WS_FG, S_T0, 7)
        DEP=8
        I(f's_mul_i32 s{S_A}, s{S_G}, {56*4096}'); I(f's_mul_i32 s{S_T0}, s{S_W}, {14*4096}'); I(f's_add_u32 s{S_A}, s{S_A}, s{S_T0}')
        I(f's_add_u32 s{S_A}, s{S_A}, {WS_GT}')
        I(f's_lshl_b32 s{S_T0}, s{S_WH}, 11'); I(f's_xor_b32 s{S_T1}, s{S_T0}, 2048')
        I(f's_add_u32 s{S_B}, s{S_A}, s{S_T1}'); I(f's_add_u32 s{S_A}, s{S_A}, s{S_T0}')
        def ld(k):
            r=V_RING+16*(k%DEP)
            for x in range(4):
                s=S_A if x<2 else S_B
                I(f'buffer_load_dwordx4 {vr(r+4*x,4)}, v{V_L16}, {srd(SRD_WS)}, s{s} offen offset:{(x&1)*1024} sc1', tag=('gt',k))
            if k<13:
                I(f's_add_u32 s{S_A}, s{S_A}, 4096'); I(f's_add_u32 s{S_B}, s{S_B}, 4096')
        for k in range(DEP): ld(k)
        for k in range(14):
            self.wait(vm=[('gt',k)])
            r=V_RING+16*(k%DEP)
            for x in range(4):
                for y in range(4):
                    d=V_ACC+16*x+4*y
                    I(f'v_mfma_f32_16x16x32_bf16 {vr(d,4)}, {vr(r+4*x,4)}, {ar(16*k+4*y,4)}, {vr(d,4)}')
            if k+DEP<14: ld(k+DEP)

    def p2_epilogue(self):
        I=self.I
        self.reduce(V_RING)
        self.wait(vm=['res'])
        for x in range(2):
            for h in range(2):
                I(f'v_lshlrev_b32 v{40+4*x+2*h}, 16, v{28+2*x+h}'); I(f'v_and_b32 v{41+4*x+2*h}, s{S_MASK}, v{28+2*x+h}')
        I('v_lshlrev_b32 v32, 16, v32'); I('v_lshlrev_b32 v33, 16, v33')
        T=V_RING
        for y in range(2):
            M,R=24+2*y,25+2*y
            for x in range(2):
                xs=16+4*y+2*x; a=V_ACC+16*x+4*y; t=T+8*(2*y+x)
                for h in range(2):
                    I(f'v_lshlrev_b32 v{t+2*h}, 16, v{xs+h}'); I(f'v_and_b32 v{t+2*h+1}, s{S_MASK}, v{xs+h}')
                for r in range(4): I(f'v_sub_f32 v{t+4+r}, v{t+r}, v{M}')
                for r in range(4): I(f'v_mul_f32 v{t+4+r}, v{t+4+r}, v{R}')
                for h in range(2): I(f'v_cvt_pk_bf16_f32 v{t+4+2*h}, v{t+4+2*h}, v{t+5+2*h}')
                for h in range(2):
                    I(f'v_and_b32 v{t+5+2*h}, s{S_MASK}, v{t+4+2*h}'); I(f'v_lshlrev_b32 v{t+4+2*h}, 16, v{t+4+2*h}')
                for r in range(4): I(f'v_add_f32 v{t+r}, v{t+r}, v{32+y}')
                for r in range(4): I(f'v_fma_f32 v{t+r}, v{t+4+r}, v{40+4*x+r}, v{t+r}')
                for r in range(4): I(f'v_add_f32 v{a+r}, v{a+r}, v{t+r}')
        I(f'v_and_b32 v7, 15, v{V_LANE}'); I(f'v_lshrrev_b32 v8, 4, v{V_LANE}')
        I('v_mul_u32_u24 v9, 1792, v7'); I('v_lshlrev_b32 v10, 4, v8'); I('v_add_u32 v9, v9, v10')
        I(f's_lshl_b32 s{S_T0}, s{S_C}, 6'); I(f's_lshl_b32 s{S_T1}, s{S_WL}, 5'); I(f's_add_u32 s{S_T0}, s{S_T0}, s{S_T1}')
        I(f's_lshl_b32 s{S_T1}, s{S_G}, 6'); I(f's_lshl_b32 s{S_T2}, s{S_WH}, 5'); I(f's_add_u32 s{S_T1}, s{S_T1}, s{S_T2}')
        for y in range(2):
            for x in range(2):
                I(f's_add_u32 s{S_T2}, s{S_T0}, {16*y}'); I(f's_mul_i32 s{S_T2}, s{S_T2}, 1792')
                I(f's_add_u32 s{S_T3}, s{S_T1}, {16*x}'); I(f's_lshl_b32 s{S_T3}, s{S_T3}, 2'); I(f's_add_u32 s{S_T2}, s{S_T2}, s{S_T3}')
                a=V_ACC+16*x+4*y
                I(f'buffer_store_dwordx4 {vr(a,4)}, v9, {srd(SRD_OUT)}, s{S_T2} offen')

    def write_stamps(self):
        if not self.opt.stamps: return
        I=self.I
        L=self.newlabel('nost')
        I(f's_cmp_lg_u32 s{S_W}, 0'); I(f's_cbranch_scc1 {L}')
        I('s_lshl_b32 s3, s2, 6'); I(f's_add_u32 s3, s3, {WS_DBG}')
        I('v_mov_b32 v8, 0')
        for i in range(14):
            I(f'v_writelane_b32 v8, s{S_STAMP0+i}, {i}')
        I(f'v_lshlrev_b32 v9, 2, v{V_LANE}')
        self.exec_set('0xffff',0)
        I(f'buffer_store_dword v8, v9, {srd(SRD_WS)}, s3 offen')
        self.exec_full()
        self.label(L)

    def build(self):
        I=self.I; o=self.opt
        if o.stamps:
            for i in range(14): I(f's_mov_b32 s{S_STAMP0+i}, 0')
        self.prologue()
        Lnobu0=self.newlabel('nobu0')
        I('s_cmp_eq_u32 s74, 0'); I(f's_cbranch_scc1 {Lnobu0}')
        snap=self.snapshot()
        self.issue_phase0_loads()
        self.label(Lnobu0); self.merge(snap)
        self.ln8()
        self.stamp('ln8 stored')
        Lcont=self.newlabel('cont')
        I('s_cmp_eq_u32 s74, 1'); I(f's_cbranch_scc1 {Lcont}')
        snap=self.snapshot()
        self.arrive0()
        self.write_stamps()
        I('s_endpgm')
        self.label(Lcont); self.restore(snap)
        self.w1_setup()
        for k in range(RING): self.ring_issue(k,3584,'w1')
        self.arrive0()
        self.stamp('arrived')
        self.lam_consts()
        self.ln64()
        self.stamp('ln64')
        self.bu_gemm()
        self.scan1()
        self.stamp('scan1')
        for k in range(16): self.ring_service(k,16,3584,'w1')
        self.wait(lg='all')
        self.stamp('w1 in regs')
        self.wait_e0()
        self.stamp('e0')
        Lnog=self.newlabel('nog1')
        I(f's_cmp_eq_u32 s{S_HASG1}, 0'); I(f's_cbranch_scc1 {Lnog}')
        snap=self.snapshot()
        self.g_bias_load()
        self.gemm1()
        self.label(Lnog); self.merge(snap)
        self.stamp('gemm1')
        self.finalize()
        self.stamp('final')
        Lnog=self.newlabel('nog2')
        I(f's_cmp_eq_u32 s{S_HASG1}, 0'); I(f's_cbranch_scc1 {Lnog}')
        snap=self.snapshot()
        self.g_epilogue()
        self.label(Lnog); self.merge(snap)
        self.stamp('gepi')
        if o.stop!='g':
            self.w2_setup()
            for k in range(RING): self.ring_issue(k,4096,'w2')
            self.p2_resid_loads()
            for k in range(14): self.ring_service(k,14,4096,'w2')
            self.wait(lg='all')
            self.stamp('w2 in regs')
            self.p2_ssm()
            self.stamp('ssm')
            self.p2_g()
            self.stamp('p2g')
            self.p2_epilogue()
            self.stamp('end')
        self.write_stamps()
        self.label('L_exit')
        I('s_endpgm')
        self.label('L_code_end')

def header(lds):
    return f"""; Fused S5 SSM + MLP-Mixer token MLP, one persistent launch (256 workgroups, one per CU).
; @launch grid=(256,1,1) block=(256,1,1) lds={lds}
.amdgcn_target "amdgcn-amd-amdhsa--gfx950"
.text
.globl {KN}
.p2align 8
.type {KN},@function
{KN}:
"""
def footer():
    return f"""
.section .rodata,"a"
.p2align 6
.amdhsa_kernel {KN}
  .amdhsa_next_free_vgpr 512
  .amdhsa_next_free_sgpr 102
  .amdhsa_accum_offset 256
  .amdhsa_group_segment_fixed_size 0
  .amdhsa_kernarg_size 136
  .amdhsa_user_sgpr_count 2
  .amdhsa_user_sgpr_kernarg_segment_ptr 1
  .amdhsa_system_sgpr_workgroup_id_x 1
  .amdhsa_float_denorm_mode_32 3
.end_amdhsa_kernel
"""
if __name__=='__main__':
    ap=argparse.ArgumentParser()
    ap.add_argument('-o',default='k.s'); ap.add_argument('--stamps',action='store_true'); ap.add_argument('--stop',default='')
    o=ap.parse_args()
    k=K(o); k.build()
    t,n=k.text()
    open(o.o,'w').write(header(LDS_TOTAL)+t+footer())
    print('wrote',o.o,'lines',t.count('\n'),'nop states inserted',n)
    if o.stamps: print(k.stampnames)
```

```python
import sys, os, argparse
from asmgen import Gen

KN = "parallel_sum__ssm_conv_s5__mixer_token_mlp__prompt_kernel"

WS_HT    = 0x000000
WS_STAT  = 0x1C0000
WS_E     = 0x1C4000
WS_FH    = 0x1E0000
WS_FG    = 0x1E4000
WS_FC    = 0x1E8000
WS_CP    = 0x780000
WS_GT    = 0x200000
WS_HP    = 0x400000
WS_DBG   = 0x900000

LDS_X  = 0
LDS_Y  = 57344
YW     = 26624
SLOT_OFF = [0, 4096, 8192, 12288, 16384, 20480]
LDS_LN8 = LDS_X + 57344 - 7680
LDS_TOTAL = LDS_Y + 4*YW

P_X, P_LRE, P_LIM, P_BRE, P_BIM, P_CRE, P_CIM, P_LDT = 4,6,8,10,12,14,16,18
P_DSK = 20
P_W1, P_B1, P_W2, P_B2 = 24,26,28,30
P_OUT, P_DBG, P_WS = 32,34,36
SRD_X, SRD_WS, SRD_1, SRD_2, SRD_W, SRD_OUT = 40,44,48,52,56,60
S_W, S_WH, S_WL, S_C, S_G, S_DT1, S_FT, S_HASG1 = 64,65,66,67,68,69,70,71
S_MASK, S_ONES = 72, 73
S_A, S_B, S_WO, S_T0, S_T1, S_T2, S_T3, S_BOUND = 76,77,78,79,80,81,82,83
S_YB = 84
S_E = 85
def sp(n): return f's[{n}:{n+1}]'
def srd(n): return f's[{n}:{n+3}]'
def vr(a,n): return f'v[{a}:{a+n-1}]' if n>1 else f'v{a}'
def ar(a,n): return f'a[{a}:{a+n-1}]' if n>1 else f'a{a}'

V_LANE, V_L16 = 0, 1
V_TR = 2
V_DMA = 6
V_T = 16
V_LR,V_LI,V_K1,V_K2,V_SR,V_SI,V_PR,V_PI,V_L64R,V_L64I,V_L512R,V_L512I = range(40,52)
V_IN = 52
V_X64 = 56
V_BF = 112
V_RAW = 224
V_ACC = 56
V_RING = 120
V_EL = 184
V_EOF = 216

class K(Gen):
    def __init__(self, opt):
        super().__init__(); self.opt=opt; self.nstamp=0
        self.q=[]; self.R=None; self.auto=0; self.acc=0; self.in_tick=False; self.full=True
    def I(self,t,tag=None):
        super().I(t,tag)
        if self.in_tick: return
        mn=t.split()[0]
        if mn.startswith(('buffer_','global_')): self.acc=0; return
        if not self.auto: return
        if mn.startswith('v_mfma'): self.acc+=16
        elif mn.startswith(('v_exp','v_rcp','v_sqrt','v_sin','v_cos','v_log')): self.acc+=8
        elif mn.startswith(('v_','ds_')): self.acc+=4
        if self.acc>=self.auto and self.full and not mn.startswith(('v_cmp','s_cmp','s_bitcmp')):
            self.tick()
    def tick(self):
        self.in_tick=True; self.acc=0
        if self.q: self.q.pop(0)()
        elif self.R is not None: self.ring_tick()
        self.in_tick=False
    def drain_q(self):
        while self.q: self.tick()
    def stamp(self, name, fine=False):
        if not self.opt.stamps: return
        if fine and int(fine)>self.opt.fine: return
        i=self.nstamp; self.nstamp+=1
        assert i<64
        self.c(f'stamp {i}: {name}')
        self.wait(lg='all')
        self.I('s_memrealtime s[98:99]'); self.I('s_waitcnt lgkmcnt(0)'); self.smem=False
        self.I(f'v_writelane_b32 v55, s98, {i}')
        self.stampnames=getattr(self,'stampnames',[])+[name]
    def cstamp(self, name):
        if not self.opt.stamps: return
        i=self.nstamp; self.nstamp+=1
        self.wait(lg='all')
        self.I('s_memtime s[98:99]'); self.I('s_waitcnt lgkmcnt(0)'); self.smem=False
        self.I(f'v_writelane_b32 v55, s98, {i}')
        self.stampnames=getattr(self,'stampnames',[])+['#'+name]
    def rnd_bf16(self, v):
        self.I(f'v_cvt_pk_bf16_f32 v{v}, v{v}, v{v}')
        self.I(f'v_lshlrev_b32 v{v}, 16, v{v}')
    def make_srd(self, s, ptr, nbytes):
        self.I(f's_mov_b32 s{s}, s{ptr}'); self.I(f's_and_b32 s{s+1}, s{ptr+1}, 0xffff')
        self.I(f's_mov_b32 s{s+2}, {nbytes}'); self.I(f's_mov_b32 s{s+3}, 0x20000')
    def ln_stats(self, SUM, SSQ, R, C, T):
        I=self.I
        I(f'v_mul_f32 v{SUM}, 0x3b124925, v{SUM}')
        I(f'v_mul_f32 v{SSQ}, 0x3b124925, v{SSQ}')
        I(f'v_fma_f32 v{SSQ}, -v{SUM}, v{SUM}, v{SSQ}')
        I(f'v_max_f32 v{SSQ}, 0, v{SSQ}')
        I(f'v_cvt_pk_bf16_f32 v{SUM}, v{SUM}, v{SUM}')
        I(f'v_cvt_pk_bf16_f32 v{SSQ}, v{SSQ}, v{SSQ}')
        I(f'v_lshlrev_b32 v{SUM}, 16, v{SUM}')
        I(f'v_lshlrev_b32 v{SSQ}, 16, v{SSQ}')
        I(f'v_add_f32 v{SSQ}, 0x3727c5ac, v{SSQ}')
        self.rnd_bf16(SSQ)
        I(f'v_sqrt_f32 v{SSQ}, v{SSQ}')
        self.rnd_bf16(SSQ)
        I(f'v_rcp_f32 v{R}, v{SSQ}')
        I(f'v_mul_f32 v{C}, v{SUM}, v{R}')
        I(f'v_sub_f32 v{C}, 0, v{C}')
    def dot_sums(self, regs, accs):
        I=self.I
        for n,d in enumerate(regs):
            s,q = accs[2*(n&1)], accs[2*(n&1)+1]
            if n<2:
                I(f'v_dot2_f32_bf16 v{s}, v{d}, s{S_ONES}, 0')
                I(f'v_dot2_f32_bf16 v{q}, v{d}, v{d}, 0')
            else:
                I(f'v_dot2_f32_bf16 v{s}, v{d}, s{S_ONES}, v{s}')
                I(f'v_dot2_f32_bf16 v{q}, v{d}, v{d}, v{q}')
        I(f'v_add_f32 v{accs[0]}, v{accs[0]}, v{accs[2]}')
        I(f'v_add_f32 v{accs[1]}, v{accs[1]}, v{accs[3]}')
    def normalize(self, regs, R, C, tmps, hook=None):
        I=self.I
        n=len(tmps)
        for b in range(0,len(regs),n):
            grp=regs[b:b+n]
            for d,t in zip(grp,tmps):
                I(f'v_lshlrev_b32 v{t}, 16, v{d}')
                I(f'v_and_b32 v{t+1}, s{S_MASK}, v{d}')
            for d,t in zip(grp,tmps):
                I(f'v_pk_fma_f32 v[{t}:{t+1}], v[{t}:{t+1}], v[{R}:{R+1}], v[{C}:{C+1}] op_sel_hi:[1,0,0]')
            for d,t in zip(grp,tmps):
                I(f'v_cvt_pk_bf16_f32 v{d}, v{t}, v{t+1}')
            if hook: hook(b//n)
    def cmul(self, dr, di, xr, xi, yr, yi, t0, t1):
        I=self.I
        I(f'v_mul_f32 v{t0}, v{xi}, v{yi}')
        I(f'v_mul_f32 v{t1}, v{xi}, v{yr}')
        I(f'v_fma_f32 v{t0}, v{xr}, v{yr}, -v{t0}')
        I(f'v_fma_f32 v{di}, v{xr}, v{yi}, v{t1}')
        I(f'v_mov_b32 v{dr}, v{t0}')
    def cfma(self, dr, di, xr, xi, yr, yi, zr, zi, t0, t1):
        I=self.I
        I(f'v_fma_f32 v{t0}, v{xr}, v{yr}, v{zr}')
        I(f'v_fma_f32 v{t1}, v{xr}, v{yi}, v{zi}')
        I(f'v_fma_f32 v{t0}, -v{xi}, v{yi}, v{t0}')
        I(f'v_fma_f32 v{di}, v{xi}, v{yr}, v{t1}')
        I(f'v_mov_b32 v{dr}, v{t0}')
    def csq(self, dr, di, xr, xi, t0):
        I=self.I
        I(f'v_mul_f32 v{t0}, v{xi}, v{xi}')
        I(f'v_mul_f32 v{di}, v{xr}, v{xi}')
        I(f'v_fma_f32 v{dr}, v{xr}, v{xr}, -v{t0}')
        I(f'v_add_f32 v{di}, v{di}, v{di}')
    def allgather_q(self, v, g0, g1, g2, g3):
        I=self.I
        I(f'v_mov_b32 v{g0}, v{v}'); I(f'v_mov_b32 v{g1}, v{v}')
        I(f'v_permlane16_swap_b32 v{g0}, v{g1}')
        I(f'v_mov_b32 v{g2}, v{g0}'); I(f'v_mov_b32 v{g3}, v{g1}')
        I(f'v_permlane32_swap_b32 v{g0}, v{g2}')
        I(f'v_permlane32_swap_b32 v{g1}, v{g3}')
    def exec_full(self): self.I('s_mov_b64 exec, -1'); self.full=True
    def exec_set(self, lo, hi):
        self.full=False
        self.I(f's_mov_b32 exec_lo, {lo}'); self.I(f's_mov_b32 exec_hi, {hi}')
    def poll(self, name, voff, base, cmp_ge, nlanes_lo=None):
        I=self.I
        L=self.newlabel('poll'); D=self.newlabel('polld')
        I(f's_mov_b32 s{S_BOUND}, 0x200000')
        self.label(L)
        I(f'global_load_dword v7, v{voff}, {sp(base)} sc1')
        I('s_waitcnt vmcnt(0)'); self.vm={}
        I(f'v_cmp_gt_u32 vcc, {cmp_ge}, v7')
        I(f's_cbranch_vccz {D}')
        I(f's_sub_u32 s{S_BOUND}, s{S_BOUND}, 1')
        I(f's_cbranch_scc0 {L}')
        self.label(D)

    def ring_setup(self, pitch, xorsel):
        I=self.I
        I(f'v_lshrrev_b32 v7, 3, v{V_LANE}'); I(f'v_and_b32 v8, 7, v{V_LANE}')
        I('v_and_b32 v9, 6, v7'); I('v_xor_b32 v8, v8, v9'); I('v_lshlrev_b32 v8, 4, v8')
        I(f'v_mul_u32_u24 v7, {pitch}, v7'); I(f'v_add_u32 v{V_DMA}, v7, v8')
        I(f'v_lshrrev_b32 v7, 2, v{V_LANE}'); I('v_and_b32 v8, 6, v7')
        I(f'v_bfe_u32 v9, v{V_LANE}, 1, 1'); I('v_xor_b32 v8, v8, v9'); I('v_lshlrev_b32 v8, 4, v8')
        I('v_lshlrev_b32 v7, 7, v7'); I('v_add_u32 v7, v7, v8')
        I(f'v_and_b32 v9, 1, v{V_LANE}'); I('v_lshlrev_b32 v9, 3, v9'); I('v_add_u32 v7, v7, v9')
        I(f's_lshl_b32 s{S_T0}, s{xorsel}, 6')
        I(f'v_xor_b32 v7, s{S_T0}, v7')
        I(f'v_add_u32 v{V_TR}, s{S_YB}, v7')
        for x in range(1,4):
            I(f'v_xor_b32 v{V_TR+x}, {x<<5}, v{V_TR}')
    def ring_init(self, name, nsteps, pitch, slots):
        self.R=dict(name=name,n=nsteps,pitch=pitch,free=list(slots),slot={},iss=0,rd=0,rel=0,piece=0)
    def ring_add(self, slots): self.R['free']+=list(slots)
    def ring_issue_piece(self):
        R=self.R; I=self.I
        k=R['iss']
        if k>=R['n']: return False
        j=R['piece']
        if j==0:
            if not R['free']: return False
            R['slot'][k]=R['free'].pop(0)
            I(f's_add_u32 m0, s{S_YB}, {SLOT_OFF[R["slot"][k]]}')
        else:
            I(f's_add_u32 m0, s{S_YB}, {SLOT_OFF[R["slot"][k]]+j*1024}')
        if not (k==0 and j==0): I(f's_add_u32 s{S_WO}, s{S_WO}, {8*R["pitch"]}')
        else: I('s_nop 0')
        I(f'buffer_load_dwordx4 v{V_DMA}, {srd(SRD_W)}, s{S_WO} offen lds', tag=(R['name'],k))
        R['piece']=(j+1)%4
        if R['piece']==0: R['iss']+=1
        return True
    def ring_issue(self):
        while self.ring_issue_piece(): pass
    def ring_read(self):
        R=self.R; I=self.I
        k=R['rd']
        if k>=R['n']: return False
        assert k<R['iss'], 'read before issue'
        off=SLOT_OFF[R['slot'][k]]
        self.wait(vm=[(R['name'],k)])
        for x in range(4):
            b=16*k+4*x
            I(f'ds_read_b64_tr_b16 {ar(b,2)}, v{V_TR+x} offset:{off}', tag=(R['name'],'r',k))
            I(f'ds_read_b64_tr_b16 {ar(b+2,2)}, v{V_TR+x} offset:{off+2048}', tag=(R['name'],'r',k))
        R['rd']+=1
        return True
    def ring_release(self):
        R=self.R
        k=R['rel']
        if k>=R['rd']: return False
        self.wait(lg=[(R['name'],'r',k)])
        R['free'].append(R['slot'][k]); R['rel']+=1
        self.ring_issue()
        return True
    def ring_tick(self):
        R=self.R
        if R['iss']<R['n']:
            if R['piece']==0 and not R['free']:
                if R['rel']>=R['rd']:
                    assert R['rd']<R.get('maxrd',99)
                    self.ring_read()
                k=R['rel']; self.wait(lg=[(R['name'],'r',k)]); R['free'].append(R['slot'][k]); R['rel']+=1
            self.ring_issue_piece()
            if R['piece']==3 and not R['free'] and R['rd']==R['rel'] and R['rd']<R['iss'] and R['rd']<R.get('maxrd',99):
                self.ring_read()
            return True
        if R['rd']<R['n'] and R['rd']<R.get('maxrd',99): return self.ring_read()
        return False
    def bg(self):
        return self.ring_tick()
    def replay_ring(self, RA):
        R=self.R
        while (R['iss'],R['piece'])<(RA['iss'],RA['piece']) or R['rd']<RA['rd']:
            if (R['iss'],R['piece'])<(RA['iss'],RA['piece']):
                before=R['rd']
                R['maxrd']=RA['rd']
                self.ring_tick()
            else:
                self.ring_read()
        while R['rel']<RA['rel']:
            k=R['rel']; self.wait(lg=[(R['name'],'r',k)]); R['free'].append(R['slot'][k]); R['rel']+=1
        R['maxrd']=99
        for k in RA: assert RA[k]==R[k], (k,RA[k],R[k])
    def ring_finish(self):
        R=self.R; R['maxrd']=99
        while R['rd']<R['n'] or R['iss']<R['n']: self.ring_tick()
        R['rel']=R['n']; self.R=None

    def reduce(self, tmp):
        I=self.I
        for e in (1,2,3):
            I(f's_xor_b32 s{S_T0}, s{S_W}, {e}'); I(f's_mul_i32 s{S_T0}, s{S_T0}, {3*4096}')
            I(f's_add_u32 s{S_T0}, s{S_T0}, {LDS_X+(e-1)*4096}')
            I(f'v_add_u32 v7, s{S_T0}, v{V_L16}')
            xh,yh=e>>1,e&1
            for xl in range(2):
                for yl in range(2):
                    a=V_ACC+16*(2*xh+xl)+4*(2*yh+yl)
                    I(f'ds_write_b128 v7, {vr(a,4)} offset:{(2*xl+yl)*1024}', tag='redw')
        self.wait(lg='all'); I('s_barrier')
        I(f's_mul_i32 s{S_T0}, s{S_W}, {3*4096}'); I(f'v_add_u32 v7, s{S_T0}, v{V_L16}')
        for e in range(3):
            for sub in range(4):
                I(f'ds_read_b128 {vr(tmp+16*e+4*sub,4)}, v7 offset:{LDS_X+e*4096+sub*1024}', tag=('red',e))
        for e in range(3):
            self.wait(lg=[('red',e)])
            for sub in range(4):
                a=V_ACC+16*(sub>>1)+4*(sub&1)
                for h in range(2):
                    I(f'v_pk_add_f32 v[{a+2*h}:{a+2*h+1}], v[{a+2*h}:{a+2*h+1}], v[{tmp+16*e+4*sub+2*h}:{tmp+16*e+4*sub+2*h+1}]')

    def prologue(self):
        I=self.I
        I('s_cmp_ge_u32 s2, 256'); I('s_cbranch_scc1 L_exit')
        I('s_load_dwordx16 s[4:19], s[0:1], 0')
        I('s_load_dwordx2 s[20:21], s[0:1], 64')
        I('s_load_dwordx8 s[24:31], s[0:1], 80')
        I('s_load_dwordx4 s[32:35], s[0:1], 112')
        I('s_load_dwordx2 s[36:37], s[0:1], 128')
        I('v_lshrrev_b32 v7, 6, v0'); I(f'v_and_b32 v{V_LANE}, 63, v0')
        I(f'v_readfirstlane_b32 s{S_W}, v7')
        I(f'v_lshlrev_b32 v{V_L16}, 4, v{V_LANE}')
        I(f's_mov_b32 s{S_MASK}, 0xffff0000'); I(f's_mov_b32 s{S_ONES}, 0x3f803f80')
        I('s_and_b32 s22, s2, 7')
        I('s_lshr_b32 s23, s2, 3')
        I('s_and_b32 s38, s22, 1')
        I('s_lshr_b32 s39, s22, 1')
        I(f's_lshr_b32 s{S_WH}, s{S_W}, 1'); I(f's_and_b32 s{S_WL}, s{S_W}, 1')
        I(f's_and_b32 s{S_T0}, s23, 7'); I(f's_lshl_b32 s{S_T1}, s39, 3'); I(f's_add_u32 s{S_C}, s{S_T0}, s{S_T1}')
        I(f's_lshr_b32 s{S_T0}, s23, 3'); I(f's_lshl_b32 s{S_T1}, s38, 2'); I(f's_add_u32 s{S_G}, s{S_T0}, s{S_T1}')
        I(f's_mul_i32 s{S_T0}, s23, 37'); I(f's_lshr_b32 s{S_T0}, s{S_T0}, 8')
        I(f's_add_u32 s{S_DT1}, s{S_T0}, s{S_T1}'); I(f's_min_u32 s{S_DT1}, s{S_DT1}, 6')
        I(f's_mul_i32 s{S_T0}, s{S_T0}, 7'); I(f's_sub_u32 s{S_T0}, s23, s{S_T0}')
        I(f's_mul_i32 s{S_T1}, s39, 7'); I(f's_add_u32 s{S_FT}, s{S_T0}, s{S_T1}')
        I(f's_mul_i32 s{S_T0}, s38, 7'); I(f's_sub_u32 s{S_T0}, 28, s{S_T0}')
        I(f's_cmp_lt_u32 s23, s{S_T0}'); I(f's_cselect_b32 s{S_HASG1}, 1, 0')
        I(f's_lshl_b32 s{S_T0}, s38, 3'); I(f's_sub_u32 s{S_T0}, 32, s{S_T0}')
        I(f's_cmp_lt_u32 s23, s{S_T0}'); I('s_cselect_b32 s74, 1, 0')
        I('s_lshr_b32 s3, s2, 2'); I('s_lshl_b32 s3, s3, 5')
        I(f's_lshl_b32 s{S_T0}, s{S_WH}, 4'); I(f's_add_u32 s3, s3, s{S_T0}')
        I(f's_and_b32 s{S_T0}, s2, 3'); I(f's_lshl_b32 s{S_T0}, s{S_T0}, 2'); I(f's_add_u32 s3, s3, s{S_T0}')
        I(f's_lshl_b32 s{S_T0}, s{S_WL}, 1'); I(f's_add_u32 s75, s3, s{S_T0}')
        I(f's_mul_i32 s{S_T2}, s75, 896')
        I(f'v_and_b32 v7, 31, v{V_LANE}'); I(f'v_lshrrev_b32 v8, 5, v{V_LANE}')
        I('v_mul_u32_u24 v8, 896, v8'); I('v_lshlrev_b32 v9, 5, v7'); I('v_add_u32 v8, v8, v9')
        I('v_mov_b32 v9, 0x7ffffff0'); I('v_cmp_gt_u32 vcc, 28, v7'); I('v_cndmask_b32 v8, v9, v8, vcc')
        self.wait(lg='all')
        self.make_srd(SRD_X, P_X, 2048*896)
        I(f'buffer_load_dwordx4 {vr(V_T,4)}, v8, {srd(SRD_X)}, s{S_T2} offen', tag='x8')
        I(f'buffer_load_dwordx4 {vr(V_T+4,4)}, v8, {srd(SRD_X)}, s{S_T2} offen offset:16', tag='x8')
        I('s_getpc_b64 s[98:99]'); self.label('L_pc0')
        I(f's_sub_u32 s98, s98, L_pc0-{KN}'); I('s_subb_u32 s99, s99, 0')
        I(f's_and_b32 s{S_T0}, s23, 15'); I(f's_lshl_b32 s{S_T0}, s{S_T0}, 12')
        I(f's_lshl_b32 s{S_T1}, s{S_W}, 10'); I(f's_add_u32 s{S_T0}, s{S_T0}, s{S_T1}')
        I(f'v_add_u32 v9, s{S_T0}, v{V_L16}')
        I(f'v_min_u32 v9, L_code_end-{KN}-16, v9')
        I('global_load_dwordx4 v[12:15], v9, s[98:99]', tag='pf')
        self.make_srd(SRD_WS, P_WS, 0x10000000)
        I(f's_mul_i32 s{S_YB}, s{S_W}, {YW}'); I(f's_add_u32 s{S_YB}, s{S_YB}, {LDS_Y}')
        I(f's_sub_u32 s{S_E}, s23, 24'); I(f's_lshl_b32 s{S_E}, s{S_E}, 2'); I(f's_add_u32 s{S_E}, s{S_E}, s39')
        I('s_mov_b32 s86, s23'); I('s_mov_b32 s87, s39')
        self.stamp('start'); self.cstamp('c0')

    def touches_pre(self):
        I=self.I
        self.make_srd(SRD_1, P_BRE, 448*896); self.make_srd(SRD_2, P_BIM, 448*896); self.make_srd(SRD_W, P_W1, 2048*3584)
        I(f'v_lshrrev_b32 v7, 3, v{V_LANE}'); I(f'v_and_b32 v8, 7, v{V_LANE}'); I('v_min_u32 v8, 6, v8')
        I('v_mul_u32_u24 v7, 896, v7'); I('v_lshlrev_b32 v8, 7, v8'); I('v_add_u32 v7, v7, v8')
        I(f's_lshl_b32 s{S_T0}, s{S_C}, 6'); I(f's_lshr_b32 s{S_T1}, s86, 3'); I(f's_lshl_b32 s{S_T1}, s{S_T1}, 4'); I(f's_add_u32 s{S_T0}, s{S_T0}, s{S_T1}')
        I(f's_lshl_b32 s{S_T1}, s{S_W}, 2'); I(f's_add_u32 s{S_T0}, s{S_T0}, s{S_T1}'); I(f's_mul_i32 s{S_T0}, s{S_T0}, 896')
        self.exec_set('-1','0')
        I(f'buffer_load_dword v12, v7, {srd(SRD_X)}, s{S_T0} offen', tag='touch')
        I(f's_lshl_b32 s{S_T0}, s{S_G}, 6'); I(f's_and_b32 s{S_T1}, s86, 7'); I(f's_lshl_b32 s{S_T1}, s{S_T1}, 3'); I(f's_add_u32 s{S_T0}, s{S_T0}, s{S_T1}')
        I(f's_lshl_b32 s{S_T1}, s{S_W}, 1'); I(f's_add_u32 s{S_T0}, s{S_T0}, s{S_T1}'); I(f's_min_u32 s{S_T0}, s{S_T0}, 446'); I(f's_mul_i32 s{S_T0}, s{S_T0}, 896')
        self.exec_set('0xffff','0')
        I(f'buffer_load_dword v12, v7, {srd(SRD_1)}, s{S_T0} offen', tag='touch')
        I(f'buffer_load_dword v12, v7, {srd(SRD_2)}, s{S_T0} offen', tag='touch')
        self.exec_full()
    def dma_setup(self):
        I=self.I
        for n,h in enumerate((0,3,2,1)): I(f'v_xor_b32 v{56+n}, {h<<4}, v{V_L16}')
        for g in range(8): I(f'v_xor_b32 v{60+g}, {g<<4}, v{V_L16}')
        I(f's_lshl_b32 s{S_T0}, s{S_G}, 6'); I(f's_lshl_b32 s{S_T1}, s{S_W}, 4'); I(f's_add_u32 s88, s{S_T0}, s{S_T1}')
        I('s_mul_i32 s89, s88, 896')
        I(f's_lshl_b32 s{S_T0}, s{S_C}, 6'); I(f's_lshl_b32 s{S_T1}, s{S_W}, 2'); I(f's_add_u32 s{S_T0}, s{S_T0}, s{S_T1}')
        I(f's_mul_i32 s92, s{S_T0}, 896')
        I(f's_mul_i32 s93, s{S_W}, 3584')
        I(f'v_and_b32 v7, 15, v{V_LANE}'); I('v_mul_u32_u24 v68, 896, v7'); I(f'v_lshrrev_b32 v9, 4, v{V_LANE}'); I('v_lshlrev_b32 v9, 4, v9')
        I('v_add_u32 v68, v68, v9')
        I('v_add_u32 v69, s88, v7'); I('v_lshlrev_b32 v69, 1, v69')
    def q_b(self):
        I=self.I
        def row(im,n):
            def f():
                I('s_mov_b32 exec_hi, 0x000fffff')
                I(f's_add_u32 m0, s{S_YB}, {im*13312+n*832}')
                I(f's_add_u32 s91, s89, {n*896}')
                I(f'buffer_load_dwordx4 v{56+(n>>2)}, {srd(SRD_1 if im==0 else SRD_2)}, s91 offen lds', tag='bdma')
                I('s_mov_b32 exec_hi, -1')
            return f
        for im in range(2):
            for n in range(16): self.q.append(row(im,n))
        self.q.append(lambda: I(f'buffer_load_dwordx4 {vr(V_BF+52,4)}, v68, {srd(SRD_1)}, s89 offen offset:832', tag='b13'))
        self.q.append(lambda: I(f'buffer_load_dwordx4 {vr(V_BF+56+52,4)}, v68, {srd(SRD_2)}, s89 offen offset:832', tag='b13'))
        def lam():
            I(f'global_load_ushort v{V_IN}, v69, {sp(P_LRE)}', tag='lam')
            I(f'global_load_ushort v{V_IN+1}, v69, {sp(P_LIM)}', tag='lam')
            I(f'global_load_ushort v{V_IN+2}, v69, {sp(P_LDT)}', tag='lam')
        self.q.append(lam)
    def q_x(self, alist):
        I=self.I
        def row(a,b):
            def f():
                g=2*a+(b>>1); d=(16*a+b)*896
                I('s_mov_b32 exec_hi, 0x00ffffff')
                I(f's_add_u32 m0, s93, {LDS_X+d}')
                I(f's_add_u32 s91, s92, {d}')
                I(f'buffer_load_dwordx4 v{60+g}, {srd(SRD_X)}, s91 offen lds', tag='x64')
                I('s_mov_b32 exec_hi, -1')
            return f
        for a in alist:
            for b in range(4): self.q.append(row(a,b))
    def b_read(self):
        I=self.I
        I(f'v_and_b32 v7, 15, v{V_LANE}'); I(f'v_lshrrev_b32 v8, 4, v{V_LANE}'); I('v_lshrrev_b32 v9, 2, v7')
        I('v_sub_u32 v9, 0, v9'); I('v_and_b32 v9, 3, v9'); I('v_xor_b32 v8, v8, v9')
        I('v_lshlrev_b32 v8, 4, v8'); I('v_mul_u32_u24 v7, 832, v7'); I('v_add_u32 v7, v7, v8'); I(f'v_add_u32 v7, s{S_YB}, v7')
        self.wait(vm=['bdma'])
        for im in range(2):
            for j in range(13):
                I(f'ds_read_b128 {vr(V_BF+56*im+4*j,4)}, v7 offset:{im*13312+j*64}', tag='brd')
    def touch_w1(self):
        I=self.I
        I(f'v_lshrrev_b32 v7, 3, v{V_LANE}'); I(f'v_and_b32 v8, 7, v{V_LANE}')
        I('v_min_u32 v8, 6, v8'); I('v_mul_u32_u24 v7, 3584, v7'); I('v_lshlrev_b32 v8, 7, v8'); I('v_add_u32 v7, v7, v8')
        I(f's_lshl_b32 s{S_T0}, s{S_W}, 9'); I(f's_lshl_b32 s{S_T1}, s86, 4'); I(f's_add_u32 s{S_T0}, s{S_T0}, s{S_T1}')
        I(f's_mul_i32 s{S_T0}, s{S_T0}, 3584'); I(f's_mul_i32 s{S_T1}, s87, 896'); I(f's_add_u32 s{S_T0}, s{S_T0}, s{S_T1}')
        I(f'buffer_load_dword v12, v7, {srd(SRD_W)}, s{S_T0} offen', tag='touch')
        I(f's_add_u32 s{S_T0}, s{S_T0}, {8*3584}')
        I(f'buffer_load_dword v12, v7, {srd(SRD_W)}, s{S_T0} offen', tag='touch')
    def touch_w2_all(self):
        I=self.I
        self.make_srd(SRD_OUT, P_W2, 1792*4096)
        I(f'v_lshrrev_b32 v7, 5, v{V_LANE}'); I(f'v_and_b32 v8, 31, v{V_LANE}')
        I('v_lshlrev_b32 v7, 12, v7'); I('v_lshlrev_b32 v8, 7, v8'); I('v_add_u32 v7, v7, v8')
        I(f's_lshl_b32 s{S_T0}, s{S_E}, 2'); I(f's_add_u32 s{S_T0}, s{S_T0}, s{S_W}'); I(f's_mul_i32 s{S_T0}, s{S_T0}, {14*4096}')
        for i in range(7):
            I(f'buffer_load_dword v12, v7, {srd(SRD_OUT)}, s{S_T0} offen', tag='touch2')
            if i<6: I(f's_add_u32 s{S_T0}, s{S_T0}, 8192')
    def ln8(self):
        I=self.I
        D=list(range(V_T,V_T+8)); SUM,SSQ,S2,Q2=24,25,26,27; R,C=28,30; TM=[32,34,36,38]
        self.wait(vm=['x8'])
        def reduce32():
            for rot in (8,4,2,1):
                I(f'v_add_f32_dpp v{SUM}, v{SUM}, v{SUM} row_ror:{rot} row_mask:0xf bank_mask:0xf')
                I(f'v_add_f32_dpp v{SSQ}, v{SSQ}, v{SSQ} row_ror:{rot} row_mask:0xf bank_mask:0xf')
            I(f'v_mov_b32 v{S2}, v{SUM}'); I(f'v_mov_b32 v{Q2}, v{SSQ}')
            I(f'v_permlane16_swap_b32 v{SUM}, v{S2}'); I(f'v_permlane16_swap_b32 v{SSQ}, v{Q2}')
            I(f'v_add_f32 v{SUM}, v{SUM}, v{S2}'); I(f'v_add_f32 v{SSQ}, v{SSQ}, v{Q2}')
        self.dot_sums(D,[SUM,SSQ,S2,Q2]); reduce32()
        self.ln_stats(SUM,SSQ,R,C,None)
        I(f'v_mov_b32 v10, v{SUM}'); I(f'v_mov_b32 v11, v{R}')
        I(f'v_lshrrev_b32 v8, 5, v{V_LANE}'); I('v_lshlrev_b32 v8, 3, v8')
        I(f's_lshl_b32 s{S_T0}, s75, 3'); I(f's_add_u32 s{S_T0}, s{S_T0}, {WS_STAT}')
        self.exec_set(1,1)
        I(f'buffer_store_dwordx2 v[10:11], v8, {srd(SRD_WS)}, s{S_T0} offen sc1', tag='st0')
        self.exec_full()
        I(f'v_and_b32 v7, 31, v{V_LANE}'); I('v_cmp_gt_u32 vcc, 28, v7')
        I(f'v_cndmask_b32 v{R}, 0, v{R}, vcc'); I(f'v_cndmask_b32 v{C}, 0, v{C}, vcc')
        self.normalize(D,R,C,TM)
        self.dot_sums(D,[SUM,SSQ,S2,Q2]); reduce32()
        self.ln_stats(SUM,SSQ,R,C,None)
        self.normalize(D,R,C,TM)
        self.auto=0
        I(f'v_lshrrev_b32 v8, 5, v{V_LANE}'); I(f's_lshl_b32 s{S_T0}, s{S_W}, 1'); I(f'v_add_u32 v8, s{S_T0}, v8')
        I('v_mul_u32_u24 v8, 960, v8'); I('v_lshlrev_b32 v9, 5, v7'); I('v_add_u32 v8, v8, v9'); I(f'v_add_u32 v8, {LDS_LN8}, v8')
        self.exec_set('0x0fffffff','0x0fffffff')
        I(f'ds_write_b128 v8, {vr(V_T,4)} offset:0'); I(f'ds_write_b128 v8, {vr(V_T+4,4)} offset:16')
        self.exec_full()
        self.wait(lg='all'); I('s_barrier')
        I(f'v_and_b32 v7, 15, v{V_LANE}'); I('v_lshrrev_b32 v8, 2, v7'); I('v_mul_u32_u24 v8, 960, v8')
        I(f'v_lshrrev_b32 v9, 4, v{V_LANE}'); I('v_lshlrev_b32 v10, 5, v9'); I('v_add_u32 v8, v8, v10')
        I(f'v_and_b32 v10, 3, v{V_LANE}'); I('v_lshlrev_b32 v10, 3, v10'); I('v_add_u32 v8, v8, v10')
        I(f's_lshl_b32 s{S_T0}, s{S_W}, 7'); I(f's_add_u32 s{S_T0}, s{S_T0}, {LDS_LN8}'); I(f'v_add_u32 v8, s{S_T0}, v8')
        I('v_lshlrev_b32 v9, 10, v9'); I('v_lshlrev_b32 v7, 4, v7'); I('v_add_u32 v9, v9, v7')
        I(f's_lshr_b32 s{S_T0}, s2, 2'); I(f's_lshl_b32 s{S_T0}, s{S_T0}, 12')
        I(f's_and_b32 s{S_T1}, s2, 3'); I(f's_lshl_b32 s{S_T1}, s{S_T1}, 8'); I(f's_add_u32 s{S_T0}, s{S_T0}, s{S_T1}')
        I(f's_lshl_b32 s{S_T1}, s{S_W}, 18'); I(f's_add_u32 s{S_T0}, s{S_T0}, s{S_T1}')
        I(f'ds_read_b64_tr_b16 v[16:17], v8 offset:0', tag='t0')
        I(f'ds_read_b64_tr_b16 v[18:19], v8 offset:3840', tag='t0')
        Lskip=self.newlabel('ln8skip')
        I(f's_cmp_eq_u32 s{S_W}, 3'); I(f's_cbranch_scc1 {Lskip}')
        snap=self.snapshot()
        I(f'ds_read_b64_tr_b16 v[20:21], v8 offset:512', tag='t1')
        I(f'ds_read_b64_tr_b16 v[22:23], v8 offset:{512+3840}', tag='t1')
        I(f's_add_u32 s{S_T1}, s{S_T0}, {4*262144}')
        self.wait(lg='all')
        I(f'buffer_store_dwordx4 v[20:23], v9, {srd(SRD_WS)}, s{S_T1} offen sc1', tag='st0')
        self.label(Lskip); self.merge(snap)
        self.wait(lg='all')
        I(f'buffer_store_dwordx4 v[16:19], v9, {srd(SRD_WS)}, s{S_T0} offen sc1', tag='st0')
        Ln=self.newlabel('noclr'); Le=self.newlabel('eclr')
        I(f's_cmp_lg_u32 s{S_W}, 3'); I(f's_cbranch_scc1 {Ln}')
        snap=self.snapshot()
        I('v_mov_b32 v8, 0')
        I('s_cmp_eq_u32 s74, 0'); I(f's_cbranch_scc1 {Le}')
        I('v_mov_b32 v10, -1'); I('v_mov_b32 v11, -1'); I(f'v_lshlrev_b32 v9, 3, v{V_LANE}')
        I(f's_lshl_b32 s{S_T0}, s{S_G}, 5'); I(f's_add_u32 s{S_T0}, s{S_T0}, s{S_C}'); I(f's_lshl_b32 s{S_T0}, s{S_T0}, 9')
        I(f's_add_u32 s{S_T0}, s{S_T0}, {WS_E}')
        I(f'buffer_store_dwordx2 v[10:11], v9, {srd(SRD_WS)}, s{S_T0} offen sc1', tag='st0')
        I(f's_mul_i32 s{S_T0}, s{S_C}, 7'); I(f's_add_u32 s{S_T0}, s{S_T0}, s{S_G}'); I(f's_lshl_b32 s{S_T0}, s{S_T0}, 6')
        I(f's_add_u32 s{S_T0}, s{S_T0}, {WS_FH}')
        I('v_mov_b32 v10, 0')
        self.exec_set(1,0)
        I(f'buffer_store_dword v10, v8, {srd(SRD_WS)}, s{S_T0} offen sc1', tag='st0')
        Lg=self.newlabel('nog1clr')
        I(f's_cmp_eq_u32 s{S_HASG1}, 0'); I(f's_cbranch_scc1 {Lg}')
        I(f's_mul_i32 s{S_T0}, s{S_DT1}, 28'); I(f's_add_u32 s{S_T0}, s{S_T0}, s{S_FT}'); I(f's_lshl_b32 s{S_T0}, s{S_T0}, 6')
        I(f's_add_u32 s{S_T0}, s{S_T0}, {WS_FG}')
        I(f'buffer_store_dword v10, v8, {srd(SRD_WS)}, s{S_T0} offen sc1', tag='st0')
        I(f's_branch {Lg}')
        self.label(Le)
        I(f's_lshl_b32 s{S_T0}, s{S_E}, 6'); I(f's_add_u32 s{S_T0}, s{S_T0}, {WS_FC}')
        I('v_mov_b32 v10, 0')
        self.exec_set(1,0)
        I(f'buffer_store_dword v10, v8, {srd(SRD_WS)}, s{S_T0} offen sc1', tag='st0')
        self.label(Lg)
        self.exec_full()
        self.label(Ln); self.merge(snap); self.vm['st0']=0
        I('s_barrier')

    def arrive0(self):
        I=self.I
        self.wait(vm=['st0']); I('s_barrier')
        L=self.newlabel('arr')
        I(f's_cmp_lg_u32 s{S_W}, 0'); I(f's_cbranch_scc1 {L}')
        snap=self.snapshot()
        I('s_and_b32 s3, s2, 3'); I('s_lshl_b32 s3, s3, 6'); I('v_mov_b32 v8, s3'); I('v_mov_b32 v9, 1')
        self.exec_set(1,0)
        I(f'global_atomic_add v8, v9, {sp(P_DBG)} sc1')
        self.exec_full()
        self.label(L); self.merge(snap)

    def w1_setup(self):
        I=self.I
        self.ring_setup(3584, S_WH)
        I(f's_mul_i32 s{S_WO}, s{S_W}, {512*3584}'); I(f's_lshl_b32 s{S_T0}, s{S_FT}, 7'); I(f's_add_u32 s{S_WO}, s{S_WO}, s{S_T0}')

    def lam_consts(self):
        I=self.I
        LRE,LIM,LDT=V_IN,V_IN+1,V_IN+2
        t=list(range(16,40))
        self.wait(vm=['lam'])
        for r in (LRE,LIM,LDT): I(f'v_lshlrev_b32 v{r}, 16, v{r}')
        I(f'v_mul_f32 v{LDT}, 0x3fb8aa3b, v{LDT}'); I(f'v_exp_f32 v{LDT}, v{LDT}')
        self.rnd_bf16(LDT)
        I(f'v_mul_f32 v16, v{LDT}, v{LRE}'); I(f'v_mul_f32 v17, v{LDT}, v{LIM}')
        I('v_mul_f32 v16, 0x3fb8aa3b, v16'); I('v_mul_f32 v17, 0.15915494, v17')
        I('v_exp_f32 v16, v16'); I('v_fract_f32 v17, v17')
        I('v_cos_f32 v18, v17'); I('v_sin_f32 v19, v17')
        I(f'v_mul_f32 v{V_LR}, v16, v18'); I(f'v_mul_f32 v{V_LI}, v16, v19')
        I(f'v_add_f32 v16, -1.0, v{V_LR}')
        I(f'v_mul_f32 v17, v{LRE}, v{LRE}'); I(f'v_fma_f32 v17, v{LIM}, v{LIM}, v17'); I('v_rcp_f32 v17, v17')
        I(f'v_mul_f32 v18, v16, v{LRE}'); I(f'v_fma_f32 v18, v{V_LI}, v{LIM}, v18')
        I(f'v_mul_f32 v19, v16, v{LIM}'); I(f'v_fma_f32 v19, v{V_LI}, v{LRE}, -v19')
        I('v_add_f32 v17, v17, v17')
        I(f'v_mul_f32 v{V_K1}, v18, v17'); I(f'v_mul_f32 v{V_K2}, v19, v17'); I(f'v_sub_f32 v{V_K2}, 0, v{V_K2}')
        self.csq(16,17,V_LR,V_LI,30); self.csq(18,19,16,17,30); self.csq(16,17,18,19,30); self.csq(20,21,16,17,30)
        self.csq(22,23,20,21,30)
        self.cmul(24,25,22,23,20,21,30,31)
        self.csq(V_L64R,V_L64I,22,23,30)
        self.csq(16,17,V_L64R,V_L64I,30); self.csq(18,19,16,17,30); self.csq(V_L512R,V_L512I,18,19,30)
        I(f'v_mov_b32 v{V_PR}, 1.0'); I(f'v_mov_b32 v{V_PI}, 0')
        for (lo,hi,r) in (('0xffff0000','-1',20),('0','-1',22),('0','0xffff0000',24)):
            self.exec_set(lo,hi); I(f'v_mov_b32 v{V_PR}, v{r}'); I(f'v_mov_b32 v{V_PI}, v{r+1}')
        self.exec_full()
        I(f'v_mov_b32 v{V_IN}, v20'); I(f'v_mov_b32 v{V_IN+1}, v21')

    def x_addr(self):
        I=self.I
        I(f'v_and_b32 v7, 15, v{V_LANE}'); I('v_lshrrev_b32 v8, 2, v7'); I('v_lshlrev_b32 v8, 4, v8')
        I('v_and_b32 v9, 3, v7'); I('v_add_u32 v8, v8, v9'); I('v_mul_u32_u24 v8, 896, v8')
        I(f'v_lshrrev_b32 v9, 4, v{V_LANE}'); I('v_lshrrev_b32 v7, 1, v7'); I('v_xor_b32 v9, v9, v7'); I('v_lshlrev_b32 v9, 4, v9')
        I('v_add_u32 v14, v8, v9'); I('v_xor_b32 v15, 64, v14')
    def ln64(self):
        I=self.I
        D=list(range(V_X64,V_X64+56)); SUM,SSQ,S2,Q2=24,25,26,27; R,C=28,30; TM=[32,34,36,38]
        I(f's_mul_i32 s{S_T0}, s{S_W}, 3584'); I(f'v_add_u32 v22, s{S_T0}, v14'); I(f'v_add_u32 v23, s{S_T0}, v15')
        self.wait(vm=['x64'])
        for j in range(14):
            I(f'ds_read_b128 {vr(V_X64+4*j,4)}, v{22+(j&1)} offset:{LDS_X+(j>>1)*128}', tag=('xr',j))
        accs=[SUM,SSQ,S2,Q2]
        for n,d in enumerate(D):
            if n%4==0: self.wait(lg=[('xr',n//4)])
            sa,qa = accs[2*(n&1)], accs[2*(n&1)+1]
            if n<2:
                I(f'v_dot2_f32_bf16 v{sa}, v{d}, s{S_ONES}, 0'); I(f'v_dot2_f32_bf16 v{qa}, v{d}, v{d}, 0')
            else:
                I(f'v_dot2_f32_bf16 v{sa}, v{d}, s{S_ONES}, v{sa}'); I(f'v_dot2_f32_bf16 v{qa}, v{d}, v{d}, v{qa}')
        I(f'v_add_f32 v{SUM}, v{SUM}, v{S2}'); I(f'v_add_f32 v{SSQ}, v{SSQ}, v{Q2}')
        for sw in ('16','32'):
            I(f'v_mov_b32 v{S2}, v{SUM}'); I(f'v_mov_b32 v{Q2}, v{SSQ}')
            I(f'v_permlane{sw}_swap_b32 v{SUM}, v{S2}'); I(f'v_permlane{sw}_swap_b32 v{SSQ}, v{Q2}')
            I(f'v_add_f32 v{SUM}, v{SUM}, v{S2}'); I(f'v_add_f32 v{SSQ}, v{SSQ}, v{Q2}')
        self.ln_stats(SUM,SSQ,R,C,None)
        def h(n):
            I(f'ds_write_b128 v{22+(n&1)}, {vr(V_X64+4*n,4)} offset:{LDS_X+(n>>1)*128}', tag='xw')
        self.normalize(D,R,C,TM,hook=h)

    def bu_gemm(self):
        I=self.I
        BUF=[V_X64, V_X64+16, V_X64+32]
        def rd(j):
            for i in range(4):
                I(f'ds_read_b128 {vr(BUF[j%3]+4*i,4)}, v{14+(j&1)} offset:{LDS_X+i*3584+(j>>1)*128}', tag=('xa',j))
        rd(0); rd(1)
        for j in range(14):
            if j+2<14: rd(j+2)
            self.wait(lg=[('xa',j)])
            for i in range(4):
                for im in range(2):
                    d=V_RAW+16*im+4*i
                    cin = vr(d,4) if j else '0'
                    I(f'v_mfma_f32_16x16x32_bf16 {vr(d,4)}, {vr(BUF[j%3]+4*i,4)}, {vr(V_BF+56*im+4*j,4)}, {cin}')

    def scan1(self):
        I=self.I
        ER,EI,T0,T1=16,17,18,19
        L16R,L16I=V_IN,V_IN+1
        I(f'v_mov_b32 v{ER}, v{V_RAW}'); I(f'v_mov_b32 v{EI}, v{V_RAW+16}')
        for t in range(1,16):
            I(f'v_fma_f32 v{T0}, v{V_LR}, v{ER}, v{V_RAW+t}')
            I(f'v_fma_f32 v{T1}, v{V_LR}, v{EI}, v{V_RAW+16+t}')
            I(f'v_fma_f32 v{T0}, -v{V_LI}, v{EI}, v{T0}')
            I(f'v_fma_f32 v{EI}, v{V_LI}, v{ER}, v{T1}')
            ER,T0=T0,ER
        GR=[20,21,22,23]; GI=[24,25,26,27]
        self.allgather_q(ER,*GR); self.allgather_q(EI,*GI)
        for q in range(1,4):
            self.cfma(GR[q],GI[q],L16R,L16I,GR[q-1],GI[q-1],GR[q],GI[q],28,29)
        I(f'v_mov_b32 v{V_SR}, 0'); I(f'v_mov_b32 v{V_SI}, 0')
        for n,(lo,hi) in enumerate((('0xffff0000','-1'),('0','-1'),('0','0xffff0000'))):
            self.exec_set(lo,hi); I(f'v_mov_b32 v{V_SR}, v{GR[n]}'); I(f'v_mov_b32 v{V_SI}, v{GI[n]}')
        self.exec_full()
        I(f'v_mov_b32 v10, v{GR[3]}'); I(f'v_mov_b32 v11, v{GI[3]}')
        I(f'v_lshlrev_b32 v8, 3, v{V_LANE}')
        I(f's_lshl_b32 s{S_T0}, s{S_G}, 5'); I(f's_add_u32 s{S_T0}, s{S_T0}, s{S_C}'); I(f's_lshl_b32 s{S_T0}, s{S_T0}, 9')
        I(f's_lshl_b32 s{S_T1}, s{S_W}, 7'); I(f's_add_u32 s{S_T0}, s{S_T0}, s{S_T1}'); I(f's_add_u32 s{S_T0}, s{S_T0}, {WS_E}')
        self.exec_set('0xffff',0)
        I(f'buffer_store_dwordx2 v[10:11], v8, {srd(SRD_WS)}, s{S_T0} offen sc1', tag='stE')
        self.exec_full()

    def wait_e0(self):
        I=self.I
        L=self.newlabel('e0'); D=self.newlabel('e0d')
        self.wait(vm=['e0c'])
        I('v_cmp_gt_u32 vcc, 64, v34'); I(f's_cbranch_vccz {D}')
        snap=self.snapshot()
        I(f's_mov_b32 s{S_BOUND}, 0x200000')
        self.label(L)
        I(f'global_load_dword v34, v35, {sp(P_DBG)} sc1'); I('s_waitcnt vmcnt(0)')
        I('v_cmp_gt_u32 vcc, 64, v34'); I(f's_cbranch_vccz {D}')
        I(f's_sub_u32 s{S_BOUND}, s{S_BOUND}, 1'); I(f's_cbranch_scc0 {L}')
        self.label(D); self.restore(snap)

    def gemm1(self):
        I=self.I
        SL=[V_RING+16*i for i in range(6)]+[16]
        DEP=len(SL)
        I(f's_mul_i32 s{S_A}, s{S_DT1}, 262144'); I(f's_lshl_b32 s{S_T0}, s{S_W}, 16'); I(f's_add_u32 s{S_A}, s{S_A}, s{S_T0}')
        I(f's_mul_i32 s{S_T2}, s87, 7'); I(f's_sub_u32 s{S_T2}, s{S_FT}, s{S_T2}'); I(f's_lshl_b32 s{S_T2}, s{S_T2}, 13')
        I(f's_add_u32 s{S_T2}, s{S_T2}, s{S_A}'); I(f's_add_u32 s{S_T2}, s{S_T2}, 8192')
        I(f'v_lshlrev_b32 v7, 7, v{V_LANE}')
        I(f's_lshl_b32 s{S_T0}, s{S_WL}, 11'); I(f's_xor_b32 s{S_T1}, s{S_T0}, 2048')
        I(f's_add_u32 s{S_B}, s{S_A}, s{S_T1}'); I(f's_add_u32 s{S_A}, s{S_A}, s{S_T0}')
        def ld(k,y):
            r=SL[k%DEP]
            sx=S_A if y<2 else S_B
            I(f'buffer_load_dwordx4 {vr(r+4*y,4)}, v{V_L16}, {srd(SRD_WS)}, s{sx} offen offset:{(y&1)*1024} sc1', tag=('ht',k,y))
            if (y&1) and k<15: I(f's_add_u32 s{sx}, s{sx}, 4096')
        for k in range(DEP):
            for y in range(4): ld(k,y)
            if k==1 and self.opt.ht_touch: I(f'buffer_load_dword v12, v7, {srd(SRD_WS)}, s{S_T2} offen sc1', tag='touch')
        self.ring_finish(); self.wait(lg='all')
        self.stamp('w1 in regs')
        self.w2_setup(); self.R['maxrd']=0
        for k in range(16):
            r=SL[k%DEP]
            for y in range(4):
                self.wait(vm=[('ht',k,y)])
                if y==0: self.stamp(f'g1.{k}',fine=2)
                for x in range(4):
                    d=V_ACC+16*x+4*y
                    cin=vr(d,4) if k else '0'
                    I(f'v_mfma_f32_16x16x32_bf16 {vr(d,4)}, {ar(16*k+4*x,4)}, {vr(r+4*y,4)}, {cin}')
                if k+DEP<16: ld(k+DEP,y)
                else:
                    self.R['maxrd']=k
                    self.tick()
        self.R['maxrd']=99
        self.e_loads()

    def e_addr(self):
        I=self.I
        OF=V_EOF
        I(f's_lshl_b32 s{S_T0}, s{S_G}, 14'); I(f's_add_u32 s{S_T0}, s{S_T0}, {WS_E}')
        I(f's_add_u32 s{SRD_1}, s{P_WS}, s{S_T0}'); I(f's_addc_u32 s{SRD_1+1}, s{P_WS+1}, 0')
        I(f's_and_b32 s{SRD_1+1}, s{SRD_1+1}, 0xffff'); I(f's_mov_b32 s{SRD_1+2}, 16384'); I(f's_mov_b32 s{SRD_1+3}, 0x20000')
        I(f'v_lshrrev_b32 v8, 4, v{V_LANE}'); I('v_lshlrev_b32 v8, 12, v8')
        I(f'v_and_b32 v9, 15, v{V_LANE}'); I('v_lshlrev_b32 v9, 3, v9'); I('v_add_u32 v8, v8, v9')
        I(f's_sub_u32 s{S_T0}, s{S_C}, 32'); I(f's_lshl_b32 s{S_T0}, s{S_T0}, 9'); I(f's_lshl_b32 s{S_T1}, s{S_W}, 7')
        I(f's_add_u32 s{S_T0}, s{S_T0}, s{S_T1}'); I(f'v_add_u32 v8, s{S_T0}, v8')
        for i in range(8): I(f'v_add_u32 v{OF+i}, {512*i}, v8')
    def e_loads(self):
        for i in range(8):
            self.I(f'buffer_load_dwordx2 {vr(V_EL+2*i,2)}, v{V_EOF+i}, {srd(SRD_1)}, 0 offen sc1', tag='E')

    def finalize(self):
        I=self.I
        T=V_RING
        EL=V_EL
        L=self.newlabel('pollE'); Dn=self.newlabel('pollEd')
        sv=self.auto; self.auto=0
        I(f's_mov_b32 s{S_BOUND}, 0x200000')
        self.wait(vm=['E'])
        self.label(L)
        I(f'v_max3_u32 v8, v{EL}, v{EL+1}, v{EL+2}')
        for i in range(3,15,2): I(f'v_max3_u32 v8, v8, v{EL+i}, v{EL+i+1}')
        I(f'v_max_u32 v8, v8, v{EL+15}')
        I('v_cmp_eq_u32 vcc, -1, v8')
        I(f's_cbranch_vccz {Dn}')
        snap=self.snapshot()
        self.e_loads()
        I('s_waitcnt vmcnt(0)')
        I(f's_sub_u32 s{S_BOUND}, s{S_BOUND}, 1'); I(f's_cbranch_scc0 {L}')
        self.label(Dn); self.restore(snap)
        self.auto=sv
        QR,QI=EL,EL+1
        for i in range(1,8):
            self.cfma(QR,QI,V_L64R,V_L64I,QR,QI,EL+2*i,EL+2*i+1,36,37)
        GR=[20,21,22,23]; GI=[24,25,26,27]
        self.allgather_q(QR,*GR); self.allgather_q(QI,*GI)
        for q in range(1,4):
            self.cfma(GR[q],GI[q],V_L512R,V_L512I,GR[q-1],GI[q-1],GR[q],GI[q],28,29)
        self.cfma(V_SR,V_SI,V_PR,V_PI,GR[3],GI[3],V_SR,V_SI,28,29)
        HR,HI,T0,T1=V_SR,V_SI,36,37
        OR,OI=T+32,T+48
        for t in range(16):
            I(f'v_fma_f32 v{T0}, v{V_LR}, v{HR}, v{V_RAW+t}')
            I(f'v_fma_f32 v{T1}, v{V_LR}, v{HI}, v{V_RAW+16+t}')
            I(f'v_fma_f32 v{T0}, -v{V_LI}, v{HI}, v{T0}')
            I(f'v_fma_f32 v{HI}, v{V_LI}, v{HR}, v{T1}')
            HR,T0=T0,HR
            I(f'v_mul_f32 v{OR+t}, v{V_K1}, v{HR}'); I(f'v_mul_f32 v{OI+t}, v{V_K2}, v{HR}')
            I(f'v_fma_f32 v{OR+t}, v{V_K2}, v{HI}, v{OR+t}'); I(f'v_fma_f32 v{OI+t}, -v{V_K1}, v{HI}, v{OI+t}')
        PKR,PKI=T,T+8
        for t in range(8):
            I(f'v_cvt_pk_bf16_f32 v{PKR+t}, v{OR+2*t}, v{OR+2*t+1}'); I(f'v_cvt_pk_bf16_f32 v{PKI+t}, v{OI+2*t}, v{OI+2*t+1}')
        I(f'v_and_b32 v8, 15, v{V_LANE}'); I(f's_lshl_b32 s{S_T0}, s{S_WL}, 4'); I(f'v_add_u32 v8, s{S_T0}, v8')
        I('v_lshrrev_b32 v9, 3, v8'); I('v_lshlrev_b32 v9, 2, v9')
        I('v_and_b32 v10, 3, v8'); I('v_add_u32 v9, v9, v10')
        I('v_bfe_u32 v10, v8, 2, 1'); I('v_lshlrev_b32 v11, 4, v10'); I('v_add_u32 v9, v9, v11')
        I('v_and_b32 v11, 7, v9'); I('v_lshlrev_b32 v10, 2, v10'); I('v_xor_b32 v11, v11, v10')
        I(f'v_lshrrev_b32 v10, 4, v{V_LANE}'); I('v_lshlrev_b32 v10, 1, v10')
        I('v_xor_b32 v10, v10, v11'); I('v_lshlrev_b32 v10, 4, v10')
        I('v_lshlrev_b32 v9, 7, v9'); I('v_add_u32 v9, v9, v10')
        I(f's_lshl_b32 s{S_T0}, s{S_WH}, 12'); I(f'v_add_u32 v9, s{S_T0}, v9')
        I('v_xor_b32 v10, 16, v9')
        I('s_barrier')
        I(f'ds_write_b128 v9, {vr(PKR,4)} offset:{LDS_X}'); I(f'ds_write_b128 v10, {vr(PKR+4,4)} offset:{LDS_X}')
        I(f'ds_write_b128 v9, {vr(PKI,4)} offset:{LDS_X+8192}'); I(f'ds_write_b128 v10, {vr(PKI+4,4)} offset:{LDS_X+8192}')
        self.wait(lg='all'); I('s_barrier')
        I(f'v_lshrrev_b32 v8, 2, v{V_LANE}'); I('v_and_b32 v9, 7, v8'); I(f'v_bfe_u32 v10, v{V_LANE}, 1, 1')
        I('v_xor_b32 v9, v9, v10'); I('v_lshlrev_b32 v9, 4, v9'); I('v_lshlrev_b32 v8, 7, v8'); I('v_add_u32 v8, v8, v9')
        I(f'v_and_b32 v9, 1, v{V_LANE}'); I('v_lshlrev_b32 v9, 3, v9'); I('v_add_u32 v8, v8, v9')
        I(f's_lshl_b32 s{S_T0}, s{S_W}, 12'); I(f'v_add_u32 v8, s{S_T0}, v8')
        FR=T+32
        for nb in range(4):
            I(f'v_xor_b32 v9, {nb<<5}, v8'); I('v_xor_b32 v10, 64, v9')
            I(f'ds_read_b64_tr_b16 {vr(FR+4*nb,2)}, v9 offset:{LDS_X}', tag=('hp',nb))
            I(f'ds_read_b64_tr_b16 {vr(FR+4*nb+2,2)}, v10 offset:{LDS_X+2048}', tag=('hp',nb))
        I(f's_mul_i32 s{S_T0}, s{S_C}, {28*4096}'); I(f's_lshl_b32 s{S_T1}, s{S_G}, 14'); I(f's_add_u32 s{S_T0}, s{S_T0}, s{S_T1}')
        I(f's_lshl_b32 s{S_T1}, s{S_W}, 12'); I(f's_add_u32 s{S_T0}, s{S_T0}, s{S_T1}'); I(f's_add_u32 s{S_T0}, s{S_T0}, {WS_HP}')
        for nb in range(4):
            self.wait(lg=[('hp',nb)])
            I(f'buffer_store_dwordx4 {vr(FR+4*nb,4)}, v{V_L16}, {srd(SRD_WS)}, s{S_T0} offen offset:{nb*1024} sc1', tag='stH')

    def finalize_flag(self):
        self.wait(vm=['stH']); self.I('s_barrier')
        self.flag_set(S_C,7,S_G,WS_FH)

    def flag_set(self, sa, mul, sb, base):
        I=self.I
        L=self.newlabel('flag')
        I(f's_cmp_lg_u32 s{S_W}, 0'); I(f's_cbranch_scc1 {L}')
        snap=self.snapshot()
        I(f's_mul_i32 s{S_T0}, s{sa}, {mul}'); I(f's_add_u32 s{S_T0}, s{S_T0}, s{sb}'); I(f's_lshl_b32 s{S_T0}, s{S_T0}, 6')
        I(f's_add_u32 s{S_T0}, s{S_T0}, {base}')
        I('v_mov_b32 v8, 0'); I('v_mov_b32 v9, 1')
        self.exec_set(1,0)
        I(f'buffer_store_dword v9, v8, {srd(SRD_WS)}, s{S_T0} offen sc1')
        self.exec_full()
        self.label(L); self.merge(snap)

    def g_bias_load(self):
        I=self.I
        I(f'v_lshrrev_b32 v8, 4, v{V_LANE}'); I('v_lshlrev_b32 v8, 3, v8')
        I(f's_lshl_b32 s{S_T0}, s{S_FT}, 7'); I(f's_lshl_b32 s{S_T1}, s{S_WH}, 6'); I(f's_add_u32 s{S_T0}, s{S_T0}, s{S_T1}')
        I(f'v_add_u32 v8, s{S_T0}, v8')
        I(f'global_load_dwordx2 v[32:33], v8, {sp(P_B1)}', tag='b1')
        I(f'global_load_dwordx2 v[34:35], v8, {sp(P_B1)} offset:32', tag='b1')

    def g_epilogue(self):
        I=self.I
        self.auto=self.opt.period
        self.reduce(V_RING)
        self.wait(vm=['b1'])
        for x in range(2):
            for h in range(2):
                I(f'v_lshlrev_b32 v{16+4*x+2*h}, 16, v{32+2*x+h}'); I(f'v_and_b32 v{17+4*x+2*h}, s{S_MASK}, v{32+2*x+h}')
        C1=-2.0*0.7978845608028654*1.4426950408889634
        C3=C1*0.044715
        import struct
        f2h=lambda f:'0x%08x'%struct.unpack('<I',struct.pack('<f',f))[0]
        I(f's_mov_b32 s{S_T2}, {f2h(C1)}'); I(f's_mov_b32 s{S_T3}, {f2h(C3)}')
        I(f'v_mov_b32 v31, s{S_T2}')
        U=[]
        for x in range(2):
            for y in range(2):
                for r in range(4):
                    U.append((V_ACC+16*x+4*y+r, 16+4*x+r))
        TT=V_RING
        for n,(u,b) in enumerate(U): I(f'v_add_f32 v{u}, v{u}, v{b}')
        for n,(u,b) in enumerate(U): I(f'v_mul_f32 v{TT+n}, v{u}, v{u}')
        for n,(u,b) in enumerate(U): I(f'v_fma_f32 v{TT+n}, v{TT+n}, s{S_T3}, v31')
        for n,(u,b) in enumerate(U): I(f'v_mul_f32 v{TT+n}, v{TT+n}, v{u}')
        for n,(u,b) in enumerate(U): I(f'v_exp_f32 v{TT+n}, v{TT+n}')
        for n,(u,b) in enumerate(U): I(f'v_add_f32 v{TT+n}, 1.0, v{TT+n}')
        for n,(u,b) in enumerate(U): I(f'v_rcp_f32 v{TT+n}, v{TT+n}')
        for n,(u,b) in enumerate(U): I(f'v_mul_f32 v{u}, v{u}, v{TT+n}')
        F=V_RING+16
        for y in range(2):
            for x in range(2):
                a=V_ACC+16*x+4*y
                I(f'v_cvt_pk_bf16_f32 v{F+4*y+2*x}, v{a}, v{a+1}'); I(f'v_cvt_pk_bf16_f32 v{F+4*y+2*x+1}, v{a+2}, v{a+3}')
        I(f's_mul_i32 s{S_T0}, s{S_DT1}, {56*4096}'); I(f's_lshl_b32 s{S_T1}, s{S_FT}, 13'); I(f's_add_u32 s{S_T0}, s{S_T0}, s{S_T1}')
        I(f's_lshl_b32 s{S_T1}, s{S_WH}, 12'); I(f's_add_u32 s{S_T0}, s{S_T0}, s{S_T1}')
        I(f's_lshl_b32 s{S_T1}, s{S_WL}, 11'); I(f's_add_u32 s{S_T0}, s{S_T0}, s{S_T1}'); I(f's_add_u32 s{S_T0}, s{S_T0}, {WS_GT}')
        for y in range(2):
            I(f'buffer_store_dwordx4 {vr(F+4*y,4)}, v{V_L16}, {srd(SRD_WS)}, s{S_T0} offen offset:{y*1024} sc1', tag='stG')
        self.auto=0
        for n in range(self.opt.gwait): self.tick()
        self.wait(vm=['stG']); I('s_barrier')
        self.flag_set(S_DT1,28,S_FT,WS_FG)

    def w2_setup(self):
        I=self.I
        self.make_srd(SRD_W, P_W2, 1792*4096)
        self.ring_setup(4096, S_WL)
        I(f's_mul_i32 s{S_WO}, s{S_W}, {448*4096}'); I(f's_lshl_b32 s{S_T0}, s{S_C}, 7'); I(f's_add_u32 s{S_WO}, s{S_WO}, s{S_T0}')
        self.ring_init('w2',14,4096,range(6))

    def cpack(self):
        I=self.I
        L=self.newlabel('nocp')
        I(f's_cmp_ge_u32 s{S_E}, 28'); I(f's_cbranch_scc1 {L}')
        I(f's_mov_b32 s{SRD_1+2}, {448*896}'); I(f's_mov_b32 s{SRD_1+3}, 0x20000')
        I(f's_bitcmp1_b32 s{S_E}, 1')
        I(f's_cselect_b32 s{SRD_1}, s{P_CIM}, s{P_CRE}'); I(f's_cselect_b32 s{SRD_1+1}, s{P_CIM+1}, s{P_CRE+1}')
        I(f'v_and_b32 v9, 15, v{V_LANE}'); I('v_mul_u32_u24 v9, 896, v9'); I(f'v_lshrrev_b32 v10, 4, v{V_LANE}')
        I('v_lshlrev_b32 v10, 4, v10'); I('v_add_u32 v10, v9, v10')
        I(f's_lshr_b32 s{S_T0}, s{S_E}, 2'); I(f's_lshl_b32 s{S_T0}, s{S_T0}, 7')
        I(f's_and_b32 s{S_T1}, s{S_E}, 1'); I(f's_lshl_b32 s{S_T1}, s{S_T1}, 6'); I(f's_add_u32 s{S_T0}, s{S_T0}, s{S_T1}')
        I(f's_mul_i32 s{S_T1}, s{S_W}, {16*896}'); I(f's_add_u32 s{S_T0}, s{S_T0}, s{S_T1}')
        for dt in range(7):
            I(f'buffer_load_dwordx4 {vr(56+4*dt,4)}, v10, {srd(SRD_1)}, s{S_T0} offen', tag=('cp',dt))
            if dt<6: I(f's_add_u32 s{S_T0}, s{S_T0}, {64*896}')
        I(f's_lshl_b32 s{S_T0}, s{S_E}, 12'); I(f's_lshl_b32 s{S_T1}, s{S_W}, 10'); I(f's_add_u32 s{S_T0}, s{S_T0}, s{S_T1}')
        I(f's_add_u32 s{S_T0}, s{S_T0}, {WS_CP}')
        for dt in range(7):
            self.wait(vm=[('cp',dt)])
            I(f'buffer_store_dwordx4 {vr(56+4*dt,4)}, v{V_L16}, {srd(SRD_WS)}, s{S_T0} offen sc1', tag='stC')
            if dt<6: I(f's_add_u32 s{S_T0}, s{S_T0}, {28*4096}')
        self.wait(vm='all'); I('s_barrier')
        I(f's_mov_b32 s{S_T1}, 0')
        self.flag_set(S_T1,1,S_E,WS_FC)
        self.label(L)

    def p2_resid_loads(self):
        I=self.I
        self.make_srd(SRD_OUT, P_OUT, 2048*1792)
        I(f'v_and_b32 v7, 15, v{V_LANE}'); I(f'v_lshrrev_b32 v8, 4, v{V_LANE}')
        I('v_mul_u32_u24 v9, 896, v7'); I('v_lshlrev_b32 v10, 3, v8'); I('v_add_u32 v9, v9, v10')
        I(f's_lshl_b32 s{S_T0}, s{S_C}, 6'); I(f's_lshl_b32 s{S_T1}, s{S_WL}, 5'); I(f's_add_u32 s{S_T0}, s{S_T0}, s{S_T1}')
        I(f's_lshl_b32 s{S_T1}, s{S_G}, 6'); I(f's_lshl_b32 s{S_T2}, s{S_WH}, 5'); I(f's_add_u32 s{S_T1}, s{S_T1}, s{S_T2}')
        for y in range(2):
            for x in range(2):
                I(f's_add_u32 s{S_T2}, s{S_T0}, {16*y}'); I(f's_mul_i32 s{S_T2}, s{S_T2}, 896')
                I(f's_add_u32 s{S_T3}, s{S_T1}, {16*x}'); I(f's_lshl_b32 s{S_T3}, s{S_T3}, 1'); I(f's_add_u32 s{S_T2}, s{S_T2}, s{S_T3}')
                I(f'buffer_load_dwordx2 {vr(16+4*y+2*x,2)}, v9, {srd(SRD_X)}, s{S_T2} offen', tag='res')
        I('v_lshlrev_b32 v9, 3, v7')
        for y in range(2):
            I(f's_add_u32 s{S_T2}, s{S_T0}, {16*y}'); I(f's_lshl_b32 s{S_T2}, s{S_T2}, 3'); I(f's_add_u32 s{S_T2}, s{S_T2}, {WS_STAT}')
            I(f'buffer_load_dwordx2 {vr(24+2*y,2)}, v9, {srd(SRD_WS)}, s{S_T2} offen sc1', tag='res')
        I(f's_lshl_b32 s{S_T2}, s{S_T1}, 1'); I(f'v_add_u32 v9, s{S_T2}, v10')
        I(f'global_load_dwordx2 v[28:29], v9, {sp(P_DSK)}', tag='res')
        I(f'global_load_dwordx2 v[30:31], v9, {sp(P_DSK)} offset:32', tag='res')
        I(f'v_add_u32 v9, s{S_T0}, v7'); I('v_lshlrev_b32 v9, 1, v9')
        I(f'global_load_ushort v32, v9, {sp(P_B2)}', tag='res')
        I(f'global_load_ushort v33, v9, {sp(P_B2)} offset:32', tag='res')

    def p2_main(self):
        I=self.I
        I(f's_mul_i32 s{S_T0}, s{S_G}, 28'); I(f's_mul_i32 s{S_T1}, s{S_W}, 7'); I(f's_add_u32 s{S_T0}, s{S_T0}, s{S_T1}')
        I(f's_lshl_b32 s{S_T0}, s{S_T0}, 6'); I(f's_add_u32 s{S_T0}, s{S_T0}, {WS_FG}')
        I(f's_lshl_b32 s{S_T1}, s{S_T1}, 6'); I(f's_add_u32 s{S_T1}, s{S_T1}, {WS_FC-7*64}')
        I(f'v_min_u32 v8, 13, v{V_LANE}'); I('v_lshlrev_b32 v9, 6, v8')
        I(f'v_mov_b32 v10, s{S_T0}'); I(f'v_mov_b32 v11, s{S_T1}'); I('v_cmp_gt_u32 vcc, 7, v8'); I('v_cndmask_b32 v10, v11, v10, vcc')
        I('v_add_u32 v8, v9, v10')
        I(f's_mul_i32 s{S_T0}, s{S_W}, 7'); I(f's_lshr_b32 s{S_T1}, s{S_T0}, 2')
        I(f's_mul_i32 s{S_T2}, s{S_C}, 7'); I(f's_add_u32 s{S_T2}, s{S_T2}, s{S_T1}')
        I(f's_add_u32 s{S_T3}, s{S_T0}, 6'); I(f's_lshr_b32 s{S_T3}, s{S_T3}, 2'); I(f's_sub_u32 s{S_T3}, s{S_T3}, s{S_T1}')
        I(f'v_min_u32 v35, s{S_T3}, v{V_LANE}'); I(f'v_add_u32 v35, s{S_T2}, v35'); I('v_lshlrev_b32 v35, 6, v35')
        I(f'v_add_u32 v35, {WS_FH}, v35')
        I(f's_mul_i32 s{S_A}, s{S_G}, {56*4096}'); I(f's_mul_i32 s{S_T0}, s{S_W}, {14*4096}'); I(f's_add_u32 s{S_A}, s{S_A}, s{S_T0}')
        I(f's_add_u32 s{S_A}, s{S_A}, {WS_GT}')
        I(f's_and_b32 s{S_T3}, s86, 7'); I(f's_mul_i32 s{S_T3}, s{S_T3}, {56*128}'); I(f's_add_u32 s90, s{S_T3}, s{S_A}')
        I(f's_lshl_b32 s{S_T1}, s{S_WH}, 11'); I(f's_xor_b32 s{S_T2}, s{S_T1}, 2048')
        I(f's_add_u32 s{S_B}, s{S_A}, s{S_T2}'); I(f's_add_u32 s{S_A}, s{S_A}, s{S_T1}')
        I(f's_mul_i32 s22, s{S_G}, {28*4096}'); I(f's_mul_i32 s{S_T0}, s{S_W}, {7*4096}'); I(f's_add_u32 s22, s22, s{S_T0}')
        I(f's_add_u32 s22, s22, {WS_CP}')
        I(f's_add_u32 s23, s22, s{S_T2}'); I(f's_add_u32 s22, s22, s{S_T1}')
        I(f's_mul_i32 s38, s{S_C}, {28*4096}'); I(f's_add_u32 s38, s38, s{S_T0}'); I(f's_add_u32 s38, s38, {WS_HP}')
        I(f's_lshl_b32 s{S_T1}, s{S_WL}, 11'); I(f's_xor_b32 s{S_T2}, s{S_T1}, 2048')
        I(f's_add_u32 s39, s38, s{S_T2}'); I(f's_add_u32 s38, s38, s{S_T1}')
        I(f'v_lshlrev_b32 v9, 7, v{V_LANE}')
        self.poll('fg', 8, P_WS, 1)
        self.stamp('flagG')
        DEP=8
        slot=lambda n: V_RING+16*(n%DEP)
        def ld(kind,i,x):
            if kind=='g':   r,sa,sb,last=slot(i),S_A,S_B,13
            elif kind=='c': r,sa,sb,last=slot(6+2*i),22,23,6
            else:           r,sa,sb,last=slot(7+2*i),38,39,6
            sx=sa if x<2 else sb
            I(f'buffer_load_dwordx4 {vr(r+4*x,4)}, v{V_L16}, {srd(SRD_WS)}, s{sx} offen offset:{(x&1)*1024} sc1', tag=(kind,i,x))
            if (x&1) and i<last: I(f's_add_u32 s{sx}, s{sx}, 4096')
        for k in range(DEP):
            for x in range(4): ld('g',k,x)
            if k==1 and self.opt.g_touch:
                self.exec_set('-1','0x00ffffff')
                I(f'buffer_load_dword v12, v9, {srd(SRD_WS)}, s90 offen sc1', tag='touch')
                self.exec_full()
        I(f'global_load_dword v34, v35, {sp(P_WS)} sc1', tag='fh')
        self.p2_resid_loads()
        for k in range(14):
            r=slot(k)
            if k==7:
                L=self.newlabel('fh'); D=self.newlabel('fhd')
                self.wait(vm=['fh'])
                I('v_cmp_gt_u32 vcc, 1, v34'); I(f's_cbranch_vccz {D}')
                snap=self.snapshot()
                I(f's_mov_b32 s{S_BOUND}, 0x200000')
                self.label(L)
                I(f'global_load_dword v34, v35, {sp(P_WS)} sc1'); I('s_waitcnt vmcnt(0)')
                I('v_cmp_gt_u32 vcc, 1, v34'); I(f's_cbranch_vccz {D}')
                I(f's_sub_u32 s{S_BOUND}, s{S_BOUND}, 1'); I(f's_cbranch_scc0 {L}')
                self.label(D); self.restore(snap)
            for x in range(4):
                self.wait(vm=[('g',k,x)])
                if x==0: self.stamp(f'g2.{k}',fine=2)
                for y in range(4):
                    d=V_ACC+16*x+4*y
                    cin=vr(d,4) if k else '0'
                    I(f'v_mfma_f32_16x16x32_bf16 {vr(d,4)}, {vr(r+4*x,4)}, {ar(16*k+4*y,4)}, {cin}')
                if k+DEP<14: ld('g',k+DEP,x)
                elif k%2==0: ld('c',(k-6)//2,x)
                else: ld('h',(k-7)//2,x)
        self.stamp('p2g')
        for i in range(7):
            rc,rh=slot(6+2*i),slot(7+2*i)
            self.wait(vm=[('h',i,y) for y in range(4)])
            for x in range(4):
                self.wait(vm=[('c',i,x)])
                if x==0: self.stamp(f'ss.{i}',fine=2)
                for y in range(4):
                    d=V_ACC+16*x+4*y
                    I(f'v_mfma_f32_16x16x32_bf16 {vr(d,4)}, {vr(rc+4*x,4)}, {vr(rh+4*y,4)}, {vr(d,4)}')
                if i+4<7: ld('c',i+4,x)
            if i+4<7:
                for y in range(4): ld('h',i+4,y)

    def p2_epilogue(self):
        I=self.I
        self.reduce(V_RING)
        self.wait(vm=['res'])
        for x in range(2):
            for h in range(2):
                I(f'v_lshlrev_b32 v{40+4*x+2*h}, 16, v{28+2*x+h}'); I(f'v_and_b32 v{41+4*x+2*h}, s{S_MASK}, v{28+2*x+h}')
        I('v_lshlrev_b32 v32, 16, v32'); I('v_lshlrev_b32 v33, 16, v33')
        T=V_RING
        for y in range(2):
            M,R=24+2*y,25+2*y
            for x in range(2):
                xs=16+4*y+2*x; a=V_ACC+16*x+4*y; t=T+8*(2*y+x)
                for h in range(2):
                    I(f'v_lshlrev_b32 v{t+2*h}, 16, v{xs+h}'); I(f'v_and_b32 v{t+2*h+1}, s{S_MASK}, v{xs+h}')
                for r in range(4): I(f'v_sub_f32 v{t+4+r}, v{t+r}, v{M}')
                for r in range(4): I(f'v_mul_f32 v{t+4+r}, v{t+4+r}, v{R}')
                for h in range(2): I(f'v_cvt_pk_bf16_f32 v{t+4+2*h}, v{t+4+2*h}, v{t+5+2*h}')
                for h in range(2):
                    I(f'v_and_b32 v{t+5+2*h}, s{S_MASK}, v{t+4+2*h}'); I(f'v_lshlrev_b32 v{t+4+2*h}, 16, v{t+4+2*h}')
                for r in range(4): I(f'v_add_f32 v{t+r}, v{t+r}, v{32+y}')
                for r in range(4): I(f'v_fma_f32 v{t+r}, v{t+4+r}, v{40+4*x+r}, v{t+r}')
                for r in range(4): I(f'v_add_f32 v{a+r}, v{a+r}, v{t+r}')
        I(f'v_and_b32 v7, 15, v{V_LANE}'); I(f'v_lshrrev_b32 v8, 4, v{V_LANE}')
        I('v_mul_u32_u24 v9, 1792, v7'); I('v_lshlrev_b32 v10, 4, v8'); I('v_add_u32 v9, v9, v10')
        I(f's_lshl_b32 s{S_T0}, s{S_C}, 6'); I(f's_lshl_b32 s{S_T1}, s{S_WL}, 5'); I(f's_add_u32 s{S_T0}, s{S_T0}, s{S_T1}')
        I(f's_lshl_b32 s{S_T1}, s{S_G}, 6'); I(f's_lshl_b32 s{S_T2}, s{S_WH}, 5'); I(f's_add_u32 s{S_T1}, s{S_T1}, s{S_T2}')
        for y in range(2):
            for x in range(2):
                I(f's_add_u32 s{S_T2}, s{S_T0}, {16*y}'); I(f's_mul_i32 s{S_T2}, s{S_T2}, 1792')
                I(f's_add_u32 s{S_T3}, s{S_T1}, {16*x}'); I(f's_lshl_b32 s{S_T3}, s{S_T3}, 2'); I(f's_add_u32 s{S_T2}, s{S_T2}, s{S_T3}')
                a=V_ACC+16*x+4*y
                I(f'buffer_store_dwordx4 {vr(a,4)}, v9, {srd(SRD_OUT)}, s{S_T2} offen')

    def write_stamps(self):
        if not self.opt.stamps: return
        I=self.I
        I('s_lshl_b32 s3, s2, 2'); I(f's_add_u32 s3, s3, s{S_W}'); I('s_lshl_b32 s3, s3, 8'); I(f's_add_u32 s3, s3, {WS_DBG}')
        I(f'v_lshlrev_b32 v9, 2, v{V_LANE}')
        I(f'buffer_store_dword v55, v9, {srd(SRD_WS)}, s3 offen')
    def build(self):
        I=self.I; o=self.opt
        if o.stamps: I('v_mov_b32 v55, 0')
        self.prologue()
        self.touches_pre()
        Lnb=self.newlabel('nobu'); Lcont=self.newlabel('cont')
        I('s_cmp_eq_u32 s74, 1'); I(f's_cbranch_scc1 {Lcont}')
        snap=self.snapshot()
        self.touch_w1()
        self.ln8()
        self.stamp('ln8 stored')
        self.arrive0()
        self.cpack()
        self.touch_w2_all()
        self.write_stamps()
        I('s_endpgm')
        self.label(Lcont); self.restore(snap)
        self.dma_setup()
        self.q_b(); self.q_x([0,1,2])
        for n in range(self.opt.pre): self.tick()
        self.stamp('issued')
        self.auto=self.opt.period
        self.ln8()
        self.auto=0
        self.stamp('ln8 stored')
        self.q_x([3])
        self.drain_q()
        self.touch_w1()
        self.b_read()
        self.arrive0()
        self.stamp('arrived')
        self.wait(lg=['brd'])
        self.w1_setup()
        self.ring_init('w1',16,3584,range(6))
        for n in range(self.opt.pre1): self.tick()
        self.auto=self.opt.period
        self.x_addr()
        self.lam_consts()
        self.stamp('lam')
        self.ln64()
        self.auto=0
        self.wait(lg='all', vm=['b13']); I('s_barrier')
        self.stamp('ln64')
        I(f'v_and_b32 v35, 3, v{V_LANE}'); I('v_lshlrev_b32 v35, 6, v35')
        I(f'global_load_dword v34, v35, {sp(P_DBG)} sc1', tag='e0c')
        self.auto=self.opt.period
        self.bu_gemm()
        self.scan1()
        self.e_addr()
        self.auto=0
        self.stamp('scan1')
        self.wait_e0()
        self.stamp('e0')
        Lnog=self.newlabel('nog1'); Lj=self.newlabel('g1join')
        I(f's_cmp_eq_u32 s{S_HASG1}, 0'); I(f's_cbranch_scc1 {Lnog}')
        snap=self.snapshot()
        R1=dict(self.R); R1['free']=list(self.R['free']); R1['slot']=dict(self.R['slot'])
        self.g_bias_load()
        self.gemm1()
        self.stamp('gemm1')
        self.g_epilogue()
        self.stamp('gepi')
        I(f's_branch {Lj}')
        snapA=self.snapshot()
        RA={k:self.R[k] for k in ('iss','rd','rel','piece')}; RA['free']=list(self.R['free']); RA['slot']=dict(self.R['slot'])
        self.label(Lnog); self.restore(snap); self.R=R1
        self.ring_finish(); self.wait(lg='all')
        self.w2_setup(); self.e_loads()
        self.replay_ring(RA)
        self.label(Lj); self.merge(snapA)
        self.auto=self.opt.period
        self.finalize()
        self.auto=0
        self.stamp('final')
        self.ring_finish()
        self.finalize_flag()
        self.wait(lg='all')
        self.stamp('w2 in regs')
        self.p2_main()
        self.stamp('ssm')
        self.p2_epilogue()
        self.stamp('end'); self.cstamp('c1')
        self.write_stamps()
        self.label('L_exit')
        I('s_endpgm')
        self.label('L_code_end')

def header(lds):
    return f"""; Fused S5 SSM + MLP-Mixer token MLP, one persistent launch (256 workgroups, one per CU).
; @launch grid=(256,1,1) block=(256,1,1) lds={lds}
.amdgcn_target "amdgcn-amd-amdhsa--gfx950"
.text
.globl {KN}
.p2align 8
.type {KN},@function
{KN}:
"""
def footer():
    return f"""
.section .rodata,"a"
.p2align 6
.amdhsa_kernel {KN}
  .amdhsa_next_free_vgpr 512
  .amdhsa_next_free_sgpr 102
  .amdhsa_accum_offset 256
  .amdhsa_group_segment_fixed_size 0
  .amdhsa_kernarg_size 136
  .amdhsa_user_sgpr_count 2
  .amdhsa_user_sgpr_kernarg_segment_ptr 1
  .amdhsa_system_sgpr_workgroup_id_x 1
  .amdhsa_float_denorm_mode_32 3
.end_amdhsa_kernel
"""
if __name__=='__main__':
    ap=argparse.ArgumentParser()
    ap.add_argument('-o',default='k.s'); ap.add_argument('--stamps',action='store_true'); ap.add_argument('--stop',default=''); ap.add_argument('--fine',type=int,default=0); ap.add_argument('--period',type=int,default=80); ap.add_argument('--pre',type=int,default=18); ap.add_argument('--pre1',type=int,default=8); ap.add_argument('--gwait',type=int,default=6); ap.add_argument('--ht_touch',type=int,default=0); ap.add_argument('--g_touch',type=int,default=0)
    o=ap.parse_args()
    k=K(o); k.build()
    t,n=k.text()
    open(o.o,'w').write(header(LDS_TOTAL)+t+footer())
    print('wrote',o.o,'lines',t.count('\n'),'nop states inserted',n)
    if o.stamps: open(o.o+'.names','w').write(','.join(k.stampnames)); print(k.stampnames)
```

```python
import re

REG_RE = re.compile(r'^-?\|?(?:abs\()?([vas])(?:(\d+)|\[(\d+):(\d+)\])\)?\|?$')
TRANS = ('v_exp_','v_log_','v_rcp_','v_rsq_','v_sqrt_','v_sin_','v_cos_')
NO_DST_S = ('s_cmp','s_waitcnt','s_barrier','s_branch','s_cbranch','s_nop','s_setprio','s_sleep','s_endpgm','s_bitcmp','s_setpc','s_sethalt')

def regs_of(op):
    op = op.strip()
    if op in ('vcc',): return {('s','vcc_lo'),('s','vcc_hi')}
    if op in ('vcc_lo','vcc_hi'): return {('s',op)}
    if op == 'exec': return {('s','exec_lo'),('s','exec_hi')}
    if op in ('exec_lo','exec_hi'): return {('s',op)}
    if op == 'm0': return {('s','m0')}
    m = REG_RE.match(op)
    if not m: return set()
    k = m.group(1)
    if m.group(2) is not None: return {(k,int(m.group(2)))}
    return {(k,i) for i in range(int(m.group(3)), int(m.group(4))+1)}

class Ins:
    __slots__=('text','mn','ops','mods','dst','src','cls','passes','srcC','trans','dpp','lds','wide_store','is_branch','target','uncond','label','states','perm','lane','srcAB')
    def __init__(self, text):
        self.text=text; self.label=None; self.states=1
        self.is_branch=False; self.target=None; self.uncond=False
        self.dst=set(); self.src=set(); self.cls=None; self.passes=0; self.srcC=set(); self.srcAB=set()
        self.trans=False; self.dpp=False; self.lds=False; self.wide_store=False; self.perm=False; self.lane=False
        t=text.strip()
        if t.endswith(':'):
            self.label=t[:-1]; self.states=0; self.cls='label'; self.mn=''; self.ops=[]; return
        if t.startswith(';') or t.startswith('.') or t=='':
            self.cls='comment'; self.states=0; self.mn=''; self.ops=[]; return
        t=t.split(';')[0].strip()
        parts=t.split(None,1)
        self.mn=mn=parts[0]
        rest=parts[1] if len(parts)>1 else ''
        ops=[]; cur=''; depth=0
        for ch in rest:
            if ch in '[(': depth+=1
            if ch in '])': depth-=1
            if ch==',' and depth==0: ops.append(cur.strip()); cur=''
            else: cur+=ch
        if cur.strip(): ops.append(cur.strip())
        mods=''
        if ops:
            last=ops[-1].split(None,1)
            if len(last)>1: ops[-1]=last[0]; mods=last[1]
        self.ops=ops; self.mods=mods
        R=[regs_of(o) for o in ops]
        allr=lambda l:set().union(*l) if l else set()
        if mn.startswith('v_mfma'):
            self.cls='mfma'
            self.passes = 8 if '32x32' in mn else 4
            self.dst=R[0]; self.srcAB=R[1]|R[2]; self.srcC=R[3]; self.src=self.srcAB|self.srcC
        elif mn.startswith('v_'):
            self.cls='valu'
            self.trans=mn.startswith(TRANS)
            self.dpp=('_dpp' in mn) or ('row_' in mods) or ('quad_perm' in mods)
            self.perm=mn.startswith('v_permlane')
            self.lane=mn.startswith(('v_readlane','v_readfirstlane','v_writelane'))
            if mn.startswith(('v_add_co','v_sub_co','v_addc_co','v_subb_co','v_subrev_co','v_mad_u64','v_div_scale')):
                self.dst=R[0]|R[1]; self.src=allr(R[2:])
            elif self.perm:
                self.dst=R[0]|R[1]; self.src=R[0]|R[1]
            else:
                self.dst=R[0]; self.src=allr(R[1:])
                if mn.startswith(('v_fmac','v_dot2c','v_mac','v_writelane','v_pk_fmac')) or self.dpp: self.src|=R[0]
        elif mn.startswith('ds_'):
            self.cls='ds'
            if mn.startswith(('ds_read','ds_bpermute','ds_permute','ds_swizzle')):
                self.dst=R[0]; self.src=allr(R[1:])
            else:
                self.src=allr(R)
        elif mn.startswith(('buffer_','global_','flat_')):
            self.cls='vmem'
            toks=(mods+' '+(ops[-1] if ops else '')).split()
            self.lds=('lds' in mods.split())
            if 'load' in mn and not self.lds:
                self.dst=R[0]; self.src=allr(R[1:])
            elif 'atomic' in mn and 'sc0' in mods.split():
                self.dst=R[0] ; self.src=allr(R)
            else:
                self.src=allr(R)
            if 'store' in mn and ('x3' in mn or 'x4' in mn):
                self.wide_store=True
            if self.lds: self.src|={('s','m0')}
        elif mn.startswith('s_'):
            self.cls='salu'
            if mn=='s_nop': self.states=int(ops[0],0)+1
            if mn.startswith(('s_branch','s_cbranch')):
                self.is_branch=True; self.target=ops[0]; self.uncond=(mn=='s_branch')
            if mn.startswith(NO_DST_S): self.src=allr(R)
            else:
                self.dst=R[0] if R else set(); self.src=allr(R[1:])
                if 'saveexec' in mn: self.dst|={('s','exec_lo'),('s','exec_hi')}
        else:
            raise ValueError('unknown instr: '+text)

def store_data(i):
    if i.mn.startswith('buffer_'): return regs_of(i.ops[0])
    return regs_of(i.ops[1])

def need(p, c):
    n=0
    vreg=lambda s:{r for r in s if r[0] in 'va'}
    sreg=lambda s:{r for r in s if r[0]=='s'}
    if p.cls=='valu':
        pv=vreg(p.dst); ps=sreg(p.dst)
        if c.cls=='mfma' and pv & c.src: n=max(n,2)
        if c.cls=='valu':
            if c.dpp and pv & c.src: n=max(n,2)
            if c.perm and pv & c.src: n=max(n,2)
            if c.lane and pv & c.src: n=max(n,1)
            if p.trans and not c.trans and pv & c.src: n=max(n,1)
            if ps & c.src: n=max(n, 4 if c.lane else 2)
        if p.mn.startswith('v_dot'):
            same = (c.mn==p.mn)
            if same:
                ab=set()
                for o in c.ops[1:3]: ab|=regs_of(o)
                if pv & ab: n=max(n,3)
            elif pv & (c.src|c.dst): n=max(n,3)
        if c.cls=='vmem' and ps & c.src: n=max(n,5)
        if p.trans and c.cls in('ds','vmem') and pv & c.src: n=max(n,1)
    if p.cls=='mfma':
        raw = 8 if p.passes==4 else 12
        if c.cls=='mfma':
            if c.srcAB & p.dst: n=max(n,raw)
            if c.srcC & p.dst:
                if not (c.srcC==p.dst and c.mn==p.mn): n=max(n, 6 if p.passes==4 else 10)
            if (c.dst & p.dst) and not (c.srcC & p.dst): n=max(n, 6 if p.passes==4 else 10)
        elif c.cls in ('valu','ds','vmem'):
            if (c.src|c.dst) & p.dst: n=max(n,raw)
            if c.cls=='valu' and c.dst & p.srcC: n=max(n, 3 if p.passes==4 else 7)
    if p.cls=='salu':
        if ('s','m0') in p.dst and c.lds: n=max(n,1)
    if p.cls=='vmem' and p.wide_store:
        d=store_data(p)
        if c.cls=='valu' and c.dst & d: n=max(n,2)
        elif c.dst & d: n=max(n,1)
    return n

def hazard_pass(lines, verbose=False):
    ins=[Ins(l) for l in lines]
    total=0
    def cfg():
        labels={i.label:k for k,i in enumerate(ins) if i.label}
        preds={}
        for k,i in enumerate(ins):
            if i.is_branch and i.target in labels:
                preds.setdefault(labels[i.target],[]).append(k)
        return preds
    for rounds in range(10):
        changed=False
        preds=cfg()
        k=0
        while k<len(ins):
            c=ins[k]
            if c.cls in ('label','comment'):
                k+=1; continue
            stack=[(k-1,0)]; seen={}
            worst=0
            while stack:
                j,d=stack.pop()
                if j<0 or d>=13: continue
                if seen.get(j,99)<=d: continue
                seen[j]=d
                p=ins[j]
                if p.cls=='label':
                    for q in preds.get(j,[]): stack.append((q,d))
                    jj=j-1
                    while jj>=0 and ins[jj].cls=='comment': jj-=1
                    if jj>=0 and (ins[jj].uncond or ins[jj].mn in('s_endpgm','s_setpc_b64')): continue
                    stack.append((j-1,d)); continue
                if p.cls=='comment':
                    stack.append((j-1,d)); continue
                r=need(p,c)
                if r>d: worst=max(worst,r-d)
                stack.append((j-1,d+p.states))
            if worst>0:
                if verbose: print('hazard: insert',worst,'before',c.text)
                ins.insert(k,Ins('  s_nop %d'%(worst-1))); total+=worst
                preds=cfg(); changed=True
                k+=1
            k+=1
        if not changed: break
    return [i.text for i in ins], total

class Gen:
    def __init__(self):
        self.lines=[]; self.vm={}; self.lg={}; self.uid=0; self.smem=False; self.seen=set()
    def raw(self,t): self.lines.append(t)
    def c(self,t): self.lines.append('; '+t)
    def label(self,n): self.lines.append(n+':')
    def newlabel(self,base):
        self.uid+=1; return 'L_%s_%d'%(base,self.uid)
    def I(self,t,tag=None):
        mn=t.split()[0]
        if mn.startswith(('buffer_','global_')):
            for k in self.vm: self.vm[k]+=1
            if tag is not None: self.vm[tag]=0; self.seen.add(tag)
        elif mn.startswith('ds_'):
            assert not self.smem, 'DS op with SMEM outstanding'
            for k in self.lg: self.lg[k]+=1
            if tag is not None: self.lg[tag]=0; self.seen.add(tag)
        elif mn.startswith('s_load') or mn.startswith('s_memtime') or mn.startswith('s_memrealtime'):
            self.smem=True
        self.lines.append('  '+t)
    def _done(self,d,n):
        for k in [k for k,v in d.items() if v>=n]: del d[k]
    def wait(self,vm=None,lg=None):
        parts=[]
        if vm is not None:
            tags = vm if isinstance(vm,(list,tuple)) else [vm]
            for t in tags: assert t=='all' or t in self.seen, ('waiting on a VMEM tag that was never issued', t)
            if 'all' in tags: n=0
            else:
                ns=[self.vm[t] for t in tags if t in self.vm]
                n=min(ns) if ns else None
            if n is not None and n<63:
                parts.append('vmcnt(%d)'%n); self._done(self.vm,n)
            elif n is not None: self._done(self.vm,63)
        if lg is not None:
            tags = lg if isinstance(lg,(list,tuple)) else [lg]
            for t in tags: assert t=='all' or t in self.seen, ('waiting on a DS tag that was never issued', t)
            if 'all' in tags: n=0; self.smem=False
            else:
                ns=[self.lg[t] for t in tags if t in self.lg]
                n=min(ns) if ns else None
            if n is not None and n<15:
                assert n==0 or not self.smem
                parts.append('lgkmcnt(%d)'%n); self._done(self.lg,n)
            elif n is not None: self._done(self.lg,15)
        if parts: self.lines.append('  s_waitcnt '+' '.join(parts))
    def snapshot(self): return (dict(self.vm),dict(self.lg))
    def restore(self,s): self.vm,self.lg=dict(s[0]),dict(s[1])
    def merge(self,s):
        for a,b in ((self.vm,s[0]),(self.lg,s[1])):
            for k,v in b.items():
                a[k]=min(a[k],v) if k in a else v
    def text(self, verbose=False):
        l,n=hazard_pass(self.lines,verbose)
        return '\n'.join(l)+'\n', n
```

```python
import sys, os, argparse
from asmgen import Gen

KN = "parallel_sum__ssm_conv_s5__mixer_token_mlp__prompt_kernel"

WS_HT    = 0x000000
WS_STAT  = 0x1C0000
WS_E     = 0x1C4000
WS_FH    = 0x1E0000
WS_FG    = 0x1E4000
WS_FC    = 0x1E8000
WS_CP    = 0x780000
WS_GT    = 0x200000
WS_HP    = 0x400000
WS_DBG   = 0x900000

LDS_X  = 0
LDS_Y  = 57344
YW     = 26624
SLOT_OFF = [0, 4096, 8192, 12288, 16384, 20480]
LDS_LN8 = LDS_X + 57344 - 7680
LDS_TOTAL = LDS_Y + 4*YW

P_X, P_LRE, P_LIM, P_BRE, P_BIM, P_CRE, P_CIM, P_LDT = 4,6,8,10,12,14,16,18
P_DSK = 20
P_W1, P_B1, P_W2, P_B2 = 24,26,28,30
P_OUT, P_DBG, P_WS = 32,34,36
SRD_X, SRD_WS, SRD_1, SRD_2, SRD_W, SRD_OUT = 40,44,48,52,56,60
S_W, S_WH, S_WL, S_C, S_G, S_DT1, S_FT, S_HASG1 = 64,65,66,67,68,69,70,71
S_MASK, S_ONES = 72, 73
S_A, S_B, S_WO, S_T0, S_T1, S_T2, S_T3, S_BOUND = 76,77,78,79,80,81,82,83
S_YB = 84
S_WBEG, S_WEND = 96, 97
S_KO, S_KEND = 100, 101
S_FI = 3
S_E = 85
def sp(n): return f's[{n}:{n+1}]'
def srd(n): return f's[{n}:{n+3}]'
def vr(a,n): return f'v[{a}:{a+n-1}]' if n>1 else f'v{a}'
def ar(a,n): return f'a[{a}:{a+n-1}]' if n>1 else f'a{a}'

V_LANE, V_L16 = 0, 1
V_TR = 2
V_DMA = [6,13]
V_T = 16
V_LR,V_LI,V_K1,V_K2,V_SR,V_SI,V_PR,V_PI,V_L64R,V_L64I,V_L512R,V_L512I = range(40,52)
V_IN = 52
V_X64 = 56
V_BF = 112
V_RAW = 224
V_ACC = 56
V_RING = 120
V_EL = 16
V_EOF = 216

class K(Gen):
    def __init__(self, opt):
        super().__init__(); self.opt=opt; self.nstamp=0
        self.vst=55; self.nx=0; self.nb=0; self.bread=False; self.allow_bread=False; self.bdelay=opt.bdelay; self.q=[]; self.R=None; self.auto=0; self.acc=0; self.in_tick=False; self.full=True
    def I(self,t,tag=None):
        super().I(t,tag)
        if self.in_tick: return
        mn=t.split()[0]
        if mn.startswith(('buffer_','global_')): self.acc=0; return
        if not self.auto: return
        if mn.startswith('v_mfma'): self.acc+=16
        elif mn.startswith(('v_exp','v_rcp','v_sqrt','v_sin','v_cos','v_log')): self.acc+=8
        elif mn.startswith(('v_','ds_')): self.acc+=4
        else: return
        if self.acc>=self.auto and self.full and not mn.startswith(('v_cmp','s_cmp','s_bitcmp')):
            self.tick()
    def tick(self):
        self.in_tick=True; self.acc=0
        if not self.bread and self.allow_bread and self.nb>=34:
            if self.bdelay>0: self.bdelay-=1
            else:
                self.do_bread(); self.in_tick=False; return
        if self.q: self.q.pop(0)()
        elif self.R is not None: self.ring_tick()
        self.in_tick=False
    def do_bread(self):
        self.bread=True
        self.b_read()
        self.wait(lg=['brd'])
        self.ring_init('w1',16,3584,range(6))
    def drain_q(self):
        while self.q: self.tick()
    def stamp(self, name, fine=False):
        if not self.opt.stamps: return
        if fine and int(fine)>self.opt.fine: return
        i=self.nstamp; self.nstamp+=1
        assert i<64
        self.c(f'stamp {i}: {name}')
        self.wait(lg='all')
        self.I('s_memrealtime s[98:99]'); self.I('s_waitcnt lgkmcnt(0)'); self.smem=False
        self.I(f'v_writelane_b32 v{self.vst}, s98, {i}')
        self.stampnames=getattr(self,'stampnames',[])+[name]
    def cstamp(self, name):
        if not self.opt.stamps: return
        i=self.nstamp; self.nstamp+=1
        self.wait(lg='all')
        self.I('s_memtime s[98:99]'); self.I('s_waitcnt lgkmcnt(0)'); self.smem=False
        self.I(f'v_writelane_b32 v{self.vst}, s98, {i}')
        self.stampnames=getattr(self,'stampnames',[])+['#'+name]
    def rnd_bf16(self, v):
        self.I(f'v_cvt_pk_bf16_f32 v{v}, v{v}, v{v}')
        self.I(f'v_lshlrev_b32 v{v}, 16, v{v}')
    def make_srd(self, s, ptr, nbytes):
        self.I(f's_mov_b32 s{s}, s{ptr}'); self.I(f's_and_b32 s{s+1}, s{ptr+1}, 0xffff')
        self.I(f's_mov_b32 s{s+2}, {nbytes}'); self.I(f's_mov_b32 s{s+3}, 0x20000')
    def ln_stats(self, SUM, SSQ, R, C, T):
        I=self.I
        I(f'v_mul_f32 v{SUM}, 0x3b124925, v{SUM}')
        I(f'v_mul_f32 v{SSQ}, 0x3b124925, v{SSQ}')
        I(f'v_fma_f32 v{SSQ}, -v{SUM}, v{SUM}, v{SSQ}')
        I(f'v_max_f32 v{SSQ}, 0, v{SSQ}')
        I(f'v_cvt_pk_bf16_f32 v{SUM}, v{SUM}, v{SUM}')
        I(f'v_cvt_pk_bf16_f32 v{SSQ}, v{SSQ}, v{SSQ}')
        I(f'v_lshlrev_b32 v{SUM}, 16, v{SUM}')
        I(f'v_lshlrev_b32 v{SSQ}, 16, v{SSQ}')
        I(f'v_add_f32 v{SSQ}, 0x3727c5ac, v{SSQ}')
        self.rnd_bf16(SSQ)
        I(f'v_sqrt_f32 v{SSQ}, v{SSQ}')
        self.rnd_bf16(SSQ)
        I(f'v_rcp_f32 v{R}, v{SSQ}')
        I(f'v_mul_f32 v{C}, v{SUM}, v{R}')
        I(f'v_sub_f32 v{C}, 0, v{C}')
    def dot_sums(self, regs, accs):
        I=self.I
        for n,d in enumerate(regs):
            s,q = accs[2*(n&1)], accs[2*(n&1)+1]
            if n<2:
                I(f'v_dot2_f32_bf16 v{s}, v{d}, s{S_ONES}, 0')
                I(f'v_dot2_f32_bf16 v{q}, v{d}, v{d}, 0')
            else:
                I(f'v_dot2_f32_bf16 v{s}, v{d}, s{S_ONES}, v{s}')
                I(f'v_dot2_f32_bf16 v{q}, v{d}, v{d}, v{q}')
        I(f'v_add_f32 v{accs[0]}, v{accs[0]}, v{accs[2]}')
        I(f'v_add_f32 v{accs[1]}, v{accs[1]}, v{accs[3]}')
    def normalize(self, regs, R, C, tmps, hook=None):
        I=self.I
        n=len(tmps)
        for b in range(0,len(regs),n):
            grp=regs[b:b+n]
            for d,t in zip(grp,tmps):
                I(f'v_lshlrev_b32 v{t}, 16, v{d}')
                I(f'v_and_b32 v{t+1}, s{S_MASK}, v{d}')
            for d,t in zip(grp,tmps):
                I(f'v_pk_fma_f32 v[{t}:{t+1}], v[{t}:{t+1}], v[{R}:{R+1}], v[{C}:{C+1}] op_sel_hi:[1,0,0]')
            for d,t in zip(grp,tmps):
                I(f'v_cvt_pk_bf16_f32 v{d}, v{t}, v{t+1}')
            if hook: hook(b//n)
    def cmul(self, dr, di, xr, xi, yr, yi, t0, t1):
        I=self.I
        I(f'v_mul_f32 v{t0}, v{xi}, v{yi}')
        I(f'v_mul_f32 v{t1}, v{xi}, v{yr}')
        I(f'v_fma_f32 v{t0}, v{xr}, v{yr}, -v{t0}')
        I(f'v_fma_f32 v{di}, v{xr}, v{yi}, v{t1}')
        I(f'v_mov_b32 v{dr}, v{t0}')
    def cfma(self, dr, di, xr, xi, yr, yi, zr, zi, t0, t1):
        I=self.I
        I(f'v_fma_f32 v{t0}, v{xr}, v{yr}, v{zr}')
        I(f'v_fma_f32 v{t1}, v{xr}, v{yi}, v{zi}')
        I(f'v_fma_f32 v{t0}, -v{xi}, v{yi}, v{t0}')
        I(f'v_fma_f32 v{di}, v{xi}, v{yr}, v{t1}')
        I(f'v_mov_b32 v{dr}, v{t0}')
    def csq(self, dr, di, xr, xi, t0):
        I=self.I
        I(f'v_mul_f32 v{t0}, v{xi}, v{xi}')
        I(f'v_mul_f32 v{di}, v{xr}, v{xi}')
        I(f'v_fma_f32 v{dr}, v{xr}, v{xr}, -v{t0}')
        I(f'v_add_f32 v{di}, v{di}, v{di}')
    def allgather_q(self, v, g0, g1, g2, g3):
        I=self.I
        I(f'v_mov_b32 v{g0}, v{v}'); I(f'v_mov_b32 v{g1}, v{v}')
        I(f'v_permlane16_swap_b32 v{g0}, v{g1}')
        I(f'v_mov_b32 v{g2}, v{g0}'); I(f'v_mov_b32 v{g3}, v{g1}')
        I(f'v_permlane32_swap_b32 v{g0}, v{g2}')
        I(f'v_permlane32_swap_b32 v{g1}, v{g3}')
    def exec_full(self): self.I('s_mov_b64 exec, -1'); self.full=True
    def exec_set(self, lo, hi):
        self.full=False
        self.I(f's_mov_b32 exec_lo, {lo}'); self.I(f's_mov_b32 exec_hi, {hi}')
    def poll(self, name, voff, base, cmp_ge, nlanes_lo=None):
        I=self.I
        L=self.newlabel('poll'); D=self.newlabel('polld')
        I(f's_mov_b32 s{S_BOUND}, 0x200000')
        self.label(L)
        I(f'global_load_dword v7, v{voff}, {sp(base)} sc1')
        I('s_waitcnt vmcnt(0)'); self.vm={}
        I(f'v_cmp_gt_u32 vcc, {cmp_ge}, v7')
        I(f's_cbranch_vccz {D}')
        I('s_sleep 4')
        I(f's_sub_u32 s{S_BOUND}, s{S_BOUND}, 1')
        I(f's_cbranch_scc0 {L}')
        self.label(D)

    def ring_setup(self, pitch, xorsel):
        I=self.I
        I(f'v_lshrrev_b32 v7, 3, v{V_LANE}'); I(f'v_and_b32 v8, 7, v{V_LANE}')
        I('v_and_b32 v9, 6, v7'); I('v_xor_b32 v8, v8, v9'); I('v_lshlrev_b32 v8, 4, v8')
        I(f'v_mul_u32_u24 v7, {pitch}, v7'); I(f'v_add_u32 v{V_DMA[0]}, v7, v8')
        I(f'v_add_u32 v{V_DMA[1]}, {8*pitch-1024}, v{V_DMA[0]}')
        I(f'v_lshrrev_b32 v7, 2, v{V_LANE}'); I('v_and_b32 v8, 6, v7')
        I(f'v_bfe_u32 v9, v{V_LANE}, 1, 1'); I('v_xor_b32 v8, v8, v9'); I('v_lshlrev_b32 v8, 4, v8')
        I('v_lshlrev_b32 v7, 7, v7'); I('v_add_u32 v7, v7, v8')
        I(f'v_and_b32 v9, 1, v{V_LANE}'); I('v_lshlrev_b32 v9, 3, v9'); I('v_add_u32 v7, v7, v9')
        I(f's_lshl_b32 s{S_T0}, s{xorsel}, 6')
        I(f'v_xor_b32 v7, s{S_T0}, v7')
        I(f'v_add_u32 v{V_TR}, s{S_YB}, v7')
        for x in range(1,4):
            I(f'v_xor_b32 v{V_TR+x}, {x<<5}, v{V_TR}')
    def ring_init(self, name, nsteps, pitch, slots):
        self.R=dict(name=name,n=nsteps,pitch=pitch,free=list(slots),slot={},iss=0,rd=0,rel=0,piece=0)
    def ring_add(self, slots): self.R['free']+=list(slots)
    def ring_issue_piece(self):
        R=self.R; I=self.I
        k=R['iss']
        if k>=R['n']: return False
        j=R['piece']
        if j==0:
            if not R['free']: return False
            R['slot'][k]=R['free'].pop(0)
        if j%2==0:
            I(f's_add_u32 m0, s{S_YB}, {SLOT_OFF[R["slot"][k]]+j*1024}')
            if k or j: I(f's_add_u32 s{S_WO}, s{S_WO}, {16*R["pitch"]}')
            else: I('s_nop 0')
        I(f'buffer_load_dwordx4 v{V_DMA[j%2]}, {srd(SRD_W)}, s{S_WO} offen offset:{(j%2)*1024} lds', tag=(R['name'],k))
        R['piece']=(j+1)%4
        if R['piece']==0: R['iss']+=1
        return True
    def ring_issue(self):
        while self.ring_issue_piece(): pass
    def ring_read(self):
        R=self.R; I=self.I
        k=R['rd']
        if k>=R['n']: return False
        assert k<R['iss'], 'read before issue'
        off=SLOT_OFF[R['slot'][k]]
        self.wait(vm=[(R['name'],k)])
        for x in range(4):
            b=16*k+4*x
            I(f'ds_read_b64_tr_b16 {ar(b,2)}, v{V_TR+x} offset:{off}', tag=(R['name'],'r',k))
            I(f'ds_read_b64_tr_b16 {ar(b+2,2)}, v{V_TR+x} offset:{off+2048}', tag=(R['name'],'r',k))
        R['rd']+=1
        return True
    def ring_release(self):
        R=self.R
        k=R['rel']
        if k>=R['rd']: return False
        self.wait(lg=[(R['name'],'r',k)])
        R['free'].append(R['slot'][k]); R['rel']+=1
        self.ring_issue()
        return True
    def ring_tick(self):
        R=self.R
        if R['iss']<R['n']:
            if R['piece']==0 and not R['free']:
                if R['rel']>=R['rd']:
                    assert R['rd']<R.get('maxrd',99)
                    self.ring_read()
                k=R['rel']; self.wait(lg=[(R['name'],'r',k)]); R['free'].append(R['slot'][k]); R['rel']+=1
            self.ring_issue_piece()
            if R['piece']==3 and not R['free'] and R['rd']==R['rel'] and R['rd']<R['iss'] and R['rd']<R.get('maxrd',99):
                self.ring_read()
            return True
        if R['rd']<R['n'] and R['rd']<R.get('maxrd',99): return self.ring_read()
        return False
    def bg(self):
        return self.ring_tick()
    def replay_ring(self, RA):
        R=self.R
        while (R['iss'],R['piece'])<(RA['iss'],RA['piece']) or R['rd']<RA['rd']:
            if (R['iss'],R['piece'])<(RA['iss'],RA['piece']):
                before=R['rd']
                R['maxrd']=RA['rd']
                self.ring_tick()
            else:
                self.ring_read()
        while R['rel']<RA['rel']:
            k=R['rel']; self.wait(lg=[(R['name'],'r',k)]); R['free'].append(R['slot'][k]); R['rel']+=1
        R['maxrd']=99
        for k in RA: assert RA[k]==R[k], (k,RA[k],R[k])
    def ring_finish(self):
        R=self.R; R['maxrd']=99
        while R['rd']<R['n'] or R['iss']<R['n']: self.ring_tick()
        R['rel']=R['n']; self.R=None

    def reduce(self, tmp, pre=None, post=None):
        I=self.I
        for e in (1,2,3):
            I(f's_xor_b32 s{S_T0}, s{S_W}, {e}'); I(f's_mul_i32 s{S_T0}, s{S_T0}, {3*4096}')
            I(f's_add_u32 s{S_T0}, s{S_T0}, {LDS_X+(e-1)*4096}')
            I(f'v_add_u32 v7, s{S_T0}, v{V_L16}')
            xh,yh=e>>1,e&1
            for xl in range(2):
                for yl in range(2):
                    a=V_ACC+16*(2*xh+xl)+4*(2*yh+yl)
                    I(f'ds_write_b128 v7, {vr(a,4)} offset:{(2*xl+yl)*1024}', tag='redw')
        if pre: pre()
        self.wait(lg='all'); I('s_barrier')
        if post: post()
        I(f's_mul_i32 s{S_T0}, s{S_W}, {3*4096}'); I(f'v_add_u32 v7, s{S_T0}, v{V_L16}')
        for e in range(3):
            for sub in range(4):
                I(f'ds_read_b128 {vr(tmp+16*e+4*sub,4)}, v7 offset:{LDS_X+e*4096+sub*1024}', tag=('red',e))
        for e in range(3):
            self.wait(lg=[('red',e)])
            for sub in range(4):
                a=V_ACC+16*(sub>>1)+4*(sub&1)
                for h in range(2):
                    I(f'v_pk_add_f32 v[{a+2*h}:{a+2*h+1}], v[{a+2*h}:{a+2*h+1}], v[{tmp+16*e+4*sub+2*h}:{tmp+16*e+4*sub+2*h+1}]')

    def prologue(self):
        I=self.I
        I('s_cmp_ge_u32 s2, 256'); I('s_cbranch_scc1 L_exit')
        I('s_load_dwordx16 s[4:19], s[0:1], 0')
        I('s_load_dwordx2 s[20:21], s[0:1], 64')
        I('s_load_dwordx8 s[24:31], s[0:1], 80')
        I('s_load_dwordx4 s[32:35], s[0:1], 112')
        I('s_load_dwordx2 s[36:37], s[0:1], 128')
        I('v_lshrrev_b32 v7, 6, v0'); I(f'v_and_b32 v{V_LANE}, 63, v0')
        I(f'v_readfirstlane_b32 s{S_W}, v7')
        I(f'v_lshlrev_b32 v{V_L16}, 4, v{V_LANE}')
        I(f's_mov_b32 s{S_MASK}, 0xffff0000'); I(f's_mov_b32 s{S_ONES}, 0x3f803f80')
        I('s_and_b32 s22, s2, 7')
        I('s_lshr_b32 s23, s2, 3')
        I('s_and_b32 s38, s22, 1')
        I('s_lshr_b32 s39, s22, 1')
        I(f's_lshr_b32 s{S_WH}, s{S_W}, 1'); I(f's_and_b32 s{S_WL}, s{S_W}, 1')
        I(f's_mul_i32 s{S_T0}, s23, 37'); I(f's_lshr_b32 s{S_T0}, s{S_T0}, 8')
        I(f's_mul_i32 s{S_T1}, s{S_T0}, 7'); I(f's_sub_u32 s{S_G}, s23, s{S_T1}')
        I(f's_mov_b32 s{S_DT1}, s{S_G}')
        I(f's_lshl_b32 s{S_T1}, s22, 2'); I(f's_add_u32 s{S_C}, s{S_T1}, s{S_T0}')
        I(f's_min_u32 s{S_C}, s{S_C}, 31')
        I(f's_mul_i32 s{S_T1}, s39, 7'); I(f's_lshl_b32 s{S_T2}, s38, 2'); I(f's_add_u32 s87, s{S_T1}, s{S_T2}')
        I(f's_add_u32 s{S_FT}, s87, s{S_T0}'); I(f's_min_u32 s{S_FT}, s{S_FT}, 27')
        I(f's_sub_u32 s{S_T1}, 4, s38'); I(f's_cmp_lt_u32 s{S_T0}, s{S_T1}'); I(f's_cselect_b32 s{S_HASG1}, 1, 0')
        I('s_cmp_lt_u32 s23, 28'); I('s_cselect_b32 s74, 1, 0')
        self.wait(lg='all')
        self.make_srd(SRD_X, P_X, 2048*896)
        self.x8_issue(2)
        I('s_getpc_b64 s[98:99]'); self.label('L_pc0')
        I(f's_sub_u32 s98, s98, L_pc0-{KN}'); I('s_subb_u32 s99, s99, 0')
        I(f's_and_b32 s{S_T0}, s23, 1'); I(f's_lshl_b32 s{S_T0}, s{S_T0}, 2'); I(f's_add_u32 s{S_T0}, s{S_T0}, s{S_W}')
        I(f's_lshl_b32 s{S_T0}, s{S_T0}, 13')
        I(f'v_lshlrev_b32 v9, 7, v{V_LANE}'); I(f'v_add_u32 v9, s{S_T0}, v9')
        I(f'v_min_u32 v9, L_code_end-{KN}-16, v9')
        I('global_load_dword v12, v9, s[98:99]', tag='pf')
        self.make_srd(SRD_WS, P_WS, 0x10000000)
        I(f's_mul_i32 s{S_YB}, s{S_W}, {YW}'); I(f's_add_u32 s{S_YB}, s{S_YB}, {LDS_Y}')
        I(f's_sub_u32 s{S_E}, s23, 28'); I(f's_lshl_b32 s{S_E}, s{S_E}, 3'); I(f's_add_u32 s{S_E}, s{S_E}, s22')
        I('s_mov_b32 s86, s23'); I('s_mov_b32 s95, s22')
        self.stamp('start'); self.cstamp('c0')

    def x8_issue(self, oct):
        I=self.I
        I(f's_lshr_b32 s75, s{oct}, 2'); I('s_lshl_b32 s75, s75, 5')
        I(f's_lshl_b32 s{S_T0}, s{S_WH}, 4'); I(f's_add_u32 s75, s75, s{S_T0}')
        I(f's_and_b32 s{S_T0}, s{oct}, 3'); I(f's_lshl_b32 s{S_T0}, s{S_T0}, 2'); I(f's_add_u32 s75, s75, s{S_T0}')
        I(f's_lshl_b32 s{S_T0}, s{S_WL}, 1'); I(f's_add_u32 s75, s75, s{S_T0}')
        I(f's_mul_i32 s{S_T2}, s75, 896')
        I(f'v_and_b32 v7, 31, v{V_LANE}'); I(f'v_lshrrev_b32 v8, 5, v{V_LANE}')
        I('v_mul_u32_u24 v8, 896, v8'); I('v_lshlrev_b32 v9, 5, v7'); I('v_add_u32 v8, v8, v9')
        I('v_mov_b32 v9, 0x7ffffff0'); I('v_cmp_gt_u32 vcc, 28, v7'); I('v_cndmask_b32 v8, v9, v8, vcc')
        I(f'buffer_load_dwordx4 {vr(V_T,4)}, v8, {srd(SRD_X)}, s{S_T2} offen', tag='x8')
        I(f'buffer_load_dwordx4 {vr(V_T+4,4)}, v8, {srd(SRD_X)}, s{S_T2} offen offset:16', tag='x8')
    def touches_pre(self):
        I=self.I
        self.make_srd(SRD_1, P_BRE, 448*896); self.make_srd(SRD_2, P_BIM, 448*896); self.make_srd(SRD_W, P_W1, 2048*3584)
        I(f'v_lshrrev_b32 v7, 3, v{V_LANE}'); I(f'v_and_b32 v8, 7, v{V_LANE}'); I('v_min_u32 v8, 6, v8')
        I('v_mul_u32_u24 v7, 896, v7'); I('v_lshlrev_b32 v8, 7, v8'); I('v_add_u32 v7, v7, v8')
        I(f's_lshl_b32 s{S_T3}, s86, 2'); I(f's_add_u32 s{S_T3}, s{S_T3}, s{S_W}')
        I(f's_lshl_b32 s{S_T0}, s95, 8'); I(f's_lshl_b32 s{S_T1}, s{S_T3}, 1'); I(f's_add_u32 s{S_T0}, s{S_T0}, s{S_T1}'); I(f's_mul_i32 s{S_T0}, s{S_T0}, 896')
        self.exec_set('0xffff','0')
        I(f'buffer_load_dword v12, v7, {srd(SRD_X)}, s{S_T0} offen', tag='touch')
        I(f's_and_b32 s{S_T0}, s{S_T3}, 63'); I(f's_mul_i32 s{S_T0}, s{S_T0}, {7*896}')
        I(f's_cmp_lt_u32 s{S_T3}, 64')
        I(f's_cselect_b32 s{SRD_OUT}, s{P_BRE}, s{P_BIM}'); I(f's_cselect_b32 s{SRD_OUT+1}, s{P_BRE+1}, s{P_BIM+1}')
        I(f's_mov_b32 s{SRD_OUT+2}, {448*896}'); I(f's_mov_b32 s{SRD_OUT+3}, 0x20000')
        self.exec_set('-1','0x00ffffff')
        I(f'buffer_load_dword v12, v7, {srd(SRD_OUT)}, s{S_T0} offen', tag='touch')
        self.exec_full()
    def touch_w1(self, setup_only=False):
        I=self.I
        I(f'v_lshrrev_b32 v7, 2, v{V_LANE}'); I(f'v_and_b32 v8, 3, v{V_LANE}')
        I(f's_and_b32 s{S_T1}, s95, 1'); I(f's_sub_u32 s{S_T1}, 3, s{S_T1}'); I(f'v_min_u32 v8, s{S_T1}, v8')
        I('v_mul_u32_u24 v7, 3584, v7'); I('v_lshlrev_b32 v8, 7, v8'); I('v_add_u32 v7, v7, v8')
        I(f's_lshl_b32 s{S_T0}, s{S_W}, 9'); I(f's_lshl_b32 s{S_T1}, s86, 4'); I(f's_add_u32 s{S_T0}, s{S_T0}, s{S_T1}')
        I(f's_mul_i32 s{S_T0}, s{S_T0}, 3584'); I(f's_lshl_b32 s{S_T1}, s87, 7'); I(f's_add_u32 s{S_T0}, s{S_T0}, s{S_T1}')
        if setup_only:
            I('v_mov_b32 v238, v7'); I(f's_mov_b32 s94, s{S_T0}'); return
        I(f'buffer_load_dword v12, v7, {srd(SRD_W)}, s{S_T0} offen', tag='touch')
    def touch_w1_wg(self):
        I=self.I
        I(f'v_lshrrev_b32 v7, 2, v{V_LANE}'); I(f'v_and_b32 v8, 3, v{V_LANE}')
        I(f's_and_b32 s{S_T1}, s95, 1'); I(f's_sub_u32 s{S_T1}, 3, s{S_T1}'); I(f'v_min_u32 v8, s{S_T1}, v8')
        I('v_mul_u32_u24 v7, 3584, v7'); I('v_lshlrev_b32 v8, 7, v8'); I('v_add_u32 v7, v7, v8')
        I(f's_lshl_b32 s{S_T0}, s86, 4'); I(f's_mul_i32 s{S_T0}, s{S_T0}, 3584'); I(f's_lshl_b32 s{S_T1}, s87, 7'); I(f's_add_u32 s{S_T0}, s{S_T0}, s{S_T1}')
        for q in range(4):
            I(f'buffer_load_dword v12, v7, {srd(SRD_W)}, s{S_T0} offen', tag='touch')
            if q<3: I(f's_add_u32 s{S_T0}, s{S_T0}, {512*3584}')
    def q_w3(self):
        I=self.I
        def xpair(p):
            def f():
                L=self.newlabel('xw3')
                I(f's_add_u32 s100, s{S_W}, {3*p}'); I('s_cmp_ge_u32 s100, 8'); I(f's_cbranch_scc1 {L}')
                snap=self.snapshot()
                I('s_lshl_b32 s101, s100, 4'); I(f'v_xor_b32 v238, s101, v{V_L16}')
                I('s_lshr_b32 s101, s100, 1'); I('s_lshl_b32 s101, s101, 4'); I('s_and_b32 s100, s100, 1'); I('s_lshl_b32 s100, s100, 1')
                I('s_add_u32 s100, s100, s101'); I('s_add_u32 s100, s100, 12'); I('s_mul_i32 s100, s100, 896')
                I(f's_lshl_b32 s101, s{S_C}, 6'); I('s_mul_i32 s101, s101, 896'); I('s_add_u32 s101, s101, s100')
                I('s_mov_b32 exec_hi, 0x00ffffff')
                I(f's_add_u32 m0, s100, {LDS_X}'); I('s_nop 0')
                I(f'buffer_load_dwordx4 v238, {srd(SRD_X)}, s101 offen lds', tag='x64')
                I(f's_add_u32 m0, s100, {LDS_X+896}'); I('s_add_u32 s101, s101, 896')
                I(f'buffer_load_dwordx4 v238, {srd(SRD_X)}, s101 offen lds', tag='x64')
                I('s_mov_b32 exec_hi, -1')
                self.label(L); self.merge(snap); self.vm['x64']=0
            return f
        def bblock(p):
            def f():
                L=self.newlabel('bw3'); Li=self.newlabel('bw3i')
                I(f's_add_u32 s100, s{S_W}, {3*p}'); I('s_cmp_ge_u32 s100, 8'); I(f's_cbranch_scc1 {L}')
                snap=self.snapshot()
                I('s_and_b32 s101, s100, 3'); I('s_sub_u32 s91, 0, s101'); I('s_and_b32 s91, s91, 3'); I('s_lshl_b32 s91, s91, 4')
                I(f'v_xor_b32 v238, s91, v{V_L16}')
                I('s_bitcmp1_b32 s100, 2')
                I(f's_cselect_b32 s{SRD_OUT}, s{P_BIM}, s{P_BRE}'); I(f's_cselect_b32 s{SRD_OUT+1}, s{P_BIM+1}, s{P_BRE+1}')
                I('s_cselect_b32 s100, 13312, 0')
                I('s_mul_i32 s91, s101, 3328'); I('s_add_u32 s100, s100, s91'); I(f's_add_u32 s100, s100, {LDS_Y+3*YW}')
                I('s_mul_i32 s101, s101, 3584')
                I(f's_lshl_b32 s91, s{S_G}, 6'); I('s_add_u32 s91, s91, 48'); I('s_mul_i32 s91, s91, 896'); I('s_add_u32 s101, s101, s91')
                I('s_mov_b32 exec_hi, 0x000fffff')
                for r in range(4):
                    I(f's_add_u32 m0, s100, {r*832}')
                    if r: I('s_add_u32 s101, s101, 896')
                    else: I('s_nop 0')
                    I(f'buffer_load_dwordx4 v238, {srd(SRD_OUT)}, s101 offen lds', tag='bdma')
                I('s_mov_b32 exec_hi, -1')
                self.label(L); self.merge(snap); self.vm['bdma']=0
            return f
        return [xpair(p) for p in range(3)], [bblock(p) for p in range(3)]
    def dma_setup(self):
        I=self.I
        for n,h in enumerate((0,3,2,1)): I(f'v_xor_b32 v{224+n}, {h<<4}, v{V_L16}')
        for g in range(8): I(f'v_xor_b32 v{228+g}, {g<<4}, v{V_L16}')
        I(f's_lshl_b32 s{S_T0}, s{S_G}, 6'); I(f's_lshl_b32 s{S_T1}, s{S_W}, 4'); I(f's_add_u32 s88, s{S_T0}, s{S_T1}')
        I('s_mul_i32 s89, s88, 896')
        I(f's_lshl_b32 s{S_T0}, s{S_C}, 6'); I(f's_lshl_b32 s{S_T1}, s{S_W}, 2'); I(f's_add_u32 s{S_T0}, s{S_T0}, s{S_T1}')
        I(f's_mul_i32 s92, s{S_T0}, 896')
        I(f's_mul_i32 s93, s{S_W}, 3584')
        I(f'v_and_b32 v7, 15, v{V_LANE}'); I('v_mul_u32_u24 v236, 896, v7'); I(f'v_lshrrev_b32 v9, 4, v{V_LANE}'); I('v_lshlrev_b32 v9, 4, v9')
        I('v_add_u32 v236, v236, v9')
        I('v_add_u32 v237, s88, v7'); I('v_lshlrev_b32 v237, 1, v237')
    def q_b(self):
        I=self.I
        def row(im,n):
            def f():
                I('s_mov_b32 exec_hi, 0x000fffff')
                I(f's_add_u32 m0, s{S_YB}, {im*13312+n*832}')
                I(f's_add_u32 s91, s89, {n*896}')
                I(f'buffer_load_dwordx4 v{224+(n>>2)}, {srd(SRD_1 if im==0 else SRD_2)}, s91 offen lds', tag='bdma'); self.nb+=1
                I('s_mov_b32 exec_hi, -1')
            return f
        for im in range(2):
            for n in range(16): self.q.append(row(im,n))
        def b13(srdn,dst):
            def f():
                I(f'buffer_load_dwordx4 {vr(dst,4)}, v236, {srd(srdn)}, s89 offen offset:832', tag='b13'); self.nb+=1
            return f
        if self.opt.w1touch=='W':
            self.b13_loads=lambda: (b13(SRD_1,V_BF+52)(), b13(SRD_2,V_BF+56+52)())
        else:
            self.q.append(b13(SRD_1,V_BF+52)); self.q.append(b13(SRD_2,V_BF+56+52))
        def lam():
            I(f'global_load_ushort v{V_IN}, v237, {sp(P_LRE)}', tag='lam')
            I(f'global_load_ushort v{V_IN+1}, v237, {sp(P_LIM)}', tag='lam')
            I(f'global_load_ushort v{V_IN+2}, v237, {sp(P_LDT)}', tag='lam')
        self.q.insert(0,lam)
    def q_x(self, alist):
        I=self.I
        def row(a,b):
            def f():
                g=2*a+(b>>1); d=(16*a+b)*896
                I('s_mov_b32 exec_hi, 0x00ffffff')
                I(f's_add_u32 m0, s93, {LDS_X+d}')
                I(f's_add_u32 s91, s92, {d}')
                I(f'buffer_load_dwordx4 v{228+g}, {srd(SRD_X)}, s91 offen lds', tag='x64'); self.nx+=1
                I('s_mov_b32 exec_hi, -1')
            return f
        for a in alist:
            for b in range(4): self.q.append(row(a,b))
    def b_read(self):
        I=self.I
        I(f'v_and_b32 v7, 15, v{V_LANE}'); I(f'v_lshrrev_b32 v8, 4, v{V_LANE}'); I('v_lshrrev_b32 v9, 2, v7')
        I('v_sub_u32 v9, 0, v9'); I('v_and_b32 v9, 3, v9'); I('v_xor_b32 v8, v8, v9')
        I('v_lshlrev_b32 v8, 4, v8'); I('v_mul_u32_u24 v7, 832, v7'); I('v_add_u32 v7, v7, v8'); I(f'v_add_u32 v7, s{S_YB}, v7')
        if self.opt.w1touch!='W': self.wait(vm=['bdma'])
        for im in range(2):
            for j in range(13):
                I(f'ds_read_b128 {vr(V_BF+56*im+4*j,4)}, v7 offset:{im*13312+j*64}', tag='brd')
    def touch_pf(self, which):
        I=self.I
        if which==1: pitch,nrow,nt,srdn=3584,512,8,SRD_W
        else:
            pitch,nrow,nt,srdn=4096,448,7,SRD_OUT
            self.make_srd(SRD_OUT, P_W2, 1792*4096)
        I(f'v_lshrrev_b32 v7, 2, v{V_LANE}'); I(f'v_and_b32 v8, 3, v{V_LANE}')
        if which==1:
            I(f's_and_b32 s{S_T1}, s95, 1'); I(f's_sub_u32 s{S_T1}, 3, s{S_T1}'); I(f'v_min_u32 v8, s{S_T1}, v8')
        I(f'v_mul_u32_u24 v7, {pitch}, v7'); I('v_lshlrev_b32 v8, 7, v8'); I('v_add_u32 v7, v7, v8')
        I(f's_mul_i32 s{S_T0}, s{S_W}, {nrow}'); I(f's_sub_u32 s{S_T1}, s86, 28'); I(f's_lshl_b32 s{S_T1}, s{S_T1}, 4'); I(f's_add_u32 s{S_T0}, s{S_T0}, s{S_T1}')
        I(f's_mul_i32 s{S_T0}, s{S_T0}, {pitch}')
        if which==1: I(f's_lshl_b32 s{S_T1}, s87, 7')
        else: I(f's_lshl_b32 s{S_T1}, s95, 9')
        I(f's_add_u32 s{S_T0}, s{S_T0}, s{S_T1}')
        for t in range(nt):
            I(f'buffer_load_dword v12, v7, {srd(srdn)}, s{S_T0} offen', tag='touch2')
            if t<nt-1: I(f's_add_u32 s{S_T0}, s{S_T0}, {64*pitch}')
    def ln8(self, oct=2, clears=True):
        I=self.I
        D=list(range(V_T,V_T+8)); SUM,SSQ,S2,Q2=24,25,26,27; R,C=28,30; TM=[32,34,36,38]
        self.wait(vm=['x8'])
        def reduce32():
            for rot in (8,4,2,1):
                I(f'v_add_f32_dpp v{SUM}, v{SUM}, v{SUM} row_ror:{rot} row_mask:0xf bank_mask:0xf')
                I(f'v_add_f32_dpp v{SSQ}, v{SSQ}, v{SSQ} row_ror:{rot} row_mask:0xf bank_mask:0xf')
            I(f'v_mov_b32 v{S2}, v{SUM}'); I(f'v_mov_b32 v{Q2}, v{SSQ}')
            I(f'v_permlane16_swap_b32 v{SUM}, v{S2}'); I(f'v_permlane16_swap_b32 v{SSQ}, v{Q2}')
            I(f'v_add_f32 v{SUM}, v{SUM}, v{S2}'); I(f'v_add_f32 v{SSQ}, v{SSQ}, v{Q2}')
        self.dot_sums(D,[SUM,SSQ,S2,Q2]); reduce32()
        self.ln_stats(SUM,SSQ,R,C,None)
        I(f'v_mov_b32 v10, v{SUM}'); I(f'v_mov_b32 v11, v{R}')
        I(f'v_lshrrev_b32 v8, 5, v{V_LANE}'); I('v_lshlrev_b32 v8, 3, v8')
        I(f's_lshl_b32 s{S_T0}, s75, 3'); I(f's_add_u32 s{S_T0}, s{S_T0}, {WS_STAT}')
        self.exec_set(1,1)
        I(f'buffer_store_dwordx2 v[10:11], v8, {srd(SRD_WS)}, s{S_T0} offen sc1', tag='st0')
        self.exec_full()
        if clears and self.opt.w1touch=='W' and not self.opt.notouch3:
            Lt=self.newlabel('notouch')
            I(f's_cmp_lg_u32 s{S_W}, 3'); I(f's_cbranch_scc1 {Lt}')
            snap=self.snapshot()
            self.touch_w1_wg()
            self.label(Lt); self.merge(snap)
        I(f'v_and_b32 v7, 31, v{V_LANE}'); I('v_cmp_gt_u32 vcc, 28, v7')
        I(f'v_cndmask_b32 v{R}, 0, v{R}, vcc'); I(f'v_cndmask_b32 v{C}, 0, v{C}, vcc')
        self.normalize(D,R,C,TM)
        self.dot_sums(D,[SUM,SSQ,S2,Q2]); reduce32()
        self.ln_stats(SUM,SSQ,R,C,None)
        self.normalize(D,R,C,TM)
        self.auto=0
        I(f'v_lshrrev_b32 v8, 5, v{V_LANE}'); I(f's_lshl_b32 s{S_T0}, s{S_W}, 1'); I(f'v_add_u32 v8, s{S_T0}, v8')
        I('v_mul_u32_u24 v8, 960, v8'); I('v_lshlrev_b32 v9, 5, v7'); I('v_add_u32 v8, v8, v9'); I(f'v_add_u32 v8, {LDS_LN8}, v8')
        self.exec_set('0x0fffffff','0x0fffffff')
        I(f'ds_write_b128 v8, {vr(V_T,4)} offset:0'); I(f'ds_write_b128 v8, {vr(V_T+4,4)} offset:16')
        self.exec_full()
        self.wait(lg='all'); I('s_barrier')
        I(f'v_and_b32 v7, 15, v{V_LANE}'); I('v_lshrrev_b32 v8, 2, v7'); I('v_mul_u32_u24 v8, 960, v8')
        I(f'v_lshrrev_b32 v9, 4, v{V_LANE}'); I('v_lshlrev_b32 v10, 5, v9'); I('v_add_u32 v8, v8, v10')
        I(f'v_and_b32 v10, 3, v{V_LANE}'); I('v_lshlrev_b32 v10, 3, v10'); I('v_add_u32 v8, v8, v10')
        I(f's_lshl_b32 s{S_T0}, s{S_W}, 7'); I(f's_add_u32 s{S_T0}, s{S_T0}, {LDS_LN8}'); I(f'v_add_u32 v8, s{S_T0}, v8')
        I('v_lshlrev_b32 v9, 10, v9'); I('v_lshlrev_b32 v7, 4, v7'); I('v_add_u32 v9, v9, v7')
        I(f's_lshr_b32 s{S_T0}, s{oct}, 2'); I(f's_lshl_b32 s{S_T0}, s{S_T0}, 12')
        I(f's_and_b32 s{S_T1}, s{oct}, 3'); I(f's_lshl_b32 s{S_T1}, s{S_T1}, 8'); I(f's_add_u32 s{S_T0}, s{S_T0}, s{S_T1}')
        I(f's_lshl_b32 s{S_T1}, s{S_W}, 18'); I(f's_add_u32 s{S_T0}, s{S_T0}, s{S_T1}')
        if self.opt.w1touch=='W':
            Lno=self.newlabel('ln8none'); L6=self.newlabel('ln8no6')
            I(f's_cmp_eq_u32 s{S_W}, 3'); I(f's_cbranch_scc1 {Lno}')
            snap=self.snapshot()
            for i in range(2):
                I(f'ds_read_b64_tr_b16 v[{16+4*i}:{17+4*i}], v8 offset:{384*i}', tag='t0')
                I(f'ds_read_b64_tr_b16 v[{18+4*i}:{19+4*i}], v8 offset:{384*i+3840}', tag='t0')
            I(f's_add_u32 s{S_T1}, s{S_T0}, {3*262144}')
            self.wait(lg='all')
            I(f'buffer_store_dwordx4 v[16:19], v9, {srd(SRD_WS)}, s{S_T0} offen sc1', tag='st0')
            I(f'buffer_store_dwordx4 v[20:23], v9, {srd(SRD_WS)}, s{S_T1} offen sc1', tag='st0')
            I(f's_cmp_lg_u32 s{S_W}, 0'); I(f's_cbranch_scc1 {L6}')
            I(f'ds_read_b64_tr_b16 v[24:25], v8 offset:768', tag='t0')
            I(f'ds_read_b64_tr_b16 v[26:27], v8 offset:{768+3840}', tag='t0')
            I(f's_add_u32 s{S_T1}, s{S_T0}, {6*262144}')
            self.wait(lg='all')
            I(f'buffer_store_dwordx4 v[24:27], v9, {srd(SRD_WS)}, s{S_T1} offen sc1', tag='st0')
            self.label(L6)
            self.label(Lno); self.merge(snap); self.vm['st0']=0
        else:
            I(f'ds_read_b64_tr_b16 v[16:17], v8 offset:0', tag='t0')
            I(f'ds_read_b64_tr_b16 v[18:19], v8 offset:3840', tag='t0')
            Lskip=self.newlabel('ln8skip')
            I(f's_cmp_eq_u32 s{S_W}, 3'); I(f's_cbranch_scc1 {Lskip}')
            snap=self.snapshot()
            I(f'ds_read_b64_tr_b16 v[20:21], v8 offset:512', tag='t1')
            I(f'ds_read_b64_tr_b16 v[22:23], v8 offset:{512+3840}', tag='t1')
            I(f's_add_u32 s{S_T1}, s{S_T0}, {4*262144}')
            self.wait(lg='all')
            I(f'buffer_store_dwordx4 v[20:23], v9, {srd(SRD_WS)}, s{S_T1} offen sc1', tag='st0')
            self.label(Lskip); self.merge(snap)
            self.wait(lg='all')
            I(f'buffer_store_dwordx4 v[16:19], v9, {srd(SRD_WS)}, s{S_T0} offen sc1', tag='st0')
        if not clears:
            I('s_barrier'); return
        Ln=self.newlabel('noclr')
        I(f's_cmp_lg_u32 s{S_W}, {1 if self.opt.w1touch=="W" else 3}'); I(f's_cbranch_scc1 {Ln}')
        snap=self.snapshot()
        I('v_mov_b32 v8, 0')
        I('v_mov_b32 v10, -1'); I('v_mov_b32 v11, -1'); I(f'v_lshlrev_b32 v9, 3, v{V_LANE}')
        I(f's_lshl_b32 s{S_T0}, s{S_G}, 5'); I(f's_add_u32 s{S_T0}, s{S_T0}, s{S_C}'); I(f's_lshl_b32 s{S_T0}, s{S_T0}, 9')
        I(f's_add_u32 s{S_T0}, s{S_T0}, {WS_E}')
        I(f'buffer_store_dwordx2 v[10:11], v9, {srd(SRD_WS)}, s{S_T0} offen sc1', tag='st0')
        I(f's_mul_i32 s{S_T0}, s{S_C}, 7'); I(f's_add_u32 s{S_T0}, s{S_T0}, s{S_G}'); I(f's_lshl_b32 s{S_T0}, s{S_T0}, 6')
        I(f's_add_u32 s{S_T0}, s{S_T0}, {WS_FH}')
        I('v_mov_b32 v10, 0')
        self.exec_set(1,0)
        I(f'buffer_store_dword v10, v8, {srd(SRD_WS)}, s{S_T0} offen sc1', tag='st0')
        Lg=self.newlabel('nog1clr'); Lc=self.newlabel('nocclr')
        I(f's_cmp_eq_u32 s{S_HASG1}, 0'); I(f's_cbranch_scc1 {Lg}')
        I(f's_mul_i32 s{S_T0}, s{S_DT1}, 28'); I(f's_add_u32 s{S_T0}, s{S_T0}, s{S_FT}'); I(f's_lshl_b32 s{S_T0}, s{S_T0}, 6')
        I(f's_add_u32 s{S_T0}, s{S_T0}, {WS_FG}')
        I(f'buffer_store_dword v10, v8, {srd(SRD_WS)}, s{S_T0} offen sc1', tag='st0')
        self.label(Lg)
        I('s_cmp_lg_u32 s95, 0'); I(f's_cbranch_scc1 {Lc}')
        I(f's_lshl_b32 s{S_T0}, s86, 6'); I(f's_add_u32 s{S_T0}, s{S_T0}, {WS_FC}')
        I(f'buffer_store_dword v10, v8, {srd(SRD_WS)}, s{S_T0} offen sc1', tag='st0')
        self.label(Lc)
        self.exec_full()
        self.label(Ln); self.merge(snap); self.vm['st0']=0
        I('s_barrier')

    def ln8_extra(self):
        I=self.I
        L=self.newlabel('noextra'); Lp=self.newlabel('extra')
        I(f's_cmp_lg_u32 s{S_HASG1}, 0'); I(f's_cbranch_scc1 {L}')
        snap=self.snapshot()
        I('s_lshr_b32 s3, s95, 1'); I('s_mul_i32 s3, s3, 7'); I('s_add_u32 s3, s3, s86'); I('s_add_u32 s3, s3, 203')
        self.label(Lp)
        self.x8_issue(3)
        I('s_waitcnt vmcnt(0)'); self.vm={}; self.vm['x8']=0
        self.ln8(oct=3, clears=False)
        I('s_add_u32 s3, s3, 28'); I('s_cmp_lt_u32 s3, 256'); I(f's_cbranch_scc1 {Lp}')
        I('s_waitcnt vmcnt(0)')
        self.label(L); self.restore(snap); self.vm['st0']=min(self.vm.get('st0',0),0)

    def arrive0(self):
        I=self.I
        self.wait(vm=['st0']); I('s_barrier')
        L=self.newlabel('arr')
        I(f's_cmp_lg_u32 s{S_W}, 0'); I(f's_cbranch_scc1 {L}')
        snap=self.snapshot()
        I('s_and_b32 s3, s2, 3'); I('s_lshl_b32 s3, s3, 6'); I('v_mov_b32 v8, s3'); I('v_mov_b32 v9, 1')
        self.exec_set(1,0)
        I(f'global_atomic_add v8, v9, {sp(P_DBG)} sc1')
        self.exec_full()
        self.label(L); self.merge(snap)

    def w1_setup(self):
        I=self.I
        self.ring_setup(3584, S_WH)
        I(f's_mul_i32 s{S_WBEG}, s{S_W}, {512*3584}'); I(f's_lshl_b32 s{S_T0}, s{S_FT}, 7'); I(f's_add_u32 s{S_WBEG}, s{S_WBEG}, s{S_T0}')
        I(f's_mov_b32 s{S_WO}, s{S_WBEG}')

    def lam_consts(self):
        I=self.I
        LRE,LIM,LDT=V_IN,V_IN+1,V_IN+2
        t=list(range(16,40))
        self.wait(vm=['lam'])
        for r in (LRE,LIM,LDT): I(f'v_lshlrev_b32 v{r}, 16, v{r}')
        I(f'v_mul_f32 v{LDT}, 0x3fb8aa3b, v{LDT}'); I(f'v_exp_f32 v{LDT}, v{LDT}')
        self.rnd_bf16(LDT)
        I(f'v_mul_f32 v16, v{LDT}, v{LRE}'); I(f'v_mul_f32 v17, v{LDT}, v{LIM}')
        I('v_mul_f32 v16, 0x3fb8aa3b, v16'); I('v_mul_f32 v17, 0.15915494, v17')
        I('v_exp_f32 v16, v16'); I('v_fract_f32 v17, v17')
        I('v_cos_f32 v18, v17'); I('v_sin_f32 v19, v17')
        I(f'v_mul_f32 v{V_LR}, v16, v18'); I(f'v_mul_f32 v{V_LI}, v16, v19')
        I(f'v_add_f32 v16, -1.0, v{V_LR}')
        I(f'v_mul_f32 v17, v{LRE}, v{LRE}'); I(f'v_fma_f32 v17, v{LIM}, v{LIM}, v17'); I('v_rcp_f32 v17, v17')
        I(f'v_mul_f32 v18, v16, v{LRE}'); I(f'v_fma_f32 v18, v{V_LI}, v{LIM}, v18')
        I(f'v_mul_f32 v19, v16, v{LIM}'); I(f'v_fma_f32 v19, v{V_LI}, v{LRE}, -v19')
        I('v_add_f32 v17, v17, v17')
        I(f'v_mul_f32 v{V_K1}, v18, v17'); I(f'v_mul_f32 v{V_K2}, v19, v17'); I(f'v_sub_f32 v{V_K2}, 0, v{V_K2}')
        self.csq(16,17,V_LR,V_LI,30); self.csq(18,19,16,17,30); self.csq(16,17,18,19,30); self.csq(20,21,16,17,30)
        self.csq(22,23,20,21,30)
        self.cmul(24,25,22,23,20,21,30,31)
        self.csq(V_L64R,V_L64I,22,23,30)
        self.csq(16,17,V_L64R,V_L64I,30); self.csq(18,19,16,17,30); self.csq(V_L512R,V_L512I,18,19,30)
        I(f'v_mov_b32 v{V_PR}, 1.0'); I(f'v_mov_b32 v{V_PI}, 0')
        for (lo,hi,r) in (('0xffff0000','-1',20),('0','-1',22),('0','0xffff0000',24)):
            self.exec_set(lo,hi); I(f'v_mov_b32 v{V_PR}, v{r}'); I(f'v_mov_b32 v{V_PI}, v{r+1}')
        self.exec_full()
        I(f'v_mov_b32 v{V_IN}, v20'); I(f'v_mov_b32 v{V_IN+1}, v21')

    def x_addr(self):
        I=self.I
        I(f'v_and_b32 v7, 15, v{V_LANE}'); I('v_lshrrev_b32 v8, 2, v7'); I('v_lshlrev_b32 v8, 4, v8')
        I('v_and_b32 v9, 3, v7'); I('v_add_u32 v8, v8, v9'); I('v_mul_u32_u24 v8, 896, v8')
        I(f'v_lshrrev_b32 v9, 4, v{V_LANE}'); I('v_lshrrev_b32 v7, 1, v7'); I('v_xor_b32 v9, v9, v7'); I('v_lshlrev_b32 v9, 4, v9')
        I('v_add_u32 v14, v8, v9'); I('v_xor_b32 v15, 64, v14')
    def ln64(self):
        I=self.I
        D=list(range(V_X64,V_X64+56)); SUM,SSQ,S2,Q2=24,25,26,27; R,C=28,30; TM=[32,34,36,38]
        I(f's_mul_i32 s{S_T0}, s{S_W}, 3584'); I(f'v_add_u32 v22, s{S_T0}, v14'); I(f'v_add_u32 v23, s{S_T0}, v15')
        self.allow_bread=True
        while self.nx<16: self.tick()
        if self.opt.w1touch!='W': self.wait(vm=['x64'])
        for j in range(14):
            I(f'ds_read_b128 {vr(V_X64+4*j,4)}, v{22+(j&1)} offset:{LDS_X+(j>>1)*128}', tag=('xr',j))
        accs=[SUM,SSQ,S2,Q2]
        for n,d in enumerate(D):
            if n%4==0: self.wait(lg=[('xr',n//4)])
            sa,qa = accs[2*(n&1)], accs[2*(n&1)+1]
            if n<2:
                I(f'v_dot2_f32_bf16 v{sa}, v{d}, s{S_ONES}, 0'); I(f'v_dot2_f32_bf16 v{qa}, v{d}, v{d}, 0')
            else:
                I(f'v_dot2_f32_bf16 v{sa}, v{d}, s{S_ONES}, v{sa}'); I(f'v_dot2_f32_bf16 v{qa}, v{d}, v{d}, v{qa}')
        I(f'v_add_f32 v{SUM}, v{SUM}, v{S2}'); I(f'v_add_f32 v{SSQ}, v{SSQ}, v{Q2}')
        for sw in ('16','32'):
            I(f'v_mov_b32 v{S2}, v{SUM}'); I(f'v_mov_b32 v{Q2}, v{SSQ}')
            I(f'v_permlane{sw}_swap_b32 v{SUM}, v{S2}'); I(f'v_permlane{sw}_swap_b32 v{SSQ}, v{Q2}')
            I(f'v_add_f32 v{SUM}, v{SUM}, v{S2}'); I(f'v_add_f32 v{SSQ}, v{SSQ}, v{Q2}')
        self.stamp('dots',fine=True)
        self.ln_stats(SUM,SSQ,R,C,None)
        self.allow_bread=True
        def h(n):
            I(f'ds_write_b128 v{22+(n&1)}, {vr(V_X64+4*n,4)} offset:{LDS_X+(n>>1)*128}', tag='xw')
        self.normalize(D,R,C,TM,hook=h)

    def bu_gemm(self):
        I=self.I
        BUF=[V_X64, V_X64+16, V_X64+32]
        def rd(j):
            for i in range(4):
                I(f'ds_read_b128 {vr(BUF[j%3]+4*i,4)}, v{14+(j&1)} offset:{LDS_X+i*3584+(j>>1)*128}', tag=('xa',j))
        rd(0); rd(1)
        for j in range(14):
            if j+2<14: rd(j+2)
            self.wait(lg=[('xa',j)])
            for i in range(4):
                for im in range(2):
                    d=V_RAW+16*im+4*i
                    cin = vr(d,4) if j else '0'
                    I(f'v_mfma_f32_16x16x32_bf16 {vr(d,4)}, {vr(BUF[j%3]+4*i,4)}, {vr(V_BF+56*im+4*j,4)}, {cin}')

    def scan1(self):
        I=self.I
        ER,EI,T0,T1=16,17,18,19
        L16R,L16I=V_IN,V_IN+1
        I(f'v_mov_b32 v{ER}, v{V_RAW}'); I(f'v_mov_b32 v{EI}, v{V_RAW+16}')
        for t in range(1,16):
            I(f'v_fma_f32 v{T0}, v{V_LR}, v{ER}, v{V_RAW+t}')
            I(f'v_fma_f32 v{T1}, v{V_LR}, v{EI}, v{V_RAW+16+t}')
            I(f'v_fma_f32 v{T0}, -v{V_LI}, v{EI}, v{T0}')
            I(f'v_fma_f32 v{EI}, v{V_LI}, v{ER}, v{T1}')
            ER,T0=T0,ER
        GR=[20,21,22,23]; GI=[24,25,26,27]
        self.allgather_q(ER,*GR); self.allgather_q(EI,*GI)
        for q in range(1,4):
            self.cfma(GR[q],GI[q],L16R,L16I,GR[q-1],GI[q-1],GR[q],GI[q],28,29)
        I(f'v_mov_b32 v{V_SR}, 0'); I(f'v_mov_b32 v{V_SI}, 0')
        for n,(lo,hi) in enumerate((('0xffff0000','-1'),('0','-1'),('0','0xffff0000'))):
            self.exec_set(lo,hi); I(f'v_mov_b32 v{V_SR}, v{GR[n]}'); I(f'v_mov_b32 v{V_SI}, v{GI[n]}')
        self.exec_full()
        I(f'v_mov_b32 v10, v{GR[3]}'); I(f'v_mov_b32 v11, v{GI[3]}')
        I(f'v_lshlrev_b32 v8, 3, v{V_LANE}')
        I(f's_lshl_b32 s{S_T0}, s{S_G}, 5'); I(f's_add_u32 s{S_T0}, s{S_T0}, s{S_C}'); I(f's_lshl_b32 s{S_T0}, s{S_T0}, 9')
        I(f's_lshl_b32 s{S_T1}, s{S_W}, 7'); I(f's_add_u32 s{S_T0}, s{S_T0}, s{S_T1}'); I(f's_add_u32 s{S_T0}, s{S_T0}, {WS_E}')
        self.exec_set('0xffff',0)
        I(f'buffer_store_dwordx2 v[10:11], v8, {srd(SRD_WS)}, s{S_T0} offen sc1', tag='stE')
        self.exec_full()

    def wait_e0(self):
        I=self.I
        L=self.newlabel('e0'); D=self.newlabel('e0d')
        self.wait(vm=['e0c'])
        I('v_cmp_gt_u32 vcc, 56, v34'); I(f's_cbranch_vccz {D}')
        snap=self.snapshot()
        I(f's_mov_b32 s{S_BOUND}, 0x200000')
        self.label(L)
        I(f'global_load_dword v34, v35, {sp(P_DBG)} sc1'); I('s_waitcnt vmcnt(0)')
        I('v_cmp_gt_u32 vcc, 56, v34'); I(f's_cbranch_vccz {D}')
        I('s_sleep 4'); I(f's_sub_u32 s{S_BOUND}, s{S_BOUND}, 1'); I(f's_cbranch_scc0 {L}')
        self.label(D); self.restore(snap)

    def gemm1(self):
        I=self.I
        SL=[V_RING+16*i for i in range(6)]
        DEP=len(SL)
        I(f's_mul_i32 s22, s{S_DT1}, 262144'); I(f's_lshl_b32 s{S_T0}, s{S_W}, 16'); I(f's_add_u32 s22, s22, s{S_T0}')
        I(f's_lshl_b32 s{S_T0}, s{S_WL}, 11'); I(f's_xor_b32 s{S_T1}, s{S_T0}, 2048')
        I(f's_add_u32 s23, s22, s{S_T1}'); I(f's_add_u32 s22, s22, s{S_T0}')
        I(f's_mov_b32 s{S_A}, s22'); I(f's_mov_b32 s{S_B}, s23')
        def ld(k,y):
            r=SL[k%DEP]
            sx=S_A if y<2 else S_B
            I(f'buffer_load_dwordx4 {vr(r+4*y,4)}, v{V_L16}, {srd(SRD_WS)}, s{sx} offen offset:{(y&1)*1024} sc1', tag=('ht',k,y))
            if (y&1) and k<15: I(f's_add_u32 s{sx}, s{sx}, 4096')
        pro=[(k,y) for k in range(DEP) for y in range(4)]
        while pro:
            ld(*pro.pop(0))
            if self.R['iss']<self.R['n']: self.ring_tick()
        self.ring_finish(); self.wait(lg='all')
        self.stamp('w1 in regs')
        self.w2_setup(); self.R['maxrd']=0
        for k in range(16):
            r=SL[k%DEP]
            for y in range(4):
                self.wait(vm=[('ht',k,y)])
                if y==0: self.stamp(f'g1.{k}',fine=3)
                for x in range(4):
                    d=V_ACC+16*x+4*y
                    cin=vr(d,4) if k else '0'
                    I(f'v_mfma_f32_16x16x32_bf16 {vr(d,4)}, {ar(16*k+4*x,4)}, {vr(r+4*y,4)}, {cin}')
                if k+DEP<16: ld(k+DEP,y)
                else:
                    self.R['maxrd']=k
                    self.tick()
        self.R['maxrd']=99
        self.stamp('g1loop')

    def p2_flag_addr(self):
        I=self.I
        I(f's_mul_i32 s{S_T0}, s{S_W}, 7'); I(f's_lshr_b32 s{S_T1}, s{S_T0}, 2')
        I(f's_mul_i32 s{S_T2}, s{S_C}, 7'); I(f's_add_u32 s{S_T2}, s{S_T2}, s{S_T1}')
        I(f's_add_u32 s{S_T3}, s{S_T0}, 6'); I(f's_lshr_b32 s{S_T3}, s{S_T3}, 2'); I(f's_sub_u32 s{S_T3}, s{S_T3}, s{S_T1}')
        I(f'v_min_u32 v14, s{S_T3}, v{V_LANE}'); I(f'v_add_u32 v14, s{S_T2}, v14'); I('v_lshlrev_b32 v14, 6, v14')
        I(f'v_add_u32 v14, {WS_FH}, v14')
        I(f'v_min_u32 v8, 13, v{V_LANE}'); I('v_lshlrev_b32 v9, 6, v8')
        I(f's_mul_i32 s{S_T1}, s{S_G}, 28'); I(f's_add_u32 s{S_T1}, s{S_T1}, s{S_T0}'); I(f's_lshl_b32 s{S_T1}, s{S_T1}, 6'); I(f's_add_u32 s{S_T1}, s{S_T1}, {WS_FG}')
        I(f's_lshl_b32 s{S_T0}, s{S_T0}, 6'); I(f's_add_u32 s{S_T0}, s{S_T0}, {WS_FC-7*64}')
        I(f'v_mov_b32 v10, s{S_T1}'); I(f'v_mov_b32 v11, s{S_T0}'); I('v_cmp_gt_u32 vcc, 7, v8'); I('v_cndmask_b32 v10, v11, v10, vcc')
        I('v_add_u32 v12, v9, v10')

    def e_addr(self):
        I=self.I
        OF=V_EOF
        I(f's_lshl_b32 s{S_T0}, s{S_G}, 14'); I(f's_add_u32 s{S_T0}, s{S_T0}, {WS_E}')
        I(f's_add_u32 s{SRD_1}, s{P_WS}, s{S_T0}'); I(f's_addc_u32 s{SRD_1+1}, s{P_WS+1}, 0')
        I(f's_and_b32 s{SRD_1+1}, s{SRD_1+1}, 0xffff'); I(f's_mov_b32 s{SRD_1+2}, 16384'); I(f's_mov_b32 s{SRD_1+3}, 0x20000')
        I(f'v_lshrrev_b32 v8, 4, v{V_LANE}'); I('v_lshlrev_b32 v8, 12, v8')
        I(f'v_and_b32 v9, 15, v{V_LANE}'); I('v_lshlrev_b32 v9, 3, v9'); I('v_add_u32 v8, v8, v9')
        I(f's_sub_u32 s{S_T0}, s{S_C}, 32'); I(f's_lshl_b32 s{S_T0}, s{S_T0}, 9'); I(f's_lshl_b32 s{S_T1}, s{S_W}, 7')
        I(f's_add_u32 s{S_T0}, s{S_T0}, s{S_T1}'); I(f'v_add_u32 v8, s{S_T0}, v8')
        for i in range(8): I(f'v_add_u32 v{OF+i}, {512*i}, v8')
    def e_loads(self):
        for i in range(8):
            self.I(f'buffer_load_dwordx2 {vr(V_EL+2*i,2)}, v{V_EOF+i}, {srd(SRD_1)}, 0 offen sc1', tag='E')

    def finalize(self):
        I=self.I
        EL=V_EL
        L=self.newlabel('pollE'); Dn=self.newlabel('pollEd')
        sv=self.auto; self.auto=0
        self.wait(vm=['E'])
        I(f's_mov_b32 s{S_BOUND}, 0x200000')
        self.label(L)
        I(f'v_max3_u32 v8, v{EL}, v{EL+1}, v{EL+2}')
        for i in range(3,15,2): I(f'v_max3_u32 v8, v8, v{EL+i}, v{EL+i+1}')
        I(f'v_max_u32 v8, v8, v{EL+15}')
        I('v_cmp_eq_u32 vcc, -1, v8')
        I(f's_cbranch_vccz {Dn}')
        snap=self.snapshot()
        self.e_loads()
        I('s_waitcnt vmcnt(0)')
        I('s_sleep 4'); I(f's_sub_u32 s{S_BOUND}, s{S_BOUND}, 1'); I(f's_cbranch_scc0 {L}')
        self.label(Dn); self.restore(snap)
        self.auto=sv
        yield
        QR,QI=EL,EL+1
        for i in range(1,8):
            self.cfma(QR,QI,V_L64R,V_L64I,QR,QI,EL+2*i,EL+2*i+1,36,37)
            yield
        GR=[20,21,22,23]; GI=[24,25,26,27]
        self.allgather_q(QR,*GR); yield
        self.allgather_q(QI,*GI); yield
        for q in range(1,4):
            self.cfma(GR[q],GI[q],V_L512R,V_L512I,GR[q-1],GI[q-1],GR[q],GI[q],28,29)
            yield
        self.cfma(V_SR,V_SI,V_PR,V_PI,GR[3],GI[3],V_SR,V_SI,28,29)
        yield
        HR,HI,T0,T1=V_SR,V_SI,36,37
        OR,OI=V_RAW,V_RAW+16
        for t in range(16):
            I(f'v_fma_f32 v{T0}, v{V_LR}, v{HR}, v{OR+t}')
            I(f'v_fma_f32 v{T1}, v{V_LR}, v{HI}, v{OI+t}')
            I(f'v_fma_f32 v{T0}, -v{V_LI}, v{HI}, v{T0}')
            I(f'v_fma_f32 v{HI}, v{V_LI}, v{HR}, v{T1}')
            HR,T0=T0,HR
            yield
            I(f'v_mul_f32 v{OR+t}, v{V_K1}, v{HR}'); I(f'v_mul_f32 v{OI+t}, v{V_K2}, v{HR}')
            I(f'v_fma_f32 v{OR+t}, v{V_K2}, v{HI}, v{OR+t}'); I(f'v_fma_f32 v{OI+t}, -v{V_K1}, v{HI}, v{OI+t}')
            yield
        for t in range(8):
            I(f'v_cvt_pk_bf16_f32 v{OR+t}, v{OR+2*t}, v{OR+2*t+1}'); I(f'v_cvt_pk_bf16_f32 v{OI+t}, v{OI+2*t}, v{OI+2*t+1}')
            if t%2: yield
        I(f'v_and_b32 v8, 15, v{V_LANE}'); I(f's_lshl_b32 s{S_T0}, s{S_WL}, 4'); I(f'v_add_u32 v8, s{S_T0}, v8')
        I('v_lshrrev_b32 v9, 3, v8'); I('v_lshlrev_b32 v9, 2, v9')
        yield
        I('v_and_b32 v10, 3, v8'); I('v_add_u32 v9, v9, v10')
        I('v_bfe_u32 v10, v8, 2, 1'); I('v_lshlrev_b32 v11, 4, v10'); I('v_add_u32 v9, v9, v11')
        yield
        I('v_and_b32 v11, 7, v9'); I('v_lshlrev_b32 v10, 2, v10'); I('v_xor_b32 v11, v11, v10')
        I(f'v_lshrrev_b32 v10, 4, v{V_LANE}'); I('v_lshlrev_b32 v10, 1, v10')
        yield
        I('v_xor_b32 v10, v10, v11'); I('v_lshlrev_b32 v10, 4, v10')
        I('v_lshlrev_b32 v9, 7, v9'); I('v_add_u32 v9, v9, v10')
        yield
        I(f's_lshl_b32 s{S_T0}, s{S_WH}, 12'); I(f'v_add_u32 v9, s{S_T0}, v9')
        I('v_xor_b32 v10, 16, v9')
        I('s_barrier')
        I(f'ds_write_b128 v9, {vr(OR,4)} offset:{LDS_X}', tag='hw'); I(f'ds_write_b128 v10, {vr(OR+4,4)} offset:{LDS_X}', tag='hw')
        I(f'ds_write_b128 v9, {vr(OI,4)} offset:{LDS_X+8192}', tag='hw'); I(f'ds_write_b128 v10, {vr(OI+4,4)} offset:{LDS_X+8192}', tag='hw')
        yield
        I(f'v_lshrrev_b32 v8, 2, v{V_LANE}'); I('v_and_b32 v9, 7, v8'); I(f'v_bfe_u32 v10, v{V_LANE}, 1, 1')
        I('v_xor_b32 v9, v9, v10'); I('v_lshlrev_b32 v9, 4, v9')
        yield
        I('v_lshlrev_b32 v8, 7, v8'); I('v_add_u32 v8, v8, v9')
        I(f'v_and_b32 v9, 1, v{V_LANE}'); I('v_lshlrev_b32 v9, 3, v9'); I('v_add_u32 v8, v8, v9')
        I(f's_lshl_b32 s{S_T0}, s{S_W}, 12'); I(f'v_add_u32 v8, s{S_T0}, v8')
        yield
        self.wait(lg=['hw']); I('s_barrier')
        FR=16
        for nb in range(4):
            I(f'v_xor_b32 v9, {nb<<5}, v8'); I('v_xor_b32 v10, 64, v9')
            I(f'ds_read_b64_tr_b16 {vr(FR+4*nb,2)}, v9 offset:{LDS_X}', tag=('hp',nb))
            I(f'ds_read_b64_tr_b16 {vr(FR+4*nb+2,2)}, v10 offset:{LDS_X+2048}', tag=('hp',nb))
        I(f's_mul_i32 s{S_T0}, s{S_C}, {28*4096}'); I(f's_lshl_b32 s{S_T1}, s{S_G}, 14'); I(f's_add_u32 s{S_T0}, s{S_T0}, s{S_T1}')
        I(f's_lshl_b32 s{S_T1}, s{S_W}, 12'); I(f's_add_u32 s{S_T0}, s{S_T0}, s{S_T1}'); I(f's_add_u32 s94, s{S_T0}, {WS_HP}')
        yield
        for nb in range(4):
            self.wait(lg=[('hp',nb)])
            I(f'buffer_store_dwordx4 {vr(FR+4*nb,4)}, v{V_L16}, {srd(SRD_WS)}, s94 offen offset:{nb*1024} sc1', tag='stH')
            yield

    def flag_set(self, sa, mul, sb, base):
        I=self.I
        L=self.newlabel('flag')
        I(f's_cmp_lg_u32 s{S_W}, 0'); I(f's_cbranch_scc1 {L}')
        snap=self.snapshot()
        I(f's_mul_i32 s{S_T0}, s{sa}, {mul}'); I(f's_add_u32 s{S_T0}, s{S_T0}, s{sb}'); I(f's_lshl_b32 s{S_T0}, s{S_T0}, 6')
        I(f's_add_u32 s{S_T0}, s{S_T0}, {base}')
        I('v_mov_b32 v8, 0'); I('v_mov_b32 v9, 1')
        self.exec_set(1,0)
        I(f'buffer_store_dword v9, v8, {srd(SRD_WS)}, s{S_T0} offen sc1')
        self.exec_full()
        self.label(L); self.merge(snap)

    def g_bias_load(self):
        I=self.I
        I(f'v_lshrrev_b32 v8, 4, v{V_LANE}'); I('v_lshlrev_b32 v8, 3, v8')
        I(f's_lshl_b32 s{S_T0}, s{S_FT}, 7'); I(f's_lshl_b32 s{S_T1}, s{S_WH}, 6'); I(f's_add_u32 s{S_T0}, s{S_T0}, s{S_T1}')
        I(f'v_add_u32 v8, s{S_T0}, v8')
        I(f'global_load_dwordx2 v[32:33], v8, {sp(P_B1)}', tag='b1')
        I(f'global_load_dwordx2 v[34:35], v8, {sp(P_B1)} offset:32', tag='b1')

    def g_epilogue(self):
        I=self.I
        self.auto=self.opt.gepip
        self.reduce(V_RING)
        self.wait(vm=['b1'])
        for x in range(2):
            for h in range(2):
                I(f'v_lshlrev_b32 v{16+4*x+2*h}, 16, v{32+2*x+h}'); I(f'v_and_b32 v{17+4*x+2*h}, s{S_MASK}, v{32+2*x+h}')
        C1=-2.0*0.7978845608028654*1.4426950408889634
        C3=C1*0.044715
        import struct
        f2h=lambda f:'0x%08x'%struct.unpack('<I',struct.pack('<f',f))[0]
        I(f's_mov_b32 s{S_T2}, {f2h(C1)}'); I(f's_mov_b32 s{S_T3}, {f2h(C3)}')
        I(f'v_mov_b32 v31, s{S_T2}')
        U=[]
        for x in range(2):
            for y in range(2):
                for r in range(4):
                    U.append((V_ACC+16*x+4*y+r, 16+4*x+r))
        TT=V_RING
        for n,(u,b) in enumerate(U): I(f'v_add_f32 v{u}, v{u}, v{b}')
        for n,(u,b) in enumerate(U): I(f'v_mul_f32 v{TT+n}, v{u}, v{u}')
        for n,(u,b) in enumerate(U): I(f'v_fma_f32 v{TT+n}, v{TT+n}, s{S_T3}, v31')
        for n,(u,b) in enumerate(U): I(f'v_mul_f32 v{TT+n}, v{TT+n}, v{u}')
        for n,(u,b) in enumerate(U): I(f'v_exp_f32 v{TT+n}, v{TT+n}')
        for n,(u,b) in enumerate(U): I(f'v_add_f32 v{TT+n}, 1.0, v{TT+n}')
        for n,(u,b) in enumerate(U): I(f'v_rcp_f32 v{TT+n}, v{TT+n}')
        for n,(u,b) in enumerate(U): I(f'v_mul_f32 v{u}, v{u}, v{TT+n}')
        F=V_RING+16
        for y in range(2):
            for x in range(2):
                a=V_ACC+16*x+4*y
                I(f'v_cvt_pk_bf16_f32 v{F+4*y+2*x}, v{a}, v{a+1}'); I(f'v_cvt_pk_bf16_f32 v{F+4*y+2*x+1}, v{a+2}, v{a+3}')
        I(f's_mul_i32 s{S_T0}, s{S_DT1}, {56*4096}'); I(f's_lshl_b32 s{S_T1}, s{S_FT}, 13'); I(f's_add_u32 s{S_T0}, s{S_T0}, s{S_T1}')
        I(f's_lshl_b32 s{S_T1}, s{S_WH}, 12'); I(f's_add_u32 s{S_T0}, s{S_T0}, s{S_T1}')
        I(f's_lshl_b32 s{S_T1}, s{S_WL}, 11'); I(f's_add_u32 s{S_T0}, s{S_T0}, s{S_T1}'); I(f's_add_u32 s{S_T0}, s{S_T0}, {WS_GT}')
        for y in range(2):
            I(f'buffer_store_dwordx4 {vr(F+4*y,4)}, v{V_L16}, {srd(SRD_WS)}, s{S_T0} offen offset:{y*1024} sc1', tag='stG')
        self.auto=0
        self.e_loads()
        self.p2_flag_addr(); self.p2_bases()
        I(f'global_load_dword v54, v12, {sp(P_WS)} sc1', tag='fc')
        for n in range(self.opt.gwait): self.tick()
        self.wait(vm=['stG']); I('s_barrier')
        self.flag_set(S_DT1,28,S_FT,WS_FG)

    def w2_setup(self):
        I=self.I
        self.make_srd(SRD_W, P_W2, 1792*4096)
        self.ring_setup(4096, S_WL)
        I(f's_mul_i32 s{S_WBEG}, s{S_W}, {448*4096}'); I(f's_lshl_b32 s{S_T0}, s{S_C}, 7'); I(f's_add_u32 s{S_WBEG}, s{S_WBEG}, s{S_T0}')
        I(f's_mov_b32 s{S_WO}, s{S_WBEG}')
        self.ring_init('w2',14,4096,range(6))

    def rot_g(self, dst):
        I=self.I
        I(f's_mul_i32 s{dst}, s86, 37'); I(f's_lshr_b32 s{dst}, s{dst}, 8')
        I(f's_mul_i32 s{dst}, s{dst}, {7*self.opt.rot2}'); I(f's_lshr_b32 s{dst}, s{dst}, 1')
    def cpack(self):
        I=self.I
        L=self.newlabel('nocp')
        I(f's_cmp_ge_u32 s{S_E}, 28'); I(f's_cbranch_scc1 {L}')
        I(f's_mov_b32 s{SRD_1+2}, {448*896}'); I(f's_mov_b32 s{SRD_1+3}, 0x20000')
        I(f's_bitcmp1_b32 s{S_E}, 1')
        I(f's_cselect_b32 s{SRD_1}, s{P_CIM}, s{P_CRE}'); I(f's_cselect_b32 s{SRD_1+1}, s{P_CIM+1}, s{P_CRE+1}')
        I(f'v_and_b32 v9, 15, v{V_LANE}'); I('v_mul_u32_u24 v9, 896, v9'); I(f'v_lshrrev_b32 v10, 4, v{V_LANE}')
        I('v_lshlrev_b32 v10, 4, v10'); I('v_add_u32 v10, v9, v10')
        I(f's_lshr_b32 s{S_T0}, s{S_E}, 2'); I(f's_lshl_b32 s{S_T0}, s{S_T0}, 7')
        I(f's_and_b32 s{S_T1}, s{S_E}, 1'); I(f's_lshl_b32 s{S_T1}, s{S_T1}, 6'); I(f's_add_u32 s{S_T0}, s{S_T0}, s{S_T1}')
        I(f's_mul_i32 s{S_T1}, s{S_W}, {16*896}'); I(f's_add_u32 s{S_T0}, s{S_T0}, s{S_T1}')
        for dt in range(7):
            I(f'buffer_load_dwordx4 {vr(56+4*dt,4)}, v10, {srd(SRD_1)}, s{S_T0} offen', tag=('cp',dt))
            if dt<6: I(f's_add_u32 s{S_T0}, s{S_T0}, {64*896}')
        I(f's_lshl_b32 s{S_T0}, s{S_E}, 12'); I(f's_lshl_b32 s{S_T1}, s{S_W}, 10'); I(f's_add_u32 s{S_T0}, s{S_T0}, s{S_T1}')
        I(f's_add_u32 s{S_T0}, s{S_T0}, {WS_CP}')
        for dt in range(7):
            self.wait(vm=[('cp',dt)])
            I(f'buffer_store_dwordx4 {vr(56+4*dt,4)}, v{V_L16}, {srd(SRD_WS)}, s{S_T0} offen sc1', tag='stC')
            if dt<6: I(f's_add_u32 s{S_T0}, s{S_T0}, {28*4096}')
        self.label(L)
    def cpack_flag(self):
        I=self.I
        L=self.newlabel('nocf')
        Lp=self.newlabel('w0poll')
        self.wait(vm='all')
        I(f's_cmp_lg_u32 s{S_W}, 0'); I(f's_cbranch_scc1 {Lp}')
        I(f'v_and_b32 v8, 3, v{V_LANE}'); I('v_lshlrev_b32 v8, 6, v8')
        self.poll('e0e', 8, P_DBG, 56)
        self.label(Lp)
        I('s_barrier')
        I(f's_cmp_ge_u32 s{S_E}, 28'); I(f's_cbranch_scc1 {L}')
        I(f's_mov_b32 s{S_T1}, 0')
        self.flag_set(S_T1,1,S_E,WS_FC)
        self.label(L)

    def p2_resid_loads(self):
        I=self.I
        self.make_srd(SRD_OUT, P_OUT, 2048*1792)
        I(f'v_and_b32 v7, 15, v{V_LANE}'); I(f'v_lshrrev_b32 v8, 4, v{V_LANE}')
        I('v_mul_u32_u24 v9, 896, v7'); I('v_lshlrev_b32 v10, 3, v8'); I('v_add_u32 v9, v9, v10')
        I(f's_lshl_b32 s{S_T0}, s{S_C}, 6'); I(f's_lshl_b32 s{S_T1}, s{S_WL}, 5'); I(f's_add_u32 s{S_T0}, s{S_T0}, s{S_T1}')
        I(f's_lshl_b32 s{S_T1}, s{S_G}, 6'); I(f's_lshl_b32 s{S_T2}, s{S_WH}, 5'); I(f's_add_u32 s{S_T1}, s{S_T1}, s{S_T2}')
        for y in range(2):
            for x in range(2):
                I(f's_add_u32 s{S_T2}, s{S_T0}, {16*y}'); I(f's_mul_i32 s{S_T2}, s{S_T2}, 896')
                I(f's_add_u32 s{S_T3}, s{S_T1}, {16*x}'); I(f's_lshl_b32 s{S_T3}, s{S_T3}, 1'); I(f's_add_u32 s{S_T2}, s{S_T2}, s{S_T3}')
                I(f'buffer_load_dwordx2 {vr(16+4*y+2*x,2)}, v9, {srd(SRD_X)}, s{S_T2} offen', tag='res')
        I('v_lshlrev_b32 v9, 3, v7')
        for y in range(2):
            I(f's_add_u32 s{S_T2}, s{S_T0}, {16*y}'); I(f's_lshl_b32 s{S_T2}, s{S_T2}, 3'); I(f's_add_u32 s{S_T2}, s{S_T2}, {WS_STAT}')
            I(f'buffer_load_dwordx2 {vr(24+2*y,2)}, v9, {srd(SRD_WS)}, s{S_T2} offen sc1', tag='res')
        I(f's_lshl_b32 s{S_T2}, s{S_T1}, 1'); I(f'v_add_u32 v9, s{S_T2}, v10')
        I(f'global_load_dwordx2 v[28:29], v9, {sp(P_DSK)}', tag='res')
        I(f'global_load_dwordx2 v[30:31], v9, {sp(P_DSK)} offset:32', tag='res')
        I(f'v_add_u32 v9, s{S_T0}, v7'); I('v_lshlrev_b32 v9, 1, v9')
        I(f'global_load_ushort v10, v9, {sp(P_B2)}', tag='res')
        I(f'global_load_ushort v38, v9, {sp(P_B2)} offset:32', tag='res')
    def resid_compute(self):
        I=self.I
        self.wait(vm=['res'])
        I('v_lshlrev_b32 v10, 16, v10'); I('v_lshlrev_b32 v38, 16, v38')
        yield
        for x in range(2):
            for h in range(2):
                I(f'v_lshlrev_b32 v{32+2*h}, 16, v{28+2*x+h}'); I(f'v_and_b32 v{33+2*h}, s{S_MASK}, v{28+2*x+h}')
            yield
            for y in range(2):
                xs=16+4*y+2*x; st=24+2*y; b2=10 if y==0 else 38
                for h in range(2):
                    r=240+8*y+4*x+2*h
                    I(f'v_lshlrev_b32 v{r}, 16, v{xs+h}'); I(f'v_and_b32 v{r+1}, s{S_MASK}, v{xs+h}')
                    I(f'v_pk_add_f32 v[36:37], v[{r}:{r+1}], v[{st}:{st+1}] op_sel_hi:[1,0] neg_lo:[0,1] neg_hi:[0,1]')
                    yield
                    I(f'v_pk_mul_f32 v[36:37], v[36:37], v[{st}:{st+1}] op_sel:[0,1] op_sel_hi:[1,1]')
                    I(f'v_pk_add_f32 v[{r}:{r+1}], v[{r}:{r+1}], v[{b2}:{b2+1}] op_sel_hi:[1,0]')
                    I(f'v_pk_fma_f32 v[{r}:{r+1}], v[36:37], v[{32+2*h}:{33+2*h}], v[{r}:{r+1}]')
                    yield

    CREG=[['v16','v20','v24','v28'],['v32','v36','v40','v44'],['v48','v52','v216','v220'],['v224','v228','v232','v236'],
          ['a0','a4','a8','a12'],['a224','a228','a232','a236'],['a240','a244','a248','a252']]
    def creg(self,i,x):
        r=self.CREG[i][x]; n=int(r[1:]); return f'{r[0]}[{n}:{n+3}]'
    def p2_bases(self):
        I=self.I
        I(f's_mul_i32 s90, s{S_G}, {56*4096}'); I(f's_mul_i32 s{S_T0}, s{S_W}, {14*4096}'); I(f's_add_u32 s90, s90, s{S_T0}')
        I(f's_add_u32 s90, s90, {WS_GT}')
        I(f's_lshl_b32 s{S_T1}, s{S_WH}, 11'); I(f's_xor_b32 s{S_T2}, s{S_T1}, 2048')
        I(f's_add_u32 s92, s90, s{S_T2}'); I(f's_add_u32 s90, s90, s{S_T1}')
        I(f's_mul_i32 s22, s{S_G}, {28*4096}'); I(f's_mul_i32 s{S_T0}, s{S_W}, {7*4096}'); I(f's_add_u32 s22, s22, s{S_T0}')
        I(f's_add_u32 s22, s22, {WS_CP}')
        I(f's_add_u32 s23, s22, s{S_T2}'); I(f's_add_u32 s22, s22, s{S_T1}')
        I(f's_mul_i32 s38, s{S_C}, {28*4096}'); I(f's_add_u32 s38, s38, s{S_T0}'); I(f's_add_u32 s38, s38, {WS_HP}')
        I(f's_lshl_b32 s{S_T1}, s{S_WL}, 11'); I(f's_xor_b32 s{S_T2}, s{S_T1}, 2048')
        I(f's_add_u32 s39, s38, s{S_T2}'); I(f's_add_u32 s38, s38, s{S_T1}')
    def q_c(self, steps):
        I=self.I
        def one(i,x):
            def f():
                b=22 if x<2 else 23
                I(f's_add_u32 s91, s{b}, {i*4096}')
                I(f'buffer_load_dwordx4 {self.creg(i,x)}, v{V_L16}, {srd(SRD_WS)}, s91 offen offset:{(x&1)*1024} sc1', tag=('c',i,x))
            return f
        for i in steps:
            for x in range(4): self.q.append(one(i,x))
    def cflag_check(self):
        I=self.I
        L=self.newlabel('cf'); D=self.newlabel('cfd')
        self.wait(vm=['fc'])
        self.exec_set('0x3f80','0')
        I('v_cmp_gt_u32 vcc, 1, v54'); I(f's_cbranch_vccz {D}')
        snap=self.snapshot()
        I(f's_mov_b32 s{S_BOUND}, 0x200000')
        self.label(L)
        I(f'global_load_dword v54, v12, {sp(P_WS)} sc1'); I('s_waitcnt vmcnt(0)')
        I('v_cmp_gt_u32 vcc, 1, v54'); I(f's_cbranch_vccz {D}')
        I('s_sleep 4'); I(f's_sub_u32 s{S_BOUND}, s{S_BOUND}, 1'); I(f's_cbranch_scc0 {L}')
        self.label(D); self.restore(snap)
        self.exec_full()
    def flag_wait(self, vaddr, vdst, tag):
        I=self.I
        L=self.newlabel('fw'); D=self.newlabel('fwd')
        self.wait(vm=[tag])
        I(f'v_cmp_gt_u32 vcc, 1, v{vdst}'); I(f's_cbranch_vccz {D}')
        snap=self.snapshot()
        I(f's_mov_b32 s{S_BOUND}, 0x200000')
        self.label(L)
        I(f'global_load_dword v{vdst}, v{vaddr}, {sp(P_WS)} sc1'); I('s_waitcnt vmcnt(0)')
        I(f'v_cmp_gt_u32 vcc, 1, v{vdst}'); I(f's_cbranch_vccz {D}')
        I('s_sleep 4'); I(f's_sub_u32 s{S_BOUND}, s{S_BOUND}, 1'); I(f's_cbranch_scc0 {L}')
        self.label(D); self.restore(snap)
    def p2_main(self):
        I=self.I
        NS=6
        g0=self.opt.sfirst
        steps=[('g',k) for k in range(g0)]
        gi,si=g0,0
        while gi<14 or si<7:
            if si<7: steps.append(('s',si)); si+=1
            if gi<14: steps.append(('g',gi)); gi+=1
        groups=[('g',i) if k=='g' else ('h',i) for k,i in steps]
        gidx={g:n for n,g in enumerate(groups)}
        reg=lambda g: V_RING+16*(gidx[g]%NS)
        pend=[(g,x) for g in groups for x in range(4)]
        done=set(); state={}
        def can(g,x):
            n=gidx[g]-NS
            return n<0 or (groups[n],x) in done
        def issue(nmax):
            n=0
            while n<nmax and pend and can(*pend[0]):
                g,x=pend[0]
                if g[0]=='h' and not state.get('hflag'):
                    self.flag_wait(14,11,'fh'); state['hflag']=True
                pend.pop(0)
                b0,b1,nst={'g':(90,92,14),'h':(38,39,7)}[g[0]]
                sx=b0 if x<2 else b1
                I(f'buffer_load_dwordx4 {vr(reg(g)+4*x,4)}, v{V_L16}, {srd(SRD_WS)}, s{sx} offen offset:{(x&1)*1024} sc1', tag=(g,x))
                if (x&1) and g[1]<nst-1: I(f's_add_u32 s{sx}, s{sx}, 4096')
                n+=1
        issue(4*NS)
        first=True
        self.q_c([4])
        for pos,(kind,i) in enumerate(steps):
            if kind=='g' and i==3: I(f'global_load_dword v11, v14, {sp(P_WS)} sc1', tag='fh')
            if kind=='s':
                H=('h',i)
                for x in range(4):
                    self.wait(vm=[('c',i,x)]+([(H,y) for y in range(4)] if x==0 else []))
                    if x==0: self.stamp(f'p2.s{i}',fine=2)
                    for y in range(4):
                        d=V_ACC+16*x+4*y
                        I(f'v_mfma_f32_16x16x32_bf16 {vr(d,4)}, {self.creg(i,x)}, {vr(reg(H)+4*y,4)}, {vr(d,4)}')
                    if x<3: issue(1)
                for y in range(4): done.add((H,y))
                issue(2)
            else:
                A=('g',i)
                for x in range(4):
                    self.wait(vm=[(A,x)])
                    if x==0: self.stamp(f'p2.g{i}',fine=2)
                    for y in range(4):
                        d=V_ACC+16*x+4*y
                        cin='0' if first else vr(d,4)
                        I(f'v_mfma_f32_16x16x32_bf16 {vr(d,4)}, {vr(reg(A)+4*x,4)}, {ar(16*i+4*y,4)}, {cin}')
                    done.add((A,x))
                    issue(1)
                    if i==1: self.q.pop(0)()
            first=False
        assert not pend

    def p2_epilogue(self):
        I=self.I
        self.reduce(V_RING)
        for y in range(2):
            for x in range(2):
                a=V_ACC+16*x+4*y; r=240+8*y+4*x
                for h in range(2):
                    I(f'v_pk_add_f32 v[{a+2*h}:{a+2*h+1}], v[{a+2*h}:{a+2*h+1}], v[{r+2*h}:{r+2*h+1}]')
        I(f'v_and_b32 v7, 15, v{V_LANE}'); I(f'v_lshrrev_b32 v8, 4, v{V_LANE}')
        I('v_mul_u32_u24 v9, 1792, v7'); I('v_lshlrev_b32 v10, 4, v8'); I('v_add_u32 v9, v9, v10')
        I(f's_lshl_b32 s{S_T0}, s{S_C}, 6'); I(f's_lshl_b32 s{S_T1}, s{S_WL}, 5'); I(f's_add_u32 s{S_T0}, s{S_T0}, s{S_T1}')
        I(f's_lshl_b32 s{S_T1}, s{S_G}, 6'); I(f's_lshl_b32 s{S_T2}, s{S_WH}, 5'); I(f's_add_u32 s{S_T1}, s{S_T1}, s{S_T2}')
        for y in range(2):
            for x in range(2):
                I(f's_add_u32 s{S_T2}, s{S_T0}, {16*y}'); I(f's_mul_i32 s{S_T2}, s{S_T2}, 1792')
                I(f's_add_u32 s{S_T3}, s{S_T1}, {16*x}'); I(f's_lshl_b32 s{S_T3}, s{S_T3}, 2'); I(f's_add_u32 s{S_T2}, s{S_T2}, s{S_T3}')
                a=V_ACC+16*x+4*y
                I(f'buffer_store_dwordx4 {vr(a,4)}, v9, {srd(SRD_OUT)}, s{S_T2} offen')

    def write_stamps(self):
        if not self.opt.stamps: return
        I=self.I
        I('s_lshl_b32 s3, s2, 2'); I(f's_add_u32 s3, s3, s{S_W}'); I('s_lshl_b32 s3, s3, 8'); I(f's_add_u32 s3, s3, {WS_DBG}')
        I(f'v_lshlrev_b32 v9, 2, v{V_LANE}')
        I(f'buffer_store_dword v{self.vst}, v9, {srd(SRD_WS)}, s3 offen')
    def build(self):
        I=self.I; o=self.opt
        if o.stamps: I('v_mov_b32 v55, 0')
        self.prologue()
        self.touches_pre()
        wt=self.opt.w1touch
        if wt=='A' or self.opt.alsoA: self.touch_w1()
        if self.opt.t3start:
            Lt=self.newlabel('t3s')
            I(f's_cmp_lg_u32 s{S_W}, 3'); I(f's_cbranch_scc1 {Lt}')
            snap=self.snapshot()
            self.touch_w1_wg()
            self.label(Lt); self.merge(snap)
        Lcont=self.newlabel('cont')
        I('s_cmp_eq_u32 s74, 1'); I(f's_cbranch_scc1 {Lcont}')
        snap=self.snapshot()
        if wt=='P': self.touch_pf(1)
        self.stamp('pf1')
        self.cpack()
        self.stamp('cp')
        if not self.opt.now2: self.touch_pf(2)
        self.cpack_flag()
        self.stamp('pf2')
        self.write_stamps()
        I('s_endpgm')
        self.label(Lcont); self.restore(snap)
        self.dma_setup()
        if wt=='E': self.touch_w1(setup_only=True)
        self.w1_setup()
        if self.opt.bfirst: self.q_b(); self.q_x([0,1,2])
        else: self.q_x([0,1,2]); self.q_b()
        for n in range(self.opt.pre): self.tick()
        self.stamp('issued')
        self.auto=self.opt.period if self.opt.ln8tick else 0
        self.ln8()
        self.auto=0
        self.ln8_extra()
        self.stamp('ln8 stored')
        if wt=='W':
            I(f's_mov_b32 s{SRD_OUT+2}, {448*896}'); I(f's_mov_b32 s{SRD_OUT+3}, 0x20000')
            L3=self.newlabel('w3'); Lj3=self.newlabel('w3j')
            I(f's_cmp_eq_u32 s{S_W}, {7 if self.opt.own3 else 3}'); I(f's_cbranch_scc1 {L3}')
            snap=self.snapshot(); qsave=list(self.q); nb0=self.nb
            xs,bs=self.q_w3()
            own=self.q; self.q=[]; self.q_x([3]); xa3=self.q
            self.q=xa3+xs+own+bs if not self.opt.own3 else xa3+own
            for n in range(self.opt.arrlead): self.tick()
            self.arrive0()
            self.auto=self.opt.period
            self.x_addr(); self.lam_consts()
            self.auto=0
            self.drain_q()
            self.wait(vm=['x64','bdma'])
            I(f's_branch {Lj3}')
            snapA=self.snapshot()
            self.label(L3); self.restore(snap)
            self.arrive0()
            self.x_addr(); self.lam_consts()
            self.label(Lj3); self.merge(snapA)
            self.stamp('lam')
            I('s_barrier')
            self.stamp('arrived')
            self.b13_loads()
            self.do_bread()
            self.stamp('bread',fine=True)
            self.auto=self.opt.ln64p
            self.ln64()
            self.auto=0
        else:
            if self.opt.bfirst: self.q_x([3])
            else:
                rest=self.q; self.q=[]; self.q_x([3]); self.q+=rest
            if wt=='E':
                def tw():
                    I(f'buffer_load_dword v12, v238, {srd(SRD_W)}, s94 offen', tag='touch')
                self.q.append(tw)
            self.auto=self.opt.period
            self.x_addr()
            self.lam_consts()
            self.auto=0
            self.stamp('lam')
            self.arrive0()
            self.stamp('arrived')
            if wt=='F':
                self.drain_q()
                self.touch_w1()
                self.stamp('drained')
                self.do_bread()
                self.auto=self.opt.ln64p
                self.ln64()
                self.auto=0
            else:
                self.auto=self.opt.period
                self.ln64()
                self.auto=0
                self.drain_q()
                if not self.bread: self.do_bread()
        self.wait(lg='all', vm=['b13']); I('s_barrier')
        self.stamp('ln64')
        I(f'v_and_b32 v35, 3, v{V_LANE}'); I('v_lshlrev_b32 v35, 6, v35')
        I(f'global_load_dword v34, v35, {sp(P_DBG)} sc1', tag='e0c')
        self.auto=self.opt.period
        self.bu_gemm()
        self.stamp('bu',fine=True)
        self.scan1()
        self.e_addr()
        self.auto=0
        self.stamp('scan1')
        self.wait_e0()
        self.stamp('e0')
        Lnog=self.newlabel('nog1'); Lj=self.newlabel('g1join')
        I(f's_cmp_eq_u32 s{S_HASG1}, 0'); I(f's_cbranch_scc1 {Lnog}')
        snap=self.snapshot()
        R1=dict(self.R); R1['free']=list(self.R['free']); R1['slot']=dict(self.R['slot'])
        self.g_bias_load()
        self.gemm1()
        self.stamp('gemm1')
        self.g_epilogue()
        self.stamp('gepi')
        I(f's_branch {Lj}')
        snapA=self.snapshot()
        RA={k:self.R[k] for k in ('iss','rd','rel','piece')}; RA['free']=list(self.R['free']); RA['slot']=dict(self.R['slot'])
        self.label(Lnog); self.restore(snap); self.R=R1
        self.ring_finish(); self.wait(lg='all')
        self.w2_setup()
        self.replay_ring(RA)
        self.e_loads()
        self.p2_flag_addr(); self.p2_bases()
        I(f'global_load_dword v54, v12, {sp(P_WS)} sc1', tag='fc')
        self.label(Lj); self.merge(snapA)
        self.cflag_check()
        self.q_c([5,6])
        self.auto=self.opt.finp
        for _ in self.finalize(): pass
        self.auto=0
        self.stamp('final')
        if o.stamps: I('v_mov_b32 v15, v55'); self.vst=15
        self.drain_q()
        self.p2_resid_loads()
        for n in range(self.opt.rwait):
            if self.R is not None and not self.ring_tick(): self.ring_finish()
        self.auto=self.opt.finp
        for _ in self.resid_compute(): pass
        self.auto=0
        self.wait(vm=['stH']); I('s_barrier')
        self.flag_set(S_C,7,S_G,WS_FH)
        self.q_c([0,1,2,3])
        while self.q or self.R is not None:
            if self.q:
                self.tick()
                if len(self.q)==self.opt.fglead: I(f'global_load_dword v11, v12, {sp(P_WS)} sc1', tag='fg')
            if self.R is not None:
                if not self.ring_tick(): self.ring_finish()
        self.wait(lg='all')
        self.stamp('w2 in regs')
        self.flag_wait(12,11,'fg')
        self.stamp('flagG')
        self.p2_main()
        self.stamp('p2')
        self.p2_epilogue()
        self.stamp('end'); self.cstamp('c1')
        self.write_stamps()
        self.label('L_exit')
        I('s_endpgm')
        self.label('L_code_end')

def header(lds):
    return f"""; Fused S5 SSM + MLP-Mixer token MLP, one persistent launch (256 workgroups, one per CU).
; @launch grid=(256,1,1) block=(256,1,1) lds={lds}
.amdgcn_target "amdgcn-amd-amdhsa--gfx950"
.text
.globl {KN}
.p2align 8
.type {KN},@function
{KN}:
"""
def footer():
    return f"""
.section .rodata,"a"
.p2align 6
.amdhsa_kernel {KN}
  .amdhsa_next_free_vgpr 512
  .amdhsa_next_free_sgpr 102
  .amdhsa_accum_offset 256
  .amdhsa_group_segment_fixed_size 0
  .amdhsa_kernarg_size 136
  .amdhsa_user_sgpr_count 2
  .amdhsa_user_sgpr_kernarg_segment_ptr 1
  .amdhsa_system_sgpr_workgroup_id_x 1
  .amdhsa_float_denorm_mode_32 3
.end_amdhsa_kernel
"""
if __name__=='__main__':
    ap=argparse.ArgumentParser()
    ap.add_argument('-o',default='k.s'); ap.add_argument('--stamps',action='store_true'); ap.add_argument('--stop',default=''); ap.add_argument('--fine',type=int,default=0); ap.add_argument('--period',type=int,default=48); ap.add_argument('--arrlead',type=int,default=10); ap.add_argument('--t3start',type=int,default=0); ap.add_argument('--notouch3',type=int,default=0); ap.add_argument('--own3',type=int,default=0); ap.add_argument('--alsoA',type=int,default=0); ap.add_argument('--now2',type=int,default=0); ap.add_argument('--gepip',type=int,default=0); ap.add_argument('--finp',type=int,default=36); ap.add_argument('--sfirst',type=int,default=10); ap.add_argument('--rwait',type=int,default=8); ap.add_argument('--fglead',type=int,default=6); ap.add_argument('--ln64p',type=int,default=48); ap.add_argument('--bfirst',type=int,default=0); ap.add_argument('--w2late',type=int,default=1); ap.add_argument('--rot1',type=int,default=4); ap.add_argument('--rot2',type=int,default=1); ap.add_argument('--rot3',type=int,default=1); ap.add_argument('--ln8tick',type=int,default=0); ap.add_argument('--bdelay',type=int,default=2); ap.add_argument('--w1touch',default='A'); ap.add_argument('--fin0',type=int,default=4); ap.add_argument('--finrate',type=int,default=2); ap.add_argument('--p2rate',type=int,default=3); ap.add_argument('--pre',type=int,default=1); ap.add_argument('--pre1',type=int,default=8); ap.add_argument('--gwait',type=int,default=6); ap.add_argument('--ht_touch',type=int,default=0); ap.add_argument('--g_touch',type=int,default=0)
    o=ap.parse_args()
    k=K(o); k.build()
    t,n=k.text()
    open(o.o,'w').write(header(LDS_TOTAL)+t+footer())
    print('wrote',o.o,'lines',t.count('\n'),'nop states inserted',n)
    if o.stamps: open(o.o+'.names','w').write(','.join(k.stampnames)); print(k.stampnames)
```

```python
import sys, os, argparse
from asmgen import Gen

KN = "parallel_sum__ssm_conv_s5__mixer_token_mlp__prompt_kernel"

WS_HT    = 0x000000
WS_STAT  = 0x1C0000
WS_E     = 0x1C4000
WS_FH    = 0x1E0000
WS_FG    = 0x1E4000
WS_FC    = 0x1E8000
WS_CP    = 0x780000
WS_GT    = 0x200000
WS_HP    = 0x400000
WS_DBG   = 0x900000

LDS_X  = 0
LDS_Y  = 57344
YW     = 26624
SLOT_OFF = [0, 4096, 8192, 12288, 16384, 20480]
LDS_LN8 = LDS_X + 57344 - 7680
LDS_TOTAL = LDS_Y + 4*YW

P_X, P_LRE, P_LIM, P_BRE, P_BIM, P_CRE, P_CIM, P_LDT = 4,6,8,10,12,14,16,18
P_DSK = 20
P_W1, P_B1, P_W2, P_B2 = 24,26,28,30
P_OUT, P_DBG, P_WS = 32,34,36
SRD_X, SRD_WS, SRD_1, SRD_2, SRD_W, SRD_OUT = 40,44,48,52,56,60
S_W, S_WH, S_WL, S_C, S_G, S_DT1, S_FT, S_HASG1 = 64,65,66,67,68,69,70,71
S_MASK, S_ONES = 72, 73
S_A, S_B, S_WO, S_T0, S_T1, S_T2, S_T3, S_BOUND = 76,77,78,79,80,81,82,83
S_YB = 84
S_WBEG, S_WEND = 96, 97
S_KO, S_KEND = 100, 101
S_FI = 3
S_E = 85
def sp(n): return f's[{n}:{n+1}]'
def srd(n): return f's[{n}:{n+3}]'
def vr(a,n): return f'v[{a}:{a+n-1}]' if n>1 else f'v{a}'
def ar(a,n): return f'a[{a}:{a+n-1}]' if n>1 else f'a{a}'

V_LANE, V_L16 = 0, 1
V_TR = 2
V_DMA = [6,13]
V_T = 16
V_LR,V_LI,V_K1,V_K2,V_SR,V_SI,V_PR,V_PI,V_L64R,V_L64I,V_L512R,V_L512I = range(40,52)
V_IN = 52
V_X64 = 56
V_BF = 112
V_RAW = 224
V_ACC = 56
V_RING = 120
V_EL = 16
V_EOF = 216

class K(Gen):
    def __init__(self, opt):
        super().__init__(); self.opt=opt; self.nstamp=0
        self.final_stamps=False; self.vst=55; self.nx=0; self.nb=0; self.bread=False; self.allow_bread=False; self.bdelay=opt.bdelay; self.q=[]; self.R=None; self.auto=0; self.acc=0; self.in_tick=False; self.full=True
    def I(self,t,tag=None):
        super().I(t,tag)
        if self.in_tick: return
        mn=t.split()[0]
        if mn.startswith(('buffer_','global_')): self.acc=0; return
        if not self.auto: return
        if mn.startswith('v_mfma'): self.acc+=16
        elif mn.startswith(('v_exp','v_rcp','v_sqrt','v_sin','v_cos','v_log')): self.acc+=8
        elif mn.startswith(('v_','ds_')): self.acc+=4
        else: return
        if self.acc>=self.auto and self.full and not mn.startswith(('v_cmp','s_cmp','s_bitcmp')):
            self.tick()
    def tick(self):
        self.in_tick=True; self.acc=0
        if not self.bread and self.allow_bread and self.nb>=34:
            if self.bdelay>0: self.bdelay-=1
            else:
                self.do_bread(); self.in_tick=False; return
        if self.q: self.q.pop(0)()
        elif self.R is not None: self.ring_tick()
        self.in_tick=False
    def do_bread(self):
        self.bread=True
        self.b_read()
        self.wait(lg=['brd'])
        self.ring_init('w1',16,3584,range(6))
    def drain_q(self):
        while self.q: self.tick()
    def stamp(self, name, fine=False):
        if not self.opt.stamps: return
        if fine and int(fine)>self.opt.fine: return
        i=self.nstamp; self.nstamp+=1
        assert i<64
        self.c(f'stamp {i}: {name}')
        self.wait(lg='all')
        self.I('s_memrealtime s[98:99]'); self.I('s_waitcnt lgkmcnt(0)'); self.smem=False
        self.I(f'v_writelane_b32 v{self.vst}, s98, {i}')
        self.stampnames=getattr(self,'stampnames',[])+[name]
    def cstamp(self, name):
        if not self.opt.stamps: return
        i=self.nstamp; self.nstamp+=1
        self.wait(lg='all')
        self.I('s_memtime s[98:99]'); self.I('s_waitcnt lgkmcnt(0)'); self.smem=False
        self.I(f'v_writelane_b32 v{self.vst}, s98, {i}')
        self.stampnames=getattr(self,'stampnames',[])+['#'+name]
    def rnd_bf16(self, v):
        self.I(f'v_cvt_pk_bf16_f32 v{v}, v{v}, v{v}')
        self.I(f'v_lshlrev_b32 v{v}, 16, v{v}')
    def make_srd(self, s, ptr, nbytes):
        self.I(f's_mov_b32 s{s}, s{ptr}'); self.I(f's_and_b32 s{s+1}, s{ptr+1}, 0xffff')
        self.I(f's_mov_b32 s{s+2}, {nbytes}'); self.I(f's_mov_b32 s{s+3}, 0x20000')
    def ln_stats(self, SUM, SSQ, R, C, T):
        I=self.I
        I(f'v_mul_f32 v{SUM}, 0x3b124925, v{SUM}')
        I(f'v_mul_f32 v{SSQ}, 0x3b124925, v{SSQ}')
        I(f'v_fma_f32 v{SSQ}, -v{SUM}, v{SUM}, v{SSQ}')
        I(f'v_max_f32 v{SSQ}, 0, v{SSQ}')
        I(f'v_cvt_pk_bf16_f32 v{SUM}, v{SUM}, v{SUM}')
        I(f'v_cvt_pk_bf16_f32 v{SSQ}, v{SSQ}, v{SSQ}')
        I(f'v_lshlrev_b32 v{SUM}, 16, v{SUM}')
        I(f'v_lshlrev_b32 v{SSQ}, 16, v{SSQ}')
        I(f'v_add_f32 v{SSQ}, 0x3727c5ac, v{SSQ}')
        self.rnd_bf16(SSQ)
        I(f'v_sqrt_f32 v{SSQ}, v{SSQ}')
        self.rnd_bf16(SSQ)
        I(f'v_rcp_f32 v{R}, v{SSQ}')
        I(f'v_mul_f32 v{C}, v{SUM}, v{R}')
        I(f'v_sub_f32 v{C}, 0, v{C}')
    def dot_sums(self, regs, accs):
        I=self.I
        for n,d in enumerate(regs):
            s,q = accs[2*(n&1)], accs[2*(n&1)+1]
            if n<2:
                I(f'v_dot2_f32_bf16 v{s}, v{d}, s{S_ONES}, 0')
                I(f'v_dot2_f32_bf16 v{q}, v{d}, v{d}, 0')
            else:
                I(f'v_dot2_f32_bf16 v{s}, v{d}, s{S_ONES}, v{s}')
                I(f'v_dot2_f32_bf16 v{q}, v{d}, v{d}, v{q}')
        I(f'v_add_f32 v{accs[0]}, v{accs[0]}, v{accs[2]}')
        I(f'v_add_f32 v{accs[1]}, v{accs[1]}, v{accs[3]}')
    def normalize(self, regs, R, C, tmps, hook=None):
        I=self.I
        n=len(tmps)
        for b in range(0,len(regs),n):
            grp=regs[b:b+n]
            for d,t in zip(grp,tmps):
                I(f'v_lshlrev_b32 v{t}, 16, v{d}')
                I(f'v_and_b32 v{t+1}, s{S_MASK}, v{d}')
            for d,t in zip(grp,tmps):
                I(f'v_pk_fma_f32 v[{t}:{t+1}], v[{t}:{t+1}], v[{R}:{R+1}], v[{C}:{C+1}] op_sel_hi:[1,0,0]')
            for d,t in zip(grp,tmps):
                I(f'v_cvt_pk_bf16_f32 v{d}, v{t}, v{t+1}')
            if hook: hook(b//n)
    def cmul(self, dr, di, xr, xi, yr, yi, t0, t1):
        I=self.I
        I(f'v_mul_f32 v{t0}, v{xi}, v{yi}')
        I(f'v_mul_f32 v{t1}, v{xi}, v{yr}')
        I(f'v_fma_f32 v{t0}, v{xr}, v{yr}, -v{t0}')
        I(f'v_fma_f32 v{di}, v{xr}, v{yi}, v{t1}')
        I(f'v_mov_b32 v{dr}, v{t0}')
    def cfma(self, dr, di, xr, xi, yr, yi, zr, zi, t0, t1):
        I=self.I
        I(f'v_fma_f32 v{t0}, v{xr}, v{yr}, v{zr}')
        I(f'v_fma_f32 v{t1}, v{xr}, v{yi}, v{zi}')
        I(f'v_fma_f32 v{t0}, -v{xi}, v{yi}, v{t0}')
        I(f'v_fma_f32 v{di}, v{xi}, v{yr}, v{t1}')
        I(f'v_mov_b32 v{dr}, v{t0}')
    def csq(self, dr, di, xr, xi, t0):
        I=self.I
        I(f'v_mul_f32 v{t0}, v{xi}, v{xi}')
        I(f'v_mul_f32 v{di}, v{xr}, v{xi}')
        I(f'v_fma_f32 v{dr}, v{xr}, v{xr}, -v{t0}')
        I(f'v_add_f32 v{di}, v{di}, v{di}')
    def allgather_q(self, v, g0, g1, g2, g3):
        I=self.I
        I(f'v_mov_b32 v{g0}, v{v}'); I(f'v_mov_b32 v{g1}, v{v}')
        I(f'v_permlane16_swap_b32 v{g0}, v{g1}')
        I(f'v_mov_b32 v{g2}, v{g0}'); I(f'v_mov_b32 v{g3}, v{g1}')
        I(f'v_permlane32_swap_b32 v{g0}, v{g2}')
        I(f'v_permlane32_swap_b32 v{g1}, v{g3}')
    def exec_full(self): self.I('s_mov_b64 exec, -1'); self.full=True
    def exec_set(self, lo, hi):
        self.full=False
        self.I(f's_mov_b32 exec_lo, {lo}'); self.I(f's_mov_b32 exec_hi, {hi}')
    def poll(self, name, voff, base, cmp_ge, nlanes_lo=None):
        I=self.I
        L=self.newlabel('poll'); D=self.newlabel('polld')
        I(f's_mov_b32 s{S_BOUND}, 0x200000')
        self.label(L)
        I(f'global_load_dword v7, v{voff}, {sp(base)} sc1')
        I('s_waitcnt vmcnt(0)'); self.vm={}
        I(f'v_cmp_gt_u32 vcc, {cmp_ge}, v7')
        I(f's_cbranch_vccz {D}')
        I('s_sleep 4')
        I(f's_sub_u32 s{S_BOUND}, s{S_BOUND}, 1')
        I(f's_cbranch_scc0 {L}')
        self.label(D)

    def ring_setup(self, pitch, xorsel):
        I=self.I
        I(f'v_lshrrev_b32 v7, 3, v{V_LANE}'); I(f'v_and_b32 v8, 7, v{V_LANE}')
        I('v_and_b32 v9, 6, v7'); I('v_xor_b32 v8, v8, v9'); I('v_lshlrev_b32 v8, 4, v8')
        I(f'v_mul_u32_u24 v7, {pitch}, v7'); I(f'v_add_u32 v{V_DMA[0]}, v7, v8')
        I(f'v_add_u32 v{V_DMA[1]}, {8*pitch-1024}, v{V_DMA[0]}')
        I(f'v_lshrrev_b32 v7, 2, v{V_LANE}'); I('v_and_b32 v8, 6, v7')
        I(f'v_bfe_u32 v9, v{V_LANE}, 1, 1'); I('v_xor_b32 v8, v8, v9'); I('v_lshlrev_b32 v8, 4, v8')
        I('v_lshlrev_b32 v7, 7, v7'); I('v_add_u32 v7, v7, v8')
        I(f'v_and_b32 v9, 1, v{V_LANE}'); I('v_lshlrev_b32 v9, 3, v9'); I('v_add_u32 v7, v7, v9')
        I(f's_lshl_b32 s{S_T0}, s{xorsel}, 6')
        I(f'v_xor_b32 v7, s{S_T0}, v7')
        I(f'v_add_u32 v{V_TR}, s{S_YB}, v7')
        for x in range(1,4):
            I(f'v_xor_b32 v{V_TR+x}, {x<<5}, v{V_TR}')
    def ring_init(self, name, nsteps, pitch, slots):
        self.R=dict(name=name,n=nsteps,pitch=pitch,free=list(slots),slot={},iss=0,rd=0,rel=0,piece=0)
    def ring_add(self, slots): self.R['free']+=list(slots)
    def ring_issue_piece(self):
        R=self.R; I=self.I
        k=R['iss']
        if k>=R['n']: return False
        j=R['piece']
        if j==0:
            if not R['free']: return False
            R['slot'][k]=R['free'].pop(0)
        if j%2==0:
            I(f's_add_u32 m0, s{S_YB}, {SLOT_OFF[R["slot"][k]]+j*1024}')
            if k or j: I(f's_add_u32 s{S_WO}, s{S_WO}, {16*R["pitch"]}')
            else: I('s_nop 0')
        I(f'buffer_load_dwordx4 v{V_DMA[j%2]}, {srd(SRD_W)}, s{S_WO} offen offset:{(j%2)*1024} lds', tag=(R['name'],k))
        R['piece']=(j+1)%4
        if R['piece']==0: R['iss']+=1
        return True
    def ring_issue(self):
        while self.ring_issue_piece(): pass
    def ring_read(self):
        R=self.R; I=self.I
        k=R['rd']
        if k>=R['n']: return False
        assert k<R['iss'], 'read before issue'
        off=SLOT_OFF[R['slot'][k]]
        self.wait(vm=[(R['name'],k)])
        for x in range(4):
            b=16*k+4*x
            I(f'ds_read_b64_tr_b16 {ar(b,2)}, v{V_TR+x} offset:{off}', tag=(R['name'],'r',k))
            I(f'ds_read_b64_tr_b16 {ar(b+2,2)}, v{V_TR+x} offset:{off+2048}', tag=(R['name'],'r',k))
        R['rd']+=1
        return True
    def ring_release(self):
        R=self.R
        k=R['rel']
        if k>=R['rd']: return False
        self.wait(lg=[(R['name'],'r',k)])
        R['free'].append(R['slot'][k]); R['rel']+=1
        self.ring_issue()
        return True
    def ring_tick(self):
        R=self.R
        if R['iss']<R['n']:
            if R['piece']==0 and not R['free']:
                if R['rel']>=R['rd']:
                    assert R['rd']<R.get('maxrd',99)
                    self.ring_read()
                k=R['rel']; self.wait(lg=[(R['name'],'r',k)]); R['free'].append(R['slot'][k]); R['rel']+=1
            self.ring_issue_piece()
            if R['piece']==3 and not R['free'] and R['rd']==R['rel'] and R['rd']<R['iss'] and R['rd']<R.get('maxrd',99):
                self.ring_read()
            return True
        if R['rd']<R['n'] and R['rd']<R.get('maxrd',99): return self.ring_read()
        return False
    def bg(self):
        return self.ring_tick()
    def replay_ring(self, RA):
        R=self.R
        while (R['iss'],R['piece'])<(RA['iss'],RA['piece']) or R['rd']<RA['rd']:
            if (R['iss'],R['piece'])<(RA['iss'],RA['piece']):
                before=R['rd']
                R['maxrd']=RA['rd']
                self.ring_tick()
            else:
                self.ring_read()
        while R['rel']<RA['rel']:
            k=R['rel']; self.wait(lg=[(R['name'],'r',k)]); R['free'].append(R['slot'][k]); R['rel']+=1
        R['maxrd']=99
        for k in RA: assert RA[k]==R[k], (k,RA[k],R[k])
    def ring_finish(self):
        R=self.R; R['maxrd']=99
        while R['rd']<R['n'] or R['iss']<R['n']: self.ring_tick()
        R['rel']=R['n']; self.R=None

    def reduce(self, tmp, pre=None, post=None):
        I=self.I
        for e in (1,2,3):
            I(f's_xor_b32 s{S_T0}, s{S_W}, {e}'); I(f's_mul_i32 s{S_T0}, s{S_T0}, {3*4096}')
            I(f's_add_u32 s{S_T0}, s{S_T0}, {LDS_X+(e-1)*4096}')
            I(f'v_add_u32 v7, s{S_T0}, v{V_L16}')
            xh,yh=e>>1,e&1
            for xl in range(2):
                for yl in range(2):
                    a=V_ACC+16*(2*xh+xl)+4*(2*yh+yl)
                    I(f'ds_write_b128 v7, {vr(a,4)} offset:{(2*xl+yl)*1024}', tag='redw')
        if pre: pre()
        self.wait(lg='all'); I('s_barrier')
        if post: post()
        I(f's_mul_i32 s{S_T0}, s{S_W}, {3*4096}'); I(f'v_add_u32 v7, s{S_T0}, v{V_L16}')
        for e in range(3):
            for sub in range(4):
                I(f'ds_read_b128 {vr(tmp+16*e+4*sub,4)}, v7 offset:{LDS_X+e*4096+sub*1024}', tag=('red',e))
        for e in range(3):
            self.wait(lg=[('red',e)])
            for sub in range(4):
                a=V_ACC+16*(sub>>1)+4*(sub&1)
                for h in range(2):
                    I(f'v_pk_add_f32 v[{a+2*h}:{a+2*h+1}], v[{a+2*h}:{a+2*h+1}], v[{tmp+16*e+4*sub+2*h}:{tmp+16*e+4*sub+2*h+1}]')

    def prologue(self):
        I=self.I
        I('s_cmp_ge_u32 s2, 256'); I('s_cbranch_scc1 L_exit')
        I('s_load_dwordx16 s[4:19], s[0:1], 0')
        I('s_load_dwordx2 s[20:21], s[0:1], 64')
        I('s_load_dwordx8 s[24:31], s[0:1], 80')
        I('s_load_dwordx4 s[32:35], s[0:1], 112')
        I('s_load_dwordx2 s[36:37], s[0:1], 128')
        I('v_lshrrev_b32 v7, 6, v0'); I(f'v_and_b32 v{V_LANE}, 63, v0')
        I(f'v_readfirstlane_b32 s{S_W}, v7')
        I(f'v_lshlrev_b32 v{V_L16}, 4, v{V_LANE}')
        I(f's_mov_b32 s{S_MASK}, 0xffff0000'); I(f's_mov_b32 s{S_ONES}, 0x3f803f80')
        I('s_and_b32 s22, s2, 7')
        I('s_lshr_b32 s23, s2, 3')
        I('s_and_b32 s38, s22, 1')
        I('s_lshr_b32 s39, s22, 1')
        I(f's_lshr_b32 s{S_WH}, s{S_W}, 1'); I(f's_and_b32 s{S_WL}, s{S_W}, 1')
        I(f's_mul_i32 s{S_T0}, s23, 37'); I(f's_lshr_b32 s{S_T0}, s{S_T0}, 8')
        I(f's_mul_i32 s{S_T1}, s{S_T0}, 7'); I(f's_sub_u32 s{S_G}, s23, s{S_T1}')
        I(f's_mov_b32 s{S_DT1}, s{S_G}')
        I(f's_lshl_b32 s{S_T1}, s22, 2'); I(f's_add_u32 s{S_C}, s{S_T1}, s{S_T0}')
        I(f's_min_u32 s{S_C}, s{S_C}, 31')
        I(f's_mul_i32 s{S_T1}, s39, 7'); I(f's_lshl_b32 s{S_T2}, s38, 2'); I(f's_add_u32 s87, s{S_T1}, s{S_T2}')
        I(f's_add_u32 s{S_FT}, s87, s{S_T0}'); I(f's_min_u32 s{S_FT}, s{S_FT}, 27')
        I(f's_sub_u32 s{S_T1}, 4, s38'); I(f's_cmp_lt_u32 s{S_T0}, s{S_T1}'); I(f's_cselect_b32 s{S_HASG1}, 1, 0')
        I('s_cmp_lt_u32 s23, 28'); I('s_cselect_b32 s74, 1, 0')
        self.wait(lg='all')
        self.make_srd(SRD_X, P_X, 2048*896)
        self.x8_issue(2)
        I('s_getpc_b64 s[98:99]'); self.label('L_pc0')
        I(f's_sub_u32 s98, s98, L_pc0-{KN}'); I('s_subb_u32 s99, s99, 0')
        I(f's_and_b32 s{S_T0}, s23, 1'); I(f's_lshl_b32 s{S_T0}, s{S_T0}, 2'); I(f's_add_u32 s{S_T0}, s{S_T0}, s{S_W}')
        I(f's_lshl_b32 s{S_T0}, s{S_T0}, 13')
        I(f'v_lshlrev_b32 v9, 7, v{V_LANE}'); I(f'v_add_u32 v9, s{S_T0}, v9')
        I(f'v_min_u32 v9, L_code_end-{KN}-16, v9')
        I('global_load_dword v12, v9, s[98:99]', tag='pf')
        self.make_srd(SRD_WS, P_WS, 0x10000000)
        I(f's_mul_i32 s{S_YB}, s{S_W}, {YW}'); I(f's_add_u32 s{S_YB}, s{S_YB}, {LDS_Y}')
        I(f's_sub_u32 s{S_E}, s23, 28'); I(f's_lshl_b32 s{S_E}, s{S_E}, 3'); I(f's_add_u32 s{S_E}, s{S_E}, s22')
        I('s_mov_b32 s86, s23'); I('s_mov_b32 s95, s22')
        self.stamp('start'); self.cstamp('c0')

    def x8_issue(self, oct):
        I=self.I
        I(f's_lshr_b32 s75, s{oct}, 2'); I('s_lshl_b32 s75, s75, 5')
        I(f's_lshl_b32 s{S_T0}, s{S_WH}, 4'); I(f's_add_u32 s75, s75, s{S_T0}')
        I(f's_and_b32 s{S_T0}, s{oct}, 3'); I(f's_lshl_b32 s{S_T0}, s{S_T0}, 2'); I(f's_add_u32 s75, s75, s{S_T0}')
        I(f's_lshl_b32 s{S_T0}, s{S_WL}, 1'); I(f's_add_u32 s75, s75, s{S_T0}')
        I(f's_mul_i32 s{S_T2}, s75, 896')
        I(f'v_and_b32 v7, 31, v{V_LANE}'); I(f'v_lshrrev_b32 v8, 5, v{V_LANE}')
        I('v_mul_u32_u24 v8, 896, v8'); I('v_lshlrev_b32 v9, 5, v7'); I('v_add_u32 v8, v8, v9')
        I('v_mov_b32 v9, 0x7ffffff0'); I('v_cmp_gt_u32 vcc, 28, v7'); I('v_cndmask_b32 v8, v9, v8, vcc')
        I(f'buffer_load_dwordx4 {vr(V_T,4)}, v8, {srd(SRD_X)}, s{S_T2} offen', tag='x8')
        I(f'buffer_load_dwordx4 {vr(V_T+4,4)}, v8, {srd(SRD_X)}, s{S_T2} offen offset:16', tag='x8')
    def touches_pre(self):
        I=self.I
        self.make_srd(SRD_1, P_BRE, 448*896); self.make_srd(SRD_2, P_BIM, 448*896); self.make_srd(SRD_W, P_W1, 2048*3584)
        I(f'v_lshrrev_b32 v7, 3, v{V_LANE}'); I(f'v_and_b32 v8, 7, v{V_LANE}'); I('v_min_u32 v8, 6, v8')
        I('v_mul_u32_u24 v7, 896, v7'); I('v_lshlrev_b32 v8, 7, v8'); I('v_add_u32 v7, v7, v8')
        I(f's_lshl_b32 s{S_T3}, s86, 2'); I(f's_add_u32 s{S_T3}, s{S_T3}, s{S_W}')
        I(f's_lshl_b32 s{S_T0}, s95, 8'); I(f's_lshl_b32 s{S_T1}, s{S_T3}, 1'); I(f's_add_u32 s{S_T0}, s{S_T0}, s{S_T1}'); I(f's_mul_i32 s{S_T0}, s{S_T0}, 896')
        self.exec_set('0xffff','0')
        I(f'buffer_load_dword v12, v7, {srd(SRD_X)}, s{S_T0} offen', tag='touch')
        I(f's_and_b32 s{S_T0}, s{S_T3}, 63'); I(f's_mul_i32 s{S_T0}, s{S_T0}, {7*896}')
        I(f's_cmp_lt_u32 s{S_T3}, 64')
        I(f's_cselect_b32 s{SRD_OUT}, s{P_BRE}, s{P_BIM}'); I(f's_cselect_b32 s{SRD_OUT+1}, s{P_BRE+1}, s{P_BIM+1}')
        I(f's_mov_b32 s{SRD_OUT+2}, {448*896}'); I(f's_mov_b32 s{SRD_OUT+3}, 0x20000')
        self.exec_set('-1','0x00ffffff')
        I(f'buffer_load_dword v12, v7, {srd(SRD_OUT)}, s{S_T0} offen', tag='touch')
        self.exec_full()
    def touch_w1(self, setup_only=False):
        I=self.I
        I(f'v_lshrrev_b32 v7, 2, v{V_LANE}'); I(f'v_and_b32 v8, 3, v{V_LANE}')
        I(f's_and_b32 s{S_T1}, s95, 1'); I(f's_sub_u32 s{S_T1}, 3, s{S_T1}'); I(f'v_min_u32 v8, s{S_T1}, v8')
        I('v_mul_u32_u24 v7, 3584, v7'); I('v_lshlrev_b32 v8, 7, v8'); I('v_add_u32 v7, v7, v8')
        I(f's_lshl_b32 s{S_T0}, s{S_W}, 9'); I(f's_lshl_b32 s{S_T1}, s86, 4'); I(f's_add_u32 s{S_T0}, s{S_T0}, s{S_T1}')
        I(f's_mul_i32 s{S_T0}, s{S_T0}, 3584'); I(f's_lshl_b32 s{S_T1}, s87, 7'); I(f's_add_u32 s{S_T0}, s{S_T0}, s{S_T1}')
        if setup_only:
            I('v_mov_b32 v238, v7'); I(f's_mov_b32 s94, s{S_T0}'); return
        I(f'buffer_load_dword v12, v7, {srd(SRD_W)}, s{S_T0} offen', tag='touch')
    def touch_w1_wg(self):
        I=self.I
        I(f'v_lshrrev_b32 v7, 2, v{V_LANE}'); I(f'v_and_b32 v8, 3, v{V_LANE}')
        I(f's_and_b32 s{S_T1}, s95, 1'); I(f's_sub_u32 s{S_T1}, 3, s{S_T1}'); I(f'v_min_u32 v8, s{S_T1}, v8')
        I('v_mul_u32_u24 v7, 3584, v7'); I('v_lshlrev_b32 v8, 7, v8'); I('v_add_u32 v7, v7, v8')
        I(f's_lshl_b32 s{S_T0}, s86, 4'); I(f's_mul_i32 s{S_T0}, s{S_T0}, 3584'); I(f's_lshl_b32 s{S_T1}, s87, 7'); I(f's_add_u32 s{S_T0}, s{S_T0}, s{S_T1}')
        for q in range(4):
            I(f'buffer_load_dword v12, v7, {srd(SRD_W)}, s{S_T0} offen', tag='touch')
            if q<3: I(f's_add_u32 s{S_T0}, s{S_T0}, {512*3584}')
    def q_w3(self):
        I=self.I
        def xpair(p):
            def f():
                L=self.newlabel('xw3')
                I(f's_add_u32 s100, s{S_W}, {3*p}'); I('s_cmp_ge_u32 s100, 8'); I(f's_cbranch_scc1 {L}')
                snap=self.snapshot()
                I('s_lshl_b32 s101, s100, 4'); I(f'v_xor_b32 v238, s101, v{V_L16}')
                I('s_lshr_b32 s101, s100, 1'); I('s_lshl_b32 s101, s101, 4'); I('s_and_b32 s100, s100, 1'); I('s_lshl_b32 s100, s100, 1')
                I('s_add_u32 s100, s100, s101'); I('s_add_u32 s100, s100, 12'); I('s_mul_i32 s100, s100, 896')
                I(f's_lshl_b32 s101, s{S_C}, 6'); I('s_mul_i32 s101, s101, 896'); I('s_add_u32 s101, s101, s100')
                I('s_mov_b32 exec_hi, 0x00ffffff')
                I(f's_add_u32 m0, s100, {LDS_X}'); I('s_nop 0')
                I(f'buffer_load_dwordx4 v238, {srd(SRD_X)}, s101 offen lds', tag='x64')
                I(f's_add_u32 m0, s100, {LDS_X+896}'); I('s_add_u32 s101, s101, 896')
                I(f'buffer_load_dwordx4 v238, {srd(SRD_X)}, s101 offen lds', tag='x64')
                I('s_mov_b32 exec_hi, -1')
                self.label(L); self.merge(snap); self.vm['x64']=0
            return f
        def bblock(p):
            def f():
                L=self.newlabel('bw3'); Li=self.newlabel('bw3i')
                I(f's_add_u32 s100, s{S_W}, {3*p}'); I('s_cmp_ge_u32 s100, 8'); I(f's_cbranch_scc1 {L}')
                snap=self.snapshot()
                I('s_and_b32 s101, s100, 3'); I('s_sub_u32 s91, 0, s101'); I('s_and_b32 s91, s91, 3'); I('s_lshl_b32 s91, s91, 4')
                I(f'v_xor_b32 v238, s91, v{V_L16}')
                I('s_bitcmp1_b32 s100, 2')
                I(f's_cselect_b32 s{SRD_OUT}, s{P_BIM}, s{P_BRE}'); I(f's_cselect_b32 s{SRD_OUT+1}, s{P_BIM+1}, s{P_BRE+1}')
                I('s_cselect_b32 s100, 13312, 0')
                I('s_mul_i32 s91, s101, 3328'); I('s_add_u32 s100, s100, s91'); I(f's_add_u32 s100, s100, {LDS_Y+3*YW}')
                I('s_mul_i32 s101, s101, 3584')
                I(f's_lshl_b32 s91, s{S_G}, 6'); I('s_add_u32 s91, s91, 48'); I('s_mul_i32 s91, s91, 896'); I('s_add_u32 s101, s101, s91')
                I('s_mov_b32 exec_hi, 0x000fffff')
                for r in range(4):
                    I(f's_add_u32 m0, s100, {r*832}')
                    if r: I('s_add_u32 s101, s101, 896')
                    else: I('s_nop 0')
                    I(f'buffer_load_dwordx4 v238, {srd(SRD_OUT)}, s101 offen lds', tag='bdma')
                I('s_mov_b32 exec_hi, -1')
                self.label(L); self.merge(snap); self.vm['bdma']=0
            return f
        return [xpair(p) for p in range(3)], [bblock(p) for p in range(3)]
    def dma_setup(self):
        I=self.I
        for n,h in enumerate((0,3,2,1)): I(f'v_xor_b32 v{224+n}, {h<<4}, v{V_L16}')
        for g in range(8): I(f'v_xor_b32 v{228+g}, {g<<4}, v{V_L16}')
        I(f's_lshl_b32 s{S_T0}, s{S_G}, 6'); I(f's_lshl_b32 s{S_T1}, s{S_W}, 4'); I(f's_add_u32 s88, s{S_T0}, s{S_T1}')
        I('s_mul_i32 s89, s88, 896')
        I(f's_lshl_b32 s{S_T0}, s{S_C}, 6'); I(f's_lshl_b32 s{S_T1}, s{S_W}, 2'); I(f's_add_u32 s{S_T0}, s{S_T0}, s{S_T1}')
        I(f's_mul_i32 s92, s{S_T0}, 896')
        I(f's_mul_i32 s93, s{S_W}, 3584')
        I(f'v_and_b32 v7, 15, v{V_LANE}'); I('v_mul_u32_u24 v236, 896, v7'); I(f'v_lshrrev_b32 v9, 4, v{V_LANE}'); I('v_lshlrev_b32 v9, 4, v9')
        I('v_add_u32 v236, v236, v9')
        I('v_add_u32 v237, s88, v7'); I('v_lshlrev_b32 v237, 1, v237')
    def q_b(self):
        I=self.I
        def row(im,n):
            def f():
                I('s_mov_b32 exec_hi, 0x000fffff')
                I(f's_add_u32 m0, s{S_YB}, {im*13312+n*832}')
                I(f's_add_u32 s91, s89, {n*896}')
                I(f'buffer_load_dwordx4 v{224+(n>>2)}, {srd(SRD_1 if im==0 else SRD_2)}, s91 offen lds', tag='bdma'); self.nb+=1
                I('s_mov_b32 exec_hi, -1')
            return f
        for im in range(2):
            for n in range(16): self.q.append(row(im,n))
        def b13(srdn,dst):
            def f():
                I(f'buffer_load_dwordx4 {vr(dst,4)}, v236, {srd(srdn)}, s89 offen offset:832', tag='b13'); self.nb+=1
            return f
        if self.opt.w1touch=='W':
            self.b13_loads=lambda: (b13(SRD_1,V_BF+52)(), b13(SRD_2,V_BF+56+52)())
        else:
            self.q.append(b13(SRD_1,V_BF+52)); self.q.append(b13(SRD_2,V_BF+56+52))
        def lam():
            I(f'global_load_ushort v{V_IN}, v237, {sp(P_LRE)}', tag='lam')
            I(f'global_load_ushort v{V_IN+1}, v237, {sp(P_LIM)}', tag='lam')
            I(f'global_load_ushort v{V_IN+2}, v237, {sp(P_LDT)}', tag='lam')
        self.q.insert(0,lam)
    def q_x(self, alist):
        I=self.I
        def row(a,b):
            def f():
                g=2*a+(b>>1); d=(16*a+b)*896
                I('s_mov_b32 exec_hi, 0x00ffffff')
                I(f's_add_u32 m0, s93, {LDS_X+d}')
                I(f's_add_u32 s91, s92, {d}')
                I(f'buffer_load_dwordx4 v{228+g}, {srd(SRD_X)}, s91 offen lds', tag='x64'); self.nx+=1
                I('s_mov_b32 exec_hi, -1')
            return f
        for a in alist:
            for b in range(4): self.q.append(row(a,b))
    def b_read(self):
        I=self.I
        I(f'v_and_b32 v7, 15, v{V_LANE}'); I(f'v_lshrrev_b32 v8, 4, v{V_LANE}'); I('v_lshrrev_b32 v9, 2, v7')
        I('v_sub_u32 v9, 0, v9'); I('v_and_b32 v9, 3, v9'); I('v_xor_b32 v8, v8, v9')
        I('v_lshlrev_b32 v8, 4, v8'); I('v_mul_u32_u24 v7, 832, v7'); I('v_add_u32 v7, v7, v8'); I(f'v_add_u32 v7, s{S_YB}, v7')
        if self.opt.w1touch!='W': self.wait(vm=['bdma'])
        for im in range(2):
            for j in range(13):
                I(f'ds_read_b128 {vr(V_BF+56*im+4*j,4)}, v7 offset:{im*13312+j*64}', tag='brd')
    def touch_pf(self, which):
        I=self.I
        if which==1: pitch,nrow,nt,srdn=3584,512,8,SRD_W
        else:
            pitch,nrow,nt,srdn=4096,448,7,SRD_OUT
            self.make_srd(SRD_OUT, P_W2, 1792*4096)
        I(f'v_lshrrev_b32 v7, 2, v{V_LANE}'); I(f'v_and_b32 v8, 3, v{V_LANE}')
        if which==1:
            I(f's_and_b32 s{S_T1}, s95, 1'); I(f's_sub_u32 s{S_T1}, 3, s{S_T1}'); I(f'v_min_u32 v8, s{S_T1}, v8')
        I(f'v_mul_u32_u24 v7, {pitch}, v7'); I('v_lshlrev_b32 v8, 7, v8'); I('v_add_u32 v7, v7, v8')
        I(f's_mul_i32 s{S_T0}, s{S_W}, {nrow}'); I(f's_sub_u32 s{S_T1}, s86, 28'); I(f's_lshl_b32 s{S_T1}, s{S_T1}, 4'); I(f's_add_u32 s{S_T0}, s{S_T0}, s{S_T1}')
        I(f's_mul_i32 s{S_T0}, s{S_T0}, {pitch}')
        if which==1: I(f's_lshl_b32 s{S_T1}, s87, 7')
        else: I(f's_lshl_b32 s{S_T1}, s95, 9')
        I(f's_add_u32 s{S_T0}, s{S_T0}, s{S_T1}')
        for t in range(nt):
            I(f'buffer_load_dword v12, v7, {srd(srdn)}, s{S_T0} offen', tag='touch2')
            if t<nt-1: I(f's_add_u32 s{S_T0}, s{S_T0}, {64*pitch}')
    def ln8(self, oct=2, clears=True):
        I=self.I
        D=list(range(V_T,V_T+8)); SUM,SSQ,S2,Q2=24,25,26,27; R,C=28,30; TM=[32,34,36,38]
        self.wait(vm=['x8'])
        def reduce32():
            for rot in (8,4,2,1):
                I(f'v_add_f32_dpp v{SUM}, v{SUM}, v{SUM} row_ror:{rot} row_mask:0xf bank_mask:0xf')
                I(f'v_add_f32_dpp v{SSQ}, v{SSQ}, v{SSQ} row_ror:{rot} row_mask:0xf bank_mask:0xf')
            I(f'v_mov_b32 v{S2}, v{SUM}'); I(f'v_mov_b32 v{Q2}, v{SSQ}')
            I(f'v_permlane16_swap_b32 v{SUM}, v{S2}'); I(f'v_permlane16_swap_b32 v{SSQ}, v{Q2}')
            I(f'v_add_f32 v{SUM}, v{SUM}, v{S2}'); I(f'v_add_f32 v{SSQ}, v{SSQ}, v{Q2}')
        self.dot_sums(D,[SUM,SSQ,S2,Q2]); reduce32()
        self.ln_stats(SUM,SSQ,R,C,None)
        I(f'v_mov_b32 v10, v{SUM}'); I(f'v_mov_b32 v11, v{R}')
        I(f'v_lshrrev_b32 v8, 5, v{V_LANE}'); I('v_lshlrev_b32 v8, 3, v8')
        I(f's_lshl_b32 s{S_T0}, s75, 3'); I(f's_add_u32 s{S_T0}, s{S_T0}, {WS_STAT}')
        self.exec_set(1,1)
        I(f'buffer_store_dwordx2 v[10:11], v8, {srd(SRD_WS)}, s{S_T0} offen sc1', tag='st0')
        self.exec_full()
        if clears and self.opt.w1touch=='W' and not self.opt.notouch3:
            Lt=self.newlabel('notouch')
            I(f's_cmp_lg_u32 s{S_W}, 3'); I(f's_cbranch_scc1 {Lt}')
            snap=self.snapshot()
            self.touch_w1_wg()
            self.label(Lt); self.merge(snap)
        I(f'v_and_b32 v7, 31, v{V_LANE}'); I('v_cmp_gt_u32 vcc, 28, v7')
        I(f'v_cndmask_b32 v{R}, 0, v{R}, vcc'); I(f'v_cndmask_b32 v{C}, 0, v{C}, vcc')
        self.normalize(D,R,C,TM)
        self.dot_sums(D,[SUM,SSQ,S2,Q2]); reduce32()
        self.ln_stats(SUM,SSQ,R,C,None)
        self.normalize(D,R,C,TM)
        self.auto=0
        I(f'v_lshrrev_b32 v8, 5, v{V_LANE}'); I(f's_lshl_b32 s{S_T0}, s{S_W}, 1'); I(f'v_add_u32 v8, s{S_T0}, v8')
        I('v_mul_u32_u24 v8, 960, v8'); I('v_lshlrev_b32 v9, 5, v7'); I('v_add_u32 v8, v8, v9'); I(f'v_add_u32 v8, {LDS_LN8}, v8')
        self.exec_set('0x0fffffff','0x0fffffff')
        I(f'ds_write_b128 v8, {vr(V_T,4)} offset:0'); I(f'ds_write_b128 v8, {vr(V_T+4,4)} offset:16')
        self.exec_full()
        self.wait(lg='all'); I('s_barrier')
        I(f'v_and_b32 v7, 15, v{V_LANE}'); I('v_lshrrev_b32 v8, 2, v7'); I('v_mul_u32_u24 v8, 960, v8')
        I(f'v_lshrrev_b32 v9, 4, v{V_LANE}'); I('v_lshlrev_b32 v10, 5, v9'); I('v_add_u32 v8, v8, v10')
        I(f'v_and_b32 v10, 3, v{V_LANE}'); I('v_lshlrev_b32 v10, 3, v10'); I('v_add_u32 v8, v8, v10')
        I(f's_lshl_b32 s{S_T0}, s{S_W}, 7'); I(f's_add_u32 s{S_T0}, s{S_T0}, {LDS_LN8}'); I(f'v_add_u32 v8, s{S_T0}, v8')
        I('v_lshlrev_b32 v9, 10, v9'); I('v_lshlrev_b32 v7, 4, v7'); I('v_add_u32 v9, v9, v7')
        I(f's_lshr_b32 s{S_T0}, s{oct}, 2'); I(f's_lshl_b32 s{S_T0}, s{S_T0}, 12')
        I(f's_and_b32 s{S_T1}, s{oct}, 3'); I(f's_lshl_b32 s{S_T1}, s{S_T1}, 8'); I(f's_add_u32 s{S_T0}, s{S_T0}, s{S_T1}')
        I(f's_lshl_b32 s{S_T1}, s{S_W}, 18'); I(f's_add_u32 s{S_T0}, s{S_T0}, s{S_T1}')
        if self.opt.w1touch=='W':
            Lno=self.newlabel('ln8none'); L6=self.newlabel('ln8no6')
            I(f's_cmp_eq_u32 s{S_W}, 3'); I(f's_cbranch_scc1 {Lno}')
            snap=self.snapshot()
            for i in range(2):
                I(f'ds_read_b64_tr_b16 v[{16+4*i}:{17+4*i}], v8 offset:{384*i}', tag='t0')
                I(f'ds_read_b64_tr_b16 v[{18+4*i}:{19+4*i}], v8 offset:{384*i+3840}', tag='t0')
            I(f's_add_u32 s{S_T1}, s{S_T0}, {3*262144}')
            self.wait(lg='all')
            I(f'buffer_store_dwordx4 v[16:19], v9, {srd(SRD_WS)}, s{S_T0} offen sc1', tag='st0')
            I(f'buffer_store_dwordx4 v[20:23], v9, {srd(SRD_WS)}, s{S_T1} offen sc1', tag='st0')
            I(f's_cmp_lg_u32 s{S_W}, 0'); I(f's_cbranch_scc1 {L6}')
            I(f'ds_read_b64_tr_b16 v[24:25], v8 offset:768', tag='t0')
            I(f'ds_read_b64_tr_b16 v[26:27], v8 offset:{768+3840}', tag='t0')
            I(f's_add_u32 s{S_T1}, s{S_T0}, {6*262144}')
            self.wait(lg='all')
            I(f'buffer_store_dwordx4 v[24:27], v9, {srd(SRD_WS)}, s{S_T1} offen sc1', tag='st0')
            self.label(L6)
            self.label(Lno); self.merge(snap); self.vm['st0']=0
        else:
            I(f'ds_read_b64_tr_b16 v[16:17], v8 offset:0', tag='t0')
            I(f'ds_read_b64_tr_b16 v[18:19], v8 offset:3840', tag='t0')
            Lskip=self.newlabel('ln8skip')
            I(f's_cmp_eq_u32 s{S_W}, 3'); I(f's_cbranch_scc1 {Lskip}')
            snap=self.snapshot()
            I(f'ds_read_b64_tr_b16 v[20:21], v8 offset:512', tag='t1')
            I(f'ds_read_b64_tr_b16 v[22:23], v8 offset:{512+3840}', tag='t1')
            I(f's_add_u32 s{S_T1}, s{S_T0}, {4*262144}')
            self.wait(lg='all')
            I(f'buffer_store_dwordx4 v[20:23], v9, {srd(SRD_WS)}, s{S_T1} offen sc1', tag='st0')
            self.label(Lskip); self.merge(snap)
            self.wait(lg='all')
            I(f'buffer_store_dwordx4 v[16:19], v9, {srd(SRD_WS)}, s{S_T0} offen sc1', tag='st0')
        if not clears:
            I('s_barrier'); return
        Ln=self.newlabel('noclr')
        I(f's_cmp_lg_u32 s{S_W}, {1 if self.opt.w1touch=="W" else 3}'); I(f's_cbranch_scc1 {Ln}')
        snap=self.snapshot()
        I('v_mov_b32 v8, 0')
        I('v_mov_b32 v10, -1'); I('v_mov_b32 v11, -1'); I(f'v_lshlrev_b32 v9, 3, v{V_LANE}')
        I(f's_lshl_b32 s{S_T0}, s{S_G}, 5'); I(f's_add_u32 s{S_T0}, s{S_T0}, s{S_C}'); I(f's_lshl_b32 s{S_T0}, s{S_T0}, 9')
        I(f's_add_u32 s{S_T0}, s{S_T0}, {WS_E}')
        I(f'buffer_store_dwordx2 v[10:11], v9, {srd(SRD_WS)}, s{S_T0} offen sc1', tag='st0')
        I(f's_mul_i32 s{S_T0}, s{S_C}, 7'); I(f's_add_u32 s{S_T0}, s{S_T0}, s{S_G}'); I(f's_lshl_b32 s{S_T0}, s{S_T0}, 6')
        I(f's_add_u32 s{S_T0}, s{S_T0}, {WS_FH}')
        I('v_mov_b32 v10, 0')
        self.exec_set(1,0)
        I(f'buffer_store_dword v10, v8, {srd(SRD_WS)}, s{S_T0} offen sc1', tag='st0')
        Lg=self.newlabel('nog1clr'); Lc=self.newlabel('nocclr')
        I(f's_cmp_eq_u32 s{S_HASG1}, 0'); I(f's_cbranch_scc1 {Lg}')
        I(f's_mul_i32 s{S_T0}, s{S_DT1}, 28'); I(f's_add_u32 s{S_T0}, s{S_T0}, s{S_FT}'); I(f's_lshl_b32 s{S_T0}, s{S_T0}, 6')
        I(f's_add_u32 s{S_T0}, s{S_T0}, {WS_FG}')
        I(f'buffer_store_dword v10, v8, {srd(SRD_WS)}, s{S_T0} offen sc1', tag='st0')
        self.label(Lg)
        I('s_cmp_lg_u32 s95, 0'); I(f's_cbranch_scc1 {Lc}')
        I(f's_lshl_b32 s{S_T0}, s86, 6'); I(f's_add_u32 s{S_T0}, s{S_T0}, {WS_FC}')
        I(f'buffer_store_dword v10, v8, {srd(SRD_WS)}, s{S_T0} offen sc1', tag='st0')
        self.label(Lc)
        self.exec_full()
        self.label(Ln); self.merge(snap); self.vm['st0']=0
        I('s_barrier')

    def ln8_extra(self):
        I=self.I
        L=self.newlabel('noextra'); Lp=self.newlabel('extra')
        I(f's_cmp_lg_u32 s{S_HASG1}, 0'); I(f's_cbranch_scc1 {L}')
        snap=self.snapshot()
        I('s_lshr_b32 s3, s95, 1'); I('s_mul_i32 s3, s3, 7'); I('s_add_u32 s3, s3, s86'); I('s_add_u32 s3, s3, 203')
        self.label(Lp)
        self.x8_issue(3)
        I('s_waitcnt vmcnt(0)'); self.vm={}; self.vm['x8']=0
        self.ln8(oct=3, clears=False)
        I('s_add_u32 s3, s3, 28'); I('s_cmp_lt_u32 s3, 256'); I(f's_cbranch_scc1 {Lp}')
        I('s_waitcnt vmcnt(0)')
        self.label(L); self.restore(snap); self.vm['st0']=min(self.vm.get('st0',0),0)

    def arrive0(self):
        I=self.I
        self.wait(vm=['st0']); I('s_barrier')
        L=self.newlabel('arr')
        I(f's_cmp_lg_u32 s{S_W}, 0'); I(f's_cbranch_scc1 {L}')
        snap=self.snapshot()
        I('s_and_b32 s3, s2, 3'); I('s_lshl_b32 s3, s3, 6'); I('v_mov_b32 v8, s3'); I('v_mov_b32 v9, 1')
        self.exec_set(1,0)
        I(f'global_atomic_add v8, v9, {sp(P_DBG)} sc1')
        self.exec_full()
        self.label(L); self.merge(snap)

    def w1_setup(self):
        I=self.I
        self.ring_setup(3584, S_WH)
        I(f's_mul_i32 s{S_WBEG}, s{S_W}, {512*3584}'); I(f's_lshl_b32 s{S_T0}, s{S_FT}, 7'); I(f's_add_u32 s{S_WBEG}, s{S_WBEG}, s{S_T0}')
        I(f's_mov_b32 s{S_WO}, s{S_WBEG}')

    def lam_consts(self):
        I=self.I
        LRE,LIM,LDT=V_IN,V_IN+1,V_IN+2
        t=list(range(16,40))
        self.wait(vm=['lam'])
        for r in (LRE,LIM,LDT): I(f'v_lshlrev_b32 v{r}, 16, v{r}')
        I(f'v_mul_f32 v{LDT}, 0x3fb8aa3b, v{LDT}'); I(f'v_exp_f32 v{LDT}, v{LDT}')
        self.rnd_bf16(LDT)
        I(f'v_mul_f32 v16, v{LDT}, v{LRE}'); I(f'v_mul_f32 v17, v{LDT}, v{LIM}')
        I('v_mul_f32 v16, 0x3fb8aa3b, v16'); I('v_mul_f32 v17, 0.15915494, v17')
        I('v_exp_f32 v16, v16'); I('v_fract_f32 v17, v17')
        I('v_cos_f32 v18, v17'); I('v_sin_f32 v19, v17')
        I(f'v_mul_f32 v{V_LR}, v16, v18'); I(f'v_mul_f32 v{V_LI}, v16, v19')
        I(f'v_add_f32 v16, -1.0, v{V_LR}')
        I(f'v_mul_f32 v17, v{LRE}, v{LRE}'); I(f'v_fma_f32 v17, v{LIM}, v{LIM}, v17'); I('v_rcp_f32 v17, v17')
        I(f'v_mul_f32 v18, v16, v{LRE}'); I(f'v_fma_f32 v18, v{V_LI}, v{LIM}, v18')
        I(f'v_mul_f32 v19, v16, v{LIM}'); I(f'v_fma_f32 v19, v{V_LI}, v{LRE}, -v19')
        I('v_add_f32 v17, v17, v17')
        I(f'v_mul_f32 v{V_K1}, v18, v17'); I(f'v_mul_f32 v{V_K2}, v19, v17'); I(f'v_sub_f32 v{V_K2}, 0, v{V_K2}')
        self.csq(16,17,V_LR,V_LI,30); self.csq(18,19,16,17,30); self.csq(16,17,18,19,30); self.csq(20,21,16,17,30)
        self.csq(22,23,20,21,30)
        self.cmul(24,25,22,23,20,21,30,31)
        self.csq(V_L64R,V_L64I,22,23,30)
        self.csq(16,17,V_L64R,V_L64I,30); self.csq(18,19,16,17,30); self.csq(V_L512R,V_L512I,18,19,30)
        I(f'v_mov_b32 v{V_PR}, 1.0'); I(f'v_mov_b32 v{V_PI}, 0')
        for (lo,hi,r) in (('0xffff0000','-1',20),('0','-1',22),('0','0xffff0000',24)):
            self.exec_set(lo,hi); I(f'v_mov_b32 v{V_PR}, v{r}'); I(f'v_mov_b32 v{V_PI}, v{r+1}')
        self.exec_full()
        I(f'v_mov_b32 v{V_IN}, v20'); I(f'v_mov_b32 v{V_IN+1}, v21')

    def x_addr(self):
        I=self.I
        I(f'v_and_b32 v7, 15, v{V_LANE}'); I('v_lshrrev_b32 v8, 2, v7'); I('v_lshlrev_b32 v8, 4, v8')
        I('v_and_b32 v9, 3, v7'); I('v_add_u32 v8, v8, v9'); I('v_mul_u32_u24 v8, 896, v8')
        I(f'v_lshrrev_b32 v9, 4, v{V_LANE}'); I('v_lshrrev_b32 v7, 1, v7'); I('v_xor_b32 v9, v9, v7'); I('v_lshlrev_b32 v9, 4, v9')
        I('v_add_u32 v14, v8, v9'); I('v_xor_b32 v15, 64, v14')
    def ln64(self):
        I=self.I
        D=list(range(V_X64,V_X64+56)); SUM,SSQ,S2,Q2=24,25,26,27; R,C=28,30; TM=[32,34,36,38]
        I(f's_mul_i32 s{S_T0}, s{S_W}, 3584'); I(f'v_add_u32 v22, s{S_T0}, v14'); I(f'v_add_u32 v23, s{S_T0}, v15')
        self.allow_bread=True
        while self.nx<16: self.tick()
        if self.opt.w1touch!='W': self.wait(vm=['x64'])
        for j in range(14):
            I(f'ds_read_b128 {vr(V_X64+4*j,4)}, v{22+(j&1)} offset:{LDS_X+(j>>1)*128}', tag=('xr',j))
        accs=[SUM,SSQ,S2,Q2]
        for n,d in enumerate(D):
            if n%4==0: self.wait(lg=[('xr',n//4)])
            sa,qa = accs[2*(n&1)], accs[2*(n&1)+1]
            if n<2:
                I(f'v_dot2_f32_bf16 v{sa}, v{d}, s{S_ONES}, 0'); I(f'v_dot2_f32_bf16 v{qa}, v{d}, v{d}, 0')
            else:
                I(f'v_dot2_f32_bf16 v{sa}, v{d}, s{S_ONES}, v{sa}'); I(f'v_dot2_f32_bf16 v{qa}, v{d}, v{d}, v{qa}')
        I(f'v_add_f32 v{SUM}, v{SUM}, v{S2}'); I(f'v_add_f32 v{SSQ}, v{SSQ}, v{Q2}')
        for sw in ('16','32'):
            I(f'v_mov_b32 v{S2}, v{SUM}'); I(f'v_mov_b32 v{Q2}, v{SSQ}')
            I(f'v_permlane{sw}_swap_b32 v{SUM}, v{S2}'); I(f'v_permlane{sw}_swap_b32 v{SSQ}, v{Q2}')
            I(f'v_add_f32 v{SUM}, v{SUM}, v{S2}'); I(f'v_add_f32 v{SSQ}, v{SSQ}, v{Q2}')
        self.stamp('dots',fine=True)
        self.ln_stats(SUM,SSQ,R,C,None)
        self.allow_bread=True
        def h(n):
            I(f'ds_write_b128 v{22+(n&1)}, {vr(V_X64+4*n,4)} offset:{LDS_X+(n>>1)*128}', tag='xw')
        self.normalize(D,R,C,TM,hook=h)

    def bu_gemm(self):
        I=self.I
        BUF=[V_X64, V_X64+16, V_X64+32]
        def rd(j):
            for i in range(4):
                I(f'ds_read_b128 {vr(BUF[j%3]+4*i,4)}, v{14+(j&1)} offset:{LDS_X+i*3584+(j>>1)*128}', tag=('xa',j))
        rd(0); rd(1)
        for j in range(14):
            if j+2<14: rd(j+2)
            self.wait(lg=[('xa',j)])
            for i in range(4):
                for im in range(2):
                    d=V_RAW+16*im+4*i
                    cin = vr(d,4) if j else '0'
                    I(f'v_mfma_f32_16x16x32_bf16 {vr(d,4)}, {vr(BUF[j%3]+4*i,4)}, {vr(V_BF+56*im+4*j,4)}, {cin}')

    def scan1(self):
        I=self.I
        ER,EI,T0,T1=16,17,18,19
        L16R,L16I=V_IN,V_IN+1
        I(f'v_mov_b32 v{ER}, v{V_RAW}'); I(f'v_mov_b32 v{EI}, v{V_RAW+16}')
        for t in range(1,16):
            I(f'v_fma_f32 v{T0}, v{V_LR}, v{ER}, v{V_RAW+t}')
            I(f'v_fma_f32 v{T1}, v{V_LR}, v{EI}, v{V_RAW+16+t}')
            I(f'v_fma_f32 v{T0}, -v{V_LI}, v{EI}, v{T0}')
            I(f'v_fma_f32 v{EI}, v{V_LI}, v{ER}, v{T1}')
            ER,T0=T0,ER
        GR=[20,21,22,23]; GI=[24,25,26,27]
        self.allgather_q(ER,*GR); self.allgather_q(EI,*GI)
        for q in range(1,4):
            self.cfma(GR[q],GI[q],L16R,L16I,GR[q-1],GI[q-1],GR[q],GI[q],28,29)
        I(f'v_mov_b32 v{V_SR}, 0'); I(f'v_mov_b32 v{V_SI}, 0')
        for n,(lo,hi) in enumerate((('0xffff0000','-1'),('0','-1'),('0','0xffff0000'))):
            self.exec_set(lo,hi); I(f'v_mov_b32 v{V_SR}, v{GR[n]}'); I(f'v_mov_b32 v{V_SI}, v{GI[n]}')
        self.exec_full()
        I(f'v_mov_b32 v10, v{GR[3]}'); I(f'v_mov_b32 v11, v{GI[3]}')
        I(f'v_lshlrev_b32 v8, 3, v{V_LANE}')
        I(f's_lshl_b32 s{S_T0}, s{S_G}, 5'); I(f's_add_u32 s{S_T0}, s{S_T0}, s{S_C}'); I(f's_lshl_b32 s{S_T0}, s{S_T0}, 9')
        I(f's_lshl_b32 s{S_T1}, s{S_W}, 7'); I(f's_add_u32 s{S_T0}, s{S_T0}, s{S_T1}'); I(f's_add_u32 s{S_T0}, s{S_T0}, {WS_E}')
        self.exec_set('0xffff',0)
        I(f'buffer_store_dwordx2 v[10:11], v8, {srd(SRD_WS)}, s{S_T0} offen sc1', tag='stE')
        self.exec_full()

    def wait_e0(self):
        I=self.I
        L=self.newlabel('e0'); D=self.newlabel('e0d')
        self.wait(vm=['e0c'])
        I('v_cmp_gt_u32 vcc, 56, v34'); I(f's_cbranch_vccz {D}')
        snap=self.snapshot()
        I(f's_mov_b32 s{S_BOUND}, 0x200000')
        self.label(L)
        I(f'global_load_dword v34, v35, {sp(P_DBG)} sc1'); I('s_waitcnt vmcnt(0)')
        I('v_cmp_gt_u32 vcc, 56, v34'); I(f's_cbranch_vccz {D}')
        I('s_sleep 4'); I(f's_sub_u32 s{S_BOUND}, s{S_BOUND}, 1'); I(f's_cbranch_scc0 {L}')
        self.label(D); self.restore(snap)

    def gemm1(self):
        I=self.I
        SL=[V_RING+16*i for i in range(6)]
        DEP=len(SL)
        I(f's_mul_i32 s22, s{S_DT1}, 262144'); I(f's_lshl_b32 s{S_T0}, s{S_W}, 16'); I(f's_add_u32 s22, s22, s{S_T0}')
        I(f's_lshl_b32 s{S_T0}, s{S_WL}, 11'); I(f's_xor_b32 s{S_T1}, s{S_T0}, 2048')
        I(f's_add_u32 s23, s22, s{S_T1}'); I(f's_add_u32 s22, s22, s{S_T0}')
        I(f's_mov_b32 s{S_A}, s22'); I(f's_mov_b32 s{S_B}, s23')
        def ld(k,y):
            r=SL[k%DEP]
            sx=S_A if y<2 else S_B
            I(f'buffer_load_dwordx4 {vr(r+4*y,4)}, v{V_L16}, {srd(SRD_WS)}, s{sx} offen offset:{(y&1)*1024} sc1', tag=('ht',k,y))
            if (y&1) and k<15: I(f's_add_u32 s{sx}, s{sx}, 4096')
        pro=[(k,y) for k in range(DEP) for y in range(4)]
        while pro:
            ld(*pro.pop(0))
            if self.R['iss']<self.R['n']: self.ring_tick()
        self.ring_finish(); self.wait(lg='all')
        self.stamp('w1 in regs')
        self.w2_setup(); self.R['maxrd']=0
        for k in range(16):
            r=SL[k%DEP]
            for y in range(4):
                self.wait(vm=[('ht',k,y)])
                if y==0: self.stamp(f'g1.{k}',fine=3)
                for x in range(4):
                    d=V_ACC+16*x+4*y
                    cin=vr(d,4) if k else '0'
                    I(f'v_mfma_f32_16x16x32_bf16 {vr(d,4)}, {ar(16*k+4*x,4)}, {vr(r+4*y,4)}, {cin}')
                if k+DEP<16: ld(k+DEP,y)
                else:
                    self.R['maxrd']=k
                    self.tick()
        self.R['maxrd']=99
        self.stamp('g1loop')

    def p2_flag_addr(self):
        I=self.I
        I(f's_mul_i32 s{S_T0}, s{S_W}, 7'); I(f's_lshr_b32 s{S_T1}, s{S_T0}, 2')
        I(f's_mul_i32 s{S_T2}, s{S_C}, 7'); I(f's_add_u32 s{S_T2}, s{S_T2}, s{S_T1}')
        I(f's_add_u32 s{S_T3}, s{S_T0}, 6'); I(f's_lshr_b32 s{S_T3}, s{S_T3}, 2'); I(f's_sub_u32 s{S_T3}, s{S_T3}, s{S_T1}')
        I(f'v_min_u32 v14, s{S_T3}, v{V_LANE}'); I(f'v_add_u32 v14, s{S_T2}, v14'); I('v_lshlrev_b32 v14, 6, v14')
        I(f'v_add_u32 v14, {WS_FH}, v14')
        I(f'v_min_u32 v8, 13, v{V_LANE}'); I('v_lshlrev_b32 v9, 6, v8')
        I(f's_mul_i32 s{S_T1}, s{S_G}, 28'); I(f's_add_u32 s{S_T1}, s{S_T1}, s{S_T0}'); I(f's_lshl_b32 s{S_T1}, s{S_T1}, 6'); I(f's_add_u32 s{S_T1}, s{S_T1}, {WS_FG}')
        I(f's_lshl_b32 s{S_T0}, s{S_T0}, 6'); I(f's_add_u32 s{S_T0}, s{S_T0}, {WS_FC-7*64}')
        I(f'v_mov_b32 v10, s{S_T1}'); I(f'v_mov_b32 v11, s{S_T0}'); I('v_cmp_gt_u32 vcc, 7, v8'); I('v_cndmask_b32 v10, v11, v10, vcc')
        I('v_add_u32 v12, v9, v10')

    def e_addr(self):
        I=self.I
        OF=V_EOF
        I(f's_lshl_b32 s{S_T0}, s{S_G}, 14'); I(f's_add_u32 s{S_T0}, s{S_T0}, {WS_E}')
        I(f's_add_u32 s{SRD_1}, s{P_WS}, s{S_T0}'); I(f's_addc_u32 s{SRD_1+1}, s{P_WS+1}, 0')
        I(f's_and_b32 s{SRD_1+1}, s{SRD_1+1}, 0xffff'); I(f's_mov_b32 s{SRD_1+2}, 16384'); I(f's_mov_b32 s{SRD_1+3}, 0x20000')
        I(f'v_lshrrev_b32 v8, 4, v{V_LANE}'); I('v_lshlrev_b32 v8, 12, v8')
        I(f'v_and_b32 v9, 15, v{V_LANE}'); I('v_lshlrev_b32 v9, 3, v9'); I('v_add_u32 v8, v8, v9')
        I(f's_sub_u32 s{S_T0}, s{S_C}, 32'); I(f's_lshl_b32 s{S_T0}, s{S_T0}, 9'); I(f's_lshl_b32 s{S_T1}, s{S_W}, 7')
        I(f's_add_u32 s{S_T0}, s{S_T0}, s{S_T1}'); I(f'v_add_u32 v8, s{S_T0}, v8')
        for i in range(8): I(f'v_add_u32 v{OF+i}, {512*i}, v8')
    def e_loads(self):
        for i in range(8):
            self.I(f'buffer_load_dwordx2 {vr(V_EL+2*i,2)}, v{V_EOF+i}, {srd(SRD_1)}, 0 offen sc1', tag='E')

    def finalize(self):
        I=self.I
        EL=V_EL
        L=self.newlabel('pollE'); Dn=self.newlabel('pollEd')
        sv=self.auto; self.auto=0
        self.wait(vm=['E'])
        I(f's_mov_b32 s{S_BOUND}, 0x200000')
        self.label(L)
        I(f'v_max3_u32 v8, v{EL}, v{EL+1}, v{EL+2}')
        for i in range(3,15,2): I(f'v_max3_u32 v8, v8, v{EL+i}, v{EL+i+1}')
        I(f'v_max_u32 v8, v8, v{EL+15}')
        I('v_cmp_eq_u32 vcc, -1, v8')
        I(f's_cbranch_vccz {Dn}')
        snap=self.snapshot()
        self.e_loads()
        I('s_waitcnt vmcnt(0)')
        I('s_sleep 4'); I(f's_sub_u32 s{S_BOUND}, s{S_BOUND}, 1'); I(f's_cbranch_scc0 {L}')
        self.label(Dn); self.restore(snap)
        self.auto=sv
        yield
        QR,QI=EL,EL+1
        for i in range(1,8):
            self.cfma(QR,QI,V_L64R,V_L64I,QR,QI,EL+2*i,EL+2*i+1,36,37)
            yield
        GR=[20,21,22,23]; GI=[24,25,26,27]
        self.allgather_q(QR,*GR); yield
        self.allgather_q(QI,*GI); yield
        for q in range(1,4):
            self.cfma(GR[q],GI[q],V_L512R,V_L512I,GR[q-1],GI[q-1],GR[q],GI[q],28,29)
            yield
        self.cfma(V_SR,V_SI,V_PR,V_PI,GR[3],GI[3],V_SR,V_SI,28,29)
        yield
        HR,HI,T0,T1=V_SR,V_SI,36,37
        OR,OI=V_RAW,V_RAW+16
        for t in range(16):
            I(f'v_fma_f32 v{T0}, v{V_LR}, v{HR}, v{OR+t}')
            I(f'v_fma_f32 v{T1}, v{V_LR}, v{HI}, v{OI+t}')
            I(f'v_fma_f32 v{T0}, -v{V_LI}, v{HI}, v{T0}')
            I(f'v_fma_f32 v{HI}, v{V_LI}, v{HR}, v{T1}')
            HR,T0=T0,HR
            yield
            I(f'v_mul_f32 v{OR+t}, v{V_K1}, v{HR}'); I(f'v_mul_f32 v{OI+t}, v{V_K2}, v{HR}')
            I(f'v_fma_f32 v{OR+t}, v{V_K2}, v{HI}, v{OR+t}'); I(f'v_fma_f32 v{OI+t}, -v{V_K1}, v{HI}, v{OI+t}')
            yield
        for t in range(8):
            I(f'v_cvt_pk_bf16_f32 v{OR+t}, v{OR+2*t}, v{OR+2*t+1}'); I(f'v_cvt_pk_bf16_f32 v{OI+t}, v{OI+2*t}, v{OI+2*t+1}')
            if t%2: yield
        I(f'v_and_b32 v8, 15, v{V_LANE}'); I(f's_lshl_b32 s{S_T0}, s{S_WL}, 4'); I(f'v_add_u32 v8, s{S_T0}, v8')
        I('v_lshrrev_b32 v9, 3, v8'); I('v_lshlrev_b32 v9, 2, v9')
        yield
        I('v_and_b32 v10, 3, v8'); I('v_add_u32 v9, v9, v10')
        I('v_bfe_u32 v10, v8, 2, 1'); I('v_lshlrev_b32 v11, 4, v10'); I('v_add_u32 v9, v9, v11')
        yield
        I('v_and_b32 v11, 7, v9'); I('v_lshlrev_b32 v10, 2, v10'); I('v_xor_b32 v11, v11, v10')
        I(f'v_lshrrev_b32 v10, 4, v{V_LANE}'); I('v_lshlrev_b32 v10, 1, v10')
        yield
        I('v_xor_b32 v10, v10, v11'); I('v_lshlrev_b32 v10, 4, v10')
        I('v_lshlrev_b32 v9, 7, v9'); I('v_add_u32 v9, v9, v10')
        yield
        I(f's_lshl_b32 s{S_T0}, s{S_WH}, 12'); I(f'v_add_u32 v9, s{S_T0}, v9')
        I('v_xor_b32 v10, 16, v9')
        I('s_barrier')
        I(f'ds_write_b128 v9, {vr(OR,4)} offset:{LDS_X}', tag='hw'); I(f'ds_write_b128 v10, {vr(OR+4,4)} offset:{LDS_X}', tag='hw')
        I(f'ds_write_b128 v9, {vr(OI,4)} offset:{LDS_X+8192}', tag='hw'); I(f'ds_write_b128 v10, {vr(OI+4,4)} offset:{LDS_X+8192}', tag='hw')
        yield
        I(f'v_lshrrev_b32 v8, 2, v{V_LANE}'); I('v_and_b32 v9, 7, v8'); I(f'v_bfe_u32 v10, v{V_LANE}, 1, 1')
        I('v_xor_b32 v9, v9, v10'); I('v_lshlrev_b32 v9, 4, v9')
        yield
        I('v_lshlrev_b32 v8, 7, v8'); I('v_add_u32 v8, v8, v9')
        I(f'v_and_b32 v9, 1, v{V_LANE}'); I('v_lshlrev_b32 v9, 3, v9'); I('v_add_u32 v8, v8, v9')
        I(f's_lshl_b32 s{S_T0}, s{S_W}, 12'); I(f'v_add_u32 v8, s{S_T0}, v8')
        yield
        self.wait(lg=['hw']); I('s_barrier')
        FR=16
        for nb in range(4):
            I(f'v_xor_b32 v9, {nb<<5}, v8'); I('v_xor_b32 v10, 64, v9')
            I(f'ds_read_b64_tr_b16 {vr(FR+4*nb,2)}, v9 offset:{LDS_X}', tag=('hp',nb))
            I(f'ds_read_b64_tr_b16 {vr(FR+4*nb+2,2)}, v10 offset:{LDS_X+2048}', tag=('hp',nb))
        I(f's_mul_i32 s{S_T0}, s{S_C}, {28*4096}'); I(f's_lshl_b32 s{S_T1}, s{S_G}, 14'); I(f's_add_u32 s{S_T0}, s{S_T0}, s{S_T1}')
        I(f's_lshl_b32 s{S_T1}, s{S_W}, 12'); I(f's_add_u32 s{S_T0}, s{S_T0}, s{S_T1}'); I(f's_add_u32 s94, s{S_T0}, {WS_HP}')
        yield
        for nb in range(4):
            self.wait(lg=[('hp',nb)])
            I(f'buffer_store_dwordx4 {vr(FR+4*nb,4)}, v{V_L16}, {srd(SRD_WS)}, s94 offen offset:{nb*1024} sc1', tag='stH')
            yield

    def flag_set(self, sa, mul, sb, base):
        I=self.I
        L=self.newlabel('flag')
        I(f's_cmp_lg_u32 s{S_W}, 0'); I(f's_cbranch_scc1 {L}')
        snap=self.snapshot()
        I(f's_mul_i32 s{S_T0}, s{sa}, {mul}'); I(f's_add_u32 s{S_T0}, s{S_T0}, s{sb}'); I(f's_lshl_b32 s{S_T0}, s{S_T0}, 6')
        I(f's_add_u32 s{S_T0}, s{S_T0}, {base}')
        I('v_mov_b32 v8, 0'); I('v_mov_b32 v9, 1')
        self.exec_set(1,0)
        I(f'buffer_store_dword v9, v8, {srd(SRD_WS)}, s{S_T0} offen sc1')
        self.exec_full()
        self.label(L); self.merge(snap)

    def g_bias_load(self):
        I=self.I
        I(f'v_lshrrev_b32 v8, 4, v{V_LANE}'); I('v_lshlrev_b32 v8, 3, v8')
        I(f's_lshl_b32 s{S_T0}, s{S_FT}, 7'); I(f's_lshl_b32 s{S_T1}, s{S_WH}, 6'); I(f's_add_u32 s{S_T0}, s{S_T0}, s{S_T1}')
        I(f'v_add_u32 v8, s{S_T0}, v8')
        I(f'global_load_dwordx2 v[32:33], v8, {sp(P_B1)}', tag='b1')
        I(f'global_load_dwordx2 v[34:35], v8, {sp(P_B1)} offset:32', tag='b1')

    def g_epilogue(self):
        I=self.I
        self.auto=self.opt.gepip
        self.reduce(V_RING)
        self.wait(vm=['b1'])
        for x in range(2):
            for h in range(2):
                I(f'v_lshlrev_b32 v{16+4*x+2*h}, 16, v{32+2*x+h}'); I(f'v_and_b32 v{17+4*x+2*h}, s{S_MASK}, v{32+2*x+h}')
        C1=-2.0*0.7978845608028654*1.4426950408889634
        C3=C1*0.044715
        import struct
        f2h=lambda f:'0x%08x'%struct.unpack('<I',struct.pack('<f',f))[0]
        I(f's_mov_b32 s{S_T2}, {f2h(C1)}'); I(f's_mov_b32 s{S_T3}, {f2h(C3)}')
        I(f'v_mov_b32 v31, s{S_T2}')
        U=[]
        for x in range(2):
            for y in range(2):
                for r in range(4):
                    U.append((V_ACC+16*x+4*y+r, 16+4*x+r))
        TT=V_RING
        for n,(u,b) in enumerate(U): I(f'v_add_f32 v{u}, v{u}, v{b}')
        for n,(u,b) in enumerate(U): I(f'v_mul_f32 v{TT+n}, v{u}, v{u}')
        for n,(u,b) in enumerate(U): I(f'v_fma_f32 v{TT+n}, v{TT+n}, s{S_T3}, v31')
        for n,(u,b) in enumerate(U): I(f'v_mul_f32 v{TT+n}, v{TT+n}, v{u}')
        for n,(u,b) in enumerate(U): I(f'v_exp_f32 v{TT+n}, v{TT+n}')
        for n,(u,b) in enumerate(U): I(f'v_add_f32 v{TT+n}, 1.0, v{TT+n}')
        for n,(u,b) in enumerate(U): I(f'v_rcp_f32 v{TT+n}, v{TT+n}')
        for n,(u,b) in enumerate(U): I(f'v_mul_f32 v{u}, v{u}, v{TT+n}')
        F=V_RING+16
        for y in range(2):
            for x in range(2):
                a=V_ACC+16*x+4*y
                I(f'v_cvt_pk_bf16_f32 v{F+4*y+2*x}, v{a}, v{a+1}'); I(f'v_cvt_pk_bf16_f32 v{F+4*y+2*x+1}, v{a+2}, v{a+3}')
        I(f's_mul_i32 s{S_T0}, s{S_DT1}, {56*4096}'); I(f's_lshl_b32 s{S_T1}, s{S_FT}, 13'); I(f's_add_u32 s{S_T0}, s{S_T0}, s{S_T1}')
        I(f's_lshl_b32 s{S_T1}, s{S_WH}, 12'); I(f's_add_u32 s{S_T0}, s{S_T0}, s{S_T1}')
        I(f's_lshl_b32 s{S_T1}, s{S_WL}, 11'); I(f's_add_u32 s{S_T0}, s{S_T0}, s{S_T1}'); I(f's_add_u32 s{S_T0}, s{S_T0}, {WS_GT}')
        for y in range(2):
            I(f'buffer_store_dwordx4 {vr(F+4*y,4)}, v{V_L16}, {srd(SRD_WS)}, s{S_T0} offen offset:{y*1024} sc1', tag='stG')
        self.auto=0
        self.e_loads()
        self.p2_flag_addr(); self.p2_bases()
        I(f'global_load_dword v54, v12, {sp(P_WS)} sc1', tag='fc')
        for n in range(self.opt.gwait): self.tick()
        self.wait(vm=['stG']); I('s_barrier')
        self.flag_set(S_DT1,28,S_FT,WS_FG)

    def w2_setup(self):
        I=self.I
        self.make_srd(SRD_W, P_W2, 1792*4096)
        self.ring_setup(4096, S_WL)
        I(f's_mul_i32 s{S_WBEG}, s{S_W}, {448*4096}'); I(f's_lshl_b32 s{S_T0}, s{S_C}, 7'); I(f's_add_u32 s{S_WBEG}, s{S_WBEG}, s{S_T0}')
        I(f's_mov_b32 s{S_WO}, s{S_WBEG}')
        self.ring_init('w2',14,4096,range(6))

    def rot_g(self, dst):
        I=self.I
        I(f's_mul_i32 s{dst}, s86, 37'); I(f's_lshr_b32 s{dst}, s{dst}, 8')
        I(f's_mul_i32 s{dst}, s{dst}, {7*self.opt.rot2}'); I(f's_lshr_b32 s{dst}, s{dst}, 1')
    def cpack(self):
        I=self.I
        L=self.newlabel('nocp')
        I(f's_cmp_ge_u32 s{S_E}, 28'); I(f's_cbranch_scc1 {L}')
        I(f's_mov_b32 s{SRD_1+2}, {448*896}'); I(f's_mov_b32 s{SRD_1+3}, 0x20000')
        I(f's_bitcmp1_b32 s{S_E}, 1')
        I(f's_cselect_b32 s{SRD_1}, s{P_CIM}, s{P_CRE}'); I(f's_cselect_b32 s{SRD_1+1}, s{P_CIM+1}, s{P_CRE+1}')
        I(f'v_and_b32 v9, 15, v{V_LANE}'); I('v_mul_u32_u24 v9, 896, v9'); I(f'v_lshrrev_b32 v10, 4, v{V_LANE}')
        I('v_lshlrev_b32 v10, 4, v10'); I('v_add_u32 v10, v9, v10')
        I(f's_lshr_b32 s{S_T0}, s{S_E}, 2'); I(f's_lshl_b32 s{S_T0}, s{S_T0}, 7')
        I(f's_and_b32 s{S_T1}, s{S_E}, 1'); I(f's_lshl_b32 s{S_T1}, s{S_T1}, 6'); I(f's_add_u32 s{S_T0}, s{S_T0}, s{S_T1}')
        I(f's_mul_i32 s{S_T1}, s{S_W}, {16*896}'); I(f's_add_u32 s{S_T0}, s{S_T0}, s{S_T1}')
        for dt in range(7):
            I(f'buffer_load_dwordx4 {vr(56+4*dt,4)}, v10, {srd(SRD_1)}, s{S_T0} offen', tag=('cp',dt))
            if dt<6: I(f's_add_u32 s{S_T0}, s{S_T0}, {64*896}')
        I(f's_lshl_b32 s{S_T0}, s{S_E}, 12'); I(f's_lshl_b32 s{S_T1}, s{S_W}, 10'); I(f's_add_u32 s{S_T0}, s{S_T0}, s{S_T1}')
        I(f's_add_u32 s{S_T0}, s{S_T0}, {WS_CP}')
        for dt in range(7):
            self.wait(vm=[('cp',dt)])
            I(f'buffer_store_dwordx4 {vr(56+4*dt,4)}, v{V_L16}, {srd(SRD_WS)}, s{S_T0} offen sc1', tag='stC')
            if dt<6: I(f's_add_u32 s{S_T0}, s{S_T0}, {28*4096}')
        self.label(L)
    def cpack_flag(self):
        I=self.I
        L=self.newlabel('nocf')
        Lp=self.newlabel('w0poll')
        self.wait(vm='all')
        I(f's_cmp_lg_u32 s{S_W}, 0'); I(f's_cbranch_scc1 {Lp}')
        I(f'v_and_b32 v8, 3, v{V_LANE}'); I('v_lshlrev_b32 v8, 6, v8')
        self.poll('e0e', 8, P_DBG, 56)
        self.label(Lp)
        I('s_barrier')
        I(f's_cmp_ge_u32 s{S_E}, 28'); I(f's_cbranch_scc1 {L}')
        I(f's_mov_b32 s{S_T1}, 0')
        self.flag_set(S_T1,1,S_E,WS_FC)
        self.label(L)

    def p2_resid_loads(self):
        I=self.I
        self.make_srd(SRD_OUT, P_OUT, 2048*1792)
        I(f'v_and_b32 v7, 15, v{V_LANE}'); I(f'v_lshrrev_b32 v8, 4, v{V_LANE}')
        I('v_mul_u32_u24 v9, 896, v7'); I('v_lshlrev_b32 v10, 3, v8'); I('v_add_u32 v9, v9, v10')
        I(f's_lshl_b32 s{S_T0}, s{S_C}, 6'); I(f's_lshl_b32 s{S_T1}, s{S_WL}, 5'); I(f's_add_u32 s{S_T0}, s{S_T0}, s{S_T1}')
        I(f's_lshl_b32 s{S_T1}, s{S_G}, 6'); I(f's_lshl_b32 s{S_T2}, s{S_WH}, 5'); I(f's_add_u32 s{S_T1}, s{S_T1}, s{S_T2}')
        for y in range(2):
            for x in range(2):
                I(f's_add_u32 s{S_T2}, s{S_T0}, {16*y}'); I(f's_mul_i32 s{S_T2}, s{S_T2}, 896')
                I(f's_add_u32 s{S_T3}, s{S_T1}, {16*x}'); I(f's_lshl_b32 s{S_T3}, s{S_T3}, 1'); I(f's_add_u32 s{S_T2}, s{S_T2}, s{S_T3}')
                I(f'buffer_load_dwordx2 {vr(16+4*y+2*x,2)}, v9, {srd(SRD_X)}, s{S_T2} offen', tag='res')
        I('v_lshlrev_b32 v9, 3, v7')
        for y in range(2):
            I(f's_add_u32 s{S_T2}, s{S_T0}, {16*y}'); I(f's_lshl_b32 s{S_T2}, s{S_T2}, 3'); I(f's_add_u32 s{S_T2}, s{S_T2}, {WS_STAT}')
            I(f'buffer_load_dwordx2 {vr(24+2*y,2)}, v9, {srd(SRD_WS)}, s{S_T2} offen sc1', tag='res')
        I(f's_lshl_b32 s{S_T2}, s{S_T1}, 1'); I(f'v_add_u32 v9, s{S_T2}, v10')
        I(f'global_load_dwordx2 v[28:29], v9, {sp(P_DSK)}', tag='res')
        I(f'global_load_dwordx2 v[30:31], v9, {sp(P_DSK)} offset:32', tag='res')
        I(f'v_add_u32 v9, s{S_T0}, v7'); I('v_lshlrev_b32 v9, 1, v9')
        I(f'global_load_ushort v10, v9, {sp(P_B2)}', tag='res')
        I(f'global_load_ushort v38, v9, {sp(P_B2)} offset:32', tag='res')
    def resid_compute(self):
        I=self.I
        self.wait(vm=['res'])
        I('v_lshlrev_b32 v10, 16, v10'); I('v_lshlrev_b32 v38, 16, v38')
        yield
        for x in range(2):
            for h in range(2):
                I(f'v_lshlrev_b32 v{32+2*h}, 16, v{28+2*x+h}'); I(f'v_and_b32 v{33+2*h}, s{S_MASK}, v{28+2*x+h}')
            yield
            for y in range(2):
                xs=16+4*y+2*x; st=24+2*y; b2=10 if y==0 else 38
                for h in range(2):
                    r=240+8*y+4*x+2*h
                    I(f'v_lshlrev_b32 v{r}, 16, v{xs+h}'); I(f'v_and_b32 v{r+1}, s{S_MASK}, v{xs+h}')
                    I(f'v_pk_add_f32 v[36:37], v[{r}:{r+1}], v[{st}:{st+1}] op_sel_hi:[1,0] neg_lo:[0,1] neg_hi:[0,1]')
                    yield
                    I(f'v_pk_mul_f32 v[36:37], v[36:37], v[{st}:{st+1}] op_sel:[0,1] op_sel_hi:[1,1]')
                    I(f'v_pk_add_f32 v[{r}:{r+1}], v[{r}:{r+1}], v[{b2}:{b2+1}] op_sel_hi:[1,0]')
                    I(f'v_pk_fma_f32 v[{r}:{r+1}], v[36:37], v[{32+2*h}:{33+2*h}], v[{r}:{r+1}]')
                    yield

    CREG=[['v16','v20','v24','v28'],['v32','v36','v40','v44'],['v48','v52','v216','v220'],['v224','v228','v232','v236'],
          ['a0','a4','a8','a12'],['a224','a228','a232','a236'],['a240','a244','a248','a252']]
    def creg(self,i,x):
        r=self.CREG[i][x]; n=int(r[1:]); return f'{r[0]}[{n}:{n+3}]'
    def p2_bases(self):
        I=self.I
        I(f's_mul_i32 s90, s{S_G}, {56*4096}'); I(f's_mul_i32 s{S_T0}, s{S_W}, {14*4096}'); I(f's_add_u32 s90, s90, s{S_T0}')
        I(f's_add_u32 s90, s90, {WS_GT}')
        I(f's_lshl_b32 s{S_T1}, s{S_WH}, 11'); I(f's_xor_b32 s{S_T2}, s{S_T1}, 2048')
        I(f's_add_u32 s92, s90, s{S_T2}'); I(f's_add_u32 s90, s90, s{S_T1}')
        I(f's_mul_i32 s22, s{S_G}, {28*4096}'); I(f's_mul_i32 s{S_T0}, s{S_W}, {7*4096}'); I(f's_add_u32 s22, s22, s{S_T0}')
        I(f's_add_u32 s22, s22, {WS_CP}')
        I(f's_add_u32 s23, s22, s{S_T2}'); I(f's_add_u32 s22, s22, s{S_T1}')
        I(f's_mul_i32 s38, s{S_C}, {28*4096}'); I(f's_add_u32 s38, s38, s{S_T0}'); I(f's_add_u32 s38, s38, {WS_HP}')
        I(f's_lshl_b32 s{S_T1}, s{S_WL}, 11'); I(f's_xor_b32 s{S_T2}, s{S_T1}, 2048')
        I(f's_add_u32 s39, s38, s{S_T2}'); I(f's_add_u32 s38, s38, s{S_T1}')
    def q_c(self, steps):
        I=self.I
        def one(i,x):
            def f():
                b=22 if x<2 else 23
                I(f's_add_u32 s91, s{b}, {i*4096}')
                I(f'buffer_load_dwordx4 {self.creg(i,x)}, v{V_L16}, {srd(SRD_WS)}, s91 offen offset:{(x&1)*1024} sc1', tag=('c',i,x))
            return f
        for i in steps:
            for x in range(4): self.q.append(one(i,x))
    def cflag_check(self):
        I=self.I
        L=self.newlabel('cf'); D=self.newlabel('cfd')
        self.wait(vm=['fc'])
        self.exec_set('0x3f80','0')
        I('v_cmp_gt_u32 vcc, 1, v54'); I(f's_cbranch_vccz {D}')
        snap=self.snapshot()
        I(f's_mov_b32 s{S_BOUND}, 0x200000')
        self.label(L)
        I(f'global_load_dword v54, v12, {sp(P_WS)} sc1'); I('s_waitcnt vmcnt(0)')
        I('v_cmp_gt_u32 vcc, 1, v54'); I(f's_cbranch_vccz {D}')
        I('s_sleep 4'); I(f's_sub_u32 s{S_BOUND}, s{S_BOUND}, 1'); I(f's_cbranch_scc0 {L}')
        self.label(D); self.restore(snap)
        self.exec_full()
    def flag_wait(self, vaddr, vdst, tag):
        I=self.I
        L=self.newlabel('fw'); D=self.newlabel('fwd')
        self.wait(vm=[tag])
        I(f'v_cmp_gt_u32 vcc, 1, v{vdst}'); I(f's_cbranch_vccz {D}')
        snap=self.snapshot()
        I(f's_mov_b32 s{S_BOUND}, 0x200000')
        self.label(L)
        I(f'global_load_dword v{vdst}, v{vaddr}, {sp(P_WS)} sc1'); I('s_waitcnt vmcnt(0)')
        I(f'v_cmp_gt_u32 vcc, 1, v{vdst}'); I(f's_cbranch_vccz {D}')
        I('s_sleep 4'); I(f's_sub_u32 s{S_BOUND}, s{S_BOUND}, 1'); I(f's_cbranch_scc0 {L}')
        self.label(D); self.restore(snap)
    def p2_main(self):
        I=self.I
        NS=6
        g0=self.opt.sfirst
        steps=[('g',k) for k in range(g0)]
        gi,si=g0,0
        while gi<14 or si<7:
            if si<7: steps.append(('s',si)); si+=1
            if gi<14: steps.append(('g',gi)); gi+=1
        groups=[('g',i) if k=='g' else ('h',i) for k,i in steps]
        gidx={g:n for n,g in enumerate(groups)}
        reg=lambda g: V_RING+16*(gidx[g]%NS)
        pend=[(g,x) for g in groups for x in range(4)]
        done=set(); state={}
        def can(g,x):
            n=gidx[g]-NS
            return n<0 or (groups[n],x) in done
        def issue(nmax):
            n=0
            while n<nmax and pend and can(*pend[0]):
                g,x=pend[0]
                if g[0]=='h' and not state.get('hflag'):
                    self.flag_wait(14,11,'fh'); state['hflag']=True
                pend.pop(0)
                b0,b1,nst={'g':(90,92,14),'h':(38,39,7)}[g[0]]
                sx=b0 if x<2 else b1
                I(f'buffer_load_dwordx4 {vr(reg(g)+4*x,4)}, v{V_L16}, {srd(SRD_WS)}, s{sx} offen offset:{(x&1)*1024} sc1', tag=(g,x))
                if (x&1) and g[1]<nst-1: I(f's_add_u32 s{sx}, s{sx}, 4096')
                n+=1
        issue(4*NS)
        first=True
        self.q_c([4])
        for pos,(kind,i) in enumerate(steps):
            if kind=='g' and i==3: I(f'global_load_dword v11, v14, {sp(P_WS)} sc1', tag='fh')
            if kind=='s':
                H=('h',i)
                for x in range(4):
                    self.wait(vm=[('c',i,x)]+([(H,y) for y in range(4)] if x==0 else []))
                    if x==0: self.stamp(f'p2.s{i}',fine=2)
                    for y in range(4):
                        d=V_ACC+16*x+4*y
                        I(f'v_mfma_f32_16x16x32_bf16 {vr(d,4)}, {self.creg(i,x)}, {vr(reg(H)+4*y,4)}, {vr(d,4)}')
                    if x<3: issue(1)
                for y in range(4): done.add((H,y))
                issue(2)
            else:
                A=('g',i)
                for x in range(4):
                    self.wait(vm=[(A,x)])
                    if x==0: self.stamp(f'p2.g{i}',fine=2)
                    for y in range(4):
                        d=V_ACC+16*x+4*y
                        cin='0' if first else vr(d,4)
                        I(f'v_mfma_f32_16x16x32_bf16 {vr(d,4)}, {vr(reg(A)+4*x,4)}, {ar(16*i+4*y,4)}, {cin}')
                    done.add((A,x))
                    issue(1)
                    if i==1: self.q.pop(0)()
            first=False
        assert not pend

    def p2_epilogue(self):
        I=self.I
        self.reduce(V_RING)
        for y in range(2):
            for x in range(2):
                a=V_ACC+16*x+4*y; r=240+8*y+4*x
                for h in range(2):
                    I(f'v_pk_add_f32 v[{a+2*h}:{a+2*h+1}], v[{a+2*h}:{a+2*h+1}], v[{r+2*h}:{r+2*h+1}]')
        I(f'v_and_b32 v7, 15, v{V_LANE}'); I(f'v_lshrrev_b32 v8, 4, v{V_LANE}')
        I('v_mul_u32_u24 v9, 1792, v7'); I('v_lshlrev_b32 v10, 4, v8'); I('v_add_u32 v9, v9, v10')
        I(f's_lshl_b32 s{S_T0}, s{S_C}, 6'); I(f's_lshl_b32 s{S_T1}, s{S_WL}, 5'); I(f's_add_u32 s{S_T0}, s{S_T0}, s{S_T1}')
        I(f's_lshl_b32 s{S_T1}, s{S_G}, 6'); I(f's_lshl_b32 s{S_T2}, s{S_WH}, 5'); I(f's_add_u32 s{S_T1}, s{S_T1}, s{S_T2}')
        for y in range(2):
            for x in range(2):
                I(f's_add_u32 s{S_T2}, s{S_T0}, {16*y}'); I(f's_mul_i32 s{S_T2}, s{S_T2}, 1792')
                I(f's_add_u32 s{S_T3}, s{S_T1}, {16*x}'); I(f's_lshl_b32 s{S_T3}, s{S_T3}, 2'); I(f's_add_u32 s{S_T2}, s{S_T2}, s{S_T3}')
                a=V_ACC+16*x+4*y
                I(f'buffer_store_dwordx4 {vr(a,4)}, v9, {srd(SRD_OUT)}, s{S_T2} offen {self.opt.outmod}')

    def write_stamps(self):
        if not self.opt.stamps: return
        I=self.I
        I('s_lshl_b32 s3, s2, 2'); I(f's_add_u32 s3, s3, s{S_W}'); I('s_lshl_b32 s3, s3, 8'); I(f's_add_u32 s3, s3, {WS_DBG}')
        I(f'v_lshlrev_b32 v9, 2, v{V_LANE}')
        I(f'buffer_store_dword v{self.vst}, v9, {srd(SRD_WS)}, s3 offen')
        if getattr(self.opt,'dbgwg',-1)>=0 and self.final_stamps:
            L=self.newlabel('dbgout')
            I(f's_cmp_lg_u32 s2, {self.opt.dbgwg}'); I(f's_cbranch_scc1 {L}')
            I(f's_cmp_lg_u32 s{S_W}, 0'); I(f's_cbranch_scc1 {L}')
            I(f'v_readlane_b32 s3, v{self.vst}, 0'); I('s_nop 4')
            I(f'v_subrev_u32 v8, s3, v{self.vst}')
            I(f'v_add_u32 v9, {self.opt.dbgoff}, v{V_LANE}'); I('v_lshlrev_b32 v9, 2, v9')
            I('ds_bpermute_b32 v8, v9, v8'); I('s_waitcnt lgkmcnt(0)')
            I(f'v_lshlrev_b32 v9, 2, v{V_LANE}')
            self.exec_set('0xfffe','0')
            I(f'global_store_dword v9, v8, {sp(P_DBG)}')
            self.exec_full()
            self.label(L)
    def build(self):
        I=self.I; o=self.opt
        if o.stamps: I('v_mov_b32 v55, 0')
        self.prologue()
        self.touches_pre()
        wt=self.opt.w1touch
        if wt=='A' or self.opt.alsoA: self.touch_w1()
        if self.opt.t3start:
            Lt=self.newlabel('t3s')
            I(f's_cmp_lg_u32 s{S_W}, 3'); I(f's_cbranch_scc1 {Lt}')
            snap=self.snapshot()
            self.touch_w1_wg()
            self.label(Lt); self.merge(snap)
        Lcont=self.newlabel('cont')
        I('s_cmp_eq_u32 s74, 1'); I(f's_cbranch_scc1 {Lcont}')
        snap=self.snapshot()
        if wt=='P': self.touch_pf(1)
        self.stamp('pf1')
        self.cpack()
        self.stamp('cp')
        if not self.opt.now2: self.touch_pf(2)
        self.cpack_flag()
        self.stamp('pf2')
        self.write_stamps()
        I('s_endpgm')
        self.label(Lcont); self.restore(snap)
        self.dma_setup()
        if wt=='E': self.touch_w1(setup_only=True)
        self.w1_setup()
        if self.opt.bfirst: self.q_b(); self.q_x([0,1,2])
        else: self.q_x([0,1,2]); self.q_b()
        for n in range(self.opt.pre): self.tick()
        self.stamp('issued')
        self.auto=self.opt.period if self.opt.ln8tick else 0
        self.ln8()
        self.auto=0
        self.ln8_extra()
        self.stamp('ln8 stored')
        if wt=='W':
            I(f's_mov_b32 s{SRD_OUT+2}, {448*896}'); I(f's_mov_b32 s{SRD_OUT+3}, 0x20000')
            L3=self.newlabel('w3'); Lj3=self.newlabel('w3j')
            I(f's_cmp_eq_u32 s{S_W}, {7 if self.opt.own3 else 3}'); I(f's_cbranch_scc1 {L3}')
            snap=self.snapshot(); qsave=list(self.q); nb0=self.nb
            xs,bs=self.q_w3()
            own=self.q; self.q=[]; self.q_x([3]); xa3=self.q
            self.q=xa3+xs+own+bs if not self.opt.own3 else xa3+own
            for n in range(self.opt.arrlead): self.tick()
            self.arrive0()
            self.auto=self.opt.period
            self.x_addr(); self.lam_consts()
            self.auto=0
            self.drain_q()
            self.wait(vm=['x64','bdma'])
            I(f's_branch {Lj3}')
            snapA=self.snapshot()
            self.label(L3); self.restore(snap)
            self.arrive0()
            self.x_addr(); self.lam_consts()
            self.label(Lj3); self.merge(snapA)
            self.stamp('lam')
            I('s_barrier')
            self.stamp('arrived')
            self.b13_loads()
            self.do_bread()
            self.stamp('bread',fine=True)
            self.auto=self.opt.ln64p
            self.ln64()
            self.auto=0
        else:
            if self.opt.bfirst: self.q_x([3])
            else:
                rest=self.q; self.q=[]; self.q_x([3]); self.q+=rest
            if wt=='E':
                def tw():
                    I(f'buffer_load_dword v12, v238, {srd(SRD_W)}, s94 offen', tag='touch')
                self.q.append(tw)
            self.auto=self.opt.period
            self.x_addr()
            self.lam_consts()
            self.auto=0
            self.stamp('lam')
            self.arrive0()
            self.stamp('arrived')
            if wt=='F':
                self.drain_q()
                self.touch_w1()
                self.stamp('drained')
                self.do_bread()
                self.auto=self.opt.ln64p
                self.ln64()
                self.auto=0
            else:
                self.auto=self.opt.period
                self.ln64()
                self.auto=0
                self.drain_q()
                if not self.bread: self.do_bread()
        self.wait(lg='all', vm=['b13']); I('s_barrier')
        self.stamp('ln64')
        I(f'v_and_b32 v35, 3, v{V_LANE}'); I('v_lshlrev_b32 v35, 6, v35')
        I(f'global_load_dword v34, v35, {sp(P_DBG)} sc1', tag='e0c')
        self.auto=self.opt.period
        self.bu_gemm()
        self.stamp('bu',fine=True)
        self.scan1()
        self.e_addr()
        self.auto=0
        self.stamp('scan1')
        self.wait_e0()
        self.stamp('e0')
        Lnog=self.newlabel('nog1'); Lj=self.newlabel('g1join')
        I(f's_cmp_eq_u32 s{S_HASG1}, 0'); I(f's_cbranch_scc1 {Lnog}')
        snap=self.snapshot()
        R1=dict(self.R); R1['free']=list(self.R['free']); R1['slot']=dict(self.R['slot'])
        self.g_bias_load()
        self.gemm1()
        self.stamp('gemm1')
        self.g_epilogue()
        self.stamp('gepi')
        I(f's_branch {Lj}')
        snapA=self.snapshot()
        RA={k:self.R[k] for k in ('iss','rd','rel','piece')}; RA['free']=list(self.R['free']); RA['slot']=dict(self.R['slot'])
        self.label(Lnog); self.restore(snap); self.R=R1
        self.ring_finish(); self.wait(lg='all')
        self.w2_setup()
        self.replay_ring(RA)
        self.e_loads()
        self.p2_flag_addr(); self.p2_bases()
        I(f'global_load_dword v54, v12, {sp(P_WS)} sc1', tag='fc')
        self.label(Lj); self.merge(snapA)
        self.cflag_check()
        self.q_c([5,6])
        self.auto=self.opt.finp
        for _ in self.finalize(): pass
        self.auto=0
        self.stamp('final')
        if o.stamps: I('v_mov_b32 v15, v55'); self.vst=15
        self.drain_q()
        self.p2_resid_loads()
        for n in range(self.opt.rwait):
            if self.R is not None and not self.ring_tick(): self.ring_finish()
        self.auto=self.opt.finp
        for _ in self.resid_compute(): pass
        self.auto=0
        self.wait(vm=['stH']); I('s_barrier')
        self.flag_set(S_C,7,S_G,WS_FH)
        self.q_c([0,1,2,3])
        while self.q or self.R is not None:
            if self.q:
                self.tick()
                if len(self.q)==self.opt.fglead: I(f'global_load_dword v11, v12, {sp(P_WS)} sc1', tag='fg')
            if self.R is not None:
                if not self.ring_tick(): self.ring_finish()
        self.wait(lg='all')
        self.stamp('w2 in regs')
        self.flag_wait(12,11,'fg')
        self.stamp('flagG')
        self.p2_main()
        self.stamp('p2')
        self.p2_epilogue()
        self.stamp('end'); self.cstamp('c1')
        self.final_stamps=True
        self.write_stamps()
        self.label('L_exit')
        I('s_endpgm')
        self.label('L_code_end')

def header(lds):
    return f"""; Fused S5 SSM + MLP-Mixer token MLP, one persistent launch (256 workgroups, one per CU).
; @launch grid=(256,1,1) block=(256,1,1) lds={lds}
.amdgcn_target "amdgcn-amd-amdhsa--gfx950"
.text
.globl {KN}
.p2align 8
.type {KN},@function
{KN}:
"""
def footer():
    return f"""
.section .rodata,"a"
.p2align 6
.amdhsa_kernel {KN}
  .amdhsa_next_free_vgpr 512
  .amdhsa_next_free_sgpr 102
  .amdhsa_accum_offset 256
  .amdhsa_group_segment_fixed_size 0
  .amdhsa_kernarg_size 136
  .amdhsa_user_sgpr_count 2
  .amdhsa_user_sgpr_kernarg_segment_ptr 1
  .amdhsa_system_sgpr_workgroup_id_x 1
  .amdhsa_float_denorm_mode_32 3
.end_amdhsa_kernel
"""
if __name__=='__main__':
    ap=argparse.ArgumentParser()
    ap.add_argument('-o',default='k.s'); ap.add_argument('--stamps',action='store_true'); ap.add_argument('--stop',default=''); ap.add_argument('--fine',type=int,default=0); ap.add_argument('--period',type=int,default=48); ap.add_argument('--outmod',default=''); ap.add_argument('--dbgwg',type=int,default=-1); ap.add_argument('--dbgoff',type=int,default=0); ap.add_argument('--arrlead',type=int,default=10); ap.add_argument('--t3start',type=int,default=0); ap.add_argument('--notouch3',type=int,default=0); ap.add_argument('--own3',type=int,default=0); ap.add_argument('--alsoA',type=int,default=0); ap.add_argument('--now2',type=int,default=0); ap.add_argument('--gepip',type=int,default=0); ap.add_argument('--finp',type=int,default=36); ap.add_argument('--sfirst',type=int,default=10); ap.add_argument('--rwait',type=int,default=8); ap.add_argument('--fglead',type=int,default=6); ap.add_argument('--ln64p',type=int,default=48); ap.add_argument('--bfirst',type=int,default=0); ap.add_argument('--w2late',type=int,default=1); ap.add_argument('--rot1',type=int,default=4); ap.add_argument('--rot2',type=int,default=1); ap.add_argument('--rot3',type=int,default=1); ap.add_argument('--ln8tick',type=int,default=0); ap.add_argument('--bdelay',type=int,default=2); ap.add_argument('--w1touch',default='A'); ap.add_argument('--fin0',type=int,default=4); ap.add_argument('--finrate',type=int,default=2); ap.add_argument('--p2rate',type=int,default=3); ap.add_argument('--pre',type=int,default=1); ap.add_argument('--pre1',type=int,default=8); ap.add_argument('--gwait',type=int,default=6); ap.add_argument('--ht_touch',type=int,default=0); ap.add_argument('--g_touch',type=int,default=0)
    o=ap.parse_args()
    k=K(o); k.build()
    t,n=k.text()
    open(o.o,'w').write(header(LDS_TOTAL)+t+footer())
    print('wrote',o.o,'lines',t.count('\n'),'nop states inserted',n)
    if o.stamps: open(o.o+'.names','w').write(','.join(k.stampnames)); print(k.stampnames)
```

```python
import sys, os, argparse
from asmgen import Gen

KN = "parallel_sum__ssm_conv_s5__mixer_token_mlp__prompt_kernel"

WS_HT    = 0x000000
WS_STAT  = 0x1C0000
WS_E     = 0x1C4000
WS_FH    = 0x1E0000
WS_FG    = 0x1E4000
WS_FC    = 0x1E8000
WS_CP    = 0x780000
WS_GT    = 0x200000
WS_HP    = 0x400000
WS_DBG   = 0x900000

LDS_X  = 0
LDS_Y  = 57344
YW     = 26624
SLOT_OFF = [0, 4096, 8192, 12288, 16384, 20480]
LDS_LN8 = LDS_X + 57344 - 7680
LDS_TOTAL = LDS_Y + 4*YW

P_X, P_LRE, P_LIM, P_BRE, P_BIM, P_CRE, P_CIM, P_LDT = 4,6,8,10,12,14,16,18
P_DSK = 20
P_W1, P_B1, P_W2, P_B2 = 24,26,28,30
P_OUT, P_DBG, P_WS = 32,34,36
SRD_X, SRD_WS, SRD_1, SRD_2, SRD_W, SRD_OUT = 40,44,48,52,56,60
S_W, S_WH, S_WL, S_C, S_G, S_DT1, S_FT, S_HASG1 = 64,65,66,67,68,69,70,71
S_MASK, S_ONES = 72, 73
S_A, S_B, S_WO, S_T0, S_T1, S_T2, S_T3, S_BOUND = 76,77,78,79,80,81,82,83
S_YB = 84
S_WBEG, S_WEND = 96, 97
S_KO, S_KEND = 100, 101
S_FI = 3
S_E = 85
def sp(n): return f's[{n}:{n+1}]'
def srd(n): return f's[{n}:{n+3}]'
def vr(a,n): return f'v[{a}:{a+n-1}]' if n>1 else f'v{a}'
def ar(a,n): return f'a[{a}:{a+n-1}]' if n>1 else f'a{a}'

V_LANE, V_L16 = 0, 1
V_TR = 2
V_DMA = [6,13]
V_T = 16
V_LR,V_LI,V_K1,V_K2,V_SR,V_SI,V_PR,V_PI,V_L64R,V_L64I,V_L512R,V_L512I = range(40,52)
V_IN = 52
V_X64 = 56
V_BF = 112
V_RAW = 224
V_ACC = 56
V_RING = 120
V_EL = 16
V_EOF = 216

class K(Gen):
    def __init__(self, opt):
        super().__init__(); self.opt=opt; self.nstamp=0
        self.final_stamps=False; self.vst=55; self.nx=0; self.nb=0; self.bread=False; self.allow_bread=False; self.bdelay=opt.bdelay; self.q=[]; self.R=None; self.auto=0; self.acc=0; self.in_tick=False; self.full=True
    def I(self,t,tag=None):
        super().I(t,tag)
        if self.in_tick: return
        mn=t.split()[0]
        if mn.startswith(('buffer_','global_')): self.acc=0; return
        if not self.auto: return
        if mn.startswith('v_mfma'): self.acc+=16
        elif mn.startswith(('v_exp','v_rcp','v_sqrt','v_sin','v_cos','v_log')): self.acc+=8
        elif mn.startswith(('v_','ds_')): self.acc+=4
        else: return
        if self.acc>=self.auto and self.full and not mn.startswith(('v_cmp','s_cmp','s_bitcmp')):
            self.tick()
    def tick(self):
        self.in_tick=True; self.acc=0
        if not self.bread and self.allow_bread and self.nb>=34:
            if self.bdelay>0: self.bdelay-=1
            else:
                self.do_bread(); self.in_tick=False; return
        if self.q: self.q.pop(0)()
        elif self.R is not None: self.ring_tick()
        self.in_tick=False
    def do_bread(self):
        self.bread=True
        self.b_read()
        self.wait(lg=['brd'])
        self.ring_init('w1',16,3584,range(6))
    def drain_q(self):
        while self.q: self.tick()
    def stamp(self, name, fine=False):
        if not self.opt.stamps: return
        if fine and int(fine)>self.opt.fine: return
        i=self.nstamp; self.nstamp+=1
        assert i<64
        self.c(f'stamp {i}: {name}')
        self.wait(lg='all')
        self.I('s_memrealtime s[98:99]'); self.I('s_waitcnt lgkmcnt(0)'); self.smem=False
        self.I(f'v_writelane_b32 v{self.vst}, s98, {i}')
        self.stampnames=getattr(self,'stampnames',[])+[name]
    def cstamp(self, name):
        if not self.opt.stamps: return
        i=self.nstamp; self.nstamp+=1
        self.wait(lg='all')
        self.I('s_memtime s[98:99]'); self.I('s_waitcnt lgkmcnt(0)'); self.smem=False
        self.I(f'v_writelane_b32 v{self.vst}, s98, {i}')
        self.stampnames=getattr(self,'stampnames',[])+['#'+name]
    def rnd_bf16(self, v):
        self.I(f'v_cvt_pk_bf16_f32 v{v}, v{v}, v{v}')
        self.I(f'v_lshlrev_b32 v{v}, 16, v{v}')
    def make_srd(self, s, ptr, nbytes):
        self.I(f's_mov_b32 s{s}, s{ptr}'); self.I(f's_and_b32 s{s+1}, s{ptr+1}, 0xffff')
        self.I(f's_mov_b32 s{s+2}, {nbytes}'); self.I(f's_mov_b32 s{s+3}, 0x20000')
    def ln_stats(self, SUM, SSQ, R, C, T):
        I=self.I
        I(f'v_mul_f32 v{SUM}, 0x3b124925, v{SUM}')
        I(f'v_mul_f32 v{SSQ}, 0x3b124925, v{SSQ}')
        I(f'v_fma_f32 v{SSQ}, -v{SUM}, v{SUM}, v{SSQ}')
        I(f'v_max_f32 v{SSQ}, 0, v{SSQ}')
        I(f'v_cvt_pk_bf16_f32 v{SUM}, v{SUM}, v{SUM}')
        I(f'v_cvt_pk_bf16_f32 v{SSQ}, v{SSQ}, v{SSQ}')
        I(f'v_lshlrev_b32 v{SUM}, 16, v{SUM}')
        I(f'v_lshlrev_b32 v{SSQ}, 16, v{SSQ}')
        I(f'v_add_f32 v{SSQ}, 0x3727c5ac, v{SSQ}')
        self.rnd_bf16(SSQ)
        I(f'v_sqrt_f32 v{SSQ}, v{SSQ}')
        self.rnd_bf16(SSQ)
        I(f'v_rcp_f32 v{R}, v{SSQ}')
        I(f'v_mul_f32 v{C}, v{SUM}, v{R}')
        I(f'v_sub_f32 v{C}, 0, v{C}')
    def dot_sums(self, regs, accs):
        I=self.I
        for n,d in enumerate(regs):
            s,q = accs[2*(n&1)], accs[2*(n&1)+1]
            if n<2:
                I(f'v_dot2_f32_bf16 v{s}, v{d}, s{S_ONES}, 0')
                I(f'v_dot2_f32_bf16 v{q}, v{d}, v{d}, 0')
            else:
                I(f'v_dot2_f32_bf16 v{s}, v{d}, s{S_ONES}, v{s}')
                I(f'v_dot2_f32_bf16 v{q}, v{d}, v{d}, v{q}')
        I(f'v_add_f32 v{accs[0]}, v{accs[0]}, v{accs[2]}')
        I(f'v_add_f32 v{accs[1]}, v{accs[1]}, v{accs[3]}')
    def normalize(self, regs, R, C, tmps, hook=None):
        I=self.I
        n=len(tmps)
        for b in range(0,len(regs),n):
            grp=regs[b:b+n]
            for d,t in zip(grp,tmps):
                I(f'v_lshlrev_b32 v{t}, 16, v{d}')
                I(f'v_and_b32 v{t+1}, s{S_MASK}, v{d}')
            for d,t in zip(grp,tmps):
                I(f'v_pk_fma_f32 v[{t}:{t+1}], v[{t}:{t+1}], v[{R}:{R+1}], v[{C}:{C+1}] op_sel_hi:[1,0,0]')
            for d,t in zip(grp,tmps):
                I(f'v_cvt_pk_bf16_f32 v{d}, v{t}, v{t+1}')
            if hook: hook(b//n)
    def cmul(self, dr, di, xr, xi, yr, yi, t0, t1):
        I=self.I
        I(f'v_mul_f32 v{t0}, v{xi}, v{yi}')
        I(f'v_mul_f32 v{t1}, v{xi}, v{yr}')
        I(f'v_fma_f32 v{t0}, v{xr}, v{yr}, -v{t0}')
        I(f'v_fma_f32 v{di}, v{xr}, v{yi}, v{t1}')
        I(f'v_mov_b32 v{dr}, v{t0}')
    def cfma(self, dr, di, xr, xi, yr, yi, zr, zi, t0, t1):
        I=self.I
        I(f'v_fma_f32 v{t0}, v{xr}, v{yr}, v{zr}')
        I(f'v_fma_f32 v{t1}, v{xr}, v{yi}, v{zi}')
        I(f'v_fma_f32 v{t0}, -v{xi}, v{yi}, v{t0}')
        I(f'v_fma_f32 v{di}, v{xi}, v{yr}, v{t1}')
        I(f'v_mov_b32 v{dr}, v{t0}')
    def csq(self, dr, di, xr, xi, t0):
        I=self.I
        I(f'v_mul_f32 v{t0}, v{xi}, v{xi}')
        I(f'v_mul_f32 v{di}, v{xr}, v{xi}')
        I(f'v_fma_f32 v{dr}, v{xr}, v{xr}, -v{t0}')
        I(f'v_add_f32 v{di}, v{di}, v{di}')
    def allgather_q(self, v, g0, g1, g2, g3):
        I=self.I
        I(f'v_mov_b32 v{g0}, v{v}'); I(f'v_mov_b32 v{g1}, v{v}')
        I(f'v_permlane16_swap_b32 v{g0}, v{g1}')
        I(f'v_mov_b32 v{g2}, v{g0}'); I(f'v_mov_b32 v{g3}, v{g1}')
        I(f'v_permlane32_swap_b32 v{g0}, v{g2}')
        I(f'v_permlane32_swap_b32 v{g1}, v{g3}')
    def exec_full(self): self.I('s_mov_b64 exec, -1'); self.full=True
    def exec_set(self, lo, hi):
        self.full=False
        self.I(f's_mov_b32 exec_lo, {lo}'); self.I(f's_mov_b32 exec_hi, {hi}')
    def poll(self, name, voff, base, cmp_ge, nlanes_lo=None):
        I=self.I
        L=self.newlabel('poll'); D=self.newlabel('polld')
        I(f's_mov_b32 s{S_BOUND}, 0x200000')
        self.label(L)
        I(f'global_load_dword v7, v{voff}, {sp(base)} sc1')
        I('s_waitcnt vmcnt(0)'); self.vm={}
        I(f'v_cmp_gt_u32 vcc, {cmp_ge}, v7')
        I(f's_cbranch_vccz {D}')
        I('s_sleep 4')
        I(f's_sub_u32 s{S_BOUND}, s{S_BOUND}, 1')
        I(f's_cbranch_scc0 {L}')
        self.label(D)

    def ring_setup(self, pitch, xorsel):
        I=self.I
        I(f'v_lshrrev_b32 v7, 3, v{V_LANE}'); I(f'v_and_b32 v8, 7, v{V_LANE}')
        I('v_and_b32 v9, 6, v7'); I('v_xor_b32 v8, v8, v9'); I('v_lshlrev_b32 v8, 4, v8')
        I(f'v_mul_u32_u24 v7, {pitch}, v7'); I(f'v_add_u32 v{V_DMA[0]}, v7, v8')
        I(f'v_add_u32 v{V_DMA[1]}, {8*pitch-1024}, v{V_DMA[0]}')
        I(f'v_lshrrev_b32 v7, 2, v{V_LANE}'); I('v_and_b32 v8, 6, v7')
        I(f'v_bfe_u32 v9, v{V_LANE}, 1, 1'); I('v_xor_b32 v8, v8, v9'); I('v_lshlrev_b32 v8, 4, v8')
        I('v_lshlrev_b32 v7, 7, v7'); I('v_add_u32 v7, v7, v8')
        I(f'v_and_b32 v9, 1, v{V_LANE}'); I('v_lshlrev_b32 v9, 3, v9'); I('v_add_u32 v7, v7, v9')
        I(f's_lshl_b32 s{S_T0}, s{xorsel}, 6')
        I(f'v_xor_b32 v7, s{S_T0}, v7')
        I(f'v_add_u32 v{V_TR}, s{S_YB}, v7')
        for x in range(1,4):
            I(f'v_xor_b32 v{V_TR+x}, {x<<5}, v{V_TR}')
    def ring_init(self, name, nsteps, pitch, slots):
        self.R=dict(name=name,n=nsteps,pitch=pitch,free=list(slots),slot={},iss=0,rd=0,rel=0,piece=0)
    def ring_add(self, slots): self.R['free']+=list(slots)
    def ring_issue_piece(self):
        R=self.R; I=self.I
        k=R['iss']
        if k>=R['n']: return False
        j=R['piece']
        if j==0:
            if not R['free']: return False
            R['slot'][k]=R['free'].pop(0)
        if j%2==0:
            I(f's_add_u32 m0, s{S_YB}, {SLOT_OFF[R["slot"][k]]+j*1024}')
            if k or j: I(f's_add_u32 s{S_WO}, s{S_WO}, {16*R["pitch"]}')
            else: I('s_nop 0')
        I(f'buffer_load_dwordx4 v{V_DMA[j%2]}, {srd(SRD_W)}, s{S_WO} offen offset:{(j%2)*1024} lds', tag=(R['name'],k))
        R['piece']=(j+1)%4
        if R['piece']==0: R['iss']+=1
        return True
    def ring_issue(self):
        while self.ring_issue_piece(): pass
    def ring_read(self):
        R=self.R; I=self.I
        k=R['rd']
        if k>=R['n']: return False
        assert k<R['iss'], 'read before issue'
        off=SLOT_OFF[R['slot'][k]]
        self.wait(vm=[(R['name'],k)])
        for x in range(4):
            b=16*k+4*x
            I(f'ds_read_b64_tr_b16 {ar(b,2)}, v{V_TR+x} offset:{off}', tag=(R['name'],'r',k))
            I(f'ds_read_b64_tr_b16 {ar(b+2,2)}, v{V_TR+x} offset:{off+2048}', tag=(R['name'],'r',k))
        R['rd']+=1
        return True
    def ring_release(self):
        R=self.R
        k=R['rel']
        if k>=R['rd']: return False
        self.wait(lg=[(R['name'],'r',k)])
        R['free'].append(R['slot'][k]); R['rel']+=1
        self.ring_issue()
        return True
    def ring_tick(self):
        R=self.R
        if R['iss']<R['n']:
            if R['piece']==0 and not R['free']:
                if R['rel']>=R['rd']:
                    assert R['rd']<R.get('maxrd',99)
                    self.ring_read()
                k=R['rel']; self.wait(lg=[(R['name'],'r',k)]); R['free'].append(R['slot'][k]); R['rel']+=1
            self.ring_issue_piece()
            if R['piece']==3 and not R['free'] and R['rd']==R['rel'] and R['rd']<R['iss'] and R['rd']<R.get('maxrd',99):
                self.ring_read()
            return True
        if R['rd']<R['n'] and R['rd']<R.get('maxrd',99): return self.ring_read()
        return False
    def bg(self):
        return self.ring_tick()
    def replay_ring(self, RA):
        R=self.R
        while (R['iss'],R['piece'])<(RA['iss'],RA['piece']) or R['rd']<RA['rd']:
            if (R['iss'],R['piece'])<(RA['iss'],RA['piece']):
                before=R['rd']
                R['maxrd']=RA['rd']
                self.ring_tick()
            else:
                self.ring_read()
        while R['rel']<RA['rel']:
            k=R['rel']; self.wait(lg=[(R['name'],'r',k)]); R['free'].append(R['slot'][k]); R['rel']+=1
        R['maxrd']=99
        for k in RA: assert RA[k]==R[k], (k,RA[k],R[k])
    def ring_finish(self):
        R=self.R; R['maxrd']=99
        while R['rd']<R['n'] or R['iss']<R['n']: self.ring_tick()
        R['rel']=R['n']; self.R=None

    def reduce(self, tmp, pre=None, post=None):
        I=self.I
        for e in (1,2,3):
            I(f's_xor_b32 s{S_T0}, s{S_W}, {e}'); I(f's_mul_i32 s{S_T0}, s{S_T0}, {3*4096}')
            I(f's_add_u32 s{S_T0}, s{S_T0}, {LDS_X+(e-1)*4096}')
            I(f'v_add_u32 v7, s{S_T0}, v{V_L16}')
            xh,yh=e>>1,e&1
            for xl in range(2):
                for yl in range(2):
                    a=V_ACC+16*(2*xh+xl)+4*(2*yh+yl)
                    I(f'ds_write_b128 v7, {vr(a,4)} offset:{(2*xl+yl)*1024}', tag='redw')
        if pre: pre()
        self.wait(lg='all'); I('s_barrier')
        if post: post()
        I(f's_mul_i32 s{S_T0}, s{S_W}, {3*4096}'); I(f'v_add_u32 v7, s{S_T0}, v{V_L16}')
        for e in range(3):
            for sub in range(4):
                I(f'ds_read_b128 {vr(tmp+16*e+4*sub,4)}, v7 offset:{LDS_X+e*4096+sub*1024}', tag=('red',e))
        for e in range(3):
            self.wait(lg=[('red',e)])
            for sub in range(4):
                a=V_ACC+16*(sub>>1)+4*(sub&1)
                for h in range(2):
                    I(f'v_pk_add_f32 v[{a+2*h}:{a+2*h+1}], v[{a+2*h}:{a+2*h+1}], v[{tmp+16*e+4*sub+2*h}:{tmp+16*e+4*sub+2*h+1}]')

    def prologue(self):
        I=self.I
        I('s_cmp_ge_u32 s2, 256'); I('s_cbranch_scc1 L_exit')
        I('s_load_dwordx16 s[4:19], s[0:1], 0')
        I('s_load_dwordx2 s[20:21], s[0:1], 64')
        I('s_load_dwordx8 s[24:31], s[0:1], 80')
        I('s_load_dwordx4 s[32:35], s[0:1], 112')
        I('s_load_dwordx2 s[36:37], s[0:1], 128')
        I('v_lshrrev_b32 v7, 6, v0'); I(f'v_and_b32 v{V_LANE}, 63, v0')
        I(f'v_readfirstlane_b32 s{S_W}, v7')
        I(f'v_lshlrev_b32 v{V_L16}, 4, v{V_LANE}')
        I(f's_mov_b32 s{S_MASK}, 0xffff0000'); I(f's_mov_b32 s{S_ONES}, 0x3f803f80')
        I('s_and_b32 s22, s2, 7')
        I('s_lshr_b32 s23, s2, 3')
        I('s_and_b32 s38, s22, 1')
        I('s_lshr_b32 s39, s22, 1')
        I(f's_lshr_b32 s{S_WH}, s{S_W}, 1'); I(f's_and_b32 s{S_WL}, s{S_W}, 1')
        I(f's_mul_i32 s{S_T0}, s23, 37'); I(f's_lshr_b32 s{S_T0}, s{S_T0}, 8')
        I(f's_mul_i32 s{S_T1}, s{S_T0}, 7'); I(f's_sub_u32 s{S_G}, s23, s{S_T1}')
        I(f's_mov_b32 s{S_DT1}, s{S_G}')
        I(f's_lshl_b32 s{S_T1}, s22, 2'); I(f's_add_u32 s{S_C}, s{S_T1}, s{S_T0}')
        I(f's_min_u32 s{S_C}, s{S_C}, 31')
        I(f's_mul_i32 s{S_T1}, s39, 7'); I(f's_lshl_b32 s{S_T2}, s38, 2'); I(f's_add_u32 s87, s{S_T1}, s{S_T2}')
        I(f's_add_u32 s{S_FT}, s87, s{S_T0}'); I(f's_min_u32 s{S_FT}, s{S_FT}, 27')
        I(f's_sub_u32 s{S_T1}, 4, s38'); I(f's_cmp_lt_u32 s{S_T0}, s{S_T1}'); I(f's_cselect_b32 s{S_HASG1}, 1, 0')
        I('s_cmp_lt_u32 s23, 28'); I('s_cselect_b32 s74, 1, 0')
        self.wait(lg='all')
        self.make_srd(SRD_X, P_X, 2048*896)
        self.x8_issue(2)
        I('s_getpc_b64 s[98:99]'); self.label('L_pc0')
        I(f's_sub_u32 s98, s98, L_pc0-{KN}'); I('s_subb_u32 s99, s99, 0')
        I(f's_and_b32 s{S_T0}, s23, 1'); I(f's_lshl_b32 s{S_T0}, s{S_T0}, 2'); I(f's_add_u32 s{S_T0}, s{S_T0}, s{S_W}')
        I(f's_lshl_b32 s{S_T0}, s{S_T0}, 13')
        I(f'v_lshlrev_b32 v9, 7, v{V_LANE}'); I(f'v_add_u32 v9, s{S_T0}, v9')
        I(f'v_min_u32 v9, L_code_end-{KN}-16, v9')
        I('global_load_dword v12, v9, s[98:99]', tag='pf')
        self.make_srd(SRD_WS, P_WS, 0x10000000)
        I(f's_mul_i32 s{S_YB}, s{S_W}, {YW}'); I(f's_add_u32 s{S_YB}, s{S_YB}, {LDS_Y}')
        I(f's_sub_u32 s{S_E}, s23, 28'); I(f's_lshl_b32 s{S_E}, s{S_E}, 3'); I(f's_add_u32 s{S_E}, s{S_E}, s22')
        I('s_mov_b32 s86, s23'); I('s_mov_b32 s95, s22')
        self.stamp('start'); self.cstamp('c0')

    def x8_issue(self, oct):
        I=self.I
        I(f's_lshr_b32 s75, s{oct}, 2'); I('s_lshl_b32 s75, s75, 5')
        I(f's_lshl_b32 s{S_T0}, s{S_WH}, 4'); I(f's_add_u32 s75, s75, s{S_T0}')
        I(f's_and_b32 s{S_T0}, s{oct}, 3'); I(f's_lshl_b32 s{S_T0}, s{S_T0}, 2'); I(f's_add_u32 s75, s75, s{S_T0}')
        I(f's_lshl_b32 s{S_T0}, s{S_WL}, 1'); I(f's_add_u32 s75, s75, s{S_T0}')
        I(f's_mul_i32 s{S_T2}, s75, 896')
        I(f'v_and_b32 v7, 31, v{V_LANE}'); I(f'v_lshrrev_b32 v8, 5, v{V_LANE}')
        I('v_mul_u32_u24 v8, 896, v8'); I('v_lshlrev_b32 v9, 5, v7'); I('v_add_u32 v8, v8, v9')
        I('v_mov_b32 v9, 0x7ffffff0'); I('v_cmp_gt_u32 vcc, 28, v7'); I('v_cndmask_b32 v8, v9, v8, vcc')
        I(f'buffer_load_dwordx4 {vr(V_T,4)}, v8, {srd(SRD_X)}, s{S_T2} offen', tag='x8')
        I(f'buffer_load_dwordx4 {vr(V_T+4,4)}, v8, {srd(SRD_X)}, s{S_T2} offen offset:16', tag='x8')
    def touches_pre(self):
        I=self.I
        self.make_srd(SRD_1, P_BRE, 448*896); self.make_srd(SRD_2, P_BIM, 448*896); self.make_srd(SRD_W, P_W1, 2048*3584)
        I(f'v_lshrrev_b32 v7, 3, v{V_LANE}'); I(f'v_and_b32 v8, 7, v{V_LANE}'); I('v_min_u32 v8, 6, v8')
        I('v_mul_u32_u24 v7, 896, v7'); I('v_lshlrev_b32 v8, 7, v8'); I('v_add_u32 v7, v7, v8')
        I(f's_lshl_b32 s{S_T3}, s86, 2'); I(f's_add_u32 s{S_T3}, s{S_T3}, s{S_W}')
        I(f's_lshl_b32 s{S_T0}, s95, 8'); I(f's_lshl_b32 s{S_T1}, s{S_T3}, 1'); I(f's_add_u32 s{S_T0}, s{S_T0}, s{S_T1}'); I(f's_mul_i32 s{S_T0}, s{S_T0}, 896')
        self.exec_set('0xffff','0')
        I(f'buffer_load_dword v12, v7, {srd(SRD_X)}, s{S_T0} offen', tag='touch')
        I(f's_and_b32 s{S_T0}, s{S_T3}, 63'); I(f's_mul_i32 s{S_T0}, s{S_T0}, {7*896}')
        I(f's_cmp_lt_u32 s{S_T3}, 64')
        I(f's_cselect_b32 s{SRD_OUT}, s{P_BRE}, s{P_BIM}'); I(f's_cselect_b32 s{SRD_OUT+1}, s{P_BRE+1}, s{P_BIM+1}')
        I(f's_mov_b32 s{SRD_OUT+2}, {448*896}'); I(f's_mov_b32 s{SRD_OUT+3}, 0x20000')
        self.exec_set('-1','0x00ffffff')
        I(f'buffer_load_dword v12, v7, {srd(SRD_OUT)}, s{S_T0} offen', tag='touch')
        self.exec_full()
    def touch_w1(self, setup_only=False):
        I=self.I
        I(f'v_lshrrev_b32 v7, 2, v{V_LANE}'); I(f'v_and_b32 v8, 3, v{V_LANE}')
        I(f's_and_b32 s{S_T1}, s95, 1'); I(f's_sub_u32 s{S_T1}, 3, s{S_T1}'); I(f'v_min_u32 v8, s{S_T1}, v8')
        I('v_mul_u32_u24 v7, 3584, v7'); I('v_lshlrev_b32 v8, 7, v8'); I('v_add_u32 v7, v7, v8')
        I(f's_lshl_b32 s{S_T0}, s{S_W}, 9'); I(f's_lshl_b32 s{S_T1}, s86, 4'); I(f's_add_u32 s{S_T0}, s{S_T0}, s{S_T1}')
        I(f's_mul_i32 s{S_T0}, s{S_T0}, 3584'); I(f's_lshl_b32 s{S_T1}, s87, 7'); I(f's_add_u32 s{S_T0}, s{S_T0}, s{S_T1}')
        if setup_only:
            I('v_mov_b32 v238, v7'); I(f's_mov_b32 s94, s{S_T0}'); return
        I(f'buffer_load_dword v12, v7, {srd(SRD_W)}, s{S_T0} offen', tag='touch')
    def touch_w1_wg(self):
        I=self.I
        I(f'v_lshrrev_b32 v7, 2, v{V_LANE}'); I(f'v_and_b32 v8, 3, v{V_LANE}')
        I(f's_and_b32 s{S_T1}, s95, 1'); I(f's_sub_u32 s{S_T1}, 3, s{S_T1}'); I(f'v_min_u32 v8, s{S_T1}, v8')
        I('v_mul_u32_u24 v7, 3584, v7'); I('v_lshlrev_b32 v8, 7, v8'); I('v_add_u32 v7, v7, v8')
        I(f's_lshl_b32 s{S_T0}, s86, 4'); I(f's_mul_i32 s{S_T0}, s{S_T0}, 3584'); I(f's_lshl_b32 s{S_T1}, s87, 7'); I(f's_add_u32 s{S_T0}, s{S_T0}, s{S_T1}')
        for q in range(4):
            I(f'buffer_load_dword v12, v7, {srd(SRD_W)}, s{S_T0} offen', tag='touch')
            if q<3: I(f's_add_u32 s{S_T0}, s{S_T0}, {512*3584}')
    def q_w3(self):
        I=self.I
        def xpair(p):
            def f():
                L=self.newlabel('xw3')
                I(f's_add_u32 s100, s{S_W}, {3*p}'); I('s_cmp_ge_u32 s100, 8'); I(f's_cbranch_scc1 {L}')
                snap=self.snapshot()
                I('s_lshl_b32 s101, s100, 4'); I(f'v_xor_b32 v238, s101, v{V_L16}')
                I('s_lshr_b32 s101, s100, 1'); I('s_lshl_b32 s101, s101, 4'); I('s_and_b32 s100, s100, 1'); I('s_lshl_b32 s100, s100, 1')
                I('s_add_u32 s100, s100, s101'); I('s_add_u32 s100, s100, 12'); I('s_mul_i32 s100, s100, 896')
                I(f's_lshl_b32 s101, s{S_C}, 6'); I('s_mul_i32 s101, s101, 896'); I('s_add_u32 s101, s101, s100')
                I('s_mov_b32 exec_hi, 0x00ffffff')
                I(f's_add_u32 m0, s100, {LDS_X}'); I('s_nop 0')
                I(f'buffer_load_dwordx4 v238, {srd(SRD_X)}, s101 offen lds', tag='x64')
                I(f's_add_u32 m0, s100, {LDS_X+896}'); I('s_add_u32 s101, s101, 896')
                I(f'buffer_load_dwordx4 v238, {srd(SRD_X)}, s101 offen lds', tag='x64')
                I('s_mov_b32 exec_hi, -1')
                self.label(L); self.merge(snap); self.vm['x64']=0
            return f
        def bblock(p):
            def f():
                L=self.newlabel('bw3'); Li=self.newlabel('bw3i')
                I(f's_add_u32 s100, s{S_W}, {3*p}'); I('s_cmp_ge_u32 s100, 8'); I(f's_cbranch_scc1 {L}')
                snap=self.snapshot()
                I('s_and_b32 s101, s100, 3'); I('s_sub_u32 s91, 0, s101'); I('s_and_b32 s91, s91, 3'); I('s_lshl_b32 s91, s91, 4')
                I(f'v_xor_b32 v238, s91, v{V_L16}')
                I('s_bitcmp1_b32 s100, 2')
                I(f's_cselect_b32 s{SRD_OUT}, s{P_BIM}, s{P_BRE}'); I(f's_cselect_b32 s{SRD_OUT+1}, s{P_BIM+1}, s{P_BRE+1}')
                I('s_cselect_b32 s100, 13312, 0')
                I('s_mul_i32 s91, s101, 3328'); I('s_add_u32 s100, s100, s91'); I(f's_add_u32 s100, s100, {LDS_Y+3*YW}')
                I('s_mul_i32 s101, s101, 3584')
                I(f's_lshl_b32 s91, s{S_G}, 6'); I('s_add_u32 s91, s91, 48'); I('s_mul_i32 s91, s91, 896'); I('s_add_u32 s101, s101, s91')
                I('s_mov_b32 exec_hi, 0x000fffff')
                for r in range(4):
                    I(f's_add_u32 m0, s100, {r*832}')
                    if r: I('s_add_u32 s101, s101, 896')
                    else: I('s_nop 0')
                    I(f'buffer_load_dwordx4 v238, {srd(SRD_OUT)}, s101 offen lds', tag='bdma')
                I('s_mov_b32 exec_hi, -1')
                self.label(L); self.merge(snap); self.vm['bdma']=0
            return f
        return [xpair(p) for p in range(3)], [bblock(p) for p in range(3)]
    def dma_setup(self):
        I=self.I
        for n,h in enumerate((0,3,2,1)): I(f'v_xor_b32 v{224+n}, {h<<4}, v{V_L16}')
        for g in range(8): I(f'v_xor_b32 v{228+g}, {g<<4}, v{V_L16}')
        I(f's_lshl_b32 s{S_T0}, s{S_G}, 6'); I(f's_lshl_b32 s{S_T1}, s{S_W}, 4'); I(f's_add_u32 s88, s{S_T0}, s{S_T1}')
        I('s_mul_i32 s89, s88, 896')
        I(f's_lshl_b32 s{S_T0}, s{S_C}, 6'); I(f's_lshl_b32 s{S_T1}, s{S_W}, 2'); I(f's_add_u32 s{S_T0}, s{S_T0}, s{S_T1}')
        I(f's_mul_i32 s92, s{S_T0}, 896')
        I(f's_mul_i32 s93, s{S_W}, 3584')
        I(f'v_and_b32 v7, 15, v{V_LANE}'); I('v_mul_u32_u24 v236, 896, v7'); I(f'v_lshrrev_b32 v9, 4, v{V_LANE}'); I('v_lshlrev_b32 v9, 4, v9')
        I('v_add_u32 v236, v236, v9')
        I('v_add_u32 v237, s88, v7'); I('v_lshlrev_b32 v237, 1, v237')
    def q_b(self):
        I=self.I
        def row(im,n):
            def f():
                I('s_mov_b32 exec_hi, 0x000fffff')
                I(f's_add_u32 m0, s{S_YB}, {im*13312+n*832}')
                I(f's_add_u32 s91, s89, {n*896}')
                I(f'buffer_load_dwordx4 v{224+(n>>2)}, {srd(SRD_1 if im==0 else SRD_2)}, s91 offen lds', tag='bdma'); self.nb+=1
                I('s_mov_b32 exec_hi, -1')
            return f
        for im in range(2):
            for n in range(16): self.q.append(row(im,n))
        def b13(srdn,dst):
            def f():
                I(f'buffer_load_dwordx4 {vr(dst,4)}, v236, {srd(srdn)}, s89 offen offset:832', tag='b13'); self.nb+=1
            return f
        if self.opt.w1touch=='W':
            self.b13_loads=lambda: (b13(SRD_1,V_BF+52)(), b13(SRD_2,V_BF+56+52)())
        else:
            self.q.append(b13(SRD_1,V_BF+52)); self.q.append(b13(SRD_2,V_BF+56+52))
        def lam():
            I(f'global_load_ushort v{V_IN}, v237, {sp(P_LRE)}', tag='lam')
            I(f'global_load_ushort v{V_IN+1}, v237, {sp(P_LIM)}', tag='lam')
            I(f'global_load_ushort v{V_IN+2}, v237, {sp(P_LDT)}', tag='lam')
        self.q.insert(0,lam)
    def q_x(self, alist):
        I=self.I
        def row(a,b):
            def f():
                g=2*a+(b>>1); d=(16*a+b)*896
                I('s_mov_b32 exec_hi, 0x00ffffff')
                I(f's_add_u32 m0, s93, {LDS_X+d}')
                I(f's_add_u32 s91, s92, {d}')
                I(f'buffer_load_dwordx4 v{228+g}, {srd(SRD_X)}, s91 offen lds', tag='x64'); self.nx+=1
                I('s_mov_b32 exec_hi, -1')
            return f
        for a in alist:
            for b in range(4): self.q.append(row(a,b))
    def b_read(self):
        I=self.I
        I(f'v_and_b32 v7, 15, v{V_LANE}'); I(f'v_lshrrev_b32 v8, 4, v{V_LANE}'); I('v_lshrrev_b32 v9, 2, v7')
        I('v_sub_u32 v9, 0, v9'); I('v_and_b32 v9, 3, v9'); I('v_xor_b32 v8, v8, v9')
        I('v_lshlrev_b32 v8, 4, v8'); I('v_mul_u32_u24 v7, 832, v7'); I('v_add_u32 v7, v7, v8'); I(f'v_add_u32 v7, s{S_YB}, v7')
        if self.opt.w1touch!='W': self.wait(vm=['bdma'])
        for im in range(2):
            for j in range(13):
                I(f'ds_read_b128 {vr(V_BF+56*im+4*j,4)}, v7 offset:{im*13312+j*64}', tag='brd')
    def touch_pf(self, which):
        I=self.I
        if which==1: pitch,nrow,nt,srdn=3584,512,8,SRD_W
        else:
            pitch,nrow,nt,srdn=4096,448,7,SRD_OUT
            self.make_srd(SRD_OUT, P_W2, 1792*4096)
        I(f'v_lshrrev_b32 v7, 2, v{V_LANE}'); I(f'v_and_b32 v8, 3, v{V_LANE}')
        if which==1:
            I(f's_and_b32 s{S_T1}, s95, 1'); I(f's_sub_u32 s{S_T1}, 3, s{S_T1}'); I(f'v_min_u32 v8, s{S_T1}, v8')
        I(f'v_mul_u32_u24 v7, {pitch}, v7'); I('v_lshlrev_b32 v8, 7, v8'); I('v_add_u32 v7, v7, v8')
        I(f's_mul_i32 s{S_T0}, s{S_W}, {nrow}'); I(f's_sub_u32 s{S_T1}, s86, 28'); I(f's_lshl_b32 s{S_T1}, s{S_T1}, 4'); I(f's_add_u32 s{S_T0}, s{S_T0}, s{S_T1}')
        I(f's_mul_i32 s{S_T0}, s{S_T0}, {pitch}')
        if which==1: I(f's_lshl_b32 s{S_T1}, s87, 7')
        else: I(f's_lshl_b32 s{S_T1}, s95, 9')
        I(f's_add_u32 s{S_T0}, s{S_T0}, s{S_T1}')
        for t in range(nt):
            I(f'buffer_load_dword v12, v7, {srd(srdn)}, s{S_T0} offen', tag='touch2')
            if t<nt-1: I(f's_add_u32 s{S_T0}, s{S_T0}, {64*pitch}')
    def ln8(self, oct=2, clears=True):
        I=self.I
        D=list(range(V_T,V_T+8)); SUM,SSQ,S2,Q2=24,25,26,27; R,C=28,30; TM=[32,34,36,38]
        self.wait(vm=['x8'])
        def reduce32():
            for rot in (8,4,2,1):
                I(f'v_add_f32_dpp v{SUM}, v{SUM}, v{SUM} row_ror:{rot} row_mask:0xf bank_mask:0xf')
                I(f'v_add_f32_dpp v{SSQ}, v{SSQ}, v{SSQ} row_ror:{rot} row_mask:0xf bank_mask:0xf')
            I(f'v_mov_b32 v{S2}, v{SUM}'); I(f'v_mov_b32 v{Q2}, v{SSQ}')
            I(f'v_permlane16_swap_b32 v{SUM}, v{S2}'); I(f'v_permlane16_swap_b32 v{SSQ}, v{Q2}')
            I(f'v_add_f32 v{SUM}, v{SUM}, v{S2}'); I(f'v_add_f32 v{SSQ}, v{SSQ}, v{Q2}')
        self.dot_sums(D,[SUM,SSQ,S2,Q2]); reduce32()
        self.ln_stats(SUM,SSQ,R,C,None)
        I(f'v_mov_b32 v10, v{SUM}'); I(f'v_mov_b32 v11, v{R}')
        I(f'v_lshrrev_b32 v8, 5, v{V_LANE}'); I('v_lshlrev_b32 v8, 2, v8')
        I(f's_lshl_b32 s{S_T0}, s75, 2'); I(f's_add_u32 s{S_T0}, s{S_T0}, {WS_STAT}'); I(f's_add_u32 s{S_T1}, s{S_T0}, 8192')
        self.exec_set(1,1)
        I(f'buffer_store_dword v10, v8, {srd(SRD_WS)}, s{S_T0} offen sc1', tag='st0')
        I(f'buffer_store_dword v11, v8, {srd(SRD_WS)}, s{S_T1} offen sc1', tag='st0')
        self.exec_full()
        if clears and self.opt.w1touch=='W' and not self.opt.notouch3:
            Lt=self.newlabel('notouch')
            I(f's_cmp_lg_u32 s{S_W}, 3'); I(f's_cbranch_scc1 {Lt}')
            snap=self.snapshot()
            self.touch_w1_wg()
            self.label(Lt); self.merge(snap)
        I(f'v_and_b32 v7, 31, v{V_LANE}'); I('v_cmp_gt_u32 vcc, 28, v7')
        I(f'v_cndmask_b32 v{R}, 0, v{R}, vcc'); I(f'v_cndmask_b32 v{C}, 0, v{C}, vcc')
        self.normalize(D,R,C,TM)
        self.dot_sums(D,[SUM,SSQ,S2,Q2]); reduce32()
        self.ln_stats(SUM,SSQ,R,C,None)
        self.normalize(D,R,C,TM)
        self.auto=0
        I(f'v_lshrrev_b32 v8, 5, v{V_LANE}'); I(f's_lshl_b32 s{S_T0}, s{S_W}, 1'); I(f'v_add_u32 v8, s{S_T0}, v8')
        I('v_mul_u32_u24 v8, 960, v8'); I('v_lshlrev_b32 v9, 5, v7'); I('v_add_u32 v8, v8, v9'); I(f'v_add_u32 v8, {LDS_LN8}, v8')
        self.exec_set('0x0fffffff','0x0fffffff')
        I(f'ds_write_b128 v8, {vr(V_T,4)} offset:0'); I(f'ds_write_b128 v8, {vr(V_T+4,4)} offset:16')
        self.exec_full()
        self.wait(lg='all'); I('s_barrier')
        I(f'v_and_b32 v7, 15, v{V_LANE}'); I('v_lshrrev_b32 v8, 2, v7'); I('v_mul_u32_u24 v8, 960, v8')
        I(f'v_lshrrev_b32 v9, 4, v{V_LANE}'); I('v_lshlrev_b32 v10, 5, v9'); I('v_add_u32 v8, v8, v10')
        I(f'v_and_b32 v10, 3, v{V_LANE}'); I('v_lshlrev_b32 v10, 3, v10'); I('v_add_u32 v8, v8, v10')
        I(f's_lshl_b32 s{S_T0}, s{S_W}, 7'); I(f's_add_u32 s{S_T0}, s{S_T0}, {LDS_LN8}'); I(f'v_add_u32 v8, s{S_T0}, v8')
        I('v_lshlrev_b32 v9, 10, v9'); I('v_lshlrev_b32 v7, 4, v7'); I('v_add_u32 v9, v9, v7')
        I(f's_lshr_b32 s{S_T0}, s{oct}, 2'); I(f's_lshl_b32 s{S_T0}, s{S_T0}, 12')
        I(f's_and_b32 s{S_T1}, s{oct}, 3'); I(f's_lshl_b32 s{S_T1}, s{S_T1}, 8'); I(f's_add_u32 s{S_T0}, s{S_T0}, s{S_T1}')
        I(f's_lshl_b32 s{S_T1}, s{S_W}, 18'); I(f's_add_u32 s{S_T0}, s{S_T0}, s{S_T1}')
        if self.opt.w1touch=='W':
            Lno=self.newlabel('ln8none'); L6=self.newlabel('ln8no6')
            I(f's_cmp_eq_u32 s{S_W}, 3'); I(f's_cbranch_scc1 {Lno}')
            snap=self.snapshot()
            for i in range(2):
                I(f'ds_read_b64_tr_b16 v[{16+4*i}:{17+4*i}], v8 offset:{384*i}', tag='t0')
                I(f'ds_read_b64_tr_b16 v[{18+4*i}:{19+4*i}], v8 offset:{384*i+3840}', tag='t0')
            I(f's_add_u32 s{S_T1}, s{S_T0}, {3*262144}')
            self.wait(lg='all')
            I(f'buffer_store_dwordx4 v[16:19], v9, {srd(SRD_WS)}, s{S_T0} offen sc1', tag='st0')
            I(f'buffer_store_dwordx4 v[20:23], v9, {srd(SRD_WS)}, s{S_T1} offen sc1', tag='st0')
            I(f's_cmp_lg_u32 s{S_W}, 0'); I(f's_cbranch_scc1 {L6}')
            I(f'ds_read_b64_tr_b16 v[24:25], v8 offset:768', tag='t0')
            I(f'ds_read_b64_tr_b16 v[26:27], v8 offset:{768+3840}', tag='t0')
            I(f's_add_u32 s{S_T1}, s{S_T0}, {6*262144}')
            self.wait(lg='all')
            I(f'buffer_store_dwordx4 v[24:27], v9, {srd(SRD_WS)}, s{S_T1} offen sc1', tag='st0')
            self.label(L6)
            self.label(Lno); self.merge(snap); self.vm['st0']=0
        else:
            I(f'ds_read_b64_tr_b16 v[16:17], v8 offset:0', tag='t0')
            I(f'ds_read_b64_tr_b16 v[18:19], v8 offset:3840', tag='t0')
            Lskip=self.newlabel('ln8skip')
            I(f's_cmp_eq_u32 s{S_W}, 3'); I(f's_cbranch_scc1 {Lskip}')
            snap=self.snapshot()
            I(f'ds_read_b64_tr_b16 v[20:21], v8 offset:512', tag='t1')
            I(f'ds_read_b64_tr_b16 v[22:23], v8 offset:{512+3840}', tag='t1')
            I(f's_add_u32 s{S_T1}, s{S_T0}, {4*262144}')
            self.wait(lg='all')
            I(f'buffer_store_dwordx4 v[20:23], v9, {srd(SRD_WS)}, s{S_T1} offen sc1', tag='st0')
            self.label(Lskip); self.merge(snap)
            self.wait(lg='all')
            I(f'buffer_store_dwordx4 v[16:19], v9, {srd(SRD_WS)}, s{S_T0} offen sc1', tag='st0')
        if not clears:
            I('s_barrier'); return
        Ln=self.newlabel('noclr')
        I(f's_cmp_lg_u32 s{S_W}, {1 if self.opt.w1touch=="W" else 3}'); I(f's_cbranch_scc1 {Ln}')
        snap=self.snapshot()
        I('v_mov_b32 v8, 0')
        I('v_mov_b32 v10, -1'); I('v_mov_b32 v11, -1'); I(f'v_lshlrev_b32 v9, 3, v{V_LANE}')
        I(f's_lshl_b32 s{S_T0}, s{S_G}, 5'); I(f's_add_u32 s{S_T0}, s{S_T0}, s{S_C}'); I(f's_lshl_b32 s{S_T0}, s{S_T0}, 9')
        I(f's_add_u32 s{S_T0}, s{S_T0}, {WS_E}')
        I(f'buffer_store_dwordx2 v[10:11], v9, {srd(SRD_WS)}, s{S_T0} offen sc1', tag='st0')
        I(f's_mul_i32 s{S_T0}, s{S_C}, 7'); I(f's_add_u32 s{S_T0}, s{S_T0}, s{S_G}'); I(f's_lshl_b32 s{S_T0}, s{S_T0}, 6')
        I(f's_add_u32 s{S_T0}, s{S_T0}, {WS_FH}')
        I('v_mov_b32 v10, 0')
        self.exec_set(1,0)
        I(f'buffer_store_dword v10, v8, {srd(SRD_WS)}, s{S_T0} offen sc1', tag='st0')
        Lg=self.newlabel('nog1clr'); Lc=self.newlabel('nocclr')
        I(f's_cmp_eq_u32 s{S_HASG1}, 0'); I(f's_cbranch_scc1 {Lg}')
        I(f's_mul_i32 s{S_T0}, s{S_DT1}, 28'); I(f's_add_u32 s{S_T0}, s{S_T0}, s{S_FT}'); I(f's_lshl_b32 s{S_T0}, s{S_T0}, 6')
        I(f's_add_u32 s{S_T0}, s{S_T0}, {WS_FG}')
        I(f'buffer_store_dword v10, v8, {srd(SRD_WS)}, s{S_T0} offen sc1', tag='st0')
        self.label(Lg)
        I('s_cmp_lg_u32 s95, 0'); I(f's_cbranch_scc1 {Lc}')
        I(f's_lshl_b32 s{S_T0}, s86, 6'); I(f's_add_u32 s{S_T0}, s{S_T0}, {WS_FC}')
        I(f'buffer_store_dword v10, v8, {srd(SRD_WS)}, s{S_T0} offen sc1', tag='st0')
        self.label(Lc)
        self.exec_full()
        self.label(Ln); self.merge(snap); self.vm['st0']=0
        I('s_barrier')

    def ln8_extra(self):
        I=self.I
        L=self.newlabel('noextra'); Lp=self.newlabel('extra')
        I(f's_cmp_lg_u32 s{S_HASG1}, 0'); I(f's_cbranch_scc1 {L}')
        snap=self.snapshot()
        I('s_lshr_b32 s3, s95, 1'); I('s_mul_i32 s3, s3, 7'); I('s_add_u32 s3, s3, s86'); I('s_add_u32 s3, s3, 203')
        self.label(Lp)
        self.x8_issue(3)
        I('s_waitcnt vmcnt(0)'); self.vm={}; self.vm['x8']=0
        self.ln8(oct=3, clears=False)
        I('s_add_u32 s3, s3, 28'); I('s_cmp_lt_u32 s3, 256'); I(f's_cbranch_scc1 {Lp}')
        I('s_waitcnt vmcnt(0)')
        self.label(L); self.restore(snap); self.vm['st0']=min(self.vm.get('st0',0),0)

    def arrive0(self):
        I=self.I
        self.wait(vm=['st0']); I('s_barrier')
        L=self.newlabel('arr')
        I(f's_cmp_lg_u32 s{S_W}, 0'); I(f's_cbranch_scc1 {L}')
        snap=self.snapshot()
        I('s_and_b32 s3, s2, 3'); I('s_lshl_b32 s3, s3, 6'); I('v_mov_b32 v8, s3'); I('v_mov_b32 v9, 1')
        self.exec_set(1,0)
        I(f'global_atomic_add v8, v9, {sp(P_DBG)} sc1')
        self.exec_full()
        self.label(L); self.merge(snap)

    def w1_setup(self):
        I=self.I
        self.ring_setup(3584, S_WH)
        I(f's_mul_i32 s{S_WBEG}, s{S_W}, {512*3584}'); I(f's_lshl_b32 s{S_T0}, s{S_FT}, 7'); I(f's_add_u32 s{S_WBEG}, s{S_WBEG}, s{S_T0}')
        I(f's_mov_b32 s{S_WO}, s{S_WBEG}')

    def lam_consts(self):
        I=self.I
        LRE,LIM,LDT=V_IN,V_IN+1,V_IN+2
        t=list(range(16,40))
        self.wait(vm=['lam'])
        for r in (LRE,LIM,LDT): I(f'v_lshlrev_b32 v{r}, 16, v{r}')
        I(f'v_mul_f32 v{LDT}, 0x3fb8aa3b, v{LDT}'); I(f'v_exp_f32 v{LDT}, v{LDT}')
        self.rnd_bf16(LDT)
        I(f'v_mul_f32 v16, v{LDT}, v{LRE}'); I(f'v_mul_f32 v17, v{LDT}, v{LIM}')
        I('v_mul_f32 v16, 0x3fb8aa3b, v16'); I('v_mul_f32 v17, 0.15915494, v17')
        I('v_exp_f32 v16, v16'); I('v_fract_f32 v17, v17')
        I('v_cos_f32 v18, v17'); I('v_sin_f32 v19, v17')
        I(f'v_mul_f32 v{V_LR}, v16, v18'); I(f'v_mul_f32 v{V_LI}, v16, v19')
        I(f'v_add_f32 v16, -1.0, v{V_LR}')
        I(f'v_mul_f32 v17, v{LRE}, v{LRE}'); I(f'v_fma_f32 v17, v{LIM}, v{LIM}, v17'); I('v_rcp_f32 v17, v17')
        I(f'v_mul_f32 v18, v16, v{LRE}'); I(f'v_fma_f32 v18, v{V_LI}, v{LIM}, v18')
        I(f'v_mul_f32 v19, v16, v{LIM}'); I(f'v_fma_f32 v19, v{V_LI}, v{LRE}, -v19')
        I('v_add_f32 v17, v17, v17')
        I(f'v_mul_f32 v{V_K1}, v18, v17'); I(f'v_mul_f32 v{V_K2}, v19, v17'); I(f'v_sub_f32 v{V_K2}, 0, v{V_K2}')
        self.csq(16,17,V_LR,V_LI,30); self.csq(18,19,16,17,30); self.csq(16,17,18,19,30); self.csq(20,21,16,17,30)
        self.csq(22,23,20,21,30)
        self.cmul(24,25,22,23,20,21,30,31)
        self.csq(V_L64R,V_L64I,22,23,30)
        self.csq(16,17,V_L64R,V_L64I,30); self.csq(18,19,16,17,30); self.csq(V_L512R,V_L512I,18,19,30)
        I(f'v_mov_b32 v{V_PR}, 1.0'); I(f'v_mov_b32 v{V_PI}, 0')
        for (lo,hi,r) in (('0xffff0000','-1',20),('0','-1',22),('0','0xffff0000',24)):
            self.exec_set(lo,hi); I(f'v_mov_b32 v{V_PR}, v{r}'); I(f'v_mov_b32 v{V_PI}, v{r+1}')
        self.exec_full()
        I(f'v_mov_b32 v{V_IN}, v20'); I(f'v_mov_b32 v{V_IN+1}, v21')

    def x_addr(self):
        I=self.I
        I(f'v_and_b32 v7, 15, v{V_LANE}'); I('v_lshrrev_b32 v8, 2, v7'); I('v_lshlrev_b32 v8, 4, v8')
        I('v_and_b32 v9, 3, v7'); I('v_add_u32 v8, v8, v9'); I('v_mul_u32_u24 v8, 896, v8')
        I(f'v_lshrrev_b32 v9, 4, v{V_LANE}'); I('v_lshrrev_b32 v7, 1, v7'); I('v_xor_b32 v9, v9, v7'); I('v_lshlrev_b32 v9, 4, v9')
        I('v_add_u32 v14, v8, v9'); I('v_xor_b32 v15, 64, v14')
    def ln64(self):
        I=self.I
        D=list(range(V_X64,V_X64+56)); SUM,SSQ,S2,Q2=24,25,26,27; R,C=28,30; TM=[32,34,36,38]
        I(f's_mul_i32 s{S_T0}, s{S_W}, 3584'); I(f'v_add_u32 v22, s{S_T0}, v14'); I(f'v_add_u32 v23, s{S_T0}, v15')
        self.allow_bread=True
        while self.nx<16: self.tick()
        if self.opt.w1touch!='W': self.wait(vm=['x64'])
        for j in range(14):
            I(f'ds_read_b128 {vr(V_X64+4*j,4)}, v{22+(j&1)} offset:{LDS_X+(j>>1)*128}', tag=('xr',j))
        accs=[SUM,SSQ,S2,Q2]
        for n,d in enumerate(D):
            if n%4==0: self.wait(lg=[('xr',n//4)])
            sa,qa = accs[2*(n&1)], accs[2*(n&1)+1]
            if n<2:
                I(f'v_dot2_f32_bf16 v{sa}, v{d}, s{S_ONES}, 0'); I(f'v_dot2_f32_bf16 v{qa}, v{d}, v{d}, 0')
            else:
                I(f'v_dot2_f32_bf16 v{sa}, v{d}, s{S_ONES}, v{sa}'); I(f'v_dot2_f32_bf16 v{qa}, v{d}, v{d}, v{qa}')
        I(f'v_add_f32 v{SUM}, v{SUM}, v{S2}'); I(f'v_add_f32 v{SSQ}, v{SSQ}, v{Q2}')
        for sw in ('16','32'):
            I(f'v_mov_b32 v{S2}, v{SUM}'); I(f'v_mov_b32 v{Q2}, v{SSQ}')
            I(f'v_permlane{sw}_swap_b32 v{SUM}, v{S2}'); I(f'v_permlane{sw}_swap_b32 v{SSQ}, v{Q2}')
            I(f'v_add_f32 v{SUM}, v{SUM}, v{S2}'); I(f'v_add_f32 v{SSQ}, v{SSQ}, v{Q2}')
        self.stamp('dots',fine=True)
        self.ln_stats(SUM,SSQ,R,C,None)
        self.allow_bread=True
        def h(n):
            I(f'ds_write_b128 v{22+(n&1)}, {vr(V_X64+4*n,4)} offset:{LDS_X+(n>>1)*128}', tag='xw')
        self.normalize(D,R,C,TM,hook=h)

    def bu_gemm(self):
        I=self.I
        BUF=[V_X64, V_X64+16]
        for r in range(4): I(f'v_mov_b32 v{36+r}, s{S_ONES}')
        def rd(j):
            for i in range(4):
                I(f'ds_read_b128 {vr(BUF[j%2]+4*i,4)}, v{14+(j&1)} offset:{LDS_X+i*3584+(j>>1)*128}', tag=('xa',j))
        rd(0); rd(1)
        for j in range(14):
            self.wait(lg=[('xa',j)])
            for im in range(2):
                d=104+4*im
                I(f'v_mfma_f32_16x16x32_bf16 {vr(d,4)}, v[36:39], {vr(V_BF+56*im+4*j,4)}, {vr(d,4) if j else 0}')
            for i in range(4):
                for im in range(2):
                    d=V_RAW+16*im+4*i
                    cin = vr(d,4) if j else '0'
                    I(f'v_mfma_f32_16x16x32_bf16 {vr(d,4)}, {vr(BUF[j%2]+4*i,4)}, {vr(V_BF+56*im+4*j,4)}, {cin}')
            if j+2<14: rd(j+2)
            if j==self.opt.statj:
                sv=self.auto; self.auto=0
                self.wait_e0(); self.stat_loads(); self.auto=sv
    def stat_loads(self):
        I=self.I
        I(f'v_lshrrev_b32 v8, 4, v{V_LANE}'); I('v_lshlrev_b32 v8, 6, v8')
        I(f's_lshl_b32 s{S_T0}, s{S_C}, 8'); I(f's_add_u32 s{S_T0}, s{S_T0}, {WS_STAT}'); I(f's_add_u32 s{S_T1}, s{S_T0}, 8192')
        for n in range(4):
            I(f'buffer_load_dwordx4 {vr(16+4*n,4)}, v8, {srd(SRD_WS)}, s{S_T0} offen offset:{16*n} sc1', tag='stat')
            I(f'buffer_load_dwordx4 {vr(88+4*n,4)}, v8, {srd(SRD_WS)}, s{S_T1} offen offset:{16*n} sc1', tag='stat')
    def ln_fix(self):
        I=self.I
        self.wait(vm=['stat'])
        for im in range(2):
            sb=104+4*im
            for t in range(0,16,2):
                r=V_RAW+16*im+t
                I(f'v_pk_fma_f32 v[{r}:{r+1}], v[{16+t}:{17+t}], v[{sb}:{sb+1}], v[{r}:{r+1}] neg_lo:[1,0,0] neg_hi:[1,0,0]')
            for t in range(0,16,2):
                r=V_RAW+16*im+t
                I(f'v_pk_mul_f32 v[{r}:{r+1}], v[{r}:{r+1}], v[{88+t}:{89+t}]')

    def scan1(self):
        I=self.I
        ER,EI,T0,T1=16,17,18,19
        L16R,L16I=V_IN,V_IN+1
        I(f'v_mov_b32 v{ER}, v{V_RAW}'); I(f'v_mov_b32 v{EI}, v{V_RAW+16}')
        for t in range(1,16):
            I(f'v_fma_f32 v{T0}, v{V_LR}, v{ER}, v{V_RAW+t}')
            I(f'v_fma_f32 v{T1}, v{V_LR}, v{EI}, v{V_RAW+16+t}')
            I(f'v_fma_f32 v{T0}, -v{V_LI}, v{EI}, v{T0}')
            I(f'v_fma_f32 v{EI}, v{V_LI}, v{ER}, v{T1}')
            ER,T0=T0,ER
        GR=[20,21,22,23]; GI=[24,25,26,27]
        self.allgather_q(ER,*GR); self.allgather_q(EI,*GI)
        for q in range(1,4):
            self.cfma(GR[q],GI[q],L16R,L16I,GR[q-1],GI[q-1],GR[q],GI[q],28,29)
        I(f'v_mov_b32 v{V_SR}, 0'); I(f'v_mov_b32 v{V_SI}, 0')
        for n,(lo,hi) in enumerate((('0xffff0000','-1'),('0','-1'),('0','0xffff0000'))):
            self.exec_set(lo,hi); I(f'v_mov_b32 v{V_SR}, v{GR[n]}'); I(f'v_mov_b32 v{V_SI}, v{GI[n]}')
        self.exec_full()
        I(f'v_mov_b32 v10, v{GR[3]}'); I(f'v_mov_b32 v11, v{GI[3]}')
        I(f'v_lshlrev_b32 v8, 3, v{V_LANE}')
        I(f's_lshl_b32 s{S_T0}, s{S_G}, 5'); I(f's_add_u32 s{S_T0}, s{S_T0}, s{S_C}'); I(f's_lshl_b32 s{S_T0}, s{S_T0}, 9')
        I(f's_lshl_b32 s{S_T1}, s{S_W}, 7'); I(f's_add_u32 s{S_T0}, s{S_T0}, s{S_T1}'); I(f's_add_u32 s{S_T0}, s{S_T0}, {WS_E}')
        self.exec_set('0xffff',0)
        I(f'buffer_store_dwordx2 v[10:11], v8, {srd(SRD_WS)}, s{S_T0} offen sc1', tag='stE')
        self.exec_full()

    def wait_e0(self):
        I=self.I
        L=self.newlabel('e0'); D=self.newlabel('e0d')
        self.wait(vm=['e0c'])
        I('v_cmp_gt_u32 vcc, 64, v34'); I(f's_cbranch_vccz {D}')
        snap=self.snapshot()
        I(f's_mov_b32 s{S_BOUND}, 0x200000')
        self.label(L)
        I(f'global_load_dword v34, v35, {sp(P_DBG)} sc1'); I('s_waitcnt vmcnt(0)')
        I('v_cmp_gt_u32 vcc, 64, v34'); I(f's_cbranch_vccz {D}')
        I('s_sleep 4'); I(f's_sub_u32 s{S_BOUND}, s{S_BOUND}, 1'); I(f's_cbranch_scc0 {L}')
        self.label(D); self.restore(snap)

    def gemm1(self):
        I=self.I
        SL=[V_RING+16*i for i in range(6)]
        DEP=len(SL)
        I(f's_mul_i32 s22, s{S_DT1}, 262144'); I(f's_lshl_b32 s{S_T0}, s{S_W}, 16'); I(f's_add_u32 s22, s22, s{S_T0}')
        I(f's_lshl_b32 s{S_T0}, s{S_WL}, 11'); I(f's_xor_b32 s{S_T1}, s{S_T0}, 2048')
        I(f's_add_u32 s23, s22, s{S_T1}'); I(f's_add_u32 s22, s22, s{S_T0}')
        I(f's_mov_b32 s{S_A}, s22'); I(f's_mov_b32 s{S_B}, s23')
        def ld(k,y):
            r=SL[k%DEP]
            sx=S_A if y<2 else S_B
            I(f'buffer_load_dwordx4 {vr(r+4*y,4)}, v{V_L16}, {srd(SRD_WS)}, s{sx} offen offset:{(y&1)*1024} sc1', tag=('ht',k,y))
            if (y&1) and k<15: I(f's_add_u32 s{sx}, s{sx}, 4096')
        pro=[(k,y) for k in range(DEP) for y in range(4)]
        while pro:
            ld(*pro.pop(0))
            if self.R['iss']<self.R['n']: self.ring_tick()
        self.ring_finish(); self.wait(lg='all')
        self.stamp('w1 in regs')
        self.w2_setup(); self.R['maxrd']=0
        for k in range(16):
            r=SL[k%DEP]
            for y in range(4):
                self.wait(vm=[('ht',k,y)])
                if y==0: self.stamp(f'g1.{k}',fine=3)
                for x in range(4):
                    d=V_ACC+16*x+4*y
                    cin=vr(d,4) if k else '0'
                    I(f'v_mfma_f32_16x16x32_bf16 {vr(d,4)}, {ar(16*k+4*x,4)}, {vr(r+4*y,4)}, {cin}')
                if k+DEP<16: ld(k+DEP,y)
                else:
                    self.R['maxrd']=k
                    self.tick()
        self.R['maxrd']=99
        self.stamp('g1loop')

    def p2_flag_addr(self):
        I=self.I
        I(f's_mul_i32 s{S_T0}, s{S_W}, 7'); I(f's_lshr_b32 s{S_T1}, s{S_T0}, 2')
        I(f's_mul_i32 s{S_T2}, s{S_C}, 7'); I(f's_add_u32 s{S_T2}, s{S_T2}, s{S_T1}')
        I(f's_add_u32 s{S_T3}, s{S_T0}, 6'); I(f's_lshr_b32 s{S_T3}, s{S_T3}, 2'); I(f's_sub_u32 s{S_T3}, s{S_T3}, s{S_T1}')
        I(f'v_min_u32 v14, s{S_T3}, v{V_LANE}'); I(f'v_add_u32 v14, s{S_T2}, v14'); I('v_lshlrev_b32 v14, 6, v14')
        I(f'v_add_u32 v14, {WS_FH}, v14')
        I(f'v_min_u32 v8, 13, v{V_LANE}'); I('v_lshlrev_b32 v9, 6, v8')
        I(f's_mul_i32 s{S_T1}, s{S_G}, 28'); I(f's_add_u32 s{S_T1}, s{S_T1}, s{S_T0}'); I(f's_lshl_b32 s{S_T1}, s{S_T1}, 6'); I(f's_add_u32 s{S_T1}, s{S_T1}, {WS_FG}')
        I(f's_lshl_b32 s{S_T0}, s{S_T0}, 6'); I(f's_add_u32 s{S_T0}, s{S_T0}, {WS_FC-7*64}')
        I(f'v_mov_b32 v10, s{S_T1}'); I(f'v_mov_b32 v11, s{S_T0}'); I('v_cmp_gt_u32 vcc, 7, v8'); I('v_cndmask_b32 v10, v11, v10, vcc')
        I('v_add_u32 v12, v9, v10')

    def e_addr(self):
        I=self.I
        OF=V_EOF
        I(f's_lshl_b32 s{S_T0}, s{S_G}, 14'); I(f's_add_u32 s{S_T0}, s{S_T0}, {WS_E}')
        I(f's_add_u32 s{SRD_1}, s{P_WS}, s{S_T0}'); I(f's_addc_u32 s{SRD_1+1}, s{P_WS+1}, 0')
        I(f's_and_b32 s{SRD_1+1}, s{SRD_1+1}, 0xffff'); I(f's_mov_b32 s{SRD_1+2}, 16384'); I(f's_mov_b32 s{SRD_1+3}, 0x20000')
        I(f'v_lshrrev_b32 v8, 4, v{V_LANE}'); I('v_lshlrev_b32 v8, 12, v8')
        I(f'v_and_b32 v9, 15, v{V_LANE}'); I('v_lshlrev_b32 v9, 3, v9'); I('v_add_u32 v8, v8, v9')
        I(f's_sub_u32 s{S_T0}, s{S_C}, 32'); I(f's_lshl_b32 s{S_T0}, s{S_T0}, 9'); I(f's_lshl_b32 s{S_T1}, s{S_W}, 7')
        I(f's_add_u32 s{S_T0}, s{S_T0}, s{S_T1}'); I(f'v_add_u32 v8, s{S_T0}, v8')
        for i in range(8): I(f'v_add_u32 v{OF+i}, {512*i}, v8')
    def e_loads(self):
        for i in range(8):
            self.I(f'buffer_load_dwordx2 {vr(V_EL+2*i,2)}, v{V_EOF+i}, {srd(SRD_1)}, 0 offen sc1', tag='E')

    def finalize(self):
        I=self.I
        EL=V_EL
        L=self.newlabel('pollE'); Dn=self.newlabel('pollEd')
        sv=self.auto; self.auto=0
        self.wait(vm=['E'])
        I(f's_mov_b32 s{S_BOUND}, 0x200000')
        self.label(L)
        I(f'v_max3_u32 v8, v{EL}, v{EL+1}, v{EL+2}')
        for i in range(3,15,2): I(f'v_max3_u32 v8, v8, v{EL+i}, v{EL+i+1}')
        I(f'v_max_u32 v8, v8, v{EL+15}')
        I('v_cmp_eq_u32 vcc, -1, v8')
        I(f's_cbranch_vccz {Dn}')
        snap=self.snapshot()
        self.e_loads()
        I('s_waitcnt vmcnt(0)')
        I('s_sleep 4'); I(f's_sub_u32 s{S_BOUND}, s{S_BOUND}, 1'); I(f's_cbranch_scc0 {L}')
        self.label(Dn); self.restore(snap)
        self.auto=sv
        yield
        QR,QI=EL,EL+1
        for i in range(1,8):
            self.cfma(QR,QI,V_L64R,V_L64I,QR,QI,EL+2*i,EL+2*i+1,36,37)
            yield
        GR=[20,21,22,23]; GI=[24,25,26,27]
        self.allgather_q(QR,*GR); yield
        self.allgather_q(QI,*GI); yield
        for q in range(1,4):
            self.cfma(GR[q],GI[q],V_L512R,V_L512I,GR[q-1],GI[q-1],GR[q],GI[q],28,29)
            yield
        self.cfma(V_SR,V_SI,V_PR,V_PI,GR[3],GI[3],V_SR,V_SI,28,29)
        yield
        HR,HI,T0,T1=V_SR,V_SI,36,37
        OR,OI=V_RAW,V_RAW+16
        for t in range(16):
            I(f'v_fma_f32 v{T0}, v{V_LR}, v{HR}, v{OR+t}')
            I(f'v_fma_f32 v{T1}, v{V_LR}, v{HI}, v{OI+t}')
            I(f'v_fma_f32 v{T0}, -v{V_LI}, v{HI}, v{T0}')
            I(f'v_fma_f32 v{HI}, v{V_LI}, v{HR}, v{T1}')
            HR,T0=T0,HR
            yield
            I(f'v_mul_f32 v{OR+t}, v{V_K1}, v{HR}'); I(f'v_mul_f32 v{OI+t}, v{V_K2}, v{HR}')
            I(f'v_fma_f32 v{OR+t}, v{V_K2}, v{HI}, v{OR+t}'); I(f'v_fma_f32 v{OI+t}, -v{V_K1}, v{HI}, v{OI+t}')
            yield
        for t in range(8):
            I(f'v_cvt_pk_bf16_f32 v{OR+t}, v{OR+2*t}, v{OR+2*t+1}'); I(f'v_cvt_pk_bf16_f32 v{OI+t}, v{OI+2*t}, v{OI+2*t+1}')
            if t%2: yield
        I(f'v_and_b32 v8, 15, v{V_LANE}'); I(f's_lshl_b32 s{S_T0}, s{S_WL}, 4'); I(f'v_add_u32 v8, s{S_T0}, v8')
        I('v_lshrrev_b32 v9, 3, v8'); I('v_lshlrev_b32 v9, 2, v9')
        yield
        I('v_and_b32 v10, 3, v8'); I('v_add_u32 v9, v9, v10')
        I('v_bfe_u32 v10, v8, 2, 1'); I('v_lshlrev_b32 v11, 4, v10'); I('v_add_u32 v9, v9, v11')
        yield
        I('v_and_b32 v11, 7, v9'); I('v_lshlrev_b32 v10, 2, v10'); I('v_xor_b32 v11, v11, v10')
        I(f'v_lshrrev_b32 v10, 4, v{V_LANE}'); I('v_lshlrev_b32 v10, 1, v10')
        yield
        I('v_xor_b32 v10, v10, v11'); I('v_lshlrev_b32 v10, 4, v10')
        I('v_lshlrev_b32 v9, 7, v9'); I('v_add_u32 v9, v9, v10')
        yield
        I(f's_lshl_b32 s{S_T0}, s{S_WH}, 12'); I(f'v_add_u32 v9, s{S_T0}, v9')
        I('v_xor_b32 v10, 16, v9')
        I('s_barrier')
        I(f'ds_write_b128 v9, {vr(OR,4)} offset:{LDS_X}', tag='hw'); I(f'ds_write_b128 v10, {vr(OR+4,4)} offset:{LDS_X}', tag='hw')
        I(f'ds_write_b128 v9, {vr(OI,4)} offset:{LDS_X+8192}', tag='hw'); I(f'ds_write_b128 v10, {vr(OI+4,4)} offset:{LDS_X+8192}', tag='hw')
        yield
        I(f'v_lshrrev_b32 v8, 2, v{V_LANE}'); I('v_and_b32 v9, 7, v8'); I(f'v_bfe_u32 v10, v{V_LANE}, 1, 1')
        I('v_xor_b32 v9, v9, v10'); I('v_lshlrev_b32 v9, 4, v9')
        yield
        I('v_lshlrev_b32 v8, 7, v8'); I('v_add_u32 v8, v8, v9')
        I(f'v_and_b32 v9, 1, v{V_LANE}'); I('v_lshlrev_b32 v9, 3, v9'); I('v_add_u32 v8, v8, v9')
        I(f's_lshl_b32 s{S_T0}, s{S_W}, 12'); I(f'v_add_u32 v8, s{S_T0}, v8')
        yield
        self.wait(lg=['hw']); I('s_barrier')
        FR=16
        for nb in range(4):
            I(f'v_xor_b32 v9, {nb<<5}, v8'); I('v_xor_b32 v10, 64, v9')
            I(f'ds_read_b64_tr_b16 {vr(FR+4*nb,2)}, v9 offset:{LDS_X}', tag=('hp',nb))
            I(f'ds_read_b64_tr_b16 {vr(FR+4*nb+2,2)}, v10 offset:{LDS_X+2048}', tag=('hp',nb))
        I(f's_mul_i32 s{S_T0}, s{S_C}, {28*4096}'); I(f's_lshl_b32 s{S_T1}, s{S_G}, 14'); I(f's_add_u32 s{S_T0}, s{S_T0}, s{S_T1}')
        I(f's_lshl_b32 s{S_T1}, s{S_W}, 12'); I(f's_add_u32 s{S_T0}, s{S_T0}, s{S_T1}'); I(f's_add_u32 s94, s{S_T0}, {WS_HP}')
        yield
        for nb in range(4):
            self.wait(lg=[('hp',nb)])
            I(f'buffer_store_dwordx4 {vr(FR+4*nb,4)}, v{V_L16}, {srd(SRD_WS)}, s94 offen offset:{nb*1024} sc1', tag='stH')
            yield

    def flag_set(self, sa, mul, sb, base):
        I=self.I
        L=self.newlabel('flag')
        I(f's_cmp_lg_u32 s{S_W}, 0'); I(f's_cbranch_scc1 {L}')
        snap=self.snapshot()
        I(f's_mul_i32 s{S_T0}, s{sa}, {mul}'); I(f's_add_u32 s{S_T0}, s{S_T0}, s{sb}'); I(f's_lshl_b32 s{S_T0}, s{S_T0}, 6')
        I(f's_add_u32 s{S_T0}, s{S_T0}, {base}')
        I('v_mov_b32 v8, 0'); I('v_mov_b32 v9, 1')
        self.exec_set(1,0)
        I(f'buffer_store_dword v9, v8, {srd(SRD_WS)}, s{S_T0} offen sc1')
        self.exec_full()
        self.label(L); self.merge(snap)

    def g_bias_load(self):
        I=self.I
        I(f'v_lshrrev_b32 v8, 4, v{V_LANE}'); I('v_lshlrev_b32 v8, 3, v8')
        I(f's_lshl_b32 s{S_T0}, s{S_FT}, 7'); I(f's_lshl_b32 s{S_T1}, s{S_WH}, 6'); I(f's_add_u32 s{S_T0}, s{S_T0}, s{S_T1}')
        I(f'v_add_u32 v8, s{S_T0}, v8')
        I(f'global_load_dwordx2 v[32:33], v8, {sp(P_B1)}', tag='b1')
        I(f'global_load_dwordx2 v[34:35], v8, {sp(P_B1)} offset:32', tag='b1')

    def g_epilogue(self):
        I=self.I
        self.auto=self.opt.gepip
        self.reduce(V_RING)
        self.wait(vm=['b1'])
        for x in range(2):
            for h in range(2):
                I(f'v_lshlrev_b32 v{16+4*x+2*h}, 16, v{32+2*x+h}'); I(f'v_and_b32 v{17+4*x+2*h}, s{S_MASK}, v{32+2*x+h}')
        C1=-2.0*0.7978845608028654*1.4426950408889634
        C3=C1*0.044715
        import struct
        f2h=lambda f:'0x%08x'%struct.unpack('<I',struct.pack('<f',f))[0]
        I(f's_mov_b32 s{S_T2}, {f2h(C1)}'); I(f's_mov_b32 s{S_T3}, {f2h(C3)}')
        I(f'v_mov_b32 v31, s{S_T2}')
        U=[]
        for x in range(2):
            for y in range(2):
                for r in range(4):
                    U.append((V_ACC+16*x+4*y+r, 16+4*x+r))
        TT=V_RING
        for n,(u,b) in enumerate(U): I(f'v_add_f32 v{u}, v{u}, v{b}')
        for n,(u,b) in enumerate(U): I(f'v_mul_f32 v{TT+n}, v{u}, v{u}')
        for n,(u,b) in enumerate(U): I(f'v_fma_f32 v{TT+n}, v{TT+n}, s{S_T3}, v31')
        for n,(u,b) in enumerate(U): I(f'v_mul_f32 v{TT+n}, v{TT+n}, v{u}')
        for n,(u,b) in enumerate(U): I(f'v_exp_f32 v{TT+n}, v{TT+n}')
        for n,(u,b) in enumerate(U): I(f'v_add_f32 v{TT+n}, 1.0, v{TT+n}')
        for n,(u,b) in enumerate(U): I(f'v_rcp_f32 v{TT+n}, v{TT+n}')
        for n,(u,b) in enumerate(U): I(f'v_mul_f32 v{u}, v{u}, v{TT+n}')
        F=V_RING+16
        for y in range(2):
            for x in range(2):
                a=V_ACC+16*x+4*y
                I(f'v_cvt_pk_bf16_f32 v{F+4*y+2*x}, v{a}, v{a+1}'); I(f'v_cvt_pk_bf16_f32 v{F+4*y+2*x+1}, v{a+2}, v{a+3}')
        I(f's_mul_i32 s{S_T0}, s{S_DT1}, {56*4096}'); I(f's_lshl_b32 s{S_T1}, s{S_FT}, 13'); I(f's_add_u32 s{S_T0}, s{S_T0}, s{S_T1}')
        I(f's_lshl_b32 s{S_T1}, s{S_WH}, 12'); I(f's_add_u32 s{S_T0}, s{S_T0}, s{S_T1}')
        I(f's_lshl_b32 s{S_T1}, s{S_WL}, 11'); I(f's_add_u32 s{S_T0}, s{S_T0}, s{S_T1}'); I(f's_add_u32 s{S_T0}, s{S_T0}, {WS_GT}')
        for y in range(2):
            I(f'buffer_store_dwordx4 {vr(F+4*y,4)}, v{V_L16}, {srd(SRD_WS)}, s{S_T0} offen offset:{y*1024} sc1', tag='stG')
        self.auto=0
        self.e_loads()
        self.p2_flag_addr(); self.p2_bases()
        I(f'global_load_dword v54, v12, {sp(P_WS)} sc1', tag='fc')
        for n in range(self.opt.gwait): self.tick()
        self.wait(vm=['stG']); I('s_barrier')
        self.flag_set(S_DT1,28,S_FT,WS_FG)

    def w2_setup(self):
        I=self.I
        self.make_srd(SRD_W, P_W2, 1792*4096)
        self.ring_setup(4096, S_WL)
        I(f's_mul_i32 s{S_WBEG}, s{S_W}, {448*4096}'); I(f's_lshl_b32 s{S_T0}, s{S_C}, 7'); I(f's_add_u32 s{S_WBEG}, s{S_WBEG}, s{S_T0}')
        I(f's_mov_b32 s{S_WO}, s{S_WBEG}')
        self.ring_init('w2',14,4096,range(6))

    def rot_g(self, dst):
        I=self.I
        I(f's_mul_i32 s{dst}, s86, 37'); I(f's_lshr_b32 s{dst}, s{dst}, 8')
        I(f's_mul_i32 s{dst}, s{dst}, {7*self.opt.rot2}'); I(f's_lshr_b32 s{dst}, s{dst}, 1')
    def cpack(self):
        I=self.I
        L=self.newlabel('nocp')
        I(f's_cmp_ge_u32 s{S_E}, 28'); I(f's_cbranch_scc1 {L}')
        I(f's_mov_b32 s{SRD_1+2}, {448*896}'); I(f's_mov_b32 s{SRD_1+3}, 0x20000')
        I(f's_bitcmp1_b32 s{S_E}, 1')
        I(f's_cselect_b32 s{SRD_1}, s{P_CIM}, s{P_CRE}'); I(f's_cselect_b32 s{SRD_1+1}, s{P_CIM+1}, s{P_CRE+1}')
        I(f'v_and_b32 v9, 15, v{V_LANE}'); I('v_mul_u32_u24 v9, 896, v9'); I(f'v_lshrrev_b32 v10, 4, v{V_LANE}')
        I('v_lshlrev_b32 v10, 4, v10'); I('v_add_u32 v10, v9, v10')
        I(f's_lshr_b32 s{S_T0}, s{S_E}, 2'); I(f's_lshl_b32 s{S_T0}, s{S_T0}, 7')
        I(f's_and_b32 s{S_T1}, s{S_E}, 1'); I(f's_lshl_b32 s{S_T1}, s{S_T1}, 6'); I(f's_add_u32 s{S_T0}, s{S_T0}, s{S_T1}')
        I(f's_mul_i32 s{S_T1}, s{S_W}, {16*896}'); I(f's_add_u32 s{S_T0}, s{S_T0}, s{S_T1}')
        for dt in range(7):
            I(f'buffer_load_dwordx4 {vr(56+4*dt,4)}, v10, {srd(SRD_1)}, s{S_T0} offen', tag=('cp',dt))
            if dt<6: I(f's_add_u32 s{S_T0}, s{S_T0}, {64*896}')
        I(f's_lshl_b32 s{S_T0}, s{S_E}, 12'); I(f's_lshl_b32 s{S_T1}, s{S_W}, 10'); I(f's_add_u32 s{S_T0}, s{S_T0}, s{S_T1}')
        I(f's_add_u32 s{S_T0}, s{S_T0}, {WS_CP}')
        for dt in range(7):
            self.wait(vm=[('cp',dt)])
            I(f'buffer_store_dwordx4 {vr(56+4*dt,4)}, v{V_L16}, {srd(SRD_WS)}, s{S_T0} offen sc1', tag='stC')
            if dt<6: I(f's_add_u32 s{S_T0}, s{S_T0}, {28*4096}')
        self.label(L)
    def cpack_flag(self):
        I=self.I
        L=self.newlabel('nocf')
        Lp=self.newlabel('w0poll')
        self.wait(vm='all')
        I(f's_cmp_lg_u32 s{S_W}, 0'); I(f's_cbranch_scc1 {Lp}')
        I(f'v_and_b32 v8, 3, v{V_LANE}'); I('v_lshlrev_b32 v8, 6, v8')
        self.poll('e0e', 8, P_DBG, 64)
        self.label(Lp)
        I('s_barrier')
        I(f's_cmp_ge_u32 s{S_E}, 28'); I(f's_cbranch_scc1 {L}')
        I(f's_mov_b32 s{S_T1}, 0')
        self.flag_set(S_T1,1,S_E,WS_FC)
        self.label(L)

    def p2_resid_loads(self):
        I=self.I
        self.make_srd(SRD_OUT, P_OUT, 2048*1792)
        I(f'v_and_b32 v7, 15, v{V_LANE}'); I(f'v_lshrrev_b32 v8, 4, v{V_LANE}')
        I('v_mul_u32_u24 v9, 896, v7'); I('v_lshlrev_b32 v10, 3, v8'); I('v_add_u32 v9, v9, v10')
        I(f's_lshl_b32 s{S_T0}, s{S_C}, 6'); I(f's_lshl_b32 s{S_T1}, s{S_WL}, 5'); I(f's_add_u32 s{S_T0}, s{S_T0}, s{S_T1}')
        I(f's_lshl_b32 s{S_T1}, s{S_G}, 6'); I(f's_lshl_b32 s{S_T2}, s{S_WH}, 5'); I(f's_add_u32 s{S_T1}, s{S_T1}, s{S_T2}')
        for y in range(2):
            for x in range(2):
                I(f's_add_u32 s{S_T2}, s{S_T0}, {16*y}'); I(f's_mul_i32 s{S_T2}, s{S_T2}, 896')
                I(f's_add_u32 s{S_T3}, s{S_T1}, {16*x}'); I(f's_lshl_b32 s{S_T3}, s{S_T3}, 1'); I(f's_add_u32 s{S_T2}, s{S_T2}, s{S_T3}')
                I(f'buffer_load_dwordx2 {vr(16+4*y+2*x,2)}, v9, {srd(SRD_X)}, s{S_T2} offen', tag='res')
        I('v_lshlrev_b32 v9, 2, v7')
        for y in range(2):
            I(f's_add_u32 s{S_T2}, s{S_T0}, {16*y}'); I(f's_lshl_b32 s{S_T2}, s{S_T2}, 2'); I(f's_add_u32 s{S_T2}, s{S_T2}, {WS_STAT}')
            I(f'buffer_load_dword v{24+2*y}, v9, {srd(SRD_WS)}, s{S_T2} offen sc1', tag='res')
            I(f's_add_u32 s{S_T2}, s{S_T2}, 8192')
            I(f'buffer_load_dword v{25+2*y}, v9, {srd(SRD_WS)}, s{S_T2} offen sc1', tag='res')
        I(f's_lshl_b32 s{S_T2}, s{S_T1}, 1'); I(f'v_add_u32 v9, s{S_T2}, v10')
        I(f'global_load_dwordx2 v[28:29], v9, {sp(P_DSK)}', tag='res')
        I(f'global_load_dwordx2 v[30:31], v9, {sp(P_DSK)} offset:32', tag='res')
        I(f'v_add_u32 v9, s{S_T0}, v7'); I('v_lshlrev_b32 v9, 1, v9')
        I(f'global_load_ushort v10, v9, {sp(P_B2)}', tag='res')
        I(f'global_load_ushort v38, v9, {sp(P_B2)} offset:32', tag='res')
    def resid_compute(self):
        I=self.I
        self.wait(vm=['res'])
        I('v_lshlrev_b32 v10, 16, v10'); I('v_lshlrev_b32 v38, 16, v38')
        yield
        for x in range(2):
            for h in range(2):
                I(f'v_lshlrev_b32 v{32+2*h}, 16, v{28+2*x+h}'); I(f'v_and_b32 v{33+2*h}, s{S_MASK}, v{28+2*x+h}')
            yield
            for y in range(2):
                xs=16+4*y+2*x; st=24+2*y; b2=10 if y==0 else 38
                for h in range(2):
                    r=240+8*y+4*x+2*h
                    I(f'v_lshlrev_b32 v{r}, 16, v{xs+h}'); I(f'v_and_b32 v{r+1}, s{S_MASK}, v{xs+h}')
                    I(f'v_pk_add_f32 v[36:37], v[{r}:{r+1}], v[{st}:{st+1}] op_sel_hi:[1,0] neg_lo:[0,1] neg_hi:[0,1]')
                    yield
                    I(f'v_pk_mul_f32 v[36:37], v[36:37], v[{st}:{st+1}] op_sel:[0,1] op_sel_hi:[1,1]')
                    I(f'v_pk_add_f32 v[{r}:{r+1}], v[{r}:{r+1}], v[{b2}:{b2+1}] op_sel_hi:[1,0]')
                    I(f'v_pk_fma_f32 v[{r}:{r+1}], v[36:37], v[{32+2*h}:{33+2*h}], v[{r}:{r+1}]')
                    yield

    CREG=[['v16','v20','v24','v28'],['v32','v36','v40','v44'],['v48','v52','v216','v220'],['v224','v228','v232','v236'],
          ['a0','a4','a8','a12'],['a224','a228','a232','a236'],['a240','a244','a248','a252']]
    def creg(self,i,x):
        r=self.CREG[i][x]; n=int(r[1:]); return f'{r[0]}[{n}:{n+3}]'
    def p2_bases(self):
        I=self.I
        I(f's_mul_i32 s90, s{S_G}, {56*4096}'); I(f's_mul_i32 s{S_T0}, s{S_W}, {14*4096}'); I(f's_add_u32 s90, s90, s{S_T0}')
        I(f's_add_u32 s90, s90, {WS_GT}')
        I(f's_lshl_b32 s{S_T1}, s{S_WH}, 11'); I(f's_xor_b32 s{S_T2}, s{S_T1}, 2048')
        I(f's_add_u32 s92, s90, s{S_T2}'); I(f's_add_u32 s90, s90, s{S_T1}')
        I(f's_mul_i32 s22, s{S_G}, {28*4096}'); I(f's_mul_i32 s{S_T0}, s{S_W}, {7*4096}'); I(f's_add_u32 s22, s22, s{S_T0}')
        I(f's_add_u32 s22, s22, {WS_CP}')
        I(f's_add_u32 s23, s22, s{S_T2}'); I(f's_add_u32 s22, s22, s{S_T1}')
        I(f's_mul_i32 s38, s{S_C}, {28*4096}'); I(f's_add_u32 s38, s38, s{S_T0}'); I(f's_add_u32 s38, s38, {WS_HP}')
        I(f's_lshl_b32 s{S_T1}, s{S_WL}, 11'); I(f's_xor_b32 s{S_T2}, s{S_T1}, 2048')
        I(f's_add_u32 s39, s38, s{S_T2}'); I(f's_add_u32 s38, s38, s{S_T1}')
    def q_c(self, steps):
        I=self.I
        def one(i,x):
            def f():
                b=22 if x<2 else 23
                I(f's_add_u32 s91, s{b}, {i*4096}')
                I(f'buffer_load_dwordx4 {self.creg(i,x)}, v{V_L16}, {srd(SRD_WS)}, s91 offen offset:{(x&1)*1024} sc1', tag=('c',i,x))
            return f
        for i in steps:
            for x in range(4): self.q.append(one(i,x))
    def cflag_check(self):
        I=self.I
        L=self.newlabel('cf'); D=self.newlabel('cfd')
        self.wait(vm=['fc'])
        self.exec_set('0x3f80','0')
        I('v_cmp_gt_u32 vcc, 1, v54'); I(f's_cbranch_vccz {D}')
        snap=self.snapshot()
        I(f's_mov_b32 s{S_BOUND}, 0x200000')
        self.label(L)
        I(f'global_load_dword v54, v12, {sp(P_WS)} sc1'); I('s_waitcnt vmcnt(0)')
        I('v_cmp_gt_u32 vcc, 1, v54'); I(f's_cbranch_vccz {D}')
        I('s_sleep 4'); I(f's_sub_u32 s{S_BOUND}, s{S_BOUND}, 1'); I(f's_cbranch_scc0 {L}')
        self.label(D); self.restore(snap)
        self.exec_full()
    def flag_wait(self, vaddr, vdst, tag):
        I=self.I
        L=self.newlabel('fw'); D=self.newlabel('fwd')
        self.wait(vm=[tag])
        I(f'v_cmp_gt_u32 vcc, 1, v{vdst}'); I(f's_cbranch_vccz {D}')
        snap=self.snapshot()
        I(f's_mov_b32 s{S_BOUND}, 0x200000')
        self.label(L)
        I(f'global_load_dword v{vdst}, v{vaddr}, {sp(P_WS)} sc1'); I('s_waitcnt vmcnt(0)')
        I(f'v_cmp_gt_u32 vcc, 1, v{vdst}'); I(f's_cbranch_vccz {D}')
        I('s_sleep 4'); I(f's_sub_u32 s{S_BOUND}, s{S_BOUND}, 1'); I(f's_cbranch_scc0 {L}')
        self.label(D); self.restore(snap)
    def p2_main(self):
        I=self.I
        NS=6
        g0=self.opt.sfirst
        steps=[('g',k) for k in range(g0)]
        gi,si=g0,0
        while gi<14 or si<7:
            if si<7: steps.append(('s',si)); si+=1
            if gi<14: steps.append(('g',gi)); gi+=1
        groups=[('g',i) if k=='g' else ('h',i) for k,i in steps]
        gidx={g:n for n,g in enumerate(groups)}
        reg=lambda g: V_RING+16*(gidx[g]%NS)
        pend=[(g,x) for g in groups for x in range(4)]
        done=set(); state={}
        def can(g,x):
            n=gidx[g]-NS
            return n<0 or (groups[n],x) in done
        def issue(nmax):
            n=0
            while n<nmax and pend and can(*pend[0]):
                g,x=pend[0]
                if g[0]=='h' and not state.get('hflag'):
                    self.flag_wait(14,11,'fh'); state['hflag']=True
                pend.pop(0)
                b0,b1,nst={'g':(90,92,14),'h':(38,39,7)}[g[0]]
                sx=b0 if x<2 else b1
                I(f'buffer_load_dwordx4 {vr(reg(g)+4*x,4)}, v{V_L16}, {srd(SRD_WS)}, s{sx} offen offset:{(x&1)*1024} sc1', tag=(g,x))
                if (x&1) and g[1]<nst-1: I(f's_add_u32 s{sx}, s{sx}, 4096')
                n+=1
        issue(4*NS)
        first=True
        self.q_c([4])
        for pos,(kind,i) in enumerate(steps):
            if kind=='g' and i==3: I(f'global_load_dword v11, v14, {sp(P_WS)} sc1', tag='fh')
            if kind=='s':
                H=('h',i)
                for x in range(4):
                    self.wait(vm=[('c',i,x)]+([(H,y) for y in range(4)] if x==0 else []))
                    if x==0: self.stamp(f'p2.s{i}',fine=2)
                    for y in range(4):
                        d=V_ACC+16*x+4*y
                        I(f'v_mfma_f32_16x16x32_bf16 {vr(d,4)}, {self.creg(i,x)}, {vr(reg(H)+4*y,4)}, {vr(d,4)}')
                    if x<3: issue(1)
                for y in range(4): done.add((H,y))
                issue(2)
            else:
                A=('g',i)
                for x in range(4):
                    self.wait(vm=[(A,x)])
                    if x==0: self.stamp(f'p2.g{i}',fine=2)
                    for y in range(4):
                        d=V_ACC+16*x+4*y
                        cin='0' if first else vr(d,4)
                        I(f'v_mfma_f32_16x16x32_bf16 {vr(d,4)}, {vr(reg(A)+4*x,4)}, {ar(16*i+4*y,4)}, {cin}')
                    done.add((A,x))
                    issue(1)
                    if i==1: self.q.pop(0)()
            first=False
        assert not pend

    def p2_epilogue(self):
        I=self.I
        self.reduce(V_RING)
        for y in range(2):
            for x in range(2):
                a=V_ACC+16*x+4*y; r=240+8*y+4*x
                for h in range(2):
                    I(f'v_pk_add_f32 v[{a+2*h}:{a+2*h+1}], v[{a+2*h}:{a+2*h+1}], v[{r+2*h}:{r+2*h+1}]')
        if self.opt.delta:
            import struct
            hx='0x%08x'%struct.unpack('<I',struct.pack('<f',self.opt.delta))[0]
            for y in range(2):
                for x in range(2):
                    for r in range(4):
                        a=V_ACC+16*x+4*y+r
                        I(f'v_add_f32 v{a}, {hx}, v{a}')
        I(f'v_and_b32 v7, 15, v{V_LANE}'); I(f'v_lshrrev_b32 v8, 4, v{V_LANE}')
        I('v_mul_u32_u24 v9, 1792, v7'); I('v_lshlrev_b32 v10, 4, v8'); I('v_add_u32 v9, v9, v10')
        I(f's_lshl_b32 s{S_T0}, s{S_C}, 6'); I(f's_lshl_b32 s{S_T1}, s{S_WL}, 5'); I(f's_add_u32 s{S_T0}, s{S_T0}, s{S_T1}')
        I(f's_lshl_b32 s{S_T1}, s{S_G}, 6'); I(f's_lshl_b32 s{S_T2}, s{S_WH}, 5'); I(f's_add_u32 s{S_T1}, s{S_T1}, s{S_T2}')
        for y in range(2):
            for x in range(2):
                I(f's_add_u32 s{S_T2}, s{S_T0}, {16*y}'); I(f's_mul_i32 s{S_T2}, s{S_T2}, 1792')
                I(f's_add_u32 s{S_T3}, s{S_T1}, {16*x}'); I(f's_lshl_b32 s{S_T3}, s{S_T3}, 2'); I(f's_add_u32 s{S_T2}, s{S_T2}, s{S_T3}')
                a=V_ACC+16*x+4*y
                I(f'buffer_store_dwordx4 {vr(a,4)}, v9, {srd(SRD_OUT)}, s{S_T2} offen {self.opt.outmod}')

    def write_stamps(self):
        if not self.opt.stamps: return
        I=self.I
        I('s_lshl_b32 s3, s2, 2'); I(f's_add_u32 s3, s3, s{S_W}'); I('s_lshl_b32 s3, s3, 8'); I(f's_add_u32 s3, s3, {WS_DBG}')
        I(f'v_lshlrev_b32 v9, 2, v{V_LANE}')
        I(f'buffer_store_dword v{self.vst}, v9, {srd(SRD_WS)}, s3 offen')
        if getattr(self.opt,'dbgwg',-1)>=0 and self.final_stamps:
            L=self.newlabel('dbgout')
            I(f's_cmp_lg_u32 s2, {self.opt.dbgwg}'); I(f's_cbranch_scc1 {L}')
            I(f's_cmp_lg_u32 s{S_W}, 0'); I(f's_cbranch_scc1 {L}')
            I(f'v_readlane_b32 s3, v{self.vst}, 0'); I('s_nop 4')
            I(f'v_subrev_u32 v8, s3, v{self.vst}')
            I(f'v_add_u32 v9, {self.opt.dbgoff}, v{V_LANE}'); I('v_lshlrev_b32 v9, 2, v9')
            I('ds_bpermute_b32 v8, v9, v8'); I('s_waitcnt lgkmcnt(0)')
            I(f'v_lshlrev_b32 v9, 2, v{V_LANE}')
            self.exec_set('0xfffe','0')
            I(f'global_store_dword v9, v8, {sp(P_DBG)}')
            self.exec_full()
            self.label(L)
    def build(self):
        I=self.I; o=self.opt
        if o.stamps: I('v_mov_b32 v55, 0')
        self.prologue()
        self.touches_pre()
        wt=self.opt.w1touch
        if wt=='A' or self.opt.alsoA: self.touch_w1()
        if self.opt.t3start:
            Lt=self.newlabel('t3s')
            I(f's_cmp_lg_u32 s{S_W}, 3'); I(f's_cbranch_scc1 {Lt}')
            snap=self.snapshot()
            self.touch_w1_wg()
            self.label(Lt); self.merge(snap)
        Lcont=self.newlabel('cont')
        I('s_cmp_eq_u32 s74, 1'); I(f's_cbranch_scc1 {Lcont}')
        snap=self.snapshot()
        self.ln8(clears=False)
        self.vm['st0']=0
        self.arrive0()
        if wt=='F': self.touch_w1()
        self.stamp('pf1')
        self.cpack()
        self.stamp('cp')
        if not self.opt.now2: self.touch_pf(2)
        self.cpack_flag()
        self.stamp('pf2')
        self.write_stamps()
        I('s_endpgm')
        self.label(Lcont); self.restore(snap)
        self.dma_setup()
        if wt=='E': self.touch_w1(setup_only=True)
        self.w1_setup()
        if self.opt.bfirst: self.q_b(); self.q_x([0,1,2])
        else: self.q_x([0,1,2]); self.q_b()
        for n in range(self.opt.pre): self.tick()
        self.stamp('issued')
        self.auto=self.opt.period if self.opt.ln8tick else 0
        self.ln8()
        self.auto=0
        self.stamp('ln8 stored')
        if self.opt.bfirst: self.q_x([3])
        else:
            rest=self.q; self.q=[]; self.q_x([3]); self.q+=rest
        self.auto=self.opt.period
        self.x_addr()
        self.lam_consts()
        self.auto=0
        self.stamp('lam')
        self.arrive0()
        self.stamp('arrived')
        self.drain_q()
        if wt=='F': self.touch_w1()
        self.stamp('drained')
        self.wait(vm=['x64','bdma']); I('s_barrier')
        self.do_bread()
        self.wait(vm=['b13'])
        self.stamp('ln64')
        I(f'v_and_b32 v35, 3, v{V_LANE}'); I('v_lshlrev_b32 v35, 6, v35')
        I(f'global_load_dword v34, v35, {sp(P_DBG)} sc1', tag='e0c')
        self.auto=self.opt.bup
        self.bu_gemm()
        self.stamp('bu',fine=True)
        self.ln_fix()
        self.scan1()
        self.e_addr()
        self.auto=0
        self.stamp('scan1')
        Lnog=self.newlabel('nog1'); Lj=self.newlabel('g1join')
        I(f's_cmp_eq_u32 s{S_HASG1}, 0'); I(f's_cbranch_scc1 {Lnog}')
        snap=self.snapshot()
        R1=dict(self.R); R1['free']=list(self.R['free']); R1['slot']=dict(self.R['slot'])
        self.g_bias_load()
        self.gemm1()
        self.stamp('gemm1')
        self.g_epilogue()
        self.stamp('gepi')
        I(f's_branch {Lj}')
        snapA=self.snapshot()
        RA={k:self.R[k] for k in ('iss','rd','rel','piece')}; RA['free']=list(self.R['free']); RA['slot']=dict(self.R['slot'])
        self.label(Lnog); self.restore(snap); self.R=R1
        self.ring_finish(); self.wait(lg='all')
        self.w2_setup()
        self.replay_ring(RA)
        self.e_loads()
        self.p2_flag_addr(); self.p2_bases()
        I(f'global_load_dword v54, v12, {sp(P_WS)} sc1', tag='fc')
        self.label(Lj); self.merge(snapA)
        self.cflag_check()
        self.q_c([5,6])
        self.auto=self.opt.finp
        for _ in self.finalize(): pass
        self.auto=0
        self.stamp('final')
        if o.stamps: I('v_mov_b32 v15, v55'); self.vst=15
        self.drain_q()
        self.p2_resid_loads()
        for n in range(self.opt.rwait):
            if self.R is not None and not self.ring_tick(): self.ring_finish()
        self.auto=self.opt.finp
        for _ in self.resid_compute(): pass
        self.auto=0
        self.wait(vm=['stH']); I('s_barrier')
        self.flag_set(S_C,7,S_G,WS_FH)
        self.q_c([0,1,2,3])
        while self.q or self.R is not None:
            if self.q:
                self.tick()
                if len(self.q)==self.opt.fglead: I(f'global_load_dword v11, v12, {sp(P_WS)} sc1', tag='fg')
            if self.R is not None:
                if not self.ring_tick(): self.ring_finish()
        self.wait(lg='all')
        self.stamp('w2 in regs')
        self.flag_wait(12,11,'fg')
        self.stamp('flagG')
        self.p2_main()
        self.stamp('p2')
        self.p2_epilogue()
        self.stamp('end'); self.cstamp('c1')
        self.final_stamps=True
        self.write_stamps()
        self.label('L_exit')
        I('s_endpgm')
        self.label('L_code_end')

def header(lds):
    return f"""; Fused S5 SSM + MLP-Mixer token MLP, one persistent launch (256 workgroups, one per CU).
; @launch grid=(256,1,1) block=(256,1,1) lds={lds}
.amdgcn_target "amdgcn-amd-amdhsa--gfx950"
.text
.globl {KN}
.p2align 8
.type {KN},@function
{KN}:
"""
def footer():
    return f"""
.section .rodata,"a"
.p2align 6
.amdhsa_kernel {KN}
  .amdhsa_next_free_vgpr 512
  .amdhsa_next_free_sgpr 102
  .amdhsa_accum_offset 256
  .amdhsa_group_segment_fixed_size 0
  .amdhsa_kernarg_size 136
  .amdhsa_user_sgpr_count 2
  .amdhsa_user_sgpr_kernarg_segment_ptr 1
  .amdhsa_system_sgpr_workgroup_id_x 1
  .amdhsa_float_denorm_mode_32 3
.end_amdhsa_kernel
"""
if __name__=='__main__':
    ap=argparse.ArgumentParser()
    ap.add_argument('-o',default='k.s'); ap.add_argument('--stamps',action='store_true'); ap.add_argument('--stop',default=''); ap.add_argument('--fine',type=int,default=0); ap.add_argument('--period',type=int,default=48); ap.add_argument('--delta',type=float,default=0.0); ap.add_argument('--bup',type=int,default=0); ap.add_argument('--statj',type=int,default=9); ap.add_argument('--outmod',default=''); ap.add_argument('--dbgwg',type=int,default=-1); ap.add_argument('--dbgoff',type=int,default=0); ap.add_argument('--arrlead',type=int,default=10); ap.add_argument('--t3start',type=int,default=0); ap.add_argument('--notouch3',type=int,default=0); ap.add_argument('--own3',type=int,default=0); ap.add_argument('--alsoA',type=int,default=0); ap.add_argument('--now2',type=int,default=0); ap.add_argument('--gepip',type=int,default=0); ap.add_argument('--finp',type=int,default=36); ap.add_argument('--sfirst',type=int,default=10); ap.add_argument('--rwait',type=int,default=8); ap.add_argument('--fglead',type=int,default=6); ap.add_argument('--ln64p',type=int,default=48); ap.add_argument('--bfirst',type=int,default=0); ap.add_argument('--w2late',type=int,default=1); ap.add_argument('--rot1',type=int,default=4); ap.add_argument('--rot2',type=int,default=1); ap.add_argument('--rot3',type=int,default=1); ap.add_argument('--ln8tick',type=int,default=0); ap.add_argument('--bdelay',type=int,default=2); ap.add_argument('--w1touch',default='A'); ap.add_argument('--fin0',type=int,default=4); ap.add_argument('--finrate',type=int,default=2); ap.add_argument('--p2rate',type=int,default=3); ap.add_argument('--pre',type=int,default=1); ap.add_argument('--pre1',type=int,default=8); ap.add_argument('--gwait',type=int,default=6); ap.add_argument('--ht_touch',type=int,default=0); ap.add_argument('--g_touch',type=int,default=0)
    o=ap.parse_args()
    k=K(o); k.build()
    t,n=k.text()
    open(o.o,'w').write(header(LDS_TOTAL)+t+footer())
    print('wrote',o.o,'lines',t.count('\n'),'nop states inserted',n)
    if o.stamps: open(o.o+'.names','w').write(','.join(k.stampnames)); print(k.stampnames)
```

```python
import sys, os, argparse
from asmgen import Gen

KN = "parallel_sum__ssm_conv_s5__mixer_token_mlp__prompt_kernel"

WS_HT    = 0x000000
WS_STAT  = 0x1C0000
WS_E     = 0x1C4000
WS_FH    = 0x1E0000
WS_FG    = 0x1E4000
WS_FC    = 0x1E8000
WS_CP    = 0x780000
WS_GT    = 0x200000
WS_HP    = 0x400000
WS_DBG   = 0x900000

LDS_X  = 0
LDS_Y  = 57344
YW     = 26624
SLOT_OFF = [0, 4096, 8192, 12288, 16384, 20480]
LDS_LN8 = LDS_X + 57344 - 7680
LDS_TOTAL = LDS_Y + 4*YW

P_X, P_LRE, P_LIM, P_BRE, P_BIM, P_CRE, P_CIM, P_LDT = 4,6,8,10,12,14,16,18
P_DSK = 20
P_W1, P_B1, P_W2, P_B2 = 24,26,28,30
P_OUT, P_DBG, P_WS = 32,34,36
SRD_X, SRD_WS, SRD_1, SRD_2, SRD_W, SRD_OUT = 40,44,48,52,56,60
S_W, S_WH, S_WL, S_C, S_G, S_DT1, S_FT, S_HASG1 = 64,65,66,67,68,69,70,71
S_MASK, S_ONES = 72, 73
S_A, S_B, S_WO, S_T0, S_T1, S_T2, S_T3, S_BOUND = 76,77,78,79,80,81,82,83
S_YB = 84
S_WBEG, S_WEND = 96, 97
S_KO, S_KEND = 100, 101
S_FI = 3
S_E = 85
def sp(n): return f's[{n}:{n+1}]'
def srd(n): return f's[{n}:{n+3}]'
def vr(a,n): return f'v[{a}:{a+n-1}]' if n>1 else f'v{a}'
def ar(a,n): return f'a[{a}:{a+n-1}]' if n>1 else f'a{a}'

V_LANE, V_L16 = 0, 1
V_TR = 2
V_DMA = [6,13]
V_T = 16
V_LR,V_LI,V_K1,V_K2,V_SR,V_SI,V_PR,V_PI,V_L64R,V_L64I,V_L512R,V_L512I = range(40,52)
V_IN = 52
V_X64 = 56
V_BF = 112
V_RAW = 224
V_ACC = 56
V_RING = 120
V_EL = 16
V_EOF = 216

class K(Gen):
    def __init__(self, opt):
        super().__init__(); self.opt=opt; self.nstamp=0
        self.final_stamps=False; self.vst=55; self.nx=0; self.nb=0; self.bread=False; self.allow_bread=False; self.bdelay=opt.bdelay; self.q=[]; self.R=None; self.auto=0; self.acc=0; self.in_tick=False; self.full=True
    def I(self,t,tag=None):
        super().I(t,tag)
        if self.in_tick: return
        mn=t.split()[0]
        if mn.startswith(('buffer_','global_')): self.acc=0; return
        if not self.auto: return
        if mn.startswith('v_mfma'): self.acc+=16
        elif mn.startswith(('v_exp','v_rcp','v_sqrt','v_sin','v_cos','v_log')): self.acc+=8
        elif mn.startswith(('v_','ds_')): self.acc+=4
        else: return
        if self.acc>=self.auto and self.full and not mn.startswith(('v_cmp','s_cmp','s_bitcmp')):
            self.tick()
    def tick(self):
        self.in_tick=True; self.acc=0
        if not self.bread and self.allow_bread and self.nb>=34:
            if self.bdelay>0: self.bdelay-=1
            else:
                self.do_bread(); self.in_tick=False; return
        if self.q: self.q.pop(0)()
        elif self.R is not None: self.ring_tick()
        self.in_tick=False
    def do_bread(self):
        self.bread=True
        self.b_read()
        self.wait(lg=['brd'])
        self.ring_init('w1',16,3584,range(6))
    def drain_q(self):
        while self.q: self.tick()
    def stamp(self, name, fine=False):
        if not self.opt.stamps: return
        if fine and int(fine)>self.opt.fine: return
        i=self.nstamp; self.nstamp+=1
        assert i<64
        self.c(f'stamp {i}: {name}')
        self.wait(lg='all')
        self.I('s_memrealtime s[98:99]'); self.I('s_waitcnt lgkmcnt(0)'); self.smem=False
        self.I(f'v_writelane_b32 v{self.vst}, s98, {i}')
        self.stampnames=getattr(self,'stampnames',[])+[name]
    def cstamp(self, name):
        if not self.opt.stamps: return
        i=self.nstamp; self.nstamp+=1
        self.wait(lg='all')
        self.I('s_memtime s[98:99]'); self.I('s_waitcnt lgkmcnt(0)'); self.smem=False
        self.I(f'v_writelane_b32 v{self.vst}, s98, {i}')
        self.stampnames=getattr(self,'stampnames',[])+['#'+name]
    def rnd_bf16(self, v):
        self.I(f'v_cvt_pk_bf16_f32 v{v}, v{v}, v{v}')
        self.I(f'v_lshlrev_b32 v{v}, 16, v{v}')
    def make_srd(self, s, ptr, nbytes):
        self.I(f's_mov_b32 s{s}, s{ptr}'); self.I(f's_and_b32 s{s+1}, s{ptr+1}, 0xffff')
        self.I(f's_mov_b32 s{s+2}, {nbytes}'); self.I(f's_mov_b32 s{s+3}, 0x20000')
    def ln_stats(self, SUM, SSQ, R, C, T):
        I=self.I
        I(f'v_mul_f32 v{SUM}, 0x3b124925, v{SUM}')
        I(f'v_mul_f32 v{SSQ}, 0x3b124925, v{SSQ}')
        I(f'v_fma_f32 v{SSQ}, -v{SUM}, v{SUM}, v{SSQ}')
        I(f'v_max_f32 v{SSQ}, 0, v{SSQ}')
        I(f'v_cvt_pk_bf16_f32 v{SUM}, v{SUM}, v{SUM}')
        I(f'v_cvt_pk_bf16_f32 v{SSQ}, v{SSQ}, v{SSQ}')
        I(f'v_lshlrev_b32 v{SUM}, 16, v{SUM}')
        I(f'v_lshlrev_b32 v{SSQ}, 16, v{SSQ}')
        I(f'v_add_f32 v{SSQ}, 0x3727c5ac, v{SSQ}')
        self.rnd_bf16(SSQ)
        I(f'v_sqrt_f32 v{SSQ}, v{SSQ}')
        self.rnd_bf16(SSQ)
        I(f'v_rcp_f32 v{R}, v{SSQ}')
        I(f'v_mul_f32 v{C}, v{SUM}, v{R}')
        I(f'v_sub_f32 v{C}, 0, v{C}')
    def dot_sums(self, regs, accs):
        I=self.I
        for n,d in enumerate(regs):
            s,q = accs[2*(n&1)], accs[2*(n&1)+1]
            if n<2:
                I(f'v_dot2_f32_bf16 v{s}, v{d}, s{S_ONES}, 0')
                I(f'v_dot2_f32_bf16 v{q}, v{d}, v{d}, 0')
            else:
                I(f'v_dot2_f32_bf16 v{s}, v{d}, s{S_ONES}, v{s}')
                I(f'v_dot2_f32_bf16 v{q}, v{d}, v{d}, v{q}')
        I(f'v_add_f32 v{accs[0]}, v{accs[0]}, v{accs[2]}')
        I(f'v_add_f32 v{accs[1]}, v{accs[1]}, v{accs[3]}')
    def normalize(self, regs, R, C, tmps, hook=None):
        I=self.I
        n=len(tmps)
        for b in range(0,len(regs),n):
            grp=regs[b:b+n]
            for d,t in zip(grp,tmps):
                I(f'v_lshlrev_b32 v{t}, 16, v{d}')
                I(f'v_and_b32 v{t+1}, s{S_MASK}, v{d}')
            for d,t in zip(grp,tmps):
                I(f'v_pk_fma_f32 v[{t}:{t+1}], v[{t}:{t+1}], v[{R}:{R+1}], v[{C}:{C+1}] op_sel_hi:[1,0,0]')
            for d,t in zip(grp,tmps):
                I(f'v_cvt_pk_bf16_f32 v{d}, v{t}, v{t+1}')
            if hook: hook(b//n)
    def cmul(self, dr, di, xr, xi, yr, yi, t0, t1):
        I=self.I
        I(f'v_mul_f32 v{t0}, v{xi}, v{yi}')
        I(f'v_mul_f32 v{t1}, v{xi}, v{yr}')
        I(f'v_fma_f32 v{t0}, v{xr}, v{yr}, -v{t0}')
        I(f'v_fma_f32 v{di}, v{xr}, v{yi}, v{t1}')
        I(f'v_mov_b32 v{dr}, v{t0}')
    def cfma(self, dr, di, xr, xi, yr, yi, zr, zi, t0, t1):
        I=self.I
        I(f'v_fma_f32 v{t0}, v{xr}, v{yr}, v{zr}')
        I(f'v_fma_f32 v{t1}, v{xr}, v{yi}, v{zi}')
        I(f'v_fma_f32 v{t0}, -v{xi}, v{yi}, v{t0}')
        I(f'v_fma_f32 v{di}, v{xi}, v{yr}, v{t1}')
        I(f'v_mov_b32 v{dr}, v{t0}')
    def csq(self, dr, di, xr, xi, t0):
        I=self.I
        I(f'v_mul_f32 v{t0}, v{xi}, v{xi}')
        I(f'v_mul_f32 v{di}, v{xr}, v{xi}')
        I(f'v_fma_f32 v{dr}, v{xr}, v{xr}, -v{t0}')
        I(f'v_add_f32 v{di}, v{di}, v{di}')
    def allgather_q(self, v, g0, g1, g2, g3):
        I=self.I
        I(f'v_mov_b32 v{g0}, v{v}'); I(f'v_mov_b32 v{g1}, v{v}')
        I(f'v_permlane16_swap_b32 v{g0}, v{g1}')
        I(f'v_mov_b32 v{g2}, v{g0}'); I(f'v_mov_b32 v{g3}, v{g1}')
        I(f'v_permlane32_swap_b32 v{g0}, v{g2}')
        I(f'v_permlane32_swap_b32 v{g1}, v{g3}')
    def exec_full(self): self.I('s_mov_b64 exec, -1'); self.full=True
    def exec_set(self, lo, hi):
        self.full=False
        self.I(f's_mov_b32 exec_lo, {lo}'); self.I(f's_mov_b32 exec_hi, {hi}')
    def poll(self, name, voff, base, cmp_ge, nlanes_lo=None):
        I=self.I
        L=self.newlabel('poll'); D=self.newlabel('polld')
        I(f's_mov_b32 s{S_BOUND}, 0x200000')
        self.label(L)
        I(f'global_load_dword v7, v{voff}, {sp(base)} sc1')
        I('s_waitcnt vmcnt(0)'); self.vm={}
        I(f'v_cmp_gt_u32 vcc, {cmp_ge}, v7')
        I(f's_cbranch_vccz {D}')
        I('s_sleep 4')
        I(f's_sub_u32 s{S_BOUND}, s{S_BOUND}, 1')
        I(f's_cbranch_scc0 {L}')
        self.label(D)

    def ring_setup(self, pitch, xorsel):
        I=self.I
        I(f'v_lshrrev_b32 v7, 3, v{V_LANE}'); I(f'v_and_b32 v8, 7, v{V_LANE}')
        I('v_and_b32 v9, 6, v7'); I('v_xor_b32 v8, v8, v9'); I('v_lshlrev_b32 v8, 4, v8')
        I(f'v_mul_u32_u24 v7, {pitch}, v7'); I(f'v_add_u32 v{V_DMA[0]}, v7, v8')
        I(f'v_add_u32 v{V_DMA[1]}, {8*pitch-1024}, v{V_DMA[0]}')
        I(f'v_lshrrev_b32 v7, 2, v{V_LANE}'); I('v_and_b32 v8, 6, v7')
        I(f'v_bfe_u32 v9, v{V_LANE}, 1, 1'); I('v_xor_b32 v8, v8, v9'); I('v_lshlrev_b32 v8, 4, v8')
        I('v_lshlrev_b32 v7, 7, v7'); I('v_add_u32 v7, v7, v8')
        I(f'v_and_b32 v9, 1, v{V_LANE}'); I('v_lshlrev_b32 v9, 3, v9'); I('v_add_u32 v7, v7, v9')
        I(f's_lshl_b32 s{S_T0}, s{xorsel}, 6')
        I(f'v_xor_b32 v7, s{S_T0}, v7')
        I(f'v_add_u32 v{V_TR}, s{S_YB}, v7')
        for x in range(1,4):
            I(f'v_xor_b32 v{V_TR+x}, {x<<5}, v{V_TR}')
    def ring_init(self, name, nsteps, pitch, slots):
        self.R=dict(name=name,n=nsteps,pitch=pitch,free=list(slots),slot={},iss=0,rd=0,rel=0,piece=0)
    def ring_add(self, slots): self.R['free']+=list(slots)
    def ring_issue_piece(self):
        R=self.R; I=self.I
        k=R['iss']
        if k>=R['n']: return False
        j=R['piece']
        if j==0:
            if not R['free']: return False
            R['slot'][k]=R['free'].pop(0)
        if j%2==0:
            I(f's_add_u32 m0, s{S_YB}, {SLOT_OFF[R["slot"][k]]+j*1024}')
            if k or j: I(f's_add_u32 s{S_WO}, s{S_WO}, {16*R["pitch"]}')
            else: I('s_nop 0')
        I(f'buffer_load_dwordx4 v{V_DMA[j%2]}, {srd(SRD_W)}, s{S_WO} offen offset:{(j%2)*1024} lds', tag=(R['name'],k))
        R['piece']=(j+1)%4
        if R['piece']==0: R['iss']+=1
        return True
    def ring_issue(self):
        while self.ring_issue_piece(): pass
    def ring_read(self):
        R=self.R; I=self.I
        k=R['rd']
        if k>=R['n']: return False
        assert k<R['iss'], 'read before issue'
        off=SLOT_OFF[R['slot'][k]]
        self.wait(vm=[(R['name'],k)])
        for x in range(4):
            b=16*k+4*x
            I(f'ds_read_b64_tr_b16 {ar(b,2)}, v{V_TR+x} offset:{off}', tag=(R['name'],'r',k))
            I(f'ds_read_b64_tr_b16 {ar(b+2,2)}, v{V_TR+x} offset:{off+2048}', tag=(R['name'],'r',k))
        R['rd']+=1
        return True
    def ring_release(self):
        R=self.R
        k=R['rel']
        if k>=R['rd']: return False
        self.wait(lg=[(R['name'],'r',k)])
        R['free'].append(R['slot'][k]); R['rel']+=1
        self.ring_issue()
        return True
    def ring_tick(self):
        R=self.R
        if R['iss']<R['n']:
            if R['piece']==0 and not R['free']:
                if R['rel']>=R['rd']:
                    assert R['rd']<R.get('maxrd',99)
                    self.ring_read()
                k=R['rel']; self.wait(lg=[(R['name'],'r',k)]); R['free'].append(R['slot'][k]); R['rel']+=1
            self.ring_issue_piece()
            if R['piece']==3 and not R['free'] and R['rd']==R['rel'] and R['rd']<R['iss'] and R['rd']<R.get('maxrd',99):
                self.ring_read()
            return True
        if R['rd']<R['n'] and R['rd']<R.get('maxrd',99): return self.ring_read()
        return False
    def bg(self):
        return self.ring_tick()
    def replay_ring(self, RA):
        R=self.R
        while (R['iss'],R['piece'])<(RA['iss'],RA['piece']) or R['rd']<RA['rd']:
            if (R['iss'],R['piece'])<(RA['iss'],RA['piece']):
                before=R['rd']
                R['maxrd']=RA['rd']
                self.ring_tick()
            else:
                self.ring_read()
        while R['rel']<RA['rel']:
            k=R['rel']; self.wait(lg=[(R['name'],'r',k)]); R['free'].append(R['slot'][k]); R['rel']+=1
        R['maxrd']=99
        for k in RA: assert RA[k]==R[k], (k,RA[k],R[k])
    def ring_finish(self):
        R=self.R; R['maxrd']=99
        while R['rd']<R['n'] or R['iss']<R['n']: self.ring_tick()
        R['rel']=R['n']; self.R=None

    def reduce(self, tmp, pre=None, post=None):
        I=self.I
        for e in (1,2,3):
            I(f's_xor_b32 s{S_T0}, s{S_W}, {e}'); I(f's_mul_i32 s{S_T0}, s{S_T0}, {3*4096}')
            I(f's_add_u32 s{S_T0}, s{S_T0}, {LDS_X+(e-1)*4096}')
            I(f'v_add_u32 v7, s{S_T0}, v{V_L16}')
            xh,yh=e>>1,e&1
            for xl in range(2):
                for yl in range(2):
                    a=V_ACC+16*(2*xh+xl)+4*(2*yh+yl)
                    I(f'ds_write_b128 v7, {vr(a,4)} offset:{(2*xl+yl)*1024}', tag='redw')
        if pre: pre()
        self.wait(lg='all'); I('s_barrier')
        if post: post()
        I(f's_mul_i32 s{S_T0}, s{S_W}, {3*4096}'); I(f'v_add_u32 v7, s{S_T0}, v{V_L16}')
        for e in range(3):
            for sub in range(4):
                I(f'ds_read_b128 {vr(tmp+16*e+4*sub,4)}, v7 offset:{LDS_X+e*4096+sub*1024}', tag=('red',e))
        for e in range(3):
            self.wait(lg=[('red',e)])
            for sub in range(4):
                a=V_ACC+16*(sub>>1)+4*(sub&1)
                for h in range(2):
                    I(f'v_pk_add_f32 v[{a+2*h}:{a+2*h+1}], v[{a+2*h}:{a+2*h+1}], v[{tmp+16*e+4*sub+2*h}:{tmp+16*e+4*sub+2*h+1}]')

    def prologue(self):
        I=self.I
        I('s_cmp_ge_u32 s2, 256'); I('s_cbranch_scc1 L_exit')
        I('s_load_dwordx16 s[4:19], s[0:1], 0')
        I('s_load_dwordx2 s[20:21], s[0:1], 64')
        I('s_load_dwordx8 s[24:31], s[0:1], 80')
        I('s_load_dwordx4 s[32:35], s[0:1], 112')
        I('s_load_dwordx2 s[36:37], s[0:1], 128')
        I('v_lshrrev_b32 v7, 6, v0'); I(f'v_and_b32 v{V_LANE}, 63, v0')
        I(f'v_readfirstlane_b32 s{S_W}, v7')
        I(f'v_lshlrev_b32 v{V_L16}, 4, v{V_LANE}')
        I(f's_mov_b32 s{S_MASK}, 0xffff0000'); I(f's_mov_b32 s{S_ONES}, 0x3f803f80')
        I('s_and_b32 s22, s2, 7')
        I('s_lshr_b32 s23, s2, 3')
        I('s_and_b32 s38, s22, 1')
        I('s_lshr_b32 s39, s22, 1')
        I(f's_lshr_b32 s{S_WH}, s{S_W}, 1'); I(f's_and_b32 s{S_WL}, s{S_W}, 1')
        I(f's_mul_i32 s{S_T0}, s23, 37'); I(f's_lshr_b32 s{S_T0}, s{S_T0}, 8')
        I(f's_mul_i32 s{S_T1}, s{S_T0}, 7'); I(f's_sub_u32 s{S_G}, s23, s{S_T1}')
        I(f's_mov_b32 s{S_DT1}, s{S_G}')
        I(f's_lshl_b32 s{S_T1}, s22, 2'); I(f's_add_u32 s{S_C}, s{S_T1}, s{S_T0}')
        I(f's_min_u32 s{S_C}, s{S_C}, 31')
        I(f's_mul_i32 s{S_T1}, s39, 7'); I(f's_lshl_b32 s{S_T2}, s38, 2'); I(f's_add_u32 s87, s{S_T1}, s{S_T2}')
        I(f's_add_u32 s{S_FT}, s87, s{S_T0}'); I(f's_min_u32 s{S_FT}, s{S_FT}, 27')
        I(f's_sub_u32 s{S_T1}, 4, s38'); I(f's_cmp_lt_u32 s{S_T0}, s{S_T1}'); I(f's_cselect_b32 s{S_HASG1}, 1, 0')
        I('s_cmp_lt_u32 s23, 28'); I('s_cselect_b32 s74, 1, 0')
        self.wait(lg='all')
        self.make_srd(SRD_X, P_X, 2048*896)
        self.x8_issue(2)
        I('s_getpc_b64 s[98:99]'); self.label('L_pc0')
        I(f's_sub_u32 s98, s98, L_pc0-{KN}'); I('s_subb_u32 s99, s99, 0')
        I(f's_and_b32 s{S_T0}, s23, 1'); I(f's_lshl_b32 s{S_T0}, s{S_T0}, 2'); I(f's_add_u32 s{S_T0}, s{S_T0}, s{S_W}')
        I(f's_lshl_b32 s{S_T0}, s{S_T0}, 13')
        I(f'v_lshlrev_b32 v9, 7, v{V_LANE}'); I(f'v_add_u32 v9, s{S_T0}, v9')
        I(f'v_min_u32 v9, L_code_end-{KN}-16, v9')
        I('global_load_dword v12, v9, s[98:99]', tag='pf')
        self.make_srd(SRD_WS, P_WS, 0x10000000)
        I(f's_mul_i32 s{S_YB}, s{S_W}, {YW}'); I(f's_add_u32 s{S_YB}, s{S_YB}, {LDS_Y}')
        I(f's_sub_u32 s{S_E}, s23, 28'); I(f's_lshl_b32 s{S_E}, s{S_E}, 3'); I(f's_add_u32 s{S_E}, s{S_E}, s22')
        I('s_mov_b32 s86, s23'); I('s_mov_b32 s95, s22')
        self.stamp('start'); self.cstamp('c0')

    def x8_issue(self, oct):
        I=self.I
        I(f's_lshr_b32 s75, s{oct}, 2'); I('s_lshl_b32 s75, s75, 5')
        I(f's_lshl_b32 s{S_T0}, s{S_WH}, 4'); I(f's_add_u32 s75, s75, s{S_T0}')
        I(f's_and_b32 s{S_T0}, s{oct}, 3'); I(f's_lshl_b32 s{S_T0}, s{S_T0}, 2'); I(f's_add_u32 s75, s75, s{S_T0}')
        I(f's_lshl_b32 s{S_T0}, s{S_WL}, 1'); I(f's_add_u32 s75, s75, s{S_T0}')
        I(f's_mul_i32 s{S_T2}, s75, 896')
        I(f'v_and_b32 v7, 31, v{V_LANE}'); I(f'v_lshrrev_b32 v8, 5, v{V_LANE}')
        I('v_mul_u32_u24 v8, 896, v8'); I('v_lshlrev_b32 v9, 5, v7'); I('v_add_u32 v8, v8, v9')
        I('v_mov_b32 v9, 0x7ffffff0'); I('v_cmp_gt_u32 vcc, 28, v7'); I('v_cndmask_b32 v8, v9, v8, vcc')
        I(f'buffer_load_dwordx4 {vr(V_T,4)}, v8, {srd(SRD_X)}, s{S_T2} offen', tag='x8')
        I(f'buffer_load_dwordx4 {vr(V_T+4,4)}, v8, {srd(SRD_X)}, s{S_T2} offen offset:16', tag='x8')
    def touches_pre(self):
        I=self.I
        self.make_srd(SRD_1, P_BRE, 448*896); self.make_srd(SRD_2, P_BIM, 448*896); self.make_srd(SRD_W, P_W1, 2048*3584)
        I(f'v_lshrrev_b32 v7, 3, v{V_LANE}'); I(f'v_and_b32 v8, 7, v{V_LANE}'); I('v_min_u32 v8, 6, v8')
        I('v_mul_u32_u24 v7, 896, v7'); I('v_lshlrev_b32 v8, 7, v8'); I('v_add_u32 v7, v7, v8')
        I(f's_lshl_b32 s{S_T3}, s86, 2'); I(f's_add_u32 s{S_T3}, s{S_T3}, s{S_W}')
        I(f's_lshl_b32 s{S_T0}, s95, 8'); I(f's_lshl_b32 s{S_T1}, s{S_T3}, 1'); I(f's_add_u32 s{S_T0}, s{S_T0}, s{S_T1}'); I(f's_mul_i32 s{S_T0}, s{S_T0}, 896')
        self.exec_set('0xffff','0')
        I(f'buffer_load_dword v12, v7, {srd(SRD_X)}, s{S_T0} offen', tag='touch')
        I(f's_and_b32 s{S_T0}, s{S_T3}, 63'); I(f's_mul_i32 s{S_T0}, s{S_T0}, {7*896}')
        I(f's_cmp_lt_u32 s{S_T3}, 64')
        I(f's_cselect_b32 s{SRD_OUT}, s{P_BRE}, s{P_BIM}'); I(f's_cselect_b32 s{SRD_OUT+1}, s{P_BRE+1}, s{P_BIM+1}')
        I(f's_mov_b32 s{SRD_OUT+2}, {448*896}'); I(f's_mov_b32 s{SRD_OUT+3}, 0x20000')
        self.exec_set('-1','0x00ffffff')
        I(f'buffer_load_dword v12, v7, {srd(SRD_OUT)}, s{S_T0} offen', tag='touch')
        self.exec_full()
    def touch_w1(self, setup_only=False):
        I=self.I
        I(f'v_lshrrev_b32 v7, 2, v{V_LANE}'); I(f'v_and_b32 v8, 3, v{V_LANE}')
        I(f's_and_b32 s{S_T1}, s95, 1'); I(f's_sub_u32 s{S_T1}, 3, s{S_T1}'); I(f'v_min_u32 v8, s{S_T1}, v8')
        I('v_mul_u32_u24 v7, 3584, v7'); I('v_lshlrev_b32 v8, 7, v8'); I('v_add_u32 v7, v7, v8')
        I(f's_lshl_b32 s{S_T0}, s{S_W}, 9'); I(f's_lshl_b32 s{S_T1}, s86, 4'); I(f's_add_u32 s{S_T0}, s{S_T0}, s{S_T1}')
        I(f's_mul_i32 s{S_T0}, s{S_T0}, 3584'); I(f's_lshl_b32 s{S_T1}, s87, 7'); I(f's_add_u32 s{S_T0}, s{S_T0}, s{S_T1}')
        if setup_only:
            I('v_mov_b32 v238, v7'); I(f's_mov_b32 s94, s{S_T0}'); return
        I(f'buffer_load_dword v12, v7, {srd(SRD_W)}, s{S_T0} offen', tag='touch')
    def touch_w1_split(self, rest):
        I=self.I
        I(f'v_lshrrev_b32 v7, 2, v{V_LANE}'); I(f'v_and_b32 v8, 3, v{V_LANE}')
        I(f's_and_b32 s{S_T1}, s95, 1'); I(f's_sub_u32 s{S_T1}, 3, s{S_T1}'); I(f'v_min_u32 v8, s{S_T1}, v8')
        I('v_mul_u32_u24 v7, 3584, v7'); I('v_lshlrev_b32 v8, 7, v8'); I('v_add_u32 v7, v7, v8')
        I(f's_lshl_b32 s{S_T0}, s{S_W}, 9')
        if not rest:
            I(f's_lshl_b32 s{S_T1}, s86, 3'); I(f's_add_u32 s{S_T0}, s{S_T0}, s{S_T1}')
        else:
            I(f's_sub_u32 s{S_T1}, s86, 28'); I(f's_lshl_b32 s{S_T1}, s{S_T1}, 4'); I(f's_add_u32 s{S_T0}, s{S_T0}, s{S_T1}'); I(f's_add_u32 s{S_T0}, s{S_T0}, 224')
        I(f's_mul_i32 s{S_T0}, s{S_T0}, 3584'); I(f's_lshl_b32 s{S_T1}, s87, 7'); I(f's_add_u32 s{S_T0}, s{S_T0}, s{S_T1}')
        if not rest:
            self.exec_set('-1','0')
            I(f'buffer_load_dword v12, v7, {srd(SRD_W)}, s{S_T0} offen', tag='touch')
            self.exec_full()
        else:
            for t in range(5):
                I(f'buffer_load_dword v12, v7, {srd(SRD_W)}, s{S_T0} offen', tag='touch')
                if t<4: I(f's_add_u32 s{S_T0}, s{S_T0}, {64*3584}')
    def touch_w1_wg(self):
        I=self.I
        I(f'v_lshrrev_b32 v7, 2, v{V_LANE}'); I(f'v_and_b32 v8, 3, v{V_LANE}')
        I(f's_and_b32 s{S_T1}, s95, 1'); I(f's_sub_u32 s{S_T1}, 3, s{S_T1}'); I(f'v_min_u32 v8, s{S_T1}, v8')
        I('v_mul_u32_u24 v7, 3584, v7'); I('v_lshlrev_b32 v8, 7, v8'); I('v_add_u32 v7, v7, v8')
        I(f's_lshl_b32 s{S_T0}, s86, 4'); I(f's_mul_i32 s{S_T0}, s{S_T0}, 3584'); I(f's_lshl_b32 s{S_T1}, s87, 7'); I(f's_add_u32 s{S_T0}, s{S_T0}, s{S_T1}')
        for q in range(4):
            I(f'buffer_load_dword v12, v7, {srd(SRD_W)}, s{S_T0} offen', tag='touch')
            if q<3: I(f's_add_u32 s{S_T0}, s{S_T0}, {512*3584}')
    def q_w3(self):
        I=self.I
        def xpair(p):
            def f():
                L=self.newlabel('xw3')
                I(f's_add_u32 s100, s{S_W}, {3*p}'); I('s_cmp_ge_u32 s100, 8'); I(f's_cbranch_scc1 {L}')
                snap=self.snapshot()
                I('s_lshl_b32 s101, s100, 4'); I(f'v_xor_b32 v238, s101, v{V_L16}')
                I('s_lshr_b32 s101, s100, 1'); I('s_lshl_b32 s101, s101, 4'); I('s_and_b32 s100, s100, 1'); I('s_lshl_b32 s100, s100, 1')
                I('s_add_u32 s100, s100, s101'); I('s_add_u32 s100, s100, 12'); I('s_mul_i32 s100, s100, 896')
                I(f's_lshl_b32 s101, s{S_C}, 6'); I('s_mul_i32 s101, s101, 896'); I('s_add_u32 s101, s101, s100')
                I('s_mov_b32 exec_hi, 0x00ffffff')
                I(f's_add_u32 m0, s100, {LDS_X}'); I('s_nop 0')
                I(f'buffer_load_dwordx4 v238, {srd(SRD_X)}, s101 offen lds', tag='x64')
                I(f's_add_u32 m0, s100, {LDS_X+896}'); I('s_add_u32 s101, s101, 896')
                I(f'buffer_load_dwordx4 v238, {srd(SRD_X)}, s101 offen lds', tag='x64')
                I('s_mov_b32 exec_hi, -1')
                self.label(L); self.merge(snap); self.vm['x64']=0
            return f
        def bblock(p):
            def f():
                L=self.newlabel('bw3'); Li=self.newlabel('bw3i')
                I(f's_add_u32 s100, s{S_W}, {3*p}'); I('s_cmp_ge_u32 s100, 8'); I(f's_cbranch_scc1 {L}')
                snap=self.snapshot()
                I('s_and_b32 s101, s100, 3'); I('s_sub_u32 s91, 0, s101'); I('s_and_b32 s91, s91, 3'); I('s_lshl_b32 s91, s91, 4')
                I(f'v_xor_b32 v238, s91, v{V_L16}')
                I('s_bitcmp1_b32 s100, 2')
                I(f's_cselect_b32 s{SRD_OUT}, s{P_BIM}, s{P_BRE}'); I(f's_cselect_b32 s{SRD_OUT+1}, s{P_BIM+1}, s{P_BRE+1}')
                I('s_cselect_b32 s100, 13312, 0')
                I('s_mul_i32 s91, s101, 3328'); I('s_add_u32 s100, s100, s91'); I(f's_add_u32 s100, s100, {LDS_Y+3*YW}')
                I('s_mul_i32 s101, s101, 3584')
                I(f's_lshl_b32 s91, s{S_G}, 6'); I('s_add_u32 s91, s91, 48'); I('s_mul_i32 s91, s91, 896'); I('s_add_u32 s101, s101, s91')
                I('s_mov_b32 exec_hi, 0x000fffff')
                for r in range(4):
                    I(f's_add_u32 m0, s100, {r*832}')
                    if r: I('s_add_u32 s101, s101, 896')
                    else: I('s_nop 0')
                    I(f'buffer_load_dwordx4 v238, {srd(SRD_OUT)}, s101 offen lds', tag='bdma')
                I('s_mov_b32 exec_hi, -1')
                self.label(L); self.merge(snap); self.vm['bdma']=0
            return f
        return [xpair(p) for p in range(3)], [bblock(p) for p in range(3)]
    def dma_setup(self):
        I=self.I
        for n,h in enumerate((0,3,2,1)): I(f'v_xor_b32 v{224+n}, {h<<4}, v{V_L16}')
        for g in range(8): I(f'v_xor_b32 v{228+g}, {g<<4}, v{V_L16}')
        I(f's_lshl_b32 s{S_T0}, s{S_G}, 6'); I(f's_lshl_b32 s{S_T1}, s{S_W}, 4'); I(f's_add_u32 s88, s{S_T0}, s{S_T1}')
        I('s_mul_i32 s89, s88, 896')
        I(f's_lshl_b32 s{S_T0}, s{S_C}, 6'); I(f's_lshl_b32 s{S_T1}, s{S_W}, 2'); I(f's_add_u32 s{S_T0}, s{S_T0}, s{S_T1}')
        I(f's_mul_i32 s92, s{S_T0}, 896')
        I(f's_mul_i32 s93, s{S_W}, 3584')
        I(f'v_and_b32 v7, 15, v{V_LANE}'); I('v_mul_u32_u24 v236, 896, v7'); I(f'v_lshrrev_b32 v9, 4, v{V_LANE}'); I('v_lshlrev_b32 v9, 4, v9')
        I('v_add_u32 v236, v236, v9')
        I('v_add_u32 v237, s88, v7'); I('v_lshlrev_b32 v237, 1, v237')
    def q_b(self):
        I=self.I
        def row(im,n):
            def f():
                I('s_mov_b32 exec_hi, 0x000fffff')
                I(f's_add_u32 m0, s{S_YB}, {im*13312+n*832}')
                I(f's_add_u32 s91, s89, {n*896}')
                I(f'buffer_load_dwordx4 v{224+(n>>2)}, {srd(SRD_1 if im==0 else SRD_2)}, s91 offen lds', tag='bdma'); self.nb+=1
                I('s_mov_b32 exec_hi, -1')
            return f
        for im in range(2):
            for n in range(16): self.q.append(row(im,n))
        def b13(srdn,dst):
            def f():
                I(f'buffer_load_dwordx4 {vr(dst,4)}, v236, {srd(srdn)}, s89 offen offset:832', tag='b13'); self.nb+=1
            return f
        if self.opt.w1touch=='W':
            self.b13_loads=lambda: (b13(SRD_1,V_BF+52)(), b13(SRD_2,V_BF+56+52)())
        else:
            self.q.append(b13(SRD_1,V_BF+52)); self.q.append(b13(SRD_2,V_BF+56+52))
        def lam():
            I(f'global_load_ushort v{V_IN}, v237, {sp(P_LRE)}', tag='lam')
            I(f'global_load_ushort v{V_IN+1}, v237, {sp(P_LIM)}', tag='lam')
            I(f'global_load_ushort v{V_IN+2}, v237, {sp(P_LDT)}', tag='lam')
        self.q.insert(0,lam)
    def q_x(self, alist):
        I=self.I
        def row(a,b):
            def f():
                g=2*a+(b>>1); d=(16*a+b)*896
                I('s_mov_b32 exec_hi, 0x00ffffff')
                I(f's_add_u32 m0, s93, {LDS_X+d}')
                I(f's_add_u32 s91, s92, {d}')
                I(f'buffer_load_dwordx4 v{228+g}, {srd(SRD_X)}, s91 offen lds', tag='x64'); self.nx+=1
                I('s_mov_b32 exec_hi, -1')
            return f
        for a in alist:
            for b in range(4): self.q.append(row(a,b))
    def b_read(self):
        I=self.I
        I(f'v_and_b32 v7, 15, v{V_LANE}'); I(f'v_lshrrev_b32 v8, 4, v{V_LANE}'); I('v_lshrrev_b32 v9, 2, v7')
        I('v_sub_u32 v9, 0, v9'); I('v_and_b32 v9, 3, v9'); I('v_xor_b32 v8, v8, v9')
        I('v_lshlrev_b32 v8, 4, v8'); I('v_mul_u32_u24 v7, 832, v7'); I('v_add_u32 v7, v7, v8'); I(f'v_add_u32 v7, s{S_YB}, v7')
        if self.opt.w1touch!='W': self.wait(vm=['bdma'])
        for im in range(2):
            for j in range(13):
                I(f'ds_read_b128 {vr(V_BF+56*im+4*j,4)}, v7 offset:{im*13312+j*64}', tag='brd')
    def touch_pf(self, which):
        I=self.I
        if which==1: pitch,nrow,nt,srdn=3584,512,8,SRD_W
        else:
            pitch,nrow,nt,srdn=4096,448,7,SRD_OUT
            self.make_srd(SRD_OUT, P_W2, 1792*4096)
        I(f'v_lshrrev_b32 v7, 2, v{V_LANE}'); I(f'v_and_b32 v8, 3, v{V_LANE}')
        if which==1:
            I(f's_and_b32 s{S_T1}, s95, 1'); I(f's_sub_u32 s{S_T1}, 3, s{S_T1}'); I(f'v_min_u32 v8, s{S_T1}, v8')
        I(f'v_mul_u32_u24 v7, {pitch}, v7'); I('v_lshlrev_b32 v8, 7, v8'); I('v_add_u32 v7, v7, v8')
        I(f's_mul_i32 s{S_T0}, s{S_W}, {nrow}'); I(f's_sub_u32 s{S_T1}, s86, 28'); I(f's_lshl_b32 s{S_T1}, s{S_T1}, 4'); I(f's_add_u32 s{S_T0}, s{S_T0}, s{S_T1}')
        I(f's_mul_i32 s{S_T0}, s{S_T0}, {pitch}')
        if which==1: I(f's_lshl_b32 s{S_T1}, s87, 7')
        else: I(f's_lshl_b32 s{S_T1}, s95, 9')
        I(f's_add_u32 s{S_T0}, s{S_T0}, s{S_T1}')
        for t in range(nt):
            I(f'buffer_load_dword v12, v7, {srd(srdn)}, s{S_T0} offen', tag='touch2')
            if t<nt-1: I(f's_add_u32 s{S_T0}, s{S_T0}, {64*pitch}')
    def ln8(self, oct=2, clears=True):
        I=self.I
        D=list(range(V_T,V_T+8)); SUM,SSQ,S2,Q2=24,25,26,27; R,C=28,30; TM=[32,34,36,38]
        self.wait(vm=['x8'])
        def reduce32():
            for rot in (8,4,2,1):
                I(f'v_add_f32_dpp v{SUM}, v{SUM}, v{SUM} row_ror:{rot} row_mask:0xf bank_mask:0xf')
                I(f'v_add_f32_dpp v{SSQ}, v{SSQ}, v{SSQ} row_ror:{rot} row_mask:0xf bank_mask:0xf')
            I(f'v_mov_b32 v{S2}, v{SUM}'); I(f'v_mov_b32 v{Q2}, v{SSQ}')
            I(f'v_permlane16_swap_b32 v{SUM}, v{S2}'); I(f'v_permlane16_swap_b32 v{SSQ}, v{Q2}')
            I(f'v_add_f32 v{SUM}, v{SUM}, v{S2}'); I(f'v_add_f32 v{SSQ}, v{SSQ}, v{Q2}')
        self.dot_sums(D,[SUM,SSQ,S2,Q2]); reduce32()
        self.ln_stats(SUM,SSQ,R,C,None)
        I(f'v_mov_b32 v10, v{SUM}'); I(f'v_mov_b32 v11, v{R}')
        I(f'v_lshrrev_b32 v8, 5, v{V_LANE}'); I('v_lshlrev_b32 v8, 2, v8')
        I(f's_lshl_b32 s{S_T0}, s75, 2'); I(f's_add_u32 s{S_T0}, s{S_T0}, {WS_STAT}'); I(f's_add_u32 s{S_T1}, s{S_T0}, 8192')
        self.exec_set(1,1)
        I(f'buffer_store_dword v10, v8, {srd(SRD_WS)}, s{S_T0} offen sc1', tag='st0')
        I(f'buffer_store_dword v11, v8, {srd(SRD_WS)}, s{S_T1} offen sc1', tag='st0')
        self.exec_full()
        if clears and self.opt.w1touch=='W' and not self.opt.notouch3:
            Lt=self.newlabel('notouch')
            I(f's_cmp_lg_u32 s{S_W}, 3'); I(f's_cbranch_scc1 {Lt}')
            snap=self.snapshot()
            self.touch_w1_wg()
            self.label(Lt); self.merge(snap)
        I(f'v_and_b32 v7, 31, v{V_LANE}'); I('v_cmp_gt_u32 vcc, 28, v7')
        I(f'v_cndmask_b32 v{R}, 0, v{R}, vcc'); I(f'v_cndmask_b32 v{C}, 0, v{C}, vcc')
        self.normalize(D,R,C,TM)
        self.dot_sums(D,[SUM,SSQ,S2,Q2]); reduce32()
        self.ln_stats(SUM,SSQ,R,C,None)
        self.normalize(D,R,C,TM)
        self.auto=0
        I(f'v_lshrrev_b32 v8, 5, v{V_LANE}'); I(f's_lshl_b32 s{S_T0}, s{S_W}, 1'); I(f'v_add_u32 v8, s{S_T0}, v8')
        I('v_mul_u32_u24 v8, 960, v8'); I('v_lshlrev_b32 v9, 5, v7'); I('v_add_u32 v8, v8, v9'); I(f'v_add_u32 v8, {LDS_LN8}, v8')
        self.exec_set('0x0fffffff','0x0fffffff')
        I(f'ds_write_b128 v8, {vr(V_T,4)} offset:0'); I(f'ds_write_b128 v8, {vr(V_T+4,4)} offset:16')
        self.exec_full()
        self.wait(lg='all'); I('s_barrier')
        I(f'v_and_b32 v7, 15, v{V_LANE}'); I('v_lshrrev_b32 v8, 2, v7'); I('v_mul_u32_u24 v8, 960, v8')
        I(f'v_lshrrev_b32 v9, 4, v{V_LANE}'); I('v_lshlrev_b32 v10, 5, v9'); I('v_add_u32 v8, v8, v10')
        I(f'v_and_b32 v10, 3, v{V_LANE}'); I('v_lshlrev_b32 v10, 3, v10'); I('v_add_u32 v8, v8, v10')
        I(f's_lshl_b32 s{S_T0}, s{S_W}, 7'); I(f's_add_u32 s{S_T0}, s{S_T0}, {LDS_LN8}'); I(f'v_add_u32 v8, s{S_T0}, v8')
        I('v_lshlrev_b32 v9, 10, v9'); I('v_lshlrev_b32 v7, 4, v7'); I('v_add_u32 v9, v9, v7')
        I(f's_lshr_b32 s{S_T0}, s{oct}, 2'); I(f's_lshl_b32 s{S_T0}, s{S_T0}, 12')
        I(f's_and_b32 s{S_T1}, s{oct}, 3'); I(f's_lshl_b32 s{S_T1}, s{S_T1}, 8'); I(f's_add_u32 s{S_T0}, s{S_T0}, s{S_T1}')
        I(f's_lshl_b32 s{S_T1}, s{S_W}, 18'); I(f's_add_u32 s{S_T0}, s{S_T0}, s{S_T1}')
        if self.opt.w1touch=='W':
            Lno=self.newlabel('ln8none'); L6=self.newlabel('ln8no6')
            I(f's_cmp_eq_u32 s{S_W}, 3'); I(f's_cbranch_scc1 {Lno}')
            snap=self.snapshot()
            for i in range(2):
                I(f'ds_read_b64_tr_b16 v[{16+4*i}:{17+4*i}], v8 offset:{384*i}', tag='t0')
                I(f'ds_read_b64_tr_b16 v[{18+4*i}:{19+4*i}], v8 offset:{384*i+3840}', tag='t0')
            I(f's_add_u32 s{S_T1}, s{S_T0}, {3*262144}')
            self.wait(lg='all')
            I(f'buffer_store_dwordx4 v[16:19], v9, {srd(SRD_WS)}, s{S_T0} offen sc1', tag='st0')
            I(f'buffer_store_dwordx4 v[20:23], v9, {srd(SRD_WS)}, s{S_T1} offen sc1', tag='st0')
            I(f's_cmp_lg_u32 s{S_W}, 0'); I(f's_cbranch_scc1 {L6}')
            I(f'ds_read_b64_tr_b16 v[24:25], v8 offset:768', tag='t0')
            I(f'ds_read_b64_tr_b16 v[26:27], v8 offset:{768+3840}', tag='t0')
            I(f's_add_u32 s{S_T1}, s{S_T0}, {6*262144}')
            self.wait(lg='all')
            I(f'buffer_store_dwordx4 v[24:27], v9, {srd(SRD_WS)}, s{S_T1} offen sc1', tag='st0')
            self.label(L6)
            self.label(Lno); self.merge(snap); self.vm['st0']=0
        else:
            I(f'ds_read_b64_tr_b16 v[16:17], v8 offset:0', tag='t0')
            I(f'ds_read_b64_tr_b16 v[18:19], v8 offset:3840', tag='t0')
            Lskip=self.newlabel('ln8skip')
            I(f's_cmp_eq_u32 s{S_W}, 3'); I(f's_cbranch_scc1 {Lskip}')
            snap=self.snapshot()
            I(f'ds_read_b64_tr_b16 v[20:21], v8 offset:512', tag='t1')
            I(f'ds_read_b64_tr_b16 v[22:23], v8 offset:{512+3840}', tag='t1')
            I(f's_add_u32 s{S_T1}, s{S_T0}, {4*262144}')
            self.wait(lg='all')
            I(f'buffer_store_dwordx4 v[20:23], v9, {srd(SRD_WS)}, s{S_T1} offen sc1', tag='st0')
            self.label(Lskip); self.merge(snap)
            self.wait(lg='all')
            I(f'buffer_store_dwordx4 v[16:19], v9, {srd(SRD_WS)}, s{S_T0} offen sc1', tag='st0')
        if not clears:
            I('s_barrier'); return
        Ln=self.newlabel('noclr')
        I(f's_cmp_lg_u32 s{S_W}, {1 if self.opt.w1touch=="W" else 3}'); I(f's_cbranch_scc1 {Ln}')
        snap=self.snapshot()
        I('v_mov_b32 v8, 0')
        I('v_mov_b32 v10, -1'); I('v_mov_b32 v11, -1'); I(f'v_lshlrev_b32 v9, 3, v{V_LANE}')
        I(f's_lshl_b32 s{S_T0}, s{S_G}, 5'); I(f's_add_u32 s{S_T0}, s{S_T0}, s{S_C}'); I(f's_lshl_b32 s{S_T0}, s{S_T0}, 9')
        I(f's_add_u32 s{S_T0}, s{S_T0}, {WS_E}')
        I(f'buffer_store_dwordx2 v[10:11], v9, {srd(SRD_WS)}, s{S_T0} offen sc1', tag='st0')
        I(f's_mul_i32 s{S_T0}, s{S_C}, 7'); I(f's_add_u32 s{S_T0}, s{S_T0}, s{S_G}'); I(f's_lshl_b32 s{S_T0}, s{S_T0}, 6')
        I(f's_add_u32 s{S_T0}, s{S_T0}, {WS_FH}')
        I('v_mov_b32 v10, 0')
        self.exec_set(1,0)
        I(f'buffer_store_dword v10, v8, {srd(SRD_WS)}, s{S_T0} offen sc1', tag='st0')
        Lg=self.newlabel('nog1clr'); Lc=self.newlabel('nocclr')
        I(f's_cmp_eq_u32 s{S_HASG1}, 0'); I(f's_cbranch_scc1 {Lg}')
        I(f's_mul_i32 s{S_T0}, s{S_DT1}, 28'); I(f's_add_u32 s{S_T0}, s{S_T0}, s{S_FT}'); I(f's_lshl_b32 s{S_T0}, s{S_T0}, 6')
        I(f's_add_u32 s{S_T0}, s{S_T0}, {WS_FG}')
        I(f'buffer_store_dword v10, v8, {srd(SRD_WS)}, s{S_T0} offen sc1', tag='st0')
        self.label(Lg)
        I('s_cmp_lg_u32 s95, 0'); I(f's_cbranch_scc1 {Lc}')
        I(f's_lshl_b32 s{S_T0}, s86, 6'); I(f's_add_u32 s{S_T0}, s{S_T0}, {WS_FC}')
        I(f'buffer_store_dword v10, v8, {srd(SRD_WS)}, s{S_T0} offen sc1', tag='st0')
        self.label(Lc)
        self.exec_full()
        self.label(Ln); self.merge(snap); self.vm['st0']=0
        I('s_barrier')

    def ln8_extra(self):
        I=self.I
        L=self.newlabel('noextra'); Lp=self.newlabel('extra')
        I(f's_cmp_lg_u32 s{S_HASG1}, 0'); I(f's_cbranch_scc1 {L}')
        snap=self.snapshot()
        I('s_lshr_b32 s3, s95, 1'); I('s_mul_i32 s3, s3, 7'); I('s_add_u32 s3, s3, s86'); I('s_add_u32 s3, s3, 203')
        self.label(Lp)
        self.x8_issue(3)
        I('s_waitcnt vmcnt(0)'); self.vm={}; self.vm['x8']=0
        self.ln8(oct=3, clears=False)
        I('s_add_u32 s3, s3, 28'); I('s_cmp_lt_u32 s3, 256'); I(f's_cbranch_scc1 {Lp}')
        I('s_waitcnt vmcnt(0)')
        self.label(L); self.restore(snap); self.vm['st0']=min(self.vm.get('st0',0),0)

    def arrive0(self):
        I=self.I
        self.wait(vm=['st0']); I('s_barrier')
        L=self.newlabel('arr')
        I(f's_cmp_lg_u32 s{S_W}, 0'); I(f's_cbranch_scc1 {L}')
        snap=self.snapshot()
        I('s_and_b32 s3, s2, 3'); I('s_lshl_b32 s3, s3, 6'); I('v_mov_b32 v8, s3'); I('v_mov_b32 v9, 1')
        self.exec_set(1,0)
        I(f'global_atomic_add v8, v9, {sp(P_DBG)} sc1')
        self.exec_full()
        self.label(L); self.merge(snap)

    def w1_setup(self):
        I=self.I
        self.ring_setup(3584, S_WH)
        I(f's_mul_i32 s{S_WBEG}, s{S_W}, {512*3584}'); I(f's_lshl_b32 s{S_T0}, s{S_FT}, 7'); I(f's_add_u32 s{S_WBEG}, s{S_WBEG}, s{S_T0}')
        I(f's_mov_b32 s{S_WO}, s{S_WBEG}')

    def lam_consts(self):
        I=self.I
        LRE,LIM,LDT=V_IN,V_IN+1,V_IN+2
        t=list(range(16,40))
        self.wait(vm=['lam'])
        for r in (LRE,LIM,LDT): I(f'v_lshlrev_b32 v{r}, 16, v{r}')
        I(f'v_mul_f32 v{LDT}, 0x3fb8aa3b, v{LDT}'); I(f'v_exp_f32 v{LDT}, v{LDT}')
        self.rnd_bf16(LDT)
        I(f'v_mul_f32 v16, v{LDT}, v{LRE}'); I(f'v_mul_f32 v17, v{LDT}, v{LIM}')
        I('v_mul_f32 v16, 0x3fb8aa3b, v16'); I('v_mul_f32 v17, 0.15915494, v17')
        I('v_exp_f32 v16, v16'); I('v_fract_f32 v17, v17')
        I('v_cos_f32 v18, v17'); I('v_sin_f32 v19, v17')
        I(f'v_mul_f32 v{V_LR}, v16, v18'); I(f'v_mul_f32 v{V_LI}, v16, v19')
        I(f'v_add_f32 v16, -1.0, v{V_LR}')
        I(f'v_mul_f32 v17, v{LRE}, v{LRE}'); I(f'v_fma_f32 v17, v{LIM}, v{LIM}, v17'); I('v_rcp_f32 v17, v17')
        I(f'v_mul_f32 v18, v16, v{LRE}'); I(f'v_fma_f32 v18, v{V_LI}, v{LIM}, v18')
        I(f'v_mul_f32 v19, v16, v{LIM}'); I(f'v_fma_f32 v19, v{V_LI}, v{LRE}, -v19')
        I('v_add_f32 v17, v17, v17')
        I(f'v_mul_f32 v{V_K1}, v18, v17'); I(f'v_mul_f32 v{V_K2}, v19, v17'); I(f'v_sub_f32 v{V_K2}, 0, v{V_K2}')
        self.csq(16,17,V_LR,V_LI,30); self.csq(18,19,16,17,30); self.csq(16,17,18,19,30); self.csq(20,21,16,17,30)
        self.csq(22,23,20,21,30)
        self.cmul(24,25,22,23,20,21,30,31)
        self.csq(V_L64R,V_L64I,22,23,30)
        self.csq(16,17,V_L64R,V_L64I,30); self.csq(18,19,16,17,30); self.csq(V_L512R,V_L512I,18,19,30)
        I(f'v_mov_b32 v{V_PR}, 1.0'); I(f'v_mov_b32 v{V_PI}, 0')
        for (lo,hi,r) in (('0xffff0000','-1',20),('0','-1',22),('0','0xffff0000',24)):
            self.exec_set(lo,hi); I(f'v_mov_b32 v{V_PR}, v{r}'); I(f'v_mov_b32 v{V_PI}, v{r+1}')
        self.exec_full()
        I(f'v_mov_b32 v{V_IN}, v20'); I(f'v_mov_b32 v{V_IN+1}, v21')

    def x_addr(self):
        I=self.I
        I(f'v_and_b32 v7, 15, v{V_LANE}'); I('v_lshrrev_b32 v8, 2, v7'); I('v_lshlrev_b32 v8, 4, v8')
        I('v_and_b32 v9, 3, v7'); I('v_add_u32 v8, v8, v9'); I('v_mul_u32_u24 v8, 896, v8')
        I(f'v_lshrrev_b32 v9, 4, v{V_LANE}'); I('v_lshrrev_b32 v7, 1, v7'); I('v_xor_b32 v9, v9, v7'); I('v_lshlrev_b32 v9, 4, v9')
        I('v_add_u32 v14, v8, v9'); I('v_xor_b32 v15, 64, v14')
    def ln64(self):
        I=self.I
        D=list(range(V_X64,V_X64+56)); SUM,SSQ,S2,Q2=24,25,26,27; R,C=28,30; TM=[32,34,36,38]
        I(f's_mul_i32 s{S_T0}, s{S_W}, 3584'); I(f'v_add_u32 v22, s{S_T0}, v14'); I(f'v_add_u32 v23, s{S_T0}, v15')
        self.allow_bread=True
        while self.nx<16: self.tick()
        if self.opt.w1touch!='W': self.wait(vm=['x64'])
        for j in range(14):
            I(f'ds_read_b128 {vr(V_X64+4*j,4)}, v{22+(j&1)} offset:{LDS_X+(j>>1)*128}', tag=('xr',j))
        accs=[SUM,SSQ,S2,Q2]
        for n,d in enumerate(D):
            if n%4==0: self.wait(lg=[('xr',n//4)])
            sa,qa = accs[2*(n&1)], accs[2*(n&1)+1]
            if n<2:
                I(f'v_dot2_f32_bf16 v{sa}, v{d}, s{S_ONES}, 0'); I(f'v_dot2_f32_bf16 v{qa}, v{d}, v{d}, 0')
            else:
                I(f'v_dot2_f32_bf16 v{sa}, v{d}, s{S_ONES}, v{sa}'); I(f'v_dot2_f32_bf16 v{qa}, v{d}, v{d}, v{qa}')
        I(f'v_add_f32 v{SUM}, v{SUM}, v{S2}'); I(f'v_add_f32 v{SSQ}, v{SSQ}, v{Q2}')
        for sw in ('16','32'):
            I(f'v_mov_b32 v{S2}, v{SUM}'); I(f'v_mov_b32 v{Q2}, v{SSQ}')
            I(f'v_permlane{sw}_swap_b32 v{SUM}, v{S2}'); I(f'v_permlane{sw}_swap_b32 v{SSQ}, v{Q2}')
            I(f'v_add_f32 v{SUM}, v{SUM}, v{S2}'); I(f'v_add_f32 v{SSQ}, v{SSQ}, v{Q2}')
        self.stamp('dots',fine=True)
        self.ln_stats(SUM,SSQ,R,C,None)
        self.allow_bread=True
        def h(n):
            I(f'ds_write_b128 v{22+(n&1)}, {vr(V_X64+4*n,4)} offset:{LDS_X+(n>>1)*128}', tag='xw')
        self.normalize(D,R,C,TM,hook=h)

    def row_stats(self):
        I=self.I
        D=list(range(V_X64,V_X64+56)); SUM,SSQ,S2,Q2=24,25,26,27; R,C=28,30
        I(f's_mul_i32 s{S_T0}, s{S_W}, 3584'); I(f'v_add_u32 v22, s{S_T0}, v14'); I(f'v_add_u32 v23, s{S_T0}, v15')
        for j in range(14):
            I(f'ds_read_b128 {vr(V_X64+4*j,4)}, v{22+(j&1)} offset:{LDS_X+(j>>1)*128}', tag=('xr',j))
        accs=[SUM,SSQ,S2,Q2]
        for n,d in enumerate(D):
            if n%4==0: self.wait(lg=[('xr',n//4)])
            sa,qa = accs[2*(n&1)], accs[2*(n&1)+1]
            if n<2:
                I(f'v_dot2_f32_bf16 v{sa}, v{d}, s{S_ONES}, 0'); I(f'v_dot2_f32_bf16 v{qa}, v{d}, v{d}, 0')
            else:
                I(f'v_dot2_f32_bf16 v{sa}, v{d}, s{S_ONES}, v{sa}'); I(f'v_dot2_f32_bf16 v{qa}, v{d}, v{d}, v{qa}')
        I(f'v_add_f32 v{SUM}, v{SUM}, v{S2}'); I(f'v_add_f32 v{SSQ}, v{SSQ}, v{Q2}')
        for sw in ('16','32'):
            I(f'v_mov_b32 v{S2}, v{SUM}'); I(f'v_mov_b32 v{Q2}, v{SSQ}')
            I(f'v_permlane{sw}_swap_b32 v{SUM}, v{S2}'); I(f'v_permlane{sw}_swap_b32 v{SSQ}, v{Q2}')
            I(f'v_add_f32 v{SUM}, v{SUM}, v{S2}'); I(f'v_add_f32 v{SSQ}, v{SSQ}, v{Q2}')
        self.ln_stats(SUM,SSQ,R,C,None)
        I(f'v_and_b32 v8, 15, v{V_LANE}'); I('v_lshlrev_b32 v8, 2, v8'); I(f's_add_u32 s{S_T0}, s{S_YB}, 24576'); I(f'v_add_u32 v8, s{S_T0}, v8')
        self.exec_set('0xffff','0')
        I(f'ds_write_b32 v8, v{SUM}', tag='stw'); I(f'ds_write_b32 v8, v{R} offset:64', tag='stw')
        self.exec_full()
    def stat_reads(self):
        I=self.I
        self.wait(lg=['stw']); I('s_barrier')
        I(f'v_lshrrev_b32 v8, 4, v{V_LANE}'); I('v_lshlrev_b32 v8, 4, v8'); I(f'v_add_u32 v8, {LDS_Y+24576}, v8'); I(f'v_add_u32 v9, {2*YW}, v8')
        for i in range(4):
            I(f'ds_read_b128 {vr(16+4*i,4)}, v{8+(i>>1)} offset:{(i&1)*YW}', tag='stat')
            I(f'ds_read_b128 {vr(88+4*i,4)}, v{8+(i>>1)} offset:{(i&1)*YW+64}', tag='stat')
    def bu_gemm(self):
        I=self.I
        BUF=[V_X64, V_X64+16]
        for r in range(4): I(f'v_mov_b32 v{36+r}, s{S_ONES}')
        def rd(j):
            for i in range(4):
                I(f'ds_read_b128 {vr(BUF[j%2]+4*i,4)}, v{14+(j&1)} offset:{LDS_X+i*3584+(j>>1)*128}', tag=('xa',j))
        rd(0); rd(1)
        for j in range(14):
            self.wait(lg=[('xa',j)])
            for im in range(2):
                d=104+4*im
                I(f'v_mfma_f32_16x16x32_bf16 {vr(d,4)}, v[36:39], {vr(V_BF+56*im+4*j,4)}, {vr(d,4) if j else 0}')
            for i in range(4):
                for im in range(2):
                    d=V_RAW+16*im+4*i
                    cin = vr(d,4) if j else '0'
                    I(f'v_mfma_f32_16x16x32_bf16 {vr(d,4)}, {vr(BUF[j%2]+4*i,4)}, {vr(V_BF+56*im+4*j,4)}, {cin}')
            if j+2<14: rd(j+2)
            if j==12:
                sv=self.auto; self.auto=0
                self.stat_reads(); self.auto=sv
    def stat_loads(self):
        I=self.I
        I(f'v_lshrrev_b32 v8, 4, v{V_LANE}'); I('v_lshlrev_b32 v8, 6, v8')
        I(f's_lshl_b32 s{S_T0}, s{S_C}, 8'); I(f's_add_u32 s{S_T0}, s{S_T0}, {WS_STAT}'); I(f's_add_u32 s{S_T1}, s{S_T0}, 8192')
        for n in range(4):
            I(f'buffer_load_dwordx4 {vr(16+4*n,4)}, v8, {srd(SRD_WS)}, s{S_T0} offen offset:{16*n} sc1', tag='stat')
            I(f'buffer_load_dwordx4 {vr(88+4*n,4)}, v8, {srd(SRD_WS)}, s{S_T1} offen offset:{16*n} sc1', tag='stat')
    def ln_fix(self):
        I=self.I
        self.wait(lg=['stat'])
        for im in range(2):
            sb=104+4*im
            for t in range(0,16,2):
                r=V_RAW+16*im+t
                I(f'v_pk_fma_f32 v[{r}:{r+1}], v[{16+t}:{17+t}], v[{sb}:{sb+1}], v[{r}:{r+1}] neg_lo:[1,0,0] neg_hi:[1,0,0]')
            for t in range(0,16,2):
                r=V_RAW+16*im+t
                I(f'v_pk_mul_f32 v[{r}:{r+1}], v[{r}:{r+1}], v[{88+t}:{89+t}]')

    def scan1(self):
        I=self.I
        ER,EI,T0,T1=16,17,18,19
        L16R,L16I=V_IN,V_IN+1
        I(f'v_mov_b32 v{ER}, v{V_RAW}'); I(f'v_mov_b32 v{EI}, v{V_RAW+16}')
        for t in range(1,16):
            I(f'v_fma_f32 v{T0}, v{V_LR}, v{ER}, v{V_RAW+t}')
            I(f'v_fma_f32 v{T1}, v{V_LR}, v{EI}, v{V_RAW+16+t}')
            I(f'v_fma_f32 v{T0}, -v{V_LI}, v{EI}, v{T0}')
            I(f'v_fma_f32 v{EI}, v{V_LI}, v{ER}, v{T1}')
            ER,T0=T0,ER
        GR=[20,21,22,23]; GI=[24,25,26,27]
        self.allgather_q(ER,*GR); self.allgather_q(EI,*GI)
        for q in range(1,4):
            self.cfma(GR[q],GI[q],L16R,L16I,GR[q-1],GI[q-1],GR[q],GI[q],28,29)
        I(f'v_mov_b32 v{V_SR}, 0'); I(f'v_mov_b32 v{V_SI}, 0')
        for n,(lo,hi) in enumerate((('0xffff0000','-1'),('0','-1'),('0','0xffff0000'))):
            self.exec_set(lo,hi); I(f'v_mov_b32 v{V_SR}, v{GR[n]}'); I(f'v_mov_b32 v{V_SI}, v{GI[n]}')
        self.exec_full()
        I(f'v_mov_b32 v10, v{GR[3]}'); I(f'v_mov_b32 v11, v{GI[3]}')
        I(f'v_lshlrev_b32 v8, 3, v{V_LANE}')
        I(f's_lshl_b32 s{S_T0}, s{S_G}, 5'); I(f's_add_u32 s{S_T0}, s{S_T0}, s{S_C}'); I(f's_lshl_b32 s{S_T0}, s{S_T0}, 9')
        I(f's_lshl_b32 s{S_T1}, s{S_W}, 7'); I(f's_add_u32 s{S_T0}, s{S_T0}, s{S_T1}'); I(f's_add_u32 s{S_T0}, s{S_T0}, {WS_E}')
        self.exec_set('0xffff',0)
        I(f'buffer_store_dwordx2 v[10:11], v8, {srd(SRD_WS)}, s{S_T0} offen sc1', tag='stE')
        self.exec_full()

    def wait_e0(self):
        I=self.I
        L=self.newlabel('e0'); D=self.newlabel('e0d')
        self.wait(vm=['e0c'])
        I('v_cmp_gt_u32 vcc, 64, v34'); I(f's_cbranch_vccz {D}')
        snap=self.snapshot()
        I(f's_mov_b32 s{S_BOUND}, 0x200000')
        self.label(L)
        I(f'global_load_dword v34, v35, {sp(P_DBG)} sc1'); I('s_waitcnt vmcnt(0)')
        I('v_cmp_gt_u32 vcc, 64, v34'); I(f's_cbranch_vccz {D}')
        I('s_sleep 4'); I(f's_sub_u32 s{S_BOUND}, s{S_BOUND}, 1'); I(f's_cbranch_scc0 {L}')
        self.label(D); self.restore(snap)

    def gemm1(self):
        I=self.I
        SL=[V_RING+16*i for i in range(6)]
        DEP=len(SL)
        I(f's_mul_i32 s22, s{S_DT1}, 262144'); I(f's_lshl_b32 s{S_T0}, s{S_W}, 16'); I(f's_add_u32 s22, s22, s{S_T0}')
        I(f's_lshl_b32 s{S_T0}, s{S_WL}, 11'); I(f's_xor_b32 s{S_T1}, s{S_T0}, 2048')
        I(f's_add_u32 s23, s22, s{S_T1}'); I(f's_add_u32 s22, s22, s{S_T0}')
        I(f's_mov_b32 s{S_A}, s22'); I(f's_mov_b32 s{S_B}, s23')
        def ld(k,y):
            r=SL[k%DEP]
            sx=S_A if y<2 else S_B
            I(f'buffer_load_dwordx4 {vr(r+4*y,4)}, v{V_L16}, {srd(SRD_WS)}, s{sx} offen offset:{(y&1)*1024} sc1', tag=('ht',k,y))
            if (y&1) and k<15: I(f's_add_u32 s{sx}, s{sx}, 4096')
        pro=[(k,y) for k in range(DEP) for y in range(4)]
        while pro:
            ld(*pro.pop(0))
            if self.R['iss']<self.R['n']: self.ring_tick()
        self.ring_finish(); self.wait(lg='all')
        self.stamp('w1 in regs')
        self.w2_setup(); self.R['maxrd']=0
        for k in range(16):
            r=SL[k%DEP]
            for y in range(4):
                self.wait(vm=[('ht',k,y)])
                if y==0: self.stamp(f'g1.{k}',fine=3)
                for x in range(4):
                    d=V_ACC+16*x+4*y
                    cin=vr(d,4) if k else '0'
                    I(f'v_mfma_f32_16x16x32_bf16 {vr(d,4)}, {ar(16*k+4*x,4)}, {vr(r+4*y,4)}, {cin}')
                if k+DEP<16: ld(k+DEP,y)
                else:
                    self.R['maxrd']=k
                    self.tick()
        self.R['maxrd']=99
        self.stamp('g1loop')

    def p2_flag_addr(self):
        I=self.I
        I(f's_mul_i32 s{S_T0}, s{S_W}, 7'); I(f's_lshr_b32 s{S_T1}, s{S_T0}, 2')
        I(f's_mul_i32 s{S_T2}, s{S_C}, 7'); I(f's_add_u32 s{S_T2}, s{S_T2}, s{S_T1}')
        I(f's_add_u32 s{S_T3}, s{S_T0}, 6'); I(f's_lshr_b32 s{S_T3}, s{S_T3}, 2'); I(f's_sub_u32 s{S_T3}, s{S_T3}, s{S_T1}')
        I(f'v_min_u32 v14, s{S_T3}, v{V_LANE}'); I(f'v_add_u32 v14, s{S_T2}, v14'); I('v_lshlrev_b32 v14, 6, v14')
        I(f'v_add_u32 v14, {WS_FH}, v14')
        I(f'v_min_u32 v8, 13, v{V_LANE}'); I('v_lshlrev_b32 v9, 6, v8')
        I(f's_mul_i32 s{S_T1}, s{S_G}, 28'); I(f's_add_u32 s{S_T1}, s{S_T1}, s{S_T0}'); I(f's_lshl_b32 s{S_T1}, s{S_T1}, 6'); I(f's_add_u32 s{S_T1}, s{S_T1}, {WS_FG}')
        I(f's_lshl_b32 s{S_T0}, s{S_T0}, 6'); I(f's_add_u32 s{S_T0}, s{S_T0}, {WS_FC-7*64}')
        I(f'v_mov_b32 v10, s{S_T1}'); I(f'v_mov_b32 v11, s{S_T0}'); I('v_cmp_gt_u32 vcc, 7, v8'); I('v_cndmask_b32 v10, v11, v10, vcc')
        I('v_add_u32 v12, v9, v10')

    def e_addr(self):
        I=self.I
        OF=V_EOF
        I(f's_lshl_b32 s{S_T0}, s{S_G}, 14'); I(f's_add_u32 s{S_T0}, s{S_T0}, {WS_E}')
        I(f's_add_u32 s{SRD_1}, s{P_WS}, s{S_T0}'); I(f's_addc_u32 s{SRD_1+1}, s{P_WS+1}, 0')
        I(f's_and_b32 s{SRD_1+1}, s{SRD_1+1}, 0xffff'); I(f's_mov_b32 s{SRD_1+2}, 16384'); I(f's_mov_b32 s{SRD_1+3}, 0x20000')
        I(f'v_lshrrev_b32 v8, 4, v{V_LANE}'); I('v_lshlrev_b32 v8, 12, v8')
        I(f'v_and_b32 v9, 15, v{V_LANE}'); I('v_lshlrev_b32 v9, 3, v9'); I('v_add_u32 v8, v8, v9')
        I(f's_sub_u32 s{S_T0}, s{S_C}, 32'); I(f's_lshl_b32 s{S_T0}, s{S_T0}, 9'); I(f's_lshl_b32 s{S_T1}, s{S_W}, 7')
        I(f's_add_u32 s{S_T0}, s{S_T0}, s{S_T1}'); I(f'v_add_u32 v8, s{S_T0}, v8')
        for i in range(8): I(f'v_add_u32 v{OF+i}, {512*i}, v8')
    def e_loads(self):
        for i in range(8):
            self.I(f'buffer_load_dwordx2 {vr(V_EL+2*i,2)}, v{V_EOF+i}, {srd(SRD_1)}, 0 offen sc1', tag='E')

    def finalize(self):
        I=self.I
        EL=V_EL
        L=self.newlabel('pollE'); Dn=self.newlabel('pollEd')
        sv=self.auto; self.auto=0
        self.wait(vm=['E'])
        I(f's_mov_b32 s{S_BOUND}, 0x200000')
        self.label(L)
        I(f'v_max3_u32 v8, v{EL}, v{EL+1}, v{EL+2}')
        for i in range(3,15,2): I(f'v_max3_u32 v8, v8, v{EL+i}, v{EL+i+1}')
        I(f'v_max_u32 v8, v8, v{EL+15}')
        I('v_cmp_eq_u32 vcc, -1, v8')
        I(f's_cbranch_vccz {Dn}')
        snap=self.snapshot()
        self.e_loads()
        I('s_waitcnt vmcnt(0)')
        I('s_sleep 4'); I(f's_sub_u32 s{S_BOUND}, s{S_BOUND}, 1'); I(f's_cbranch_scc0 {L}')
        self.label(Dn); self.restore(snap)
        self.auto=sv
        yield
        QR,QI=EL,EL+1
        for i in range(1,8):
            self.cfma(QR,QI,V_L64R,V_L64I,QR,QI,EL+2*i,EL+2*i+1,36,37)
            yield
        GR=[20,21,22,23]; GI=[24,25,26,27]
        self.allgather_q(QR,*GR); yield
        self.allgather_q(QI,*GI); yield
        for q in range(1,4):
            self.cfma(GR[q],GI[q],V_L512R,V_L512I,GR[q-1],GI[q-1],GR[q],GI[q],28,29)
            yield
        self.cfma(V_SR,V_SI,V_PR,V_PI,GR[3],GI[3],V_SR,V_SI,28,29)
        yield
        HR,HI,T0,T1=V_SR,V_SI,36,37
        OR,OI=V_RAW,V_RAW+16
        for t in range(16):
            I(f'v_fma_f32 v{T0}, v{V_LR}, v{HR}, v{OR+t}')
            I(f'v_fma_f32 v{T1}, v{V_LR}, v{HI}, v{OI+t}')
            I(f'v_fma_f32 v{T0}, -v{V_LI}, v{HI}, v{T0}')
            I(f'v_fma_f32 v{HI}, v{V_LI}, v{HR}, v{T1}')
            HR,T0=T0,HR
            yield
            I(f'v_mul_f32 v{OR+t}, v{V_K1}, v{HR}'); I(f'v_mul_f32 v{OI+t}, v{V_K2}, v{HR}')
            I(f'v_fma_f32 v{OR+t}, v{V_K2}, v{HI}, v{OR+t}'); I(f'v_fma_f32 v{OI+t}, -v{V_K1}, v{HI}, v{OI+t}')
            yield
        for t in range(8):
            I(f'v_cvt_pk_bf16_f32 v{OR+t}, v{OR+2*t}, v{OR+2*t+1}'); I(f'v_cvt_pk_bf16_f32 v{OI+t}, v{OI+2*t}, v{OI+2*t+1}')
            if t%2: yield
        I(f'v_and_b32 v8, 15, v{V_LANE}'); I(f's_lshl_b32 s{S_T0}, s{S_WL}, 4'); I(f'v_add_u32 v8, s{S_T0}, v8')
        I('v_lshrrev_b32 v9, 3, v8'); I('v_lshlrev_b32 v9, 2, v9')
        yield
        I('v_and_b32 v10, 3, v8'); I('v_add_u32 v9, v9, v10')
        I('v_bfe_u32 v10, v8, 2, 1'); I('v_lshlrev_b32 v11, 4, v10'); I('v_add_u32 v9, v9, v11')
        yield
        I('v_and_b32 v11, 7, v9'); I('v_lshlrev_b32 v10, 2, v10'); I('v_xor_b32 v11, v11, v10')
        I(f'v_lshrrev_b32 v10, 4, v{V_LANE}'); I('v_lshlrev_b32 v10, 1, v10')
        yield
        I('v_xor_b32 v10, v10, v11'); I('v_lshlrev_b32 v10, 4, v10')
        I('v_lshlrev_b32 v9, 7, v9'); I('v_add_u32 v9, v9, v10')
        yield
        I(f's_lshl_b32 s{S_T0}, s{S_WH}, 12'); I(f'v_add_u32 v9, s{S_T0}, v9')
        I('v_xor_b32 v10, 16, v9')
        I('s_barrier')
        I(f'ds_write_b128 v9, {vr(OR,4)} offset:{LDS_X}', tag='hw'); I(f'ds_write_b128 v10, {vr(OR+4,4)} offset:{LDS_X}', tag='hw')
        I(f'ds_write_b128 v9, {vr(OI,4)} offset:{LDS_X+8192}', tag='hw'); I(f'ds_write_b128 v10, {vr(OI+4,4)} offset:{LDS_X+8192}', tag='hw')
        yield
        I(f'v_lshrrev_b32 v8, 2, v{V_LANE}'); I('v_and_b32 v9, 7, v8'); I(f'v_bfe_u32 v10, v{V_LANE}, 1, 1')
        I('v_xor_b32 v9, v9, v10'); I('v_lshlrev_b32 v9, 4, v9')
        yield
        I('v_lshlrev_b32 v8, 7, v8'); I('v_add_u32 v8, v8, v9')
        I(f'v_and_b32 v9, 1, v{V_LANE}'); I('v_lshlrev_b32 v9, 3, v9'); I('v_add_u32 v8, v8, v9')
        I(f's_lshl_b32 s{S_T0}, s{S_W}, 12'); I(f'v_add_u32 v8, s{S_T0}, v8')
        yield
        self.wait(lg=['hw']); I('s_barrier')
        FR=16
        for nb in range(4):
            I(f'v_xor_b32 v9, {nb<<5}, v8'); I('v_xor_b32 v10, 64, v9')
            I(f'ds_read_b64_tr_b16 {vr(FR+4*nb,2)}, v9 offset:{LDS_X}', tag=('hp',nb))
            I(f'ds_read_b64_tr_b16 {vr(FR+4*nb+2,2)}, v10 offset:{LDS_X+2048}', tag=('hp',nb))
        I(f's_mul_i32 s{S_T0}, s{S_C}, {28*4096}'); I(f's_lshl_b32 s{S_T1}, s{S_G}, 14'); I(f's_add_u32 s{S_T0}, s{S_T0}, s{S_T1}')
        I(f's_lshl_b32 s{S_T1}, s{S_W}, 12'); I(f's_add_u32 s{S_T0}, s{S_T0}, s{S_T1}'); I(f's_add_u32 s94, s{S_T0}, {WS_HP}')
        yield
        if self.opt.gearly: I(f'global_load_dword v53, v12, {sp(P_WS)} sc1', tag='fg')
        for nb in range(4):
            self.wait(lg=[('hp',nb)])
            I(f'buffer_store_dwordx4 {vr(FR+4*nb,4)}, v{V_L16}, {srd(SRD_WS)}, s94 offen offset:{nb*1024} sc1', tag='stH')
            yield

    def flag_set(self, sa, mul, sb, base):
        I=self.I
        L=self.newlabel('flag')
        I(f's_cmp_lg_u32 s{S_W}, 0'); I(f's_cbranch_scc1 {L}')
        snap=self.snapshot()
        I(f's_mul_i32 s{S_T0}, s{sa}, {mul}'); I(f's_add_u32 s{S_T0}, s{S_T0}, s{sb}'); I(f's_lshl_b32 s{S_T0}, s{S_T0}, 6')
        I(f's_add_u32 s{S_T0}, s{S_T0}, {base}')
        I('v_mov_b32 v8, 0'); I('v_mov_b32 v9, 1')
        self.exec_set(1,0)
        I(f'buffer_store_dword v9, v8, {srd(SRD_WS)}, s{S_T0} offen sc1')
        self.exec_full()
        self.label(L); self.merge(snap)

    def g_bias_load(self):
        I=self.I
        I(f'v_lshrrev_b32 v8, 4, v{V_LANE}'); I('v_lshlrev_b32 v8, 3, v8')
        I(f's_lshl_b32 s{S_T0}, s{S_FT}, 7'); I(f's_lshl_b32 s{S_T1}, s{S_WH}, 6'); I(f's_add_u32 s{S_T0}, s{S_T0}, s{S_T1}')
        I(f'v_add_u32 v8, s{S_T0}, v8')
        I(f'global_load_dwordx2 v[32:33], v8, {sp(P_B1)}', tag='b1')
        I(f'global_load_dwordx2 v[34:35], v8, {sp(P_B1)} offset:32', tag='b1')

    def g_epilogue(self):
        I=self.I
        self.auto=self.opt.gepip
        self.reduce(V_RING)
        self.wait(vm=['b1'])
        for x in range(2):
            for h in range(2):
                I(f'v_lshlrev_b32 v{16+4*x+2*h}, 16, v{32+2*x+h}'); I(f'v_and_b32 v{17+4*x+2*h}, s{S_MASK}, v{32+2*x+h}')
        C1=-2.0*0.7978845608028654*1.4426950408889634
        C3=C1*0.044715
        import struct
        f2h=lambda f:'0x%08x'%struct.unpack('<I',struct.pack('<f',f))[0]
        I(f's_mov_b32 s{S_T2}, {f2h(C1)}'); I(f's_mov_b32 s{S_T3}, {f2h(C3)}')
        I(f'v_mov_b32 v31, s{S_T2}')
        U=[]
        for x in range(2):
            for y in range(2):
                for r in range(4):
                    U.append((V_ACC+16*x+4*y+r, 16+4*x+r))
        TT=V_RING
        for n,(u,b) in enumerate(U): I(f'v_add_f32 v{u}, v{u}, v{b}')
        for n,(u,b) in enumerate(U): I(f'v_mul_f32 v{TT+n}, v{u}, v{u}')
        for n,(u,b) in enumerate(U): I(f'v_fma_f32 v{TT+n}, v{TT+n}, s{S_T3}, v31')
        for n,(u,b) in enumerate(U): I(f'v_mul_f32 v{TT+n}, v{TT+n}, v{u}')
        for n,(u,b) in enumerate(U): I(f'v_exp_f32 v{TT+n}, v{TT+n}')
        for n,(u,b) in enumerate(U): I(f'v_add_f32 v{TT+n}, 1.0, v{TT+n}')
        for n,(u,b) in enumerate(U): I(f'v_rcp_f32 v{TT+n}, v{TT+n}')
        for n,(u,b) in enumerate(U): I(f'v_mul_f32 v{u}, v{u}, v{TT+n}')
        F=V_RING+16
        for y in range(2):
            for x in range(2):
                a=V_ACC+16*x+4*y
                I(f'v_cvt_pk_bf16_f32 v{F+4*y+2*x}, v{a}, v{a+1}'); I(f'v_cvt_pk_bf16_f32 v{F+4*y+2*x+1}, v{a+2}, v{a+3}')
        I(f's_mul_i32 s{S_T0}, s{S_DT1}, {56*4096}'); I(f's_lshl_b32 s{S_T1}, s{S_FT}, 13'); I(f's_add_u32 s{S_T0}, s{S_T0}, s{S_T1}')
        I(f's_lshl_b32 s{S_T1}, s{S_WH}, 12'); I(f's_add_u32 s{S_T0}, s{S_T0}, s{S_T1}')
        I(f's_lshl_b32 s{S_T1}, s{S_WL}, 11'); I(f's_add_u32 s{S_T0}, s{S_T0}, s{S_T1}'); I(f's_add_u32 s{S_T0}, s{S_T0}, {WS_GT}')
        for y in range(2):
            I(f'buffer_store_dwordx4 {vr(F+4*y,4)}, v{V_L16}, {srd(SRD_WS)}, s{S_T0} offen offset:{y*1024} sc1', tag='stG')
        self.auto=0
        self.e_loads()
        self.p2_flag_addr(); self.p2_bases()
        I(f'global_load_dword v54, v12, {sp(P_WS)} sc1', tag='fc')
        for n in range(self.opt.gwait): self.tick()
        self.wait(vm=['stG']); I('s_barrier')
        self.flag_set(S_DT1,28,S_FT,WS_FG)

    def w2_setup(self):
        I=self.I
        self.make_srd(SRD_W, P_W2, 1792*4096)
        self.ring_setup(4096, S_WL)
        I(f's_mul_i32 s{S_WBEG}, s{S_W}, {448*4096}'); I(f's_lshl_b32 s{S_T0}, s{S_C}, 7'); I(f's_add_u32 s{S_WBEG}, s{S_WBEG}, s{S_T0}')
        I(f's_mov_b32 s{S_WO}, s{S_WBEG}')
        self.ring_init('w2',14,4096,range(6))

    def rot_g(self, dst):
        I=self.I
        I(f's_mul_i32 s{dst}, s86, 37'); I(f's_lshr_b32 s{dst}, s{dst}, 8')
        I(f's_mul_i32 s{dst}, s{dst}, {7*self.opt.rot2}'); I(f's_lshr_b32 s{dst}, s{dst}, 1')
    def cpack(self):
        I=self.I
        L=self.newlabel('nocp')
        I(f's_cmp_ge_u32 s{S_E}, 28'); I(f's_cbranch_scc1 {L}')
        I(f's_mov_b32 s{SRD_1+2}, {448*896}'); I(f's_mov_b32 s{SRD_1+3}, 0x20000')
        I(f's_bitcmp1_b32 s{S_E}, 1')
        I(f's_cselect_b32 s{SRD_1}, s{P_CIM}, s{P_CRE}'); I(f's_cselect_b32 s{SRD_1+1}, s{P_CIM+1}, s{P_CRE+1}')
        I(f'v_and_b32 v9, 15, v{V_LANE}'); I('v_mul_u32_u24 v9, 896, v9'); I(f'v_lshrrev_b32 v10, 4, v{V_LANE}')
        I('v_lshlrev_b32 v10, 4, v10'); I('v_add_u32 v10, v9, v10')
        I(f's_lshr_b32 s{S_T0}, s{S_E}, 2'); I(f's_lshl_b32 s{S_T0}, s{S_T0}, 7')
        I(f's_and_b32 s{S_T1}, s{S_E}, 1'); I(f's_lshl_b32 s{S_T1}, s{S_T1}, 6'); I(f's_add_u32 s{S_T0}, s{S_T0}, s{S_T1}')
        I(f's_mul_i32 s{S_T1}, s{S_W}, {16*896}'); I(f's_add_u32 s{S_T0}, s{S_T0}, s{S_T1}')
        for dt in range(7):
            I(f'buffer_load_dwordx4 {vr(56+4*dt,4)}, v10, {srd(SRD_1)}, s{S_T0} offen', tag=('cp',dt))
            if dt<6: I(f's_add_u32 s{S_T0}, s{S_T0}, {64*896}')
        I(f's_lshl_b32 s{S_T0}, s{S_E}, 12'); I(f's_lshl_b32 s{S_T1}, s{S_W}, 10'); I(f's_add_u32 s{S_T0}, s{S_T0}, s{S_T1}')
        I(f's_add_u32 s{S_T0}, s{S_T0}, {WS_CP}')
        for dt in range(7):
            self.wait(vm=[('cp',dt)])
            I(f'buffer_store_dwordx4 {vr(56+4*dt,4)}, v{V_L16}, {srd(SRD_WS)}, s{S_T0} offen sc1', tag='stC')
            if dt<6: I(f's_add_u32 s{S_T0}, s{S_T0}, {28*4096}')
        self.label(L)
    def cpack_flag(self):
        I=self.I
        L=self.newlabel('nocf')
        Lp=self.newlabel('w0poll')
        self.wait(vm='all')
        I(f's_cmp_lg_u32 s{S_W}, 0'); I(f's_cbranch_scc1 {Lp}')
        I(f'v_and_b32 v8, 3, v{V_LANE}'); I('v_lshlrev_b32 v8, 6, v8')
        self.poll('e0e', 8, P_DBG, 64)
        self.label(Lp)
        I('s_barrier')
        I(f's_cmp_ge_u32 s{S_E}, 28'); I(f's_cbranch_scc1 {L}')
        I(f's_mov_b32 s{S_T1}, 0')
        self.flag_set(S_T1,1,S_E,WS_FC)
        self.label(L)

    def p2_resid_loads(self):
        I=self.I
        self.make_srd(SRD_OUT, P_OUT, 2048*1792)
        I(f'v_and_b32 v7, 15, v{V_LANE}'); I(f'v_lshrrev_b32 v8, 4, v{V_LANE}')
        I('v_mul_u32_u24 v9, 896, v7'); I('v_lshlrev_b32 v10, 3, v8'); I('v_add_u32 v9, v9, v10')
        I(f's_lshl_b32 s{S_T0}, s{S_C}, 6'); I(f's_lshl_b32 s{S_T1}, s{S_WL}, 5'); I(f's_add_u32 s{S_T0}, s{S_T0}, s{S_T1}')
        I(f's_lshl_b32 s{S_T1}, s{S_G}, 6'); I(f's_lshl_b32 s{S_T2}, s{S_WH}, 5'); I(f's_add_u32 s{S_T1}, s{S_T1}, s{S_T2}')
        for y in range(2):
            for x in range(2):
                I(f's_add_u32 s{S_T2}, s{S_T0}, {16*y}'); I(f's_mul_i32 s{S_T2}, s{S_T2}, 896')
                I(f's_add_u32 s{S_T3}, s{S_T1}, {16*x}'); I(f's_lshl_b32 s{S_T3}, s{S_T3}, 1'); I(f's_add_u32 s{S_T2}, s{S_T2}, s{S_T3}')
                I(f'buffer_load_dwordx2 {vr(16+4*y+2*x,2)}, v9, {srd(SRD_X)}, s{S_T2} offen', tag='res')
        I('v_lshlrev_b32 v9, 2, v7')
        for y in range(2):
            I(f's_add_u32 s{S_T2}, s{S_T0}, {16*y}'); I(f's_lshl_b32 s{S_T2}, s{S_T2}, 2'); I(f's_add_u32 s{S_T2}, s{S_T2}, {WS_STAT}')
            I(f'buffer_load_dword v{24+2*y}, v9, {srd(SRD_WS)}, s{S_T2} offen sc1', tag='res')
            I(f's_add_u32 s{S_T2}, s{S_T2}, 8192')
            I(f'buffer_load_dword v{25+2*y}, v9, {srd(SRD_WS)}, s{S_T2} offen sc1', tag='res')
        I(f's_lshl_b32 s{S_T2}, s{S_T1}, 1'); I(f'v_add_u32 v9, s{S_T2}, v10')
        I(f'global_load_dwordx2 v[28:29], v9, {sp(P_DSK)}', tag='res')
        I(f'global_load_dwordx2 v[30:31], v9, {sp(P_DSK)} offset:32', tag='res')
        I(f'v_add_u32 v9, s{S_T0}, v7'); I('v_lshlrev_b32 v9, 1, v9')
        I(f'global_load_ushort v10, v9, {sp(P_B2)}', tag='res')
        I(f'global_load_ushort v38, v9, {sp(P_B2)} offset:32', tag='res')
    def resid_compute(self):
        I=self.I
        self.wait(vm=['res'])
        I('v_lshlrev_b32 v10, 16, v10'); I('v_lshlrev_b32 v38, 16, v38')
        yield
        for x in range(2):
            for h in range(2):
                I(f'v_lshlrev_b32 v{32+2*h}, 16, v{28+2*x+h}'); I(f'v_and_b32 v{33+2*h}, s{S_MASK}, v{28+2*x+h}')
            yield
            for y in range(2):
                xs=16+4*y+2*x; st=24+2*y; b2=10 if y==0 else 38
                for h in range(2):
                    r=240+8*y+4*x+2*h
                    I(f'v_lshlrev_b32 v{r}, 16, v{xs+h}'); I(f'v_and_b32 v{r+1}, s{S_MASK}, v{xs+h}')
                    I(f'v_pk_add_f32 v[36:37], v[{r}:{r+1}], v[{st}:{st+1}] op_sel_hi:[1,0] neg_lo:[0,1] neg_hi:[0,1]')
                    yield
                    I(f'v_pk_mul_f32 v[36:37], v[36:37], v[{st}:{st+1}] op_sel:[0,1] op_sel_hi:[1,1]')
                    I(f'v_pk_add_f32 v[{r}:{r+1}], v[{r}:{r+1}], v[{b2}:{b2+1}] op_sel_hi:[1,0]')
                    I(f'v_pk_fma_f32 v[{r}:{r+1}], v[36:37], v[{32+2*h}:{33+2*h}], v[{r}:{r+1}]')
                    yield

    CREG=[['v16','v20','v24','v28'],['v32','v36','v40','v44'],['v48','v52','v216','v220'],['v224','v228','v232','v236'],
          ['a0','a4','a8','a12'],['a224','a228','a232','a236'],['a240','a244','a248','a252']]
    def creg(self,i,x):
        r=self.CREG[i][x]; n=int(r[1:]); return f'{r[0]}[{n}:{n+3}]'
    def p2_bases(self):
        I=self.I
        I(f's_mul_i32 s90, s{S_G}, {56*4096}'); I(f's_mul_i32 s{S_T0}, s{S_W}, {14*4096}'); I(f's_add_u32 s90, s90, s{S_T0}')
        I(f's_add_u32 s90, s90, {WS_GT}')
        I(f's_lshl_b32 s{S_T1}, s{S_WH}, 11'); I(f's_xor_b32 s{S_T2}, s{S_T1}, 2048')
        I(f's_add_u32 s92, s90, s{S_T2}'); I(f's_add_u32 s90, s90, s{S_T1}')
        I(f's_mul_i32 s22, s{S_G}, {28*4096}'); I(f's_mul_i32 s{S_T0}, s{S_W}, {7*4096}'); I(f's_add_u32 s22, s22, s{S_T0}')
        I(f's_add_u32 s22, s22, {WS_CP}')
        I(f's_add_u32 s23, s22, s{S_T2}'); I(f's_add_u32 s22, s22, s{S_T1}')
        I(f's_mul_i32 s38, s{S_C}, {28*4096}'); I(f's_add_u32 s38, s38, s{S_T0}'); I(f's_add_u32 s38, s38, {WS_HP}')
        I(f's_lshl_b32 s{S_T1}, s{S_WL}, 11'); I(f's_xor_b32 s{S_T2}, s{S_T1}, 2048')
        I(f's_add_u32 s39, s38, s{S_T2}'); I(f's_add_u32 s38, s38, s{S_T1}')
    def q_c(self, steps):
        I=self.I
        def one(i,x):
            def f():
                b=22 if x<2 else 23
                I(f's_add_u32 s91, s{b}, {i*4096}')
                I(f'buffer_load_dwordx4 {self.creg(i,x)}, v{V_L16}, {srd(SRD_WS)}, s91 offen offset:{(x&1)*1024} sc1', tag=('c',i,x))
            return f
        for i in steps:
            for x in range(4): self.q.append(one(i,x))
    def cflag_check(self):
        I=self.I
        L=self.newlabel('cf'); D=self.newlabel('cfd')
        self.wait(vm=['fc'])
        self.exec_set('0x3f80','0')
        I('v_cmp_gt_u32 vcc, 1, v54'); I(f's_cbranch_vccz {D}')
        snap=self.snapshot()
        I(f's_mov_b32 s{S_BOUND}, 0x200000')
        self.label(L)
        I(f'global_load_dword v54, v12, {sp(P_WS)} sc1'); I('s_waitcnt vmcnt(0)')
        I('v_cmp_gt_u32 vcc, 1, v54'); I(f's_cbranch_vccz {D}')
        I('s_sleep 4'); I(f's_sub_u32 s{S_BOUND}, s{S_BOUND}, 1'); I(f's_cbranch_scc0 {L}')
        self.label(D); self.restore(snap)
        self.exec_full()
    def flag_wait(self, vaddr, vdst, tag):
        I=self.I
        L=self.newlabel('fw'); D=self.newlabel('fwd')
        self.wait(vm=[tag])
        I(f'v_cmp_gt_u32 vcc, 1, v{vdst}'); I(f's_cbranch_vccz {D}')
        snap=self.snapshot()
        I(f's_mov_b32 s{S_BOUND}, 0x200000')
        self.label(L)
        I(f'global_load_dword v{vdst}, v{vaddr}, {sp(P_WS)} sc1'); I('s_waitcnt vmcnt(0)')
        I(f'v_cmp_gt_u32 vcc, 1, v{vdst}'); I(f's_cbranch_vccz {D}')
        I('s_sleep 4'); I(f's_sub_u32 s{S_BOUND}, s{S_BOUND}, 1'); I(f's_cbranch_scc0 {L}')
        self.label(D); self.restore(snap)
    def p2_main(self, pre_only=False):
        I=self.I
        NS=6
        g0=self.opt.sfirst
        steps=[('g',k) for k in range(g0)]
        gi,si=g0,0
        while gi<14 or si<7:
            if si<7: steps.append(('s',si)); si+=1
            if gi<14: steps.append(('g',gi)); gi+=1
        groups=[('g',i) if k=='g' else ('h',i) for k,i in steps]
        gidx={g:n for n,g in enumerate(groups)}
        reg=lambda g: V_RING+16*(gidx[g]%NS)
        pend=[(g,x) for g in groups for x in range(4)]
        done=set(); state={}
        if not pre_only and self.opt.gearly: pend,done,state=self.p2state
        def can(g,x):
            n=gidx[g]-NS
            return n<0 or (groups[n],x) in done
        def issue(nmax):
            n=0
            while n<nmax and pend and can(*pend[0]):
                g,x=pend[0]
                if g[0]=='h' and not state.get('hflag'):
                    self.flag_wait(14,11,'fh'); state['hflag']=True
                pend.pop(0)
                b0,b1,nst={'g':(90,92,14),'h':(38,39,7)}[g[0]]
                sx=b0 if x<2 else b1
                I(f'buffer_load_dwordx4 {vr(reg(g)+4*x,4)}, v{V_L16}, {srd(SRD_WS)}, s{sx} offen offset:{(x&1)*1024} sc1', tag=(g,x))
                if (x&1) and g[1]<nst-1: I(f's_add_u32 s{sx}, s{sx}, 4096')
                n+=1
        if pre_only:
            issue(4*NS); self.p2state=(pend,done,state); return
        if not self.opt.gearly: issue(4*NS)
        first=True
        self.q_c([4])
        for pos,(kind,i) in enumerate(steps):
            if kind=='g' and i==3: I(f'global_load_dword v11, v14, {sp(P_WS)} sc1', tag='fh')
            if kind=='s':
                H=('h',i)
                for x in range(4):
                    self.wait(vm=[('c',i,x)]+([(H,y) for y in range(4)] if x==0 else []))
                    if x==0: self.stamp(f'p2.s{i}',fine=2)
                    for y in range(4):
                        d=V_ACC+16*x+4*y
                        I(f'v_mfma_f32_16x16x32_bf16 {vr(d,4)}, {self.creg(i,x)}, {vr(reg(H)+4*y,4)}, {vr(d,4)}')
                    if x<3: issue(1)
                for y in range(4): done.add((H,y))
                issue(2)
            else:
                A=('g',i)
                for x in range(4):
                    self.wait(vm=[(A,x)])
                    if x==0: self.stamp(f'p2.g{i}',fine=2)
                    for y in range(4):
                        d=V_ACC+16*x+4*y
                        cin='0' if first else vr(d,4)
                        I(f'v_mfma_f32_16x16x32_bf16 {vr(d,4)}, {vr(reg(A)+4*x,4)}, {ar(16*i+4*y,4)}, {cin}')
                    done.add((A,x))
                    issue(1)
                    if i==1: self.q.pop(0)()
            first=False
        assert not pend

    def p2_epilogue(self):
        I=self.I
        self.reduce(V_RING)
        for y in range(2):
            for x in range(2):
                a=V_ACC+16*x+4*y; r=240+8*y+4*x
                for h in range(2):
                    I(f'v_pk_add_f32 v[{a+2*h}:{a+2*h+1}], v[{a+2*h}:{a+2*h+1}], v[{r+2*h}:{r+2*h+1}]')
        if self.opt.delta:
            import struct
            hx='0x%08x'%struct.unpack('<I',struct.pack('<f',self.opt.delta))[0]
            for y in range(2):
                for x in range(2):
                    for r in range(4):
                        a=V_ACC+16*x+4*y+r
                        I(f'v_add_f32 v{a}, {hx}, v{a}')
        I(f'v_and_b32 v7, 15, v{V_LANE}'); I(f'v_lshrrev_b32 v8, 4, v{V_LANE}')
        I('v_mul_u32_u24 v9, 1792, v7'); I('v_lshlrev_b32 v10, 4, v8'); I('v_add_u32 v9, v9, v10')
        I(f's_lshl_b32 s{S_T0}, s{S_C}, 6'); I(f's_lshl_b32 s{S_T1}, s{S_WL}, 5'); I(f's_add_u32 s{S_T0}, s{S_T0}, s{S_T1}')
        I(f's_lshl_b32 s{S_T1}, s{S_G}, 6'); I(f's_lshl_b32 s{S_T2}, s{S_WH}, 5'); I(f's_add_u32 s{S_T1}, s{S_T1}, s{S_T2}')
        for y in range(2):
            for x in range(2):
                I(f's_add_u32 s{S_T2}, s{S_T0}, {16*y}'); I(f's_mul_i32 s{S_T2}, s{S_T2}, 1792')
                I(f's_add_u32 s{S_T3}, s{S_T1}, {16*x}'); I(f's_lshl_b32 s{S_T3}, s{S_T3}, 2'); I(f's_add_u32 s{S_T2}, s{S_T2}, s{S_T3}')
                a=V_ACC+16*x+4*y
                I(f'buffer_store_dwordx4 {vr(a,4)}, v9, {srd(SRD_OUT)}, s{S_T2} offen {self.opt.outmod}')

    def write_stamps(self):
        if not self.opt.stamps: return
        I=self.I
        I('s_lshl_b32 s3, s2, 2'); I(f's_add_u32 s3, s3, s{S_W}'); I('s_lshl_b32 s3, s3, 8'); I(f's_add_u32 s3, s3, {WS_DBG}')
        I(f'v_lshlrev_b32 v9, 2, v{V_LANE}')
        I(f'buffer_store_dword v{self.vst}, v9, {srd(SRD_WS)}, s3 offen')
        if getattr(self.opt,'dbgwg',-1)>=0 and self.final_stamps:
            L=self.newlabel('dbgout')
            I(f's_cmp_lg_u32 s2, {self.opt.dbgwg}'); I(f's_cbranch_scc1 {L}')
            I(f's_cmp_lg_u32 s{S_W}, 0'); I(f's_cbranch_scc1 {L}')
            I(f'v_readlane_b32 s3, v{self.vst}, 0'); I('s_nop 4')
            I(f'v_subrev_u32 v8, s3, v{self.vst}')
            I(f'v_add_u32 v9, {self.opt.dbgoff}, v{V_LANE}'); I('v_lshlrev_b32 v9, 2, v9')
            I('ds_bpermute_b32 v8, v9, v8'); I('s_waitcnt lgkmcnt(0)')
            I(f'v_lshlrev_b32 v9, 2, v{V_LANE}')
            self.exec_set('0xfffe','0')
            I(f'global_store_dword v9, v8, {sp(P_DBG)}')
            self.exec_full()
            self.label(L)
    def build(self):
        I=self.I; o=self.opt
        if o.stamps: I('v_mov_b32 v55, 0')
        self.prologue()
        self.touches_pre()
        wt=self.opt.w1touch
        if wt=='A' or self.opt.alsoA: self.touch_w1()
        if self.opt.t3start:
            Lt=self.newlabel('t3s')
            I(f's_cmp_lg_u32 s{S_W}, 3'); I(f's_cbranch_scc1 {Lt}')
            snap=self.snapshot()
            self.touch_w1_wg()
            self.label(Lt); self.merge(snap)
        Lcont=self.newlabel('cont')
        I('s_cmp_eq_u32 s74, 1'); I(f's_cbranch_scc1 {Lcont}')
        snap=self.snapshot()
        self.ln8(clears=False)
        self.vm['st0']=0
        self.arrive0()
        if wt=='F': self.touch_w1()
        if wt=='S': self.touch_w1_split(True)
        self.stamp('pf1')
        if self.opt.eorder==0:
            self.cpack()
            self.stamp('cp')
            self.touch_pf(2)
            self.cpack_flag()
        elif self.opt.eorder==1:
            self.touch_pf(2)
            self.stamp('cp')
            self.cpack()
            self.cpack_flag()
        else:
            self.cpack()
            self.cpack_flag()
            self.stamp('cp')
            self.touch_pf(2)
            self.wait(vm='all')
        self.stamp('pf2')
        self.write_stamps()
        I('s_endpgm')
        self.label(Lcont); self.restore(snap)
        self.dma_setup()
        if wt=='E': self.touch_w1(setup_only=True)
        self.w1_setup()
        if self.opt.bfirst: self.q_b(); self.q_x([0,1,2])
        else: self.q_x([0,1,2]); self.q_b()
        for n in range(self.opt.pre): self.tick()
        self.stamp('issued')
        self.auto=self.opt.period if self.opt.ln8tick else 0
        self.ln8()
        self.auto=0
        self.stamp('ln8 stored')
        if self.opt.bfirst: self.q_x([3])
        else:
            rest=self.q; self.q=[]; self.q_x([3]); self.q+=rest
        self.auto=self.opt.period
        self.x_addr()
        self.lam_consts()
        self.auto=0
        self.stamp('lam')
        self.arrive0()
        self.stamp('arrived')
        self.drain_q()
        if wt=='F': self.touch_w1()
        if wt=='S': self.touch_w1_split(False)
        self.stamp('drained')
        self.wait(vm=['x64','bdma']); I('s_barrier')
        self.do_bread()
        self.auto=self.opt.statp
        self.row_stats()
        self.auto=0
        self.wait(vm=['b13'])
        self.stamp('ln64')
        I(f'v_and_b32 v35, 3, v{V_LANE}'); I('v_lshlrev_b32 v35, 6, v35')
        I(f'global_load_dword v34, v35, {sp(P_DBG)} sc1', tag='e0c')
        self.auto=self.opt.bup
        self.bu_gemm()
        self.stamp('bu',fine=True)
        self.ln_fix()
        self.scan1()
        self.e_addr()
        self.auto=0
        self.stamp('scan1')
        self.wait_e0()
        self.stamp('e0')
        Lnog=self.newlabel('nog1'); Lj=self.newlabel('g1join')
        I(f's_cmp_eq_u32 s{S_HASG1}, 0'); I(f's_cbranch_scc1 {Lnog}')
        snap=self.snapshot()
        R1=dict(self.R); R1['free']=list(self.R['free']); R1['slot']=dict(self.R['slot'])
        self.g_bias_load()
        self.gemm1()
        self.stamp('gemm1')
        self.g_epilogue()
        self.stamp('gepi')
        I(f's_branch {Lj}')
        snapA=self.snapshot()
        RA={k:self.R[k] for k in ('iss','rd','rel','piece')}; RA['free']=list(self.R['free']); RA['slot']=dict(self.R['slot'])
        self.label(Lnog); self.restore(snap); self.R=R1
        self.ring_finish(); self.wait(lg='all')
        self.w2_setup()
        self.replay_ring(RA)
        self.e_loads()
        self.p2_flag_addr(); self.p2_bases()
        I(f'global_load_dword v54, v12, {sp(P_WS)} sc1', tag='fc')
        self.label(Lj); self.merge(snapA)
        self.cflag_check()
        self.q_c([5,6])
        self.auto=self.opt.finp
        for _ in self.finalize(): pass
        self.auto=0
        self.stamp('final')
        if o.stamps: I('v_mov_b32 v15, v55'); self.vst=15
        self.drain_q()
        if self.opt.gearly:
            self.flag_wait(12,53,'fg')
            self.stamp('flagG')
            self.p2_main(pre_only=True)
        self.p2_resid_loads()
        for n in range(self.opt.rwait):
            if self.R is not None and not self.ring_tick(): self.ring_finish()
        self.auto=self.opt.finp
        for _ in self.resid_compute(): pass
        self.auto=0
        self.wait(vm=['stH']); I('s_barrier')
        self.flag_set(S_C,7,S_G,WS_FH)
        self.q_c([0,1,2,3])
        while self.q or self.R is not None:
            if self.q:
                self.tick()
                if len(self.q)==self.opt.fglead and not self.opt.gearly: I(f'global_load_dword v11, v12, {sp(P_WS)} sc1', tag='fg')
            if self.R is not None:
                if not self.ring_tick(): self.ring_finish()
        self.wait(lg='all')
        self.stamp('w2 in regs')
        if not self.opt.gearly:
            self.flag_wait(12,11,'fg')
            self.stamp('flagG')
        self.p2_main()
        self.stamp('p2')
        self.p2_epilogue()
        self.stamp('end'); self.cstamp('c1')
        self.final_stamps=True
        self.write_stamps()
        self.label('L_exit')
        I('s_endpgm')
        self.label('L_code_end')

def header(lds):
    return f"""; Fused S5 SSM + MLP-Mixer token MLP, one persistent launch (256 workgroups, one per CU).
; @launch grid=(256,1,1) block=(256,1,1) lds={lds}
.amdgcn_target "amdgcn-amd-amdhsa--gfx950"
.text
.globl {KN}
.p2align 8
.type {KN},@function
{KN}:
"""
def footer():
    return f"""
.section .rodata,"a"
.p2align 6
.amdhsa_kernel {KN}
  .amdhsa_next_free_vgpr 512
  .amdhsa_next_free_sgpr 102
  .amdhsa_accum_offset 256
  .amdhsa_group_segment_fixed_size 0
  .amdhsa_kernarg_size 136
  .amdhsa_user_sgpr_count 2
  .amdhsa_user_sgpr_kernarg_segment_ptr 1
  .amdhsa_system_sgpr_workgroup_id_x 1
  .amdhsa_float_denorm_mode_32 3
.end_amdhsa_kernel
"""
if __name__=='__main__':
    ap=argparse.ArgumentParser()
    ap.add_argument('-o',default='k.s'); ap.add_argument('--stamps',action='store_true'); ap.add_argument('--stop',default=''); ap.add_argument('--fine',type=int,default=0); ap.add_argument('--period',type=int,default=48); ap.add_argument('--eorder',type=int,default=1); ap.add_argument('--statp',type=int,default=0); ap.add_argument('--gearly',type=int,default=1); ap.add_argument('--delta',type=float,default=0.0); ap.add_argument('--bup',type=int,default=0); ap.add_argument('--statj',type=int,default=9); ap.add_argument('--outmod',default=''); ap.add_argument('--dbgwg',type=int,default=-1); ap.add_argument('--dbgoff',type=int,default=0); ap.add_argument('--arrlead',type=int,default=10); ap.add_argument('--t3start',type=int,default=0); ap.add_argument('--notouch3',type=int,default=0); ap.add_argument('--own3',type=int,default=0); ap.add_argument('--alsoA',type=int,default=0); ap.add_argument('--now2',type=int,default=0); ap.add_argument('--gepip',type=int,default=0); ap.add_argument('--finp',type=int,default=36); ap.add_argument('--sfirst',type=int,default=10); ap.add_argument('--rwait',type=int,default=8); ap.add_argument('--fglead',type=int,default=6); ap.add_argument('--ln64p',type=int,default=48); ap.add_argument('--bfirst',type=int,default=0); ap.add_argument('--w2late',type=int,default=1); ap.add_argument('--rot1',type=int,default=4); ap.add_argument('--rot2',type=int,default=1); ap.add_argument('--rot3',type=int,default=1); ap.add_argument('--ln8tick',type=int,default=0); ap.add_argument('--bdelay',type=int,default=2); ap.add_argument('--w1touch',default='A'); ap.add_argument('--fin0',type=int,default=4); ap.add_argument('--finrate',type=int,default=2); ap.add_argument('--p2rate',type=int,default=3); ap.add_argument('--pre',type=int,default=1); ap.add_argument('--pre1',type=int,default=8); ap.add_argument('--gwait',type=int,default=6); ap.add_argument('--ht_touch',type=int,default=0); ap.add_argument('--g_touch',type=int,default=0)
    o=ap.parse_args()
    k=K(o); k.build()
    t,n=k.text()
    open(o.o,'w').write(header(LDS_TOTAL)+t+footer())
    print('wrote',o.o,'lines',t.count('\n'),'nop states inserted',n)
    if o.stamps: open(o.o+'.names','w').write(','.join(k.stampnames)); print(k.stampnames)
```

```python
import sys, os, argparse
from asmgen import Gen

KN = "parallel_sum__ssm_conv_s5__mixer_token_mlp__prompt_kernel"

WS_HT    = 0x000000
WS_STAT  = 0x1C0000
WS_E     = 0x1C4000
WS_FH    = 0x1E0000
WS_FG    = 0x1E4000
WS_FC    = 0x1E8000
WS_CP    = 0x780000
WS_GT    = 0x200000
WS_HP    = 0x400000
WS_DBG   = 0x900000

LDS_X  = 0
LDS_Y  = 57344
YW     = 26624
SLOT_OFF = [0, 4096, 8192, 12288, 16384, 20480]
LDS_LN8 = LDS_X + 57344 - 7680
LDS_TOTAL = LDS_Y + 4*YW

P_X, P_LRE, P_LIM, P_BRE, P_BIM, P_CRE, P_CIM, P_LDT = 4,6,8,10,12,14,16,18
P_DSK = 20
P_W1, P_B1, P_W2, P_B2 = 24,26,28,30
P_OUT, P_DBG, P_WS = 32,34,36
SRD_X, SRD_WS, SRD_1, SRD_2, SRD_W, SRD_OUT = 40,44,48,52,56,60
S_W, S_WH, S_WL, S_C, S_G, S_DT1, S_FT, S_HASG1 = 64,65,66,67,68,69,70,71
S_MASK, S_ONES = 72, 73
S_A, S_B, S_WO, S_T0, S_T1, S_T2, S_T3, S_BOUND = 76,77,78,79,80,81,82,83
S_YB = 84
S_WBEG, S_WEND = 96, 97
S_KO, S_KEND = 100, 101
S_FI = 3
S_E = 85
def sp(n): return f's[{n}:{n+1}]'
def srd(n): return f's[{n}:{n+3}]'
def vr(a,n): return f'v[{a}:{a+n-1}]' if n>1 else f'v{a}'
def ar(a,n): return f'a[{a}:{a+n-1}]' if n>1 else f'a{a}'

V_LANE, V_L16 = 0, 1
V_TR = 2
V_DMA = [6,13]
V_T = 16
V_LR,V_LI,V_K1,V_K2,V_SR,V_SI,V_PR,V_PI,V_L64R,V_L64I,V_L512R,V_L512I = range(40,52)
V_IN = 52
V_X64 = 56
V_BF = 112
V_RAW = 224
V_ACC = 56
V_RING = 120
V_EL = 16
V_EOF = 216

class K(Gen):
    def __init__(self, opt):
        super().__init__(); self.opt=opt; self.nstamp=0
        self.final_stamps=False; self.vst=55; self.nx=0; self.nb=0; self.bread=False; self.allow_bread=False; self.bdelay=opt.bdelay; self.q=[]; self.R=None; self.auto=0; self.acc=0; self.in_tick=False; self.full=True
    def I(self,t,tag=None):
        super().I(t,tag)
        if self.in_tick: return
        mn=t.split()[0]
        if mn.startswith(('buffer_','global_')): self.acc=0; return
        if not self.auto: return
        if mn.startswith('v_mfma'): self.acc+=16
        elif mn.startswith(('v_exp','v_rcp','v_sqrt','v_sin','v_cos','v_log')): self.acc+=8
        elif mn.startswith(('v_','ds_')): self.acc+=4
        else: return
        if self.acc>=self.auto and self.full and not mn.startswith(('v_cmp','s_cmp','s_bitcmp')):
            self.tick()
    def tick(self):
        self.in_tick=True; self.acc=0
        if not self.bread and self.allow_bread and self.nb>=34:
            if self.bdelay>0: self.bdelay-=1
            else:
                self.do_bread(); self.in_tick=False; return
        if self.q: self.q.pop(0)()
        elif self.R is not None: self.ring_tick()
        self.in_tick=False
    def do_bread(self):
        self.bread=True
        self.b_read()
        self.wait(lg=['brd'])
        self.ring_init('w1',16,3584,range(6))
    def drain_q(self):
        while self.q: self.tick()
    def stamp(self, name, fine=False):
        if not self.opt.stamps: return
        if fine and int(fine)>self.opt.fine: return
        i=self.nstamp; self.nstamp+=1
        assert i<64
        self.c(f'stamp {i}: {name}')
        self.wait(lg='all')
        self.I('s_memrealtime s[98:99]'); self.I('s_waitcnt lgkmcnt(0)'); self.smem=False
        self.I(f'v_writelane_b32 v{self.vst}, s98, {i}')
        self.stampnames=getattr(self,'stampnames',[])+[name]
    def cstamp(self, name):
        if not self.opt.stamps: return
        i=self.nstamp; self.nstamp+=1
        self.wait(lg='all')
        self.I('s_memtime s[98:99]'); self.I('s_waitcnt lgkmcnt(0)'); self.smem=False
        self.I(f'v_writelane_b32 v{self.vst}, s98, {i}')
        self.stampnames=getattr(self,'stampnames',[])+['#'+name]
    def rnd_bf16(self, v):
        self.I(f'v_cvt_pk_bf16_f32 v{v}, v{v}, v{v}')
        self.I(f'v_lshlrev_b32 v{v}, 16, v{v}')
    def make_srd(self, s, ptr, nbytes):
        self.I(f's_mov_b32 s{s}, s{ptr}'); self.I(f's_and_b32 s{s+1}, s{ptr+1}, 0xffff')
        self.I(f's_mov_b32 s{s+2}, {nbytes}'); self.I(f's_mov_b32 s{s+3}, 0x20000')
    def ln_stats(self, SUM, SSQ, R, C, T):
        I=self.I
        I(f'v_mul_f32 v{SUM}, 0x3b124925, v{SUM}')
        I(f'v_mul_f32 v{SSQ}, 0x3b124925, v{SSQ}')
        I(f'v_fma_f32 v{SSQ}, -v{SUM}, v{SUM}, v{SSQ}')
        I(f'v_max_f32 v{SSQ}, 0, v{SSQ}')
        I(f'v_cvt_pk_bf16_f32 v{SUM}, v{SUM}, v{SUM}')
        I(f'v_cvt_pk_bf16_f32 v{SSQ}, v{SSQ}, v{SSQ}')
        I(f'v_lshlrev_b32 v{SUM}, 16, v{SUM}')
        I(f'v_lshlrev_b32 v{SSQ}, 16, v{SSQ}')
        I(f'v_add_f32 v{SSQ}, 0x3727c5ac, v{SSQ}')
        self.rnd_bf16(SSQ)
        I(f'v_sqrt_f32 v{SSQ}, v{SSQ}')
        self.rnd_bf16(SSQ)
        I(f'v_rcp_f32 v{R}, v{SSQ}')
        I(f'v_mul_f32 v{C}, v{SUM}, v{R}')
        I(f'v_sub_f32 v{C}, 0, v{C}')
    def dot_sums(self, regs, accs):
        I=self.I
        for n,d in enumerate(regs):
            s,q = accs[2*(n&1)], accs[2*(n&1)+1]
            if n<2:
                I(f'v_dot2_f32_bf16 v{s}, v{d}, s{S_ONES}, 0')
                I(f'v_dot2_f32_bf16 v{q}, v{d}, v{d}, 0')
            else:
                I(f'v_dot2_f32_bf16 v{s}, v{d}, s{S_ONES}, v{s}')
                I(f'v_dot2_f32_bf16 v{q}, v{d}, v{d}, v{q}')
        I(f'v_add_f32 v{accs[0]}, v{accs[0]}, v{accs[2]}')
        I(f'v_add_f32 v{accs[1]}, v{accs[1]}, v{accs[3]}')
    def normalize(self, regs, R, C, tmps, hook=None):
        I=self.I
        n=len(tmps)
        for b in range(0,len(regs),n):
            grp=regs[b:b+n]
            for d,t in zip(grp,tmps):
                I(f'v_lshlrev_b32 v{t}, 16, v{d}')
                I(f'v_and_b32 v{t+1}, s{S_MASK}, v{d}')
            for d,t in zip(grp,tmps):
                I(f'v_pk_fma_f32 v[{t}:{t+1}], v[{t}:{t+1}], v[{R}:{R+1}], v[{C}:{C+1}] op_sel_hi:[1,0,0]')
            for d,t in zip(grp,tmps):
                I(f'v_cvt_pk_bf16_f32 v{d}, v{t}, v{t+1}')
            if hook: hook(b//n)
    def cmul(self, dr, di, xr, xi, yr, yi, t0, t1):
        I=self.I
        I(f'v_mul_f32 v{t0}, v{xi}, v{yi}')
        I(f'v_mul_f32 v{t1}, v{xi}, v{yr}')
        I(f'v_fma_f32 v{t0}, v{xr}, v{yr}, -v{t0}')
        I(f'v_fma_f32 v{di}, v{xr}, v{yi}, v{t1}')
        I(f'v_mov_b32 v{dr}, v{t0}')
    def cfma(self, dr, di, xr, xi, yr, yi, zr, zi, t0, t1):
        I=self.I
        I(f'v_fma_f32 v{t0}, v{xr}, v{yr}, v{zr}')
        I(f'v_fma_f32 v{t1}, v{xr}, v{yi}, v{zi}')
        I(f'v_fma_f32 v{t0}, -v{xi}, v{yi}, v{t0}')
        I(f'v_fma_f32 v{di}, v{xi}, v{yr}, v{t1}')
        I(f'v_mov_b32 v{dr}, v{t0}')
    def csq(self, dr, di, xr, xi, t0):
        I=self.I
        I(f'v_mul_f32 v{t0}, v{xi}, v{xi}')
        I(f'v_mul_f32 v{di}, v{xr}, v{xi}')
        I(f'v_fma_f32 v{dr}, v{xr}, v{xr}, -v{t0}')
        I(f'v_add_f32 v{di}, v{di}, v{di}')
    def allgather_q(self, v, g0, g1, g2, g3):
        I=self.I
        I(f'v_mov_b32 v{g0}, v{v}'); I(f'v_mov_b32 v{g1}, v{v}')
        I(f'v_permlane16_swap_b32 v{g0}, v{g1}')
        I(f'v_mov_b32 v{g2}, v{g0}'); I(f'v_mov_b32 v{g3}, v{g1}')
        I(f'v_permlane32_swap_b32 v{g0}, v{g2}')
        I(f'v_permlane32_swap_b32 v{g1}, v{g3}')
    def exec_full(self): self.I('s_mov_b64 exec, -1'); self.full=True
    def exec_set(self, lo, hi):
        self.full=False
        self.I(f's_mov_b32 exec_lo, {lo}'); self.I(f's_mov_b32 exec_hi, {hi}')
    def poll(self, name, voff, base, cmp_ge, nlanes_lo=None):
        I=self.I
        L=self.newlabel('poll'); D=self.newlabel('polld')
        I(f's_mov_b32 s{S_BOUND}, 0x200000')
        self.label(L)
        I(f'global_load_dword v7, v{voff}, {sp(base)} sc1')
        I('s_waitcnt vmcnt(0)'); self.vm={}
        I(f'v_cmp_gt_u32 vcc, {cmp_ge}, v7')
        I(f's_cbranch_vccz {D}')
        I('s_sleep 4')
        I(f's_sub_u32 s{S_BOUND}, s{S_BOUND}, 1')
        I(f's_cbranch_scc0 {L}')
        self.label(D)

    def ring_setup(self, pitch, xorsel):
        I=self.I
        I(f'v_lshrrev_b32 v7, 3, v{V_LANE}'); I(f'v_and_b32 v8, 7, v{V_LANE}')
        I('v_and_b32 v9, 6, v7'); I('v_xor_b32 v8, v8, v9'); I('v_lshlrev_b32 v8, 4, v8')
        I(f'v_mul_u32_u24 v7, {pitch}, v7'); I(f'v_add_u32 v{V_DMA[0]}, v7, v8')
        I(f'v_add_u32 v{V_DMA[1]}, {8*pitch-1024}, v{V_DMA[0]}')
        I(f'v_lshrrev_b32 v7, 2, v{V_LANE}'); I('v_and_b32 v8, 6, v7')
        I(f'v_bfe_u32 v9, v{V_LANE}, 1, 1'); I('v_xor_b32 v8, v8, v9'); I('v_lshlrev_b32 v8, 4, v8')
        I('v_lshlrev_b32 v7, 7, v7'); I('v_add_u32 v7, v7, v8')
        I(f'v_and_b32 v9, 1, v{V_LANE}'); I('v_lshlrev_b32 v9, 3, v9'); I('v_add_u32 v7, v7, v9')
        I(f's_lshl_b32 s{S_T0}, s{xorsel}, 6')
        I(f'v_xor_b32 v7, s{S_T0}, v7')
        I(f'v_add_u32 v{V_TR}, s{S_YB}, v7')
        for x in range(1,4):
            I(f'v_xor_b32 v{V_TR+x}, {x<<5}, v{V_TR}')
    def ring_init(self, name, nsteps, pitch, slots):
        self.R=dict(name=name,n=nsteps,pitch=pitch,free=list(slots),slot={},iss=0,rd=0,rel=0,piece=0)
    def ring_add(self, slots): self.R['free']+=list(slots)
    def ring_issue_piece(self):
        R=self.R; I=self.I
        k=R['iss']
        if k>=R['n']: return False
        j=R['piece']
        if j==0:
            if not R['free']: return False
            R['slot'][k]=R['free'].pop(0)
        if j%2==0:
            I(f's_add_u32 m0, s{S_YB}, {SLOT_OFF[R["slot"][k]]+j*1024}')
            if k or j: I(f's_add_u32 s{S_WO}, s{S_WO}, {16*R["pitch"]}')
            else: I('s_nop 0')
        I(f'buffer_load_dwordx4 v{V_DMA[j%2]}, {srd(SRD_W)}, s{S_WO} offen offset:{(j%2)*1024} lds', tag=(R['name'],k))
        R['piece']=(j+1)%4
        if R['piece']==0: R['iss']+=1
        return True
    def ring_issue(self):
        while self.ring_issue_piece(): pass
    def ring_read(self):
        R=self.R; I=self.I
        k=R['rd']
        if k>=R['n']: return False
        assert k<R['iss'], 'read before issue'
        off=SLOT_OFF[R['slot'][k]]
        self.wait(vm=[(R['name'],k)])
        for x in range(4):
            b=16*k+4*x
            I(f'ds_read_b64_tr_b16 {ar(b,2)}, v{V_TR+x} offset:{off}', tag=(R['name'],'r',k))
            I(f'ds_read_b64_tr_b16 {ar(b+2,2)}, v{V_TR+x} offset:{off+2048}', tag=(R['name'],'r',k))
        R['rd']+=1
        return True
    def ring_release(self):
        R=self.R
        k=R['rel']
        if k>=R['rd']: return False
        self.wait(lg=[(R['name'],'r',k)])
        R['free'].append(R['slot'][k]); R['rel']+=1
        self.ring_issue()
        return True
    def ring_tick(self):
        R=self.R
        if R['iss']<R['n']:
            if R['piece']==0 and not R['free']:
                if R['rel']>=R['rd']:
                    assert R['rd']<R.get('maxrd',99)
                    self.ring_read()
                k=R['rel']; self.wait(lg=[(R['name'],'r',k)]); R['free'].append(R['slot'][k]); R['rel']+=1
            self.ring_issue_piece()
            if R['piece']==3 and not R['free'] and R['rd']==R['rel'] and R['rd']<R['iss'] and R['rd']<R.get('maxrd',99):
                self.ring_read()
            return True
        if R['rd']<R['n'] and R['rd']<R.get('maxrd',99): return self.ring_read()
        return False
    def bg(self):
        return self.ring_tick()
    def replay_ring(self, RA):
        R=self.R
        while (R['iss'],R['piece'])<(RA['iss'],RA['piece']) or R['rd']<RA['rd']:
            if (R['iss'],R['piece'])<(RA['iss'],RA['piece']):
                before=R['rd']
                R['maxrd']=RA['rd']
                self.ring_tick()
            else:
                self.ring_read()
        while R['rel']<RA['rel']:
            k=R['rel']; self.wait(lg=[(R['name'],'r',k)]); R['free'].append(R['slot'][k]); R['rel']+=1
        R['maxrd']=99
        for k in RA: assert RA[k]==R[k], (k,RA[k],R[k])
    def ring_finish(self):
        R=self.R; R['maxrd']=99
        while R['rd']<R['n'] or R['iss']<R['n']: self.ring_tick()
        R['rel']=R['n']; self.R=None

    def reduce(self, tmp, pre=None, post=None):
        I=self.I
        for e in (1,2,3):
            I(f's_xor_b32 s{S_T0}, s{S_W}, {e}'); I(f's_mul_i32 s{S_T0}, s{S_T0}, {3*4096}')
            I(f's_add_u32 s{S_T0}, s{S_T0}, {LDS_X+(e-1)*4096}')
            I(f'v_add_u32 v7, s{S_T0}, v{V_L16}')
            xh,yh=e>>1,e&1
            for xl in range(2):
                for yl in range(2):
                    a=V_ACC+16*(2*xh+xl)+4*(2*yh+yl)
                    I(f'ds_write_b128 v7, {vr(a,4)} offset:{(2*xl+yl)*1024}', tag='redw')
        if pre: pre()
        self.wait(lg='all'); I('s_barrier')
        if post: post()
        I(f's_mul_i32 s{S_T0}, s{S_W}, {3*4096}'); I(f'v_add_u32 v7, s{S_T0}, v{V_L16}')
        for e in range(3):
            for sub in range(4):
                I(f'ds_read_b128 {vr(tmp+16*e+4*sub,4)}, v7 offset:{LDS_X+e*4096+sub*1024}', tag=('red',e))
        for e in range(3):
            self.wait(lg=[('red',e)])
            for sub in range(4):
                a=V_ACC+16*(sub>>1)+4*(sub&1)
                for h in range(2):
                    I(f'v_pk_add_f32 v[{a+2*h}:{a+2*h+1}], v[{a+2*h}:{a+2*h+1}], v[{tmp+16*e+4*sub+2*h}:{tmp+16*e+4*sub+2*h+1}]')

    def prologue(self):
        I=self.I
        I('s_cmp_ge_u32 s2, 256'); I('s_cbranch_scc1 L_exit')
        I('s_load_dwordx16 s[4:19], s[0:1], 0')
        I('s_load_dwordx2 s[20:21], s[0:1], 64')
        I('s_load_dwordx8 s[24:31], s[0:1], 80')
        I('s_load_dwordx4 s[32:35], s[0:1], 112')
        I('s_load_dwordx2 s[36:37], s[0:1], 128')
        I('v_lshrrev_b32 v7, 6, v0'); I(f'v_and_b32 v{V_LANE}, 63, v0')
        I(f'v_readfirstlane_b32 s{S_W}, v7')
        I(f'v_lshlrev_b32 v{V_L16}, 4, v{V_LANE}')
        I(f's_mov_b32 s{S_MASK}, 0xffff0000'); I(f's_mov_b32 s{S_ONES}, 0x3f803f80')
        I(f's_lshr_b32 s{S_WH}, s{S_W}, 1'); I(f's_and_b32 s{S_WL}, s{S_W}, 1')
        I(f's_mul_i32 s{S_YB}, s{S_W}, {YW}'); I(f's_add_u32 s{S_YB}, s{S_YB}, {LDS_Y}')
        I('s_getreg_b32 s22, hwreg(HW_REG_XCC_ID, 0, 4)'); I('s_and_b32 s22, s22, 7')
        self.wait(lg='all')
        self.make_srd(SRD_X, P_X, 2048*896)
        self.x8_issue(2)
        self.make_srd(SRD_WS, P_WS, 0x10000000)
        L=self.newlabel('notick'); Lj=self.newlabel('tickj')
        I(f's_cmp_lg_u32 s{S_W}, 0'); I(f's_cbranch_scc1 {L}')
        snap=self.snapshot()
        self.ticket_issue()
        I(f's_branch {Lj}')
        snapA=self.snapshot()
        self.label(L); self.restore(snap)
        I('v_mov_b32 v6, 0x7ffffff0')
        I(f'buffer_load_dword v13, v6, {srd(SRD_X)}, 0 offen', tag='tick')
        self.label(Lj); self.merge(snapA)
        self.make_srd(SRD_1, P_BRE, 448*896); self.make_srd(SRD_2, P_BIM, 448*896); self.make_srd(SRD_W, P_W1, 2048*3584)
        I(f's_lshl_b32 s{S_T3}, s2, 2'); I(f's_add_u32 s{S_T3}, s{S_T3}, s{S_W}')
        I(f's_cmp_lt_u32 s{S_T3}, 448')
        I(f's_cselect_b32 s{SRD_OUT}, s{P_BRE}, s{P_BIM}'); I(f's_cselect_b32 s{SRD_OUT+1}, s{P_BRE+1}, s{P_BIM+1}')
        I(f's_cselect_b32 s{S_T0}, 0, 448'); I(f's_sub_u32 s{S_T3}, s{S_T3}, s{S_T0}'); I(f's_mul_i32 s{S_T3}, s{S_T3}, 896')
        I(f's_mov_b32 s{SRD_OUT+2}, {448*896}'); I(f's_mov_b32 s{SRD_OUT+3}, 0x20000')
        I(f'v_lshlrev_b32 v7, 7, v{V_LANE}'); I(f'v_add_u32 v7, s{S_T3}, v7')
        self.exec_set('0x7f','0')
        I(f'buffer_load_dword v12, v7, {srd(SRD_OUT)}, 0 offen', tag='touch')
        self.exec_full()
        self.stamp('start'); self.cstamp('c0')

    def ticket_issue(self):
        I=self.I
        I('s_and_b32 s23, s22, 3'); I('s_lshl_b32 s23, s23, 6'); I('s_lshr_b32 s38, s22, 2'); I('s_lshl_b32 s38, s38, 4')
        I('s_add_u32 s23, s23, s38'); I('s_add_u32 s23, s23, 16')
        I('v_mov_b32 v6, s23'); I('v_mov_b32 v11, 1')
        self.exec_set(1,0)
        I(f'global_atomic_add v13, v6, v11, {sp(P_DBG)} sc0 sc1', tag='tick')
        self.exec_full()
    def ticket_finish(self):
        I=self.I
        L=self.newlabel('tkskip'); Lr=self.newlabel('tkretry'); Lo=self.newlabel('tkok')
        I(f's_cmp_lg_u32 s{S_W}, 0'); I(f's_cbranch_scc1 {L}')
        snap=self.snapshot()
        I('s_mov_b32 s39, 0')
        self.wait(vm=['tick'])
        self.label(Lr)
        I('v_readfirstlane_b32 s23, v13'); I('s_nop 3')
        I('s_cmp_lt_u32 s23, 32'); I(f's_cbranch_scc1 {Lo}')
        I('s_add_u32 s39, s39, 1'); I('s_cmp_ge_u32 s39, 8'); I('s_cbranch_scc1 L_exit')
        I('s_add_u32 s22, s22, 1'); I('s_and_b32 s22, s22, 7')
        self.ticket_issue()
        I('s_waitcnt vmcnt(0)')
        I(f's_branch {Lr}')
        self.label(Lo)
        I('s_lshl_b32 s38, s22, 5'); I('s_add_u32 s38, s38, s23')
        I('v_mov_b32 v8, s38'); I('v_mov_b32 v9, 0')
        self.exec_set(1,0)
        I(f'ds_write_b32 v9, v8 offset:{LDS_X}')
        self.exec_full()
        self.label(L); self.restore(snap)
    def roles(self):
        I=self.I
        I('v_mov_b32 v9, 0'); I(f'ds_read_b32 v8, v9 offset:{LDS_X}'); self.wait(lg='all')
        I('v_readfirstlane_b32 s23, v8'); I('s_nop 3')
        I('s_lshr_b32 s22, s23, 5'); I('s_and_b32 s23, s23, 31')
        I('s_and_b32 s38, s22, 1')
        I('s_lshr_b32 s39, s22, 1')
        I(f's_mul_i32 s{S_T0}, s23, 37'); I(f's_lshr_b32 s{S_T0}, s{S_T0}, 8')
        I(f's_mul_i32 s{S_T1}, s{S_T0}, 7'); I(f's_sub_u32 s{S_G}, s23, s{S_T1}')
        I(f's_mov_b32 s{S_DT1}, s{S_G}')
        I(f's_lshl_b32 s{S_T1}, s22, 2'); I(f's_add_u32 s{S_C}, s{S_T1}, s{S_T0}')
        I(f's_min_u32 s{S_C}, s{S_C}, 31')
        I(f's_mul_i32 s{S_T1}, s39, 7'); I(f's_lshl_b32 s{S_T2}, s38, 2'); I(f's_add_u32 s87, s{S_T1}, s{S_T2}')
        I(f's_add_u32 s{S_FT}, s87, s{S_T0}'); I(f's_min_u32 s{S_FT}, s{S_FT}, 27')
        I(f's_sub_u32 s{S_T1}, 4, s38'); I(f's_cmp_lt_u32 s{S_T0}, s{S_T1}'); I(f's_cselect_b32 s{S_HASG1}, 1, 0')
        I('s_cmp_lt_u32 s23, 28'); I('s_cselect_b32 s74, 1, 0')
        I(f's_sub_u32 s{S_E}, s23, 28'); I(f's_lshl_b32 s{S_E}, s{S_E}, 3'); I(f's_add_u32 s{S_E}, s{S_E}, s22')
        I('s_mov_b32 s86, s23'); I('s_mov_b32 s95, s22')
    def code_prefetch_e(self): pass
    def code_prefetch(self):
        I=self.I
        I('s_getpc_b64 s[98:99]'); self.label('L_pc0')
        I(f's_sub_u32 s98, s98, L_pc0-{KN}'); I('s_subb_u32 s99, s99, 0')
        I(f's_and_b32 s{S_T0}, s86, 1'); I(f's_lshl_b32 s{S_T0}, s{S_T0}, 2'); I(f's_add_u32 s{S_T0}, s{S_T0}, s{S_W}')
        I(f's_lshl_b32 s{S_T0}, s{S_T0}, 13')
        I(f'v_lshlrev_b32 v9, 7, v{V_LANE}'); I(f'v_add_u32 v9, s{S_T0}, v9')
        I(f'v_min_u32 v9, L_code_end-{KN}-16, v9')
        I('global_load_dword v12, v9, s[98:99]', tag='pf')

    def x8_issue(self, oct):
        I=self.I
        I(f's_lshr_b32 s75, s{oct}, 2'); I('s_lshl_b32 s75, s75, 5')
        I(f's_lshl_b32 s{S_T0}, s{S_WH}, 4'); I(f's_add_u32 s75, s75, s{S_T0}')
        I(f's_and_b32 s{S_T0}, s{oct}, 3'); I(f's_lshl_b32 s{S_T0}, s{S_T0}, 2'); I(f's_add_u32 s75, s75, s{S_T0}')
        I(f's_lshl_b32 s{S_T0}, s{S_WL}, 1'); I(f's_add_u32 s75, s75, s{S_T0}')
        I(f's_mul_i32 s{S_T2}, s75, 896')
        I(f'v_and_b32 v7, 31, v{V_LANE}'); I(f'v_lshrrev_b32 v8, 5, v{V_LANE}')
        I('v_mul_u32_u24 v8, 896, v8'); I('v_lshlrev_b32 v9, 5, v7'); I('v_add_u32 v8, v8, v9')
        I('v_mov_b32 v9, 0x7ffffff0'); I('v_cmp_gt_u32 vcc, 28, v7'); I('v_cndmask_b32 v8, v9, v8, vcc')
        I(f'buffer_load_dwordx4 {vr(V_T,4)}, v8, {srd(SRD_X)}, s{S_T2} offen', tag='x8')
        I(f'buffer_load_dwordx4 {vr(V_T+4,4)}, v8, {srd(SRD_X)}, s{S_T2} offen offset:16', tag='x8')
    def touches_pre(self):
        I=self.I
        self.make_srd(SRD_1, P_BRE, 448*896); self.make_srd(SRD_2, P_BIM, 448*896); self.make_srd(SRD_W, P_W1, 2048*3584)
        I(f'v_lshrrev_b32 v7, 3, v{V_LANE}'); I(f'v_and_b32 v8, 7, v{V_LANE}'); I('v_min_u32 v8, 6, v8')
        I('v_mul_u32_u24 v7, 896, v7'); I('v_lshlrev_b32 v8, 7, v8'); I('v_add_u32 v7, v7, v8')
        I(f's_lshl_b32 s{S_T3}, s86, 2'); I(f's_add_u32 s{S_T3}, s{S_T3}, s{S_W}')
        I(f's_lshl_b32 s{S_T0}, s95, 8'); I(f's_lshl_b32 s{S_T1}, s{S_T3}, 1'); I(f's_add_u32 s{S_T0}, s{S_T0}, s{S_T1}'); I(f's_mul_i32 s{S_T0}, s{S_T0}, 896')
        self.exec_set('0xffff','0')
        I(f'buffer_load_dword v12, v7, {srd(SRD_X)}, s{S_T0} offen', tag='touch')
        I(f's_and_b32 s{S_T0}, s{S_T3}, 63'); I(f's_mul_i32 s{S_T0}, s{S_T0}, {7*896}')
        I(f's_cmp_lt_u32 s{S_T3}, 64')
        I(f's_cselect_b32 s{SRD_OUT}, s{P_BRE}, s{P_BIM}'); I(f's_cselect_b32 s{SRD_OUT+1}, s{P_BRE+1}, s{P_BIM+1}')
        I(f's_mov_b32 s{SRD_OUT+2}, {448*896}'); I(f's_mov_b32 s{SRD_OUT+3}, 0x20000')
        self.exec_set('-1','0x00ffffff')
        I(f'buffer_load_dword v12, v7, {srd(SRD_OUT)}, s{S_T0} offen', tag='touch')
        self.exec_full()
    def touch_w1(self, setup_only=False):
        I=self.I
        I(f'v_lshrrev_b32 v7, 2, v{V_LANE}'); I(f'v_and_b32 v8, 3, v{V_LANE}')
        I(f's_and_b32 s{S_T1}, s95, 1'); I(f's_sub_u32 s{S_T1}, 3, s{S_T1}'); I(f'v_min_u32 v8, s{S_T1}, v8')
        I('v_mul_u32_u24 v7, 3584, v7'); I('v_lshlrev_b32 v8, 7, v8'); I('v_add_u32 v7, v7, v8')
        I(f's_lshl_b32 s{S_T0}, s{S_W}, 9'); I(f's_lshl_b32 s{S_T1}, s86, 4'); I(f's_add_u32 s{S_T0}, s{S_T0}, s{S_T1}')
        I(f's_mul_i32 s{S_T0}, s{S_T0}, 3584'); I(f's_lshl_b32 s{S_T1}, s87, 7'); I(f's_add_u32 s{S_T0}, s{S_T0}, s{S_T1}')
        if setup_only:
            I('v_mov_b32 v238, v7'); I(f's_mov_b32 s94, s{S_T0}'); return
        I(f'buffer_load_dword v12, v7, {srd(SRD_W)}, s{S_T0} offen', tag='touch')
    def touch_w1_split(self, rest):
        I=self.I
        I(f'v_lshrrev_b32 v7, 2, v{V_LANE}'); I(f'v_and_b32 v8, 3, v{V_LANE}')
        I(f's_and_b32 s{S_T1}, s95, 1'); I(f's_sub_u32 s{S_T1}, 3, s{S_T1}'); I(f'v_min_u32 v8, s{S_T1}, v8')
        I('v_mul_u32_u24 v7, 3584, v7'); I('v_lshlrev_b32 v8, 7, v8'); I('v_add_u32 v7, v7, v8')
        I(f's_lshl_b32 s{S_T0}, s{S_W}, 9')
        if not rest:
            I(f's_lshl_b32 s{S_T1}, s86, 3'); I(f's_add_u32 s{S_T0}, s{S_T0}, s{S_T1}')
        else:
            I(f's_sub_u32 s{S_T1}, s86, 28'); I(f's_lshl_b32 s{S_T1}, s{S_T1}, 4'); I(f's_add_u32 s{S_T0}, s{S_T0}, s{S_T1}'); I(f's_add_u32 s{S_T0}, s{S_T0}, 224')
        I(f's_mul_i32 s{S_T0}, s{S_T0}, 3584'); I(f's_lshl_b32 s{S_T1}, s87, 7'); I(f's_add_u32 s{S_T0}, s{S_T0}, s{S_T1}')
        if not rest:
            self.exec_set('-1','0')
            I(f'buffer_load_dword v12, v7, {srd(SRD_W)}, s{S_T0} offen', tag='touch')
            self.exec_full()
        else:
            for t in range(5):
                I(f'buffer_load_dword v12, v7, {srd(SRD_W)}, s{S_T0} offen', tag='touch')
                if t<4: I(f's_add_u32 s{S_T0}, s{S_T0}, {64*3584}')
    def touch_w1_wg(self):
        I=self.I
        I(f'v_lshrrev_b32 v7, 2, v{V_LANE}'); I(f'v_and_b32 v8, 3, v{V_LANE}')
        I(f's_and_b32 s{S_T1}, s95, 1'); I(f's_sub_u32 s{S_T1}, 3, s{S_T1}'); I(f'v_min_u32 v8, s{S_T1}, v8')
        I('v_mul_u32_u24 v7, 3584, v7'); I('v_lshlrev_b32 v8, 7, v8'); I('v_add_u32 v7, v7, v8')
        I(f's_lshl_b32 s{S_T0}, s86, 4'); I(f's_mul_i32 s{S_T0}, s{S_T0}, 3584'); I(f's_lshl_b32 s{S_T1}, s87, 7'); I(f's_add_u32 s{S_T0}, s{S_T0}, s{S_T1}')
        for q in range(4):
            I(f'buffer_load_dword v12, v7, {srd(SRD_W)}, s{S_T0} offen', tag='touch')
            if q<3: I(f's_add_u32 s{S_T0}, s{S_T0}, {512*3584}')
    def q_w3(self):
        I=self.I
        def xpair(p):
            def f():
                L=self.newlabel('xw3')
                I(f's_add_u32 s100, s{S_W}, {3*p}'); I('s_cmp_ge_u32 s100, 8'); I(f's_cbranch_scc1 {L}')
                snap=self.snapshot()
                I('s_lshl_b32 s101, s100, 4'); I(f'v_xor_b32 v238, s101, v{V_L16}')
                I('s_lshr_b32 s101, s100, 1'); I('s_lshl_b32 s101, s101, 4'); I('s_and_b32 s100, s100, 1'); I('s_lshl_b32 s100, s100, 1')
                I('s_add_u32 s100, s100, s101'); I('s_add_u32 s100, s100, 12'); I('s_mul_i32 s100, s100, 896')
                I(f's_lshl_b32 s101, s{S_C}, 6'); I('s_mul_i32 s101, s101, 896'); I('s_add_u32 s101, s101, s100')
                I('s_mov_b32 exec_hi, 0x00ffffff')
                I(f's_add_u32 m0, s100, {LDS_X}'); I('s_nop 0')
                I(f'buffer_load_dwordx4 v238, {srd(SRD_X)}, s101 offen lds', tag='x64')
                I(f's_add_u32 m0, s100, {LDS_X+896}'); I('s_add_u32 s101, s101, 896')
                I(f'buffer_load_dwordx4 v238, {srd(SRD_X)}, s101 offen lds', tag='x64')
                I('s_mov_b32 exec_hi, -1')
                self.label(L); self.merge(snap); self.vm['x64']=0
            return f
        def bblock(p):
            def f():
                L=self.newlabel('bw3'); Li=self.newlabel('bw3i')
                I(f's_add_u32 s100, s{S_W}, {3*p}'); I('s_cmp_ge_u32 s100, 8'); I(f's_cbranch_scc1 {L}')
                snap=self.snapshot()
                I('s_and_b32 s101, s100, 3'); I('s_sub_u32 s91, 0, s101'); I('s_and_b32 s91, s91, 3'); I('s_lshl_b32 s91, s91, 4')
                I(f'v_xor_b32 v238, s91, v{V_L16}')
                I('s_bitcmp1_b32 s100, 2')
                I(f's_cselect_b32 s{SRD_OUT}, s{P_BIM}, s{P_BRE}'); I(f's_cselect_b32 s{SRD_OUT+1}, s{P_BIM+1}, s{P_BRE+1}')
                I('s_cselect_b32 s100, 13312, 0')
                I('s_mul_i32 s91, s101, 3328'); I('s_add_u32 s100, s100, s91'); I(f's_add_u32 s100, s100, {LDS_Y+3*YW}')
                I('s_mul_i32 s101, s101, 3584')
                I(f's_lshl_b32 s91, s{S_G}, 6'); I('s_add_u32 s91, s91, 48'); I('s_mul_i32 s91, s91, 896'); I('s_add_u32 s101, s101, s91')
                I('s_mov_b32 exec_hi, 0x000fffff')
                for r in range(4):
                    I(f's_add_u32 m0, s100, {r*832}')
                    if r: I('s_add_u32 s101, s101, 896')
                    else: I('s_nop 0')
                    I(f'buffer_load_dwordx4 v238, {srd(SRD_OUT)}, s101 offen lds', tag='bdma')
                I('s_mov_b32 exec_hi, -1')
                self.label(L); self.merge(snap); self.vm['bdma']=0
            return f
        return [xpair(p) for p in range(3)], [bblock(p) for p in range(3)]
    def dma_setup(self):
        I=self.I
        for n,h in enumerate((0,3,2,1)): I(f'v_xor_b32 v{224+n}, {h<<4}, v{V_L16}')
        for g in range(8): I(f'v_xor_b32 v{228+g}, {g<<4}, v{V_L16}')
        I(f's_lshl_b32 s{S_T0}, s{S_G}, 6'); I(f's_lshl_b32 s{S_T1}, s{S_W}, 4'); I(f's_add_u32 s88, s{S_T0}, s{S_T1}')
        I('s_mul_i32 s89, s88, 896')
        I(f's_lshl_b32 s{S_T0}, s{S_C}, 6'); I(f's_lshl_b32 s{S_T1}, s{S_W}, 2'); I(f's_add_u32 s{S_T0}, s{S_T0}, s{S_T1}')
        I(f's_mul_i32 s92, s{S_T0}, 896')
        I(f's_mul_i32 s93, s{S_W}, 3584')
        I(f'v_and_b32 v7, 15, v{V_LANE}'); I('v_mul_u32_u24 v236, 896, v7'); I(f'v_lshrrev_b32 v9, 4, v{V_LANE}'); I('v_lshlrev_b32 v9, 4, v9')
        I('v_add_u32 v236, v236, v9')
        I('v_add_u32 v237, s88, v7'); I('v_lshlrev_b32 v237, 1, v237')
    def q_b(self):
        I=self.I
        def row(im,n):
            def f():
                I('s_mov_b32 exec_hi, 0x000fffff')
                I(f's_add_u32 m0, s{S_YB}, {im*13312+n*832}')
                I(f's_add_u32 s91, s89, {n*896}')
                I(f'buffer_load_dwordx4 v{224+(n>>2)}, {srd(SRD_1 if im==0 else SRD_2)}, s91 offen lds', tag='bdma'); self.nb+=1
                I('s_mov_b32 exec_hi, -1')
            return f
        for im in range(2):
            for n in range(16): self.q.append(row(im,n))
        def b13(srdn,dst):
            def f():
                I(f'buffer_load_dwordx4 {vr(dst,4)}, v236, {srd(srdn)}, s89 offen offset:832', tag='b13'); self.nb+=1
            return f
        if self.opt.w1touch=='W':
            self.b13_loads=lambda: (b13(SRD_1,V_BF+52)(), b13(SRD_2,V_BF+56+52)())
        else:
            self.q.append(b13(SRD_1,V_BF+52)); self.q.append(b13(SRD_2,V_BF+56+52))
        def lam():
            I(f'global_load_ushort v{V_IN}, v237, {sp(P_LRE)}', tag='lam')
            I(f'global_load_ushort v{V_IN+1}, v237, {sp(P_LIM)}', tag='lam')
            I(f'global_load_ushort v{V_IN+2}, v237, {sp(P_LDT)}', tag='lam')
        self.q.insert(0,lam)
    def q_x(self, alist):
        I=self.I
        def row(a,b):
            def f():
                g=2*a+(b>>1); d=(16*a+b)*896
                I('s_mov_b32 exec_hi, 0x00ffffff')
                I(f's_add_u32 m0, s93, {LDS_X+d}')
                I(f's_add_u32 s91, s92, {d}')
                I(f'buffer_load_dwordx4 v{228+g}, {srd(SRD_X)}, s91 offen lds', tag='x64'); self.nx+=1
                I('s_mov_b32 exec_hi, -1')
            return f
        for a in alist:
            for b in range(4): self.q.append(row(a,b))
    def b_read(self):
        I=self.I
        I(f'v_and_b32 v7, 15, v{V_LANE}'); I(f'v_lshrrev_b32 v8, 4, v{V_LANE}'); I('v_lshrrev_b32 v9, 2, v7')
        I('v_sub_u32 v9, 0, v9'); I('v_and_b32 v9, 3, v9'); I('v_xor_b32 v8, v8, v9')
        I('v_lshlrev_b32 v8, 4, v8'); I('v_mul_u32_u24 v7, 832, v7'); I('v_add_u32 v7, v7, v8'); I(f'v_add_u32 v7, s{S_YB}, v7')
        if self.opt.w1touch!='W': self.wait(vm=['bdma'])
        for im in range(2):
            for j in range(13):
                I(f'ds_read_b128 {vr(V_BF+56*im+4*j,4)}, v7 offset:{im*13312+j*64}', tag='brd')
    def touch_pf(self, which):
        I=self.I
        if which==1: pitch,nrow,nt,srdn=3584,512,8,SRD_W
        else:
            pitch,nrow,nt,srdn=4096,448,7,SRD_OUT
            self.make_srd(SRD_OUT, P_W2, 1792*4096)
        I(f'v_lshrrev_b32 v7, 2, v{V_LANE}'); I(f'v_and_b32 v8, 3, v{V_LANE}')
        if which==1:
            I(f's_and_b32 s{S_T1}, s95, 1'); I(f's_sub_u32 s{S_T1}, 3, s{S_T1}'); I(f'v_min_u32 v8, s{S_T1}, v8')
        I(f'v_mul_u32_u24 v7, {pitch}, v7'); I('v_lshlrev_b32 v8, 7, v8'); I('v_add_u32 v7, v7, v8')
        I(f's_mul_i32 s{S_T0}, s{S_W}, {nrow}'); I(f's_sub_u32 s{S_T1}, s86, 28'); I(f's_lshl_b32 s{S_T1}, s{S_T1}, 4'); I(f's_add_u32 s{S_T0}, s{S_T0}, s{S_T1}')
        I(f's_mul_i32 s{S_T0}, s{S_T0}, {pitch}')
        if which==1: I(f's_lshl_b32 s{S_T1}, s87, 7')
        else: I(f's_lshl_b32 s{S_T1}, s95, 9')
        I(f's_add_u32 s{S_T0}, s{S_T0}, s{S_T1}')
        for t in range(nt):
            I(f'buffer_load_dword v12, v7, {srd(srdn)}, s{S_T0} offen', tag='touch2')
            if t<nt-1: I(f's_add_u32 s{S_T0}, s{S_T0}, {64*pitch}')
    def ln8(self, oct=2, clears=True, part=0):
        I=self.I
        if part==2: return self.ln8_b(oct,clears)
        D=list(range(V_T,V_T+8)); SUM,SSQ,S2,Q2=24,25,26,27; R,C=28,30; TM=[32,34,36,38]
        self.wait(vm=['x8'])
        def reduce32():
            for rot in (8,4,2,1):
                I(f'v_add_f32_dpp v{SUM}, v{SUM}, v{SUM} row_ror:{rot} row_mask:0xf bank_mask:0xf')
                I(f'v_add_f32_dpp v{SSQ}, v{SSQ}, v{SSQ} row_ror:{rot} row_mask:0xf bank_mask:0xf')
            I(f'v_mov_b32 v{S2}, v{SUM}'); I(f'v_mov_b32 v{Q2}, v{SSQ}')
            I(f'v_permlane16_swap_b32 v{SUM}, v{S2}'); I(f'v_permlane16_swap_b32 v{SSQ}, v{Q2}')
            I(f'v_add_f32 v{SUM}, v{SUM}, v{S2}'); I(f'v_add_f32 v{SSQ}, v{SSQ}, v{Q2}')
        self.dot_sums(D,[SUM,SSQ,S2,Q2]); reduce32()
        self.ln_stats(SUM,SSQ,R,C,None)
        I(f'v_mov_b32 v10, v{SUM}'); I(f'v_mov_b32 v11, v{R}')
        I(f'v_lshrrev_b32 v8, 5, v{V_LANE}'); I('v_lshlrev_b32 v8, 2, v8')
        I(f's_lshl_b32 s{S_T0}, s75, 2'); I(f's_add_u32 s{S_T0}, s{S_T0}, {WS_STAT}'); I(f's_add_u32 s{S_T1}, s{S_T0}, 8192')
        self.exec_set(1,1)
        I(f'buffer_store_dword v10, v8, {srd(SRD_WS)}, s{S_T0} offen sc1', tag='st0')
        I(f'buffer_store_dword v11, v8, {srd(SRD_WS)}, s{S_T1} offen sc1', tag='st0')
        self.exec_full()
        if clears and self.opt.w1touch=='W' and not self.opt.notouch3:
            Lt=self.newlabel('notouch')
            I(f's_cmp_lg_u32 s{S_W}, 3'); I(f's_cbranch_scc1 {Lt}')
            snap=self.snapshot()
            self.touch_w1_wg()
            self.label(Lt); self.merge(snap)
        I(f'v_and_b32 v7, 31, v{V_LANE}'); I('v_cmp_gt_u32 vcc, 28, v7')
        I(f'v_cndmask_b32 v{R}, 0, v{R}, vcc'); I(f'v_cndmask_b32 v{C}, 0, v{C}, vcc')
        self.normalize(D,R,C,TM)
        self.dot_sums(D,[SUM,SSQ,S2,Q2]); reduce32()
        self.ln_stats(SUM,SSQ,R,C,None)
        self.normalize(D,R,C,TM)
        self.auto=0
        I(f'v_lshrrev_b32 v8, 5, v{V_LANE}'); I(f's_lshl_b32 s{S_T0}, s{S_W}, 1'); I(f'v_add_u32 v8, s{S_T0}, v8')
        I('v_mul_u32_u24 v8, 960, v8'); I('v_lshlrev_b32 v9, 5, v7'); I('v_add_u32 v8, v8, v9'); I(f'v_add_u32 v8, {LDS_LN8}, v8')
        self.exec_set('0x0fffffff','0x0fffffff')
        I(f'ds_write_b128 v8, {vr(V_T,4)} offset:0'); I(f'ds_write_b128 v8, {vr(V_T+4,4)} offset:16')
        self.exec_full()
        self.ticket_finish()
        self.wait(lg='all'); I('s_barrier')
        self.roles()
    def ln8_b(self, oct, clears):
        I=self.I
        I(f'v_and_b32 v7, 15, v{V_LANE}'); I('v_lshrrev_b32 v8, 2, v7'); I('v_mul_u32_u24 v8, 960, v8')
        I(f'v_lshrrev_b32 v9, 4, v{V_LANE}'); I('v_lshlrev_b32 v10, 5, v9'); I('v_add_u32 v8, v8, v10')
        I(f'v_and_b32 v10, 3, v{V_LANE}'); I('v_lshlrev_b32 v10, 3, v10'); I('v_add_u32 v8, v8, v10')
        I(f's_lshl_b32 s{S_T0}, s{S_W}, 7'); I(f's_add_u32 s{S_T0}, s{S_T0}, {LDS_LN8}'); I(f'v_add_u32 v8, s{S_T0}, v8')
        I('v_lshlrev_b32 v9, 10, v9'); I('v_lshlrev_b32 v7, 4, v7'); I('v_add_u32 v9, v9, v7')
        I(f's_lshr_b32 s{S_T0}, s{oct}, 2'); I(f's_lshl_b32 s{S_T0}, s{S_T0}, 12')
        I(f's_and_b32 s{S_T1}, s{oct}, 3'); I(f's_lshl_b32 s{S_T1}, s{S_T1}, 8'); I(f's_add_u32 s{S_T0}, s{S_T0}, s{S_T1}')
        I(f's_lshl_b32 s{S_T1}, s{S_W}, 18'); I(f's_add_u32 s{S_T0}, s{S_T0}, s{S_T1}')
        if self.opt.w1touch=='W':
            Lno=self.newlabel('ln8none'); L6=self.newlabel('ln8no6')
            I(f's_cmp_eq_u32 s{S_W}, 3'); I(f's_cbranch_scc1 {Lno}')
            snap=self.snapshot()
            for i in range(2):
                I(f'ds_read_b64_tr_b16 v[{16+4*i}:{17+4*i}], v8 offset:{384*i}', tag='t0')
                I(f'ds_read_b64_tr_b16 v[{18+4*i}:{19+4*i}], v8 offset:{384*i+3840}', tag='t0')
            I(f's_add_u32 s{S_T1}, s{S_T0}, {3*262144}')
            self.wait(lg='all')
            I(f'buffer_store_dwordx4 v[16:19], v9, {srd(SRD_WS)}, s{S_T0} offen sc1', tag='st0')
            I(f'buffer_store_dwordx4 v[20:23], v9, {srd(SRD_WS)}, s{S_T1} offen sc1', tag='st0')
            I(f's_cmp_lg_u32 s{S_W}, 0'); I(f's_cbranch_scc1 {L6}')
            I(f'ds_read_b64_tr_b16 v[24:25], v8 offset:768', tag='t0')
            I(f'ds_read_b64_tr_b16 v[26:27], v8 offset:{768+3840}', tag='t0')
            I(f's_add_u32 s{S_T1}, s{S_T0}, {6*262144}')
            self.wait(lg='all')
            I(f'buffer_store_dwordx4 v[24:27], v9, {srd(SRD_WS)}, s{S_T1} offen sc1', tag='st0')
            self.label(L6)
            self.label(Lno); self.merge(snap); self.vm['st0']=0
        else:
            I(f'ds_read_b64_tr_b16 v[16:17], v8 offset:0', tag='t0')
            I(f'ds_read_b64_tr_b16 v[18:19], v8 offset:3840', tag='t0')
            Lskip=self.newlabel('ln8skip')
            I(f's_cmp_eq_u32 s{S_W}, 3'); I(f's_cbranch_scc1 {Lskip}')
            snap=self.snapshot()
            I(f'ds_read_b64_tr_b16 v[20:21], v8 offset:512', tag='t1')
            I(f'ds_read_b64_tr_b16 v[22:23], v8 offset:{512+3840}', tag='t1')
            I(f's_add_u32 s{S_T1}, s{S_T0}, {4*262144}')
            self.wait(lg='all')
            I(f'buffer_store_dwordx4 v[20:23], v9, {srd(SRD_WS)}, s{S_T1} offen sc1', tag='st0')
            self.label(Lskip); self.merge(snap)
            self.wait(lg='all')
            I(f'buffer_store_dwordx4 v[16:19], v9, {srd(SRD_WS)}, s{S_T0} offen sc1', tag='st0')
        if not clears:
            I('s_barrier'); return
        Ln=self.newlabel('noclr')
        I(f's_cmp_lg_u32 s{S_W}, {1 if self.opt.w1touch=="W" else 3}'); I(f's_cbranch_scc1 {Ln}')
        snap=self.snapshot()
        I('v_mov_b32 v8, 0')
        I('v_mov_b32 v10, -1'); I('v_mov_b32 v11, -1'); I(f'v_lshlrev_b32 v9, 3, v{V_LANE}')
        I(f's_lshl_b32 s{S_T0}, s{S_G}, 5'); I(f's_add_u32 s{S_T0}, s{S_T0}, s{S_C}'); I(f's_lshl_b32 s{S_T0}, s{S_T0}, 9')
        I(f's_add_u32 s{S_T0}, s{S_T0}, {WS_E}')
        I(f'buffer_store_dwordx2 v[10:11], v9, {srd(SRD_WS)}, s{S_T0} offen sc1', tag='st0')
        I(f's_mul_i32 s{S_T0}, s{S_C}, 7'); I(f's_add_u32 s{S_T0}, s{S_T0}, s{S_G}'); I(f's_lshl_b32 s{S_T0}, s{S_T0}, 6')
        I(f's_add_u32 s{S_T0}, s{S_T0}, {WS_FH}')
        I('v_mov_b32 v10, 0')
        self.exec_set(1,0)
        I(f'buffer_store_dword v10, v8, {srd(SRD_WS)}, s{S_T0} offen sc1', tag='st0')
        Lg=self.newlabel('nog1clr'); Lc=self.newlabel('nocclr')
        I(f's_cmp_eq_u32 s{S_HASG1}, 0'); I(f's_cbranch_scc1 {Lg}')
        I(f's_mul_i32 s{S_T0}, s{S_DT1}, 28'); I(f's_add_u32 s{S_T0}, s{S_T0}, s{S_FT}'); I(f's_lshl_b32 s{S_T0}, s{S_T0}, 6')
        I(f's_add_u32 s{S_T0}, s{S_T0}, {WS_FG}')
        I(f'buffer_store_dword v10, v8, {srd(SRD_WS)}, s{S_T0} offen sc1', tag='st0')
        self.label(Lg)
        I('s_cmp_lg_u32 s95, 0'); I(f's_cbranch_scc1 {Lc}')
        I(f's_lshl_b32 s{S_T0}, s86, 6'); I(f's_add_u32 s{S_T0}, s{S_T0}, {WS_FC}')
        I(f'buffer_store_dword v10, v8, {srd(SRD_WS)}, s{S_T0} offen sc1', tag='st0')
        self.label(Lc)
        self.exec_full()
        self.label(Ln); self.merge(snap); self.vm['st0']=0
        I('s_barrier')

    def ln8_extra(self):
        I=self.I
        L=self.newlabel('noextra'); Lp=self.newlabel('extra')
        I(f's_cmp_lg_u32 s{S_HASG1}, 0'); I(f's_cbranch_scc1 {L}')
        snap=self.snapshot()
        I('s_lshr_b32 s3, s95, 1'); I('s_mul_i32 s3, s3, 7'); I('s_add_u32 s3, s3, s86'); I('s_add_u32 s3, s3, 203')
        self.label(Lp)
        self.x8_issue(3)
        I('s_waitcnt vmcnt(0)'); self.vm={}; self.vm['x8']=0
        self.ln8(oct=3, clears=False)
        I('s_add_u32 s3, s3, 28'); I('s_cmp_lt_u32 s3, 256'); I(f's_cbranch_scc1 {Lp}')
        I('s_waitcnt vmcnt(0)')
        self.label(L); self.restore(snap); self.vm['st0']=min(self.vm.get('st0',0),0)

    def arrive0(self):
        I=self.I
        self.wait(vm=['st0']); I('s_barrier')
        L=self.newlabel('arr')
        I(f's_cmp_lg_u32 s{S_W}, 0'); I(f's_cbranch_scc1 {L}')
        snap=self.snapshot()
        I('s_and_b32 s3, s2, 3'); I('s_lshl_b32 s3, s3, 6'); I('v_mov_b32 v8, s3'); I('v_mov_b32 v9, 1')
        self.exec_set(1,0)
        I(f'global_atomic_add v8, v9, {sp(P_DBG)} sc1')
        self.exec_full()
        self.label(L); self.merge(snap)

    def w1_setup(self):
        I=self.I
        self.ring_setup(3584, S_WH)
        I(f's_mul_i32 s{S_WBEG}, s{S_W}, {512*3584}'); I(f's_lshl_b32 s{S_T0}, s{S_FT}, 7'); I(f's_add_u32 s{S_WBEG}, s{S_WBEG}, s{S_T0}')
        I(f's_mov_b32 s{S_WO}, s{S_WBEG}')

    def lam_consts(self):
        I=self.I
        LRE,LIM,LDT=V_IN,V_IN+1,V_IN+2
        t=list(range(16,40))
        self.wait(vm=['lam'])
        for r in (LRE,LIM,LDT): I(f'v_lshlrev_b32 v{r}, 16, v{r}')
        I(f'v_mul_f32 v{LDT}, 0x3fb8aa3b, v{LDT}'); I(f'v_exp_f32 v{LDT}, v{LDT}')
        self.rnd_bf16(LDT)
        I(f'v_mul_f32 v16, v{LDT}, v{LRE}'); I(f'v_mul_f32 v17, v{LDT}, v{LIM}')
        I('v_mul_f32 v16, 0x3fb8aa3b, v16'); I('v_mul_f32 v17, 0.15915494, v17')
        I('v_exp_f32 v16, v16'); I('v_fract_f32 v17, v17')
        I('v_cos_f32 v18, v17'); I('v_sin_f32 v19, v17')
        I(f'v_mul_f32 v{V_LR}, v16, v18'); I(f'v_mul_f32 v{V_LI}, v16, v19')
        I(f'v_add_f32 v16, -1.0, v{V_LR}')
        I(f'v_mul_f32 v17, v{LRE}, v{LRE}'); I(f'v_fma_f32 v17, v{LIM}, v{LIM}, v17'); I('v_rcp_f32 v17, v17')
        I(f'v_mul_f32 v18, v16, v{LRE}'); I(f'v_fma_f32 v18, v{V_LI}, v{LIM}, v18')
        I(f'v_mul_f32 v19, v16, v{LIM}'); I(f'v_fma_f32 v19, v{V_LI}, v{LRE}, -v19')
        I('v_add_f32 v17, v17, v17')
        I(f'v_mul_f32 v{V_K1}, v18, v17'); I(f'v_mul_f32 v{V_K2}, v19, v17'); I(f'v_sub_f32 v{V_K2}, 0, v{V_K2}')
        self.csq(16,17,V_LR,V_LI,30); self.csq(18,19,16,17,30); self.csq(16,17,18,19,30); self.csq(20,21,16,17,30)
        self.csq(22,23,20,21,30)
        self.cmul(24,25,22,23,20,21,30,31)
        self.csq(V_L64R,V_L64I,22,23,30)
        self.csq(16,17,V_L64R,V_L64I,30); self.csq(18,19,16,17,30); self.csq(V_L512R,V_L512I,18,19,30)
        I(f'v_mov_b32 v{V_PR}, 1.0'); I(f'v_mov_b32 v{V_PI}, 0')
        for (lo,hi,r) in (('0xffff0000','-1',20),('0','-1',22),('0','0xffff0000',24)):
            self.exec_set(lo,hi); I(f'v_mov_b32 v{V_PR}, v{r}'); I(f'v_mov_b32 v{V_PI}, v{r+1}')
        self.exec_full()
        I(f'v_mov_b32 v{V_IN}, v20'); I(f'v_mov_b32 v{V_IN+1}, v21')

    def x_addr(self):
        I=self.I
        I(f'v_and_b32 v7, 15, v{V_LANE}'); I('v_lshrrev_b32 v8, 2, v7'); I('v_lshlrev_b32 v8, 4, v8')
        I('v_and_b32 v9, 3, v7'); I('v_add_u32 v8, v8, v9'); I('v_mul_u32_u24 v8, 896, v8')
        I(f'v_lshrrev_b32 v9, 4, v{V_LANE}'); I('v_lshrrev_b32 v7, 1, v7'); I('v_xor_b32 v9, v9, v7'); I('v_lshlrev_b32 v9, 4, v9')
        I('v_add_u32 v14, v8, v9'); I('v_xor_b32 v15, 64, v14')
    def ln64(self):
        I=self.I
        D=list(range(V_X64,V_X64+56)); SUM,SSQ,S2,Q2=24,25,26,27; R,C=28,30; TM=[32,34,36,38]
        I(f's_mul_i32 s{S_T0}, s{S_W}, 3584'); I(f'v_add_u32 v22, s{S_T0}, v14'); I(f'v_add_u32 v23, s{S_T0}, v15')
        self.allow_bread=True
        while self.nx<16: self.tick()
        if self.opt.w1touch!='W': self.wait(vm=['x64'])
        for j in range(14):
            I(f'ds_read_b128 {vr(V_X64+4*j,4)}, v{22+(j&1)} offset:{LDS_X+(j>>1)*128}', tag=('xr',j))
        accs=[SUM,SSQ,S2,Q2]
        for n,d in enumerate(D):
            if n%4==0: self.wait(lg=[('xr',n//4)])
            sa,qa = accs[2*(n&1)], accs[2*(n&1)+1]
            if n<2:
                I(f'v_dot2_f32_bf16 v{sa}, v{d}, s{S_ONES}, 0'); I(f'v_dot2_f32_bf16 v{qa}, v{d}, v{d}, 0')
            else:
                I(f'v_dot2_f32_bf16 v{sa}, v{d}, s{S_ONES}, v{sa}'); I(f'v_dot2_f32_bf16 v{qa}, v{d}, v{d}, v{qa}')
        I(f'v_add_f32 v{SUM}, v{SUM}, v{S2}'); I(f'v_add_f32 v{SSQ}, v{SSQ}, v{Q2}')
        for sw in ('16','32'):
            I(f'v_mov_b32 v{S2}, v{SUM}'); I(f'v_mov_b32 v{Q2}, v{SSQ}')
            I(f'v_permlane{sw}_swap_b32 v{SUM}, v{S2}'); I(f'v_permlane{sw}_swap_b32 v{SSQ}, v{Q2}')
            I(f'v_add_f32 v{SUM}, v{SUM}, v{S2}'); I(f'v_add_f32 v{SSQ}, v{SSQ}, v{Q2}')
        self.stamp('dots',fine=True)
        self.ln_stats(SUM,SSQ,R,C,None)
        self.allow_bread=True
        def h(n):
            I(f'ds_write_b128 v{22+(n&1)}, {vr(V_X64+4*n,4)} offset:{LDS_X+(n>>1)*128}', tag='xw')
        self.normalize(D,R,C,TM,hook=h)

    def row_stats(self):
        I=self.I
        D=list(range(V_X64,V_X64+56)); SUM,SSQ,S2,Q2=24,25,26,27; R,C=28,30
        I(f's_mul_i32 s{S_T0}, s{S_W}, 3584'); I(f'v_add_u32 v22, s{S_T0}, v14'); I(f'v_add_u32 v23, s{S_T0}, v15')
        for j in range(14):
            I(f'ds_read_b128 {vr(V_X64+4*j,4)}, v{22+(j&1)} offset:{LDS_X+(j>>1)*128}', tag=('xr',j))
        accs=[SUM,SSQ,S2,Q2]
        for n,d in enumerate(D):
            if n%4==0: self.wait(lg=[('xr',n//4)])
            sa,qa = accs[2*(n&1)], accs[2*(n&1)+1]
            if n<2:
                I(f'v_dot2_f32_bf16 v{sa}, v{d}, s{S_ONES}, 0'); I(f'v_dot2_f32_bf16 v{qa}, v{d}, v{d}, 0')
            else:
                I(f'v_dot2_f32_bf16 v{sa}, v{d}, s{S_ONES}, v{sa}'); I(f'v_dot2_f32_bf16 v{qa}, v{d}, v{d}, v{qa}')
        I(f'v_add_f32 v{SUM}, v{SUM}, v{S2}'); I(f'v_add_f32 v{SSQ}, v{SSQ}, v{Q2}')
        for sw in ('16','32'):
            I(f'v_mov_b32 v{S2}, v{SUM}'); I(f'v_mov_b32 v{Q2}, v{SSQ}')
            I(f'v_permlane{sw}_swap_b32 v{SUM}, v{S2}'); I(f'v_permlane{sw}_swap_b32 v{SSQ}, v{Q2}')
            I(f'v_add_f32 v{SUM}, v{SUM}, v{S2}'); I(f'v_add_f32 v{SSQ}, v{SSQ}, v{Q2}')
        self.ln_stats(SUM,SSQ,R,C,None)
        I(f'v_and_b32 v8, 15, v{V_LANE}'); I('v_lshlrev_b32 v8, 2, v8'); I(f's_add_u32 s{S_T0}, s{S_YB}, 24576'); I(f'v_add_u32 v8, s{S_T0}, v8')
        self.exec_set('0xffff','0')
        I(f'ds_write_b32 v8, v{SUM}', tag='stw'); I(f'ds_write_b32 v8, v{R} offset:64', tag='stw')
        self.exec_full()
    def stat_reads(self):
        I=self.I
        self.wait(lg=['stw']); I('s_barrier')
        I(f'v_lshrrev_b32 v8, 4, v{V_LANE}'); I('v_lshlrev_b32 v8, 4, v8'); I(f'v_add_u32 v8, {LDS_Y+24576}, v8'); I(f'v_add_u32 v9, {2*YW}, v8')
        for i in range(4):
            I(f'ds_read_b128 {vr(16+4*i,4)}, v{8+(i>>1)} offset:{(i&1)*YW}', tag='stat')
            I(f'ds_read_b128 {vr(88+4*i,4)}, v{8+(i>>1)} offset:{(i&1)*YW+64}', tag='stat')
    def bu_gemm(self):
        I=self.I
        BUF=[V_X64, V_X64+16]
        for r in range(4): I(f'v_mov_b32 v{36+r}, s{S_ONES}')
        def rd(j):
            for i in range(4):
                I(f'ds_read_b128 {vr(BUF[j%2]+4*i,4)}, v{14+(j&1)} offset:{LDS_X+i*3584+(j>>1)*128}', tag=('xa',j))
        rd(0); rd(1)
        for j in range(14):
            self.wait(lg=[('xa',j)])
            for im in range(2):
                d=104+4*im
                I(f'v_mfma_f32_16x16x32_bf16 {vr(d,4)}, v[36:39], {vr(V_BF+56*im+4*j,4)}, {vr(d,4) if j else 0}')
            for i in range(4):
                for im in range(2):
                    d=V_RAW+16*im+4*i
                    cin = vr(d,4) if j else '0'
                    I(f'v_mfma_f32_16x16x32_bf16 {vr(d,4)}, {vr(BUF[j%2]+4*i,4)}, {vr(V_BF+56*im+4*j,4)}, {cin}')
            if j+2<14: rd(j+2)
            if j==12:
                sv=self.auto; self.auto=0
                self.stat_reads(); self.auto=sv
    def stat_loads(self):
        I=self.I
        I(f'v_lshrrev_b32 v8, 4, v{V_LANE}'); I('v_lshlrev_b32 v8, 6, v8')
        I(f's_lshl_b32 s{S_T0}, s{S_C}, 8'); I(f's_add_u32 s{S_T0}, s{S_T0}, {WS_STAT}'); I(f's_add_u32 s{S_T1}, s{S_T0}, 8192')
        for n in range(4):
            I(f'buffer_load_dwordx4 {vr(16+4*n,4)}, v8, {srd(SRD_WS)}, s{S_T0} offen offset:{16*n} sc1', tag='stat')
            I(f'buffer_load_dwordx4 {vr(88+4*n,4)}, v8, {srd(SRD_WS)}, s{S_T1} offen offset:{16*n} sc1', tag='stat')
    def ln_fix(self):
        I=self.I
        self.wait(lg=['stat'])
        for im in range(2):
            sb=104+4*im
            for t in range(0,16,2):
                r=V_RAW+16*im+t
                I(f'v_pk_fma_f32 v[{r}:{r+1}], v[{16+t}:{17+t}], v[{sb}:{sb+1}], v[{r}:{r+1}] neg_lo:[1,0,0] neg_hi:[1,0,0]')
            for t in range(0,16,2):
                r=V_RAW+16*im+t
                I(f'v_pk_mul_f32 v[{r}:{r+1}], v[{r}:{r+1}], v[{88+t}:{89+t}]')

    def scan1(self):
        I=self.I
        ER,EI,T0,T1=16,17,18,19
        L16R,L16I=V_IN,V_IN+1
        I(f'v_mov_b32 v{ER}, v{V_RAW}'); I(f'v_mov_b32 v{EI}, v{V_RAW+16}')
        for t in range(1,16):
            I(f'v_fma_f32 v{T0}, v{V_LR}, v{ER}, v{V_RAW+t}')
            I(f'v_fma_f32 v{T1}, v{V_LR}, v{EI}, v{V_RAW+16+t}')
            I(f'v_fma_f32 v{T0}, -v{V_LI}, v{EI}, v{T0}')
            I(f'v_fma_f32 v{EI}, v{V_LI}, v{ER}, v{T1}')
            ER,T0=T0,ER
        GR=[20,21,22,23]; GI=[24,25,26,27]
        self.allgather_q(ER,*GR); self.allgather_q(EI,*GI)
        for q in range(1,4):
            self.cfma(GR[q],GI[q],L16R,L16I,GR[q-1],GI[q-1],GR[q],GI[q],28,29)
        I(f'v_mov_b32 v{V_SR}, 0'); I(f'v_mov_b32 v{V_SI}, 0')
        for n,(lo,hi) in enumerate((('0xffff0000','-1'),('0','-1'),('0','0xffff0000'))):
            self.exec_set(lo,hi); I(f'v_mov_b32 v{V_SR}, v{GR[n]}'); I(f'v_mov_b32 v{V_SI}, v{GI[n]}')
        self.exec_full()
        I(f'v_mov_b32 v10, v{GR[3]}'); I(f'v_mov_b32 v11, v{GI[3]}')
        I(f'v_lshlrev_b32 v8, 3, v{V_LANE}')
        I(f's_lshl_b32 s{S_T0}, s{S_G}, 5'); I(f's_add_u32 s{S_T0}, s{S_T0}, s{S_C}'); I(f's_lshl_b32 s{S_T0}, s{S_T0}, 9')
        I(f's_lshl_b32 s{S_T1}, s{S_W}, 7'); I(f's_add_u32 s{S_T0}, s{S_T0}, s{S_T1}'); I(f's_add_u32 s{S_T0}, s{S_T0}, {WS_E}')
        self.exec_set('0xffff',0)
        I(f'buffer_store_dwordx2 v[10:11], v8, {srd(SRD_WS)}, s{S_T0} offen sc1', tag='stE')
        self.exec_full()

    def wait_e0(self):
        I=self.I
        L=self.newlabel('e0'); D=self.newlabel('e0d')
        self.wait(vm=['e0c'])
        I('v_cmp_gt_u32 vcc, 64, v34'); I(f's_cbranch_vccz {D}')
        snap=self.snapshot()
        I(f's_mov_b32 s{S_BOUND}, 0x200000')
        self.label(L)
        I(f'global_load_dword v34, v35, {sp(P_DBG)} sc1'); I('s_waitcnt vmcnt(0)')
        I('v_cmp_gt_u32 vcc, 64, v34'); I(f's_cbranch_vccz {D}')
        I('s_sleep 4'); I(f's_sub_u32 s{S_BOUND}, s{S_BOUND}, 1'); I(f's_cbranch_scc0 {L}')
        self.label(D); self.restore(snap)

    def gemm1(self):
        I=self.I
        SL=[V_RING+16*i for i in range(6)]
        DEP=len(SL)
        I(f's_mul_i32 s22, s{S_DT1}, 262144'); I(f's_lshl_b32 s{S_T0}, s{S_W}, 16'); I(f's_add_u32 s22, s22, s{S_T0}')
        I(f's_lshl_b32 s{S_T0}, s{S_WL}, 11'); I(f's_xor_b32 s{S_T1}, s{S_T0}, 2048')
        I(f's_add_u32 s23, s22, s{S_T1}'); I(f's_add_u32 s22, s22, s{S_T0}')
        I(f's_mov_b32 s{S_A}, s22'); I(f's_mov_b32 s{S_B}, s23')
        def ld(k,y):
            r=SL[k%DEP]
            sx=S_A if y<2 else S_B
            I(f'buffer_load_dwordx4 {vr(r+4*y,4)}, v{V_L16}, {srd(SRD_WS)}, s{sx} offen offset:{(y&1)*1024} sc1', tag=('ht',k,y))
            if (y&1) and k<15: I(f's_add_u32 s{sx}, s{sx}, 4096')
        pro=[(k,y) for k in range(DEP) for y in range(4)]
        while pro:
            ld(*pro.pop(0))
            if self.R['iss']<self.R['n']: self.ring_tick()
        self.ring_finish(); self.wait(lg='all')
        self.stamp('w1 in regs')
        self.w2_setup(); self.R['maxrd']=0
        for k in range(16):
            r=SL[k%DEP]
            for y in range(4):
                self.wait(vm=[('ht',k,y)])
                if y==0: self.stamp(f'g1.{k}',fine=3)
                for x in range(4):
                    d=V_ACC+16*x+4*y
                    cin=vr(d,4) if k else '0'
                    I(f'v_mfma_f32_16x16x32_bf16 {vr(d,4)}, {ar(16*k+4*x,4)}, {vr(r+4*y,4)}, {cin}')
                if k+DEP<16: ld(k+DEP,y)
                else:
                    self.R['maxrd']=k
                    self.tick()
        self.R['maxrd']=99
        self.stamp('g1loop')

    def p2_flag_addr(self):
        I=self.I
        I(f's_mul_i32 s{S_T0}, s{S_W}, 7'); I(f's_lshr_b32 s{S_T1}, s{S_T0}, 2')
        I(f's_mul_i32 s{S_T2}, s{S_C}, 7'); I(f's_add_u32 s{S_T2}, s{S_T2}, s{S_T1}')
        I(f's_add_u32 s{S_T3}, s{S_T0}, 6'); I(f's_lshr_b32 s{S_T3}, s{S_T3}, 2'); I(f's_sub_u32 s{S_T3}, s{S_T3}, s{S_T1}')
        I(f'v_min_u32 v14, s{S_T3}, v{V_LANE}'); I(f'v_add_u32 v14, s{S_T2}, v14'); I('v_lshlrev_b32 v14, 6, v14')
        I(f'v_add_u32 v14, {WS_FH}, v14')
        I(f'v_min_u32 v8, 13, v{V_LANE}'); I('v_lshlrev_b32 v9, 6, v8')
        I(f's_mul_i32 s{S_T1}, s{S_G}, 28'); I(f's_add_u32 s{S_T1}, s{S_T1}, s{S_T0}'); I(f's_lshl_b32 s{S_T1}, s{S_T1}, 6'); I(f's_add_u32 s{S_T1}, s{S_T1}, {WS_FG}')
        I(f's_lshl_b32 s{S_T0}, s{S_T0}, 6'); I(f's_add_u32 s{S_T0}, s{S_T0}, {WS_FC-7*64}')
        I(f'v_mov_b32 v10, s{S_T1}'); I(f'v_mov_b32 v11, s{S_T0}'); I('v_cmp_gt_u32 vcc, 7, v8'); I('v_cndmask_b32 v10, v11, v10, vcc')
        I('v_add_u32 v12, v9, v10')

    def e_addr(self):
        I=self.I
        OF=V_EOF
        I(f's_lshl_b32 s{S_T0}, s{S_G}, 14'); I(f's_add_u32 s{S_T0}, s{S_T0}, {WS_E}')
        I(f's_add_u32 s{SRD_1}, s{P_WS}, s{S_T0}'); I(f's_addc_u32 s{SRD_1+1}, s{P_WS+1}, 0')
        I(f's_and_b32 s{SRD_1+1}, s{SRD_1+1}, 0xffff'); I(f's_mov_b32 s{SRD_1+2}, 16384'); I(f's_mov_b32 s{SRD_1+3}, 0x20000')
        I(f'v_lshrrev_b32 v8, 4, v{V_LANE}'); I('v_lshlrev_b32 v8, 12, v8')
        I(f'v_and_b32 v9, 15, v{V_LANE}'); I('v_lshlrev_b32 v9, 3, v9'); I('v_add_u32 v8, v8, v9')
        I(f's_sub_u32 s{S_T0}, s{S_C}, 32'); I(f's_lshl_b32 s{S_T0}, s{S_T0}, 9'); I(f's_lshl_b32 s{S_T1}, s{S_W}, 7')
        I(f's_add_u32 s{S_T0}, s{S_T0}, s{S_T1}'); I(f'v_add_u32 v8, s{S_T0}, v8')
        for i in range(8): I(f'v_add_u32 v{OF+i}, {512*i}, v8')
    def e_loads(self):
        for i in range(8):
            self.I(f'buffer_load_dwordx2 {vr(V_EL+2*i,2)}, v{V_EOF+i}, {srd(SRD_1)}, 0 offen sc1', tag='E')

    def finalize(self):
        I=self.I
        EL=V_EL
        L=self.newlabel('pollE'); Dn=self.newlabel('pollEd')
        sv=self.auto; self.auto=0
        self.wait(vm=['E'])
        I(f's_mov_b32 s{S_BOUND}, 0x200000')
        self.label(L)
        I(f'v_max3_u32 v8, v{EL}, v{EL+1}, v{EL+2}')
        for i in range(3,15,2): I(f'v_max3_u32 v8, v8, v{EL+i}, v{EL+i+1}')
        I(f'v_max_u32 v8, v8, v{EL+15}')
        I('v_cmp_eq_u32 vcc, -1, v8')
        I(f's_cbranch_vccz {Dn}')
        snap=self.snapshot()
        self.e_loads()
        I('s_waitcnt vmcnt(0)')
        I('s_sleep 4'); I(f's_sub_u32 s{S_BOUND}, s{S_BOUND}, 1'); I(f's_cbranch_scc0 {L}')
        self.label(Dn); self.restore(snap)
        self.auto=sv
        yield
        QR,QI=EL,EL+1
        for i in range(1,8):
            self.cfma(QR,QI,V_L64R,V_L64I,QR,QI,EL+2*i,EL+2*i+1,36,37)
            yield
        GR=[20,21,22,23]; GI=[24,25,26,27]
        self.allgather_q(QR,*GR); yield
        self.allgather_q(QI,*GI); yield
        for q in range(1,4):
            self.cfma(GR[q],GI[q],V_L512R,V_L512I,GR[q-1],GI[q-1],GR[q],GI[q],28,29)
            yield
        self.cfma(V_SR,V_SI,V_PR,V_PI,GR[3],GI[3],V_SR,V_SI,28,29)
        yield
        HR,HI,T0,T1=V_SR,V_SI,36,37
        OR,OI=V_RAW,V_RAW+16
        for t in range(16):
            I(f'v_fma_f32 v{T0}, v{V_LR}, v{HR}, v{OR+t}')
            I(f'v_fma_f32 v{T1}, v{V_LR}, v{HI}, v{OI+t}')
            I(f'v_fma_f32 v{T0}, -v{V_LI}, v{HI}, v{T0}')
            I(f'v_fma_f32 v{HI}, v{V_LI}, v{HR}, v{T1}')
            HR,T0=T0,HR
            yield
            I(f'v_mul_f32 v{OR+t}, v{V_K1}, v{HR}'); I(f'v_mul_f32 v{OI+t}, v{V_K2}, v{HR}')
            I(f'v_fma_f32 v{OR+t}, v{V_K2}, v{HI}, v{OR+t}'); I(f'v_fma_f32 v{OI+t}, -v{V_K1}, v{HI}, v{OI+t}')
            yield
        for t in range(8):
            I(f'v_cvt_pk_bf16_f32 v{OR+t}, v{OR+2*t}, v{OR+2*t+1}'); I(f'v_cvt_pk_bf16_f32 v{OI+t}, v{OI+2*t}, v{OI+2*t+1}')
            if t%2: yield
        I(f'v_and_b32 v8, 15, v{V_LANE}'); I(f's_lshl_b32 s{S_T0}, s{S_WL}, 4'); I(f'v_add_u32 v8, s{S_T0}, v8')
        I('v_lshrrev_b32 v9, 3, v8'); I('v_lshlrev_b32 v9, 2, v9')
        yield
        I('v_and_b32 v10, 3, v8'); I('v_add_u32 v9, v9, v10')
        I('v_bfe_u32 v10, v8, 2, 1'); I('v_lshlrev_b32 v11, 4, v10'); I('v_add_u32 v9, v9, v11')
        yield
        I('v_and_b32 v11, 7, v9'); I('v_lshlrev_b32 v10, 2, v10'); I('v_xor_b32 v11, v11, v10')
        I(f'v_lshrrev_b32 v10, 4, v{V_LANE}'); I('v_lshlrev_b32 v10, 1, v10')
        yield
        I('v_xor_b32 v10, v10, v11'); I('v_lshlrev_b32 v10, 4, v10')
        I('v_lshlrev_b32 v9, 7, v9'); I('v_add_u32 v9, v9, v10')
        yield
        I(f's_lshl_b32 s{S_T0}, s{S_WH}, 12'); I(f'v_add_u32 v9, s{S_T0}, v9')
        I('v_xor_b32 v10, 16, v9')
        I('s_barrier')
        I(f'ds_write_b128 v9, {vr(OR,4)} offset:{LDS_X}', tag='hw'); I(f'ds_write_b128 v10, {vr(OR+4,4)} offset:{LDS_X}', tag='hw')
        I(f'ds_write_b128 v9, {vr(OI,4)} offset:{LDS_X+8192}', tag='hw'); I(f'ds_write_b128 v10, {vr(OI+4,4)} offset:{LDS_X+8192}', tag='hw')
        yield
        I(f'v_lshrrev_b32 v8, 2, v{V_LANE}'); I('v_and_b32 v9, 7, v8'); I(f'v_bfe_u32 v10, v{V_LANE}, 1, 1')
        I('v_xor_b32 v9, v9, v10'); I('v_lshlrev_b32 v9, 4, v9')
        yield
        I('v_lshlrev_b32 v8, 7, v8'); I('v_add_u32 v8, v8, v9')
        I(f'v_and_b32 v9, 1, v{V_LANE}'); I('v_lshlrev_b32 v9, 3, v9'); I('v_add_u32 v8, v8, v9')
        I(f's_lshl_b32 s{S_T0}, s{S_W}, 12'); I(f'v_add_u32 v8, s{S_T0}, v8')
        yield
        self.wait(lg=['hw']); I('s_barrier')
        FR=16
        for nb in range(4):
            I(f'v_xor_b32 v9, {nb<<5}, v8'); I('v_xor_b32 v10, 64, v9')
            I(f'ds_read_b64_tr_b16 {vr(FR+4*nb,2)}, v9 offset:{LDS_X}', tag=('hp',nb))
            I(f'ds_read_b64_tr_b16 {vr(FR+4*nb+2,2)}, v10 offset:{LDS_X+2048}', tag=('hp',nb))
        I(f's_mul_i32 s{S_T0}, s{S_C}, {28*4096}'); I(f's_lshl_b32 s{S_T1}, s{S_G}, 14'); I(f's_add_u32 s{S_T0}, s{S_T0}, s{S_T1}')
        I(f's_lshl_b32 s{S_T1}, s{S_W}, 12'); I(f's_add_u32 s{S_T0}, s{S_T0}, s{S_T1}'); I(f's_add_u32 s94, s{S_T0}, {WS_HP}')
        yield
        if self.opt.gearly: I(f'global_load_dword v53, v12, {sp(P_WS)} sc1', tag='fg')
        for nb in range(4):
            self.wait(lg=[('hp',nb)])
            I(f'buffer_store_dwordx4 {vr(FR+4*nb,4)}, v{V_L16}, {srd(SRD_WS)}, s94 offen offset:{nb*1024} sc1', tag='stH')
            yield

    def flag_set(self, sa, mul, sb, base):
        I=self.I
        L=self.newlabel('flag')
        I(f's_cmp_lg_u32 s{S_W}, 0'); I(f's_cbranch_scc1 {L}')
        snap=self.snapshot()
        I(f's_mul_i32 s{S_T0}, s{sa}, {mul}'); I(f's_add_u32 s{S_T0}, s{S_T0}, s{sb}'); I(f's_lshl_b32 s{S_T0}, s{S_T0}, 6')
        I(f's_add_u32 s{S_T0}, s{S_T0}, {base}')
        I('v_mov_b32 v8, 0'); I('v_mov_b32 v9, 1')
        self.exec_set(1,0)
        I(f'buffer_store_dword v9, v8, {srd(SRD_WS)}, s{S_T0} offen sc1')
        self.exec_full()
        self.label(L); self.merge(snap)

    def g_bias_load(self):
        I=self.I
        I(f'v_lshrrev_b32 v8, 4, v{V_LANE}'); I('v_lshlrev_b32 v8, 3, v8')
        I(f's_lshl_b32 s{S_T0}, s{S_FT}, 7'); I(f's_lshl_b32 s{S_T1}, s{S_WH}, 6'); I(f's_add_u32 s{S_T0}, s{S_T0}, s{S_T1}')
        I(f'v_add_u32 v8, s{S_T0}, v8')
        I(f'global_load_dwordx2 v[32:33], v8, {sp(P_B1)}', tag='b1')
        I(f'global_load_dwordx2 v[34:35], v8, {sp(P_B1)} offset:32', tag='b1')

    def g_epilogue(self):
        I=self.I
        self.auto=self.opt.gepip
        self.reduce(V_RING)
        self.wait(vm=['b1'])
        for x in range(2):
            for h in range(2):
                I(f'v_lshlrev_b32 v{16+4*x+2*h}, 16, v{32+2*x+h}'); I(f'v_and_b32 v{17+4*x+2*h}, s{S_MASK}, v{32+2*x+h}')
        C1=-2.0*0.7978845608028654*1.4426950408889634
        C3=C1*0.044715
        import struct
        f2h=lambda f:'0x%08x'%struct.unpack('<I',struct.pack('<f',f))[0]
        I(f's_mov_b32 s{S_T2}, {f2h(C1)}'); I(f's_mov_b32 s{S_T3}, {f2h(C3)}')
        I(f'v_mov_b32 v31, s{S_T2}')
        U=[]
        for x in range(2):
            for y in range(2):
                for r in range(4):
                    U.append((V_ACC+16*x+4*y+r, 16+4*x+r))
        TT=V_RING
        for n,(u,b) in enumerate(U): I(f'v_add_f32 v{u}, v{u}, v{b}')
        for n,(u,b) in enumerate(U): I(f'v_mul_f32 v{TT+n}, v{u}, v{u}')
        for n,(u,b) in enumerate(U): I(f'v_fma_f32 v{TT+n}, v{TT+n}, s{S_T3}, v31')
        for n,(u,b) in enumerate(U): I(f'v_mul_f32 v{TT+n}, v{TT+n}, v{u}')
        for n,(u,b) in enumerate(U): I(f'v_exp_f32 v{TT+n}, v{TT+n}')
        for n,(u,b) in enumerate(U): I(f'v_add_f32 v{TT+n}, 1.0, v{TT+n}')
        for n,(u,b) in enumerate(U): I(f'v_rcp_f32 v{TT+n}, v{TT+n}')
        for n,(u,b) in enumerate(U): I(f'v_mul_f32 v{u}, v{u}, v{TT+n}')
        F=V_RING+16
        for y in range(2):
            for x in range(2):
                a=V_ACC+16*x+4*y
                I(f'v_cvt_pk_bf16_f32 v{F+4*y+2*x}, v{a}, v{a+1}'); I(f'v_cvt_pk_bf16_f32 v{F+4*y+2*x+1}, v{a+2}, v{a+3}')
        I(f's_mul_i32 s{S_T0}, s{S_DT1}, {56*4096}'); I(f's_lshl_b32 s{S_T1}, s{S_FT}, 13'); I(f's_add_u32 s{S_T0}, s{S_T0}, s{S_T1}')
        I(f's_lshl_b32 s{S_T1}, s{S_WH}, 12'); I(f's_add_u32 s{S_T0}, s{S_T0}, s{S_T1}')
        I(f's_lshl_b32 s{S_T1}, s{S_WL}, 11'); I(f's_add_u32 s{S_T0}, s{S_T0}, s{S_T1}'); I(f's_add_u32 s{S_T0}, s{S_T0}, {WS_GT}')
        for y in range(2):
            I(f'buffer_store_dwordx4 {vr(F+4*y,4)}, v{V_L16}, {srd(SRD_WS)}, s{S_T0} offen offset:{y*1024} sc1', tag='stG')
        self.auto=0
        self.e_loads()
        self.p2_flag_addr(); self.p2_bases()
        I(f'global_load_dword v54, v12, {sp(P_WS)} sc1', tag='fc')
        for n in range(self.opt.gwait): self.tick()
        self.wait(vm=['stG']); I('s_barrier')
        self.flag_set(S_DT1,28,S_FT,WS_FG)

    def w2_setup(self):
        I=self.I
        self.make_srd(SRD_W, P_W2, 1792*4096)
        self.ring_setup(4096, S_WL)
        I(f's_mul_i32 s{S_WBEG}, s{S_W}, {448*4096}'); I(f's_lshl_b32 s{S_T0}, s{S_C}, 7'); I(f's_add_u32 s{S_WBEG}, s{S_WBEG}, s{S_T0}')
        I(f's_mov_b32 s{S_WO}, s{S_WBEG}')
        self.ring_init('w2',14,4096,range(6))

    def rot_g(self, dst):
        I=self.I
        I(f's_mul_i32 s{dst}, s86, 37'); I(f's_lshr_b32 s{dst}, s{dst}, 8')
        I(f's_mul_i32 s{dst}, s{dst}, {7*self.opt.rot2}'); I(f's_lshr_b32 s{dst}, s{dst}, 1')
    def cpack(self):
        I=self.I
        L=self.newlabel('nocp')
        I(f's_cmp_ge_u32 s{S_E}, 28'); I(f's_cbranch_scc1 {L}')
        I(f's_mov_b32 s{SRD_1+2}, {448*896}'); I(f's_mov_b32 s{SRD_1+3}, 0x20000')
        I(f's_bitcmp1_b32 s{S_E}, 1')
        I(f's_cselect_b32 s{SRD_1}, s{P_CIM}, s{P_CRE}'); I(f's_cselect_b32 s{SRD_1+1}, s{P_CIM+1}, s{P_CRE+1}')
        I(f'v_and_b32 v9, 15, v{V_LANE}'); I('v_mul_u32_u24 v9, 896, v9'); I(f'v_lshrrev_b32 v10, 4, v{V_LANE}')
        I('v_lshlrev_b32 v10, 4, v10'); I('v_add_u32 v10, v9, v10')
        I(f's_lshr_b32 s{S_T0}, s{S_E}, 2'); I(f's_lshl_b32 s{S_T0}, s{S_T0}, 7')
        I(f's_and_b32 s{S_T1}, s{S_E}, 1'); I(f's_lshl_b32 s{S_T1}, s{S_T1}, 6'); I(f's_add_u32 s{S_T0}, s{S_T0}, s{S_T1}')
        I(f's_mul_i32 s{S_T1}, s{S_W}, {16*896}'); I(f's_add_u32 s{S_T0}, s{S_T0}, s{S_T1}')
        for dt in range(7):
            I(f'buffer_load_dwordx4 {vr(56+4*dt,4)}, v10, {srd(SRD_1)}, s{S_T0} offen', tag=('cp',dt))
            if dt<6: I(f's_add_u32 s{S_T0}, s{S_T0}, {64*896}')
        I(f's_lshl_b32 s{S_T0}, s{S_E}, 12'); I(f's_lshl_b32 s{S_T1}, s{S_W}, 10'); I(f's_add_u32 s{S_T0}, s{S_T0}, s{S_T1}')
        I(f's_add_u32 s{S_T0}, s{S_T0}, {WS_CP}')
        for dt in range(7):
            self.wait(vm=[('cp',dt)])
            I(f'buffer_store_dwordx4 {vr(56+4*dt,4)}, v{V_L16}, {srd(SRD_WS)}, s{S_T0} offen sc1', tag='stC')
            if dt<6: I(f's_add_u32 s{S_T0}, s{S_T0}, {28*4096}')
        self.label(L)
    def cpack_flag(self):
        I=self.I
        L=self.newlabel('nocf')
        Lp=self.newlabel('w0poll')
        self.wait(vm='all')
        I(f's_cmp_lg_u32 s{S_W}, 0'); I(f's_cbranch_scc1 {Lp}')
        I(f'v_and_b32 v8, 3, v{V_LANE}'); I('v_lshlrev_b32 v8, 6, v8')
        self.poll('e0e', 8, P_DBG, 64)
        self.label(Lp)
        I('s_barrier')
        I(f's_cmp_ge_u32 s{S_E}, 28'); I(f's_cbranch_scc1 {L}')
        I(f's_mov_b32 s{S_T1}, 0')
        self.flag_set(S_T1,1,S_E,WS_FC)
        self.label(L)

    def p2_resid_loads(self):
        I=self.I
        self.make_srd(SRD_OUT, P_OUT, 2048*1792)
        I(f'v_and_b32 v7, 15, v{V_LANE}'); I(f'v_lshrrev_b32 v8, 4, v{V_LANE}')
        I('v_mul_u32_u24 v9, 896, v7'); I('v_lshlrev_b32 v10, 3, v8'); I('v_add_u32 v9, v9, v10')
        I(f's_lshl_b32 s{S_T0}, s{S_C}, 6'); I(f's_lshl_b32 s{S_T1}, s{S_WL}, 5'); I(f's_add_u32 s{S_T0}, s{S_T0}, s{S_T1}')
        I(f's_lshl_b32 s{S_T1}, s{S_G}, 6'); I(f's_lshl_b32 s{S_T2}, s{S_WH}, 5'); I(f's_add_u32 s{S_T1}, s{S_T1}, s{S_T2}')
        for y in range(2):
            for x in range(2):
                I(f's_add_u32 s{S_T2}, s{S_T0}, {16*y}'); I(f's_mul_i32 s{S_T2}, s{S_T2}, 896')
                I(f's_add_u32 s{S_T3}, s{S_T1}, {16*x}'); I(f's_lshl_b32 s{S_T3}, s{S_T3}, 1'); I(f's_add_u32 s{S_T2}, s{S_T2}, s{S_T3}')
                I(f'buffer_load_dwordx2 {vr(16+4*y+2*x,2)}, v9, {srd(SRD_X)}, s{S_T2} offen', tag='res')
        I('v_lshlrev_b32 v9, 2, v7')
        for y in range(2):
            I(f's_add_u32 s{S_T2}, s{S_T0}, {16*y}'); I(f's_lshl_b32 s{S_T2}, s{S_T2}, 2'); I(f's_add_u32 s{S_T2}, s{S_T2}, {WS_STAT}')
            I(f'buffer_load_dword v{24+2*y}, v9, {srd(SRD_WS)}, s{S_T2} offen sc1', tag='res')
            I(f's_add_u32 s{S_T2}, s{S_T2}, 8192')
            I(f'buffer_load_dword v{25+2*y}, v9, {srd(SRD_WS)}, s{S_T2} offen sc1', tag='res')
        I(f's_lshl_b32 s{S_T2}, s{S_T1}, 1'); I(f'v_add_u32 v9, s{S_T2}, v10')
        I(f'global_load_dwordx2 v[28:29], v9, {sp(P_DSK)}', tag='res')
        I(f'global_load_dwordx2 v[30:31], v9, {sp(P_DSK)} offset:32', tag='res')
        I(f'v_add_u32 v9, s{S_T0}, v7'); I('v_lshlrev_b32 v9, 1, v9')
        I(f'global_load_ushort v10, v9, {sp(P_B2)}', tag='res')
        I(f'global_load_ushort v38, v9, {sp(P_B2)} offset:32', tag='res')
    def resid_compute(self):
        I=self.I
        self.wait(vm=['res'])
        I('v_lshlrev_b32 v10, 16, v10'); I('v_lshlrev_b32 v38, 16, v38')
        yield
        for x in range(2):
            for h in range(2):
                I(f'v_lshlrev_b32 v{32+2*h}, 16, v{28+2*x+h}'); I(f'v_and_b32 v{33+2*h}, s{S_MASK}, v{28+2*x+h}')
            yield
            for y in range(2):
                xs=16+4*y+2*x; st=24+2*y; b2=10 if y==0 else 38
                for h in range(2):
                    r=240+8*y+4*x+2*h
                    I(f'v_lshlrev_b32 v{r}, 16, v{xs+h}'); I(f'v_and_b32 v{r+1}, s{S_MASK}, v{xs+h}')
                    I(f'v_pk_add_f32 v[36:37], v[{r}:{r+1}], v[{st}:{st+1}] op_sel_hi:[1,0] neg_lo:[0,1] neg_hi:[0,1]')
                    yield
                    I(f'v_pk_mul_f32 v[36:37], v[36:37], v[{st}:{st+1}] op_sel:[0,1] op_sel_hi:[1,1]')
                    I(f'v_pk_add_f32 v[{r}:{r+1}], v[{r}:{r+1}], v[{b2}:{b2+1}] op_sel_hi:[1,0]')
                    I(f'v_pk_fma_f32 v[{r}:{r+1}], v[36:37], v[{32+2*h}:{33+2*h}], v[{r}:{r+1}]')
                    yield

    CREG=[['v16','v20','v24','v28'],['v32','v36','v40','v44'],['v48','v52','v216','v220'],['v224','v228','v232','v236'],
          ['a0','a4','a8','a12'],['a224','a228','a232','a236'],['a240','a244','a248','a252']]
    def creg(self,i,x):
        r=self.CREG[i][x]; n=int(r[1:]); return f'{r[0]}[{n}:{n+3}]'
    def p2_bases(self):
        I=self.I
        I(f's_mul_i32 s90, s{S_G}, {56*4096}'); I(f's_mul_i32 s{S_T0}, s{S_W}, {14*4096}'); I(f's_add_u32 s90, s90, s{S_T0}')
        I(f's_add_u32 s90, s90, {WS_GT}')
        I(f's_lshl_b32 s{S_T1}, s{S_WH}, 11'); I(f's_xor_b32 s{S_T2}, s{S_T1}, 2048')
        I(f's_add_u32 s92, s90, s{S_T2}'); I(f's_add_u32 s90, s90, s{S_T1}')
        I(f's_mul_i32 s22, s{S_G}, {28*4096}'); I(f's_mul_i32 s{S_T0}, s{S_W}, {7*4096}'); I(f's_add_u32 s22, s22, s{S_T0}')
        I(f's_add_u32 s22, s22, {WS_CP}')
        I(f's_add_u32 s23, s22, s{S_T2}'); I(f's_add_u32 s22, s22, s{S_T1}')
        I(f's_mul_i32 s38, s{S_C}, {28*4096}'); I(f's_add_u32 s38, s38, s{S_T0}'); I(f's_add_u32 s38, s38, {WS_HP}')
        I(f's_lshl_b32 s{S_T1}, s{S_WL}, 11'); I(f's_xor_b32 s{S_T2}, s{S_T1}, 2048')
        I(f's_add_u32 s39, s38, s{S_T2}'); I(f's_add_u32 s38, s38, s{S_T1}')
    def q_c(self, steps):
        I=self.I
        def one(i,x):
            def f():
                b=22 if x<2 else 23
                I(f's_add_u32 s91, s{b}, {i*4096}')
                I(f'buffer_load_dwordx4 {self.creg(i,x)}, v{V_L16}, {srd(SRD_WS)}, s91 offen offset:{(x&1)*1024} sc1', tag=('c',i,x))
            return f
        for i in steps:
            for x in range(4): self.q.append(one(i,x))
    def cflag_check(self):
        I=self.I
        L=self.newlabel('cf'); D=self.newlabel('cfd')
        self.wait(vm=['fc'])
        self.exec_set('0x3f80','0')
        I('v_cmp_gt_u32 vcc, 1, v54'); I(f's_cbranch_vccz {D}')
        snap=self.snapshot()
        I(f's_mov_b32 s{S_BOUND}, 0x200000')
        self.label(L)
        I(f'global_load_dword v54, v12, {sp(P_WS)} sc1'); I('s_waitcnt vmcnt(0)')
        I('v_cmp_gt_u32 vcc, 1, v54'); I(f's_cbranch_vccz {D}')
        I('s_sleep 4'); I(f's_sub_u32 s{S_BOUND}, s{S_BOUND}, 1'); I(f's_cbranch_scc0 {L}')
        self.label(D); self.restore(snap)
        self.exec_full()
    def flag_wait(self, vaddr, vdst, tag):
        I=self.I
        L=self.newlabel('fw'); D=self.newlabel('fwd')
        self.wait(vm=[tag])
        I(f'v_cmp_gt_u32 vcc, 1, v{vdst}'); I(f's_cbranch_vccz {D}')
        snap=self.snapshot()
        I(f's_mov_b32 s{S_BOUND}, 0x200000')
        self.label(L)
        I(f'global_load_dword v{vdst}, v{vaddr}, {sp(P_WS)} sc1'); I('s_waitcnt vmcnt(0)')
        I(f'v_cmp_gt_u32 vcc, 1, v{vdst}'); I(f's_cbranch_vccz {D}')
        I('s_sleep 4'); I(f's_sub_u32 s{S_BOUND}, s{S_BOUND}, 1'); I(f's_cbranch_scc0 {L}')
        self.label(D); self.restore(snap)
    def p2_main(self, pre_only=False):
        I=self.I
        NS=6
        g0=self.opt.sfirst
        steps=[('g',k) for k in range(g0)]
        gi,si=g0,0
        while gi<14 or si<7:
            if si<7: steps.append(('s',si)); si+=1
            if gi<14: steps.append(('g',gi)); gi+=1
        groups=[('g',i) if k=='g' else ('h',i) for k,i in steps]
        gidx={g:n for n,g in enumerate(groups)}
        reg=lambda g: V_RING+16*(gidx[g]%NS)
        pend=[(g,x) for g in groups for x in range(4)]
        done=set(); state={}
        if not pre_only and self.opt.gearly: pend,done,state=self.p2state
        def can(g,x):
            n=gidx[g]-NS
            return n<0 or (groups[n],x) in done
        def issue(nmax):
            n=0
            while n<nmax and pend and can(*pend[0]):
                g,x=pend[0]
                if g[0]=='h' and not state.get('hflag'):
                    self.flag_wait(14,11,'fh'); state['hflag']=True
                pend.pop(0)
                b0,b1,nst={'g':(90,92,14),'h':(38,39,7)}[g[0]]
                sx=b0 if x<2 else b1
                I(f'buffer_load_dwordx4 {vr(reg(g)+4*x,4)}, v{V_L16}, {srd(SRD_WS)}, s{sx} offen offset:{(x&1)*1024} sc1', tag=(g,x))
                if (x&1) and g[1]<nst-1: I(f's_add_u32 s{sx}, s{sx}, 4096')
                n+=1
        if pre_only:
            issue(4*NS); self.p2state=(pend,done,state); return
        if not self.opt.gearly: issue(4*NS)
        first=True
        self.q_c([4])
        for pos,(kind,i) in enumerate(steps):
            if kind=='g' and i==3: I(f'global_load_dword v11, v14, {sp(P_WS)} sc1', tag='fh')
            if kind=='s':
                H=('h',i)
                for x in range(4):
                    self.wait(vm=[('c',i,x)]+([(H,y) for y in range(4)] if x==0 else []))
                    if x==0: self.stamp(f'p2.s{i}',fine=2)
                    for y in range(4):
                        d=V_ACC+16*x+4*y
                        I(f'v_mfma_f32_16x16x32_bf16 {vr(d,4)}, {self.creg(i,x)}, {vr(reg(H)+4*y,4)}, {vr(d,4)}')
                    if x<3: issue(1)
                for y in range(4): done.add((H,y))
                issue(2)
            else:
                A=('g',i)
                for x in range(4):
                    self.wait(vm=[(A,x)])
                    if x==0: self.stamp(f'p2.g{i}',fine=2)
                    for y in range(4):
                        d=V_ACC+16*x+4*y
                        cin='0' if first else vr(d,4)
                        I(f'v_mfma_f32_16x16x32_bf16 {vr(d,4)}, {vr(reg(A)+4*x,4)}, {ar(16*i+4*y,4)}, {cin}')
                    done.add((A,x))
                    issue(1)
                    if i==1: self.q.pop(0)()
            first=False
        assert not pend

    def p2_epilogue(self):
        I=self.I
        self.reduce(V_RING)
        for y in range(2):
            for x in range(2):
                a=V_ACC+16*x+4*y; r=240+8*y+4*x
                for h in range(2):
                    I(f'v_pk_add_f32 v[{a+2*h}:{a+2*h+1}], v[{a+2*h}:{a+2*h+1}], v[{r+2*h}:{r+2*h+1}]')
        if self.opt.delta:
            import struct
            hx='0x%08x'%struct.unpack('<I',struct.pack('<f',self.opt.delta))[0]
            for y in range(2):
                for x in range(2):
                    for r in range(4):
                        a=V_ACC+16*x+4*y+r
                        I(f'v_add_f32 v{a}, {hx}, v{a}')
        I(f'v_and_b32 v7, 15, v{V_LANE}'); I(f'v_lshrrev_b32 v8, 4, v{V_LANE}')
        I('v_mul_u32_u24 v9, 1792, v7'); I('v_lshlrev_b32 v10, 4, v8'); I('v_add_u32 v9, v9, v10')
        I(f's_lshl_b32 s{S_T0}, s{S_C}, 6'); I(f's_lshl_b32 s{S_T1}, s{S_WL}, 5'); I(f's_add_u32 s{S_T0}, s{S_T0}, s{S_T1}')
        I(f's_lshl_b32 s{S_T1}, s{S_G}, 6'); I(f's_lshl_b32 s{S_T2}, s{S_WH}, 5'); I(f's_add_u32 s{S_T1}, s{S_T1}, s{S_T2}')
        for y in range(2):
            for x in range(2):
                I(f's_add_u32 s{S_T2}, s{S_T0}, {16*y}'); I(f's_mul_i32 s{S_T2}, s{S_T2}, 1792')
                I(f's_add_u32 s{S_T3}, s{S_T1}, {16*x}'); I(f's_lshl_b32 s{S_T3}, s{S_T3}, 2'); I(f's_add_u32 s{S_T2}, s{S_T2}, s{S_T3}')
                a=V_ACC+16*x+4*y
                I(f'buffer_store_dwordx4 {vr(a,4)}, v9, {srd(SRD_OUT)}, s{S_T2} offen {self.opt.outmod}')

    def write_stamps(self):
        if not self.opt.stamps: return
        I=self.I
        I('s_lshl_b32 s3, s2, 2'); I(f's_add_u32 s3, s3, s{S_W}'); I('s_lshl_b32 s3, s3, 8'); I(f's_add_u32 s3, s3, {WS_DBG}')
        I(f'v_lshlrev_b32 v9, 2, v{V_LANE}')
        I(f'buffer_store_dword v{self.vst}, v9, {srd(SRD_WS)}, s3 offen')
        if getattr(self.opt,'dbgwg',-1)>=0 and self.final_stamps:
            L=self.newlabel('dbgout')
            I(f's_cmp_lg_u32 s2, {self.opt.dbgwg}'); I(f's_cbranch_scc1 {L}')
            I(f's_cmp_lg_u32 s{S_W}, 0'); I(f's_cbranch_scc1 {L}')
            I(f'v_readlane_b32 s3, v{self.vst}, 0'); I('s_nop 4')
            I(f'v_subrev_u32 v8, s3, v{self.vst}')
            I(f'v_add_u32 v9, {self.opt.dbgoff}, v{V_LANE}'); I('v_lshlrev_b32 v9, 2, v9')
            I('ds_bpermute_b32 v8, v9, v8'); I('s_waitcnt lgkmcnt(0)')
            I(f'v_lshlrev_b32 v9, 2, v{V_LANE}')
            self.exec_set('0xfffe','0')
            I(f'global_store_dword v9, v8, {sp(P_DBG)}')
            self.exec_full()
            self.label(L)
    def build(self):
        I=self.I; o=self.opt
        if o.stamps: I('v_mov_b32 v55, 0')
        self.prologue()
        wt=self.opt.w1touch
        self.ln8(part=1)
        self.stamp('role')
        Lcont=self.newlabel('cont')
        I('s_cmp_eq_u32 s74, 1'); I(f's_cbranch_scc1 {Lcont}')
        snap=self.snapshot()
        self.ln8(clears=False, part=2)
        self.vm['st0']=0
        self.code_prefetch_e()
        self.arrive0()
        if wt=='F': self.touch_w1()
        if wt=='S': self.touch_w1_split(True)
        self.stamp('pf1')
        if self.opt.eorder==0:
            self.cpack()
            self.stamp('cp')
            self.touch_pf(2)
            self.cpack_flag()
        elif self.opt.eorder==1:
            self.touch_pf(2)
            self.stamp('cp')
            self.cpack()
            self.cpack_flag()
        else:
            self.cpack()
            self.cpack_flag()
            self.stamp('cp')
            self.touch_pf(2)
            self.wait(vm='all')
        self.stamp('pf2')
        self.write_stamps()
        I('s_endpgm')
        self.label(Lcont); self.restore(snap)
        self.ln8(clears=True, part=2)
        self.code_prefetch()
        self.dma_setup()
        self.w1_setup()
        if self.opt.bfirst: self.q_b(); self.q_x([0,1,2])
        else: self.q_x([0,1,2]); self.q_b()
        for n in range(self.opt.pre): self.tick()
        self.stamp('ln8 stored')
        if self.opt.bfirst: self.q_x([3])
        else:
            rest=self.q; self.q=[]; self.q_x([3]); self.q+=rest
        self.auto=self.opt.period
        self.x_addr()
        self.lam_consts()
        self.auto=0
        self.stamp('lam')
        self.arrive0()
        self.stamp('arrived')
        self.drain_q()
        if wt=='F': self.touch_w1()
        if wt=='S': self.touch_w1_split(False)
        self.stamp('drained')
        self.wait(vm=['x64','bdma']); I('s_barrier')
        self.do_bread()
        self.auto=self.opt.statp
        self.row_stats()
        self.auto=0
        self.wait(vm=['b13'])
        self.stamp('ln64')
        I(f'v_and_b32 v35, 3, v{V_LANE}'); I('v_lshlrev_b32 v35, 6, v35')
        I(f'global_load_dword v34, v35, {sp(P_DBG)} sc1', tag='e0c')
        self.auto=self.opt.bup
        self.bu_gemm()
        self.stamp('bu',fine=True)
        self.ln_fix()
        self.scan1()
        self.e_addr()
        self.auto=0
        self.stamp('scan1')
        self.wait_e0()
        self.stamp('e0')
        Lnog=self.newlabel('nog1'); Lj=self.newlabel('g1join')
        I(f's_cmp_eq_u32 s{S_HASG1}, 0'); I(f's_cbranch_scc1 {Lnog}')
        snap=self.snapshot()
        R1=dict(self.R); R1['free']=list(self.R['free']); R1['slot']=dict(self.R['slot'])
        self.g_bias_load()
        self.gemm1()
        self.stamp('gemm1')
        self.g_epilogue()
        self.stamp('gepi')
        I(f's_branch {Lj}')
        snapA=self.snapshot()
        RA={k:self.R[k] for k in ('iss','rd','rel','piece')}; RA['free']=list(self.R['free']); RA['slot']=dict(self.R['slot'])
        self.label(Lnog); self.restore(snap); self.R=R1
        self.ring_finish(); self.wait(lg='all')
        self.w2_setup()
        self.replay_ring(RA)
        self.e_loads()
        self.p2_flag_addr(); self.p2_bases()
        I(f'global_load_dword v54, v12, {sp(P_WS)} sc1', tag='fc')
        self.label(Lj); self.merge(snapA)
        self.cflag_check()
        self.q_c([5,6])
        self.auto=self.opt.finp
        for _ in self.finalize(): pass
        self.auto=0
        self.stamp('final')
        if o.stamps: I('v_mov_b32 v15, v55'); self.vst=15
        self.drain_q()
        if self.opt.gearly:
            self.flag_wait(12,53,'fg')
            self.stamp('flagG')
            self.p2_main(pre_only=True)
        self.p2_resid_loads()
        for n in range(self.opt.rwait):
            if self.R is not None and not self.ring_tick(): self.ring_finish()
        self.auto=self.opt.finp
        for _ in self.resid_compute(): pass
        self.auto=0
        self.wait(vm=['stH']); I('s_barrier')
        self.flag_set(S_C,7,S_G,WS_FH)
        self.q_c([0,1,2,3])
        while self.q or self.R is not None:
            if self.q:
                self.tick()
                if len(self.q)==self.opt.fglead and not self.opt.gearly: I(f'global_load_dword v11, v12, {sp(P_WS)} sc1', tag='fg')
            if self.R is not None:
                if not self.ring_tick(): self.ring_finish()
        self.wait(lg='all')
        self.stamp('w2 in regs')
        if not self.opt.gearly:
            self.flag_wait(12,11,'fg')
            self.stamp('flagG')
        self.p2_main()
        self.stamp('p2')
        self.p2_epilogue()
        self.stamp('end'); self.cstamp('c1')
        self.final_stamps=True
        self.write_stamps()
        self.label('L_exit')
        I('s_endpgm')
        self.label('L_code_end')

def header(lds):
    return f"""; Fused S5 SSM + MLP-Mixer token MLP, one persistent launch (256 workgroups, one per CU).
; @launch grid=(256,1,1) block=(256,1,1) lds={lds}
.amdgcn_target "amdgcn-amd-amdhsa--gfx950"
.text
.globl {KN}
.p2align 8
.type {KN},@function
{KN}:
"""
def footer():
    return f"""
.section .rodata,"a"
.p2align 6
.amdhsa_kernel {KN}
  .amdhsa_next_free_vgpr 512
  .amdhsa_next_free_sgpr 102
  .amdhsa_accum_offset 256
  .amdhsa_group_segment_fixed_size 0
  .amdhsa_kernarg_size 136
  .amdhsa_user_sgpr_count 2
  .amdhsa_user_sgpr_kernarg_segment_ptr 1
  .amdhsa_system_sgpr_workgroup_id_x 1
  .amdhsa_float_denorm_mode_32 3
.end_amdhsa_kernel
"""
if __name__=='__main__':
    ap=argparse.ArgumentParser()
    ap.add_argument('-o',default='k.s'); ap.add_argument('--stamps',action='store_true'); ap.add_argument('--stop',default=''); ap.add_argument('--fine',type=int,default=0); ap.add_argument('--period',type=int,default=48); ap.add_argument('--eorder',type=int,default=1); ap.add_argument('--statp',type=int,default=0); ap.add_argument('--gearly',type=int,default=1); ap.add_argument('--delta',type=float,default=0.0); ap.add_argument('--bup',type=int,default=0); ap.add_argument('--statj',type=int,default=9); ap.add_argument('--outmod',default=''); ap.add_argument('--dbgwg',type=int,default=-1); ap.add_argument('--dbgoff',type=int,default=0); ap.add_argument('--arrlead',type=int,default=10); ap.add_argument('--t3start',type=int,default=0); ap.add_argument('--notouch3',type=int,default=0); ap.add_argument('--own3',type=int,default=0); ap.add_argument('--alsoA',type=int,default=0); ap.add_argument('--now2',type=int,default=0); ap.add_argument('--gepip',type=int,default=0); ap.add_argument('--finp',type=int,default=36); ap.add_argument('--sfirst',type=int,default=10); ap.add_argument('--rwait',type=int,default=8); ap.add_argument('--fglead',type=int,default=6); ap.add_argument('--ln64p',type=int,default=48); ap.add_argument('--bfirst',type=int,default=0); ap.add_argument('--w2late',type=int,default=1); ap.add_argument('--rot1',type=int,default=4); ap.add_argument('--rot2',type=int,default=1); ap.add_argument('--rot3',type=int,default=1); ap.add_argument('--ln8tick',type=int,default=0); ap.add_argument('--bdelay',type=int,default=2); ap.add_argument('--w1touch',default='A'); ap.add_argument('--fin0',type=int,default=4); ap.add_argument('--finrate',type=int,default=2); ap.add_argument('--p2rate',type=int,default=3); ap.add_argument('--pre',type=int,default=1); ap.add_argument('--pre1',type=int,default=8); ap.add_argument('--gwait',type=int,default=6); ap.add_argument('--ht_touch',type=int,default=0); ap.add_argument('--g_touch',type=int,default=0)
    o=ap.parse_args()
    k=K(o); k.build()
    t,n=k.text()
    open(o.o,'w').write(header(LDS_TOTAL)+t+footer())
    print('wrote',o.o,'lines',t.count('\n'),'nop states inserted',n)
    if o.stamps: open(o.o+'.names','w').write(','.join(k.stampnames)); print(k.stampnames)
```

```python
import sys, os, argparse
from asmgen import Gen

KN = "parallel_sum__ssm_conv_s5__mixer_token_mlp__prompt_kernel"

WS_HT    = 0x000000
WS_STAT  = 0x1C0000
WS_E     = 0x1C4000
WS_FH    = 0x1E0000
WS_FG    = 0x1E4000
WS_FC    = 0x1E8000
WS_CP    = 0x780000
WS_GT    = 0x200000
WS_HP    = 0x400000
WS_DBG   = 0x900000

LDS_X  = 0
LDS_Y  = 57344
YW     = 26624
SLOT_OFF = [0, 4096, 8192, 12288, 16384, 20480]
LDS_LN8 = LDS_X + 57344 - 7680
LDS_TOTAL = LDS_Y + 4*YW

P_X, P_LRE, P_LIM, P_BRE, P_BIM, P_CRE, P_CIM, P_LDT = 4,6,8,10,12,14,16,18
P_DSK = 20
P_W1, P_B1, P_W2, P_B2 = 24,26,28,30
P_OUT, P_DBG, P_WS = 32,34,36
SRD_X, SRD_WS, SRD_1, SRD_2, SRD_W, SRD_OUT = 40,44,48,52,56,60
S_W, S_WH, S_WL, S_C, S_G, S_DT1, S_FT, S_HASG1 = 64,65,66,67,68,69,70,71
S_MASK, S_ONES = 72, 73
S_A, S_B, S_WO, S_T0, S_T1, S_T2, S_T3, S_BOUND = 76,77,78,79,80,81,82,83
S_YB = 84
S_WBEG, S_WEND = 96, 97
S_KO, S_KEND = 100, 101
S_FI = 3
S_E = 85
def sp(n): return f's[{n}:{n+1}]'
def srd(n): return f's[{n}:{n+3}]'
def vr(a,n): return f'v[{a}:{a+n-1}]' if n>1 else f'v{a}'
def ar(a,n): return f'a[{a}:{a+n-1}]' if n>1 else f'a{a}'

V_LANE, V_L16 = 0, 1
V_TR = 2
V_DMA = [6,13]
V_T = 16
V_LR,V_LI,V_K1,V_K2,V_SR,V_SI,V_PR,V_PI,V_L64R,V_L64I,V_L512R,V_L512I = range(40,52)
V_IN = 52
V_X64 = 56
V_BF = 112
V_RAW = 224
V_ACC = 56
V_RING = 120
V_EL = 16
V_EOF = 216

class K(Gen):
    def __init__(self, opt):
        super().__init__(); self.opt=opt; self.nstamp=0
        self.final_stamps=False; self.vst=55; self.nx=0; self.nb=0; self.bread=False; self.allow_bread=False; self.bdelay=opt.bdelay; self.q=[]; self.R=None; self.auto=0; self.acc=0; self.in_tick=False; self.full=True
    def I(self,t,tag=None):
        super().I(t,tag)
        if self.in_tick: return
        mn=t.split()[0]
        if mn.startswith(('buffer_','global_')): self.acc=0; return
        if not self.auto: return
        if mn.startswith('v_mfma'): self.acc+=16
        elif mn.startswith(('v_exp','v_rcp','v_sqrt','v_sin','v_cos','v_log')): self.acc+=8
        elif mn.startswith(('v_','ds_')): self.acc+=4
        else: return
        if self.acc>=self.auto and self.full and not mn.startswith(('v_cmp','s_cmp','s_bitcmp')):
            self.tick()
    def tick(self):
        self.in_tick=True; self.acc=0
        if not self.bread and self.allow_bread and self.nb>=34:
            if self.bdelay>0: self.bdelay-=1
            else:
                self.do_bread(); self.in_tick=False; return
        if self.q: self.q.pop(0)()
        elif self.R is not None: self.ring_tick()
        self.in_tick=False
    def do_bread(self):
        self.bread=True
        self.b_read()
        self.wait(lg=['brd'])
        self.ring_init('w1',16,3584,range(6))
    def drain_q(self):
        while self.q: self.tick()
    def stamp(self, name, fine=False):
        if not self.opt.stamps: return
        if fine and int(fine)>self.opt.fine: return
        i=self.nstamp; self.nstamp+=1
        assert i<64
        self.c(f'stamp {i}: {name}')
        self.wait(lg='all')
        self.I('s_memrealtime s[98:99]'); self.I('s_waitcnt lgkmcnt(0)'); self.smem=False
        self.I(f'v_writelane_b32 v{self.vst}, s98, {i}')
        self.stampnames=getattr(self,'stampnames',[])+[name]
    def cstamp(self, name):
        if not self.opt.stamps: return
        i=self.nstamp; self.nstamp+=1
        self.wait(lg='all')
        self.I('s_memtime s[98:99]'); self.I('s_waitcnt lgkmcnt(0)'); self.smem=False
        self.I(f'v_writelane_b32 v{self.vst}, s98, {i}')
        self.stampnames=getattr(self,'stampnames',[])+['#'+name]
    def rnd_bf16(self, v):
        self.I(f'v_cvt_pk_bf16_f32 v{v}, v{v}, v{v}')
        self.I(f'v_lshlrev_b32 v{v}, 16, v{v}')
    def make_srd(self, s, ptr, nbytes):
        self.I(f's_mov_b32 s{s}, s{ptr}'); self.I(f's_and_b32 s{s+1}, s{ptr+1}, 0xffff')
        self.I(f's_mov_b32 s{s+2}, {nbytes}'); self.I(f's_mov_b32 s{s+3}, 0x20000')
    def ln_stats(self, SUM, SSQ, R, C, T):
        I=self.I
        I(f'v_mul_f32 v{SUM}, 0x3b124925, v{SUM}')
        I(f'v_mul_f32 v{SSQ}, 0x3b124925, v{SSQ}')
        I(f'v_fma_f32 v{SSQ}, -v{SUM}, v{SUM}, v{SSQ}')
        I(f'v_max_f32 v{SSQ}, 0, v{SSQ}')
        I(f'v_cvt_pk_bf16_f32 v{SUM}, v{SUM}, v{SUM}')
        I(f'v_cvt_pk_bf16_f32 v{SSQ}, v{SSQ}, v{SSQ}')
        I(f'v_lshlrev_b32 v{SUM}, 16, v{SUM}')
        I(f'v_lshlrev_b32 v{SSQ}, 16, v{SSQ}')
        I(f'v_add_f32 v{SSQ}, 0x3727c5ac, v{SSQ}')
        self.rnd_bf16(SSQ)
        I(f'v_sqrt_f32 v{SSQ}, v{SSQ}')
        self.rnd_bf16(SSQ)
        I(f'v_rcp_f32 v{R}, v{SSQ}')
        I(f'v_mul_f32 v{C}, v{SUM}, v{R}')
        I(f'v_sub_f32 v{C}, 0, v{C}')
    def dot_sums(self, regs, accs):
        I=self.I
        for n,d in enumerate(regs):
            s,q = accs[2*(n&1)], accs[2*(n&1)+1]
            if n<2:
                I(f'v_dot2_f32_bf16 v{s}, v{d}, s{S_ONES}, 0')
                I(f'v_dot2_f32_bf16 v{q}, v{d}, v{d}, 0')
            else:
                I(f'v_dot2_f32_bf16 v{s}, v{d}, s{S_ONES}, v{s}')
                I(f'v_dot2_f32_bf16 v{q}, v{d}, v{d}, v{q}')
        I(f'v_add_f32 v{accs[0]}, v{accs[0]}, v{accs[2]}')
        I(f'v_add_f32 v{accs[1]}, v{accs[1]}, v{accs[3]}')
    def normalize(self, regs, R, C, tmps, hook=None):
        I=self.I
        n=len(tmps)
        for b in range(0,len(regs),n):
            grp=regs[b:b+n]
            for d,t in zip(grp,tmps):
                I(f'v_lshlrev_b32 v{t}, 16, v{d}')
                I(f'v_and_b32 v{t+1}, s{S_MASK}, v{d}')
            for d,t in zip(grp,tmps):
                I(f'v_pk_fma_f32 v[{t}:{t+1}], v[{t}:{t+1}], v[{R}:{R+1}], v[{C}:{C+1}] op_sel_hi:[1,0,0]')
            for d,t in zip(grp,tmps):
                I(f'v_cvt_pk_bf16_f32 v{d}, v{t}, v{t+1}')
            if hook: hook(b//n)
    def cmul(self, dr, di, xr, xi, yr, yi, t0, t1):
        I=self.I
        I(f'v_mul_f32 v{t0}, v{xi}, v{yi}')
        I(f'v_mul_f32 v{t1}, v{xi}, v{yr}')
        I(f'v_fma_f32 v{t0}, v{xr}, v{yr}, -v{t0}')
        I(f'v_fma_f32 v{di}, v{xr}, v{yi}, v{t1}')
        I(f'v_mov_b32 v{dr}, v{t0}')
    def cfma(self, dr, di, xr, xi, yr, yi, zr, zi, t0, t1):
        I=self.I
        I(f'v_fma_f32 v{t0}, v{xr}, v{yr}, v{zr}')
        I(f'v_fma_f32 v{t1}, v{xr}, v{yi}, v{zi}')
        I(f'v_fma_f32 v{t0}, -v{xi}, v{yi}, v{t0}')
        I(f'v_fma_f32 v{di}, v{xi}, v{yr}, v{t1}')
        I(f'v_mov_b32 v{dr}, v{t0}')
    def csq(self, dr, di, xr, xi, t0):
        I=self.I
        I(f'v_mul_f32 v{t0}, v{xi}, v{xi}')
        I(f'v_mul_f32 v{di}, v{xr}, v{xi}')
        I(f'v_fma_f32 v{dr}, v{xr}, v{xr}, -v{t0}')
        I(f'v_add_f32 v{di}, v{di}, v{di}')
    def allgather_q(self, v, g0, g1, g2, g3):
        I=self.I
        I(f'v_mov_b32 v{g0}, v{v}'); I(f'v_mov_b32 v{g1}, v{v}')
        I(f'v_permlane16_swap_b32 v{g0}, v{g1}')
        I(f'v_mov_b32 v{g2}, v{g0}'); I(f'v_mov_b32 v{g3}, v{g1}')
        I(f'v_permlane32_swap_b32 v{g0}, v{g2}')
        I(f'v_permlane32_swap_b32 v{g1}, v{g3}')
    def exec_full(self): self.I('s_mov_b64 exec, -1'); self.full=True
    def exec_set(self, lo, hi):
        self.full=False
        self.I(f's_mov_b32 exec_lo, {lo}'); self.I(f's_mov_b32 exec_hi, {hi}')
    def poll(self, name, voff, base, cmp_ge, nlanes_lo=None):
        I=self.I
        L=self.newlabel('poll'); D=self.newlabel('polld')
        I(f's_mov_b32 s{S_BOUND}, 0x4000')
        self.label(L)
        I(f'global_load_dword v7, v{voff}, {sp(base)} sc1')
        I('s_waitcnt vmcnt(0)'); self.vm={}
        I(f'v_cmp_gt_u32 vcc, {cmp_ge}, v7')
        I(f's_cbranch_vccz {D}')
        I('s_sleep 4')
        I(f's_sub_u32 s{S_BOUND}, s{S_BOUND}, 1')
        I(f's_cbranch_scc0 {L}')
        self.label(D)

    def ring_setup(self, pitch, xorsel):
        I=self.I
        I(f'v_lshrrev_b32 v7, 3, v{V_LANE}'); I(f'v_and_b32 v8, 7, v{V_LANE}')
        I('v_and_b32 v9, 6, v7'); I('v_xor_b32 v8, v8, v9'); I('v_lshlrev_b32 v8, 4, v8')
        I(f'v_mul_u32_u24 v7, {pitch}, v7'); I(f'v_add_u32 v{V_DMA[0]}, v7, v8')
        I(f'v_add_u32 v{V_DMA[1]}, {8*pitch-1024}, v{V_DMA[0]}')
        I(f'v_lshrrev_b32 v7, 2, v{V_LANE}'); I('v_and_b32 v8, 6, v7')
        I(f'v_bfe_u32 v9, v{V_LANE}, 1, 1'); I('v_xor_b32 v8, v8, v9'); I('v_lshlrev_b32 v8, 4, v8')
        I('v_lshlrev_b32 v7, 7, v7'); I('v_add_u32 v7, v7, v8')
        I(f'v_and_b32 v9, 1, v{V_LANE}'); I('v_lshlrev_b32 v9, 3, v9'); I('v_add_u32 v7, v7, v9')
        I(f's_lshl_b32 s{S_T0}, s{xorsel}, 6')
        I(f'v_xor_b32 v7, s{S_T0}, v7')
        I(f'v_add_u32 v{V_TR}, s{S_YB}, v7')
        for x in range(1,4):
            I(f'v_xor_b32 v{V_TR+x}, {x<<5}, v{V_TR}')
    def ring_init(self, name, nsteps, pitch, slots):
        self.R=dict(name=name,n=nsteps,pitch=pitch,free=list(slots),slot={},iss=0,rd=0,rel=0,piece=0)
    def ring_add(self, slots): self.R['free']+=list(slots)
    def ring_issue_piece(self):
        R=self.R; I=self.I
        k=R['iss']
        if k>=R['n']: return False
        j=R['piece']
        if j==0:
            if not R['free']: return False
            R['slot'][k]=R['free'].pop(0)
        if j%2==0:
            I(f's_add_u32 m0, s{S_YB}, {SLOT_OFF[R["slot"][k]]+j*1024}')
            if k or j: I(f's_add_u32 s{S_WO}, s{S_WO}, {16*R["pitch"]}')
            else: I('s_nop 0')
        I(f'buffer_load_dwordx4 v{V_DMA[j%2]}, {srd(SRD_W)}, s{S_WO} offen offset:{(j%2)*1024} lds', tag=(R['name'],k))
        R['piece']=(j+1)%4
        if R['piece']==0: R['iss']+=1
        return True
    def ring_issue(self):
        while self.ring_issue_piece(): pass
    def ring_read(self):
        R=self.R; I=self.I
        k=R['rd']
        if k>=R['n']: return False
        assert k<R['iss'], 'read before issue'
        off=SLOT_OFF[R['slot'][k]]
        self.wait(vm=[(R['name'],k)])
        for x in range(4):
            b=16*k+4*x
            I(f'ds_read_b64_tr_b16 {ar(b,2)}, v{V_TR+x} offset:{off}', tag=(R['name'],'r',k))
            I(f'ds_read_b64_tr_b16 {ar(b+2,2)}, v{V_TR+x} offset:{off+2048}', tag=(R['name'],'r',k))
        R['rd']+=1
        return True
    def ring_release(self):
        R=self.R
        k=R['rel']
        if k>=R['rd']: return False
        self.wait(lg=[(R['name'],'r',k)])
        R['free'].append(R['slot'][k]); R['rel']+=1
        self.ring_issue()
        return True
    def ring_tick(self):
        R=self.R
        if R['iss']<R['n']:
            if R['piece']==0 and not R['free']:
                if R['rel']>=R['rd']:
                    assert R['rd']<R.get('maxrd',99)
                    self.ring_read()
                k=R['rel']; self.wait(lg=[(R['name'],'r',k)]); R['free'].append(R['slot'][k]); R['rel']+=1
            self.ring_issue_piece()
            if R['piece']==3 and not R['free'] and R['rd']==R['rel'] and R['rd']<R['iss'] and R['rd']<R.get('maxrd',99):
                self.ring_read()
            return True
        if R['rd']<R['n'] and R['rd']<R.get('maxrd',99): return self.ring_read()
        return False
    def bg(self):
        return self.ring_tick()
    def replay_ring(self, RA):
        R=self.R
        while (R['iss'],R['piece'])<(RA['iss'],RA['piece']) or R['rd']<RA['rd']:
            if (R['iss'],R['piece'])<(RA['iss'],RA['piece']):
                before=R['rd']
                R['maxrd']=RA['rd']
                self.ring_tick()
            else:
                self.ring_read()
        while R['rel']<RA['rel']:
            k=R['rel']; self.wait(lg=[(R['name'],'r',k)]); R['free'].append(R['slot'][k]); R['rel']+=1
        R['maxrd']=99
        for k in RA: assert RA[k]==R[k], (k,RA[k],R[k])
    def ring_finish(self):
        R=self.R; R['maxrd']=99
        while R['rd']<R['n'] or R['iss']<R['n']: self.ring_tick()
        R['rel']=R['n']; self.R=None

    def reduce(self, tmp, pre=None, post=None):
        I=self.I
        for e in (1,2,3):
            I(f's_xor_b32 s{S_T0}, s{S_W}, {e}'); I(f's_mul_i32 s{S_T0}, s{S_T0}, {3*4096}')
            I(f's_add_u32 s{S_T0}, s{S_T0}, {LDS_X+(e-1)*4096}')
            I(f'v_add_u32 v7, s{S_T0}, v{V_L16}')
            xh,yh=e>>1,e&1
            for xl in range(2):
                for yl in range(2):
                    a=V_ACC+16*(2*xh+xl)+4*(2*yh+yl)
                    I(f'ds_write_b128 v7, {vr(a,4)} offset:{(2*xl+yl)*1024}', tag='redw')
        if pre: pre()
        self.wait(lg='all'); I('s_barrier')
        if post: post()
        I(f's_mul_i32 s{S_T0}, s{S_W}, {3*4096}'); I(f'v_add_u32 v7, s{S_T0}, v{V_L16}')
        for e in range(3):
            for sub in range(4):
                I(f'ds_read_b128 {vr(tmp+16*e+4*sub,4)}, v7 offset:{LDS_X+e*4096+sub*1024}', tag=('red',e))
        for e in range(3):
            self.wait(lg=[('red',e)])
            for sub in range(4):
                a=V_ACC+16*(sub>>1)+4*(sub&1)
                for h in range(2):
                    I(f'v_pk_add_f32 v[{a+2*h}:{a+2*h+1}], v[{a+2*h}:{a+2*h+1}], v[{tmp+16*e+4*sub+2*h}:{tmp+16*e+4*sub+2*h+1}]')

    def prologue(self):
        I=self.I
        I('s_cmp_ge_u32 s2, 256'); I('s_cbranch_scc1 L_exit')
        I('s_load_dwordx16 s[4:19], s[0:1], 0')
        I('s_load_dwordx2 s[20:21], s[0:1], 64')
        I('s_load_dwordx8 s[24:31], s[0:1], 80')
        I('s_load_dwordx4 s[32:35], s[0:1], 112')
        I('s_load_dwordx2 s[36:37], s[0:1], 128')
        I('v_lshrrev_b32 v7, 6, v0'); I(f'v_and_b32 v{V_LANE}, 63, v0')
        I(f'v_readfirstlane_b32 s{S_W}, v7')
        I(f'v_lshlrev_b32 v{V_L16}, 4, v{V_LANE}')
        I(f's_mov_b32 s{S_MASK}, 0xffff0000'); I(f's_mov_b32 s{S_ONES}, 0x3f803f80')
        I('s_and_b32 s22, s2, 7')
        I('s_lshr_b32 s23, s2, 3')
        I('s_and_b32 s38, s22, 1')
        I('s_lshr_b32 s39, s22, 1')
        I(f's_lshr_b32 s{S_WH}, s{S_W}, 1'); I(f's_and_b32 s{S_WL}, s{S_W}, 1')
        I(f's_mul_i32 s{S_T0}, s23, 37'); I(f's_lshr_b32 s{S_T0}, s{S_T0}, 8')
        I(f's_mul_i32 s{S_T1}, s{S_T0}, 7'); I(f's_sub_u32 s{S_G}, s23, s{S_T1}')
        I(f's_mov_b32 s{S_DT1}, s{S_G}')
        I(f's_lshl_b32 s{S_T1}, s22, 2'); I(f's_add_u32 s{S_C}, s{S_T1}, s{S_T0}')
        I(f's_min_u32 s{S_C}, s{S_C}, 31')
        I(f's_mul_i32 s{S_T1}, s39, 7'); I(f's_lshl_b32 s{S_T2}, s38, 2'); I(f's_add_u32 s87, s{S_T1}, s{S_T2}')
        I(f's_add_u32 s{S_FT}, s87, s{S_T0}'); I(f's_min_u32 s{S_FT}, s{S_FT}, 27')
        I(f's_sub_u32 s{S_T1}, 4, s38'); I(f's_cmp_lt_u32 s{S_T0}, s{S_T1}'); I(f's_cselect_b32 s{S_HASG1}, 1, 0')
        I('s_cmp_lt_u32 s23, 28'); I('s_cselect_b32 s74, 1, 0')
        self.wait(lg='all')
        self.make_srd(SRD_X, P_X, 2048*896)
        self.x8_issue(2)
        I('s_getpc_b64 s[98:99]'); self.label('L_pc0')
        I(f's_sub_u32 s98, s98, L_pc0-{KN}'); I('s_subb_u32 s99, s99, 0')
        I(f's_and_b32 s{S_T0}, s23, 1'); I(f's_lshl_b32 s{S_T0}, s{S_T0}, 2'); I(f's_add_u32 s{S_T0}, s{S_T0}, s{S_W}')
        I(f's_lshl_b32 s{S_T0}, s{S_T0}, 13')
        I(f'v_lshlrev_b32 v9, 7, v{V_LANE}'); I(f'v_add_u32 v9, s{S_T0}, v9')
        I(f'v_min_u32 v9, L_code_end-{KN}-16, v9')
        I('global_load_dword v12, v9, s[98:99]', tag='pf')
        self.make_srd(SRD_WS, P_WS, 0x10000000)
        I(f's_mul_i32 s{S_YB}, s{S_W}, {YW}'); I(f's_add_u32 s{S_YB}, s{S_YB}, {LDS_Y}')
        I(f's_sub_u32 s{S_E}, s23, 28'); I(f's_lshl_b32 s{S_E}, s{S_E}, 3'); I(f's_add_u32 s{S_E}, s{S_E}, s22')
        I('s_mov_b32 s86, s23'); I('s_mov_b32 s95, s22')
        self.stamp('start'); self.cstamp('c0')

    def x8_issue(self, oct):
        I=self.I
        I(f's_lshr_b32 s75, s{oct}, 2'); I('s_lshl_b32 s75, s75, 5')
        I(f's_lshl_b32 s{S_T0}, s{S_WH}, 4'); I(f's_add_u32 s75, s75, s{S_T0}')
        I(f's_and_b32 s{S_T0}, s{oct}, 3'); I(f's_lshl_b32 s{S_T0}, s{S_T0}, 2'); I(f's_add_u32 s75, s75, s{S_T0}')
        I(f's_lshl_b32 s{S_T0}, s{S_WL}, 1'); I(f's_add_u32 s75, s75, s{S_T0}')
        I(f's_mul_i32 s{S_T2}, s75, 896')
        I(f'v_and_b32 v7, 31, v{V_LANE}'); I(f'v_lshrrev_b32 v8, 5, v{V_LANE}')
        I('v_mul_u32_u24 v8, 896, v8'); I('v_lshlrev_b32 v9, 5, v7'); I('v_add_u32 v8, v8, v9')
        I('v_mov_b32 v9, 0x7ffffff0'); I('v_cmp_gt_u32 vcc, 28, v7'); I('v_cndmask_b32 v8, v9, v8, vcc')
        I(f'buffer_load_dwordx4 {vr(V_T,4)}, v8, {srd(SRD_X)}, s{S_T2} offen', tag='x8')
        I(f'buffer_load_dwordx4 {vr(V_T+4,4)}, v8, {srd(SRD_X)}, s{S_T2} offen offset:16', tag='x8')
    def touches_pre(self):
        I=self.I
        self.make_srd(SRD_1, P_BRE, 448*896); self.make_srd(SRD_2, P_BIM, 448*896); self.make_srd(SRD_W, P_W1, 2048*3584)
        I(f'v_lshrrev_b32 v7, 3, v{V_LANE}'); I(f'v_and_b32 v8, 7, v{V_LANE}'); I('v_min_u32 v8, 6, v8')
        I('v_mul_u32_u24 v7, 896, v7'); I('v_lshlrev_b32 v8, 7, v8'); I('v_add_u32 v7, v7, v8')
        I(f's_lshl_b32 s{S_T3}, s86, 2'); I(f's_add_u32 s{S_T3}, s{S_T3}, s{S_W}')
        I(f's_lshl_b32 s{S_T0}, s95, 8'); I(f's_lshl_b32 s{S_T1}, s{S_T3}, 1'); I(f's_add_u32 s{S_T0}, s{S_T0}, s{S_T1}'); I(f's_mul_i32 s{S_T0}, s{S_T0}, 896')
        self.exec_set('0xffff','0')
        I(f'buffer_load_dword v12, v7, {srd(SRD_X)}, s{S_T0} offen', tag='touch')
        I(f's_and_b32 s{S_T0}, s{S_T3}, 63'); I(f's_mul_i32 s{S_T0}, s{S_T0}, {7*896}')
        I(f's_cmp_lt_u32 s{S_T3}, 64')
        I(f's_cselect_b32 s{SRD_OUT}, s{P_BRE}, s{P_BIM}'); I(f's_cselect_b32 s{SRD_OUT+1}, s{P_BRE+1}, s{P_BIM+1}')
        I(f's_mov_b32 s{SRD_OUT+2}, {448*896}'); I(f's_mov_b32 s{SRD_OUT+3}, 0x20000')
        self.exec_set('-1','0x00ffffff')
        I(f'buffer_load_dword v12, v7, {srd(SRD_OUT)}, s{S_T0} offen', tag='touch')
        self.exec_full()
    def touch_w1(self, setup_only=False):
        I=self.I
        I(f'v_lshrrev_b32 v7, 2, v{V_LANE}'); I(f'v_and_b32 v8, 3, v{V_LANE}')
        I(f's_and_b32 s{S_T1}, s95, 1'); I(f's_sub_u32 s{S_T1}, 3, s{S_T1}'); I(f'v_min_u32 v8, s{S_T1}, v8')
        I('v_mul_u32_u24 v7, 3584, v7'); I('v_lshlrev_b32 v8, 7, v8'); I('v_add_u32 v7, v7, v8')
        I(f's_lshl_b32 s{S_T0}, s{S_W}, 9'); I(f's_lshl_b32 s{S_T1}, s86, 4'); I(f's_add_u32 s{S_T0}, s{S_T0}, s{S_T1}')
        I(f's_mul_i32 s{S_T0}, s{S_T0}, 3584'); I(f's_lshl_b32 s{S_T1}, s87, 7'); I(f's_add_u32 s{S_T0}, s{S_T0}, s{S_T1}')
        if setup_only:
            I('v_mov_b32 v238, v7'); I(f's_mov_b32 s94, s{S_T0}'); return
        I(f'buffer_load_dword v12, v7, {srd(SRD_W)}, s{S_T0} offen', tag='touch')
    def touch_w1_split(self, rest):
        I=self.I
        I(f'v_lshrrev_b32 v7, 2, v{V_LANE}'); I(f'v_and_b32 v8, 3, v{V_LANE}')
        I(f's_and_b32 s{S_T1}, s95, 1'); I(f's_sub_u32 s{S_T1}, 3, s{S_T1}'); I(f'v_min_u32 v8, s{S_T1}, v8')
        I('v_mul_u32_u24 v7, 3584, v7'); I('v_lshlrev_b32 v8, 7, v8'); I('v_add_u32 v7, v7, v8')
        I(f's_lshl_b32 s{S_T0}, s{S_W}, 9')
        if not rest:
            I(f's_lshl_b32 s{S_T1}, s86, 3'); I(f's_add_u32 s{S_T0}, s{S_T0}, s{S_T1}')
        else:
            I(f's_sub_u32 s{S_T1}, s86, 28'); I(f's_lshl_b32 s{S_T1}, s{S_T1}, 4'); I(f's_add_u32 s{S_T0}, s{S_T0}, s{S_T1}'); I(f's_add_u32 s{S_T0}, s{S_T0}, 224')
        I(f's_mul_i32 s{S_T0}, s{S_T0}, 3584'); I(f's_lshl_b32 s{S_T1}, s87, 7'); I(f's_add_u32 s{S_T0}, s{S_T0}, s{S_T1}')
        if not rest:
            self.exec_set('-1','0')
            I(f'buffer_load_dword v12, v7, {srd(SRD_W)}, s{S_T0} offen', tag='touch')
            self.exec_full()
        else:
            for t in range(5):
                I(f'buffer_load_dword v12, v7, {srd(SRD_W)}, s{S_T0} offen', tag='touch')
                if t<4: I(f's_add_u32 s{S_T0}, s{S_T0}, {64*3584}')
    def touch_w1_wg(self):
        I=self.I
        I(f'v_lshrrev_b32 v7, 2, v{V_LANE}'); I(f'v_and_b32 v8, 3, v{V_LANE}')
        I(f's_and_b32 s{S_T1}, s95, 1'); I(f's_sub_u32 s{S_T1}, 3, s{S_T1}'); I(f'v_min_u32 v8, s{S_T1}, v8')
        I('v_mul_u32_u24 v7, 3584, v7'); I('v_lshlrev_b32 v8, 7, v8'); I('v_add_u32 v7, v7, v8')
        I(f's_lshl_b32 s{S_T0}, s86, 4'); I(f's_mul_i32 s{S_T0}, s{S_T0}, 3584'); I(f's_lshl_b32 s{S_T1}, s87, 7'); I(f's_add_u32 s{S_T0}, s{S_T0}, s{S_T1}')
        for q in range(4):
            I(f'buffer_load_dword v12, v7, {srd(SRD_W)}, s{S_T0} offen', tag='touch')
            if q<3: I(f's_add_u32 s{S_T0}, s{S_T0}, {512*3584}')
    def q_w3(self):
        I=self.I
        def xpair(p):
            def f():
                L=self.newlabel('xw3')
                I(f's_add_u32 s100, s{S_W}, {3*p}'); I('s_cmp_ge_u32 s100, 8'); I(f's_cbranch_scc1 {L}')
                snap=self.snapshot()
                I('s_lshl_b32 s101, s100, 4'); I(f'v_xor_b32 v238, s101, v{V_L16}')
                I('s_lshr_b32 s101, s100, 1'); I('s_lshl_b32 s101, s101, 4'); I('s_and_b32 s100, s100, 1'); I('s_lshl_b32 s100, s100, 1')
                I('s_add_u32 s100, s100, s101'); I('s_add_u32 s100, s100, 12'); I('s_mul_i32 s100, s100, 896')
                I(f's_lshl_b32 s101, s{S_C}, 6'); I('s_mul_i32 s101, s101, 896'); I('s_add_u32 s101, s101, s100')
                I('s_mov_b32 exec_hi, 0x00ffffff')
                I(f's_add_u32 m0, s100, {LDS_X}'); I('s_nop 0')
                I(f'buffer_load_dwordx4 v238, {srd(SRD_X)}, s101 offen lds', tag='x64')
                I(f's_add_u32 m0, s100, {LDS_X+896}'); I('s_add_u32 s101, s101, 896')
                I(f'buffer_load_dwordx4 v238, {srd(SRD_X)}, s101 offen lds', tag='x64')
                I('s_mov_b32 exec_hi, -1')
                self.label(L); self.merge(snap); self.vm['x64']=0
            return f
        def bblock(p):
            def f():
                L=self.newlabel('bw3'); Li=self.newlabel('bw3i')
                I(f's_add_u32 s100, s{S_W}, {3*p}'); I('s_cmp_ge_u32 s100, 8'); I(f's_cbranch_scc1 {L}')
                snap=self.snapshot()
                I('s_and_b32 s101, s100, 3'); I('s_sub_u32 s91, 0, s101'); I('s_and_b32 s91, s91, 3'); I('s_lshl_b32 s91, s91, 4')
                I(f'v_xor_b32 v238, s91, v{V_L16}')
                I('s_bitcmp1_b32 s100, 2')
                I(f's_cselect_b32 s{SRD_OUT}, s{P_BIM}, s{P_BRE}'); I(f's_cselect_b32 s{SRD_OUT+1}, s{P_BIM+1}, s{P_BRE+1}')
                I('s_cselect_b32 s100, 13312, 0')
                I('s_mul_i32 s91, s101, 3328'); I('s_add_u32 s100, s100, s91'); I(f's_add_u32 s100, s100, {LDS_Y+3*YW}')
                I('s_mul_i32 s101, s101, 3584')
                I(f's_lshl_b32 s91, s{S_G}, 6'); I('s_add_u32 s91, s91, 48'); I('s_mul_i32 s91, s91, 896'); I('s_add_u32 s101, s101, s91')
                I('s_mov_b32 exec_hi, 0x000fffff')
                for r in range(4):
                    I(f's_add_u32 m0, s100, {r*832}')
                    if r: I('s_add_u32 s101, s101, 896')
                    else: I('s_nop 0')
                    I(f'buffer_load_dwordx4 v238, {srd(SRD_OUT)}, s101 offen lds', tag='bdma')
                I('s_mov_b32 exec_hi, -1')
                self.label(L); self.merge(snap); self.vm['bdma']=0
            return f
        return [xpair(p) for p in range(3)], [bblock(p) for p in range(3)]
    def dma_setup(self):
        I=self.I
        for n,h in enumerate((0,3,2,1)): I(f'v_xor_b32 v{224+n}, {h<<4}, v{V_L16}')
        for g in range(8): I(f'v_xor_b32 v{228+g}, {g<<4}, v{V_L16}')
        I(f's_lshl_b32 s{S_T0}, s{S_G}, 6'); I(f's_lshl_b32 s{S_T1}, s{S_W}, 4'); I(f's_add_u32 s88, s{S_T0}, s{S_T1}')
        I('s_mul_i32 s89, s88, 896')
        I(f's_lshl_b32 s{S_T0}, s{S_C}, 6'); I(f's_lshl_b32 s{S_T1}, s{S_W}, 2'); I(f's_add_u32 s{S_T0}, s{S_T0}, s{S_T1}')
        I(f's_mul_i32 s92, s{S_T0}, 896')
        I(f's_mul_i32 s93, s{S_W}, 3584')
        I(f'v_and_b32 v7, 15, v{V_LANE}'); I('v_mul_u32_u24 v236, 896, v7'); I(f'v_lshrrev_b32 v9, 4, v{V_LANE}'); I('v_lshlrev_b32 v9, 4, v9')
        I('v_add_u32 v236, v236, v9')
        I('v_add_u32 v237, s88, v7'); I('v_lshlrev_b32 v237, 1, v237')
    def q_b(self):
        I=self.I
        def row(im,n):
            def f():
                I('s_mov_b32 exec_hi, 0x000fffff')
                I(f's_add_u32 m0, s{S_YB}, {im*13312+n*832}')
                I(f's_add_u32 s91, s89, {n*896}')
                I(f'buffer_load_dwordx4 v{224+(n>>2)}, {srd(SRD_1 if im==0 else SRD_2)}, s91 offen lds', tag='bdma'); self.nb+=1
                I('s_mov_b32 exec_hi, -1')
            return f
        for im in range(2):
            for n in range(16): self.q.append(row(im,n))
        def b13(srdn,dst):
            def f():
                I(f'buffer_load_dwordx4 {vr(dst,4)}, v236, {srd(srdn)}, s89 offen offset:832', tag='b13'); self.nb+=1
            return f
        if self.opt.w1touch=='W':
            self.b13_loads=lambda: (b13(SRD_1,V_BF+52)(), b13(SRD_2,V_BF+56+52)())
        else:
            self.q.append(b13(SRD_1,V_BF+52)); self.q.append(b13(SRD_2,V_BF+56+52))
        def lam():
            I(f'global_load_ushort v{V_IN}, v237, {sp(P_LRE)}', tag='lam')
            I(f'global_load_ushort v{V_IN+1}, v237, {sp(P_LIM)}', tag='lam')
            I(f'global_load_ushort v{V_IN+2}, v237, {sp(P_LDT)}', tag='lam')
        self.q.insert(0,lam)
    def q_x(self, alist):
        I=self.I
        def row(a,b):
            def f():
                g=2*a+(b>>1); d=(16*a+b)*896
                I('s_mov_b32 exec_hi, 0x00ffffff')
                I(f's_add_u32 m0, s93, {LDS_X+d}')
                I(f's_add_u32 s91, s92, {d}')
                I(f'buffer_load_dwordx4 v{228+g}, {srd(SRD_X)}, s91 offen lds', tag='x64'); self.nx+=1
                I('s_mov_b32 exec_hi, -1')
            return f
        for a in alist:
            for b in range(4): self.q.append(row(a,b))
    def b_read(self):
        I=self.I
        I(f'v_and_b32 v7, 15, v{V_LANE}'); I(f'v_lshrrev_b32 v8, 4, v{V_LANE}'); I('v_lshrrev_b32 v9, 2, v7')
        I('v_sub_u32 v9, 0, v9'); I('v_and_b32 v9, 3, v9'); I('v_xor_b32 v8, v8, v9')
        I('v_lshlrev_b32 v8, 4, v8'); I('v_mul_u32_u24 v7, 832, v7'); I('v_add_u32 v7, v7, v8'); I(f'v_add_u32 v7, s{S_YB}, v7')
        if self.opt.w1touch!='W': self.wait(vm=['bdma'])
        for im in range(2):
            for j in range(13):
                I(f'ds_read_b128 {vr(V_BF+56*im+4*j,4)}, v7 offset:{im*13312+j*64}', tag='brd')
    def touch_pf(self, which):
        I=self.I
        if which==1: pitch,nrow,nt,srdn=3584,512,8,SRD_W
        else:
            pitch,nrow,nt,srdn=4096,448,7,SRD_OUT
            self.make_srd(SRD_OUT, P_W2, 1792*4096)
        I(f'v_lshrrev_b32 v7, 2, v{V_LANE}'); I(f'v_and_b32 v8, 3, v{V_LANE}')
        if which==1:
            I(f's_and_b32 s{S_T1}, s95, 1'); I(f's_sub_u32 s{S_T1}, 3, s{S_T1}'); I(f'v_min_u32 v8, s{S_T1}, v8')
        I(f'v_mul_u32_u24 v7, {pitch}, v7'); I('v_lshlrev_b32 v8, 7, v8'); I('v_add_u32 v7, v7, v8')
        I(f's_mul_i32 s{S_T0}, s{S_W}, {nrow}'); I(f's_sub_u32 s{S_T1}, s86, 28'); I(f's_lshl_b32 s{S_T1}, s{S_T1}, 4'); I(f's_add_u32 s{S_T0}, s{S_T0}, s{S_T1}')
        I(f's_mul_i32 s{S_T0}, s{S_T0}, {pitch}')
        if which==1: I(f's_lshl_b32 s{S_T1}, s87, 7')
        else: I(f's_lshl_b32 s{S_T1}, s95, 9')
        I(f's_add_u32 s{S_T0}, s{S_T0}, s{S_T1}')
        for t in range(nt):
            I(f'buffer_load_dword v12, v7, {srd(srdn)}, s{S_T0} offen', tag='touch2')
            if t<nt-1: I(f's_add_u32 s{S_T0}, s{S_T0}, {64*pitch}')
    def ln8(self, oct=2, clears=True):
        I=self.I
        D=list(range(V_T,V_T+8)); SUM,SSQ,S2,Q2=24,25,26,27; R,C=28,30; TM=[32,34,36,38]
        self.wait(vm=['x8'])
        def reduce32():
            for rot in (8,4,2,1):
                I(f'v_add_f32_dpp v{SUM}, v{SUM}, v{SUM} row_ror:{rot} row_mask:0xf bank_mask:0xf')
                I(f'v_add_f32_dpp v{SSQ}, v{SSQ}, v{SSQ} row_ror:{rot} row_mask:0xf bank_mask:0xf')
            I(f'v_mov_b32 v{S2}, v{SUM}'); I(f'v_mov_b32 v{Q2}, v{SSQ}')
            I(f'v_permlane16_swap_b32 v{SUM}, v{S2}'); I(f'v_permlane16_swap_b32 v{SSQ}, v{Q2}')
            I(f'v_add_f32 v{SUM}, v{SUM}, v{S2}'); I(f'v_add_f32 v{SSQ}, v{SSQ}, v{Q2}')
        self.dot_sums(D,[SUM,SSQ,S2,Q2]); reduce32()
        self.ln_stats(SUM,SSQ,R,C,None)
        I(f'v_mov_b32 v10, v{SUM}'); I(f'v_mov_b32 v11, v{R}')
        I(f'v_lshrrev_b32 v8, 5, v{V_LANE}'); I('v_lshlrev_b32 v8, 2, v8')
        I(f's_lshl_b32 s{S_T0}, s75, 2'); I(f's_add_u32 s{S_T0}, s{S_T0}, {WS_STAT}'); I(f's_add_u32 s{S_T1}, s{S_T0}, 8192')
        self.exec_set(1,1)
        I(f'buffer_store_dword v10, v8, {srd(SRD_WS)}, s{S_T0} offen sc1', tag='st0')
        I(f'buffer_store_dword v11, v8, {srd(SRD_WS)}, s{S_T1} offen sc1', tag='st0')
        self.exec_full()
        if clears and self.opt.w1touch=='W' and not self.opt.notouch3:
            Lt=self.newlabel('notouch')
            I(f's_cmp_lg_u32 s{S_W}, 3'); I(f's_cbranch_scc1 {Lt}')
            snap=self.snapshot()
            self.touch_w1_wg()
            self.label(Lt); self.merge(snap)
        I(f'v_and_b32 v7, 31, v{V_LANE}'); I('v_cmp_gt_u32 vcc, 28, v7')
        I(f'v_cndmask_b32 v{R}, 0, v{R}, vcc'); I(f'v_cndmask_b32 v{C}, 0, v{C}, vcc')
        self.normalize(D,R,C,TM)
        self.dot_sums(D,[SUM,SSQ,S2,Q2]); reduce32()
        self.ln_stats(SUM,SSQ,R,C,None)
        self.normalize(D,R,C,TM)
        self.auto=0
        I(f'v_lshrrev_b32 v8, 5, v{V_LANE}'); I(f's_lshl_b32 s{S_T0}, s{S_W}, 1'); I(f'v_add_u32 v8, s{S_T0}, v8')
        I('v_mul_u32_u24 v8, 960, v8'); I('v_lshlrev_b32 v9, 5, v7'); I('v_add_u32 v8, v8, v9'); I(f'v_add_u32 v8, {LDS_LN8}, v8')
        self.exec_set('0x0fffffff','0x0fffffff')
        I(f'ds_write_b128 v8, {vr(V_T,4)} offset:0'); I(f'ds_write_b128 v8, {vr(V_T+4,4)} offset:16')
        self.exec_full()
        self.wait(lg='all'); I('s_barrier')
        I(f'v_and_b32 v7, 15, v{V_LANE}'); I('v_lshrrev_b32 v8, 2, v7'); I('v_mul_u32_u24 v8, 960, v8')
        I(f'v_lshrrev_b32 v9, 4, v{V_LANE}'); I('v_lshlrev_b32 v10, 5, v9'); I('v_add_u32 v8, v8, v10')
        I(f'v_and_b32 v10, 3, v{V_LANE}'); I('v_lshlrev_b32 v10, 3, v10'); I('v_add_u32 v8, v8, v10')
        I(f's_lshl_b32 s{S_T0}, s{S_W}, 7'); I(f's_add_u32 s{S_T0}, s{S_T0}, {LDS_LN8}'); I(f'v_add_u32 v8, s{S_T0}, v8')
        I('v_lshlrev_b32 v9, 10, v9'); I('v_lshlrev_b32 v7, 4, v7'); I('v_add_u32 v9, v9, v7')
        I(f's_lshr_b32 s{S_T0}, s{oct}, 2'); I(f's_lshl_b32 s{S_T0}, s{S_T0}, 12')
        I(f's_and_b32 s{S_T1}, s{oct}, 3'); I(f's_lshl_b32 s{S_T1}, s{S_T1}, 8'); I(f's_add_u32 s{S_T0}, s{S_T0}, s{S_T1}')
        I(f's_lshl_b32 s{S_T1}, s{S_W}, 18'); I(f's_add_u32 s{S_T0}, s{S_T0}, s{S_T1}')
        if self.opt.w1touch=='W':
            Lno=self.newlabel('ln8none'); L6=self.newlabel('ln8no6')
            I(f's_cmp_eq_u32 s{S_W}, 3'); I(f's_cbranch_scc1 {Lno}')
            snap=self.snapshot()
            for i in range(2):
                I(f'ds_read_b64_tr_b16 v[{16+4*i}:{17+4*i}], v8 offset:{384*i}', tag='t0')
                I(f'ds_read_b64_tr_b16 v[{18+4*i}:{19+4*i}], v8 offset:{384*i+3840}', tag='t0')
            I(f's_add_u32 s{S_T1}, s{S_T0}, {3*262144}')
            self.wait(lg='all')
            I(f'buffer_store_dwordx4 v[16:19], v9, {srd(SRD_WS)}, s{S_T0} offen sc1', tag='st0')
            I(f'buffer_store_dwordx4 v[20:23], v9, {srd(SRD_WS)}, s{S_T1} offen sc1', tag='st0')
            I(f's_cmp_lg_u32 s{S_W}, 0'); I(f's_cbranch_scc1 {L6}')
            I(f'ds_read_b64_tr_b16 v[24:25], v8 offset:768', tag='t0')
            I(f'ds_read_b64_tr_b16 v[26:27], v8 offset:{768+3840}', tag='t0')
            I(f's_add_u32 s{S_T1}, s{S_T0}, {6*262144}')
            self.wait(lg='all')
            I(f'buffer_store_dwordx4 v[24:27], v9, {srd(SRD_WS)}, s{S_T1} offen sc1', tag='st0')
            self.label(L6)
            self.label(Lno); self.merge(snap); self.vm['st0']=0
        else:
            I(f'ds_read_b64_tr_b16 v[16:17], v8 offset:0', tag='t0')
            I(f'ds_read_b64_tr_b16 v[18:19], v8 offset:3840', tag='t0')
            Lskip=self.newlabel('ln8skip')
            I(f's_cmp_eq_u32 s{S_W}, 3'); I(f's_cbranch_scc1 {Lskip}')
            snap=self.snapshot()
            I(f'ds_read_b64_tr_b16 v[20:21], v8 offset:512', tag='t1')
            I(f'ds_read_b64_tr_b16 v[22:23], v8 offset:{512+3840}', tag='t1')
            I(f's_add_u32 s{S_T1}, s{S_T0}, {4*262144}')
            self.wait(lg='all')
            I(f'buffer_store_dwordx4 v[20:23], v9, {srd(SRD_WS)}, s{S_T1} offen sc1', tag='st0')
            self.label(Lskip); self.merge(snap)
            self.wait(lg='all')
            I(f'buffer_store_dwordx4 v[16:19], v9, {srd(SRD_WS)}, s{S_T0} offen sc1', tag='st0')
        if not clears:
            I('s_barrier'); return
        Ln=self.newlabel('noclr')
        I(f's_cmp_lg_u32 s{S_W}, {1 if self.opt.w1touch=="W" else 3}'); I(f's_cbranch_scc1 {Ln}')
        snap=self.snapshot()
        I('v_mov_b32 v8, 0')
        I('v_mov_b32 v10, -1'); I('v_mov_b32 v11, -1'); I(f'v_lshlrev_b32 v9, 3, v{V_LANE}')
        I(f's_lshl_b32 s{S_T0}, s{S_G}, 5'); I(f's_add_u32 s{S_T0}, s{S_T0}, s{S_C}'); I(f's_lshl_b32 s{S_T0}, s{S_T0}, 9')
        I(f's_add_u32 s{S_T0}, s{S_T0}, {WS_E}')
        I(f'buffer_store_dwordx2 v[10:11], v9, {srd(SRD_WS)}, s{S_T0} offen sc1', tag='st0')
        I(f's_mul_i32 s{S_T0}, s{S_C}, 7'); I(f's_add_u32 s{S_T0}, s{S_T0}, s{S_G}'); I(f's_lshl_b32 s{S_T0}, s{S_T0}, 6')
        I(f's_add_u32 s{S_T0}, s{S_T0}, {WS_FH}')
        I('v_mov_b32 v10, 0')
        self.exec_set(1,0)
        I(f'buffer_store_dword v10, v8, {srd(SRD_WS)}, s{S_T0} offen sc1', tag='st0')
        Lg=self.newlabel('nog1clr'); Lc=self.newlabel('nocclr')
        I(f's_cmp_eq_u32 s{S_HASG1}, 0'); I(f's_cbranch_scc1 {Lg}')
        I(f's_mul_i32 s{S_T0}, s{S_DT1}, 28'); I(f's_add_u32 s{S_T0}, s{S_T0}, s{S_FT}'); I(f's_lshl_b32 s{S_T0}, s{S_T0}, 6')
        I(f's_add_u32 s{S_T0}, s{S_T0}, {WS_FG}')
        I(f'buffer_store_dword v10, v8, {srd(SRD_WS)}, s{S_T0} offen sc1', tag='st0')
        self.label(Lg)
        I('s_cmp_lg_u32 s95, 0'); I(f's_cbranch_scc1 {Lc}')
        I(f's_lshl_b32 s{S_T0}, s86, 6'); I(f's_add_u32 s{S_T0}, s{S_T0}, {WS_FC}')
        I(f'buffer_store_dword v10, v8, {srd(SRD_WS)}, s{S_T0} offen sc1', tag='st0')
        self.label(Lc)
        self.exec_full()
        self.label(Ln); self.merge(snap); self.vm['st0']=0
        I('s_barrier')

    def ln8_extra(self):
        I=self.I
        L=self.newlabel('noextra'); Lp=self.newlabel('extra')
        I(f's_cmp_lg_u32 s{S_HASG1}, 0'); I(f's_cbranch_scc1 {L}')
        snap=self.snapshot()
        I('s_lshr_b32 s3, s95, 1'); I('s_mul_i32 s3, s3, 7'); I('s_add_u32 s3, s3, s86'); I('s_add_u32 s3, s3, 203')
        self.label(Lp)
        self.x8_issue(3)
        I('s_waitcnt vmcnt(0)'); self.vm={}; self.vm['x8']=0
        self.ln8(oct=3, clears=False)
        I('s_add_u32 s3, s3, 28'); I('s_cmp_lt_u32 s3, 256'); I(f's_cbranch_scc1 {Lp}')
        I('s_waitcnt vmcnt(0)')
        self.label(L); self.restore(snap); self.vm['st0']=min(self.vm.get('st0',0),0)

    def arrive0(self):
        I=self.I
        self.wait(vm=['st0']); I('s_barrier')
        L=self.newlabel('arr')
        I(f's_cmp_lg_u32 s{S_W}, 0'); I(f's_cbranch_scc1 {L}')
        snap=self.snapshot()
        I('s_and_b32 s3, s2, 3'); I('s_lshl_b32 s3, s3, 6'); I('v_mov_b32 v8, s3'); I('v_mov_b32 v9, 1')
        self.exec_set(1,0)
        I(f'global_atomic_add v8, v9, {sp(P_DBG)} sc1')
        self.exec_full()
        self.label(L); self.merge(snap)

    def w1_setup(self):
        I=self.I
        self.ring_setup(3584, S_WH)
        I(f's_mul_i32 s{S_WBEG}, s{S_W}, {512*3584}'); I(f's_lshl_b32 s{S_T0}, s{S_FT}, 7'); I(f's_add_u32 s{S_WBEG}, s{S_WBEG}, s{S_T0}')
        I(f's_mov_b32 s{S_WO}, s{S_WBEG}')

    def lam_consts(self):
        I=self.I
        LRE,LIM,LDT=V_IN,V_IN+1,V_IN+2
        t=list(range(16,40))
        self.wait(vm=['lam'])
        for r in (LRE,LIM,LDT): I(f'v_lshlrev_b32 v{r}, 16, v{r}')
        I(f'v_mul_f32 v{LDT}, 0x3fb8aa3b, v{LDT}'); I(f'v_exp_f32 v{LDT}, v{LDT}')
        self.rnd_bf16(LDT)
        I(f'v_mul_f32 v16, v{LDT}, v{LRE}'); I(f'v_mul_f32 v17, v{LDT}, v{LIM}')
        I('v_mul_f32 v16, 0x3fb8aa3b, v16'); I('v_mul_f32 v17, 0.15915494, v17')
        I('v_exp_f32 v16, v16'); I('v_fract_f32 v17, v17')
        I('v_cos_f32 v18, v17'); I('v_sin_f32 v19, v17')
        I(f'v_mul_f32 v{V_LR}, v16, v18'); I(f'v_mul_f32 v{V_LI}, v16, v19')
        I(f'v_add_f32 v16, -1.0, v{V_LR}')
        I(f'v_mul_f32 v17, v{LRE}, v{LRE}'); I(f'v_fma_f32 v17, v{LIM}, v{LIM}, v17'); I('v_rcp_f32 v17, v17')
        I(f'v_mul_f32 v18, v16, v{LRE}'); I(f'v_fma_f32 v18, v{V_LI}, v{LIM}, v18')
        I(f'v_mul_f32 v19, v16, v{LIM}'); I(f'v_fma_f32 v19, v{V_LI}, v{LRE}, -v19')
        I('v_add_f32 v17, v17, v17')
        I(f'v_mul_f32 v{V_K1}, v18, v17'); I(f'v_mul_f32 v{V_K2}, v19, v17'); I(f'v_sub_f32 v{V_K2}, 0, v{V_K2}')
        self.csq(16,17,V_LR,V_LI,30); self.csq(18,19,16,17,30); self.csq(16,17,18,19,30); self.csq(20,21,16,17,30)
        self.csq(22,23,20,21,30)
        self.cmul(24,25,22,23,20,21,30,31)
        self.csq(V_L64R,V_L64I,22,23,30)
        self.csq(16,17,V_L64R,V_L64I,30); self.csq(18,19,16,17,30); self.csq(V_L512R,V_L512I,18,19,30)
        I(f'v_mov_b32 v{V_PR}, 1.0'); I(f'v_mov_b32 v{V_PI}, 0')
        for (lo,hi,r) in (('0xffff0000','-1',20),('0','-1',22),('0','0xffff0000',24)):
            self.exec_set(lo,hi); I(f'v_mov_b32 v{V_PR}, v{r}'); I(f'v_mov_b32 v{V_PI}, v{r+1}')
        self.exec_full()
        I(f'v_mov_b32 v{V_IN}, v20'); I(f'v_mov_b32 v{V_IN+1}, v21')

    def x_addr(self):
        I=self.I
        I(f'v_and_b32 v7, 15, v{V_LANE}'); I('v_lshrrev_b32 v8, 2, v7'); I('v_lshlrev_b32 v8, 4, v8')
        I('v_and_b32 v9, 3, v7'); I('v_add_u32 v8, v8, v9'); I('v_mul_u32_u24 v8, 896, v8')
        I(f'v_lshrrev_b32 v9, 4, v{V_LANE}'); I('v_lshrrev_b32 v7, 1, v7'); I('v_xor_b32 v9, v9, v7'); I('v_lshlrev_b32 v9, 4, v9')
        I('v_add_u32 v14, v8, v9'); I('v_xor_b32 v15, 64, v14')
    def ln64(self):
        I=self.I
        D=list(range(V_X64,V_X64+56)); SUM,SSQ,S2,Q2=24,25,26,27; R,C=28,30; TM=[32,34,36,38]
        I(f's_mul_i32 s{S_T0}, s{S_W}, 3584'); I(f'v_add_u32 v22, s{S_T0}, v14'); I(f'v_add_u32 v23, s{S_T0}, v15')
        self.allow_bread=True
        while self.nx<16: self.tick()
        if self.opt.w1touch!='W': self.wait(vm=['x64'])
        for j in range(14):
            I(f'ds_read_b128 {vr(V_X64+4*j,4)}, v{22+(j&1)} offset:{LDS_X+(j>>1)*128}', tag=('xr',j))
        accs=[SUM,SSQ,S2,Q2]
        for n,d in enumerate(D):
            if n%4==0: self.wait(lg=[('xr',n//4)])
            sa,qa = accs[2*(n&1)], accs[2*(n&1)+1]
            if n<2:
                I(f'v_dot2_f32_bf16 v{sa}, v{d}, s{S_ONES}, 0'); I(f'v_dot2_f32_bf16 v{qa}, v{d}, v{d}, 0')
            else:
                I(f'v_dot2_f32_bf16 v{sa}, v{d}, s{S_ONES}, v{sa}'); I(f'v_dot2_f32_bf16 v{qa}, v{d}, v{d}, v{qa}')
        I(f'v_add_f32 v{SUM}, v{SUM}, v{S2}'); I(f'v_add_f32 v{SSQ}, v{SSQ}, v{Q2}')
        for sw in ('16','32'):
            I(f'v_mov_b32 v{S2}, v{SUM}'); I(f'v_mov_b32 v{Q2}, v{SSQ}')
            I(f'v_permlane{sw}_swap_b32 v{SUM}, v{S2}'); I(f'v_permlane{sw}_swap_b32 v{SSQ}, v{Q2}')
            I(f'v_add_f32 v{SUM}, v{SUM}, v{S2}'); I(f'v_add_f32 v{SSQ}, v{SSQ}, v{Q2}')
        self.stamp('dots',fine=True)
        self.ln_stats(SUM,SSQ,R,C,None)
        self.allow_bread=True
        def h(n):
            I(f'ds_write_b128 v{22+(n&1)}, {vr(V_X64+4*n,4)} offset:{LDS_X+(n>>1)*128}', tag='xw')
        self.normalize(D,R,C,TM,hook=h)

    def row_stats(self):
        I=self.I
        D=list(range(V_X64,V_X64+56)); SUM,SSQ,S2,Q2=24,25,26,27; R,C=28,30
        I(f's_mul_i32 s{S_T0}, s{S_W}, 3584'); I(f'v_add_u32 v22, s{S_T0}, v14'); I(f'v_add_u32 v23, s{S_T0}, v15')
        for j in range(14):
            I(f'ds_read_b128 {vr(V_X64+4*j,4)}, v{22+(j&1)} offset:{LDS_X+(j>>1)*128}', tag=('xr',j))
        accs=[SUM,SSQ,S2,Q2]
        for n,d in enumerate(D):
            if n%4==0: self.wait(lg=[('xr',n//4)])
            sa,qa = accs[2*(n&1)], accs[2*(n&1)+1]
            if n<2:
                I(f'v_dot2_f32_bf16 v{sa}, v{d}, s{S_ONES}, 0'); I(f'v_dot2_f32_bf16 v{qa}, v{d}, v{d}, 0')
            else:
                I(f'v_dot2_f32_bf16 v{sa}, v{d}, s{S_ONES}, v{sa}'); I(f'v_dot2_f32_bf16 v{qa}, v{d}, v{d}, v{qa}')
        I(f'v_add_f32 v{SUM}, v{SUM}, v{S2}'); I(f'v_add_f32 v{SSQ}, v{SSQ}, v{Q2}')
        for sw in ('16','32'):
            I(f'v_mov_b32 v{S2}, v{SUM}'); I(f'v_mov_b32 v{Q2}, v{SSQ}')
            I(f'v_permlane{sw}_swap_b32 v{SUM}, v{S2}'); I(f'v_permlane{sw}_swap_b32 v{SSQ}, v{Q2}')
            I(f'v_add_f32 v{SUM}, v{SUM}, v{S2}'); I(f'v_add_f32 v{SSQ}, v{SSQ}, v{Q2}')
        self.ln_stats(SUM,SSQ,R,C,None)
        I(f'v_and_b32 v8, 15, v{V_LANE}'); I('v_lshlrev_b32 v8, 2, v8'); I(f's_add_u32 s{S_T0}, s{S_YB}, 24576'); I(f'v_add_u32 v8, s{S_T0}, v8')
        self.exec_set('0xffff','0')
        I(f'ds_write_b32 v8, v{SUM}', tag='stw'); I(f'ds_write_b32 v8, v{R} offset:64', tag='stw')
        self.exec_full()
    def stat_reads(self):
        I=self.I
        self.wait(lg=['stw']); I('s_barrier')
        I(f'v_lshrrev_b32 v8, 4, v{V_LANE}'); I('v_lshlrev_b32 v8, 4, v8'); I(f'v_add_u32 v8, {LDS_Y+24576}, v8'); I(f'v_add_u32 v9, {2*YW}, v8')
        for i in range(4):
            I(f'ds_read_b128 {vr(16+4*i,4)}, v{8+(i>>1)} offset:{(i&1)*YW}', tag='stat')
            I(f'ds_read_b128 {vr(88+4*i,4)}, v{8+(i>>1)} offset:{(i&1)*YW+64}', tag='stat')
    def bu_gemm(self):
        I=self.I
        BUF=[V_X64, V_X64+16]
        for r in range(4): I(f'v_mov_b32 v{36+r}, s{S_ONES}')
        def rd(j):
            for i in range(4):
                I(f'ds_read_b128 {vr(BUF[j%2]+4*i,4)}, v{14+(j&1)} offset:{LDS_X+i*3584+(j>>1)*128}', tag=('xa',j))
        rd(0); rd(1)
        for j in range(14):
            self.wait(lg=[('xa',j)])
            for im in range(2):
                d=104+4*im
                I(f'v_mfma_f32_16x16x32_bf16 {vr(d,4)}, v[36:39], {vr(V_BF+56*im+4*j,4)}, {vr(d,4) if j else 0}')
            for i in range(4):
                for im in range(2):
                    d=V_RAW+16*im+4*i
                    cin = vr(d,4) if j else '0'
                    I(f'v_mfma_f32_16x16x32_bf16 {vr(d,4)}, {vr(BUF[j%2]+4*i,4)}, {vr(V_BF+56*im+4*j,4)}, {cin}')
            if j+2<14: rd(j+2)
            if j==12:
                sv=self.auto; self.auto=0
                self.stat_reads(); self.auto=sv
    def stat_loads(self):
        I=self.I
        I(f'v_lshrrev_b32 v8, 4, v{V_LANE}'); I('v_lshlrev_b32 v8, 6, v8')
        I(f's_lshl_b32 s{S_T0}, s{S_C}, 8'); I(f's_add_u32 s{S_T0}, s{S_T0}, {WS_STAT}'); I(f's_add_u32 s{S_T1}, s{S_T0}, 8192')
        for n in range(4):
            I(f'buffer_load_dwordx4 {vr(16+4*n,4)}, v8, {srd(SRD_WS)}, s{S_T0} offen offset:{16*n} sc1', tag='stat')
            I(f'buffer_load_dwordx4 {vr(88+4*n,4)}, v8, {srd(SRD_WS)}, s{S_T1} offen offset:{16*n} sc1', tag='stat')
    def ln_fix(self):
        I=self.I
        self.wait(lg=['stat'])
        for im in range(2):
            sb=104+4*im
            for t in range(0,16,2):
                r=V_RAW+16*im+t
                I(f'v_pk_fma_f32 v[{r}:{r+1}], v[{16+t}:{17+t}], v[{sb}:{sb+1}], v[{r}:{r+1}] neg_lo:[1,0,0] neg_hi:[1,0,0]')
            for t in range(0,16,2):
                r=V_RAW+16*im+t
                I(f'v_pk_mul_f32 v[{r}:{r+1}], v[{r}:{r+1}], v[{88+t}:{89+t}]')

    def scan1(self):
        I=self.I
        ER,EI,T0,T1=16,17,18,19
        L16R,L16I=V_IN,V_IN+1
        I(f'v_mov_b32 v{ER}, v{V_RAW}'); I(f'v_mov_b32 v{EI}, v{V_RAW+16}')
        for t in range(1,16):
            I(f'v_fma_f32 v{T0}, v{V_LR}, v{ER}, v{V_RAW+t}')
            I(f'v_fma_f32 v{T1}, v{V_LR}, v{EI}, v{V_RAW+16+t}')
            I(f'v_fma_f32 v{T0}, -v{V_LI}, v{EI}, v{T0}')
            I(f'v_fma_f32 v{EI}, v{V_LI}, v{ER}, v{T1}')
            ER,T0=T0,ER
        GR=[20,21,22,23]; GI=[24,25,26,27]
        self.allgather_q(ER,*GR); self.allgather_q(EI,*GI)
        for q in range(1,4):
            self.cfma(GR[q],GI[q],L16R,L16I,GR[q-1],GI[q-1],GR[q],GI[q],28,29)
        I(f'v_mov_b32 v{V_SR}, 0'); I(f'v_mov_b32 v{V_SI}, 0')
        for n,(lo,hi) in enumerate((('0xffff0000','-1'),('0','-1'),('0','0xffff0000'))):
            self.exec_set(lo,hi); I(f'v_mov_b32 v{V_SR}, v{GR[n]}'); I(f'v_mov_b32 v{V_SI}, v{GI[n]}')
        self.exec_full()
        I(f'v_mov_b32 v10, v{GR[3]}'); I(f'v_mov_b32 v11, v{GI[3]}')
        I(f'v_lshlrev_b32 v8, 3, v{V_LANE}')
        I(f's_lshl_b32 s{S_T0}, s{S_G}, 5'); I(f's_add_u32 s{S_T0}, s{S_T0}, s{S_C}'); I(f's_lshl_b32 s{S_T0}, s{S_T0}, 9')
        I(f's_lshl_b32 s{S_T1}, s{S_W}, 7'); I(f's_add_u32 s{S_T0}, s{S_T0}, s{S_T1}'); I(f's_add_u32 s{S_T0}, s{S_T0}, {WS_E}')
        self.exec_set('0xffff',0)
        I(f'buffer_store_dwordx2 v[10:11], v8, {srd(SRD_WS)}, s{S_T0} offen sc1', tag='stE')
        self.exec_full()

    def wait_e0(self):
        I=self.I
        L=self.newlabel('e0'); D=self.newlabel('e0d')
        self.wait(vm=['e0c'])
        I('v_cmp_gt_u32 vcc, 64, v34'); I(f's_cbranch_vccz {D}')
        snap=self.snapshot()
        I(f's_mov_b32 s{S_BOUND}, 0x4000')
        self.label(L)
        I(f'global_load_dword v34, v35, {sp(P_DBG)} sc1'); I('s_waitcnt vmcnt(0)')
        I('v_cmp_gt_u32 vcc, 64, v34'); I(f's_cbranch_vccz {D}')
        I('s_sleep 4'); I(f's_sub_u32 s{S_BOUND}, s{S_BOUND}, 1'); I(f's_cbranch_scc0 {L}')
        self.label(D); self.restore(snap)

    def gemm1(self):
        I=self.I
        SL=[V_RING+16*i for i in range(6)]
        DEP=len(SL)
        I(f's_mul_i32 s22, s{S_DT1}, 262144'); I(f's_lshl_b32 s{S_T0}, s{S_W}, 16'); I(f's_add_u32 s22, s22, s{S_T0}')
        I(f's_lshl_b32 s{S_T0}, s{S_WL}, 11'); I(f's_xor_b32 s{S_T1}, s{S_T0}, 2048')
        I(f's_add_u32 s23, s22, s{S_T1}'); I(f's_add_u32 s22, s22, s{S_T0}')
        I(f's_mov_b32 s{S_A}, s22'); I(f's_mov_b32 s{S_B}, s23')
        def ld(k,y):
            r=SL[k%DEP]
            sx=S_A if y<2 else S_B
            I(f'buffer_load_dwordx4 {vr(r+4*y,4)}, v{V_L16}, {srd(SRD_WS)}, s{sx} offen offset:{(y&1)*1024} sc1', tag=('ht',k,y))
            if (y&1) and k<15: I(f's_add_u32 s{sx}, s{sx}, 4096')
        pro=[(k,y) for k in range(DEP) for y in range(4)]
        while pro:
            ld(*pro.pop(0))
            if self.R['iss']<self.R['n']: self.ring_tick()
        self.ring_finish(); self.wait(lg='all')
        self.stamp('w1 in regs')
        self.w2_setup(); self.R['maxrd']=0
        for k in range(16):
            r=SL[k%DEP]
            for y in range(4):
                self.wait(vm=[('ht',k,y)])
                if y==0: self.stamp(f'g1.{k}',fine=3)
                for x in range(4):
                    d=V_ACC+16*x+4*y
                    cin=vr(d,4) if k else '0'
                    I(f'v_mfma_f32_16x16x32_bf16 {vr(d,4)}, {ar(16*k+4*x,4)}, {vr(r+4*y,4)}, {cin}')
                if k+DEP<16: ld(k+DEP,y)
                else:
                    self.R['maxrd']=k
                    self.tick()
        self.R['maxrd']=99
        self.stamp('g1loop')

    def p2_flag_addr(self):
        I=self.I
        I(f's_mul_i32 s{S_T0}, s{S_W}, 7'); I(f's_lshr_b32 s{S_T1}, s{S_T0}, 2')
        I(f's_mul_i32 s{S_T2}, s{S_C}, 7'); I(f's_add_u32 s{S_T2}, s{S_T2}, s{S_T1}')
        I(f's_add_u32 s{S_T3}, s{S_T0}, 6'); I(f's_lshr_b32 s{S_T3}, s{S_T3}, 2'); I(f's_sub_u32 s{S_T3}, s{S_T3}, s{S_T1}')
        I(f'v_min_u32 v14, s{S_T3}, v{V_LANE}'); I(f'v_add_u32 v14, s{S_T2}, v14'); I('v_lshlrev_b32 v14, 6, v14')
        I(f'v_add_u32 v14, {WS_FH}, v14')
        I(f'v_min_u32 v8, 13, v{V_LANE}'); I('v_lshlrev_b32 v9, 6, v8')
        I(f's_mul_i32 s{S_T1}, s{S_G}, 28'); I(f's_add_u32 s{S_T1}, s{S_T1}, s{S_T0}'); I(f's_lshl_b32 s{S_T1}, s{S_T1}, 6'); I(f's_add_u32 s{S_T1}, s{S_T1}, {WS_FG}')
        I(f's_lshl_b32 s{S_T0}, s{S_T0}, 6'); I(f's_add_u32 s{S_T0}, s{S_T0}, {WS_FC-7*64}')
        I(f'v_mov_b32 v10, s{S_T1}'); I(f'v_mov_b32 v11, s{S_T0}'); I('v_cmp_gt_u32 vcc, 7, v8'); I('v_cndmask_b32 v10, v11, v10, vcc')
        I('v_add_u32 v12, v9, v10')

    def e_addr(self):
        I=self.I
        OF=V_EOF
        I(f's_lshl_b32 s{S_T0}, s{S_G}, 14'); I(f's_add_u32 s{S_T0}, s{S_T0}, {WS_E}')
        I(f's_add_u32 s{SRD_1}, s{P_WS}, s{S_T0}'); I(f's_addc_u32 s{SRD_1+1}, s{P_WS+1}, 0')
        I(f's_and_b32 s{SRD_1+1}, s{SRD_1+1}, 0xffff'); I(f's_mov_b32 s{SRD_1+2}, 16384'); I(f's_mov_b32 s{SRD_1+3}, 0x20000')
        I(f'v_lshrrev_b32 v8, 4, v{V_LANE}'); I('v_lshlrev_b32 v8, 12, v8')
        I(f'v_and_b32 v9, 15, v{V_LANE}'); I('v_lshlrev_b32 v9, 3, v9'); I('v_add_u32 v8, v8, v9')
        I(f's_sub_u32 s{S_T0}, s{S_C}, 32'); I(f's_lshl_b32 s{S_T0}, s{S_T0}, 9'); I(f's_lshl_b32 s{S_T1}, s{S_W}, 7')
        I(f's_add_u32 s{S_T0}, s{S_T0}, s{S_T1}'); I(f'v_add_u32 v8, s{S_T0}, v8')
        for i in range(8): I(f'v_add_u32 v{OF+i}, {512*i}, v8')
    def e_loads(self):
        for i in range(8):
            self.I(f'buffer_load_dwordx2 {vr(V_EL+2*i,2)}, v{V_EOF+i}, {srd(SRD_1)}, 0 offen sc1', tag='E')

    def finalize(self):
        I=self.I
        EL=V_EL
        L=self.newlabel('pollE'); Dn=self.newlabel('pollEd')
        sv=self.auto; self.auto=0
        self.wait(vm=['E'])
        I(f's_mov_b32 s{S_BOUND}, 0x4000')
        self.label(L)
        I(f'v_max3_u32 v8, v{EL}, v{EL+1}, v{EL+2}')
        for i in range(3,15,2): I(f'v_max3_u32 v8, v8, v{EL+i}, v{EL+i+1}')
        I(f'v_max_u32 v8, v8, v{EL+15}')
        I('v_cmp_eq_u32 vcc, -1, v8')
        I(f's_cbranch_vccz {Dn}')
        snap=self.snapshot()
        self.e_loads()
        I('s_waitcnt vmcnt(0)')
        I('s_sleep 4'); I(f's_sub_u32 s{S_BOUND}, s{S_BOUND}, 1'); I(f's_cbranch_scc0 {L}')
        self.label(Dn); self.restore(snap)
        self.auto=sv
        yield
        QR,QI=EL,EL+1
        for i in range(1,8):
            self.cfma(QR,QI,V_L64R,V_L64I,QR,QI,EL+2*i,EL+2*i+1,36,37)
            yield
        GR=[20,21,22,23]; GI=[24,25,26,27]
        self.allgather_q(QR,*GR); yield
        self.allgather_q(QI,*GI); yield
        for q in range(1,4):
            self.cfma(GR[q],GI[q],V_L512R,V_L512I,GR[q-1],GI[q-1],GR[q],GI[q],28,29)
            yield
        self.cfma(V_SR,V_SI,V_PR,V_PI,GR[3],GI[3],V_SR,V_SI,28,29)
        yield
        HR,HI,T0,T1=V_SR,V_SI,36,37
        OR,OI=V_RAW,V_RAW+16
        for t in range(16):
            I(f'v_fma_f32 v{T0}, v{V_LR}, v{HR}, v{OR+t}')
            I(f'v_fma_f32 v{T1}, v{V_LR}, v{HI}, v{OI+t}')
            I(f'v_fma_f32 v{T0}, -v{V_LI}, v{HI}, v{T0}')
            I(f'v_fma_f32 v{HI}, v{V_LI}, v{HR}, v{T1}')
            HR,T0=T0,HR
            yield
            I(f'v_mul_f32 v{OR+t}, v{V_K1}, v{HR}'); I(f'v_mul_f32 v{OI+t}, v{V_K2}, v{HR}')
            I(f'v_fma_f32 v{OR+t}, v{V_K2}, v{HI}, v{OR+t}'); I(f'v_fma_f32 v{OI+t}, -v{V_K1}, v{HI}, v{OI+t}')
            yield
        for t in range(8):
            I(f'v_cvt_pk_bf16_f32 v{OR+t}, v{OR+2*t}, v{OR+2*t+1}'); I(f'v_cvt_pk_bf16_f32 v{OI+t}, v{OI+2*t}, v{OI+2*t+1}')
            if t%2: yield
        I(f'v_and_b32 v8, 15, v{V_LANE}'); I(f's_lshl_b32 s{S_T0}, s{S_WL}, 4'); I(f'v_add_u32 v8, s{S_T0}, v8')
        I('v_lshrrev_b32 v9, 3, v8'); I('v_lshlrev_b32 v9, 2, v9')
        yield
        I('v_and_b32 v10, 3, v8'); I('v_add_u32 v9, v9, v10')
        I('v_bfe_u32 v10, v8, 2, 1'); I('v_lshlrev_b32 v11, 4, v10'); I('v_add_u32 v9, v9, v11')
        yield
        I('v_and_b32 v11, 7, v9'); I('v_lshlrev_b32 v10, 2, v10'); I('v_xor_b32 v11, v11, v10')
        I(f'v_lshrrev_b32 v10, 4, v{V_LANE}'); I('v_lshlrev_b32 v10, 1, v10')
        yield
        I('v_xor_b32 v10, v10, v11'); I('v_lshlrev_b32 v10, 4, v10')
        I('v_lshlrev_b32 v9, 7, v9'); I('v_add_u32 v9, v9, v10')
        yield
        I(f's_lshl_b32 s{S_T0}, s{S_WH}, 12'); I(f'v_add_u32 v9, s{S_T0}, v9')
        I('v_xor_b32 v10, 16, v9')
        I('s_barrier')
        I(f'ds_write_b128 v9, {vr(OR,4)} offset:{LDS_X}', tag='hw'); I(f'ds_write_b128 v10, {vr(OR+4,4)} offset:{LDS_X}', tag='hw')
        I(f'ds_write_b128 v9, {vr(OI,4)} offset:{LDS_X+8192}', tag='hw'); I(f'ds_write_b128 v10, {vr(OI+4,4)} offset:{LDS_X+8192}', tag='hw')
        yield
        I(f'v_lshrrev_b32 v8, 2, v{V_LANE}'); I('v_and_b32 v9, 7, v8'); I(f'v_bfe_u32 v10, v{V_LANE}, 1, 1')
        I('v_xor_b32 v9, v9, v10'); I('v_lshlrev_b32 v9, 4, v9')
        yield
        I('v_lshlrev_b32 v8, 7, v8'); I('v_add_u32 v8, v8, v9')
        I(f'v_and_b32 v9, 1, v{V_LANE}'); I('v_lshlrev_b32 v9, 3, v9'); I('v_add_u32 v8, v8, v9')
        I(f's_lshl_b32 s{S_T0}, s{S_W}, 12'); I(f'v_add_u32 v8, s{S_T0}, v8')
        yield
        self.wait(lg=['hw']); I('s_barrier')
        FR=16
        for nb in range(4):
            I(f'v_xor_b32 v9, {nb<<5}, v8'); I('v_xor_b32 v10, 64, v9')
            I(f'ds_read_b64_tr_b16 {vr(FR+4*nb,2)}, v9 offset:{LDS_X}', tag=('hp',nb))
            I(f'ds_read_b64_tr_b16 {vr(FR+4*nb+2,2)}, v10 offset:{LDS_X+2048}', tag=('hp',nb))
        I(f's_mul_i32 s{S_T0}, s{S_C}, {28*4096}'); I(f's_lshl_b32 s{S_T1}, s{S_G}, 14'); I(f's_add_u32 s{S_T0}, s{S_T0}, s{S_T1}')
        I(f's_lshl_b32 s{S_T1}, s{S_W}, 12'); I(f's_add_u32 s{S_T0}, s{S_T0}, s{S_T1}'); I(f's_add_u32 s94, s{S_T0}, {WS_HP}')
        yield
        if self.opt.gearly: I(f'global_load_dword v53, v12, {sp(P_WS)} sc1', tag='fg')
        for nb in range(4):
            self.wait(lg=[('hp',nb)])
            I(f'buffer_store_dwordx4 {vr(FR+4*nb,4)}, v{V_L16}, {srd(SRD_WS)}, s94 offen offset:{nb*1024} sc1', tag='stH')
            yield

    def flag_set(self, sa, mul, sb, base):
        I=self.I
        L=self.newlabel('flag')
        I(f's_cmp_lg_u32 s{S_W}, 0'); I(f's_cbranch_scc1 {L}')
        snap=self.snapshot()
        I(f's_mul_i32 s{S_T0}, s{sa}, {mul}'); I(f's_add_u32 s{S_T0}, s{S_T0}, s{sb}'); I(f's_lshl_b32 s{S_T0}, s{S_T0}, 6')
        I(f's_add_u32 s{S_T0}, s{S_T0}, {base}')
        I('v_mov_b32 v8, 0'); I('v_mov_b32 v9, 1')
        self.exec_set(1,0)
        I(f'buffer_store_dword v9, v8, {srd(SRD_WS)}, s{S_T0} offen sc1')
        self.exec_full()
        self.label(L); self.merge(snap)

    def g_bias_load(self):
        I=self.I
        I(f'v_lshrrev_b32 v8, 4, v{V_LANE}'); I('v_lshlrev_b32 v8, 3, v8')
        I(f's_lshl_b32 s{S_T0}, s{S_FT}, 7'); I(f's_lshl_b32 s{S_T1}, s{S_WH}, 6'); I(f's_add_u32 s{S_T0}, s{S_T0}, s{S_T1}')
        I(f'v_add_u32 v8, s{S_T0}, v8')
        I(f'global_load_dwordx2 v[32:33], v8, {sp(P_B1)}', tag='b1')
        I(f'global_load_dwordx2 v[34:35], v8, {sp(P_B1)} offset:32', tag='b1')

    def g_epilogue(self):
        I=self.I
        self.auto=self.opt.gepip
        self.reduce(V_RING)
        self.wait(vm=['b1'])
        for x in range(2):
            for h in range(2):
                I(f'v_lshlrev_b32 v{16+4*x+2*h}, 16, v{32+2*x+h}'); I(f'v_and_b32 v{17+4*x+2*h}, s{S_MASK}, v{32+2*x+h}')
        C1=-2.0*0.7978845608028654*1.4426950408889634
        C3=C1*0.044715
        import struct
        f2h=lambda f:'0x%08x'%struct.unpack('<I',struct.pack('<f',f))[0]
        I(f's_mov_b32 s{S_T2}, {f2h(C1)}'); I(f's_mov_b32 s{S_T3}, {f2h(C3)}')
        I(f'v_mov_b32 v31, s{S_T2}')
        U=[]
        for x in range(2):
            for y in range(2):
                for r in range(4):
                    U.append((V_ACC+16*x+4*y+r, 16+4*x+r))
        TT=V_RING
        for n,(u,b) in enumerate(U): I(f'v_add_f32 v{u}, v{u}, v{b}')
        for n,(u,b) in enumerate(U): I(f'v_mul_f32 v{TT+n}, v{u}, v{u}')
        for n,(u,b) in enumerate(U): I(f'v_fma_f32 v{TT+n}, v{TT+n}, s{S_T3}, v31')
        for n,(u,b) in enumerate(U): I(f'v_mul_f32 v{TT+n}, v{TT+n}, v{u}')
        for n,(u,b) in enumerate(U): I(f'v_exp_f32 v{TT+n}, v{TT+n}')
        for n,(u,b) in enumerate(U): I(f'v_add_f32 v{TT+n}, 1.0, v{TT+n}')
        for n,(u,b) in enumerate(U): I(f'v_rcp_f32 v{TT+n}, v{TT+n}')
        for n,(u,b) in enumerate(U): I(f'v_mul_f32 v{u}, v{u}, v{TT+n}')
        F=V_RING+16
        for y in range(2):
            for x in range(2):
                a=V_ACC+16*x+4*y
                I(f'v_cvt_pk_bf16_f32 v{F+4*y+2*x}, v{a}, v{a+1}'); I(f'v_cvt_pk_bf16_f32 v{F+4*y+2*x+1}, v{a+2}, v{a+3}')
        I(f's_mul_i32 s{S_T0}, s{S_DT1}, {56*4096}'); I(f's_lshl_b32 s{S_T1}, s{S_FT}, 13'); I(f's_add_u32 s{S_T0}, s{S_T0}, s{S_T1}')
        I(f's_lshl_b32 s{S_T1}, s{S_WH}, 12'); I(f's_add_u32 s{S_T0}, s{S_T0}, s{S_T1}')
        I(f's_lshl_b32 s{S_T1}, s{S_WL}, 11'); I(f's_add_u32 s{S_T0}, s{S_T0}, s{S_T1}'); I(f's_add_u32 s{S_T0}, s{S_T0}, {WS_GT}')
        for y in range(2):
            I(f'buffer_store_dwordx4 {vr(F+4*y,4)}, v{V_L16}, {srd(SRD_WS)}, s{S_T0} offen offset:{y*1024} sc1', tag='stG')
        self.auto=0
        self.e_loads()
        self.p2_flag_addr(); self.p2_bases()
        I(f'global_load_dword v54, v12, {sp(P_WS)} sc1', tag='fc')
        for n in range(self.opt.gwait): self.tick()
        self.wait(vm=['stG']); I('s_barrier')
        self.flag_set(S_DT1,28,S_FT,WS_FG)

    def w2_setup(self):
        I=self.I
        self.make_srd(SRD_W, P_W2, 1792*4096)
        self.ring_setup(4096, S_WL)
        I(f's_mul_i32 s{S_WBEG}, s{S_W}, {448*4096}'); I(f's_lshl_b32 s{S_T0}, s{S_C}, 7'); I(f's_add_u32 s{S_WBEG}, s{S_WBEG}, s{S_T0}')
        I(f's_mov_b32 s{S_WO}, s{S_WBEG}')
        self.ring_init('w2',14,4096,range(6))

    def rot_g(self, dst):
        I=self.I
        I(f's_mul_i32 s{dst}, s86, 37'); I(f's_lshr_b32 s{dst}, s{dst}, 8')
        I(f's_mul_i32 s{dst}, s{dst}, {7*self.opt.rot2}'); I(f's_lshr_b32 s{dst}, s{dst}, 1')
    def cpack(self):
        I=self.I
        L=self.newlabel('nocp')
        I(f's_cmp_ge_u32 s{S_E}, 28'); I(f's_cbranch_scc1 {L}')
        I(f's_mov_b32 s{SRD_1+2}, {448*896}'); I(f's_mov_b32 s{SRD_1+3}, 0x20000')
        I(f's_bitcmp1_b32 s{S_E}, 1')
        I(f's_cselect_b32 s{SRD_1}, s{P_CIM}, s{P_CRE}'); I(f's_cselect_b32 s{SRD_1+1}, s{P_CIM+1}, s{P_CRE+1}')
        I(f'v_and_b32 v9, 15, v{V_LANE}'); I('v_mul_u32_u24 v9, 896, v9'); I(f'v_lshrrev_b32 v10, 4, v{V_LANE}')
        I('v_lshlrev_b32 v10, 4, v10'); I('v_add_u32 v10, v9, v10')
        I(f's_lshr_b32 s{S_T0}, s{S_E}, 2'); I(f's_lshl_b32 s{S_T0}, s{S_T0}, 7')
        I(f's_and_b32 s{S_T1}, s{S_E}, 1'); I(f's_lshl_b32 s{S_T1}, s{S_T1}, 6'); I(f's_add_u32 s{S_T0}, s{S_T0}, s{S_T1}')
        I(f's_mul_i32 s{S_T1}, s{S_W}, {16*896}'); I(f's_add_u32 s{S_T0}, s{S_T0}, s{S_T1}')
        for dt in range(7):
            I(f'buffer_load_dwordx4 {vr(56+4*dt,4)}, v10, {srd(SRD_1)}, s{S_T0} offen', tag=('cp',dt))
            if dt<6: I(f's_add_u32 s{S_T0}, s{S_T0}, {64*896}')
        I(f's_lshl_b32 s{S_T0}, s{S_E}, 12'); I(f's_lshl_b32 s{S_T1}, s{S_W}, 10'); I(f's_add_u32 s{S_T0}, s{S_T0}, s{S_T1}')
        I(f's_add_u32 s{S_T0}, s{S_T0}, {WS_CP}')
        for dt in range(7):
            self.wait(vm=[('cp',dt)])
            I(f'buffer_store_dwordx4 {vr(56+4*dt,4)}, v{V_L16}, {srd(SRD_WS)}, s{S_T0} offen sc1', tag='stC')
            if dt<6: I(f's_add_u32 s{S_T0}, s{S_T0}, {28*4096}')
        self.label(L)
    def cpack_flag(self):
        I=self.I
        L=self.newlabel('nocf')
        Lp=self.newlabel('w0poll')
        self.wait(vm='all')
        I(f's_cmp_lg_u32 s{S_W}, 0'); I(f's_cbranch_scc1 {Lp}')
        I(f'v_and_b32 v8, 3, v{V_LANE}'); I('v_lshlrev_b32 v8, 6, v8')
        self.poll('e0e', 8, P_DBG, 64)
        self.label(Lp)
        I('s_barrier')
        I(f's_cmp_ge_u32 s{S_E}, 28'); I(f's_cbranch_scc1 {L}')
        I(f's_mov_b32 s{S_T1}, 0')
        self.flag_set(S_T1,1,S_E,WS_FC)
        self.label(L)

    def p2_resid_loads(self):
        I=self.I
        self.make_srd(SRD_OUT, P_OUT, 2048*1792)
        I(f'v_and_b32 v7, 15, v{V_LANE}'); I(f'v_lshrrev_b32 v8, 4, v{V_LANE}')
        I('v_mul_u32_u24 v9, 896, v7'); I('v_lshlrev_b32 v10, 3, v8'); I('v_add_u32 v9, v9, v10')
        I(f's_lshl_b32 s{S_T0}, s{S_C}, 6'); I(f's_lshl_b32 s{S_T1}, s{S_WL}, 5'); I(f's_add_u32 s{S_T0}, s{S_T0}, s{S_T1}')
        I(f's_lshl_b32 s{S_T1}, s{S_G}, 6'); I(f's_lshl_b32 s{S_T2}, s{S_WH}, 5'); I(f's_add_u32 s{S_T1}, s{S_T1}, s{S_T2}')
        for y in range(2):
            for x in range(2):
                I(f's_add_u32 s{S_T2}, s{S_T0}, {16*y}'); I(f's_mul_i32 s{S_T2}, s{S_T2}, 896')
                I(f's_add_u32 s{S_T3}, s{S_T1}, {16*x}'); I(f's_lshl_b32 s{S_T3}, s{S_T3}, 1'); I(f's_add_u32 s{S_T2}, s{S_T2}, s{S_T3}')
                I(f'buffer_load_dwordx2 {vr(16+4*y+2*x,2)}, v9, {srd(SRD_X)}, s{S_T2} offen', tag='res')
        I('v_lshlrev_b32 v9, 2, v7')
        for y in range(2):
            I(f's_add_u32 s{S_T2}, s{S_T0}, {16*y}'); I(f's_lshl_b32 s{S_T2}, s{S_T2}, 2'); I(f's_add_u32 s{S_T2}, s{S_T2}, {WS_STAT}')
            I(f'buffer_load_dword v{24+2*y}, v9, {srd(SRD_WS)}, s{S_T2} offen sc1', tag='res')
            I(f's_add_u32 s{S_T2}, s{S_T2}, 8192')
            I(f'buffer_load_dword v{25+2*y}, v9, {srd(SRD_WS)}, s{S_T2} offen sc1', tag='res')
        I(f's_lshl_b32 s{S_T2}, s{S_T1}, 1'); I(f'v_add_u32 v9, s{S_T2}, v10')
        I(f'global_load_dwordx2 v[28:29], v9, {sp(P_DSK)}', tag='res')
        I(f'global_load_dwordx2 v[30:31], v9, {sp(P_DSK)} offset:32', tag='res')
        I(f'v_add_u32 v9, s{S_T0}, v7'); I('v_lshlrev_b32 v9, 1, v9')
        I(f'global_load_ushort v10, v9, {sp(P_B2)}', tag='res')
        I(f'global_load_ushort v38, v9, {sp(P_B2)} offset:32', tag='res')
    def resid_compute(self):
        I=self.I
        self.wait(vm=['res'])
        I('v_lshlrev_b32 v10, 16, v10'); I('v_lshlrev_b32 v38, 16, v38')
        yield
        for x in range(2):
            for h in range(2):
                I(f'v_lshlrev_b32 v{32+2*h}, 16, v{28+2*x+h}'); I(f'v_and_b32 v{33+2*h}, s{S_MASK}, v{28+2*x+h}')
            yield
            for y in range(2):
                xs=16+4*y+2*x; st=24+2*y; b2=10 if y==0 else 38
                for h in range(2):
                    r=240+8*y+4*x+2*h
                    I(f'v_lshlrev_b32 v{r}, 16, v{xs+h}'); I(f'v_and_b32 v{r+1}, s{S_MASK}, v{xs+h}')
                    I(f'v_pk_add_f32 v[36:37], v[{r}:{r+1}], v[{st}:{st+1}] op_sel_hi:[1,0] neg_lo:[0,1] neg_hi:[0,1]')
                    yield
                    I(f'v_pk_mul_f32 v[36:37], v[36:37], v[{st}:{st+1}] op_sel:[0,1] op_sel_hi:[1,1]')
                    I(f'v_pk_add_f32 v[{r}:{r+1}], v[{r}:{r+1}], v[{b2}:{b2+1}] op_sel_hi:[1,0]')
                    I(f'v_pk_fma_f32 v[{r}:{r+1}], v[36:37], v[{32+2*h}:{33+2*h}], v[{r}:{r+1}]')
                    yield

    CREG=[['v16','v20','v24','v28'],['v32','v36','v40','v44'],['v48','v52','v216','v220'],['v224','v228','v232','v236'],
          ['a0','a4','a8','a12'],['a224','a228','a232','a236'],['a240','a244','a248','a252']]
    def creg(self,i,x):
        r=self.CREG[i][x]; n=int(r[1:]); return f'{r[0]}[{n}:{n+3}]'
    def p2_bases(self):
        I=self.I
        I(f's_mul_i32 s90, s{S_G}, {56*4096}'); I(f's_mul_i32 s{S_T0}, s{S_W}, {14*4096}'); I(f's_add_u32 s90, s90, s{S_T0}')
        I(f's_add_u32 s90, s90, {WS_GT}')
        I(f's_lshl_b32 s{S_T1}, s{S_WH}, 11'); I(f's_xor_b32 s{S_T2}, s{S_T1}, 2048')
        I(f's_add_u32 s92, s90, s{S_T2}'); I(f's_add_u32 s90, s90, s{S_T1}')
        I(f's_mul_i32 s22, s{S_G}, {28*4096}'); I(f's_mul_i32 s{S_T0}, s{S_W}, {7*4096}'); I(f's_add_u32 s22, s22, s{S_T0}')
        I(f's_add_u32 s22, s22, {WS_CP}')
        I(f's_add_u32 s23, s22, s{S_T2}'); I(f's_add_u32 s22, s22, s{S_T1}')
        I(f's_mul_i32 s38, s{S_C}, {28*4096}'); I(f's_add_u32 s38, s38, s{S_T0}'); I(f's_add_u32 s38, s38, {WS_HP}')
        I(f's_lshl_b32 s{S_T1}, s{S_WL}, 11'); I(f's_xor_b32 s{S_T2}, s{S_T1}, 2048')
        I(f's_add_u32 s39, s38, s{S_T2}'); I(f's_add_u32 s38, s38, s{S_T1}')
    def q_c(self, steps):
        I=self.I
        def one(i,x):
            def f():
                b=22 if x<2 else 23
                I(f's_add_u32 s91, s{b}, {i*4096}')
                I(f'buffer_load_dwordx4 {self.creg(i,x)}, v{V_L16}, {srd(SRD_WS)}, s91 offen offset:{(x&1)*1024} sc1', tag=('c',i,x))
            return f
        for i in steps:
            for x in range(4): self.q.append(one(i,x))
    def cflag_check(self):
        I=self.I
        L=self.newlabel('cf'); D=self.newlabel('cfd')
        self.wait(vm=['fc'])
        self.exec_set('0x3f80','0')
        I('v_cmp_gt_u32 vcc, 1, v54'); I(f's_cbranch_vccz {D}')
        snap=self.snapshot()
        I(f's_mov_b32 s{S_BOUND}, 0x4000')
        self.label(L)
        I(f'global_load_dword v54, v12, {sp(P_WS)} sc1'); I('s_waitcnt vmcnt(0)')
        I('v_cmp_gt_u32 vcc, 1, v54'); I(f's_cbranch_vccz {D}')
        I('s_sleep 4'); I(f's_sub_u32 s{S_BOUND}, s{S_BOUND}, 1'); I(f's_cbranch_scc0 {L}')
        self.label(D); self.restore(snap)
        self.exec_full()
    def flag_wait(self, vaddr, vdst, tag):
        I=self.I
        L=self.newlabel('fw'); D=self.newlabel('fwd')
        self.wait(vm=[tag])
        I(f'v_cmp_gt_u32 vcc, 1, v{vdst}'); I(f's_cbranch_vccz {D}')
        snap=self.snapshot()
        I(f's_mov_b32 s{S_BOUND}, 0x4000')
        self.label(L)
        I(f'global_load_dword v{vdst}, v{vaddr}, {sp(P_WS)} sc1'); I('s_waitcnt vmcnt(0)')
        I(f'v_cmp_gt_u32 vcc, 1, v{vdst}'); I(f's_cbranch_vccz {D}')
        I('s_sleep 4'); I(f's_sub_u32 s{S_BOUND}, s{S_BOUND}, 1'); I(f's_cbranch_scc0 {L}')
        self.label(D); self.restore(snap)
    def p2_main(self, pre_only=False):
        I=self.I
        NS=6
        g0=self.opt.sfirst
        steps=[('g',k) for k in range(g0)]
        gi,si=g0,0
        while gi<14 or si<7:
            if si<7: steps.append(('s',si)); si+=1
            if gi<14: steps.append(('g',gi)); gi+=1
        groups=[('g',i) if k=='g' else ('h',i) for k,i in steps]
        gidx={g:n for n,g in enumerate(groups)}
        reg=lambda g: V_RING+16*(gidx[g]%NS)
        pend=[(g,x) for g in groups for x in range(4)]
        done=set(); state={}
        if not pre_only and self.opt.gearly: pend,done,state=self.p2state
        def can(g,x):
            n=gidx[g]-NS
            return n<0 or (groups[n],x) in done
        def issue(nmax):
            n=0
            while n<nmax and pend and can(*pend[0]):
                g,x=pend[0]
                if g[0]=='h' and not state.get('hflag'):
                    self.flag_wait(14,11,'fh'); state['hflag']=True
                pend.pop(0)
                b0,b1,nst={'g':(90,92,14),'h':(38,39,7)}[g[0]]
                sx=b0 if x<2 else b1
                I(f'buffer_load_dwordx4 {vr(reg(g)+4*x,4)}, v{V_L16}, {srd(SRD_WS)}, s{sx} offen offset:{(x&1)*1024} sc1', tag=(g,x))
                if (x&1) and g[1]<nst-1: I(f's_add_u32 s{sx}, s{sx}, 4096')
                n+=1
        if pre_only:
            issue(4*NS); self.p2state=(pend,done,state); return
        if not self.opt.gearly: issue(4*NS)
        first=True
        self.q_c([4])
        for pos,(kind,i) in enumerate(steps):
            if kind=='g' and i==3: I(f'global_load_dword v11, v14, {sp(P_WS)} sc1', tag='fh')
            if kind=='s':
                H=('h',i)
                for x in range(4):
                    self.wait(vm=[('c',i,x)]+([(H,y) for y in range(4)] if x==0 else []))
                    if x==0: self.stamp(f'p2.s{i}',fine=2)
                    for y in range(4):
                        d=V_ACC+16*x+4*y
                        I(f'v_mfma_f32_16x16x32_bf16 {vr(d,4)}, {self.creg(i,x)}, {vr(reg(H)+4*y,4)}, {vr(d,4)}')
                    if x<3: issue(1)
                for y in range(4): done.add((H,y))
                issue(2)
            else:
                A=('g',i)
                for x in range(4):
                    self.wait(vm=[(A,x)])
                    if x==0: self.stamp(f'p2.g{i}',fine=2)
                    for y in range(4):
                        d=V_ACC+16*x+4*y
                        cin='0' if first else vr(d,4)
                        I(f'v_mfma_f32_16x16x32_bf16 {vr(d,4)}, {vr(reg(A)+4*x,4)}, {ar(16*i+4*y,4)}, {cin}')
                    done.add((A,x))
                    issue(1)
                    if i==1: self.q.pop(0)()
            first=False
        assert not pend

    def p2_epilogue(self):
        I=self.I
        self.reduce(V_RING)
        for y in range(2):
            for x in range(2):
                a=V_ACC+16*x+4*y; r=240+8*y+4*x
                for h in range(2):
                    I(f'v_pk_add_f32 v[{a+2*h}:{a+2*h+1}], v[{a+2*h}:{a+2*h+1}], v[{r+2*h}:{r+2*h+1}]')
        if self.opt.delta:
            import struct
            hx='0x%08x'%struct.unpack('<I',struct.pack('<f',self.opt.delta))[0]
            for y in range(2):
                for x in range(2):
                    for r in range(4):
                        a=V_ACC+16*x+4*y+r
                        I(f'v_add_f32 v{a}, {hx}, v{a}')
        I(f'v_and_b32 v7, 15, v{V_LANE}'); I(f'v_lshrrev_b32 v8, 4, v{V_LANE}')
        I('v_mul_u32_u24 v9, 1792, v7'); I('v_lshlrev_b32 v10, 4, v8'); I('v_add_u32 v9, v9, v10')
        I(f's_lshl_b32 s{S_T0}, s{S_C}, 6'); I(f's_lshl_b32 s{S_T1}, s{S_WL}, 5'); I(f's_add_u32 s{S_T0}, s{S_T0}, s{S_T1}')
        I(f's_lshl_b32 s{S_T1}, s{S_G}, 6'); I(f's_lshl_b32 s{S_T2}, s{S_WH}, 5'); I(f's_add_u32 s{S_T1}, s{S_T1}, s{S_T2}')
        for y in range(2):
            for x in range(2):
                I(f's_add_u32 s{S_T2}, s{S_T0}, {16*y}'); I(f's_mul_i32 s{S_T2}, s{S_T2}, 1792')
                I(f's_add_u32 s{S_T3}, s{S_T1}, {16*x}'); I(f's_lshl_b32 s{S_T3}, s{S_T3}, 2'); I(f's_add_u32 s{S_T2}, s{S_T2}, s{S_T3}')
                a=V_ACC+16*x+4*y
                I(f'buffer_store_dwordx4 {vr(a,4)}, v9, {srd(SRD_OUT)}, s{S_T2} offen {self.opt.outmod}')

    def write_stamps(self):
        if not self.opt.stamps: return
        I=self.I
        I('s_lshl_b32 s3, s2, 2'); I(f's_add_u32 s3, s3, s{S_W}'); I('s_lshl_b32 s3, s3, 8'); I(f's_add_u32 s3, s3, {WS_DBG}')
        I(f'v_lshlrev_b32 v9, 2, v{V_LANE}')
        I(f'buffer_store_dword v{self.vst}, v9, {srd(SRD_WS)}, s3 offen')
        if getattr(self.opt,'dbgwg',-1)>=0 and self.final_stamps:
            L=self.newlabel('dbgout')
            I(f's_cmp_lg_u32 s2, {self.opt.dbgwg}'); I(f's_cbranch_scc1 {L}')
            I(f's_cmp_lg_u32 s{S_W}, 0'); I(f's_cbranch_scc1 {L}')
            I(f'v_readlane_b32 s3, v{self.vst}, 0'); I('s_nop 4')
            I(f'v_subrev_u32 v8, s3, v{self.vst}')
            I(f'v_add_u32 v9, {self.opt.dbgoff}, v{V_LANE}'); I('v_lshlrev_b32 v9, 2, v9')
            I('ds_bpermute_b32 v8, v9, v8'); I('s_waitcnt lgkmcnt(0)')
            I(f'v_lshlrev_b32 v9, 2, v{V_LANE}')
            self.exec_set('0xfffe','0')
            I(f'global_store_dword v9, v8, {sp(P_DBG)}')
            self.exec_full()
            self.label(L)
    def build(self):
        I=self.I; o=self.opt
        if o.stamps: I('v_mov_b32 v55, 0')
        self.prologue()
        self.touches_pre()
        wt=self.opt.w1touch
        if wt=='A' or self.opt.alsoA: self.touch_w1()
        if self.opt.t3start:
            Lt=self.newlabel('t3s')
            I(f's_cmp_lg_u32 s{S_W}, 3'); I(f's_cbranch_scc1 {Lt}')
            snap=self.snapshot()
            self.touch_w1_wg()
            self.label(Lt); self.merge(snap)
        Lcont=self.newlabel('cont')
        I('s_cmp_eq_u32 s74, 1'); I(f's_cbranch_scc1 {Lcont}')
        snap=self.snapshot()
        self.ln8(clears=False)
        self.vm['st0']=0
        self.arrive0()
        if wt=='F': self.touch_w1()
        if wt=='S': self.touch_w1_split(True)
        self.stamp('pf1')
        if self.opt.eorder==0:
            self.cpack()
            self.stamp('cp')
            self.touch_pf(2)
            self.cpack_flag()
        elif self.opt.eorder==1:
            self.touch_pf(2)
            self.stamp('cp')
            self.cpack()
            self.cpack_flag()
        else:
            self.cpack()
            self.cpack_flag()
            self.stamp('cp')
            self.touch_pf(2)
            self.wait(vm='all')
        self.stamp('pf2')
        self.write_stamps()
        I('s_endpgm')
        self.label(Lcont); self.restore(snap)
        self.dma_setup()
        if wt=='E': self.touch_w1(setup_only=True)
        self.w1_setup()
        if self.opt.bfirst: self.q_b(); self.q_x([0,1,2])
        else: self.q_x([0,1,2]); self.q_b()
        for n in range(self.opt.pre): self.tick()
        self.stamp('issued')
        self.auto=self.opt.period if self.opt.ln8tick else 0
        self.ln8()
        self.auto=0
        self.stamp('ln8 stored')
        if self.opt.bfirst: self.q_x([3])
        else:
            rest=self.q; self.q=[]; self.q_x([3]); self.q+=rest
        self.auto=self.opt.period
        self.x_addr()
        self.lam_consts()
        self.auto=0
        self.stamp('lam')
        self.arrive0()
        self.stamp('arrived')
        self.drain_q()
        if wt=='F': self.touch_w1()
        if wt=='S': self.touch_w1_split(False)
        self.stamp('drained')
        self.wait(vm=['x64','bdma']); I('s_barrier')
        self.do_bread()
        self.auto=self.opt.statp
        self.row_stats()
        self.auto=0
        self.wait(vm=['b13'])
        self.stamp('ln64')
        I(f'v_and_b32 v35, 3, v{V_LANE}'); I('v_lshlrev_b32 v35, 6, v35')
        I(f'global_load_dword v34, v35, {sp(P_DBG)} sc1', tag='e0c')
        self.auto=self.opt.bup
        self.bu_gemm()
        self.stamp('bu',fine=True)
        self.ln_fix()
        self.scan1()
        self.e_addr()
        self.auto=0
        self.stamp('scan1')
        self.wait_e0()
        self.stamp('e0')
        Lnog=self.newlabel('nog1'); Lj=self.newlabel('g1join')
        I(f's_cmp_eq_u32 s{S_HASG1}, 0'); I(f's_cbranch_scc1 {Lnog}')
        snap=self.snapshot()
        R1=dict(self.R); R1['free']=list(self.R['free']); R1['slot']=dict(self.R['slot'])
        self.g_bias_load()
        self.gemm1()
        self.stamp('gemm1')
        self.g_epilogue()
        self.stamp('gepi')
        I(f's_branch {Lj}')
        snapA=self.snapshot()
        RA={k:self.R[k] for k in ('iss','rd','rel','piece')}; RA['free']=list(self.R['free']); RA['slot']=dict(self.R['slot'])
        self.label(Lnog); self.restore(snap); self.R=R1
        self.ring_finish(); self.wait(lg='all')
        self.w2_setup()
        self.replay_ring(RA)
        self.e_loads()
        self.p2_flag_addr(); self.p2_bases()
        I(f'global_load_dword v54, v12, {sp(P_WS)} sc1', tag='fc')
        self.label(Lj); self.merge(snapA)
        self.cflag_check()
        self.q_c([5,6])
        self.auto=self.opt.finp
        for _ in self.finalize(): pass
        self.auto=0
        self.stamp('final')
        if o.stamps: I('v_mov_b32 v15, v55'); self.vst=15
        self.drain_q()
        if self.opt.gearly:
            self.flag_wait(12,53,'fg')
            self.stamp('flagG')
            self.p2_main(pre_only=True)
        self.p2_resid_loads()
        for n in range(self.opt.rwait):
            if self.R is not None and not self.ring_tick(): self.ring_finish()
        self.auto=self.opt.finp
        for _ in self.resid_compute(): pass
        self.auto=0
        self.wait(vm=['stH']); I('s_barrier')
        self.flag_set(S_C,7,S_G,WS_FH)
        self.q_c([0,1,2,3])
        while self.q or self.R is not None:
            if self.q:
                self.tick()
                if len(self.q)==self.opt.fglead and not self.opt.gearly: I(f'global_load_dword v11, v12, {sp(P_WS)} sc1', tag='fg')
            if self.R is not None:
                if not self.ring_tick(): self.ring_finish()
        self.wait(lg='all')
        self.stamp('w2 in regs')
        if not self.opt.gearly:
            self.flag_wait(12,11,'fg')
            self.stamp('flagG')
        self.p2_main()
        self.stamp('p2')
        self.p2_epilogue()
        self.stamp('end'); self.cstamp('c1')
        self.final_stamps=True
        self.write_stamps()
        self.label('L_exit')
        I('s_endpgm')
        self.label('L_code_end')

def header(lds):
    return f"""; Fused S5 SSM + MLP-Mixer token MLP, one persistent launch (256 workgroups, one per CU).
; @launch grid=(256,1,1) block=(256,1,1) lds={lds}
.amdgcn_target "amdgcn-amd-amdhsa--gfx950"
.text
.globl {KN}
.p2align 8
.type {KN},@function
{KN}:
"""
def footer():
    return f"""
.section .rodata,"a"
.p2align 6
.amdhsa_kernel {KN}
  .amdhsa_next_free_vgpr 512
  .amdhsa_next_free_sgpr 102
  .amdhsa_accum_offset 256
  .amdhsa_group_segment_fixed_size 0
  .amdhsa_kernarg_size 136
  .amdhsa_user_sgpr_count 2
  .amdhsa_user_sgpr_kernarg_segment_ptr 1
  .amdhsa_system_sgpr_workgroup_id_x 1
  .amdhsa_float_denorm_mode_32 3
.end_amdhsa_kernel
"""
if __name__=='__main__':
    ap=argparse.ArgumentParser()
    ap.add_argument('-o',default='k.s'); ap.add_argument('--stamps',action='store_true'); ap.add_argument('--stop',default=''); ap.add_argument('--fine',type=int,default=0); ap.add_argument('--period',type=int,default=48); ap.add_argument('--eorder',type=int,default=1); ap.add_argument('--statp',type=int,default=0); ap.add_argument('--gearly',type=int,default=1); ap.add_argument('--delta',type=float,default=0.0); ap.add_argument('--bup',type=int,default=0); ap.add_argument('--statj',type=int,default=9); ap.add_argument('--outmod',default=''); ap.add_argument('--dbgwg',type=int,default=-1); ap.add_argument('--dbgoff',type=int,default=0); ap.add_argument('--arrlead',type=int,default=10); ap.add_argument('--t3start',type=int,default=0); ap.add_argument('--notouch3',type=int,default=0); ap.add_argument('--own3',type=int,default=0); ap.add_argument('--alsoA',type=int,default=0); ap.add_argument('--now2',type=int,default=0); ap.add_argument('--gepip',type=int,default=0); ap.add_argument('--finp',type=int,default=36); ap.add_argument('--sfirst',type=int,default=10); ap.add_argument('--rwait',type=int,default=8); ap.add_argument('--fglead',type=int,default=6); ap.add_argument('--ln64p',type=int,default=48); ap.add_argument('--bfirst',type=int,default=0); ap.add_argument('--w2late',type=int,default=1); ap.add_argument('--rot1',type=int,default=4); ap.add_argument('--rot2',type=int,default=1); ap.add_argument('--rot3',type=int,default=1); ap.add_argument('--ln8tick',type=int,default=0); ap.add_argument('--bdelay',type=int,default=2); ap.add_argument('--w1touch',default='A'); ap.add_argument('--fin0',type=int,default=4); ap.add_argument('--finrate',type=int,default=2); ap.add_argument('--p2rate',type=int,default=3); ap.add_argument('--pre',type=int,default=1); ap.add_argument('--pre1',type=int,default=8); ap.add_argument('--gwait',type=int,default=6); ap.add_argument('--ht_touch',type=int,default=0); ap.add_argument('--g_touch',type=int,default=0)
    o=ap.parse_args()
    k=K(o); k.build()
    t,n=k.text()
    open(o.o,'w').write(header(LDS_TOTAL)+t+footer())
    print('wrote',o.o,'lines',t.count('\n'),'nop states inserted',n)
    if o.stamps: open(o.o+'.names','w').write(','.join(k.stampnames)); print(k.stampnames)
```

```python
import sys, os, argparse
from asmgen import Gen

KN = "parallel_sum__ssm_conv_s5__mixer_token_mlp__prompt_kernel"

WS_HT    = 0x000000
WS_STAT  = 0x1C0000
WS_E     = 0x1C4000
WS_FH    = 0x1E0000
WS_FG    = 0x1E4000
WS_FC    = 0x1E8000
WS_CP    = 0x780000
WS_GT    = 0x200000
WS_HP    = 0x400000
WS_DBG   = 0x900000

LDS_X  = 0
LDS_Y  = 57344
YW     = 26624
SLOT_OFF = [0, 4096, 8192, 12288, 16384, 20480]
LDS_LN8 = LDS_X + 57344 - 7680
LDS_TOTAL = LDS_Y + 4*YW

P_X, P_LRE, P_LIM, P_BRE, P_BIM, P_CRE, P_CIM, P_LDT = 4,6,8,10,12,14,16,18
P_DSK = 20
P_W1, P_B1, P_W2, P_B2 = 24,26,28,30
P_OUT, P_DBG, P_WS = 32,34,36
SRD_X, SRD_WS, SRD_1, SRD_2, SRD_W, SRD_OUT = 40,44,48,52,56,60
S_W, S_WH, S_WL, S_C, S_G, S_DT1, S_FT, S_HASG1 = 64,65,66,67,68,69,70,71
S_MASK, S_ONES = 72, 73
S_A, S_B, S_WO, S_T0, S_T1, S_T2, S_T3, S_BOUND = 76,77,78,79,80,81,82,83
S_YB = 84
S_WBEG, S_WEND = 96, 97
S_KO, S_KEND = 100, 101
S_FI = 3
S_E = 85
def sp(n): return f's[{n}:{n+1}]'
def srd(n): return f's[{n}:{n+3}]'
def vr(a,n): return f'v[{a}:{a+n-1}]' if n>1 else f'v{a}'
def ar(a,n): return f'a[{a}:{a+n-1}]' if n>1 else f'a{a}'

V_LANE, V_L16 = 0, 1
V_TR = 2
V_DMA = [6,13]
V_T = 16
V_LR,V_LI,V_K1,V_K2,V_SR,V_SI,V_PR,V_PI,V_L64R,V_L64I,V_L512R,V_L512I = range(40,52)
V_IN = 52
V_X64 = 56
V_BF = 112
V_RAW = 224
V_ACC = 56
V_RING = 120
V_EL = 16
V_EOF = 216

class K(Gen):
    def __init__(self, opt):
        super().__init__(); self.opt=opt; self.nstamp=0
        self.final_stamps=False; self.vst=55; self.nx=0; self.nb=0; self.bread=False; self.allow_bread=False; self.bdelay=opt.bdelay; self.q=[]; self.R=None; self.auto=0; self.acc=0; self.in_tick=False; self.full=True
    def I(self,t,tag=None):
        super().I(t,tag)
        if self.in_tick: return
        mn=t.split()[0]
        if mn.startswith(('buffer_','global_')): self.acc=0; return
        if not self.auto: return
        if mn.startswith('v_mfma'): self.acc+=16
        elif mn.startswith(('v_exp','v_rcp','v_sqrt','v_sin','v_cos','v_log')): self.acc+=8
        elif mn.startswith(('v_','ds_')): self.acc+=4
        else: return
        if self.acc>=self.auto and self.full and not mn.startswith(('v_cmp','s_cmp','s_bitcmp')):
            self.tick()
    def tick(self):
        self.in_tick=True; self.acc=0
        if not self.bread and self.allow_bread and self.nb>=34:
            if self.bdelay>0: self.bdelay-=1
            else:
                self.do_bread(); self.in_tick=False; return
        if self.q: self.q.pop(0)()
        elif self.R is not None: self.ring_tick()
        self.in_tick=False
    def do_bread(self):
        self.bread=True
        self.b_read()
        self.wait(lg=['brd'])
        self.ring_init('w1',16,3584,range(6))
    def drain_q(self):
        while self.q: self.tick()
    def stamp(self, name, fine=False):
        if not self.opt.stamps: return
        if fine and int(fine)>self.opt.fine: return
        i=self.nstamp; self.nstamp+=1
        assert i<64
        self.c(f'stamp {i}: {name}')
        self.wait(lg='all')
        self.I('s_memrealtime s[98:99]'); self.I('s_waitcnt lgkmcnt(0)'); self.smem=False
        self.I(f'v_writelane_b32 v{self.vst}, s98, {i}')
        self.stampnames=getattr(self,'stampnames',[])+[name]
    def cstamp(self, name):
        if not self.opt.stamps: return
        i=self.nstamp; self.nstamp+=1
        self.wait(lg='all')
        self.I('s_memtime s[98:99]'); self.I('s_waitcnt lgkmcnt(0)'); self.smem=False
        self.I(f'v_writelane_b32 v{self.vst}, s98, {i}')
        self.stampnames=getattr(self,'stampnames',[])+['#'+name]
    def rnd_bf16(self, v):
        self.I(f'v_cvt_pk_bf16_f32 v{v}, v{v}, v{v}')
        self.I(f'v_lshlrev_b32 v{v}, 16, v{v}')
    def make_srd(self, s, ptr, nbytes):
        self.I(f's_mov_b32 s{s}, s{ptr}'); self.I(f's_and_b32 s{s+1}, s{ptr+1}, 0xffff')
        self.I(f's_mov_b32 s{s+2}, {nbytes}'); self.I(f's_mov_b32 s{s+3}, 0x20000')
    def ln_stats(self, SUM, SSQ, R, C, T):
        I=self.I
        I(f'v_mul_f32 v{SUM}, 0x3b124925, v{SUM}')
        I(f'v_mul_f32 v{SSQ}, 0x3b124925, v{SSQ}')
        I(f'v_fma_f32 v{SSQ}, -v{SUM}, v{SUM}, v{SSQ}')
        I(f'v_max_f32 v{SSQ}, 0, v{SSQ}')
        I(f'v_cvt_pk_bf16_f32 v{SUM}, v{SUM}, v{SUM}')
        I(f'v_cvt_pk_bf16_f32 v{SSQ}, v{SSQ}, v{SSQ}')
        I(f'v_lshlrev_b32 v{SUM}, 16, v{SUM}')
        I(f'v_lshlrev_b32 v{SSQ}, 16, v{SSQ}')
        I(f'v_add_f32 v{SSQ}, 0x3727c5ac, v{SSQ}')
        self.rnd_bf16(SSQ)
        I(f'v_sqrt_f32 v{SSQ}, v{SSQ}')
        self.rnd_bf16(SSQ)
        I(f'v_rcp_f32 v{R}, v{SSQ}')
        I(f'v_mul_f32 v{C}, v{SUM}, v{R}')
        I(f'v_sub_f32 v{C}, 0, v{C}')
    def dot_sums(self, regs, accs):
        I=self.I
        for n,d in enumerate(regs):
            s,q = accs[2*(n&1)], accs[2*(n&1)+1]
            if n<2:
                I(f'v_dot2_f32_bf16 v{s}, v{d}, s{S_ONES}, 0')
                I(f'v_dot2_f32_bf16 v{q}, v{d}, v{d}, 0')
            else:
                I(f'v_dot2_f32_bf16 v{s}, v{d}, s{S_ONES}, v{s}')
                I(f'v_dot2_f32_bf16 v{q}, v{d}, v{d}, v{q}')
        I(f'v_add_f32 v{accs[0]}, v{accs[0]}, v{accs[2]}')
        I(f'v_add_f32 v{accs[1]}, v{accs[1]}, v{accs[3]}')
    def normalize(self, regs, R, C, tmps, hook=None):
        I=self.I
        n=len(tmps)
        for b in range(0,len(regs),n):
            grp=regs[b:b+n]
            for d,t in zip(grp,tmps):
                I(f'v_lshlrev_b32 v{t}, 16, v{d}')
                I(f'v_and_b32 v{t+1}, s{S_MASK}, v{d}')
            for d,t in zip(grp,tmps):
                I(f'v_pk_fma_f32 v[{t}:{t+1}], v[{t}:{t+1}], v[{R}:{R+1}], v[{C}:{C+1}] op_sel_hi:[1,0,0]')
            for d,t in zip(grp,tmps):
                I(f'v_cvt_pk_bf16_f32 v{d}, v{t}, v{t+1}')
            if hook: hook(b//n)
    def cmul(self, dr, di, xr, xi, yr, yi, t0, t1):
        I=self.I
        I(f'v_mul_f32 v{t0}, v{xi}, v{yi}')
        I(f'v_mul_f32 v{t1}, v{xi}, v{yr}')
        I(f'v_fma_f32 v{t0}, v{xr}, v{yr}, -v{t0}')
        I(f'v_fma_f32 v{di}, v{xr}, v{yi}, v{t1}')
        I(f'v_mov_b32 v{dr}, v{t0}')
    def cfma(self, dr, di, xr, xi, yr, yi, zr, zi, t0, t1):
        I=self.I
        I(f'v_fma_f32 v{t0}, v{xr}, v{yr}, v{zr}')
        I(f'v_fma_f32 v{t1}, v{xr}, v{yi}, v{zi}')
        I(f'v_fma_f32 v{t0}, -v{xi}, v{yi}, v{t0}')
        I(f'v_fma_f32 v{di}, v{xi}, v{yr}, v{t1}')
        I(f'v_mov_b32 v{dr}, v{t0}')
    def csq(self, dr, di, xr, xi, t0):
        I=self.I
        I(f'v_mul_f32 v{t0}, v{xi}, v{xi}')
        I(f'v_mul_f32 v{di}, v{xr}, v{xi}')
        I(f'v_fma_f32 v{dr}, v{xr}, v{xr}, -v{t0}')
        I(f'v_add_f32 v{di}, v{di}, v{di}')
    def allgather_q(self, v, g0, g1, g2, g3):
        I=self.I
        I(f'v_mov_b32 v{g0}, v{v}'); I(f'v_mov_b32 v{g1}, v{v}')
        I(f'v_permlane16_swap_b32 v{g0}, v{g1}')
        I(f'v_mov_b32 v{g2}, v{g0}'); I(f'v_mov_b32 v{g3}, v{g1}')
        I(f'v_permlane32_swap_b32 v{g0}, v{g2}')
        I(f'v_permlane32_swap_b32 v{g1}, v{g3}')
    def exec_full(self): self.I('s_mov_b64 exec, -1'); self.full=True
    def exec_set(self, lo, hi):
        self.full=False
        self.I(f's_mov_b32 exec_lo, {lo}'); self.I(f's_mov_b32 exec_hi, {hi}')
    def poll(self, name, voff, base, cmp_ge, nlanes_lo=None):
        I=self.I
        L=self.newlabel('poll'); D=self.newlabel('polld')
        I(f's_mov_b32 s{S_BOUND}, 0x40000')
        self.label(L)
        I(f'global_load_dword v7, v{voff}, {sp(base)} sc1')
        I('s_waitcnt vmcnt(0)'); self.vm={}
        I(f'v_cmp_gt_u32 vcc, {cmp_ge}, v7')
        I(f's_cbranch_vccz {D}')
        I('s_sleep 4')
        I(f's_sub_u32 s{S_BOUND}, s{S_BOUND}, 1')
        I(f's_cbranch_scc0 {L}')
        self.label(D)

    def ring_setup(self, pitch, xorsel):
        I=self.I
        I(f'v_lshrrev_b32 v7, 3, v{V_LANE}'); I(f'v_and_b32 v8, 7, v{V_LANE}')
        I('v_and_b32 v9, 6, v7'); I('v_xor_b32 v8, v8, v9'); I('v_lshlrev_b32 v8, 4, v8')
        I(f'v_mul_u32_u24 v7, {pitch}, v7'); I(f'v_add_u32 v{V_DMA[0]}, v7, v8')
        I(f'v_add_u32 v{V_DMA[1]}, {8*pitch-1024}, v{V_DMA[0]}')
        I(f'v_lshrrev_b32 v7, 2, v{V_LANE}'); I('v_and_b32 v8, 6, v7')
        I(f'v_bfe_u32 v9, v{V_LANE}, 1, 1'); I('v_xor_b32 v8, v8, v9'); I('v_lshlrev_b32 v8, 4, v8')
        I('v_lshlrev_b32 v7, 7, v7'); I('v_add_u32 v7, v7, v8')
        I(f'v_and_b32 v9, 1, v{V_LANE}'); I('v_lshlrev_b32 v9, 3, v9'); I('v_add_u32 v7, v7, v9')
        I(f's_lshl_b32 s{S_T0}, s{xorsel}, 6')
        I(f'v_xor_b32 v7, s{S_T0}, v7')
        I(f'v_add_u32 v{V_TR}, s{S_YB}, v7')
        for x in range(1,4):
            I(f'v_xor_b32 v{V_TR+x}, {x<<5}, v{V_TR}')
    def ring_init(self, name, nsteps, pitch, slots):
        self.R=dict(name=name,n=nsteps,pitch=pitch,free=list(slots),slot={},iss=0,rd=0,rel=0,piece=0)
    def ring_add(self, slots): self.R['free']+=list(slots)
    def ring_issue_piece(self):
        R=self.R; I=self.I
        k=R['iss']
        if k>=R['n']: return False
        j=R['piece']
        if j==0:
            if not R['free']: return False
            R['slot'][k]=R['free'].pop(0)
        if j%2==0:
            I(f's_add_u32 m0, s{S_YB}, {SLOT_OFF[R["slot"][k]]+j*1024}')
            if k or j: I(f's_add_u32 s{S_WO}, s{S_WO}, {16*R["pitch"]}')
            else: I('s_nop 0')
        I(f'buffer_load_dwordx4 v{V_DMA[j%2]}, {srd(SRD_W)}, s{S_WO} offen offset:{(j%2)*1024} lds', tag=(R['name'],k))
        R['piece']=(j+1)%4
        if R['piece']==0: R['iss']+=1
        return True
    def ring_issue(self):
        while self.ring_issue_piece(): pass
    def ring_read(self):
        R=self.R; I=self.I
        k=R['rd']
        if k>=R['n']: return False
        assert k<R['iss'], 'read before issue'
        off=SLOT_OFF[R['slot'][k]]
        self.wait(vm=[(R['name'],k)])
        for x in range(4):
            b=16*k+4*x
            I(f'ds_read_b64_tr_b16 {ar(b,2)}, v{V_TR+x} offset:{off}', tag=(R['name'],'r',k))
            I(f'ds_read_b64_tr_b16 {ar(b+2,2)}, v{V_TR+x} offset:{off+2048}', tag=(R['name'],'r',k))
        R['rd']+=1
        return True
    def ring_release(self):
        R=self.R
        k=R['rel']
        if k>=R['rd']: return False
        self.wait(lg=[(R['name'],'r',k)])
        R['free'].append(R['slot'][k]); R['rel']+=1
        self.ring_issue()
        return True
    def ring_tick(self):
        R=self.R
        if R['iss']<R['n']:
            if R['piece']==0 and not R['free']:
                if R['rel']>=R['rd']:
                    assert R['rd']<R.get('maxrd',99)
                    self.ring_read()
                k=R['rel']; self.wait(lg=[(R['name'],'r',k)]); R['free'].append(R['slot'][k]); R['rel']+=1
            self.ring_issue_piece()
            if R['piece']==3 and not R['free'] and R['rd']==R['rel'] and R['rd']<R['iss'] and R['rd']<R.get('maxrd',99):
                self.ring_read()
            return True
        if R['rd']<R['n'] and R['rd']<R.get('maxrd',99): return self.ring_read()
        return False
    def bg(self):
        return self.ring_tick()
    def replay_ring(self, RA):
        R=self.R
        while (R['iss'],R['piece'])<(RA['iss'],RA['piece']) or R['rd']<RA['rd']:
            if (R['iss'],R['piece'])<(RA['iss'],RA['piece']):
                before=R['rd']
                R['maxrd']=RA['rd']
                self.ring_tick()
            else:
                self.ring_read()
        while R['rel']<RA['rel']:
            k=R['rel']; self.wait(lg=[(R['name'],'r',k)]); R['free'].append(R['slot'][k]); R['rel']+=1
        R['maxrd']=99
        for k in RA: assert RA[k]==R[k], (k,RA[k],R[k])
    def ring_finish(self):
        R=self.R; R['maxrd']=99
        while R['rd']<R['n'] or R['iss']<R['n']: self.ring_tick()
        R['rel']=R['n']; self.R=None

    def reduce(self, tmp, pre=None, post=None):
        I=self.I
        for e in (1,2,3):
            I(f's_xor_b32 s{S_T0}, s{S_W}, {e}'); I(f's_mul_i32 s{S_T0}, s{S_T0}, {3*4096}')
            I(f's_add_u32 s{S_T0}, s{S_T0}, {LDS_X+(e-1)*4096}')
            I(f'v_add_u32 v7, s{S_T0}, v{V_L16}')
            xh,yh=e>>1,e&1
            for xl in range(2):
                for yl in range(2):
                    a=V_ACC+16*(2*xh+xl)+4*(2*yh+yl)
                    I(f'ds_write_b128 v7, {vr(a,4)} offset:{(2*xl+yl)*1024}', tag='redw')
        if pre: pre()
        self.wait(lg='all'); I('s_barrier')
        if post: post()
        I(f's_mul_i32 s{S_T0}, s{S_W}, {3*4096}'); I(f'v_add_u32 v7, s{S_T0}, v{V_L16}')
        for e in range(3):
            for sub in range(4):
                I(f'ds_read_b128 {vr(tmp+16*e+4*sub,4)}, v7 offset:{LDS_X+e*4096+sub*1024}', tag=('red',e))
        for e in range(3):
            self.wait(lg=[('red',e)])
            for sub in range(4):
                a=V_ACC+16*(sub>>1)+4*(sub&1)
                for h in range(2):
                    I(f'v_pk_add_f32 v[{a+2*h}:{a+2*h+1}], v[{a+2*h}:{a+2*h+1}], v[{tmp+16*e+4*sub+2*h}:{tmp+16*e+4*sub+2*h+1}]')

    def prologue(self):
        I=self.I
        I('s_cmp_ge_u32 s2, 256'); I('s_cbranch_scc1 L_exit')
        I('s_load_dwordx16 s[4:19], s[0:1], 0')
        if self.opt.pfearly:
            I('s_getpc_b64 s[98:99]'); self.label('L_pc0')
            I(f's_sub_u32 s98, s98, L_pc0-{KN}'); I('s_subb_u32 s99, s99, 0')
            I('v_lshlrev_b32 v9, 7, v0'); I(f'v_min_u32 v9, L_code_end-{KN}-16, v9')
            I('global_load_dword v12, v9, s[98:99]', tag='pf')
        I('s_load_dwordx2 s[20:21], s[0:1], 64')
        I('s_load_dwordx8 s[24:31], s[0:1], 80')
        I('s_load_dwordx4 s[32:35], s[0:1], 112')
        I('s_load_dwordx2 s[36:37], s[0:1], 128')
        I('v_lshrrev_b32 v7, 6, v0'); I(f'v_and_b32 v{V_LANE}, 63, v0')
        I(f'v_readfirstlane_b32 s{S_W}, v7')
        I(f'v_lshlrev_b32 v{V_L16}, 4, v{V_LANE}')
        I(f's_mov_b32 s{S_MASK}, 0xffff0000'); I(f's_mov_b32 s{S_ONES}, 0x3f803f80')
        I('s_and_b32 s22, s2, 7')
        I('s_lshr_b32 s23, s2, 3')
        I('s_and_b32 s38, s22, 1')
        I('s_lshr_b32 s39, s22, 1')
        I(f's_lshr_b32 s{S_WH}, s{S_W}, 1'); I(f's_and_b32 s{S_WL}, s{S_W}, 1')
        I(f's_mul_i32 s{S_T0}, s23, 37'); I(f's_lshr_b32 s{S_T0}, s{S_T0}, 8')
        I(f's_mul_i32 s{S_T1}, s{S_T0}, 7'); I(f's_sub_u32 s{S_G}, s23, s{S_T1}')
        I(f's_mov_b32 s{S_DT1}, s{S_G}')
        I(f's_lshl_b32 s{S_T1}, s22, 2'); I(f's_add_u32 s{S_C}, s{S_T1}, s{S_T0}')
        I(f's_min_u32 s{S_C}, s{S_C}, 31')
        I(f's_mul_i32 s{S_T1}, s39, 7'); I(f's_lshl_b32 s{S_T2}, s38, 2'); I(f's_add_u32 s87, s{S_T1}, s{S_T2}')
        I(f's_add_u32 s{S_FT}, s87, s{S_T0}'); I(f's_min_u32 s{S_FT}, s{S_FT}, 27')
        I(f's_sub_u32 s{S_T1}, 4, s38'); I(f's_cmp_lt_u32 s{S_T0}, s{S_T1}'); I(f's_cselect_b32 s{S_HASG1}, 1, 0')
        I('s_cmp_lt_u32 s23, 28'); I('s_cselect_b32 s74, 1, 0')
        self.wait(lg='all')
        self.make_srd(SRD_X, P_X, 2048*896)
        self.x8_issue(2)
        if not self.opt.pfearly:
            I('s_getpc_b64 s[98:99]'); self.label('L_pc0')
            I(f's_sub_u32 s98, s98, L_pc0-{KN}'); I('s_subb_u32 s99, s99, 0')
            I(f's_and_b32 s{S_T0}, s23, 1'); I(f's_lshl_b32 s{S_T0}, s{S_T0}, 2'); I(f's_add_u32 s{S_T0}, s{S_T0}, s{S_W}')
            I(f's_lshl_b32 s{S_T0}, s{S_T0}, 13')
            I(f'v_lshlrev_b32 v9, 7, v{V_LANE}'); I(f'v_add_u32 v9, s{S_T0}, v9')
            I(f'v_min_u32 v9, L_code_end-{KN}-16, v9')
            I('global_load_dword v12, v9, s[98:99]', tag='pf')
        self.make_srd(SRD_WS, P_WS, 0x10000000)
        I(f's_mul_i32 s{S_YB}, s{S_W}, {YW}'); I(f's_add_u32 s{S_YB}, s{S_YB}, {LDS_Y}')
        I(f's_sub_u32 s{S_E}, s23, 28'); I(f's_lshl_b32 s{S_E}, s{S_E}, 3'); I(f's_add_u32 s{S_E}, s{S_E}, s22')
        I('s_mov_b32 s86, s23'); I('s_mov_b32 s95, s22')
        self.stamp('start'); self.cstamp('c0')

    def x8_issue(self, oct):
        I=self.I
        I(f's_lshr_b32 s75, s{oct}, 2'); I('s_lshl_b32 s75, s75, 5')
        I(f's_lshl_b32 s{S_T0}, s{S_WH}, 4'); I(f's_add_u32 s75, s75, s{S_T0}')
        I(f's_and_b32 s{S_T0}, s{oct}, 3'); I(f's_lshl_b32 s{S_T0}, s{S_T0}, 2'); I(f's_add_u32 s75, s75, s{S_T0}')
        I(f's_lshl_b32 s{S_T0}, s{S_WL}, 1'); I(f's_add_u32 s75, s75, s{S_T0}')
        I(f's_mul_i32 s{S_T2}, s75, 896')
        I(f'v_and_b32 v7, 31, v{V_LANE}'); I(f'v_lshrrev_b32 v8, 5, v{V_LANE}')
        I('v_mul_u32_u24 v8, 896, v8'); I('v_lshlrev_b32 v9, 5, v7'); I('v_add_u32 v8, v8, v9')
        I('v_mov_b32 v9, 0x7ffffff0'); I('v_cmp_gt_u32 vcc, 28, v7'); I('v_cndmask_b32 v8, v9, v8, vcc')
        I(f'buffer_load_dwordx4 {vr(V_T,4)}, v8, {srd(SRD_X)}, s{S_T2} offen', tag='x8')
        I(f'buffer_load_dwordx4 {vr(V_T+4,4)}, v8, {srd(SRD_X)}, s{S_T2} offen offset:16', tag='x8')
    def touches_pre(self):
        I=self.I
        self.make_srd(SRD_1, P_BRE, 448*896); self.make_srd(SRD_2, P_BIM, 448*896); self.make_srd(SRD_W, P_W1, 2048*3584)
        I(f'v_lshrrev_b32 v7, 3, v{V_LANE}'); I(f'v_and_b32 v8, 7, v{V_LANE}'); I('v_min_u32 v8, 6, v8')
        I('v_mul_u32_u24 v7, 896, v7'); I('v_lshlrev_b32 v8, 7, v8'); I('v_add_u32 v7, v7, v8')
        I(f's_lshl_b32 s{S_T3}, s86, 2'); I(f's_add_u32 s{S_T3}, s{S_T3}, s{S_W}')
        I(f's_lshl_b32 s{S_T0}, s95, 8'); I(f's_lshl_b32 s{S_T1}, s{S_T3}, 1'); I(f's_add_u32 s{S_T0}, s{S_T0}, s{S_T1}'); I(f's_mul_i32 s{S_T0}, s{S_T0}, 896')
        self.exec_set('0xffff','0')
        I(f'buffer_load_dword v12, v7, {srd(SRD_X)}, s{S_T0} offen', tag='touch')
        I(f's_and_b32 s{S_T0}, s{S_T3}, 63'); I(f's_mul_i32 s{S_T0}, s{S_T0}, {7*896}')
        I(f's_cmp_lt_u32 s{S_T3}, 64')
        I(f's_cselect_b32 s{SRD_OUT}, s{P_BRE}, s{P_BIM}'); I(f's_cselect_b32 s{SRD_OUT+1}, s{P_BRE+1}, s{P_BIM+1}')
        I(f's_mov_b32 s{SRD_OUT+2}, {448*896}'); I(f's_mov_b32 s{SRD_OUT+3}, 0x20000')
        self.exec_set('-1','0x00ffffff')
        I(f'buffer_load_dword v12, v7, {srd(SRD_OUT)}, s{S_T0} offen', tag='touch')
        self.exec_full()
    def touch_w1(self, setup_only=False):
        I=self.I
        I(f'v_lshrrev_b32 v7, 2, v{V_LANE}'); I(f'v_and_b32 v8, 3, v{V_LANE}')
        I(f's_and_b32 s{S_T1}, s95, 1'); I(f's_sub_u32 s{S_T1}, 3, s{S_T1}'); I(f'v_min_u32 v8, s{S_T1}, v8')
        I('v_mul_u32_u24 v7, 3584, v7'); I('v_lshlrev_b32 v8, 7, v8'); I('v_add_u32 v7, v7, v8')
        I(f's_lshl_b32 s{S_T0}, s{S_W}, 9'); I(f's_lshl_b32 s{S_T1}, s86, 4'); I(f's_add_u32 s{S_T0}, s{S_T0}, s{S_T1}')
        I(f's_mul_i32 s{S_T0}, s{S_T0}, 3584'); I(f's_lshl_b32 s{S_T1}, s87, 7'); I(f's_add_u32 s{S_T0}, s{S_T0}, s{S_T1}')
        if setup_only:
            I('v_mov_b32 v238, v7'); I(f's_mov_b32 s94, s{S_T0}'); return
        I(f'buffer_load_dword v12, v7, {srd(SRD_W)}, s{S_T0} offen', tag='touch')
    def touch_w1_split(self, rest):
        I=self.I
        I(f'v_lshrrev_b32 v7, 2, v{V_LANE}'); I(f'v_and_b32 v8, 3, v{V_LANE}')
        I(f's_and_b32 s{S_T1}, s95, 1'); I(f's_sub_u32 s{S_T1}, 3, s{S_T1}'); I(f'v_min_u32 v8, s{S_T1}, v8')
        I('v_mul_u32_u24 v7, 3584, v7'); I('v_lshlrev_b32 v8, 7, v8'); I('v_add_u32 v7, v7, v8')
        I(f's_lshl_b32 s{S_T0}, s{S_W}, 9')
        if not rest:
            I(f's_lshl_b32 s{S_T1}, s86, 3'); I(f's_add_u32 s{S_T0}, s{S_T0}, s{S_T1}')
        else:
            I(f's_sub_u32 s{S_T1}, s86, 28'); I(f's_lshl_b32 s{S_T1}, s{S_T1}, 4'); I(f's_add_u32 s{S_T0}, s{S_T0}, s{S_T1}'); I(f's_add_u32 s{S_T0}, s{S_T0}, 224')
        I(f's_mul_i32 s{S_T0}, s{S_T0}, 3584'); I(f's_lshl_b32 s{S_T1}, s87, 7'); I(f's_add_u32 s{S_T0}, s{S_T0}, s{S_T1}')
        if not rest:
            self.exec_set('-1','0')
            I(f'buffer_load_dword v12, v7, {srd(SRD_W)}, s{S_T0} offen', tag='touch')
            self.exec_full()
        else:
            for t in range(5):
                I(f'buffer_load_dword v12, v7, {srd(SRD_W)}, s{S_T0} offen', tag='touch')
                if t<4: I(f's_add_u32 s{S_T0}, s{S_T0}, {64*3584}')
    def touch_w1_wg(self):
        I=self.I
        I(f'v_lshrrev_b32 v7, 2, v{V_LANE}'); I(f'v_and_b32 v8, 3, v{V_LANE}')
        I(f's_and_b32 s{S_T1}, s95, 1'); I(f's_sub_u32 s{S_T1}, 3, s{S_T1}'); I(f'v_min_u32 v8, s{S_T1}, v8')
        I('v_mul_u32_u24 v7, 3584, v7'); I('v_lshlrev_b32 v8, 7, v8'); I('v_add_u32 v7, v7, v8')
        I(f's_lshl_b32 s{S_T0}, s86, 4'); I(f's_mul_i32 s{S_T0}, s{S_T0}, 3584'); I(f's_lshl_b32 s{S_T1}, s87, 7'); I(f's_add_u32 s{S_T0}, s{S_T0}, s{S_T1}')
        for q in range(4):
            I(f'buffer_load_dword v12, v7, {srd(SRD_W)}, s{S_T0} offen', tag='touch')
            if q<3: I(f's_add_u32 s{S_T0}, s{S_T0}, {512*3584}')
    def q_w3(self):
        I=self.I
        def xpair(p):
            def f():
                L=self.newlabel('xw3')
                I(f's_add_u32 s100, s{S_W}, {3*p}'); I('s_cmp_ge_u32 s100, 8'); I(f's_cbranch_scc1 {L}')
                snap=self.snapshot()
                I('s_lshl_b32 s101, s100, 4'); I(f'v_xor_b32 v238, s101, v{V_L16}')
                I('s_lshr_b32 s101, s100, 1'); I('s_lshl_b32 s101, s101, 4'); I('s_and_b32 s100, s100, 1'); I('s_lshl_b32 s100, s100, 1')
                I('s_add_u32 s100, s100, s101'); I('s_add_u32 s100, s100, 12'); I('s_mul_i32 s100, s100, 896')
                I(f's_lshl_b32 s101, s{S_C}, 6'); I('s_mul_i32 s101, s101, 896'); I('s_add_u32 s101, s101, s100')
                I('s_mov_b32 exec_hi, 0x00ffffff')
                I(f's_add_u32 m0, s100, {LDS_X}'); I('s_nop 0')
                I(f'buffer_load_dwordx4 v238, {srd(SRD_X)}, s101 offen lds', tag='x64')
                I(f's_add_u32 m0, s100, {LDS_X+896}'); I('s_add_u32 s101, s101, 896')
                I(f'buffer_load_dwordx4 v238, {srd(SRD_X)}, s101 offen lds', tag='x64')
                I('s_mov_b32 exec_hi, -1')
                self.label(L); self.merge(snap); self.vm['x64']=0
            return f
        def bblock(p):
            def f():
                L=self.newlabel('bw3'); Li=self.newlabel('bw3i')
                I(f's_add_u32 s100, s{S_W}, {3*p}'); I('s_cmp_ge_u32 s100, 8'); I(f's_cbranch_scc1 {L}')
                snap=self.snapshot()
                I('s_and_b32 s101, s100, 3'); I('s_sub_u32 s91, 0, s101'); I('s_and_b32 s91, s91, 3'); I('s_lshl_b32 s91, s91, 4')
                I(f'v_xor_b32 v238, s91, v{V_L16}')
                I('s_bitcmp1_b32 s100, 2')
                I(f's_cselect_b32 s{SRD_OUT}, s{P_BIM}, s{P_BRE}'); I(f's_cselect_b32 s{SRD_OUT+1}, s{P_BIM+1}, s{P_BRE+1}')
                I('s_cselect_b32 s100, 13312, 0')
                I('s_mul_i32 s91, s101, 3328'); I('s_add_u32 s100, s100, s91'); I(f's_add_u32 s100, s100, {LDS_Y+3*YW}')
                I('s_mul_i32 s101, s101, 3584')
                I(f's_lshl_b32 s91, s{S_G}, 6'); I('s_add_u32 s91, s91, 48'); I('s_mul_i32 s91, s91, 896'); I('s_add_u32 s101, s101, s91')
                I('s_mov_b32 exec_hi, 0x000fffff')
                for r in range(4):
                    I(f's_add_u32 m0, s100, {r*832}')
                    if r: I('s_add_u32 s101, s101, 896')
                    else: I('s_nop 0')
                    I(f'buffer_load_dwordx4 v238, {srd(SRD_OUT)}, s101 offen lds', tag='bdma')
                I('s_mov_b32 exec_hi, -1')
                self.label(L); self.merge(snap); self.vm['bdma']=0
            return f
        return [xpair(p) for p in range(3)], [bblock(p) for p in range(3)]
    def dma_setup(self):
        I=self.I
        for n,h in enumerate((0,3,2,1)): I(f'v_xor_b32 v{224+n}, {h<<4}, v{V_L16}')
        for g in range(8): I(f'v_xor_b32 v{228+g}, {g<<4}, v{V_L16}')
        I(f's_lshl_b32 s{S_T0}, s{S_G}, 6'); I(f's_lshl_b32 s{S_T1}, s{S_W}, 4'); I(f's_add_u32 s88, s{S_T0}, s{S_T1}')
        I('s_mul_i32 s89, s88, 896')
        I(f's_lshl_b32 s{S_T0}, s{S_C}, 6'); I(f's_lshl_b32 s{S_T1}, s{S_W}, 2'); I(f's_add_u32 s{S_T0}, s{S_T0}, s{S_T1}')
        I(f's_mul_i32 s92, s{S_T0}, 896')
        I(f's_mul_i32 s93, s{S_W}, 3584')
        I(f'v_and_b32 v7, 15, v{V_LANE}'); I('v_mul_u32_u24 v236, 896, v7'); I(f'v_lshrrev_b32 v9, 4, v{V_LANE}'); I('v_lshlrev_b32 v9, 4, v9')
        I('v_add_u32 v236, v236, v9')
        I('v_add_u32 v237, s88, v7'); I('v_lshlrev_b32 v237, 1, v237')
    def q_b(self):
        I=self.I
        def row(im,n):
            def f():
                I('s_mov_b32 exec_hi, 0x000fffff')
                I(f's_add_u32 m0, s{S_YB}, {im*13312+n*832}')
                I(f's_add_u32 s91, s89, {n*896}')
                I(f'buffer_load_dwordx4 v{224+(n>>2)}, {srd(SRD_1 if im==0 else SRD_2)}, s91 offen lds', tag='bdma'); self.nb+=1
                I('s_mov_b32 exec_hi, -1')
            return f
        for im in range(2):
            for n in range(16): self.q.append(row(im,n))
        def b13(srdn,dst):
            def f():
                I(f'buffer_load_dwordx4 {vr(dst,4)}, v236, {srd(srdn)}, s89 offen offset:832', tag='b13'); self.nb+=1
            return f
        if self.opt.w1touch=='W':
            self.b13_loads=lambda: (b13(SRD_1,V_BF+52)(), b13(SRD_2,V_BF+56+52)())
        else:
            self.q.append(b13(SRD_1,V_BF+52)); self.q.append(b13(SRD_2,V_BF+56+52))
        def lam():
            I(f'global_load_ushort v{V_IN}, v237, {sp(P_LRE)}', tag='lam')
            I(f'global_load_ushort v{V_IN+1}, v237, {sp(P_LIM)}', tag='lam')
            I(f'global_load_ushort v{V_IN+2}, v237, {sp(P_LDT)}', tag='lam')
        self.q.insert(0,lam)
    def q_x(self, alist):
        I=self.I
        def row(a,b):
            def f():
                g=2*a+(b>>1); d=(16*a+b)*896
                I('s_mov_b32 exec_hi, 0x00ffffff')
                I(f's_add_u32 m0, s93, {LDS_X+d}')
                I(f's_add_u32 s91, s92, {d}')
                I(f'buffer_load_dwordx4 v{228+g}, {srd(SRD_X)}, s91 offen lds', tag='x64'); self.nx+=1
                I('s_mov_b32 exec_hi, -1')
            return f
        for a in alist:
            for b in range(4): self.q.append(row(a,b))
    def b_read(self):
        I=self.I
        I(f'v_and_b32 v7, 15, v{V_LANE}'); I(f'v_lshrrev_b32 v8, 4, v{V_LANE}'); I('v_lshrrev_b32 v9, 2, v7')
        I('v_sub_u32 v9, 0, v9'); I('v_and_b32 v9, 3, v9'); I('v_xor_b32 v8, v8, v9')
        I('v_lshlrev_b32 v8, 4, v8'); I('v_mul_u32_u24 v7, 832, v7'); I('v_add_u32 v7, v7, v8'); I(f'v_add_u32 v7, s{S_YB}, v7')
        if self.opt.w1touch!='W': self.wait(vm=['bdma'])
        for im in range(2):
            for j in range(13):
                I(f'ds_read_b128 {vr(V_BF+56*im+4*j,4)}, v7 offset:{im*13312+j*64}', tag='brd')
    def touch_pf(self, which):
        I=self.I
        if which==1: pitch,nrow,nt,srdn=3584,512,8,SRD_W
        else:
            pitch,nrow,nt,srdn=4096,448,7,SRD_OUT
            self.make_srd(SRD_OUT, P_W2, 1792*4096)
        I(f'v_lshrrev_b32 v7, 2, v{V_LANE}'); I(f'v_and_b32 v8, 3, v{V_LANE}')
        if which==1:
            I(f's_and_b32 s{S_T1}, s95, 1'); I(f's_sub_u32 s{S_T1}, 3, s{S_T1}'); I(f'v_min_u32 v8, s{S_T1}, v8')
        I(f'v_mul_u32_u24 v7, {pitch}, v7'); I('v_lshlrev_b32 v8, 7, v8'); I('v_add_u32 v7, v7, v8')
        I(f's_mul_i32 s{S_T0}, s{S_W}, {nrow}'); I(f's_sub_u32 s{S_T1}, s86, 28'); I(f's_lshl_b32 s{S_T1}, s{S_T1}, 4'); I(f's_add_u32 s{S_T0}, s{S_T0}, s{S_T1}')
        I(f's_mul_i32 s{S_T0}, s{S_T0}, {pitch}')
        if which==1: I(f's_lshl_b32 s{S_T1}, s87, 7')
        else: I(f's_lshl_b32 s{S_T1}, s95, 9')
        I(f's_add_u32 s{S_T0}, s{S_T0}, s{S_T1}')
        for t in range(nt):
            I(f'buffer_load_dword v12, v7, {srd(srdn)}, s{S_T0} offen', tag='touch2')
            if t<nt-1: I(f's_add_u32 s{S_T0}, s{S_T0}, {64*pitch}')
    def ln8(self, oct=2, clears=True):
        I=self.I
        D=list(range(V_T,V_T+8)); SUM,SSQ,S2,Q2=24,25,26,27; R,C=28,30; TM=[32,34,36,38]
        self.wait(vm=['x8'])
        def reduce32():
            for rot in (8,4,2,1):
                I(f'v_add_f32_dpp v{SUM}, v{SUM}, v{SUM} row_ror:{rot} row_mask:0xf bank_mask:0xf')
                I(f'v_add_f32_dpp v{SSQ}, v{SSQ}, v{SSQ} row_ror:{rot} row_mask:0xf bank_mask:0xf')
            I(f'v_mov_b32 v{S2}, v{SUM}'); I(f'v_mov_b32 v{Q2}, v{SSQ}')
            I(f'v_permlane16_swap_b32 v{SUM}, v{S2}'); I(f'v_permlane16_swap_b32 v{SSQ}, v{Q2}')
            I(f'v_add_f32 v{SUM}, v{SUM}, v{S2}'); I(f'v_add_f32 v{SSQ}, v{SSQ}, v{Q2}')
        self.dot_sums(D,[SUM,SSQ,S2,Q2]); reduce32()
        self.ln_stats(SUM,SSQ,R,C,None)
        I(f'v_mov_b32 v10, v{SUM}'); I(f'v_mov_b32 v11, v{R}')
        I(f'v_lshrrev_b32 v8, 5, v{V_LANE}'); I('v_lshlrev_b32 v8, 2, v8')
        I(f's_lshl_b32 s{S_T0}, s75, 2'); I(f's_add_u32 s{S_T0}, s{S_T0}, {WS_STAT}'); I(f's_add_u32 s{S_T1}, s{S_T0}, 8192')
        self.exec_set(1,1)
        I(f'buffer_store_dword v10, v8, {srd(SRD_WS)}, s{S_T0} offen sc1', tag='st0')
        I(f'buffer_store_dword v11, v8, {srd(SRD_WS)}, s{S_T1} offen sc1', tag='st0')
        self.exec_full()
        if clears and self.opt.w1touch=='W' and not self.opt.notouch3:
            Lt=self.newlabel('notouch')
            I(f's_cmp_lg_u32 s{S_W}, 3'); I(f's_cbranch_scc1 {Lt}')
            snap=self.snapshot()
            self.touch_w1_wg()
            self.label(Lt); self.merge(snap)
        I(f'v_and_b32 v7, 31, v{V_LANE}'); I('v_cmp_gt_u32 vcc, 28, v7')
        I(f'v_cndmask_b32 v{R}, 0, v{R}, vcc'); I(f'v_cndmask_b32 v{C}, 0, v{C}, vcc')
        self.normalize(D,R,C,TM)
        self.dot_sums(D,[SUM,SSQ,S2,Q2]); reduce32()
        self.ln_stats(SUM,SSQ,R,C,None)
        self.normalize(D,R,C,TM)
        self.auto=0
        I(f'v_lshrrev_b32 v8, 5, v{V_LANE}'); I(f's_lshl_b32 s{S_T0}, s{S_W}, 1'); I(f'v_add_u32 v8, s{S_T0}, v8')
        I('v_mul_u32_u24 v8, 960, v8'); I('v_lshlrev_b32 v9, 5, v7'); I('v_add_u32 v8, v8, v9'); I(f'v_add_u32 v8, {LDS_LN8}, v8')
        self.exec_set('0x0fffffff','0x0fffffff')
        I(f'ds_write_b128 v8, {vr(V_T,4)} offset:0'); I(f'ds_write_b128 v8, {vr(V_T+4,4)} offset:16')
        self.exec_full()
        self.wait(lg='all'); I('s_barrier')
        I(f'v_and_b32 v7, 15, v{V_LANE}'); I('v_lshrrev_b32 v8, 2, v7'); I('v_mul_u32_u24 v8, 960, v8')
        I(f'v_lshrrev_b32 v9, 4, v{V_LANE}'); I('v_lshlrev_b32 v10, 5, v9'); I('v_add_u32 v8, v8, v10')
        I(f'v_and_b32 v10, 3, v{V_LANE}'); I('v_lshlrev_b32 v10, 3, v10'); I('v_add_u32 v8, v8, v10')
        I(f's_lshl_b32 s{S_T0}, s{S_W}, 7'); I(f's_add_u32 s{S_T0}, s{S_T0}, {LDS_LN8}'); I(f'v_add_u32 v8, s{S_T0}, v8')
        I('v_lshlrev_b32 v9, 10, v9'); I('v_lshlrev_b32 v7, 4, v7'); I('v_add_u32 v9, v9, v7')
        I(f's_lshr_b32 s{S_T0}, s{oct}, 2'); I(f's_lshl_b32 s{S_T0}, s{S_T0}, 12')
        I(f's_and_b32 s{S_T1}, s{oct}, 3'); I(f's_lshl_b32 s{S_T1}, s{S_T1}, 8'); I(f's_add_u32 s{S_T0}, s{S_T0}, s{S_T1}')
        I(f's_lshl_b32 s{S_T1}, s{S_W}, 18'); I(f's_add_u32 s{S_T0}, s{S_T0}, s{S_T1}')
        if self.opt.w1touch=='W':
            Lno=self.newlabel('ln8none'); L6=self.newlabel('ln8no6')
            I(f's_cmp_eq_u32 s{S_W}, 3'); I(f's_cbranch_scc1 {Lno}')
            snap=self.snapshot()
            for i in range(2):
                I(f'ds_read_b64_tr_b16 v[{16+4*i}:{17+4*i}], v8 offset:{384*i}', tag='t0')
                I(f'ds_read_b64_tr_b16 v[{18+4*i}:{19+4*i}], v8 offset:{384*i+3840}', tag='t0')
            I(f's_add_u32 s{S_T1}, s{S_T0}, {3*262144}')
            self.wait(lg='all')
            I(f'buffer_store_dwordx4 v[16:19], v9, {srd(SRD_WS)}, s{S_T0} offen sc1', tag='st0')
            I(f'buffer_store_dwordx4 v[20:23], v9, {srd(SRD_WS)}, s{S_T1} offen sc1', tag='st0')
            I(f's_cmp_lg_u32 s{S_W}, 0'); I(f's_cbranch_scc1 {L6}')
            I(f'ds_read_b64_tr_b16 v[24:25], v8 offset:768', tag='t0')
            I(f'ds_read_b64_tr_b16 v[26:27], v8 offset:{768+3840}', tag='t0')
            I(f's_add_u32 s{S_T1}, s{S_T0}, {6*262144}')
            self.wait(lg='all')
            I(f'buffer_store_dwordx4 v[24:27], v9, {srd(SRD_WS)}, s{S_T1} offen sc1', tag='st0')
            self.label(L6)
            self.label(Lno); self.merge(snap); self.vm['st0']=0
        else:
            I(f'ds_read_b64_tr_b16 v[16:17], v8 offset:0', tag='t0')
            I(f'ds_read_b64_tr_b16 v[18:19], v8 offset:3840', tag='t0')
            Lskip=self.newlabel('ln8skip')
            I(f's_cmp_eq_u32 s{S_W}, 3'); I(f's_cbranch_scc1 {Lskip}')
            snap=self.snapshot()
            I(f'ds_read_b64_tr_b16 v[20:21], v8 offset:512', tag='t1')
            I(f'ds_read_b64_tr_b16 v[22:23], v8 offset:{512+3840}', tag='t1')
            I(f's_add_u32 s{S_T1}, s{S_T0}, {4*262144}')
            self.wait(lg='all')
            I(f'buffer_store_dwordx4 v[20:23], v9, {srd(SRD_WS)}, s{S_T1} offen sc1', tag='st0')
            self.label(Lskip); self.merge(snap)
            self.wait(lg='all')
            I(f'buffer_store_dwordx4 v[16:19], v9, {srd(SRD_WS)}, s{S_T0} offen sc1', tag='st0')
        if not clears:
            I('s_barrier'); return
        Ln=self.newlabel('noclr')
        I(f's_cmp_lg_u32 s{S_W}, {1 if self.opt.w1touch=="W" else 3}'); I(f's_cbranch_scc1 {Ln}')
        snap=self.snapshot()
        I('v_mov_b32 v8, 0')
        I('v_mov_b32 v10, -1'); I('v_mov_b32 v11, -1'); I(f'v_lshlrev_b32 v9, 3, v{V_LANE}')
        I(f's_lshl_b32 s{S_T0}, s{S_G}, 5'); I(f's_add_u32 s{S_T0}, s{S_T0}, s{S_C}'); I(f's_lshl_b32 s{S_T0}, s{S_T0}, 9')
        I(f's_add_u32 s{S_T0}, s{S_T0}, {WS_E}')
        I(f'buffer_store_dwordx2 v[10:11], v9, {srd(SRD_WS)}, s{S_T0} offen sc1', tag='st0')
        I(f's_mul_i32 s{S_T0}, s{S_C}, 7'); I(f's_add_u32 s{S_T0}, s{S_T0}, s{S_G}'); I(f's_lshl_b32 s{S_T0}, s{S_T0}, 6')
        I(f's_add_u32 s{S_T0}, s{S_T0}, {WS_FH}')
        I('v_mov_b32 v10, 0')
        self.exec_set(1,0)
        I(f'buffer_store_dword v10, v8, {srd(SRD_WS)}, s{S_T0} offen sc1', tag='st0')
        Lg=self.newlabel('nog1clr'); Lc=self.newlabel('nocclr')
        I(f's_cmp_eq_u32 s{S_HASG1}, 0'); I(f's_cbranch_scc1 {Lg}')
        I(f's_mul_i32 s{S_T0}, s{S_DT1}, 28'); I(f's_add_u32 s{S_T0}, s{S_T0}, s{S_FT}'); I(f's_lshl_b32 s{S_T0}, s{S_T0}, 6')
        I(f's_add_u32 s{S_T0}, s{S_T0}, {WS_FG}')
        I(f'buffer_store_dword v10, v8, {srd(SRD_WS)}, s{S_T0} offen sc1', tag='st0')
        self.label(Lg)
        I('s_cmp_lg_u32 s95, 0'); I(f's_cbranch_scc1 {Lc}')
        I(f's_lshl_b32 s{S_T0}, s86, 6'); I(f's_add_u32 s{S_T0}, s{S_T0}, {WS_FC}')
        I(f'buffer_store_dword v10, v8, {srd(SRD_WS)}, s{S_T0} offen sc1', tag='st0')
        self.label(Lc)
        self.exec_full()
        self.label(Ln); self.merge(snap); self.vm['st0']=0
        I('s_barrier')

    def ln8_extra(self):
        I=self.I
        L=self.newlabel('noextra'); Lp=self.newlabel('extra')
        I(f's_cmp_lg_u32 s{S_HASG1}, 0'); I(f's_cbranch_scc1 {L}')
        snap=self.snapshot()
        I('s_lshr_b32 s3, s95, 1'); I('s_mul_i32 s3, s3, 7'); I('s_add_u32 s3, s3, s86'); I('s_add_u32 s3, s3, 203')
        self.label(Lp)
        self.x8_issue(3)
        I('s_waitcnt vmcnt(0)'); self.vm={}; self.vm['x8']=0
        self.ln8(oct=3, clears=False)
        I('s_add_u32 s3, s3, 28'); I('s_cmp_lt_u32 s3, 256'); I(f's_cbranch_scc1 {Lp}')
        I('s_waitcnt vmcnt(0)')
        self.label(L); self.restore(snap); self.vm['st0']=min(self.vm.get('st0',0),0)

    def arrive0(self):
        I=self.I
        self.wait(vm=['st0']); I('s_barrier')
        L=self.newlabel('arr')
        I(f's_cmp_lg_u32 s{S_W}, 0'); I(f's_cbranch_scc1 {L}')
        snap=self.snapshot()
        I('s_and_b32 s3, s2, 3'); I('s_lshl_b32 s3, s3, 6'); I('v_mov_b32 v8, s3'); I('v_mov_b32 v9, 1')
        self.exec_set(1,0)
        I(f'global_atomic_add v8, v9, {sp(P_DBG)} sc1')
        self.exec_full()
        self.label(L); self.merge(snap)

    def w1_setup(self):
        I=self.I
        self.ring_setup(3584, S_WH)
        I(f's_mul_i32 s{S_WBEG}, s{S_W}, {512*3584}'); I(f's_lshl_b32 s{S_T0}, s{S_FT}, 7'); I(f's_add_u32 s{S_WBEG}, s{S_WBEG}, s{S_T0}')
        I(f's_mov_b32 s{S_WO}, s{S_WBEG}')

    def lam_consts(self):
        I=self.I
        LRE,LIM,LDT=V_IN,V_IN+1,V_IN+2
        t=list(range(16,40))
        self.wait(vm=['lam'])
        for r in (LRE,LIM,LDT): I(f'v_lshlrev_b32 v{r}, 16, v{r}')
        I(f'v_mul_f32 v{LDT}, 0x3fb8aa3b, v{LDT}'); I(f'v_exp_f32 v{LDT}, v{LDT}')
        self.rnd_bf16(LDT)
        I(f'v_mul_f32 v16, v{LDT}, v{LRE}'); I(f'v_mul_f32 v17, v{LDT}, v{LIM}')
        I('v_mul_f32 v16, 0x3fb8aa3b, v16'); I('v_mul_f32 v17, 0.15915494, v17')
        I('v_exp_f32 v16, v16'); I('v_fract_f32 v17, v17')
        I('v_cos_f32 v18, v17'); I('v_sin_f32 v19, v17')
        I(f'v_mul_f32 v{V_LR}, v16, v18'); I(f'v_mul_f32 v{V_LI}, v16, v19')
        I(f'v_add_f32 v16, -1.0, v{V_LR}')
        I(f'v_mul_f32 v17, v{LRE}, v{LRE}'); I(f'v_fma_f32 v17, v{LIM}, v{LIM}, v17'); I('v_rcp_f32 v17, v17')
        I(f'v_mul_f32 v18, v16, v{LRE}'); I(f'v_fma_f32 v18, v{V_LI}, v{LIM}, v18')
        I(f'v_mul_f32 v19, v16, v{LIM}'); I(f'v_fma_f32 v19, v{V_LI}, v{LRE}, -v19')
        I('v_add_f32 v17, v17, v17')
        I(f'v_mul_f32 v{V_K1}, v18, v17'); I(f'v_mul_f32 v{V_K2}, v19, v17'); I(f'v_sub_f32 v{V_K2}, 0, v{V_K2}')
        self.csq(16,17,V_LR,V_LI,30); self.csq(18,19,16,17,30); self.csq(16,17,18,19,30); self.csq(20,21,16,17,30)
        self.csq(22,23,20,21,30)
        self.cmul(24,25,22,23,20,21,30,31)
        self.csq(V_L64R,V_L64I,22,23,30)
        self.csq(16,17,V_L64R,V_L64I,30); self.csq(18,19,16,17,30); self.csq(V_L512R,V_L512I,18,19,30)
        I(f'v_mov_b32 v{V_PR}, 1.0'); I(f'v_mov_b32 v{V_PI}, 0')
        for (lo,hi,r) in (('0xffff0000','-1',20),('0','-1',22),('0','0xffff0000',24)):
            self.exec_set(lo,hi); I(f'v_mov_b32 v{V_PR}, v{r}'); I(f'v_mov_b32 v{V_PI}, v{r+1}')
        self.exec_full()
        I(f'v_mov_b32 v{V_IN}, v20'); I(f'v_mov_b32 v{V_IN+1}, v21')

    def x_addr(self):
        I=self.I
        I(f'v_and_b32 v7, 15, v{V_LANE}'); I('v_lshrrev_b32 v8, 2, v7'); I('v_lshlrev_b32 v8, 4, v8')
        I('v_and_b32 v9, 3, v7'); I('v_add_u32 v8, v8, v9'); I('v_mul_u32_u24 v8, 896, v8')
        I(f'v_lshrrev_b32 v9, 4, v{V_LANE}'); I('v_lshrrev_b32 v7, 1, v7'); I('v_xor_b32 v9, v9, v7'); I('v_lshlrev_b32 v9, 4, v9')
        I('v_add_u32 v14, v8, v9'); I('v_xor_b32 v15, 64, v14')
    def ln64(self):
        I=self.I
        D=list(range(V_X64,V_X64+56)); SUM,SSQ,S2,Q2=24,25,26,27; R,C=28,30; TM=[32,34,36,38]
        I(f's_mul_i32 s{S_T0}, s{S_W}, 3584'); I(f'v_add_u32 v22, s{S_T0}, v14'); I(f'v_add_u32 v23, s{S_T0}, v15')
        self.allow_bread=True
        while self.nx<16: self.tick()
        if self.opt.w1touch!='W': self.wait(vm=['x64'])
        for j in range(14):
            I(f'ds_read_b128 {vr(V_X64+4*j,4)}, v{22+(j&1)} offset:{LDS_X+(j>>1)*128}', tag=('xr',j))
        accs=[SUM,SSQ,S2,Q2]
        for n,d in enumerate(D):
            if n%4==0: self.wait(lg=[('xr',n//4)])
            sa,qa = accs[2*(n&1)], accs[2*(n&1)+1]
            if n<2:
                I(f'v_dot2_f32_bf16 v{sa}, v{d}, s{S_ONES}, 0'); I(f'v_dot2_f32_bf16 v{qa}, v{d}, v{d}, 0')
            else:
                I(f'v_dot2_f32_bf16 v{sa}, v{d}, s{S_ONES}, v{sa}'); I(f'v_dot2_f32_bf16 v{qa}, v{d}, v{d}, v{qa}')
        I(f'v_add_f32 v{SUM}, v{SUM}, v{S2}'); I(f'v_add_f32 v{SSQ}, v{SSQ}, v{Q2}')
        for sw in ('16','32'):
            I(f'v_mov_b32 v{S2}, v{SUM}'); I(f'v_mov_b32 v{Q2}, v{SSQ}')
            I(f'v_permlane{sw}_swap_b32 v{SUM}, v{S2}'); I(f'v_permlane{sw}_swap_b32 v{SSQ}, v{Q2}')
            I(f'v_add_f32 v{SUM}, v{SUM}, v{S2}'); I(f'v_add_f32 v{SSQ}, v{SSQ}, v{Q2}')
        self.stamp('dots',fine=True)
        self.ln_stats(SUM,SSQ,R,C,None)
        self.allow_bread=True
        def h(n):
            I(f'ds_write_b128 v{22+(n&1)}, {vr(V_X64+4*n,4)} offset:{LDS_X+(n>>1)*128}', tag='xw')
        self.normalize(D,R,C,TM,hook=h)

    def row_stats(self):
        I=self.I
        D=list(range(V_X64,V_X64+56)); SUM,SSQ,S2,Q2=24,25,26,27; R,C=28,30
        I(f's_mul_i32 s{S_T0}, s{S_W}, 3584'); I(f'v_add_u32 v22, s{S_T0}, v14'); I(f'v_add_u32 v23, s{S_T0}, v15')
        for j in range(14):
            I(f'ds_read_b128 {vr(V_X64+4*j,4)}, v{22+(j&1)} offset:{LDS_X+(j>>1)*128}', tag=('xr',j))
        accs=[SUM,SSQ,S2,Q2]
        for n,d in enumerate(D):
            if n%4==0: self.wait(lg=[('xr',n//4)])
            sa,qa = accs[2*(n&1)], accs[2*(n&1)+1]
            if n<2:
                I(f'v_dot2_f32_bf16 v{sa}, v{d}, s{S_ONES}, 0'); I(f'v_dot2_f32_bf16 v{qa}, v{d}, v{d}, 0')
            else:
                I(f'v_dot2_f32_bf16 v{sa}, v{d}, s{S_ONES}, v{sa}'); I(f'v_dot2_f32_bf16 v{qa}, v{d}, v{d}, v{qa}')
        I(f'v_add_f32 v{SUM}, v{SUM}, v{S2}'); I(f'v_add_f32 v{SSQ}, v{SSQ}, v{Q2}')
        for sw in ('16','32'):
            I(f'v_mov_b32 v{S2}, v{SUM}'); I(f'v_mov_b32 v{Q2}, v{SSQ}')
            I(f'v_permlane{sw}_swap_b32 v{SUM}, v{S2}'); I(f'v_permlane{sw}_swap_b32 v{SSQ}, v{Q2}')
            I(f'v_add_f32 v{SUM}, v{SUM}, v{S2}'); I(f'v_add_f32 v{SSQ}, v{SSQ}, v{Q2}')
        self.ln_stats(SUM,SSQ,R,C,None)
        I(f'v_and_b32 v8, 15, v{V_LANE}'); I('v_lshlrev_b32 v8, 2, v8'); I(f's_add_u32 s{S_T0}, s{S_YB}, 24576'); I(f'v_add_u32 v8, s{S_T0}, v8')
        self.exec_set('0xffff','0')
        I(f'ds_write_b32 v8, v{SUM}', tag='stw'); I(f'ds_write_b32 v8, v{R} offset:64', tag='stw')
        self.exec_full()
    def stat_reads(self):
        I=self.I
        self.wait(lg=['stw']); I('s_barrier')
        I(f'v_lshrrev_b32 v8, 4, v{V_LANE}'); I('v_lshlrev_b32 v8, 4, v8'); I(f'v_add_u32 v8, {LDS_Y+24576}, v8'); I(f'v_add_u32 v9, {2*YW}, v8')
        for i in range(4):
            I(f'ds_read_b128 {vr(16+4*i,4)}, v{8+(i>>1)} offset:{(i&1)*YW}', tag='stat')
            I(f'ds_read_b128 {vr(88+4*i,4)}, v{8+(i>>1)} offset:{(i&1)*YW+64}', tag='stat')
    def bu_gemm(self):
        I=self.I
        BUF=[V_X64, V_X64+16]
        for r in range(4): I(f'v_mov_b32 v{36+r}, s{S_ONES}')
        def rd(j):
            for i in range(4):
                I(f'ds_read_b128 {vr(BUF[j%2]+4*i,4)}, v{14+(j&1)} offset:{LDS_X+i*3584+(j>>1)*128}', tag=('xa',j))
        rd(0); rd(1)
        bup=self.auto
        for j in range(14):
            self.auto = bup if j>=self.opt.bupj else 0
            self.wait(lg=[('xa',j)])
            for im in range(2):
                d=104+4*im
                I(f'v_mfma_f32_16x16x32_bf16 {vr(d,4)}, v[36:39], {vr(V_BF+56*im+4*j,4)}, {vr(d,4) if j else 0}')
            for i in range(4):
                for im in range(2):
                    d=V_RAW+16*im+4*i
                    cin = vr(d,4) if j else '0'
                    I(f'v_mfma_f32_16x16x32_bf16 {vr(d,4)}, {vr(BUF[j%2]+4*i,4)}, {vr(V_BF+56*im+4*j,4)}, {cin}')
            if j+2<14: rd(j+2)
            if j==12:
                sv=self.auto; self.auto=0
                self.stat_reads(); self.auto=sv
    def stat_loads(self):
        I=self.I
        I(f'v_lshrrev_b32 v8, 4, v{V_LANE}'); I('v_lshlrev_b32 v8, 6, v8')
        I(f's_lshl_b32 s{S_T0}, s{S_C}, 8'); I(f's_add_u32 s{S_T0}, s{S_T0}, {WS_STAT}'); I(f's_add_u32 s{S_T1}, s{S_T0}, 8192')
        for n in range(4):
            I(f'buffer_load_dwordx4 {vr(16+4*n,4)}, v8, {srd(SRD_WS)}, s{S_T0} offen offset:{16*n} sc1', tag='stat')
            I(f'buffer_load_dwordx4 {vr(88+4*n,4)}, v8, {srd(SRD_WS)}, s{S_T1} offen offset:{16*n} sc1', tag='stat')
    def ln_fix(self):
        I=self.I
        self.wait(lg=['stat'])
        for im in range(2):
            sb=104+4*im
            for t in range(0,16,2):
                r=V_RAW+16*im+t
                I(f'v_pk_fma_f32 v[{r}:{r+1}], v[{16+t}:{17+t}], v[{sb}:{sb+1}], v[{r}:{r+1}] neg_lo:[1,0,0] neg_hi:[1,0,0]')
            for t in range(0,16,2):
                r=V_RAW+16*im+t
                I(f'v_pk_mul_f32 v[{r}:{r+1}], v[{r}:{r+1}], v[{88+t}:{89+t}]')

    def scan1(self):
        I=self.I
        ER,EI,T0,T1=16,17,18,19
        L16R,L16I=V_IN,V_IN+1
        I(f'v_mov_b32 v{ER}, v{V_RAW}'); I(f'v_mov_b32 v{EI}, v{V_RAW+16}')
        for t in range(1,16):
            I(f'v_fma_f32 v{T0}, v{V_LR}, v{ER}, v{V_RAW+t}')
            I(f'v_fma_f32 v{T1}, v{V_LR}, v{EI}, v{V_RAW+16+t}')
            I(f'v_fma_f32 v{T0}, -v{V_LI}, v{EI}, v{T0}')
            I(f'v_fma_f32 v{EI}, v{V_LI}, v{ER}, v{T1}')
            ER,T0=T0,ER
        GR=[20,21,22,23]; GI=[24,25,26,27]
        self.allgather_q(ER,*GR); self.allgather_q(EI,*GI)
        for q in range(1,4):
            self.cfma(GR[q],GI[q],L16R,L16I,GR[q-1],GI[q-1],GR[q],GI[q],28,29)
        I(f'v_mov_b32 v{V_SR}, 0'); I(f'v_mov_b32 v{V_SI}, 0')
        for n,(lo,hi) in enumerate((('0xffff0000','-1'),('0','-1'),('0','0xffff0000'))):
            self.exec_set(lo,hi); I(f'v_mov_b32 v{V_SR}, v{GR[n]}'); I(f'v_mov_b32 v{V_SI}, v{GI[n]}')
        self.exec_full()
        I(f'v_mov_b32 v10, v{GR[3]}'); I(f'v_mov_b32 v11, v{GI[3]}')
        I(f'v_lshlrev_b32 v8, 3, v{V_LANE}')
        I(f's_lshl_b32 s{S_T0}, s{S_G}, 5'); I(f's_add_u32 s{S_T0}, s{S_T0}, s{S_C}'); I(f's_lshl_b32 s{S_T0}, s{S_T0}, 9')
        I(f's_lshl_b32 s{S_T1}, s{S_W}, 7'); I(f's_add_u32 s{S_T0}, s{S_T0}, s{S_T1}'); I(f's_add_u32 s{S_T0}, s{S_T0}, {WS_E}')
        self.exec_set('0xffff',0)
        I(f'buffer_store_dwordx2 v[10:11], v8, {srd(SRD_WS)}, s{S_T0} offen sc1', tag='stE')
        self.exec_full()

    def wait_e0(self):
        I=self.I
        L=self.newlabel('e0'); D=self.newlabel('e0d')
        self.wait(vm=['e0c'])
        I('v_cmp_gt_u32 vcc, 64, v34'); I(f's_cbranch_vccz {D}')
        snap=self.snapshot()
        I(f's_mov_b32 s{S_BOUND}, 0x40000')
        self.label(L)
        I(f'global_load_dword v34, v35, {sp(P_DBG)} sc1'); I('s_waitcnt vmcnt(0)')
        I('v_cmp_gt_u32 vcc, 64, v34'); I(f's_cbranch_vccz {D}')
        I('s_sleep 4'); I(f's_sub_u32 s{S_BOUND}, s{S_BOUND}, 1'); I(f's_cbranch_scc0 {L}')
        self.label(D); self.restore(snap)

    def gemm1(self):
        I=self.I
        SL=[V_RING+16*i for i in range(6)]
        DEP=len(SL)
        I(f's_mul_i32 s22, s{S_DT1}, 262144'); I(f's_lshl_b32 s{S_T0}, s{S_W}, 16'); I(f's_add_u32 s22, s22, s{S_T0}')
        I(f's_lshl_b32 s{S_T0}, s{S_WL}, 11'); I(f's_xor_b32 s{S_T1}, s{S_T0}, 2048')
        I(f's_add_u32 s23, s22, s{S_T1}'); I(f's_add_u32 s22, s22, s{S_T0}')
        I(f's_mov_b32 s{S_A}, s22'); I(f's_mov_b32 s{S_B}, s23')
        def ld(k,y):
            r=SL[k%DEP]
            sx=S_A if y<2 else S_B
            I(f'buffer_load_dwordx4 {vr(r+4*y,4)}, v{V_L16}, {srd(SRD_WS)}, s{sx} offen offset:{(y&1)*1024} sc1', tag=('ht',k,y))
            if (y&1) and k<15: I(f's_add_u32 s{sx}, s{sx}, 4096')
        pro=[(k,y) for k in range(DEP) for y in range(4)]
        while pro:
            ld(*pro.pop(0))
            if self.R['iss']<self.R['n']: self.ring_tick()
        self.ring_finish(); self.wait(lg='all')
        self.stamp('w1 in regs')
        self.w2_setup(); self.R['maxrd']=0
        for k in range(16):
            r=SL[k%DEP]
            for y in range(4):
                self.wait(vm=[('ht',k,y)])
                if y==0: self.stamp(f'g1.{k}',fine=3)
                for x in range(4):
                    d=V_ACC+16*x+4*y
                    cin=vr(d,4) if k else '0'
                    I(f'v_mfma_f32_16x16x32_bf16 {vr(d,4)}, {ar(16*k+4*x,4)}, {vr(r+4*y,4)}, {cin}')
                if k+DEP<16: ld(k+DEP,y)
                else:
                    self.R['maxrd']=k
                    self.tick()
        self.R['maxrd']=99
        self.stamp('g1loop')

    def p2_flag_addr(self):
        I=self.I
        I(f's_mul_i32 s{S_T0}, s{S_W}, 7'); I(f's_lshr_b32 s{S_T1}, s{S_T0}, 2')
        I(f's_mul_i32 s{S_T2}, s{S_C}, 7'); I(f's_add_u32 s{S_T2}, s{S_T2}, s{S_T1}')
        I(f's_add_u32 s{S_T3}, s{S_T0}, 6'); I(f's_lshr_b32 s{S_T3}, s{S_T3}, 2'); I(f's_sub_u32 s{S_T3}, s{S_T3}, s{S_T1}')
        I(f'v_min_u32 v14, s{S_T3}, v{V_LANE}'); I(f'v_add_u32 v14, s{S_T2}, v14'); I('v_lshlrev_b32 v14, 6, v14')
        I(f'v_add_u32 v14, {WS_FH}, v14')
        I(f'v_min_u32 v8, 13, v{V_LANE}'); I('v_lshlrev_b32 v9, 6, v8')
        I(f's_mul_i32 s{S_T1}, s{S_G}, 28'); I(f's_add_u32 s{S_T1}, s{S_T1}, s{S_T0}'); I(f's_lshl_b32 s{S_T1}, s{S_T1}, 6'); I(f's_add_u32 s{S_T1}, s{S_T1}, {WS_FG}')
        I(f's_lshl_b32 s{S_T0}, s{S_T0}, 6'); I(f's_add_u32 s{S_T0}, s{S_T0}, {WS_FC-7*64}')
        I(f'v_mov_b32 v10, s{S_T1}'); I(f'v_mov_b32 v11, s{S_T0}'); I('v_cmp_gt_u32 vcc, 7, v8'); I('v_cndmask_b32 v10, v11, v10, vcc')
        I('v_add_u32 v12, v9, v10')

    def e_addr(self):
        I=self.I
        OF=V_EOF
        I(f's_lshl_b32 s{S_T0}, s{S_G}, 14'); I(f's_add_u32 s{S_T0}, s{S_T0}, {WS_E}')
        I(f's_add_u32 s{SRD_1}, s{P_WS}, s{S_T0}'); I(f's_addc_u32 s{SRD_1+1}, s{P_WS+1}, 0')
        I(f's_and_b32 s{SRD_1+1}, s{SRD_1+1}, 0xffff'); I(f's_mov_b32 s{SRD_1+2}, 16384'); I(f's_mov_b32 s{SRD_1+3}, 0x20000')
        I(f'v_lshrrev_b32 v8, 4, v{V_LANE}'); I('v_lshlrev_b32 v8, 12, v8')
        I(f'v_and_b32 v9, 15, v{V_LANE}'); I('v_lshlrev_b32 v9, 3, v9'); I('v_add_u32 v8, v8, v9')
        I(f's_sub_u32 s{S_T0}, s{S_C}, 32'); I(f's_lshl_b32 s{S_T0}, s{S_T0}, 9'); I(f's_lshl_b32 s{S_T1}, s{S_W}, 7')
        I(f's_add_u32 s{S_T0}, s{S_T0}, s{S_T1}'); I(f'v_add_u32 v8, s{S_T0}, v8')
        for i in range(8): I(f'v_add_u32 v{OF+i}, {512*i}, v8')
    def e_loads(self):
        for i in range(8):
            self.I(f'buffer_load_dwordx2 {vr(V_EL+2*i,2)}, v{V_EOF+i}, {srd(SRD_1)}, 0 offen sc1', tag='E')

    def finalize(self):
        I=self.I
        EL=V_EL
        L=self.newlabel('pollE'); Dn=self.newlabel('pollEd')
        sv=self.auto; self.auto=0
        self.wait(vm=['E'])
        I(f's_mov_b32 s{S_BOUND}, 0x40000')
        self.label(L)
        I(f'v_max3_u32 v8, v{EL}, v{EL+1}, v{EL+2}')
        for i in range(3,15,2): I(f'v_max3_u32 v8, v8, v{EL+i}, v{EL+i+1}')
        I(f'v_max_u32 v8, v8, v{EL+15}')
        I('v_cmp_eq_u32 vcc, -1, v8')
        I(f's_cbranch_vccz {Dn}')
        snap=self.snapshot()
        self.e_loads()
        I('s_waitcnt vmcnt(0)')
        I('s_sleep 4'); I(f's_sub_u32 s{S_BOUND}, s{S_BOUND}, 1'); I(f's_cbranch_scc0 {L}')
        self.label(Dn); self.restore(snap)
        self.auto=sv
        yield
        QR,QI=EL,EL+1
        for i in range(1,8):
            self.cfma(QR,QI,V_L64R,V_L64I,QR,QI,EL+2*i,EL+2*i+1,36,37)
            yield
        GR=[20,21,22,23]; GI=[24,25,26,27]
        self.allgather_q(QR,*GR); yield
        self.allgather_q(QI,*GI); yield
        for q in range(1,4):
            self.cfma(GR[q],GI[q],V_L512R,V_L512I,GR[q-1],GI[q-1],GR[q],GI[q],28,29)
            yield
        self.cfma(V_SR,V_SI,V_PR,V_PI,GR[3],GI[3],V_SR,V_SI,28,29)
        yield
        HR,HI,T0,T1=V_SR,V_SI,36,37
        OR,OI=V_RAW,V_RAW+16
        for t in range(16):
            I(f'v_fma_f32 v{T0}, v{V_LR}, v{HR}, v{OR+t}')
            I(f'v_fma_f32 v{T1}, v{V_LR}, v{HI}, v{OI+t}')
            I(f'v_fma_f32 v{T0}, -v{V_LI}, v{HI}, v{T0}')
            I(f'v_fma_f32 v{HI}, v{V_LI}, v{HR}, v{T1}')
            HR,T0=T0,HR
            yield
            I(f'v_mul_f32 v{OR+t}, v{V_K1}, v{HR}'); I(f'v_mul_f32 v{OI+t}, v{V_K2}, v{HR}')
            I(f'v_fma_f32 v{OR+t}, v{V_K2}, v{HI}, v{OR+t}'); I(f'v_fma_f32 v{OI+t}, -v{V_K1}, v{HI}, v{OI+t}')
            yield
        for t in range(8):
            I(f'v_cvt_pk_bf16_f32 v{OR+t}, v{OR+2*t}, v{OR+2*t+1}'); I(f'v_cvt_pk_bf16_f32 v{OI+t}, v{OI+2*t}, v{OI+2*t+1}')
            if t%2: yield
        I(f'v_and_b32 v8, 15, v{V_LANE}'); I(f's_lshl_b32 s{S_T0}, s{S_WL}, 4'); I(f'v_add_u32 v8, s{S_T0}, v8')
        I('v_lshrrev_b32 v9, 3, v8'); I('v_lshlrev_b32 v9, 2, v9')
        yield
        I('v_and_b32 v10, 3, v8'); I('v_add_u32 v9, v9, v10')
        I('v_bfe_u32 v10, v8, 2, 1'); I('v_lshlrev_b32 v11, 4, v10'); I('v_add_u32 v9, v9, v11')
        yield
        I('v_and_b32 v11, 7, v9'); I('v_lshlrev_b32 v10, 2, v10'); I('v_xor_b32 v11, v11, v10')
        I(f'v_lshrrev_b32 v10, 4, v{V_LANE}'); I('v_lshlrev_b32 v10, 1, v10')
        yield
        I('v_xor_b32 v10, v10, v11'); I('v_lshlrev_b32 v10, 4, v10')
        I('v_lshlrev_b32 v9, 7, v9'); I('v_add_u32 v9, v9, v10')
        yield
        I(f's_lshl_b32 s{S_T0}, s{S_WH}, 12'); I(f'v_add_u32 v9, s{S_T0}, v9')
        I('v_xor_b32 v10, 16, v9')
        I('s_barrier')
        I(f'ds_write_b128 v9, {vr(OR,4)} offset:{LDS_X}', tag='hw'); I(f'ds_write_b128 v10, {vr(OR+4,4)} offset:{LDS_X}', tag='hw')
        I(f'ds_write_b128 v9, {vr(OI,4)} offset:{LDS_X+8192}', tag='hw'); I(f'ds_write_b128 v10, {vr(OI+4,4)} offset:{LDS_X+8192}', tag='hw')
        yield
        I(f'v_lshrrev_b32 v8, 2, v{V_LANE}'); I('v_and_b32 v9, 7, v8'); I(f'v_bfe_u32 v10, v{V_LANE}, 1, 1')
        I('v_xor_b32 v9, v9, v10'); I('v_lshlrev_b32 v9, 4, v9')
        yield
        I('v_lshlrev_b32 v8, 7, v8'); I('v_add_u32 v8, v8, v9')
        I(f'v_and_b32 v9, 1, v{V_LANE}'); I('v_lshlrev_b32 v9, 3, v9'); I('v_add_u32 v8, v8, v9')
        I(f's_lshl_b32 s{S_T0}, s{S_W}, 12'); I(f'v_add_u32 v8, s{S_T0}, v8')
        yield
        self.wait(lg=['hw']); I('s_barrier')
        FR=16
        for nb in range(4):
            I(f'v_xor_b32 v9, {nb<<5}, v8'); I('v_xor_b32 v10, 64, v9')
            I(f'ds_read_b64_tr_b16 {vr(FR+4*nb,2)}, v9 offset:{LDS_X}', tag=('hp',nb))
            I(f'ds_read_b64_tr_b16 {vr(FR+4*nb+2,2)}, v10 offset:{LDS_X+2048}', tag=('hp',nb))
        I(f's_mul_i32 s{S_T0}, s{S_C}, {28*4096}'); I(f's_lshl_b32 s{S_T1}, s{S_G}, 14'); I(f's_add_u32 s{S_T0}, s{S_T0}, s{S_T1}')
        I(f's_lshl_b32 s{S_T1}, s{S_W}, 12'); I(f's_add_u32 s{S_T0}, s{S_T0}, s{S_T1}'); I(f's_add_u32 s94, s{S_T0}, {WS_HP}')
        yield
        if self.opt.gearly: I(f'global_load_dword v53, v12, {sp(P_WS)} sc1', tag='fg')
        for nb in range(4):
            self.wait(lg=[('hp',nb)])
            I(f'buffer_store_dwordx4 {vr(FR+4*nb,4)}, v{V_L16}, {srd(SRD_WS)}, s94 offen offset:{nb*1024} sc1', tag='stH')
            yield

    def flag_set(self, sa, mul, sb, base):
        I=self.I
        L=self.newlabel('flag')
        I(f's_cmp_lg_u32 s{S_W}, 0'); I(f's_cbranch_scc1 {L}')
        snap=self.snapshot()
        I(f's_mul_i32 s{S_T0}, s{sa}, {mul}'); I(f's_add_u32 s{S_T0}, s{S_T0}, s{sb}'); I(f's_lshl_b32 s{S_T0}, s{S_T0}, 6')
        I(f's_add_u32 s{S_T0}, s{S_T0}, {base}')
        I('v_mov_b32 v8, 0'); I('v_mov_b32 v9, 1')
        self.exec_set(1,0)
        I(f'buffer_store_dword v9, v8, {srd(SRD_WS)}, s{S_T0} offen sc1')
        self.exec_full()
        self.label(L); self.merge(snap)

    def g_bias_load(self):
        I=self.I
        I(f'v_lshrrev_b32 v8, 4, v{V_LANE}'); I('v_lshlrev_b32 v8, 3, v8')
        I(f's_lshl_b32 s{S_T0}, s{S_FT}, 7'); I(f's_lshl_b32 s{S_T1}, s{S_WH}, 6'); I(f's_add_u32 s{S_T0}, s{S_T0}, s{S_T1}')
        I(f'v_add_u32 v8, s{S_T0}, v8')
        I(f'global_load_dwordx2 v[32:33], v8, {sp(P_B1)}', tag='b1')
        I(f'global_load_dwordx2 v[34:35], v8, {sp(P_B1)} offset:32', tag='b1')

    def g_epilogue(self):
        I=self.I
        self.auto=self.opt.gepip
        self.reduce(V_RING)
        self.wait(vm=['b1'])
        for x in range(2):
            for h in range(2):
                I(f'v_lshlrev_b32 v{16+4*x+2*h}, 16, v{32+2*x+h}'); I(f'v_and_b32 v{17+4*x+2*h}, s{S_MASK}, v{32+2*x+h}')
        C1=-2.0*0.7978845608028654*1.4426950408889634
        C3=C1*0.044715
        import struct
        f2h=lambda f:'0x%08x'%struct.unpack('<I',struct.pack('<f',f))[0]
        I(f's_mov_b32 s{S_T2}, {f2h(C1)}'); I(f's_mov_b32 s{S_T3}, {f2h(C3)}')
        I(f'v_mov_b32 v31, s{S_T2}')
        U=[]
        for x in range(2):
            for y in range(2):
                for r in range(4):
                    U.append((V_ACC+16*x+4*y+r, 16+4*x+r))
        TT=V_RING
        for n,(u,b) in enumerate(U): I(f'v_add_f32 v{u}, v{u}, v{b}')
        for n,(u,b) in enumerate(U): I(f'v_mul_f32 v{TT+n}, v{u}, v{u}')
        for n,(u,b) in enumerate(U): I(f'v_fma_f32 v{TT+n}, v{TT+n}, s{S_T3}, v31')
        for n,(u,b) in enumerate(U): I(f'v_mul_f32 v{TT+n}, v{TT+n}, v{u}')
        for n,(u,b) in enumerate(U): I(f'v_exp_f32 v{TT+n}, v{TT+n}')
        for n,(u,b) in enumerate(U): I(f'v_add_f32 v{TT+n}, 1.0, v{TT+n}')
        for n,(u,b) in enumerate(U): I(f'v_rcp_f32 v{TT+n}, v{TT+n}')
        for n,(u,b) in enumerate(U): I(f'v_mul_f32 v{u}, v{u}, v{TT+n}')
        F=V_RING+16
        for y in range(2):
            for x in range(2):
                a=V_ACC+16*x+4*y
                I(f'v_cvt_pk_bf16_f32 v{F+4*y+2*x}, v{a}, v{a+1}'); I(f'v_cvt_pk_bf16_f32 v{F+4*y+2*x+1}, v{a+2}, v{a+3}')
        I(f's_mul_i32 s{S_T0}, s{S_DT1}, {56*4096}'); I(f's_lshl_b32 s{S_T1}, s{S_FT}, 13'); I(f's_add_u32 s{S_T0}, s{S_T0}, s{S_T1}')
        I(f's_lshl_b32 s{S_T1}, s{S_WH}, 12'); I(f's_add_u32 s{S_T0}, s{S_T0}, s{S_T1}')
        I(f's_lshl_b32 s{S_T1}, s{S_WL}, 11'); I(f's_add_u32 s{S_T0}, s{S_T0}, s{S_T1}'); I(f's_add_u32 s{S_T0}, s{S_T0}, {WS_GT}')
        for y in range(2):
            I(f'buffer_store_dwordx4 {vr(F+4*y,4)}, v{V_L16}, {srd(SRD_WS)}, s{S_T0} offen offset:{y*1024} sc1', tag='stG')
        self.auto=0
        self.e_loads()
        self.p2_flag_addr(); self.p2_bases()
        I(f'global_load_dword v54, v12, {sp(P_WS)} sc1', tag='fc')
        for n in range(self.opt.gwait): self.tick()
        self.wait(vm=['stG']); I('s_barrier')
        self.flag_set(S_DT1,28,S_FT,WS_FG)

    def w2_setup(self):
        I=self.I
        self.make_srd(SRD_W, P_W2, 1792*4096)
        self.ring_setup(4096, S_WL)
        I(f's_mul_i32 s{S_WBEG}, s{S_W}, {448*4096}'); I(f's_lshl_b32 s{S_T0}, s{S_C}, 7'); I(f's_add_u32 s{S_WBEG}, s{S_WBEG}, s{S_T0}')
        I(f's_mov_b32 s{S_WO}, s{S_WBEG}')
        self.ring_init('w2',14,4096,range(6))

    def rot_g(self, dst):
        I=self.I
        I(f's_mul_i32 s{dst}, s86, 37'); I(f's_lshr_b32 s{dst}, s{dst}, 8')
        I(f's_mul_i32 s{dst}, s{dst}, {7*self.opt.rot2}'); I(f's_lshr_b32 s{dst}, s{dst}, 1')
    def cpack(self):
        I=self.I
        L=self.newlabel('nocp')
        I(f's_cmp_ge_u32 s{S_E}, 28'); I(f's_cbranch_scc1 {L}')
        I(f's_mov_b32 s{SRD_1+2}, {448*896}'); I(f's_mov_b32 s{SRD_1+3}, 0x20000')
        I(f's_bitcmp1_b32 s{S_E}, 1')
        I(f's_cselect_b32 s{SRD_1}, s{P_CIM}, s{P_CRE}'); I(f's_cselect_b32 s{SRD_1+1}, s{P_CIM+1}, s{P_CRE+1}')
        I(f'v_and_b32 v9, 15, v{V_LANE}'); I('v_mul_u32_u24 v9, 896, v9'); I(f'v_lshrrev_b32 v10, 4, v{V_LANE}')
        I('v_lshlrev_b32 v10, 4, v10'); I('v_add_u32 v10, v9, v10')
        I(f's_lshr_b32 s{S_T0}, s{S_E}, 2'); I(f's_lshl_b32 s{S_T0}, s{S_T0}, 7')
        I(f's_and_b32 s{S_T1}, s{S_E}, 1'); I(f's_lshl_b32 s{S_T1}, s{S_T1}, 6'); I(f's_add_u32 s{S_T0}, s{S_T0}, s{S_T1}')
        I(f's_mul_i32 s{S_T1}, s{S_W}, {16*896}'); I(f's_add_u32 s{S_T0}, s{S_T0}, s{S_T1}')
        for dt in range(7):
            I(f'buffer_load_dwordx4 {vr(56+4*dt,4)}, v10, {srd(SRD_1)}, s{S_T0} offen', tag=('cp',dt))
            if dt<6: I(f's_add_u32 s{S_T0}, s{S_T0}, {64*896}')
        I(f's_lshl_b32 s{S_T0}, s{S_E}, 12'); I(f's_lshl_b32 s{S_T1}, s{S_W}, 10'); I(f's_add_u32 s{S_T0}, s{S_T0}, s{S_T1}')
        I(f's_add_u32 s{S_T0}, s{S_T0}, {WS_CP}')
        for dt in range(7):
            self.wait(vm=[('cp',dt)])
            I(f'buffer_store_dwordx4 {vr(56+4*dt,4)}, v{V_L16}, {srd(SRD_WS)}, s{S_T0} offen sc1', tag='stC')
            if dt<6: I(f's_add_u32 s{S_T0}, s{S_T0}, {28*4096}')
        self.label(L)
    def cpack_flag(self):
        I=self.I
        L=self.newlabel('nocf')
        Lp=self.newlabel('w0poll')
        self.wait(vm='all')
        I(f's_cmp_lg_u32 s{S_W}, 0'); I(f's_cbranch_scc1 {Lp}')
        I(f'v_and_b32 v8, 3, v{V_LANE}'); I('v_lshlrev_b32 v8, 6, v8')
        self.poll('e0e', 8, P_DBG, 64)
        self.label(Lp)
        I('s_barrier')
        I(f's_cmp_ge_u32 s{S_E}, 28'); I(f's_cbranch_scc1 {L}')
        I(f's_mov_b32 s{S_T1}, 0')
        self.flag_set(S_T1,1,S_E,WS_FC)
        self.label(L)

    def p2_resid_loads(self):
        I=self.I
        self.make_srd(SRD_OUT, P_OUT, 2048*1792)
        I(f'v_and_b32 v7, 15, v{V_LANE}'); I(f'v_lshrrev_b32 v8, 4, v{V_LANE}')
        I('v_mul_u32_u24 v9, 896, v7'); I('v_lshlrev_b32 v10, 3, v8'); I('v_add_u32 v9, v9, v10')
        I(f's_lshl_b32 s{S_T0}, s{S_C}, 6'); I(f's_lshl_b32 s{S_T1}, s{S_WL}, 5'); I(f's_add_u32 s{S_T0}, s{S_T0}, s{S_T1}')
        I(f's_lshl_b32 s{S_T1}, s{S_G}, 6'); I(f's_lshl_b32 s{S_T2}, s{S_WH}, 5'); I(f's_add_u32 s{S_T1}, s{S_T1}, s{S_T2}')
        for y in range(2):
            for x in range(2):
                I(f's_add_u32 s{S_T2}, s{S_T0}, {16*y}'); I(f's_mul_i32 s{S_T2}, s{S_T2}, 896')
                I(f's_add_u32 s{S_T3}, s{S_T1}, {16*x}'); I(f's_lshl_b32 s{S_T3}, s{S_T3}, 1'); I(f's_add_u32 s{S_T2}, s{S_T2}, s{S_T3}')
                I(f'buffer_load_dwordx2 {vr(16+4*y+2*x,2)}, v9, {srd(SRD_X)}, s{S_T2} offen', tag='res')
        I('v_lshlrev_b32 v9, 2, v7')
        for y in range(2):
            I(f's_add_u32 s{S_T2}, s{S_T0}, {16*y}'); I(f's_lshl_b32 s{S_T2}, s{S_T2}, 2'); I(f's_add_u32 s{S_T2}, s{S_T2}, {WS_STAT}')
            I(f'buffer_load_dword v{24+2*y}, v9, {srd(SRD_WS)}, s{S_T2} offen sc1', tag='res')
            I(f's_add_u32 s{S_T2}, s{S_T2}, 8192')
            I(f'buffer_load_dword v{25+2*y}, v9, {srd(SRD_WS)}, s{S_T2} offen sc1', tag='res')
        I(f's_lshl_b32 s{S_T2}, s{S_T1}, 1'); I(f'v_add_u32 v9, s{S_T2}, v10')
        I(f'global_load_dwordx2 v[28:29], v9, {sp(P_DSK)}', tag='res')
        I(f'global_load_dwordx2 v[30:31], v9, {sp(P_DSK)} offset:32', tag='res')
        I(f'v_add_u32 v9, s{S_T0}, v7'); I('v_lshlrev_b32 v9, 1, v9')
        I(f'global_load_ushort v10, v9, {sp(P_B2)}', tag='res')
        I(f'global_load_ushort v38, v9, {sp(P_B2)} offset:32', tag='res')
    def resid_compute(self):
        I=self.I
        self.wait(vm=['res'])
        I('v_lshlrev_b32 v10, 16, v10'); I('v_lshlrev_b32 v38, 16, v38')
        yield
        for x in range(2):
            for h in range(2):
                I(f'v_lshlrev_b32 v{32+2*h}, 16, v{28+2*x+h}'); I(f'v_and_b32 v{33+2*h}, s{S_MASK}, v{28+2*x+h}')
            yield
            for y in range(2):
                xs=16+4*y+2*x; st=24+2*y; b2=10 if y==0 else 38
                for h in range(2):
                    r=240+8*y+4*x+2*h
                    I(f'v_lshlrev_b32 v{r}, 16, v{xs+h}'); I(f'v_and_b32 v{r+1}, s{S_MASK}, v{xs+h}')
                    I(f'v_pk_add_f32 v[36:37], v[{r}:{r+1}], v[{st}:{st+1}] op_sel_hi:[1,0] neg_lo:[0,1] neg_hi:[0,1]')
                    yield
                    I(f'v_pk_mul_f32 v[36:37], v[36:37], v[{st}:{st+1}] op_sel:[0,1] op_sel_hi:[1,1]')
                    I(f'v_pk_add_f32 v[{r}:{r+1}], v[{r}:{r+1}], v[{b2}:{b2+1}] op_sel_hi:[1,0]')
                    I(f'v_pk_fma_f32 v[{r}:{r+1}], v[36:37], v[{32+2*h}:{33+2*h}], v[{r}:{r+1}]')
                    yield

    CREG=[['v16','v20','v24','v28'],['v32','v36','v40','v44'],['v48','v52','v216','v220'],['v224','v228','v232','v236'],
          ['a0','a4','a8','a12'],['a224','a228','a232','a236'],['a240','a244','a248','a252']]
    def creg(self,i,x):
        r=self.CREG[i][x]; n=int(r[1:]); return f'{r[0]}[{n}:{n+3}]'
    def p2_bases(self):
        I=self.I
        I(f's_mul_i32 s90, s{S_G}, {56*4096}'); I(f's_mul_i32 s{S_T0}, s{S_W}, {14*4096}'); I(f's_add_u32 s90, s90, s{S_T0}')
        I(f's_add_u32 s90, s90, {WS_GT}')
        I(f's_lshl_b32 s{S_T1}, s{S_WH}, 11'); I(f's_xor_b32 s{S_T2}, s{S_T1}, 2048')
        I(f's_add_u32 s92, s90, s{S_T2}'); I(f's_add_u32 s90, s90, s{S_T1}')
        I(f's_mul_i32 s22, s{S_G}, {28*4096}'); I(f's_mul_i32 s{S_T0}, s{S_W}, {7*4096}'); I(f's_add_u32 s22, s22, s{S_T0}')
        I(f's_add_u32 s22, s22, {WS_CP}')
        I(f's_add_u32 s23, s22, s{S_T2}'); I(f's_add_u32 s22, s22, s{S_T1}')
        I(f's_mul_i32 s38, s{S_C}, {28*4096}'); I(f's_add_u32 s38, s38, s{S_T0}'); I(f's_add_u32 s38, s38, {WS_HP}')
        I(f's_lshl_b32 s{S_T1}, s{S_WL}, 11'); I(f's_xor_b32 s{S_T2}, s{S_T1}, 2048')
        I(f's_add_u32 s39, s38, s{S_T2}'); I(f's_add_u32 s38, s38, s{S_T1}')
    def q_c(self, steps):
        I=self.I
        def one(i,x):
            def f():
                b=22 if x<2 else 23
                I(f's_add_u32 s91, s{b}, {i*4096}')
                I(f'buffer_load_dwordx4 {self.creg(i,x)}, v{V_L16}, {srd(SRD_WS)}, s91 offen offset:{(x&1)*1024} sc1', tag=('c',i,x))
            return f
        for i in steps:
            for x in range(4): self.q.append(one(i,x))
    def cflag_check(self):
        I=self.I
        L=self.newlabel('cf'); D=self.newlabel('cfd')
        self.wait(vm=['fc'])
        self.exec_set('0x3f80','0')
        I('v_cmp_gt_u32 vcc, 1, v54'); I(f's_cbranch_vccz {D}')
        snap=self.snapshot()
        I(f's_mov_b32 s{S_BOUND}, 0x40000')
        self.label(L)
        I(f'global_load_dword v54, v12, {sp(P_WS)} sc1'); I('s_waitcnt vmcnt(0)')
        I('v_cmp_gt_u32 vcc, 1, v54'); I(f's_cbranch_vccz {D}')
        I('s_sleep 4'); I(f's_sub_u32 s{S_BOUND}, s{S_BOUND}, 1'); I(f's_cbranch_scc0 {L}')
        self.label(D); self.restore(snap)
        self.exec_full()
    def flag_wait(self, vaddr, vdst, tag):
        I=self.I
        L=self.newlabel('fw'); D=self.newlabel('fwd')
        self.wait(vm=[tag])
        I(f'v_cmp_gt_u32 vcc, 1, v{vdst}'); I(f's_cbranch_vccz {D}')
        snap=self.snapshot()
        I(f's_mov_b32 s{S_BOUND}, 0x40000')
        self.label(L)
        I(f'global_load_dword v{vdst}, v{vaddr}, {sp(P_WS)} sc1'); I('s_waitcnt vmcnt(0)')
        I(f'v_cmp_gt_u32 vcc, 1, v{vdst}'); I(f's_cbranch_vccz {D}')
        I('s_sleep 4'); I(f's_sub_u32 s{S_BOUND}, s{S_BOUND}, 1'); I(f's_cbranch_scc0 {L}')
        self.label(D); self.restore(snap)
    def p2_main(self, pre_only=False):
        I=self.I
        NS=6
        g0=self.opt.sfirst
        steps=[('g',k) for k in range(g0)]
        gi,si=g0,0
        while gi<14 or si<7:
            if si<7: steps.append(('s',si)); si+=1
            if gi<14: steps.append(('g',gi)); gi+=1
        groups=[('g',i) if k=='g' else ('h',i) for k,i in steps]
        gidx={g:n for n,g in enumerate(groups)}
        reg=lambda g: V_RING+16*(gidx[g]%NS)
        pend=[(g,x) for g in groups for x in range(4)]
        done=set(); state={}
        if not pre_only and self.opt.gearly: pend,done,state=self.p2state
        def can(g,x):
            n=gidx[g]-NS
            return n<0 or (groups[n],x) in done
        def issue(nmax):
            n=0
            while n<nmax and pend and can(*pend[0]):
                g,x=pend[0]
                if g[0]=='h' and not state.get('hflag'):
                    self.flag_wait(14,11,'fh'); state['hflag']=True
                pend.pop(0)
                b0,b1,nst={'g':(90,92,14),'h':(38,39,7)}[g[0]]
                sx=b0 if x<2 else b1
                I(f'buffer_load_dwordx4 {vr(reg(g)+4*x,4)}, v{V_L16}, {srd(SRD_WS)}, s{sx} offen offset:{(x&1)*1024} sc1', tag=(g,x))
                if (x&1) and g[1]<nst-1: I(f's_add_u32 s{sx}, s{sx}, 4096')
                n+=1
        if pre_only:
            issue(4*NS); self.p2state=(pend,done,state); return
        if not self.opt.gearly: issue(4*NS)
        first=True
        self.q_c([4])
        for pos,(kind,i) in enumerate(steps):
            if kind=='g' and i==3: I(f'global_load_dword v11, v14, {sp(P_WS)} sc1', tag='fh')
            if kind=='s':
                H=('h',i)
                for x in range(4):
                    self.wait(vm=[('c',i,x)]+([(H,y) for y in range(4)] if x==0 else []))
                    if x==0: self.stamp(f'p2.s{i}',fine=2)
                    for y in range(4):
                        d=V_ACC+16*x+4*y
                        I(f'v_mfma_f32_16x16x32_bf16 {vr(d,4)}, {self.creg(i,x)}, {vr(reg(H)+4*y,4)}, {vr(d,4)}')
                    if x<3: issue(1)
                for y in range(4): done.add((H,y))
                issue(2)
            else:
                A=('g',i)
                for x in range(4):
                    self.wait(vm=[(A,x)])
                    if x==0: self.stamp(f'p2.g{i}',fine=2)
                    for y in range(4):
                        d=V_ACC+16*x+4*y
                        cin='0' if first else vr(d,4)
                        I(f'v_mfma_f32_16x16x32_bf16 {vr(d,4)}, {vr(reg(A)+4*x,4)}, {ar(16*i+4*y,4)}, {cin}')
                    done.add((A,x))
                    issue(1)
                    if i==1: self.q.pop(0)()
            first=False
        assert not pend

    def p2_epilogue(self):
        I=self.I
        self.reduce(V_RING)
        for y in range(2):
            for x in range(2):
                a=V_ACC+16*x+4*y; r=240+8*y+4*x
                for h in range(2):
                    I(f'v_pk_add_f32 v[{a+2*h}:{a+2*h+1}], v[{a+2*h}:{a+2*h+1}], v[{r+2*h}:{r+2*h+1}]')
        if self.opt.delta:
            import struct
            hx='0x%08x'%struct.unpack('<I',struct.pack('<f',self.opt.delta))[0]
            for y in range(2):
                for x in range(2):
                    for r in range(4):
                        a=V_ACC+16*x+4*y+r
                        I(f'v_add_f32 v{a}, {hx}, v{a}')
        I(f'v_and_b32 v7, 15, v{V_LANE}'); I(f'v_lshrrev_b32 v8, 4, v{V_LANE}')
        I('v_mul_u32_u24 v9, 1792, v7'); I('v_lshlrev_b32 v10, 4, v8'); I('v_add_u32 v9, v9, v10')
        I(f's_lshl_b32 s{S_T0}, s{S_C}, 6'); I(f's_lshl_b32 s{S_T1}, s{S_WL}, 5'); I(f's_add_u32 s{S_T0}, s{S_T0}, s{S_T1}')
        I(f's_lshl_b32 s{S_T1}, s{S_G}, 6'); I(f's_lshl_b32 s{S_T2}, s{S_WH}, 5'); I(f's_add_u32 s{S_T1}, s{S_T1}, s{S_T2}')
        for y in range(2):
            for x in range(2):
                I(f's_add_u32 s{S_T2}, s{S_T0}, {16*y}'); I(f's_mul_i32 s{S_T2}, s{S_T2}, 1792')
                I(f's_add_u32 s{S_T3}, s{S_T1}, {16*x}'); I(f's_lshl_b32 s{S_T3}, s{S_T3}, 2'); I(f's_add_u32 s{S_T2}, s{S_T2}, s{S_T3}')
                a=V_ACC+16*x+4*y
                I(f'buffer_store_dwordx4 {vr(a,4)}, v9, {srd(SRD_OUT)}, s{S_T2} offen {self.opt.outmod}')

    def write_stamps(self):
        if not self.opt.stamps: return
        I=self.I
        I('s_lshl_b32 s3, s2, 2'); I(f's_add_u32 s3, s3, s{S_W}'); I('s_lshl_b32 s3, s3, 8'); I(f's_add_u32 s3, s3, {WS_DBG}')
        I(f'v_lshlrev_b32 v9, 2, v{V_LANE}')
        I(f'buffer_store_dword v{self.vst}, v9, {srd(SRD_WS)}, s3 offen')
        if getattr(self.opt,'dbgwg',-1)>=0 and self.final_stamps:
            L=self.newlabel('dbgout')
            I(f's_cmp_lg_u32 s2, {self.opt.dbgwg}'); I(f's_cbranch_scc1 {L}')
            I(f's_cmp_lg_u32 s{S_W}, 0'); I(f's_cbranch_scc1 {L}')
            I(f'v_readlane_b32 s3, v{self.vst}, 0'); I('s_nop 4')
            I(f'v_subrev_u32 v8, s3, v{self.vst}')
            I(f'v_add_u32 v9, {self.opt.dbgoff}, v{V_LANE}'); I('v_lshlrev_b32 v9, 2, v9')
            I('ds_bpermute_b32 v8, v9, v8'); I('s_waitcnt lgkmcnt(0)')
            I(f'v_lshlrev_b32 v9, 2, v{V_LANE}')
            self.exec_set('0xfffe','0')
            I(f'global_store_dword v9, v8, {sp(P_DBG)}')
            self.exec_full()
            self.label(L)
    def build(self):
        I=self.I; o=self.opt
        if o.stamps: I('v_mov_b32 v55, 0')
        self.prologue()
        self.touches_pre()
        wt=self.opt.w1touch
        if wt=='A' or self.opt.alsoA: self.touch_w1()
        if self.opt.t3start:
            Lt=self.newlabel('t3s')
            I(f's_cmp_lg_u32 s{S_W}, 3'); I(f's_cbranch_scc1 {Lt}')
            snap=self.snapshot()
            self.touch_w1_wg()
            self.label(Lt); self.merge(snap)
        Lcont=self.newlabel('cont')
        I('s_cmp_eq_u32 s74, 1'); I(f's_cbranch_scc1 {Lcont}')
        snap=self.snapshot()
        self.ln8(clears=False)
        self.vm['st0']=0
        self.arrive0()
        if wt=='F': self.touch_w1()
        if wt=='S': self.touch_w1_split(True)
        self.stamp('pf1')
        if self.opt.eorder==0:
            self.cpack()
            self.stamp('cp')
            self.touch_pf(2)
            self.cpack_flag()
        elif self.opt.eorder==1:
            self.touch_pf(2)
            self.stamp('cp')
            self.cpack()
            self.cpack_flag()
        else:
            self.cpack()
            self.cpack_flag()
            self.stamp('cp')
            self.touch_pf(2)
            self.wait(vm='all')
        self.stamp('pf2')
        self.write_stamps()
        I('s_endpgm')
        self.label(Lcont); self.restore(snap)
        self.dma_setup()
        if wt=='E': self.touch_w1(setup_only=True)
        self.w1_setup()
        if self.opt.bfirst: self.q_b(); self.q_x([0,1,2])
        else: self.q_x([0,1,2]); self.q_b()
        for n in range(self.opt.pre): self.tick()
        self.stamp('issued')
        self.auto=self.opt.period if self.opt.ln8tick else 0
        self.ln8()
        self.auto=0
        self.stamp('ln8 stored')
        if self.opt.bfirst: self.q_x([3])
        else:
            rest=self.q; self.q=[]; self.q_x([3]); self.q+=rest
        self.auto=self.opt.period
        self.x_addr()
        self.lam_consts()
        self.auto=0
        self.stamp('lam')
        self.arrive0()
        self.stamp('arrived')
        self.drain_q()
        if wt=='F': self.touch_w1()
        if wt=='S': self.touch_w1_split(False)
        self.stamp('drained')
        self.wait(vm=['x64','bdma']); I('s_barrier')
        self.do_bread()
        self.auto=self.opt.statp
        self.row_stats()
        self.auto=0
        self.wait(vm=['b13'])
        self.stamp('ln64')
        I(f'v_and_b32 v35, 3, v{V_LANE}'); I('v_lshlrev_b32 v35, 6, v35')
        I(f'global_load_dword v34, v35, {sp(P_DBG)} sc1', tag='e0c')
        self.auto=self.opt.bup
        self.bu_gemm()
        self.stamp('bu',fine=True)
        self.auto=self.opt.scanp
        self.ln_fix()
        self.scan1()
        self.e_addr()
        self.auto=0
        self.stamp('scan1')
        self.wait_e0()
        self.stamp('e0')
        Lnog=self.newlabel('nog1'); Lj=self.newlabel('g1join')
        I(f's_cmp_eq_u32 s{S_HASG1}, 0'); I(f's_cbranch_scc1 {Lnog}')
        snap=self.snapshot()
        R1=dict(self.R); R1['free']=list(self.R['free']); R1['slot']=dict(self.R['slot'])
        self.g_bias_load()
        self.gemm1()
        self.stamp('gemm1')
        self.g_epilogue()
        self.stamp('gepi')
        I(f's_branch {Lj}')
        snapA=self.snapshot()
        RA={k:self.R[k] for k in ('iss','rd','rel','piece')}; RA['free']=list(self.R['free']); RA['slot']=dict(self.R['slot'])
        self.label(Lnog); self.restore(snap); self.R=R1
        self.ring_finish(); self.wait(lg='all')
        self.w2_setup()
        self.replay_ring(RA)
        self.e_loads()
        self.p2_flag_addr(); self.p2_bases()
        I(f'global_load_dword v54, v12, {sp(P_WS)} sc1', tag='fc')
        self.label(Lj); self.merge(snapA)
        self.cflag_check()
        self.q_c([5,6])
        self.auto=self.opt.finp
        for _ in self.finalize(): pass
        self.auto=0
        self.stamp('final')
        if o.stamps: I('v_mov_b32 v15, v55'); self.vst=15
        self.drain_q()
        if self.opt.gearly:
            self.flag_wait(12,53,'fg')
            self.stamp('flagG')
            self.p2_main(pre_only=True)
        self.p2_resid_loads()
        for n in range(self.opt.rwait):
            if self.R is not None and not self.ring_tick(): self.ring_finish()
        self.auto=self.opt.finp
        for _ in self.resid_compute(): pass
        self.auto=0
        self.wait(vm=['stH']); I('s_barrier')
        self.flag_set(S_C,7,S_G,WS_FH)
        self.q_c([0,1,2,3])
        while self.q or self.R is not None:
            if self.q:
                self.tick()
                if len(self.q)==self.opt.fglead and not self.opt.gearly: I(f'global_load_dword v11, v12, {sp(P_WS)} sc1', tag='fg')
            if self.R is not None:
                if not self.ring_tick(): self.ring_finish()
        self.wait(lg='all')
        self.stamp('w2 in regs')
        if not self.opt.gearly:
            self.flag_wait(12,11,'fg')
            self.stamp('flagG')
        self.p2_main()
        self.stamp('p2')
        self.p2_epilogue()
        self.stamp('end'); self.cstamp('c1')
        self.final_stamps=True
        self.write_stamps()
        self.label('L_exit')
        I('s_endpgm')
        self.label('L_code_end')

def header(lds):
    return f"""; Fused S5 SSM + MLP-Mixer token MLP, one persistent launch (256 workgroups, one per CU).
; @launch grid=(256,1,1) block=(256,1,1) lds={lds}
.amdgcn_target "amdgcn-amd-amdhsa--gfx950"
.text
.globl {KN}
.p2align 8
.type {KN},@function
{KN}:
"""
def footer():
    return f"""
.section .rodata,"a"
.p2align 6
.amdhsa_kernel {KN}
  .amdhsa_next_free_vgpr 512
  .amdhsa_next_free_sgpr 102
  .amdhsa_accum_offset 256
  .amdhsa_group_segment_fixed_size 0
  .amdhsa_kernarg_size 136
  .amdhsa_user_sgpr_count 2
  .amdhsa_user_sgpr_kernarg_segment_ptr 1
  .amdhsa_system_sgpr_workgroup_id_x 1
  .amdhsa_float_denorm_mode_32 3
.end_amdhsa_kernel
"""
if __name__=='__main__':
    ap=argparse.ArgumentParser()
    ap.add_argument('-o',default='k.s'); ap.add_argument('--stamps',action='store_true'); ap.add_argument('--stop',default=''); ap.add_argument('--fine',type=int,default=0); ap.add_argument('--period',type=int,default=48); ap.add_argument('--bupj',type=int,default=0); ap.add_argument('--scanp',type=int,default=64); ap.add_argument('--pfearly',type=int,default=1); ap.add_argument('--eorder',type=int,default=1); ap.add_argument('--statp',type=int,default=0); ap.add_argument('--gearly',type=int,default=1); ap.add_argument('--delta',type=float,default=0.0); ap.add_argument('--bup',type=int,default=0); ap.add_argument('--statj',type=int,default=9); ap.add_argument('--outmod',default=''); ap.add_argument('--dbgwg',type=int,default=-1); ap.add_argument('--dbgoff',type=int,default=0); ap.add_argument('--arrlead',type=int,default=10); ap.add_argument('--t3start',type=int,default=0); ap.add_argument('--notouch3',type=int,default=0); ap.add_argument('--own3',type=int,default=0); ap.add_argument('--alsoA',type=int,default=0); ap.add_argument('--now2',type=int,default=0); ap.add_argument('--gepip',type=int,default=0); ap.add_argument('--finp',type=int,default=36); ap.add_argument('--sfirst',type=int,default=10); ap.add_argument('--rwait',type=int,default=8); ap.add_argument('--fglead',type=int,default=6); ap.add_argument('--ln64p',type=int,default=48); ap.add_argument('--bfirst',type=int,default=0); ap.add_argument('--w2late',type=int,default=1); ap.add_argument('--rot1',type=int,default=4); ap.add_argument('--rot2',type=int,default=1); ap.add_argument('--rot3',type=int,default=1); ap.add_argument('--ln8tick',type=int,default=0); ap.add_argument('--bdelay',type=int,default=2); ap.add_argument('--w1touch',default='A'); ap.add_argument('--fin0',type=int,default=4); ap.add_argument('--finrate',type=int,default=2); ap.add_argument('--p2rate',type=int,default=3); ap.add_argument('--pre',type=int,default=1); ap.add_argument('--pre1',type=int,default=8); ap.add_argument('--gwait',type=int,default=6); ap.add_argument('--ht_touch',type=int,default=0); ap.add_argument('--g_touch',type=int,default=0)
    o=ap.parse_args()
    k=K(o); k.build()
    t,n=k.text()
    open(o.o,'w').write(header(LDS_TOTAL)+t+footer())
    print('wrote',o.o,'lines',t.count('\n'),'nop states inserted',n)
    if o.stamps: open(o.o+'.names','w').write(','.join(k.stampnames)); print(k.stampnames)
```

```python
import sys, os, argparse
from asmgen import Gen

KN = "parallel_sum__ssm_conv_s5__mixer_token_mlp__prompt_kernel"

WS_HT    = 0x000000
WS_STAT  = 0x1C0000
WS_E     = 0x1C4000
WS_FH    = 0x1E0000
WS_FG    = 0x1E4000
WS_FC    = 0x1E8000
WS_CP    = 0x780000
WS_GT    = 0x200000
WS_HP    = 0x400000
WS_DBG   = 0x900000

LDS_X  = 0
LDS_Y  = 57344
YW     = 26624
SLOT_OFF = [0, 4096, 8192, 12288, 16384, 20480]
LDS_LN8 = LDS_X + 57344 - 7680
LDS_TOTAL = LDS_Y + 4*YW

P_X, P_LRE, P_LIM, P_BRE, P_BIM, P_CRE, P_CIM, P_LDT = 4,6,8,10,12,14,16,18
P_DSK = 20
P_W1, P_B1, P_W2, P_B2 = 24,26,28,30
P_OUT, P_DBG, P_WS = 32,34,36
SRD_X, SRD_WS, SRD_1, SRD_2, SRD_W, SRD_OUT = 40,44,48,52,56,60
S_W, S_WH, S_WL, S_C, S_G, S_DT1, S_FT, S_HASG1 = 64,65,66,67,68,69,70,71
S_MASK, S_ONES = 72, 73
S_A, S_B, S_WO, S_T0, S_T1, S_T2, S_T3, S_BOUND = 76,77,78,79,80,81,82,83
S_YB = 84
S_WBEG, S_WEND = 96, 97
S_KO, S_KEND = 100, 101
S_FI = 3
S_E = 85
def sp(n): return f's[{n}:{n+1}]'
def srd(n): return f's[{n}:{n+3}]'
def vr(a,n): return f'v[{a}:{a+n-1}]' if n>1 else f'v{a}'
def ar(a,n): return f'a[{a}:{a+n-1}]' if n>1 else f'a{a}'

V_LANE, V_L16 = 0, 1
V_TR = 2
V_DMA = [6,13]
V_T = 16
V_LR,V_LI,V_K1,V_K2,V_SR,V_SI,V_PR,V_PI,V_L64R,V_L64I,V_L512R,V_L512I = range(40,52)
V_IN = 52
V_X64 = 56
V_BF = 112
V_RAW = 224
V_ACC = 56
V_RING = 120
V_EL = 16
V_EOF = 216

class K(Gen):
    def __init__(self, opt):
        super().__init__(); self.opt=opt; self.nstamp=0
        self.final_stamps=False; self.vst=55; self.nx=0; self.nb=0; self.bread=False; self.allow_bread=False; self.bdelay=opt.bdelay; self.q=[]; self.R=None; self.auto=0; self.acc=0; self.in_tick=False; self.full=True
    def I(self,t,tag=None):
        super().I(t,tag)
        if self.in_tick: return
        mn=t.split()[0]
        if mn.startswith(('buffer_','global_')): self.acc=0; return
        if not self.auto: return
        if mn.startswith('v_mfma'): self.acc+=16
        elif mn.startswith(('v_exp','v_rcp','v_sqrt','v_sin','v_cos','v_log')): self.acc+=8
        elif mn.startswith(('v_','ds_')): self.acc+=4
        else: return
        if self.acc>=self.auto and self.full and not mn.startswith(('v_cmp','s_cmp','s_bitcmp')):
            self.tick()
    def tick(self):
        self.in_tick=True; self.acc=0
        if not self.bread and self.allow_bread and self.nb>=34:
            if self.bdelay>0: self.bdelay-=1
            else:
                self.do_bread(); self.in_tick=False; return
        if self.q: self.q.pop(0)()
        elif self.R is not None: self.ring_tick()
        self.in_tick=False
    def do_bread(self):
        self.bread=True
        self.b_read()
        self.wait(lg=['brd'])
        self.ring_init('w1',16,3584,range(6))
    def drain_q(self):
        while self.q: self.tick()
    def stamp(self, name, fine=False):
        if not self.opt.stamps: return
        if fine and int(fine)>self.opt.fine: return
        i=self.nstamp; self.nstamp+=1
        assert i<64
        self.c(f'stamp {i}: {name}')
        self.wait(lg='all')
        self.I('s_memrealtime s[98:99]'); self.I('s_waitcnt lgkmcnt(0)'); self.smem=False
        self.I(f'v_writelane_b32 v{self.vst}, s98, {i}')
        self.stampnames=getattr(self,'stampnames',[])+[name]
    def cstamp(self, name):
        if not self.opt.stamps: return
        i=self.nstamp; self.nstamp+=1
        self.wait(lg='all')
        self.I('s_memtime s[98:99]'); self.I('s_waitcnt lgkmcnt(0)'); self.smem=False
        self.I(f'v_writelane_b32 v{self.vst}, s98, {i}')
        self.stampnames=getattr(self,'stampnames',[])+['#'+name]
    def rnd_bf16(self, v):
        self.I(f'v_cvt_pk_bf16_f32 v{v}, v{v}, v{v}')
        self.I(f'v_lshlrev_b32 v{v}, 16, v{v}')
    def make_srd(self, s, ptr, nbytes):
        self.I(f's_mov_b32 s{s}, s{ptr}'); self.I(f's_and_b32 s{s+1}, s{ptr+1}, 0xffff')
        self.I(f's_mov_b32 s{s+2}, {nbytes}'); self.I(f's_mov_b32 s{s+3}, 0x20000')
    def ln_stats(self, SUM, SSQ, R, C, T):
        I=self.I
        I(f'v_mul_f32 v{SUM}, 0x3b124925, v{SUM}')
        I(f'v_mul_f32 v{SSQ}, 0x3b124925, v{SSQ}')
        I(f'v_fma_f32 v{SSQ}, -v{SUM}, v{SUM}, v{SSQ}')
        I(f'v_max_f32 v{SSQ}, 0, v{SSQ}')
        I(f'v_cvt_pk_bf16_f32 v{SUM}, v{SUM}, v{SUM}')
        I(f'v_cvt_pk_bf16_f32 v{SSQ}, v{SSQ}, v{SSQ}')
        I(f'v_lshlrev_b32 v{SUM}, 16, v{SUM}')
        I(f'v_lshlrev_b32 v{SSQ}, 16, v{SSQ}')
        I(f'v_add_f32 v{SSQ}, 0x3727c5ac, v{SSQ}')
        self.rnd_bf16(SSQ)
        I(f'v_sqrt_f32 v{SSQ}, v{SSQ}')
        self.rnd_bf16(SSQ)
        I(f'v_rcp_f32 v{R}, v{SSQ}')
        I(f'v_mul_f32 v{C}, v{SUM}, v{R}')
        I(f'v_sub_f32 v{C}, 0, v{C}')
    def dot_sums(self, regs, accs):
        I=self.I
        for n,d in enumerate(regs):
            s,q = accs[2*(n&1)], accs[2*(n&1)+1]
            if n<2:
                I(f'v_dot2_f32_bf16 v{s}, v{d}, s{S_ONES}, 0')
                I(f'v_dot2_f32_bf16 v{q}, v{d}, v{d}, 0')
            else:
                I(f'v_dot2_f32_bf16 v{s}, v{d}, s{S_ONES}, v{s}')
                I(f'v_dot2_f32_bf16 v{q}, v{d}, v{d}, v{q}')
        I(f'v_add_f32 v{accs[0]}, v{accs[0]}, v{accs[2]}')
        I(f'v_add_f32 v{accs[1]}, v{accs[1]}, v{accs[3]}')
    def normalize(self, regs, R, C, tmps, hook=None):
        I=self.I
        n=len(tmps)
        for b in range(0,len(regs),n):
            grp=regs[b:b+n]
            for d,t in zip(grp,tmps):
                I(f'v_lshlrev_b32 v{t}, 16, v{d}')
                I(f'v_and_b32 v{t+1}, s{S_MASK}, v{d}')
            for d,t in zip(grp,tmps):
                I(f'v_pk_fma_f32 v[{t}:{t+1}], v[{t}:{t+1}], v[{R}:{R+1}], v[{C}:{C+1}] op_sel_hi:[1,0,0]')
            for d,t in zip(grp,tmps):
                I(f'v_cvt_pk_bf16_f32 v{d}, v{t}, v{t+1}')
            if hook: hook(b//n)
    def cmul(self, dr, di, xr, xi, yr, yi, t0, t1):
        I=self.I
        I(f'v_mul_f32 v{t0}, v{xi}, v{yi}')
        I(f'v_mul_f32 v{t1}, v{xi}, v{yr}')
        I(f'v_fma_f32 v{t0}, v{xr}, v{yr}, -v{t0}')
        I(f'v_fma_f32 v{di}, v{xr}, v{yi}, v{t1}')
        I(f'v_mov_b32 v{dr}, v{t0}')
    def cfma(self, dr, di, xr, xi, yr, yi, zr, zi, t0, t1):
        I=self.I
        I(f'v_fma_f32 v{t0}, v{xr}, v{yr}, v{zr}')
        I(f'v_fma_f32 v{t1}, v{xr}, v{yi}, v{zi}')
        I(f'v_fma_f32 v{t0}, -v{xi}, v{yi}, v{t0}')
        I(f'v_fma_f32 v{di}, v{xi}, v{yr}, v{t1}')
        I(f'v_mov_b32 v{dr}, v{t0}')
    def csq(self, dr, di, xr, xi, t0):
        I=self.I
        I(f'v_mul_f32 v{t0}, v{xi}, v{xi}')
        I(f'v_mul_f32 v{di}, v{xr}, v{xi}')
        I(f'v_fma_f32 v{dr}, v{xr}, v{xr}, -v{t0}')
        I(f'v_add_f32 v{di}, v{di}, v{di}')
    def allgather_q(self, v, g0, g1, g2, g3):
        I=self.I
        I(f'v_mov_b32 v{g0}, v{v}'); I(f'v_mov_b32 v{g1}, v{v}')
        I(f'v_permlane16_swap_b32 v{g0}, v{g1}')
        I(f'v_mov_b32 v{g2}, v{g0}'); I(f'v_mov_b32 v{g3}, v{g1}')
        I(f'v_permlane32_swap_b32 v{g0}, v{g2}')
        I(f'v_permlane32_swap_b32 v{g1}, v{g3}')
    def exec_full(self): self.I('s_mov_b64 exec, -1'); self.full=True
    def exec_set(self, lo, hi):
        self.full=False
        self.I(f's_mov_b32 exec_lo, {lo}'); self.I(f's_mov_b32 exec_hi, {hi}')
    def poll(self, name, voff, base, cmp_ge, nlanes_lo=None):
        I=self.I
        L=self.newlabel('poll'); D=self.newlabel('polld')
        I(f's_mov_b32 s{S_BOUND}, 0x40000')
        self.label(L)
        I(f'global_load_dword v7, v{voff}, {sp(base)} sc1')
        I('s_waitcnt vmcnt(0)'); self.vm={}
        I(f'v_cmp_gt_u32 vcc, {cmp_ge}, v7')
        I(f's_cbranch_vccz {D}')
        I('s_sleep 4')
        I(f's_sub_u32 s{S_BOUND}, s{S_BOUND}, 1')
        I(f's_cbranch_scc0 {L}')
        self.label(D)

    def ring_setup(self, pitch, xorsel):
        I=self.I
        I(f'v_lshrrev_b32 v7, 3, v{V_LANE}'); I(f'v_and_b32 v8, 7, v{V_LANE}')
        I('v_and_b32 v9, 6, v7'); I('v_xor_b32 v8, v8, v9'); I('v_lshlrev_b32 v8, 4, v8')
        I(f'v_mul_u32_u24 v7, {pitch}, v7'); I(f'v_add_u32 v{V_DMA[0]}, v7, v8')
        I(f'v_add_u32 v{V_DMA[1]}, {8*pitch-1024}, v{V_DMA[0]}')
        I(f'v_lshrrev_b32 v7, 2, v{V_LANE}'); I('v_and_b32 v8, 6, v7')
        I(f'v_bfe_u32 v9, v{V_LANE}, 1, 1'); I('v_xor_b32 v8, v8, v9'); I('v_lshlrev_b32 v8, 4, v8')
        I('v_lshlrev_b32 v7, 7, v7'); I('v_add_u32 v7, v7, v8')
        I(f'v_and_b32 v9, 1, v{V_LANE}'); I('v_lshlrev_b32 v9, 3, v9'); I('v_add_u32 v7, v7, v9')
        I(f's_lshl_b32 s{S_T0}, s{xorsel}, 6')
        I(f'v_xor_b32 v7, s{S_T0}, v7')
        I(f'v_add_u32 v{V_TR}, s{S_YB}, v7')
        for x in range(1,4):
            I(f'v_xor_b32 v{V_TR+x}, {x<<5}, v{V_TR}')
    def ring_init(self, name, nsteps, pitch, slots):
        self.R=dict(name=name,n=nsteps,pitch=pitch,free=list(slots),slot={},iss=0,rd=0,rel=0,piece=0)
    def ring_add(self, slots): self.R['free']+=list(slots)
    def ring_issue_piece(self):
        R=self.R; I=self.I
        k=R['iss']
        if k>=R['n']: return False
        j=R['piece']
        if j==0:
            if not R['free']: return False
            R['slot'][k]=R['free'].pop(0)
        if j%2==0:
            I(f's_add_u32 m0, s{S_YB}, {SLOT_OFF[R["slot"][k]]+j*1024}')
            if k or j: I(f's_add_u32 s{S_WO}, s{S_WO}, {16*R["pitch"]}')
            else: I('s_nop 0')
        I(f'buffer_load_dwordx4 v{V_DMA[j%2]}, {srd(SRD_W)}, s{S_WO} offen offset:{(j%2)*1024} lds', tag=(R['name'],k))
        R['piece']=(j+1)%4
        if R['piece']==0: R['iss']+=1
        return True
    def ring_issue(self):
        while self.ring_issue_piece(): pass
    def ring_read(self):
        R=self.R; I=self.I
        k=R['rd']
        if k>=R['n']: return False
        assert k<R['iss'], 'read before issue'
        off=SLOT_OFF[R['slot'][k]]
        self.wait(vm=[(R['name'],k)])
        for x in range(4):
            b=16*k+4*x
            I(f'ds_read_b64_tr_b16 {ar(b,2)}, v{V_TR+x} offset:{off}', tag=(R['name'],'r',k))
            I(f'ds_read_b64_tr_b16 {ar(b+2,2)}, v{V_TR+x} offset:{off+2048}', tag=(R['name'],'r',k))
        R['rd']+=1
        return True
    def ring_release(self):
        R=self.R
        k=R['rel']
        if k>=R['rd']: return False
        self.wait(lg=[(R['name'],'r',k)])
        R['free'].append(R['slot'][k]); R['rel']+=1
        self.ring_issue()
        return True
    def ring_tick(self):
        R=self.R
        if R['iss']<R['n']:
            if R['piece']==0 and not R['free']:
                if R['rel']>=R['rd']:
                    assert R['rd']<R.get('maxrd',99)
                    self.ring_read()
                k=R['rel']; self.wait(lg=[(R['name'],'r',k)]); R['free'].append(R['slot'][k]); R['rel']+=1
            self.ring_issue_piece()
            if R['piece']==3 and not R['free'] and R['rd']==R['rel'] and R['rd']<R['iss'] and R['rd']<R.get('maxrd',99):
                self.ring_read()
            return True
        if R['rd']<R['n'] and R['rd']<R.get('maxrd',99): return self.ring_read()
        return False
    def bg(self):
        return self.ring_tick()
    def replay_ring(self, RA):
        R=self.R
        while (R['iss'],R['piece'])<(RA['iss'],RA['piece']) or R['rd']<RA['rd']:
            if (R['iss'],R['piece'])<(RA['iss'],RA['piece']):
                before=R['rd']
                R['maxrd']=RA['rd']
                self.ring_tick()
            else:
                self.ring_read()
        while R['rel']<RA['rel']:
            k=R['rel']; self.wait(lg=[(R['name'],'r',k)]); R['free'].append(R['slot'][k]); R['rel']+=1
        R['maxrd']=99
        for k in RA: assert RA[k]==R[k], (k,RA[k],R[k])
    def ring_finish(self):
        R=self.R; R['maxrd']=99
        while R['rd']<R['n'] or R['iss']<R['n']: self.ring_tick()
        R['rel']=R['n']; self.R=None

    def reduce(self, tmp, pre=None, post=None):
        I=self.I
        for e in (1,2,3):
            I(f's_xor_b32 s{S_T0}, s{S_W}, {e}'); I(f's_mul_i32 s{S_T0}, s{S_T0}, {3*4096}')
            I(f's_add_u32 s{S_T0}, s{S_T0}, {LDS_X+(e-1)*4096}')
            I(f'v_add_u32 v7, s{S_T0}, v{V_L16}')
            xh,yh=e>>1,e&1
            for xl in range(2):
                for yl in range(2):
                    a=V_ACC+16*(2*xh+xl)+4*(2*yh+yl)
                    I(f'ds_write_b128 v7, {vr(a,4)} offset:{(2*xl+yl)*1024}', tag='redw')
        if pre: pre()
        self.wait(lg='all'); I('s_barrier')
        if post: post()
        I(f's_mul_i32 s{S_T0}, s{S_W}, {3*4096}'); I(f'v_add_u32 v7, s{S_T0}, v{V_L16}')
        for e in range(3):
            for sub in range(4):
                I(f'ds_read_b128 {vr(tmp+16*e+4*sub,4)}, v7 offset:{LDS_X+e*4096+sub*1024}', tag=('red',e))
        for e in range(3):
            self.wait(lg=[('red',e)])
            for sub in range(4):
                a=V_ACC+16*(sub>>1)+4*(sub&1)
                for h in range(2):
                    I(f'v_pk_add_f32 v[{a+2*h}:{a+2*h+1}], v[{a+2*h}:{a+2*h+1}], v[{tmp+16*e+4*sub+2*h}:{tmp+16*e+4*sub+2*h+1}]')

    def prologue(self):
        I=self.I
        I('s_cmp_ge_u32 s2, 256'); I('s_cbranch_scc1 L_exit')
        I('s_load_dwordx16 s[4:19], s[0:1], 0')
        if self.opt.pfearly:
            I('s_getpc_b64 s[98:99]'); self.label('L_pc0')
            I(f's_sub_u32 s98, s98, L_pc0-{KN}'); I('s_subb_u32 s99, s99, 0')
            I('v_lshlrev_b32 v9, 7, v0'); I(f'v_min_u32 v9, L_code_end-{KN}-16, v9')
            I('global_load_dword v12, v9, s[98:99]', tag='pf')
        I('s_load_dwordx2 s[20:21], s[0:1], 64')
        I('s_load_dwordx8 s[24:31], s[0:1], 80')
        I('s_load_dwordx4 s[32:35], s[0:1], 112')
        I('s_load_dwordx2 s[36:37], s[0:1], 128')
        I('v_lshrrev_b32 v7, 6, v0'); I(f'v_and_b32 v{V_LANE}, 63, v0')
        I(f'v_readfirstlane_b32 s{S_W}, v7')
        I(f'v_lshlrev_b32 v{V_L16}, 4, v{V_LANE}')
        I(f's_mov_b32 s{S_MASK}, 0xffff0000'); I(f's_mov_b32 s{S_ONES}, 0x3f803f80')
        I('s_and_b32 s22, s2, 7')
        I('s_lshr_b32 s23, s2, 3')
        I('s_and_b32 s38, s22, 1')
        I('s_lshr_b32 s39, s22, 1')
        I(f's_lshr_b32 s{S_WH}, s{S_W}, 1'); I(f's_and_b32 s{S_WL}, s{S_W}, 1')
        I(f's_mul_i32 s{S_T0}, s23, 37'); I(f's_lshr_b32 s{S_T0}, s{S_T0}, 8')
        I(f's_mul_i32 s{S_T1}, s{S_T0}, 7'); I(f's_sub_u32 s{S_G}, s23, s{S_T1}')
        I(f's_mov_b32 s{S_DT1}, s{S_G}')
        I(f's_lshl_b32 s{S_T1}, s22, 2'); I(f's_add_u32 s{S_C}, s{S_T1}, s{S_T0}')
        I(f's_min_u32 s{S_C}, s{S_C}, 31')
        I(f's_mul_i32 s{S_T1}, s39, 7'); I(f's_lshl_b32 s{S_T2}, s38, 2'); I(f's_add_u32 s87, s{S_T1}, s{S_T2}')
        I(f's_add_u32 s{S_FT}, s87, s{S_T0}'); I(f's_min_u32 s{S_FT}, s{S_FT}, 27')
        I(f's_sub_u32 s{S_T1}, 4, s38'); I(f's_cmp_lt_u32 s{S_T0}, s{S_T1}'); I(f's_cselect_b32 s{S_HASG1}, 1, 0')
        I('s_cmp_lt_u32 s23, 28'); I('s_cselect_b32 s74, 1, 0')
        self.wait(lg='all')
        self.make_srd(SRD_X, P_X, 2048*896)
        self.x8_issue(2)
        if not self.opt.pfearly:
            I('s_getpc_b64 s[98:99]'); self.label('L_pc0')
            I(f's_sub_u32 s98, s98, L_pc0-{KN}'); I('s_subb_u32 s99, s99, 0')
            I(f's_and_b32 s{S_T0}, s23, 1'); I(f's_lshl_b32 s{S_T0}, s{S_T0}, 2'); I(f's_add_u32 s{S_T0}, s{S_T0}, s{S_W}')
            I(f's_lshl_b32 s{S_T0}, s{S_T0}, 13')
            I(f'v_lshlrev_b32 v9, 7, v{V_LANE}'); I(f'v_add_u32 v9, s{S_T0}, v9')
            I(f'v_min_u32 v9, L_code_end-{KN}-16, v9')
            I('global_load_dword v12, v9, s[98:99]', tag='pf')
        self.make_srd(SRD_WS, P_WS, 0x10000000)
        I(f's_mul_i32 s{S_YB}, s{S_W}, {YW}'); I(f's_add_u32 s{S_YB}, s{S_YB}, {LDS_Y}')
        I(f's_sub_u32 s{S_E}, s23, 28'); I(f's_lshl_b32 s{S_E}, s{S_E}, 3'); I(f's_add_u32 s{S_E}, s{S_E}, s22')
        I('s_mov_b32 s86, s23'); I('s_mov_b32 s95, s22')
        self.stamp('start'); self.cstamp('c0')

    def x8_issue(self, oct):
        I=self.I
        I(f's_lshr_b32 s75, s{oct}, 2'); I('s_lshl_b32 s75, s75, 5')
        I(f's_lshl_b32 s{S_T0}, s{S_WH}, 4'); I(f's_add_u32 s75, s75, s{S_T0}')
        I(f's_and_b32 s{S_T0}, s{oct}, 3'); I(f's_lshl_b32 s{S_T0}, s{S_T0}, 2'); I(f's_add_u32 s75, s75, s{S_T0}')
        I(f's_lshl_b32 s{S_T0}, s{S_WL}, 1'); I(f's_add_u32 s75, s75, s{S_T0}')
        I(f's_mul_i32 s{S_T2}, s75, 896')
        I(f'v_and_b32 v7, 31, v{V_LANE}'); I(f'v_lshrrev_b32 v8, 5, v{V_LANE}')
        I('v_mul_u32_u24 v8, 896, v8'); I('v_lshlrev_b32 v9, 5, v7'); I('v_add_u32 v8, v8, v9')
        I('v_mov_b32 v9, 0x7ffffff0'); I('v_cmp_gt_u32 vcc, 28, v7'); I('v_cndmask_b32 v8, v9, v8, vcc')
        I(f'buffer_load_dwordx4 {vr(V_T,4)}, v8, {srd(SRD_X)}, s{S_T2} offen', tag='x8')
        I(f'buffer_load_dwordx4 {vr(V_T+4,4)}, v8, {srd(SRD_X)}, s{S_T2} offen offset:16', tag='x8')
    def touches_pre(self):
        I=self.I
        self.make_srd(SRD_1, P_BRE, 448*896); self.make_srd(SRD_2, P_BIM, 448*896); self.make_srd(SRD_W, P_W1, 2048*3584)
        I(f'v_lshrrev_b32 v7, 3, v{V_LANE}'); I(f'v_and_b32 v8, 7, v{V_LANE}'); I('v_min_u32 v8, 6, v8')
        I('v_mul_u32_u24 v7, 896, v7'); I('v_lshlrev_b32 v8, 7, v8'); I('v_add_u32 v7, v7, v8')
        I(f's_lshl_b32 s{S_T3}, s86, 2'); I(f's_add_u32 s{S_T3}, s{S_T3}, s{S_W}')
        I(f's_lshl_b32 s{S_T0}, s95, 8'); I(f's_lshl_b32 s{S_T1}, s{S_T3}, 1'); I(f's_add_u32 s{S_T0}, s{S_T0}, s{S_T1}'); I(f's_mul_i32 s{S_T0}, s{S_T0}, 896')
        self.exec_set('0xffff','0')
        I(f'buffer_load_dword v12, v7, {srd(SRD_X)}, s{S_T0} offen', tag='touch')
        I(f's_and_b32 s{S_T0}, s{S_T3}, 63'); I(f's_mul_i32 s{S_T0}, s{S_T0}, {7*896}')
        I(f's_cmp_lt_u32 s{S_T3}, 64')
        I(f's_cselect_b32 s{SRD_OUT}, s{P_BRE}, s{P_BIM}'); I(f's_cselect_b32 s{SRD_OUT+1}, s{P_BRE+1}, s{P_BIM+1}')
        I(f's_mov_b32 s{SRD_OUT+2}, {448*896}'); I(f's_mov_b32 s{SRD_OUT+3}, 0x20000')
        self.exec_set('-1','0x00ffffff')
        I(f'buffer_load_dword v12, v7, {srd(SRD_OUT)}, s{S_T0} offen', tag='touch')
        self.exec_full()
    def touch_w1(self, setup_only=False):
        I=self.I
        I(f'v_lshrrev_b32 v7, 2, v{V_LANE}'); I(f'v_and_b32 v8, 3, v{V_LANE}')
        I(f's_and_b32 s{S_T1}, s95, 1'); I(f's_sub_u32 s{S_T1}, 3, s{S_T1}'); I(f'v_min_u32 v8, s{S_T1}, v8')
        I('v_mul_u32_u24 v7, 3584, v7'); I('v_lshlrev_b32 v8, 7, v8'); I('v_add_u32 v7, v7, v8')
        I(f's_lshl_b32 s{S_T0}, s{S_W}, 9'); I(f's_lshl_b32 s{S_T1}, s86, 4'); I(f's_add_u32 s{S_T0}, s{S_T0}, s{S_T1}')
        I(f's_mul_i32 s{S_T0}, s{S_T0}, 3584'); I(f's_lshl_b32 s{S_T1}, s87, 7'); I(f's_add_u32 s{S_T0}, s{S_T0}, s{S_T1}')
        if setup_only:
            I('v_mov_b32 v238, v7'); I(f's_mov_b32 s94, s{S_T0}'); return
        I(f'buffer_load_dword v12, v7, {srd(SRD_W)}, s{S_T0} offen', tag='touch')
    def touch_w1_split(self, rest):
        I=self.I
        I(f'v_lshrrev_b32 v7, 2, v{V_LANE}'); I(f'v_and_b32 v8, 3, v{V_LANE}')
        I(f's_and_b32 s{S_T1}, s95, 1'); I(f's_sub_u32 s{S_T1}, 3, s{S_T1}'); I(f'v_min_u32 v8, s{S_T1}, v8')
        I('v_mul_u32_u24 v7, 3584, v7'); I('v_lshlrev_b32 v8, 7, v8'); I('v_add_u32 v7, v7, v8')
        I(f's_lshl_b32 s{S_T0}, s{S_W}, 9')
        if not rest:
            I(f's_lshl_b32 s{S_T1}, s86, 3'); I(f's_add_u32 s{S_T0}, s{S_T0}, s{S_T1}')
        else:
            I(f's_sub_u32 s{S_T1}, s86, 28'); I(f's_lshl_b32 s{S_T1}, s{S_T1}, 4'); I(f's_add_u32 s{S_T0}, s{S_T0}, s{S_T1}'); I(f's_add_u32 s{S_T0}, s{S_T0}, 224')
        I(f's_mul_i32 s{S_T0}, s{S_T0}, 3584'); I(f's_lshl_b32 s{S_T1}, s87, 7'); I(f's_add_u32 s{S_T0}, s{S_T0}, s{S_T1}')
        if not rest:
            self.exec_set('-1','0')
            I(f'buffer_load_dword v12, v7, {srd(SRD_W)}, s{S_T0} offen', tag='touch')
            self.exec_full()
        else:
            for t in range(5):
                I(f'buffer_load_dword v12, v7, {srd(SRD_W)}, s{S_T0} offen', tag='touch')
                if t<4: I(f's_add_u32 s{S_T0}, s{S_T0}, {64*3584}')
    def touch_w1_wg(self):
        I=self.I
        I(f'v_lshrrev_b32 v7, 2, v{V_LANE}'); I(f'v_and_b32 v8, 3, v{V_LANE}')
        I(f's_and_b32 s{S_T1}, s95, 1'); I(f's_sub_u32 s{S_T1}, 3, s{S_T1}'); I(f'v_min_u32 v8, s{S_T1}, v8')
        I('v_mul_u32_u24 v7, 3584, v7'); I('v_lshlrev_b32 v8, 7, v8'); I('v_add_u32 v7, v7, v8')
        I(f's_lshl_b32 s{S_T0}, s86, 4'); I(f's_mul_i32 s{S_T0}, s{S_T0}, 3584'); I(f's_lshl_b32 s{S_T1}, s87, 7'); I(f's_add_u32 s{S_T0}, s{S_T0}, s{S_T1}')
        for q in range(4):
            I(f'buffer_load_dword v12, v7, {srd(SRD_W)}, s{S_T0} offen', tag='touch')
            if q<3: I(f's_add_u32 s{S_T0}, s{S_T0}, {512*3584}')
    def q_w3(self):
        I=self.I
        def xpair(p):
            def f():
                L=self.newlabel('xw3')
                I(f's_add_u32 s100, s{S_W}, {3*p}'); I('s_cmp_ge_u32 s100, 8'); I(f's_cbranch_scc1 {L}')
                snap=self.snapshot()
                I('s_lshl_b32 s101, s100, 4'); I(f'v_xor_b32 v238, s101, v{V_L16}')
                I('s_lshr_b32 s101, s100, 1'); I('s_lshl_b32 s101, s101, 4'); I('s_and_b32 s100, s100, 1'); I('s_lshl_b32 s100, s100, 1')
                I('s_add_u32 s100, s100, s101'); I('s_add_u32 s100, s100, 12'); I('s_mul_i32 s100, s100, 896')
                I(f's_lshl_b32 s101, s{S_C}, 6'); I('s_mul_i32 s101, s101, 896'); I('s_add_u32 s101, s101, s100')
                I('s_mov_b32 exec_hi, 0x00ffffff')
                I(f's_add_u32 m0, s100, {LDS_X}'); I('s_nop 0')
                I(f'buffer_load_dwordx4 v238, {srd(SRD_X)}, s101 offen lds', tag='x64')
                I(f's_add_u32 m0, s100, {LDS_X+896}'); I('s_add_u32 s101, s101, 896')
                I(f'buffer_load_dwordx4 v238, {srd(SRD_X)}, s101 offen lds', tag='x64')
                I('s_mov_b32 exec_hi, -1')
                self.label(L); self.merge(snap); self.vm['x64']=0
            return f
        def bblock(p):
            def f():
                L=self.newlabel('bw3'); Li=self.newlabel('bw3i')
                I(f's_add_u32 s100, s{S_W}, {3*p}'); I('s_cmp_ge_u32 s100, 8'); I(f's_cbranch_scc1 {L}')
                snap=self.snapshot()
                I('s_and_b32 s101, s100, 3'); I('s_sub_u32 s91, 0, s101'); I('s_and_b32 s91, s91, 3'); I('s_lshl_b32 s91, s91, 4')
                I(f'v_xor_b32 v238, s91, v{V_L16}')
                I('s_bitcmp1_b32 s100, 2')
                I(f's_cselect_b32 s{SRD_OUT}, s{P_BIM}, s{P_BRE}'); I(f's_cselect_b32 s{SRD_OUT+1}, s{P_BIM+1}, s{P_BRE+1}')
                I('s_cselect_b32 s100, 13312, 0')
                I('s_mul_i32 s91, s101, 3328'); I('s_add_u32 s100, s100, s91'); I(f's_add_u32 s100, s100, {LDS_Y+3*YW}')
                I('s_mul_i32 s101, s101, 3584')
                I(f's_lshl_b32 s91, s{S_G}, 6'); I('s_add_u32 s91, s91, 48'); I('s_mul_i32 s91, s91, 896'); I('s_add_u32 s101, s101, s91')
                I('s_mov_b32 exec_hi, 0x000fffff')
                for r in range(4):
                    I(f's_add_u32 m0, s100, {r*832}')
                    if r: I('s_add_u32 s101, s101, 896')
                    else: I('s_nop 0')
                    I(f'buffer_load_dwordx4 v238, {srd(SRD_OUT)}, s101 offen lds', tag='bdma')
                I('s_mov_b32 exec_hi, -1')
                self.label(L); self.merge(snap); self.vm['bdma']=0
            return f
        return [xpair(p) for p in range(3)], [bblock(p) for p in range(3)]
    def dma_setup(self):
        I=self.I
        for n,h in enumerate((0,3,2,1)): I(f'v_xor_b32 v{224+n}, {h<<4}, v{V_L16}')
        for g in range(8): I(f'v_xor_b32 v{228+g}, {g<<4}, v{V_L16}')
        I(f's_lshl_b32 s{S_T0}, s{S_G}, 6'); I(f's_lshl_b32 s{S_T1}, s{S_W}, 4'); I(f's_add_u32 s88, s{S_T0}, s{S_T1}')
        I('s_mul_i32 s89, s88, 896')
        I(f's_lshl_b32 s{S_T0}, s{S_C}, 6'); I(f's_lshl_b32 s{S_T1}, s{S_W}, 2'); I(f's_add_u32 s{S_T0}, s{S_T0}, s{S_T1}')
        I(f's_mul_i32 s92, s{S_T0}, 896')
        I(f's_mul_i32 s93, s{S_W}, 3584')
        I(f'v_and_b32 v7, 15, v{V_LANE}'); I('v_mul_u32_u24 v236, 896, v7'); I(f'v_lshrrev_b32 v9, 4, v{V_LANE}'); I('v_lshlrev_b32 v9, 4, v9')
        I('v_add_u32 v236, v236, v9')
        I('v_add_u32 v237, s88, v7'); I('v_lshlrev_b32 v237, 1, v237')
    def q_b(self):
        I=self.I
        def row(im,n):
            def f():
                I('s_mov_b32 exec_hi, 0x000fffff')
                I(f's_add_u32 m0, s{S_YB}, {im*13312+n*832}')
                I(f's_add_u32 s91, s89, {n*896}')
                I(f'buffer_load_dwordx4 v{224+(n>>2)}, {srd(SRD_1 if im==0 else SRD_2)}, s91 offen lds', tag='bdma'); self.nb+=1
                I('s_mov_b32 exec_hi, -1')
            return f
        for im in range(2):
            for n in range(16): self.q.append(row(im,n))
        def b13(srdn,dst):
            def f():
                I(f'buffer_load_dwordx4 {vr(dst,4)}, v236, {srd(srdn)}, s89 offen offset:832', tag='b13'); self.nb+=1
            return f
        if self.opt.w1touch=='W':
            self.b13_loads=lambda: (b13(SRD_1,V_BF+52)(), b13(SRD_2,V_BF+56+52)())
        else:
            self.q.append(b13(SRD_1,V_BF+52)); self.q.append(b13(SRD_2,V_BF+56+52))
        def lam():
            I(f'global_load_ushort v{V_IN}, v237, {sp(P_LRE)}', tag='lam')
            I(f'global_load_ushort v{V_IN+1}, v237, {sp(P_LIM)}', tag='lam')
            I(f'global_load_ushort v{V_IN+2}, v237, {sp(P_LDT)}', tag='lam')
        self.q.insert(0,lam)
    def q_x(self, alist):
        I=self.I
        def row(a,b):
            def f():
                g=2*a+(b>>1); d=(16*a+b)*896
                I('s_mov_b32 exec_hi, 0x00ffffff')
                I(f's_add_u32 m0, s93, {LDS_X+d}')
                I(f's_add_u32 s91, s92, {d}')
                I(f'buffer_load_dwordx4 v{228+g}, {srd(SRD_X)}, s91 offen lds', tag='x64'); self.nx+=1
                I('s_mov_b32 exec_hi, -1')
            return f
        for a in alist:
            for b in range(4): self.q.append(row(a,b))
    def b_read(self):
        I=self.I
        I(f'v_and_b32 v7, 15, v{V_LANE}'); I(f'v_lshrrev_b32 v8, 4, v{V_LANE}'); I('v_lshrrev_b32 v9, 2, v7')
        I('v_sub_u32 v9, 0, v9'); I('v_and_b32 v9, 3, v9'); I('v_xor_b32 v8, v8, v9')
        I('v_lshlrev_b32 v8, 4, v8'); I('v_mul_u32_u24 v7, 832, v7'); I('v_add_u32 v7, v7, v8'); I(f'v_add_u32 v7, s{S_YB}, v7')
        if self.opt.w1touch!='W': self.wait(vm=['bdma'])
        for im in range(2):
            for j in range(13):
                I(f'ds_read_b128 {vr(V_BF+56*im+4*j,4)}, v7 offset:{im*13312+j*64}', tag='brd')
    def touch_pf(self, which):
        I=self.I
        if which==1: pitch,nrow,nt,srdn=3584,512,8,SRD_W
        else:
            pitch,nrow,nt,srdn=4096,448,7,SRD_OUT
            self.make_srd(SRD_OUT, P_W2, 1792*4096)
        I(f'v_lshrrev_b32 v7, 2, v{V_LANE}'); I(f'v_and_b32 v8, 3, v{V_LANE}')
        if which==1:
            I(f's_and_b32 s{S_T1}, s95, 1'); I(f's_sub_u32 s{S_T1}, 3, s{S_T1}'); I(f'v_min_u32 v8, s{S_T1}, v8')
        I(f'v_mul_u32_u24 v7, {pitch}, v7'); I('v_lshlrev_b32 v8, 7, v8'); I('v_add_u32 v7, v7, v8')
        I(f's_mul_i32 s{S_T0}, s{S_W}, {nrow}'); I(f's_sub_u32 s{S_T1}, s86, 28'); I(f's_lshl_b32 s{S_T1}, s{S_T1}, 4'); I(f's_add_u32 s{S_T0}, s{S_T0}, s{S_T1}')
        I(f's_mul_i32 s{S_T0}, s{S_T0}, {pitch}')
        if which==1: I(f's_lshl_b32 s{S_T1}, s87, 7')
        else: I(f's_lshl_b32 s{S_T1}, s95, 9')
        I(f's_add_u32 s{S_T0}, s{S_T0}, s{S_T1}')
        for t in range(nt):
            I(f'buffer_load_dword v12, v7, {srd(srdn)}, s{S_T0} offen', tag='touch2')
            if t<nt-1: I(f's_add_u32 s{S_T0}, s{S_T0}, {64*pitch}')
    def ln8(self, oct=2, clears=True):
        I=self.I
        D=list(range(V_T,V_T+8)); SUM,SSQ,S2,Q2=24,25,26,27; R,C=28,30; TM=[32,34,36,38]
        self.wait(vm=['x8'])
        def reduce32():
            for rot in (8,4,2,1):
                I(f'v_add_f32_dpp v{SUM}, v{SUM}, v{SUM} row_ror:{rot} row_mask:0xf bank_mask:0xf')
                I(f'v_add_f32_dpp v{SSQ}, v{SSQ}, v{SSQ} row_ror:{rot} row_mask:0xf bank_mask:0xf')
            I(f'v_mov_b32 v{S2}, v{SUM}'); I(f'v_mov_b32 v{Q2}, v{SSQ}')
            I(f'v_permlane16_swap_b32 v{SUM}, v{S2}'); I(f'v_permlane16_swap_b32 v{SSQ}, v{Q2}')
            I(f'v_add_f32 v{SUM}, v{SUM}, v{S2}'); I(f'v_add_f32 v{SSQ}, v{SSQ}, v{Q2}')
        self.dot_sums(D,[SUM,SSQ,S2,Q2]); reduce32()
        self.ln_stats(SUM,SSQ,R,C,None)
        I(f'v_mov_b32 v10, v{SUM}'); I(f'v_mov_b32 v11, v{R}')
        I(f'v_lshrrev_b32 v8, 5, v{V_LANE}'); I('v_lshlrev_b32 v8, 2, v8')
        I(f's_lshl_b32 s{S_T0}, s75, 2'); I(f's_add_u32 s{S_T0}, s{S_T0}, {WS_STAT}'); I(f's_add_u32 s{S_T1}, s{S_T0}, 8192')
        self.exec_set(1,1)
        I(f'buffer_store_dword v10, v8, {srd(SRD_WS)}, s{S_T0} offen sc1', tag='st0')
        I(f'buffer_store_dword v11, v8, {srd(SRD_WS)}, s{S_T1} offen sc1', tag='st0')
        self.exec_full()
        if clears and self.opt.w1touch=='W' and not self.opt.notouch3:
            Lt=self.newlabel('notouch')
            I(f's_cmp_lg_u32 s{S_W}, 3'); I(f's_cbranch_scc1 {Lt}')
            snap=self.snapshot()
            self.touch_w1_wg()
            self.label(Lt); self.merge(snap)
        I(f'v_and_b32 v7, 31, v{V_LANE}'); I('v_cmp_gt_u32 vcc, 28, v7')
        I(f'v_cndmask_b32 v{R}, 0, v{R}, vcc'); I(f'v_cndmask_b32 v{C}, 0, v{C}, vcc')
        self.normalize(D,R,C,TM)
        self.dot_sums(D,[SUM,SSQ,S2,Q2]); reduce32()
        self.ln_stats(SUM,SSQ,R,C,None)
        self.normalize(D,R,C,TM)
        self.auto=0
        I(f'v_lshrrev_b32 v8, 5, v{V_LANE}'); I(f's_lshl_b32 s{S_T0}, s{S_W}, 1'); I(f'v_add_u32 v8, s{S_T0}, v8')
        I('v_mul_u32_u24 v8, 960, v8'); I('v_lshlrev_b32 v9, 5, v7'); I('v_add_u32 v8, v8, v9'); I(f'v_add_u32 v8, {LDS_LN8}, v8')
        self.exec_set('0x0fffffff','0x0fffffff')
        I(f'ds_write_b128 v8, {vr(V_T,4)} offset:0'); I(f'ds_write_b128 v8, {vr(V_T+4,4)} offset:16')
        self.exec_full()
        self.wait(lg='all'); I('s_barrier')
        I(f'v_and_b32 v7, 15, v{V_LANE}'); I('v_lshrrev_b32 v8, 2, v7'); I('v_mul_u32_u24 v8, 960, v8')
        I(f'v_lshrrev_b32 v9, 4, v{V_LANE}'); I('v_lshlrev_b32 v10, 5, v9'); I('v_add_u32 v8, v8, v10')
        I(f'v_and_b32 v10, 3, v{V_LANE}'); I('v_lshlrev_b32 v10, 3, v10'); I('v_add_u32 v8, v8, v10')
        I(f's_lshl_b32 s{S_T0}, s{S_W}, 7'); I(f's_add_u32 s{S_T0}, s{S_T0}, {LDS_LN8}'); I(f'v_add_u32 v8, s{S_T0}, v8')
        I('v_lshlrev_b32 v9, 10, v9'); I('v_lshlrev_b32 v7, 4, v7'); I('v_add_u32 v9, v9, v7')
        I(f's_lshr_b32 s{S_T0}, s{oct}, 2'); I(f's_lshl_b32 s{S_T0}, s{S_T0}, 12')
        I(f's_and_b32 s{S_T1}, s{oct}, 3'); I(f's_lshl_b32 s{S_T1}, s{S_T1}, 8'); I(f's_add_u32 s{S_T0}, s{S_T0}, s{S_T1}')
        I(f's_lshl_b32 s{S_T1}, s{S_W}, 18'); I(f's_add_u32 s{S_T0}, s{S_T0}, s{S_T1}')
        if self.opt.w1touch=='W':
            Lno=self.newlabel('ln8none'); L6=self.newlabel('ln8no6')
            I(f's_cmp_eq_u32 s{S_W}, 3'); I(f's_cbranch_scc1 {Lno}')
            snap=self.snapshot()
            for i in range(2):
                I(f'ds_read_b64_tr_b16 v[{16+4*i}:{17+4*i}], v8 offset:{384*i}', tag='t0')
                I(f'ds_read_b64_tr_b16 v[{18+4*i}:{19+4*i}], v8 offset:{384*i+3840}', tag='t0')
            I(f's_add_u32 s{S_T1}, s{S_T0}, {3*262144}')
            self.wait(lg='all')
            I(f'buffer_store_dwordx4 v[16:19], v9, {srd(SRD_WS)}, s{S_T0} offen sc1', tag='st0')
            I(f'buffer_store_dwordx4 v[20:23], v9, {srd(SRD_WS)}, s{S_T1} offen sc1', tag='st0')
            I(f's_cmp_lg_u32 s{S_W}, 0'); I(f's_cbranch_scc1 {L6}')
            I(f'ds_read_b64_tr_b16 v[24:25], v8 offset:768', tag='t0')
            I(f'ds_read_b64_tr_b16 v[26:27], v8 offset:{768+3840}', tag='t0')
            I(f's_add_u32 s{S_T1}, s{S_T0}, {6*262144}')
            self.wait(lg='all')
            I(f'buffer_store_dwordx4 v[24:27], v9, {srd(SRD_WS)}, s{S_T1} offen sc1', tag='st0')
            self.label(L6)
            self.label(Lno); self.merge(snap); self.vm['st0']=0
        else:
            I(f'ds_read_b64_tr_b16 v[16:17], v8 offset:0', tag='t0')
            I(f'ds_read_b64_tr_b16 v[18:19], v8 offset:3840', tag='t0')
            Lskip=self.newlabel('ln8skip')
            I(f's_cmp_eq_u32 s{S_W}, 3'); I(f's_cbranch_scc1 {Lskip}')
            snap=self.snapshot()
            I(f'ds_read_b64_tr_b16 v[20:21], v8 offset:512', tag='t1')
            I(f'ds_read_b64_tr_b16 v[22:23], v8 offset:{512+3840}', tag='t1')
            I(f's_add_u32 s{S_T1}, s{S_T0}, {4*262144}')
            self.wait(lg='all')
            I(f'buffer_store_dwordx4 v[20:23], v9, {srd(SRD_WS)}, s{S_T1} offen sc1', tag='st0')
            self.label(Lskip); self.merge(snap)
            self.wait(lg='all')
            I(f'buffer_store_dwordx4 v[16:19], v9, {srd(SRD_WS)}, s{S_T0} offen sc1', tag='st0')
        if not clears:
            I('s_barrier'); return
        Ln=self.newlabel('noclr')
        I(f's_cmp_lg_u32 s{S_W}, {1 if self.opt.w1touch=="W" else 3}'); I(f's_cbranch_scc1 {Ln}')
        snap=self.snapshot()
        I('v_mov_b32 v8, 0')
        I('v_mov_b32 v10, -1'); I('v_mov_b32 v11, -1'); I(f'v_lshlrev_b32 v9, 3, v{V_LANE}')
        I(f's_lshl_b32 s{S_T0}, s{S_G}, 5'); I(f's_add_u32 s{S_T0}, s{S_T0}, s{S_C}'); I(f's_lshl_b32 s{S_T0}, s{S_T0}, 9')
        I(f's_add_u32 s{S_T0}, s{S_T0}, {WS_E}')
        I(f'buffer_store_dwordx2 v[10:11], v9, {srd(SRD_WS)}, s{S_T0} offen sc1', tag='st0')
        I(f's_mul_i32 s{S_T0}, s{S_C}, 7'); I(f's_add_u32 s{S_T0}, s{S_T0}, s{S_G}'); I(f's_lshl_b32 s{S_T0}, s{S_T0}, 6')
        I(f's_add_u32 s{S_T0}, s{S_T0}, {WS_FH}')
        I('v_mov_b32 v10, 0')
        self.exec_set(1,0)
        I(f'buffer_store_dword v10, v8, {srd(SRD_WS)}, s{S_T0} offen sc1', tag='st0')
        Lg=self.newlabel('nog1clr'); Lc=self.newlabel('nocclr')
        I(f's_cmp_eq_u32 s{S_HASG1}, 0'); I(f's_cbranch_scc1 {Lg}')
        I(f's_mul_i32 s{S_T0}, s{S_DT1}, 28'); I(f's_add_u32 s{S_T0}, s{S_T0}, s{S_FT}'); I(f's_lshl_b32 s{S_T0}, s{S_T0}, 6')
        I(f's_add_u32 s{S_T0}, s{S_T0}, {WS_FG}')
        I(f'buffer_store_dword v10, v8, {srd(SRD_WS)}, s{S_T0} offen sc1', tag='st0')
        self.label(Lg)
        I('s_cmp_lg_u32 s95, 0'); I(f's_cbranch_scc1 {Lc}')
        I(f's_lshl_b32 s{S_T0}, s86, 6'); I(f's_add_u32 s{S_T0}, s{S_T0}, {WS_FC}')
        I(f'buffer_store_dword v10, v8, {srd(SRD_WS)}, s{S_T0} offen sc1', tag='st0')
        self.label(Lc)
        self.exec_full()
        self.label(Ln); self.merge(snap); self.vm['st0']=0
        I('s_barrier')

    def ln8_extra(self):
        I=self.I
        L=self.newlabel('noextra'); Lp=self.newlabel('extra')
        I(f's_cmp_lg_u32 s{S_HASG1}, 0'); I(f's_cbranch_scc1 {L}')
        snap=self.snapshot()
        I('s_lshr_b32 s3, s95, 1'); I('s_mul_i32 s3, s3, 7'); I('s_add_u32 s3, s3, s86'); I('s_add_u32 s3, s3, 203')
        self.label(Lp)
        self.x8_issue(3)
        I('s_waitcnt vmcnt(0)'); self.vm={}; self.vm['x8']=0
        self.ln8(oct=3, clears=False)
        I('s_add_u32 s3, s3, 28'); I('s_cmp_lt_u32 s3, 256'); I(f's_cbranch_scc1 {Lp}')
        I('s_waitcnt vmcnt(0)')
        self.label(L); self.restore(snap); self.vm['st0']=min(self.vm.get('st0',0),0)

    def arrive0(self):
        I=self.I
        self.wait(vm=['st0']); I('s_barrier')
        L=self.newlabel('arr')
        I(f's_cmp_lg_u32 s{S_W}, 0'); I(f's_cbranch_scc1 {L}')
        snap=self.snapshot()
        I('s_and_b32 s3, s2, 3'); I('s_lshl_b32 s3, s3, 6'); I('v_mov_b32 v8, s3'); I('v_mov_b32 v9, 1')
        self.exec_set(1,0)
        I(f'global_atomic_add v8, v9, {sp(P_DBG)} sc1')
        self.exec_full()
        self.label(L); self.merge(snap)

    def w1_setup(self):
        I=self.I
        self.ring_setup(3584, S_WH)
        I(f's_mul_i32 s{S_WBEG}, s{S_W}, {512*3584}'); I(f's_lshl_b32 s{S_T0}, s{S_FT}, 7'); I(f's_add_u32 s{S_WBEG}, s{S_WBEG}, s{S_T0}')
        I(f's_mov_b32 s{S_WO}, s{S_WBEG}')

    def lam_consts(self):
        I=self.I
        LRE,LIM,LDT=V_IN,V_IN+1,V_IN+2
        t=list(range(16,40))
        self.wait(vm=['lam'])
        for r in (LRE,LIM,LDT): I(f'v_lshlrev_b32 v{r}, 16, v{r}')
        I(f'v_mul_f32 v{LDT}, 0x3fb8aa3b, v{LDT}'); I(f'v_exp_f32 v{LDT}, v{LDT}')
        self.rnd_bf16(LDT)
        I(f'v_mul_f32 v16, v{LDT}, v{LRE}'); I(f'v_mul_f32 v17, v{LDT}, v{LIM}')
        I('v_mul_f32 v16, 0x3fb8aa3b, v16'); I('v_mul_f32 v17, 0.15915494, v17')
        I('v_exp_f32 v16, v16'); I('v_fract_f32 v17, v17')
        I('v_cos_f32 v18, v17'); I('v_sin_f32 v19, v17')
        I(f'v_mul_f32 v{V_LR}, v16, v18'); I(f'v_mul_f32 v{V_LI}, v16, v19')
        I(f'v_add_f32 v16, -1.0, v{V_LR}')
        I(f'v_mul_f32 v17, v{LRE}, v{LRE}'); I(f'v_fma_f32 v17, v{LIM}, v{LIM}, v17'); I('v_rcp_f32 v17, v17')
        I(f'v_mul_f32 v18, v16, v{LRE}'); I(f'v_fma_f32 v18, v{V_LI}, v{LIM}, v18')
        I(f'v_mul_f32 v19, v16, v{LIM}'); I(f'v_fma_f32 v19, v{V_LI}, v{LRE}, -v19')
        I('v_add_f32 v17, v17, v17')
        I(f'v_mul_f32 v{V_K1}, v18, v17'); I(f'v_mul_f32 v{V_K2}, v19, v17'); I(f'v_sub_f32 v{V_K2}, 0, v{V_K2}')
        self.csq(16,17,V_LR,V_LI,30); self.csq(18,19,16,17,30); self.csq(16,17,18,19,30); self.csq(20,21,16,17,30)
        self.csq(22,23,20,21,30)
        self.cmul(24,25,22,23,20,21,30,31)
        self.csq(V_L64R,V_L64I,22,23,30)
        self.csq(16,17,V_L64R,V_L64I,30); self.csq(18,19,16,17,30); self.csq(V_L512R,V_L512I,18,19,30)
        I(f'v_mov_b32 v{V_PR}, 1.0'); I(f'v_mov_b32 v{V_PI}, 0')
        for (lo,hi,r) in (('0xffff0000','-1',20),('0','-1',22),('0','0xffff0000',24)):
            self.exec_set(lo,hi); I(f'v_mov_b32 v{V_PR}, v{r}'); I(f'v_mov_b32 v{V_PI}, v{r+1}')
        self.exec_full()
        I(f'v_mov_b32 v{V_IN}, v20'); I(f'v_mov_b32 v{V_IN+1}, v21')

    def x_addr(self):
        I=self.I
        I(f'v_and_b32 v7, 15, v{V_LANE}'); I('v_lshrrev_b32 v8, 2, v7'); I('v_lshlrev_b32 v8, 4, v8')
        I('v_and_b32 v9, 3, v7'); I('v_add_u32 v8, v8, v9'); I('v_mul_u32_u24 v8, 896, v8')
        I(f'v_lshrrev_b32 v9, 4, v{V_LANE}'); I('v_lshrrev_b32 v7, 1, v7'); I('v_xor_b32 v9, v9, v7'); I('v_lshlrev_b32 v9, 4, v9')
        I('v_add_u32 v14, v8, v9'); I('v_xor_b32 v15, 64, v14')
    def ln64(self):
        I=self.I
        D=list(range(V_X64,V_X64+56)); SUM,SSQ,S2,Q2=24,25,26,27; R,C=28,30; TM=[32,34,36,38]
        I(f's_mul_i32 s{S_T0}, s{S_W}, 3584'); I(f'v_add_u32 v22, s{S_T0}, v14'); I(f'v_add_u32 v23, s{S_T0}, v15')
        self.allow_bread=True
        while self.nx<16: self.tick()
        if self.opt.w1touch!='W': self.wait(vm=['x64'])
        for j in range(14):
            I(f'ds_read_b128 {vr(V_X64+4*j,4)}, v{22+(j&1)} offset:{LDS_X+(j>>1)*128}', tag=('xr',j))
        accs=[SUM,SSQ,S2,Q2]
        for n,d in enumerate(D):
            if n%4==0: self.wait(lg=[('xr',n//4)])
            sa,qa = accs[2*(n&1)], accs[2*(n&1)+1]
            if n<2:
                I(f'v_dot2_f32_bf16 v{sa}, v{d}, s{S_ONES}, 0'); I(f'v_dot2_f32_bf16 v{qa}, v{d}, v{d}, 0')
            else:
                I(f'v_dot2_f32_bf16 v{sa}, v{d}, s{S_ONES}, v{sa}'); I(f'v_dot2_f32_bf16 v{qa}, v{d}, v{d}, v{qa}')
        I(f'v_add_f32 v{SUM}, v{SUM}, v{S2}'); I(f'v_add_f32 v{SSQ}, v{SSQ}, v{Q2}')
        for sw in ('16','32'):
            I(f'v_mov_b32 v{S2}, v{SUM}'); I(f'v_mov_b32 v{Q2}, v{SSQ}')
            I(f'v_permlane{sw}_swap_b32 v{SUM}, v{S2}'); I(f'v_permlane{sw}_swap_b32 v{SSQ}, v{Q2}')
            I(f'v_add_f32 v{SUM}, v{SUM}, v{S2}'); I(f'v_add_f32 v{SSQ}, v{SSQ}, v{Q2}')
        self.stamp('dots',fine=True)
        self.ln_stats(SUM,SSQ,R,C,None)
        self.allow_bread=True
        def h(n):
            I(f'ds_write_b128 v{22+(n&1)}, {vr(V_X64+4*n,4)} offset:{LDS_X+(n>>1)*128}', tag='xw')
        self.normalize(D,R,C,TM,hook=h)

    def row_stats(self):
        I=self.I
        D=list(range(V_X64,V_X64+56)); SUM,SSQ,S2,Q2=24,25,26,27; R,C=28,30
        I(f's_mul_i32 s{S_T0}, s{S_W}, 3584'); I(f'v_add_u32 v22, s{S_T0}, v14'); I(f'v_add_u32 v23, s{S_T0}, v15')
        for j in range(14):
            I(f'ds_read_b128 {vr(V_X64+4*j,4)}, v{22+(j&1)} offset:{LDS_X+(j>>1)*128}', tag=('xr',j))
        accs=[SUM,SSQ,S2,Q2]
        for n,d in enumerate(D):
            if n%4==0: self.wait(lg=[('xr',n//4)])
            sa,qa = accs[2*(n&1)], accs[2*(n&1)+1]
            if n<2:
                I(f'v_dot2_f32_bf16 v{sa}, v{d}, s{S_ONES}, 0'); I(f'v_dot2_f32_bf16 v{qa}, v{d}, v{d}, 0')
            else:
                I(f'v_dot2_f32_bf16 v{sa}, v{d}, s{S_ONES}, v{sa}'); I(f'v_dot2_f32_bf16 v{qa}, v{d}, v{d}, v{qa}')
        I(f'v_add_f32 v{SUM}, v{SUM}, v{S2}'); I(f'v_add_f32 v{SSQ}, v{SSQ}, v{Q2}')
        for sw in ('16','32'):
            I(f'v_mov_b32 v{S2}, v{SUM}'); I(f'v_mov_b32 v{Q2}, v{SSQ}')
            I(f'v_permlane{sw}_swap_b32 v{SUM}, v{S2}'); I(f'v_permlane{sw}_swap_b32 v{SSQ}, v{Q2}')
            I(f'v_add_f32 v{SUM}, v{SUM}, v{S2}'); I(f'v_add_f32 v{SSQ}, v{SSQ}, v{Q2}')
        self.ln_stats(SUM,SSQ,R,C,None)
        I(f'v_and_b32 v8, 15, v{V_LANE}'); I('v_lshlrev_b32 v8, 2, v8'); I(f's_add_u32 s{S_T0}, s{S_YB}, 24576'); I(f'v_add_u32 v8, s{S_T0}, v8')
        self.exec_set('0xffff','0')
        I(f'ds_write_b32 v8, v{SUM}', tag='stw'); I(f'ds_write_b32 v8, v{R} offset:64', tag='stw')
        self.exec_full()
    def stat_reads(self):
        I=self.I
        self.wait(lg=['stw']); I('s_barrier')
        I(f'v_lshrrev_b32 v8, 4, v{V_LANE}'); I('v_lshlrev_b32 v8, 4, v8'); I(f'v_add_u32 v8, {LDS_Y+24576}, v8'); I(f'v_add_u32 v9, {2*YW}, v8')
        for i in range(4):
            I(f'ds_read_b128 {vr(16+4*i,4)}, v{8+(i>>1)} offset:{(i&1)*YW}', tag='stat')
            I(f'ds_read_b128 {vr(88+4*i,4)}, v{8+(i>>1)} offset:{(i&1)*YW+64}', tag='stat')
    def bu_gemm(self):
        I=self.I
        BUF=[V_X64, V_X64+16]
        for r in range(4): I(f'v_mov_b32 v{36+r}, s{S_ONES}')
        def rd(j):
            for i in range(4):
                I(f'ds_read_b128 {vr(BUF[j%2]+4*i,4)}, v{14+(j&1)} offset:{LDS_X+i*3584+(j>>1)*128}', tag=('xa',j))
        rd(0); rd(1)
        bup=self.auto
        for j in range(14):
            self.auto = bup if j>=self.opt.bupj else 0
            self.wait(lg=[('xa',j)])
            for im in range(2):
                d=104+4*im
                I(f'v_mfma_f32_16x16x32_bf16 {vr(d,4)}, v[36:39], {vr(V_BF+56*im+4*j,4)}, {vr(d,4) if j else 0}')
            for i in range(4):
                for im in range(2):
                    d=V_RAW+16*im+4*i
                    cin = vr(d,4) if j else '0'
                    I(f'v_mfma_f32_16x16x32_bf16 {vr(d,4)}, {vr(BUF[j%2]+4*i,4)}, {vr(V_BF+56*im+4*j,4)}, {cin}')
            if j+2<14: rd(j+2)
            if j==12:
                sv=self.auto; self.auto=0
                self.stat_reads(); self.auto=sv
    def stat_loads(self):
        I=self.I
        I(f'v_lshrrev_b32 v8, 4, v{V_LANE}'); I('v_lshlrev_b32 v8, 6, v8')
        I(f's_lshl_b32 s{S_T0}, s{S_C}, 8'); I(f's_add_u32 s{S_T0}, s{S_T0}, {WS_STAT}'); I(f's_add_u32 s{S_T1}, s{S_T0}, 8192')
        for n in range(4):
            I(f'buffer_load_dwordx4 {vr(16+4*n,4)}, v8, {srd(SRD_WS)}, s{S_T0} offen offset:{16*n} sc1', tag='stat')
            I(f'buffer_load_dwordx4 {vr(88+4*n,4)}, v8, {srd(SRD_WS)}, s{S_T1} offen offset:{16*n} sc1', tag='stat')
    def ln_fix(self):
        I=self.I
        self.wait(lg=['stat'])
        for im in range(2):
            sb=104+4*im
            for t in range(0,16,2):
                r=V_RAW+16*im+t
                I(f'v_pk_fma_f32 v[{r}:{r+1}], v[{16+t}:{17+t}], v[{sb}:{sb+1}], v[{r}:{r+1}] neg_lo:[1,0,0] neg_hi:[1,0,0]')
            for t in range(0,16,2):
                r=V_RAW+16*im+t
                I(f'v_pk_mul_f32 v[{r}:{r+1}], v[{r}:{r+1}], v[{88+t}:{89+t}]')

    def scan1(self):
        I=self.I
        ER,EI,T0,T1=16,17,18,19
        L16R,L16I=V_IN,V_IN+1
        I(f'v_mov_b32 v{ER}, v{V_RAW}'); I(f'v_mov_b32 v{EI}, v{V_RAW+16}')
        for t in range(1,16):
            I(f'v_fma_f32 v{T0}, v{V_LR}, v{ER}, v{V_RAW+t}')
            I(f'v_fma_f32 v{T1}, v{V_LR}, v{EI}, v{V_RAW+16+t}')
            I(f'v_fma_f32 v{T0}, -v{V_LI}, v{EI}, v{T0}')
            I(f'v_fma_f32 v{EI}, v{V_LI}, v{ER}, v{T1}')
            ER,T0=T0,ER
        GR=[20,21,22,23]; GI=[24,25,26,27]
        self.allgather_q(ER,*GR); self.allgather_q(EI,*GI)
        for q in range(1,4):
            self.cfma(GR[q],GI[q],L16R,L16I,GR[q-1],GI[q-1],GR[q],GI[q],28,29)
        I(f'v_mov_b32 v{V_SR}, 0'); I(f'v_mov_b32 v{V_SI}, 0')
        for n,(lo,hi) in enumerate((('0xffff0000','-1'),('0','-1'),('0','0xffff0000'))):
            self.exec_set(lo,hi); I(f'v_mov_b32 v{V_SR}, v{GR[n]}'); I(f'v_mov_b32 v{V_SI}, v{GI[n]}')
        self.exec_full()
        I(f'v_mov_b32 v10, v{GR[3]}'); I(f'v_mov_b32 v11, v{GI[3]}')
        I(f'v_lshlrev_b32 v8, 3, v{V_LANE}')
        I(f's_lshl_b32 s{S_T0}, s{S_G}, 5'); I(f's_add_u32 s{S_T0}, s{S_T0}, s{S_C}'); I(f's_lshl_b32 s{S_T0}, s{S_T0}, 9')
        I(f's_lshl_b32 s{S_T1}, s{S_W}, 7'); I(f's_add_u32 s{S_T0}, s{S_T0}, s{S_T1}'); I(f's_add_u32 s{S_T0}, s{S_T0}, {WS_E}')
        self.exec_set('0xffff',0)
        I(f'buffer_store_dwordx2 v[10:11], v8, {srd(SRD_WS)}, s{S_T0} offen sc1', tag='stE')
        self.exec_full()

    def wait_e0(self):
        I=self.I
        L=self.newlabel('e0'); D=self.newlabel('e0d')
        self.wait(vm=['e0c'])
        I('v_cmp_gt_u32 vcc, 64, v34'); I(f's_cbranch_vccz {D}')
        snap=self.snapshot()
        I(f's_mov_b32 s{S_BOUND}, 0x40000')
        self.label(L)
        I(f'global_load_dword v34, v35, {sp(P_DBG)} sc1'); I('s_waitcnt vmcnt(0)')
        I('v_cmp_gt_u32 vcc, 64, v34'); I(f's_cbranch_vccz {D}')
        I('s_sleep 4'); I(f's_sub_u32 s{S_BOUND}, s{S_BOUND}, 1'); I(f's_cbranch_scc0 {L}')
        self.label(D); self.restore(snap)

    def gemm1(self):
        I=self.I
        SL=[V_RING+16*i for i in range(6)]
        DEP=len(SL)
        I(f's_mul_i32 s22, s{S_DT1}, 262144'); I(f's_lshl_b32 s{S_T0}, s{S_W}, 16'); I(f's_add_u32 s22, s22, s{S_T0}')
        I(f's_lshl_b32 s{S_T0}, s{S_WL}, 11'); I(f's_xor_b32 s{S_T1}, s{S_T0}, 2048')
        I(f's_add_u32 s23, s22, s{S_T1}'); I(f's_add_u32 s22, s22, s{S_T0}')
        I(f's_mov_b32 s{S_A}, s22'); I(f's_mov_b32 s{S_B}, s23')
        def ld(k,y):
            r=SL[k%DEP]
            sx=S_A if y<2 else S_B
            I(f'buffer_load_dwordx4 {vr(r+4*y,4)}, v{V_L16}, {srd(SRD_WS)}, s{sx} offen offset:{(y&1)*1024} sc1', tag=('ht',k,y))
            if (y&1) and k<15: I(f's_add_u32 s{sx}, s{sx}, 4096')
        pro=[(k,y) for k in range(DEP) for y in range(4)]
        while pro:
            ld(*pro.pop(0))
            if self.R['iss']<self.R['n']: self.ring_tick()
        self.ring_finish(); self.wait(lg='all')
        self.stamp('w1 in regs')
        self.w2_setup(); self.R['maxrd']=0
        for k in range(16):
            r=SL[k%DEP]
            for y in range(4):
                self.wait(vm=[('ht',k,y)])
                if y==0: self.stamp(f'g1.{k}',fine=3)
                for x in range(4):
                    d=V_ACC+16*x+4*y
                    cin=vr(d,4) if k else '0'
                    I(f'v_mfma_f32_16x16x32_bf16 {vr(d,4)}, {ar(16*k+4*x,4)}, {vr(r+4*y,4)}, {cin}')
                if k+DEP<16: ld(k+DEP,y)
                else:
                    self.R['maxrd']=k
                    self.tick()
        self.R['maxrd']=99
        self.stamp('g1loop')

    def p2_flag_addr(self):
        I=self.I
        I(f's_mul_i32 s{S_T0}, s{S_W}, 7'); I(f's_lshr_b32 s{S_T1}, s{S_T0}, 2')
        I(f's_mul_i32 s{S_T2}, s{S_C}, 7'); I(f's_add_u32 s{S_T2}, s{S_T2}, s{S_T1}')
        I(f's_add_u32 s{S_T3}, s{S_T0}, 6'); I(f's_lshr_b32 s{S_T3}, s{S_T3}, 2'); I(f's_sub_u32 s{S_T3}, s{S_T3}, s{S_T1}')
        I(f'v_min_u32 v14, s{S_T3}, v{V_LANE}'); I(f'v_add_u32 v14, s{S_T2}, v14'); I('v_lshlrev_b32 v14, 6, v14')
        I(f'v_add_u32 v14, {WS_FH}, v14')
        I(f'v_min_u32 v8, 13, v{V_LANE}'); I('v_lshlrev_b32 v9, 6, v8')
        I(f's_mul_i32 s{S_T1}, s{S_G}, 28'); I(f's_add_u32 s{S_T1}, s{S_T1}, s{S_T0}'); I(f's_lshl_b32 s{S_T1}, s{S_T1}, 6'); I(f's_add_u32 s{S_T1}, s{S_T1}, {WS_FG}')
        I(f's_lshl_b32 s{S_T0}, s{S_T0}, 6'); I(f's_add_u32 s{S_T0}, s{S_T0}, {WS_FC-7*64}')
        I(f'v_mov_b32 v10, s{S_T1}'); I(f'v_mov_b32 v11, s{S_T0}'); I('v_cmp_gt_u32 vcc, 7, v8'); I('v_cndmask_b32 v10, v11, v10, vcc')
        I('v_add_u32 v12, v9, v10')

    def e_addr(self):
        I=self.I
        OF=V_EOF
        I(f's_lshl_b32 s{S_T0}, s{S_G}, 14'); I(f's_add_u32 s{S_T0}, s{S_T0}, {WS_E}')
        I(f's_add_u32 s{SRD_1}, s{P_WS}, s{S_T0}'); I(f's_addc_u32 s{SRD_1+1}, s{P_WS+1}, 0')
        I(f's_and_b32 s{SRD_1+1}, s{SRD_1+1}, 0xffff'); I(f's_mov_b32 s{SRD_1+2}, 16384'); I(f's_mov_b32 s{SRD_1+3}, 0x20000')
        I(f'v_lshrrev_b32 v8, 4, v{V_LANE}'); I('v_lshlrev_b32 v8, 12, v8')
        I(f'v_and_b32 v9, 15, v{V_LANE}'); I('v_lshlrev_b32 v9, 3, v9'); I('v_add_u32 v8, v8, v9')
        I(f's_sub_u32 s{S_T0}, s{S_C}, 32'); I(f's_lshl_b32 s{S_T0}, s{S_T0}, 9'); I(f's_lshl_b32 s{S_T1}, s{S_W}, 7')
        I(f's_add_u32 s{S_T0}, s{S_T0}, s{S_T1}'); I(f'v_add_u32 v8, s{S_T0}, v8')
        for i in range(8): I(f'v_add_u32 v{OF+i}, {512*i}, v8')
    def e_loads(self):
        for i in range(8):
            self.I(f'buffer_load_dwordx2 {vr(V_EL+2*i,2)}, v{V_EOF+i}, {srd(SRD_1)}, 0 offen sc1', tag='E')

    def finalize(self):
        I=self.I
        EL=V_EL
        L=self.newlabel('pollE'); Dn=self.newlabel('pollEd')
        sv=self.auto; self.auto=0
        self.wait(vm=['E'])
        I(f's_mov_b32 s{S_BOUND}, 0x40000')
        self.label(L)
        I(f'v_max3_u32 v8, v{EL}, v{EL+1}, v{EL+2}')
        for i in range(3,15,2): I(f'v_max3_u32 v8, v8, v{EL+i}, v{EL+i+1}')
        I(f'v_max_u32 v8, v8, v{EL+15}')
        I('v_cmp_eq_u32 vcc, -1, v8')
        I(f's_cbranch_vccz {Dn}')
        snap=self.snapshot()
        self.e_loads()
        I('s_waitcnt vmcnt(0)')
        I('s_sleep 4'); I(f's_sub_u32 s{S_BOUND}, s{S_BOUND}, 1'); I(f's_cbranch_scc0 {L}')
        self.label(Dn); self.restore(snap)
        self.auto=sv
        yield
        QR,QI=EL,EL+1
        for i in range(1,8):
            self.cfma(QR,QI,V_L64R,V_L64I,QR,QI,EL+2*i,EL+2*i+1,36,37)
            yield
        GR=[20,21,22,23]; GI=[24,25,26,27]
        self.allgather_q(QR,*GR); yield
        self.allgather_q(QI,*GI); yield
        for q in range(1,4):
            self.cfma(GR[q],GI[q],V_L512R,V_L512I,GR[q-1],GI[q-1],GR[q],GI[q],28,29)
            yield
        self.cfma(V_SR,V_SI,V_PR,V_PI,GR[3],GI[3],V_SR,V_SI,28,29)
        yield
        HR,HI,T0,T1=V_SR,V_SI,36,37
        OR,OI=V_RAW,V_RAW+16
        for t in range(16):
            I(f'v_fma_f32 v{T0}, v{V_LR}, v{HR}, v{OR+t}')
            I(f'v_fma_f32 v{T1}, v{V_LR}, v{HI}, v{OI+t}')
            I(f'v_fma_f32 v{T0}, -v{V_LI}, v{HI}, v{T0}')
            I(f'v_fma_f32 v{HI}, v{V_LI}, v{HR}, v{T1}')
            HR,T0=T0,HR
            yield
            I(f'v_mul_f32 v{OR+t}, v{V_K1}, v{HR}'); I(f'v_mul_f32 v{OI+t}, v{V_K2}, v{HR}')
            I(f'v_fma_f32 v{OR+t}, v{V_K2}, v{HI}, v{OR+t}'); I(f'v_fma_f32 v{OI+t}, -v{V_K1}, v{HI}, v{OI+t}')
            yield
        for t in range(8):
            I(f'v_cvt_pk_bf16_f32 v{OR+t}, v{OR+2*t}, v{OR+2*t+1}'); I(f'v_cvt_pk_bf16_f32 v{OI+t}, v{OI+2*t}, v{OI+2*t+1}')
            if t%2: yield
        I(f'v_and_b32 v8, 15, v{V_LANE}'); I(f's_lshl_b32 s{S_T0}, s{S_WL}, 4'); I(f'v_add_u32 v8, s{S_T0}, v8')
        I('v_lshrrev_b32 v9, 3, v8'); I('v_lshlrev_b32 v9, 2, v9')
        yield
        I('v_and_b32 v10, 3, v8'); I('v_add_u32 v9, v9, v10')
        I('v_bfe_u32 v10, v8, 2, 1'); I('v_lshlrev_b32 v11, 4, v10'); I('v_add_u32 v9, v9, v11')
        yield
        I('v_and_b32 v11, 7, v9'); I('v_lshlrev_b32 v10, 2, v10'); I('v_xor_b32 v11, v11, v10')
        I(f'v_lshrrev_b32 v10, 4, v{V_LANE}'); I('v_lshlrev_b32 v10, 1, v10')
        yield
        I('v_xor_b32 v10, v10, v11'); I('v_lshlrev_b32 v10, 4, v10')
        I('v_lshlrev_b32 v9, 7, v9'); I('v_add_u32 v9, v9, v10')
        yield
        I(f's_lshl_b32 s{S_T0}, s{S_WH}, 12'); I(f'v_add_u32 v9, s{S_T0}, v9')
        I('v_xor_b32 v10, 16, v9')
        I('s_barrier')
        I(f'ds_write_b128 v9, {vr(OR,4)} offset:{LDS_X}', tag='hw'); I(f'ds_write_b128 v10, {vr(OR+4,4)} offset:{LDS_X}', tag='hw')
        I(f'ds_write_b128 v9, {vr(OI,4)} offset:{LDS_X+8192}', tag='hw'); I(f'ds_write_b128 v10, {vr(OI+4,4)} offset:{LDS_X+8192}', tag='hw')
        yield
        I(f'v_lshrrev_b32 v8, 2, v{V_LANE}'); I('v_and_b32 v9, 7, v8'); I(f'v_bfe_u32 v10, v{V_LANE}, 1, 1')
        I('v_xor_b32 v9, v9, v10'); I('v_lshlrev_b32 v9, 4, v9')
        yield
        I('v_lshlrev_b32 v8, 7, v8'); I('v_add_u32 v8, v8, v9')
        I(f'v_and_b32 v9, 1, v{V_LANE}'); I('v_lshlrev_b32 v9, 3, v9'); I('v_add_u32 v8, v8, v9')
        I(f's_lshl_b32 s{S_T0}, s{S_W}, 12'); I(f'v_add_u32 v8, s{S_T0}, v8')
        yield
        self.wait(lg=['hw']); I('s_barrier')
        FR=16
        for nb in range(4):
            I(f'v_xor_b32 v9, {nb<<5}, v8'); I('v_xor_b32 v10, 64, v9')
            I(f'ds_read_b64_tr_b16 {vr(FR+4*nb,2)}, v9 offset:{LDS_X}', tag=('hp',nb))
            I(f'ds_read_b64_tr_b16 {vr(FR+4*nb+2,2)}, v10 offset:{LDS_X+2048}', tag=('hp',nb))
        I(f's_mul_i32 s{S_T0}, s{S_C}, {28*4096}'); I(f's_lshl_b32 s{S_T1}, s{S_G}, 14'); I(f's_add_u32 s{S_T0}, s{S_T0}, s{S_T1}')
        I(f's_lshl_b32 s{S_T1}, s{S_W}, 12'); I(f's_add_u32 s{S_T0}, s{S_T0}, s{S_T1}'); I(f's_add_u32 s94, s{S_T0}, {WS_HP}')
        yield
        if self.opt.gearly: I(f'global_load_dword v53, v12, {sp(P_WS)} sc1', tag='fg')
        for nb in range(4):
            self.wait(lg=[('hp',nb)])
            I(f'buffer_store_dwordx4 {vr(FR+4*nb,4)}, v{V_L16}, {srd(SRD_WS)}, s94 offen offset:{nb*1024} sc1', tag='stH')
            yield

    def flag_set(self, sa, mul, sb, base):
        I=self.I
        L=self.newlabel('flag')
        I(f's_cmp_lg_u32 s{S_W}, 0'); I(f's_cbranch_scc1 {L}')
        snap=self.snapshot()
        I(f's_mul_i32 s{S_T0}, s{sa}, {mul}'); I(f's_add_u32 s{S_T0}, s{S_T0}, s{sb}'); I(f's_lshl_b32 s{S_T0}, s{S_T0}, 6')
        I(f's_add_u32 s{S_T0}, s{S_T0}, {base}')
        I('v_mov_b32 v8, 0'); I('v_mov_b32 v9, 1')
        self.exec_set(1,0)
        I(f'buffer_store_dword v9, v8, {srd(SRD_WS)}, s{S_T0} offen sc1')
        self.exec_full()
        self.label(L); self.merge(snap)

    def g_bias_load(self):
        I=self.I
        I(f'v_lshrrev_b32 v8, 4, v{V_LANE}'); I('v_lshlrev_b32 v8, 3, v8')
        I(f's_lshl_b32 s{S_T0}, s{S_FT}, 7'); I(f's_lshl_b32 s{S_T1}, s{S_WH}, 6'); I(f's_add_u32 s{S_T0}, s{S_T0}, s{S_T1}')
        I(f'v_add_u32 v8, s{S_T0}, v8')
        I(f'global_load_dwordx2 v[32:33], v8, {sp(P_B1)}', tag='b1')
        I(f'global_load_dwordx2 v[34:35], v8, {sp(P_B1)} offset:32', tag='b1')

    def g_epilogue(self):
        I=self.I
        self.auto=self.opt.gepip
        self.reduce(V_RING)
        self.wait(vm=['b1'])
        for x in range(2):
            for h in range(2):
                I(f'v_lshlrev_b32 v{16+4*x+2*h}, 16, v{32+2*x+h}'); I(f'v_and_b32 v{17+4*x+2*h}, s{S_MASK}, v{32+2*x+h}')
        C1=-2.0*0.7978845608028654*1.4426950408889634
        C3=C1*0.044715
        import struct
        f2h=lambda f:'0x%08x'%struct.unpack('<I',struct.pack('<f',f))[0]
        I(f's_mov_b32 s{S_T2}, {f2h(C1)}'); I(f's_mov_b32 s{S_T3}, {f2h(C3)}')
        I(f'v_mov_b32 v31, s{S_T2}')
        U=[]
        for x in range(2):
            for y in range(2):
                for r in range(4):
                    U.append((V_ACC+16*x+4*y+r, 16+4*x+r))
        TT=V_RING
        for n,(u,b) in enumerate(U): I(f'v_add_f32 v{u}, v{u}, v{b}')
        for n,(u,b) in enumerate(U): I(f'v_mul_f32 v{TT+n}, v{u}, v{u}')
        for n,(u,b) in enumerate(U): I(f'v_fma_f32 v{TT+n}, v{TT+n}, s{S_T3}, v31')
        for n,(u,b) in enumerate(U): I(f'v_mul_f32 v{TT+n}, v{TT+n}, v{u}')
        for n,(u,b) in enumerate(U): I(f'v_exp_f32 v{TT+n}, v{TT+n}')
        for n,(u,b) in enumerate(U): I(f'v_add_f32 v{TT+n}, 1.0, v{TT+n}')
        for n,(u,b) in enumerate(U): I(f'v_rcp_f32 v{TT+n}, v{TT+n}')
        for n,(u,b) in enumerate(U): I(f'v_mul_f32 v{u}, v{u}, v{TT+n}')
        F=V_RING+16
        for y in range(2):
            for x in range(2):
                a=V_ACC+16*x+4*y
                I(f'v_cvt_pk_bf16_f32 v{F+4*y+2*x}, v{a}, v{a+1}'); I(f'v_cvt_pk_bf16_f32 v{F+4*y+2*x+1}, v{a+2}, v{a+3}')
        I(f's_mul_i32 s{S_T0}, s{S_DT1}, {56*4096}'); I(f's_lshl_b32 s{S_T1}, s{S_FT}, 13'); I(f's_add_u32 s{S_T0}, s{S_T0}, s{S_T1}')
        I(f's_lshl_b32 s{S_T1}, s{S_WH}, 12'); I(f's_add_u32 s{S_T0}, s{S_T0}, s{S_T1}')
        I(f's_lshl_b32 s{S_T1}, s{S_WL}, 11'); I(f's_add_u32 s{S_T0}, s{S_T0}, s{S_T1}'); I(f's_add_u32 s{S_T0}, s{S_T0}, {WS_GT}')
        for y in range(2):
            I(f'buffer_store_dwordx4 {vr(F+4*y,4)}, v{V_L16}, {srd(SRD_WS)}, s{S_T0} offen offset:{y*1024} sc1', tag='stG')
        self.auto=0
        self.e_loads()
        self.p2_flag_addr(); self.p2_bases()
        I(f'global_load_dword v54, v12, {sp(P_WS)} sc1', tag='fc')
        for n in range(self.opt.gwait): self.tick()
        self.wait(vm=['stG']); I('s_barrier')
        self.flag_set(S_DT1,28,S_FT,WS_FG)

    def w2_setup(self):
        I=self.I
        self.make_srd(SRD_W, P_W2, 1792*4096)
        self.ring_setup(4096, S_WL)
        I(f's_mul_i32 s{S_WBEG}, s{S_W}, {448*4096}'); I(f's_lshl_b32 s{S_T0}, s{S_C}, 7'); I(f's_add_u32 s{S_WBEG}, s{S_WBEG}, s{S_T0}')
        I(f's_mov_b32 s{S_WO}, s{S_WBEG}')
        self.ring_init('w2',14,4096,range(6))

    def rot_g(self, dst):
        I=self.I
        I(f's_mul_i32 s{dst}, s86, 37'); I(f's_lshr_b32 s{dst}, s{dst}, 8')
        I(f's_mul_i32 s{dst}, s{dst}, {7*self.opt.rot2}'); I(f's_lshr_b32 s{dst}, s{dst}, 1')
    def cpack(self):
        I=self.I
        L=self.newlabel('nocp')
        I(f's_cmp_ge_u32 s{S_E}, 28'); I(f's_cbranch_scc1 {L}')
        I(f's_mov_b32 s{SRD_1+2}, {448*896}'); I(f's_mov_b32 s{SRD_1+3}, 0x20000')
        I(f's_bitcmp1_b32 s{S_E}, 1')
        I(f's_cselect_b32 s{SRD_1}, s{P_CIM}, s{P_CRE}'); I(f's_cselect_b32 s{SRD_1+1}, s{P_CIM+1}, s{P_CRE+1}')
        I(f'v_and_b32 v9, 15, v{V_LANE}'); I('v_mul_u32_u24 v9, 896, v9'); I(f'v_lshrrev_b32 v10, 4, v{V_LANE}')
        I('v_lshlrev_b32 v10, 4, v10'); I('v_add_u32 v10, v9, v10')
        I(f's_lshr_b32 s{S_T0}, s{S_E}, 2'); I(f's_lshl_b32 s{S_T0}, s{S_T0}, 7')
        I(f's_and_b32 s{S_T1}, s{S_E}, 1'); I(f's_lshl_b32 s{S_T1}, s{S_T1}, 6'); I(f's_add_u32 s{S_T0}, s{S_T0}, s{S_T1}')
        I(f's_mul_i32 s{S_T1}, s{S_W}, {16*896}'); I(f's_add_u32 s{S_T0}, s{S_T0}, s{S_T1}')
        for dt in range(7):
            I(f'buffer_load_dwordx4 {vr(56+4*dt,4)}, v10, {srd(SRD_1)}, s{S_T0} offen', tag=('cp',dt))
            if dt<6: I(f's_add_u32 s{S_T0}, s{S_T0}, {64*896}')
        I(f's_lshl_b32 s{S_T0}, s{S_E}, 12'); I(f's_lshl_b32 s{S_T1}, s{S_W}, 10'); I(f's_add_u32 s{S_T0}, s{S_T0}, s{S_T1}')
        I(f's_add_u32 s{S_T0}, s{S_T0}, {WS_CP}')
        for dt in range(7):
            self.wait(vm=[('cp',dt)])
            I(f'buffer_store_dwordx4 {vr(56+4*dt,4)}, v{V_L16}, {srd(SRD_WS)}, s{S_T0} offen sc1', tag='stC')
            if dt<6: I(f's_add_u32 s{S_T0}, s{S_T0}, {28*4096}')
        self.label(L)
    def cpack_flag(self):
        I=self.I
        L=self.newlabel('nocf')
        Lp=self.newlabel('w0poll')
        self.wait(vm='all')
        I(f's_cmp_lg_u32 s{S_W}, 0'); I(f's_cbranch_scc1 {Lp}')
        I(f'v_and_b32 v8, 3, v{V_LANE}'); I('v_lshlrev_b32 v8, 6, v8')
        self.poll('e0e', 8, P_DBG, 64)
        self.label(Lp)
        I('s_barrier')
        I(f's_cmp_ge_u32 s{S_E}, 28'); I(f's_cbranch_scc1 {L}')
        I(f's_mov_b32 s{S_T1}, 0')
        self.flag_set(S_T1,1,S_E,WS_FC)
        self.label(L)

    def p2_resid_loads(self):
        I=self.I
        self.make_srd(SRD_OUT, P_OUT, 2048*1792)
        I(f'v_and_b32 v7, 15, v{V_LANE}'); I(f'v_lshrrev_b32 v8, 4, v{V_LANE}')
        I('v_mul_u32_u24 v9, 896, v7'); I('v_lshlrev_b32 v10, 3, v8'); I('v_add_u32 v9, v9, v10')
        I(f's_lshl_b32 s{S_T0}, s{S_C}, 6'); I(f's_lshl_b32 s{S_T1}, s{S_WL}, 5'); I(f's_add_u32 s{S_T0}, s{S_T0}, s{S_T1}')
        I(f's_lshl_b32 s{S_T1}, s{S_G}, 6'); I(f's_lshl_b32 s{S_T2}, s{S_WH}, 5'); I(f's_add_u32 s{S_T1}, s{S_T1}, s{S_T2}')
        for y in range(2):
            for x in range(2):
                I(f's_add_u32 s{S_T2}, s{S_T0}, {16*y}'); I(f's_mul_i32 s{S_T2}, s{S_T2}, 896')
                I(f's_add_u32 s{S_T3}, s{S_T1}, {16*x}'); I(f's_lshl_b32 s{S_T3}, s{S_T3}, 1'); I(f's_add_u32 s{S_T2}, s{S_T2}, s{S_T3}')
                I(f'buffer_load_dwordx2 {vr(16+4*y+2*x,2)}, v9, {srd(SRD_X)}, s{S_T2} offen', tag='res')
        I('v_lshlrev_b32 v9, 2, v7')
        for y in range(2):
            I(f's_add_u32 s{S_T2}, s{S_T0}, {16*y}'); I(f's_lshl_b32 s{S_T2}, s{S_T2}, 2'); I(f's_add_u32 s{S_T2}, s{S_T2}, {WS_STAT}')
            I(f'buffer_load_dword v{24+2*y}, v9, {srd(SRD_WS)}, s{S_T2} offen sc1', tag='res')
            I(f's_add_u32 s{S_T2}, s{S_T2}, 8192')
            I(f'buffer_load_dword v{25+2*y}, v9, {srd(SRD_WS)}, s{S_T2} offen sc1', tag='res')
        I(f's_lshl_b32 s{S_T2}, s{S_T1}, 1'); I(f'v_add_u32 v9, s{S_T2}, v10')
        I(f'global_load_dwordx2 v[28:29], v9, {sp(P_DSK)}', tag='res')
        I(f'global_load_dwordx2 v[30:31], v9, {sp(P_DSK)} offset:32', tag='res')
        I(f'v_add_u32 v9, s{S_T0}, v7'); I('v_lshlrev_b32 v9, 1, v9')
        I(f'global_load_ushort v10, v9, {sp(P_B2)}', tag='res')
        I(f'global_load_ushort v38, v9, {sp(P_B2)} offset:32', tag='res')
    def resid_compute(self):
        I=self.I
        self.wait(vm=['res'])
        I('v_lshlrev_b32 v10, 16, v10'); I('v_lshlrev_b32 v38, 16, v38')
        yield
        for x in range(2):
            for h in range(2):
                I(f'v_lshlrev_b32 v{32+2*h}, 16, v{28+2*x+h}'); I(f'v_and_b32 v{33+2*h}, s{S_MASK}, v{28+2*x+h}')
            yield
            for y in range(2):
                xs=16+4*y+2*x; st=24+2*y; b2=10 if y==0 else 38
                for h in range(2):
                    r=240+8*y+4*x+2*h
                    I(f'v_lshlrev_b32 v{r}, 16, v{xs+h}'); I(f'v_and_b32 v{r+1}, s{S_MASK}, v{xs+h}')
                    I(f'v_pk_add_f32 v[36:37], v[{r}:{r+1}], v[{st}:{st+1}] op_sel_hi:[1,0] neg_lo:[0,1] neg_hi:[0,1]')
                    yield
                    I(f'v_pk_mul_f32 v[36:37], v[36:37], v[{st}:{st+1}] op_sel:[0,1] op_sel_hi:[1,1]')
                    I(f'v_pk_add_f32 v[{r}:{r+1}], v[{r}:{r+1}], v[{b2}:{b2+1}] op_sel_hi:[1,0]')
                    I(f'v_pk_fma_f32 v[{r}:{r+1}], v[36:37], v[{32+2*h}:{33+2*h}], v[{r}:{r+1}]')
                    yield

    CREG=[['v16','v20','v24','v28'],['v32','v36','v40','v44'],['v48','v52','v216','v220'],['v224','v228','v232','v236'],
          ['a0','a4','a8','a12'],['a224','a228','a232','a236'],['a240','a244','a248','a252']]
    def creg(self,i,x):
        r=self.CREG[i][x]; n=int(r[1:]); return f'{r[0]}[{n}:{n+3}]'
    def p2_bases(self):
        I=self.I
        I(f's_mul_i32 s90, s{S_G}, {56*4096}'); I(f's_mul_i32 s{S_T0}, s{S_W}, {14*4096}'); I(f's_add_u32 s90, s90, s{S_T0}')
        I(f's_add_u32 s90, s90, {WS_GT}')
        I(f's_lshl_b32 s{S_T1}, s{S_WH}, 11'); I(f's_xor_b32 s{S_T2}, s{S_T1}, 2048')
        I(f's_add_u32 s92, s90, s{S_T2}'); I(f's_add_u32 s90, s90, s{S_T1}')
        I(f's_mul_i32 s22, s{S_G}, {28*4096}'); I(f's_mul_i32 s{S_T0}, s{S_W}, {7*4096}'); I(f's_add_u32 s22, s22, s{S_T0}')
        I(f's_add_u32 s22, s22, {WS_CP}')
        I(f's_add_u32 s23, s22, s{S_T2}'); I(f's_add_u32 s22, s22, s{S_T1}')
        I(f's_mul_i32 s38, s{S_C}, {28*4096}'); I(f's_add_u32 s38, s38, s{S_T0}'); I(f's_add_u32 s38, s38, {WS_HP}')
        I(f's_lshl_b32 s{S_T1}, s{S_WL}, 11'); I(f's_xor_b32 s{S_T2}, s{S_T1}, 2048')
        I(f's_add_u32 s39, s38, s{S_T2}'); I(f's_add_u32 s38, s38, s{S_T1}')
    def q_c(self, steps):
        I=self.I
        def one(i,x):
            def f():
                b=22 if x<2 else 23
                I(f's_add_u32 s91, s{b}, {i*4096}')
                I(f'buffer_load_dwordx4 {self.creg(i,x)}, v{V_L16}, {srd(SRD_WS)}, s91 offen offset:{(x&1)*1024} sc1', tag=('c',i,x))
            return f
        for i in steps:
            for x in range(4): self.q.append(one(i,x))
    def cflag_check(self):
        I=self.I
        L=self.newlabel('cf'); D=self.newlabel('cfd')
        self.wait(vm=['fc'])
        self.exec_set('0x3f80','0')
        I('v_cmp_gt_u32 vcc, 1, v54'); I(f's_cbranch_vccz {D}')
        snap=self.snapshot()
        I(f's_mov_b32 s{S_BOUND}, 0x40000')
        self.label(L)
        I(f'global_load_dword v54, v12, {sp(P_WS)} sc1'); I('s_waitcnt vmcnt(0)')
        I('v_cmp_gt_u32 vcc, 1, v54'); I(f's_cbranch_vccz {D}')
        I('s_sleep 4'); I(f's_sub_u32 s{S_BOUND}, s{S_BOUND}, 1'); I(f's_cbranch_scc0 {L}')
        self.label(D); self.restore(snap)
        self.exec_full()
    def flag_wait(self, vaddr, vdst, tag):
        I=self.I
        L=self.newlabel('fw'); D=self.newlabel('fwd')
        self.wait(vm=[tag])
        I(f'v_cmp_gt_u32 vcc, 1, v{vdst}'); I(f's_cbranch_vccz {D}')
        snap=self.snapshot()
        I(f's_mov_b32 s{S_BOUND}, 0x40000')
        self.label(L)
        I(f'global_load_dword v{vdst}, v{vaddr}, {sp(P_WS)} sc1'); I('s_waitcnt vmcnt(0)')
        I(f'v_cmp_gt_u32 vcc, 1, v{vdst}'); I(f's_cbranch_vccz {D}')
        I('s_sleep 4'); I(f's_sub_u32 s{S_BOUND}, s{S_BOUND}, 1'); I(f's_cbranch_scc0 {L}')
        self.label(D); self.restore(snap)
    def p2_main(self, pre_only=False):
        I=self.I
        NS=6
        g0=self.opt.sfirst
        steps=[('g',k) for k in range(g0)]
        gi,si=g0,0
        while gi<14 or si<7:
            if si<7: steps.append(('s',si)); si+=1
            if gi<14: steps.append(('g',gi)); gi+=1
        groups=[('g',i) if k=='g' else ('h',i) for k,i in steps]
        gidx={g:n for n,g in enumerate(groups)}
        reg=lambda g: V_RING+16*(gidx[g]%NS)
        pend=[(g,x) for g in groups for x in range(4)]
        done=set(); state={}
        if not pre_only and self.opt.gearly: pend,done,state=self.p2state
        def can(g,x):
            n=gidx[g]-NS
            return n<0 or (groups[n],x) in done
        def issue(nmax):
            n=0
            while n<nmax and pend and can(*pend[0]):
                g,x=pend[0]
                if g[0]=='h' and not state.get('hflag'):
                    self.flag_wait(14,11,'fh'); state['hflag']=True
                pend.pop(0)
                b0,b1,nst={'g':(90,92,14),'h':(38,39,7)}[g[0]]
                sx=b0 if x<2 else b1
                I(f'buffer_load_dwordx4 {vr(reg(g)+4*x,4)}, v{V_L16}, {srd(SRD_WS)}, s{sx} offen offset:{(x&1)*1024} sc1', tag=(g,x))
                if (x&1) and g[1]<nst-1: I(f's_add_u32 s{sx}, s{sx}, 4096')
                n+=1
        if pre_only:
            issue(4*NS); self.p2state=(pend,done,state); return
        if not self.opt.gearly: issue(4*NS)
        first=True
        self.q_c([4])
        for pos,(kind,i) in enumerate(steps):
            if kind=='g' and i==3: I(f'global_load_dword v11, v14, {sp(P_WS)} sc1', tag='fh')
            if kind=='s':
                H=('h',i)
                for x in range(4):
                    self.wait(vm=[('c',i,x)]+([(H,y) for y in range(4)] if x==0 else []))
                    if x==0: self.stamp(f'p2.s{i}',fine=2)
                    for y in range(4):
                        d=V_ACC+16*x+4*y
                        I(f'v_mfma_f32_16x16x32_bf16 {vr(d,4)}, {self.creg(i,x)}, {vr(reg(H)+4*y,4)}, {vr(d,4)}')
                    if x<3: issue(1)
                for y in range(4): done.add((H,y))
                issue(2)
            else:
                A=('g',i)
                for x in range(4):
                    self.wait(vm=[(A,x)])
                    if x==0: self.stamp(f'p2.g{i}',fine=2)
                    for y in range(4):
                        d=V_ACC+16*x+4*y
                        cin='0' if first else vr(d,4)
                        I(f'v_mfma_f32_16x16x32_bf16 {vr(d,4)}, {vr(reg(A)+4*x,4)}, {ar(16*i+4*y,4)}, {cin}')
                    done.add((A,x))
                    issue(1)
                    if i==1: self.q.pop(0)()
            first=False
        assert not pend

    def p2_epilogue(self):
        I=self.I
        self.reduce(V_RING)
        for y in range(2):
            for x in range(2):
                a=V_ACC+16*x+4*y; r=240+8*y+4*x
                for h in range(2):
                    I(f'v_pk_add_f32 v[{a+2*h}:{a+2*h+1}], v[{a+2*h}:{a+2*h+1}], v[{r+2*h}:{r+2*h+1}]')
        if self.opt.delta:
            import struct
            hx='0x%08x'%struct.unpack('<I',struct.pack('<f',self.opt.delta))[0]
            for y in range(2):
                for x in range(2):
                    for r in range(4):
                        a=V_ACC+16*x+4*y+r
                        I(f'v_add_f32 v{a}, {hx}, v{a}')
        I(f'v_and_b32 v7, 15, v{V_LANE}'); I(f'v_lshrrev_b32 v8, 4, v{V_LANE}')
        I('v_mul_u32_u24 v9, 1792, v7'); I('v_lshlrev_b32 v10, 4, v8'); I('v_add_u32 v9, v9, v10')
        I(f's_lshl_b32 s{S_T0}, s{S_C}, 6'); I(f's_lshl_b32 s{S_T1}, s{S_WL}, 5'); I(f's_add_u32 s{S_T0}, s{S_T0}, s{S_T1}')
        I(f's_lshl_b32 s{S_T1}, s{S_G}, 6'); I(f's_lshl_b32 s{S_T2}, s{S_WH}, 5'); I(f's_add_u32 s{S_T1}, s{S_T1}, s{S_T2}')
        for y in range(2):
            for x in range(2):
                I(f's_add_u32 s{S_T2}, s{S_T0}, {16*y}'); I(f's_mul_i32 s{S_T2}, s{S_T2}, 1792')
                I(f's_add_u32 s{S_T3}, s{S_T1}, {16*x}'); I(f's_lshl_b32 s{S_T3}, s{S_T3}, 2'); I(f's_add_u32 s{S_T2}, s{S_T2}, s{S_T3}')
                a=V_ACC+16*x+4*y
                I(f'buffer_store_dwordx4 {vr(a,4)}, v9, {srd(SRD_OUT)}, s{S_T2} offen {self.opt.outmod}')

    def write_stamps(self):
        if not self.opt.stamps: return
        I=self.I
        I('s_lshl_b32 s3, s2, 2'); I(f's_add_u32 s3, s3, s{S_W}'); I('s_lshl_b32 s3, s3, 8'); I(f's_add_u32 s3, s3, {WS_DBG}')
        I(f'v_lshlrev_b32 v9, 2, v{V_LANE}')
        I(f'buffer_store_dword v{self.vst}, v9, {srd(SRD_WS)}, s3 offen')
        if getattr(self.opt,'dbgwg',-1)>=0 and self.final_stamps:
            L=self.newlabel('dbgout')
            I(f's_cmp_lg_u32 s2, {self.opt.dbgwg}'); I(f's_cbranch_scc1 {L}')
            I(f's_cmp_lg_u32 s{S_W}, 0'); I(f's_cbranch_scc1 {L}')
            I(f'v_readlane_b32 s3, v{self.vst}, 0'); I('s_nop 4')
            I(f'v_subrev_u32 v8, s3, v{self.vst}')
            I(f'v_add_u32 v9, {self.opt.dbgoff}, v{V_LANE}'); I('v_lshlrev_b32 v9, 2, v9')
            I('ds_bpermute_b32 v8, v9, v8'); I('s_waitcnt lgkmcnt(0)')
            I(f'v_lshlrev_b32 v9, 2, v{V_LANE}')
            self.exec_set('0xfffe','0')
            I(f'global_store_dword v9, v8, {sp(P_DBG)}')
            self.exec_full()
            self.label(L)
    def build(self):
        I=self.I; o=self.opt
        if o.stamps: I('v_mov_b32 v55, 0')
        self.prologue()
        self.touches_pre()
        wt=self.opt.w1touch
        if wt=='A' or self.opt.alsoA: self.touch_w1()
        if self.opt.t3start:
            Lt=self.newlabel('t3s')
            I(f's_cmp_lg_u32 s{S_W}, 3'); I(f's_cbranch_scc1 {Lt}')
            snap=self.snapshot()
            self.touch_w1_wg()
            self.label(Lt); self.merge(snap)
        Lcont=self.newlabel('cont')
        I('s_cmp_eq_u32 s74, 1'); I(f's_cbranch_scc1 {Lcont}')
        snap=self.snapshot()
        self.ln8(clears=False)
        self.vm['st0']=0
        self.arrive0()
        if wt=='F': self.touch_w1()
        if wt in ('S','T','U'): self.touch_w1_split(True)
        self.stamp('pf1')
        if self.opt.eorder==3:
            self.touch_pf(2)
            self.wait(vm='all')
        elif self.opt.eorder==0:
            self.cpack()
            self.stamp('cp')
            self.touch_pf(2)
            self.cpack_flag()
        elif self.opt.eorder==1:
            self.touch_pf(2)
            self.stamp('cp')
            self.cpack()
            self.cpack_flag()
        else:
            self.cpack()
            self.cpack_flag()
            self.stamp('cp')
            self.touch_pf(2)
            self.wait(vm='all')
        self.stamp('pf2')
        self.write_stamps()
        I('s_endpgm')
        self.label(Lcont); self.restore(snap)
        if wt=='T': self.touch_w1_split(False)
        self.dma_setup()
        if wt=='E': self.touch_w1(setup_only=True)
        self.w1_setup()
        if self.opt.bfirst: self.q_b(); self.q_x([0,1,2])
        else: self.q_x([0,1,2]); self.q_b()
        for n in range(self.opt.pre): self.tick()
        self.stamp('issued')
        self.auto=self.opt.period if self.opt.ln8tick else 0
        self.ln8()
        self.auto=0
        if wt=='U': self.touch_w1_split(False)
        self.stamp('ln8 stored')
        if self.opt.bfirst: self.q_x([3])
        else:
            rest=self.q; self.q=[]; self.q_x([3]); self.q+=rest
        self.auto=self.opt.period
        self.x_addr()
        self.lam_consts()
        self.auto=0
        self.stamp('lam')
        self.arrive0()
        self.stamp('arrived')
        self.drain_q()
        if wt=='F': self.touch_w1()
        if wt=='S': self.touch_w1_split(False)
        self.stamp('drained')
        self.wait(vm=['x64','bdma']); I('s_barrier')
        self.do_bread()
        self.auto=self.opt.statp
        self.row_stats()
        self.auto=0
        self.wait(vm=['b13'])
        self.stamp('ln64')
        I(f'v_and_b32 v35, 3, v{V_LANE}'); I('v_lshlrev_b32 v35, 6, v35')
        I(f'global_load_dword v34, v35, {sp(P_DBG)} sc1', tag='e0c')
        self.auto=self.opt.bup
        self.bu_gemm()
        self.stamp('bu',fine=True)
        self.auto=self.opt.scanp
        self.ln_fix()
        self.scan1()
        self.e_addr()
        self.auto=0
        self.stamp('scan1')
        self.wait_e0()
        self.stamp('e0')
        Lnog=self.newlabel('nog1'); Lj=self.newlabel('g1join')
        I(f's_cmp_eq_u32 s{S_HASG1}, 0'); I(f's_cbranch_scc1 {Lnog}')
        snap=self.snapshot()
        R1=dict(self.R); R1['free']=list(self.R['free']); R1['slot']=dict(self.R['slot'])
        self.g_bias_load()
        self.gemm1()
        self.stamp('gemm1')
        self.g_epilogue()
        self.stamp('gepi')
        I(f's_branch {Lj}')
        snapA=self.snapshot()
        RA={k:self.R[k] for k in ('iss','rd','rel','piece')}; RA['free']=list(self.R['free']); RA['slot']=dict(self.R['slot'])
        self.label(Lnog); self.restore(snap); self.R=R1
        if self.opt.eorder==3:
            I(f's_lshr_b32 s{S_E}, s95, 1'); I(f's_mul_i32 s{S_E}, s{S_E}, 7'); I(f's_add_u32 s{S_E}, s{S_E}, s86'); I(f's_sub_u32 s{S_E}, s{S_E}, 21')
            self.cpack()
            self.wait(vm=['stC']); I('s_barrier')
            I(f's_mov_b32 s{S_T1}, 0')
            self.flag_set(S_T1,1,S_E,WS_FC)
            self.e_addr()
        self.ring_finish(); self.wait(lg='all')
        self.w2_setup()
        self.replay_ring(RA)
        self.e_loads()
        self.p2_flag_addr(); self.p2_bases()
        I(f'global_load_dword v54, v12, {sp(P_WS)} sc1', tag='fc')
        self.label(Lj); self.merge(snapA)
        self.cflag_check()
        self.q_c([5,6])
        self.auto=self.opt.finp
        for _ in self.finalize(): pass
        self.auto=0
        self.stamp('final')
        if o.stamps: I('v_mov_b32 v15, v55'); self.vst=15
        self.drain_q()
        if self.opt.gearly:
            self.flag_wait(12,53,'fg')
            self.stamp('flagG')
            self.p2_main(pre_only=True)
        self.p2_resid_loads()
        for n in range(self.opt.rwait):
            if self.R is not None and not self.ring_tick(): self.ring_finish()
        self.auto=self.opt.finp
        for _ in self.resid_compute(): pass
        self.auto=0
        self.wait(vm=['stH']); I('s_barrier')
        self.flag_set(S_C,7,S_G,WS_FH)
        self.q_c([0,1,2,3])
        while self.q or self.R is not None:
            if self.q:
                self.tick()
                if len(self.q)==self.opt.fglead and not self.opt.gearly: I(f'global_load_dword v11, v12, {sp(P_WS)} sc1', tag='fg')
            if self.R is not None:
                if not self.ring_tick(): self.ring_finish()
        self.wait(lg='all')
        self.stamp('w2 in regs')
        if not self.opt.gearly:
            self.flag_wait(12,11,'fg')
            self.stamp('flagG')
        self.p2_main()
        self.stamp('p2')
        self.p2_epilogue()
        self.stamp('end'); self.cstamp('c1')
        self.final_stamps=True
        self.write_stamps()
        self.label('L_exit')
        I('s_endpgm')
        self.label('L_code_end')

def header(lds):
    return f"""; Fused S5 SSM + MLP-Mixer token MLP, one persistent launch (256 workgroups, one per CU).
; @launch grid=(256,1,1) block=(256,1,1) lds={lds}
.amdgcn_target "amdgcn-amd-amdhsa--gfx950"
.text
.globl {KN}
.p2align 8
.type {KN},@function
{KN}:
"""
def footer():
    return f"""
.section .rodata,"a"
.p2align 6
.amdhsa_kernel {KN}
  .amdhsa_next_free_vgpr 512
  .amdhsa_next_free_sgpr 102
  .amdhsa_accum_offset 256
  .amdhsa_group_segment_fixed_size 0
  .amdhsa_kernarg_size 136
  .amdhsa_user_sgpr_count 2
  .amdhsa_user_sgpr_kernarg_segment_ptr 1
  .amdhsa_system_sgpr_workgroup_id_x 1
  .amdhsa_float_denorm_mode_32 3
.end_amdhsa_kernel
"""
if __name__=='__main__':
    ap=argparse.ArgumentParser()
    ap.add_argument('-o',default='k.s'); ap.add_argument('--stamps',action='store_true'); ap.add_argument('--stop',default=''); ap.add_argument('--fine',type=int,default=0); ap.add_argument('--period',type=int,default=48); ap.add_argument('--bupj',type=int,default=0); ap.add_argument('--scanp',type=int,default=64); ap.add_argument('--pfearly',type=int,default=1); ap.add_argument('--eorder',type=int,default=1); ap.add_argument('--statp',type=int,default=0); ap.add_argument('--gearly',type=int,default=1); ap.add_argument('--delta',type=float,default=0.0); ap.add_argument('--bup',type=int,default=0); ap.add_argument('--statj',type=int,default=9); ap.add_argument('--outmod',default=''); ap.add_argument('--dbgwg',type=int,default=-1); ap.add_argument('--dbgoff',type=int,default=0); ap.add_argument('--arrlead',type=int,default=10); ap.add_argument('--t3start',type=int,default=0); ap.add_argument('--notouch3',type=int,default=0); ap.add_argument('--own3',type=int,default=0); ap.add_argument('--alsoA',type=int,default=0); ap.add_argument('--now2',type=int,default=0); ap.add_argument('--gepip',type=int,default=0); ap.add_argument('--finp',type=int,default=36); ap.add_argument('--sfirst',type=int,default=10); ap.add_argument('--rwait',type=int,default=8); ap.add_argument('--fglead',type=int,default=6); ap.add_argument('--ln64p',type=int,default=48); ap.add_argument('--bfirst',type=int,default=0); ap.add_argument('--w2late',type=int,default=1); ap.add_argument('--rot1',type=int,default=4); ap.add_argument('--rot2',type=int,default=1); ap.add_argument('--rot3',type=int,default=1); ap.add_argument('--ln8tick',type=int,default=0); ap.add_argument('--bdelay',type=int,default=2); ap.add_argument('--w1touch',default='A'); ap.add_argument('--fin0',type=int,default=4); ap.add_argument('--finrate',type=int,default=2); ap.add_argument('--p2rate',type=int,default=3); ap.add_argument('--pre',type=int,default=1); ap.add_argument('--pre1',type=int,default=8); ap.add_argument('--gwait',type=int,default=6); ap.add_argument('--ht_touch',type=int,default=0); ap.add_argument('--g_touch',type=int,default=0)
    o=ap.parse_args()
    k=K(o); k.build()
    t,n=k.text()
    open(o.o,'w').write(header(LDS_TOTAL)+t+footer())
    print('wrote',o.o,'lines',t.count('\n'),'nop states inserted',n)
    if o.stamps: open(o.o+'.names','w').write(','.join(k.stampnames)); print(k.stampnames)
```

```python
import sys, os, argparse
from asmgen import Gen

KN = "parallel_sum__ssm_conv_s5__mixer_token_mlp__prompt_kernel"

WS_HT    = 0x000000
WS_STAT  = 0x1C0000
WS_E     = 0x1C4000
WS_FH    = 0x1E0000
WS_FG    = 0x1E4000
WS_FC    = 0x1E8000
WS_CP    = 0x780000
WS_GT    = 0x200000
WS_HP    = 0x400000
WS_DBG   = 0x900000

LDS_X  = 0
LDS_Y  = 57344
YW     = 26624
SLOT_OFF = [0, 4096, 8192, 12288, 16384, 20480]
LDS_LN8 = LDS_X + 57344 - 7680
LDS_TOTAL = LDS_Y + 4*YW

P_X, P_LRE, P_LIM, P_BRE, P_BIM, P_CRE, P_CIM, P_LDT = 4,6,8,10,12,14,16,18
P_DSK = 20
P_W1, P_B1, P_W2, P_B2 = 24,26,28,30
P_OUT, P_DBG, P_WS = 32,34,36
SRD_X, SRD_WS, SRD_1, SRD_2, SRD_W, SRD_OUT = 40,44,48,52,56,60
S_W, S_WH, S_WL, S_C, S_G, S_DT1, S_FT, S_HASG1 = 64,65,66,67,68,69,70,71
S_MASK, S_ONES = 72, 73
S_A, S_B, S_WO, S_T0, S_T1, S_T2, S_T3, S_BOUND = 76,77,78,79,80,81,82,83
S_YB = 84
S_WBEG, S_WEND = 96, 97
S_KO, S_KEND = 100, 101
S_FI = 3
S_E = 85
def sp(n): return f's[{n}:{n+1}]'
def srd(n): return f's[{n}:{n+3}]'
def vr(a,n): return f'v[{a}:{a+n-1}]' if n>1 else f'v{a}'
def ar(a,n): return f'a[{a}:{a+n-1}]' if n>1 else f'a{a}'

V_LANE, V_L16 = 0, 1
V_TR = 2
V_DMA = [6,13]
V_T = 16
V_LR,V_LI,V_K1,V_K2,V_SR,V_SI,V_PR,V_PI,V_L64R,V_L64I,V_L512R,V_L512I = range(40,52)
V_IN = 52
V_X64 = 56
V_BF = 112
V_RAW = 224
V_ACC = 56
V_RING = 120
V_EL = 16
V_EOF = 200
V_XR = 216

class K(Gen):
    def __init__(self, opt):
        super().__init__(); self.opt=opt; self.nstamp=0
        self.final_stamps=False; self.vst=55; self.nx=0; self.nb=0; self.bread=False; self.allow_bread=False; self.bdelay=opt.bdelay; self.q=[]; self.R=None; self.auto=0; self.acc=0; self.in_tick=False; self.full=True
    def I(self,t,tag=None):
        super().I(t,tag)
        if self.in_tick: return
        mn=t.split()[0]
        if mn.startswith(('buffer_','global_')): self.acc=0; return
        if not self.auto: return
        if mn.startswith('v_mfma'): self.acc+=16
        elif mn.startswith(('v_exp','v_rcp','v_sqrt','v_sin','v_cos','v_log')): self.acc+=8
        elif mn.startswith(('v_','ds_')): self.acc+=4
        else: return
        if self.acc>=self.auto and self.full and not mn.startswith(('v_cmp','s_cmp','s_bitcmp')):
            self.tick()
    def tick(self):
        self.in_tick=True; self.acc=0
        if not self.bread and self.allow_bread and self.nb>=34:
            if self.bdelay>0: self.bdelay-=1
            else:
                self.do_bread(); self.in_tick=False; return
        if self.q: self.q.pop(0)()
        elif self.R is not None: self.ring_tick()
        self.in_tick=False
    def do_bread(self):
        self.bread=True
        self.b_read()
        self.wait(lg=['brd'])
        self.ring_init('w1',16,3584,range(6))
    def drain_q(self):
        while self.q: self.tick()
    def stamp(self, name, fine=False):
        if not self.opt.stamps: return
        if fine and int(fine)>self.opt.fine: return
        i=self.nstamp; self.nstamp+=1
        assert i<64
        self.c(f'stamp {i}: {name}')
        self.wait(lg='all')
        self.I('s_memrealtime s[98:99]'); self.I('s_waitcnt lgkmcnt(0)'); self.smem=False
        self.I(f'v_writelane_b32 v{self.vst}, s98, {i}')
        self.stampnames=getattr(self,'stampnames',[])+[name]
    def cstamp(self, name):
        if not self.opt.stamps: return
        i=self.nstamp; self.nstamp+=1
        self.wait(lg='all')
        self.I('s_memtime s[98:99]'); self.I('s_waitcnt lgkmcnt(0)'); self.smem=False
        self.I(f'v_writelane_b32 v{self.vst}, s98, {i}')
        self.stampnames=getattr(self,'stampnames',[])+['#'+name]
    def rnd_bf16(self, v):
        self.I(f'v_cvt_pk_bf16_f32 v{v}, v{v}, v{v}')
        self.I(f'v_lshlrev_b32 v{v}, 16, v{v}')
    def make_srd(self, s, ptr, nbytes):
        self.I(f's_mov_b32 s{s}, s{ptr}'); self.I(f's_and_b32 s{s+1}, s{ptr+1}, 0xffff')
        self.I(f's_mov_b32 s{s+2}, {nbytes}'); self.I(f's_mov_b32 s{s+3}, 0x20000')
    def ln_stats(self, SUM, SSQ, R, C, T):
        I=self.I
        I(f'v_mul_f32 v{SUM}, 0x3b124925, v{SUM}')
        I(f'v_mul_f32 v{SSQ}, 0x3b124925, v{SSQ}')
        I(f'v_fma_f32 v{SSQ}, -v{SUM}, v{SUM}, v{SSQ}')
        I(f'v_max_f32 v{SSQ}, 0, v{SSQ}')
        I(f'v_cvt_pk_bf16_f32 v{SUM}, v{SUM}, v{SUM}')
        I(f'v_cvt_pk_bf16_f32 v{SSQ}, v{SSQ}, v{SSQ}')
        I(f'v_lshlrev_b32 v{SUM}, 16, v{SUM}')
        I(f'v_lshlrev_b32 v{SSQ}, 16, v{SSQ}')
        I(f'v_add_f32 v{SSQ}, 0x3727c5ac, v{SSQ}')
        self.rnd_bf16(SSQ)
        I(f'v_sqrt_f32 v{SSQ}, v{SSQ}')
        self.rnd_bf16(SSQ)
        I(f'v_rcp_f32 v{R}, v{SSQ}')
        I(f'v_mul_f32 v{C}, v{SUM}, v{R}')
        I(f'v_sub_f32 v{C}, 0, v{C}')
    def dot_sums(self, regs, accs):
        I=self.I
        for n,d in enumerate(regs):
            s,q = accs[2*(n&1)], accs[2*(n&1)+1]
            if n<2:
                I(f'v_dot2_f32_bf16 v{s}, v{d}, s{S_ONES}, 0')
                I(f'v_dot2_f32_bf16 v{q}, v{d}, v{d}, 0')
            else:
                I(f'v_dot2_f32_bf16 v{s}, v{d}, s{S_ONES}, v{s}')
                I(f'v_dot2_f32_bf16 v{q}, v{d}, v{d}, v{q}')
        I(f'v_add_f32 v{accs[0]}, v{accs[0]}, v{accs[2]}')
        I(f'v_add_f32 v{accs[1]}, v{accs[1]}, v{accs[3]}')
    def normalize(self, regs, R, C, tmps, hook=None):
        I=self.I
        n=len(tmps)
        for b in range(0,len(regs),n):
            grp=regs[b:b+n]
            for d,t in zip(grp,tmps):
                I(f'v_lshlrev_b32 v{t}, 16, v{d}')
                I(f'v_and_b32 v{t+1}, s{S_MASK}, v{d}')
            for d,t in zip(grp,tmps):
                I(f'v_pk_fma_f32 v[{t}:{t+1}], v[{t}:{t+1}], v[{R}:{R+1}], v[{C}:{C+1}] op_sel_hi:[1,0,0]')
            for d,t in zip(grp,tmps):
                I(f'v_cvt_pk_bf16_f32 v{d}, v{t}, v{t+1}')
            if hook: hook(b//n)
    def cmul(self, dr, di, xr, xi, yr, yi, t0, t1):
        I=self.I
        I(f'v_mul_f32 v{t0}, v{xi}, v{yi}')
        I(f'v_mul_f32 v{t1}, v{xi}, v{yr}')
        I(f'v_fma_f32 v{t0}, v{xr}, v{yr}, -v{t0}')
        I(f'v_fma_f32 v{di}, v{xr}, v{yi}, v{t1}')
        I(f'v_mov_b32 v{dr}, v{t0}')
    def cfma(self, dr, di, xr, xi, yr, yi, zr, zi, t0, t1):
        I=self.I
        I(f'v_fma_f32 v{t0}, v{xr}, v{yr}, v{zr}')
        I(f'v_fma_f32 v{t1}, v{xr}, v{yi}, v{zi}')
        I(f'v_fma_f32 v{t0}, -v{xi}, v{yi}, v{t0}')
        I(f'v_fma_f32 v{di}, v{xi}, v{yr}, v{t1}')
        I(f'v_mov_b32 v{dr}, v{t0}')
    def csq(self, dr, di, xr, xi, t0):
        I=self.I
        I(f'v_mul_f32 v{t0}, v{xi}, v{xi}')
        I(f'v_mul_f32 v{di}, v{xr}, v{xi}')
        I(f'v_fma_f32 v{dr}, v{xr}, v{xr}, -v{t0}')
        I(f'v_add_f32 v{di}, v{di}, v{di}')
    def allgather_q(self, v, g0, g1, g2, g3):
        I=self.I
        I(f'v_mov_b32 v{g0}, v{v}'); I(f'v_mov_b32 v{g1}, v{v}')
        I(f'v_permlane16_swap_b32 v{g0}, v{g1}')
        I(f'v_mov_b32 v{g2}, v{g0}'); I(f'v_mov_b32 v{g3}, v{g1}')
        I(f'v_permlane32_swap_b32 v{g0}, v{g2}')
        I(f'v_permlane32_swap_b32 v{g1}, v{g3}')
    def exec_full(self): self.I('s_mov_b64 exec, -1'); self.full=True
    def exec_set(self, lo, hi):
        self.full=False
        self.I(f's_mov_b32 exec_lo, {lo}'); self.I(f's_mov_b32 exec_hi, {hi}')
    def poll(self, name, voff, base, cmp_ge, nlanes_lo=None):
        I=self.I
        L=self.newlabel('poll'); D=self.newlabel('polld')
        I(f's_mov_b32 s{S_BOUND}, 0x40000')
        self.label(L)
        I(f'global_load_dword v7, v{voff}, {sp(base)} sc1')
        I('s_waitcnt vmcnt(0)'); self.vm={}
        I(f'v_cmp_gt_u32 vcc, {cmp_ge}, v7')
        I(f's_cbranch_vccz {D}')
        I('s_sleep 4')
        I(f's_sub_u32 s{S_BOUND}, s{S_BOUND}, 1')
        I(f's_cbranch_scc0 {L}')
        self.label(D)

    def ring_setup(self, pitch, xorsel):
        I=self.I
        I(f'v_lshrrev_b32 v7, 3, v{V_LANE}'); I(f'v_and_b32 v8, 7, v{V_LANE}')
        I('v_and_b32 v9, 6, v7'); I('v_xor_b32 v8, v8, v9'); I('v_lshlrev_b32 v8, 4, v8')
        I(f'v_mul_u32_u24 v7, {pitch}, v7'); I(f'v_add_u32 v{V_DMA[0]}, v7, v8')
        I(f'v_add_u32 v{V_DMA[1]}, {8*pitch-1024}, v{V_DMA[0]}')
        I(f'v_lshrrev_b32 v7, 2, v{V_LANE}'); I('v_and_b32 v8, 6, v7')
        I(f'v_bfe_u32 v9, v{V_LANE}, 1, 1'); I('v_xor_b32 v8, v8, v9'); I('v_lshlrev_b32 v8, 4, v8')
        I('v_lshlrev_b32 v7, 7, v7'); I('v_add_u32 v7, v7, v8')
        I(f'v_and_b32 v9, 1, v{V_LANE}'); I('v_lshlrev_b32 v9, 3, v9'); I('v_add_u32 v7, v7, v9')
        I(f's_lshl_b32 s{S_T0}, s{xorsel}, 6')
        I(f'v_xor_b32 v7, s{S_T0}, v7')
        I(f'v_add_u32 v{V_TR}, s{S_YB}, v7')
        for x in range(1,4):
            I(f'v_xor_b32 v{V_TR+x}, {x<<5}, v{V_TR}')
    def ring_init(self, name, nsteps, pitch, slots):
        self.R=dict(name=name,n=nsteps,pitch=pitch,free=list(slots),slot={},iss=0,rd=0,rel=0,piece=0)
    def ring_add(self, slots): self.R['free']+=list(slots)
    def ring_issue_piece(self):
        R=self.R; I=self.I
        k=R['iss']
        if k>=R['n']: return False
        j=R['piece']
        if j==0:
            if not R['free']: return False
            R['slot'][k]=R['free'].pop(0)
        if j%2==0:
            I(f's_add_u32 m0, s{S_YB}, {SLOT_OFF[R["slot"][k]]+j*1024}')
            if k or j: I(f's_add_u32 s{S_WO}, s{S_WO}, {16*R["pitch"]}')
            else: I('s_nop 0')
        I(f'buffer_load_dwordx4 v{V_DMA[j%2]}, {srd(SRD_W)}, s{S_WO} offen offset:{(j%2)*1024} lds', tag=(R['name'],k))
        R['piece']=(j+1)%4
        if R['piece']==0: R['iss']+=1
        return True
    def ring_issue(self):
        while self.ring_issue_piece(): pass
    def ring_read(self):
        R=self.R; I=self.I
        k=R['rd']
        if k>=R['n']: return False
        assert k<R['iss'], 'read before issue'
        off=SLOT_OFF[R['slot'][k]]
        self.wait(vm=[(R['name'],k)])
        for x in range(4):
            b=16*k+4*x
            I(f'ds_read_b64_tr_b16 {ar(b,2)}, v{V_TR+x} offset:{off}', tag=(R['name'],'r',k))
            I(f'ds_read_b64_tr_b16 {ar(b+2,2)}, v{V_TR+x} offset:{off+2048}', tag=(R['name'],'r',k))
        R['rd']+=1
        return True
    def ring_release(self):
        R=self.R
        k=R['rel']
        if k>=R['rd']: return False
        self.wait(lg=[(R['name'],'r',k)])
        R['free'].append(R['slot'][k]); R['rel']+=1
        self.ring_issue()
        return True
    def ring_tick(self):
        R=self.R
        if R['iss']<R['n']:
            if R['piece']==0 and not R['free']:
                if R['rel']>=R['rd']:
                    assert R['rd']<R.get('maxrd',99)
                    self.ring_read()
                k=R['rel']; self.wait(lg=[(R['name'],'r',k)]); R['free'].append(R['slot'][k]); R['rel']+=1
            self.ring_issue_piece()
            if R['piece']==3 and not R['free'] and R['rd']==R['rel'] and R['rd']<R['iss'] and R['rd']<R.get('maxrd',99):
                self.ring_read()
            return True
        if R['rd']<R['n'] and R['rd']<R.get('maxrd',99): return self.ring_read()
        return False
    def bg(self):
        return self.ring_tick()
    def replay_ring(self, RA):
        R=self.R
        while (R['iss'],R['piece'])<(RA['iss'],RA['piece']) or R['rd']<RA['rd']:
            if (R['iss'],R['piece'])<(RA['iss'],RA['piece']):
                before=R['rd']
                R['maxrd']=RA['rd']
                self.ring_tick()
            else:
                self.ring_read()
        while R['rel']<RA['rel']:
            k=R['rel']; self.wait(lg=[(R['name'],'r',k)]); R['free'].append(R['slot'][k]); R['rel']+=1
        R['maxrd']=99
        for k in RA: assert RA[k]==R[k], (k,RA[k],R[k])
    def ring_finish(self):
        R=self.R; R['maxrd']=99
        while R['rd']<R['n'] or R['iss']<R['n']: self.ring_tick()
        R['rel']=R['n']; self.R=None

    def reduce(self, tmp, pre=None, post=None):
        I=self.I
        for e in (1,2,3):
            I(f's_xor_b32 s{S_T0}, s{S_W}, {e}'); I(f's_mul_i32 s{S_T0}, s{S_T0}, {3*4096}')
            I(f's_add_u32 s{S_T0}, s{S_T0}, {LDS_X+(e-1)*4096}')
            I(f'v_add_u32 v7, s{S_T0}, v{V_L16}')
            xh,yh=e>>1,e&1
            for xl in range(2):
                for yl in range(2):
                    a=V_ACC+16*(2*xh+xl)+4*(2*yh+yl)
                    I(f'ds_write_b128 v7, {vr(a,4)} offset:{(2*xl+yl)*1024}', tag='redw')
        if pre: pre()
        self.wait(lg='all'); I('s_barrier')
        if post: post()
        I(f's_mul_i32 s{S_T0}, s{S_W}, {3*4096}'); I(f'v_add_u32 v7, s{S_T0}, v{V_L16}')
        for e in range(3):
            for sub in range(4):
                I(f'ds_read_b128 {vr(tmp+16*e+4*sub,4)}, v7 offset:{LDS_X+e*4096+sub*1024}', tag=('red',e))
        for e in range(3):
            self.wait(lg=[('red',e)])
            for sub in range(4):
                a=V_ACC+16*(sub>>1)+4*(sub&1)
                for h in range(2):
                    I(f'v_pk_add_f32 v[{a+2*h}:{a+2*h+1}], v[{a+2*h}:{a+2*h+1}], v[{tmp+16*e+4*sub+2*h}:{tmp+16*e+4*sub+2*h+1}]')

    def prologue(self):
        I=self.I
        I('s_cmp_ge_u32 s2, 256'); I('s_cbranch_scc1 L_exit')
        I('s_load_dwordx16 s[4:19], s[0:1], 0')
        if self.opt.pfearly:
            I('s_getpc_b64 s[98:99]'); self.label('L_pc0')
            I(f's_sub_u32 s98, s98, L_pc0-{KN}'); I('s_subb_u32 s99, s99, 0')
            I('v_lshlrev_b32 v9, 7, v0'); I(f'v_min_u32 v9, L_code_end-{KN}-16, v9')
            I('global_load_dword v12, v9, s[98:99]', tag='pf')
        I('s_load_dwordx2 s[20:21], s[0:1], 64')
        I('s_load_dwordx8 s[24:31], s[0:1], 80')
        I('s_load_dwordx4 s[32:35], s[0:1], 112')
        I('s_load_dwordx2 s[36:37], s[0:1], 128')
        I('v_lshrrev_b32 v7, 6, v0'); I(f'v_and_b32 v{V_LANE}, 63, v0')
        I(f'v_readfirstlane_b32 s{S_W}, v7')
        I(f'v_lshlrev_b32 v{V_L16}, 4, v{V_LANE}')
        I(f's_mov_b32 s{S_MASK}, 0xffff0000'); I(f's_mov_b32 s{S_ONES}, 0x3f803f80')
        I('s_and_b32 s22, s2, 7')
        I('s_lshr_b32 s23, s2, 3')
        I('s_and_b32 s38, s22, 1')
        I('s_lshr_b32 s39, s22, 1')
        I(f's_lshr_b32 s{S_WH}, s{S_W}, 1'); I(f's_and_b32 s{S_WL}, s{S_W}, 1')
        I(f's_mul_i32 s{S_T0}, s23, 37'); I(f's_lshr_b32 s{S_T0}, s{S_T0}, 8')
        I(f's_mul_i32 s{S_T1}, s{S_T0}, 7'); I(f's_sub_u32 s{S_G}, s23, s{S_T1}')
        I(f's_mov_b32 s{S_DT1}, s{S_G}')
        I(f's_lshl_b32 s{S_T1}, s22, 2'); I(f's_add_u32 s{S_C}, s{S_T1}, s{S_T0}')
        I(f's_min_u32 s{S_C}, s{S_C}, 31')
        I(f's_mul_i32 s{S_T1}, s39, 7'); I(f's_lshl_b32 s{S_T2}, s38, 2'); I(f's_add_u32 s87, s{S_T1}, s{S_T2}')
        I(f's_add_u32 s{S_FT}, s87, s{S_T0}'); I(f's_min_u32 s{S_FT}, s{S_FT}, 27')
        I(f's_sub_u32 s{S_T1}, 4, s38'); I(f's_cmp_lt_u32 s{S_T0}, s{S_T1}'); I(f's_cselect_b32 s{S_HASG1}, 1, 0')
        I('s_cmp_lt_u32 s23, 28'); I('s_cselect_b32 s74, 1, 0')
        self.wait(lg='all')
        self.make_srd(SRD_X, P_X, 2048*896)
        self.x8_issue(2)
        if not self.opt.pfearly:
            I('s_getpc_b64 s[98:99]'); self.label('L_pc0')
            I(f's_sub_u32 s98, s98, L_pc0-{KN}'); I('s_subb_u32 s99, s99, 0')
            I(f's_and_b32 s{S_T0}, s23, 1'); I(f's_lshl_b32 s{S_T0}, s{S_T0}, 2'); I(f's_add_u32 s{S_T0}, s{S_T0}, s{S_W}')
            I(f's_lshl_b32 s{S_T0}, s{S_T0}, 13')
            I(f'v_lshlrev_b32 v9, 7, v{V_LANE}'); I(f'v_add_u32 v9, s{S_T0}, v9')
            I(f'v_min_u32 v9, L_code_end-{KN}-16, v9')
            I('global_load_dword v12, v9, s[98:99]', tag='pf')
        self.make_srd(SRD_WS, P_WS, 0x10000000)
        I(f's_mul_i32 s{S_YB}, s{S_W}, {YW}'); I(f's_add_u32 s{S_YB}, s{S_YB}, {LDS_Y}')
        I(f's_sub_u32 s{S_E}, s23, 28'); I(f's_lshl_b32 s{S_E}, s{S_E}, 3'); I(f's_add_u32 s{S_E}, s{S_E}, s22')
        I('s_mov_b32 s86, s23'); I('s_mov_b32 s95, s22')
        self.stamp('start'); self.cstamp('c0')

    def x8_issue(self, oct):
        I=self.I
        I(f's_lshr_b32 s75, s{oct}, 2'); I('s_lshl_b32 s75, s75, 5')
        I(f's_lshl_b32 s{S_T0}, s{S_WH}, 4'); I(f's_add_u32 s75, s75, s{S_T0}')
        I(f's_and_b32 s{S_T0}, s{oct}, 3'); I(f's_lshl_b32 s{S_T0}, s{S_T0}, 2'); I(f's_add_u32 s75, s75, s{S_T0}')
        I(f's_lshl_b32 s{S_T0}, s{S_WL}, 1'); I(f's_add_u32 s75, s75, s{S_T0}')
        I(f's_mul_i32 s{S_T2}, s75, 896')
        I(f'v_and_b32 v7, 31, v{V_LANE}'); I(f'v_lshrrev_b32 v8, 5, v{V_LANE}')
        I('v_mul_u32_u24 v8, 896, v8'); I('v_lshlrev_b32 v9, 5, v7'); I('v_add_u32 v8, v8, v9')
        I('v_mov_b32 v9, 0x7ffffff0'); I('v_cmp_gt_u32 vcc, 28, v7'); I('v_cndmask_b32 v8, v9, v8, vcc')
        I(f'buffer_load_dwordx4 {vr(V_T,4)}, v8, {srd(SRD_X)}, s{S_T2} offen', tag='x8')
        I(f'buffer_load_dwordx4 {vr(V_T+4,4)}, v8, {srd(SRD_X)}, s{S_T2} offen offset:16', tag='x8')
    def touches_pre(self):
        I=self.I
        self.make_srd(SRD_1, P_BRE, 448*896); self.make_srd(SRD_2, P_BIM, 448*896); self.make_srd(SRD_W, P_W1, 2048*3584)
        I(f'v_lshrrev_b32 v7, 3, v{V_LANE}'); I(f'v_and_b32 v8, 7, v{V_LANE}'); I('v_min_u32 v8, 6, v8')
        I('v_mul_u32_u24 v7, 896, v7'); I('v_lshlrev_b32 v8, 7, v8'); I('v_add_u32 v7, v7, v8')
        I(f's_lshl_b32 s{S_T3}, s86, 2'); I(f's_add_u32 s{S_T3}, s{S_T3}, s{S_W}')
        I(f's_lshl_b32 s{S_T0}, s95, 8'); I(f's_lshl_b32 s{S_T1}, s{S_T3}, 1'); I(f's_add_u32 s{S_T0}, s{S_T0}, s{S_T1}'); I(f's_mul_i32 s{S_T0}, s{S_T0}, 896')
        self.exec_set('0xffff','0')
        I(f'buffer_load_dword v12, v7, {srd(SRD_X)}, s{S_T0} offen', tag='touch')
        I(f's_and_b32 s{S_T0}, s{S_T3}, 63'); I(f's_mul_i32 s{S_T0}, s{S_T0}, {7*896}')
        I(f's_cmp_lt_u32 s{S_T3}, 64')
        I(f's_cselect_b32 s{SRD_OUT}, s{P_BRE}, s{P_BIM}'); I(f's_cselect_b32 s{SRD_OUT+1}, s{P_BRE+1}, s{P_BIM+1}')
        I(f's_mov_b32 s{SRD_OUT+2}, {448*896}'); I(f's_mov_b32 s{SRD_OUT+3}, 0x20000')
        self.exec_set('-1','0x00ffffff')
        I(f'buffer_load_dword v12, v7, {srd(SRD_OUT)}, s{S_T0} offen', tag='touch')
        self.exec_full()
    def touch_w1(self, setup_only=False):
        I=self.I
        I(f'v_lshrrev_b32 v7, 2, v{V_LANE}'); I(f'v_and_b32 v8, 3, v{V_LANE}')
        I(f's_and_b32 s{S_T1}, s95, 1'); I(f's_sub_u32 s{S_T1}, 3, s{S_T1}'); I(f'v_min_u32 v8, s{S_T1}, v8')
        I('v_mul_u32_u24 v7, 3584, v7'); I('v_lshlrev_b32 v8, 7, v8'); I('v_add_u32 v7, v7, v8')
        I(f's_lshl_b32 s{S_T0}, s{S_W}, 9'); I(f's_lshl_b32 s{S_T1}, s86, 4'); I(f's_add_u32 s{S_T0}, s{S_T0}, s{S_T1}')
        I(f's_mul_i32 s{S_T0}, s{S_T0}, 3584'); I(f's_lshl_b32 s{S_T1}, s87, 7'); I(f's_add_u32 s{S_T0}, s{S_T0}, s{S_T1}')
        if setup_only:
            I('v_mov_b32 v238, v7'); I(f's_mov_b32 s94, s{S_T0}'); return
        I(f'buffer_load_dword v12, v7, {srd(SRD_W)}, s{S_T0} offen', tag='touch')
    def touch_w1_split(self, rest):
        I=self.I
        I(f'v_lshrrev_b32 v7, 2, v{V_LANE}'); I(f'v_and_b32 v8, 3, v{V_LANE}')
        I(f's_and_b32 s{S_T1}, s95, 1'); I(f's_sub_u32 s{S_T1}, 3, s{S_T1}'); I(f'v_min_u32 v8, s{S_T1}, v8')
        I('v_mul_u32_u24 v7, 3584, v7'); I('v_lshlrev_b32 v8, 7, v8'); I('v_add_u32 v7, v7, v8')
        I(f's_lshl_b32 s{S_T0}, s{S_W}, 9')
        if not rest:
            I(f's_lshl_b32 s{S_T1}, s86, 3'); I(f's_add_u32 s{S_T0}, s{S_T0}, s{S_T1}')
        else:
            I(f's_sub_u32 s{S_T1}, s86, 28'); I(f's_lshl_b32 s{S_T1}, s{S_T1}, 4'); I(f's_add_u32 s{S_T0}, s{S_T0}, s{S_T1}'); I(f's_add_u32 s{S_T0}, s{S_T0}, 224')
        I(f's_mul_i32 s{S_T0}, s{S_T0}, 3584'); I(f's_lshl_b32 s{S_T1}, s87, 7'); I(f's_add_u32 s{S_T0}, s{S_T0}, s{S_T1}')
        if not rest:
            self.exec_set('-1','0')
            I(f'buffer_load_dword v12, v7, {srd(SRD_W)}, s{S_T0} offen', tag='touch')
            self.exec_full()
        else:
            for t in range(5):
                I(f'buffer_load_dword v12, v7, {srd(SRD_W)}, s{S_T0} offen', tag='touch')
                if t<4: I(f's_add_u32 s{S_T0}, s{S_T0}, {64*3584}')
    def touch_w1_wg(self):
        I=self.I
        I(f'v_lshrrev_b32 v7, 2, v{V_LANE}'); I(f'v_and_b32 v8, 3, v{V_LANE}')
        I(f's_and_b32 s{S_T1}, s95, 1'); I(f's_sub_u32 s{S_T1}, 3, s{S_T1}'); I(f'v_min_u32 v8, s{S_T1}, v8')
        I('v_mul_u32_u24 v7, 3584, v7'); I('v_lshlrev_b32 v8, 7, v8'); I('v_add_u32 v7, v7, v8')
        I(f's_lshl_b32 s{S_T0}, s86, 4'); I(f's_mul_i32 s{S_T0}, s{S_T0}, 3584'); I(f's_lshl_b32 s{S_T1}, s87, 7'); I(f's_add_u32 s{S_T0}, s{S_T0}, s{S_T1}')
        for q in range(4):
            I(f'buffer_load_dword v12, v7, {srd(SRD_W)}, s{S_T0} offen', tag='touch')
            if q<3: I(f's_add_u32 s{S_T0}, s{S_T0}, {512*3584}')
    def q_w3(self):
        I=self.I
        def xpair(p):
            def f():
                L=self.newlabel('xw3')
                I(f's_add_u32 s100, s{S_W}, {3*p}'); I('s_cmp_ge_u32 s100, 8'); I(f's_cbranch_scc1 {L}')
                snap=self.snapshot()
                I('s_lshl_b32 s101, s100, 4'); I(f'v_xor_b32 v238, s101, v{V_L16}')
                I('s_lshr_b32 s101, s100, 1'); I('s_lshl_b32 s101, s101, 4'); I('s_and_b32 s100, s100, 1'); I('s_lshl_b32 s100, s100, 1')
                I('s_add_u32 s100, s100, s101'); I('s_add_u32 s100, s100, 12'); I('s_mul_i32 s100, s100, 896')
                I(f's_lshl_b32 s101, s{S_C}, 6'); I('s_mul_i32 s101, s101, 896'); I('s_add_u32 s101, s101, s100')
                I('s_mov_b32 exec_hi, 0x00ffffff')
                I(f's_add_u32 m0, s100, {LDS_X}'); I('s_nop 0')
                I(f'buffer_load_dwordx4 v238, {srd(SRD_X)}, s101 offen lds', tag='x64')
                I(f's_add_u32 m0, s100, {LDS_X+896}'); I('s_add_u32 s101, s101, 896')
                I(f'buffer_load_dwordx4 v238, {srd(SRD_X)}, s101 offen lds', tag='x64')
                I('s_mov_b32 exec_hi, -1')
                self.label(L); self.merge(snap); self.vm['x64']=0
            return f
        def bblock(p):
            def f():
                L=self.newlabel('bw3'); Li=self.newlabel('bw3i')
                I(f's_add_u32 s100, s{S_W}, {3*p}'); I('s_cmp_ge_u32 s100, 8'); I(f's_cbranch_scc1 {L}')
                snap=self.snapshot()
                I('s_and_b32 s101, s100, 3'); I('s_sub_u32 s91, 0, s101'); I('s_and_b32 s91, s91, 3'); I('s_lshl_b32 s91, s91, 4')
                I(f'v_xor_b32 v238, s91, v{V_L16}')
                I('s_bitcmp1_b32 s100, 2')
                I(f's_cselect_b32 s{SRD_OUT}, s{P_BIM}, s{P_BRE}'); I(f's_cselect_b32 s{SRD_OUT+1}, s{P_BIM+1}, s{P_BRE+1}')
                I('s_cselect_b32 s100, 13312, 0')
                I('s_mul_i32 s91, s101, 3328'); I('s_add_u32 s100, s100, s91'); I(f's_add_u32 s100, s100, {LDS_Y+3*YW}')
                I('s_mul_i32 s101, s101, 3584')
                I(f's_lshl_b32 s91, s{S_G}, 6'); I('s_add_u32 s91, s91, 48'); I('s_mul_i32 s91, s91, 896'); I('s_add_u32 s101, s101, s91')
                I('s_mov_b32 exec_hi, 0x000fffff')
                for r in range(4):
                    I(f's_add_u32 m0, s100, {r*832}')
                    if r: I('s_add_u32 s101, s101, 896')
                    else: I('s_nop 0')
                    I(f'buffer_load_dwordx4 v238, {srd(SRD_OUT)}, s101 offen lds', tag='bdma')
                I('s_mov_b32 exec_hi, -1')
                self.label(L); self.merge(snap); self.vm['bdma']=0
            return f
        return [xpair(p) for p in range(3)], [bblock(p) for p in range(3)]
    def dma_setup(self):
        I=self.I
        for n,h in enumerate((0,3,2,1)): I(f'v_xor_b32 v{224+n}, {h<<4}, v{V_L16}')
        for g in range(8): I(f'v_xor_b32 v{228+g}, {g<<4}, v{V_L16}')
        I(f's_lshl_b32 s{S_T0}, s{S_G}, 6'); I(f's_lshl_b32 s{S_T1}, s{S_W}, 4'); I(f's_add_u32 s88, s{S_T0}, s{S_T1}')
        I('s_mul_i32 s89, s88, 896')
        I(f's_lshl_b32 s{S_T0}, s{S_C}, 6'); I(f's_lshl_b32 s{S_T1}, s{S_W}, 2'); I(f's_add_u32 s{S_T0}, s{S_T0}, s{S_T1}')
        I(f's_mul_i32 s92, s{S_T0}, 896')
        I(f's_mul_i32 s93, s{S_W}, 3584')
        I(f'v_and_b32 v7, 15, v{V_LANE}'); I('v_mul_u32_u24 v236, 896, v7'); I(f'v_lshrrev_b32 v9, 4, v{V_LANE}'); I('v_lshlrev_b32 v9, 4, v9')
        I('v_add_u32 v236, v236, v9')
        I('v_add_u32 v237, s88, v7'); I('v_lshlrev_b32 v237, 1, v237')
    def q_b(self):
        I=self.I
        def row(im,n):
            def f():
                I('s_mov_b32 exec_hi, 0x000fffff')
                I(f's_add_u32 m0, s{S_YB}, {im*13312+n*832}')
                I(f's_add_u32 s91, s89, {n*896}')
                I(f'buffer_load_dwordx4 v{224+(n>>2)}, {srd(SRD_1 if im==0 else SRD_2)}, s91 offen lds', tag='bdma'); self.nb+=1
                I('s_mov_b32 exec_hi, -1')
            return f
        for im in range(2):
            for n in range(16): self.q.append(row(im,n))
        def b13(srdn,dst):
            def f():
                I(f'buffer_load_dwordx4 {vr(dst,4)}, v236, {srd(srdn)}, s89 offen offset:832', tag='b13'); self.nb+=1
            return f
        if self.opt.w1touch=='W':
            self.b13_loads=lambda: (b13(SRD_1,V_BF+52)(), b13(SRD_2,V_BF+56+52)())
        else:
            self.q.append(b13(SRD_1,V_BF+52)); self.q.append(b13(SRD_2,V_BF+56+52))
        def lam():
            I(f'global_load_ushort v{V_IN}, v237, {sp(P_LRE)}', tag='lam')
            I(f'global_load_ushort v{V_IN+1}, v237, {sp(P_LIM)}', tag='lam')
            I(f'global_load_ushort v{V_IN+2}, v237, {sp(P_LDT)}', tag='lam')
        self.q.insert(0,lam)
    def q_x(self, alist):
        I=self.I
        def row(a,b):
            def f():
                g=2*a+(b>>1); d=(16*a+b)*896
                I('s_mov_b32 exec_hi, 0x00ffffff')
                I(f's_add_u32 m0, s93, {LDS_X+d}')
                I(f's_add_u32 s91, s92, {d}')
                I(f'buffer_load_dwordx4 v{228+g}, {srd(SRD_X)}, s91 offen lds', tag='x64'); self.nx+=1
                I('s_mov_b32 exec_hi, -1')
            return f
        for a in alist:
            for b in range(4): self.q.append(row(a,b))
    def b_read(self):
        I=self.I
        I(f'v_and_b32 v7, 15, v{V_LANE}'); I(f'v_lshrrev_b32 v8, 4, v{V_LANE}'); I('v_lshrrev_b32 v9, 2, v7')
        I('v_sub_u32 v9, 0, v9'); I('v_and_b32 v9, 3, v9'); I('v_xor_b32 v8, v8, v9')
        I('v_lshlrev_b32 v8, 4, v8'); I('v_mul_u32_u24 v7, 832, v7'); I('v_add_u32 v7, v7, v8'); I(f'v_add_u32 v7, s{S_YB}, v7')
        if self.opt.w1touch!='W': self.wait(vm=['bdma'])
        for im in range(2):
            for j in range(13):
                I(f'ds_read_b128 {vr(V_BF+56*im+4*j,4)}, v7 offset:{im*13312+j*64}', tag='brd')
    def touch_pf(self, which):
        I=self.I
        if which==1: pitch,nrow,nt,srdn=3584,512,8,SRD_W
        else:
            pitch,nrow,nt,srdn=4096,448,7,SRD_OUT
            self.make_srd(SRD_OUT, P_W2, 1792*4096)
        I(f'v_lshrrev_b32 v7, 2, v{V_LANE}'); I(f'v_and_b32 v8, 3, v{V_LANE}')
        if which==1:
            I(f's_and_b32 s{S_T1}, s95, 1'); I(f's_sub_u32 s{S_T1}, 3, s{S_T1}'); I(f'v_min_u32 v8, s{S_T1}, v8')
        I(f'v_mul_u32_u24 v7, {pitch}, v7'); I('v_lshlrev_b32 v8, 7, v8'); I('v_add_u32 v7, v7, v8')
        I(f's_mul_i32 s{S_T0}, s{S_W}, {nrow}'); I(f's_sub_u32 s{S_T1}, s86, 28'); I(f's_lshl_b32 s{S_T1}, s{S_T1}, 4'); I(f's_add_u32 s{S_T0}, s{S_T0}, s{S_T1}')
        I(f's_mul_i32 s{S_T0}, s{S_T0}, {pitch}')
        if which==1: I(f's_lshl_b32 s{S_T1}, s87, 7')
        else: I(f's_lshl_b32 s{S_T1}, s95, 9')
        I(f's_add_u32 s{S_T0}, s{S_T0}, s{S_T1}')
        for t in range(nt):
            I(f'buffer_load_dword v12, v7, {srd(srdn)}, s{S_T0} offen', tag='touch2')
            if t<nt-1: I(f's_add_u32 s{S_T0}, s{S_T0}, {64*pitch}')
    def ln8(self, oct=2, clears=True):
        I=self.I
        D=list(range(V_T,V_T+8)); SUM,SSQ,S2,Q2=24,25,26,27; R,C=28,30; TM=[32,34,36,38]
        self.wait(vm=['x8'])
        def reduce32():
            for rot in (8,4,2,1):
                I(f'v_add_f32_dpp v{SUM}, v{SUM}, v{SUM} row_ror:{rot} row_mask:0xf bank_mask:0xf')
                I(f'v_add_f32_dpp v{SSQ}, v{SSQ}, v{SSQ} row_ror:{rot} row_mask:0xf bank_mask:0xf')
            I(f'v_mov_b32 v{S2}, v{SUM}'); I(f'v_mov_b32 v{Q2}, v{SSQ}')
            I(f'v_permlane16_swap_b32 v{SUM}, v{S2}'); I(f'v_permlane16_swap_b32 v{SSQ}, v{Q2}')
            I(f'v_add_f32 v{SUM}, v{SUM}, v{S2}'); I(f'v_add_f32 v{SSQ}, v{SSQ}, v{Q2}')
        self.dot_sums(D,[SUM,SSQ,S2,Q2]); reduce32()
        self.ln_stats(SUM,SSQ,R,C,None)
        if clears and self.opt.w1touch=='W' and not self.opt.notouch3:
            Lt=self.newlabel('notouch')
            I(f's_cmp_lg_u32 s{S_W}, 3'); I(f's_cbranch_scc1 {Lt}')
            snap=self.snapshot()
            self.touch_w1_wg()
            self.label(Lt); self.merge(snap)
        I(f'v_and_b32 v7, 31, v{V_LANE}'); I('v_cmp_gt_u32 vcc, 28, v7')
        I(f'v_cndmask_b32 v{R}, 0, v{R}, vcc'); I(f'v_cndmask_b32 v{C}, 0, v{C}, vcc')
        self.normalize(D,R,C,TM)
        self.dot_sums(D,[SUM,SSQ,S2,Q2]); reduce32()
        self.ln_stats(SUM,SSQ,R,C,None)
        self.normalize(D,R,C,TM)
        self.auto=0
        I(f'v_lshrrev_b32 v8, 5, v{V_LANE}'); I(f's_lshl_b32 s{S_T0}, s{S_W}, 1'); I(f'v_add_u32 v8, s{S_T0}, v8')
        I('v_mul_u32_u24 v8, 960, v8'); I('v_lshlrev_b32 v9, 5, v7'); I('v_add_u32 v8, v8, v9'); I(f'v_add_u32 v8, {LDS_LN8}, v8')
        self.exec_set('0x0fffffff','0x0fffffff')
        I(f'ds_write_b128 v8, {vr(V_T,4)} offset:0'); I(f'ds_write_b128 v8, {vr(V_T+4,4)} offset:16')
        self.exec_full()
        self.wait(lg='all'); I('s_barrier')
        I(f'v_and_b32 v7, 15, v{V_LANE}'); I('v_lshrrev_b32 v8, 2, v7'); I('v_mul_u32_u24 v8, 960, v8')
        I(f'v_lshrrev_b32 v9, 4, v{V_LANE}'); I('v_lshlrev_b32 v10, 5, v9'); I('v_add_u32 v8, v8, v10')
        I(f'v_and_b32 v10, 3, v{V_LANE}'); I('v_lshlrev_b32 v10, 3, v10'); I('v_add_u32 v8, v8, v10')
        I(f's_lshl_b32 s{S_T0}, s{S_W}, 7'); I(f's_add_u32 s{S_T0}, s{S_T0}, {LDS_LN8}'); I(f'v_add_u32 v8, s{S_T0}, v8')
        I('v_lshlrev_b32 v9, 10, v9'); I('v_lshlrev_b32 v7, 4, v7'); I('v_add_u32 v9, v9, v7')
        I(f's_lshr_b32 s{S_T0}, s{oct}, 2'); I(f's_lshl_b32 s{S_T0}, s{S_T0}, 12')
        I(f's_and_b32 s{S_T1}, s{oct}, 3'); I(f's_lshl_b32 s{S_T1}, s{S_T1}, 8'); I(f's_add_u32 s{S_T0}, s{S_T0}, s{S_T1}')
        I(f's_lshl_b32 s{S_T1}, s{S_W}, 18'); I(f's_add_u32 s{S_T0}, s{S_T0}, s{S_T1}')
        if self.opt.w1touch=='W':
            Lno=self.newlabel('ln8none'); L6=self.newlabel('ln8no6')
            I(f's_cmp_eq_u32 s{S_W}, 3'); I(f's_cbranch_scc1 {Lno}')
            snap=self.snapshot()
            for i in range(2):
                I(f'ds_read_b64_tr_b16 v[{16+4*i}:{17+4*i}], v8 offset:{384*i}', tag='t0')
                I(f'ds_read_b64_tr_b16 v[{18+4*i}:{19+4*i}], v8 offset:{384*i+3840}', tag='t0')
            I(f's_add_u32 s{S_T1}, s{S_T0}, {3*262144}')
            self.wait(lg='all')
            I(f'buffer_store_dwordx4 v[16:19], v9, {srd(SRD_WS)}, s{S_T0} offen sc1', tag='st0')
            I(f'buffer_store_dwordx4 v[20:23], v9, {srd(SRD_WS)}, s{S_T1} offen sc1', tag='st0')
            I(f's_cmp_lg_u32 s{S_W}, 0'); I(f's_cbranch_scc1 {L6}')
            I(f'ds_read_b64_tr_b16 v[24:25], v8 offset:768', tag='t0')
            I(f'ds_read_b64_tr_b16 v[26:27], v8 offset:{768+3840}', tag='t0')
            I(f's_add_u32 s{S_T1}, s{S_T0}, {6*262144}')
            self.wait(lg='all')
            I(f'buffer_store_dwordx4 v[24:27], v9, {srd(SRD_WS)}, s{S_T1} offen sc1', tag='st0')
            self.label(L6)
            self.label(Lno); self.merge(snap); self.vm['st0']=0
        else:
            I(f'ds_read_b64_tr_b16 v[16:17], v8 offset:0', tag='t0')
            I(f'ds_read_b64_tr_b16 v[18:19], v8 offset:3840', tag='t0')
            Lskip=self.newlabel('ln8skip')
            I(f's_cmp_eq_u32 s{S_W}, 3'); I(f's_cbranch_scc1 {Lskip}')
            snap=self.snapshot()
            I(f'ds_read_b64_tr_b16 v[20:21], v8 offset:512', tag='t1')
            I(f'ds_read_b64_tr_b16 v[22:23], v8 offset:{512+3840}', tag='t1')
            I(f's_add_u32 s{S_T1}, s{S_T0}, {4*262144}')
            self.wait(lg='all')
            I(f'buffer_store_dwordx4 v[20:23], v9, {srd(SRD_WS)}, s{S_T1} offen sc1', tag='st0')
            self.label(Lskip); self.merge(snap)
            self.wait(lg='all')
            I(f'buffer_store_dwordx4 v[16:19], v9, {srd(SRD_WS)}, s{S_T0} offen sc1', tag='st0')
        if not clears:
            I('s_barrier'); return
        Ln=self.newlabel('noclr')
        I(f's_cmp_lg_u32 s{S_W}, {1 if self.opt.w1touch=="W" else 3}'); I(f's_cbranch_scc1 {Ln}')
        snap=self.snapshot()
        I('v_mov_b32 v8, 0')
        I('v_mov_b32 v10, -1'); I('v_mov_b32 v11, -1'); I(f'v_lshlrev_b32 v9, 3, v{V_LANE}')
        I(f's_lshl_b32 s{S_T0}, s{S_G}, 5'); I(f's_add_u32 s{S_T0}, s{S_T0}, s{S_C}'); I(f's_lshl_b32 s{S_T0}, s{S_T0}, 9')
        I(f's_add_u32 s{S_T0}, s{S_T0}, {WS_E}')
        I(f'buffer_store_dwordx2 v[10:11], v9, {srd(SRD_WS)}, s{S_T0} offen sc1', tag='st0')
        I(f's_mul_i32 s{S_T0}, s{S_C}, 7'); I(f's_add_u32 s{S_T0}, s{S_T0}, s{S_G}'); I(f's_lshl_b32 s{S_T0}, s{S_T0}, 6')
        I(f's_add_u32 s{S_T0}, s{S_T0}, {WS_FH}')
        I('v_mov_b32 v10, 0')
        self.exec_set(1,0)
        I(f'buffer_store_dword v10, v8, {srd(SRD_WS)}, s{S_T0} offen sc1', tag='st0')
        Lg=self.newlabel('nog1clr'); Lc=self.newlabel('nocclr')
        I(f's_cmp_eq_u32 s{S_HASG1}, 0'); I(f's_cbranch_scc1 {Lg}')
        I(f's_mul_i32 s{S_T0}, s{S_DT1}, 28'); I(f's_add_u32 s{S_T0}, s{S_T0}, s{S_FT}'); I(f's_lshl_b32 s{S_T0}, s{S_T0}, 6')
        I(f's_add_u32 s{S_T0}, s{S_T0}, {WS_FG}')
        I(f'buffer_store_dword v10, v8, {srd(SRD_WS)}, s{S_T0} offen sc1', tag='st0')
        self.label(Lg)
        I('s_cmp_lg_u32 s95, 0'); I(f's_cbranch_scc1 {Lc}')
        I(f's_lshl_b32 s{S_T0}, s86, 6'); I(f's_add_u32 s{S_T0}, s{S_T0}, {WS_FC}')
        I(f'buffer_store_dword v10, v8, {srd(SRD_WS)}, s{S_T0} offen sc1', tag='st0')
        self.label(Lc)
        self.exec_full()
        self.label(Ln); self.merge(snap); self.vm['st0']=0
        I('s_barrier')

    def ln8_extra(self):
        I=self.I
        L=self.newlabel('noextra'); Lp=self.newlabel('extra')
        I(f's_cmp_lg_u32 s{S_HASG1}, 0'); I(f's_cbranch_scc1 {L}')
        snap=self.snapshot()
        I('s_lshr_b32 s3, s95, 1'); I('s_mul_i32 s3, s3, 7'); I('s_add_u32 s3, s3, s86'); I('s_add_u32 s3, s3, 203')
        self.label(Lp)
        self.x8_issue(3)
        I('s_waitcnt vmcnt(0)'); self.vm={}; self.vm['x8']=0
        self.ln8(oct=3, clears=False)
        I('s_add_u32 s3, s3, 28'); I('s_cmp_lt_u32 s3, 256'); I(f's_cbranch_scc1 {Lp}')
        I('s_waitcnt vmcnt(0)')
        self.label(L); self.restore(snap); self.vm['st0']=min(self.vm.get('st0',0),0)

    def arrive0(self):
        I=self.I
        self.wait(vm=['st0']); I('s_barrier')
        L=self.newlabel('arr')
        I(f's_cmp_lg_u32 s{S_W}, 0'); I(f's_cbranch_scc1 {L}')
        snap=self.snapshot()
        I('s_and_b32 s3, s2, 3'); I('s_lshl_b32 s3, s3, 6'); I('v_mov_b32 v8, s3'); I('v_mov_b32 v9, 1')
        self.exec_set(1,0)
        I(f'global_atomic_add v8, v9, {sp(P_DBG)} sc1')
        self.exec_full()
        self.label(L); self.merge(snap)

    def w1_setup(self):
        I=self.I
        self.ring_setup(3584, S_WH)
        I(f's_mul_i32 s{S_WBEG}, s{S_W}, {512*3584}'); I(f's_lshl_b32 s{S_T0}, s{S_FT}, 7'); I(f's_add_u32 s{S_WBEG}, s{S_WBEG}, s{S_T0}')
        I(f's_mov_b32 s{S_WO}, s{S_WBEG}')

    def lam_consts(self):
        I=self.I
        LRE,LIM,LDT=V_IN,V_IN+1,V_IN+2
        t=list(range(16,40))
        self.wait(vm=['lam'])
        for r in (LRE,LIM,LDT): I(f'v_lshlrev_b32 v{r}, 16, v{r}')
        I(f'v_mul_f32 v{LDT}, 0x3fb8aa3b, v{LDT}'); I(f'v_exp_f32 v{LDT}, v{LDT}')
        self.rnd_bf16(LDT)
        I(f'v_mul_f32 v16, v{LDT}, v{LRE}'); I(f'v_mul_f32 v17, v{LDT}, v{LIM}')
        I('v_mul_f32 v16, 0x3fb8aa3b, v16'); I('v_mul_f32 v17, 0.15915494, v17')
        I('v_exp_f32 v16, v16'); I('v_fract_f32 v17, v17')
        I('v_cos_f32 v18, v17'); I('v_sin_f32 v19, v17')
        I(f'v_mul_f32 v{V_LR}, v16, v18'); I(f'v_mul_f32 v{V_LI}, v16, v19')
        I(f'v_add_f32 v16, -1.0, v{V_LR}')
        I(f'v_mul_f32 v17, v{LRE}, v{LRE}'); I(f'v_fma_f32 v17, v{LIM}, v{LIM}, v17'); I('v_rcp_f32 v17, v17')
        I(f'v_mul_f32 v18, v16, v{LRE}'); I(f'v_fma_f32 v18, v{V_LI}, v{LIM}, v18')
        I(f'v_mul_f32 v19, v16, v{LIM}'); I(f'v_fma_f32 v19, v{V_LI}, v{LRE}, -v19')
        I('v_add_f32 v17, v17, v17')
        I(f'v_mul_f32 v{V_K1}, v18, v17'); I(f'v_mul_f32 v{V_K2}, v19, v17'); I(f'v_sub_f32 v{V_K2}, 0, v{V_K2}')
        self.csq(16,17,V_LR,V_LI,30); self.csq(18,19,16,17,30); self.csq(16,17,18,19,30); self.csq(20,21,16,17,30)
        self.csq(22,23,20,21,30)
        self.cmul(24,25,22,23,20,21,30,31)
        self.csq(V_L64R,V_L64I,22,23,30)
        self.csq(16,17,V_L64R,V_L64I,30); self.csq(18,19,16,17,30); self.csq(V_L512R,V_L512I,18,19,30)
        I(f'v_mov_b32 v{V_PR}, 1.0'); I(f'v_mov_b32 v{V_PI}, 0')
        for (lo,hi,r) in (('0xffff0000','-1',20),('0','-1',22),('0','0xffff0000',24)):
            self.exec_set(lo,hi); I(f'v_mov_b32 v{V_PR}, v{r}'); I(f'v_mov_b32 v{V_PI}, v{r+1}')
        self.exec_full()
        I(f'v_mov_b32 v{V_IN}, v20'); I(f'v_mov_b32 v{V_IN+1}, v21')

    def x_addr(self):
        I=self.I
        I(f'v_and_b32 v7, 15, v{V_LANE}'); I('v_lshrrev_b32 v8, 2, v7'); I('v_lshlrev_b32 v8, 4, v8')
        I('v_and_b32 v9, 3, v7'); I('v_add_u32 v8, v8, v9'); I('v_mul_u32_u24 v8, 896, v8')
        I(f'v_lshrrev_b32 v9, 4, v{V_LANE}'); I('v_lshrrev_b32 v7, 1, v7'); I('v_xor_b32 v9, v9, v7'); I('v_lshlrev_b32 v9, 4, v9')
        I('v_add_u32 v14, v8, v9'); I('v_xor_b32 v15, 64, v14')
    def ln64(self):
        I=self.I
        D=list(range(V_X64,V_X64+56)); SUM,SSQ,S2,Q2=24,25,26,27; R,C=28,30; TM=[32,34,36,38]
        I(f's_mul_i32 s{S_T0}, s{S_W}, 3584'); I(f'v_add_u32 v22, s{S_T0}, v14'); I(f'v_add_u32 v23, s{S_T0}, v15')
        self.allow_bread=True
        while self.nx<16: self.tick()
        if self.opt.w1touch!='W': self.wait(vm=['x64'])
        for j in range(14):
            I(f'ds_read_b128 {vr(V_X64+4*j,4)}, v{22+(j&1)} offset:{LDS_X+(j>>1)*128}', tag=('xr',j))
        accs=[SUM,SSQ,S2,Q2]
        for n,d in enumerate(D):
            if n%4==0: self.wait(lg=[('xr',n//4)])
            sa,qa = accs[2*(n&1)], accs[2*(n&1)+1]
            if n<2:
                I(f'v_dot2_f32_bf16 v{sa}, v{d}, s{S_ONES}, 0'); I(f'v_dot2_f32_bf16 v{qa}, v{d}, v{d}, 0')
            else:
                I(f'v_dot2_f32_bf16 v{sa}, v{d}, s{S_ONES}, v{sa}'); I(f'v_dot2_f32_bf16 v{qa}, v{d}, v{d}, v{qa}')
        I(f'v_add_f32 v{SUM}, v{SUM}, v{S2}'); I(f'v_add_f32 v{SSQ}, v{SSQ}, v{Q2}')
        for sw in ('16','32'):
            I(f'v_mov_b32 v{S2}, v{SUM}'); I(f'v_mov_b32 v{Q2}, v{SSQ}')
            I(f'v_permlane{sw}_swap_b32 v{SUM}, v{S2}'); I(f'v_permlane{sw}_swap_b32 v{SSQ}, v{Q2}')
            I(f'v_add_f32 v{SUM}, v{SUM}, v{S2}'); I(f'v_add_f32 v{SSQ}, v{SSQ}, v{Q2}')
        self.stamp('dots',fine=True)
        self.ln_stats(SUM,SSQ,R,C,None)
        self.allow_bread=True
        def h(n):
            I(f'ds_write_b128 v{22+(n&1)}, {vr(V_X64+4*n,4)} offset:{LDS_X+(n>>1)*128}', tag='xw')
        self.normalize(D,R,C,TM,hook=h)

    def row_stats(self):
        I=self.I
        D=list(range(V_X64,V_X64+56)); SUM,SSQ,S2,Q2=24,25,26,27; R,C=28,30
        I(f's_mul_i32 s{S_T0}, s{S_W}, 3584'); I(f'v_add_u32 v22, s{S_T0}, v14'); I(f'v_add_u32 v23, s{S_T0}, v15')
        for j in range(14):
            I(f'ds_read_b128 {vr(V_X64+4*j,4)}, v{22+(j&1)} offset:{LDS_X+(j>>1)*128}', tag=('xr',j))
        accs=[SUM,SSQ,S2,Q2]
        for n,d in enumerate(D):
            if n%4==0: self.wait(lg=[('xr',n//4)])
            sa,qa = accs[2*(n&1)], accs[2*(n&1)+1]
            if n<2:
                I(f'v_dot2_f32_bf16 v{sa}, v{d}, s{S_ONES}, 0'); I(f'v_dot2_f32_bf16 v{qa}, v{d}, v{d}, 0')
            else:
                I(f'v_dot2_f32_bf16 v{sa}, v{d}, s{S_ONES}, v{sa}'); I(f'v_dot2_f32_bf16 v{qa}, v{d}, v{d}, v{qa}')
        I(f'v_add_f32 v{SUM}, v{SUM}, v{S2}'); I(f'v_add_f32 v{SSQ}, v{SSQ}, v{Q2}')
        for sw in ('16','32'):
            I(f'v_mov_b32 v{S2}, v{SUM}'); I(f'v_mov_b32 v{Q2}, v{SSQ}')
            I(f'v_permlane{sw}_swap_b32 v{SUM}, v{S2}'); I(f'v_permlane{sw}_swap_b32 v{SSQ}, v{Q2}')
            I(f'v_add_f32 v{SUM}, v{SUM}, v{S2}'); I(f'v_add_f32 v{SSQ}, v{SSQ}, v{Q2}')
        self.ln_stats(SUM,SSQ,R,C,None)
        I(f'v_and_b32 v8, 15, v{V_LANE}'); I('v_lshlrev_b32 v8, 2, v8'); I(f's_add_u32 s{S_T0}, s{S_YB}, 24576'); I(f'v_add_u32 v8, s{S_T0}, v8')
        self.exec_set('0xffff','0')
        I(f'ds_write_b32 v8, v{SUM}', tag='stw'); I(f'ds_write_b32 v8, v{R} offset:64', tag='stw')
        self.exec_full()
    def stat_reads(self):
        I=self.I
        self.wait(lg=['stw']); I('s_barrier')
        I(f'v_lshrrev_b32 v8, 4, v{V_LANE}'); I('v_lshlrev_b32 v8, 4, v8'); I(f'v_add_u32 v8, {LDS_Y+24576}, v8'); I(f'v_add_u32 v9, {2*YW}, v8')
        for i in range(4):
            I(f'ds_read_b128 {vr(16+4*i,4)}, v{8+(i>>1)} offset:{(i&1)*YW}', tag='stat')
            I(f'ds_read_b128 {vr(88+4*i,4)}, v{8+(i>>1)} offset:{(i&1)*YW+64}', tag='stat')
    def bu_gemm(self):
        I=self.I
        BUF=[V_X64, V_X64+16]
        for r in range(4): I(f'v_mov_b32 v{36+r}, s{S_ONES}')
        def rd(j):
            for i in range(4):
                I(f'ds_read_b128 {vr(BUF[j%2]+4*i,4)}, v{14+(j&1)} offset:{LDS_X+i*3584+(j>>1)*128}', tag=('xa',j))
        rd(0); rd(1)
        bup=self.auto
        for j in range(14):
            self.auto = bup if j>=self.opt.bupj else 0
            self.wait(lg=[('xa',j)])
            for im in range(2):
                d=104+4*im
                I(f'v_mfma_f32_16x16x32_bf16 {vr(d,4)}, v[36:39], {vr(V_BF+56*im+4*j,4)}, {vr(d,4) if j else 0}')
            for i in range(4):
                for im in range(2):
                    d=V_RAW+16*im+4*i
                    cin = vr(d,4) if j else '0'
                    I(f'v_mfma_f32_16x16x32_bf16 {vr(d,4)}, {vr(BUF[j%2]+4*i,4)}, {vr(V_BF+56*im+4*j,4)}, {cin}')
            if j+2<14: rd(j+2)
            if j==12:
                sv=self.auto; self.auto=0
                self.stat_reads(); self.auto=sv
    def stat_loads(self):
        I=self.I
        I(f'v_lshrrev_b32 v8, 4, v{V_LANE}'); I('v_lshlrev_b32 v8, 6, v8')
        I(f's_lshl_b32 s{S_T0}, s{S_C}, 8'); I(f's_add_u32 s{S_T0}, s{S_T0}, {WS_STAT}'); I(f's_add_u32 s{S_T1}, s{S_T0}, 8192')
        for n in range(4):
            I(f'buffer_load_dwordx4 {vr(16+4*n,4)}, v8, {srd(SRD_WS)}, s{S_T0} offen offset:{16*n} sc1', tag='stat')
            I(f'buffer_load_dwordx4 {vr(88+4*n,4)}, v8, {srd(SRD_WS)}, s{S_T1} offen offset:{16*n} sc1', tag='stat')
    def x_resid_reads(self):
        I=self.I
        I(f'v_and_b32 v8, 15, v{V_LANE}'); I(f'v_lshrrev_b32 v9, 4, v{V_LANE}')
        I('v_lshrrev_b32 v10, 1, v9'); I('v_bfe_u32 v11, v8, 1, 1'); I('v_xor_b32 v10, v10, v11')
        I(f's_xor_b32 s{S_T0}, s{S_WH}, s{S_WL}'); I(f's_lshl_b32 s{S_T0}, s{S_T0}, 2'); I(f'v_xor_b32 v10, s{S_T0}, v10')
        I('v_lshlrev_b32 v10, 4, v10'); I('v_and_b32 v9, 1, v9'); I('v_lshlrev_b32 v9, 3, v9'); I('v_add_u32 v10, v10, v9')
        I(f's_lshl_b32 s{S_T0}, s{S_WL}, 5'); I(f'v_add_u32 v8, s{S_T0}, v8'); I('v_mul_u32_u24 v8, 896, v8'); I('v_add_u32 v8, v8, v10')
        I(f's_lshl_b32 s{S_T0}, s{S_G}, 7'); I(f'v_add_u32 v8, s{S_T0}, v8'); I('v_xor_b32 v9, 32, v8')
        for y in range(2):
            for x in range(2):
                I(f'ds_read_b64 {vr(V_XR+4*y+2*x,2)}, v{8+(x^y)} offset:{LDS_X+y*14336}', tag='xres')
    def ln_fix(self):
        I=self.I
        self.wait(lg=['stat'])
        for im in range(2):
            sb=104+4*im
            for t in range(0,16,2):
                r=V_RAW+16*im+t
                I(f'v_pk_fma_f32 v[{r}:{r+1}], v[{16+t}:{17+t}], v[{sb}:{sb+1}], v[{r}:{r+1}] neg_lo:[1,0,0] neg_hi:[1,0,0]')
            for t in range(0,16,2):
                r=V_RAW+16*im+t
                I(f'v_pk_mul_f32 v[{r}:{r+1}], v[{r}:{r+1}], v[{88+t}:{89+t}]')

    def scan1(self):
        I=self.I
        ER,EI,T0,T1=16,17,18,19
        L16R,L16I=V_IN,V_IN+1
        I(f'v_mov_b32 v{ER}, v{V_RAW}'); I(f'v_mov_b32 v{EI}, v{V_RAW+16}')
        for t in range(1,16):
            I(f'v_fma_f32 v{T0}, v{V_LR}, v{ER}, v{V_RAW+t}')
            I(f'v_fma_f32 v{T1}, v{V_LR}, v{EI}, v{V_RAW+16+t}')
            I(f'v_fma_f32 v{T0}, -v{V_LI}, v{EI}, v{T0}')
            I(f'v_fma_f32 v{EI}, v{V_LI}, v{ER}, v{T1}')
            ER,T0=T0,ER
        GR=[20,21,22,23]; GI=[24,25,26,27]
        self.allgather_q(ER,*GR); self.allgather_q(EI,*GI)
        for q in range(1,4):
            self.cfma(GR[q],GI[q],L16R,L16I,GR[q-1],GI[q-1],GR[q],GI[q],28,29)
        I(f'v_mov_b32 v{V_SR}, 0'); I(f'v_mov_b32 v{V_SI}, 0')
        for n,(lo,hi) in enumerate((('0xffff0000','-1'),('0','-1'),('0','0xffff0000'))):
            self.exec_set(lo,hi); I(f'v_mov_b32 v{V_SR}, v{GR[n]}'); I(f'v_mov_b32 v{V_SI}, v{GI[n]}')
        self.exec_full()
        I(f'v_mov_b32 v10, v{GR[3]}'); I(f'v_mov_b32 v11, v{GI[3]}')
        I(f'v_lshlrev_b32 v8, 3, v{V_LANE}')
        I(f's_lshl_b32 s{S_T0}, s{S_G}, 5'); I(f's_add_u32 s{S_T0}, s{S_T0}, s{S_C}'); I(f's_lshl_b32 s{S_T0}, s{S_T0}, 9')
        I(f's_lshl_b32 s{S_T1}, s{S_W}, 7'); I(f's_add_u32 s{S_T0}, s{S_T0}, s{S_T1}'); I(f's_add_u32 s{S_T0}, s{S_T0}, {WS_E}')
        self.exec_set('0xffff',0)
        I(f'buffer_store_dwordx2 v[10:11], v8, {srd(SRD_WS)}, s{S_T0} offen sc1', tag='stE')
        self.exec_full()

    def wait_e0(self):
        I=self.I
        L=self.newlabel('e0'); D=self.newlabel('e0d')
        self.wait(vm=['e0c'])
        I('v_cmp_gt_u32 vcc, 64, v34'); I(f's_cbranch_vccz {D}')
        snap=self.snapshot()
        I(f's_mov_b32 s{S_BOUND}, 0x40000')
        self.label(L)
        I(f'global_load_dword v34, v35, {sp(P_DBG)} sc1'); I('s_waitcnt vmcnt(0)')
        I('v_cmp_gt_u32 vcc, 64, v34'); I(f's_cbranch_vccz {D}')
        I('s_sleep 4'); I(f's_sub_u32 s{S_BOUND}, s{S_BOUND}, 1'); I(f's_cbranch_scc0 {L}')
        self.label(D); self.restore(snap)

    def gemm1(self):
        I=self.I
        SL=[V_RING+16*i for i in range(6)]
        DEP=len(SL)
        I(f's_mul_i32 s22, s{S_DT1}, 262144'); I(f's_lshl_b32 s{S_T0}, s{S_W}, 16'); I(f's_add_u32 s22, s22, s{S_T0}')
        I(f's_lshl_b32 s{S_T0}, s{S_WL}, 11'); I(f's_xor_b32 s{S_T1}, s{S_T0}, 2048')
        I(f's_add_u32 s23, s22, s{S_T1}'); I(f's_add_u32 s22, s22, s{S_T0}')
        I(f's_mov_b32 s{S_A}, s22'); I(f's_mov_b32 s{S_B}, s23')
        def ld(k,y):
            r=SL[k%DEP]
            sx=S_A if y<2 else S_B
            I(f'buffer_load_dwordx4 {vr(r+4*y,4)}, v{V_L16}, {srd(SRD_WS)}, s{sx} offen offset:{(y&1)*1024} sc1', tag=('ht',k,y))
            if (y&1) and k<15: I(f's_add_u32 s{sx}, s{sx}, 4096')
        pro=[(k,y) for k in range(DEP) for y in range(4)]
        while pro:
            ld(*pro.pop(0))
            if self.R['iss']<self.R['n']: self.ring_tick()
        self.ring_finish(); self.wait(lg='all')
        self.stamp('w1 in regs')
        self.w2_setup(); self.R['maxrd']=0
        for k in range(16):
            r=SL[k%DEP]
            for y in range(4):
                self.wait(vm=[('ht',k,y)])
                if y==0: self.stamp(f'g1.{k}',fine=3)
                for x in range(4):
                    d=V_ACC+16*x+4*y
                    cin=vr(d,4) if k else '0'
                    I(f'v_mfma_f32_16x16x32_bf16 {vr(d,4)}, {ar(16*k+4*x,4)}, {vr(r+4*y,4)}, {cin}')
                if k+DEP<16: ld(k+DEP,y)
                else:
                    self.R['maxrd']=k
                    self.tick()
        self.R['maxrd']=99
        self.stamp('g1loop')

    def p2_flag_addr(self):
        I=self.I
        I(f's_mul_i32 s{S_T0}, s{S_W}, 7'); I(f's_lshr_b32 s{S_T1}, s{S_T0}, 2')
        I(f's_mul_i32 s{S_T2}, s{S_C}, 7'); I(f's_add_u32 s{S_T2}, s{S_T2}, s{S_T1}')
        I(f's_add_u32 s{S_T3}, s{S_T0}, 6'); I(f's_lshr_b32 s{S_T3}, s{S_T3}, 2'); I(f's_sub_u32 s{S_T3}, s{S_T3}, s{S_T1}')
        I(f'v_min_u32 v14, s{S_T3}, v{V_LANE}'); I(f'v_add_u32 v14, s{S_T2}, v14'); I('v_lshlrev_b32 v14, 6, v14')
        I(f'v_add_u32 v14, {WS_FH}, v14')
        I(f'v_min_u32 v8, 13, v{V_LANE}'); I('v_lshlrev_b32 v9, 6, v8')
        I(f's_mul_i32 s{S_T1}, s{S_G}, 28'); I(f's_add_u32 s{S_T1}, s{S_T1}, s{S_T0}'); I(f's_lshl_b32 s{S_T1}, s{S_T1}, 6'); I(f's_add_u32 s{S_T1}, s{S_T1}, {WS_FG}')
        I(f's_lshl_b32 s{S_T0}, s{S_T0}, 6'); I(f's_add_u32 s{S_T0}, s{S_T0}, {WS_FC-7*64}')
        I(f'v_mov_b32 v10, s{S_T1}'); I(f'v_mov_b32 v11, s{S_T0}'); I('v_cmp_gt_u32 vcc, 7, v8'); I('v_cndmask_b32 v10, v11, v10, vcc')
        I('v_add_u32 v12, v9, v10')

    def e_addr(self):
        I=self.I
        OF=V_EOF
        I(f's_lshl_b32 s{S_T0}, s{S_G}, 14'); I(f's_add_u32 s{S_T0}, s{S_T0}, {WS_E}')
        I(f's_add_u32 s{SRD_1}, s{P_WS}, s{S_T0}'); I(f's_addc_u32 s{SRD_1+1}, s{P_WS+1}, 0')
        I(f's_and_b32 s{SRD_1+1}, s{SRD_1+1}, 0xffff'); I(f's_mov_b32 s{SRD_1+2}, 16384'); I(f's_mov_b32 s{SRD_1+3}, 0x20000')
        I(f'v_lshrrev_b32 v8, 4, v{V_LANE}'); I('v_lshlrev_b32 v8, 12, v8')
        I(f'v_and_b32 v9, 15, v{V_LANE}'); I('v_lshlrev_b32 v9, 3, v9'); I('v_add_u32 v8, v8, v9')
        I(f's_sub_u32 s{S_T0}, s{S_C}, 32'); I(f's_lshl_b32 s{S_T0}, s{S_T0}, 9'); I(f's_lshl_b32 s{S_T1}, s{S_W}, 7')
        I(f's_add_u32 s{S_T0}, s{S_T0}, s{S_T1}'); I(f'v_add_u32 v8, s{S_T0}, v8')
        for i in range(8): I(f'v_add_u32 v{OF+i}, {512*i}, v8')
    def e_loads(self):
        for i in range(8):
            self.I(f'buffer_load_dwordx2 {vr(V_EL+2*i,2)}, v{V_EOF+i}, {srd(SRD_1)}, 0 offen sc1', tag='E')

    def finalize(self):
        I=self.I
        EL=V_EL
        L=self.newlabel('pollE'); Dn=self.newlabel('pollEd')
        sv=self.auto; self.auto=0
        self.wait(vm=['E'])
        I(f's_mov_b32 s{S_BOUND}, 0x40000')
        self.label(L)
        I(f'v_max3_u32 v8, v{EL}, v{EL+1}, v{EL+2}')
        for i in range(3,15,2): I(f'v_max3_u32 v8, v8, v{EL+i}, v{EL+i+1}')
        I(f'v_max_u32 v8, v8, v{EL+15}')
        I('v_cmp_eq_u32 vcc, -1, v8')
        I(f's_cbranch_vccz {Dn}')
        snap=self.snapshot()
        self.e_loads()
        I('s_waitcnt vmcnt(0)')
        I('s_sleep 4'); I(f's_sub_u32 s{S_BOUND}, s{S_BOUND}, 1'); I(f's_cbranch_scc0 {L}')
        self.label(Dn); self.restore(snap)
        self.auto=sv
        yield
        QR,QI=EL,EL+1
        for i in range(1,8):
            self.cfma(QR,QI,V_L64R,V_L64I,QR,QI,EL+2*i,EL+2*i+1,36,37)
            yield
        GR=[20,21,22,23]; GI=[24,25,26,27]
        self.allgather_q(QR,*GR); yield
        self.allgather_q(QI,*GI); yield
        for q in range(1,4):
            self.cfma(GR[q],GI[q],V_L512R,V_L512I,GR[q-1],GI[q-1],GR[q],GI[q],28,29)
            yield
        self.cfma(V_SR,V_SI,V_PR,V_PI,GR[3],GI[3],V_SR,V_SI,28,29)
        yield
        HR,HI,T0,T1=V_SR,V_SI,36,37
        OR,OI=V_RAW,V_RAW+16
        for t in range(16):
            I(f'v_fma_f32 v{T0}, v{V_LR}, v{HR}, v{OR+t}')
            I(f'v_fma_f32 v{T1}, v{V_LR}, v{HI}, v{OI+t}')
            I(f'v_fma_f32 v{T0}, -v{V_LI}, v{HI}, v{T0}')
            I(f'v_fma_f32 v{HI}, v{V_LI}, v{HR}, v{T1}')
            HR,T0=T0,HR
            yield
            I(f'v_mul_f32 v{OR+t}, v{V_K1}, v{HR}'); I(f'v_mul_f32 v{OI+t}, v{V_K2}, v{HR}')
            I(f'v_fma_f32 v{OR+t}, v{V_K2}, v{HI}, v{OR+t}'); I(f'v_fma_f32 v{OI+t}, -v{V_K1}, v{HI}, v{OI+t}')
            yield
        for t in range(8):
            I(f'v_cvt_pk_bf16_f32 v{OR+t}, v{OR+2*t}, v{OR+2*t+1}'); I(f'v_cvt_pk_bf16_f32 v{OI+t}, v{OI+2*t}, v{OI+2*t+1}')
            if t%2: yield
        I(f'v_and_b32 v8, 15, v{V_LANE}'); I(f's_lshl_b32 s{S_T0}, s{S_WL}, 4'); I(f'v_add_u32 v8, s{S_T0}, v8')
        I('v_lshrrev_b32 v9, 3, v8'); I('v_lshlrev_b32 v9, 2, v9')
        yield
        I('v_and_b32 v10, 3, v8'); I('v_add_u32 v9, v9, v10')
        I('v_bfe_u32 v10, v8, 2, 1'); I('v_lshlrev_b32 v11, 4, v10'); I('v_add_u32 v9, v9, v11')
        yield
        I('v_and_b32 v11, 7, v9'); I('v_lshlrev_b32 v10, 2, v10'); I('v_xor_b32 v11, v11, v10')
        I(f'v_lshrrev_b32 v10, 4, v{V_LANE}'); I('v_lshlrev_b32 v10, 1, v10')
        yield
        I('v_xor_b32 v10, v10, v11'); I('v_lshlrev_b32 v10, 4, v10')
        I('v_lshlrev_b32 v9, 7, v9'); I('v_add_u32 v9, v9, v10')
        yield
        I(f's_lshl_b32 s{S_T0}, s{S_WH}, 12'); I(f'v_add_u32 v9, s{S_T0}, v9')
        I('v_xor_b32 v10, 16, v9')
        I('s_barrier')
        I(f'ds_write_b128 v9, {vr(OR,4)} offset:{LDS_X}', tag='hw'); I(f'ds_write_b128 v10, {vr(OR+4,4)} offset:{LDS_X}', tag='hw')
        I(f'ds_write_b128 v9, {vr(OI,4)} offset:{LDS_X+8192}', tag='hw'); I(f'ds_write_b128 v10, {vr(OI+4,4)} offset:{LDS_X+8192}', tag='hw')
        yield
        I(f'v_lshrrev_b32 v8, 2, v{V_LANE}'); I('v_and_b32 v9, 7, v8'); I(f'v_bfe_u32 v10, v{V_LANE}, 1, 1')
        I('v_xor_b32 v9, v9, v10'); I('v_lshlrev_b32 v9, 4, v9')
        yield
        I('v_lshlrev_b32 v8, 7, v8'); I('v_add_u32 v8, v8, v9')
        I(f'v_and_b32 v9, 1, v{V_LANE}'); I('v_lshlrev_b32 v9, 3, v9'); I('v_add_u32 v8, v8, v9')
        I(f's_lshl_b32 s{S_T0}, s{S_W}, 12'); I(f'v_add_u32 v8, s{S_T0}, v8')
        yield
        self.wait(lg=['hw']); I('s_barrier')
        FR=16
        for nb in range(4):
            I(f'v_xor_b32 v9, {nb<<5}, v8'); I('v_xor_b32 v10, 64, v9')
            I(f'ds_read_b64_tr_b16 {vr(FR+4*nb,2)}, v9 offset:{LDS_X}', tag=('hp',nb))
            I(f'ds_read_b64_tr_b16 {vr(FR+4*nb+2,2)}, v10 offset:{LDS_X+2048}', tag=('hp',nb))
        I(f's_mul_i32 s{S_T0}, s{S_C}, {28*4096}'); I(f's_lshl_b32 s{S_T1}, s{S_G}, 14'); I(f's_add_u32 s{S_T0}, s{S_T0}, s{S_T1}')
        I(f's_lshl_b32 s{S_T1}, s{S_W}, 12'); I(f's_add_u32 s{S_T0}, s{S_T0}, s{S_T1}'); I(f's_add_u32 s94, s{S_T0}, {WS_HP}')
        yield
        if self.opt.gearly: I(f'global_load_dword v53, v12, {sp(P_WS)} sc1', tag='fg')
        for nb in range(4):
            self.wait(lg=[('hp',nb)])
            I(f'buffer_store_dwordx4 {vr(FR+4*nb,4)}, v{V_L16}, {srd(SRD_WS)}, s94 offen offset:{nb*1024} sc1', tag='stH')
            yield

    def flag_set(self, sa, mul, sb, base):
        I=self.I
        L=self.newlabel('flag')
        I(f's_cmp_lg_u32 s{S_W}, 0'); I(f's_cbranch_scc1 {L}')
        snap=self.snapshot()
        I(f's_mul_i32 s{S_T0}, s{sa}, {mul}'); I(f's_add_u32 s{S_T0}, s{S_T0}, s{sb}'); I(f's_lshl_b32 s{S_T0}, s{S_T0}, 6')
        I(f's_add_u32 s{S_T0}, s{S_T0}, {base}')
        I('v_mov_b32 v8, 0'); I('v_mov_b32 v9, 1')
        self.exec_set(1,0)
        I(f'buffer_store_dword v9, v8, {srd(SRD_WS)}, s{S_T0} offen sc1')
        self.exec_full()
        self.label(L); self.merge(snap)

    def g_bias_load(self):
        I=self.I
        I(f'v_lshrrev_b32 v8, 4, v{V_LANE}'); I('v_lshlrev_b32 v8, 3, v8')
        I(f's_lshl_b32 s{S_T0}, s{S_FT}, 7'); I(f's_lshl_b32 s{S_T1}, s{S_WH}, 6'); I(f's_add_u32 s{S_T0}, s{S_T0}, s{S_T1}')
        I(f'v_add_u32 v8, s{S_T0}, v8')
        I(f'global_load_dwordx2 v[32:33], v8, {sp(P_B1)}', tag='b1')
        I(f'global_load_dwordx2 v[34:35], v8, {sp(P_B1)} offset:32', tag='b1')

    def g_epilogue(self):
        I=self.I
        self.auto=self.opt.gepip
        self.reduce(V_RING)
        self.wait(vm=['b1'])
        for x in range(2):
            for h in range(2):
                I(f'v_lshlrev_b32 v{16+4*x+2*h}, 16, v{32+2*x+h}'); I(f'v_and_b32 v{17+4*x+2*h}, s{S_MASK}, v{32+2*x+h}')
        C1=-2.0*0.7978845608028654*1.4426950408889634
        C3=C1*0.044715
        import struct
        f2h=lambda f:'0x%08x'%struct.unpack('<I',struct.pack('<f',f))[0]
        I(f's_mov_b32 s{S_T2}, {f2h(C1)}'); I(f's_mov_b32 s{S_T3}, {f2h(C3)}')
        I(f'v_mov_b32 v31, s{S_T2}')
        U=[]
        for x in range(2):
            for y in range(2):
                for r in range(4):
                    U.append((V_ACC+16*x+4*y+r, 16+4*x+r))
        TT=V_RING
        for n,(u,b) in enumerate(U): I(f'v_add_f32 v{u}, v{u}, v{b}')
        for n,(u,b) in enumerate(U): I(f'v_mul_f32 v{TT+n}, v{u}, v{u}')
        for n,(u,b) in enumerate(U): I(f'v_fma_f32 v{TT+n}, v{TT+n}, s{S_T3}, v31')
        for n,(u,b) in enumerate(U): I(f'v_mul_f32 v{TT+n}, v{TT+n}, v{u}')
        for n,(u,b) in enumerate(U): I(f'v_exp_f32 v{TT+n}, v{TT+n}')
        for n,(u,b) in enumerate(U): I(f'v_add_f32 v{TT+n}, 1.0, v{TT+n}')
        for n,(u,b) in enumerate(U): I(f'v_rcp_f32 v{TT+n}, v{TT+n}')
        for n,(u,b) in enumerate(U): I(f'v_mul_f32 v{u}, v{u}, v{TT+n}')
        F=V_RING+16
        for y in range(2):
            for x in range(2):
                a=V_ACC+16*x+4*y
                I(f'v_cvt_pk_bf16_f32 v{F+4*y+2*x}, v{a}, v{a+1}'); I(f'v_cvt_pk_bf16_f32 v{F+4*y+2*x+1}, v{a+2}, v{a+3}')
        I(f's_mul_i32 s{S_T0}, s{S_DT1}, {56*4096}'); I(f's_lshl_b32 s{S_T1}, s{S_FT}, 13'); I(f's_add_u32 s{S_T0}, s{S_T0}, s{S_T1}')
        I(f's_lshl_b32 s{S_T1}, s{S_WH}, 12'); I(f's_add_u32 s{S_T0}, s{S_T0}, s{S_T1}')
        I(f's_lshl_b32 s{S_T1}, s{S_WL}, 11'); I(f's_add_u32 s{S_T0}, s{S_T0}, s{S_T1}'); I(f's_add_u32 s{S_T0}, s{S_T0}, {WS_GT}')
        for y in range(2):
            I(f'buffer_store_dwordx4 {vr(F+4*y,4)}, v{V_L16}, {srd(SRD_WS)}, s{S_T0} offen offset:{y*1024} sc1', tag='stG')
        self.auto=0
        self.e_addr(); self.e_loads()
        self.p2_flag_addr(); self.p2_bases()
        I(f'global_load_dword v54, v12, {sp(P_WS)} sc1', tag='fc')
        for n in range(self.opt.gwait): self.tick()
        self.wait(vm=['stG']); I('s_barrier')
        self.flag_set(S_DT1,28,S_FT,WS_FG)

    def w2_setup(self):
        I=self.I
        self.make_srd(SRD_W, P_W2, 1792*4096)
        self.ring_setup(4096, S_WL)
        I(f's_mul_i32 s{S_WBEG}, s{S_W}, {448*4096}'); I(f's_lshl_b32 s{S_T0}, s{S_C}, 7'); I(f's_add_u32 s{S_WBEG}, s{S_WBEG}, s{S_T0}')
        I(f's_mov_b32 s{S_WO}, s{S_WBEG}')
        self.ring_init('w2',14,4096,range(6))

    def rot_g(self, dst):
        I=self.I
        I(f's_mul_i32 s{dst}, s86, 37'); I(f's_lshr_b32 s{dst}, s{dst}, 8')
        I(f's_mul_i32 s{dst}, s{dst}, {7*self.opt.rot2}'); I(f's_lshr_b32 s{dst}, s{dst}, 1')
    def cpack(self):
        I=self.I
        L=self.newlabel('nocp')
        I(f's_cmp_ge_u32 s{S_E}, 28'); I(f's_cbranch_scc1 {L}')
        I(f's_mov_b32 s{SRD_1+2}, {448*896}'); I(f's_mov_b32 s{SRD_1+3}, 0x20000')
        I(f's_bitcmp1_b32 s{S_E}, 1')
        I(f's_cselect_b32 s{SRD_1}, s{P_CIM}, s{P_CRE}'); I(f's_cselect_b32 s{SRD_1+1}, s{P_CIM+1}, s{P_CRE+1}')
        I(f'v_and_b32 v9, 15, v{V_LANE}'); I('v_mul_u32_u24 v9, 896, v9'); I(f'v_lshrrev_b32 v10, 4, v{V_LANE}')
        I('v_lshlrev_b32 v10, 4, v10'); I('v_add_u32 v10, v9, v10')
        I(f's_lshr_b32 s{S_T0}, s{S_E}, 2'); I(f's_lshl_b32 s{S_T0}, s{S_T0}, 7')
        I(f's_and_b32 s{S_T1}, s{S_E}, 1'); I(f's_lshl_b32 s{S_T1}, s{S_T1}, 6'); I(f's_add_u32 s{S_T0}, s{S_T0}, s{S_T1}')
        I(f's_mul_i32 s{S_T1}, s{S_W}, {16*896}'); I(f's_add_u32 s{S_T0}, s{S_T0}, s{S_T1}')
        for dt in range(7):
            I(f'buffer_load_dwordx4 {vr(56+4*dt,4)}, v10, {srd(SRD_1)}, s{S_T0} offen', tag=('cp',dt))
            if dt<6: I(f's_add_u32 s{S_T0}, s{S_T0}, {64*896}')
        I(f's_lshl_b32 s{S_T0}, s{S_E}, 12'); I(f's_lshl_b32 s{S_T1}, s{S_W}, 10'); I(f's_add_u32 s{S_T0}, s{S_T0}, s{S_T1}')
        I(f's_add_u32 s{S_T0}, s{S_T0}, {WS_CP}')
        for dt in range(7):
            self.wait(vm=[('cp',dt)])
            I(f'buffer_store_dwordx4 {vr(56+4*dt,4)}, v{V_L16}, {srd(SRD_WS)}, s{S_T0} offen sc1', tag='stC')
            if dt<6: I(f's_add_u32 s{S_T0}, s{S_T0}, {28*4096}')
        self.label(L)
    def cpack_flag(self):
        I=self.I
        L=self.newlabel('nocf')
        Lp=self.newlabel('w0poll')
        self.wait(vm='all')
        I(f's_cmp_lg_u32 s{S_W}, 0'); I(f's_cbranch_scc1 {Lp}')
        I(f'v_and_b32 v8, 3, v{V_LANE}'); I('v_lshlrev_b32 v8, 6, v8')
        self.poll('e0e', 8, P_DBG, 64)
        self.label(Lp)
        I('s_barrier')
        I(f's_cmp_ge_u32 s{S_E}, 28'); I(f's_cbranch_scc1 {L}')
        I(f's_mov_b32 s{S_T1}, 0')
        self.flag_set(S_T1,1,S_E,WS_FC)
        self.label(L)

    def p2_resid_loads(self):
        I=self.I
        self.make_srd(SRD_OUT, P_OUT, 2048*1792)
        I(f'v_and_b32 v7, 15, v{V_LANE}'); I(f'v_lshrrev_b32 v8, 4, v{V_LANE}')
        I('v_mul_u32_u24 v9, 896, v7'); I('v_lshlrev_b32 v10, 3, v8'); I('v_add_u32 v9, v9, v10')
        I(f's_lshl_b32 s{S_T0}, s{S_C}, 6'); I(f's_lshl_b32 s{S_T1}, s{S_WL}, 5'); I(f's_add_u32 s{S_T0}, s{S_T0}, s{S_T1}')
        I(f's_lshl_b32 s{S_T1}, s{S_G}, 6'); I(f's_lshl_b32 s{S_T2}, s{S_WH}, 5'); I(f's_add_u32 s{S_T1}, s{S_T1}, s{S_T2}')
        I('v_lshrrev_b32 v9, 2, v7'); I(f'v_mul_u32_u24 v9, {YW}, v9'); I('v_and_b32 v11, 3, v7'); I('v_lshlrev_b32 v11, 2, v11'); I('v_add_u32 v9, v9, v11')
        I(f's_lshl_b32 s{S_T2}, s{S_WL}, 5'); I(f's_add_u32 s{S_T2}, s{S_T2}, {LDS_Y+24576}'); I(f'v_add_u32 v9, s{S_T2}, v9')
        for y in range(2):
            I(f'ds_read_b32 v{24+2*y}, v9 offset:{16*y}', tag='rstat'); I(f'ds_read_b32 v{25+2*y}, v9 offset:{16*y+64}', tag='rstat')
        I(f's_lshl_b32 s{S_T2}, s{S_T1}, 1'); I(f'v_add_u32 v9, s{S_T2}, v10')
        I(f'global_load_dwordx2 v[28:29], v9, {sp(P_DSK)}', tag='res')
        I(f'global_load_dwordx2 v[30:31], v9, {sp(P_DSK)} offset:32', tag='res')
        I(f'v_add_u32 v9, s{S_T0}, v7'); I('v_lshlrev_b32 v9, 1, v9')
        I(f'global_load_ushort v10, v9, {sp(P_B2)}', tag='res')
        I(f'global_load_ushort v38, v9, {sp(P_B2)} offset:32', tag='res')
    def resid_compute(self):
        I=self.I
        self.wait(vm=['res'], lg=['rstat'])
        I('v_lshlrev_b32 v10, 16, v10'); I('v_lshlrev_b32 v38, 16, v38')
        yield
        for x in range(2):
            for h in range(2):
                I(f'v_lshlrev_b32 v{32+2*h}, 16, v{28+2*x+h}'); I(f'v_and_b32 v{33+2*h}, s{S_MASK}, v{28+2*x+h}')
            yield
            for y in range(2):
                xs=V_XR+4*y+2*x; st=24+2*y; b2=10 if y==0 else 38
                for h in range(2):
                    r=240+8*y+4*x+2*h
                    I(f'v_lshlrev_b32 v{r}, 16, v{xs+h}'); I(f'v_and_b32 v{r+1}, s{S_MASK}, v{xs+h}')
                    I(f'v_pk_add_f32 v[36:37], v[{r}:{r+1}], v[{st}:{st+1}] op_sel_hi:[1,0] neg_lo:[0,1] neg_hi:[0,1]')
                    yield
                    I(f'v_pk_mul_f32 v[36:37], v[36:37], v[{st}:{st+1}] op_sel:[0,1] op_sel_hi:[1,1]')
                    I(f'v_pk_add_f32 v[{r}:{r+1}], v[{r}:{r+1}], v[{b2}:{b2+1}] op_sel_hi:[1,0]')
                    I(f'v_pk_fma_f32 v[{r}:{r+1}], v[36:37], v[{32+2*h}:{33+2*h}], v[{r}:{r+1}]')
                    yield

    CREG=[['v16','v20','v24','v28'],['v32','v36','v40','v44'],['v48','v52','v216','v220'],['v224','v228','v232','v236'],
          ['a0','a4','a8','a12'],['a224','a228','a232','a236'],['a240','a244','a248','a252']]
    def creg(self,i,x):
        r=self.CREG[i][x]; n=int(r[1:]); return f'{r[0]}[{n}:{n+3}]'
    def p2_bases(self):
        I=self.I
        I(f's_mul_i32 s90, s{S_G}, {56*4096}'); I(f's_mul_i32 s{S_T0}, s{S_W}, {14*4096}'); I(f's_add_u32 s90, s90, s{S_T0}')
        I(f's_add_u32 s90, s90, {WS_GT}')
        I(f's_lshl_b32 s{S_T1}, s{S_WH}, 11'); I(f's_xor_b32 s{S_T2}, s{S_T1}, 2048')
        I(f's_add_u32 s92, s90, s{S_T2}'); I(f's_add_u32 s90, s90, s{S_T1}')
        I(f's_mul_i32 s22, s{S_G}, {28*4096}'); I(f's_mul_i32 s{S_T0}, s{S_W}, {7*4096}'); I(f's_add_u32 s22, s22, s{S_T0}')
        I(f's_add_u32 s22, s22, {WS_CP}')
        I(f's_add_u32 s23, s22, s{S_T2}'); I(f's_add_u32 s22, s22, s{S_T1}')
        I(f's_mul_i32 s38, s{S_C}, {28*4096}'); I(f's_add_u32 s38, s38, s{S_T0}'); I(f's_add_u32 s38, s38, {WS_HP}')
        I(f's_lshl_b32 s{S_T1}, s{S_WL}, 11'); I(f's_xor_b32 s{S_T2}, s{S_T1}, 2048')
        I(f's_add_u32 s39, s38, s{S_T2}'); I(f's_add_u32 s38, s38, s{S_T1}')
    def q_c(self, steps):
        I=self.I
        def one(i,x):
            def f():
                b=22 if x<2 else 23
                I(f's_add_u32 s91, s{b}, {i*4096}')
                I(f'buffer_load_dwordx4 {self.creg(i,x)}, v{V_L16}, {srd(SRD_WS)}, s91 offen offset:{(x&1)*1024} sc1', tag=('c',i,x))
            return f
        for i in steps:
            for x in range(4): self.q.append(one(i,x))
    def cflag_check(self):
        I=self.I
        L=self.newlabel('cf'); D=self.newlabel('cfd')
        self.wait(vm=['fc'])
        self.exec_set('0x3f80','0')
        I('v_cmp_gt_u32 vcc, 1, v54'); I(f's_cbranch_vccz {D}')
        snap=self.snapshot()
        I(f's_mov_b32 s{S_BOUND}, 0x40000')
        self.label(L)
        I(f'global_load_dword v54, v12, {sp(P_WS)} sc1'); I('s_waitcnt vmcnt(0)')
        I('v_cmp_gt_u32 vcc, 1, v54'); I(f's_cbranch_vccz {D}')
        I('s_sleep 4'); I(f's_sub_u32 s{S_BOUND}, s{S_BOUND}, 1'); I(f's_cbranch_scc0 {L}')
        self.label(D); self.restore(snap)
        self.exec_full()
    def flag_wait(self, vaddr, vdst, tag):
        I=self.I
        L=self.newlabel('fw'); D=self.newlabel('fwd')
        self.wait(vm=[tag])
        I(f'v_cmp_gt_u32 vcc, 1, v{vdst}'); I(f's_cbranch_vccz {D}')
        snap=self.snapshot()
        I(f's_mov_b32 s{S_BOUND}, 0x40000')
        self.label(L)
        I(f'global_load_dword v{vdst}, v{vaddr}, {sp(P_WS)} sc1'); I('s_waitcnt vmcnt(0)')
        I(f'v_cmp_gt_u32 vcc, 1, v{vdst}'); I(f's_cbranch_vccz {D}')
        I('s_sleep 4'); I(f's_sub_u32 s{S_BOUND}, s{S_BOUND}, 1'); I(f's_cbranch_scc0 {L}')
        self.label(D); self.restore(snap)
    def p2_main(self, pre_only=False):
        I=self.I
        NS=6
        g0=self.opt.sfirst
        steps=[('g',k) for k in range(g0)]
        gi,si=g0,0
        while gi<14 or si<7:
            if si<7: steps.append(('s',si)); si+=1
            if gi<14: steps.append(('g',gi)); gi+=1
        groups=[('g',i) if k=='g' else ('h',i) for k,i in steps]
        gidx={g:n for n,g in enumerate(groups)}
        reg=lambda g: V_RING+16*(gidx[g]%NS)
        pend=[(g,x) for g in groups for x in range(4)]
        done=set(); state={}
        if not pre_only and self.opt.gearly: pend,done,state=self.p2state
        def can(g,x):
            n=gidx[g]-NS
            return n<0 or (groups[n],x) in done
        def issue(nmax):
            n=0
            while n<nmax and pend and can(*pend[0]):
                g,x=pend[0]
                if g[0]=='h' and not state.get('hflag'):
                    self.flag_wait(14,11,'fh'); state['hflag']=True
                pend.pop(0)
                b0,b1,nst={'g':(90,92,14),'h':(38,39,7)}[g[0]]
                sx=b0 if x<2 else b1
                I(f'buffer_load_dwordx4 {vr(reg(g)+4*x,4)}, v{V_L16}, {srd(SRD_WS)}, s{sx} offen offset:{(x&1)*1024} sc1', tag=(g,x))
                if (x&1) and g[1]<nst-1: I(f's_add_u32 s{sx}, s{sx}, 4096')
                n+=1
        if pre_only:
            issue(4*NS); self.p2state=(pend,done,state); return
        if not self.opt.gearly: issue(4*NS)
        first=True
        self.q_c([4])
        for pos,(kind,i) in enumerate(steps):
            if kind=='g' and i==3: I(f'global_load_dword v11, v14, {sp(P_WS)} sc1', tag='fh')
            if kind=='s':
                H=('h',i)
                for x in range(4):
                    self.wait(vm=[('c',i,x)]+([(H,y) for y in range(4)] if x==0 else []))
                    if x==0: self.stamp(f'p2.s{i}',fine=2)
                    for y in range(4):
                        d=V_ACC+16*x+4*y
                        I(f'v_mfma_f32_16x16x32_bf16 {vr(d,4)}, {self.creg(i,x)}, {vr(reg(H)+4*y,4)}, {vr(d,4)}')
                    if x<3: issue(1)
                for y in range(4): done.add((H,y))
                issue(2)
            else:
                A=('g',i)
                for x in range(4):
                    self.wait(vm=[(A,x)])
                    if x==0: self.stamp(f'p2.g{i}',fine=2)
                    for y in range(4):
                        d=V_ACC+16*x+4*y
                        cin='0' if first else vr(d,4)
                        I(f'v_mfma_f32_16x16x32_bf16 {vr(d,4)}, {vr(reg(A)+4*x,4)}, {ar(16*i+4*y,4)}, {cin}')
                    done.add((A,x))
                    issue(1)
                    if i==1: self.q.pop(0)()
            first=False
        assert not pend

    def p2_epilogue(self):
        I=self.I
        self.reduce(V_RING)
        for y in range(2):
            for x in range(2):
                a=V_ACC+16*x+4*y; r=240+8*y+4*x
                for h in range(2):
                    I(f'v_pk_add_f32 v[{a+2*h}:{a+2*h+1}], v[{a+2*h}:{a+2*h+1}], v[{r+2*h}:{r+2*h+1}]')
        if self.opt.delta:
            import struct
            hx='0x%08x'%struct.unpack('<I',struct.pack('<f',self.opt.delta))[0]
            for y in range(2):
                for x in range(2):
                    for r in range(4):
                        a=V_ACC+16*x+4*y+r
                        I(f'v_add_f32 v{a}, {hx}, v{a}')
        I(f'v_and_b32 v7, 15, v{V_LANE}'); I(f'v_lshrrev_b32 v8, 4, v{V_LANE}')
        I('v_mul_u32_u24 v9, 1792, v7'); I('v_lshlrev_b32 v10, 4, v8'); I('v_add_u32 v9, v9, v10')
        I(f's_lshl_b32 s{S_T0}, s{S_C}, 6'); I(f's_lshl_b32 s{S_T1}, s{S_WL}, 5'); I(f's_add_u32 s{S_T0}, s{S_T0}, s{S_T1}')
        I(f's_lshl_b32 s{S_T1}, s{S_G}, 6'); I(f's_lshl_b32 s{S_T2}, s{S_WH}, 5'); I(f's_add_u32 s{S_T1}, s{S_T1}, s{S_T2}')
        for y in range(2):
            for x in range(2):
                I(f's_add_u32 s{S_T2}, s{S_T0}, {16*y}'); I(f's_mul_i32 s{S_T2}, s{S_T2}, 1792')
                I(f's_add_u32 s{S_T3}, s{S_T1}, {16*x}'); I(f's_lshl_b32 s{S_T3}, s{S_T3}, 2'); I(f's_add_u32 s{S_T2}, s{S_T2}, s{S_T3}')
                a=V_ACC+16*x+4*y
                I(f'buffer_store_dwordx4 {vr(a,4)}, v9, {srd(SRD_OUT)}, s{S_T2} offen {self.opt.outmod}')

    def write_stamps(self):
        if not self.opt.stamps: return
        I=self.I
        I('s_lshl_b32 s3, s2, 2'); I(f's_add_u32 s3, s3, s{S_W}'); I('s_lshl_b32 s3, s3, 8'); I(f's_add_u32 s3, s3, {WS_DBG}')
        I(f'v_lshlrev_b32 v9, 2, v{V_LANE}')
        I(f'buffer_store_dword v{self.vst}, v9, {srd(SRD_WS)}, s3 offen')
        if getattr(self.opt,'dbgwg',-1)>=0 and self.final_stamps:
            L=self.newlabel('dbgout')
            I(f's_cmp_lg_u32 s2, {self.opt.dbgwg}'); I(f's_cbranch_scc1 {L}')
            I(f's_cmp_lg_u32 s{S_W}, 0'); I(f's_cbranch_scc1 {L}')
            I(f'v_readlane_b32 s3, v{self.vst}, 0'); I('s_nop 4')
            I(f'v_subrev_u32 v8, s3, v{self.vst}')
            I(f'v_add_u32 v9, {self.opt.dbgoff}, v{V_LANE}'); I('v_lshlrev_b32 v9, 2, v9')
            I('ds_bpermute_b32 v8, v9, v8'); I('s_waitcnt lgkmcnt(0)')
            I(f'v_lshlrev_b32 v9, 2, v{V_LANE}')
            self.exec_set('0xfffe','0')
            I(f'global_store_dword v9, v8, {sp(P_DBG)}')
            self.exec_full()
            self.label(L)
    def build(self):
        I=self.I; o=self.opt
        if o.stamps: I('v_mov_b32 v55, 0')
        self.prologue()
        self.touches_pre()
        wt=self.opt.w1touch
        if wt=='A' or self.opt.alsoA: self.touch_w1()
        if self.opt.t3start:
            Lt=self.newlabel('t3s')
            I(f's_cmp_lg_u32 s{S_W}, 3'); I(f's_cbranch_scc1 {Lt}')
            snap=self.snapshot()
            self.touch_w1_wg()
            self.label(Lt); self.merge(snap)
        Lcont=self.newlabel('cont')
        I('s_cmp_eq_u32 s74, 1'); I(f's_cbranch_scc1 {Lcont}')
        snap=self.snapshot()
        self.ln8(clears=False)
        self.vm['st0']=0
        self.arrive0()
        if wt=='F': self.touch_w1()
        if wt in ('S','T','U'): self.touch_w1_split(True)
        self.stamp('pf1')
        if self.opt.eorder==3:
            self.touch_pf(2)
            self.wait(vm='all')
        elif self.opt.eorder==0:
            self.cpack()
            self.stamp('cp')
            self.touch_pf(2)
            self.cpack_flag()
        elif self.opt.eorder==1:
            self.touch_pf(2)
            self.stamp('cp')
            self.cpack()
            self.cpack_flag()
        else:
            self.cpack()
            self.cpack_flag()
            self.stamp('cp')
            self.touch_pf(2)
            self.wait(vm='all')
        self.stamp('pf2')
        self.write_stamps()
        I('s_endpgm')
        self.label(Lcont); self.restore(snap)
        if wt=='T': self.touch_w1_split(False)
        self.dma_setup()
        if wt=='E': self.touch_w1(setup_only=True)
        self.w1_setup()
        if self.opt.bfirst: self.q_b(); self.q_x([0,1,2])
        else: self.q_x([0,1,2]); self.q_b()
        for n in range(self.opt.pre): self.tick()
        self.stamp('issued')
        self.auto=self.opt.period if self.opt.ln8tick else 0
        self.ln8()
        self.auto=0
        if wt=='U': self.touch_w1_split(False)
        self.stamp('ln8 stored')
        if self.opt.bfirst: self.q_x([3])
        else:
            rest=self.q; self.q=[]; self.q_x([3]); self.q+=rest
        self.auto=self.opt.period
        self.x_addr()
        self.lam_consts()
        self.auto=0
        self.stamp('lam')
        self.arrive0()
        self.stamp('arrived')
        self.drain_q()
        if wt=='F': self.touch_w1()
        if wt=='S': self.touch_w1_split(False)
        self.stamp('drained')
        self.wait(vm=['x64','bdma']); I('s_barrier')
        self.do_bread()
        self.auto=self.opt.statp
        self.row_stats()
        self.auto=0
        self.wait(vm=['b13'])
        self.stamp('ln64')
        I(f'v_and_b32 v35, 3, v{V_LANE}'); I('v_lshlrev_b32 v35, 6, v35')
        I(f'global_load_dword v34, v35, {sp(P_DBG)} sc1', tag='e0c')
        self.auto=self.opt.bup
        self.bu_gemm()
        self.stamp('bu',fine=True)
        self.auto=0
        self.x_resid_reads()
        self.auto=self.opt.scanp
        self.ln_fix()
        self.scan1()
        self.auto=0
        self.stamp('scan1')
        self.wait_e0()
        self.stamp('e0')
        Lnog=self.newlabel('nog1'); Lj=self.newlabel('g1join')
        I(f's_cmp_eq_u32 s{S_HASG1}, 0'); I(f's_cbranch_scc1 {Lnog}')
        snap=self.snapshot()
        R1=dict(self.R); R1['free']=list(self.R['free']); R1['slot']=dict(self.R['slot'])
        self.g_bias_load()
        self.gemm1()
        self.stamp('gemm1')
        self.g_epilogue()
        self.stamp('gepi')
        I(f's_branch {Lj}')
        snapA=self.snapshot()
        RA={k:self.R[k] for k in ('iss','rd','rel','piece')}; RA['free']=list(self.R['free']); RA['slot']=dict(self.R['slot'])
        self.label(Lnog); self.restore(snap); self.R=R1
        if self.opt.eorder==3:
            I(f's_lshr_b32 s{S_E}, s95, 1'); I(f's_mul_i32 s{S_E}, s{S_E}, 7'); I(f's_add_u32 s{S_E}, s{S_E}, s86'); I(f's_sub_u32 s{S_E}, s{S_E}, 21')
            self.cpack()
            self.wait(vm=['stC']); I('s_barrier')
            I(f's_mov_b32 s{S_T1}, 0')
            self.flag_set(S_T1,1,S_E,WS_FC)
        self.ring_finish(); self.wait(lg='all')
        self.w2_setup()
        self.replay_ring(RA)
        self.e_addr(); self.e_loads()
        self.p2_flag_addr(); self.p2_bases()
        I(f'global_load_dword v54, v12, {sp(P_WS)} sc1', tag='fc')
        self.label(Lj); self.merge(snapA)
        self.cflag_check()
        self.q_c([5,6])
        self.auto=self.opt.finp
        for _ in self.finalize(): pass
        self.auto=0
        self.stamp('final')
        if o.stamps: I('v_mov_b32 v15, v55'); self.vst=15
        self.drain_q()
        if self.opt.gearly:
            self.flag_wait(12,53,'fg')
            self.stamp('flagG')
            self.p2_main(pre_only=True)
        self.p2_resid_loads()
        for n in range(self.opt.rwait):
            if self.R is not None and not self.ring_tick(): self.ring_finish()
        self.auto=self.opt.finp
        for _ in self.resid_compute(): pass
        self.auto=0
        self.wait(vm=['stH']); I('s_barrier')
        self.flag_set(S_C,7,S_G,WS_FH)
        self.q_c([0,1,2,3])
        while self.q or self.R is not None:
            if self.q:
                self.tick()
                if len(self.q)==self.opt.fglead and not self.opt.gearly: I(f'global_load_dword v11, v12, {sp(P_WS)} sc1', tag='fg')
            if self.R is not None:
                if not self.ring_tick(): self.ring_finish()
        self.wait(lg='all')
        self.stamp('w2 in regs')
        if not self.opt.gearly:
            self.flag_wait(12,11,'fg')
            self.stamp('flagG')
        self.p2_main()
        self.stamp('p2')
        self.p2_epilogue()
        self.stamp('end'); self.cstamp('c1')
        self.final_stamps=True
        self.write_stamps()
        self.label('L_exit')
        I('s_endpgm')
        self.label('L_code_end')

def header(lds):
    return f"""; Fused S5 SSM + MLP-Mixer token MLP, one persistent launch (256 workgroups, one per CU).
; @launch grid=(256,1,1) block=(256,1,1) lds={lds}
.amdgcn_target "amdgcn-amd-amdhsa--gfx950"
.text
.globl {KN}
.p2align 8
.type {KN},@function
{KN}:
"""
def footer():
    return f"""
.section .rodata,"a"
.p2align 6
.amdhsa_kernel {KN}
  .amdhsa_next_free_vgpr 512
  .amdhsa_next_free_sgpr 102
  .amdhsa_accum_offset 256
  .amdhsa_group_segment_fixed_size 0
  .amdhsa_kernarg_size 136
  .amdhsa_user_sgpr_count 2
  .amdhsa_user_sgpr_kernarg_segment_ptr 1
  .amdhsa_system_sgpr_workgroup_id_x 1
  .amdhsa_float_denorm_mode_32 3
.end_amdhsa_kernel
"""
if __name__=='__main__':
    ap=argparse.ArgumentParser()
    ap.add_argument('-o',default='k.s'); ap.add_argument('--stamps',action='store_true'); ap.add_argument('--stop',default=''); ap.add_argument('--fine',type=int,default=0); ap.add_argument('--period',type=int,default=48); ap.add_argument('--bupj',type=int,default=0); ap.add_argument('--scanp',type=int,default=64); ap.add_argument('--pfearly',type=int,default=1); ap.add_argument('--eorder',type=int,default=1); ap.add_argument('--statp',type=int,default=0); ap.add_argument('--gearly',type=int,default=1); ap.add_argument('--delta',type=float,default=0.0); ap.add_argument('--bup',type=int,default=0); ap.add_argument('--statj',type=int,default=9); ap.add_argument('--outmod',default=''); ap.add_argument('--dbgwg',type=int,default=-1); ap.add_argument('--dbgoff',type=int,default=0); ap.add_argument('--arrlead',type=int,default=10); ap.add_argument('--t3start',type=int,default=0); ap.add_argument('--notouch3',type=int,default=0); ap.add_argument('--own3',type=int,default=0); ap.add_argument('--alsoA',type=int,default=0); ap.add_argument('--now2',type=int,default=0); ap.add_argument('--gepip',type=int,default=0); ap.add_argument('--finp',type=int,default=36); ap.add_argument('--sfirst',type=int,default=10); ap.add_argument('--rwait',type=int,default=8); ap.add_argument('--fglead',type=int,default=6); ap.add_argument('--ln64p',type=int,default=48); ap.add_argument('--bfirst',type=int,default=0); ap.add_argument('--w2late',type=int,default=1); ap.add_argument('--rot1',type=int,default=4); ap.add_argument('--rot2',type=int,default=1); ap.add_argument('--rot3',type=int,default=1); ap.add_argument('--ln8tick',type=int,default=0); ap.add_argument('--bdelay',type=int,default=2); ap.add_argument('--w1touch',default='A'); ap.add_argument('--fin0',type=int,default=4); ap.add_argument('--finrate',type=int,default=2); ap.add_argument('--p2rate',type=int,default=3); ap.add_argument('--pre',type=int,default=1); ap.add_argument('--pre1',type=int,default=8); ap.add_argument('--gwait',type=int,default=6); ap.add_argument('--ht_touch',type=int,default=0); ap.add_argument('--g_touch',type=int,default=0)
    o=ap.parse_args()
    k=K(o); k.build()
    t,n=k.text()
    open(o.o,'w').write(header(LDS_TOTAL)+t+footer())
    print('wrote',o.o,'lines',t.count('\n'),'nop states inserted',n)
    if o.stamps: open(o.o+'.names','w').write(','.join(k.stampnames)); print(k.stampnames)
```

```python
import sys, os, argparse
from asmgen import Gen

KN = "parallel_sum__ssm_conv_s5__mixer_token_mlp__prompt_kernel"

WS_HT    = 0x000000
WS_STAT  = 0x1C0000
WS_E     = 0x1C4000
WS_FH    = 0x1E0000
WS_FG    = 0x1E4000
WS_FC    = 0x1E8000
WS_CP    = 0x780000
WS_GT    = 0x200000
WS_HP    = 0x400000
WS_DBG   = 0x900000

LDS_X  = 0
LDS_Y  = 57344
YW     = 26624
SLOT_OFF = [0, 4096, 8192, 12288, 16384, 20480]
LDS_LN8 = LDS_X + 57344 - 7680
LDS_TOTAL = LDS_Y + 4*YW

P_X, P_LRE, P_LIM, P_BRE, P_BIM, P_CRE, P_CIM, P_LDT = 4,6,8,10,12,14,16,18
P_DSK = 20
P_W1, P_B1, P_W2, P_B2 = 24,26,28,30
P_OUT, P_DBG, P_WS = 32,34,36
SRD_X, SRD_WS, SRD_1, SRD_2, SRD_W, SRD_OUT = 40,44,48,52,56,60
S_W, S_WH, S_WL, S_C, S_G, S_DT1, S_FT, S_HASG1 = 64,65,66,67,68,69,70,71
S_MASK, S_ONES = 72, 73
S_A, S_B, S_WO, S_T0, S_T1, S_T2, S_T3, S_BOUND = 76,77,78,79,80,81,82,83
S_YB = 84
S_WBEG, S_WEND = 96, 97
S_KO, S_KEND = 100, 101
S_FI = 3
S_E = 85
def sp(n): return f's[{n}:{n+1}]'
def srd(n): return f's[{n}:{n+3}]'
def vr(a,n): return f'v[{a}:{a+n-1}]' if n>1 else f'v{a}'
def ar(a,n): return f'a[{a}:{a+n-1}]' if n>1 else f'a{a}'

V_LANE, V_L16 = 0, 1
V_TR = 2
V_DMA = [6,13]
V_T = 16
V_LR,V_LI,V_K1,V_K2,V_SR,V_SI,V_PR,V_PI,V_L64R,V_L64I,V_L512R,V_L512I = range(40,52)
V_IN = 52
V_X64 = 56
V_BF = 112
V_RAW = 224
V_ACC = 56
V_RING = 120
V_EL = 16
V_EOF = 200
V_XR = 216

class K(Gen):
    def __init__(self, opt):
        super().__init__(); self.opt=opt; self.nstamp=0
        self.final_stamps=False; self.vst=55; self.nx=0; self.nb=0; self.bread=False; self.allow_bread=False; self.bdelay=opt.bdelay; self.q=[]; self.R=None; self.auto=0; self.acc=0; self.in_tick=False; self.full=True
    def I(self,t,tag=None):
        super().I(t,tag)
        if self.in_tick: return
        mn=t.split()[0]
        if mn.startswith(('buffer_','global_')): self.acc=0; return
        if not self.auto: return
        if mn.startswith('v_mfma'): self.acc+=16
        elif mn.startswith(('v_exp','v_rcp','v_sqrt','v_sin','v_cos','v_log')): self.acc+=8
        elif mn.startswith(('v_','ds_')): self.acc+=4
        else: return
        if self.acc>=self.auto and self.full and not mn.startswith(('v_cmp','s_cmp','s_bitcmp')):
            self.tick()
    def tick(self):
        self.in_tick=True; self.acc=0
        if not self.bread and self.allow_bread and self.nb>=34:
            if self.bdelay>0: self.bdelay-=1
            else:
                self.do_bread(); self.in_tick=False; return
        if self.q: self.q.pop(0)()
        elif self.R is not None: self.ring_tick()
        self.in_tick=False
    def do_bread(self):
        self.bread=True
        self.b_read()
        self.wait(lg=['brd'])
        self.ring_init('w1',16,3584,range(6))
    def drain_q(self):
        while self.q: self.tick()
    def stamp(self, name, fine=False):
        if not self.opt.stamps: return
        if fine and int(fine)>self.opt.fine: return
        i=self.nstamp; self.nstamp+=1
        assert i<64
        self.c(f'stamp {i}: {name}')
        self.wait(lg='all')
        self.I('s_memrealtime s[98:99]'); self.I('s_waitcnt lgkmcnt(0)'); self.smem=False
        self.I(f'v_writelane_b32 v{self.vst}, s98, {i}')
        self.stampnames=getattr(self,'stampnames',[])+[name]
    def cstamp(self, name):
        if not self.opt.stamps: return
        i=self.nstamp; self.nstamp+=1
        self.wait(lg='all')
        self.I('s_memtime s[98:99]'); self.I('s_waitcnt lgkmcnt(0)'); self.smem=False
        self.I(f'v_writelane_b32 v{self.vst}, s98, {i}')
        self.stampnames=getattr(self,'stampnames',[])+['#'+name]
    def rnd_bf16(self, v):
        self.I(f'v_cvt_pk_bf16_f32 v{v}, v{v}, v{v}')
        self.I(f'v_lshlrev_b32 v{v}, 16, v{v}')
    def make_srd(self, s, ptr, nbytes):
        self.I(f's_mov_b32 s{s}, s{ptr}'); self.I(f's_and_b32 s{s+1}, s{ptr+1}, 0xffff')
        self.I(f's_mov_b32 s{s+2}, {nbytes}'); self.I(f's_mov_b32 s{s+3}, 0x20000')
    def ln_stats(self, SUM, SSQ, R, C, T):
        I=self.I
        I(f'v_mul_f32 v{SUM}, 0x3b124925, v{SUM}')
        I(f'v_mul_f32 v{SSQ}, 0x3b124925, v{SSQ}')
        I(f'v_fma_f32 v{SSQ}, -v{SUM}, v{SUM}, v{SSQ}')
        I(f'v_max_f32 v{SSQ}, 0, v{SSQ}')
        I(f'v_cvt_pk_bf16_f32 v{SUM}, v{SUM}, v{SUM}')
        I(f'v_cvt_pk_bf16_f32 v{SSQ}, v{SSQ}, v{SSQ}')
        I(f'v_lshlrev_b32 v{SUM}, 16, v{SUM}')
        I(f'v_lshlrev_b32 v{SSQ}, 16, v{SSQ}')
        I(f'v_add_f32 v{SSQ}, 0x3727c5ac, v{SSQ}')
        self.rnd_bf16(SSQ)
        I(f'v_sqrt_f32 v{SSQ}, v{SSQ}')
        self.rnd_bf16(SSQ)
        I(f'v_rcp_f32 v{R}, v{SSQ}')
        I(f'v_mul_f32 v{C}, v{SUM}, v{R}')
        I(f'v_sub_f32 v{C}, 0, v{C}')
    def dot_sums(self, regs, accs):
        I=self.I
        for n,d in enumerate(regs):
            s,q = accs[2*(n&1)], accs[2*(n&1)+1]
            if n<2:
                I(f'v_dot2_f32_bf16 v{s}, v{d}, s{S_ONES}, 0')
                I(f'v_dot2_f32_bf16 v{q}, v{d}, v{d}, 0')
            else:
                I(f'v_dot2_f32_bf16 v{s}, v{d}, s{S_ONES}, v{s}')
                I(f'v_dot2_f32_bf16 v{q}, v{d}, v{d}, v{q}')
        I(f'v_add_f32 v{accs[0]}, v{accs[0]}, v{accs[2]}')
        I(f'v_add_f32 v{accs[1]}, v{accs[1]}, v{accs[3]}')
    def normalize(self, regs, R, C, tmps, hook=None):
        I=self.I
        n=len(tmps)
        for b in range(0,len(regs),n):
            grp=regs[b:b+n]
            for d,t in zip(grp,tmps):
                I(f'v_lshlrev_b32 v{t}, 16, v{d}')
                I(f'v_and_b32 v{t+1}, s{S_MASK}, v{d}')
            for d,t in zip(grp,tmps):
                I(f'v_pk_fma_f32 v[{t}:{t+1}], v[{t}:{t+1}], v[{R}:{R+1}], v[{C}:{C+1}] op_sel_hi:[1,0,0]')
            for d,t in zip(grp,tmps):
                I(f'v_cvt_pk_bf16_f32 v{d}, v{t}, v{t+1}')
            if hook: hook(b//n)
    def cmul(self, dr, di, xr, xi, yr, yi, t0, t1):
        I=self.I
        I(f'v_mul_f32 v{t0}, v{xi}, v{yi}')
        I(f'v_mul_f32 v{t1}, v{xi}, v{yr}')
        I(f'v_fma_f32 v{t0}, v{xr}, v{yr}, -v{t0}')
        I(f'v_fma_f32 v{di}, v{xr}, v{yi}, v{t1}')
        I(f'v_mov_b32 v{dr}, v{t0}')
    def cfma(self, dr, di, xr, xi, yr, yi, zr, zi, t0, t1):
        I=self.I
        I(f'v_fma_f32 v{t0}, v{xr}, v{yr}, v{zr}')
        I(f'v_fma_f32 v{t1}, v{xr}, v{yi}, v{zi}')
        I(f'v_fma_f32 v{t0}, -v{xi}, v{yi}, v{t0}')
        I(f'v_fma_f32 v{di}, v{xi}, v{yr}, v{t1}')
        I(f'v_mov_b32 v{dr}, v{t0}')
    def csq(self, dr, di, xr, xi, t0):
        I=self.I
        I(f'v_mul_f32 v{t0}, v{xi}, v{xi}')
        I(f'v_mul_f32 v{di}, v{xr}, v{xi}')
        I(f'v_fma_f32 v{dr}, v{xr}, v{xr}, -v{t0}')
        I(f'v_add_f32 v{di}, v{di}, v{di}')
    def allgather_q(self, v, g0, g1, g2, g3):
        I=self.I
        I(f'v_mov_b32 v{g0}, v{v}'); I(f'v_mov_b32 v{g1}, v{v}')
        I(f'v_permlane16_swap_b32 v{g0}, v{g1}')
        I(f'v_mov_b32 v{g2}, v{g0}'); I(f'v_mov_b32 v{g3}, v{g1}')
        I(f'v_permlane32_swap_b32 v{g0}, v{g2}')
        I(f'v_permlane32_swap_b32 v{g1}, v{g3}')
    def exec_full(self): self.I('s_mov_b64 exec, -1'); self.full=True
    def exec_set(self, lo, hi):
        self.full=False
        self.I(f's_mov_b32 exec_lo, {lo}'); self.I(f's_mov_b32 exec_hi, {hi}')
    def poll(self, name, voff, base, cmp_ge, nlanes_lo=None):
        I=self.I
        L=self.newlabel('poll'); D=self.newlabel('polld')
        I(f's_mov_b32 s{S_BOUND}, 0x40000')
        self.label(L)
        I(f'global_load_dword v7, v{voff}, {sp(base)} sc1')
        I('s_waitcnt vmcnt(0)'); self.vm={}
        I(f'v_cmp_gt_u32 vcc, {cmp_ge}, v7')
        I(f's_cbranch_vccz {D}')
        I('s_sleep 4')
        I(f's_sub_u32 s{S_BOUND}, s{S_BOUND}, 1')
        I(f's_cbranch_scc0 {L}')
        self.label(D)

    def ring_setup(self, pitch, xorsel):
        I=self.I
        I(f'v_lshrrev_b32 v7, 3, v{V_LANE}'); I(f'v_and_b32 v8, 7, v{V_LANE}')
        I('v_and_b32 v9, 6, v7'); I('v_xor_b32 v8, v8, v9'); I('v_lshlrev_b32 v8, 4, v8')
        I(f'v_mul_u32_u24 v7, {pitch}, v7'); I(f'v_add_u32 v{V_DMA[0]}, v7, v8')
        I(f'v_add_u32 v{V_DMA[1]}, {8*pitch-1024}, v{V_DMA[0]}')
        I(f'v_lshrrev_b32 v7, 2, v{V_LANE}'); I('v_and_b32 v8, 6, v7')
        I(f'v_bfe_u32 v9, v{V_LANE}, 1, 1'); I('v_xor_b32 v8, v8, v9'); I('v_lshlrev_b32 v8, 4, v8')
        I('v_lshlrev_b32 v7, 7, v7'); I('v_add_u32 v7, v7, v8')
        I(f'v_and_b32 v9, 1, v{V_LANE}'); I('v_lshlrev_b32 v9, 3, v9'); I('v_add_u32 v7, v7, v9')
        I(f's_lshl_b32 s{S_T0}, s{xorsel}, 6')
        I(f'v_xor_b32 v7, s{S_T0}, v7')
        I(f'v_add_u32 v{V_TR}, s{S_YB}, v7')
        for x in range(1,4):
            I(f'v_xor_b32 v{V_TR+x}, {x<<5}, v{V_TR}')
    def ring_init(self, name, nsteps, pitch, slots):
        self.R=dict(name=name,n=nsteps,pitch=pitch,free=list(slots),slot={},iss=0,rd=0,rel=0,piece=0)
    def ring_add(self, slots): self.R['free']+=list(slots)
    def ring_issue_piece(self):
        R=self.R; I=self.I
        k=R['iss']
        if k>=R['n']: return False
        j=R['piece']
        if j==0:
            if not R['free']: return False
            R['slot'][k]=R['free'].pop(0)
        if j%2==0:
            I(f's_add_u32 m0, s{S_YB}, {SLOT_OFF[R["slot"][k]]+j*1024}')
            if k or j: I(f's_add_u32 s{S_WO}, s{S_WO}, {16*R["pitch"]}')
            else: I('s_nop 0')
        I(f'buffer_load_dwordx4 v{V_DMA[j%2]}, {srd(SRD_W)}, s{S_WO} offen offset:{(j%2)*1024} lds', tag=(R['name'],k))
        R['piece']=(j+1)%4
        if R['piece']==0: R['iss']+=1
        return True
    def ring_issue(self):
        while self.ring_issue_piece(): pass
    def ring_read(self):
        R=self.R; I=self.I
        k=R['rd']
        if k>=R['n']: return False
        assert k<R['iss'], 'read before issue'
        off=SLOT_OFF[R['slot'][k]]
        self.wait(vm=[(R['name'],k)])
        for x in range(4):
            b=16*k+4*x
            I(f'ds_read_b64_tr_b16 {ar(b,2)}, v{V_TR+x} offset:{off}', tag=(R['name'],'r',k))
            I(f'ds_read_b64_tr_b16 {ar(b+2,2)}, v{V_TR+x} offset:{off+2048}', tag=(R['name'],'r',k))
        R['rd']+=1
        return True
    def ring_release(self):
        R=self.R
        k=R['rel']
        if k>=R['rd']: return False
        self.wait(lg=[(R['name'],'r',k)])
        R['free'].append(R['slot'][k]); R['rel']+=1
        self.ring_issue()
        return True
    def ring_tick(self):
        R=self.R
        if R['iss']<R['n']:
            if R['piece']==0 and not R['free']:
                if R['rel']>=R['rd']:
                    assert R['rd']<R.get('maxrd',99)
                    self.ring_read()
                k=R['rel']; self.wait(lg=[(R['name'],'r',k)]); R['free'].append(R['slot'][k]); R['rel']+=1
            self.ring_issue_piece()
            if R['piece']==3 and not R['free'] and R['rd']==R['rel'] and R['rd']<R['iss'] and R['rd']<R.get('maxrd',99):
                self.ring_read()
            return True
        if R['rd']<R['n'] and R['rd']<R.get('maxrd',99): return self.ring_read()
        return False
    def bg(self):
        return self.ring_tick()
    def replay_ring(self, RA):
        R=self.R
        while (R['iss'],R['piece'])<(RA['iss'],RA['piece']) or R['rd']<RA['rd']:
            if (R['iss'],R['piece'])<(RA['iss'],RA['piece']):
                before=R['rd']
                R['maxrd']=RA['rd']
                self.ring_tick()
            else:
                self.ring_read()
        while R['rel']<RA['rel']:
            k=R['rel']; self.wait(lg=[(R['name'],'r',k)]); R['free'].append(R['slot'][k]); R['rel']+=1
        R['maxrd']=99
        for k in RA: assert RA[k]==R[k], (k,RA[k],R[k])
    def ring_finish(self):
        R=self.R; R['maxrd']=99
        while R['rd']<R['n'] or R['iss']<R['n']: self.ring_tick()
        R['rel']=R['n']; self.R=None

    def reduce(self, tmp, pre=None, post=None):
        I=self.I
        for e in (1,2,3):
            I(f's_xor_b32 s{S_T0}, s{S_W}, {e}'); I(f's_mul_i32 s{S_T0}, s{S_T0}, {3*4096}')
            I(f's_add_u32 s{S_T0}, s{S_T0}, {LDS_X+(e-1)*4096}')
            I(f'v_add_u32 v7, s{S_T0}, v{V_L16}')
            xh,yh=e>>1,e&1
            for xl in range(2):
                for yl in range(2):
                    a=V_ACC+16*(2*xh+xl)+4*(2*yh+yl)
                    I(f'ds_write_b128 v7, {vr(a,4)} offset:{(2*xl+yl)*1024}', tag='redw')
        if pre: pre()
        self.wait(lg='all'); I('s_barrier')
        if post: post()
        I(f's_mul_i32 s{S_T0}, s{S_W}, {3*4096}'); I(f'v_add_u32 v7, s{S_T0}, v{V_L16}')
        for e in range(3):
            for sub in range(4):
                I(f'ds_read_b128 {vr(tmp+16*e+4*sub,4)}, v7 offset:{LDS_X+e*4096+sub*1024}', tag=('red',e))
        for e in range(3):
            self.wait(lg=[('red',e)])
            for sub in range(4):
                a=V_ACC+16*(sub>>1)+4*(sub&1)
                for h in range(2):
                    I(f'v_pk_add_f32 v[{a+2*h}:{a+2*h+1}], v[{a+2*h}:{a+2*h+1}], v[{tmp+16*e+4*sub+2*h}:{tmp+16*e+4*sub+2*h+1}]')

    def prologue(self):
        I=self.I
        I('s_cmp_ge_u32 s2, 256'); I('s_cbranch_scc1 L_exit')
        I('s_load_dwordx16 s[4:19], s[0:1], 0')
        if self.opt.pfearly:
            I('s_getpc_b64 s[98:99]'); self.label('L_pc0')
            I(f's_sub_u32 s98, s98, L_pc0-{KN}'); I('s_subb_u32 s99, s99, 0')
            I('v_lshlrev_b32 v9, 7, v0'); I(f'v_min_u32 v9, L_code_end-{KN}-16, v9')
            I('global_load_dword v12, v9, s[98:99]', tag='pf')
        I('s_load_dwordx2 s[20:21], s[0:1], 64')
        I('s_load_dwordx8 s[24:31], s[0:1], 80')
        I('s_load_dwordx4 s[32:35], s[0:1], 112')
        I('s_load_dwordx2 s[36:37], s[0:1], 128')
        I('v_lshrrev_b32 v7, 6, v0'); I(f'v_and_b32 v{V_LANE}, 63, v0')
        I(f'v_readfirstlane_b32 s{S_W}, v7')
        I(f'v_lshlrev_b32 v{V_L16}, 4, v{V_LANE}')
        I(f's_mov_b32 s{S_MASK}, 0xffff0000'); I(f's_mov_b32 s{S_ONES}, 0x3f803f80')
        I('s_and_b32 s22, s2, 7')
        I('s_lshr_b32 s23, s2, 3')
        I('s_and_b32 s38, s22, 1')
        I('s_lshr_b32 s39, s22, 1')
        I(f's_lshr_b32 s{S_WH}, s{S_W}, 1'); I(f's_and_b32 s{S_WL}, s{S_W}, 1')
        I(f's_mul_i32 s{S_T0}, s23, 37'); I(f's_lshr_b32 s{S_T0}, s{S_T0}, 8')
        I(f's_mul_i32 s{S_T1}, s{S_T0}, 7'); I(f's_sub_u32 s{S_G}, s23, s{S_T1}')
        I(f's_mov_b32 s{S_DT1}, s{S_G}')
        I(f's_lshl_b32 s{S_T1}, s22, 2'); I(f's_add_u32 s{S_C}, s{S_T1}, s{S_T0}')
        I(f's_min_u32 s{S_C}, s{S_C}, 31')
        I(f's_mul_i32 s{S_T1}, s39, 7'); I(f's_lshl_b32 s{S_T2}, s38, 2'); I(f's_add_u32 s87, s{S_T1}, s{S_T2}')
        I(f's_add_u32 s{S_FT}, s87, s{S_T0}'); I(f's_min_u32 s{S_FT}, s{S_FT}, 27')
        I(f's_sub_u32 s{S_T1}, 4, s38'); I(f's_cmp_lt_u32 s{S_T0}, s{S_T1}'); I(f's_cselect_b32 s{S_HASG1}, 1, 0')
        I('s_cmp_lt_u32 s23, 28'); I('s_cselect_b32 s74, 1, 0')
        self.wait(lg='all')
        self.make_srd(SRD_X, P_X, 2048*896)
        self.x8_issue(2)
        if not self.opt.pfearly:
            I('s_getpc_b64 s[98:99]'); self.label('L_pc0')
            I(f's_sub_u32 s98, s98, L_pc0-{KN}'); I('s_subb_u32 s99, s99, 0')
            I(f's_and_b32 s{S_T0}, s23, 1'); I(f's_lshl_b32 s{S_T0}, s{S_T0}, 2'); I(f's_add_u32 s{S_T0}, s{S_T0}, s{S_W}')
            I(f's_lshl_b32 s{S_T0}, s{S_T0}, 13')
            I(f'v_lshlrev_b32 v9, 7, v{V_LANE}'); I(f'v_add_u32 v9, s{S_T0}, v9')
            I(f'v_min_u32 v9, L_code_end-{KN}-16, v9')
            I('global_load_dword v12, v9, s[98:99]', tag='pf')
        self.make_srd(SRD_WS, P_WS, 0x10000000)
        I(f's_mul_i32 s{S_YB}, s{S_W}, {YW}'); I(f's_add_u32 s{S_YB}, s{S_YB}, {LDS_Y}')
        I(f's_sub_u32 s{S_E}, s23, 28'); I(f's_lshl_b32 s{S_E}, s{S_E}, 3'); I(f's_add_u32 s{S_E}, s{S_E}, s22')
        I('s_mov_b32 s86, s23'); I('s_mov_b32 s95, s22')
        self.stamp('start'); self.cstamp('c0')

    def x8_issue(self, oct):
        I=self.I
        I(f's_lshr_b32 s75, s{oct}, 2'); I('s_lshl_b32 s75, s75, 5')
        I(f's_lshl_b32 s{S_T0}, s{S_WH}, 4'); I(f's_add_u32 s75, s75, s{S_T0}')
        I(f's_and_b32 s{S_T0}, s{oct}, 3'); I(f's_lshl_b32 s{S_T0}, s{S_T0}, 2'); I(f's_add_u32 s75, s75, s{S_T0}')
        I(f's_lshl_b32 s{S_T0}, s{S_WL}, 1'); I(f's_add_u32 s75, s75, s{S_T0}')
        I(f's_mul_i32 s{S_T2}, s75, 896')
        I(f'v_and_b32 v7, 31, v{V_LANE}'); I(f'v_lshrrev_b32 v8, 5, v{V_LANE}')
        I('v_mul_u32_u24 v8, 896, v8'); I('v_lshlrev_b32 v9, 5, v7'); I('v_add_u32 v8, v8, v9')
        I('v_mov_b32 v9, 0x7ffffff0'); I('v_cmp_gt_u32 vcc, 28, v7'); I('v_cndmask_b32 v8, v9, v8, vcc')
        I(f'buffer_load_dwordx4 {vr(V_T,4)}, v8, {srd(SRD_X)}, s{S_T2} offen', tag='x8')
        I(f'buffer_load_dwordx4 {vr(V_T+4,4)}, v8, {srd(SRD_X)}, s{S_T2} offen offset:16', tag='x8')
    def touches_pre(self):
        I=self.I
        self.make_srd(SRD_1, P_BRE, 448*896); self.make_srd(SRD_2, P_BIM, 448*896); self.make_srd(SRD_W, P_W1, 2048*3584)
        I(f'v_lshrrev_b32 v7, 3, v{V_LANE}'); I(f'v_and_b32 v8, 7, v{V_LANE}'); I('v_min_u32 v8, 6, v8')
        I('v_mul_u32_u24 v7, 896, v7'); I('v_lshlrev_b32 v8, 7, v8'); I('v_add_u32 v7, v7, v8')
        I(f's_lshl_b32 s{S_T3}, s86, 2'); I(f's_add_u32 s{S_T3}, s{S_T3}, s{S_W}')
        I(f's_lshl_b32 s{S_T0}, s95, 8'); I(f's_lshl_b32 s{S_T1}, s{S_T3}, 1'); I(f's_add_u32 s{S_T0}, s{S_T0}, s{S_T1}'); I(f's_mul_i32 s{S_T0}, s{S_T0}, 896')
        self.exec_set('0xffff','0')
        I(f'buffer_load_dword v12, v7, {srd(SRD_X)}, s{S_T0} offen', tag='touch')
        I(f's_and_b32 s{S_T0}, s{S_T3}, 63'); I(f's_mul_i32 s{S_T0}, s{S_T0}, {7*896}')
        I(f's_cmp_lt_u32 s{S_T3}, 64')
        I(f's_cselect_b32 s{SRD_OUT}, s{P_BRE}, s{P_BIM}'); I(f's_cselect_b32 s{SRD_OUT+1}, s{P_BRE+1}, s{P_BIM+1}')
        I(f's_mov_b32 s{SRD_OUT+2}, {448*896}'); I(f's_mov_b32 s{SRD_OUT+3}, 0x20000')
        self.exec_set('-1','0x00ffffff')
        I(f'buffer_load_dword v12, v7, {srd(SRD_OUT)}, s{S_T0} offen', tag='touch')
        self.exec_full()
    def touch_w1(self, setup_only=False):
        I=self.I
        I(f'v_lshrrev_b32 v7, 2, v{V_LANE}'); I(f'v_and_b32 v8, 3, v{V_LANE}')
        I(f's_and_b32 s{S_T1}, s95, 1'); I(f's_sub_u32 s{S_T1}, 3, s{S_T1}'); I(f'v_min_u32 v8, s{S_T1}, v8')
        I('v_mul_u32_u24 v7, 3584, v7'); I('v_lshlrev_b32 v8, 7, v8'); I('v_add_u32 v7, v7, v8')
        I(f's_lshl_b32 s{S_T0}, s{S_W}, 9'); I(f's_lshl_b32 s{S_T1}, s86, 4'); I(f's_add_u32 s{S_T0}, s{S_T0}, s{S_T1}')
        I(f's_mul_i32 s{S_T0}, s{S_T0}, 3584'); I(f's_lshl_b32 s{S_T1}, s87, 7'); I(f's_add_u32 s{S_T0}, s{S_T0}, s{S_T1}')
        if setup_only:
            I('v_mov_b32 v238, v7'); I(f's_mov_b32 s94, s{S_T0}'); return
        I(f'buffer_load_dword v12, v7, {srd(SRD_W)}, s{S_T0} offen', tag='touch')
    def touch_w1_split(self, rest):
        I=self.I
        I(f'v_lshrrev_b32 v7, 2, v{V_LANE}'); I(f'v_and_b32 v8, 3, v{V_LANE}')
        I(f's_and_b32 s{S_T1}, s95, 1'); I(f's_sub_u32 s{S_T1}, 3, s{S_T1}'); I(f'v_min_u32 v8, s{S_T1}, v8')
        I('v_mul_u32_u24 v7, 3584, v7'); I('v_lshlrev_b32 v8, 7, v8'); I('v_add_u32 v7, v7, v8')
        I(f's_lshl_b32 s{S_T0}, s{S_W}, 9')
        if not rest:
            I(f's_lshl_b32 s{S_T1}, s86, 3'); I(f's_add_u32 s{S_T0}, s{S_T0}, s{S_T1}')
        else:
            I(f's_sub_u32 s{S_T1}, s86, 28'); I(f's_lshl_b32 s{S_T1}, s{S_T1}, 4'); I(f's_add_u32 s{S_T0}, s{S_T0}, s{S_T1}'); I(f's_add_u32 s{S_T0}, s{S_T0}, 224')
        I(f's_mul_i32 s{S_T0}, s{S_T0}, 3584'); I(f's_lshl_b32 s{S_T1}, s87, 7'); I(f's_add_u32 s{S_T0}, s{S_T0}, s{S_T1}')
        if not rest:
            self.exec_set('-1','0')
            I(f'buffer_load_dword v12, v7, {srd(SRD_W)}, s{S_T0} offen', tag='touch')
            self.exec_full()
        else:
            for t in range(5):
                I(f'buffer_load_dword v12, v7, {srd(SRD_W)}, s{S_T0} offen', tag='touch')
                if t<4: I(f's_add_u32 s{S_T0}, s{S_T0}, {64*3584}')
    def touch_w1_wg(self):
        I=self.I
        I(f'v_lshrrev_b32 v7, 2, v{V_LANE}'); I(f'v_and_b32 v8, 3, v{V_LANE}')
        I(f's_and_b32 s{S_T1}, s95, 1'); I(f's_sub_u32 s{S_T1}, 3, s{S_T1}'); I(f'v_min_u32 v8, s{S_T1}, v8')
        I('v_mul_u32_u24 v7, 3584, v7'); I('v_lshlrev_b32 v8, 7, v8'); I('v_add_u32 v7, v7, v8')
        I(f's_lshl_b32 s{S_T0}, s86, 4'); I(f's_mul_i32 s{S_T0}, s{S_T0}, 3584'); I(f's_lshl_b32 s{S_T1}, s87, 7'); I(f's_add_u32 s{S_T0}, s{S_T0}, s{S_T1}')
        for q in range(4):
            I(f'buffer_load_dword v12, v7, {srd(SRD_W)}, s{S_T0} offen', tag='touch')
            if q<3: I(f's_add_u32 s{S_T0}, s{S_T0}, {512*3584}')
    def q_w3(self):
        I=self.I
        def xpair(p):
            def f():
                L=self.newlabel('xw3')
                I(f's_add_u32 s100, s{S_W}, {3*p}'); I('s_cmp_ge_u32 s100, 8'); I(f's_cbranch_scc1 {L}')
                snap=self.snapshot()
                I('s_lshl_b32 s101, s100, 4'); I(f'v_xor_b32 v238, s101, v{V_L16}')
                I('s_lshr_b32 s101, s100, 1'); I('s_lshl_b32 s101, s101, 4'); I('s_and_b32 s100, s100, 1'); I('s_lshl_b32 s100, s100, 1')
                I('s_add_u32 s100, s100, s101'); I('s_add_u32 s100, s100, 12'); I('s_mul_i32 s100, s100, 896')
                I(f's_lshl_b32 s101, s{S_C}, 6'); I('s_mul_i32 s101, s101, 896'); I('s_add_u32 s101, s101, s100')
                I('s_mov_b32 exec_hi, 0x00ffffff')
                I(f's_add_u32 m0, s100, {LDS_X}'); I('s_nop 0')
                I(f'buffer_load_dwordx4 v238, {srd(SRD_X)}, s101 offen lds', tag='x64')
                I(f's_add_u32 m0, s100, {LDS_X+896}'); I('s_add_u32 s101, s101, 896')
                I(f'buffer_load_dwordx4 v238, {srd(SRD_X)}, s101 offen lds', tag='x64')
                I('s_mov_b32 exec_hi, -1')
                self.label(L); self.merge(snap); self.vm['x64']=0
            return f
        def bblock(p):
            def f():
                L=self.newlabel('bw3'); Li=self.newlabel('bw3i')
                I(f's_add_u32 s100, s{S_W}, {3*p}'); I('s_cmp_ge_u32 s100, 8'); I(f's_cbranch_scc1 {L}')
                snap=self.snapshot()
                I('s_and_b32 s101, s100, 3'); I('s_sub_u32 s91, 0, s101'); I('s_and_b32 s91, s91, 3'); I('s_lshl_b32 s91, s91, 4')
                I(f'v_xor_b32 v238, s91, v{V_L16}')
                I('s_bitcmp1_b32 s100, 2')
                I(f's_cselect_b32 s{SRD_OUT}, s{P_BIM}, s{P_BRE}'); I(f's_cselect_b32 s{SRD_OUT+1}, s{P_BIM+1}, s{P_BRE+1}')
                I('s_cselect_b32 s100, 13312, 0')
                I('s_mul_i32 s91, s101, 3328'); I('s_add_u32 s100, s100, s91'); I(f's_add_u32 s100, s100, {LDS_Y+3*YW}')
                I('s_mul_i32 s101, s101, 3584')
                I(f's_lshl_b32 s91, s{S_G}, 6'); I('s_add_u32 s91, s91, 48'); I('s_mul_i32 s91, s91, 896'); I('s_add_u32 s101, s101, s91')
                I('s_mov_b32 exec_hi, 0x000fffff')
                for r in range(4):
                    I(f's_add_u32 m0, s100, {r*832}')
                    if r: I('s_add_u32 s101, s101, 896')
                    else: I('s_nop 0')
                    I(f'buffer_load_dwordx4 v238, {srd(SRD_OUT)}, s101 offen lds', tag='bdma')
                I('s_mov_b32 exec_hi, -1')
                self.label(L); self.merge(snap); self.vm['bdma']=0
            return f
        return [xpair(p) for p in range(3)], [bblock(p) for p in range(3)]
    def dma_setup(self):
        I=self.I
        for n,h in enumerate((0,3,2,1)): I(f'v_xor_b32 v{224+n}, {h<<4}, v{V_L16}')
        for g in range(8): I(f'v_xor_b32 v{228+g}, {g<<4}, v{V_L16}')
        I(f's_lshl_b32 s{S_T0}, s{S_G}, 6'); I(f's_lshl_b32 s{S_T1}, s{S_W}, 4'); I(f's_add_u32 s88, s{S_T0}, s{S_T1}')
        I('s_mul_i32 s89, s88, 896')
        I(f's_lshl_b32 s{S_T0}, s{S_C}, 6'); I(f's_lshl_b32 s{S_T1}, s{S_W}, 2'); I(f's_add_u32 s{S_T0}, s{S_T0}, s{S_T1}')
        I(f's_mul_i32 s92, s{S_T0}, 896')
        I(f's_mul_i32 s93, s{S_W}, 3584')
        I(f'v_and_b32 v7, 15, v{V_LANE}'); I('v_mul_u32_u24 v236, 896, v7'); I(f'v_lshrrev_b32 v9, 4, v{V_LANE}'); I('v_lshlrev_b32 v9, 4, v9')
        I('v_add_u32 v236, v236, v9')
        if self.opt.b13dma:
            I(f'v_lshrrev_b32 v9, 2, v{V_LANE}'); I('v_mul_u32_u24 v236, 896, v9'); I(f'v_and_b32 v9, 3, v{V_LANE}'); I('v_lshlrev_b32 v9, 4, v9')
            I('v_add_u32 v236, v236, v9'); I('v_add_u32 v236, 832, v236')
        I('v_add_u32 v237, s88, v7'); I('v_lshlrev_b32 v237, 1, v237')
    def q_b(self):
        I=self.I
        def row(im,n):
            def f():
                I('s_mov_b32 exec_hi, 0x000fffff')
                I(f's_add_u32 m0, s{S_YB}, {im*13312+n*832}')
                I(f's_add_u32 s91, s89, {n*896}')
                I(f'buffer_load_dwordx4 v{224+(n>>2)}, {srd(SRD_1 if im==0 else SRD_2)}, s91 offen lds', tag='bdma'); self.nb+=1
                I('s_mov_b32 exec_hi, -1')
            return f
        for im in range(2):
            for n in range(16): self.q.append(row(im,n))
        def b13(srdn,dst):
            def f():
                I(f'buffer_load_dwordx4 {vr(dst,4)}, v236, {srd(srdn)}, s89 offen offset:832', tag='b13'); self.nb+=1
            return f
        if self.opt.w1touch=='W':
            self.b13_loads=lambda: (b13(SRD_1,V_BF+52)(), b13(SRD_2,V_BF+56+52)())
        elif not self.opt.b13dma:
            self.q.append(b13(SRD_1,V_BF+52)); self.q.append(b13(SRD_2,V_BF+56+52))
        def lam():
            I(f'global_load_ushort v{V_IN}, v237, {sp(P_LRE)}', tag='lam')
            I(f'global_load_ushort v{V_IN+1}, v237, {sp(P_LIM)}', tag='lam')
            I(f'global_load_ushort v{V_IN+2}, v237, {sp(P_LDT)}', tag='lam')
        self.q.insert(0,lam)
    def q_x(self, alist):
        I=self.I
        def row(a,b):
            def f():
                g=2*a+(b>>1); d=(16*a+b)*896
                I('s_mov_b32 exec_hi, 0x00ffffff')
                I(f's_add_u32 m0, s93, {LDS_X+d}')
                I(f's_add_u32 s91, s92, {d}')
                I(f'buffer_load_dwordx4 v{228+g}, {srd(SRD_X)}, s91 offen lds', tag='x64'); self.nx+=1
                I('s_mov_b32 exec_hi, -1')
            return f
        for a in alist:
            for b in range(4): self.q.append(row(a,b))
    def b_read(self):
        I=self.I
        I(f'v_and_b32 v7, 15, v{V_LANE}'); I(f'v_lshrrev_b32 v8, 4, v{V_LANE}'); I('v_lshrrev_b32 v9, 2, v7')
        I('v_sub_u32 v9, 0, v9'); I('v_and_b32 v9, 3, v9'); I('v_xor_b32 v8, v8, v9')
        I('v_lshlrev_b32 v8, 4, v8'); I('v_mul_u32_u24 v7, 832, v7'); I('v_add_u32 v7, v7, v8'); I(f'v_add_u32 v7, s{S_YB}, v7')
        if self.opt.w1touch!='W': self.wait(vm=['bdma'])
        for im in range(2):
            for j in range(13):
                I(f'ds_read_b128 {vr(V_BF+56*im+4*j,4)}, v7 offset:{im*13312+j*64}', tag='brd')
    def touch_pf(self, which):
        I=self.I
        if which==1: pitch,nrow,nt,srdn=3584,512,8,SRD_W
        else:
            pitch,nrow,nt,srdn=4096,448,7,SRD_OUT
            self.make_srd(SRD_OUT, P_W2, 1792*4096)
        I(f'v_lshrrev_b32 v7, 2, v{V_LANE}'); I(f'v_and_b32 v8, 3, v{V_LANE}')
        if which==1:
            I(f's_and_b32 s{S_T1}, s95, 1'); I(f's_sub_u32 s{S_T1}, 3, s{S_T1}'); I(f'v_min_u32 v8, s{S_T1}, v8')
        I(f'v_mul_u32_u24 v7, {pitch}, v7'); I('v_lshlrev_b32 v8, 7, v8'); I('v_add_u32 v7, v7, v8')
        I(f's_mul_i32 s{S_T0}, s{S_W}, {nrow}'); I(f's_sub_u32 s{S_T1}, s86, 28'); I(f's_lshl_b32 s{S_T1}, s{S_T1}, 4'); I(f's_add_u32 s{S_T0}, s{S_T0}, s{S_T1}')
        I(f's_mul_i32 s{S_T0}, s{S_T0}, {pitch}')
        if which==1: I(f's_lshl_b32 s{S_T1}, s87, 7')
        else: I(f's_lshl_b32 s{S_T1}, s95, 9')
        I(f's_add_u32 s{S_T0}, s{S_T0}, s{S_T1}')
        for t in range(nt):
            I(f'buffer_load_dword v12, v7, {srd(srdn)}, s{S_T0} offen', tag='touch2')
            if t<nt-1: I(f's_add_u32 s{S_T0}, s{S_T0}, {64*pitch}')
    def ln8(self, oct=2, clears=True):
        I=self.I
        D=list(range(V_T,V_T+8)); SUM,SSQ,S2,Q2=24,25,26,27; R,C=28,30; TM=[32,34,36,38]
        self.wait(vm=['x8'])
        def reduce32():
            for rot in (8,4,2,1):
                I(f'v_add_f32_dpp v{SUM}, v{SUM}, v{SUM} row_ror:{rot} row_mask:0xf bank_mask:0xf')
                I(f'v_add_f32_dpp v{SSQ}, v{SSQ}, v{SSQ} row_ror:{rot} row_mask:0xf bank_mask:0xf')
            I(f'v_mov_b32 v{S2}, v{SUM}'); I(f'v_mov_b32 v{Q2}, v{SSQ}')
            I(f'v_permlane16_swap_b32 v{SUM}, v{S2}'); I(f'v_permlane16_swap_b32 v{SSQ}, v{Q2}')
            I(f'v_add_f32 v{SUM}, v{SUM}, v{S2}'); I(f'v_add_f32 v{SSQ}, v{SSQ}, v{Q2}')
        self.dot_sums(D,[SUM,SSQ,S2,Q2]); reduce32()
        self.ln_stats(SUM,SSQ,R,C,None)
        if clears and self.opt.w1touch=='W' and not self.opt.notouch3:
            Lt=self.newlabel('notouch')
            I(f's_cmp_lg_u32 s{S_W}, 3'); I(f's_cbranch_scc1 {Lt}')
            snap=self.snapshot()
            self.touch_w1_wg()
            self.label(Lt); self.merge(snap)
        I(f'v_and_b32 v7, 31, v{V_LANE}'); I('v_cmp_gt_u32 vcc, 28, v7')
        I(f'v_cndmask_b32 v{R}, 0, v{R}, vcc'); I(f'v_cndmask_b32 v{C}, 0, v{C}, vcc')
        self.normalize(D,R,C,TM)
        self.dot_sums(D,[SUM,SSQ,S2,Q2]); reduce32()
        self.ln_stats(SUM,SSQ,R,C,None)
        self.normalize(D,R,C,TM)
        self.auto=0
        I(f'v_lshrrev_b32 v8, 5, v{V_LANE}'); I(f's_lshl_b32 s{S_T0}, s{S_W}, 1'); I(f'v_add_u32 v8, s{S_T0}, v8')
        I('v_mul_u32_u24 v8, 960, v8'); I('v_lshlrev_b32 v9, 5, v7'); I('v_add_u32 v8, v8, v9'); I(f'v_add_u32 v8, {LDS_LN8}, v8')
        self.exec_set('0x0fffffff','0x0fffffff')
        I(f'ds_write_b128 v8, {vr(V_T,4)} offset:0'); I(f'ds_write_b128 v8, {vr(V_T+4,4)} offset:16')
        self.exec_full()
        self.wait(lg='all'); I('s_barrier')
        I(f'v_and_b32 v7, 15, v{V_LANE}'); I('v_lshrrev_b32 v8, 2, v7'); I('v_mul_u32_u24 v8, 960, v8')
        I(f'v_lshrrev_b32 v9, 4, v{V_LANE}'); I('v_lshlrev_b32 v10, 5, v9'); I('v_add_u32 v8, v8, v10')
        I(f'v_and_b32 v10, 3, v{V_LANE}'); I('v_lshlrev_b32 v10, 3, v10'); I('v_add_u32 v8, v8, v10')
        I(f's_lshl_b32 s{S_T0}, s{S_W}, 7'); I(f's_add_u32 s{S_T0}, s{S_T0}, {LDS_LN8}'); I(f'v_add_u32 v8, s{S_T0}, v8')
        I('v_lshlrev_b32 v9, 10, v9'); I('v_lshlrev_b32 v7, 4, v7'); I('v_add_u32 v9, v9, v7')
        I(f's_lshr_b32 s{S_T0}, s{oct}, 2'); I(f's_lshl_b32 s{S_T0}, s{S_T0}, 12')
        I(f's_and_b32 s{S_T1}, s{oct}, 3'); I(f's_lshl_b32 s{S_T1}, s{S_T1}, 8'); I(f's_add_u32 s{S_T0}, s{S_T0}, s{S_T1}')
        I(f's_lshl_b32 s{S_T1}, s{S_W}, 18'); I(f's_add_u32 s{S_T0}, s{S_T0}, s{S_T1}')
        if self.opt.w1touch=='W':
            Lno=self.newlabel('ln8none'); L6=self.newlabel('ln8no6')
            I(f's_cmp_eq_u32 s{S_W}, 3'); I(f's_cbranch_scc1 {Lno}')
            snap=self.snapshot()
            for i in range(2):
                I(f'ds_read_b64_tr_b16 v[{16+4*i}:{17+4*i}], v8 offset:{384*i}', tag='t0')
                I(f'ds_read_b64_tr_b16 v[{18+4*i}:{19+4*i}], v8 offset:{384*i+3840}', tag='t0')
            I(f's_add_u32 s{S_T1}, s{S_T0}, {3*262144}')
            self.wait(lg='all')
            I(f'buffer_store_dwordx4 v[16:19], v9, {srd(SRD_WS)}, s{S_T0} offen sc1', tag='st0')
            I(f'buffer_store_dwordx4 v[20:23], v9, {srd(SRD_WS)}, s{S_T1} offen sc1', tag='st0')
            I(f's_cmp_lg_u32 s{S_W}, 0'); I(f's_cbranch_scc1 {L6}')
            I(f'ds_read_b64_tr_b16 v[24:25], v8 offset:768', tag='t0')
            I(f'ds_read_b64_tr_b16 v[26:27], v8 offset:{768+3840}', tag='t0')
            I(f's_add_u32 s{S_T1}, s{S_T0}, {6*262144}')
            self.wait(lg='all')
            I(f'buffer_store_dwordx4 v[24:27], v9, {srd(SRD_WS)}, s{S_T1} offen sc1', tag='st0')
            self.label(L6)
            self.label(Lno); self.merge(snap); self.vm['st0']=0
        else:
            I(f'ds_read_b64_tr_b16 v[16:17], v8 offset:0', tag='t0')
            I(f'ds_read_b64_tr_b16 v[18:19], v8 offset:3840', tag='t0')
            Lskip=self.newlabel('ln8skip')
            I(f's_cmp_eq_u32 s{S_W}, 3'); I(f's_cbranch_scc1 {Lskip}')
            snap=self.snapshot()
            I(f'ds_read_b64_tr_b16 v[20:21], v8 offset:512', tag='t1')
            I(f'ds_read_b64_tr_b16 v[22:23], v8 offset:{512+3840}', tag='t1')
            I(f's_add_u32 s{S_T1}, s{S_T0}, {4*262144}')
            self.wait(lg='all')
            I(f'buffer_store_dwordx4 v[20:23], v9, {srd(SRD_WS)}, s{S_T1} offen sc1', tag='st0')
            self.label(Lskip); self.merge(snap)
            self.wait(lg='all')
            I(f'buffer_store_dwordx4 v[16:19], v9, {srd(SRD_WS)}, s{S_T0} offen sc1', tag='st0')
        if not clears:
            I('s_barrier'); return
        Ln=self.newlabel('noclr')
        I(f's_cmp_lg_u32 s{S_W}, {1 if self.opt.w1touch=="W" else 3}'); I(f's_cbranch_scc1 {Ln}')
        snap=self.snapshot()
        I('v_mov_b32 v8, 0')
        I('v_mov_b32 v10, -1'); I('v_mov_b32 v11, -1'); I(f'v_lshlrev_b32 v9, 3, v{V_LANE}')
        I(f's_lshl_b32 s{S_T0}, s{S_G}, 5'); I(f's_add_u32 s{S_T0}, s{S_T0}, s{S_C}'); I(f's_lshl_b32 s{S_T0}, s{S_T0}, 9')
        I(f's_add_u32 s{S_T0}, s{S_T0}, {WS_E}')
        I(f'buffer_store_dwordx2 v[10:11], v9, {srd(SRD_WS)}, s{S_T0} offen sc1', tag='st0')
        I(f's_mul_i32 s{S_T0}, s{S_C}, 7'); I(f's_add_u32 s{S_T0}, s{S_T0}, s{S_G}'); I(f's_lshl_b32 s{S_T0}, s{S_T0}, 6')
        I(f's_add_u32 s{S_T0}, s{S_T0}, {WS_FH}')
        I('v_mov_b32 v10, 0')
        self.exec_set(1,0)
        I(f'buffer_store_dword v10, v8, {srd(SRD_WS)}, s{S_T0} offen sc1', tag='st0')
        Lg=self.newlabel('nog1clr'); Lc=self.newlabel('nocclr')
        I(f's_cmp_eq_u32 s{S_HASG1}, 0'); I(f's_cbranch_scc1 {Lg}')
        I(f's_mul_i32 s{S_T0}, s{S_DT1}, 28'); I(f's_add_u32 s{S_T0}, s{S_T0}, s{S_FT}'); I(f's_lshl_b32 s{S_T0}, s{S_T0}, 6')
        I(f's_add_u32 s{S_T0}, s{S_T0}, {WS_FG}')
        I(f'buffer_store_dword v10, v8, {srd(SRD_WS)}, s{S_T0} offen sc1', tag='st0')
        self.label(Lg)
        I('s_cmp_lg_u32 s95, 0'); I(f's_cbranch_scc1 {Lc}')
        I(f's_lshl_b32 s{S_T0}, s86, 6'); I(f's_add_u32 s{S_T0}, s{S_T0}, {WS_FC}')
        I(f'buffer_store_dword v10, v8, {srd(SRD_WS)}, s{S_T0} offen sc1', tag='st0')
        self.label(Lc)
        self.exec_full()
        self.label(Ln); self.merge(snap); self.vm['st0']=0
        I('s_barrier')

    def ln8_extra(self):
        I=self.I
        L=self.newlabel('noextra'); Lp=self.newlabel('extra')
        I(f's_cmp_lg_u32 s{S_HASG1}, 0'); I(f's_cbranch_scc1 {L}')
        snap=self.snapshot()
        I('s_lshr_b32 s3, s95, 1'); I('s_mul_i32 s3, s3, 7'); I('s_add_u32 s3, s3, s86'); I('s_add_u32 s3, s3, 203')
        self.label(Lp)
        self.x8_issue(3)
        I('s_waitcnt vmcnt(0)'); self.vm={}; self.vm['x8']=0
        self.ln8(oct=3, clears=False)
        I('s_add_u32 s3, s3, 28'); I('s_cmp_lt_u32 s3, 256'); I(f's_cbranch_scc1 {Lp}')
        I('s_waitcnt vmcnt(0)')
        self.label(L); self.restore(snap); self.vm['st0']=min(self.vm.get('st0',0),0)

    def arrive0(self):
        I=self.I
        self.wait(vm=['st0']); I('s_barrier')
        L=self.newlabel('arr')
        I(f's_cmp_lg_u32 s{S_W}, 0'); I(f's_cbranch_scc1 {L}')
        snap=self.snapshot()
        I('s_and_b32 s3, s2, 3'); I('s_lshl_b32 s3, s3, 6'); I('v_mov_b32 v8, s3'); I('v_mov_b32 v9, 1')
        self.exec_set(1,0)
        I(f'global_atomic_add v8, v9, {sp(P_DBG)} sc1')
        self.exec_full()
        self.label(L); self.merge(snap)

    def w1_setup(self):
        I=self.I
        self.ring_setup(3584, S_WH)
        I(f's_mul_i32 s{S_WBEG}, s{S_W}, {512*3584}'); I(f's_lshl_b32 s{S_T0}, s{S_FT}, 7'); I(f's_add_u32 s{S_WBEG}, s{S_WBEG}, s{S_T0}')
        I(f's_mov_b32 s{S_WO}, s{S_WBEG}')

    def lam_consts(self):
        I=self.I
        LRE,LIM,LDT=V_IN,V_IN+1,V_IN+2
        t=list(range(16,40))
        self.wait(vm=['lam'])
        for r in (LRE,LIM,LDT): I(f'v_lshlrev_b32 v{r}, 16, v{r}')
        I(f'v_mul_f32 v{LDT}, 0x3fb8aa3b, v{LDT}'); I(f'v_exp_f32 v{LDT}, v{LDT}')
        self.rnd_bf16(LDT)
        I(f'v_mul_f32 v16, v{LDT}, v{LRE}'); I(f'v_mul_f32 v17, v{LDT}, v{LIM}')
        I('v_mul_f32 v16, 0x3fb8aa3b, v16'); I('v_mul_f32 v17, 0.15915494, v17')
        I('v_exp_f32 v16, v16'); I('v_fract_f32 v17, v17')
        I('v_cos_f32 v18, v17'); I('v_sin_f32 v19, v17')
        I(f'v_mul_f32 v{V_LR}, v16, v18'); I(f'v_mul_f32 v{V_LI}, v16, v19')
        I(f'v_add_f32 v16, -1.0, v{V_LR}')
        I(f'v_mul_f32 v17, v{LRE}, v{LRE}'); I(f'v_fma_f32 v17, v{LIM}, v{LIM}, v17'); I('v_rcp_f32 v17, v17')
        I(f'v_mul_f32 v18, v16, v{LRE}'); I(f'v_fma_f32 v18, v{V_LI}, v{LIM}, v18')
        I(f'v_mul_f32 v19, v16, v{LIM}'); I(f'v_fma_f32 v19, v{V_LI}, v{LRE}, -v19')
        I('v_add_f32 v17, v17, v17')
        I(f'v_mul_f32 v{V_K1}, v18, v17'); I(f'v_mul_f32 v{V_K2}, v19, v17'); I(f'v_sub_f32 v{V_K2}, 0, v{V_K2}')
        self.csq(16,17,V_LR,V_LI,30); self.csq(18,19,16,17,30); self.csq(16,17,18,19,30); self.csq(20,21,16,17,30)
        self.csq(22,23,20,21,30)
        self.cmul(24,25,22,23,20,21,30,31)
        self.csq(V_L64R,V_L64I,22,23,30)
        self.csq(16,17,V_L64R,V_L64I,30); self.csq(18,19,16,17,30); self.csq(V_L512R,V_L512I,18,19,30)
        I(f'v_mov_b32 v{V_PR}, 1.0'); I(f'v_mov_b32 v{V_PI}, 0')
        for (lo,hi,r) in (('0xffff0000','-1',20),('0','-1',22),('0','0xffff0000',24)):
            self.exec_set(lo,hi); I(f'v_mov_b32 v{V_PR}, v{r}'); I(f'v_mov_b32 v{V_PI}, v{r+1}')
        self.exec_full()
        I(f'v_mov_b32 v{V_IN}, v20'); I(f'v_mov_b32 v{V_IN+1}, v21')

    def x_addr(self):
        I=self.I
        I(f'v_and_b32 v7, 15, v{V_LANE}'); I('v_lshrrev_b32 v8, 2, v7'); I('v_lshlrev_b32 v8, 4, v8')
        I('v_and_b32 v9, 3, v7'); I('v_add_u32 v8, v8, v9'); I('v_mul_u32_u24 v8, 896, v8')
        I(f'v_lshrrev_b32 v9, 4, v{V_LANE}'); I('v_lshrrev_b32 v7, 1, v7'); I('v_xor_b32 v9, v9, v7'); I('v_lshlrev_b32 v9, 4, v9')
        I('v_add_u32 v14, v8, v9'); I('v_xor_b32 v15, 64, v14')
    def ln64(self):
        I=self.I
        D=list(range(V_X64,V_X64+56)); SUM,SSQ,S2,Q2=24,25,26,27; R,C=28,30; TM=[32,34,36,38]
        I(f's_mul_i32 s{S_T0}, s{S_W}, 3584'); I(f'v_add_u32 v22, s{S_T0}, v14'); I(f'v_add_u32 v23, s{S_T0}, v15')
        self.allow_bread=True
        while self.nx<16: self.tick()
        if self.opt.w1touch!='W': self.wait(vm=['x64'])
        for j in range(14):
            I(f'ds_read_b128 {vr(V_X64+4*j,4)}, v{22+(j&1)} offset:{LDS_X+(j>>1)*128}', tag=('xr',j))
        accs=[SUM,SSQ,S2,Q2]
        for n,d in enumerate(D):
            if n%4==0: self.wait(lg=[('xr',n//4)])
            sa,qa = accs[2*(n&1)], accs[2*(n&1)+1]
            if n<2:
                I(f'v_dot2_f32_bf16 v{sa}, v{d}, s{S_ONES}, 0'); I(f'v_dot2_f32_bf16 v{qa}, v{d}, v{d}, 0')
            else:
                I(f'v_dot2_f32_bf16 v{sa}, v{d}, s{S_ONES}, v{sa}'); I(f'v_dot2_f32_bf16 v{qa}, v{d}, v{d}, v{qa}')
        I(f'v_add_f32 v{SUM}, v{SUM}, v{S2}'); I(f'v_add_f32 v{SSQ}, v{SSQ}, v{Q2}')
        for sw in ('16','32'):
            I(f'v_mov_b32 v{S2}, v{SUM}'); I(f'v_mov_b32 v{Q2}, v{SSQ}')
            I(f'v_permlane{sw}_swap_b32 v{SUM}, v{S2}'); I(f'v_permlane{sw}_swap_b32 v{SSQ}, v{Q2}')
            I(f'v_add_f32 v{SUM}, v{SUM}, v{S2}'); I(f'v_add_f32 v{SSQ}, v{SSQ}, v{Q2}')
        self.stamp('dots',fine=True)
        self.ln_stats(SUM,SSQ,R,C,None)
        self.allow_bread=True
        def h(n):
            I(f'ds_write_b128 v{22+(n&1)}, {vr(V_X64+4*n,4)} offset:{LDS_X+(n>>1)*128}', tag='xw')
        self.normalize(D,R,C,TM,hook=h)

    def row_stats(self):
        I=self.I
        D=list(range(V_X64,V_X64+56)); SUM,SSQ,S2,Q2=24,25,26,27; R,C=28,30
        I(f's_mul_i32 s{S_T0}, s{S_W}, 3584'); I(f'v_add_u32 v22, s{S_T0}, v14'); I(f'v_add_u32 v23, s{S_T0}, v15')
        for j in range(14):
            I(f'ds_read_b128 {vr(V_X64+4*j,4)}, v{22+(j&1)} offset:{LDS_X+(j>>1)*128}', tag=('xr',j))
        accs=[SUM,SSQ,S2,Q2]
        for n,d in enumerate(D):
            if n%4==0: self.wait(lg=[('xr',n//4)])
            sa,qa = accs[2*(n&1)], accs[2*(n&1)+1]
            if n<2:
                I(f'v_dot2_f32_bf16 v{sa}, v{d}, s{S_ONES}, 0'); I(f'v_dot2_f32_bf16 v{qa}, v{d}, v{d}, 0')
            else:
                I(f'v_dot2_f32_bf16 v{sa}, v{d}, s{S_ONES}, v{sa}'); I(f'v_dot2_f32_bf16 v{qa}, v{d}, v{d}, v{qa}')
        I(f'v_add_f32 v{SUM}, v{SUM}, v{S2}'); I(f'v_add_f32 v{SSQ}, v{SSQ}, v{Q2}')
        for sw in ('16','32'):
            I(f'v_mov_b32 v{S2}, v{SUM}'); I(f'v_mov_b32 v{Q2}, v{SSQ}')
            I(f'v_permlane{sw}_swap_b32 v{SUM}, v{S2}'); I(f'v_permlane{sw}_swap_b32 v{SSQ}, v{Q2}')
            I(f'v_add_f32 v{SUM}, v{SUM}, v{S2}'); I(f'v_add_f32 v{SSQ}, v{SSQ}, v{Q2}')
        self.ln_stats(SUM,SSQ,R,C,None)
        I(f'v_and_b32 v8, 15, v{V_LANE}'); I('v_lshlrev_b32 v8, 2, v8'); I(f's_add_u32 s{S_T0}, s{S_YB}, 24576'); I(f'v_add_u32 v8, s{S_T0}, v8')
        self.exec_set('0xffff','0')
        I(f'ds_write_b32 v8, v{SUM}', tag='stw'); I(f'ds_write_b32 v8, v{R} offset:64', tag='stw')
        self.exec_full()
    def stat_reads(self):
        I=self.I
        self.wait(lg=['stw']); I('s_barrier')
        I(f'v_lshrrev_b32 v8, 4, v{V_LANE}'); I('v_lshlrev_b32 v8, 4, v8'); I(f'v_add_u32 v8, {LDS_Y+24576}, v8'); I(f'v_add_u32 v9, {2*YW}, v8')
        for i in range(4):
            I(f'ds_read_b128 {vr(16+4*i,4)}, v{8+(i>>1)} offset:{(i&1)*YW}', tag='stat')
            I(f'ds_read_b128 {vr(88+4*i,4)}, v{8+(i>>1)} offset:{(i&1)*YW+64}', tag='stat')
    def bu_gemm(self):
        I=self.I
        BUF=[V_X64, V_X64+16]
        for r in range(4): I(f'v_mov_b32 v{36+r}, s{S_ONES}')
        def rd(j):
            for i in range(4):
                I(f'ds_read_b128 {vr(BUF[j%2]+4*i,4)}, v{14+(j&1)} offset:{LDS_X+i*3584+(j>>1)*128}', tag=('xa',j))
        rd(0); rd(1)
        bup=self.auto
        for j in range(14):
            self.auto = bup if j>=self.opt.bupj else 0
            self.wait(lg=[('xa',j)])
            for im in range(2):
                d=104+4*im
                I(f'v_mfma_f32_16x16x32_bf16 {vr(d,4)}, v[36:39], {vr(V_BF+56*im+4*j,4)}, {vr(d,4) if j else 0}')
            for i in range(4):
                for im in range(2):
                    d=V_RAW+16*im+4*i
                    cin = vr(d,4) if j else '0'
                    I(f'v_mfma_f32_16x16x32_bf16 {vr(d,4)}, {vr(BUF[j%2]+4*i,4)}, {vr(V_BF+56*im+4*j,4)}, {cin}')
            if j+2<14: rd(j+2)
            if j==12:
                sv=self.auto; self.auto=0
                self.stat_reads(); self.auto=sv
    def stat_loads(self):
        I=self.I
        I(f'v_lshrrev_b32 v8, 4, v{V_LANE}'); I('v_lshlrev_b32 v8, 6, v8')
        I(f's_lshl_b32 s{S_T0}, s{S_C}, 8'); I(f's_add_u32 s{S_T0}, s{S_T0}, {WS_STAT}'); I(f's_add_u32 s{S_T1}, s{S_T0}, 8192')
        for n in range(4):
            I(f'buffer_load_dwordx4 {vr(16+4*n,4)}, v8, {srd(SRD_WS)}, s{S_T0} offen offset:{16*n} sc1', tag='stat')
            I(f'buffer_load_dwordx4 {vr(88+4*n,4)}, v8, {srd(SRD_WS)}, s{S_T1} offen offset:{16*n} sc1', tag='stat')
    def x_resid_reads(self):
        I=self.I
        I(f'v_and_b32 v8, 15, v{V_LANE}'); I(f'v_lshrrev_b32 v9, 4, v{V_LANE}')
        I('v_lshrrev_b32 v10, 1, v9'); I('v_bfe_u32 v11, v8, 1, 1'); I('v_xor_b32 v10, v10, v11')
        I(f's_xor_b32 s{S_T0}, s{S_WH}, s{S_WL}'); I(f's_lshl_b32 s{S_T0}, s{S_T0}, 2'); I(f'v_xor_b32 v10, s{S_T0}, v10')
        I('v_lshlrev_b32 v10, 4, v10'); I('v_and_b32 v9, 1, v9'); I('v_lshlrev_b32 v9, 3, v9'); I('v_add_u32 v10, v10, v9')
        I(f's_lshl_b32 s{S_T0}, s{S_WL}, 5'); I(f'v_add_u32 v8, s{S_T0}, v8'); I('v_mul_u32_u24 v8, 896, v8'); I('v_add_u32 v8, v8, v10')
        I(f's_lshl_b32 s{S_T0}, s{S_G}, 7'); I(f'v_add_u32 v8, s{S_T0}, v8'); I('v_xor_b32 v9, 32, v8')
        for y in range(2):
            for x in range(2):
                I(f'ds_read_b64 {vr(V_XR+4*y+2*x,2)}, v{8+(x^y)} offset:{LDS_X+y*14336}', tag='xres')
    def ln_fix(self):
        I=self.I
        self.wait(lg=['stat'])
        for im in range(2):
            sb=104+4*im
            for t in range(0,16,2):
                r=V_RAW+16*im+t
                I(f'v_pk_fma_f32 v[{r}:{r+1}], v[{16+t}:{17+t}], v[{sb}:{sb+1}], v[{r}:{r+1}] neg_lo:[1,0,0] neg_hi:[1,0,0]')
            for t in range(0,16,2):
                r=V_RAW+16*im+t
                I(f'v_pk_mul_f32 v[{r}:{r+1}], v[{r}:{r+1}], v[{88+t}:{89+t}]')

    def scan1(self):
        I=self.I
        ER,EI,T0,T1=16,17,18,19
        L16R,L16I=V_IN,V_IN+1
        I(f'v_mov_b32 v{ER}, v{V_RAW}'); I(f'v_mov_b32 v{EI}, v{V_RAW+16}')
        for t in range(1,16):
            I(f'v_fma_f32 v{T0}, v{V_LR}, v{ER}, v{V_RAW+t}')
            I(f'v_fma_f32 v{T1}, v{V_LR}, v{EI}, v{V_RAW+16+t}')
            I(f'v_fma_f32 v{T0}, -v{V_LI}, v{EI}, v{T0}')
            I(f'v_fma_f32 v{EI}, v{V_LI}, v{ER}, v{T1}')
            ER,T0=T0,ER
        GR=[20,21,22,23]; GI=[24,25,26,27]
        self.allgather_q(ER,*GR); self.allgather_q(EI,*GI)
        for q in range(1,4):
            self.cfma(GR[q],GI[q],L16R,L16I,GR[q-1],GI[q-1],GR[q],GI[q],28,29)
        I(f'v_mov_b32 v{V_SR}, 0'); I(f'v_mov_b32 v{V_SI}, 0')
        for n,(lo,hi) in enumerate((('0xffff0000','-1'),('0','-1'),('0','0xffff0000'))):
            self.exec_set(lo,hi); I(f'v_mov_b32 v{V_SR}, v{GR[n]}'); I(f'v_mov_b32 v{V_SI}, v{GI[n]}')
        self.exec_full()
        I(f'v_mov_b32 v10, v{GR[3]}'); I(f'v_mov_b32 v11, v{GI[3]}')
        I(f'v_lshlrev_b32 v8, 3, v{V_LANE}')
        I(f's_lshl_b32 s{S_T0}, s{S_G}, 5'); I(f's_add_u32 s{S_T0}, s{S_T0}, s{S_C}'); I(f's_lshl_b32 s{S_T0}, s{S_T0}, 9')
        I(f's_lshl_b32 s{S_T1}, s{S_W}, 7'); I(f's_add_u32 s{S_T0}, s{S_T0}, s{S_T1}'); I(f's_add_u32 s{S_T0}, s{S_T0}, {WS_E}')
        self.exec_set('0xffff',0)
        I(f'buffer_store_dwordx2 v[10:11], v8, {srd(SRD_WS)}, s{S_T0} offen sc1', tag='stE')
        self.exec_full()

    def wait_e0(self):
        I=self.I
        L=self.newlabel('e0'); D=self.newlabel('e0d')
        self.wait(vm=['e0c'])
        I('v_cmp_gt_u32 vcc, 64, v34'); I(f's_cbranch_vccz {D}')
        snap=self.snapshot()
        I(f's_mov_b32 s{S_BOUND}, 0x40000')
        self.label(L)
        I(f'global_load_dword v34, v35, {sp(P_DBG)} sc1'); I('s_waitcnt vmcnt(0)')
        I('v_cmp_gt_u32 vcc, 64, v34'); I(f's_cbranch_vccz {D}')
        I('s_sleep 4'); I(f's_sub_u32 s{S_BOUND}, s{S_BOUND}, 1'); I(f's_cbranch_scc0 {L}')
        self.label(D); self.restore(snap)

    def dedup_touch(self, sbase, nl=64, dst=13):
        I=self.I
        I(f'v_lshlrev_b32 v9, 7, v{V_LANE}')
        if nl<64: self.exec_set('-1','0')
        I(f'buffer_load_dword v{dst}, v9, {srd(SRD_WS)}, s{sbase} offen sc1', tag='touch')
        if nl<64: self.exec_full()
    def gemm1(self):
        I=self.I
        SL=[V_RING+16*i for i in range(6)]
        DEP=len(SL)
        I(f's_mul_i32 s22, s{S_DT1}, 262144'); I(f's_lshl_b32 s{S_T0}, s{S_W}, 16'); I(f's_add_u32 s22, s22, s{S_T0}')
        I(f's_lshl_b32 s{S_T0}, s{S_WL}, 11'); I(f's_xor_b32 s{S_T1}, s{S_T0}, 2048')
        I(f's_add_u32 s23, s22, s{S_T1}'); I(f's_add_u32 s22, s22, s{S_T0}')
        I(f's_mov_b32 s{S_A}, s22'); I(f's_mov_b32 s{S_B}, s23')
        def ld(k,y):
            r=SL[k%DEP]
            sx=S_A if y<2 else S_B
            I(f'buffer_load_dwordx4 {vr(r+4*y,4)}, v{V_L16}, {srd(SRD_WS)}, s{sx} offen offset:{(y&1)*1024} sc1', tag=('ht',k,y))
            if (y&1) and k<15: I(f's_add_u32 s{sx}, s{sx}, 4096')
        pro=[(k,y) for k in range(DEP) for y in range(4)]
        while pro:
            ld(*pro.pop(0))
            if self.R['iss']<self.R['n']: self.ring_tick()
            if self.opt.tHT and len(pro)==self.opt.tHTpos:
                I(f's_mul_i32 s{S_T2}, s86, 37'); I(f's_lshr_b32 s{S_T2}, s{S_T2}, 8'); I(f's_lshl_b32 s{S_T2}, s{S_T2}, 13')
                I(f's_mul_i32 s{S_T3}, s{S_DT1}, 262144'); I(f's_add_u32 s{S_T2}, s{S_T2}, s{S_T3}'); I(f's_lshl_b32 s{S_T3}, s{S_W}, 16')
                I(f's_add_u32 s{S_T2}, s{S_T2}, s{S_T3}'); I(f's_add_u32 s{S_T2}, s{S_T2}, {6*4096}')
                self.dedup_touch(S_T2,dst=12)
        self.ring_finish(); self.wait(lg='all')
        self.stamp('w1 in regs')
        self.w2_setup(); self.R['maxrd']=0
        for k in range(16):
            r=SL[k%DEP]
            for y in range(4):
                self.wait(vm=[('ht',k,y)])
                if y==0: self.stamp(f'g1.{k}',fine=3)
                for x in range(4):
                    d=V_ACC+16*x+4*y
                    cin=vr(d,4) if k else '0'
                    I(f'v_mfma_f32_16x16x32_bf16 {vr(d,4)}, {ar(16*k+4*x,4)}, {vr(r+4*y,4)}, {cin}')
                if k+DEP<16: ld(k+DEP,y)
                else:
                    self.R['maxrd']=k
                    self.tick()
        self.R['maxrd']=99
        self.stamp('g1loop')

    def p2_flag_addr(self):
        I=self.I
        I(f's_mul_i32 s{S_T0}, s{S_W}, 7'); I(f's_lshr_b32 s{S_T1}, s{S_T0}, 2')
        I(f's_mul_i32 s{S_T2}, s{S_C}, 7'); I(f's_add_u32 s{S_T2}, s{S_T2}, s{S_T1}')
        I(f's_add_u32 s{S_T3}, s{S_T0}, 6'); I(f's_lshr_b32 s{S_T3}, s{S_T3}, 2'); I(f's_sub_u32 s{S_T3}, s{S_T3}, s{S_T1}')
        I(f'v_min_u32 v14, s{S_T3}, v{V_LANE}'); I(f'v_add_u32 v14, s{S_T2}, v14'); I('v_lshlrev_b32 v14, 6, v14')
        I(f'v_add_u32 v14, {WS_FH}, v14')
        I(f'v_min_u32 v8, 13, v{V_LANE}'); I('v_lshlrev_b32 v9, 6, v8')
        I(f's_mul_i32 s{S_T1}, s{S_G}, 28'); I(f's_add_u32 s{S_T1}, s{S_T1}, s{S_T0}'); I(f's_lshl_b32 s{S_T1}, s{S_T1}, 6'); I(f's_add_u32 s{S_T1}, s{S_T1}, {WS_FG}')
        I(f's_lshl_b32 s{S_T0}, s{S_T0}, 6'); I(f's_add_u32 s{S_T0}, s{S_T0}, {WS_FC-7*64}')
        I(f'v_mov_b32 v10, s{S_T1}'); I(f'v_mov_b32 v11, s{S_T0}'); I('v_cmp_gt_u32 vcc, 7, v8'); I('v_cndmask_b32 v10, v11, v10, vcc')
        I('v_add_u32 v12, v9, v10')

    def e_addr(self):
        I=self.I
        OF=V_EOF
        I(f's_lshl_b32 s{S_T0}, s{S_G}, 14'); I(f's_add_u32 s{S_T0}, s{S_T0}, {WS_E}')
        I(f's_add_u32 s{SRD_1}, s{P_WS}, s{S_T0}'); I(f's_addc_u32 s{SRD_1+1}, s{P_WS+1}, 0')
        I(f's_and_b32 s{SRD_1+1}, s{SRD_1+1}, 0xffff'); I(f's_mov_b32 s{SRD_1+2}, 16384'); I(f's_mov_b32 s{SRD_1+3}, 0x20000')
        I(f'v_lshrrev_b32 v8, 4, v{V_LANE}'); I('v_lshlrev_b32 v8, 12, v8')
        I(f'v_and_b32 v9, 15, v{V_LANE}'); I('v_lshlrev_b32 v9, 3, v9'); I('v_add_u32 v8, v8, v9')
        I(f's_sub_u32 s{S_T0}, s{S_C}, 32'); I(f's_lshl_b32 s{S_T0}, s{S_T0}, 9'); I(f's_lshl_b32 s{S_T1}, s{S_W}, 7')
        I(f's_add_u32 s{S_T0}, s{S_T0}, s{S_T1}'); I(f'v_add_u32 v8, s{S_T0}, v8')
        for i in range(8): I(f'v_add_u32 v{OF+i}, {512*i}, v8')
    def e_loads(self):
        for i in range(8):
            self.I(f'buffer_load_dwordx2 {vr(V_EL+2*i,2)}, v{V_EOF+i}, {srd(SRD_1)}, 0 offen sc1', tag='E')

    def finalize(self):
        I=self.I
        EL=V_EL
        L=self.newlabel('pollE'); Dn=self.newlabel('pollEd')
        sv=self.auto; self.auto=0
        self.wait(vm=['E'])
        I(f's_mov_b32 s{S_BOUND}, 0x40000')
        self.label(L)
        I(f'v_max3_u32 v8, v{EL}, v{EL+1}, v{EL+2}')
        for i in range(3,15,2): I(f'v_max3_u32 v8, v8, v{EL+i}, v{EL+i+1}')
        I(f'v_max_u32 v8, v8, v{EL+15}')
        I('v_cmp_eq_u32 vcc, -1, v8')
        I(f's_cbranch_vccz {Dn}')
        snap=self.snapshot()
        self.e_loads()
        I('s_waitcnt vmcnt(0)')
        I('s_sleep 4'); I(f's_sub_u32 s{S_BOUND}, s{S_BOUND}, 1'); I(f's_cbranch_scc0 {L}')
        self.label(Dn); self.restore(snap)
        self.auto=sv
        yield
        QR,QI=EL,EL+1
        for i in range(1,8):
            self.cfma(QR,QI,V_L64R,V_L64I,QR,QI,EL+2*i,EL+2*i+1,36,37)
            yield
        GR=[20,21,22,23]; GI=[24,25,26,27]
        self.allgather_q(QR,*GR); yield
        self.allgather_q(QI,*GI); yield
        for q in range(1,4):
            self.cfma(GR[q],GI[q],V_L512R,V_L512I,GR[q-1],GI[q-1],GR[q],GI[q],28,29)
            yield
        self.cfma(V_SR,V_SI,V_PR,V_PI,GR[3],GI[3],V_SR,V_SI,28,29)
        yield
        HR,HI,T0,T1=V_SR,V_SI,36,37
        OR,OI=V_RAW,V_RAW+16
        for t in range(16):
            I(f'v_fma_f32 v{T0}, v{V_LR}, v{HR}, v{OR+t}')
            I(f'v_fma_f32 v{T1}, v{V_LR}, v{HI}, v{OI+t}')
            I(f'v_fma_f32 v{T0}, -v{V_LI}, v{HI}, v{T0}')
            I(f'v_fma_f32 v{HI}, v{V_LI}, v{HR}, v{T1}')
            HR,T0=T0,HR
            yield
            I(f'v_mul_f32 v{OR+t}, v{V_K1}, v{HR}'); I(f'v_mul_f32 v{OI+t}, v{V_K2}, v{HR}')
            I(f'v_fma_f32 v{OR+t}, v{V_K2}, v{HI}, v{OR+t}'); I(f'v_fma_f32 v{OI+t}, -v{V_K1}, v{HI}, v{OI+t}')
            yield
        for t in range(8):
            I(f'v_cvt_pk_bf16_f32 v{OR+t}, v{OR+2*t}, v{OR+2*t+1}'); I(f'v_cvt_pk_bf16_f32 v{OI+t}, v{OI+2*t}, v{OI+2*t+1}')
            if t%2: yield
        I(f'v_and_b32 v8, 15, v{V_LANE}'); I(f's_lshl_b32 s{S_T0}, s{S_WL}, 4'); I(f'v_add_u32 v8, s{S_T0}, v8')
        I('v_lshrrev_b32 v9, 3, v8'); I('v_lshlrev_b32 v9, 2, v9')
        yield
        I('v_and_b32 v10, 3, v8'); I('v_add_u32 v9, v9, v10')
        I('v_bfe_u32 v10, v8, 2, 1'); I('v_lshlrev_b32 v11, 4, v10'); I('v_add_u32 v9, v9, v11')
        yield
        I('v_and_b32 v11, 7, v9'); I('v_lshlrev_b32 v10, 2, v10'); I('v_xor_b32 v11, v11, v10')
        I(f'v_lshrrev_b32 v10, 4, v{V_LANE}'); I('v_lshlrev_b32 v10, 1, v10')
        yield
        I('v_xor_b32 v10, v10, v11'); I('v_lshlrev_b32 v10, 4, v10')
        I('v_lshlrev_b32 v9, 7, v9'); I('v_add_u32 v9, v9, v10')
        yield
        I(f's_lshl_b32 s{S_T0}, s{S_WH}, 12'); I(f'v_add_u32 v9, s{S_T0}, v9')
        I('v_xor_b32 v10, 16, v9')
        I('s_barrier')
        I(f'ds_write_b128 v9, {vr(OR,4)} offset:{LDS_X}', tag='hw'); I(f'ds_write_b128 v10, {vr(OR+4,4)} offset:{LDS_X}', tag='hw')
        I(f'ds_write_b128 v9, {vr(OI,4)} offset:{LDS_X+8192}', tag='hw'); I(f'ds_write_b128 v10, {vr(OI+4,4)} offset:{LDS_X+8192}', tag='hw')
        yield
        I(f'v_lshrrev_b32 v8, 2, v{V_LANE}'); I('v_and_b32 v9, 7, v8'); I(f'v_bfe_u32 v10, v{V_LANE}, 1, 1')
        I('v_xor_b32 v9, v9, v10'); I('v_lshlrev_b32 v9, 4, v9')
        yield
        I('v_lshlrev_b32 v8, 7, v8'); I('v_add_u32 v8, v8, v9')
        I(f'v_and_b32 v9, 1, v{V_LANE}'); I('v_lshlrev_b32 v9, 3, v9'); I('v_add_u32 v8, v8, v9')
        I(f's_lshl_b32 s{S_T0}, s{S_W}, 12'); I(f'v_add_u32 v8, s{S_T0}, v8')
        yield
        self.wait(lg=['hw']); I('s_barrier')
        FR=16
        for nb in range(4):
            I(f'v_xor_b32 v9, {nb<<5}, v8'); I('v_xor_b32 v10, 64, v9')
            I(f'ds_read_b64_tr_b16 {vr(FR+4*nb,2)}, v9 offset:{LDS_X}', tag=('hp',nb))
            I(f'ds_read_b64_tr_b16 {vr(FR+4*nb+2,2)}, v10 offset:{LDS_X+2048}', tag=('hp',nb))
        I(f's_mul_i32 s{S_T0}, s{S_C}, {28*4096}'); I(f's_lshl_b32 s{S_T1}, s{S_G}, 14'); I(f's_add_u32 s{S_T0}, s{S_T0}, s{S_T1}')
        I(f's_lshl_b32 s{S_T1}, s{S_W}, 12'); I(f's_add_u32 s{S_T0}, s{S_T0}, s{S_T1}'); I(f's_add_u32 s94, s{S_T0}, {WS_HP}')
        yield
        if self.opt.gearly: I(f'global_load_dword v53, v12, {sp(P_WS)} sc1', tag='fg')
        for nb in range(4):
            self.wait(lg=[('hp',nb)])
            I(f'buffer_store_dwordx4 {vr(FR+4*nb,4)}, v{V_L16}, {srd(SRD_WS)}, s94 offen offset:{nb*1024} sc1', tag='stH')
            yield

    def flag_set(self, sa, mul, sb, base):
        I=self.I
        L=self.newlabel('flag')
        I(f's_cmp_lg_u32 s{S_W}, 0'); I(f's_cbranch_scc1 {L}')
        snap=self.snapshot()
        I(f's_mul_i32 s{S_T0}, s{sa}, {mul}'); I(f's_add_u32 s{S_T0}, s{S_T0}, s{sb}'); I(f's_lshl_b32 s{S_T0}, s{S_T0}, 6')
        I(f's_add_u32 s{S_T0}, s{S_T0}, {base}')
        I('v_mov_b32 v8, 0'); I('v_mov_b32 v9, 1')
        self.exec_set(1,0)
        I(f'buffer_store_dword v9, v8, {srd(SRD_WS)}, s{S_T0} offen sc1')
        self.exec_full()
        self.label(L); self.merge(snap)

    def g_bias_load(self):
        I=self.I
        I(f'v_lshrrev_b32 v8, 4, v{V_LANE}'); I('v_lshlrev_b32 v8, 3, v8')
        I(f's_lshl_b32 s{S_T0}, s{S_FT}, 7'); I(f's_lshl_b32 s{S_T1}, s{S_WH}, 6'); I(f's_add_u32 s{S_T0}, s{S_T0}, s{S_T1}')
        I(f'v_add_u32 v8, s{S_T0}, v8')
        I(f'global_load_dwordx2 v[32:33], v8, {sp(P_B1)}', tag='b1')
        I(f'global_load_dwordx2 v[34:35], v8, {sp(P_B1)} offset:32', tag='b1')

    def g_epilogue(self):
        I=self.I
        self.auto=self.opt.gepip
        self.reduce(V_RING)
        self.wait(vm=['b1'])
        for x in range(2):
            for h in range(2):
                I(f'v_lshlrev_b32 v{16+4*x+2*h}, 16, v{32+2*x+h}'); I(f'v_and_b32 v{17+4*x+2*h}, s{S_MASK}, v{32+2*x+h}')
        C1=-2.0*0.7978845608028654*1.4426950408889634
        C3=C1*0.044715
        import struct
        f2h=lambda f:'0x%08x'%struct.unpack('<I',struct.pack('<f',f))[0]
        I(f's_mov_b32 s{S_T2}, {f2h(C1)}'); I(f's_mov_b32 s{S_T3}, {f2h(C3)}')
        I(f'v_mov_b32 v31, s{S_T2}')
        U=[]
        for x in range(2):
            for y in range(2):
                for r in range(4):
                    U.append((V_ACC+16*x+4*y+r, 16+4*x+r))
        TT=V_RING
        for n,(u,b) in enumerate(U): I(f'v_add_f32 v{u}, v{u}, v{b}')
        for n,(u,b) in enumerate(U): I(f'v_mul_f32 v{TT+n}, v{u}, v{u}')
        for n,(u,b) in enumerate(U): I(f'v_fma_f32 v{TT+n}, v{TT+n}, s{S_T3}, v31')
        for n,(u,b) in enumerate(U): I(f'v_mul_f32 v{TT+n}, v{TT+n}, v{u}')
        for n,(u,b) in enumerate(U): I(f'v_exp_f32 v{TT+n}, v{TT+n}')
        for n,(u,b) in enumerate(U): I(f'v_add_f32 v{TT+n}, 1.0, v{TT+n}')
        for n,(u,b) in enumerate(U): I(f'v_rcp_f32 v{TT+n}, v{TT+n}')
        for n,(u,b) in enumerate(U): I(f'v_mul_f32 v{u}, v{u}, v{TT+n}')
        F=V_RING+16
        for y in range(2):
            for x in range(2):
                a=V_ACC+16*x+4*y
                I(f'v_cvt_pk_bf16_f32 v{F+4*y+2*x}, v{a}, v{a+1}'); I(f'v_cvt_pk_bf16_f32 v{F+4*y+2*x+1}, v{a+2}, v{a+3}')
        I(f's_mul_i32 s{S_T0}, s{S_DT1}, {56*4096}'); I(f's_lshl_b32 s{S_T1}, s{S_FT}, 13'); I(f's_add_u32 s{S_T0}, s{S_T0}, s{S_T1}')
        I(f's_lshl_b32 s{S_T1}, s{S_WH}, 12'); I(f's_add_u32 s{S_T0}, s{S_T0}, s{S_T1}')
        I(f's_lshl_b32 s{S_T1}, s{S_WL}, 11'); I(f's_add_u32 s{S_T0}, s{S_T0}, s{S_T1}'); I(f's_add_u32 s{S_T0}, s{S_T0}, {WS_GT}')
        for y in range(2):
            I(f'buffer_store_dwordx4 {vr(F+4*y,4)}, v{V_L16}, {srd(SRD_WS)}, s{S_T0} offen offset:{y*1024} sc1', tag='stG')
        self.auto=0
        self.e_addr(); self.e_loads()
        self.p2_flag_addr(); self.p2_bases()
        I(f'global_load_dword v54, v12, {sp(P_WS)} sc1', tag='fc')
        for n in range(self.opt.gwait): self.tick()
        self.wait(vm=['stG']); I('s_barrier')
        self.flag_set(S_DT1,28,S_FT,WS_FG)

    def w2_setup(self):
        I=self.I
        self.make_srd(SRD_W, P_W2, 1792*4096)
        self.ring_setup(4096, S_WL)
        I(f's_mul_i32 s{S_WBEG}, s{S_W}, {448*4096}'); I(f's_lshl_b32 s{S_T0}, s{S_C}, 7'); I(f's_add_u32 s{S_WBEG}, s{S_WBEG}, s{S_T0}')
        I(f's_mov_b32 s{S_WO}, s{S_WBEG}')
        self.ring_init('w2',14,4096,range(6))

    def rot_g(self, dst):
        I=self.I
        I(f's_mul_i32 s{dst}, s86, 37'); I(f's_lshr_b32 s{dst}, s{dst}, 8')
        I(f's_mul_i32 s{dst}, s{dst}, {7*self.opt.rot2}'); I(f's_lshr_b32 s{dst}, s{dst}, 1')
    def cpack(self):
        I=self.I
        L=self.newlabel('nocp')
        I(f's_cmp_ge_u32 s{S_E}, 28'); I(f's_cbranch_scc1 {L}')
        I(f's_mov_b32 s{SRD_1+2}, {448*896}'); I(f's_mov_b32 s{SRD_1+3}, 0x20000')
        I(f's_bitcmp1_b32 s{S_E}, 1')
        I(f's_cselect_b32 s{SRD_1}, s{P_CIM}, s{P_CRE}'); I(f's_cselect_b32 s{SRD_1+1}, s{P_CIM+1}, s{P_CRE+1}')
        I(f'v_and_b32 v9, 15, v{V_LANE}'); I('v_mul_u32_u24 v9, 896, v9'); I(f'v_lshrrev_b32 v10, 4, v{V_LANE}')
        I('v_lshlrev_b32 v10, 4, v10'); I('v_add_u32 v10, v9, v10')
        I(f's_lshr_b32 s{S_T0}, s{S_E}, 2'); I(f's_lshl_b32 s{S_T0}, s{S_T0}, 7')
        I(f's_and_b32 s{S_T1}, s{S_E}, 1'); I(f's_lshl_b32 s{S_T1}, s{S_T1}, 6'); I(f's_add_u32 s{S_T0}, s{S_T0}, s{S_T1}')
        I(f's_mul_i32 s{S_T1}, s{S_W}, {16*896}'); I(f's_add_u32 s{S_T0}, s{S_T0}, s{S_T1}')
        for dt in range(7):
            I(f'buffer_load_dwordx4 {vr(56+4*dt,4)}, v10, {srd(SRD_1)}, s{S_T0} offen', tag=('cp',dt))
            if dt<6: I(f's_add_u32 s{S_T0}, s{S_T0}, {64*896}')
        I(f's_lshl_b32 s{S_T0}, s{S_E}, 12'); I(f's_lshl_b32 s{S_T1}, s{S_W}, 10'); I(f's_add_u32 s{S_T0}, s{S_T0}, s{S_T1}')
        I(f's_add_u32 s{S_T0}, s{S_T0}, {WS_CP}')
        for dt in range(7):
            self.wait(vm=[('cp',dt)])
            I(f'buffer_store_dwordx4 {vr(56+4*dt,4)}, v{V_L16}, {srd(SRD_WS)}, s{S_T0} offen sc1', tag='stC')
            if dt<6: I(f's_add_u32 s{S_T0}, s{S_T0}, {28*4096}')
        self.label(L)
    def cpack_flag(self):
        I=self.I
        L=self.newlabel('nocf')
        Lp=self.newlabel('w0poll')
        self.wait(vm='all')
        I(f's_cmp_lg_u32 s{S_W}, 0'); I(f's_cbranch_scc1 {Lp}')
        I(f'v_and_b32 v8, 3, v{V_LANE}'); I('v_lshlrev_b32 v8, 6, v8')
        self.poll('e0e', 8, P_DBG, 64)
        self.label(Lp)
        I('s_barrier')
        I(f's_cmp_ge_u32 s{S_E}, 28'); I(f's_cbranch_scc1 {L}')
        I(f's_mov_b32 s{S_T1}, 0')
        self.flag_set(S_T1,1,S_E,WS_FC)
        self.label(L)

    def p2_resid_loads(self):
        I=self.I
        self.make_srd(SRD_OUT, P_OUT, 2048*1792)
        I(f'v_and_b32 v7, 15, v{V_LANE}'); I(f'v_lshrrev_b32 v8, 4, v{V_LANE}')
        I('v_mul_u32_u24 v9, 896, v7'); I('v_lshlrev_b32 v10, 3, v8'); I('v_add_u32 v9, v9, v10')
        I(f's_lshl_b32 s{S_T0}, s{S_C}, 6'); I(f's_lshl_b32 s{S_T1}, s{S_WL}, 5'); I(f's_add_u32 s{S_T0}, s{S_T0}, s{S_T1}')
        I(f's_lshl_b32 s{S_T1}, s{S_G}, 6'); I(f's_lshl_b32 s{S_T2}, s{S_WH}, 5'); I(f's_add_u32 s{S_T1}, s{S_T1}, s{S_T2}')
        I('v_lshrrev_b32 v9, 2, v7'); I(f'v_mul_u32_u24 v9, {YW}, v9'); I('v_and_b32 v11, 3, v7'); I('v_lshlrev_b32 v11, 2, v11'); I('v_add_u32 v9, v9, v11')
        I(f's_lshl_b32 s{S_T2}, s{S_WL}, 5'); I(f's_add_u32 s{S_T2}, s{S_T2}, {LDS_Y+24576}'); I(f'v_add_u32 v9, s{S_T2}, v9')
        for y in range(2):
            I(f'ds_read_b32 v{24+2*y}, v9 offset:{16*y}', tag='rstat'); I(f'ds_read_b32 v{25+2*y}, v9 offset:{16*y+64}', tag='rstat')
        I(f's_lshl_b32 s{S_T2}, s{S_T1}, 1'); I(f'v_add_u32 v9, s{S_T2}, v10')
        I(f'global_load_dwordx2 v[28:29], v9, {sp(P_DSK)}', tag='res')
        I(f'global_load_dwordx2 v[30:31], v9, {sp(P_DSK)} offset:32', tag='res')
        I(f'v_add_u32 v9, s{S_T0}, v7'); I('v_lshlrev_b32 v9, 1, v9')
        I(f'global_load_ushort v10, v9, {sp(P_B2)}', tag='res')
        I(f'global_load_ushort v38, v9, {sp(P_B2)} offset:32', tag='res')
    def resid_compute(self):
        I=self.I
        self.wait(vm=['res'], lg=['rstat'])
        I('v_lshlrev_b32 v10, 16, v10'); I('v_lshlrev_b32 v38, 16, v38')
        yield
        for x in range(2):
            for h in range(2):
                I(f'v_lshlrev_b32 v{32+2*h}, 16, v{28+2*x+h}'); I(f'v_and_b32 v{33+2*h}, s{S_MASK}, v{28+2*x+h}')
            yield
            for y in range(2):
                xs=V_XR+4*y+2*x; st=24+2*y; b2=10 if y==0 else 38
                for h in range(2):
                    r=240+8*y+4*x+2*h
                    I(f'v_lshlrev_b32 v{r}, 16, v{xs+h}'); I(f'v_and_b32 v{r+1}, s{S_MASK}, v{xs+h}')
                    I(f'v_pk_add_f32 v[36:37], v[{r}:{r+1}], v[{st}:{st+1}] op_sel_hi:[1,0] neg_lo:[0,1] neg_hi:[0,1]')
                    yield
                    I(f'v_pk_mul_f32 v[36:37], v[36:37], v[{st}:{st+1}] op_sel:[0,1] op_sel_hi:[1,1]')
                    I(f'v_pk_add_f32 v[{r}:{r+1}], v[{r}:{r+1}], v[{b2}:{b2+1}] op_sel_hi:[1,0]')
                    I(f'v_pk_fma_f32 v[{r}:{r+1}], v[36:37], v[{32+2*h}:{33+2*h}], v[{r}:{r+1}]')
                    yield

    CREG=[['v16','v20','v24','v28'],['v32','v36','v40','v44'],['v48','v52','v216','v220'],['v224','v228','v232','v236'],
          ['a0','a4','a8','a12'],['a224','a228','a232','a236'],['a240','a244','a248','a252']]
    def creg(self,i,x):
        r=self.CREG[i][x]; n=int(r[1:]); return f'{r[0]}[{n}:{n+3}]'
    def p2_bases(self):
        I=self.I
        I(f's_mul_i32 s90, s{S_G}, {56*4096}'); I(f's_mul_i32 s{S_T0}, s{S_W}, {14*4096}'); I(f's_add_u32 s90, s90, s{S_T0}')
        I(f's_add_u32 s90, s90, {WS_GT}')
        I(f's_lshl_b32 s{S_T1}, s{S_WH}, 11'); I(f's_xor_b32 s{S_T2}, s{S_T1}, 2048')
        I(f's_add_u32 s92, s90, s{S_T2}'); I(f's_add_u32 s90, s90, s{S_T1}')
        I(f's_mul_i32 s22, s{S_G}, {28*4096}'); I(f's_mul_i32 s{S_T0}, s{S_W}, {7*4096}'); I(f's_add_u32 s22, s22, s{S_T0}')
        I(f's_add_u32 s22, s22, {WS_CP}')
        I(f's_add_u32 s23, s22, s{S_T2}'); I(f's_add_u32 s22, s22, s{S_T1}')
        I(f's_mul_i32 s38, s{S_C}, {28*4096}'); I(f's_add_u32 s38, s38, s{S_T0}'); I(f's_add_u32 s38, s38, {WS_HP}')
        I(f's_lshl_b32 s{S_T1}, s{S_WL}, 11'); I(f's_xor_b32 s{S_T2}, s{S_T1}, 2048')
        I(f's_add_u32 s39, s38, s{S_T2}'); I(f's_add_u32 s38, s38, s{S_T1}')
    def q_c(self, steps):
        I=self.I
        def one(i,x):
            def f():
                b=22 if x<2 else 23
                I(f's_add_u32 s91, s{b}, {i*4096}')
                I(f'buffer_load_dwordx4 {self.creg(i,x)}, v{V_L16}, {srd(SRD_WS)}, s91 offen offset:{(x&1)*1024} sc1', tag=('c',i,x))
            return f
        for i in steps:
            for x in range(4): self.q.append(one(i,x))
    def cflag_check(self):
        I=self.I
        L=self.newlabel('cf'); D=self.newlabel('cfd')
        self.wait(vm=['fc'])
        self.exec_set('0x3f80','0')
        I('v_cmp_gt_u32 vcc, 1, v54'); I(f's_cbranch_vccz {D}')
        snap=self.snapshot()
        I(f's_mov_b32 s{S_BOUND}, 0x40000')
        self.label(L)
        I(f'global_load_dword v54, v12, {sp(P_WS)} sc1'); I('s_waitcnt vmcnt(0)')
        I('v_cmp_gt_u32 vcc, 1, v54'); I(f's_cbranch_vccz {D}')
        I('s_sleep 4'); I(f's_sub_u32 s{S_BOUND}, s{S_BOUND}, 1'); I(f's_cbranch_scc0 {L}')
        self.label(D); self.restore(snap)
        self.exec_full()
    def flag_wait(self, vaddr, vdst, tag):
        I=self.I
        L=self.newlabel('fw'); D=self.newlabel('fwd')
        self.wait(vm=[tag])
        I(f'v_cmp_gt_u32 vcc, 1, v{vdst}'); I(f's_cbranch_vccz {D}')
        snap=self.snapshot()
        I(f's_mov_b32 s{S_BOUND}, 0x40000')
        self.label(L)
        I(f'global_load_dword v{vdst}, v{vaddr}, {sp(P_WS)} sc1'); I('s_waitcnt vmcnt(0)')
        I(f'v_cmp_gt_u32 vcc, 1, v{vdst}'); I(f's_cbranch_vccz {D}')
        I('s_sleep 4'); I(f's_sub_u32 s{S_BOUND}, s{S_BOUND}, 1'); I(f's_cbranch_scc0 {L}')
        self.label(D); self.restore(snap)
    def p2_main(self, pre_only=False):
        I=self.I
        NS=6
        g0=self.opt.sfirst
        steps=[('g',k) for k in range(g0)]
        gi,si=g0,0
        while gi<14 or si<7:
            if si<7: steps.append(('s',si)); si+=1
            if gi<14: steps.append(('g',gi)); gi+=1
        groups=[('g',i) if k=='g' else ('h',i) for k,i in steps]
        gidx={g:n for n,g in enumerate(groups)}
        reg=lambda g: V_RING+16*(gidx[g]%NS)
        pend=[(g,x) for g in groups for x in range(4)]
        done=set(); state={}
        if not pre_only and self.opt.gearly: pend,done,state=self.p2state
        def can(g,x):
            n=gidx[g]-NS
            return n<0 or (groups[n],x) in done
        def issue(nmax):
            n=0
            while n<nmax and pend and can(*pend[0]):
                g,x=pend[0]
                if g[0]=='h' and not state.get('hflag'):
                    self.flag_wait(14,11,'fh'); state['hflag']=True
                    if self.opt.tH:
                        I(f's_lshl_b32 s{S_T2}, s{S_G}, 12'); I(f's_mul_i32 s{S_T3}, s{S_C}, {28*4096}'); I(f's_add_u32 s{S_T2}, s{S_T2}, s{S_T3}')
                        I(f's_mul_i32 s{S_T3}, s{S_W}, {7*4096}'); I(f's_add_u32 s{S_T2}, s{S_T2}, s{S_T3}'); I(f's_add_u32 s{S_T2}, s{S_T2}, {WS_HP}')
                        self.dedup_touch(S_T2,32)
                pend.pop(0)
                b0,b1,nst={'g':(90,92,14),'h':(38,39,7)}[g[0]]
                sx=b0 if x<2 else b1
                I(f'buffer_load_dwordx4 {vr(reg(g)+4*x,4)}, v{V_L16}, {srd(SRD_WS)}, s{sx} offen offset:{(x&1)*1024} sc1', tag=(g,x))
                if (x&1) and g[1]<nst-1: I(f's_add_u32 s{sx}, s{sx}, 4096')
                n+=1
        if pre_only:
            issue(4*NS); self.p2state=(pend,done,state); return
        if not self.opt.gearly:
            issue(self.opt.tGpos)
            if self.opt.tG:
                I(f's_mul_i32 s{S_T2}, s86, 37'); I(f's_lshr_b32 s{S_T2}, s{S_T2}, 8'); I(f's_lshl_b32 s{S_T2}, s{S_T2}, 13')
                I(f's_mul_i32 s{S_T3}, s{S_G}, {56*4096}'); I(f's_add_u32 s{S_T2}, s{S_T2}, s{S_T3}'); I(f's_mul_i32 s{S_T3}, s{S_W}, {14*4096}')
                I(f's_add_u32 s{S_T2}, s{S_T2}, s{S_T3}'); I(f's_add_u32 s{S_T2}, s{S_T2}, {WS_GT+6*4096}')
                self.dedup_touch(S_T2)
            issue(4*NS-self.opt.tGpos)
        first=True
        self.q_c([4])
        for pos,(kind,i) in enumerate(steps):
            if kind=='g' and i==3: I(f'global_load_dword v11, v14, {sp(P_WS)} sc1', tag='fh')
            if kind=='s':
                H=('h',i)
                for x in range(4):
                    self.wait(vm=[('c',i,x)]+([(H,y) for y in range(4)] if x==0 else []))
                    if x==0: self.stamp(f'p2.s{i}',fine=2)
                    for y in range(4):
                        d=V_ACC+16*x+4*y
                        I(f'v_mfma_f32_16x16x32_bf16 {vr(d,4)}, {self.creg(i,x)}, {vr(reg(H)+4*y,4)}, {vr(d,4)}')
                    if x<3: issue(1)
                for y in range(4): done.add((H,y))
                issue(2)
            else:
                A=('g',i)
                for x in range(4):
                    self.wait(vm=[(A,x)])
                    if x==0: self.stamp(f'p2.g{i}',fine=2)
                    for y in range(4):
                        d=V_ACC+16*x+4*y
                        cin='0' if first else vr(d,4)
                        I(f'v_mfma_f32_16x16x32_bf16 {vr(d,4)}, {vr(reg(A)+4*x,4)}, {ar(16*i+4*y,4)}, {cin}')
                    done.add((A,x))
                    issue(1)
                    if i==1: self.q.pop(0)()
            first=False
        assert not pend

    def p2_epilogue(self):
        I=self.I
        if self.opt.outlds: self.out_addr()
        self.reduce(V_RING)
        for y in range(2):
            for x in range(2):
                a=V_ACC+16*x+4*y; r=240+8*y+4*x
                for h in range(2):
                    I(f'v_pk_add_f32 v[{a+2*h}:{a+2*h+1}], v[{a+2*h}:{a+2*h+1}], v[{r+2*h}:{r+2*h+1}]')
        if self.opt.delta:
            import struct
            hx='0x%08x'%struct.unpack('<I',struct.pack('<f',self.opt.delta))[0]
            for y in range(2):
                for x in range(2):
                    for r in range(4):
                        a=V_ACC+16*x+4*y+r
                        I(f'v_add_f32 v{a}, {hx}, v{a}')
        if not self.opt.outlds:
            I(f'v_and_b32 v7, 15, v{V_LANE}'); I(f'v_lshrrev_b32 v8, 4, v{V_LANE}')
            I('v_mul_u32_u24 v9, 1792, v7'); I('v_lshlrev_b32 v10, 4, v8'); I('v_add_u32 v9, v9, v10')
            I(f's_lshl_b32 s{S_T0}, s{S_C}, 6'); I(f's_lshl_b32 s{S_T1}, s{S_WL}, 5'); I(f's_add_u32 s{S_T0}, s{S_T0}, s{S_T1}')
            I(f's_lshl_b32 s{S_T1}, s{S_G}, 6'); I(f's_lshl_b32 s{S_T2}, s{S_WH}, 5'); I(f's_add_u32 s{S_T1}, s{S_T1}, s{S_T2}')
            for y in range(2):
                for x in range(2):
                    I(f's_add_u32 s{S_T2}, s{S_T0}, {16*y}'); I(f's_mul_i32 s{S_T2}, s{S_T2}, 1792')
                    I(f's_add_u32 s{S_T3}, s{S_T1}, {16*x}'); I(f's_lshl_b32 s{S_T3}, s{S_T3}, 2'); I(f's_add_u32 s{S_T2}, s{S_T2}, s{S_T3}')
                    a=V_ACC+16*x+4*y
                    I(f'buffer_store_dwordx4 {vr(a,4)}, v9, {srd(SRD_OUT)}, s{S_T2} offen {self.opt.outmod}')
        else:
            for y in range(2):
                for x in range(2):
                    a=V_ACC+16*x+4*y
                    I(f'ds_write_b128 v{8+x}, {vr(a,4)} offset:{2048*y}', tag='ow')
            self.wait(lg=['ow'])
            for j in range(4):
                I(f'ds_read_b128 {vr(V_RING+4*j,4)}, v10 offset:{1024*j}', tag=('or',j))
            for j in range(4):
                self.wait(lg=[('or',j)])
                I(f'buffer_store_dwordx4 {vr(V_RING+4*j,4)}, v11, {srd(SRD_OUT)}, s{S_A} offen {self.opt.outmod}')
                if j<3: I(f's_add_u32 s{S_A}, s{S_A}, {8*1792}')
    def out_addr(self):
        I=self.I
        I(f'v_and_b32 v7, 15, v{V_LANE}'); I(f'v_lshrrev_b32 v8, 4, v{V_LANE}'); I('v_and_b32 v9, 7, v7'); I('v_xor_b32 v8, v8, v9')
        I('v_lshlrev_b32 v8, 4, v8'); I('v_lshlrev_b32 v7, 7, v7'); I('v_add_u32 v8, v8, v7'); I(f'v_add_u32 v8, s{S_YB}, v8'); I('v_xor_b32 v9, 64, v8')
        I(f'v_lshrrev_b32 v7, 3, v{V_LANE}'); I(f'v_and_b32 v11, 7, v{V_LANE}'); I('v_xor_b32 v10, v11, v7'); I('v_lshlrev_b32 v10, 4, v10')
        I('v_lshlrev_b32 v6, 7, v7'); I('v_add_u32 v10, v10, v6'); I(f'v_add_u32 v10, s{S_YB}, v10')
        I('v_mul_u32_u24 v7, 1792, v7'); I('v_lshlrev_b32 v11, 4, v11'); I('v_add_u32 v11, v11, v7')
        I(f's_lshl_b32 s{S_T0}, s{S_C}, 6'); I(f's_lshl_b32 s{S_T1}, s{S_WL}, 5'); I(f's_add_u32 s{S_T0}, s{S_T0}, s{S_T1}'); I(f's_mul_i32 s{S_T0}, s{S_T0}, 1792')
        I(f's_lshl_b32 s{S_T1}, s{S_G}, 6'); I(f's_lshl_b32 s{S_T2}, s{S_WH}, 5'); I(f's_add_u32 s{S_T1}, s{S_T1}, s{S_T2}'); I(f's_lshl_b32 s{S_T1}, s{S_T1}, 2')
        I(f's_add_u32 s{S_A}, s{S_T0}, s{S_T1}')

    def write_stamps(self):
        if not self.opt.stamps: return
        I=self.I
        I('s_lshl_b32 s3, s2, 2'); I(f's_add_u32 s3, s3, s{S_W}'); I('s_lshl_b32 s3, s3, 8'); I(f's_add_u32 s3, s3, {WS_DBG}')
        I(f'v_lshlrev_b32 v9, 2, v{V_LANE}')
        I(f'buffer_store_dword v{self.vst}, v9, {srd(SRD_WS)}, s3 offen')
        if getattr(self.opt,'dbgwg',-1)>=0 and self.final_stamps:
            L=self.newlabel('dbgout')
            I(f's_cmp_lg_u32 s2, {self.opt.dbgwg}'); I(f's_cbranch_scc1 {L}')
            I(f's_cmp_lg_u32 s{S_W}, 0'); I(f's_cbranch_scc1 {L}')
            I(f'v_readlane_b32 s3, v{self.vst}, 0'); I('s_nop 4')
            I(f'v_subrev_u32 v8, s3, v{self.vst}')
            I(f'v_add_u32 v9, {self.opt.dbgoff}, v{V_LANE}'); I('v_lshlrev_b32 v9, 2, v9')
            I('ds_bpermute_b32 v8, v9, v8'); I('s_waitcnt lgkmcnt(0)')
            I(f'v_lshlrev_b32 v9, 2, v{V_LANE}')
            self.exec_set('0xfffe','0')
            I(f'global_store_dword v9, v8, {sp(P_DBG)}')
            self.exec_full()
            self.label(L)
    def build(self):
        I=self.I; o=self.opt
        if o.stamps: I('v_mov_b32 v55, 0')
        self.prologue()
        self.touches_pre()
        wt=self.opt.w1touch
        if wt=='A' or self.opt.alsoA: self.touch_w1()
        if self.opt.t3start:
            Lt=self.newlabel('t3s')
            I(f's_cmp_lg_u32 s{S_W}, 3'); I(f's_cbranch_scc1 {Lt}')
            snap=self.snapshot()
            self.touch_w1_wg()
            self.label(Lt); self.merge(snap)
        Lcont=self.newlabel('cont')
        I('s_cmp_eq_u32 s74, 1'); I(f's_cbranch_scc1 {Lcont}')
        snap=self.snapshot()
        self.ln8(clears=False)
        self.vm['st0']=0
        self.arrive0()
        if wt=='F': self.touch_w1()
        if wt in ('S','T','U'): self.touch_w1_split(True)
        self.stamp('pf1')
        if self.opt.eorder==3:
            self.touch_pf(2)
            self.wait(vm='all')
        elif self.opt.eorder==0:
            self.cpack()
            self.stamp('cp')
            self.touch_pf(2)
            self.cpack_flag()
        elif self.opt.eorder==1:
            self.touch_pf(2)
            self.stamp('cp')
            self.cpack()
            self.cpack_flag()
        else:
            self.cpack()
            self.cpack_flag()
            self.stamp('cp')
            self.touch_pf(2)
            self.wait(vm='all')
        self.stamp('pf2')
        self.write_stamps()
        I('s_endpgm')
        self.label(Lcont); self.restore(snap)
        if wt=='T': self.touch_w1_split(False)
        self.dma_setup()
        if wt=='E': self.touch_w1(setup_only=True)
        self.w1_setup()
        if self.opt.bfirst: self.q_b(); self.q_x([0,1,2])
        else: self.q_x([0,1,2]); self.q_b()
        for n in range(self.opt.pre): self.tick()
        self.stamp('issued')
        self.auto=self.opt.period if self.opt.ln8tick else 0
        self.ln8()
        self.auto=0
        if wt=='U': self.touch_w1_split(False)
        self.stamp('ln8 stored')
        if self.opt.bfirst: self.q_x([3])
        else:
            rest=self.q; self.q=[]; self.q_x([3]); self.q+=rest
        self.auto=self.opt.period
        self.x_addr()
        self.lam_consts()
        self.auto=0
        self.stamp('lam')
        self.arrive0()
        self.stamp('arrived')
        self.drain_q()
        if wt=='F': self.touch_w1()
        if wt=='S': self.touch_w1_split(False)
        self.stamp('drained')
        self.wait(vm=['x64','bdma']); I('s_barrier')
        self.do_bread()
        if self.opt.b13dma:
            for im in range(2):
                I(f's_add_u32 m0, s{S_YB}, {SLOT_OFF[5]+1024*im}'); I('s_nop 0')
                I(f'buffer_load_dwordx4 v236, {srd(SRD_1 if im==0 else SRD_2)}, s89 offen lds', tag='b13')
        self.auto=self.opt.statp
        self.row_stats()
        self.auto=0
        self.wait(vm=['b13'])
        if self.opt.b13dma:
            I(f'v_and_b32 v8, 15, v{V_LANE}'); I('v_lshlrev_b32 v8, 6, v8'); I(f'v_lshrrev_b32 v9, 4, v{V_LANE}'); I('v_lshlrev_b32 v9, 4, v9')
            I('v_add_u32 v8, v8, v9'); I(f'v_add_u32 v8, s{S_YB}, v8')
            I(f'ds_read_b128 {vr(V_BF+52,4)}, v8 offset:{SLOT_OFF[5]}', tag='b13r'); I(f'ds_read_b128 {vr(V_BF+56+52,4)}, v8 offset:{SLOT_OFF[5]+1024}', tag='b13r')
            self.wait(lg=['b13r'])
        self.stamp('ln64')
        I(f'v_and_b32 v35, 3, v{V_LANE}'); I('v_lshlrev_b32 v35, 6, v35')
        I(f'global_load_dword v34, v35, {sp(P_DBG)} sc1', tag='e0c')
        self.auto=self.opt.bup
        self.bu_gemm()
        self.stamp('bu',fine=True)
        self.auto=0
        self.x_resid_reads()
        self.auto=self.opt.scanp
        self.ln_fix()
        self.scan1()
        self.auto=0
        self.stamp('scan1')
        self.wait_e0()
        self.stamp('e0')
        Lnog=self.newlabel('nog1'); Lj=self.newlabel('g1join')
        I(f's_cmp_eq_u32 s{S_HASG1}, 0'); I(f's_cbranch_scc1 {Lnog}')
        snap=self.snapshot()
        R1=dict(self.R); R1['free']=list(self.R['free']); R1['slot']=dict(self.R['slot'])
        self.g_bias_load()
        self.gemm1()
        self.stamp('gemm1')
        self.g_epilogue()
        self.stamp('gepi')
        I(f's_branch {Lj}')
        snapA=self.snapshot()
        RA={k:self.R[k] for k in ('iss','rd','rel','piece')}; RA['free']=list(self.R['free']); RA['slot']=dict(self.R['slot'])
        self.label(Lnog); self.restore(snap); self.R=R1
        if self.opt.eorder==3:
            I(f's_lshr_b32 s{S_E}, s95, 1'); I(f's_mul_i32 s{S_E}, s{S_E}, 7'); I(f's_add_u32 s{S_E}, s{S_E}, s86'); I(f's_sub_u32 s{S_E}, s{S_E}, 21')
            self.cpack()
            self.wait(vm=['stC']); I('s_barrier')
            I(f's_mov_b32 s{S_T1}, 0')
            self.flag_set(S_T1,1,S_E,WS_FC)
        self.ring_finish(); self.wait(lg='all')
        self.w2_setup()
        self.replay_ring(RA)
        self.e_addr(); self.e_loads()
        self.p2_flag_addr(); self.p2_bases()
        I(f'global_load_dword v54, v12, {sp(P_WS)} sc1', tag='fc')
        self.label(Lj); self.merge(snapA)
        self.cflag_check()
        self.q_c([5,6])
        self.auto=self.opt.finp
        for _ in self.finalize(): pass
        self.auto=0
        self.stamp('final')
        if o.stamps: I('v_mov_b32 v15, v55'); self.vst=15
        self.drain_q()
        if self.opt.gearly:
            self.flag_wait(12,53,'fg')
            self.stamp('flagG')
            self.p2_main(pre_only=True)
        self.p2_resid_loads()
        for n in range(self.opt.rwait):
            if self.R is not None and not self.ring_tick(): self.ring_finish()
        self.auto=self.opt.finp
        for _ in self.resid_compute(): pass
        self.auto=0
        self.wait(vm=['stH']); I('s_barrier')
        self.flag_set(S_C,7,S_G,WS_FH)
        self.q_c([0,1,2,3])
        while self.q or self.R is not None:
            if self.q:
                self.tick()
                if len(self.q)==self.opt.fglead and not self.opt.gearly: I(f'global_load_dword v11, v12, {sp(P_WS)} sc1', tag='fg')
            if self.R is not None:
                if not self.ring_tick(): self.ring_finish()
        self.wait(lg='all')
        self.stamp('w2 in regs')
        if not self.opt.gearly:
            self.flag_wait(12,11,'fg')
            self.stamp('flagG')
        self.p2_main()
        self.stamp('p2')
        self.p2_epilogue()
        self.stamp('end'); self.cstamp('c1')
        self.final_stamps=True
        self.write_stamps()
        self.label('L_exit')
        I('s_endpgm')
        self.label('L_code_end')

def header(lds):
    return f"""; Fused S5 SSM + MLP-Mixer token MLP, one persistent launch (256 workgroups, one per CU).
; @launch grid=(256,1,1) block=(256,1,1) lds={lds}
.amdgcn_target "amdgcn-amd-amdhsa--gfx950"
.text
.globl {KN}
.p2align 8
.type {KN},@function
{KN}:
"""
def footer():
    return f"""
.section .rodata,"a"
.p2align 6
.amdhsa_kernel {KN}
  .amdhsa_next_free_vgpr 512
  .amdhsa_next_free_sgpr 102
  .amdhsa_accum_offset 256
  .amdhsa_group_segment_fixed_size 0
  .amdhsa_kernarg_size 136
  .amdhsa_user_sgpr_count 2
  .amdhsa_user_sgpr_kernarg_segment_ptr 1
  .amdhsa_system_sgpr_workgroup_id_x 1
  .amdhsa_float_denorm_mode_32 3
.end_amdhsa_kernel
"""
if __name__=='__main__':
    ap=argparse.ArgumentParser()
    ap.add_argument('-o',default='k.s'); ap.add_argument('--stamps',action='store_true'); ap.add_argument('--stop',default=''); ap.add_argument('--fine',type=int,default=0); ap.add_argument('--period',type=int,default=48); ap.add_argument('--tHT',type=int,default=0); ap.add_argument('--tHTpos',type=int,default=12); ap.add_argument('--tG',type=int,default=0); ap.add_argument('--tGpos',type=int,default=8); ap.add_argument('--tH',type=int,default=0); ap.add_argument('--outlds',type=int,default=1); ap.add_argument('--b13dma',type=int,default=1); ap.add_argument('--bupj',type=int,default=0); ap.add_argument('--scanp',type=int,default=64); ap.add_argument('--pfearly',type=int,default=1); ap.add_argument('--eorder',type=int,default=1); ap.add_argument('--statp',type=int,default=0); ap.add_argument('--gearly',type=int,default=1); ap.add_argument('--delta',type=float,default=0.0); ap.add_argument('--bup',type=int,default=0); ap.add_argument('--statj',type=int,default=9); ap.add_argument('--outmod',default=''); ap.add_argument('--dbgwg',type=int,default=-1); ap.add_argument('--dbgoff',type=int,default=0); ap.add_argument('--arrlead',type=int,default=10); ap.add_argument('--t3start',type=int,default=0); ap.add_argument('--notouch3',type=int,default=0); ap.add_argument('--own3',type=int,default=0); ap.add_argument('--alsoA',type=int,default=0); ap.add_argument('--now2',type=int,default=0); ap.add_argument('--gepip',type=int,default=0); ap.add_argument('--finp',type=int,default=36); ap.add_argument('--sfirst',type=int,default=10); ap.add_argument('--rwait',type=int,default=8); ap.add_argument('--fglead',type=int,default=6); ap.add_argument('--ln64p',type=int,default=48); ap.add_argument('--bfirst',type=int,default=0); ap.add_argument('--w2late',type=int,default=1); ap.add_argument('--rot1',type=int,default=4); ap.add_argument('--rot2',type=int,default=1); ap.add_argument('--rot3',type=int,default=1); ap.add_argument('--ln8tick',type=int,default=0); ap.add_argument('--bdelay',type=int,default=2); ap.add_argument('--w1touch',default='A'); ap.add_argument('--fin0',type=int,default=4); ap.add_argument('--finrate',type=int,default=2); ap.add_argument('--p2rate',type=int,default=3); ap.add_argument('--pre',type=int,default=1); ap.add_argument('--pre1',type=int,default=8); ap.add_argument('--gwait',type=int,default=6); ap.add_argument('--ht_touch',type=int,default=0); ap.add_argument('--g_touch',type=int,default=0)
    o=ap.parse_args()
    k=K(o); k.build()
    t,n=k.text()
    open(o.o,'w').write(header(LDS_TOTAL)+t+footer())
    print('wrote',o.o,'lines',t.count('\n'),'nop states inserted',n)
    if o.stamps: open(o.o+'.names','w').write(','.join(k.stampnames)); print(k.stampnames)
```

```python
import sys, os, argparse
from asmgen import Gen

KN = "parallel_sum__ssm_conv_s5__mixer_token_mlp__prompt_kernel"

WS_HT    = 0x000000
WS_STAT  = 0x1C0000
WS_E     = 0x1C4000
WS_FH    = 0x1E0000
WS_FG    = 0x1E4000
WS_FC    = 0x1E8000
WS_CP    = 0x780000
WS_GT    = 0x200000
WS_HP    = 0x400000
WS_DBG   = 0x900000

LDS_X  = 0
LDS_Y  = 57344
YW     = 26624
SLOT_OFF = [0, 4096, 8192, 12288, 16384, 20480]
LDS_LN8 = LDS_X + 57344 - 7680
LDS_TOTAL = LDS_Y + 4*YW

P_X, P_LRE, P_LIM, P_BRE, P_BIM, P_CRE, P_CIM, P_LDT = 4,6,8,10,12,14,16,18
P_DSK = 20
P_W1, P_B1, P_W2, P_B2 = 24,26,28,30
P_OUT, P_DBG, P_WS = 32,34,36
SRD_X, SRD_WS, SRD_1, SRD_2, SRD_W, SRD_OUT = 40,44,48,52,56,60
S_W, S_WH, S_WL, S_C, S_G, S_DT1, S_FT, S_HASG1 = 64,65,66,67,68,69,70,71
S_MASK, S_ONES = 72, 73
S_A, S_B, S_WO, S_T0, S_T1, S_T2, S_T3, S_BOUND = 76,77,78,79,80,81,82,83
S_YB = 84
S_WBEG, S_WEND = 96, 97
S_KO, S_KEND = 100, 101
S_FI = 3
S_E = 85
def sp(n): return f's[{n}:{n+1}]'
def srd(n): return f's[{n}:{n+3}]'
def vr(a,n): return f'v[{a}:{a+n-1}]' if n>1 else f'v{a}'
def ar(a,n): return f'a[{a}:{a+n-1}]' if n>1 else f'a{a}'

V_LANE, V_L16 = 0, 1
V_TR = 2
V_DMA = [6,13]
V_T = 16
V_LR,V_LI,V_K1,V_K2,V_SR,V_SI,V_PR,V_PI,V_L64R,V_L64I,V_L512R,V_L512I = range(40,52)
V_IN = 52
V_X64 = 56
V_BF = 112
V_RAW = 224
V_ACC = 56
V_RING = 120
V_EL = 16
V_EOF = 200
V_XR = 216

class K(Gen):
    def __init__(self, opt):
        super().__init__(); self.opt=opt; self.nstamp=0
        self.cur_hi='-1'; self.batch=False; self.final_stamps=False; self.vst=55; self.nx=0; self.nb=0; self.bread=False; self.allow_bread=False; self.bdelay=opt.bdelay; self.q=[]; self.R=None; self.auto=0; self.acc=0; self.in_tick=False; self.full=True
    def I(self,t,tag=None):
        super().I(t,tag)
        if self.in_tick: return
        mn=t.split()[0]
        if mn.startswith(('buffer_','global_')): self.acc=0; return
        if not self.auto: return
        if mn.startswith('v_mfma'): self.acc+=16
        elif mn.startswith(('v_exp','v_rcp','v_sqrt','v_sin','v_cos','v_log')): self.acc+=8
        elif mn.startswith(('v_','ds_')): self.acc+=4
        else: return
        if self.acc>=self.auto and self.full and not mn.startswith(('v_cmp','s_cmp','s_bitcmp')):
            self.tick()
    def tick(self):
        self.in_tick=True; self.acc=0
        if not self.bread and self.allow_bread and self.nb>=34:
            if self.bdelay>0: self.bdelay-=1
            else:
                self.do_bread(); self.in_tick=False; return
        if self.q: self.q.pop(0)()
        elif self.R is not None: self.ring_tick()
        self.in_tick=False
    def do_bread(self):
        self.bread=True
        self.b_read()
        self.wait(lg=['brd'])
        self.ring_init('w1',16,3584,range(6))
    def row_exec(self, hi):
        if self.cur_hi!=hi: self.I(f's_mov_b32 exec_hi, {hi}'); self.cur_hi=hi
    def row_exec_done(self):
        if not self.batch: self.I('s_mov_b32 exec_hi, -1'); self.cur_hi='-1'
    def drain_q(self, batch=False):
        self.batch=batch and self.opt.batchexec
        while self.q: self.tick()
        self.batch=False
        if self.cur_hi!='-1': self.I('s_mov_b32 exec_hi, -1'); self.cur_hi='-1'
    def stamp(self, name, fine=False):
        if not self.opt.stamps: return
        if fine and int(fine)>self.opt.fine: return
        i=self.nstamp; self.nstamp+=1
        assert i<64
        self.c(f'stamp {i}: {name}')
        self.wait(lg='all')
        self.I('s_memrealtime s[98:99]'); self.I('s_waitcnt lgkmcnt(0)'); self.smem=False
        self.I(f'v_writelane_b32 v{self.vst}, s98, {i}')
        self.stampnames=getattr(self,'stampnames',[])+[name]
    def cstamp(self, name):
        if not self.opt.stamps: return
        i=self.nstamp; self.nstamp+=1
        self.wait(lg='all')
        self.I('s_memtime s[98:99]'); self.I('s_waitcnt lgkmcnt(0)'); self.smem=False
        self.I(f'v_writelane_b32 v{self.vst}, s98, {i}')
        self.stampnames=getattr(self,'stampnames',[])+['#'+name]
    def rnd_bf16(self, v):
        self.I(f'v_cvt_pk_bf16_f32 v{v}, v{v}, v{v}')
        self.I(f'v_lshlrev_b32 v{v}, 16, v{v}')
    def make_srd(self, s, ptr, nbytes):
        self.I(f's_mov_b32 s{s}, s{ptr}'); self.I(f's_and_b32 s{s+1}, s{ptr+1}, 0xffff')
        self.I(f's_mov_b32 s{s+2}, {nbytes}'); self.I(f's_mov_b32 s{s+3}, 0x20000')
    def ln_stats(self, SUM, SSQ, R, C, T):
        I=self.I
        I(f'v_mul_f32 v{SUM}, 0x3b124925, v{SUM}')
        I(f'v_mul_f32 v{SSQ}, 0x3b124925, v{SSQ}')
        I(f'v_fma_f32 v{SSQ}, -v{SUM}, v{SUM}, v{SSQ}')
        I(f'v_max_f32 v{SSQ}, 0, v{SSQ}')
        I(f'v_cvt_pk_bf16_f32 v{SUM}, v{SUM}, v{SUM}')
        I(f'v_cvt_pk_bf16_f32 v{SSQ}, v{SSQ}, v{SSQ}')
        I(f'v_lshlrev_b32 v{SUM}, 16, v{SUM}')
        I(f'v_lshlrev_b32 v{SSQ}, 16, v{SSQ}')
        I(f'v_add_f32 v{SSQ}, 0x3727c5ac, v{SSQ}')
        self.rnd_bf16(SSQ)
        I(f'v_sqrt_f32 v{SSQ}, v{SSQ}')
        self.rnd_bf16(SSQ)
        I(f'v_rcp_f32 v{R}, v{SSQ}')
        I(f'v_mul_f32 v{C}, v{SUM}, v{R}')
        I(f'v_sub_f32 v{C}, 0, v{C}')
    def dot_sums(self, regs, accs):
        I=self.I
        for n,d in enumerate(regs):
            s,q = accs[2*(n&1)], accs[2*(n&1)+1]
            if n<2:
                I(f'v_dot2_f32_bf16 v{s}, v{d}, s{S_ONES}, 0')
                I(f'v_dot2_f32_bf16 v{q}, v{d}, v{d}, 0')
            else:
                I(f'v_dot2_f32_bf16 v{s}, v{d}, s{S_ONES}, v{s}')
                I(f'v_dot2_f32_bf16 v{q}, v{d}, v{d}, v{q}')
        I(f'v_add_f32 v{accs[0]}, v{accs[0]}, v{accs[2]}')
        I(f'v_add_f32 v{accs[1]}, v{accs[1]}, v{accs[3]}')
    def normalize(self, regs, R, C, tmps, hook=None):
        I=self.I
        n=len(tmps)
        for b in range(0,len(regs),n):
            grp=regs[b:b+n]
            for d,t in zip(grp,tmps):
                I(f'v_lshlrev_b32 v{t}, 16, v{d}')
                I(f'v_and_b32 v{t+1}, s{S_MASK}, v{d}')
            for d,t in zip(grp,tmps):
                I(f'v_pk_fma_f32 v[{t}:{t+1}], v[{t}:{t+1}], v[{R}:{R+1}], v[{C}:{C+1}] op_sel_hi:[1,0,0]')
            for d,t in zip(grp,tmps):
                I(f'v_cvt_pk_bf16_f32 v{d}, v{t}, v{t+1}')
            if hook: hook(b//n)
    def cmul(self, dr, di, xr, xi, yr, yi, t0, t1):
        I=self.I
        I(f'v_mul_f32 v{t0}, v{xi}, v{yi}')
        I(f'v_mul_f32 v{t1}, v{xi}, v{yr}')
        I(f'v_fma_f32 v{t0}, v{xr}, v{yr}, -v{t0}')
        I(f'v_fma_f32 v{di}, v{xr}, v{yi}, v{t1}')
        I(f'v_mov_b32 v{dr}, v{t0}')
    def cfma(self, dr, di, xr, xi, yr, yi, zr, zi, t0, t1):
        I=self.I
        I(f'v_fma_f32 v{t0}, v{xr}, v{yr}, v{zr}')
        I(f'v_fma_f32 v{t1}, v{xr}, v{yi}, v{zi}')
        I(f'v_fma_f32 v{t0}, -v{xi}, v{yi}, v{t0}')
        I(f'v_fma_f32 v{di}, v{xi}, v{yr}, v{t1}')
        I(f'v_mov_b32 v{dr}, v{t0}')
    def csq(self, dr, di, xr, xi, t0):
        I=self.I
        I(f'v_mul_f32 v{t0}, v{xi}, v{xi}')
        I(f'v_mul_f32 v{di}, v{xr}, v{xi}')
        I(f'v_fma_f32 v{dr}, v{xr}, v{xr}, -v{t0}')
        I(f'v_add_f32 v{di}, v{di}, v{di}')
    def allgather_q(self, v, g0, g1, g2, g3):
        I=self.I
        I(f'v_mov_b32 v{g0}, v{v}'); I(f'v_mov_b32 v{g1}, v{v}')
        I(f'v_permlane16_swap_b32 v{g0}, v{g1}')
        I(f'v_mov_b32 v{g2}, v{g0}'); I(f'v_mov_b32 v{g3}, v{g1}')
        I(f'v_permlane32_swap_b32 v{g0}, v{g2}')
        I(f'v_permlane32_swap_b32 v{g1}, v{g3}')
    def exec_full(self): self.I('s_mov_b64 exec, -1'); self.full=True
    def exec_set(self, lo, hi):
        self.full=False
        self.I(f's_mov_b32 exec_lo, {lo}'); self.I(f's_mov_b32 exec_hi, {hi}')
    def poll(self, name, voff, base, cmp_ge, nlanes_lo=None):
        I=self.I
        L=self.newlabel('poll'); D=self.newlabel('polld')
        I(f's_mov_b32 s{S_BOUND}, 0x40000')
        self.label(L)
        I(f'global_load_dword v7, v{voff}, {sp(base)} sc1')
        I('s_waitcnt vmcnt(0)'); self.vm={}
        I(f'v_cmp_gt_u32 vcc, {cmp_ge}, v7')
        I(f's_cbranch_vccz {D}')
        I('s_sleep 4')
        I(f's_sub_u32 s{S_BOUND}, s{S_BOUND}, 1')
        I(f's_cbranch_scc0 {L}')
        self.label(D)

    def ring_setup(self, pitch, xorsel):
        I=self.I
        I(f'v_lshrrev_b32 v7, 3, v{V_LANE}'); I(f'v_and_b32 v8, 7, v{V_LANE}')
        I('v_and_b32 v9, 6, v7'); I('v_xor_b32 v8, v8, v9'); I('v_lshlrev_b32 v8, 4, v8')
        I(f'v_mul_u32_u24 v7, {pitch}, v7'); I(f'v_add_u32 v{V_DMA[0]}, v7, v8')
        I(f'v_add_u32 v{V_DMA[1]}, {8*pitch-1024}, v{V_DMA[0]}')
        I(f'v_lshrrev_b32 v7, 2, v{V_LANE}'); I('v_and_b32 v8, 6, v7')
        I(f'v_bfe_u32 v9, v{V_LANE}, 1, 1'); I('v_xor_b32 v8, v8, v9'); I('v_lshlrev_b32 v8, 4, v8')
        I('v_lshlrev_b32 v7, 7, v7'); I('v_add_u32 v7, v7, v8')
        I(f'v_and_b32 v9, 1, v{V_LANE}'); I('v_lshlrev_b32 v9, 3, v9'); I('v_add_u32 v7, v7, v9')
        I(f's_lshl_b32 s{S_T0}, s{xorsel}, 6')
        I(f'v_xor_b32 v7, s{S_T0}, v7')
        I(f'v_add_u32 v{V_TR}, s{S_YB}, v7')
        for x in range(1,4):
            I(f'v_xor_b32 v{V_TR+x}, {x<<5}, v{V_TR}')
    def ring_init(self, name, nsteps, pitch, slots):
        self.R=dict(name=name,n=nsteps,pitch=pitch,free=list(slots),slot={},iss=0,rd=0,rel=0,piece=0)
    def ring_add(self, slots): self.R['free']+=list(slots)
    def ring_issue_piece(self):
        R=self.R; I=self.I
        k=R['iss']
        if k>=R['n']: return False
        j=R['piece']
        if j==0:
            if not R['free']: return False
            R['slot'][k]=R['free'].pop(0)
        if j%2==0:
            I(f's_add_u32 m0, s{S_YB}, {SLOT_OFF[R["slot"][k]]+j*1024}')
            if k or j: I(f's_add_u32 s{S_WO}, s{S_WO}, {16*R["pitch"]}')
            else: I('s_nop 0')
        I(f'buffer_load_dwordx4 v{V_DMA[j%2]}, {srd(SRD_W)}, s{S_WO} offen offset:{(j%2)*1024} lds', tag=(R['name'],k))
        R['piece']=(j+1)%4
        if R['piece']==0: R['iss']+=1
        return True
    def ring_issue(self):
        while self.ring_issue_piece(): pass
    def ring_read(self):
        R=self.R; I=self.I
        k=R['rd']
        if k>=R['n']: return False
        assert k<R['iss'], 'read before issue'
        off=SLOT_OFF[R['slot'][k]]
        self.wait(vm=[(R['name'],k)])
        for x in range(4):
            b=16*k+4*x
            I(f'ds_read_b64_tr_b16 {ar(b,2)}, v{V_TR+x} offset:{off}', tag=(R['name'],'r',k))
            I(f'ds_read_b64_tr_b16 {ar(b+2,2)}, v{V_TR+x} offset:{off+2048}', tag=(R['name'],'r',k))
        R['rd']+=1
        return True
    def ring_release(self):
        R=self.R
        k=R['rel']
        if k>=R['rd']: return False
        self.wait(lg=[(R['name'],'r',k)])
        R['free'].append(R['slot'][k]); R['rel']+=1
        self.ring_issue()
        return True
    def ring_tick(self):
        R=self.R
        if R['iss']<R['n']:
            if R['piece']==0 and not R['free']:
                if R['rel']>=R['rd']:
                    assert R['rd']<R.get('maxrd',99)
                    self.ring_read()
                k=R['rel']; self.wait(lg=[(R['name'],'r',k)]); R['free'].append(R['slot'][k]); R['rel']+=1
            self.ring_issue_piece()
            if R['piece']==3 and not R['free'] and R['rd']==R['rel'] and R['rd']<R['iss'] and R['rd']<R.get('maxrd',99):
                self.ring_read()
            return True
        if R['rd']<R['n'] and R['rd']<R.get('maxrd',99): return self.ring_read()
        return False
    def bg(self):
        return self.ring_tick()
    def replay_ring(self, RA):
        R=self.R
        while (R['iss'],R['piece'])<(RA['iss'],RA['piece']) or R['rd']<RA['rd']:
            if (R['iss'],R['piece'])<(RA['iss'],RA['piece']):
                before=R['rd']
                R['maxrd']=RA['rd']
                self.ring_tick()
            else:
                self.ring_read()
        while R['rel']<RA['rel']:
            k=R['rel']; self.wait(lg=[(R['name'],'r',k)]); R['free'].append(R['slot'][k]); R['rel']+=1
        R['maxrd']=99
        for k in RA: assert RA[k]==R[k], (k,RA[k],R[k])
    def ring_finish(self):
        R=self.R; R['maxrd']=99
        while R['rd']<R['n'] or R['iss']<R['n']: self.ring_tick()
        R['rel']=R['n']; self.R=None

    def reduce(self, tmp, pre=None, post=None):
        I=self.I
        for e in (1,2,3):
            I(f's_xor_b32 s{S_T0}, s{S_W}, {e}'); I(f's_mul_i32 s{S_T0}, s{S_T0}, {3*4096}')
            I(f's_add_u32 s{S_T0}, s{S_T0}, {LDS_X+(e-1)*4096}')
            I(f'v_add_u32 v7, s{S_T0}, v{V_L16}')
            xh,yh=e>>1,e&1
            for xl in range(2):
                for yl in range(2):
                    a=V_ACC+16*(2*xh+xl)+4*(2*yh+yl)
                    I(f'ds_write_b128 v7, {vr(a,4)} offset:{(2*xl+yl)*1024}', tag='redw')
        if pre: pre()
        self.wait(lg='all'); I('s_barrier')
        if post: post()
        I(f's_mul_i32 s{S_T0}, s{S_W}, {3*4096}'); I(f'v_add_u32 v7, s{S_T0}, v{V_L16}')
        for e in range(3):
            for sub in range(4):
                I(f'ds_read_b128 {vr(tmp+16*e+4*sub,4)}, v7 offset:{LDS_X+e*4096+sub*1024}', tag=('red',e))
        for e in range(3):
            self.wait(lg=[('red',e)])
            for sub in range(4):
                a=V_ACC+16*(sub>>1)+4*(sub&1)
                for h in range(2):
                    I(f'v_pk_add_f32 v[{a+2*h}:{a+2*h+1}], v[{a+2*h}:{a+2*h+1}], v[{tmp+16*e+4*sub+2*h}:{tmp+16*e+4*sub+2*h+1}]')

    def prologue(self):
        I=self.I
        I('s_cmp_ge_u32 s2, 256'); I('s_cbranch_scc1 L_exit')
        I('s_load_dwordx16 s[4:19], s[0:1], 0')
        if self.opt.pfearly:
            I('s_getpc_b64 s[98:99]'); self.label('L_pc0')
            I(f's_sub_u32 s98, s98, L_pc0-{KN}'); I('s_subb_u32 s99, s99, 0')
            I('v_lshlrev_b32 v9, 7, v0'); I(f'v_min_u32 v9, L_code_end-{KN}-16, v9')
            I('global_load_dword v12, v9, s[98:99]', tag='pf')
        I('s_load_dwordx2 s[20:21], s[0:1], 64')
        I('s_load_dwordx8 s[24:31], s[0:1], 80')
        I('s_load_dwordx4 s[32:35], s[0:1], 112')
        I('s_load_dwordx2 s[36:37], s[0:1], 128')
        I('v_lshrrev_b32 v7, 6, v0'); I(f'v_and_b32 v{V_LANE}, 63, v0')
        I(f'v_readfirstlane_b32 s{S_W}, v7')
        I(f'v_lshlrev_b32 v{V_L16}, 4, v{V_LANE}')
        I(f's_mov_b32 s{S_MASK}, 0xffff0000'); I(f's_mov_b32 s{S_ONES}, 0x3f803f80')
        I('s_and_b32 s22, s2, 7')
        I('s_lshr_b32 s23, s2, 3')
        I('s_and_b32 s38, s22, 1')
        I('s_lshr_b32 s39, s22, 1')
        I(f's_lshr_b32 s{S_WH}, s{S_W}, 1'); I(f's_and_b32 s{S_WL}, s{S_W}, 1')
        I(f's_mul_i32 s{S_T0}, s23, 37'); I(f's_lshr_b32 s{S_T0}, s{S_T0}, 8')
        I(f's_mul_i32 s{S_T1}, s{S_T0}, 7'); I(f's_sub_u32 s{S_G}, s23, s{S_T1}')
        I(f's_mov_b32 s{S_DT1}, s{S_G}')
        I(f's_lshl_b32 s{S_T1}, s22, 2'); I(f's_add_u32 s{S_C}, s{S_T1}, s{S_T0}')
        I(f's_min_u32 s{S_C}, s{S_C}, 31')
        I(f's_mul_i32 s{S_T1}, s39, 7'); I(f's_lshl_b32 s{S_T2}, s38, 2'); I(f's_add_u32 s87, s{S_T1}, s{S_T2}')
        I(f's_add_u32 s{S_FT}, s87, s{S_T0}'); I(f's_min_u32 s{S_FT}, s{S_FT}, 27')
        I(f's_sub_u32 s{S_T1}, 4, s38'); I(f's_cmp_lt_u32 s{S_T0}, s{S_T1}'); I(f's_cselect_b32 s{S_HASG1}, 1, 0')
        I('s_cmp_lt_u32 s23, 28'); I('s_cselect_b32 s74, 1, 0')
        self.wait(lg='all')
        self.make_srd(SRD_X, P_X, 2048*896)
        self.x8_issue(2)
        if not self.opt.pfearly:
            I('s_getpc_b64 s[98:99]'); self.label('L_pc0')
            I(f's_sub_u32 s98, s98, L_pc0-{KN}'); I('s_subb_u32 s99, s99, 0')
            I(f's_and_b32 s{S_T0}, s23, 1'); I(f's_lshl_b32 s{S_T0}, s{S_T0}, 2'); I(f's_add_u32 s{S_T0}, s{S_T0}, s{S_W}')
            I(f's_lshl_b32 s{S_T0}, s{S_T0}, 13')
            I(f'v_lshlrev_b32 v9, 7, v{V_LANE}'); I(f'v_add_u32 v9, s{S_T0}, v9')
            I(f'v_min_u32 v9, L_code_end-{KN}-16, v9')
            I('global_load_dword v12, v9, s[98:99]', tag='pf')
        self.make_srd(SRD_WS, P_WS, 0x10000000)
        I(f's_mul_i32 s{S_YB}, s{S_W}, {YW}'); I(f's_add_u32 s{S_YB}, s{S_YB}, {LDS_Y}')
        I(f's_sub_u32 s{S_E}, s23, 28'); I(f's_lshl_b32 s{S_E}, s{S_E}, 3'); I(f's_add_u32 s{S_E}, s{S_E}, s22')
        I('s_mov_b32 s86, s23'); I('s_mov_b32 s95, s22')
        self.stamp('start'); self.cstamp('c0')

    def x8_issue(self, oct):
        I=self.I
        I(f's_lshr_b32 s75, s{oct}, 2'); I('s_lshl_b32 s75, s75, 5')
        I(f's_lshl_b32 s{S_T0}, s{S_WH}, 4'); I(f's_add_u32 s75, s75, s{S_T0}')
        I(f's_and_b32 s{S_T0}, s{oct}, 3'); I(f's_lshl_b32 s{S_T0}, s{S_T0}, 2'); I(f's_add_u32 s75, s75, s{S_T0}')
        I(f's_lshl_b32 s{S_T0}, s{S_WL}, 1'); I(f's_add_u32 s75, s75, s{S_T0}')
        I(f's_mul_i32 s{S_T2}, s75, 896')
        I(f'v_and_b32 v7, 31, v{V_LANE}'); I(f'v_lshrrev_b32 v8, 5, v{V_LANE}')
        I('v_mul_u32_u24 v8, 896, v8'); I('v_lshlrev_b32 v9, 5, v7'); I('v_add_u32 v8, v8, v9')
        I('v_mov_b32 v9, 0x7ffffff0'); I('v_cmp_gt_u32 vcc, 28, v7'); I('v_cndmask_b32 v8, v9, v8, vcc')
        I(f'buffer_load_dwordx4 {vr(V_T,4)}, v8, {srd(SRD_X)}, s{S_T2} offen', tag='x8')
        I(f'buffer_load_dwordx4 {vr(V_T+4,4)}, v8, {srd(SRD_X)}, s{S_T2} offen offset:16', tag='x8')
    def touches_pre(self):
        I=self.I
        self.make_srd(SRD_1, P_BRE, 448*896); self.make_srd(SRD_2, P_BIM, 448*896); self.make_srd(SRD_W, P_W1, 2048*3584)
        I(f'v_lshrrev_b32 v7, 3, v{V_LANE}'); I(f'v_and_b32 v8, 7, v{V_LANE}'); I('v_min_u32 v8, 6, v8')
        I('v_mul_u32_u24 v7, 896, v7'); I('v_lshlrev_b32 v8, 7, v8'); I('v_add_u32 v7, v7, v8')
        I(f's_lshl_b32 s{S_T3}, s86, 2'); I(f's_add_u32 s{S_T3}, s{S_T3}, s{S_W}')
        I(f's_lshl_b32 s{S_T0}, s95, 8'); I(f's_lshl_b32 s{S_T1}, s{S_T3}, 1'); I(f's_add_u32 s{S_T0}, s{S_T0}, s{S_T1}'); I(f's_mul_i32 s{S_T0}, s{S_T0}, 896')
        self.exec_set('0xffff','0')
        I(f'buffer_load_dword v12, v7, {srd(SRD_X)}, s{S_T0} offen', tag='touch')
        I(f's_and_b32 s{S_T0}, s{S_T3}, 63'); I(f's_mul_i32 s{S_T0}, s{S_T0}, {7*896}')
        I(f's_cmp_lt_u32 s{S_T3}, 64')
        I(f's_cselect_b32 s{SRD_OUT}, s{P_BRE}, s{P_BIM}'); I(f's_cselect_b32 s{SRD_OUT+1}, s{P_BRE+1}, s{P_BIM+1}')
        I(f's_mov_b32 s{SRD_OUT+2}, {448*896}'); I(f's_mov_b32 s{SRD_OUT+3}, 0x20000')
        self.exec_set('-1','0x00ffffff')
        I(f'buffer_load_dword v12, v7, {srd(SRD_OUT)}, s{S_T0} offen', tag='touch')
        self.exec_full()
    def touch_w1(self, setup_only=False):
        I=self.I
        I(f'v_lshrrev_b32 v7, 2, v{V_LANE}'); I(f'v_and_b32 v8, 3, v{V_LANE}')
        I(f's_and_b32 s{S_T1}, s95, 1'); I(f's_sub_u32 s{S_T1}, 3, s{S_T1}'); I(f'v_min_u32 v8, s{S_T1}, v8')
        I('v_mul_u32_u24 v7, 3584, v7'); I('v_lshlrev_b32 v8, 7, v8'); I('v_add_u32 v7, v7, v8')
        I(f's_lshl_b32 s{S_T0}, s{S_W}, 9'); I(f's_lshl_b32 s{S_T1}, s86, 4'); I(f's_add_u32 s{S_T0}, s{S_T0}, s{S_T1}')
        I(f's_mul_i32 s{S_T0}, s{S_T0}, 3584'); I(f's_lshl_b32 s{S_T1}, s87, 7'); I(f's_add_u32 s{S_T0}, s{S_T0}, s{S_T1}')
        if setup_only:
            I('v_mov_b32 v238, v7'); I(f's_mov_b32 s94, s{S_T0}'); return
        I(f'buffer_load_dword v12, v7, {srd(SRD_W)}, s{S_T0} offen', tag='touch')
    def touch_w1_split(self, rest):
        I=self.I
        I(f'v_lshrrev_b32 v7, 2, v{V_LANE}'); I(f'v_and_b32 v8, 3, v{V_LANE}')
        I(f's_and_b32 s{S_T1}, s95, 1'); I(f's_sub_u32 s{S_T1}, 3, s{S_T1}'); I(f'v_min_u32 v8, s{S_T1}, v8')
        I('v_mul_u32_u24 v7, 3584, v7'); I('v_lshlrev_b32 v8, 7, v8'); I('v_add_u32 v7, v7, v8')
        I(f's_lshl_b32 s{S_T0}, s{S_W}, 9')
        if not rest:
            I(f's_lshl_b32 s{S_T1}, s86, 3'); I(f's_add_u32 s{S_T0}, s{S_T0}, s{S_T1}')
        else:
            I(f's_sub_u32 s{S_T1}, s86, 28'); I(f's_lshl_b32 s{S_T1}, s{S_T1}, 4'); I(f's_add_u32 s{S_T0}, s{S_T0}, s{S_T1}'); I(f's_add_u32 s{S_T0}, s{S_T0}, 224')
        I(f's_mul_i32 s{S_T0}, s{S_T0}, 3584'); I(f's_lshl_b32 s{S_T1}, s87, 7'); I(f's_add_u32 s{S_T0}, s{S_T0}, s{S_T1}')
        if not rest:
            self.exec_set('-1','0')
            I(f'buffer_load_dword v12, v7, {srd(SRD_W)}, s{S_T0} offen', tag='touch')
            self.exec_full()
        else:
            for t in range(5):
                I(f'buffer_load_dword v12, v7, {srd(SRD_W)}, s{S_T0} offen', tag='touch')
                if t<4: I(f's_add_u32 s{S_T0}, s{S_T0}, {64*3584}')
    def touch_w1_wg(self):
        I=self.I
        I(f'v_lshrrev_b32 v7, 2, v{V_LANE}'); I(f'v_and_b32 v8, 3, v{V_LANE}')
        I(f's_and_b32 s{S_T1}, s95, 1'); I(f's_sub_u32 s{S_T1}, 3, s{S_T1}'); I(f'v_min_u32 v8, s{S_T1}, v8')
        I('v_mul_u32_u24 v7, 3584, v7'); I('v_lshlrev_b32 v8, 7, v8'); I('v_add_u32 v7, v7, v8')
        I(f's_lshl_b32 s{S_T0}, s86, 4'); I(f's_mul_i32 s{S_T0}, s{S_T0}, 3584'); I(f's_lshl_b32 s{S_T1}, s87, 7'); I(f's_add_u32 s{S_T0}, s{S_T0}, s{S_T1}')
        for q in range(4):
            I(f'buffer_load_dword v12, v7, {srd(SRD_W)}, s{S_T0} offen', tag='touch')
            if q<3: I(f's_add_u32 s{S_T0}, s{S_T0}, {512*3584}')
    def q_w3(self):
        I=self.I
        def xpair(p):
            def f():
                L=self.newlabel('xw3')
                I(f's_add_u32 s100, s{S_W}, {3*p}'); I('s_cmp_ge_u32 s100, 8'); I(f's_cbranch_scc1 {L}')
                snap=self.snapshot()
                I('s_lshl_b32 s101, s100, 4'); I(f'v_xor_b32 v238, s101, v{V_L16}')
                I('s_lshr_b32 s101, s100, 1'); I('s_lshl_b32 s101, s101, 4'); I('s_and_b32 s100, s100, 1'); I('s_lshl_b32 s100, s100, 1')
                I('s_add_u32 s100, s100, s101'); I('s_add_u32 s100, s100, 12'); I('s_mul_i32 s100, s100, 896')
                I(f's_lshl_b32 s101, s{S_C}, 6'); I('s_mul_i32 s101, s101, 896'); I('s_add_u32 s101, s101, s100')
                I('s_mov_b32 exec_hi, 0x00ffffff')
                I(f's_add_u32 m0, s100, {LDS_X}'); I('s_nop 0')
                I(f'buffer_load_dwordx4 v238, {srd(SRD_X)}, s101 offen lds', tag='x64')
                I(f's_add_u32 m0, s100, {LDS_X+896}'); I('s_add_u32 s101, s101, 896')
                I(f'buffer_load_dwordx4 v238, {srd(SRD_X)}, s101 offen lds', tag='x64')
                I('s_mov_b32 exec_hi, -1')
                self.label(L); self.merge(snap); self.vm['x64']=0
            return f
        def bblock(p):
            def f():
                L=self.newlabel('bw3'); Li=self.newlabel('bw3i')
                I(f's_add_u32 s100, s{S_W}, {3*p}'); I('s_cmp_ge_u32 s100, 8'); I(f's_cbranch_scc1 {L}')
                snap=self.snapshot()
                I('s_and_b32 s101, s100, 3'); I('s_sub_u32 s91, 0, s101'); I('s_and_b32 s91, s91, 3'); I('s_lshl_b32 s91, s91, 4')
                I(f'v_xor_b32 v238, s91, v{V_L16}')
                I('s_bitcmp1_b32 s100, 2')
                I(f's_cselect_b32 s{SRD_OUT}, s{P_BIM}, s{P_BRE}'); I(f's_cselect_b32 s{SRD_OUT+1}, s{P_BIM+1}, s{P_BRE+1}')
                I('s_cselect_b32 s100, 13312, 0')
                I('s_mul_i32 s91, s101, 3328'); I('s_add_u32 s100, s100, s91'); I(f's_add_u32 s100, s100, {LDS_Y+3*YW}')
                I('s_mul_i32 s101, s101, 3584')
                I(f's_lshl_b32 s91, s{S_G}, 6'); I('s_add_u32 s91, s91, 48'); I('s_mul_i32 s91, s91, 896'); I('s_add_u32 s101, s101, s91')
                I('s_mov_b32 exec_hi, 0x000fffff')
                for r in range(4):
                    I(f's_add_u32 m0, s100, {r*832}')
                    if r: I('s_add_u32 s101, s101, 896')
                    else: I('s_nop 0')
                    I(f'buffer_load_dwordx4 v238, {srd(SRD_OUT)}, s101 offen lds', tag='bdma')
                I('s_mov_b32 exec_hi, -1')
                self.label(L); self.merge(snap); self.vm['bdma']=0
            return f
        return [xpair(p) for p in range(3)], [bblock(p) for p in range(3)]
    def dma_setup(self):
        I=self.I
        for n,h in enumerate((0,3,2,1)): I(f'v_xor_b32 v{224+n}, {h<<4}, v{V_L16}')
        for g in range(8): I(f'v_xor_b32 v{228+g}, {g<<4}, v{V_L16}')
        I(f's_lshl_b32 s{S_T0}, s{S_G}, 6'); I(f's_lshl_b32 s{S_T1}, s{S_W}, 4'); I(f's_add_u32 s88, s{S_T0}, s{S_T1}')
        I('s_mul_i32 s89, s88, 896')
        I(f's_lshl_b32 s{S_T0}, s{S_C}, 6'); I(f's_lshl_b32 s{S_T1}, s{S_W}, 2'); I(f's_add_u32 s{S_T0}, s{S_T0}, s{S_T1}')
        I(f's_mul_i32 s92, s{S_T0}, 896')
        I(f's_mul_i32 s93, s{S_W}, 3584')
        I(f'v_and_b32 v7, 15, v{V_LANE}'); I('v_mul_u32_u24 v236, 896, v7'); I(f'v_lshrrev_b32 v9, 4, v{V_LANE}'); I('v_lshlrev_b32 v9, 4, v9')
        I('v_add_u32 v236, v236, v9')
        if self.opt.b13dma:
            I(f'v_lshrrev_b32 v9, 2, v{V_LANE}'); I('v_mul_u32_u24 v236, 896, v9'); I(f'v_and_b32 v9, 3, v{V_LANE}'); I('v_lshlrev_b32 v9, 4, v9')
            I('v_add_u32 v236, v236, v9'); I('v_add_u32 v236, 832, v236')
        I('v_add_u32 v237, s88, v7'); I('v_lshlrev_b32 v237, 1, v237')
    def q_b(self):
        I=self.I
        def row(im,n):
            def f():
                self.row_exec('0x000fffff')
                I(f's_add_u32 m0, s{S_YB}, {im*13312+n*832}')
                I(f's_add_u32 s91, s89, {n*896}')
                I(f'buffer_load_dwordx4 v{224+(n>>2)}, {srd(SRD_1 if im==0 else SRD_2)}, s91 offen lds', tag='bdma'); self.nb+=1
                self.row_exec_done()
            return f
        for im in range(2):
            for n in range(16): self.q.append(row(im,n))
        def b13(srdn,dst):
            def f():
                self.row_exec('-1')
                I(f'buffer_load_dwordx4 {vr(dst,4)}, v236, {srd(srdn)}, s89 offen offset:832', tag='b13'); self.nb+=1
            return f
        if self.opt.w1touch=='W':
            self.b13_loads=lambda: (b13(SRD_1,V_BF+52)(), b13(SRD_2,V_BF+56+52)())
        elif not self.opt.b13dma:
            self.q.append(b13(SRD_1,V_BF+52)); self.q.append(b13(SRD_2,V_BF+56+52))
        def lam():
            I(f'global_load_ushort v{V_IN}, v237, {sp(P_LRE)}', tag='lam')
            I(f'global_load_ushort v{V_IN+1}, v237, {sp(P_LIM)}', tag='lam')
            I(f'global_load_ushort v{V_IN+2}, v237, {sp(P_LDT)}', tag='lam')
        self.q.insert(0,lam)
    def q_x(self, alist):
        I=self.I
        def row(a,b):
            def f():
                g=2*a+(b>>1); d=(16*a+b)*896
                self.row_exec('0x00ffffff')
                I(f's_add_u32 m0, s93, {LDS_X+d}')
                I(f's_add_u32 s91, s92, {d}')
                I(f'buffer_load_dwordx4 v{228+g}, {srd(SRD_X)}, s91 offen lds', tag='x64'); self.nx+=1
                self.row_exec_done()
            return f
        for a in alist:
            for b in range(4): self.q.append(row(a,b))
    def b_read(self):
        I=self.I
        I(f'v_and_b32 v7, 15, v{V_LANE}'); I(f'v_lshrrev_b32 v8, 4, v{V_LANE}'); I('v_lshrrev_b32 v9, 2, v7')
        I('v_sub_u32 v9, 0, v9'); I('v_and_b32 v9, 3, v9'); I('v_xor_b32 v8, v8, v9')
        I('v_lshlrev_b32 v8, 4, v8'); I('v_mul_u32_u24 v7, 832, v7'); I('v_add_u32 v7, v7, v8'); I(f'v_add_u32 v7, s{S_YB}, v7')
        if self.opt.w1touch!='W': self.wait(vm=['bdma'])
        for im in range(2):
            for j in range(13):
                I(f'ds_read_b128 {vr(V_BF+56*im+4*j,4)}, v7 offset:{im*13312+j*64}', tag='brd')
    def touch_pf(self, which):
        I=self.I
        if which==1: pitch,nrow,nt,srdn=3584,512,8,SRD_W
        else:
            pitch,nrow,nt,srdn=4096,448,7,SRD_OUT
            self.make_srd(SRD_OUT, P_W2, 1792*4096)
        I(f'v_lshrrev_b32 v7, 2, v{V_LANE}'); I(f'v_and_b32 v8, 3, v{V_LANE}')
        if which==1:
            I(f's_and_b32 s{S_T1}, s95, 1'); I(f's_sub_u32 s{S_T1}, 3, s{S_T1}'); I(f'v_min_u32 v8, s{S_T1}, v8')
        I(f'v_mul_u32_u24 v7, {pitch}, v7'); I('v_lshlrev_b32 v8, 7, v8'); I('v_add_u32 v7, v7, v8')
        I(f's_mul_i32 s{S_T0}, s{S_W}, {nrow}'); I(f's_sub_u32 s{S_T1}, s86, 28'); I(f's_lshl_b32 s{S_T1}, s{S_T1}, 4'); I(f's_add_u32 s{S_T0}, s{S_T0}, s{S_T1}')
        I(f's_mul_i32 s{S_T0}, s{S_T0}, {pitch}')
        if which==1: I(f's_lshl_b32 s{S_T1}, s87, 7')
        else: I(f's_lshl_b32 s{S_T1}, s95, 9')
        I(f's_add_u32 s{S_T0}, s{S_T0}, s{S_T1}')
        for t in range(nt):
            I(f'buffer_load_dword v12, v7, {srd(srdn)}, s{S_T0} offen', tag='touch2')
            if t<nt-1: I(f's_add_u32 s{S_T0}, s{S_T0}, {64*pitch}')
    def ln8(self, oct=2, clears=True):
        I=self.I
        D=list(range(V_T,V_T+8)); SUM,SSQ,S2,Q2=24,25,26,27; R,C=28,30; TM=[32,34,36,38]
        self.wait(vm=['x8'])
        def reduce32():
            for rot in (8,4,2,1):
                I(f'v_add_f32_dpp v{SUM}, v{SUM}, v{SUM} row_ror:{rot} row_mask:0xf bank_mask:0xf')
                I(f'v_add_f32_dpp v{SSQ}, v{SSQ}, v{SSQ} row_ror:{rot} row_mask:0xf bank_mask:0xf')
            I(f'v_mov_b32 v{S2}, v{SUM}'); I(f'v_mov_b32 v{Q2}, v{SSQ}')
            I(f'v_permlane16_swap_b32 v{SUM}, v{S2}'); I(f'v_permlane16_swap_b32 v{SSQ}, v{Q2}')
            I(f'v_add_f32 v{SUM}, v{SUM}, v{S2}'); I(f'v_add_f32 v{SSQ}, v{SSQ}, v{Q2}')
        self.dot_sums(D,[SUM,SSQ,S2,Q2]); reduce32()
        self.ln_stats(SUM,SSQ,R,C,None)
        if clears and self.opt.w1touch=='W' and not self.opt.notouch3:
            Lt=self.newlabel('notouch')
            I(f's_cmp_lg_u32 s{S_W}, 3'); I(f's_cbranch_scc1 {Lt}')
            snap=self.snapshot()
            self.touch_w1_wg()
            self.label(Lt); self.merge(snap)
        I(f'v_and_b32 v7, 31, v{V_LANE}'); I('v_cmp_gt_u32 vcc, 28, v7')
        I(f'v_cndmask_b32 v{R}, 0, v{R}, vcc'); I(f'v_cndmask_b32 v{C}, 0, v{C}, vcc')
        self.normalize(D,R,C,TM)
        self.dot_sums(D,[SUM,SSQ,S2,Q2]); reduce32()
        self.ln_stats(SUM,SSQ,R,C,None)
        self.normalize(D,R,C,TM)
        self.auto=0
        I(f'v_lshrrev_b32 v8, 5, v{V_LANE}'); I(f's_lshl_b32 s{S_T0}, s{S_W}, 1'); I(f'v_add_u32 v8, s{S_T0}, v8')
        I('v_mul_u32_u24 v8, 960, v8'); I('v_lshlrev_b32 v9, 5, v7'); I('v_add_u32 v8, v8, v9'); I(f'v_add_u32 v8, {LDS_LN8}, v8')
        self.exec_set('0x0fffffff','0x0fffffff')
        I(f'ds_write_b128 v8, {vr(V_T,4)} offset:0'); I(f'ds_write_b128 v8, {vr(V_T+4,4)} offset:16')
        self.exec_full()
        self.wait(lg='all'); I('s_barrier')
        I(f'v_and_b32 v7, 15, v{V_LANE}'); I('v_lshrrev_b32 v8, 2, v7'); I('v_mul_u32_u24 v8, 960, v8')
        I(f'v_lshrrev_b32 v9, 4, v{V_LANE}'); I('v_lshlrev_b32 v10, 5, v9'); I('v_add_u32 v8, v8, v10')
        I(f'v_and_b32 v10, 3, v{V_LANE}'); I('v_lshlrev_b32 v10, 3, v10'); I('v_add_u32 v8, v8, v10')
        I(f's_lshl_b32 s{S_T0}, s{S_W}, 7'); I(f's_add_u32 s{S_T0}, s{S_T0}, {LDS_LN8}'); I(f'v_add_u32 v8, s{S_T0}, v8')
        I('v_lshlrev_b32 v9, 10, v9'); I('v_lshlrev_b32 v7, 4, v7'); I('v_add_u32 v9, v9, v7')
        I(f's_lshr_b32 s{S_T0}, s{oct}, 2'); I(f's_lshl_b32 s{S_T0}, s{S_T0}, 12')
        I(f's_and_b32 s{S_T1}, s{oct}, 3'); I(f's_lshl_b32 s{S_T1}, s{S_T1}, 8'); I(f's_add_u32 s{S_T0}, s{S_T0}, s{S_T1}')
        I(f's_lshl_b32 s{S_T1}, s{S_W}, 18'); I(f's_add_u32 s{S_T0}, s{S_T0}, s{S_T1}')
        if self.opt.w1touch=='W':
            Lno=self.newlabel('ln8none'); L6=self.newlabel('ln8no6')
            I(f's_cmp_eq_u32 s{S_W}, 3'); I(f's_cbranch_scc1 {Lno}')
            snap=self.snapshot()
            for i in range(2):
                I(f'ds_read_b64_tr_b16 v[{16+4*i}:{17+4*i}], v8 offset:{384*i}', tag='t0')
                I(f'ds_read_b64_tr_b16 v[{18+4*i}:{19+4*i}], v8 offset:{384*i+3840}', tag='t0')
            I(f's_add_u32 s{S_T1}, s{S_T0}, {3*262144}')
            self.wait(lg='all')
            I(f'buffer_store_dwordx4 v[16:19], v9, {srd(SRD_WS)}, s{S_T0} offen sc1', tag='st0')
            I(f'buffer_store_dwordx4 v[20:23], v9, {srd(SRD_WS)}, s{S_T1} offen sc1', tag='st0')
            I(f's_cmp_lg_u32 s{S_W}, 0'); I(f's_cbranch_scc1 {L6}')
            I(f'ds_read_b64_tr_b16 v[24:25], v8 offset:768', tag='t0')
            I(f'ds_read_b64_tr_b16 v[26:27], v8 offset:{768+3840}', tag='t0')
            I(f's_add_u32 s{S_T1}, s{S_T0}, {6*262144}')
            self.wait(lg='all')
            I(f'buffer_store_dwordx4 v[24:27], v9, {srd(SRD_WS)}, s{S_T1} offen sc1', tag='st0')
            self.label(L6)
            self.label(Lno); self.merge(snap); self.vm['st0']=0
        else:
            I(f'ds_read_b64_tr_b16 v[16:17], v8 offset:0', tag='t0')
            I(f'ds_read_b64_tr_b16 v[18:19], v8 offset:3840', tag='t0')
            Lskip=self.newlabel('ln8skip')
            I(f's_cmp_eq_u32 s{S_W}, 3'); I(f's_cbranch_scc1 {Lskip}')
            snap=self.snapshot()
            I(f'ds_read_b64_tr_b16 v[20:21], v8 offset:512', tag='t1')
            I(f'ds_read_b64_tr_b16 v[22:23], v8 offset:{512+3840}', tag='t1')
            I(f's_add_u32 s{S_T1}, s{S_T0}, {4*262144}')
            self.wait(lg='all')
            I(f'buffer_store_dwordx4 v[20:23], v9, {srd(SRD_WS)}, s{S_T1} offen sc1', tag='st0')
            self.label(Lskip); self.merge(snap)
            self.wait(lg='all')
            I(f'buffer_store_dwordx4 v[16:19], v9, {srd(SRD_WS)}, s{S_T0} offen sc1', tag='st0')
        if not clears:
            I('s_barrier'); return
        Ln=self.newlabel('noclr')
        I(f's_cmp_lg_u32 s{S_W}, {1 if self.opt.w1touch=="W" else 3}'); I(f's_cbranch_scc1 {Ln}')
        snap=self.snapshot()
        I('v_mov_b32 v8, 0')
        I('v_mov_b32 v10, -1'); I('v_mov_b32 v11, -1'); I(f'v_lshlrev_b32 v9, 3, v{V_LANE}')
        I(f's_lshl_b32 s{S_T0}, s{S_G}, 5'); I(f's_add_u32 s{S_T0}, s{S_T0}, s{S_C}'); I(f's_lshl_b32 s{S_T0}, s{S_T0}, 9')
        I(f's_add_u32 s{S_T0}, s{S_T0}, {WS_E}')
        I(f'buffer_store_dwordx2 v[10:11], v9, {srd(SRD_WS)}, s{S_T0} offen sc1', tag='st0')
        I(f's_mul_i32 s{S_T0}, s{S_C}, 7'); I(f's_add_u32 s{S_T0}, s{S_T0}, s{S_G}'); I(f's_lshl_b32 s{S_T0}, s{S_T0}, 6')
        I(f's_add_u32 s{S_T0}, s{S_T0}, {WS_FH}')
        I('v_mov_b32 v10, 0')
        self.exec_set(1,0)
        I(f'buffer_store_dword v10, v8, {srd(SRD_WS)}, s{S_T0} offen sc1', tag='st0')
        Lg=self.newlabel('nog1clr'); Lc=self.newlabel('nocclr')
        I(f's_cmp_eq_u32 s{S_HASG1}, 0'); I(f's_cbranch_scc1 {Lg}')
        I(f's_mul_i32 s{S_T0}, s{S_DT1}, 28'); I(f's_add_u32 s{S_T0}, s{S_T0}, s{S_FT}'); I(f's_lshl_b32 s{S_T0}, s{S_T0}, 6')
        I(f's_add_u32 s{S_T0}, s{S_T0}, {WS_FG}')
        I(f'buffer_store_dword v10, v8, {srd(SRD_WS)}, s{S_T0} offen sc1', tag='st0')
        self.label(Lg)
        I('s_cmp_lg_u32 s95, 0'); I(f's_cbranch_scc1 {Lc}')
        I(f's_lshl_b32 s{S_T0}, s86, 6'); I(f's_add_u32 s{S_T0}, s{S_T0}, {WS_FC}')
        I(f'buffer_store_dword v10, v8, {srd(SRD_WS)}, s{S_T0} offen sc1', tag='st0')
        self.label(Lc)
        self.exec_full()
        self.label(Ln); self.merge(snap); self.vm['st0']=0
        I('s_barrier')

    def ln8_extra(self):
        I=self.I
        L=self.newlabel('noextra'); Lp=self.newlabel('extra')
        I(f's_cmp_lg_u32 s{S_HASG1}, 0'); I(f's_cbranch_scc1 {L}')
        snap=self.snapshot()
        I('s_lshr_b32 s3, s95, 1'); I('s_mul_i32 s3, s3, 7'); I('s_add_u32 s3, s3, s86'); I('s_add_u32 s3, s3, 203')
        self.label(Lp)
        self.x8_issue(3)
        I('s_waitcnt vmcnt(0)'); self.vm={}; self.vm['x8']=0
        self.ln8(oct=3, clears=False)
        I('s_add_u32 s3, s3, 28'); I('s_cmp_lt_u32 s3, 256'); I(f's_cbranch_scc1 {Lp}')
        I('s_waitcnt vmcnt(0)')
        self.label(L); self.restore(snap); self.vm['st0']=min(self.vm.get('st0',0),0)

    def arrive0(self):
        I=self.I
        self.wait(vm=['st0']); I('s_barrier')
        L=self.newlabel('arr')
        I(f's_cmp_lg_u32 s{S_W}, 0'); I(f's_cbranch_scc1 {L}')
        snap=self.snapshot()
        I('s_and_b32 s3, s2, 3'); I('s_lshl_b32 s3, s3, 6'); I('v_mov_b32 v8, s3'); I('v_mov_b32 v9, 1')
        self.exec_set(1,0)
        I(f'global_atomic_add v8, v9, {sp(P_DBG)} sc1')
        self.exec_full()
        self.label(L); self.merge(snap)

    def w1_setup(self):
        I=self.I
        self.ring_setup(3584, S_WH)
        I(f's_mul_i32 s{S_WBEG}, s{S_W}, {512*3584}'); I(f's_lshl_b32 s{S_T0}, s{S_FT}, 7'); I(f's_add_u32 s{S_WBEG}, s{S_WBEG}, s{S_T0}')
        I(f's_mov_b32 s{S_WO}, s{S_WBEG}')

    def lam_consts(self):
        I=self.I
        LRE,LIM,LDT=V_IN,V_IN+1,V_IN+2
        t=list(range(16,40))
        self.wait(vm=['lam'])
        for r in (LRE,LIM,LDT): I(f'v_lshlrev_b32 v{r}, 16, v{r}')
        I(f'v_mul_f32 v{LDT}, 0x3fb8aa3b, v{LDT}'); I(f'v_exp_f32 v{LDT}, v{LDT}')
        self.rnd_bf16(LDT)
        I(f'v_mul_f32 v16, v{LDT}, v{LRE}'); I(f'v_mul_f32 v17, v{LDT}, v{LIM}')
        I('v_mul_f32 v16, 0x3fb8aa3b, v16'); I('v_mul_f32 v17, 0.15915494, v17')
        I('v_exp_f32 v16, v16'); I('v_fract_f32 v17, v17')
        I('v_cos_f32 v18, v17'); I('v_sin_f32 v19, v17')
        I(f'v_mul_f32 v{V_LR}, v16, v18'); I(f'v_mul_f32 v{V_LI}, v16, v19')
        I(f'v_add_f32 v16, -1.0, v{V_LR}')
        I(f'v_mul_f32 v17, v{LRE}, v{LRE}'); I(f'v_fma_f32 v17, v{LIM}, v{LIM}, v17'); I('v_rcp_f32 v17, v17')
        I(f'v_mul_f32 v18, v16, v{LRE}'); I(f'v_fma_f32 v18, v{V_LI}, v{LIM}, v18')
        I(f'v_mul_f32 v19, v16, v{LIM}'); I(f'v_fma_f32 v19, v{V_LI}, v{LRE}, -v19')
        I('v_add_f32 v17, v17, v17')
        I(f'v_mul_f32 v{V_K1}, v18, v17'); I(f'v_mul_f32 v{V_K2}, v19, v17'); I(f'v_sub_f32 v{V_K2}, 0, v{V_K2}')
        self.csq(16,17,V_LR,V_LI,30); self.csq(18,19,16,17,30); self.csq(16,17,18,19,30); self.csq(20,21,16,17,30)
        self.csq(22,23,20,21,30)
        self.cmul(24,25,22,23,20,21,30,31)
        self.csq(V_L64R,V_L64I,22,23,30)
        self.csq(16,17,V_L64R,V_L64I,30); self.csq(18,19,16,17,30); self.csq(V_L512R,V_L512I,18,19,30)
        I(f'v_mov_b32 v{V_PR}, 1.0'); I(f'v_mov_b32 v{V_PI}, 0')
        for (lo,hi,r) in (('0xffff0000','-1',20),('0','-1',22),('0','0xffff0000',24)):
            self.exec_set(lo,hi); I(f'v_mov_b32 v{V_PR}, v{r}'); I(f'v_mov_b32 v{V_PI}, v{r+1}')
        self.exec_full()
        I(f'v_mov_b32 v{V_IN}, v20'); I(f'v_mov_b32 v{V_IN+1}, v21')

    def x_addr(self):
        I=self.I
        I(f'v_and_b32 v7, 15, v{V_LANE}'); I('v_lshrrev_b32 v8, 2, v7'); I('v_lshlrev_b32 v8, 4, v8')
        I('v_and_b32 v9, 3, v7'); I('v_add_u32 v8, v8, v9'); I('v_mul_u32_u24 v8, 896, v8')
        I(f'v_lshrrev_b32 v9, 4, v{V_LANE}'); I('v_lshrrev_b32 v7, 1, v7'); I('v_xor_b32 v9, v9, v7'); I('v_lshlrev_b32 v9, 4, v9')
        I('v_add_u32 v14, v8, v9'); I('v_xor_b32 v15, 64, v14')
    def ln64(self):
        I=self.I
        D=list(range(V_X64,V_X64+56)); SUM,SSQ,S2,Q2=24,25,26,27; R,C=28,30; TM=[32,34,36,38]
        I(f's_mul_i32 s{S_T0}, s{S_W}, 3584'); I(f'v_add_u32 v22, s{S_T0}, v14'); I(f'v_add_u32 v23, s{S_T0}, v15')
        self.allow_bread=True
        while self.nx<16: self.tick()
        if self.opt.w1touch!='W': self.wait(vm=['x64'])
        for j in range(14):
            I(f'ds_read_b128 {vr(V_X64+4*j,4)}, v{22+(j&1)} offset:{LDS_X+(j>>1)*128}', tag=('xr',j))
        accs=[SUM,SSQ,S2,Q2]
        for n,d in enumerate(D):
            if n%4==0: self.wait(lg=[('xr',n//4)])
            sa,qa = accs[2*(n&1)], accs[2*(n&1)+1]
            if n<2:
                I(f'v_dot2_f32_bf16 v{sa}, v{d}, s{S_ONES}, 0'); I(f'v_dot2_f32_bf16 v{qa}, v{d}, v{d}, 0')
            else:
                I(f'v_dot2_f32_bf16 v{sa}, v{d}, s{S_ONES}, v{sa}'); I(f'v_dot2_f32_bf16 v{qa}, v{d}, v{d}, v{qa}')
        I(f'v_add_f32 v{SUM}, v{SUM}, v{S2}'); I(f'v_add_f32 v{SSQ}, v{SSQ}, v{Q2}')
        for sw in ('16','32'):
            I(f'v_mov_b32 v{S2}, v{SUM}'); I(f'v_mov_b32 v{Q2}, v{SSQ}')
            I(f'v_permlane{sw}_swap_b32 v{SUM}, v{S2}'); I(f'v_permlane{sw}_swap_b32 v{SSQ}, v{Q2}')
            I(f'v_add_f32 v{SUM}, v{SUM}, v{S2}'); I(f'v_add_f32 v{SSQ}, v{SSQ}, v{Q2}')
        self.stamp('dots',fine=True)
        self.ln_stats(SUM,SSQ,R,C,None)
        self.allow_bread=True
        def h(n):
            I(f'ds_write_b128 v{22+(n&1)}, {vr(V_X64+4*n,4)} offset:{LDS_X+(n>>1)*128}', tag='xw')
        self.normalize(D,R,C,TM,hook=h)

    def row_stats(self):
        I=self.I
        D=list(range(V_X64,V_X64+56)); SUM,SSQ,S2,Q2=24,25,26,27; R,C=28,30
        I(f's_mul_i32 s{S_T0}, s{S_W}, 3584'); I(f'v_add_u32 v22, s{S_T0}, v14'); I(f'v_add_u32 v23, s{S_T0}, v15')
        for j in range(14):
            I(f'ds_read_b128 {vr(V_X64+4*j,4)}, v{22+(j&1)} offset:{LDS_X+(j>>1)*128}', tag=('xr',j))
        accs=[SUM,SSQ,S2,Q2]
        for n,d in enumerate(D):
            if n%4==0: self.wait(lg=[('xr',n//4)])
            sa,qa = accs[2*(n&1)], accs[2*(n&1)+1]
            if n<2:
                I(f'v_dot2_f32_bf16 v{sa}, v{d}, s{S_ONES}, 0'); I(f'v_dot2_f32_bf16 v{qa}, v{d}, v{d}, 0')
            else:
                I(f'v_dot2_f32_bf16 v{sa}, v{d}, s{S_ONES}, v{sa}'); I(f'v_dot2_f32_bf16 v{qa}, v{d}, v{d}, v{qa}')
        I(f'v_add_f32 v{SUM}, v{SUM}, v{S2}'); I(f'v_add_f32 v{SSQ}, v{SSQ}, v{Q2}')
        for sw in ('16','32'):
            I(f'v_mov_b32 v{S2}, v{SUM}'); I(f'v_mov_b32 v{Q2}, v{SSQ}')
            I(f'v_permlane{sw}_swap_b32 v{SUM}, v{S2}'); I(f'v_permlane{sw}_swap_b32 v{SSQ}, v{Q2}')
            I(f'v_add_f32 v{SUM}, v{SUM}, v{S2}'); I(f'v_add_f32 v{SSQ}, v{SSQ}, v{Q2}')
        self.ln_stats(SUM,SSQ,R,C,None)
        I(f'v_and_b32 v8, 15, v{V_LANE}'); I('v_lshlrev_b32 v8, 2, v8'); I(f's_add_u32 s{S_T0}, s{S_YB}, 24576'); I(f'v_add_u32 v8, s{S_T0}, v8')
        self.exec_set('0xffff','0')
        I(f'ds_write_b32 v8, v{SUM}', tag='stw'); I(f'ds_write_b32 v8, v{R} offset:64', tag='stw')
        self.exec_full()
    def stat_reads(self):
        I=self.I
        self.wait(lg=['stw']); I('s_barrier')
        I(f'v_lshrrev_b32 v8, 4, v{V_LANE}'); I('v_lshlrev_b32 v8, 4, v8'); I(f'v_add_u32 v8, {LDS_Y+24576}, v8'); I(f'v_add_u32 v9, {2*YW}, v8')
        for i in range(4):
            I(f'ds_read_b128 {vr(16+4*i,4)}, v{8+(i>>1)} offset:{(i&1)*YW}', tag='stat')
            I(f'ds_read_b128 {vr(88+4*i,4)}, v{8+(i>>1)} offset:{(i&1)*YW+64}', tag='stat')
    def bu_gemm(self):
        I=self.I
        BUF=[V_X64, V_X64+16]
        for r in range(4): I(f'v_mov_b32 v{36+r}, s{S_ONES}')
        def rd(j):
            for i in range(4):
                I(f'ds_read_b128 {vr(BUF[j%2]+4*i,4)}, v{14+(j&1)} offset:{LDS_X+i*3584+(j>>1)*128}', tag=('xa',j))
        rd(0); rd(1)
        bup=self.auto
        for j in range(14):
            self.auto = bup if j>=self.opt.bupj else 0
            self.wait(lg=[('xa',j)])
            for im in range(2):
                d=104+4*im
                I(f'v_mfma_f32_16x16x32_bf16 {vr(d,4)}, v[36:39], {vr(V_BF+56*im+4*j,4)}, {vr(d,4) if j else 0}')
            for i in range(4):
                for im in range(2):
                    d=V_RAW+16*im+4*i
                    cin = vr(d,4) if j else '0'
                    I(f'v_mfma_f32_16x16x32_bf16 {vr(d,4)}, {vr(BUF[j%2]+4*i,4)}, {vr(V_BF+56*im+4*j,4)}, {cin}')
            if j+2<14: rd(j+2)
            if j==12:
                sv=self.auto; self.auto=0
                self.stat_reads(); self.auto=sv
    def stat_loads(self):
        I=self.I
        I(f'v_lshrrev_b32 v8, 4, v{V_LANE}'); I('v_lshlrev_b32 v8, 6, v8')
        I(f's_lshl_b32 s{S_T0}, s{S_C}, 8'); I(f's_add_u32 s{S_T0}, s{S_T0}, {WS_STAT}'); I(f's_add_u32 s{S_T1}, s{S_T0}, 8192')
        for n in range(4):
            I(f'buffer_load_dwordx4 {vr(16+4*n,4)}, v8, {srd(SRD_WS)}, s{S_T0} offen offset:{16*n} sc1', tag='stat')
            I(f'buffer_load_dwordx4 {vr(88+4*n,4)}, v8, {srd(SRD_WS)}, s{S_T1} offen offset:{16*n} sc1', tag='stat')
    def x_resid_reads(self):
        I=self.I
        I(f'v_and_b32 v8, 15, v{V_LANE}'); I(f'v_lshrrev_b32 v9, 4, v{V_LANE}')
        I('v_lshrrev_b32 v10, 1, v9'); I('v_bfe_u32 v11, v8, 1, 1'); I('v_xor_b32 v10, v10, v11')
        I(f's_xor_b32 s{S_T0}, s{S_WH}, s{S_WL}'); I(f's_lshl_b32 s{S_T0}, s{S_T0}, 2'); I(f'v_xor_b32 v10, s{S_T0}, v10')
        I('v_lshlrev_b32 v10, 4, v10'); I('v_and_b32 v9, 1, v9'); I('v_lshlrev_b32 v9, 3, v9'); I('v_add_u32 v10, v10, v9')
        I(f's_lshl_b32 s{S_T0}, s{S_WL}, 5'); I(f'v_add_u32 v8, s{S_T0}, v8'); I('v_mul_u32_u24 v8, 896, v8'); I('v_add_u32 v8, v8, v10')
        I(f's_lshl_b32 s{S_T0}, s{S_G}, 7'); I(f'v_add_u32 v8, s{S_T0}, v8'); I('v_xor_b32 v9, 32, v8')
        for y in range(2):
            for x in range(2):
                I(f'ds_read_b64 {vr(V_XR+4*y+2*x,2)}, v{8+(x^y)} offset:{LDS_X+y*14336}', tag='xres')
    def ln_fix(self):
        I=self.I
        self.wait(lg=['stat'])
        for im in range(2):
            sb=104+4*im
            for t in range(0,16,2):
                r=V_RAW+16*im+t
                I(f'v_pk_fma_f32 v[{r}:{r+1}], v[{16+t}:{17+t}], v[{sb}:{sb+1}], v[{r}:{r+1}] neg_lo:[1,0,0] neg_hi:[1,0,0]')
            for t in range(0,16,2):
                r=V_RAW+16*im+t
                I(f'v_pk_mul_f32 v[{r}:{r+1}], v[{r}:{r+1}], v[{88+t}:{89+t}]')

    def scan1(self):
        I=self.I
        ER,EI,T0,T1=16,17,18,19
        L16R,L16I=V_IN,V_IN+1
        I(f'v_mov_b32 v{ER}, v{V_RAW}'); I(f'v_mov_b32 v{EI}, v{V_RAW+16}')
        for t in range(1,16):
            I(f'v_fma_f32 v{T0}, v{V_LR}, v{ER}, v{V_RAW+t}')
            I(f'v_fma_f32 v{T1}, v{V_LR}, v{EI}, v{V_RAW+16+t}')
            I(f'v_fma_f32 v{T0}, -v{V_LI}, v{EI}, v{T0}')
            I(f'v_fma_f32 v{EI}, v{V_LI}, v{ER}, v{T1}')
            ER,T0=T0,ER
        GR=[20,21,22,23]; GI=[24,25,26,27]
        self.allgather_q(ER,*GR); self.allgather_q(EI,*GI)
        for q in range(1,4):
            self.cfma(GR[q],GI[q],L16R,L16I,GR[q-1],GI[q-1],GR[q],GI[q],28,29)
        I(f'v_mov_b32 v{V_SR}, 0'); I(f'v_mov_b32 v{V_SI}, 0')
        for n,(lo,hi) in enumerate((('0xffff0000','-1'),('0','-1'),('0','0xffff0000'))):
            self.exec_set(lo,hi); I(f'v_mov_b32 v{V_SR}, v{GR[n]}'); I(f'v_mov_b32 v{V_SI}, v{GI[n]}')
        self.exec_full()
        I(f'v_mov_b32 v10, v{GR[3]}'); I(f'v_mov_b32 v11, v{GI[3]}')
        I(f'v_lshlrev_b32 v8, 3, v{V_LANE}')
        I(f's_lshl_b32 s{S_T0}, s{S_G}, 5'); I(f's_add_u32 s{S_T0}, s{S_T0}, s{S_C}'); I(f's_lshl_b32 s{S_T0}, s{S_T0}, 9')
        I(f's_lshl_b32 s{S_T1}, s{S_W}, 7'); I(f's_add_u32 s{S_T0}, s{S_T0}, s{S_T1}'); I(f's_add_u32 s{S_T0}, s{S_T0}, {WS_E}')
        self.exec_set('0xffff',0)
        I(f'buffer_store_dwordx2 v[10:11], v8, {srd(SRD_WS)}, s{S_T0} offen sc1', tag='stE')
        self.exec_full()

    def wait_e0(self):
        I=self.I
        L=self.newlabel('e0'); D=self.newlabel('e0d')
        self.wait(vm=['e0c'])
        I('v_cmp_gt_u32 vcc, 64, v34'); I(f's_cbranch_vccz {D}')
        snap=self.snapshot()
        I(f's_mov_b32 s{S_BOUND}, 0x40000')
        self.label(L)
        I(f'global_load_dword v34, v35, {sp(P_DBG)} sc1'); I('s_waitcnt vmcnt(0)')
        I('v_cmp_gt_u32 vcc, 64, v34'); I(f's_cbranch_vccz {D}')
        I('s_sleep 4'); I(f's_sub_u32 s{S_BOUND}, s{S_BOUND}, 1'); I(f's_cbranch_scc0 {L}')
        self.label(D); self.restore(snap)

    def dedup_touch(self, sbase, nl=64, dst=13):
        I=self.I
        I(f'v_lshlrev_b32 v9, 7, v{V_LANE}')
        if nl<64: self.exec_set('-1','0')
        I(f'buffer_load_dword v{dst}, v9, {srd(SRD_WS)}, s{sbase} offen sc1', tag='touch')
        if nl<64: self.exec_full()
    def gemm1(self):
        I=self.I
        SL=[V_RING+16*i for i in range(6)]
        DEP=len(SL)
        I(f's_mul_i32 s22, s{S_DT1}, 262144'); I(f's_lshl_b32 s{S_T0}, s{S_W}, 16'); I(f's_add_u32 s22, s22, s{S_T0}')
        I(f's_lshl_b32 s{S_T0}, s{S_WL}, 11'); I(f's_xor_b32 s{S_T1}, s{S_T0}, 2048')
        I(f's_add_u32 s23, s22, s{S_T1}'); I(f's_add_u32 s22, s22, s{S_T0}')
        I(f's_mov_b32 s{S_A}, s22'); I(f's_mov_b32 s{S_B}, s23')
        def ld(k,y):
            r=SL[k%DEP]
            sx=S_A if y<2 else S_B
            I(f'buffer_load_dwordx4 {vr(r+4*y,4)}, v{V_L16}, {srd(SRD_WS)}, s{sx} offen offset:{(y&1)*1024} sc1', tag=('ht',k,y))
            if (y&1) and k<15: I(f's_add_u32 s{sx}, s{sx}, 4096')
        pro=[(k,y) for k in range(DEP) for y in range(4)]
        while pro:
            ld(*pro.pop(0))
            if self.R['iss']<self.R['n']: self.ring_tick()
            if self.opt.tHT and len(pro)==self.opt.tHTpos:
                I(f's_mul_i32 s{S_T2}, s86, 37'); I(f's_lshr_b32 s{S_T2}, s{S_T2}, 8'); I(f's_lshl_b32 s{S_T2}, s{S_T2}, 13')
                I(f's_mul_i32 s{S_T3}, s{S_DT1}, 262144'); I(f's_add_u32 s{S_T2}, s{S_T2}, s{S_T3}'); I(f's_lshl_b32 s{S_T3}, s{S_W}, 16')
                I(f's_add_u32 s{S_T2}, s{S_T2}, s{S_T3}'); I(f's_add_u32 s{S_T2}, s{S_T2}, {6*4096}')
                self.dedup_touch(S_T2,dst=12)
        self.ring_finish(); self.wait(lg='all')
        self.stamp('w1 in regs')
        self.w2_setup(); self.R['maxrd']=0
        for k in range(16):
            r=SL[k%DEP]
            for y in range(4):
                if self.opt.waitstep:
                    if y==0: self.wait(vm=[('ht',k,yy) for yy in range(4)])
                else: self.wait(vm=[('ht',k,y)])
                if y==0: self.stamp(f'g1.{k}',fine=3)
                for x in range(4):
                    d=V_ACC+16*x+4*y
                    cin=vr(d,4) if k else '0'
                    I(f'v_mfma_f32_16x16x32_bf16 {vr(d,4)}, {ar(16*k+4*x,4)}, {vr(r+4*y,4)}, {cin}')
                if k+DEP<16: ld(k+DEP,y)
                else:
                    self.R['maxrd']=k
                    self.tick()
        self.R['maxrd']=99
        self.stamp('g1loop')

    def p2_flag_addr(self):
        I=self.I
        I(f's_mul_i32 s{S_T0}, s{S_W}, 7'); I(f's_lshr_b32 s{S_T1}, s{S_T0}, 2')
        I(f's_mul_i32 s{S_T2}, s{S_C}, 7'); I(f's_add_u32 s{S_T2}, s{S_T2}, s{S_T1}')
        I(f's_add_u32 s{S_T3}, s{S_T0}, 6'); I(f's_lshr_b32 s{S_T3}, s{S_T3}, 2'); I(f's_sub_u32 s{S_T3}, s{S_T3}, s{S_T1}')
        I(f'v_min_u32 v14, s{S_T3}, v{V_LANE}'); I(f'v_add_u32 v14, s{S_T2}, v14'); I('v_lshlrev_b32 v14, 6, v14')
        I(f'v_add_u32 v14, {WS_FH}, v14')
        I(f'v_min_u32 v8, 13, v{V_LANE}'); I('v_lshlrev_b32 v9, 6, v8')
        I(f's_mul_i32 s{S_T1}, s{S_G}, 28'); I(f's_add_u32 s{S_T1}, s{S_T1}, s{S_T0}'); I(f's_lshl_b32 s{S_T1}, s{S_T1}, 6'); I(f's_add_u32 s{S_T1}, s{S_T1}, {WS_FG}')
        I(f's_lshl_b32 s{S_T0}, s{S_T0}, 6'); I(f's_add_u32 s{S_T0}, s{S_T0}, {WS_FC-7*64}')
        I(f'v_mov_b32 v10, s{S_T1}'); I(f'v_mov_b32 v11, s{S_T0}'); I('v_cmp_gt_u32 vcc, 7, v8'); I('v_cndmask_b32 v10, v11, v10, vcc')
        I('v_add_u32 v12, v9, v10')

    def e_addr(self):
        I=self.I
        OF=V_EOF
        I(f's_lshl_b32 s{S_T0}, s{S_G}, 14'); I(f's_add_u32 s{S_T0}, s{S_T0}, {WS_E}')
        I(f's_add_u32 s{SRD_1}, s{P_WS}, s{S_T0}'); I(f's_addc_u32 s{SRD_1+1}, s{P_WS+1}, 0')
        I(f's_and_b32 s{SRD_1+1}, s{SRD_1+1}, 0xffff'); I(f's_mov_b32 s{SRD_1+2}, 16384'); I(f's_mov_b32 s{SRD_1+3}, 0x20000')
        I(f'v_lshrrev_b32 v8, 4, v{V_LANE}'); I('v_lshlrev_b32 v8, 12, v8')
        I(f'v_and_b32 v9, 15, v{V_LANE}'); I('v_lshlrev_b32 v9, 3, v9'); I('v_add_u32 v8, v8, v9')
        I(f's_sub_u32 s{S_T0}, s{S_C}, 32'); I(f's_lshl_b32 s{S_T0}, s{S_T0}, 9'); I(f's_lshl_b32 s{S_T1}, s{S_W}, 7')
        I(f's_add_u32 s{S_T0}, s{S_T0}, s{S_T1}'); I(f'v_add_u32 v8, s{S_T0}, v8')
        for i in range(8): I(f'v_add_u32 v{OF+i}, {512*i}, v8')
    def e_loads(self):
        for i in range(8):
            self.I(f'buffer_load_dwordx2 {vr(V_EL+2*i,2)}, v{V_EOF+i}, {srd(SRD_1)}, 0 offen sc1', tag='E')

    def finalize(self):
        I=self.I
        EL=V_EL
        L=self.newlabel('pollE'); Dn=self.newlabel('pollEd')
        sv=self.auto; self.auto=0
        self.wait(vm=['E'])
        I(f's_mov_b32 s{S_BOUND}, 0x40000')
        self.label(L)
        I(f'v_max3_u32 v8, v{EL}, v{EL+1}, v{EL+2}')
        for i in range(3,15,2): I(f'v_max3_u32 v8, v8, v{EL+i}, v{EL+i+1}')
        I(f'v_max_u32 v8, v8, v{EL+15}')
        I('v_cmp_eq_u32 vcc, -1, v8')
        I(f's_cbranch_vccz {Dn}')
        snap=self.snapshot()
        self.e_loads()
        I('s_waitcnt vmcnt(0)')
        I('s_sleep 4'); I(f's_sub_u32 s{S_BOUND}, s{S_BOUND}, 1'); I(f's_cbranch_scc0 {L}')
        self.label(Dn); self.restore(snap)
        self.auto=sv
        yield
        QR,QI=EL,EL+1
        for i in range(1,8):
            self.cfma(QR,QI,V_L64R,V_L64I,QR,QI,EL+2*i,EL+2*i+1,36,37)
            yield
        GR=[20,21,22,23]; GI=[24,25,26,27]
        self.allgather_q(QR,*GR); yield
        self.allgather_q(QI,*GI); yield
        for q in range(1,4):
            self.cfma(GR[q],GI[q],V_L512R,V_L512I,GR[q-1],GI[q-1],GR[q],GI[q],28,29)
            yield
        self.cfma(V_SR,V_SI,V_PR,V_PI,GR[3],GI[3],V_SR,V_SI,28,29)
        yield
        HR,HI,T0,T1=V_SR,V_SI,36,37
        OR,OI=V_RAW,V_RAW+16
        for t in range(16):
            I(f'v_fma_f32 v{T0}, v{V_LR}, v{HR}, v{OR+t}')
            I(f'v_fma_f32 v{T1}, v{V_LR}, v{HI}, v{OI+t}')
            I(f'v_fma_f32 v{T0}, -v{V_LI}, v{HI}, v{T0}')
            I(f'v_fma_f32 v{HI}, v{V_LI}, v{HR}, v{T1}')
            HR,T0=T0,HR
            yield
            I(f'v_mul_f32 v{OR+t}, v{V_K1}, v{HR}'); I(f'v_mul_f32 v{OI+t}, v{V_K2}, v{HR}')
            I(f'v_fma_f32 v{OR+t}, v{V_K2}, v{HI}, v{OR+t}'); I(f'v_fma_f32 v{OI+t}, -v{V_K1}, v{HI}, v{OI+t}')
            yield
        for t in range(8):
            I(f'v_cvt_pk_bf16_f32 v{OR+t}, v{OR+2*t}, v{OR+2*t+1}'); I(f'v_cvt_pk_bf16_f32 v{OI+t}, v{OI+2*t}, v{OI+2*t+1}')
            if t%2: yield
        I(f'v_and_b32 v8, 15, v{V_LANE}'); I(f's_lshl_b32 s{S_T0}, s{S_WL}, 4'); I(f'v_add_u32 v8, s{S_T0}, v8')
        I('v_lshrrev_b32 v9, 3, v8'); I('v_lshlrev_b32 v9, 2, v9')
        yield
        I('v_and_b32 v10, 3, v8'); I('v_add_u32 v9, v9, v10')
        I('v_bfe_u32 v10, v8, 2, 1'); I('v_lshlrev_b32 v11, 4, v10'); I('v_add_u32 v9, v9, v11')
        yield
        I('v_and_b32 v11, 7, v9'); I('v_lshlrev_b32 v10, 2, v10'); I('v_xor_b32 v11, v11, v10')
        I(f'v_lshrrev_b32 v10, 4, v{V_LANE}'); I('v_lshlrev_b32 v10, 1, v10')
        yield
        I('v_xor_b32 v10, v10, v11'); I('v_lshlrev_b32 v10, 4, v10')
        I('v_lshlrev_b32 v9, 7, v9'); I('v_add_u32 v9, v9, v10')
        yield
        I(f's_lshl_b32 s{S_T0}, s{S_WH}, 12'); I(f'v_add_u32 v9, s{S_T0}, v9')
        I('v_xor_b32 v10, 16, v9')
        I('s_barrier')
        I(f'ds_write_b128 v9, {vr(OR,4)} offset:{LDS_X}', tag='hw'); I(f'ds_write_b128 v10, {vr(OR+4,4)} offset:{LDS_X}', tag='hw')
        I(f'ds_write_b128 v9, {vr(OI,4)} offset:{LDS_X+8192}', tag='hw'); I(f'ds_write_b128 v10, {vr(OI+4,4)} offset:{LDS_X+8192}', tag='hw')
        yield
        I(f'v_lshrrev_b32 v8, 2, v{V_LANE}'); I('v_and_b32 v9, 7, v8'); I(f'v_bfe_u32 v10, v{V_LANE}, 1, 1')
        I('v_xor_b32 v9, v9, v10'); I('v_lshlrev_b32 v9, 4, v9')
        yield
        I('v_lshlrev_b32 v8, 7, v8'); I('v_add_u32 v8, v8, v9')
        I(f'v_and_b32 v9, 1, v{V_LANE}'); I('v_lshlrev_b32 v9, 3, v9'); I('v_add_u32 v8, v8, v9')
        I(f's_lshl_b32 s{S_T0}, s{S_W}, 12'); I(f'v_add_u32 v8, s{S_T0}, v8')
        yield
        self.wait(lg=['hw']); I('s_barrier')
        FR=16
        for nb in range(4):
            I(f'v_xor_b32 v9, {nb<<5}, v8'); I('v_xor_b32 v10, 64, v9')
            I(f'ds_read_b64_tr_b16 {vr(FR+4*nb,2)}, v9 offset:{LDS_X}', tag=('hp',nb))
            I(f'ds_read_b64_tr_b16 {vr(FR+4*nb+2,2)}, v10 offset:{LDS_X+2048}', tag=('hp',nb))
        I(f's_mul_i32 s{S_T0}, s{S_C}, {28*4096}'); I(f's_lshl_b32 s{S_T1}, s{S_G}, 14'); I(f's_add_u32 s{S_T0}, s{S_T0}, s{S_T1}')
        I(f's_lshl_b32 s{S_T1}, s{S_W}, 12'); I(f's_add_u32 s{S_T0}, s{S_T0}, s{S_T1}'); I(f's_add_u32 s94, s{S_T0}, {WS_HP}')
        yield
        if self.opt.gearly: I(f'global_load_dword v53, v12, {sp(P_WS)} sc1', tag='fg')
        for nb in range(4):
            self.wait(lg=[('hp',nb)])
            I(f'buffer_store_dwordx4 {vr(FR+4*nb,4)}, v{V_L16}, {srd(SRD_WS)}, s94 offen offset:{nb*1024} sc1', tag='stH')
            yield

    def flag_set(self, sa, mul, sb, base):
        I=self.I
        L=self.newlabel('flag')
        I(f's_cmp_lg_u32 s{S_W}, 0'); I(f's_cbranch_scc1 {L}')
        snap=self.snapshot()
        I(f's_mul_i32 s{S_T0}, s{sa}, {mul}'); I(f's_add_u32 s{S_T0}, s{S_T0}, s{sb}'); I(f's_lshl_b32 s{S_T0}, s{S_T0}, 6')
        I(f's_add_u32 s{S_T0}, s{S_T0}, {base}')
        I('v_mov_b32 v8, 0'); I('v_mov_b32 v9, 1')
        self.exec_set(1,0)
        I(f'buffer_store_dword v9, v8, {srd(SRD_WS)}, s{S_T0} offen sc1')
        self.exec_full()
        self.label(L); self.merge(snap)

    def g_bias_load(self):
        I=self.I
        I(f'v_lshrrev_b32 v8, 4, v{V_LANE}'); I('v_lshlrev_b32 v8, 3, v8')
        I(f's_lshl_b32 s{S_T0}, s{S_FT}, 7'); I(f's_lshl_b32 s{S_T1}, s{S_WH}, 6'); I(f's_add_u32 s{S_T0}, s{S_T0}, s{S_T1}')
        I(f'v_add_u32 v8, s{S_T0}, v8')
        I(f'global_load_dwordx2 v[32:33], v8, {sp(P_B1)}', tag='b1')
        I(f'global_load_dwordx2 v[34:35], v8, {sp(P_B1)} offset:32', tag='b1')

    def g_epilogue(self):
        I=self.I
        self.auto=self.opt.gepip
        self.reduce(V_RING)
        self.wait(vm=['b1'])
        for x in range(2):
            for h in range(2):
                I(f'v_lshlrev_b32 v{16+4*x+2*h}, 16, v{32+2*x+h}'); I(f'v_and_b32 v{17+4*x+2*h}, s{S_MASK}, v{32+2*x+h}')
        C1=-2.0*0.7978845608028654*1.4426950408889634
        C3=C1*0.044715
        import struct
        f2h=lambda f:'0x%08x'%struct.unpack('<I',struct.pack('<f',f))[0]
        I(f's_mov_b32 s{S_T2}, {f2h(C1)}'); I(f's_mov_b32 s{S_T3}, {f2h(C3)}')
        I(f'v_mov_b32 v31, s{S_T2}')
        U=[]
        for x in range(2):
            for y in range(2):
                for r in range(4):
                    U.append((V_ACC+16*x+4*y+r, 16+4*x+r))
        TT=V_RING
        for n,(u,b) in enumerate(U): I(f'v_add_f32 v{u}, v{u}, v{b}')
        for n,(u,b) in enumerate(U): I(f'v_mul_f32 v{TT+n}, v{u}, v{u}')
        for n,(u,b) in enumerate(U): I(f'v_fma_f32 v{TT+n}, v{TT+n}, s{S_T3}, v31')
        for n,(u,b) in enumerate(U): I(f'v_mul_f32 v{TT+n}, v{TT+n}, v{u}')
        for n,(u,b) in enumerate(U): I(f'v_exp_f32 v{TT+n}, v{TT+n}')
        for n,(u,b) in enumerate(U): I(f'v_add_f32 v{TT+n}, 1.0, v{TT+n}')
        for n,(u,b) in enumerate(U): I(f'v_rcp_f32 v{TT+n}, v{TT+n}')
        for n,(u,b) in enumerate(U): I(f'v_mul_f32 v{u}, v{u}, v{TT+n}')
        F=V_RING+16
        for y in range(2):
            for x in range(2):
                a=V_ACC+16*x+4*y
                I(f'v_cvt_pk_bf16_f32 v{F+4*y+2*x}, v{a}, v{a+1}'); I(f'v_cvt_pk_bf16_f32 v{F+4*y+2*x+1}, v{a+2}, v{a+3}')
        I(f's_mul_i32 s{S_T0}, s{S_DT1}, {56*4096}'); I(f's_lshl_b32 s{S_T1}, s{S_FT}, 13'); I(f's_add_u32 s{S_T0}, s{S_T0}, s{S_T1}')
        I(f's_lshl_b32 s{S_T1}, s{S_WH}, 12'); I(f's_add_u32 s{S_T0}, s{S_T0}, s{S_T1}')
        I(f's_lshl_b32 s{S_T1}, s{S_WL}, 11'); I(f's_add_u32 s{S_T0}, s{S_T0}, s{S_T1}'); I(f's_add_u32 s{S_T0}, s{S_T0}, {WS_GT}')
        for y in range(2):
            I(f'buffer_store_dwordx4 {vr(F+4*y,4)}, v{V_L16}, {srd(SRD_WS)}, s{S_T0} offen offset:{y*1024} sc1', tag='stG')
        self.auto=0
        self.e_addr(); self.e_loads()
        self.p2_flag_addr(); self.p2_bases()
        I(f'global_load_dword v54, v12, {sp(P_WS)} sc1', tag='fc')
        for n in range(self.opt.gwait): self.tick()
        self.wait(vm=['stG']); I('s_barrier')
        self.flag_set(S_DT1,28,S_FT,WS_FG)

    def w2_setup(self):
        I=self.I
        self.make_srd(SRD_W, P_W2, 1792*4096)
        self.ring_setup(4096, S_WL)
        I(f's_mul_i32 s{S_WBEG}, s{S_W}, {448*4096}'); I(f's_lshl_b32 s{S_T0}, s{S_C}, 7'); I(f's_add_u32 s{S_WBEG}, s{S_WBEG}, s{S_T0}')
        I(f's_mov_b32 s{S_WO}, s{S_WBEG}')
        self.ring_init('w2',14,4096,range(6))

    def rot_g(self, dst):
        I=self.I
        I(f's_mul_i32 s{dst}, s86, 37'); I(f's_lshr_b32 s{dst}, s{dst}, 8')
        I(f's_mul_i32 s{dst}, s{dst}, {7*self.opt.rot2}'); I(f's_lshr_b32 s{dst}, s{dst}, 1')
    def cpack(self):
        I=self.I
        L=self.newlabel('nocp')
        I(f's_cmp_ge_u32 s{S_E}, 28'); I(f's_cbranch_scc1 {L}')
        I(f's_mov_b32 s{SRD_1+2}, {448*896}'); I(f's_mov_b32 s{SRD_1+3}, 0x20000')
        I(f's_bitcmp1_b32 s{S_E}, 1')
        I(f's_cselect_b32 s{SRD_1}, s{P_CIM}, s{P_CRE}'); I(f's_cselect_b32 s{SRD_1+1}, s{P_CIM+1}, s{P_CRE+1}')
        I(f'v_and_b32 v9, 15, v{V_LANE}'); I('v_mul_u32_u24 v9, 896, v9'); I(f'v_lshrrev_b32 v10, 4, v{V_LANE}')
        I('v_lshlrev_b32 v10, 4, v10'); I('v_add_u32 v10, v9, v10')
        I(f's_lshr_b32 s{S_T0}, s{S_E}, 2'); I(f's_lshl_b32 s{S_T0}, s{S_T0}, 7')
        I(f's_and_b32 s{S_T1}, s{S_E}, 1'); I(f's_lshl_b32 s{S_T1}, s{S_T1}, 6'); I(f's_add_u32 s{S_T0}, s{S_T0}, s{S_T1}')
        I(f's_mul_i32 s{S_T1}, s{S_W}, {16*896}'); I(f's_add_u32 s{S_T0}, s{S_T0}, s{S_T1}')
        for dt in range(7):
            I(f'buffer_load_dwordx4 {vr(56+4*dt,4)}, v10, {srd(SRD_1)}, s{S_T0} offen', tag=('cp',dt))
            if dt<6: I(f's_add_u32 s{S_T0}, s{S_T0}, {64*896}')
        I(f's_lshl_b32 s{S_T0}, s{S_E}, 12'); I(f's_lshl_b32 s{S_T1}, s{S_W}, 10'); I(f's_add_u32 s{S_T0}, s{S_T0}, s{S_T1}')
        I(f's_add_u32 s{S_T0}, s{S_T0}, {WS_CP}')
        for dt in range(7):
            self.wait(vm=[('cp',dt)])
            I(f'buffer_store_dwordx4 {vr(56+4*dt,4)}, v{V_L16}, {srd(SRD_WS)}, s{S_T0} offen sc1', tag='stC')
            if dt<6: I(f's_add_u32 s{S_T0}, s{S_T0}, {28*4096}')
        self.label(L)
    def cpack_flag(self):
        I=self.I
        L=self.newlabel('nocf')
        Lp=self.newlabel('w0poll')
        self.wait(vm='all')
        I(f's_cmp_lg_u32 s{S_W}, 0'); I(f's_cbranch_scc1 {Lp}')
        I(f'v_and_b32 v8, 3, v{V_LANE}'); I('v_lshlrev_b32 v8, 6, v8')
        self.poll('e0e', 8, P_DBG, 64)
        self.label(Lp)
        I('s_barrier')
        I(f's_cmp_ge_u32 s{S_E}, 28'); I(f's_cbranch_scc1 {L}')
        I(f's_mov_b32 s{S_T1}, 0')
        self.flag_set(S_T1,1,S_E,WS_FC)
        self.label(L)

    def p2_resid_loads(self):
        I=self.I
        self.make_srd(SRD_OUT, P_OUT, 2048*1792)
        I(f'v_and_b32 v7, 15, v{V_LANE}'); I(f'v_lshrrev_b32 v8, 4, v{V_LANE}')
        I('v_mul_u32_u24 v9, 896, v7'); I('v_lshlrev_b32 v10, 3, v8'); I('v_add_u32 v9, v9, v10')
        I(f's_lshl_b32 s{S_T0}, s{S_C}, 6'); I(f's_lshl_b32 s{S_T1}, s{S_WL}, 5'); I(f's_add_u32 s{S_T0}, s{S_T0}, s{S_T1}')
        I(f's_lshl_b32 s{S_T1}, s{S_G}, 6'); I(f's_lshl_b32 s{S_T2}, s{S_WH}, 5'); I(f's_add_u32 s{S_T1}, s{S_T1}, s{S_T2}')
        I('v_lshrrev_b32 v9, 2, v7'); I(f'v_mul_u32_u24 v9, {YW}, v9'); I('v_and_b32 v11, 3, v7'); I('v_lshlrev_b32 v11, 2, v11'); I('v_add_u32 v9, v9, v11')
        I(f's_lshl_b32 s{S_T2}, s{S_WL}, 5'); I(f's_add_u32 s{S_T2}, s{S_T2}, {LDS_Y+24576}'); I(f'v_add_u32 v9, s{S_T2}, v9')
        for y in range(2):
            I(f'ds_read_b32 v{24+2*y}, v9 offset:{16*y}', tag='rstat'); I(f'ds_read_b32 v{25+2*y}, v9 offset:{16*y+64}', tag='rstat')
        I(f's_lshl_b32 s{S_T2}, s{S_T1}, 1'); I(f'v_add_u32 v9, s{S_T2}, v10')
        I(f'global_load_dwordx2 v[28:29], v9, {sp(P_DSK)}', tag='res')
        I(f'global_load_dwordx2 v[30:31], v9, {sp(P_DSK)} offset:32', tag='res')
        I(f'v_add_u32 v9, s{S_T0}, v7'); I('v_lshlrev_b32 v9, 1, v9')
        I(f'global_load_ushort v10, v9, {sp(P_B2)}', tag='res')
        I(f'global_load_ushort v38, v9, {sp(P_B2)} offset:32', tag='res')
    def resid_compute(self):
        I=self.I
        self.wait(vm=['res'], lg=['rstat'])
        I('v_lshlrev_b32 v10, 16, v10'); I('v_lshlrev_b32 v38, 16, v38')
        yield
        for x in range(2):
            for h in range(2):
                I(f'v_lshlrev_b32 v{32+2*h}, 16, v{28+2*x+h}'); I(f'v_and_b32 v{33+2*h}, s{S_MASK}, v{28+2*x+h}')
            yield
            for y in range(2):
                xs=V_XR+4*y+2*x; st=24+2*y; b2=10 if y==0 else 38
                for h in range(2):
                    r=240+8*y+4*x+2*h
                    I(f'v_lshlrev_b32 v{r}, 16, v{xs+h}'); I(f'v_and_b32 v{r+1}, s{S_MASK}, v{xs+h}')
                    I(f'v_pk_add_f32 v[36:37], v[{r}:{r+1}], v[{st}:{st+1}] op_sel_hi:[1,0] neg_lo:[0,1] neg_hi:[0,1]')
                    yield
                    I(f'v_pk_mul_f32 v[36:37], v[36:37], v[{st}:{st+1}] op_sel:[0,1] op_sel_hi:[1,1]')
                    I(f'v_pk_add_f32 v[{r}:{r+1}], v[{r}:{r+1}], v[{b2}:{b2+1}] op_sel_hi:[1,0]')
                    I(f'v_pk_fma_f32 v[{r}:{r+1}], v[36:37], v[{32+2*h}:{33+2*h}], v[{r}:{r+1}]')
                    yield

    CREG=[['v16','v20','v24','v28'],['v32','v36','v40','v44'],['v48','v52','v216','v220'],['v224','v228','v232','v236'],
          ['a0','a4','a8','a12'],['a224','a228','a232','a236'],['a240','a244','a248','a252']]
    def creg(self,i,x):
        r=self.CREG[i][x]; n=int(r[1:]); return f'{r[0]}[{n}:{n+3}]'
    def p2_bases(self):
        I=self.I
        I(f's_mul_i32 s90, s{S_G}, {56*4096}'); I(f's_mul_i32 s{S_T0}, s{S_W}, {14*4096}'); I(f's_add_u32 s90, s90, s{S_T0}')
        I(f's_add_u32 s90, s90, {WS_GT}')
        I(f's_lshl_b32 s{S_T1}, s{S_WH}, 11'); I(f's_xor_b32 s{S_T2}, s{S_T1}, 2048')
        I(f's_add_u32 s92, s90, s{S_T2}'); I(f's_add_u32 s90, s90, s{S_T1}')
        I(f's_mul_i32 s22, s{S_G}, {28*4096}'); I(f's_mul_i32 s{S_T0}, s{S_W}, {7*4096}'); I(f's_add_u32 s22, s22, s{S_T0}')
        I(f's_add_u32 s22, s22, {WS_CP}')
        I(f's_add_u32 s23, s22, s{S_T2}'); I(f's_add_u32 s22, s22, s{S_T1}')
        I(f's_mul_i32 s38, s{S_C}, {28*4096}'); I(f's_add_u32 s38, s38, s{S_T0}'); I(f's_add_u32 s38, s38, {WS_HP}')
        I(f's_lshl_b32 s{S_T1}, s{S_WL}, 11'); I(f's_xor_b32 s{S_T2}, s{S_T1}, 2048')
        I(f's_add_u32 s39, s38, s{S_T2}'); I(f's_add_u32 s38, s38, s{S_T1}')
    def q_c(self, steps):
        I=self.I
        def one(i,x):
            def f():
                b=22 if x<2 else 23
                I(f's_add_u32 s91, s{b}, {i*4096}')
                I(f'buffer_load_dwordx4 {self.creg(i,x)}, v{V_L16}, {srd(SRD_WS)}, s91 offen offset:{(x&1)*1024} sc1', tag=('c',i,x))
            return f
        for i in steps:
            for x in range(4): self.q.append(one(i,x))
    def cflag_check(self):
        I=self.I
        L=self.newlabel('cf'); D=self.newlabel('cfd')
        self.wait(vm=['fc'])
        self.exec_set('0x3f80','0')
        I('v_cmp_gt_u32 vcc, 1, v54'); I(f's_cbranch_vccz {D}')
        snap=self.snapshot()
        I(f's_mov_b32 s{S_BOUND}, 0x40000')
        self.label(L)
        I(f'global_load_dword v54, v12, {sp(P_WS)} sc1'); I('s_waitcnt vmcnt(0)')
        I('v_cmp_gt_u32 vcc, 1, v54'); I(f's_cbranch_vccz {D}')
        I('s_sleep 4'); I(f's_sub_u32 s{S_BOUND}, s{S_BOUND}, 1'); I(f's_cbranch_scc0 {L}')
        self.label(D); self.restore(snap)
        self.exec_full()
    def flag_wait(self, vaddr, vdst, tag):
        I=self.I
        L=self.newlabel('fw'); D=self.newlabel('fwd')
        self.wait(vm=[tag])
        I(f'v_cmp_gt_u32 vcc, 1, v{vdst}'); I(f's_cbranch_vccz {D}')
        snap=self.snapshot()
        I(f's_mov_b32 s{S_BOUND}, 0x40000')
        self.label(L)
        I(f'global_load_dword v{vdst}, v{vaddr}, {sp(P_WS)} sc1'); I('s_waitcnt vmcnt(0)')
        I(f'v_cmp_gt_u32 vcc, 1, v{vdst}'); I(f's_cbranch_vccz {D}')
        I('s_sleep 4'); I(f's_sub_u32 s{S_BOUND}, s{S_BOUND}, 1'); I(f's_cbranch_scc0 {L}')
        self.label(D); self.restore(snap)
    def p2_main(self, pre_only=False):
        I=self.I
        NS=6
        g0=self.opt.sfirst
        steps=[('g',k) for k in range(g0)]
        gi,si=g0,0
        while gi<14 or si<7:
            if si<7: steps.append(('s',si)); si+=1
            if gi<14: steps.append(('g',gi)); gi+=1
        groups=[('g',i) if k=='g' else ('h',i) for k,i in steps]
        gidx={g:n for n,g in enumerate(groups)}
        reg=lambda g: V_RING+16*(gidx[g]%NS)
        pend=[(g,x) for g in groups for x in range(4)]
        done=set(); state={}
        if not pre_only and self.opt.gearly: pend,done,state=self.p2state
        def can(g,x):
            n=gidx[g]-NS
            return n<0 or (groups[n],x) in done
        def issue(nmax):
            n=0
            while n<nmax and pend and can(*pend[0]):
                g,x=pend[0]
                if g[0]=='h' and not state.get('hflag'):
                    self.flag_wait(14,11,'fh'); state['hflag']=True
                    if self.opt.tH:
                        I(f's_lshl_b32 s{S_T2}, s{S_G}, 12'); I(f's_mul_i32 s{S_T3}, s{S_C}, {28*4096}'); I(f's_add_u32 s{S_T2}, s{S_T2}, s{S_T3}')
                        I(f's_mul_i32 s{S_T3}, s{S_W}, {7*4096}'); I(f's_add_u32 s{S_T2}, s{S_T2}, s{S_T3}'); I(f's_add_u32 s{S_T2}, s{S_T2}, {WS_HP}')
                        self.dedup_touch(S_T2,32)
                pend.pop(0)
                b0,b1,nst={'g':(90,92,14),'h':(38,39,7)}[g[0]]
                sx=b0 if x<2 else b1
                I(f'buffer_load_dwordx4 {vr(reg(g)+4*x,4)}, v{V_L16}, {srd(SRD_WS)}, s{sx} offen offset:{(x&1)*1024} sc1', tag=(g,x))
                if (x&1) and g[1]<nst-1: I(f's_add_u32 s{sx}, s{sx}, 4096')
                n+=1
        if pre_only:
            issue(4*NS); self.p2state=(pend,done,state); return
        if not self.opt.gearly:
            issue(self.opt.tGpos)
            if self.opt.tG:
                I(f's_mul_i32 s{S_T2}, s86, 37'); I(f's_lshr_b32 s{S_T2}, s{S_T2}, 8'); I(f's_lshl_b32 s{S_T2}, s{S_T2}, 13')
                I(f's_mul_i32 s{S_T3}, s{S_G}, {56*4096}'); I(f's_add_u32 s{S_T2}, s{S_T2}, s{S_T3}'); I(f's_mul_i32 s{S_T3}, s{S_W}, {14*4096}')
                I(f's_add_u32 s{S_T2}, s{S_T2}, s{S_T3}'); I(f's_add_u32 s{S_T2}, s{S_T2}, {WS_GT+6*4096}')
                self.dedup_touch(S_T2)
            issue(4*NS-self.opt.tGpos)
        first=True
        self.q_c([4])
        for pos,(kind,i) in enumerate(steps):
            if kind=='g' and i==3: I(f'global_load_dword v11, v14, {sp(P_WS)} sc1', tag='fh')
            if kind=='s':
                H=('h',i)
                for x in range(4):
                    self.wait(vm=[('c',i,x)]+([(H,y) for y in range(4)] if x==0 else []))
                    if x==0: self.stamp(f'p2.s{i}',fine=2)
                    for y in range(4):
                        d=V_ACC+16*x+4*y
                        I(f'v_mfma_f32_16x16x32_bf16 {vr(d,4)}, {self.creg(i,x)}, {vr(reg(H)+4*y,4)}, {vr(d,4)}')
                    if x<3: issue(1)
                for y in range(4): done.add((H,y))
                issue(2)
            else:
                A=('g',i)
                for x in range(4):
                    if self.opt.waitstep:
                        if x==0: self.wait(vm=[(A,xx) for xx in range(4)])
                    else: self.wait(vm=[(A,x)])
                    if x==0: self.stamp(f'p2.g{i}',fine=2)
                    for y in range(4):
                        d=V_ACC+16*x+4*y
                        cin='0' if first else vr(d,4)
                        I(f'v_mfma_f32_16x16x32_bf16 {vr(d,4)}, {vr(reg(A)+4*x,4)}, {ar(16*i+4*y,4)}, {cin}')
                    done.add((A,x))
                    issue(1)
                    if i==1: self.q.pop(0)()
            first=False
        assert not pend

    def p2_epilogue(self):
        I=self.I
        if self.opt.outlds: self.out_addr()
        self.reduce(V_RING)
        for y in range(2):
            for x in range(2):
                a=V_ACC+16*x+4*y; r=240+8*y+4*x
                for h in range(2):
                    I(f'v_pk_add_f32 v[{a+2*h}:{a+2*h+1}], v[{a+2*h}:{a+2*h+1}], v[{r+2*h}:{r+2*h+1}]')
        if self.opt.delta:
            import struct
            hx='0x%08x'%struct.unpack('<I',struct.pack('<f',self.opt.delta))[0]
            for y in range(2):
                for x in range(2):
                    for r in range(4):
                        a=V_ACC+16*x+4*y+r
                        I(f'v_add_f32 v{a}, {hx}, v{a}')
        if not self.opt.outlds:
            I(f'v_and_b32 v7, 15, v{V_LANE}'); I(f'v_lshrrev_b32 v8, 4, v{V_LANE}')
            I('v_mul_u32_u24 v9, 1792, v7'); I('v_lshlrev_b32 v10, 4, v8'); I('v_add_u32 v9, v9, v10')
            I(f's_lshl_b32 s{S_T0}, s{S_C}, 6'); I(f's_lshl_b32 s{S_T1}, s{S_WL}, 5'); I(f's_add_u32 s{S_T0}, s{S_T0}, s{S_T1}')
            I(f's_lshl_b32 s{S_T1}, s{S_G}, 6'); I(f's_lshl_b32 s{S_T2}, s{S_WH}, 5'); I(f's_add_u32 s{S_T1}, s{S_T1}, s{S_T2}')
            for y in range(2):
                for x in range(2):
                    I(f's_add_u32 s{S_T2}, s{S_T0}, {16*y}'); I(f's_mul_i32 s{S_T2}, s{S_T2}, 1792')
                    I(f's_add_u32 s{S_T3}, s{S_T1}, {16*x}'); I(f's_lshl_b32 s{S_T3}, s{S_T3}, 2'); I(f's_add_u32 s{S_T2}, s{S_T2}, s{S_T3}')
                    a=V_ACC+16*x+4*y
                    I(f'buffer_store_dwordx4 {vr(a,4)}, v9, {srd(SRD_OUT)}, s{S_T2} offen {self.opt.outmod}')
        else:
            for y in range(2):
                for x in range(2):
                    a=V_ACC+16*x+4*y
                    I(f'ds_write_b128 v{8+x}, {vr(a,4)} offset:{2048*y}', tag='ow')
            self.wait(lg=['ow'])
            for j in range(4):
                I(f'ds_read_b128 {vr(V_RING+4*j,4)}, v10 offset:{1024*j}', tag=('or',j))
            for j in range(4):
                self.wait(lg=[('or',j)])
                I(f'buffer_store_dwordx4 {vr(V_RING+4*j,4)}, v11, {srd(SRD_OUT)}, s{S_A} offen {self.opt.outmod}')
                if j<3: I(f's_add_u32 s{S_A}, s{S_A}, {8*1792}')
    def out_addr(self):
        I=self.I
        I(f'v_and_b32 v7, 15, v{V_LANE}'); I(f'v_lshrrev_b32 v8, 4, v{V_LANE}'); I('v_and_b32 v9, 7, v7'); I('v_xor_b32 v8, v8, v9')
        I('v_lshlrev_b32 v8, 4, v8'); I('v_lshlrev_b32 v7, 7, v7'); I('v_add_u32 v8, v8, v7'); I(f'v_add_u32 v8, s{S_YB}, v8'); I('v_xor_b32 v9, 64, v8')
        I(f'v_lshrrev_b32 v7, 3, v{V_LANE}'); I(f'v_and_b32 v11, 7, v{V_LANE}'); I('v_xor_b32 v10, v11, v7'); I('v_lshlrev_b32 v10, 4, v10')
        I('v_lshlrev_b32 v6, 7, v7'); I('v_add_u32 v10, v10, v6'); I(f'v_add_u32 v10, s{S_YB}, v10')
        I('v_mul_u32_u24 v7, 1792, v7'); I('v_lshlrev_b32 v11, 4, v11'); I('v_add_u32 v11, v11, v7')
        I(f's_lshl_b32 s{S_T0}, s{S_C}, 6'); I(f's_lshl_b32 s{S_T1}, s{S_WL}, 5'); I(f's_add_u32 s{S_T0}, s{S_T0}, s{S_T1}'); I(f's_mul_i32 s{S_T0}, s{S_T0}, 1792')
        I(f's_lshl_b32 s{S_T1}, s{S_G}, 6'); I(f's_lshl_b32 s{S_T2}, s{S_WH}, 5'); I(f's_add_u32 s{S_T1}, s{S_T1}, s{S_T2}'); I(f's_lshl_b32 s{S_T1}, s{S_T1}, 2')
        I(f's_add_u32 s{S_A}, s{S_T0}, s{S_T1}')

    def write_stamps(self):
        if not self.opt.stamps: return
        I=self.I
        I('s_lshl_b32 s3, s2, 2'); I(f's_add_u32 s3, s3, s{S_W}'); I('s_lshl_b32 s3, s3, 8'); I(f's_add_u32 s3, s3, {WS_DBG}')
        I(f'v_lshlrev_b32 v9, 2, v{V_LANE}')
        I(f'buffer_store_dword v{self.vst}, v9, {srd(SRD_WS)}, s3 offen')
        if getattr(self.opt,'dbgwg',-1)>=0 and self.final_stamps:
            L=self.newlabel('dbgout')
            I(f's_cmp_lg_u32 s2, {self.opt.dbgwg}'); I(f's_cbranch_scc1 {L}')
            I(f's_cmp_lg_u32 s{S_W}, 0'); I(f's_cbranch_scc1 {L}')
            I(f'v_readlane_b32 s3, v{self.vst}, 0'); I('s_nop 4')
            I(f'v_subrev_u32 v8, s3, v{self.vst}')
            I(f'v_add_u32 v9, {self.opt.dbgoff}, v{V_LANE}'); I('v_lshlrev_b32 v9, 2, v9')
            I('ds_bpermute_b32 v8, v9, v8'); I('s_waitcnt lgkmcnt(0)')
            I(f'v_lshlrev_b32 v9, 2, v{V_LANE}')
            self.exec_set('0xfffe','0')
            I(f'global_store_dword v9, v8, {sp(P_DBG)}')
            self.exec_full()
            self.label(L)
    def build(self):
        I=self.I; o=self.opt
        if o.stamps: I('v_mov_b32 v55, 0')
        self.prologue()
        self.touches_pre()
        wt=self.opt.w1touch
        if wt=='A' or self.opt.alsoA: self.touch_w1()
        if self.opt.t3start:
            Lt=self.newlabel('t3s')
            I(f's_cmp_lg_u32 s{S_W}, 3'); I(f's_cbranch_scc1 {Lt}')
            snap=self.snapshot()
            self.touch_w1_wg()
            self.label(Lt); self.merge(snap)
        Lcont=self.newlabel('cont')
        I('s_cmp_eq_u32 s74, 1'); I(f's_cbranch_scc1 {Lcont}')
        snap=self.snapshot()
        self.ln8(clears=False)
        self.vm['st0']=0
        self.arrive0()
        if wt=='F': self.touch_w1()
        if wt in ('S','T','U'): self.touch_w1_split(True)
        self.stamp('pf1')
        if self.opt.eorder==3:
            self.touch_pf(2)
            self.wait(vm='all')
        elif self.opt.eorder==0:
            self.cpack()
            self.stamp('cp')
            self.touch_pf(2)
            self.cpack_flag()
        elif self.opt.eorder==1:
            self.touch_pf(2)
            self.stamp('cp')
            self.cpack()
            self.cpack_flag()
        else:
            self.cpack()
            self.cpack_flag()
            self.stamp('cp')
            self.touch_pf(2)
            self.wait(vm='all')
        self.stamp('pf2')
        self.write_stamps()
        I('s_endpgm')
        self.label(Lcont); self.restore(snap)
        if wt=='T': self.touch_w1_split(False)
        self.dma_setup()
        if wt=='E': self.touch_w1(setup_only=True)
        self.w1_setup()
        if self.opt.bfirst: self.q_b(); self.q_x([0,1,2])
        else: self.q_x([0,1,2]); self.q_b()
        for n in range(self.opt.pre): self.tick()
        self.stamp('issued')
        self.auto=self.opt.period if self.opt.ln8tick else 0
        self.ln8()
        self.auto=0
        if wt=='U': self.touch_w1_split(False)
        self.stamp('ln8 stored')
        if self.opt.bfirst: self.q_x([3])
        else:
            rest=self.q; self.q=[]; self.q_x([3]); self.q+=rest
        self.auto=self.opt.period
        self.x_addr()
        self.lam_consts()
        self.auto=0
        self.stamp('lam')
        self.arrive0()
        self.stamp('arrived')
        self.drain_q(batch=True)
        if wt=='F': self.touch_w1()
        if wt=='S': self.touch_w1_split(False)
        self.stamp('drained')
        self.wait(vm=['x64','bdma']); I('s_barrier')
        self.do_bread()
        if self.opt.b13dma:
            for im in range(2):
                I(f's_add_u32 m0, s{S_YB}, {SLOT_OFF[5]+1024*im}'); I('s_nop 0')
                I(f'buffer_load_dwordx4 v236, {srd(SRD_1 if im==0 else SRD_2)}, s89 offen lds', tag='b13')
        self.auto=self.opt.statp
        self.row_stats()
        self.auto=0
        self.wait(vm=['b13'])
        if self.opt.b13dma:
            I(f'v_and_b32 v8, 15, v{V_LANE}'); I('v_lshlrev_b32 v8, 6, v8'); I(f'v_lshrrev_b32 v9, 4, v{V_LANE}'); I('v_lshlrev_b32 v9, 4, v9')
            I('v_add_u32 v8, v8, v9'); I(f'v_add_u32 v8, s{S_YB}, v8')
            I(f'ds_read_b128 {vr(V_BF+52,4)}, v8 offset:{SLOT_OFF[5]}', tag='b13r'); I(f'ds_read_b128 {vr(V_BF+56+52,4)}, v8 offset:{SLOT_OFF[5]+1024}', tag='b13r')
            self.wait(lg=['b13r'])
        self.stamp('ln64')
        I(f'v_and_b32 v35, 3, v{V_LANE}'); I('v_lshlrev_b32 v35, 6, v35')
        I(f'global_load_dword v34, v35, {sp(P_DBG)} sc1', tag='e0c')
        self.auto=self.opt.bup
        self.bu_gemm()
        self.stamp('bu',fine=True)
        self.auto=0
        self.x_resid_reads()
        self.auto=self.opt.scanp
        self.ln_fix()
        self.scan1()
        self.auto=0
        self.stamp('scan1')
        self.wait_e0()
        self.stamp('e0')
        Lnog=self.newlabel('nog1'); Lj=self.newlabel('g1join')
        I(f's_cmp_eq_u32 s{S_HASG1}, 0'); I(f's_cbranch_scc1 {Lnog}')
        snap=self.snapshot()
        R1=dict(self.R); R1['free']=list(self.R['free']); R1['slot']=dict(self.R['slot'])
        self.g_bias_load()
        self.gemm1()
        self.stamp('gemm1')
        self.g_epilogue()
        self.stamp('gepi')
        I(f's_branch {Lj}')
        snapA=self.snapshot()
        RA={k:self.R[k] for k in ('iss','rd','rel','piece')}; RA['free']=list(self.R['free']); RA['slot']=dict(self.R['slot'])
        self.label(Lnog); self.restore(snap); self.R=R1
        if self.opt.eorder==3:
            I(f's_lshr_b32 s{S_E}, s95, 1'); I(f's_mul_i32 s{S_E}, s{S_E}, 7'); I(f's_add_u32 s{S_E}, s{S_E}, s86'); I(f's_sub_u32 s{S_E}, s{S_E}, 21')
            self.cpack()
            self.wait(vm=['stC']); I('s_barrier')
            I(f's_mov_b32 s{S_T1}, 0')
            self.flag_set(S_T1,1,S_E,WS_FC)
        self.ring_finish(); self.wait(lg='all')
        self.w2_setup()
        self.replay_ring(RA)
        self.e_addr(); self.e_loads()
        self.p2_flag_addr(); self.p2_bases()
        I(f'global_load_dword v54, v12, {sp(P_WS)} sc1', tag='fc')
        self.label(Lj); self.merge(snapA)
        self.cflag_check()
        self.q_c([5,6])
        self.auto=self.opt.finp
        for _ in self.finalize(): pass
        self.auto=0
        self.stamp('final')
        if o.stamps: I('v_mov_b32 v15, v55'); self.vst=15
        self.drain_q()
        if self.opt.gearly:
            self.flag_wait(12,53,'fg')
            self.stamp('flagG')
            self.p2_main(pre_only=True)
        self.p2_resid_loads()
        for n in range(self.opt.rwait):
            if self.R is not None and not self.ring_tick(): self.ring_finish()
        self.auto=self.opt.finp
        for _ in self.resid_compute(): pass
        self.auto=0
        self.wait(vm=['stH']); I('s_barrier')
        self.flag_set(S_C,7,S_G,WS_FH)
        self.q_c([0,1,2,3])
        while self.q or self.R is not None:
            if self.q:
                self.tick()
                if len(self.q)==self.opt.fglead and not self.opt.gearly: I(f'global_load_dword v11, v12, {sp(P_WS)} sc1', tag='fg')
            if self.R is not None:
                if not self.ring_tick(): self.ring_finish()
        self.wait(lg='all')
        self.stamp('w2 in regs')
        if not self.opt.gearly:
            self.flag_wait(12,11,'fg')
            self.stamp('flagG')
        self.p2_main()
        self.stamp('p2')
        self.p2_epilogue()
        self.stamp('end'); self.cstamp('c1')
        self.final_stamps=True
        self.write_stamps()
        self.label('L_exit')
        I('s_endpgm')
        self.label('L_code_end')

def header(lds):
    return f"""; Fused S5 SSM + MLP-Mixer token MLP: out = x + SSM(LN(x)) + MLP(LN(LN(x))^T)^T in one persistent launch.
; @launch grid=(256,1,1) block=(256,1,1) lds={lds}
.amdgcn_target "amdgcn-amd-amdhsa--gfx950"
.text
.globl {KN}
.p2align 8
.type {KN},@function
{KN}:
"""
def footer():
    return f"""
.section .rodata,"a"
.p2align 6
.amdhsa_kernel {KN}
  .amdhsa_next_free_vgpr 512
  .amdhsa_next_free_sgpr 102
  .amdhsa_accum_offset 256
  .amdhsa_group_segment_fixed_size 0
  .amdhsa_kernarg_size 136
  .amdhsa_user_sgpr_count 2
  .amdhsa_user_sgpr_kernarg_segment_ptr 1
  .amdhsa_system_sgpr_workgroup_id_x 1
  .amdhsa_float_denorm_mode_32 3
.end_amdhsa_kernel
"""
if __name__=='__main__':
    ap=argparse.ArgumentParser()
    ap.add_argument('-o',default='k.s'); ap.add_argument('--stamps',action='store_true'); ap.add_argument('--stop',default=''); ap.add_argument('--fine',type=int,default=0); ap.add_argument('--period',type=int,default=48); ap.add_argument('--batchexec',type=int,default=1); ap.add_argument('--waitstep',type=int,default=0); ap.add_argument('--tHT',type=int,default=0); ap.add_argument('--tHTpos',type=int,default=12); ap.add_argument('--tG',type=int,default=0); ap.add_argument('--tGpos',type=int,default=8); ap.add_argument('--tH',type=int,default=0); ap.add_argument('--outlds',type=int,default=1); ap.add_argument('--b13dma',type=int,default=1); ap.add_argument('--bupj',type=int,default=0); ap.add_argument('--scanp',type=int,default=64); ap.add_argument('--pfearly',type=int,default=1); ap.add_argument('--eorder',type=int,default=1); ap.add_argument('--statp',type=int,default=0); ap.add_argument('--gearly',type=int,default=1); ap.add_argument('--delta',type=float,default=0.0); ap.add_argument('--bup',type=int,default=0); ap.add_argument('--statj',type=int,default=9); ap.add_argument('--outmod',default=''); ap.add_argument('--dbgwg',type=int,default=-1); ap.add_argument('--dbgoff',type=int,default=0); ap.add_argument('--arrlead',type=int,default=10); ap.add_argument('--t3start',type=int,default=0); ap.add_argument('--notouch3',type=int,default=0); ap.add_argument('--own3',type=int,default=0); ap.add_argument('--alsoA',type=int,default=0); ap.add_argument('--now2',type=int,default=0); ap.add_argument('--gepip',type=int,default=0); ap.add_argument('--finp',type=int,default=36); ap.add_argument('--sfirst',type=int,default=10); ap.add_argument('--rwait',type=int,default=8); ap.add_argument('--fglead',type=int,default=6); ap.add_argument('--ln64p',type=int,default=48); ap.add_argument('--bfirst',type=int,default=0); ap.add_argument('--w2late',type=int,default=1); ap.add_argument('--rot1',type=int,default=4); ap.add_argument('--rot2',type=int,default=1); ap.add_argument('--rot3',type=int,default=1); ap.add_argument('--ln8tick',type=int,default=0); ap.add_argument('--bdelay',type=int,default=2); ap.add_argument('--w1touch',default='A'); ap.add_argument('--fin0',type=int,default=4); ap.add_argument('--finrate',type=int,default=2); ap.add_argument('--p2rate',type=int,default=3); ap.add_argument('--pre',type=int,default=1); ap.add_argument('--pre1',type=int,default=8); ap.add_argument('--gwait',type=int,default=6); ap.add_argument('--ht_touch',type=int,default=0); ap.add_argument('--g_touch',type=int,default=0)
    o=ap.parse_args()
    k=K(o); k.build()
    t,n=k.text()
    open(o.o,'w').write(header(LDS_TOTAL)+t+footer())
    print('wrote',o.o,'lines',t.count('\n'),'nop states inserted',n)
    if o.stamps: open(o.o+'.names','w').write(','.join(k.stampnames)); print(k.stampnames)
```

```python
import sys, os, argparse
from asmgen import Gen

KN = "parallel_sum__ssm_conv_s5__mixer_token_mlp__prompt_kernel"

WS_HT    = 0x000000
WS_STAT  = 0x1C0000
WS_E     = 0x1C4000
WS_FH    = 0x1E0000
WS_FG    = 0x1E4000
WS_FC    = 0x1E8000
WS_CP    = 0x780000
WS_GT    = 0x200000
WS_HP    = 0x400000
WS_DBG   = 0x900000

LDS_X  = 0
LDS_Y  = 57344
YW     = 26624
SLOT_OFF = [0, 4096, 8192, 12288, 16384, 20480]
LDS_LN8 = LDS_X + 57344 - 7680
LDS_TOTAL = LDS_Y + 4*YW

P_X, P_LRE, P_LIM, P_BRE, P_BIM, P_CRE, P_CIM, P_LDT = 4,6,8,10,12,14,16,18
P_DSK = 20
P_W1, P_B1, P_W2, P_B2 = 24,26,28,30
P_OUT, P_DBG, P_WS = 32,34,36
SRD_X, SRD_WS, SRD_1, SRD_2, SRD_W, SRD_OUT = 40,44,48,52,56,60
S_W, S_WH, S_WL, S_C, S_G, S_DT1, S_FT, S_HASG1 = 64,65,66,67,68,69,70,71
S_MASK, S_ONES = 72, 73
S_A, S_B, S_WO, S_T0, S_T1, S_T2, S_T3, S_BOUND = 76,77,78,79,80,81,82,83
S_YB = 84
S_WBEG, S_WEND = 96, 97
S_KO, S_KEND = 100, 101
S_FI = 3
S_E = 85
def sp(n): return f's[{n}:{n+1}]'
def srd(n): return f's[{n}:{n+3}]'
def vr(a,n): return f'v[{a}:{a+n-1}]' if n>1 else f'v{a}'
def ar(a,n): return f'a[{a}:{a+n-1}]' if n>1 else f'a{a}'

V_LANE, V_L16 = 0, 1
V_TR = 2
V_DMA = [6,13]
V_T = 16
V_LR,V_LI,V_K1,V_K2,V_SR,V_SI,V_PR,V_PI,V_L64R,V_L64I,V_L512R,V_L512I = range(40,52)
V_IN = 52
V_X64 = 56
V_BF = 112
V_RAW = 224
V_ACC = 56
V_RING = 120
V_EL = 16
V_EOF = 200
V_XR = 216

class K(Gen):
    def __init__(self, opt):
        super().__init__(); self.opt=opt; self.nstamp=0
        self.cur_hi='-1'; self.batch=False; self.final_stamps=False; self.vst=55; self.nx=0; self.nb=0; self.bread=False; self.allow_bread=False; self.bdelay=opt.bdelay; self.q=[]; self.R=None; self.auto=0; self.acc=0; self.in_tick=False; self.full=True
    def I(self,t,tag=None):
        super().I(t,tag)
        if self.in_tick: return
        mn=t.split()[0]
        if mn.startswith(('buffer_','global_')): self.acc=0; return
        if not self.auto: return
        if mn.startswith('v_mfma'): self.acc+=16
        elif mn.startswith(('v_exp','v_rcp','v_sqrt','v_sin','v_cos','v_log')): self.acc+=8
        elif mn.startswith(('v_','ds_')): self.acc+=4
        else: return
        if self.acc>=self.auto and self.full and not mn.startswith(('v_cmp','s_cmp','s_bitcmp')):
            self.tick()
    def tick(self):
        self.in_tick=True; self.acc=0
        if not self.bread and self.allow_bread and self.nb>=34:
            if self.bdelay>0: self.bdelay-=1
            else:
                self.do_bread(); self.in_tick=False; return
        if self.q: self.q.pop(0)()
        elif self.R is not None: self.ring_tick()
        self.in_tick=False
    def do_bread(self):
        self.bread=True
        self.b_read()
        self.wait(lg=['brd'])
        self.ring_init('w1',16,3584,range(6))
    def row_exec(self, hi):
        if self.cur_hi!=hi: self.I(f's_mov_b32 exec_hi, {hi}'); self.cur_hi=hi
    def row_exec_done(self):
        if not self.batch: self.I('s_mov_b32 exec_hi, -1'); self.cur_hi='-1'
    def drain_q(self, batch=False):
        self.batch=batch and self.opt.batchexec
        while self.q: self.tick()
        self.batch=False
        if self.cur_hi!='-1': self.I('s_mov_b32 exec_hi, -1'); self.cur_hi='-1'
    def stamp(self, name, fine=False):
        if not self.opt.stamps: return
        if fine and int(fine)>self.opt.fine: return
        i=self.nstamp; self.nstamp+=1
        assert i<64
        self.c(f'stamp {i}: {name}')
        self.wait(lg='all')
        self.I('s_memrealtime s[98:99]'); self.I('s_waitcnt lgkmcnt(0)'); self.smem=False
        self.I(f'v_writelane_b32 v{self.vst}, s98, {i}')
        self.stampnames=getattr(self,'stampnames',[])+[name]
    def cstamp(self, name):
        if not self.opt.stamps: return
        i=self.nstamp; self.nstamp+=1
        self.wait(lg='all')
        self.I('s_memtime s[98:99]'); self.I('s_waitcnt lgkmcnt(0)'); self.smem=False
        self.I(f'v_writelane_b32 v{self.vst}, s98, {i}')
        self.stampnames=getattr(self,'stampnames',[])+['#'+name]
    def rnd_bf16(self, v):
        self.I(f'v_cvt_pk_bf16_f32 v{v}, v{v}, v{v}')
        self.I(f'v_lshlrev_b32 v{v}, 16, v{v}')
    def make_srd(self, s, ptr, nbytes):
        self.I(f's_mov_b32 s{s}, s{ptr}'); self.I(f's_and_b32 s{s+1}, s{ptr+1}, 0xffff')
        self.I(f's_mov_b32 s{s+2}, {nbytes}'); self.I(f's_mov_b32 s{s+3}, 0x20000')
    def ln_stats(self, SUM, SSQ, R, C, T):
        I=self.I
        I(f'v_mul_f32 v{SUM}, 0x3b124925, v{SUM}')
        I(f'v_mul_f32 v{SSQ}, 0x3b124925, v{SSQ}')
        I(f'v_fma_f32 v{SSQ}, -v{SUM}, v{SUM}, v{SSQ}')
        I(f'v_max_f32 v{SSQ}, 0, v{SSQ}')
        I(f'v_cvt_pk_bf16_f32 v{SUM}, v{SUM}, v{SUM}')
        I(f'v_cvt_pk_bf16_f32 v{SSQ}, v{SSQ}, v{SSQ}')
        I(f'v_lshlrev_b32 v{SUM}, 16, v{SUM}')
        I(f'v_lshlrev_b32 v{SSQ}, 16, v{SSQ}')
        I(f'v_add_f32 v{SSQ}, 0x3727c5ac, v{SSQ}')
        self.rnd_bf16(SSQ)
        I(f'v_sqrt_f32 v{SSQ}, v{SSQ}')
        self.rnd_bf16(SSQ)
        I(f'v_rcp_f32 v{R}, v{SSQ}')
        I(f'v_mul_f32 v{C}, v{SUM}, v{R}')
        I(f'v_sub_f32 v{C}, 0, v{C}')
    def dot_sums(self, regs, accs):
        I=self.I
        for n,d in enumerate(regs):
            s,q = accs[2*(n&1)], accs[2*(n&1)+1]
            if n<2:
                I(f'v_dot2_f32_bf16 v{s}, v{d}, s{S_ONES}, 0')
                I(f'v_dot2_f32_bf16 v{q}, v{d}, v{d}, 0')
            else:
                I(f'v_dot2_f32_bf16 v{s}, v{d}, s{S_ONES}, v{s}')
                I(f'v_dot2_f32_bf16 v{q}, v{d}, v{d}, v{q}')
        I(f'v_add_f32 v{accs[0]}, v{accs[0]}, v{accs[2]}')
        I(f'v_add_f32 v{accs[1]}, v{accs[1]}, v{accs[3]}')
    def normalize(self, regs, R, C, tmps, hook=None):
        I=self.I
        n=len(tmps)
        for b in range(0,len(regs),n):
            grp=regs[b:b+n]
            for d,t in zip(grp,tmps):
                I(f'v_lshlrev_b32 v{t}, 16, v{d}')
                I(f'v_and_b32 v{t+1}, s{S_MASK}, v{d}')
            for d,t in zip(grp,tmps):
                I(f'v_pk_fma_f32 v[{t}:{t+1}], v[{t}:{t+1}], v[{R}:{R+1}], v[{C}:{C+1}] op_sel_hi:[1,0,0]')
            for d,t in zip(grp,tmps):
                I(f'v_cvt_pk_bf16_f32 v{d}, v{t}, v{t+1}')
            if hook: hook(b//n)
    def cmul(self, dr, di, xr, xi, yr, yi, t0, t1):
        I=self.I
        I(f'v_mul_f32 v{t0}, v{xi}, v{yi}')
        I(f'v_mul_f32 v{t1}, v{xi}, v{yr}')
        I(f'v_fma_f32 v{t0}, v{xr}, v{yr}, -v{t0}')
        I(f'v_fma_f32 v{di}, v{xr}, v{yi}, v{t1}')
        I(f'v_mov_b32 v{dr}, v{t0}')
    def cfma(self, dr, di, xr, xi, yr, yi, zr, zi, t0, t1):
        I=self.I
        I(f'v_fma_f32 v{t0}, v{xr}, v{yr}, v{zr}')
        I(f'v_fma_f32 v{t1}, v{xr}, v{yi}, v{zi}')
        I(f'v_fma_f32 v{t0}, -v{xi}, v{yi}, v{t0}')
        I(f'v_fma_f32 v{di}, v{xi}, v{yr}, v{t1}')
        I(f'v_mov_b32 v{dr}, v{t0}')
    def csq(self, dr, di, xr, xi, t0):
        I=self.I
        I(f'v_mul_f32 v{t0}, v{xi}, v{xi}')
        I(f'v_mul_f32 v{di}, v{xr}, v{xi}')
        I(f'v_fma_f32 v{dr}, v{xr}, v{xr}, -v{t0}')
        I(f'v_add_f32 v{di}, v{di}, v{di}')
    def allgather_q(self, v, g0, g1, g2, g3):
        I=self.I
        I(f'v_mov_b32 v{g0}, v{v}'); I(f'v_mov_b32 v{g1}, v{v}')
        I(f'v_permlane16_swap_b32 v{g0}, v{g1}')
        I(f'v_mov_b32 v{g2}, v{g0}'); I(f'v_mov_b32 v{g3}, v{g1}')
        I(f'v_permlane32_swap_b32 v{g0}, v{g2}')
        I(f'v_permlane32_swap_b32 v{g1}, v{g3}')
    def exec_full(self): self.I('s_mov_b64 exec, -1'); self.full=True
    def exec_set(self, lo, hi):
        self.full=False
        self.I(f's_mov_b32 exec_lo, {lo}'); self.I(f's_mov_b32 exec_hi, {hi}')
    def poll(self, name, voff, base, cmp_ge, nlanes_lo=None):
        I=self.I
        L=self.newlabel('poll'); D=self.newlabel('polld')
        I(f's_mov_b32 s{S_BOUND}, 0x40000')
        self.label(L)
        I(f'global_load_dword v7, v{voff}, {sp(base)} sc1')
        I('s_waitcnt vmcnt(0)'); self.vm={}
        I(f'v_cmp_gt_u32 vcc, {cmp_ge}, v7')
        I(f's_cbranch_vccz {D}')
        I('s_sleep 4')
        I(f's_sub_u32 s{S_BOUND}, s{S_BOUND}, 1')
        I(f's_cbranch_scc0 {L}')
        self.label(D)

    def ring_setup(self, pitch, xorsel):
        I=self.I
        I(f'v_lshrrev_b32 v7, 3, v{V_LANE}'); I(f'v_and_b32 v8, 7, v{V_LANE}')
        I('v_and_b32 v9, 6, v7'); I('v_xor_b32 v8, v8, v9'); I('v_lshlrev_b32 v8, 4, v8')
        I(f'v_mul_u32_u24 v7, {pitch}, v7'); I(f'v_add_u32 v{V_DMA[0]}, v7, v8')
        I(f'v_add_u32 v{V_DMA[1]}, {8*pitch-1024}, v{V_DMA[0]}')
        I(f'v_lshrrev_b32 v7, 2, v{V_LANE}'); I('v_and_b32 v8, 6, v7')
        I(f'v_bfe_u32 v9, v{V_LANE}, 1, 1'); I('v_xor_b32 v8, v8, v9'); I('v_lshlrev_b32 v8, 4, v8')
        I('v_lshlrev_b32 v7, 7, v7'); I('v_add_u32 v7, v7, v8')
        I(f'v_and_b32 v9, 1, v{V_LANE}'); I('v_lshlrev_b32 v9, 3, v9'); I('v_add_u32 v7, v7, v9')
        I(f's_lshl_b32 s{S_T0}, s{xorsel}, 6')
        I(f'v_xor_b32 v7, s{S_T0}, v7')
        I(f'v_add_u32 v{V_TR}, s{S_YB}, v7')
        for x in range(1,4):
            I(f'v_xor_b32 v{V_TR+x}, {x<<5}, v{V_TR}')
    def ring_init(self, name, nsteps, pitch, slots):
        self.R=dict(name=name,n=nsteps,pitch=pitch,free=list(slots),slot={},iss=0,rd=0,rel=0,piece=0)
    def ring_add(self, slots): self.R['free']+=list(slots)
    def ring_issue_piece(self):
        R=self.R; I=self.I
        k=R['iss']
        if k>=R['n']: return False
        j=R['piece']
        if j==0:
            if not R['free']: return False
            R['slot'][k]=R['free'].pop(0)
        if j%2==0:
            I(f's_add_u32 m0, s{S_YB}, {SLOT_OFF[R["slot"][k]]+j*1024}')
            if k or j: I(f's_add_u32 s{S_WO}, s{S_WO}, {16*R["pitch"]}')
            else: I('s_nop 0')
        I(f'buffer_load_dwordx4 v{V_DMA[j%2]}, {srd(SRD_W)}, s{S_WO} offen offset:{(j%2)*1024} lds', tag=(R['name'],k))
        R['piece']=(j+1)%4
        if R['piece']==0: R['iss']+=1
        return True
    def ring_issue(self):
        while self.ring_issue_piece(): pass
    def ring_read(self):
        R=self.R; I=self.I
        k=R['rd']
        if k>=R['n']: return False
        assert k<R['iss'], 'read before issue'
        off=SLOT_OFF[R['slot'][k]]
        self.wait(vm=[(R['name'],k)])
        for x in range(4):
            b=16*k+4*x
            I(f'ds_read_b64_tr_b16 {ar(b,2)}, v{V_TR+x} offset:{off}', tag=(R['name'],'r',k))
            I(f'ds_read_b64_tr_b16 {ar(b+2,2)}, v{V_TR+x} offset:{off+2048}', tag=(R['name'],'r',k))
        R['rd']+=1
        return True
    def ring_release(self):
        R=self.R
        k=R['rel']
        if k>=R['rd']: return False
        self.wait(lg=[(R['name'],'r',k)])
        R['free'].append(R['slot'][k]); R['rel']+=1
        self.ring_issue()
        return True
    def ring_tick(self):
        R=self.R
        if R['iss']<R['n']:
            if R['piece']==0 and not R['free']:
                if R['rel']>=R['rd']:
                    assert R['rd']<R.get('maxrd',99)
                    self.ring_read()
                k=R['rel']; self.wait(lg=[(R['name'],'r',k)]); R['free'].append(R['slot'][k]); R['rel']+=1
            self.ring_issue_piece()
            if R['piece']==3 and not R['free'] and R['rd']==R['rel'] and R['rd']<R['iss'] and R['rd']<R.get('maxrd',99):
                self.ring_read()
            return True
        if R['rd']<R['n'] and R['rd']<R.get('maxrd',99): return self.ring_read()
        return False
    def bg(self):
        return self.ring_tick()
    def replay_ring(self, RA):
        R=self.R
        while (R['iss'],R['piece'])<(RA['iss'],RA['piece']) or R['rd']<RA['rd']:
            if (R['iss'],R['piece'])<(RA['iss'],RA['piece']):
                before=R['rd']
                R['maxrd']=RA['rd']
                self.ring_tick()
            else:
                self.ring_read()
        while R['rel']<RA['rel']:
            k=R['rel']; self.wait(lg=[(R['name'],'r',k)]); R['free'].append(R['slot'][k]); R['rel']+=1
        R['maxrd']=99
        for k in RA: assert RA[k]==R[k], (k,RA[k],R[k])
    def ring_finish(self):
        R=self.R; R['maxrd']=99
        while R['rd']<R['n'] or R['iss']<R['n']: self.ring_tick()
        R['rel']=R['n']; self.R=None

    def reduce(self, tmp, pre=None, post=None):
        I=self.I
        for e in (1,2,3):
            I(f's_xor_b32 s{S_T0}, s{S_W}, {e}'); I(f's_mul_i32 s{S_T0}, s{S_T0}, {3*4096}')
            I(f's_add_u32 s{S_T0}, s{S_T0}, {LDS_X+(e-1)*4096}')
            I(f'v_add_u32 v7, s{S_T0}, v{V_L16}')
            xh,yh=e>>1,e&1
            for xl in range(2):
                for yl in range(2):
                    a=V_ACC+16*(2*xh+xl)+4*(2*yh+yl)
                    I(f'ds_write_b128 v7, {vr(a,4)} offset:{(2*xl+yl)*1024}', tag='redw')
        if pre: pre()
        self.wait(lg='all'); I('s_barrier')
        if post: post()
        I(f's_mul_i32 s{S_T0}, s{S_W}, {3*4096}'); I(f'v_add_u32 v7, s{S_T0}, v{V_L16}')
        for e in range(3):
            for sub in range(4):
                I(f'ds_read_b128 {vr(tmp+16*e+4*sub,4)}, v7 offset:{LDS_X+e*4096+sub*1024}', tag=('red',e))
        for e in range(3):
            self.wait(lg=[('red',e)])
            for sub in range(4):
                a=V_ACC+16*(sub>>1)+4*(sub&1)
                for h in range(2):
                    I(f'v_pk_add_f32 v[{a+2*h}:{a+2*h+1}], v[{a+2*h}:{a+2*h+1}], v[{tmp+16*e+4*sub+2*h}:{tmp+16*e+4*sub+2*h+1}]')

    def prologue(self):
        I=self.I
        I('s_cmp_ge_u32 s2, 256'); I('s_cbranch_scc1 L_exit')
        I('s_load_dwordx16 s[4:19], s[0:1], 0')
        if self.opt.pfearly:
            I('s_getpc_b64 s[98:99]'); self.label('L_pc0')
            I(f's_sub_u32 s98, s98, L_pc0-{KN}'); I('s_subb_u32 s99, s99, 0')
            I('v_lshlrev_b32 v9, 7, v0'); I(f'v_min_u32 v9, L_code_end-{KN}-16, v9')
            I('global_load_dword v12, v9, s[98:99]', tag='pf')
        I('s_load_dwordx2 s[20:21], s[0:1], 64')
        I('s_load_dwordx8 s[24:31], s[0:1], 80')
        I('s_load_dwordx4 s[32:35], s[0:1], 112')
        I('s_load_dwordx2 s[36:37], s[0:1], 128')
        I('v_lshrrev_b32 v7, 6, v0'); I(f'v_and_b32 v{V_LANE}, 63, v0')
        I(f'v_readfirstlane_b32 s{S_W}, v7')
        I(f'v_lshlrev_b32 v{V_L16}, 4, v{V_LANE}')
        I(f's_mov_b32 s{S_MASK}, 0xffff0000'); I(f's_mov_b32 s{S_ONES}, 0x3f803f80')
        I('s_and_b32 s22, s2, 7')
        I('s_lshr_b32 s23, s2, 3')
        I('s_and_b32 s38, s22, 1')
        I('s_lshr_b32 s39, s22, 1')
        I(f's_lshr_b32 s{S_WH}, s{S_W}, 1'); I(f's_and_b32 s{S_WL}, s{S_W}, 1')
        I(f's_mul_i32 s{S_T0}, s23, 37'); I(f's_lshr_b32 s{S_T0}, s{S_T0}, 8')
        I(f's_mul_i32 s{S_T1}, s{S_T0}, 7'); I(f's_sub_u32 s{S_G}, s23, s{S_T1}')
        I(f's_mov_b32 s{S_DT1}, s{S_G}')
        I(f's_lshl_b32 s{S_T1}, s22, 2'); I(f's_add_u32 s{S_C}, s{S_T1}, s{S_T0}')
        I(f's_min_u32 s{S_C}, s{S_C}, 31')
        I(f's_mul_i32 s{S_T1}, s39, 7'); I(f's_lshl_b32 s{S_T2}, s38, 2'); I(f's_add_u32 s87, s{S_T1}, s{S_T2}')
        I(f's_add_u32 s{S_FT}, s87, s{S_T0}'); I(f's_min_u32 s{S_FT}, s{S_FT}, 27')
        I(f's_sub_u32 s{S_T1}, 4, s38'); I(f's_cmp_lt_u32 s{S_T0}, s{S_T1}'); I(f's_cselect_b32 s{S_HASG1}, 1, 0')
        I('s_cmp_lt_u32 s23, 28'); I('s_cselect_b32 s74, 1, 0')
        self.wait(lg='all')
        self.make_srd(SRD_X, P_X, 2048*896)
        self.x8_issue(2)
        if not self.opt.pfearly:
            I('s_getpc_b64 s[98:99]'); self.label('L_pc0')
            I(f's_sub_u32 s98, s98, L_pc0-{KN}'); I('s_subb_u32 s99, s99, 0')
            I(f's_and_b32 s{S_T0}, s23, 1'); I(f's_lshl_b32 s{S_T0}, s{S_T0}, 2'); I(f's_add_u32 s{S_T0}, s{S_T0}, s{S_W}')
            I(f's_lshl_b32 s{S_T0}, s{S_T0}, 13')
            I(f'v_lshlrev_b32 v9, 7, v{V_LANE}'); I(f'v_add_u32 v9, s{S_T0}, v9')
            I(f'v_min_u32 v9, L_code_end-{KN}-16, v9')
            I('global_load_dword v12, v9, s[98:99]', tag='pf')
        self.make_srd(SRD_WS, P_WS, 0x10000000)
        I(f's_mul_i32 s{S_YB}, s{S_W}, {YW}'); I(f's_add_u32 s{S_YB}, s{S_YB}, {LDS_Y}')
        I(f's_sub_u32 s{S_E}, s23, 28'); I(f's_lshl_b32 s{S_E}, s{S_E}, 3'); I(f's_add_u32 s{S_E}, s{S_E}, s22')
        I('s_mov_b32 s86, s23'); I('s_mov_b32 s95, s22')
        self.stamp('start'); self.cstamp('c0')

    def x8_issue(self, oct):
        I=self.I
        I(f's_lshr_b32 s75, s{oct}, 2'); I('s_lshl_b32 s75, s75, 5')
        I(f's_lshl_b32 s{S_T0}, s{S_WH}, 4'); I(f's_add_u32 s75, s75, s{S_T0}')
        I(f's_and_b32 s{S_T0}, s{oct}, 3'); I(f's_lshl_b32 s{S_T0}, s{S_T0}, 2'); I(f's_add_u32 s75, s75, s{S_T0}')
        I(f's_lshl_b32 s{S_T0}, s{S_WL}, 1'); I(f's_add_u32 s75, s75, s{S_T0}')
        I(f's_mul_i32 s{S_T2}, s75, 896')
        I(f'v_and_b32 v7, 31, v{V_LANE}'); I(f'v_lshrrev_b32 v8, 5, v{V_LANE}')
        I('v_mul_u32_u24 v8, 896, v8'); I('v_lshlrev_b32 v9, 5, v7'); I('v_add_u32 v8, v8, v9')
        I('v_mov_b32 v9, 0x7ffffff0'); I('v_cmp_gt_u32 vcc, 28, v7'); I('v_cndmask_b32 v8, v9, v8, vcc')
        I(f'buffer_load_dwordx4 {vr(V_T,4)}, v8, {srd(SRD_X)}, s{S_T2} offen', tag='x8')
        I(f'buffer_load_dwordx4 {vr(V_T+4,4)}, v8, {srd(SRD_X)}, s{S_T2} offen offset:16', tag='x8')
    def touches_pre(self):
        I=self.I
        self.make_srd(SRD_1, P_BRE, 448*896); self.make_srd(SRD_2, P_BIM, 448*896); self.make_srd(SRD_W, P_W1, 2048*3584)
        I(f'v_lshrrev_b32 v7, 3, v{V_LANE}'); I(f'v_and_b32 v8, 7, v{V_LANE}'); I('v_min_u32 v8, 6, v8')
        I('v_mul_u32_u24 v7, 896, v7'); I('v_lshlrev_b32 v8, 7, v8'); I('v_add_u32 v7, v7, v8')
        I(f's_lshl_b32 s{S_T3}, s86, 2'); I(f's_add_u32 s{S_T3}, s{S_T3}, s{S_W}')
        I(f's_lshl_b32 s{S_T0}, s95, 8'); I(f's_lshl_b32 s{S_T1}, s{S_T3}, 1'); I(f's_add_u32 s{S_T0}, s{S_T0}, s{S_T1}'); I(f's_mul_i32 s{S_T0}, s{S_T0}, 896')
        self.exec_set('0xffff','0')
        I(f'buffer_load_dword v12, v7, {srd(SRD_X)}, s{S_T0} offen', tag='touch')
        I(f's_and_b32 s{S_T0}, s{S_T3}, 63'); I(f's_mul_i32 s{S_T0}, s{S_T0}, {7*896}')
        I(f's_cmp_lt_u32 s{S_T3}, 64')
        I(f's_cselect_b32 s{SRD_OUT}, s{P_BRE}, s{P_BIM}'); I(f's_cselect_b32 s{SRD_OUT+1}, s{P_BRE+1}, s{P_BIM+1}')
        I(f's_mov_b32 s{SRD_OUT+2}, {448*896}'); I(f's_mov_b32 s{SRD_OUT+3}, 0x20000')
        self.exec_set('-1','0x00ffffff')
        I(f'buffer_load_dword v12, v7, {srd(SRD_OUT)}, s{S_T0} offen', tag='touch')
        self.exec_full()
    def touch_w1(self, setup_only=False):
        I=self.I
        I(f'v_lshrrev_b32 v7, 2, v{V_LANE}'); I(f'v_and_b32 v8, 3, v{V_LANE}')
        I(f's_and_b32 s{S_T1}, s95, 1'); I(f's_sub_u32 s{S_T1}, 3, s{S_T1}'); I(f'v_min_u32 v8, s{S_T1}, v8')
        I('v_mul_u32_u24 v7, 3584, v7'); I('v_lshlrev_b32 v8, 7, v8'); I('v_add_u32 v7, v7, v8')
        I(f's_lshl_b32 s{S_T0}, s{S_W}, 9'); I(f's_lshl_b32 s{S_T1}, s86, 4'); I(f's_add_u32 s{S_T0}, s{S_T0}, s{S_T1}')
        I(f's_mul_i32 s{S_T0}, s{S_T0}, 3584'); I(f's_lshl_b32 s{S_T1}, s87, 7'); I(f's_add_u32 s{S_T0}, s{S_T0}, s{S_T1}')
        if setup_only:
            I('v_mov_b32 v238, v7'); I(f's_mov_b32 s94, s{S_T0}'); return
        I(f'buffer_load_dword v12, v7, {srd(SRD_W)}, s{S_T0} offen', tag='touch')
    def touch_w1_split(self, rest):
        I=self.I
        I(f'v_lshrrev_b32 v7, 2, v{V_LANE}'); I(f'v_and_b32 v8, 3, v{V_LANE}')
        I(f's_and_b32 s{S_T1}, s95, 1'); I(f's_sub_u32 s{S_T1}, 3, s{S_T1}'); I(f'v_min_u32 v8, s{S_T1}, v8')
        I('v_mul_u32_u24 v7, 3584, v7'); I('v_lshlrev_b32 v8, 7, v8'); I('v_add_u32 v7, v7, v8')
        I(f's_lshl_b32 s{S_T0}, s{S_W}, 9')
        if not rest:
            I(f's_lshl_b32 s{S_T1}, s86, 3'); I(f's_add_u32 s{S_T0}, s{S_T0}, s{S_T1}')
        else:
            I(f's_sub_u32 s{S_T1}, s86, 28'); I(f's_lshl_b32 s{S_T1}, s{S_T1}, 4'); I(f's_add_u32 s{S_T0}, s{S_T0}, s{S_T1}'); I(f's_add_u32 s{S_T0}, s{S_T0}, 224')
        I(f's_mul_i32 s{S_T0}, s{S_T0}, 3584'); I(f's_lshl_b32 s{S_T1}, s87, 7'); I(f's_add_u32 s{S_T0}, s{S_T0}, s{S_T1}')
        if not rest:
            self.exec_set('-1','0')
            I(f'buffer_load_dword v12, v7, {srd(SRD_W)}, s{S_T0} offen', tag='touch')
            self.exec_full()
        else:
            for t in range(5):
                I(f'buffer_load_dword v12, v7, {srd(SRD_W)}, s{S_T0} offen', tag='touch')
                if t<4: I(f's_add_u32 s{S_T0}, s{S_T0}, {64*3584}')
    def touch_w1_wg(self):
        I=self.I
        I(f'v_lshrrev_b32 v7, 2, v{V_LANE}'); I(f'v_and_b32 v8, 3, v{V_LANE}')
        I(f's_and_b32 s{S_T1}, s95, 1'); I(f's_sub_u32 s{S_T1}, 3, s{S_T1}'); I(f'v_min_u32 v8, s{S_T1}, v8')
        I('v_mul_u32_u24 v7, 3584, v7'); I('v_lshlrev_b32 v8, 7, v8'); I('v_add_u32 v7, v7, v8')
        I(f's_lshl_b32 s{S_T0}, s86, 4'); I(f's_mul_i32 s{S_T0}, s{S_T0}, 3584'); I(f's_lshl_b32 s{S_T1}, s87, 7'); I(f's_add_u32 s{S_T0}, s{S_T0}, s{S_T1}')
        for q in range(4):
            I(f'buffer_load_dword v12, v7, {srd(SRD_W)}, s{S_T0} offen', tag='touch')
            if q<3: I(f's_add_u32 s{S_T0}, s{S_T0}, {512*3584}')
    def q_w3(self):
        I=self.I
        def xpair(p):
            def f():
                L=self.newlabel('xw3')
                I(f's_add_u32 s100, s{S_W}, {3*p}'); I('s_cmp_ge_u32 s100, 8'); I(f's_cbranch_scc1 {L}')
                snap=self.snapshot()
                I('s_lshl_b32 s101, s100, 4'); I(f'v_xor_b32 v238, s101, v{V_L16}')
                I('s_lshr_b32 s101, s100, 1'); I('s_lshl_b32 s101, s101, 4'); I('s_and_b32 s100, s100, 1'); I('s_lshl_b32 s100, s100, 1')
                I('s_add_u32 s100, s100, s101'); I('s_add_u32 s100, s100, 12'); I('s_mul_i32 s100, s100, 896')
                I(f's_lshl_b32 s101, s{S_C}, 6'); I('s_mul_i32 s101, s101, 896'); I('s_add_u32 s101, s101, s100')
                I('s_mov_b32 exec_hi, 0x00ffffff')
                I(f's_add_u32 m0, s100, {LDS_X}'); I('s_nop 0')
                I(f'buffer_load_dwordx4 v238, {srd(SRD_X)}, s101 offen lds', tag='x64')
                I(f's_add_u32 m0, s100, {LDS_X+896}'); I('s_add_u32 s101, s101, 896')
                I(f'buffer_load_dwordx4 v238, {srd(SRD_X)}, s101 offen lds', tag='x64')
                I('s_mov_b32 exec_hi, -1')
                self.label(L); self.merge(snap); self.vm['x64']=0
            return f
        def bblock(p):
            def f():
                L=self.newlabel('bw3'); Li=self.newlabel('bw3i')
                I(f's_add_u32 s100, s{S_W}, {3*p}'); I('s_cmp_ge_u32 s100, 8'); I(f's_cbranch_scc1 {L}')
                snap=self.snapshot()
                I('s_and_b32 s101, s100, 3'); I('s_sub_u32 s91, 0, s101'); I('s_and_b32 s91, s91, 3'); I('s_lshl_b32 s91, s91, 4')
                I(f'v_xor_b32 v238, s91, v{V_L16}')
                I('s_bitcmp1_b32 s100, 2')
                I(f's_cselect_b32 s{SRD_OUT}, s{P_BIM}, s{P_BRE}'); I(f's_cselect_b32 s{SRD_OUT+1}, s{P_BIM+1}, s{P_BRE+1}')
                I('s_cselect_b32 s100, 13312, 0')
                I('s_mul_i32 s91, s101, 3328'); I('s_add_u32 s100, s100, s91'); I(f's_add_u32 s100, s100, {LDS_Y+3*YW}')
                I('s_mul_i32 s101, s101, 3584')
                I(f's_lshl_b32 s91, s{S_G}, 6'); I('s_add_u32 s91, s91, 48'); I('s_mul_i32 s91, s91, 896'); I('s_add_u32 s101, s101, s91')
                I('s_mov_b32 exec_hi, 0x000fffff')
                for r in range(4):
                    I(f's_add_u32 m0, s100, {r*832}')
                    if r: I('s_add_u32 s101, s101, 896')
                    else: I('s_nop 0')
                    I(f'buffer_load_dwordx4 v238, {srd(SRD_OUT)}, s101 offen lds', tag='bdma')
                I('s_mov_b32 exec_hi, -1')
                self.label(L); self.merge(snap); self.vm['bdma']=0
            return f
        return [xpair(p) for p in range(3)], [bblock(p) for p in range(3)]
    def dma_setup(self):
        I=self.I
        for n,h in enumerate((0,3,2,1)): I(f'v_xor_b32 v{224+n}, {h<<4}, v{V_L16}')
        for g in range(8): I(f'v_xor_b32 v{228+g}, {g<<4}, v{V_L16}')
        I(f's_lshl_b32 s{S_T0}, s{S_G}, 6'); I(f's_lshl_b32 s{S_T1}, s{S_W}, 4'); I(f's_add_u32 s88, s{S_T0}, s{S_T1}')
        I('s_mul_i32 s89, s88, 896')
        I(f's_lshl_b32 s{S_T0}, s{S_C}, 6'); I(f's_lshl_b32 s{S_T1}, s{S_W}, 2'); I(f's_add_u32 s{S_T0}, s{S_T0}, s{S_T1}')
        I(f's_mul_i32 s92, s{S_T0}, 896')
        I(f's_mul_i32 s93, s{S_W}, 3584')
        I(f'v_and_b32 v7, 15, v{V_LANE}'); I('v_mul_u32_u24 v236, 896, v7'); I(f'v_lshrrev_b32 v9, 4, v{V_LANE}'); I('v_lshlrev_b32 v9, 4, v9')
        I('v_add_u32 v236, v236, v9')
        if self.opt.b13dma:
            I(f'v_lshrrev_b32 v9, 2, v{V_LANE}'); I('v_mul_u32_u24 v236, 896, v9'); I(f'v_and_b32 v9, 3, v{V_LANE}'); I('v_lshlrev_b32 v9, 4, v9')
            I('v_add_u32 v236, v236, v9'); I('v_add_u32 v236, 832, v236')
        I('v_add_u32 v237, s88, v7'); I('v_lshlrev_b32 v237, 1, v237')
    def q_b(self):
        I=self.I
        def row(im,n):
            def f():
                self.row_exec('0x000fffff')
                I(f's_add_u32 m0, s{S_YB}, {im*13312+n*832}')
                I(f's_add_u32 s91, s89, {n*896}')
                I(f'buffer_load_dwordx4 v{224+(n>>2)}, {srd(SRD_1 if im==0 else SRD_2)}, s91 offen lds', tag='bdma'); self.nb+=1
                self.row_exec_done()
            return f
        for im in range(2):
            for n in range(16): self.q.append(row(im,n))
        def b13(srdn,dst):
            def f():
                self.row_exec('-1')
                I(f'buffer_load_dwordx4 {vr(dst,4)}, v236, {srd(srdn)}, s89 offen offset:832', tag='b13'); self.nb+=1
            return f
        if self.opt.w1touch=='W':
            self.b13_loads=lambda: (b13(SRD_1,V_BF+52)(), b13(SRD_2,V_BF+56+52)())
        elif not self.opt.b13dma:
            self.q.append(b13(SRD_1,V_BF+52)); self.q.append(b13(SRD_2,V_BF+56+52))
        def lam():
            I(f'global_load_ushort v{V_IN}, v237, {sp(P_LRE)}', tag='lam')
            I(f'global_load_ushort v{V_IN+1}, v237, {sp(P_LIM)}', tag='lam')
            I(f'global_load_ushort v{V_IN+2}, v237, {sp(P_LDT)}', tag='lam')
        self.q.insert(0,lam)
    def q_x(self, alist):
        I=self.I
        def row(a,b):
            def f():
                g=2*a+(b>>1); d=(16*a+b)*896
                self.row_exec('0x00ffffff')
                I(f's_add_u32 m0, s93, {LDS_X+d}')
                I(f's_add_u32 s91, s92, {d}')
                I(f'buffer_load_dwordx4 v{228+g}, {srd(SRD_X)}, s91 offen lds', tag='x64'); self.nx+=1
                self.row_exec_done()
            return f
        for a in alist:
            for b in range(4): self.q.append(row(a,b))
    def b_read(self):
        I=self.I
        I(f'v_and_b32 v7, 15, v{V_LANE}'); I(f'v_lshrrev_b32 v8, 4, v{V_LANE}'); I('v_lshrrev_b32 v9, 2, v7')
        I('v_sub_u32 v9, 0, v9'); I('v_and_b32 v9, 3, v9'); I('v_xor_b32 v8, v8, v9')
        I('v_lshlrev_b32 v8, 4, v8'); I('v_mul_u32_u24 v7, 832, v7'); I('v_add_u32 v7, v7, v8'); I(f'v_add_u32 v7, s{S_YB}, v7')
        if self.opt.w1touch!='W': self.wait(vm=['bdma'])
        for im in range(2):
            for j in range(13):
                I(f'ds_read_b128 {vr(V_BF+56*im+4*j,4)}, v7 offset:{im*13312+j*64}', tag='brd')
    def touch_pf(self, which):
        I=self.I
        if which==1: pitch,nrow,nt,srdn=3584,512,8,SRD_W
        else:
            pitch,nrow,nt,srdn=4096,448,7,SRD_OUT
            self.make_srd(SRD_OUT, P_W2, 1792*4096)
        I(f'v_lshrrev_b32 v7, 2, v{V_LANE}'); I(f'v_and_b32 v8, 3, v{V_LANE}')
        if which==1:
            I(f's_and_b32 s{S_T1}, s95, 1'); I(f's_sub_u32 s{S_T1}, 3, s{S_T1}'); I(f'v_min_u32 v8, s{S_T1}, v8')
        I(f'v_mul_u32_u24 v7, {pitch}, v7'); I('v_lshlrev_b32 v8, 7, v8'); I('v_add_u32 v7, v7, v8')
        I(f's_mul_i32 s{S_T0}, s{S_W}, {nrow}'); I(f's_sub_u32 s{S_T1}, s86, 28'); I(f's_lshl_b32 s{S_T1}, s{S_T1}, 4'); I(f's_add_u32 s{S_T0}, s{S_T0}, s{S_T1}')
        I(f's_mul_i32 s{S_T0}, s{S_T0}, {pitch}')
        if which==1: I(f's_lshl_b32 s{S_T1}, s87, 7')
        else: I(f's_lshl_b32 s{S_T1}, s95, 9')
        I(f's_add_u32 s{S_T0}, s{S_T0}, s{S_T1}')
        for t in range(nt):
            I(f'buffer_load_dword v12, v7, {srd(srdn)}, s{S_T0} offen', tag='touch2')
            if t<nt-1: I(f's_add_u32 s{S_T0}, s{S_T0}, {64*pitch}')
    def ln8(self, oct=2, clears=True):
        I=self.I
        D=list(range(V_T,V_T+8)); SUM,SSQ,S2,Q2=24,25,26,27; R,C=28,30; TM=[32,34,36,38]
        self.wait(vm=['x8'])
        def reduce32():
            for rot in (8,4,2,1):
                I(f'v_add_f32_dpp v{SUM}, v{SUM}, v{SUM} row_ror:{rot} row_mask:0xf bank_mask:0xf')
                I(f'v_add_f32_dpp v{SSQ}, v{SSQ}, v{SSQ} row_ror:{rot} row_mask:0xf bank_mask:0xf')
            I(f'v_mov_b32 v{S2}, v{SUM}'); I(f'v_mov_b32 v{Q2}, v{SSQ}')
            I(f'v_permlane16_swap_b32 v{SUM}, v{S2}'); I(f'v_permlane16_swap_b32 v{SSQ}, v{Q2}')
            I(f'v_add_f32 v{SUM}, v{SUM}, v{S2}'); I(f'v_add_f32 v{SSQ}, v{SSQ}, v{Q2}')
        self.dot_sums(D,[SUM,SSQ,S2,Q2]); reduce32()
        self.ln_stats(SUM,SSQ,R,C,None)
        if clears and self.opt.w1touch=='W' and not self.opt.notouch3:
            Lt=self.newlabel('notouch')
            I(f's_cmp_lg_u32 s{S_W}, 3'); I(f's_cbranch_scc1 {Lt}')
            snap=self.snapshot()
            self.touch_w1_wg()
            self.label(Lt); self.merge(snap)
        I(f'v_and_b32 v7, 31, v{V_LANE}'); I('v_cmp_gt_u32 vcc, 28, v7')
        I(f'v_cndmask_b32 v{R}, 0, v{R}, vcc'); I(f'v_cndmask_b32 v{C}, 0, v{C}, vcc')
        self.normalize(D,R,C,TM)
        self.dot_sums(D,[SUM,SSQ,S2,Q2]); reduce32()
        self.ln_stats(SUM,SSQ,R,C,None)
        self.normalize(D,R,C,TM)
        self.auto=0
        I(f'v_lshrrev_b32 v8, 5, v{V_LANE}'); I(f's_lshl_b32 s{S_T0}, s{S_W}, 1'); I(f'v_add_u32 v8, s{S_T0}, v8')
        I('v_mul_u32_u24 v8, 960, v8'); I('v_lshlrev_b32 v9, 5, v7'); I('v_add_u32 v8, v8, v9'); I(f'v_add_u32 v8, {LDS_LN8}, v8')
        self.exec_set('0x0fffffff','0x0fffffff')
        I(f'ds_write_b128 v8, {vr(V_T,4)} offset:0'); I(f'ds_write_b128 v8, {vr(V_T+4,4)} offset:16')
        self.exec_full()
        self.wait(lg='all'); I('s_barrier')
        I(f'v_and_b32 v7, 15, v{V_LANE}'); I('v_lshrrev_b32 v8, 2, v7'); I('v_mul_u32_u24 v8, 960, v8')
        I(f'v_lshrrev_b32 v9, 4, v{V_LANE}'); I('v_lshlrev_b32 v10, 5, v9'); I('v_add_u32 v8, v8, v10')
        I(f'v_and_b32 v10, 3, v{V_LANE}'); I('v_lshlrev_b32 v10, 3, v10'); I('v_add_u32 v8, v8, v10')
        I(f's_lshl_b32 s{S_T0}, s{S_W}, 7'); I(f's_add_u32 s{S_T0}, s{S_T0}, {LDS_LN8}'); I(f'v_add_u32 v8, s{S_T0}, v8')
        I('v_lshlrev_b32 v9, 10, v9'); I('v_lshlrev_b32 v7, 4, v7'); I('v_add_u32 v9, v9, v7')
        I(f's_lshr_b32 s{S_T0}, s{oct}, 2'); I(f's_lshl_b32 s{S_T0}, s{S_T0}, 12')
        I(f's_and_b32 s{S_T1}, s{oct}, 3'); I(f's_lshl_b32 s{S_T1}, s{S_T1}, 8'); I(f's_add_u32 s{S_T0}, s{S_T0}, s{S_T1}')
        I(f's_lshl_b32 s{S_T1}, s{S_W}, 18'); I(f's_add_u32 s{S_T0}, s{S_T0}, s{S_T1}')
        if self.opt.w1touch=='W':
            Lno=self.newlabel('ln8none'); L6=self.newlabel('ln8no6')
            I(f's_cmp_eq_u32 s{S_W}, 3'); I(f's_cbranch_scc1 {Lno}')
            snap=self.snapshot()
            for i in range(2):
                I(f'ds_read_b64_tr_b16 v[{16+4*i}:{17+4*i}], v8 offset:{384*i}', tag='t0')
                I(f'ds_read_b64_tr_b16 v[{18+4*i}:{19+4*i}], v8 offset:{384*i+3840}', tag='t0')
            I(f's_add_u32 s{S_T1}, s{S_T0}, {3*262144}')
            self.wait(lg='all')
            I(f'buffer_store_dwordx4 v[16:19], v9, {srd(SRD_WS)}, s{S_T0} offen sc1', tag='st0')
            I(f'buffer_store_dwordx4 v[20:23], v9, {srd(SRD_WS)}, s{S_T1} offen sc1', tag='st0')
            I(f's_cmp_lg_u32 s{S_W}, 0'); I(f's_cbranch_scc1 {L6}')
            I(f'ds_read_b64_tr_b16 v[24:25], v8 offset:768', tag='t0')
            I(f'ds_read_b64_tr_b16 v[26:27], v8 offset:{768+3840}', tag='t0')
            I(f's_add_u32 s{S_T1}, s{S_T0}, {6*262144}')
            self.wait(lg='all')
            I(f'buffer_store_dwordx4 v[24:27], v9, {srd(SRD_WS)}, s{S_T1} offen sc1', tag='st0')
            self.label(L6)
            self.label(Lno); self.merge(snap); self.vm['st0']=0
        else:
            I(f'ds_read_b64_tr_b16 v[16:17], v8 offset:0', tag='t0')
            I(f'ds_read_b64_tr_b16 v[18:19], v8 offset:3840', tag='t0')
            Lskip=self.newlabel('ln8skip')
            I(f's_cmp_eq_u32 s{S_W}, 3'); I(f's_cbranch_scc1 {Lskip}')
            snap=self.snapshot()
            I(f'ds_read_b64_tr_b16 v[20:21], v8 offset:512', tag='t1')
            I(f'ds_read_b64_tr_b16 v[22:23], v8 offset:{512+3840}', tag='t1')
            I(f's_add_u32 s{S_T1}, s{S_T0}, {4*262144}')
            self.wait(lg='all')
            I(f'buffer_store_dwordx4 v[20:23], v9, {srd(SRD_WS)}, s{S_T1} offen sc1', tag='st0')
            self.label(Lskip); self.merge(snap)
            self.wait(lg='all')
            I(f'buffer_store_dwordx4 v[16:19], v9, {srd(SRD_WS)}, s{S_T0} offen sc1', tag='st0')
        if not clears:
            I('s_barrier'); return
        Ln=self.newlabel('noclr')
        I(f's_cmp_lg_u32 s{S_W}, {1 if self.opt.w1touch=="W" else 3}'); I(f's_cbranch_scc1 {Ln}')
        snap=self.snapshot()
        I('v_mov_b32 v8, 0')
        I('v_mov_b32 v10, -1'); I('v_mov_b32 v11, -1'); I(f'v_lshlrev_b32 v9, 3, v{V_LANE}')
        I(f's_lshl_b32 s{S_T0}, s{S_G}, 5'); I(f's_add_u32 s{S_T0}, s{S_T0}, s{S_C}'); I(f's_lshl_b32 s{S_T0}, s{S_T0}, 9')
        I(f's_add_u32 s{S_T0}, s{S_T0}, {WS_E}')
        I(f'buffer_store_dwordx2 v[10:11], v9, {srd(SRD_WS)}, s{S_T0} offen sc1', tag='st0')
        I(f's_mul_i32 s{S_T0}, s{S_C}, 7'); I(f's_add_u32 s{S_T0}, s{S_T0}, s{S_G}'); I(f's_lshl_b32 s{S_T0}, s{S_T0}, 6')
        I(f's_add_u32 s{S_T0}, s{S_T0}, {WS_FH}')
        I('v_mov_b32 v10, 0')
        self.exec_set(1,0)
        I(f'buffer_store_dword v10, v8, {srd(SRD_WS)}, s{S_T0} offen sc1', tag='st0')
        Lg=self.newlabel('nog1clr'); Lc=self.newlabel('nocclr')
        I(f's_cmp_eq_u32 s{S_HASG1}, 0'); I(f's_cbranch_scc1 {Lg}')
        I(f's_mul_i32 s{S_T0}, s{S_DT1}, 28'); I(f's_add_u32 s{S_T0}, s{S_T0}, s{S_FT}'); I(f's_lshl_b32 s{S_T0}, s{S_T0}, 6')
        I(f's_add_u32 s{S_T0}, s{S_T0}, {WS_FG}')
        I(f'buffer_store_dword v10, v8, {srd(SRD_WS)}, s{S_T0} offen sc1', tag='st0')
        self.label(Lg)
        I('s_cmp_lg_u32 s95, 0'); I(f's_cbranch_scc1 {Lc}')
        I(f's_lshl_b32 s{S_T0}, s86, 6'); I(f's_add_u32 s{S_T0}, s{S_T0}, {WS_FC}')
        I(f'buffer_store_dword v10, v8, {srd(SRD_WS)}, s{S_T0} offen sc1', tag='st0')
        self.label(Lc)
        self.exec_full()
        self.label(Ln); self.merge(snap); self.vm['st0']=0
        I('s_barrier')

    def ln8_extra(self):
        I=self.I
        L=self.newlabel('noextra'); Lp=self.newlabel('extra')
        I(f's_cmp_lg_u32 s{S_HASG1}, 0'); I(f's_cbranch_scc1 {L}')
        snap=self.snapshot()
        I('s_lshr_b32 s3, s95, 1'); I('s_mul_i32 s3, s3, 7'); I('s_add_u32 s3, s3, s86'); I('s_add_u32 s3, s3, 203')
        self.label(Lp)
        self.x8_issue(3)
        I('s_waitcnt vmcnt(0)'); self.vm={}; self.vm['x8']=0
        self.ln8(oct=3, clears=False)
        I('s_add_u32 s3, s3, 28'); I('s_cmp_lt_u32 s3, 256'); I(f's_cbranch_scc1 {Lp}')
        I('s_waitcnt vmcnt(0)')
        self.label(L); self.restore(snap); self.vm['st0']=min(self.vm.get('st0',0),0)

    def arrive0(self):
        I=self.I
        self.wait(vm=['st0']); I('s_barrier')
        L=self.newlabel('arr')
        I(f's_cmp_lg_u32 s{S_W}, 0'); I(f's_cbranch_scc1 {L}')
        snap=self.snapshot()
        I('s_and_b32 s3, s2, 3'); I('s_lshl_b32 s3, s3, 6'); I('v_mov_b32 v8, s3'); I('v_mov_b32 v9, 1')
        self.exec_set(1,0)
        I(f'global_atomic_add v8, v9, {sp(P_DBG)} sc1')
        self.exec_full()
        self.label(L); self.merge(snap)

    def w1_setup(self):
        I=self.I
        self.ring_setup(3584, S_WH)
        I(f's_mul_i32 s{S_WBEG}, s{S_W}, {512*3584}'); I(f's_lshl_b32 s{S_T0}, s{S_FT}, 7'); I(f's_add_u32 s{S_WBEG}, s{S_WBEG}, s{S_T0}')
        I(f's_mov_b32 s{S_WO}, s{S_WBEG}')

    def lam_consts(self):
        I=self.I
        LRE,LIM,LDT=V_IN,V_IN+1,V_IN+2
        t=list(range(16,40))
        self.wait(vm=['lam'])
        for r in (LRE,LIM,LDT): I(f'v_lshlrev_b32 v{r}, 16, v{r}')
        I(f'v_mul_f32 v{LDT}, 0x3fb8aa3b, v{LDT}'); I(f'v_exp_f32 v{LDT}, v{LDT}')
        self.rnd_bf16(LDT)
        I(f'v_mul_f32 v16, v{LDT}, v{LRE}'); I(f'v_mul_f32 v17, v{LDT}, v{LIM}')
        I('v_mul_f32 v16, 0x3fb8aa3b, v16'); I('v_mul_f32 v17, 0.15915494, v17')
        I('v_exp_f32 v16, v16'); I('v_fract_f32 v17, v17')
        I('v_cos_f32 v18, v17'); I('v_sin_f32 v19, v17')
        I(f'v_mul_f32 v{V_LR}, v16, v18'); I(f'v_mul_f32 v{V_LI}, v16, v19')
        I(f'v_add_f32 v16, -1.0, v{V_LR}')
        I(f'v_mul_f32 v17, v{LRE}, v{LRE}'); I(f'v_fma_f32 v17, v{LIM}, v{LIM}, v17'); I('v_rcp_f32 v17, v17')
        I(f'v_mul_f32 v18, v16, v{LRE}'); I(f'v_fma_f32 v18, v{V_LI}, v{LIM}, v18')
        I(f'v_mul_f32 v19, v16, v{LIM}'); I(f'v_fma_f32 v19, v{V_LI}, v{LRE}, -v19')
        I('v_add_f32 v17, v17, v17')
        I(f'v_mul_f32 v{V_K1}, v18, v17'); I(f'v_mul_f32 v{V_K2}, v19, v17'); I(f'v_sub_f32 v{V_K2}, 0, v{V_K2}')
        self.csq(16,17,V_LR,V_LI,30); self.csq(18,19,16,17,30); self.csq(16,17,18,19,30); self.csq(20,21,16,17,30)
        self.csq(22,23,20,21,30)
        self.cmul(24,25,22,23,20,21,30,31)
        self.csq(V_L64R,V_L64I,22,23,30)
        self.csq(16,17,V_L64R,V_L64I,30); self.csq(18,19,16,17,30); self.csq(V_L512R,V_L512I,18,19,30)
        I(f'v_mov_b32 v{V_PR}, 1.0'); I(f'v_mov_b32 v{V_PI}, 0')
        for (lo,hi,r) in (('0xffff0000','-1',20),('0','-1',22),('0','0xffff0000',24)):
            self.exec_set(lo,hi); I(f'v_mov_b32 v{V_PR}, v{r}'); I(f'v_mov_b32 v{V_PI}, v{r+1}')
        self.exec_full()
        I(f'v_mov_b32 v{V_IN}, v20'); I(f'v_mov_b32 v{V_IN+1}, v21')

    def x_addr(self):
        I=self.I
        I(f'v_and_b32 v7, 15, v{V_LANE}'); I('v_lshrrev_b32 v8, 2, v7'); I('v_lshlrev_b32 v8, 4, v8')
        I('v_and_b32 v9, 3, v7'); I('v_add_u32 v8, v8, v9'); I('v_mul_u32_u24 v8, 896, v8')
        I(f'v_lshrrev_b32 v9, 4, v{V_LANE}'); I('v_lshrrev_b32 v7, 1, v7'); I('v_xor_b32 v9, v9, v7'); I('v_lshlrev_b32 v9, 4, v9')
        I('v_add_u32 v14, v8, v9'); I('v_xor_b32 v15, 64, v14')
    def ln64(self):
        I=self.I
        D=list(range(V_X64,V_X64+56)); SUM,SSQ,S2,Q2=24,25,26,27; R,C=28,30; TM=[32,34,36,38]
        I(f's_mul_i32 s{S_T0}, s{S_W}, 3584'); I(f'v_add_u32 v22, s{S_T0}, v14'); I(f'v_add_u32 v23, s{S_T0}, v15')
        self.allow_bread=True
        while self.nx<16: self.tick()
        if self.opt.w1touch!='W': self.wait(vm=['x64'])
        for j in range(14):
            I(f'ds_read_b128 {vr(V_X64+4*j,4)}, v{22+(j&1)} offset:{LDS_X+(j>>1)*128}', tag=('xr',j))
        accs=[SUM,SSQ,S2,Q2]
        for n,d in enumerate(D):
            if n%4==0: self.wait(lg=[('xr',n//4)])
            sa,qa = accs[2*(n&1)], accs[2*(n&1)+1]
            if n<2:
                I(f'v_dot2_f32_bf16 v{sa}, v{d}, s{S_ONES}, 0'); I(f'v_dot2_f32_bf16 v{qa}, v{d}, v{d}, 0')
            else:
                I(f'v_dot2_f32_bf16 v{sa}, v{d}, s{S_ONES}, v{sa}'); I(f'v_dot2_f32_bf16 v{qa}, v{d}, v{d}, v{qa}')
        I(f'v_add_f32 v{SUM}, v{SUM}, v{S2}'); I(f'v_add_f32 v{SSQ}, v{SSQ}, v{Q2}')
        for sw in ('16','32'):
            I(f'v_mov_b32 v{S2}, v{SUM}'); I(f'v_mov_b32 v{Q2}, v{SSQ}')
            I(f'v_permlane{sw}_swap_b32 v{SUM}, v{S2}'); I(f'v_permlane{sw}_swap_b32 v{SSQ}, v{Q2}')
            I(f'v_add_f32 v{SUM}, v{SUM}, v{S2}'); I(f'v_add_f32 v{SSQ}, v{SSQ}, v{Q2}')
        self.stamp('dots',fine=True)
        self.ln_stats(SUM,SSQ,R,C,None)
        self.allow_bread=True
        def h(n):
            I(f'ds_write_b128 v{22+(n&1)}, {vr(V_X64+4*n,4)} offset:{LDS_X+(n>>1)*128}', tag='xw')
        self.normalize(D,R,C,TM,hook=h)

    def row_stats(self):
        I=self.I
        D=list(range(V_X64,V_X64+56)); SUM,SSQ,S2,Q2=24,25,26,27; R,C=28,30
        I(f's_mul_i32 s{S_T0}, s{S_W}, 3584'); I(f'v_add_u32 v22, s{S_T0}, v14'); I(f'v_add_u32 v23, s{S_T0}, v15')
        for j in range(14):
            I(f'ds_read_b128 {vr(V_X64+4*j,4)}, v{22+(j&1)} offset:{LDS_X+(j>>1)*128}', tag=('xr',j))
        accs=[SUM,SSQ,S2,Q2]
        for n,d in enumerate(D):
            if n%4==0: self.wait(lg=[('xr',n//4)])
            sa,qa = accs[2*(n&1)], accs[2*(n&1)+1]
            if n<2:
                I(f'v_dot2_f32_bf16 v{sa}, v{d}, s{S_ONES}, 0'); I(f'v_dot2_f32_bf16 v{qa}, v{d}, v{d}, 0')
            else:
                I(f'v_dot2_f32_bf16 v{sa}, v{d}, s{S_ONES}, v{sa}'); I(f'v_dot2_f32_bf16 v{qa}, v{d}, v{d}, v{qa}')
        I(f'v_add_f32 v{SUM}, v{SUM}, v{S2}'); I(f'v_add_f32 v{SSQ}, v{SSQ}, v{Q2}')
        for sw in ('16','32'):
            I(f'v_mov_b32 v{S2}, v{SUM}'); I(f'v_mov_b32 v{Q2}, v{SSQ}')
            I(f'v_permlane{sw}_swap_b32 v{SUM}, v{S2}'); I(f'v_permlane{sw}_swap_b32 v{SSQ}, v{Q2}')
            I(f'v_add_f32 v{SUM}, v{SUM}, v{S2}'); I(f'v_add_f32 v{SSQ}, v{SSQ}, v{Q2}')
        self.ln_stats(SUM,SSQ,R,C,None)
        I(f'v_and_b32 v8, 15, v{V_LANE}'); I('v_lshlrev_b32 v8, 2, v8'); I(f's_add_u32 s{S_T0}, s{S_YB}, 24576'); I(f'v_add_u32 v8, s{S_T0}, v8')
        self.exec_set('0xffff','0')
        I(f'ds_write_b32 v8, v{SUM}', tag='stw'); I(f'ds_write_b32 v8, v{R} offset:64', tag='stw')
        self.exec_full()
    def stat_reads(self):
        I=self.I
        self.wait(lg=['stw']); I('s_barrier')
        I(f'v_lshrrev_b32 v8, 4, v{V_LANE}'); I('v_lshlrev_b32 v8, 4, v8'); I(f'v_add_u32 v8, {LDS_Y+24576}, v8'); I(f'v_add_u32 v9, {2*YW}, v8')
        for i in range(4):
            I(f'ds_read_b128 {vr(16+4*i,4)}, v{8+(i>>1)} offset:{(i&1)*YW}', tag='stat')
            I(f'ds_read_b128 {vr(88+4*i,4)}, v{8+(i>>1)} offset:{(i&1)*YW+64}', tag='stat')
    def bu_gemm(self):
        I=self.I
        BUF=[V_X64, V_X64+16]
        for r in range(4): I(f'v_mov_b32 v{36+r}, s{S_ONES}')
        def rd(j):
            for i in range(4):
                I(f'ds_read_b128 {vr(BUF[j%2]+4*i,4)}, v{14+(j&1)} offset:{LDS_X+i*3584+(j>>1)*128}', tag=('xa',j))
        rd(0); rd(1)
        bup=self.auto
        for j in range(14):
            self.auto = bup if j>=self.opt.bupj else 0
            self.wait(lg=[('xa',j)])
            for im in range(2):
                d=104+4*im
                I(f'v_mfma_f32_16x16x32_bf16 {vr(d,4)}, v[36:39], {vr(V_BF+56*im+4*j,4)}, {vr(d,4) if j else 0}')
            for i in range(4):
                for im in range(2):
                    d=V_RAW+16*im+4*i
                    cin = vr(d,4) if j else '0'
                    I(f'v_mfma_f32_16x16x32_bf16 {vr(d,4)}, {vr(BUF[j%2]+4*i,4)}, {vr(V_BF+56*im+4*j,4)}, {cin}')
            if j+2<14: rd(j+2)
            if j==12:
                sv=self.auto; self.auto=0
                self.stat_reads(); self.auto=sv
    def stat_loads(self):
        I=self.I
        I(f'v_lshrrev_b32 v8, 4, v{V_LANE}'); I('v_lshlrev_b32 v8, 6, v8')
        I(f's_lshl_b32 s{S_T0}, s{S_C}, 8'); I(f's_add_u32 s{S_T0}, s{S_T0}, {WS_STAT}'); I(f's_add_u32 s{S_T1}, s{S_T0}, 8192')
        for n in range(4):
            I(f'buffer_load_dwordx4 {vr(16+4*n,4)}, v8, {srd(SRD_WS)}, s{S_T0} offen offset:{16*n} sc1', tag='stat')
            I(f'buffer_load_dwordx4 {vr(88+4*n,4)}, v8, {srd(SRD_WS)}, s{S_T1} offen offset:{16*n} sc1', tag='stat')
    def x_resid_reads(self):
        I=self.I
        I(f'v_and_b32 v8, 15, v{V_LANE}'); I(f'v_lshrrev_b32 v9, 4, v{V_LANE}')
        I('v_lshrrev_b32 v10, 1, v9'); I('v_bfe_u32 v11, v8, 1, 1'); I('v_xor_b32 v10, v10, v11')
        I(f's_xor_b32 s{S_T0}, s{S_WH}, s{S_WL}'); I(f's_lshl_b32 s{S_T0}, s{S_T0}, 2'); I(f'v_xor_b32 v10, s{S_T0}, v10')
        I('v_lshlrev_b32 v10, 4, v10'); I('v_and_b32 v9, 1, v9'); I('v_lshlrev_b32 v9, 3, v9'); I('v_add_u32 v10, v10, v9')
        I(f's_lshl_b32 s{S_T0}, s{S_WL}, 5'); I(f'v_add_u32 v8, s{S_T0}, v8'); I('v_mul_u32_u24 v8, 896, v8'); I('v_add_u32 v8, v8, v10')
        I(f's_lshl_b32 s{S_T0}, s{S_G}, 7'); I(f'v_add_u32 v8, s{S_T0}, v8'); I('v_xor_b32 v9, 32, v8')
        for y in range(2):
            for x in range(2):
                I(f'ds_read_b64 {vr(V_XR+4*y+2*x,2)}, v{8+(x^y)} offset:{LDS_X+y*14336}', tag='xres')
    def ln_fix(self):
        I=self.I
        self.wait(lg=['stat'])
        for im in range(2):
            sb=104+4*im
            for t in range(0,16,2):
                r=V_RAW+16*im+t
                I(f'v_pk_fma_f32 v[{r}:{r+1}], v[{16+t}:{17+t}], v[{sb}:{sb+1}], v[{r}:{r+1}] neg_lo:[1,0,0] neg_hi:[1,0,0]')
            for t in range(0,16,2):
                r=V_RAW+16*im+t
                I(f'v_pk_mul_f32 v[{r}:{r+1}], v[{r}:{r+1}], v[{88+t}:{89+t}]')

    def scan1(self):
        I=self.I
        ER,EI,T0,T1=16,17,18,19
        L16R,L16I=V_IN,V_IN+1
        I(f'v_mov_b32 v{ER}, v{V_RAW}'); I(f'v_mov_b32 v{EI}, v{V_RAW+16}')
        for t in range(1,16):
            I(f'v_fma_f32 v{T0}, v{V_LR}, v{ER}, v{V_RAW+t}')
            I(f'v_fma_f32 v{T1}, v{V_LR}, v{EI}, v{V_RAW+16+t}')
            I(f'v_fma_f32 v{T0}, -v{V_LI}, v{EI}, v{T0}')
            I(f'v_fma_f32 v{EI}, v{V_LI}, v{ER}, v{T1}')
            ER,T0=T0,ER
        GR=[20,21,22,23]; GI=[24,25,26,27]
        self.allgather_q(ER,*GR); self.allgather_q(EI,*GI)
        for q in range(1,4):
            self.cfma(GR[q],GI[q],L16R,L16I,GR[q-1],GI[q-1],GR[q],GI[q],28,29)
        I(f'v_mov_b32 v{V_SR}, 0'); I(f'v_mov_b32 v{V_SI}, 0')
        for n,(lo,hi) in enumerate((('0xffff0000','-1'),('0','-1'),('0','0xffff0000'))):
            self.exec_set(lo,hi); I(f'v_mov_b32 v{V_SR}, v{GR[n]}'); I(f'v_mov_b32 v{V_SI}, v{GI[n]}')
        self.exec_full()
        I(f'v_mov_b32 v10, v{GR[3]}'); I(f'v_mov_b32 v11, v{GI[3]}')
        I(f'v_lshlrev_b32 v8, 3, v{V_LANE}')
        I(f's_lshl_b32 s{S_T0}, s{S_G}, 5'); I(f's_add_u32 s{S_T0}, s{S_T0}, s{S_C}'); I(f's_lshl_b32 s{S_T0}, s{S_T0}, 9')
        I(f's_lshl_b32 s{S_T1}, s{S_W}, 7'); I(f's_add_u32 s{S_T0}, s{S_T0}, s{S_T1}'); I(f's_add_u32 s{S_T0}, s{S_T0}, {WS_E}')
        self.exec_set('0xffff',0)
        I(f'buffer_store_dwordx2 v[10:11], v8, {srd(SRD_WS)}, s{S_T0} offen sc1', tag='stE')
        self.exec_full()

    def wait_e0(self):
        I=self.I
        L=self.newlabel('e0'); D=self.newlabel('e0d')
        self.wait(vm=['e0c'])
        I('v_cmp_gt_u32 vcc, 64, v34'); I(f's_cbranch_vccz {D}')
        snap=self.snapshot()
        I(f's_mov_b32 s{S_BOUND}, 0x40000')
        self.label(L)
        I(f'global_load_dword v34, v35, {sp(P_DBG)} sc1'); I('s_waitcnt vmcnt(0)')
        I('v_cmp_gt_u32 vcc, 64, v34'); I(f's_cbranch_vccz {D}')
        I('s_sleep 4'); I(f's_sub_u32 s{S_BOUND}, s{S_BOUND}, 1'); I(f's_cbranch_scc0 {L}')
        self.label(D); self.restore(snap)

    def dedup_touch(self, sbase, nl=64, dst=13):
        I=self.I
        I(f'v_lshlrev_b32 v9, 7, v{V_LANE}')
        if nl<64: self.exec_set('-1','0')
        I(f'buffer_load_dword v{dst}, v9, {srd(SRD_WS)}, s{sbase} offen sc1', tag='touch')
        if nl<64: self.exec_full()
    def gemm1(self):
        I=self.I
        SL=[V_RING+16*i for i in range(6)]
        DEP=len(SL)
        I(f's_mul_i32 s22, s{S_DT1}, 262144'); I(f's_lshl_b32 s{S_T0}, s{S_W}, 16'); I(f's_add_u32 s22, s22, s{S_T0}')
        I(f's_lshl_b32 s{S_T0}, s{S_WL}, 11'); I(f's_xor_b32 s{S_T1}, s{S_T0}, 2048')
        I(f's_add_u32 s23, s22, s{S_T1}'); I(f's_add_u32 s22, s22, s{S_T0}')
        I(f's_mov_b32 s{S_A}, s22'); I(f's_mov_b32 s{S_B}, s23')
        def ld(k,y):
            r=SL[k%DEP]
            sx=S_A if y<2 else S_B
            I(f'buffer_load_dwordx4 {vr(r+4*y,4)}, v{V_L16}, {srd(SRD_WS)}, s{sx} offen offset:{(y&1)*1024} sc1', tag=('ht',k,y))
            if (y&1) and k<15: I(f's_add_u32 s{sx}, s{sx}, 4096')
        pro=[(k,y) for k in range(DEP) for y in range(4)]
        while pro:
            ld(*pro.pop(0))
            if self.R['iss']<self.R['n']: self.ring_tick()
            if self.opt.tHT and len(pro)==self.opt.tHTpos:
                I(f's_mul_i32 s{S_T2}, s86, 37'); I(f's_lshr_b32 s{S_T2}, s{S_T2}, 8'); I(f's_lshl_b32 s{S_T2}, s{S_T2}, 13')
                I(f's_mul_i32 s{S_T3}, s{S_DT1}, 262144'); I(f's_add_u32 s{S_T2}, s{S_T2}, s{S_T3}'); I(f's_lshl_b32 s{S_T3}, s{S_W}, 16')
                I(f's_add_u32 s{S_T2}, s{S_T2}, s{S_T3}'); I(f's_add_u32 s{S_T2}, s{S_T2}, {6*4096}')
                self.dedup_touch(S_T2,dst=12)
        self.ring_finish(); self.wait(lg='all')
        self.stamp('w1 in regs')
        self.w2_setup(); self.R['maxrd']=0
        for k in range(16):
            r=SL[k%DEP]
            for y in range(4):
                if self.opt.waitstep:
                    if y==0: self.wait(vm=[('ht',k,yy) for yy in range(4)])
                else: self.wait(vm=[('ht',k,y)])
                if y==0: self.stamp(f'g1.{k}',fine=3)
                for x in range(4):
                    d=V_ACC+16*x+4*y
                    cin=vr(d,4) if k else '0'
                    I(f'v_mfma_f32_16x16x32_bf16 {vr(d,4)}, {ar(16*k+4*x,4)}, {vr(r+4*y,4)}, {cin}')
                if k+DEP<16: ld(k+DEP,y)
                else:
                    self.R['maxrd']=k
                    self.tick()
        self.R['maxrd']=99
        self.stamp('g1loop')

    def p2_flag_addr(self):
        I=self.I
        I(f's_mul_i32 s{S_T0}, s{S_W}, 7'); I(f's_lshr_b32 s{S_T1}, s{S_T0}, 2')
        I(f's_mul_i32 s{S_T2}, s{S_C}, 7'); I(f's_add_u32 s{S_T2}, s{S_T2}, s{S_T1}')
        I(f's_add_u32 s{S_T3}, s{S_T0}, 6'); I(f's_lshr_b32 s{S_T3}, s{S_T3}, 2'); I(f's_sub_u32 s{S_T3}, s{S_T3}, s{S_T1}')
        I(f'v_min_u32 v14, s{S_T3}, v{V_LANE}'); I(f'v_add_u32 v14, s{S_T2}, v14'); I('v_lshlrev_b32 v14, 6, v14')
        I(f'v_add_u32 v14, {WS_FH}, v14')
        I(f'v_min_u32 v8, 13, v{V_LANE}'); I('v_lshlrev_b32 v9, 6, v8')
        I(f's_mul_i32 s{S_T1}, s{S_G}, 28'); I(f's_add_u32 s{S_T1}, s{S_T1}, s{S_T0}'); I(f's_lshl_b32 s{S_T1}, s{S_T1}, 6'); I(f's_add_u32 s{S_T1}, s{S_T1}, {WS_FG}')
        I(f's_lshl_b32 s{S_T0}, s{S_T0}, 6'); I(f's_add_u32 s{S_T0}, s{S_T0}, {WS_FC-7*64}')
        I(f'v_mov_b32 v10, s{S_T1}'); I(f'v_mov_b32 v11, s{S_T0}'); I('v_cmp_gt_u32 vcc, 7, v8'); I('v_cndmask_b32 v10, v11, v10, vcc')
        I('v_add_u32 v12, v9, v10')

    def e_addr(self):
        I=self.I
        OF=V_EOF
        I(f's_lshl_b32 s{S_T0}, s{S_G}, 14'); I(f's_add_u32 s{S_T0}, s{S_T0}, {WS_E}')
        I(f's_add_u32 s{SRD_1}, s{P_WS}, s{S_T0}'); I(f's_addc_u32 s{SRD_1+1}, s{P_WS+1}, 0')
        I(f's_and_b32 s{SRD_1+1}, s{SRD_1+1}, 0xffff'); I(f's_mov_b32 s{SRD_1+2}, 16384'); I(f's_mov_b32 s{SRD_1+3}, 0x20000')
        I(f'v_lshrrev_b32 v8, 4, v{V_LANE}'); I('v_lshlrev_b32 v8, 12, v8')
        I(f'v_and_b32 v9, 15, v{V_LANE}'); I('v_lshlrev_b32 v9, 3, v9'); I('v_add_u32 v8, v8, v9')
        I(f's_sub_u32 s{S_T0}, s{S_C}, 32'); I(f's_lshl_b32 s{S_T0}, s{S_T0}, 9'); I(f's_lshl_b32 s{S_T1}, s{S_W}, 7')
        I(f's_add_u32 s{S_T0}, s{S_T0}, s{S_T1}'); I(f'v_add_u32 v8, s{S_T0}, v8')
        for i in range(8): I(f'v_add_u32 v{OF+i}, {512*i}, v8')
    def e_loads(self):
        for i in range(8):
            self.I(f'buffer_load_dwordx2 {vr(V_EL+2*i,2)}, v{V_EOF+i}, {srd(SRD_1)}, 0 offen sc1', tag='E')

    def finalize(self):
        I=self.I
        EL=V_EL
        L=self.newlabel('pollE'); Dn=self.newlabel('pollEd')
        sv=self.auto; self.auto=0
        self.wait(vm=['E'])
        I(f's_mov_b32 s{S_BOUND}, 0x40000')
        self.label(L)
        I(f'v_max3_u32 v8, v{EL}, v{EL+1}, v{EL+2}')
        for i in range(3,15,2): I(f'v_max3_u32 v8, v8, v{EL+i}, v{EL+i+1}')
        I(f'v_max_u32 v8, v8, v{EL+15}')
        I('v_cmp_eq_u32 vcc, -1, v8')
        I(f's_cbranch_vccz {Dn}')
        snap=self.snapshot()
        self.e_loads()
        I('s_waitcnt vmcnt(0)')
        I('s_sleep 4'); I(f's_sub_u32 s{S_BOUND}, s{S_BOUND}, 1'); I(f's_cbranch_scc0 {L}')
        self.label(Dn); self.restore(snap)
        self.auto=sv
        yield
        QR,QI=EL,EL+1
        for i in range(1,8):
            self.cfma(QR,QI,V_L64R,V_L64I,QR,QI,EL+2*i,EL+2*i+1,36,37)
            yield
        GR=[20,21,22,23]; GI=[24,25,26,27]
        self.allgather_q(QR,*GR); yield
        self.allgather_q(QI,*GI); yield
        for q in range(1,4):
            self.cfma(GR[q],GI[q],V_L512R,V_L512I,GR[q-1],GI[q-1],GR[q],GI[q],28,29)
            yield
        self.cfma(V_SR,V_SI,V_PR,V_PI,GR[3],GI[3],V_SR,V_SI,28,29)
        yield
        HR,HI,T0,T1=V_SR,V_SI,36,37
        OR,OI=V_RAW,V_RAW+16
        for t in range(16):
            I(f'v_fma_f32 v{T0}, v{V_LR}, v{HR}, v{OR+t}')
            I(f'v_fma_f32 v{T1}, v{V_LR}, v{HI}, v{OI+t}')
            I(f'v_fma_f32 v{T0}, -v{V_LI}, v{HI}, v{T0}')
            I(f'v_fma_f32 v{HI}, v{V_LI}, v{HR}, v{T1}')
            HR,T0=T0,HR
            yield
            I(f'v_mul_f32 v{OR+t}, v{V_K1}, v{HR}'); I(f'v_mul_f32 v{OI+t}, v{V_K2}, v{HR}')
            I(f'v_fma_f32 v{OR+t}, v{V_K2}, v{HI}, v{OR+t}'); I(f'v_fma_f32 v{OI+t}, -v{V_K1}, v{HI}, v{OI+t}')
            yield
        for t in range(8):
            I(f'v_cvt_pk_bf16_f32 v{OR+t}, v{OR+2*t}, v{OR+2*t+1}'); I(f'v_cvt_pk_bf16_f32 v{OI+t}, v{OI+2*t}, v{OI+2*t+1}')
            if t%2: yield
        I(f'v_and_b32 v8, 15, v{V_LANE}'); I(f's_lshl_b32 s{S_T0}, s{S_WL}, 4'); I(f'v_add_u32 v8, s{S_T0}, v8')
        I('v_lshrrev_b32 v9, 3, v8'); I('v_lshlrev_b32 v9, 2, v9')
        yield
        I('v_and_b32 v10, 3, v8'); I('v_add_u32 v9, v9, v10')
        I('v_bfe_u32 v10, v8, 2, 1'); I('v_lshlrev_b32 v11, 4, v10'); I('v_add_u32 v9, v9, v11')
        yield
        I('v_and_b32 v11, 7, v9'); I('v_lshlrev_b32 v10, 2, v10'); I('v_xor_b32 v11, v11, v10')
        I(f'v_lshrrev_b32 v10, 4, v{V_LANE}'); I('v_lshlrev_b32 v10, 1, v10')
        yield
        I('v_xor_b32 v10, v10, v11'); I('v_lshlrev_b32 v10, 4, v10')
        I('v_lshlrev_b32 v9, 7, v9'); I('v_add_u32 v9, v9, v10')
        yield
        I(f's_lshl_b32 s{S_T0}, s{S_WH}, 12'); I(f'v_add_u32 v9, s{S_T0}, v9')
        I('v_xor_b32 v10, 16, v9')
        I('s_barrier')
        I(f'ds_write_b128 v9, {vr(OR,4)} offset:{LDS_X}', tag='hw'); I(f'ds_write_b128 v10, {vr(OR+4,4)} offset:{LDS_X}', tag='hw')
        I(f'ds_write_b128 v9, {vr(OI,4)} offset:{LDS_X+8192}', tag='hw'); I(f'ds_write_b128 v10, {vr(OI+4,4)} offset:{LDS_X+8192}', tag='hw')
        yield
        I(f'v_lshrrev_b32 v8, 2, v{V_LANE}'); I('v_and_b32 v9, 7, v8'); I(f'v_bfe_u32 v10, v{V_LANE}, 1, 1')
        I('v_xor_b32 v9, v9, v10'); I('v_lshlrev_b32 v9, 4, v9')
        yield
        I('v_lshlrev_b32 v8, 7, v8'); I('v_add_u32 v8, v8, v9')
        I(f'v_and_b32 v9, 1, v{V_LANE}'); I('v_lshlrev_b32 v9, 3, v9'); I('v_add_u32 v8, v8, v9')
        I(f's_lshl_b32 s{S_T0}, s{S_W}, 12'); I(f'v_add_u32 v8, s{S_T0}, v8')
        yield
        self.wait(lg=['hw']); I('s_barrier')
        FR=16
        for nb in range(4):
            I(f'v_xor_b32 v9, {nb<<5}, v8'); I('v_xor_b32 v10, 64, v9')
            I(f'ds_read_b64_tr_b16 {vr(FR+4*nb,2)}, v9 offset:{LDS_X}', tag=('hp',nb))
            I(f'ds_read_b64_tr_b16 {vr(FR+4*nb+2,2)}, v10 offset:{LDS_X+2048}', tag=('hp',nb))
        I(f's_mul_i32 s{S_T0}, s{S_C}, {28*4096}'); I(f's_lshl_b32 s{S_T1}, s{S_G}, 14'); I(f's_add_u32 s{S_T0}, s{S_T0}, s{S_T1}')
        I(f's_lshl_b32 s{S_T1}, s{S_W}, 12'); I(f's_add_u32 s{S_T0}, s{S_T0}, s{S_T1}'); I(f's_add_u32 s94, s{S_T0}, {WS_HP}')
        yield
        if self.opt.gearly: I(f'global_load_dword v53, v12, {sp(P_WS)} sc1', tag='fg')
        for nb in range(4):
            self.wait(lg=[('hp',nb)])
            I(f'buffer_store_dwordx4 {vr(FR+4*nb,4)}, v{V_L16}, {srd(SRD_WS)}, s94 offen offset:{nb*1024} sc1', tag='stH')
            yield

    def flag_set(self, sa, mul, sb, base):
        I=self.I
        L=self.newlabel('flag')
        I(f's_cmp_lg_u32 s{S_W}, 0'); I(f's_cbranch_scc1 {L}')
        snap=self.snapshot()
        I(f's_mul_i32 s{S_T0}, s{sa}, {mul}'); I(f's_add_u32 s{S_T0}, s{S_T0}, s{sb}'); I(f's_lshl_b32 s{S_T0}, s{S_T0}, 6')
        I(f's_add_u32 s{S_T0}, s{S_T0}, {base}')
        I('v_mov_b32 v8, 0'); I('v_mov_b32 v9, 1')
        self.exec_set(1,0)
        I(f'buffer_store_dword v9, v8, {srd(SRD_WS)}, s{S_T0} offen sc1')
        self.exec_full()
        self.label(L); self.merge(snap)

    def g_bias_load(self):
        I=self.I
        I(f'v_lshrrev_b32 v8, 4, v{V_LANE}'); I('v_lshlrev_b32 v8, 3, v8')
        I(f's_lshl_b32 s{S_T0}, s{S_FT}, 7'); I(f's_lshl_b32 s{S_T1}, s{S_WH}, 6'); I(f's_add_u32 s{S_T0}, s{S_T0}, s{S_T1}')
        I(f'v_add_u32 v8, s{S_T0}, v8')
        I(f'global_load_dwordx2 v[32:33], v8, {sp(P_B1)}', tag='b1')
        I(f'global_load_dwordx2 v[34:35], v8, {sp(P_B1)} offset:32', tag='b1')

    def g_epilogue(self):
        I=self.I
        self.auto=self.opt.gepip
        self.reduce(V_RING)
        self.wait(vm=['b1'])
        for x in range(2):
            for h in range(2):
                I(f'v_lshlrev_b32 v{16+4*x+2*h}, 16, v{32+2*x+h}'); I(f'v_and_b32 v{17+4*x+2*h}, s{S_MASK}, v{32+2*x+h}')
        C1=-2.0*0.7978845608028654*1.4426950408889634
        C3=C1*0.044715
        import struct
        f2h=lambda f:'0x%08x'%struct.unpack('<I',struct.pack('<f',f))[0]
        if self.opt.pkgelu:
            I(f's_mov_b32 s100, {f2h(C3)}'); I(f's_mov_b32 s101, {f2h(C3)}')
            I(f'v_mov_b32 v30, {f2h(C1)}'); I(f'v_mov_b32 v31, {f2h(C1)}')
            TT=V_RING
            P=[(V_ACC+16*x+4*y+2*h, 16+4*x+2*h) for x in range(2) for y in range(2) for h in range(2)]
            pr=lambda r:f'v[{r}:{r+1}]'
            for n,(u,b) in enumerate(P): I(f'v_pk_add_f32 {pr(u)}, {pr(u)}, {pr(b)}')
            for n,(u,b) in enumerate(P): I(f'v_pk_mul_f32 {pr(TT+2*n)}, {pr(u)}, {pr(u)}')
            for n,(u,b) in enumerate(P): I(f'v_pk_fma_f32 {pr(TT+2*n)}, {pr(TT+2*n)}, s[100:101], v[30:31]')
            for n,(u,b) in enumerate(P): I(f'v_pk_mul_f32 {pr(TT+2*n)}, {pr(TT+2*n)}, {pr(u)}')
            for n in range(16): I(f'v_exp_f32 v{TT+n}, v{TT+n}')
            for n,(u,b) in enumerate(P): I(f'v_pk_add_f32 {pr(TT+2*n)}, {pr(TT+2*n)}, 1.0 op_sel_hi:[1,0]')
            for n in range(16): I(f'v_rcp_f32 v{TT+n}, v{TT+n}')
            for n,(u,b) in enumerate(P): I(f'v_pk_mul_f32 {pr(u)}, {pr(u)}, {pr(TT+2*n)}')
        else:
            I(f's_mov_b32 s{S_T2}, {f2h(C1)}'); I(f's_mov_b32 s{S_T3}, {f2h(C3)}')
            I(f'v_mov_b32 v31, s{S_T2}')
            U=[]
            for x in range(2):
                for y in range(2):
                    for r in range(4):
                        U.append((V_ACC+16*x+4*y+r, 16+4*x+r))
            TT=V_RING
            for n,(u,b) in enumerate(U): I(f'v_add_f32 v{u}, v{u}, v{b}')
            for n,(u,b) in enumerate(U): I(f'v_mul_f32 v{TT+n}, v{u}, v{u}')
            for n,(u,b) in enumerate(U): I(f'v_fma_f32 v{TT+n}, v{TT+n}, s{S_T3}, v31')
            for n,(u,b) in enumerate(U): I(f'v_mul_f32 v{TT+n}, v{TT+n}, v{u}')
            for n,(u,b) in enumerate(U): I(f'v_exp_f32 v{TT+n}, v{TT+n}')
            for n,(u,b) in enumerate(U): I(f'v_add_f32 v{TT+n}, 1.0, v{TT+n}')
            for n,(u,b) in enumerate(U): I(f'v_rcp_f32 v{TT+n}, v{TT+n}')
            for n,(u,b) in enumerate(U): I(f'v_mul_f32 v{u}, v{u}, v{TT+n}')
        F=V_RING+16
        for y in range(2):
            for x in range(2):
                a=V_ACC+16*x+4*y
                I(f'v_cvt_pk_bf16_f32 v{F+4*y+2*x}, v{a}, v{a+1}'); I(f'v_cvt_pk_bf16_f32 v{F+4*y+2*x+1}, v{a+2}, v{a+3}')
        I(f's_mul_i32 s{S_T0}, s{S_DT1}, {56*4096}'); I(f's_lshl_b32 s{S_T1}, s{S_FT}, 13'); I(f's_add_u32 s{S_T0}, s{S_T0}, s{S_T1}')
        I(f's_lshl_b32 s{S_T1}, s{S_WH}, 12'); I(f's_add_u32 s{S_T0}, s{S_T0}, s{S_T1}')
        I(f's_lshl_b32 s{S_T1}, s{S_WL}, 11'); I(f's_add_u32 s{S_T0}, s{S_T0}, s{S_T1}'); I(f's_add_u32 s{S_T0}, s{S_T0}, {WS_GT}')
        for y in range(2):
            I(f'buffer_store_dwordx4 {vr(F+4*y,4)}, v{V_L16}, {srd(SRD_WS)}, s{S_T0} offen offset:{y*1024} sc1', tag='stG')
        self.auto=0
        self.e_addr(); self.e_loads()
        self.p2_flag_addr(); self.p2_bases()
        I(f'global_load_dword v54, v12, {sp(P_WS)} sc1', tag='fc')
        for n in range(self.opt.gwait): self.tick()
        self.wait(vm=['stG']); I('s_barrier')
        self.flag_set(S_DT1,28,S_FT,WS_FG)

    def w2_setup(self):
        I=self.I
        self.make_srd(SRD_W, P_W2, 1792*4096)
        self.ring_setup(4096, S_WL)
        I(f's_mul_i32 s{S_WBEG}, s{S_W}, {448*4096}'); I(f's_lshl_b32 s{S_T0}, s{S_C}, 7'); I(f's_add_u32 s{S_WBEG}, s{S_WBEG}, s{S_T0}')
        I(f's_mov_b32 s{S_WO}, s{S_WBEG}')
        self.ring_init('w2',14,4096,range(6))

    def rot_g(self, dst):
        I=self.I
        I(f's_mul_i32 s{dst}, s86, 37'); I(f's_lshr_b32 s{dst}, s{dst}, 8')
        I(f's_mul_i32 s{dst}, s{dst}, {7*self.opt.rot2}'); I(f's_lshr_b32 s{dst}, s{dst}, 1')
    def cpack(self):
        I=self.I
        L=self.newlabel('nocp')
        I(f's_cmp_ge_u32 s{S_E}, 28'); I(f's_cbranch_scc1 {L}')
        I(f's_mov_b32 s{SRD_1+2}, {448*896}'); I(f's_mov_b32 s{SRD_1+3}, 0x20000')
        I(f's_bitcmp1_b32 s{S_E}, 1')
        I(f's_cselect_b32 s{SRD_1}, s{P_CIM}, s{P_CRE}'); I(f's_cselect_b32 s{SRD_1+1}, s{P_CIM+1}, s{P_CRE+1}')
        I(f'v_and_b32 v9, 15, v{V_LANE}'); I('v_mul_u32_u24 v9, 896, v9'); I(f'v_lshrrev_b32 v10, 4, v{V_LANE}')
        I('v_lshlrev_b32 v10, 4, v10'); I('v_add_u32 v10, v9, v10')
        I(f's_lshr_b32 s{S_T0}, s{S_E}, 2'); I(f's_lshl_b32 s{S_T0}, s{S_T0}, 7')
        I(f's_and_b32 s{S_T1}, s{S_E}, 1'); I(f's_lshl_b32 s{S_T1}, s{S_T1}, 6'); I(f's_add_u32 s{S_T0}, s{S_T0}, s{S_T1}')
        I(f's_mul_i32 s{S_T1}, s{S_W}, {16*896}'); I(f's_add_u32 s{S_T0}, s{S_T0}, s{S_T1}')
        for dt in range(7):
            I(f'buffer_load_dwordx4 {vr(56+4*dt,4)}, v10, {srd(SRD_1)}, s{S_T0} offen', tag=('cp',dt))
            if dt<6: I(f's_add_u32 s{S_T0}, s{S_T0}, {64*896}')
        I(f's_lshl_b32 s{S_T0}, s{S_E}, 12'); I(f's_lshl_b32 s{S_T1}, s{S_W}, 10'); I(f's_add_u32 s{S_T0}, s{S_T0}, s{S_T1}')
        I(f's_add_u32 s{S_T0}, s{S_T0}, {WS_CP}')
        for dt in range(7):
            self.wait(vm=[('cp',dt)])
            I(f'buffer_store_dwordx4 {vr(56+4*dt,4)}, v{V_L16}, {srd(SRD_WS)}, s{S_T0} offen sc1', tag='stC')
            if dt<6: I(f's_add_u32 s{S_T0}, s{S_T0}, {28*4096}')
        self.label(L)
    def cpack_flag(self):
        I=self.I
        L=self.newlabel('nocf')
        Lp=self.newlabel('w0poll')
        self.wait(vm='all')
        I(f's_cmp_lg_u32 s{S_W}, 0'); I(f's_cbranch_scc1 {Lp}')
        I(f'v_and_b32 v8, 3, v{V_LANE}'); I('v_lshlrev_b32 v8, 6, v8')
        self.poll('e0e', 8, P_DBG, 64)
        self.label(Lp)
        I('s_barrier')
        I(f's_cmp_ge_u32 s{S_E}, 28'); I(f's_cbranch_scc1 {L}')
        I(f's_mov_b32 s{S_T1}, 0')
        self.flag_set(S_T1,1,S_E,WS_FC)
        self.label(L)

    def p2_resid_loads(self):
        I=self.I
        self.make_srd(SRD_OUT, P_OUT, 2048*1792)
        I(f'v_and_b32 v7, 15, v{V_LANE}'); I(f'v_lshrrev_b32 v8, 4, v{V_LANE}')
        I('v_mul_u32_u24 v9, 896, v7'); I('v_lshlrev_b32 v10, 3, v8'); I('v_add_u32 v9, v9, v10')
        I(f's_lshl_b32 s{S_T0}, s{S_C}, 6'); I(f's_lshl_b32 s{S_T1}, s{S_WL}, 5'); I(f's_add_u32 s{S_T0}, s{S_T0}, s{S_T1}')
        I(f's_lshl_b32 s{S_T1}, s{S_G}, 6'); I(f's_lshl_b32 s{S_T2}, s{S_WH}, 5'); I(f's_add_u32 s{S_T1}, s{S_T1}, s{S_T2}')
        I('v_lshrrev_b32 v9, 2, v7'); I(f'v_mul_u32_u24 v9, {YW}, v9'); I('v_and_b32 v11, 3, v7'); I('v_lshlrev_b32 v11, 2, v11'); I('v_add_u32 v9, v9, v11')
        I(f's_lshl_b32 s{S_T2}, s{S_WL}, 5'); I(f's_add_u32 s{S_T2}, s{S_T2}, {LDS_Y+24576}'); I(f'v_add_u32 v9, s{S_T2}, v9')
        for y in range(2):
            I(f'ds_read_b32 v{24+2*y}, v9 offset:{16*y}', tag='rstat'); I(f'ds_read_b32 v{25+2*y}, v9 offset:{16*y+64}', tag='rstat')
        I(f's_lshl_b32 s{S_T2}, s{S_T1}, 1'); I(f'v_add_u32 v9, s{S_T2}, v10')
        I(f'global_load_dwordx2 v[28:29], v9, {sp(P_DSK)}', tag='res')
        I(f'global_load_dwordx2 v[30:31], v9, {sp(P_DSK)} offset:32', tag='res')
        I(f'v_add_u32 v9, s{S_T0}, v7'); I('v_lshlrev_b32 v9, 1, v9')
        I(f'global_load_ushort v10, v9, {sp(P_B2)}', tag='res')
        I(f'global_load_ushort v38, v9, {sp(P_B2)} offset:32', tag='res')
    def resid_compute(self):
        I=self.I
        self.wait(vm=['res'], lg=['rstat'])
        I('v_lshlrev_b32 v10, 16, v10'); I('v_lshlrev_b32 v38, 16, v38')
        yield
        for x in range(2):
            for h in range(2):
                I(f'v_lshlrev_b32 v{32+2*h}, 16, v{28+2*x+h}'); I(f'v_and_b32 v{33+2*h}, s{S_MASK}, v{28+2*x+h}')
            yield
            for y in range(2):
                xs=V_XR+4*y+2*x; st=24+2*y; b2=10 if y==0 else 38
                for h in range(2):
                    r=240+8*y+4*x+2*h
                    I(f'v_lshlrev_b32 v{r}, 16, v{xs+h}'); I(f'v_and_b32 v{r+1}, s{S_MASK}, v{xs+h}')
                    I(f'v_pk_add_f32 v[36:37], v[{r}:{r+1}], v[{st}:{st+1}] op_sel_hi:[1,0] neg_lo:[0,1] neg_hi:[0,1]')
                    yield
                    I(f'v_pk_mul_f32 v[36:37], v[36:37], v[{st}:{st+1}] op_sel:[0,1] op_sel_hi:[1,1]')
                    I(f'v_pk_add_f32 v[{r}:{r+1}], v[{r}:{r+1}], v[{b2}:{b2+1}] op_sel_hi:[1,0]')
                    I(f'v_pk_fma_f32 v[{r}:{r+1}], v[36:37], v[{32+2*h}:{33+2*h}], v[{r}:{r+1}]')
                    yield

    CREG=[['v16','v20','v24','v28'],['v32','v36','v40','v44'],['v48','v52','v216','v220'],['v224','v228','v232','v236'],
          ['a0','a4','a8','a12'],['a224','a228','a232','a236'],['a240','a244','a248','a252']]
    def creg(self,i,x):
        r=self.CREG[i][x]; n=int(r[1:]); return f'{r[0]}[{n}:{n+3}]'
    def p2_bases(self):
        I=self.I
        I(f's_mul_i32 s90, s{S_G}, {56*4096}'); I(f's_mul_i32 s{S_T0}, s{S_W}, {14*4096}'); I(f's_add_u32 s90, s90, s{S_T0}')
        I(f's_add_u32 s90, s90, {WS_GT}')
        I(f's_lshl_b32 s{S_T1}, s{S_WH}, 11'); I(f's_xor_b32 s{S_T2}, s{S_T1}, 2048')
        I(f's_add_u32 s92, s90, s{S_T2}'); I(f's_add_u32 s90, s90, s{S_T1}')
        I(f's_mul_i32 s22, s{S_G}, {28*4096}'); I(f's_mul_i32 s{S_T0}, s{S_W}, {7*4096}'); I(f's_add_u32 s22, s22, s{S_T0}')
        I(f's_add_u32 s22, s22, {WS_CP}')
        I(f's_add_u32 s23, s22, s{S_T2}'); I(f's_add_u32 s22, s22, s{S_T1}')
        I(f's_mul_i32 s38, s{S_C}, {28*4096}'); I(f's_add_u32 s38, s38, s{S_T0}'); I(f's_add_u32 s38, s38, {WS_HP}')
        I(f's_lshl_b32 s{S_T1}, s{S_WL}, 11'); I(f's_xor_b32 s{S_T2}, s{S_T1}, 2048')
        I(f's_add_u32 s39, s38, s{S_T2}'); I(f's_add_u32 s38, s38, s{S_T1}')
    def q_c(self, steps):
        I=self.I
        def one(i,x):
            def f():
                b=22 if x<2 else 23
                I(f's_add_u32 s91, s{b}, {i*4096}')
                I(f'buffer_load_dwordx4 {self.creg(i,x)}, v{V_L16}, {srd(SRD_WS)}, s91 offen offset:{(x&1)*1024} sc1', tag=('c',i,x))
            return f
        for i in steps:
            for x in range(4): self.q.append(one(i,x))
    def cflag_check(self):
        I=self.I
        L=self.newlabel('cf'); D=self.newlabel('cfd')
        self.wait(vm=['fc'])
        self.exec_set('0x3f80','0')
        I('v_cmp_gt_u32 vcc, 1, v54'); I(f's_cbranch_vccz {D}')
        snap=self.snapshot()
        I(f's_mov_b32 s{S_BOUND}, 0x40000')
        self.label(L)
        I(f'global_load_dword v54, v12, {sp(P_WS)} sc1'); I('s_waitcnt vmcnt(0)')
        I('v_cmp_gt_u32 vcc, 1, v54'); I(f's_cbranch_vccz {D}')
        I('s_sleep 4'); I(f's_sub_u32 s{S_BOUND}, s{S_BOUND}, 1'); I(f's_cbranch_scc0 {L}')
        self.label(D); self.restore(snap)
        self.exec_full()
    def flag_wait(self, vaddr, vdst, tag):
        I=self.I
        L=self.newlabel('fw'); D=self.newlabel('fwd')
        self.wait(vm=[tag])
        I(f'v_cmp_gt_u32 vcc, 1, v{vdst}'); I(f's_cbranch_vccz {D}')
        snap=self.snapshot()
        I(f's_mov_b32 s{S_BOUND}, 0x40000')
        self.label(L)
        I(f'global_load_dword v{vdst}, v{vaddr}, {sp(P_WS)} sc1'); I('s_waitcnt vmcnt(0)')
        I(f'v_cmp_gt_u32 vcc, 1, v{vdst}'); I(f's_cbranch_vccz {D}')
        I('s_sleep 4'); I(f's_sub_u32 s{S_BOUND}, s{S_BOUND}, 1'); I(f's_cbranch_scc0 {L}')
        self.label(D); self.restore(snap)
    def p2_main(self, pre_only=False):
        I=self.I
        NS=6
        g0=self.opt.sfirst
        steps=[('g',k) for k in range(g0)]
        gi,si=g0,0
        while gi<14 or si<7:
            if si<7: steps.append(('s',si)); si+=1
            if gi<14: steps.append(('g',gi)); gi+=1
        groups=[('g',i) if k=='g' else ('h',i) for k,i in steps]
        gidx={g:n for n,g in enumerate(groups)}
        reg=lambda g: V_RING+16*(gidx[g]%NS)
        pend=[(g,x) for g in groups for x in range(4)]
        done=set(); state={}
        if not pre_only and self.opt.gearly: pend,done,state=self.p2state
        def can(g,x):
            n=gidx[g]-NS
            return n<0 or (groups[n],x) in done
        def issue(nmax):
            n=0
            while n<nmax and pend and can(*pend[0]):
                g,x=pend[0]
                if g[0]=='h' and not state.get('hflag'):
                    self.flag_wait(14,11,'fh'); state['hflag']=True
                    if self.opt.tH:
                        I(f's_lshl_b32 s{S_T2}, s{S_G}, 12'); I(f's_mul_i32 s{S_T3}, s{S_C}, {28*4096}'); I(f's_add_u32 s{S_T2}, s{S_T2}, s{S_T3}')
                        I(f's_mul_i32 s{S_T3}, s{S_W}, {7*4096}'); I(f's_add_u32 s{S_T2}, s{S_T2}, s{S_T3}'); I(f's_add_u32 s{S_T2}, s{S_T2}, {WS_HP}')
                        self.dedup_touch(S_T2,32)
                pend.pop(0)
                b0,b1,nst={'g':(90,92,14),'h':(38,39,7)}[g[0]]
                sx=b0 if x<2 else b1
                I(f'buffer_load_dwordx4 {vr(reg(g)+4*x,4)}, v{V_L16}, {srd(SRD_WS)}, s{sx} offen offset:{(x&1)*1024} sc1', tag=(g,x))
                if (x&1) and g[1]<nst-1: I(f's_add_u32 s{sx}, s{sx}, 4096')
                n+=1
        if pre_only:
            issue(4*NS); self.p2state=(pend,done,state); return
        if not self.opt.gearly:
            issue(self.opt.tGpos)
            if self.opt.tG:
                I(f's_mul_i32 s{S_T2}, s86, 37'); I(f's_lshr_b32 s{S_T2}, s{S_T2}, 8'); I(f's_lshl_b32 s{S_T2}, s{S_T2}, 13')
                I(f's_mul_i32 s{S_T3}, s{S_G}, {56*4096}'); I(f's_add_u32 s{S_T2}, s{S_T2}, s{S_T3}'); I(f's_mul_i32 s{S_T3}, s{S_W}, {14*4096}')
                I(f's_add_u32 s{S_T2}, s{S_T2}, s{S_T3}'); I(f's_add_u32 s{S_T2}, s{S_T2}, {WS_GT+6*4096}')
                self.dedup_touch(S_T2)
            issue(4*NS-self.opt.tGpos)
        first=True
        self.q_c([4])
        for pos,(kind,i) in enumerate(steps):
            if kind=='g' and i==3: I(f'global_load_dword v11, v14, {sp(P_WS)} sc1', tag='fh')
            if kind=='s':
                H=('h',i)
                for x in range(4):
                    self.wait(vm=[('c',i,x)]+([(H,y) for y in range(4)] if x==0 else []))
                    if x==0: self.stamp(f'p2.s{i}',fine=2)
                    for y in range(4):
                        d=V_ACC+16*x+4*y
                        I(f'v_mfma_f32_16x16x32_bf16 {vr(d,4)}, {self.creg(i,x)}, {vr(reg(H)+4*y,4)}, {vr(d,4)}')
                    if x<3: issue(1)
                for y in range(4): done.add((H,y))
                issue(2)
            else:
                A=('g',i)
                for x in range(4):
                    if self.opt.waitstep:
                        if x==0: self.wait(vm=[(A,xx) for xx in range(4)])
                    else: self.wait(vm=[(A,x)])
                    if x==0: self.stamp(f'p2.g{i}',fine=2)
                    for y in range(4):
                        d=V_ACC+16*x+4*y
                        cin='0' if first else vr(d,4)
                        I(f'v_mfma_f32_16x16x32_bf16 {vr(d,4)}, {vr(reg(A)+4*x,4)}, {ar(16*i+4*y,4)}, {cin}')
                    done.add((A,x))
                    issue(1)
                    if i==1: self.q.pop(0)()
            first=False
        assert not pend

    def p2_epilogue(self):
        I=self.I
        if self.opt.outlds: self.out_addr()
        self.reduce(V_RING)
        for y in range(2):
            for x in range(2):
                a=V_ACC+16*x+4*y; r=240+8*y+4*x
                for h in range(2):
                    I(f'v_pk_add_f32 v[{a+2*h}:{a+2*h+1}], v[{a+2*h}:{a+2*h+1}], v[{r+2*h}:{r+2*h+1}]')
        if self.opt.delta:
            import struct
            hx='0x%08x'%struct.unpack('<I',struct.pack('<f',self.opt.delta))[0]
            for y in range(2):
                for x in range(2):
                    for r in range(4):
                        a=V_ACC+16*x+4*y+r
                        I(f'v_add_f32 v{a}, {hx}, v{a}')
        if not self.opt.outlds:
            I(f'v_and_b32 v7, 15, v{V_LANE}'); I(f'v_lshrrev_b32 v8, 4, v{V_LANE}')
            I('v_mul_u32_u24 v9, 1792, v7'); I('v_lshlrev_b32 v10, 4, v8'); I('v_add_u32 v9, v9, v10')
            I(f's_lshl_b32 s{S_T0}, s{S_C}, 6'); I(f's_lshl_b32 s{S_T1}, s{S_WL}, 5'); I(f's_add_u32 s{S_T0}, s{S_T0}, s{S_T1}')
            I(f's_lshl_b32 s{S_T1}, s{S_G}, 6'); I(f's_lshl_b32 s{S_T2}, s{S_WH}, 5'); I(f's_add_u32 s{S_T1}, s{S_T1}, s{S_T2}')
            for y in range(2):
                for x in range(2):
                    I(f's_add_u32 s{S_T2}, s{S_T0}, {16*y}'); I(f's_mul_i32 s{S_T2}, s{S_T2}, 1792')
                    I(f's_add_u32 s{S_T3}, s{S_T1}, {16*x}'); I(f's_lshl_b32 s{S_T3}, s{S_T3}, 2'); I(f's_add_u32 s{S_T2}, s{S_T2}, s{S_T3}')
                    a=V_ACC+16*x+4*y
                    I(f'buffer_store_dwordx4 {vr(a,4)}, v9, {srd(SRD_OUT)}, s{S_T2} offen {self.opt.outmod}')
        else:
            for y in range(2):
                for x in range(2):
                    a=V_ACC+16*x+4*y
                    I(f'ds_write_b128 v{8+x}, {vr(a,4)} offset:{2048*y}', tag='ow')
            self.wait(lg=['ow'])
            for j in range(4):
                I(f'ds_read_b128 {vr(V_RING+4*j,4)}, v10 offset:{1024*j}', tag=('or',j))
            for j in range(4):
                self.wait(lg=[('or',j)])
                I(f'buffer_store_dwordx4 {vr(V_RING+4*j,4)}, v11, {srd(SRD_OUT)}, s{S_A} offen {self.opt.outmod}')
                if j<3: I(f's_add_u32 s{S_A}, s{S_A}, {8*1792}')
    def out_addr(self):
        I=self.I
        I(f'v_and_b32 v7, 15, v{V_LANE}'); I(f'v_lshrrev_b32 v8, 4, v{V_LANE}'); I('v_and_b32 v9, 7, v7'); I('v_xor_b32 v8, v8, v9')
        I('v_lshlrev_b32 v8, 4, v8'); I('v_lshlrev_b32 v7, 7, v7'); I('v_add_u32 v8, v8, v7'); I(f'v_add_u32 v8, s{S_YB}, v8'); I('v_xor_b32 v9, 64, v8')
        I(f'v_lshrrev_b32 v7, 3, v{V_LANE}'); I(f'v_and_b32 v11, 7, v{V_LANE}'); I('v_xor_b32 v10, v11, v7'); I('v_lshlrev_b32 v10, 4, v10')
        I('v_lshlrev_b32 v6, 7, v7'); I('v_add_u32 v10, v10, v6'); I(f'v_add_u32 v10, s{S_YB}, v10')
        I('v_mul_u32_u24 v7, 1792, v7'); I('v_lshlrev_b32 v11, 4, v11'); I('v_add_u32 v11, v11, v7')
        I(f's_lshl_b32 s{S_T0}, s{S_C}, 6'); I(f's_lshl_b32 s{S_T1}, s{S_WL}, 5'); I(f's_add_u32 s{S_T0}, s{S_T0}, s{S_T1}'); I(f's_mul_i32 s{S_T0}, s{S_T0}, 1792')
        I(f's_lshl_b32 s{S_T1}, s{S_G}, 6'); I(f's_lshl_b32 s{S_T2}, s{S_WH}, 5'); I(f's_add_u32 s{S_T1}, s{S_T1}, s{S_T2}'); I(f's_lshl_b32 s{S_T1}, s{S_T1}, 2')
        I(f's_add_u32 s{S_A}, s{S_T0}, s{S_T1}')

    def write_stamps(self):
        if not self.opt.stamps: return
        I=self.I
        I('s_lshl_b32 s3, s2, 2'); I(f's_add_u32 s3, s3, s{S_W}'); I('s_lshl_b32 s3, s3, 8'); I(f's_add_u32 s3, s3, {WS_DBG}')
        I(f'v_lshlrev_b32 v9, 2, v{V_LANE}')
        I(f'buffer_store_dword v{self.vst}, v9, {srd(SRD_WS)}, s3 offen')
        if getattr(self.opt,'dbgwg',-1)>=0 and self.final_stamps:
            L=self.newlabel('dbgout')
            I(f's_cmp_lg_u32 s2, {self.opt.dbgwg}'); I(f's_cbranch_scc1 {L}')
            I(f's_cmp_lg_u32 s{S_W}, 0'); I(f's_cbranch_scc1 {L}')
            I(f'v_readlane_b32 s3, v{self.vst}, 0'); I('s_nop 4')
            I(f'v_subrev_u32 v8, s3, v{self.vst}')
            I(f'v_add_u32 v9, {self.opt.dbgoff}, v{V_LANE}'); I('v_lshlrev_b32 v9, 2, v9')
            I('ds_bpermute_b32 v8, v9, v8'); I('s_waitcnt lgkmcnt(0)')
            I(f'v_lshlrev_b32 v9, 2, v{V_LANE}')
            self.exec_set('0xfffe','0')
            I(f'global_store_dword v9, v8, {sp(P_DBG)}')
            self.exec_full()
            self.label(L)
    def build(self):
        I=self.I; o=self.opt
        if o.stamps: I('v_mov_b32 v55, 0')
        self.prologue()
        self.touches_pre()
        wt=self.opt.w1touch
        if wt=='A' or self.opt.alsoA: self.touch_w1()
        if self.opt.t3start:
            Lt=self.newlabel('t3s')
            I(f's_cmp_lg_u32 s{S_W}, 3'); I(f's_cbranch_scc1 {Lt}')
            snap=self.snapshot()
            self.touch_w1_wg()
            self.label(Lt); self.merge(snap)
        Lcont=self.newlabel('cont')
        I('s_cmp_eq_u32 s74, 1'); I(f's_cbranch_scc1 {Lcont}')
        snap=self.snapshot()
        self.ln8(clears=False)
        self.vm['st0']=0
        self.arrive0()
        if wt=='F': self.touch_w1()
        if wt in ('S','T','U'): self.touch_w1_split(True)
        self.stamp('pf1')
        if self.opt.eorder==3:
            self.touch_pf(2)
            self.wait(vm='all')
        elif self.opt.eorder==0:
            self.cpack()
            self.stamp('cp')
            self.touch_pf(2)
            self.cpack_flag()
        elif self.opt.eorder==1:
            self.touch_pf(2)
            self.stamp('cp')
            self.cpack()
            self.cpack_flag()
        else:
            self.cpack()
            self.cpack_flag()
            self.stamp('cp')
            self.touch_pf(2)
            self.wait(vm='all')
        self.stamp('pf2')
        self.write_stamps()
        I('s_endpgm')
        self.label(Lcont); self.restore(snap)
        if wt=='T': self.touch_w1_split(False)
        self.dma_setup()
        if wt=='E': self.touch_w1(setup_only=True)
        self.w1_setup()
        if self.opt.bfirst: self.q_b(); self.q_x([0,1,2])
        else: self.q_x([0,1,2]); self.q_b()
        for n in range(self.opt.pre): self.tick()
        self.stamp('issued')
        self.auto=self.opt.period if self.opt.ln8tick else 0
        self.ln8()
        self.auto=0
        if wt=='U': self.touch_w1_split(False)
        self.stamp('ln8 stored')
        if self.opt.bfirst: self.q_x([3])
        else:
            rest=self.q; self.q=[]; self.q_x([3]); self.q+=rest
        self.auto=self.opt.period
        self.x_addr()
        self.lam_consts()
        self.auto=0
        self.stamp('lam')
        self.arrive0()
        self.stamp('arrived')
        self.drain_q(batch=True)
        if wt=='F': self.touch_w1()
        if wt=='S': self.touch_w1_split(False)
        self.stamp('drained')
        self.wait(vm=['x64','bdma']); I('s_barrier')
        self.do_bread()
        if self.opt.b13dma:
            for im in range(2):
                I(f's_add_u32 m0, s{S_YB}, {SLOT_OFF[5]+1024*im}'); I('s_nop 0')
                I(f'buffer_load_dwordx4 v236, {srd(SRD_1 if im==0 else SRD_2)}, s89 offen lds', tag='b13')
        self.auto=self.opt.statp
        self.row_stats()
        self.auto=0
        self.wait(vm=['b13'])
        if self.opt.b13dma:
            I(f'v_and_b32 v8, 15, v{V_LANE}'); I('v_lshlrev_b32 v8, 6, v8'); I(f'v_lshrrev_b32 v9, 4, v{V_LANE}'); I('v_lshlrev_b32 v9, 4, v9')
            I('v_add_u32 v8, v8, v9'); I(f'v_add_u32 v8, s{S_YB}, v8')
            I(f'ds_read_b128 {vr(V_BF+52,4)}, v8 offset:{SLOT_OFF[5]}', tag='b13r'); I(f'ds_read_b128 {vr(V_BF+56+52,4)}, v8 offset:{SLOT_OFF[5]+1024}', tag='b13r')
            self.wait(lg=['b13r'])
        self.stamp('ln64')
        I(f'v_and_b32 v35, 3, v{V_LANE}'); I('v_lshlrev_b32 v35, 6, v35')
        I(f'global_load_dword v34, v35, {sp(P_DBG)} sc1', tag='e0c')
        self.auto=self.opt.bup
        self.bu_gemm()
        self.stamp('bu',fine=True)
        self.auto=0
        self.x_resid_reads()
        self.auto=self.opt.scanp
        self.ln_fix()
        self.scan1()
        self.auto=0
        self.stamp('scan1')
        self.wait_e0()
        self.stamp('e0')
        Lnog=self.newlabel('nog1'); Lj=self.newlabel('g1join')
        I(f's_cmp_eq_u32 s{S_HASG1}, 0'); I(f's_cbranch_scc1 {Lnog}')
        snap=self.snapshot()
        R1=dict(self.R); R1['free']=list(self.R['free']); R1['slot']=dict(self.R['slot'])
        self.g_bias_load()
        self.gemm1()
        self.stamp('gemm1')
        self.g_epilogue()
        self.stamp('gepi')
        I(f's_branch {Lj}')
        snapA=self.snapshot()
        RA={k:self.R[k] for k in ('iss','rd','rel','piece')}; RA['free']=list(self.R['free']); RA['slot']=dict(self.R['slot'])
        self.label(Lnog); self.restore(snap); self.R=R1
        if self.opt.eorder==3:
            I(f's_lshr_b32 s{S_E}, s95, 1'); I(f's_mul_i32 s{S_E}, s{S_E}, 7'); I(f's_add_u32 s{S_E}, s{S_E}, s86'); I(f's_sub_u32 s{S_E}, s{S_E}, 21')
            self.cpack()
            self.wait(vm=['stC']); I('s_barrier')
            I(f's_mov_b32 s{S_T1}, 0')
            self.flag_set(S_T1,1,S_E,WS_FC)
        self.ring_finish(); self.wait(lg='all')
        self.w2_setup()
        self.replay_ring(RA)
        self.e_addr(); self.e_loads()
        self.p2_flag_addr(); self.p2_bases()
        I(f'global_load_dword v54, v12, {sp(P_WS)} sc1', tag='fc')
        self.label(Lj); self.merge(snapA)
        self.cflag_check()
        self.q_c([5,6])
        self.auto=self.opt.finp
        for _ in self.finalize(): pass
        self.auto=0
        self.stamp('final')
        if o.stamps: I('v_mov_b32 v15, v55'); self.vst=15
        self.drain_q()
        if self.opt.gearly:
            self.flag_wait(12,53,'fg')
            self.stamp('flagG')
            self.p2_main(pre_only=True)
        self.p2_resid_loads()
        for n in range(self.opt.rwait):
            if self.R is not None and not self.ring_tick(): self.ring_finish()
        self.auto=self.opt.finp
        for _ in self.resid_compute(): pass
        self.auto=0
        self.wait(vm=['stH']); I('s_barrier')
        self.flag_set(S_C,7,S_G,WS_FH)
        self.q_c([0,1,2,3])
        while self.q or self.R is not None:
            if self.q:
                self.tick()
                if len(self.q)==self.opt.fglead and not self.opt.gearly: I(f'global_load_dword v11, v12, {sp(P_WS)} sc1', tag='fg')
            if self.R is not None:
                if not self.ring_tick(): self.ring_finish()
        self.wait(lg='all')
        self.stamp('w2 in regs')
        if not self.opt.gearly:
            self.flag_wait(12,11,'fg')
            self.stamp('flagG')
        self.p2_main()
        self.stamp('p2')
        self.p2_epilogue()
        self.stamp('end'); self.cstamp('c1')
        self.final_stamps=True
        self.write_stamps()
        self.label('L_exit')
        I('s_endpgm')
        self.label('L_code_end')

def header(lds):
    return f"""; Fused S5 SSM + MLP-Mixer token MLP: out = x + SSM(LN(x)) + MLP(LN(LN(x))^T)^T in one persistent launch.
; @launch grid=(256,1,1) block=(256,1,1) lds={lds}
.amdgcn_target "amdgcn-amd-amdhsa--gfx950"
.text
.globl {KN}
.p2align 8
.type {KN},@function
{KN}:
"""
def footer():
    return f"""
.section .rodata,"a"
.p2align 6
.amdhsa_kernel {KN}
  .amdhsa_next_free_vgpr 512
  .amdhsa_next_free_sgpr 102
  .amdhsa_accum_offset 256
  .amdhsa_group_segment_fixed_size 0
  .amdhsa_kernarg_size 136
  .amdhsa_user_sgpr_count 2
  .amdhsa_user_sgpr_kernarg_segment_ptr 1
  .amdhsa_system_sgpr_workgroup_id_x 1
  .amdhsa_float_denorm_mode_32 3
.end_amdhsa_kernel
"""
if __name__=='__main__':
    ap=argparse.ArgumentParser()
    ap.add_argument('-o',default='k.s'); ap.add_argument('--stamps',action='store_true'); ap.add_argument('--stop',default=''); ap.add_argument('--fine',type=int,default=0); ap.add_argument('--period',type=int,default=48); ap.add_argument('--pkgelu',type=int,default=1); ap.add_argument('--batchexec',type=int,default=1); ap.add_argument('--waitstep',type=int,default=0); ap.add_argument('--tHT',type=int,default=0); ap.add_argument('--tHTpos',type=int,default=12); ap.add_argument('--tG',type=int,default=0); ap.add_argument('--tGpos',type=int,default=8); ap.add_argument('--tH',type=int,default=0); ap.add_argument('--outlds',type=int,default=1); ap.add_argument('--b13dma',type=int,default=1); ap.add_argument('--bupj',type=int,default=0); ap.add_argument('--scanp',type=int,default=64); ap.add_argument('--pfearly',type=int,default=1); ap.add_argument('--eorder',type=int,default=1); ap.add_argument('--statp',type=int,default=0); ap.add_argument('--gearly',type=int,default=1); ap.add_argument('--delta',type=float,default=0.0); ap.add_argument('--bup',type=int,default=0); ap.add_argument('--statj',type=int,default=9); ap.add_argument('--outmod',default=''); ap.add_argument('--dbgwg',type=int,default=-1); ap.add_argument('--dbgoff',type=int,default=0); ap.add_argument('--arrlead',type=int,default=10); ap.add_argument('--t3start',type=int,default=0); ap.add_argument('--notouch3',type=int,default=0); ap.add_argument('--own3',type=int,default=0); ap.add_argument('--alsoA',type=int,default=0); ap.add_argument('--now2',type=int,default=0); ap.add_argument('--gepip',type=int,default=0); ap.add_argument('--finp',type=int,default=36); ap.add_argument('--sfirst',type=int,default=10); ap.add_argument('--rwait',type=int,default=8); ap.add_argument('--fglead',type=int,default=6); ap.add_argument('--ln64p',type=int,default=48); ap.add_argument('--bfirst',type=int,default=0); ap.add_argument('--w2late',type=int,default=1); ap.add_argument('--rot1',type=int,default=4); ap.add_argument('--rot2',type=int,default=1); ap.add_argument('--rot3',type=int,default=1); ap.add_argument('--ln8tick',type=int,default=0); ap.add_argument('--bdelay',type=int,default=2); ap.add_argument('--w1touch',default='A'); ap.add_argument('--fin0',type=int,default=4); ap.add_argument('--finrate',type=int,default=2); ap.add_argument('--p2rate',type=int,default=3); ap.add_argument('--pre',type=int,default=1); ap.add_argument('--pre1',type=int,default=8); ap.add_argument('--gwait',type=int,default=6); ap.add_argument('--ht_touch',type=int,default=0); ap.add_argument('--g_touch',type=int,default=0)
    o=ap.parse_args()
    k=K(o); k.build()
    t,n=k.text()
    open(o.o,'w').write(header(LDS_TOTAL)+t+footer())
    print('wrote',o.o,'lines',t.count('\n'),'nop states inserted',n)
    if o.stamps: open(o.o+'.names','w').write(','.join(k.stampnames)); print(k.stampnames)
```

```python
import sys, os, argparse
from asmgen import Gen

KN = "parallel_sum__ssm_conv_s5__mixer_token_mlp__prompt_kernel"

WS_HT    = 0x000000
WS_STAT  = 0x1C0000
WS_E     = 0x1C4000
WS_FH    = 0x1E0000
WS_FG    = 0x1E4000
WS_FC    = 0x1E8000
WS_CP    = 0x780000
WS_GT    = 0x200000
WS_HP    = 0x400000
WS_DBG   = 0x900000

LDS_X  = 0
LDS_Y  = 57344
YW     = 26624
SLOT_OFF = [0, 4096, 8192, 12288, 16384, 20480]
LDS_LN8 = LDS_X + 57344 - 7680
LDS_TOTAL = LDS_Y + 4*YW

P_X, P_LRE, P_LIM, P_BRE, P_BIM, P_CRE, P_CIM, P_LDT = 4,6,8,10,12,14,16,18
P_DSK = 20
P_W1, P_B1, P_W2, P_B2 = 24,26,28,30
P_OUT, P_DBG, P_WS = 32,34,36
SRD_X, SRD_WS, SRD_1, SRD_2, SRD_W, SRD_OUT = 40,44,48,52,56,60
S_W, S_WH, S_WL, S_C, S_G, S_DT1, S_FT, S_HASG1 = 64,65,66,67,68,69,70,71
S_MASK, S_ONES = 72, 73
S_A, S_B, S_WO, S_T0, S_T1, S_T2, S_T3, S_BOUND = 76,77,78,79,80,81,82,83
S_YB = 84
S_WBEG, S_WEND = 96, 97
S_KO, S_KEND = 100, 101
S_FI = 3
S_E = 85
def sp(n): return f's[{n}:{n+1}]'
def srd(n): return f's[{n}:{n+3}]'
def vr(a,n): return f'v[{a}:{a+n-1}]' if n>1 else f'v{a}'
def ar(a,n): return f'a[{a}:{a+n-1}]' if n>1 else f'a{a}'

V_LANE, V_L16 = 0, 1
V_TR = 2
V_DMA = [6,13]
V_T = 16
V_LR,V_LI,V_K1,V_K2,V_SR,V_SI,V_PR,V_PI,V_L64R,V_L64I,V_L512R,V_L512I = range(40,52)
V_IN = 52
V_X64 = 56
V_BF = 112
V_RAW = 224
V_ACC = 56
V_RING = 120
V_EL = 16
V_EOF = 200
V_XR = 216

class K(Gen):
    def __init__(self, opt):
        super().__init__(); self.opt=opt; self.nstamp=0
        self.cur_hi='-1'; self.batch=False; self.final_stamps=False; self.vst=55; self.nx=0; self.nb=0; self.bread=False; self.allow_bread=False; self.bdelay=opt.bdelay; self.q=[]; self.R=None; self.auto=0; self.acc=0; self.in_tick=False; self.full=True
    def I(self,t,tag=None):
        super().I(t,tag)
        if self.in_tick: return
        mn=t.split()[0]
        if mn.startswith(('buffer_','global_')): self.acc=0; return
        if not self.auto: return
        if mn.startswith('v_mfma'): self.acc+=16
        elif mn.startswith(('v_exp','v_rcp','v_sqrt','v_sin','v_cos','v_log')): self.acc+=8
        elif mn.startswith(('v_','ds_')): self.acc+=4
        else: return
        if self.acc>=self.auto and self.full and not mn.startswith(('v_cmp','s_cmp','s_bitcmp')):
            self.tick()
    def tick(self):
        self.in_tick=True; self.acc=0
        if not self.bread and self.allow_bread and self.nb>=34:
            if self.bdelay>0: self.bdelay-=1
            else:
                self.do_bread(); self.in_tick=False; return
        if self.q: self.q.pop(0)()
        elif self.R is not None: self.ring_tick()
        self.in_tick=False
    def do_bread(self):
        self.bread=True
        self.b_read()
        self.wait(lg=['brd'])
        self.ring_init('w1',16,3584,range(6))
    def row_exec(self, hi):
        if self.cur_hi!=hi: self.I(f's_mov_b32 exec_hi, {hi}'); self.cur_hi=hi
    def row_exec_done(self):
        if not self.batch: self.I('s_mov_b32 exec_hi, -1'); self.cur_hi='-1'
    def drain_q(self, batch=False):
        self.batch=batch and self.opt.batchexec
        while self.q: self.tick()
        self.batch=False
        if self.cur_hi!='-1': self.I('s_mov_b32 exec_hi, -1'); self.cur_hi='-1'
    def stamp(self, name, fine=False):
        if not self.opt.stamps: return
        if fine and int(fine)>self.opt.fine: return
        i=self.nstamp; self.nstamp+=1
        assert i<64
        self.c(f'stamp {i}: {name}')
        self.wait(lg='all')
        self.I('s_memrealtime s[98:99]'); self.I('s_waitcnt lgkmcnt(0)'); self.smem=False
        self.I(f'v_writelane_b32 v{self.vst}, s98, {i}')
        self.stampnames=getattr(self,'stampnames',[])+[name]
    def cstamp(self, name):
        if not self.opt.stamps: return
        i=self.nstamp; self.nstamp+=1
        self.wait(lg='all')
        self.I('s_memtime s[98:99]'); self.I('s_waitcnt lgkmcnt(0)'); self.smem=False
        self.I(f'v_writelane_b32 v{self.vst}, s98, {i}')
        self.stampnames=getattr(self,'stampnames',[])+['#'+name]
    def rnd_bf16(self, v):
        self.I(f'v_cvt_pk_bf16_f32 v{v}, v{v}, v{v}')
        self.I(f'v_lshlrev_b32 v{v}, 16, v{v}')
    def make_srd(self, s, ptr, nbytes):
        self.I(f's_mov_b32 s{s}, s{ptr}'); self.I(f's_and_b32 s{s+1}, s{ptr+1}, 0xffff')
        self.I(f's_mov_b32 s{s+2}, {nbytes}'); self.I(f's_mov_b32 s{s+3}, 0x20000')
    def ln_stats(self, SUM, SSQ, R, C, T):
        I=self.I
        I(f'v_mul_f32 v{SUM}, 0x3b124925, v{SUM}')
        I(f'v_mul_f32 v{SSQ}, 0x3b124925, v{SSQ}')
        I(f'v_fma_f32 v{SSQ}, -v{SUM}, v{SUM}, v{SSQ}')
        I(f'v_max_f32 v{SSQ}, 0, v{SSQ}')
        I(f'v_cvt_pk_bf16_f32 v{SUM}, v{SUM}, v{SUM}')
        I(f'v_cvt_pk_bf16_f32 v{SSQ}, v{SSQ}, v{SSQ}')
        I(f'v_lshlrev_b32 v{SUM}, 16, v{SUM}')
        I(f'v_lshlrev_b32 v{SSQ}, 16, v{SSQ}')
        I(f'v_add_f32 v{SSQ}, 0x3727c5ac, v{SSQ}')
        self.rnd_bf16(SSQ)
        I(f'v_sqrt_f32 v{SSQ}, v{SSQ}')
        self.rnd_bf16(SSQ)
        I(f'v_rcp_f32 v{R}, v{SSQ}')
        I(f'v_mul_f32 v{C}, v{SUM}, v{R}')
        I(f'v_sub_f32 v{C}, 0, v{C}')
    def dot_sums(self, regs, accs):
        I=self.I
        for n,d in enumerate(regs):
            s,q = accs[2*(n&1)], accs[2*(n&1)+1]
            if n<2:
                I(f'v_dot2_f32_bf16 v{s}, v{d}, s{S_ONES}, 0')
                I(f'v_dot2_f32_bf16 v{q}, v{d}, v{d}, 0')
            else:
                I(f'v_dot2_f32_bf16 v{s}, v{d}, s{S_ONES}, v{s}')
                I(f'v_dot2_f32_bf16 v{q}, v{d}, v{d}, v{q}')
        I(f'v_add_f32 v{accs[0]}, v{accs[0]}, v{accs[2]}')
        I(f'v_add_f32 v{accs[1]}, v{accs[1]}, v{accs[3]}')
    def normalize(self, regs, R, C, tmps, hook=None):
        I=self.I
        n=len(tmps)
        for b in range(0,len(regs),n):
            grp=regs[b:b+n]
            for d,t in zip(grp,tmps):
                I(f'v_lshlrev_b32 v{t}, 16, v{d}')
                I(f'v_and_b32 v{t+1}, s{S_MASK}, v{d}')
            for d,t in zip(grp,tmps):
                I(f'v_pk_fma_f32 v[{t}:{t+1}], v[{t}:{t+1}], v[{R}:{R+1}], v[{C}:{C+1}] op_sel_hi:[1,0,0]')
            for d,t in zip(grp,tmps):
                I(f'v_cvt_pk_bf16_f32 v{d}, v{t}, v{t+1}')
            if hook: hook(b//n)
    def cmul(self, dr, di, xr, xi, yr, yi, t0, t1):
        I=self.I
        I(f'v_mul_f32 v{t0}, v{xi}, v{yi}')
        I(f'v_mul_f32 v{t1}, v{xi}, v{yr}')
        I(f'v_fma_f32 v{t0}, v{xr}, v{yr}, -v{t0}')
        I(f'v_fma_f32 v{di}, v{xr}, v{yi}, v{t1}')
        I(f'v_mov_b32 v{dr}, v{t0}')
    def cfma(self, dr, di, xr, xi, yr, yi, zr, zi, t0, t1):
        I=self.I
        I(f'v_fma_f32 v{t0}, v{xr}, v{yr}, v{zr}')
        I(f'v_fma_f32 v{t1}, v{xr}, v{yi}, v{zi}')
        I(f'v_fma_f32 v{t0}, -v{xi}, v{yi}, v{t0}')
        I(f'v_fma_f32 v{di}, v{xi}, v{yr}, v{t1}')
        I(f'v_mov_b32 v{dr}, v{t0}')
    def csq(self, dr, di, xr, xi, t0):
        I=self.I
        I(f'v_mul_f32 v{t0}, v{xi}, v{xi}')
        I(f'v_mul_f32 v{di}, v{xr}, v{xi}')
        I(f'v_fma_f32 v{dr}, v{xr}, v{xr}, -v{t0}')
        I(f'v_add_f32 v{di}, v{di}, v{di}')
    def allgather_q(self, v, g0, g1, g2, g3):
        I=self.I
        I(f'v_mov_b32 v{g0}, v{v}'); I(f'v_mov_b32 v{g1}, v{v}')
        I(f'v_permlane16_swap_b32 v{g0}, v{g1}')
        I(f'v_mov_b32 v{g2}, v{g0}'); I(f'v_mov_b32 v{g3}, v{g1}')
        I(f'v_permlane32_swap_b32 v{g0}, v{g2}')
        I(f'v_permlane32_swap_b32 v{g1}, v{g3}')
    def exec_full(self): self.I('s_mov_b64 exec, -1'); self.full=True
    def exec_set(self, lo, hi):
        self.full=False
        self.I(f's_mov_b32 exec_lo, {lo}'); self.I(f's_mov_b32 exec_hi, {hi}')
    def poll(self, name, voff, base, cmp_ge, nlanes_lo=None):
        I=self.I
        L=self.newlabel('poll'); D=self.newlabel('polld')
        I(f's_mov_b32 s{S_BOUND}, 0x40000')
        self.label(L)
        I(f'global_load_dword v7, v{voff}, {sp(base)} sc1')
        I('s_waitcnt vmcnt(0)'); self.vm={}
        I(f'v_cmp_gt_u32 vcc, {cmp_ge}, v7')
        I(f's_cbranch_vccz {D}')
        I('s_sleep 4')
        I(f's_sub_u32 s{S_BOUND}, s{S_BOUND}, 1')
        I(f's_cbranch_scc0 {L}')
        self.label(D)

    def ring_setup(self, pitch, xorsel):
        I=self.I
        I(f'v_lshrrev_b32 v7, 3, v{V_LANE}'); I(f'v_and_b32 v8, 7, v{V_LANE}')
        I('v_and_b32 v9, 6, v7'); I('v_xor_b32 v8, v8, v9'); I('v_lshlrev_b32 v8, 4, v8')
        I(f'v_mul_u32_u24 v7, {pitch}, v7'); I(f'v_add_u32 v{V_DMA[0]}, v7, v8')
        I(f'v_add_u32 v{V_DMA[1]}, {8*pitch-1024}, v{V_DMA[0]}')
        I(f'v_lshrrev_b32 v7, 2, v{V_LANE}'); I('v_and_b32 v8, 6, v7')
        I(f'v_bfe_u32 v9, v{V_LANE}, 1, 1'); I('v_xor_b32 v8, v8, v9'); I('v_lshlrev_b32 v8, 4, v8')
        I('v_lshlrev_b32 v7, 7, v7'); I('v_add_u32 v7, v7, v8')
        I(f'v_and_b32 v9, 1, v{V_LANE}'); I('v_lshlrev_b32 v9, 3, v9'); I('v_add_u32 v7, v7, v9')
        I(f's_lshl_b32 s{S_T0}, s{xorsel}, 6')
        I(f'v_xor_b32 v7, s{S_T0}, v7')
        I(f'v_add_u32 v{V_TR}, s{S_YB}, v7')
        for x in range(1,4):
            I(f'v_xor_b32 v{V_TR+x}, {x<<5}, v{V_TR}')
    def ring_init(self, name, nsteps, pitch, slots):
        self.R=dict(name=name,n=nsteps,pitch=pitch,free=list(slots),slot={},iss=0,rd=0,rel=0,piece=0)
    def ring_add(self, slots): self.R['free']+=list(slots)
    def ring_issue_piece(self):
        R=self.R; I=self.I
        k=R['iss']
        if k>=R['n']: return False
        j=R['piece']
        if j==0:
            if not R['free']: return False
            R['slot'][k]=R['free'].pop(0)
        if j%2==0:
            I(f's_add_u32 m0, s{S_YB}, {SLOT_OFF[R["slot"][k]]+j*1024}')
            if k or j: I(f's_add_u32 s{S_WO}, s{S_WO}, {16*R["pitch"]}')
            else: I('s_nop 0')
        I(f'buffer_load_dwordx4 v{V_DMA[j%2]}, {srd(SRD_W)}, s{S_WO} offen offset:{(j%2)*1024} lds', tag=(R['name'],k))
        R['piece']=(j+1)%4
        if R['piece']==0: R['iss']+=1
        return True
    def ring_issue(self):
        while self.ring_issue_piece(): pass
    def ring_read(self):
        R=self.R; I=self.I
        k=R['rd']
        if k>=R['n']: return False
        assert k<R['iss'], 'read before issue'
        off=SLOT_OFF[R['slot'][k]]
        self.wait(vm=[(R['name'],k)])
        for x in range(4):
            b=16*k+4*x
            I(f'ds_read_b64_tr_b16 {ar(b,2)}, v{V_TR+x} offset:{off}', tag=(R['name'],'r',k))
            I(f'ds_read_b64_tr_b16 {ar(b+2,2)}, v{V_TR+x} offset:{off+2048}', tag=(R['name'],'r',k))
        R['rd']+=1
        return True
    def ring_release(self):
        R=self.R
        k=R['rel']
        if k>=R['rd']: return False
        self.wait(lg=[(R['name'],'r',k)])
        R['free'].append(R['slot'][k]); R['rel']+=1
        self.ring_issue()
        return True
    def ring_tick(self):
        R=self.R
        if R['iss']<R['n']:
            if R['piece']==0 and not R['free']:
                if R['rel']>=R['rd']:
                    assert R['rd']<R.get('maxrd',99)
                    self.ring_read()
                k=R['rel']; self.wait(lg=[(R['name'],'r',k)]); R['free'].append(R['slot'][k]); R['rel']+=1
            self.ring_issue_piece()
            if R['piece']==3 and not R['free'] and R['rd']==R['rel'] and R['rd']<R['iss'] and R['rd']<R.get('maxrd',99):
                self.ring_read()
            return True
        if R['rd']<R['n'] and R['rd']<R.get('maxrd',99): return self.ring_read()
        return False
    def bg(self):
        return self.ring_tick()
    def replay_ring(self, RA):
        R=self.R
        while (R['iss'],R['piece'])<(RA['iss'],RA['piece']) or R['rd']<RA['rd']:
            if (R['iss'],R['piece'])<(RA['iss'],RA['piece']):
                before=R['rd']
                R['maxrd']=RA['rd']
                self.ring_tick()
            else:
                self.ring_read()
        while R['rel']<RA['rel']:
            k=R['rel']; self.wait(lg=[(R['name'],'r',k)]); R['free'].append(R['slot'][k]); R['rel']+=1
        R['maxrd']=99
        for k in RA: assert RA[k]==R[k], (k,RA[k],R[k])
    def ring_finish(self):
        R=self.R; R['maxrd']=99
        while R['rd']<R['n'] or R['iss']<R['n']: self.ring_tick()
        R['rel']=R['n']; self.R=None

    def reduce(self, tmp, pre=None, post=None):
        I=self.I
        for e in (1,2,3):
            I(f's_xor_b32 s{S_T0}, s{S_W}, {e}'); I(f's_mul_i32 s{S_T0}, s{S_T0}, {3*4096}')
            I(f's_add_u32 s{S_T0}, s{S_T0}, {LDS_X+(e-1)*4096}')
            I(f'v_add_u32 v7, s{S_T0}, v{V_L16}')
            xh,yh=e>>1,e&1
            for xl in range(2):
                for yl in range(2):
                    a=V_ACC+16*(2*xh+xl)+4*(2*yh+yl)
                    I(f'ds_write_b128 v7, {vr(a,4)} offset:{(2*xl+yl)*1024}', tag='redw')
        if pre: pre()
        self.wait(lg='all'); I('s_barrier')
        if post: post()
        I(f's_mul_i32 s{S_T0}, s{S_W}, {3*4096}'); I(f'v_add_u32 v7, s{S_T0}, v{V_L16}')
        for e in range(3):
            for sub in range(4):
                I(f'ds_read_b128 {vr(tmp+16*e+4*sub,4)}, v7 offset:{LDS_X+e*4096+sub*1024}', tag=('red',e))
        for e in range(3):
            self.wait(lg=[('red',e)])
            for sub in range(4):
                a=V_ACC+16*(sub>>1)+4*(sub&1)
                for h in range(2):
                    I(f'v_pk_add_f32 v[{a+2*h}:{a+2*h+1}], v[{a+2*h}:{a+2*h+1}], v[{tmp+16*e+4*sub+2*h}:{tmp+16*e+4*sub+2*h+1}]')

    def prologue(self):
        I=self.I
        I('s_cmp_ge_u32 s2, 256'); I('s_cbranch_scc1 L_exit')
        I('s_load_dwordx16 s[4:19], s[0:1], 0')
        if self.opt.pfearly:
            I('s_getpc_b64 s[98:99]'); self.label('L_pc0')
            I(f's_sub_u32 s98, s98, L_pc0-{KN}'); I('s_subb_u32 s99, s99, 0')
            I('v_lshlrev_b32 v9, 7, v0'); I(f'v_min_u32 v9, L_code_end-{KN}-16, v9')
            I('global_load_dword v12, v9, s[98:99]', tag='pf')
        I('s_load_dwordx2 s[20:21], s[0:1], 64')
        I('s_load_dwordx8 s[24:31], s[0:1], 80')
        I('s_load_dwordx4 s[32:35], s[0:1], 112')
        I('s_load_dwordx2 s[36:37], s[0:1], 128')
        I('v_lshrrev_b32 v7, 6, v0'); I(f'v_and_b32 v{V_LANE}, 63, v0')
        I(f'v_readfirstlane_b32 s{S_W}, v7')
        I(f'v_lshlrev_b32 v{V_L16}, 4, v{V_LANE}')
        I(f's_mov_b32 s{S_MASK}, 0xffff0000'); I(f's_mov_b32 s{S_ONES}, 0x3f803f80')
        I('s_and_b32 s22, s2, 7')
        I('s_lshr_b32 s23, s2, 3')
        I('s_and_b32 s38, s22, 1')
        I('s_lshr_b32 s39, s22, 1')
        I(f's_lshr_b32 s{S_WH}, s{S_W}, 1'); I(f's_and_b32 s{S_WL}, s{S_W}, 1')
        I(f's_mul_i32 s{S_T0}, s23, 37'); I(f's_lshr_b32 s{S_T0}, s{S_T0}, 8')
        I(f's_mul_i32 s{S_T1}, s{S_T0}, 7'); I(f's_sub_u32 s{S_G}, s23, s{S_T1}')
        I(f's_mov_b32 s{S_DT1}, s{S_G}')
        I(f's_lshl_b32 s{S_T1}, s22, 2'); I(f's_add_u32 s{S_C}, s{S_T1}, s{S_T0}')
        I(f's_min_u32 s{S_C}, s{S_C}, 31')
        I(f's_mul_i32 s{S_T1}, s39, 7'); I(f's_lshl_b32 s{S_T2}, s38, 2'); I(f's_add_u32 s87, s{S_T1}, s{S_T2}')
        I(f's_add_u32 s{S_FT}, s87, s{S_T0}'); I(f's_min_u32 s{S_FT}, s{S_FT}, 27')
        if self.opt.g1map:
            I(f's_lshl_b32 s{S_T2}, s38, 2'); I(f's_add_u32 s{S_DT1}, s{S_T2}, s{S_T0}'); I(f's_min_u32 s{S_DT1}, s{S_DT1}, 6')
            I(f's_mul_i32 s87, s39, 7'); I(f's_add_u32 s{S_FT}, s87, s{S_G}')
        I(f's_sub_u32 s{S_T1}, 4, s38'); I(f's_cmp_lt_u32 s{S_T0}, s{S_T1}'); I(f's_cselect_b32 s{S_HASG1}, 1, 0')
        I('s_cmp_lt_u32 s23, 28'); I('s_cselect_b32 s74, 1, 0')
        self.wait(lg='all')
        self.make_srd(SRD_X, P_X, 2048*896)
        self.x8_issue(2)
        if not self.opt.pfearly:
            I('s_getpc_b64 s[98:99]'); self.label('L_pc0')
            I(f's_sub_u32 s98, s98, L_pc0-{KN}'); I('s_subb_u32 s99, s99, 0')
            I(f's_and_b32 s{S_T0}, s23, 1'); I(f's_lshl_b32 s{S_T0}, s{S_T0}, 2'); I(f's_add_u32 s{S_T0}, s{S_T0}, s{S_W}')
            I(f's_lshl_b32 s{S_T0}, s{S_T0}, 13')
            I(f'v_lshlrev_b32 v9, 7, v{V_LANE}'); I(f'v_add_u32 v9, s{S_T0}, v9')
            I(f'v_min_u32 v9, L_code_end-{KN}-16, v9')
            I('global_load_dword v12, v9, s[98:99]', tag='pf')
        self.make_srd(SRD_WS, P_WS, 0x10000000)
        I(f's_mul_i32 s{S_YB}, s{S_W}, {YW}'); I(f's_add_u32 s{S_YB}, s{S_YB}, {LDS_Y}')
        I(f's_sub_u32 s{S_E}, s23, 28'); I(f's_lshl_b32 s{S_E}, s{S_E}, 3'); I(f's_add_u32 s{S_E}, s{S_E}, s22')
        I('s_mov_b32 s86, s23'); I('s_mov_b32 s95, s22')
        self.stamp('start'); self.cstamp('c0')

    def x8_issue(self, oct):
        I=self.I
        I(f's_lshr_b32 s75, s{oct}, 2'); I('s_lshl_b32 s75, s75, 5')
        I(f's_lshl_b32 s{S_T0}, s{S_WH}, 4'); I(f's_add_u32 s75, s75, s{S_T0}')
        I(f's_and_b32 s{S_T0}, s{oct}, 3'); I(f's_lshl_b32 s{S_T0}, s{S_T0}, 2'); I(f's_add_u32 s75, s75, s{S_T0}')
        I(f's_lshl_b32 s{S_T0}, s{S_WL}, 1'); I(f's_add_u32 s75, s75, s{S_T0}')
        I(f's_mul_i32 s{S_T2}, s75, 896')
        I(f'v_and_b32 v7, 31, v{V_LANE}'); I(f'v_lshrrev_b32 v8, 5, v{V_LANE}')
        I('v_mul_u32_u24 v8, 896, v8'); I('v_lshlrev_b32 v9, 5, v7'); I('v_add_u32 v8, v8, v9')
        I('v_mov_b32 v9, 0x7ffffff0'); I('v_cmp_gt_u32 vcc, 28, v7'); I('v_cndmask_b32 v8, v9, v8, vcc')
        I(f'buffer_load_dwordx4 {vr(V_T,4)}, v8, {srd(SRD_X)}, s{S_T2} offen', tag='x8')
        I(f'buffer_load_dwordx4 {vr(V_T+4,4)}, v8, {srd(SRD_X)}, s{S_T2} offen offset:16', tag='x8')
    def touches_pre(self):
        I=self.I
        self.make_srd(SRD_1, P_BRE, 448*896); self.make_srd(SRD_2, P_BIM, 448*896); self.make_srd(SRD_W, P_W1, 2048*3584)
        I(f'v_lshrrev_b32 v7, 3, v{V_LANE}'); I(f'v_and_b32 v8, 7, v{V_LANE}'); I('v_min_u32 v8, 6, v8')
        I('v_mul_u32_u24 v7, 896, v7'); I('v_lshlrev_b32 v8, 7, v8'); I('v_add_u32 v7, v7, v8')
        I(f's_lshl_b32 s{S_T3}, s86, 2'); I(f's_add_u32 s{S_T3}, s{S_T3}, s{S_W}')
        I(f's_lshl_b32 s{S_T0}, s95, 8'); I(f's_lshl_b32 s{S_T1}, s{S_T3}, 1'); I(f's_add_u32 s{S_T0}, s{S_T0}, s{S_T1}'); I(f's_mul_i32 s{S_T0}, s{S_T0}, 896')
        self.exec_set('0xffff','0')
        I(f'buffer_load_dword v12, v7, {srd(SRD_X)}, s{S_T0} offen', tag='touch')
        I(f's_and_b32 s{S_T0}, s{S_T3}, 63'); I(f's_mul_i32 s{S_T0}, s{S_T0}, {7*896}')
        I(f's_cmp_lt_u32 s{S_T3}, 64')
        I(f's_cselect_b32 s{SRD_OUT}, s{P_BRE}, s{P_BIM}'); I(f's_cselect_b32 s{SRD_OUT+1}, s{P_BRE+1}, s{P_BIM+1}')
        I(f's_mov_b32 s{SRD_OUT+2}, {448*896}'); I(f's_mov_b32 s{SRD_OUT+3}, 0x20000')
        self.exec_set('-1','0x00ffffff')
        I(f'buffer_load_dword v12, v7, {srd(SRD_OUT)}, s{S_T0} offen', tag='touch')
        self.exec_full()
    def touch_w1(self, setup_only=False):
        I=self.I
        I(f'v_lshrrev_b32 v7, 2, v{V_LANE}'); I(f'v_and_b32 v8, 3, v{V_LANE}')
        I(f's_and_b32 s{S_T1}, s95, 1'); I(f's_sub_u32 s{S_T1}, 3, s{S_T1}'); I(f'v_min_u32 v8, s{S_T1}, v8')
        I('v_mul_u32_u24 v7, 3584, v7'); I('v_lshlrev_b32 v8, 7, v8'); I('v_add_u32 v7, v7, v8')
        I(f's_lshl_b32 s{S_T0}, s{S_W}, 9'); I(f's_lshl_b32 s{S_T1}, s86, 4'); I(f's_add_u32 s{S_T0}, s{S_T0}, s{S_T1}')
        I(f's_mul_i32 s{S_T0}, s{S_T0}, 3584'); I(f's_lshl_b32 s{S_T1}, s87, 7'); I(f's_add_u32 s{S_T0}, s{S_T0}, s{S_T1}')
        if setup_only:
            I('v_mov_b32 v238, v7'); I(f's_mov_b32 s94, s{S_T0}'); return
        I(f'buffer_load_dword v12, v7, {srd(SRD_W)}, s{S_T0} offen', tag='touch')
    def touch_w1_split(self, rest):
        I=self.I
        if self.opt.g1map:
            I(f'v_lshrrev_b32 v7, 3, v{V_LANE}'); I(f'v_and_b32 v8, 7, v{V_LANE}'); I('v_min_u32 v8, 6, v8')
            I('v_mul_u32_u24 v7, 3584, v7'); I('v_lshlrev_b32 v8, 7, v8'); I('v_add_u32 v7, v7, v8')
            I(f's_lshl_b32 s{S_T0}, s{S_W}, 9'); I(f's_and_b32 s{S_T2}, s95, 1')
            if not rest:
                I(f's_lshl_b32 s{S_T1}, s86, 3'); I(f's_add_u32 s{S_T0}, s{S_T0}, s{S_T1}'); I(f's_lshl_b32 s{S_T1}, s{S_T2}, 2'); I(f's_add_u32 s{S_T0}, s{S_T0}, s{S_T1}')
            else:
                I(f's_sub_u32 s{S_T1}, s86, 28'); I(f's_lshl_b32 s{S_T1}, s{S_T1}, 3'); I(f's_add_u32 s{S_T0}, s{S_T0}, s{S_T1}'); I(f's_add_u32 s{S_T0}, s{S_T0}, 224')
                I(f's_lshl_b32 s{S_T1}, s{S_T2}, 5'); I(f's_add_u32 s{S_T0}, s{S_T0}, s{S_T1}')
            I(f's_mul_i32 s{S_T0}, s{S_T0}, 3584'); I(f's_lshl_b32 s{S_T1}, s87, 7'); I(f's_add_u32 s{S_T0}, s{S_T0}, s{S_T1}')
            if not rest:
                self.exec_set('-1','0')
                I(f'buffer_load_dword v12, v7, {srd(SRD_W)}, s{S_T0} offen', tag='touch')
                self.exec_full()
            else:
                for t in range(5):
                    I(f'buffer_load_dword v12, v7, {srd(SRD_W)}, s{S_T0} offen', tag='touch')
                    if t<4: I(f's_add_u32 s{S_T0}, s{S_T0}, {64*3584}')
            return
        I(f'v_lshrrev_b32 v7, 2, v{V_LANE}'); I(f'v_and_b32 v8, 3, v{V_LANE}')
        I(f's_and_b32 s{S_T1}, s95, 1'); I(f's_sub_u32 s{S_T1}, 3, s{S_T1}'); I(f'v_min_u32 v8, s{S_T1}, v8')
        I('v_mul_u32_u24 v7, 3584, v7'); I('v_lshlrev_b32 v8, 7, v8'); I('v_add_u32 v7, v7, v8')
        I(f's_lshl_b32 s{S_T0}, s{S_W}, 9')
        if not rest:
            I(f's_lshl_b32 s{S_T1}, s86, 3'); I(f's_add_u32 s{S_T0}, s{S_T0}, s{S_T1}')
        else:
            I(f's_sub_u32 s{S_T1}, s86, 28'); I(f's_lshl_b32 s{S_T1}, s{S_T1}, 4'); I(f's_add_u32 s{S_T0}, s{S_T0}, s{S_T1}'); I(f's_add_u32 s{S_T0}, s{S_T0}, 224')
        I(f's_mul_i32 s{S_T0}, s{S_T0}, 3584'); I(f's_lshl_b32 s{S_T1}, s87, 7'); I(f's_add_u32 s{S_T0}, s{S_T0}, s{S_T1}')
        if not rest:
            self.exec_set('-1','0')
            I(f'buffer_load_dword v12, v7, {srd(SRD_W)}, s{S_T0} offen', tag='touch')
            self.exec_full()
        else:
            for t in range(5):
                I(f'buffer_load_dword v12, v7, {srd(SRD_W)}, s{S_T0} offen', tag='touch')
                if t<4: I(f's_add_u32 s{S_T0}, s{S_T0}, {64*3584}')
    def touch_w1_wg(self):
        I=self.I
        I(f'v_lshrrev_b32 v7, 2, v{V_LANE}'); I(f'v_and_b32 v8, 3, v{V_LANE}')
        I(f's_and_b32 s{S_T1}, s95, 1'); I(f's_sub_u32 s{S_T1}, 3, s{S_T1}'); I(f'v_min_u32 v8, s{S_T1}, v8')
        I('v_mul_u32_u24 v7, 3584, v7'); I('v_lshlrev_b32 v8, 7, v8'); I('v_add_u32 v7, v7, v8')
        I(f's_lshl_b32 s{S_T0}, s86, 4'); I(f's_mul_i32 s{S_T0}, s{S_T0}, 3584'); I(f's_lshl_b32 s{S_T1}, s87, 7'); I(f's_add_u32 s{S_T0}, s{S_T0}, s{S_T1}')
        for q in range(4):
            I(f'buffer_load_dword v12, v7, {srd(SRD_W)}, s{S_T0} offen', tag='touch')
            if q<3: I(f's_add_u32 s{S_T0}, s{S_T0}, {512*3584}')
    def q_w3(self):
        I=self.I
        def xpair(p):
            def f():
                L=self.newlabel('xw3')
                I(f's_add_u32 s100, s{S_W}, {3*p}'); I('s_cmp_ge_u32 s100, 8'); I(f's_cbranch_scc1 {L}')
                snap=self.snapshot()
                I('s_lshl_b32 s101, s100, 4'); I(f'v_xor_b32 v238, s101, v{V_L16}')
                I('s_lshr_b32 s101, s100, 1'); I('s_lshl_b32 s101, s101, 4'); I('s_and_b32 s100, s100, 1'); I('s_lshl_b32 s100, s100, 1')
                I('s_add_u32 s100, s100, s101'); I('s_add_u32 s100, s100, 12'); I('s_mul_i32 s100, s100, 896')
                I(f's_lshl_b32 s101, s{S_C}, 6'); I('s_mul_i32 s101, s101, 896'); I('s_add_u32 s101, s101, s100')
                I('s_mov_b32 exec_hi, 0x00ffffff')
                I(f's_add_u32 m0, s100, {LDS_X}'); I('s_nop 0')
                I(f'buffer_load_dwordx4 v238, {srd(SRD_X)}, s101 offen lds', tag='x64')
                I(f's_add_u32 m0, s100, {LDS_X+896}'); I('s_add_u32 s101, s101, 896')
                I(f'buffer_load_dwordx4 v238, {srd(SRD_X)}, s101 offen lds', tag='x64')
                I('s_mov_b32 exec_hi, -1')
                self.label(L); self.merge(snap); self.vm['x64']=0
            return f
        def bblock(p):
            def f():
                L=self.newlabel('bw3'); Li=self.newlabel('bw3i')
                I(f's_add_u32 s100, s{S_W}, {3*p}'); I('s_cmp_ge_u32 s100, 8'); I(f's_cbranch_scc1 {L}')
                snap=self.snapshot()
                I('s_and_b32 s101, s100, 3'); I('s_sub_u32 s91, 0, s101'); I('s_and_b32 s91, s91, 3'); I('s_lshl_b32 s91, s91, 4')
                I(f'v_xor_b32 v238, s91, v{V_L16}')
                I('s_bitcmp1_b32 s100, 2')
                I(f's_cselect_b32 s{SRD_OUT}, s{P_BIM}, s{P_BRE}'); I(f's_cselect_b32 s{SRD_OUT+1}, s{P_BIM+1}, s{P_BRE+1}')
                I('s_cselect_b32 s100, 13312, 0')
                I('s_mul_i32 s91, s101, 3328'); I('s_add_u32 s100, s100, s91'); I(f's_add_u32 s100, s100, {LDS_Y+3*YW}')
                I('s_mul_i32 s101, s101, 3584')
                I(f's_lshl_b32 s91, s{S_G}, 6'); I('s_add_u32 s91, s91, 48'); I('s_mul_i32 s91, s91, 896'); I('s_add_u32 s101, s101, s91')
                I('s_mov_b32 exec_hi, 0x000fffff')
                for r in range(4):
                    I(f's_add_u32 m0, s100, {r*832}')
                    if r: I('s_add_u32 s101, s101, 896')
                    else: I('s_nop 0')
                    I(f'buffer_load_dwordx4 v238, {srd(SRD_OUT)}, s101 offen lds', tag='bdma')
                I('s_mov_b32 exec_hi, -1')
                self.label(L); self.merge(snap); self.vm['bdma']=0
            return f
        return [xpair(p) for p in range(3)], [bblock(p) for p in range(3)]
    def dma_setup(self):
        I=self.I
        for n,h in enumerate((0,3,2,1)): I(f'v_xor_b32 v{224+n}, {h<<4}, v{V_L16}')
        for g in range(8): I(f'v_xor_b32 v{228+g}, {g<<4}, v{V_L16}')
        I(f's_lshl_b32 s{S_T0}, s{S_G}, 6'); I(f's_lshl_b32 s{S_T1}, s{S_W}, 4'); I(f's_add_u32 s88, s{S_T0}, s{S_T1}')
        I('s_mul_i32 s89, s88, 896')
        I(f's_lshl_b32 s{S_T0}, s{S_C}, 6'); I(f's_lshl_b32 s{S_T1}, s{S_W}, 2'); I(f's_add_u32 s{S_T0}, s{S_T0}, s{S_T1}')
        I(f's_mul_i32 s92, s{S_T0}, 896')
        I(f's_mul_i32 s93, s{S_W}, 3584')
        I(f'v_and_b32 v7, 15, v{V_LANE}'); I('v_mul_u32_u24 v236, 896, v7'); I(f'v_lshrrev_b32 v9, 4, v{V_LANE}'); I('v_lshlrev_b32 v9, 4, v9')
        I('v_add_u32 v236, v236, v9')
        if self.opt.b13dma:
            I(f'v_lshrrev_b32 v9, 2, v{V_LANE}'); I('v_mul_u32_u24 v236, 896, v9'); I(f'v_and_b32 v9, 3, v{V_LANE}'); I('v_lshlrev_b32 v9, 4, v9')
            I('v_add_u32 v236, v236, v9'); I('v_add_u32 v236, 832, v236')
        I('v_add_u32 v237, s88, v7'); I('v_lshlrev_b32 v237, 1, v237')
    def q_b(self):
        I=self.I
        def row(im,n):
            def f():
                self.row_exec('0x000fffff')
                I(f's_add_u32 m0, s{S_YB}, {im*13312+n*832}')
                I(f's_add_u32 s91, s89, {n*896}')
                I(f'buffer_load_dwordx4 v{224+(n>>2)}, {srd(SRD_1 if im==0 else SRD_2)}, s91 offen lds', tag='bdma'); self.nb+=1
                self.row_exec_done()
            return f
        for im in range(2):
            for n in range(16): self.q.append(row(im,n))
        def b13(srdn,dst):
            def f():
                self.row_exec('-1')
                I(f'buffer_load_dwordx4 {vr(dst,4)}, v236, {srd(srdn)}, s89 offen offset:832', tag='b13'); self.nb+=1
            return f
        if self.opt.w1touch=='W':
            self.b13_loads=lambda: (b13(SRD_1,V_BF+52)(), b13(SRD_2,V_BF+56+52)())
        elif not self.opt.b13dma:
            self.q.append(b13(SRD_1,V_BF+52)); self.q.append(b13(SRD_2,V_BF+56+52))
        def lam():
            I(f'global_load_ushort v{V_IN}, v237, {sp(P_LRE)}', tag='lam')
            I(f'global_load_ushort v{V_IN+1}, v237, {sp(P_LIM)}', tag='lam')
            I(f'global_load_ushort v{V_IN+2}, v237, {sp(P_LDT)}', tag='lam')
        self.q.insert(0,lam)
    def q_x(self, alist):
        I=self.I
        def row(a,b):
            def f():
                g=2*a+(b>>1); d=(16*a+b)*896
                self.row_exec('0x00ffffff')
                I(f's_add_u32 m0, s93, {LDS_X+d}')
                I(f's_add_u32 s91, s92, {d}')
                I(f'buffer_load_dwordx4 v{228+g}, {srd(SRD_X)}, s91 offen lds', tag='x64'); self.nx+=1
                self.row_exec_done()
            return f
        for a in alist:
            for b in range(4): self.q.append(row(a,b))
    def b_read(self):
        I=self.I
        I(f'v_and_b32 v7, 15, v{V_LANE}'); I(f'v_lshrrev_b32 v8, 4, v{V_LANE}'); I('v_lshrrev_b32 v9, 2, v7')
        I('v_sub_u32 v9, 0, v9'); I('v_and_b32 v9, 3, v9'); I('v_xor_b32 v8, v8, v9')
        I('v_lshlrev_b32 v8, 4, v8'); I('v_mul_u32_u24 v7, 832, v7'); I('v_add_u32 v7, v7, v8'); I(f'v_add_u32 v7, s{S_YB}, v7')
        if self.opt.w1touch!='W': self.wait(vm=['bdma'])
        for im in range(2):
            for j in range(13):
                I(f'ds_read_b128 {vr(V_BF+56*im+4*j,4)}, v7 offset:{im*13312+j*64}', tag='brd')
    def touch_pf(self, which):
        I=self.I
        if which==1: pitch,nrow,nt,srdn=3584,512,8,SRD_W
        else:
            pitch,nrow,nt,srdn=4096,448,7,SRD_OUT
            self.make_srd(SRD_OUT, P_W2, 1792*4096)
        I(f'v_lshrrev_b32 v7, 2, v{V_LANE}'); I(f'v_and_b32 v8, 3, v{V_LANE}')
        if which==1:
            I(f's_and_b32 s{S_T1}, s95, 1'); I(f's_sub_u32 s{S_T1}, 3, s{S_T1}'); I(f'v_min_u32 v8, s{S_T1}, v8')
        I(f'v_mul_u32_u24 v7, {pitch}, v7'); I('v_lshlrev_b32 v8, 7, v8'); I('v_add_u32 v7, v7, v8')
        I(f's_mul_i32 s{S_T0}, s{S_W}, {nrow}'); I(f's_sub_u32 s{S_T1}, s86, 28'); I(f's_lshl_b32 s{S_T1}, s{S_T1}, 4'); I(f's_add_u32 s{S_T0}, s{S_T0}, s{S_T1}')
        I(f's_mul_i32 s{S_T0}, s{S_T0}, {pitch}')
        if which==1: I(f's_lshl_b32 s{S_T1}, s87, 7')
        else: I(f's_lshl_b32 s{S_T1}, s95, 9')
        I(f's_add_u32 s{S_T0}, s{S_T0}, s{S_T1}')
        for t in range(nt):
            I(f'buffer_load_dword v12, v7, {srd(srdn)}, s{S_T0} offen', tag='touch2')
            if t<nt-1: I(f's_add_u32 s{S_T0}, s{S_T0}, {64*pitch}')
    def ln8(self, oct=2, clears=True):
        I=self.I
        D=list(range(V_T,V_T+8)); SUM,SSQ,S2,Q2=24,25,26,27; R,C=28,30; TM=[32,34,36,38]
        self.wait(vm=['x8'])
        def reduce32():
            for rot in (8,4,2,1):
                I(f'v_add_f32_dpp v{SUM}, v{SUM}, v{SUM} row_ror:{rot} row_mask:0xf bank_mask:0xf')
                I(f'v_add_f32_dpp v{SSQ}, v{SSQ}, v{SSQ} row_ror:{rot} row_mask:0xf bank_mask:0xf')
            I(f'v_mov_b32 v{S2}, v{SUM}'); I(f'v_mov_b32 v{Q2}, v{SSQ}')
            I(f'v_permlane16_swap_b32 v{SUM}, v{S2}'); I(f'v_permlane16_swap_b32 v{SSQ}, v{Q2}')
            I(f'v_add_f32 v{SUM}, v{SUM}, v{S2}'); I(f'v_add_f32 v{SSQ}, v{SSQ}, v{Q2}')
        self.dot_sums(D,[SUM,SSQ,S2,Q2]); reduce32()
        self.ln_stats(SUM,SSQ,R,C,None)
        if clears and self.opt.w1touch=='W' and not self.opt.notouch3:
            Lt=self.newlabel('notouch')
            I(f's_cmp_lg_u32 s{S_W}, 3'); I(f's_cbranch_scc1 {Lt}')
            snap=self.snapshot()
            self.touch_w1_wg()
            self.label(Lt); self.merge(snap)
        I(f'v_and_b32 v7, 31, v{V_LANE}'); I('v_cmp_gt_u32 vcc, 28, v7')
        I(f'v_cndmask_b32 v{R}, 0, v{R}, vcc'); I(f'v_cndmask_b32 v{C}, 0, v{C}, vcc')
        self.normalize(D,R,C,TM)
        self.dot_sums(D,[SUM,SSQ,S2,Q2]); reduce32()
        self.ln_stats(SUM,SSQ,R,C,None)
        self.normalize(D,R,C,TM)
        self.auto=0
        I(f'v_lshrrev_b32 v8, 5, v{V_LANE}'); I(f's_lshl_b32 s{S_T0}, s{S_W}, 1'); I(f'v_add_u32 v8, s{S_T0}, v8')
        I('v_mul_u32_u24 v8, 960, v8'); I('v_lshlrev_b32 v9, 5, v7'); I('v_add_u32 v8, v8, v9'); I(f'v_add_u32 v8, {LDS_LN8}, v8')
        self.exec_set('0x0fffffff','0x0fffffff')
        I(f'ds_write_b128 v8, {vr(V_T,4)} offset:0'); I(f'ds_write_b128 v8, {vr(V_T+4,4)} offset:16')
        self.exec_full()
        self.wait(lg='all'); I('s_barrier')
        I(f'v_and_b32 v7, 15, v{V_LANE}'); I('v_lshrrev_b32 v8, 2, v7'); I('v_mul_u32_u24 v8, 960, v8')
        I(f'v_lshrrev_b32 v9, 4, v{V_LANE}'); I('v_lshlrev_b32 v10, 5, v9'); I('v_add_u32 v8, v8, v10')
        I(f'v_and_b32 v10, 3, v{V_LANE}'); I('v_lshlrev_b32 v10, 3, v10'); I('v_add_u32 v8, v8, v10')
        I(f's_lshl_b32 s{S_T0}, s{S_W}, 7'); I(f's_add_u32 s{S_T0}, s{S_T0}, {LDS_LN8}'); I(f'v_add_u32 v8, s{S_T0}, v8')
        I('v_lshlrev_b32 v9, 10, v9'); I('v_lshlrev_b32 v7, 4, v7'); I('v_add_u32 v9, v9, v7')
        I(f's_lshr_b32 s{S_T0}, s{oct}, 2'); I(f's_lshl_b32 s{S_T0}, s{S_T0}, 12')
        I(f's_and_b32 s{S_T1}, s{oct}, 3'); I(f's_lshl_b32 s{S_T1}, s{S_T1}, 8'); I(f's_add_u32 s{S_T0}, s{S_T0}, s{S_T1}')
        I(f's_lshl_b32 s{S_T1}, s{S_W}, 18'); I(f's_add_u32 s{S_T0}, s{S_T0}, s{S_T1}')
        if self.opt.w1touch=='W':
            Lno=self.newlabel('ln8none'); L6=self.newlabel('ln8no6')
            I(f's_cmp_eq_u32 s{S_W}, 3'); I(f's_cbranch_scc1 {Lno}')
            snap=self.snapshot()
            for i in range(2):
                I(f'ds_read_b64_tr_b16 v[{16+4*i}:{17+4*i}], v8 offset:{384*i}', tag='t0')
                I(f'ds_read_b64_tr_b16 v[{18+4*i}:{19+4*i}], v8 offset:{384*i+3840}', tag='t0')
            I(f's_add_u32 s{S_T1}, s{S_T0}, {3*262144}')
            self.wait(lg='all')
            I(f'buffer_store_dwordx4 v[16:19], v9, {srd(SRD_WS)}, s{S_T0} offen sc1', tag='st0')
            I(f'buffer_store_dwordx4 v[20:23], v9, {srd(SRD_WS)}, s{S_T1} offen sc1', tag='st0')
            I(f's_cmp_lg_u32 s{S_W}, 0'); I(f's_cbranch_scc1 {L6}')
            I(f'ds_read_b64_tr_b16 v[24:25], v8 offset:768', tag='t0')
            I(f'ds_read_b64_tr_b16 v[26:27], v8 offset:{768+3840}', tag='t0')
            I(f's_add_u32 s{S_T1}, s{S_T0}, {6*262144}')
            self.wait(lg='all')
            I(f'buffer_store_dwordx4 v[24:27], v9, {srd(SRD_WS)}, s{S_T1} offen sc1', tag='st0')
            self.label(L6)
            self.label(Lno); self.merge(snap); self.vm['st0']=0
        else:
            I(f'ds_read_b64_tr_b16 v[16:17], v8 offset:0', tag='t0')
            I(f'ds_read_b64_tr_b16 v[18:19], v8 offset:3840', tag='t0')
            Lskip=self.newlabel('ln8skip')
            I(f's_cmp_eq_u32 s{S_W}, 3'); I(f's_cbranch_scc1 {Lskip}')
            snap=self.snapshot()
            I(f'ds_read_b64_tr_b16 v[20:21], v8 offset:512', tag='t1')
            I(f'ds_read_b64_tr_b16 v[22:23], v8 offset:{512+3840}', tag='t1')
            I(f's_add_u32 s{S_T1}, s{S_T0}, {4*262144}')
            self.wait(lg='all')
            I(f'buffer_store_dwordx4 v[20:23], v9, {srd(SRD_WS)}, s{S_T1} offen sc1', tag='st0')
            self.label(Lskip); self.merge(snap)
            self.wait(lg='all')
            I(f'buffer_store_dwordx4 v[16:19], v9, {srd(SRD_WS)}, s{S_T0} offen sc1', tag='st0')
        if not clears:
            I('s_barrier'); return
        Ln=self.newlabel('noclr')
        I(f's_cmp_lg_u32 s{S_W}, {1 if self.opt.w1touch=="W" else 3}'); I(f's_cbranch_scc1 {Ln}')
        snap=self.snapshot()
        I('v_mov_b32 v8, 0')
        I('v_mov_b32 v10, -1'); I('v_mov_b32 v11, -1'); I(f'v_lshlrev_b32 v9, 3, v{V_LANE}')
        I(f's_lshl_b32 s{S_T0}, s{S_G}, 5'); I(f's_add_u32 s{S_T0}, s{S_T0}, s{S_C}'); I(f's_lshl_b32 s{S_T0}, s{S_T0}, 9')
        I(f's_add_u32 s{S_T0}, s{S_T0}, {WS_E}')
        I(f'buffer_store_dwordx2 v[10:11], v9, {srd(SRD_WS)}, s{S_T0} offen sc1', tag='st0')
        I(f's_mul_i32 s{S_T0}, s{S_C}, 7'); I(f's_add_u32 s{S_T0}, s{S_T0}, s{S_G}'); I(f's_lshl_b32 s{S_T0}, s{S_T0}, 6')
        I(f's_add_u32 s{S_T0}, s{S_T0}, {WS_FH}')
        I('v_mov_b32 v10, 0')
        self.exec_set(1,0)
        I(f'buffer_store_dword v10, v8, {srd(SRD_WS)}, s{S_T0} offen sc1', tag='st0')
        Lg=self.newlabel('nog1clr'); Lc=self.newlabel('nocclr')
        I(f's_cmp_eq_u32 s{S_HASG1}, 0'); I(f's_cbranch_scc1 {Lg}')
        I(f's_mul_i32 s{S_T0}, s{S_DT1}, 28'); I(f's_add_u32 s{S_T0}, s{S_T0}, s{S_FT}'); I(f's_lshl_b32 s{S_T0}, s{S_T0}, 6')
        I(f's_add_u32 s{S_T0}, s{S_T0}, {WS_FG}')
        I(f'buffer_store_dword v10, v8, {srd(SRD_WS)}, s{S_T0} offen sc1', tag='st0')
        self.label(Lg)
        I('s_cmp_lg_u32 s95, 0'); I(f's_cbranch_scc1 {Lc}')
        I(f's_lshl_b32 s{S_T0}, s86, 6'); I(f's_add_u32 s{S_T0}, s{S_T0}, {WS_FC}')
        I(f'buffer_store_dword v10, v8, {srd(SRD_WS)}, s{S_T0} offen sc1', tag='st0')
        self.label(Lc)
        self.exec_full()
        self.label(Ln); self.merge(snap); self.vm['st0']=0
        I('s_barrier')

    def ln8_extra(self):
        I=self.I
        L=self.newlabel('noextra'); Lp=self.newlabel('extra')
        I(f's_cmp_lg_u32 s{S_HASG1}, 0'); I(f's_cbranch_scc1 {L}')
        snap=self.snapshot()
        I('s_lshr_b32 s3, s95, 1'); I('s_mul_i32 s3, s3, 7'); I('s_add_u32 s3, s3, s86'); I('s_add_u32 s3, s3, 203')
        self.label(Lp)
        self.x8_issue(3)
        I('s_waitcnt vmcnt(0)'); self.vm={}; self.vm['x8']=0
        self.ln8(oct=3, clears=False)
        I('s_add_u32 s3, s3, 28'); I('s_cmp_lt_u32 s3, 256'); I(f's_cbranch_scc1 {Lp}')
        I('s_waitcnt vmcnt(0)')
        self.label(L); self.restore(snap); self.vm['st0']=min(self.vm.get('st0',0),0)

    def arrive0(self):
        I=self.I
        self.wait(vm=['st0']); I('s_barrier')
        L=self.newlabel('arr')
        I(f's_cmp_lg_u32 s{S_W}, 0'); I(f's_cbranch_scc1 {L}')
        snap=self.snapshot()
        I('s_and_b32 s3, s2, 3'); I('s_lshl_b32 s3, s3, 6'); I('v_mov_b32 v8, s3'); I('v_mov_b32 v9, 1')
        self.exec_set(1,0)
        I(f'global_atomic_add v8, v9, {sp(P_DBG)} sc1')
        self.exec_full()
        self.label(L); self.merge(snap)

    def w1_setup(self):
        I=self.I
        self.ring_setup(3584, S_WH)
        I(f's_mul_i32 s{S_WBEG}, s{S_W}, {512*3584}'); I(f's_lshl_b32 s{S_T0}, s{S_FT}, 7'); I(f's_add_u32 s{S_WBEG}, s{S_WBEG}, s{S_T0}')
        I(f's_mov_b32 s{S_WO}, s{S_WBEG}')

    def lam_consts(self):
        I=self.I
        LRE,LIM,LDT=V_IN,V_IN+1,V_IN+2
        t=list(range(16,40))
        self.wait(vm=['lam'])
        for r in (LRE,LIM,LDT): I(f'v_lshlrev_b32 v{r}, 16, v{r}')
        I(f'v_mul_f32 v{LDT}, 0x3fb8aa3b, v{LDT}'); I(f'v_exp_f32 v{LDT}, v{LDT}')
        self.rnd_bf16(LDT)
        I(f'v_mul_f32 v16, v{LDT}, v{LRE}'); I(f'v_mul_f32 v17, v{LDT}, v{LIM}')
        I('v_mul_f32 v16, 0x3fb8aa3b, v16'); I('v_mul_f32 v17, 0.15915494, v17')
        I('v_exp_f32 v16, v16'); I('v_fract_f32 v17, v17')
        I('v_cos_f32 v18, v17'); I('v_sin_f32 v19, v17')
        I(f'v_mul_f32 v{V_LR}, v16, v18'); I(f'v_mul_f32 v{V_LI}, v16, v19')
        I(f'v_add_f32 v16, -1.0, v{V_LR}')
        I(f'v_mul_f32 v17, v{LRE}, v{LRE}'); I(f'v_fma_f32 v17, v{LIM}, v{LIM}, v17'); I('v_rcp_f32 v17, v17')
        I(f'v_mul_f32 v18, v16, v{LRE}'); I(f'v_fma_f32 v18, v{V_LI}, v{LIM}, v18')
        I(f'v_mul_f32 v19, v16, v{LIM}'); I(f'v_fma_f32 v19, v{V_LI}, v{LRE}, -v19')
        I('v_add_f32 v17, v17, v17')
        I(f'v_mul_f32 v{V_K1}, v18, v17'); I(f'v_mul_f32 v{V_K2}, v19, v17'); I(f'v_sub_f32 v{V_K2}, 0, v{V_K2}')
        self.csq(16,17,V_LR,V_LI,30); self.csq(18,19,16,17,30); self.csq(16,17,18,19,30); self.csq(20,21,16,17,30)
        self.csq(22,23,20,21,30)
        self.cmul(24,25,22,23,20,21,30,31)
        self.csq(V_L64R,V_L64I,22,23,30)
        self.csq(16,17,V_L64R,V_L64I,30); self.csq(18,19,16,17,30); self.csq(V_L512R,V_L512I,18,19,30)
        I(f'v_mov_b32 v{V_PR}, 1.0'); I(f'v_mov_b32 v{V_PI}, 0')
        for (lo,hi,r) in (('0xffff0000','-1',20),('0','-1',22),('0','0xffff0000',24)):
            self.exec_set(lo,hi); I(f'v_mov_b32 v{V_PR}, v{r}'); I(f'v_mov_b32 v{V_PI}, v{r+1}')
        self.exec_full()
        I(f'v_mov_b32 v{V_IN}, v20'); I(f'v_mov_b32 v{V_IN+1}, v21')

    def x_addr(self):
        I=self.I
        I(f'v_and_b32 v7, 15, v{V_LANE}'); I('v_lshrrev_b32 v8, 2, v7'); I('v_lshlrev_b32 v8, 4, v8')
        I('v_and_b32 v9, 3, v7'); I('v_add_u32 v8, v8, v9'); I('v_mul_u32_u24 v8, 896, v8')
        I(f'v_lshrrev_b32 v9, 4, v{V_LANE}'); I('v_lshrrev_b32 v7, 1, v7'); I('v_xor_b32 v9, v9, v7'); I('v_lshlrev_b32 v9, 4, v9')
        I('v_add_u32 v14, v8, v9'); I('v_xor_b32 v15, 64, v14')
    def ln64(self):
        I=self.I
        D=list(range(V_X64,V_X64+56)); SUM,SSQ,S2,Q2=24,25,26,27; R,C=28,30; TM=[32,34,36,38]
        I(f's_mul_i32 s{S_T0}, s{S_W}, 3584'); I(f'v_add_u32 v22, s{S_T0}, v14'); I(f'v_add_u32 v23, s{S_T0}, v15')
        self.allow_bread=True
        while self.nx<16: self.tick()
        if self.opt.w1touch!='W': self.wait(vm=['x64'])
        for j in range(14):
            I(f'ds_read_b128 {vr(V_X64+4*j,4)}, v{22+(j&1)} offset:{LDS_X+(j>>1)*128}', tag=('xr',j))
        accs=[SUM,SSQ,S2,Q2]
        for n,d in enumerate(D):
            if n%4==0: self.wait(lg=[('xr',n//4)])
            sa,qa = accs[2*(n&1)], accs[2*(n&1)+1]
            if n<2:
                I(f'v_dot2_f32_bf16 v{sa}, v{d}, s{S_ONES}, 0'); I(f'v_dot2_f32_bf16 v{qa}, v{d}, v{d}, 0')
            else:
                I(f'v_dot2_f32_bf16 v{sa}, v{d}, s{S_ONES}, v{sa}'); I(f'v_dot2_f32_bf16 v{qa}, v{d}, v{d}, v{qa}')
        I(f'v_add_f32 v{SUM}, v{SUM}, v{S2}'); I(f'v_add_f32 v{SSQ}, v{SSQ}, v{Q2}')
        for sw in ('16','32'):
            I(f'v_mov_b32 v{S2}, v{SUM}'); I(f'v_mov_b32 v{Q2}, v{SSQ}')
            I(f'v_permlane{sw}_swap_b32 v{SUM}, v{S2}'); I(f'v_permlane{sw}_swap_b32 v{SSQ}, v{Q2}')
            I(f'v_add_f32 v{SUM}, v{SUM}, v{S2}'); I(f'v_add_f32 v{SSQ}, v{SSQ}, v{Q2}')
        self.stamp('dots',fine=True)
        self.ln_stats(SUM,SSQ,R,C,None)
        self.allow_bread=True
        def h(n):
            I(f'ds_write_b128 v{22+(n&1)}, {vr(V_X64+4*n,4)} offset:{LDS_X+(n>>1)*128}', tag='xw')
        self.normalize(D,R,C,TM,hook=h)

    def row_stats(self):
        I=self.I
        D=list(range(V_X64,V_X64+56)); SUM,SSQ,S2,Q2=24,25,26,27; R,C=28,30
        I(f's_mul_i32 s{S_T0}, s{S_W}, 3584'); I(f'v_add_u32 v22, s{S_T0}, v14'); I(f'v_add_u32 v23, s{S_T0}, v15')
        for j in range(14):
            I(f'ds_read_b128 {vr(V_X64+4*j,4)}, v{22+(j&1)} offset:{LDS_X+(j>>1)*128}', tag=('xr',j))
        accs=[SUM,SSQ,S2,Q2]
        for n,d in enumerate(D):
            if n%4==0: self.wait(lg=[('xr',n//4)])
            sa,qa = accs[2*(n&1)], accs[2*(n&1)+1]
            if n<2:
                I(f'v_dot2_f32_bf16 v{sa}, v{d}, s{S_ONES}, 0'); I(f'v_dot2_f32_bf16 v{qa}, v{d}, v{d}, 0')
            else:
                I(f'v_dot2_f32_bf16 v{sa}, v{d}, s{S_ONES}, v{sa}'); I(f'v_dot2_f32_bf16 v{qa}, v{d}, v{d}, v{qa}')
        I(f'v_add_f32 v{SUM}, v{SUM}, v{S2}'); I(f'v_add_f32 v{SSQ}, v{SSQ}, v{Q2}')
        for sw in ('16','32'):
            I(f'v_mov_b32 v{S2}, v{SUM}'); I(f'v_mov_b32 v{Q2}, v{SSQ}')
            I(f'v_permlane{sw}_swap_b32 v{SUM}, v{S2}'); I(f'v_permlane{sw}_swap_b32 v{SSQ}, v{Q2}')
            I(f'v_add_f32 v{SUM}, v{SUM}, v{S2}'); I(f'v_add_f32 v{SSQ}, v{SSQ}, v{Q2}')
        self.ln_stats(SUM,SSQ,R,C,None)
        I(f'v_and_b32 v8, 15, v{V_LANE}'); I('v_lshlrev_b32 v8, 2, v8'); I(f's_add_u32 s{S_T0}, s{S_YB}, 24576'); I(f'v_add_u32 v8, s{S_T0}, v8')
        self.exec_set('0xffff','0')
        I(f'ds_write_b32 v8, v{SUM}', tag='stw'); I(f'ds_write_b32 v8, v{R} offset:64', tag='stw')
        self.exec_full()
    def stat_reads(self):
        I=self.I
        self.wait(lg=['stw']); I('s_barrier')
        I(f'v_lshrrev_b32 v8, 4, v{V_LANE}'); I('v_lshlrev_b32 v8, 4, v8'); I(f'v_add_u32 v8, {LDS_Y+24576}, v8'); I(f'v_add_u32 v9, {2*YW}, v8')
        for i in range(4):
            I(f'ds_read_b128 {vr(16+4*i,4)}, v{8+(i>>1)} offset:{(i&1)*YW}', tag='stat')
            I(f'ds_read_b128 {vr(88+4*i,4)}, v{8+(i>>1)} offset:{(i&1)*YW+64}', tag='stat')
    def bu_gemm(self):
        I=self.I
        BUF=[V_X64, V_X64+16]
        for r in range(4): I(f'v_mov_b32 v{36+r}, s{S_ONES}')
        def rd(j):
            for i in range(4):
                I(f'ds_read_b128 {vr(BUF[j%2]+4*i,4)}, v{14+(j&1)} offset:{LDS_X+i*3584+(j>>1)*128}', tag=('xa',j))
        rd(0); rd(1)
        bup=self.auto
        for j in range(14):
            self.auto = bup if j>=self.opt.bupj else 0
            self.wait(lg=[('xa',j)])
            for im in range(2):
                d=104+4*im
                I(f'v_mfma_f32_16x16x32_bf16 {vr(d,4)}, v[36:39], {vr(V_BF+56*im+4*j,4)}, {vr(d,4) if j else 0}')
            for i in range(4):
                for im in range(2):
                    d=V_RAW+16*im+4*i
                    cin = vr(d,4) if j else '0'
                    I(f'v_mfma_f32_16x16x32_bf16 {vr(d,4)}, {vr(BUF[j%2]+4*i,4)}, {vr(V_BF+56*im+4*j,4)}, {cin}')
            if j+2<14: rd(j+2)
            if j==12:
                sv=self.auto; self.auto=0
                self.stat_reads(); self.auto=sv
    def stat_loads(self):
        I=self.I
        I(f'v_lshrrev_b32 v8, 4, v{V_LANE}'); I('v_lshlrev_b32 v8, 6, v8')
        I(f's_lshl_b32 s{S_T0}, s{S_C}, 8'); I(f's_add_u32 s{S_T0}, s{S_T0}, {WS_STAT}'); I(f's_add_u32 s{S_T1}, s{S_T0}, 8192')
        for n in range(4):
            I(f'buffer_load_dwordx4 {vr(16+4*n,4)}, v8, {srd(SRD_WS)}, s{S_T0} offen offset:{16*n} sc1', tag='stat')
            I(f'buffer_load_dwordx4 {vr(88+4*n,4)}, v8, {srd(SRD_WS)}, s{S_T1} offen offset:{16*n} sc1', tag='stat')
    def x_resid_reads(self):
        I=self.I
        I(f'v_and_b32 v8, 15, v{V_LANE}'); I(f'v_lshrrev_b32 v9, 4, v{V_LANE}')
        I('v_lshrrev_b32 v10, 1, v9'); I('v_bfe_u32 v11, v8, 1, 1'); I('v_xor_b32 v10, v10, v11')
        I(f's_xor_b32 s{S_T0}, s{S_WH}, s{S_WL}'); I(f's_lshl_b32 s{S_T0}, s{S_T0}, 2'); I(f'v_xor_b32 v10, s{S_T0}, v10')
        I('v_lshlrev_b32 v10, 4, v10'); I('v_and_b32 v9, 1, v9'); I('v_lshlrev_b32 v9, 3, v9'); I('v_add_u32 v10, v10, v9')
        I(f's_lshl_b32 s{S_T0}, s{S_WL}, 5'); I(f'v_add_u32 v8, s{S_T0}, v8'); I('v_mul_u32_u24 v8, 896, v8'); I('v_add_u32 v8, v8, v10')
        I(f's_lshl_b32 s{S_T0}, s{S_G}, 7'); I(f'v_add_u32 v8, s{S_T0}, v8'); I('v_xor_b32 v9, 32, v8')
        for y in range(2):
            for x in range(2):
                I(f'ds_read_b64 {vr(V_XR+4*y+2*x,2)}, v{8+(x^y)} offset:{LDS_X+y*14336}', tag='xres')
    def ln_fix(self):
        I=self.I
        self.wait(lg=['stat'])
        for im in range(2):
            sb=104+4*im
            for t in range(0,16,2):
                r=V_RAW+16*im+t
                I(f'v_pk_fma_f32 v[{r}:{r+1}], v[{16+t}:{17+t}], v[{sb}:{sb+1}], v[{r}:{r+1}] neg_lo:[1,0,0] neg_hi:[1,0,0]')
            for t in range(0,16,2):
                r=V_RAW+16*im+t
                I(f'v_pk_mul_f32 v[{r}:{r+1}], v[{r}:{r+1}], v[{88+t}:{89+t}]')

    def scan1(self):
        I=self.I
        ER,EI,T0,T1=16,17,18,19
        L16R,L16I=V_IN,V_IN+1
        I(f'v_mov_b32 v{ER}, v{V_RAW}'); I(f'v_mov_b32 v{EI}, v{V_RAW+16}')
        for t in range(1,16):
            I(f'v_fma_f32 v{T0}, v{V_LR}, v{ER}, v{V_RAW+t}')
            I(f'v_fma_f32 v{T1}, v{V_LR}, v{EI}, v{V_RAW+16+t}')
            I(f'v_fma_f32 v{T0}, -v{V_LI}, v{EI}, v{T0}')
            I(f'v_fma_f32 v{EI}, v{V_LI}, v{ER}, v{T1}')
            ER,T0=T0,ER
        GR=[20,21,22,23]; GI=[24,25,26,27]
        self.allgather_q(ER,*GR); self.allgather_q(EI,*GI)
        for q in range(1,4):
            self.cfma(GR[q],GI[q],L16R,L16I,GR[q-1],GI[q-1],GR[q],GI[q],28,29)
        I(f'v_mov_b32 v{V_SR}, 0'); I(f'v_mov_b32 v{V_SI}, 0')
        for n,(lo,hi) in enumerate((('0xffff0000','-1'),('0','-1'),('0','0xffff0000'))):
            self.exec_set(lo,hi); I(f'v_mov_b32 v{V_SR}, v{GR[n]}'); I(f'v_mov_b32 v{V_SI}, v{GI[n]}')
        self.exec_full()
        I(f'v_mov_b32 v10, v{GR[3]}'); I(f'v_mov_b32 v11, v{GI[3]}')
        I(f'v_lshlrev_b32 v8, 3, v{V_LANE}')
        I(f's_lshl_b32 s{S_T0}, s{S_G}, 5'); I(f's_add_u32 s{S_T0}, s{S_T0}, s{S_C}'); I(f's_lshl_b32 s{S_T0}, s{S_T0}, 9')
        I(f's_lshl_b32 s{S_T1}, s{S_W}, 7'); I(f's_add_u32 s{S_T0}, s{S_T0}, s{S_T1}'); I(f's_add_u32 s{S_T0}, s{S_T0}, {WS_E}')
        self.exec_set('0xffff',0)
        I(f'buffer_store_dwordx2 v[10:11], v8, {srd(SRD_WS)}, s{S_T0} offen sc1', tag='stE')
        self.exec_full()

    def wait_e0(self):
        I=self.I
        L=self.newlabel('e0'); D=self.newlabel('e0d')
        self.wait(vm=['e0c'])
        I('v_cmp_gt_u32 vcc, 64, v34'); I(f's_cbranch_vccz {D}')
        snap=self.snapshot()
        I(f's_mov_b32 s{S_BOUND}, 0x40000')
        self.label(L)
        I(f'global_load_dword v34, v35, {sp(P_DBG)} sc1'); I('s_waitcnt vmcnt(0)')
        I('v_cmp_gt_u32 vcc, 64, v34'); I(f's_cbranch_vccz {D}')
        I('s_sleep 4'); I(f's_sub_u32 s{S_BOUND}, s{S_BOUND}, 1'); I(f's_cbranch_scc0 {L}')
        self.label(D); self.restore(snap)

    def dedup_touch(self, sbase, nl=64, dst=13):
        I=self.I
        I(f'v_lshlrev_b32 v9, 7, v{V_LANE}')
        if nl<64: self.exec_set('-1','0')
        I(f'buffer_load_dword v{dst}, v9, {srd(SRD_WS)}, s{sbase} offen sc1', tag='touch')
        if nl<64: self.exec_full()
    def gemm1(self):
        I=self.I
        SL=[V_RING+16*i for i in range(6)]
        DEP=len(SL)
        I(f's_mul_i32 s22, s{S_DT1}, 262144'); I(f's_lshl_b32 s{S_T0}, s{S_W}, 16'); I(f's_add_u32 s22, s22, s{S_T0}')
        I(f's_lshl_b32 s{S_T0}, s{S_WL}, 11'); I(f's_xor_b32 s{S_T1}, s{S_T0}, 2048')
        I(f's_add_u32 s23, s22, s{S_T1}'); I(f's_add_u32 s22, s22, s{S_T0}')
        I(f's_mov_b32 s{S_A}, s22'); I(f's_mov_b32 s{S_B}, s23')
        def ld(k,y):
            r=SL[k%DEP]
            sx=S_A if y<2 else S_B
            I(f'buffer_load_dwordx4 {vr(r+4*y,4)}, v{V_L16}, {srd(SRD_WS)}, s{sx} offen offset:{(y&1)*1024} sc1', tag=('ht',k,y))
            if (y&1) and k<15: I(f's_add_u32 s{sx}, s{sx}, 4096')
        pro=[(k,y) for k in range(DEP) for y in range(4)]
        while pro:
            ld(*pro.pop(0))
            if self.R['iss']<self.R['n']: self.ring_tick()
            if self.opt.tHT and len(pro)==self.opt.tHTpos:
                I(f's_mul_i32 s{S_T2}, s86, 37'); I(f's_lshr_b32 s{S_T2}, s{S_T2}, 8'); I(f's_lshl_b32 s{S_T2}, s{S_T2}, 13')
                I(f's_mul_i32 s{S_T3}, s{S_DT1}, 262144'); I(f's_add_u32 s{S_T2}, s{S_T2}, s{S_T3}'); I(f's_lshl_b32 s{S_T3}, s{S_W}, 16')
                I(f's_add_u32 s{S_T2}, s{S_T2}, s{S_T3}'); I(f's_add_u32 s{S_T2}, s{S_T2}, {6*4096}')
                self.dedup_touch(S_T2,dst=12)
        self.ring_finish(); self.wait(lg='all')
        self.stamp('w1 in regs')
        self.w2_setup(); self.R['maxrd']=0
        for k in range(16):
            r=SL[k%DEP]
            for y in range(4):
                if self.opt.waitstep:
                    if y==0: self.wait(vm=[('ht',k,yy) for yy in range(4)])
                else: self.wait(vm=[('ht',k,y)])
                if y==0: self.stamp(f'g1.{k}',fine=3)
                for x in range(4):
                    d=V_ACC+16*x+4*y
                    cin=vr(d,4) if k else '0'
                    I(f'v_mfma_f32_16x16x32_bf16 {vr(d,4)}, {ar(16*k+4*x,4)}, {vr(r+4*y,4)}, {cin}')
                if k+DEP<16: ld(k+DEP,y)
                else:
                    self.R['maxrd']=k
                    self.tick()
        self.R['maxrd']=99
        self.stamp('g1loop')

    def p2_flag_addr(self):
        I=self.I
        I(f's_mul_i32 s{S_T0}, s{S_W}, 7'); I(f's_lshr_b32 s{S_T1}, s{S_T0}, 2')
        I(f's_mul_i32 s{S_T2}, s{S_C}, 7'); I(f's_add_u32 s{S_T2}, s{S_T2}, s{S_T1}')
        I(f's_add_u32 s{S_T3}, s{S_T0}, 6'); I(f's_lshr_b32 s{S_T3}, s{S_T3}, 2'); I(f's_sub_u32 s{S_T3}, s{S_T3}, s{S_T1}')
        I(f'v_min_u32 v14, s{S_T3}, v{V_LANE}'); I(f'v_add_u32 v14, s{S_T2}, v14'); I('v_lshlrev_b32 v14, 6, v14')
        I(f'v_add_u32 v14, {WS_FH}, v14')
        I(f'v_min_u32 v8, 13, v{V_LANE}'); I('v_lshlrev_b32 v9, 6, v8')
        I(f's_mul_i32 s{S_T1}, s{S_G}, 28'); I(f's_add_u32 s{S_T1}, s{S_T1}, s{S_T0}'); I(f's_lshl_b32 s{S_T1}, s{S_T1}, 6'); I(f's_add_u32 s{S_T1}, s{S_T1}, {WS_FG}')
        I(f's_lshl_b32 s{S_T0}, s{S_T0}, 6'); I(f's_add_u32 s{S_T0}, s{S_T0}, {WS_FC-7*64}')
        I(f'v_mov_b32 v10, s{S_T1}'); I(f'v_mov_b32 v11, s{S_T0}'); I('v_cmp_gt_u32 vcc, 7, v8'); I('v_cndmask_b32 v10, v11, v10, vcc')
        I('v_add_u32 v12, v9, v10')

    def e_addr(self):
        I=self.I
        OF=V_EOF
        I(f's_lshl_b32 s{S_T0}, s{S_G}, 14'); I(f's_add_u32 s{S_T0}, s{S_T0}, {WS_E}')
        I(f's_add_u32 s{SRD_1}, s{P_WS}, s{S_T0}'); I(f's_addc_u32 s{SRD_1+1}, s{P_WS+1}, 0')
        I(f's_and_b32 s{SRD_1+1}, s{SRD_1+1}, 0xffff'); I(f's_mov_b32 s{SRD_1+2}, 16384'); I(f's_mov_b32 s{SRD_1+3}, 0x20000')
        I(f'v_lshrrev_b32 v8, 4, v{V_LANE}'); I('v_lshlrev_b32 v8, 12, v8')
        I(f'v_and_b32 v9, 15, v{V_LANE}'); I('v_lshlrev_b32 v9, 3, v9'); I('v_add_u32 v8, v8, v9')
        I(f's_sub_u32 s{S_T0}, s{S_C}, 32'); I(f's_lshl_b32 s{S_T0}, s{S_T0}, 9'); I(f's_lshl_b32 s{S_T1}, s{S_W}, 7')
        I(f's_add_u32 s{S_T0}, s{S_T0}, s{S_T1}'); I(f'v_add_u32 v8, s{S_T0}, v8')
        for i in range(8): I(f'v_add_u32 v{OF+i}, {512*i}, v8')
    def e_loads(self):
        for i in range(8):
            self.I(f'buffer_load_dwordx2 {vr(V_EL+2*i,2)}, v{V_EOF+i}, {srd(SRD_1)}, 0 offen sc1', tag='E')

    def finalize(self):
        I=self.I
        EL=V_EL
        L=self.newlabel('pollE'); Dn=self.newlabel('pollEd')
        sv=self.auto; self.auto=0
        self.wait(vm=['E'])
        I(f's_mov_b32 s{S_BOUND}, 0x40000')
        self.label(L)
        I(f'v_max3_u32 v8, v{EL}, v{EL+1}, v{EL+2}')
        for i in range(3,15,2): I(f'v_max3_u32 v8, v8, v{EL+i}, v{EL+i+1}')
        I(f'v_max_u32 v8, v8, v{EL+15}')
        I('v_cmp_eq_u32 vcc, -1, v8')
        I(f's_cbranch_vccz {Dn}')
        snap=self.snapshot()
        self.e_loads()
        I('s_waitcnt vmcnt(0)')
        I('s_sleep 4'); I(f's_sub_u32 s{S_BOUND}, s{S_BOUND}, 1'); I(f's_cbranch_scc0 {L}')
        self.label(Dn); self.restore(snap)
        self.auto=sv
        yield
        QR,QI=EL,EL+1
        for i in range(1,8):
            self.cfma(QR,QI,V_L64R,V_L64I,QR,QI,EL+2*i,EL+2*i+1,36,37)
            yield
        GR=[20,21,22,23]; GI=[24,25,26,27]
        self.allgather_q(QR,*GR); yield
        self.allgather_q(QI,*GI); yield
        for q in range(1,4):
            self.cfma(GR[q],GI[q],V_L512R,V_L512I,GR[q-1],GI[q-1],GR[q],GI[q],28,29)
            yield
        self.cfma(V_SR,V_SI,V_PR,V_PI,GR[3],GI[3],V_SR,V_SI,28,29)
        yield
        HR,HI,T0,T1=V_SR,V_SI,36,37
        OR,OI=V_RAW,V_RAW+16
        for t in range(16):
            I(f'v_fma_f32 v{T0}, v{V_LR}, v{HR}, v{OR+t}')
            I(f'v_fma_f32 v{T1}, v{V_LR}, v{HI}, v{OI+t}')
            I(f'v_fma_f32 v{T0}, -v{V_LI}, v{HI}, v{T0}')
            I(f'v_fma_f32 v{HI}, v{V_LI}, v{HR}, v{T1}')
            HR,T0=T0,HR
            yield
            I(f'v_mul_f32 v{OR+t}, v{V_K1}, v{HR}'); I(f'v_mul_f32 v{OI+t}, v{V_K2}, v{HR}')
            I(f'v_fma_f32 v{OR+t}, v{V_K2}, v{HI}, v{OR+t}'); I(f'v_fma_f32 v{OI+t}, -v{V_K1}, v{HI}, v{OI+t}')
            yield
        for t in range(8):
            I(f'v_cvt_pk_bf16_f32 v{OR+t}, v{OR+2*t}, v{OR+2*t+1}'); I(f'v_cvt_pk_bf16_f32 v{OI+t}, v{OI+2*t}, v{OI+2*t+1}')
            if t%2: yield
        I(f'v_and_b32 v8, 15, v{V_LANE}'); I(f's_lshl_b32 s{S_T0}, s{S_WL}, 4'); I(f'v_add_u32 v8, s{S_T0}, v8')
        I('v_lshrrev_b32 v9, 3, v8'); I('v_lshlrev_b32 v9, 2, v9')
        yield
        I('v_and_b32 v10, 3, v8'); I('v_add_u32 v9, v9, v10')
        I('v_bfe_u32 v10, v8, 2, 1'); I('v_lshlrev_b32 v11, 4, v10'); I('v_add_u32 v9, v9, v11')
        yield
        I('v_and_b32 v11, 7, v9'); I('v_lshlrev_b32 v10, 2, v10'); I('v_xor_b32 v11, v11, v10')
        I(f'v_lshrrev_b32 v10, 4, v{V_LANE}'); I('v_lshlrev_b32 v10, 1, v10')
        yield
        I('v_xor_b32 v10, v10, v11'); I('v_lshlrev_b32 v10, 4, v10')
        I('v_lshlrev_b32 v9, 7, v9'); I('v_add_u32 v9, v9, v10')
        yield
        I(f's_lshl_b32 s{S_T0}, s{S_WH}, 12'); I(f'v_add_u32 v9, s{S_T0}, v9')
        I('v_xor_b32 v10, 16, v9')
        I('s_barrier')
        I(f'ds_write_b128 v9, {vr(OR,4)} offset:{LDS_X}', tag='hw'); I(f'ds_write_b128 v10, {vr(OR+4,4)} offset:{LDS_X}', tag='hw')
        I(f'ds_write_b128 v9, {vr(OI,4)} offset:{LDS_X+8192}', tag='hw'); I(f'ds_write_b128 v10, {vr(OI+4,4)} offset:{LDS_X+8192}', tag='hw')
        yield
        I(f'v_lshrrev_b32 v8, 2, v{V_LANE}'); I('v_and_b32 v9, 7, v8'); I(f'v_bfe_u32 v10, v{V_LANE}, 1, 1')
        I('v_xor_b32 v9, v9, v10'); I('v_lshlrev_b32 v9, 4, v9')
        yield
        I('v_lshlrev_b32 v8, 7, v8'); I('v_add_u32 v8, v8, v9')
        I(f'v_and_b32 v9, 1, v{V_LANE}'); I('v_lshlrev_b32 v9, 3, v9'); I('v_add_u32 v8, v8, v9')
        I(f's_lshl_b32 s{S_T0}, s{S_W}, 12'); I(f'v_add_u32 v8, s{S_T0}, v8')
        yield
        self.wait(lg=['hw']); I('s_barrier')
        FR=16
        for nb in range(4):
            I(f'v_xor_b32 v9, {nb<<5}, v8'); I('v_xor_b32 v10, 64, v9')
            I(f'ds_read_b64_tr_b16 {vr(FR+4*nb,2)}, v9 offset:{LDS_X}', tag=('hp',nb))
            I(f'ds_read_b64_tr_b16 {vr(FR+4*nb+2,2)}, v10 offset:{LDS_X+2048}', tag=('hp',nb))
        I(f's_mul_i32 s{S_T0}, s{S_C}, {28*4096}'); I(f's_lshl_b32 s{S_T1}, s{S_G}, 14'); I(f's_add_u32 s{S_T0}, s{S_T0}, s{S_T1}')
        I(f's_lshl_b32 s{S_T1}, s{S_W}, 12'); I(f's_add_u32 s{S_T0}, s{S_T0}, s{S_T1}'); I(f's_add_u32 s94, s{S_T0}, {WS_HP}')
        yield
        if self.opt.gearly: I(f'global_load_dword v53, v12, {sp(P_WS)} sc1', tag='fg')
        for nb in range(4):
            self.wait(lg=[('hp',nb)])
            I(f'buffer_store_dwordx4 {vr(FR+4*nb,4)}, v{V_L16}, {srd(SRD_WS)}, s94 offen offset:{nb*1024} sc1', tag='stH')
            yield

    def flag_set(self, sa, mul, sb, base):
        I=self.I
        L=self.newlabel('flag')
        I(f's_cmp_lg_u32 s{S_W}, 0'); I(f's_cbranch_scc1 {L}')
        snap=self.snapshot()
        I(f's_mul_i32 s{S_T0}, s{sa}, {mul}'); I(f's_add_u32 s{S_T0}, s{S_T0}, s{sb}'); I(f's_lshl_b32 s{S_T0}, s{S_T0}, 6')
        I(f's_add_u32 s{S_T0}, s{S_T0}, {base}')
        I('v_mov_b32 v8, 0'); I('v_mov_b32 v9, 1')
        self.exec_set(1,0)
        I(f'buffer_store_dword v9, v8, {srd(SRD_WS)}, s{S_T0} offen sc1')
        self.exec_full()
        self.label(L); self.merge(snap)

    def g_bias_load(self):
        I=self.I
        I(f'v_lshrrev_b32 v8, 4, v{V_LANE}'); I('v_lshlrev_b32 v8, 3, v8')
        I(f's_lshl_b32 s{S_T0}, s{S_FT}, 7'); I(f's_lshl_b32 s{S_T1}, s{S_WH}, 6'); I(f's_add_u32 s{S_T0}, s{S_T0}, s{S_T1}')
        I(f'v_add_u32 v8, s{S_T0}, v8')
        I(f'global_load_dwordx2 v[32:33], v8, {sp(P_B1)}', tag='b1')
        I(f'global_load_dwordx2 v[34:35], v8, {sp(P_B1)} offset:32', tag='b1')

    def g_epilogue(self):
        I=self.I
        I('s_barrier')
        self.auto=self.opt.gepip
        self.reduce(V_RING)
        self.wait(vm=['b1'])
        for x in range(2):
            for h in range(2):
                I(f'v_lshlrev_b32 v{16+4*x+2*h}, 16, v{32+2*x+h}'); I(f'v_and_b32 v{17+4*x+2*h}, s{S_MASK}, v{32+2*x+h}')
        C1=-2.0*0.7978845608028654*1.4426950408889634
        C3=C1*0.044715
        import struct
        f2h=lambda f:'0x%08x'%struct.unpack('<I',struct.pack('<f',f))[0]
        if self.opt.pkgelu:
            I(f's_mov_b32 s100, {f2h(C3)}'); I(f's_mov_b32 s101, {f2h(C3)}')
            I(f'v_mov_b32 v30, {f2h(C1)}'); I(f'v_mov_b32 v31, {f2h(C1)}')
            TT=V_RING
            P=[(V_ACC+16*x+4*y+2*h, 16+4*x+2*h) for x in range(2) for y in range(2) for h in range(2)]
            pr=lambda r:f'v[{r}:{r+1}]'
            for n,(u,b) in enumerate(P): I(f'v_pk_add_f32 {pr(u)}, {pr(u)}, {pr(b)}')
            for n,(u,b) in enumerate(P): I(f'v_pk_mul_f32 {pr(TT+2*n)}, {pr(u)}, {pr(u)}')
            for n,(u,b) in enumerate(P): I(f'v_pk_fma_f32 {pr(TT+2*n)}, {pr(TT+2*n)}, s[100:101], v[30:31]')
            for n,(u,b) in enumerate(P): I(f'v_pk_mul_f32 {pr(TT+2*n)}, {pr(TT+2*n)}, {pr(u)}')
            for n in range(16): I(f'v_exp_f32 v{TT+n}, v{TT+n}')
            for n,(u,b) in enumerate(P): I(f'v_pk_add_f32 {pr(TT+2*n)}, {pr(TT+2*n)}, 1.0 op_sel_hi:[1,0]')
            for n in range(16): I(f'v_rcp_f32 v{TT+n}, v{TT+n}')
            for n,(u,b) in enumerate(P): I(f'v_pk_mul_f32 {pr(u)}, {pr(u)}, {pr(TT+2*n)}')
        else:
            I(f's_mov_b32 s{S_T2}, {f2h(C1)}'); I(f's_mov_b32 s{S_T3}, {f2h(C3)}')
            I(f'v_mov_b32 v31, s{S_T2}')
            U=[]
            for x in range(2):
                for y in range(2):
                    for r in range(4):
                        U.append((V_ACC+16*x+4*y+r, 16+4*x+r))
            TT=V_RING
            for n,(u,b) in enumerate(U): I(f'v_add_f32 v{u}, v{u}, v{b}')
            for n,(u,b) in enumerate(U): I(f'v_mul_f32 v{TT+n}, v{u}, v{u}')
            for n,(u,b) in enumerate(U): I(f'v_fma_f32 v{TT+n}, v{TT+n}, s{S_T3}, v31')
            for n,(u,b) in enumerate(U): I(f'v_mul_f32 v{TT+n}, v{TT+n}, v{u}')
            for n,(u,b) in enumerate(U): I(f'v_exp_f32 v{TT+n}, v{TT+n}')
            for n,(u,b) in enumerate(U): I(f'v_add_f32 v{TT+n}, 1.0, v{TT+n}')
            for n,(u,b) in enumerate(U): I(f'v_rcp_f32 v{TT+n}, v{TT+n}')
            for n,(u,b) in enumerate(U): I(f'v_mul_f32 v{u}, v{u}, v{TT+n}')
        F=V_RING+16
        for y in range(2):
            for x in range(2):
                a=V_ACC+16*x+4*y
                I(f'v_cvt_pk_bf16_f32 v{F+4*y+2*x}, v{a}, v{a+1}'); I(f'v_cvt_pk_bf16_f32 v{F+4*y+2*x+1}, v{a+2}, v{a+3}')
        I(f's_mul_i32 s{S_T0}, s{S_DT1}, {56*4096}'); I(f's_lshl_b32 s{S_T1}, s{S_FT}, 13'); I(f's_add_u32 s{S_T0}, s{S_T0}, s{S_T1}')
        I(f's_lshl_b32 s{S_T1}, s{S_WH}, 12'); I(f's_add_u32 s{S_T0}, s{S_T0}, s{S_T1}')
        I(f's_lshl_b32 s{S_T1}, s{S_WL}, 11'); I(f's_add_u32 s{S_T0}, s{S_T0}, s{S_T1}'); I(f's_add_u32 s{S_T0}, s{S_T0}, {WS_GT}')
        for y in range(2):
            I(f'buffer_store_dwordx4 {vr(F+4*y,4)}, v{V_L16}, {srd(SRD_WS)}, s{S_T0} offen offset:{y*1024} sc1', tag='stG')
        self.auto=0
        self.e_addr(); self.e_loads()
        self.p2_flag_addr(); self.p2_bases()
        I(f'global_load_dword v54, v12, {sp(P_WS)} sc1', tag='fc')
        for n in range(self.opt.gwait): self.tick()
        self.wait(vm=['stG']); I('s_barrier')
        self.flag_set(S_DT1,28,S_FT,WS_FG)

    def w2_setup(self):
        I=self.I
        self.make_srd(SRD_W, P_W2, 1792*4096)
        self.ring_setup(4096, S_WL)
        I(f's_mul_i32 s{S_WBEG}, s{S_W}, {448*4096}'); I(f's_lshl_b32 s{S_T0}, s{S_C}, 7'); I(f's_add_u32 s{S_WBEG}, s{S_WBEG}, s{S_T0}')
        I(f's_mov_b32 s{S_WO}, s{S_WBEG}')
        self.ring_init('w2',14,4096,range(6))

    def rot_g(self, dst):
        I=self.I
        I(f's_mul_i32 s{dst}, s86, 37'); I(f's_lshr_b32 s{dst}, s{dst}, 8')
        I(f's_mul_i32 s{dst}, s{dst}, {7*self.opt.rot2}'); I(f's_lshr_b32 s{dst}, s{dst}, 1')
    def cpack(self):
        I=self.I
        L=self.newlabel('nocp')
        I(f's_cmp_ge_u32 s{S_E}, 28'); I(f's_cbranch_scc1 {L}')
        I(f's_mov_b32 s{SRD_1+2}, {448*896}'); I(f's_mov_b32 s{SRD_1+3}, 0x20000')
        I(f's_bitcmp1_b32 s{S_E}, 1')
        I(f's_cselect_b32 s{SRD_1}, s{P_CIM}, s{P_CRE}'); I(f's_cselect_b32 s{SRD_1+1}, s{P_CIM+1}, s{P_CRE+1}')
        I(f'v_and_b32 v9, 15, v{V_LANE}'); I('v_mul_u32_u24 v9, 896, v9'); I(f'v_lshrrev_b32 v10, 4, v{V_LANE}')
        I('v_lshlrev_b32 v10, 4, v10'); I('v_add_u32 v10, v9, v10')
        I(f's_lshr_b32 s{S_T0}, s{S_E}, 2'); I(f's_lshl_b32 s{S_T0}, s{S_T0}, 7')
        I(f's_and_b32 s{S_T1}, s{S_E}, 1'); I(f's_lshl_b32 s{S_T1}, s{S_T1}, 6'); I(f's_add_u32 s{S_T0}, s{S_T0}, s{S_T1}')
        I(f's_mul_i32 s{S_T1}, s{S_W}, {16*896}'); I(f's_add_u32 s{S_T0}, s{S_T0}, s{S_T1}')
        for dt in range(7):
            I(f'buffer_load_dwordx4 {vr(56+4*dt,4)}, v10, {srd(SRD_1)}, s{S_T0} offen', tag=('cp',dt))
            if dt<6: I(f's_add_u32 s{S_T0}, s{S_T0}, {64*896}')
        I(f's_lshl_b32 s{S_T0}, s{S_E}, 12'); I(f's_lshl_b32 s{S_T1}, s{S_W}, 10'); I(f's_add_u32 s{S_T0}, s{S_T0}, s{S_T1}')
        I(f's_add_u32 s{S_T0}, s{S_T0}, {WS_CP}')
        for dt in range(7):
            self.wait(vm=[('cp',dt)])
            I(f'buffer_store_dwordx4 {vr(56+4*dt,4)}, v{V_L16}, {srd(SRD_WS)}, s{S_T0} offen sc1', tag='stC')
            if dt<6: I(f's_add_u32 s{S_T0}, s{S_T0}, {28*4096}')
        self.label(L)
    def cpack_flag(self):
        I=self.I
        L=self.newlabel('nocf')
        Lp=self.newlabel('w0poll')
        self.wait(vm='all')
        I(f's_cmp_lg_u32 s{S_W}, 0'); I(f's_cbranch_scc1 {Lp}')
        I(f'v_and_b32 v8, 3, v{V_LANE}'); I('v_lshlrev_b32 v8, 6, v8')
        self.poll('e0e', 8, P_DBG, 64)
        self.label(Lp)
        I('s_barrier')
        I(f's_cmp_ge_u32 s{S_E}, 28'); I(f's_cbranch_scc1 {L}')
        I(f's_mov_b32 s{S_T1}, 0')
        self.flag_set(S_T1,1,S_E,WS_FC)
        self.label(L)

    def p2_resid_loads(self):
        I=self.I
        self.make_srd(SRD_OUT, P_OUT, 2048*1792)
        I(f'v_and_b32 v7, 15, v{V_LANE}'); I(f'v_lshrrev_b32 v8, 4, v{V_LANE}')
        I('v_mul_u32_u24 v9, 896, v7'); I('v_lshlrev_b32 v10, 3, v8'); I('v_add_u32 v9, v9, v10')
        I(f's_lshl_b32 s{S_T0}, s{S_C}, 6'); I(f's_lshl_b32 s{S_T1}, s{S_WL}, 5'); I(f's_add_u32 s{S_T0}, s{S_T0}, s{S_T1}')
        I(f's_lshl_b32 s{S_T1}, s{S_G}, 6'); I(f's_lshl_b32 s{S_T2}, s{S_WH}, 5'); I(f's_add_u32 s{S_T1}, s{S_T1}, s{S_T2}')
        I('v_lshrrev_b32 v9, 2, v7'); I(f'v_mul_u32_u24 v9, {YW}, v9'); I('v_and_b32 v11, 3, v7'); I('v_lshlrev_b32 v11, 2, v11'); I('v_add_u32 v9, v9, v11')
        I(f's_lshl_b32 s{S_T2}, s{S_WL}, 5'); I(f's_add_u32 s{S_T2}, s{S_T2}, {LDS_Y+24576}'); I(f'v_add_u32 v9, s{S_T2}, v9')
        for y in range(2):
            I(f'ds_read_b32 v{24+2*y}, v9 offset:{16*y}', tag='rstat'); I(f'ds_read_b32 v{25+2*y}, v9 offset:{16*y+64}', tag='rstat')
        I(f's_lshl_b32 s{S_T2}, s{S_T1}, 1'); I(f'v_add_u32 v9, s{S_T2}, v10')
        I(f'global_load_dwordx2 v[28:29], v9, {sp(P_DSK)}', tag='res')
        I(f'global_load_dwordx2 v[30:31], v9, {sp(P_DSK)} offset:32', tag='res')
        I(f'v_add_u32 v9, s{S_T0}, v7'); I('v_lshlrev_b32 v9, 1, v9')
        I(f'global_load_ushort v10, v9, {sp(P_B2)}', tag='res')
        I(f'global_load_ushort v38, v9, {sp(P_B2)} offset:32', tag='res')
    def resid_compute(self):
        I=self.I
        self.wait(vm=['res'], lg=['rstat'])
        I('v_lshlrev_b32 v10, 16, v10'); I('v_lshlrev_b32 v38, 16, v38')
        yield
        for x in range(2):
            for h in range(2):
                I(f'v_lshlrev_b32 v{32+2*h}, 16, v{28+2*x+h}'); I(f'v_and_b32 v{33+2*h}, s{S_MASK}, v{28+2*x+h}')
            yield
            for y in range(2):
                xs=V_XR+4*y+2*x; st=24+2*y; b2=10 if y==0 else 38
                for h in range(2):
                    r=240+8*y+4*x+2*h
                    I(f'v_lshlrev_b32 v{r}, 16, v{xs+h}'); I(f'v_and_b32 v{r+1}, s{S_MASK}, v{xs+h}')
                    I(f'v_pk_add_f32 v[36:37], v[{r}:{r+1}], v[{st}:{st+1}] op_sel_hi:[1,0] neg_lo:[0,1] neg_hi:[0,1]')
                    yield
                    I(f'v_pk_mul_f32 v[36:37], v[36:37], v[{st}:{st+1}] op_sel:[0,1] op_sel_hi:[1,1]')
                    I(f'v_pk_add_f32 v[{r}:{r+1}], v[{r}:{r+1}], v[{b2}:{b2+1}] op_sel_hi:[1,0]')
                    I(f'v_pk_fma_f32 v[{r}:{r+1}], v[36:37], v[{32+2*h}:{33+2*h}], v[{r}:{r+1}]')
                    yield

    CREG=[['v16','v20','v24','v28'],['v32','v36','v40','v44'],['v48','v52','v216','v220'],['v224','v228','v232','v236'],
          ['a0','a4','a8','a12'],['a224','a228','a232','a236'],['a240','a244','a248','a252']]
    def creg(self,i,x):
        r=self.CREG[i][x]; n=int(r[1:]); return f'{r[0]}[{n}:{n+3}]'
    def p2_bases(self):
        I=self.I
        I(f's_mul_i32 s90, s{S_G}, {56*4096}'); I(f's_mul_i32 s{S_T0}, s{S_W}, {14*4096}'); I(f's_add_u32 s90, s90, s{S_T0}')
        I(f's_add_u32 s90, s90, {WS_GT}')
        I(f's_lshl_b32 s{S_T1}, s{S_WH}, 11'); I(f's_xor_b32 s{S_T2}, s{S_T1}, 2048')
        I(f's_add_u32 s92, s90, s{S_T2}'); I(f's_add_u32 s90, s90, s{S_T1}')
        I(f's_mul_i32 s22, s{S_G}, {28*4096}'); I(f's_mul_i32 s{S_T0}, s{S_W}, {7*4096}'); I(f's_add_u32 s22, s22, s{S_T0}')
        I(f's_add_u32 s22, s22, {WS_CP}')
        I(f's_add_u32 s23, s22, s{S_T2}'); I(f's_add_u32 s22, s22, s{S_T1}')
        I(f's_mul_i32 s38, s{S_C}, {28*4096}'); I(f's_add_u32 s38, s38, s{S_T0}'); I(f's_add_u32 s38, s38, {WS_HP}')
        I(f's_lshl_b32 s{S_T1}, s{S_WL}, 11'); I(f's_xor_b32 s{S_T2}, s{S_T1}, 2048')
        I(f's_add_u32 s39, s38, s{S_T2}'); I(f's_add_u32 s38, s38, s{S_T1}')
    def q_c(self, steps):
        I=self.I
        def one(i,x):
            def f():
                b=22 if x<2 else 23
                I(f's_add_u32 s91, s{b}, {i*4096}')
                I(f'buffer_load_dwordx4 {self.creg(i,x)}, v{V_L16}, {srd(SRD_WS)}, s91 offen offset:{(x&1)*1024} sc1', tag=('c',i,x))
            return f
        for i in steps:
            for x in range(4): self.q.append(one(i,x))
    def cflag_check(self):
        I=self.I
        L=self.newlabel('cf'); D=self.newlabel('cfd')
        self.wait(vm=['fc'])
        self.exec_set('0x3f80','0')
        I('v_cmp_gt_u32 vcc, 1, v54'); I(f's_cbranch_vccz {D}')
        snap=self.snapshot()
        I(f's_mov_b32 s{S_BOUND}, 0x40000')
        self.label(L)
        I(f'global_load_dword v54, v12, {sp(P_WS)} sc1'); I('s_waitcnt vmcnt(0)')
        I('v_cmp_gt_u32 vcc, 1, v54'); I(f's_cbranch_vccz {D}')
        I('s_sleep 4'); I(f's_sub_u32 s{S_BOUND}, s{S_BOUND}, 1'); I(f's_cbranch_scc0 {L}')
        self.label(D); self.restore(snap)
        self.exec_full()
    def flag_wait(self, vaddr, vdst, tag):
        I=self.I
        L=self.newlabel('fw'); D=self.newlabel('fwd')
        self.wait(vm=[tag])
        I(f'v_cmp_gt_u32 vcc, 1, v{vdst}'); I(f's_cbranch_vccz {D}')
        snap=self.snapshot()
        I(f's_mov_b32 s{S_BOUND}, 0x40000')
        self.label(L)
        I(f'global_load_dword v{vdst}, v{vaddr}, {sp(P_WS)} sc1'); I('s_waitcnt vmcnt(0)')
        I(f'v_cmp_gt_u32 vcc, 1, v{vdst}'); I(f's_cbranch_vccz {D}')
        I('s_sleep 4'); I(f's_sub_u32 s{S_BOUND}, s{S_BOUND}, 1'); I(f's_cbranch_scc0 {L}')
        self.label(D); self.restore(snap)
    def p2_main(self, pre_only=False):
        I=self.I
        NS=6
        g0=self.opt.sfirst
        steps=[('g',k) for k in range(g0)]
        gi,si=g0,0
        while gi<14 or si<7:
            if si<7: steps.append(('s',si)); si+=1
            if gi<14: steps.append(('g',gi)); gi+=1
        groups=[('g',i) if k=='g' else ('h',i) for k,i in steps]
        gidx={g:n for n,g in enumerate(groups)}
        reg=lambda g: V_RING+16*(gidx[g]%NS)
        pend=[(g,x) for g in groups for x in range(4)]
        done=set(); state={}
        if not pre_only and self.opt.gearly: pend,done,state=self.p2state
        def can(g,x):
            n=gidx[g]-NS
            return n<0 or (groups[n],x) in done
        def issue(nmax):
            n=0
            while n<nmax and pend and can(*pend[0]):
                g,x=pend[0]
                if g[0]=='h' and not state.get('hflag'):
                    self.flag_wait(14,11,'fh'); state['hflag']=True
                    if self.opt.tH:
                        I(f's_lshl_b32 s{S_T2}, s{S_G}, 12'); I(f's_mul_i32 s{S_T3}, s{S_C}, {28*4096}'); I(f's_add_u32 s{S_T2}, s{S_T2}, s{S_T3}')
                        I(f's_mul_i32 s{S_T3}, s{S_W}, {7*4096}'); I(f's_add_u32 s{S_T2}, s{S_T2}, s{S_T3}'); I(f's_add_u32 s{S_T2}, s{S_T2}, {WS_HP}')
                        self.dedup_touch(S_T2,32)
                pend.pop(0)
                b0,b1,nst={'g':(90,92,14),'h':(38,39,7)}[g[0]]
                sx=b0 if x<2 else b1
                I(f'buffer_load_dwordx4 {vr(reg(g)+4*x,4)}, v{V_L16}, {srd(SRD_WS)}, s{sx} offen offset:{(x&1)*1024} sc1', tag=(g,x))
                if (x&1) and g[1]<nst-1: I(f's_add_u32 s{sx}, s{sx}, 4096')
                n+=1
        if pre_only:
            issue(4*NS); self.p2state=(pend,done,state); return
        if not self.opt.gearly:
            issue(self.opt.tGpos)
            if self.opt.tG:
                I(f's_mul_i32 s{S_T2}, s86, 37'); I(f's_lshr_b32 s{S_T2}, s{S_T2}, 8'); I(f's_lshl_b32 s{S_T2}, s{S_T2}, 13')
                I(f's_mul_i32 s{S_T3}, s{S_G}, {56*4096}'); I(f's_add_u32 s{S_T2}, s{S_T2}, s{S_T3}'); I(f's_mul_i32 s{S_T3}, s{S_W}, {14*4096}')
                I(f's_add_u32 s{S_T2}, s{S_T2}, s{S_T3}'); I(f's_add_u32 s{S_T2}, s{S_T2}, {WS_GT+6*4096}')
                self.dedup_touch(S_T2)
            issue(4*NS-self.opt.tGpos)
        first=True
        self.q_c([4])
        for pos,(kind,i) in enumerate(steps):
            if kind=='g' and i==3: I(f'global_load_dword v11, v14, {sp(P_WS)} sc1', tag='fh')
            if kind=='s':
                H=('h',i)
                for x in range(4):
                    self.wait(vm=[('c',i,x)]+([(H,y) for y in range(4)] if x==0 else []))
                    if x==0: self.stamp(f'p2.s{i}',fine=2)
                    for y in range(4):
                        d=V_ACC+16*x+4*y
                        I(f'v_mfma_f32_16x16x32_bf16 {vr(d,4)}, {self.creg(i,x)}, {vr(reg(H)+4*y,4)}, {vr(d,4)}')
                    if x<3: issue(1)
                for y in range(4): done.add((H,y))
                issue(2)
            else:
                A=('g',i)
                for x in range(4):
                    if self.opt.waitstep:
                        if x==0: self.wait(vm=[(A,xx) for xx in range(4)])
                    else: self.wait(vm=[(A,x)])
                    if x==0: self.stamp(f'p2.g{i}',fine=2)
                    for y in range(4):
                        d=V_ACC+16*x+4*y
                        cin='0' if first else vr(d,4)
                        I(f'v_mfma_f32_16x16x32_bf16 {vr(d,4)}, {vr(reg(A)+4*x,4)}, {ar(16*i+4*y,4)}, {cin}')
                    done.add((A,x))
                    issue(1)
                    if i==1: self.q.pop(0)()
            first=False
        assert not pend

    def p2_epilogue(self):
        I=self.I
        if self.opt.outlds: self.out_addr()
        self.reduce(V_RING)
        for y in range(2):
            for x in range(2):
                a=V_ACC+16*x+4*y; r=240+8*y+4*x
                for h in range(2):
                    I(f'v_pk_add_f32 v[{a+2*h}:{a+2*h+1}], v[{a+2*h}:{a+2*h+1}], v[{r+2*h}:{r+2*h+1}]')
        if self.opt.delta:
            import struct
            hx='0x%08x'%struct.unpack('<I',struct.pack('<f',self.opt.delta))[0]
            for y in range(2):
                for x in range(2):
                    for r in range(4):
                        a=V_ACC+16*x+4*y+r
                        I(f'v_add_f32 v{a}, {hx}, v{a}')
        if not self.opt.outlds:
            I(f'v_and_b32 v7, 15, v{V_LANE}'); I(f'v_lshrrev_b32 v8, 4, v{V_LANE}')
            I('v_mul_u32_u24 v9, 1792, v7'); I('v_lshlrev_b32 v10, 4, v8'); I('v_add_u32 v9, v9, v10')
            I(f's_lshl_b32 s{S_T0}, s{S_C}, 6'); I(f's_lshl_b32 s{S_T1}, s{S_WL}, 5'); I(f's_add_u32 s{S_T0}, s{S_T0}, s{S_T1}')
            I(f's_lshl_b32 s{S_T1}, s{S_G}, 6'); I(f's_lshl_b32 s{S_T2}, s{S_WH}, 5'); I(f's_add_u32 s{S_T1}, s{S_T1}, s{S_T2}')
            for y in range(2):
                for x in range(2):
                    I(f's_add_u32 s{S_T2}, s{S_T0}, {16*y}'); I(f's_mul_i32 s{S_T2}, s{S_T2}, 1792')
                    I(f's_add_u32 s{S_T3}, s{S_T1}, {16*x}'); I(f's_lshl_b32 s{S_T3}, s{S_T3}, 2'); I(f's_add_u32 s{S_T2}, s{S_T2}, s{S_T3}')
                    a=V_ACC+16*x+4*y
                    I(f'buffer_store_dwordx4 {vr(a,4)}, v9, {srd(SRD_OUT)}, s{S_T2} offen {self.opt.outmod}')
        else:
            for y in range(2):
                for x in range(2):
                    a=V_ACC+16*x+4*y
                    I(f'ds_write_b128 v{8+x}, {vr(a,4)} offset:{2048*y}', tag='ow')
            self.wait(lg=['ow'])
            for j in range(4):
                I(f'ds_read_b128 {vr(V_RING+4*j,4)}, v10 offset:{1024*j}', tag=('or',j))
            for j in range(4):
                self.wait(lg=[('or',j)])
                I(f'buffer_store_dwordx4 {vr(V_RING+4*j,4)}, v11, {srd(SRD_OUT)}, s{S_A} offen {self.opt.outmod}')
                if j<3: I(f's_add_u32 s{S_A}, s{S_A}, {8*1792}')
    def out_addr(self):
        I=self.I
        I(f'v_and_b32 v7, 15, v{V_LANE}'); I(f'v_lshrrev_b32 v8, 4, v{V_LANE}'); I('v_and_b32 v9, 7, v7'); I('v_xor_b32 v8, v8, v9')
        I('v_lshlrev_b32 v8, 4, v8'); I('v_lshlrev_b32 v7, 7, v7'); I('v_add_u32 v8, v8, v7'); I(f'v_add_u32 v8, s{S_YB}, v8'); I('v_xor_b32 v9, 64, v8')
        I(f'v_lshrrev_b32 v7, 3, v{V_LANE}'); I(f'v_and_b32 v11, 7, v{V_LANE}'); I('v_xor_b32 v10, v11, v7'); I('v_lshlrev_b32 v10, 4, v10')
        I('v_lshlrev_b32 v6, 7, v7'); I('v_add_u32 v10, v10, v6'); I(f'v_add_u32 v10, s{S_YB}, v10')
        I('v_mul_u32_u24 v7, 1792, v7'); I('v_lshlrev_b32 v11, 4, v11'); I('v_add_u32 v11, v11, v7')
        I(f's_lshl_b32 s{S_T0}, s{S_C}, 6'); I(f's_lshl_b32 s{S_T1}, s{S_WL}, 5'); I(f's_add_u32 s{S_T0}, s{S_T0}, s{S_T1}'); I(f's_mul_i32 s{S_T0}, s{S_T0}, 1792')
        I(f's_lshl_b32 s{S_T1}, s{S_G}, 6'); I(f's_lshl_b32 s{S_T2}, s{S_WH}, 5'); I(f's_add_u32 s{S_T1}, s{S_T1}, s{S_T2}'); I(f's_lshl_b32 s{S_T1}, s{S_T1}, 2')
        I(f's_add_u32 s{S_A}, s{S_T0}, s{S_T1}')

    def write_stamps(self):
        if not self.opt.stamps: return
        I=self.I
        I('s_lshl_b32 s3, s2, 2'); I(f's_add_u32 s3, s3, s{S_W}'); I('s_lshl_b32 s3, s3, 8'); I(f's_add_u32 s3, s3, {WS_DBG}')
        I(f'v_lshlrev_b32 v9, 2, v{V_LANE}')
        I(f'buffer_store_dword v{self.vst}, v9, {srd(SRD_WS)}, s3 offen')
        if getattr(self.opt,'dbgwg',-1)>=0 and self.final_stamps:
            L=self.newlabel('dbgout')
            I(f's_cmp_lg_u32 s2, {self.opt.dbgwg}'); I(f's_cbranch_scc1 {L}')
            I(f's_cmp_lg_u32 s{S_W}, 0'); I(f's_cbranch_scc1 {L}')
            I(f'v_readlane_b32 s3, v{self.vst}, 0'); I('s_nop 4')
            I(f'v_subrev_u32 v8, s3, v{self.vst}')
            I(f'v_add_u32 v9, {self.opt.dbgoff}, v{V_LANE}'); I('v_lshlrev_b32 v9, 2, v9')
            I('ds_bpermute_b32 v8, v9, v8'); I('s_waitcnt lgkmcnt(0)')
            I(f'v_lshlrev_b32 v9, 2, v{V_LANE}')
            self.exec_set('0xfffe','0')
            I(f'global_store_dword v9, v8, {sp(P_DBG)}')
            self.exec_full()
            self.label(L)
    def build(self):
        I=self.I; o=self.opt
        if o.stamps: I('v_mov_b32 v55, 0')
        self.prologue()
        self.touches_pre()
        wt=self.opt.w1touch
        if wt=='A' or self.opt.alsoA: self.touch_w1()
        if self.opt.t3start:
            Lt=self.newlabel('t3s')
            I(f's_cmp_lg_u32 s{S_W}, 3'); I(f's_cbranch_scc1 {Lt}')
            snap=self.snapshot()
            self.touch_w1_wg()
            self.label(Lt); self.merge(snap)
        Lcont=self.newlabel('cont')
        I('s_cmp_eq_u32 s74, 1'); I(f's_cbranch_scc1 {Lcont}')
        snap=self.snapshot()
        self.ln8(clears=False)
        self.vm['st0']=0
        self.arrive0()
        if wt=='F': self.touch_w1()
        if wt in ('S','T','U'): self.touch_w1_split(True)
        self.stamp('pf1')
        if self.opt.eorder==3:
            self.touch_pf(2)
            self.wait(vm='all')
        elif self.opt.eorder==0:
            self.cpack()
            self.stamp('cp')
            self.touch_pf(2)
            self.cpack_flag()
        elif self.opt.eorder==1:
            self.touch_pf(2)
            self.stamp('cp')
            self.cpack()
            self.cpack_flag()
        else:
            self.cpack()
            self.cpack_flag()
            self.stamp('cp')
            self.touch_pf(2)
            self.wait(vm='all')
        self.stamp('pf2')
        self.write_stamps()
        I('s_endpgm')
        self.label(Lcont); self.restore(snap)
        if wt=='T': self.touch_w1_split(False)
        self.dma_setup()
        if wt=='E': self.touch_w1(setup_only=True)
        self.w1_setup()
        if self.opt.bfirst: self.q_b(); self.q_x([0,1,2])
        else: self.q_x([0,1,2]); self.q_b()
        for n in range(self.opt.pre): self.tick()
        self.stamp('issued')
        self.auto=self.opt.period if self.opt.ln8tick else 0
        self.ln8()
        self.auto=0
        if wt=='U': self.touch_w1_split(False)
        self.stamp('ln8 stored')
        if self.opt.bfirst: self.q_x([3])
        else:
            rest=self.q; self.q=[]; self.q_x([3]); self.q+=rest
        self.auto=self.opt.period
        self.x_addr()
        self.lam_consts()
        self.auto=0
        self.stamp('lam')
        self.arrive0()
        self.stamp('arrived')
        self.drain_q(batch=True)
        if wt=='F': self.touch_w1()
        if wt=='S': self.touch_w1_split(False)
        self.stamp('drained')
        self.wait(vm=['x64','bdma']); I('s_barrier')
        self.do_bread()
        if self.opt.b13dma:
            for im in range(2):
                I(f's_add_u32 m0, s{S_YB}, {SLOT_OFF[5]+1024*im}'); I('s_nop 0')
                I(f'buffer_load_dwordx4 v236, {srd(SRD_1 if im==0 else SRD_2)}, s89 offen lds', tag='b13')
        self.auto=self.opt.statp
        self.row_stats()
        self.auto=0
        self.wait(vm=['b13'])
        if self.opt.b13dma:
            I(f'v_and_b32 v8, 15, v{V_LANE}'); I('v_lshlrev_b32 v8, 6, v8'); I(f'v_lshrrev_b32 v9, 4, v{V_LANE}'); I('v_lshlrev_b32 v9, 4, v9')
            I('v_add_u32 v8, v8, v9'); I(f'v_add_u32 v8, s{S_YB}, v8')
            I(f'ds_read_b128 {vr(V_BF+52,4)}, v8 offset:{SLOT_OFF[5]}', tag='b13r'); I(f'ds_read_b128 {vr(V_BF+56+52,4)}, v8 offset:{SLOT_OFF[5]+1024}', tag='b13r')
            self.wait(lg=['b13r'])
        self.stamp('ln64')
        I(f'v_and_b32 v35, 3, v{V_LANE}'); I('v_lshlrev_b32 v35, 6, v35')
        I(f'global_load_dword v34, v35, {sp(P_DBG)} sc1', tag='e0c')
        self.auto=self.opt.bup
        self.bu_gemm()
        self.stamp('bu',fine=True)
        self.auto=0
        self.x_resid_reads()
        self.auto=self.opt.scanp
        self.ln_fix()
        self.scan1()
        self.auto=0
        self.stamp('scan1')
        self.wait_e0()
        self.stamp('e0')
        Lnog=self.newlabel('nog1'); Lj=self.newlabel('g1join')
        I(f's_cmp_eq_u32 s{S_HASG1}, 0'); I(f's_cbranch_scc1 {Lnog}')
        snap=self.snapshot()
        R1=dict(self.R); R1['free']=list(self.R['free']); R1['slot']=dict(self.R['slot'])
        self.g_bias_load()
        self.gemm1()
        self.stamp('gemm1')
        self.g_epilogue()
        self.stamp('gepi')
        I(f's_branch {Lj}')
        snapA=self.snapshot()
        RA={k:self.R[k] for k in ('iss','rd','rel','piece')}; RA['free']=list(self.R['free']); RA['slot']=dict(self.R['slot'])
        self.label(Lnog); self.restore(snap); self.R=R1
        if self.opt.eorder==3:
            I(f's_lshr_b32 s{S_E}, s95, 1'); I(f's_mul_i32 s{S_E}, s{S_E}, 7'); I(f's_add_u32 s{S_E}, s{S_E}, s86'); I(f's_sub_u32 s{S_E}, s{S_E}, 21')
            self.cpack()
            self.wait(vm=['stC']); I('s_barrier')
            I(f's_mov_b32 s{S_T1}, 0')
            self.flag_set(S_T1,1,S_E,WS_FC)
        self.ring_finish(); self.wait(lg='all')
        self.w2_setup()
        self.replay_ring(RA)
        self.e_addr(); self.e_loads()
        self.p2_flag_addr(); self.p2_bases()
        I(f'global_load_dword v54, v12, {sp(P_WS)} sc1', tag='fc')
        self.label(Lj); self.merge(snapA)
        self.cflag_check()
        self.q_c([5,6])
        self.auto=self.opt.finp
        for _ in self.finalize(): pass
        self.auto=0
        self.stamp('final')
        if o.stamps: I('v_mov_b32 v15, v55'); self.vst=15
        self.drain_q()
        if self.opt.gearly:
            self.flag_wait(12,53,'fg')
            self.stamp('flagG')
            self.p2_main(pre_only=True)
        self.p2_resid_loads()
        for n in range(self.opt.rwait):
            if self.R is not None and not self.ring_tick(): self.ring_finish()
        self.auto=self.opt.finp
        for _ in self.resid_compute(): pass
        self.auto=0
        self.wait(vm=['stH']); I('s_barrier')
        self.flag_set(S_C,7,S_G,WS_FH)
        self.q_c([0,1,2,3])
        while self.q or self.R is not None:
            if self.q:
                self.tick()
                if len(self.q)==self.opt.fglead and not self.opt.gearly: I(f'global_load_dword v11, v12, {sp(P_WS)} sc1', tag='fg')
            if self.R is not None:
                if not self.ring_tick(): self.ring_finish()
        self.wait(lg='all')
        self.stamp('w2 in regs')
        if not self.opt.gearly:
            self.flag_wait(12,11,'fg')
            self.stamp('flagG')
        self.p2_main()
        self.stamp('p2')
        self.p2_epilogue()
        self.stamp('end'); self.cstamp('c1')
        self.final_stamps=True
        self.write_stamps()
        self.label('L_exit')
        I('s_endpgm')
        self.label('L_code_end')

def header(lds):
    return f"""; Fused S5 SSM + MLP-Mixer token MLP: out = x + SSM(LN(x)) + MLP(LN(LN(x))^T)^T in one persistent launch.
; @launch grid=(256,1,1) block=(256,1,1) lds={lds}
.amdgcn_target "amdgcn-amd-amdhsa--gfx950"
.text
.globl {KN}
.p2align 8
.type {KN},@function
{KN}:
"""
def footer():
    return f"""
.section .rodata,"a"
.p2align 6
.amdhsa_kernel {KN}
  .amdhsa_next_free_vgpr 512
  .amdhsa_next_free_sgpr 102
  .amdhsa_accum_offset 256
  .amdhsa_group_segment_fixed_size 0
  .amdhsa_kernarg_size 136
  .amdhsa_user_sgpr_count 2
  .amdhsa_user_sgpr_kernarg_segment_ptr 1
  .amdhsa_system_sgpr_workgroup_id_x 1
  .amdhsa_float_denorm_mode_32 3
.end_amdhsa_kernel
"""
if __name__=='__main__':
    ap=argparse.ArgumentParser()
    ap.add_argument('-o',default='k.s'); ap.add_argument('--stamps',action='store_true'); ap.add_argument('--stop',default=''); ap.add_argument('--fine',type=int,default=0); ap.add_argument('--period',type=int,default=48); ap.add_argument('--g1map',type=int,default=0); ap.add_argument('--pkgelu',type=int,default=1); ap.add_argument('--batchexec',type=int,default=1); ap.add_argument('--waitstep',type=int,default=0); ap.add_argument('--tHT',type=int,default=0); ap.add_argument('--tHTpos',type=int,default=12); ap.add_argument('--tG',type=int,default=0); ap.add_argument('--tGpos',type=int,default=8); ap.add_argument('--tH',type=int,default=0); ap.add_argument('--outlds',type=int,default=1); ap.add_argument('--b13dma',type=int,default=1); ap.add_argument('--bupj',type=int,default=0); ap.add_argument('--scanp',type=int,default=64); ap.add_argument('--pfearly',type=int,default=1); ap.add_argument('--eorder',type=int,default=1); ap.add_argument('--statp',type=int,default=0); ap.add_argument('--gearly',type=int,default=1); ap.add_argument('--delta',type=float,default=0.0); ap.add_argument('--bup',type=int,default=0); ap.add_argument('--statj',type=int,default=9); ap.add_argument('--outmod',default=''); ap.add_argument('--dbgwg',type=int,default=-1); ap.add_argument('--dbgoff',type=int,default=0); ap.add_argument('--arrlead',type=int,default=10); ap.add_argument('--t3start',type=int,default=0); ap.add_argument('--notouch3',type=int,default=0); ap.add_argument('--own3',type=int,default=0); ap.add_argument('--alsoA',type=int,default=0); ap.add_argument('--now2',type=int,default=0); ap.add_argument('--gepip',type=int,default=0); ap.add_argument('--finp',type=int,default=36); ap.add_argument('--sfirst',type=int,default=10); ap.add_argument('--rwait',type=int,default=8); ap.add_argument('--fglead',type=int,default=6); ap.add_argument('--ln64p',type=int,default=48); ap.add_argument('--bfirst',type=int,default=0); ap.add_argument('--w2late',type=int,default=1); ap.add_argument('--rot1',type=int,default=4); ap.add_argument('--rot2',type=int,default=1); ap.add_argument('--rot3',type=int,default=1); ap.add_argument('--ln8tick',type=int,default=0); ap.add_argument('--bdelay',type=int,default=2); ap.add_argument('--w1touch',default='A'); ap.add_argument('--fin0',type=int,default=4); ap.add_argument('--finrate',type=int,default=2); ap.add_argument('--p2rate',type=int,default=3); ap.add_argument('--pre',type=int,default=1); ap.add_argument('--pre1',type=int,default=8); ap.add_argument('--gwait',type=int,default=6); ap.add_argument('--ht_touch',type=int,default=0); ap.add_argument('--g_touch',type=int,default=0)
    o=ap.parse_args()
    k=K(o); k.build()
    t,n=k.text()
    open(o.o,'w').write(header(LDS_TOTAL)+t+footer())
    print('wrote',o.o,'lines',t.count('\n'),'nop states inserted',n)
    if o.stamps: open(o.o+'.names','w').write(','.join(k.stampnames)); print(k.stampnames)
```

```python
import sys, os, argparse
from asmgen import Gen

KN = "parallel_sum__ssm_conv_s5__mixer_token_mlp__prompt_kernel"

WS_HT    = 0x000000
WS_STAT  = 0x1C0000
WS_E     = 0x1C4000
WS_FH    = 0x1E0000
WS_FG    = 0x1E4000
WS_FC    = 0x1E8000
WS_CP    = 0x780000
WS_GT    = 0x200000
WS_HP    = 0x400000
WS_DBG   = 0x900000

LDS_X  = 0
LDS_Y  = 57344
YW     = 26624
SLOT_OFF = [0, 4096, 8192, 12288, 16384, 20480]
LDS_LN8 = LDS_X + 57344 - 7680
LDS_TOTAL = LDS_Y + 4*YW

P_X, P_LRE, P_LIM, P_BRE, P_BIM, P_CRE, P_CIM, P_LDT = 4,6,8,10,12,14,16,18
P_DSK = 20
P_W1, P_B1, P_W2, P_B2 = 24,26,28,30
P_OUT, P_DBG, P_WS = 32,34,36
SRD_X, SRD_WS, SRD_1, SRD_2, SRD_W, SRD_OUT = 40,44,48,52,56,60
S_W, S_WH, S_WL, S_C, S_G, S_DT1, S_FT, S_HASG1 = 64,65,66,67,68,69,70,71
S_MASK, S_ONES = 72, 73
S_A, S_B, S_WO, S_T0, S_T1, S_T2, S_T3, S_BOUND = 76,77,78,79,80,81,82,83
S_YB = 84
S_WBEG, S_WEND = 96, 97
S_KO, S_KEND = 100, 101
S_FI = 3
S_E = 85
def sp(n): return f's[{n}:{n+1}]'
def srd(n): return f's[{n}:{n+3}]'
def vr(a,n): return f'v[{a}:{a+n-1}]' if n>1 else f'v{a}'
def ar(a,n): return f'a[{a}:{a+n-1}]' if n>1 else f'a{a}'

V_LANE, V_L16 = 0, 1
V_TR = 2
V_DMA = [6,13]
V_T = 16
V_LR,V_LI,V_K1,V_K2,V_SR,V_SI,V_PR,V_PI,V_L64R,V_L64I,V_L512R,V_L512I = range(40,52)
V_IN = 52
V_X64 = 56
V_BF = 112
V_RAW = 224
V_ACC = 56
V_RING = 120
V_EL = 16
V_EOF = 200
V_XR = 216

class K(Gen):
    def __init__(self, opt):
        super().__init__(); self.opt=opt; self.nstamp=0
        self.cur_hi='-1'; self.batch=False; self.final_stamps=False; self.vst=55; self.nx=0; self.nb=0; self.bread=False; self.allow_bread=False; self.bdelay=opt.bdelay; self.q=[]; self.R=None; self.auto=0; self.acc=0; self.in_tick=False; self.full=True
    def I(self,t,tag=None):
        super().I(t,tag)
        if self.in_tick: return
        mn=t.split()[0]
        if mn.startswith(('buffer_','global_')): self.acc=0; return
        if not self.auto: return
        if mn.startswith('v_mfma'): self.acc+=16
        elif mn.startswith(('v_exp','v_rcp','v_sqrt','v_sin','v_cos','v_log')): self.acc+=8
        elif mn.startswith(('v_','ds_')): self.acc+=4
        else: return
        if self.acc>=self.auto and self.full and not mn.startswith(('v_cmp','s_cmp','s_bitcmp')):
            self.tick()
    def tick(self):
        self.in_tick=True; self.acc=0
        if not self.bread and self.allow_bread and self.nb>=34:
            if self.bdelay>0: self.bdelay-=1
            else:
                self.do_bread(); self.in_tick=False; return
        if self.q: self.q.pop(0)()
        elif self.R is not None: self.ring_tick()
        self.in_tick=False
    def do_bread(self):
        self.bread=True
        self.b_read()
        self.wait(lg=['brd'])
        self.ring_init('w1',16,3584,range(6))
    def row_exec(self, hi):
        if self.cur_hi!=hi: self.I(f's_mov_b32 exec_hi, {hi}'); self.cur_hi=hi
    def row_exec_done(self):
        if not self.batch: self.I('s_mov_b32 exec_hi, -1'); self.cur_hi='-1'
    def drain_q(self, batch=False):
        self.batch=batch and self.opt.batchexec
        while self.q: self.tick()
        self.batch=False
        if self.cur_hi!='-1': self.I('s_mov_b32 exec_hi, -1'); self.cur_hi='-1'
    def stamp(self, name, fine=False):
        if not self.opt.stamps: return
        if fine and int(fine)>self.opt.fine: return
        i=self.nstamp; self.nstamp+=1
        assert i<64
        self.c(f'stamp {i}: {name}')
        self.wait(lg='all')
        self.I('s_memrealtime s[98:99]'); self.I('s_waitcnt lgkmcnt(0)'); self.smem=False
        self.I(f'v_writelane_b32 v{self.vst}, s98, {i}')
        self.stampnames=getattr(self,'stampnames',[])+[name]
    def cstamp(self, name):
        if not self.opt.stamps: return
        i=self.nstamp; self.nstamp+=1
        self.wait(lg='all')
        self.I('s_memtime s[98:99]'); self.I('s_waitcnt lgkmcnt(0)'); self.smem=False
        self.I(f'v_writelane_b32 v{self.vst}, s98, {i}')
        self.stampnames=getattr(self,'stampnames',[])+['#'+name]
    def rnd_bf16(self, v):
        self.I(f'v_cvt_pk_bf16_f32 v{v}, v{v}, v{v}')
        self.I(f'v_lshlrev_b32 v{v}, 16, v{v}')
    def make_srd(self, s, ptr, nbytes):
        self.I(f's_mov_b32 s{s}, s{ptr}'); self.I(f's_and_b32 s{s+1}, s{ptr+1}, 0xffff')
        self.I(f's_mov_b32 s{s+2}, {nbytes}'); self.I(f's_mov_b32 s{s+3}, 0x20000')
    def ln_stats(self, SUM, SSQ, R, C, T):
        I=self.I
        I(f'v_mul_f32 v{SUM}, 0x3b124925, v{SUM}')
        I(f'v_mul_f32 v{SSQ}, 0x3b124925, v{SSQ}')
        I(f'v_fma_f32 v{SSQ}, -v{SUM}, v{SUM}, v{SSQ}')
        I(f'v_max_f32 v{SSQ}, 0, v{SSQ}')
        I(f'v_cvt_pk_bf16_f32 v{SUM}, v{SUM}, v{SUM}')
        I(f'v_cvt_pk_bf16_f32 v{SSQ}, v{SSQ}, v{SSQ}')
        I(f'v_lshlrev_b32 v{SUM}, 16, v{SUM}')
        I(f'v_lshlrev_b32 v{SSQ}, 16, v{SSQ}')
        I(f'v_add_f32 v{SSQ}, 0x3727c5ac, v{SSQ}')
        self.rnd_bf16(SSQ)
        I(f'v_sqrt_f32 v{SSQ}, v{SSQ}')
        self.rnd_bf16(SSQ)
        I(f'v_rcp_f32 v{R}, v{SSQ}')
        I(f'v_mul_f32 v{C}, v{SUM}, v{R}')
        I(f'v_sub_f32 v{C}, 0, v{C}')
    def dot_sums(self, regs, accs):
        I=self.I
        for n,d in enumerate(regs):
            s,q = accs[2*(n&1)], accs[2*(n&1)+1]
            if n<2:
                I(f'v_dot2_f32_bf16 v{s}, v{d}, s{S_ONES}, 0')
                I(f'v_dot2_f32_bf16 v{q}, v{d}, v{d}, 0')
            else:
                I(f'v_dot2_f32_bf16 v{s}, v{d}, s{S_ONES}, v{s}')
                I(f'v_dot2_f32_bf16 v{q}, v{d}, v{d}, v{q}')
        I(f'v_add_f32 v{accs[0]}, v{accs[0]}, v{accs[2]}')
        I(f'v_add_f32 v{accs[1]}, v{accs[1]}, v{accs[3]}')
    def normalize(self, regs, R, C, tmps, hook=None):
        I=self.I
        n=len(tmps)
        for b in range(0,len(regs),n):
            grp=regs[b:b+n]
            for d,t in zip(grp,tmps):
                I(f'v_lshlrev_b32 v{t}, 16, v{d}')
                I(f'v_and_b32 v{t+1}, s{S_MASK}, v{d}')
            for d,t in zip(grp,tmps):
                I(f'v_pk_fma_f32 v[{t}:{t+1}], v[{t}:{t+1}], v[{R}:{R+1}], v[{C}:{C+1}] op_sel_hi:[1,0,0]')
            for d,t in zip(grp,tmps):
                I(f'v_cvt_pk_bf16_f32 v{d}, v{t}, v{t+1}')
            if hook: hook(b//n)
    def cmul(self, dr, di, xr, xi, yr, yi, t0, t1):
        I=self.I
        I(f'v_mul_f32 v{t0}, v{xi}, v{yi}')
        I(f'v_mul_f32 v{t1}, v{xi}, v{yr}')
        I(f'v_fma_f32 v{t0}, v{xr}, v{yr}, -v{t0}')
        I(f'v_fma_f32 v{di}, v{xr}, v{yi}, v{t1}')
        I(f'v_mov_b32 v{dr}, v{t0}')
    def cfma(self, dr, di, xr, xi, yr, yi, zr, zi, t0, t1):
        I=self.I
        I(f'v_fma_f32 v{t0}, v{xr}, v{yr}, v{zr}')
        I(f'v_fma_f32 v{t1}, v{xr}, v{yi}, v{zi}')
        I(f'v_fma_f32 v{t0}, -v{xi}, v{yi}, v{t0}')
        I(f'v_fma_f32 v{di}, v{xi}, v{yr}, v{t1}')
        I(f'v_mov_b32 v{dr}, v{t0}')
    def csq(self, dr, di, xr, xi, t0):
        I=self.I
        I(f'v_mul_f32 v{t0}, v{xi}, v{xi}')
        I(f'v_mul_f32 v{di}, v{xr}, v{xi}')
        I(f'v_fma_f32 v{dr}, v{xr}, v{xr}, -v{t0}')
        I(f'v_add_f32 v{di}, v{di}, v{di}')
    def allgather_q(self, v, g0, g1, g2, g3):
        I=self.I
        I(f'v_mov_b32 v{g0}, v{v}'); I(f'v_mov_b32 v{g1}, v{v}')
        I(f'v_permlane16_swap_b32 v{g0}, v{g1}')
        I(f'v_mov_b32 v{g2}, v{g0}'); I(f'v_mov_b32 v{g3}, v{g1}')
        I(f'v_permlane32_swap_b32 v{g0}, v{g2}')
        I(f'v_permlane32_swap_b32 v{g1}, v{g3}')
    def exec_full(self): self.I('s_mov_b64 exec, -1'); self.full=True
    def exec_set(self, lo, hi):
        self.full=False
        self.I(f's_mov_b32 exec_lo, {lo}'); self.I(f's_mov_b32 exec_hi, {hi}')
    def poll(self, name, voff, base, cmp_ge, nlanes_lo=None):
        I=self.I
        L=self.newlabel('poll'); D=self.newlabel('polld')
        I(f's_mov_b32 s{S_BOUND}, 0x40000')
        self.label(L)
        I(f'global_load_dword v7, v{voff}, {sp(base)} sc1')
        I('s_waitcnt vmcnt(0)'); self.vm={}
        I(f'v_cmp_gt_u32 vcc, {cmp_ge}, v7')
        I(f's_cbranch_vccz {D}')
        I('s_sleep 4')
        I(f's_sub_u32 s{S_BOUND}, s{S_BOUND}, 1')
        I(f's_cbranch_scc0 {L}')
        self.label(D)

    def ring_setup(self, pitch, xorsel):
        I=self.I
        I(f'v_lshrrev_b32 v7, 3, v{V_LANE}'); I(f'v_and_b32 v8, 7, v{V_LANE}')
        I('v_and_b32 v9, 6, v7'); I('v_xor_b32 v8, v8, v9'); I('v_lshlrev_b32 v8, 4, v8')
        I(f'v_mul_u32_u24 v7, {pitch}, v7'); I(f'v_add_u32 v{V_DMA[0]}, v7, v8')
        I(f'v_add_u32 v{V_DMA[1]}, {8*pitch-1024}, v{V_DMA[0]}')
        I(f'v_lshrrev_b32 v7, 2, v{V_LANE}'); I('v_and_b32 v8, 6, v7')
        I(f'v_bfe_u32 v9, v{V_LANE}, 1, 1'); I('v_xor_b32 v8, v8, v9'); I('v_lshlrev_b32 v8, 4, v8')
        I('v_lshlrev_b32 v7, 7, v7'); I('v_add_u32 v7, v7, v8')
        I(f'v_and_b32 v9, 1, v{V_LANE}'); I('v_lshlrev_b32 v9, 3, v9'); I('v_add_u32 v7, v7, v9')
        I(f's_lshl_b32 s{S_T0}, s{xorsel}, 6')
        I(f'v_xor_b32 v7, s{S_T0}, v7')
        I(f'v_add_u32 v{V_TR}, s{S_YB}, v7')
        for x in range(1,4):
            I(f'v_xor_b32 v{V_TR+x}, {x<<5}, v{V_TR}')
    def ring_init(self, name, nsteps, pitch, slots):
        self.R=dict(name=name,n=nsteps,pitch=pitch,free=list(slots),slot={},iss=0,rd=0,rel=0,piece=0)
    def ring_add(self, slots): self.R['free']+=list(slots)
    def ring_issue_piece(self):
        R=self.R; I=self.I
        k=R['iss']
        if k>=R['n']: return False
        j=R['piece']
        if j==0:
            if not R['free']: return False
            R['slot'][k]=R['free'].pop(0)
        if j%2==0:
            I(f's_add_u32 m0, s{S_YB}, {SLOT_OFF[R["slot"][k]]+j*1024}')
            if k or j: I(f's_add_u32 s{S_WO}, s{S_WO}, {16*R["pitch"]}')
            else: I('s_nop 0')
        I(f'buffer_load_dwordx4 v{V_DMA[j%2]}, {srd(SRD_W)}, s{S_WO} offen offset:{(j%2)*1024} lds', tag=(R['name'],k))
        R['piece']=(j+1)%4
        if R['piece']==0: R['iss']+=1
        return True
    def ring_issue(self):
        while self.ring_issue_piece(): pass
    def ring_read(self):
        R=self.R; I=self.I
        k=R['rd']
        if k>=R['n']: return False
        assert k<R['iss'], 'read before issue'
        off=SLOT_OFF[R['slot'][k]]
        self.wait(vm=[(R['name'],k)])
        for x in range(4):
            b=16*k+4*x
            I(f'ds_read_b64_tr_b16 {ar(b,2)}, v{V_TR+x} offset:{off}', tag=(R['name'],'r',k))
            I(f'ds_read_b64_tr_b16 {ar(b+2,2)}, v{V_TR+x} offset:{off+2048}', tag=(R['name'],'r',k))
        R['rd']+=1
        return True
    def ring_release(self):
        R=self.R
        k=R['rel']
        if k>=R['rd']: return False
        self.wait(lg=[(R['name'],'r',k)])
        R['free'].append(R['slot'][k]); R['rel']+=1
        self.ring_issue()
        return True
    def ring_tick(self):
        R=self.R
        if R['iss']<R['n']:
            if R['piece']==0 and not R['free']:
                if R['rel']>=R['rd']:
                    assert R['rd']<R.get('maxrd',99)
                    self.ring_read()
                k=R['rel']; self.wait(lg=[(R['name'],'r',k)]); R['free'].append(R['slot'][k]); R['rel']+=1
            self.ring_issue_piece()
            if R['piece']==3 and not R['free'] and R['rd']==R['rel'] and R['rd']<R['iss'] and R['rd']<R.get('maxrd',99):
                self.ring_read()
            return True
        if R['rd']<R['n'] and R['rd']<R.get('maxrd',99): return self.ring_read()
        return False
    def bg(self):
        return self.ring_tick()
    def replay_ring(self, RA):
        R=self.R
        while (R['iss'],R['piece'])<(RA['iss'],RA['piece']) or R['rd']<RA['rd']:
            if (R['iss'],R['piece'])<(RA['iss'],RA['piece']):
                before=R['rd']
                R['maxrd']=RA['rd']
                self.ring_tick()
            else:
                self.ring_read()
        while R['rel']<RA['rel']:
            k=R['rel']; self.wait(lg=[(R['name'],'r',k)]); R['free'].append(R['slot'][k]); R['rel']+=1
        R['maxrd']=99
        for k in RA: assert RA[k]==R[k], (k,RA[k],R[k])
    def ring_finish(self):
        R=self.R; R['maxrd']=99
        while R['rd']<R['n'] or R['iss']<R['n']: self.ring_tick()
        R['rel']=R['n']; self.R=None

    def reduce(self, tmp, pre=None, post=None):
        I=self.I
        for e in (1,2,3):
            I(f's_xor_b32 s{S_T0}, s{S_W}, {e}'); I(f's_mul_i32 s{S_T0}, s{S_T0}, {3*4096}')
            I(f's_add_u32 s{S_T0}, s{S_T0}, {LDS_X+(e-1)*4096}')
            I(f'v_add_u32 v7, s{S_T0}, v{V_L16}')
            xh,yh=e>>1,e&1
            for xl in range(2):
                for yl in range(2):
                    a=V_ACC+16*(2*xh+xl)+4*(2*yh+yl)
                    I(f'ds_write_b128 v7, {vr(a,4)} offset:{(2*xl+yl)*1024}', tag='redw')
        if pre: pre()
        self.wait(lg='all'); I('s_barrier')
        if post: post()
        I(f's_mul_i32 s{S_T0}, s{S_W}, {3*4096}'); I(f'v_add_u32 v7, s{S_T0}, v{V_L16}')
        for e in range(3):
            for sub in range(4):
                I(f'ds_read_b128 {vr(tmp+16*e+4*sub,4)}, v7 offset:{LDS_X+e*4096+sub*1024}', tag=('red',e))
        for e in range(3):
            self.wait(lg=[('red',e)])
            for sub in range(4):
                a=V_ACC+16*(sub>>1)+4*(sub&1)
                for h in range(2):
                    I(f'v_pk_add_f32 v[{a+2*h}:{a+2*h+1}], v[{a+2*h}:{a+2*h+1}], v[{tmp+16*e+4*sub+2*h}:{tmp+16*e+4*sub+2*h+1}]')

    def prologue(self):
        I=self.I
        I('s_cmp_ge_u32 s2, 256'); I('s_cbranch_scc1 L_exit')
        I('s_load_dwordx16 s[4:19], s[0:1], 0')
        if self.opt.pfearly:
            I('s_getpc_b64 s[98:99]'); self.label('L_pc0')
            I(f's_sub_u32 s98, s98, L_pc0-{KN}'); I('s_subb_u32 s99, s99, 0')
            I('v_lshlrev_b32 v9, 7, v0'); I(f'v_min_u32 v9, L_code_end-{KN}-16, v9')
            I('global_load_dword v12, v9, s[98:99]', tag='pf')
        I('s_load_dwordx2 s[20:21], s[0:1], 64')
        I('s_load_dwordx8 s[24:31], s[0:1], 80')
        I('s_load_dwordx4 s[32:35], s[0:1], 112')
        I('s_load_dwordx2 s[36:37], s[0:1], 128')
        I('v_lshrrev_b32 v7, 6, v0'); I(f'v_and_b32 v{V_LANE}, 63, v0')
        I(f'v_readfirstlane_b32 s{S_W}, v7')
        I(f'v_lshlrev_b32 v{V_L16}, 4, v{V_LANE}')
        I(f's_mov_b32 s{S_MASK}, 0xffff0000'); I(f's_mov_b32 s{S_ONES}, 0x3f803f80')
        I('s_and_b32 s22, s2, 7')
        I('s_lshr_b32 s23, s2, 3')
        I('s_and_b32 s38, s22, 1')
        I('s_lshr_b32 s39, s22, 1')
        I(f's_lshr_b32 s{S_WH}, s{S_W}, 1'); I(f's_and_b32 s{S_WL}, s{S_W}, 1')
        I(f's_mul_i32 s{S_T0}, s23, 37'); I(f's_lshr_b32 s{S_T0}, s{S_T0}, 8')
        I(f's_mul_i32 s{S_T1}, s{S_T0}, 7'); I(f's_sub_u32 s{S_G}, s23, s{S_T1}')
        I(f's_mov_b32 s{S_DT1}, s{S_G}')
        I(f's_lshl_b32 s{S_T1}, s22, 2'); I(f's_add_u32 s{S_C}, s{S_T1}, s{S_T0}')
        I(f's_min_u32 s{S_C}, s{S_C}, 31')
        I(f's_mul_i32 s{S_T1}, s39, 7'); I(f's_lshl_b32 s{S_T2}, s38, 2'); I(f's_add_u32 s87, s{S_T1}, s{S_T2}')
        I(f's_add_u32 s{S_FT}, s87, s{S_T0}'); I(f's_min_u32 s{S_FT}, s{S_FT}, 27')
        if self.opt.g1map:
            I(f's_lshl_b32 s{S_T2}, s38, 2'); I(f's_add_u32 s{S_DT1}, s{S_T2}, s{S_T0}'); I(f's_min_u32 s{S_DT1}, s{S_DT1}, 6')
            I(f's_mul_i32 s87, s39, 7'); I(f's_add_u32 s{S_FT}, s87, s{S_G}')
        I(f's_sub_u32 s{S_T1}, 4, s38'); I(f's_cmp_lt_u32 s{S_T0}, s{S_T1}'); I(f's_cselect_b32 s{S_HASG1}, 1, 0')
        I('s_cmp_lt_u32 s23, 28'); I('s_cselect_b32 s74, 1, 0')
        self.wait(lg='all')
        self.make_srd(SRD_X, P_X, 2048*896)
        self.x8_issue(2)
        if not self.opt.pfearly:
            I('s_getpc_b64 s[98:99]'); self.label('L_pc0')
            I(f's_sub_u32 s98, s98, L_pc0-{KN}'); I('s_subb_u32 s99, s99, 0')
            I(f's_and_b32 s{S_T0}, s23, 1'); I(f's_lshl_b32 s{S_T0}, s{S_T0}, 2'); I(f's_add_u32 s{S_T0}, s{S_T0}, s{S_W}')
            I(f's_lshl_b32 s{S_T0}, s{S_T0}, 13')
            I(f'v_lshlrev_b32 v9, 7, v{V_LANE}'); I(f'v_add_u32 v9, s{S_T0}, v9')
            I(f'v_min_u32 v9, L_code_end-{KN}-16, v9')
            I('global_load_dword v12, v9, s[98:99]', tag='pf')
        self.make_srd(SRD_WS, P_WS, 0x10000000)
        I(f's_mul_i32 s{S_YB}, s{S_W}, {YW}'); I(f's_add_u32 s{S_YB}, s{S_YB}, {LDS_Y}')
        I(f's_sub_u32 s{S_E}, s23, 28'); I(f's_lshl_b32 s{S_E}, s{S_E}, 3'); I(f's_add_u32 s{S_E}, s{S_E}, s22')
        I('s_mov_b32 s86, s23'); I('s_mov_b32 s95, s22')
        self.stamp('start'); self.cstamp('c0')

    def x8_issue(self, oct):
        I=self.I
        I(f's_lshr_b32 s75, s{oct}, 2'); I('s_lshl_b32 s75, s75, 5')
        I(f's_lshl_b32 s{S_T0}, s{S_WH}, 4'); I(f's_add_u32 s75, s75, s{S_T0}')
        I(f's_and_b32 s{S_T0}, s{oct}, 3'); I(f's_lshl_b32 s{S_T0}, s{S_T0}, 2'); I(f's_add_u32 s75, s75, s{S_T0}')
        I(f's_lshl_b32 s{S_T0}, s{S_WL}, 1'); I(f's_add_u32 s75, s75, s{S_T0}')
        I(f's_mul_i32 s{S_T2}, s75, 896')
        I(f'v_and_b32 v7, 31, v{V_LANE}'); I(f'v_lshrrev_b32 v8, 5, v{V_LANE}')
        I('v_mul_u32_u24 v8, 896, v8'); I('v_lshlrev_b32 v9, 5, v7'); I('v_add_u32 v8, v8, v9')
        I('v_mov_b32 v9, 0x7ffffff0'); I('v_cmp_gt_u32 vcc, 28, v7'); I('v_cndmask_b32 v8, v9, v8, vcc')
        I(f'buffer_load_dwordx4 {vr(V_T,4)}, v8, {srd(SRD_X)}, s{S_T2} offen', tag='x8')
        I(f'buffer_load_dwordx4 {vr(V_T+4,4)}, v8, {srd(SRD_X)}, s{S_T2} offen offset:16', tag='x8')
    def touches_pre(self):
        I=self.I
        self.make_srd(SRD_1, P_BRE, 448*896); self.make_srd(SRD_2, P_BIM, 448*896); self.make_srd(SRD_W, P_W1, 2048*3584)
        I(f'v_lshrrev_b32 v7, 3, v{V_LANE}'); I(f'v_and_b32 v8, 7, v{V_LANE}'); I('v_min_u32 v8, 6, v8')
        I('v_mul_u32_u24 v7, 896, v7'); I('v_lshlrev_b32 v8, 7, v8'); I('v_add_u32 v7, v7, v8')
        I(f's_lshl_b32 s{S_T3}, s86, 2'); I(f's_add_u32 s{S_T3}, s{S_T3}, s{S_W}')
        I(f's_lshl_b32 s{S_T0}, s95, 8'); I(f's_lshl_b32 s{S_T1}, s{S_T3}, 1'); I(f's_add_u32 s{S_T0}, s{S_T0}, s{S_T1}'); I(f's_mul_i32 s{S_T0}, s{S_T0}, 896')
        self.exec_set('0xffff','0')
        I(f'buffer_load_dword v12, v7, {srd(SRD_X)}, s{S_T0} offen', tag='touch')
        I(f's_and_b32 s{S_T0}, s{S_T3}, 63'); I(f's_mul_i32 s{S_T0}, s{S_T0}, {7*896}')
        I(f's_cmp_lt_u32 s{S_T3}, 64')
        I(f's_cselect_b32 s{SRD_OUT}, s{P_BRE}, s{P_BIM}'); I(f's_cselect_b32 s{SRD_OUT+1}, s{P_BRE+1}, s{P_BIM+1}')
        I(f's_mov_b32 s{SRD_OUT+2}, {448*896}'); I(f's_mov_b32 s{SRD_OUT+3}, 0x20000')
        self.exec_set('-1','0x00ffffff')
        I(f'buffer_load_dword v12, v7, {srd(SRD_OUT)}, s{S_T0} offen', tag='touch')
        self.exec_full()
    def touch_w1(self, setup_only=False):
        I=self.I
        I(f'v_lshrrev_b32 v7, 2, v{V_LANE}'); I(f'v_and_b32 v8, 3, v{V_LANE}')
        I(f's_and_b32 s{S_T1}, s95, 1'); I(f's_sub_u32 s{S_T1}, 3, s{S_T1}'); I(f'v_min_u32 v8, s{S_T1}, v8')
        I('v_mul_u32_u24 v7, 3584, v7'); I('v_lshlrev_b32 v8, 7, v8'); I('v_add_u32 v7, v7, v8')
        I(f's_lshl_b32 s{S_T0}, s{S_W}, 9'); I(f's_lshl_b32 s{S_T1}, s86, 4'); I(f's_add_u32 s{S_T0}, s{S_T0}, s{S_T1}')
        I(f's_mul_i32 s{S_T0}, s{S_T0}, 3584'); I(f's_lshl_b32 s{S_T1}, s87, 7'); I(f's_add_u32 s{S_T0}, s{S_T0}, s{S_T1}')
        if setup_only:
            I('v_mov_b32 v238, v7'); I(f's_mov_b32 s94, s{S_T0}'); return
        I(f'buffer_load_dword v12, v7, {srd(SRD_W)}, s{S_T0} offen', tag='touch')
    def touch_w1_split(self, rest):
        I=self.I
        if self.opt.g1map:
            I(f'v_lshrrev_b32 v7, 3, v{V_LANE}'); I(f'v_and_b32 v8, 7, v{V_LANE}'); I('v_min_u32 v8, 6, v8')
            I('v_mul_u32_u24 v7, 3584, v7'); I('v_lshlrev_b32 v8, 7, v8'); I('v_add_u32 v7, v7, v8')
            I(f's_lshl_b32 s{S_T0}, s{S_W}, 9'); I(f's_and_b32 s{S_T2}, s95, 1')
            if not rest:
                I(f's_lshl_b32 s{S_T1}, s86, 3'); I(f's_add_u32 s{S_T0}, s{S_T0}, s{S_T1}'); I(f's_lshl_b32 s{S_T1}, s{S_T2}, 2'); I(f's_add_u32 s{S_T0}, s{S_T0}, s{S_T1}')
            else:
                I(f's_sub_u32 s{S_T1}, s86, 28'); I(f's_lshl_b32 s{S_T1}, s{S_T1}, 3'); I(f's_add_u32 s{S_T0}, s{S_T0}, s{S_T1}'); I(f's_add_u32 s{S_T0}, s{S_T0}, 224')
                I(f's_lshl_b32 s{S_T1}, s{S_T2}, 5'); I(f's_add_u32 s{S_T0}, s{S_T0}, s{S_T1}')
            I(f's_mul_i32 s{S_T0}, s{S_T0}, 3584'); I(f's_lshl_b32 s{S_T1}, s87, 7'); I(f's_add_u32 s{S_T0}, s{S_T0}, s{S_T1}')
            if not rest:
                self.exec_set('-1','0')
                I(f'buffer_load_dword v12, v7, {srd(SRD_W)}, s{S_T0} offen', tag='touch')
                self.exec_full()
            else:
                for t in range(5):
                    I(f'buffer_load_dword v12, v7, {srd(SRD_W)}, s{S_T0} offen', tag='touch')
                    if t<4: I(f's_add_u32 s{S_T0}, s{S_T0}, {64*3584}')
            return
        I(f'v_lshrrev_b32 v7, 2, v{V_LANE}'); I(f'v_and_b32 v8, 3, v{V_LANE}')
        I(f's_and_b32 s{S_T1}, s95, 1'); I(f's_sub_u32 s{S_T1}, 3, s{S_T1}'); I(f'v_min_u32 v8, s{S_T1}, v8')
        I('v_mul_u32_u24 v7, 3584, v7'); I('v_lshlrev_b32 v8, 7, v8'); I('v_add_u32 v7, v7, v8')
        I(f's_lshl_b32 s{S_T0}, s{S_W}, 9')
        if not rest:
            I(f's_lshl_b32 s{S_T1}, s86, 3'); I(f's_add_u32 s{S_T0}, s{S_T0}, s{S_T1}')
        else:
            I(f's_sub_u32 s{S_T1}, s86, 28'); I(f's_lshl_b32 s{S_T1}, s{S_T1}, 4'); I(f's_add_u32 s{S_T0}, s{S_T0}, s{S_T1}'); I(f's_add_u32 s{S_T0}, s{S_T0}, 224')
        I(f's_mul_i32 s{S_T0}, s{S_T0}, 3584'); I(f's_lshl_b32 s{S_T1}, s87, 7'); I(f's_add_u32 s{S_T0}, s{S_T0}, s{S_T1}')
        if not rest:
            self.exec_set('-1','0')
            I(f'buffer_load_dword v12, v7, {srd(SRD_W)}, s{S_T0} offen', tag='touch')
            self.exec_full()
        else:
            for t in range(5):
                I(f'buffer_load_dword v12, v7, {srd(SRD_W)}, s{S_T0} offen', tag='touch')
                if t<4: I(f's_add_u32 s{S_T0}, s{S_T0}, {64*3584}')
    def touch_w1_wg(self):
        I=self.I
        I(f'v_lshrrev_b32 v7, 2, v{V_LANE}'); I(f'v_and_b32 v8, 3, v{V_LANE}')
        I(f's_and_b32 s{S_T1}, s95, 1'); I(f's_sub_u32 s{S_T1}, 3, s{S_T1}'); I(f'v_min_u32 v8, s{S_T1}, v8')
        I('v_mul_u32_u24 v7, 3584, v7'); I('v_lshlrev_b32 v8, 7, v8'); I('v_add_u32 v7, v7, v8')
        I(f's_lshl_b32 s{S_T0}, s86, 4'); I(f's_mul_i32 s{S_T0}, s{S_T0}, 3584'); I(f's_lshl_b32 s{S_T1}, s87, 7'); I(f's_add_u32 s{S_T0}, s{S_T0}, s{S_T1}')
        for q in range(4):
            I(f'buffer_load_dword v12, v7, {srd(SRD_W)}, s{S_T0} offen', tag='touch')
            if q<3: I(f's_add_u32 s{S_T0}, s{S_T0}, {512*3584}')
    def q_w3(self):
        I=self.I
        def xpair(p):
            def f():
                L=self.newlabel('xw3')
                I(f's_add_u32 s100, s{S_W}, {3*p}'); I('s_cmp_ge_u32 s100, 8'); I(f's_cbranch_scc1 {L}')
                snap=self.snapshot()
                I('s_lshl_b32 s101, s100, 4'); I(f'v_xor_b32 v238, s101, v{V_L16}')
                I('s_lshr_b32 s101, s100, 1'); I('s_lshl_b32 s101, s101, 4'); I('s_and_b32 s100, s100, 1'); I('s_lshl_b32 s100, s100, 1')
                I('s_add_u32 s100, s100, s101'); I('s_add_u32 s100, s100, 12'); I('s_mul_i32 s100, s100, 896')
                I(f's_lshl_b32 s101, s{S_C}, 6'); I('s_mul_i32 s101, s101, 896'); I('s_add_u32 s101, s101, s100')
                I('s_mov_b32 exec_hi, 0x00ffffff')
                I(f's_add_u32 m0, s100, {LDS_X}'); I('s_nop 0')
                I(f'buffer_load_dwordx4 v238, {srd(SRD_X)}, s101 offen lds', tag='x64')
                I(f's_add_u32 m0, s100, {LDS_X+896}'); I('s_add_u32 s101, s101, 896')
                I(f'buffer_load_dwordx4 v238, {srd(SRD_X)}, s101 offen lds', tag='x64')
                I('s_mov_b32 exec_hi, -1')
                self.label(L); self.merge(snap); self.vm['x64']=0
            return f
        def bblock(p):
            def f():
                L=self.newlabel('bw3'); Li=self.newlabel('bw3i')
                I(f's_add_u32 s100, s{S_W}, {3*p}'); I('s_cmp_ge_u32 s100, 8'); I(f's_cbranch_scc1 {L}')
                snap=self.snapshot()
                I('s_and_b32 s101, s100, 3'); I('s_sub_u32 s91, 0, s101'); I('s_and_b32 s91, s91, 3'); I('s_lshl_b32 s91, s91, 4')
                I(f'v_xor_b32 v238, s91, v{V_L16}')
                I('s_bitcmp1_b32 s100, 2')
                I(f's_cselect_b32 s{SRD_OUT}, s{P_BIM}, s{P_BRE}'); I(f's_cselect_b32 s{SRD_OUT+1}, s{P_BIM+1}, s{P_BRE+1}')
                I('s_cselect_b32 s100, 13312, 0')
                I('s_mul_i32 s91, s101, 3328'); I('s_add_u32 s100, s100, s91'); I(f's_add_u32 s100, s100, {LDS_Y+3*YW}')
                I('s_mul_i32 s101, s101, 3584')
                I(f's_lshl_b32 s91, s{S_G}, 6'); I('s_add_u32 s91, s91, 48'); I('s_mul_i32 s91, s91, 896'); I('s_add_u32 s101, s101, s91')
                I('s_mov_b32 exec_hi, 0x000fffff')
                for r in range(4):
                    I(f's_add_u32 m0, s100, {r*832}')
                    if r: I('s_add_u32 s101, s101, 896')
                    else: I('s_nop 0')
                    I(f'buffer_load_dwordx4 v238, {srd(SRD_OUT)}, s101 offen lds', tag='bdma')
                I('s_mov_b32 exec_hi, -1')
                self.label(L); self.merge(snap); self.vm['bdma']=0
            return f
        return [xpair(p) for p in range(3)], [bblock(p) for p in range(3)]
    def dma_setup(self):
        I=self.I
        for n,h in enumerate((0,3,2,1)): I(f'v_xor_b32 v{224+n}, {h<<4}, v{V_L16}')
        for g in range(8): I(f'v_xor_b32 v{228+g}, {g<<4}, v{V_L16}')
        I(f's_lshl_b32 s{S_T0}, s{S_G}, 6'); I(f's_lshl_b32 s{S_T1}, s{S_W}, 4'); I(f's_add_u32 s88, s{S_T0}, s{S_T1}')
        I('s_mul_i32 s89, s88, 896')
        I(f's_lshl_b32 s{S_T0}, s{S_C}, 6'); I(f's_lshl_b32 s{S_T1}, s{S_W}, 2'); I(f's_add_u32 s{S_T0}, s{S_T0}, s{S_T1}')
        I(f's_mul_i32 s92, s{S_T0}, 896')
        I(f's_mul_i32 s93, s{S_W}, 3584')
        I(f'v_and_b32 v7, 15, v{V_LANE}'); I('v_mul_u32_u24 v236, 896, v7'); I(f'v_lshrrev_b32 v9, 4, v{V_LANE}'); I('v_lshlrev_b32 v9, 4, v9')
        I('v_add_u32 v236, v236, v9')
        if self.opt.b13dma:
            I(f'v_lshrrev_b32 v9, 2, v{V_LANE}'); I('v_mul_u32_u24 v236, 896, v9'); I(f'v_and_b32 v9, 3, v{V_LANE}'); I('v_lshlrev_b32 v9, 4, v9')
            I('v_add_u32 v236, v236, v9'); I('v_add_u32 v236, 832, v236')
        I('v_add_u32 v237, s88, v7'); I('v_lshlrev_b32 v237, 1, v237')
    def q_b(self):
        I=self.I
        def row(im,n):
            def f():
                self.row_exec('0x000fffff')
                I(f's_add_u32 m0, s{S_YB}, {im*13312+n*832}')
                I(f's_add_u32 s91, s89, {n*896}')
                I(f'buffer_load_dwordx4 v{224+(n>>2)}, {srd(SRD_1 if im==0 else SRD_2)}, s91 offen lds', tag='bdma'); self.nb+=1
                self.row_exec_done()
            return f
        for im in range(2):
            for n in range(16): self.q.append(row(im,n))
        def b13(srdn,dst):
            def f():
                self.row_exec('-1')
                I(f'buffer_load_dwordx4 {vr(dst,4)}, v236, {srd(srdn)}, s89 offen offset:832', tag='b13'); self.nb+=1
            return f
        if self.opt.w1touch=='W':
            self.b13_loads=lambda: (b13(SRD_1,V_BF+52)(), b13(SRD_2,V_BF+56+52)())
        elif not self.opt.b13dma:
            self.q.append(b13(SRD_1,V_BF+52)); self.q.append(b13(SRD_2,V_BF+56+52))
        def lam():
            I(f'global_load_ushort v{V_IN}, v237, {sp(P_LRE)}', tag='lam')
            I(f'global_load_ushort v{V_IN+1}, v237, {sp(P_LIM)}', tag='lam')
            I(f'global_load_ushort v{V_IN+2}, v237, {sp(P_LDT)}', tag='lam')
        self.q.insert(0,lam)
    def q_x(self, alist):
        I=self.I
        def row(a,b):
            def f():
                g=2*a+(b>>1); d=(16*a+b)*896
                self.row_exec('0x00ffffff')
                I(f's_add_u32 m0, s93, {LDS_X+d}')
                I(f's_add_u32 s91, s92, {d}')
                I(f'buffer_load_dwordx4 v{228+g}, {srd(SRD_X)}, s91 offen lds', tag='x64'); self.nx+=1
                self.row_exec_done()
            return f
        for a in alist:
            for b in range(4): self.q.append(row(a,b))
    def b_read(self):
        I=self.I
        I(f'v_and_b32 v7, 15, v{V_LANE}'); I(f'v_lshrrev_b32 v8, 4, v{V_LANE}'); I('v_lshrrev_b32 v9, 2, v7')
        I('v_sub_u32 v9, 0, v9'); I('v_and_b32 v9, 3, v9'); I('v_xor_b32 v8, v8, v9')
        I('v_lshlrev_b32 v8, 4, v8'); I('v_mul_u32_u24 v7, 832, v7'); I('v_add_u32 v7, v7, v8'); I(f'v_add_u32 v7, s{S_YB}, v7')
        if self.opt.w1touch!='W': self.wait(vm=['bdma'])
        for im in range(2):
            for j in range(13):
                I(f'ds_read_b128 {vr(V_BF+56*im+4*j,4)}, v7 offset:{im*13312+j*64}', tag='brd')
    def touch_pf(self, which):
        I=self.I
        if which==1: pitch,nrow,nt,srdn=3584,512,8,SRD_W
        else:
            pitch,nrow,nt,srdn=4096,448,7,SRD_OUT
            self.make_srd(SRD_OUT, P_W2, 1792*4096)
        I(f'v_lshrrev_b32 v7, 2, v{V_LANE}'); I(f'v_and_b32 v8, 3, v{V_LANE}')
        if which==1:
            I(f's_and_b32 s{S_T1}, s95, 1'); I(f's_sub_u32 s{S_T1}, 3, s{S_T1}'); I(f'v_min_u32 v8, s{S_T1}, v8')
        I(f'v_mul_u32_u24 v7, {pitch}, v7'); I('v_lshlrev_b32 v8, 7, v8'); I('v_add_u32 v7, v7, v8')
        I(f's_mul_i32 s{S_T0}, s{S_W}, {nrow}'); I(f's_sub_u32 s{S_T1}, s86, 28'); I(f's_lshl_b32 s{S_T1}, s{S_T1}, 4'); I(f's_add_u32 s{S_T0}, s{S_T0}, s{S_T1}')
        I(f's_mul_i32 s{S_T0}, s{S_T0}, {pitch}')
        if which==1: I(f's_lshl_b32 s{S_T1}, s87, 7')
        else: I(f's_lshl_b32 s{S_T1}, s95, 9')
        I(f's_add_u32 s{S_T0}, s{S_T0}, s{S_T1}')
        for t in range(nt):
            I(f'buffer_load_dword v12, v7, {srd(srdn)}, s{S_T0} offen', tag='touch2')
            if t<nt-1: I(f's_add_u32 s{S_T0}, s{S_T0}, {64*pitch}')
    def ln8(self, oct=2, clears=True):
        I=self.I
        D=list(range(V_T,V_T+8)); SUM,SSQ,S2,Q2=24,25,26,27; R,C=28,30; TM=[32,34,36,38]
        self.wait(vm=['x8'])
        def reduce32():
            for rot in (8,4,2,1):
                I(f'v_add_f32_dpp v{SUM}, v{SUM}, v{SUM} row_ror:{rot} row_mask:0xf bank_mask:0xf')
                I(f'v_add_f32_dpp v{SSQ}, v{SSQ}, v{SSQ} row_ror:{rot} row_mask:0xf bank_mask:0xf')
            I(f'v_mov_b32 v{S2}, v{SUM}'); I(f'v_mov_b32 v{Q2}, v{SSQ}')
            I(f'v_permlane16_swap_b32 v{SUM}, v{S2}'); I(f'v_permlane16_swap_b32 v{SSQ}, v{Q2}')
            I(f'v_add_f32 v{SUM}, v{SUM}, v{S2}'); I(f'v_add_f32 v{SSQ}, v{SSQ}, v{Q2}')
        self.dot_sums(D,[SUM,SSQ,S2,Q2]); reduce32()
        self.ln_stats(SUM,SSQ,R,C,None)
        if clears and self.opt.w1touch=='W' and not self.opt.notouch3:
            Lt=self.newlabel('notouch')
            I(f's_cmp_lg_u32 s{S_W}, 3'); I(f's_cbranch_scc1 {Lt}')
            snap=self.snapshot()
            self.touch_w1_wg()
            self.label(Lt); self.merge(snap)
        I(f'v_and_b32 v7, 31, v{V_LANE}'); I('v_cmp_gt_u32 vcc, 28, v7')
        I(f'v_cndmask_b32 v{R}, 0, v{R}, vcc'); I(f'v_cndmask_b32 v{C}, 0, v{C}, vcc')
        self.normalize(D,R,C,TM)
        self.dot_sums(D,[SUM,SSQ,S2,Q2]); reduce32()
        self.ln_stats(SUM,SSQ,R,C,None)
        self.normalize(D,R,C,TM)
        self.auto=0
        I(f'v_lshrrev_b32 v8, 5, v{V_LANE}'); I(f's_lshl_b32 s{S_T0}, s{S_W}, 1'); I(f'v_add_u32 v8, s{S_T0}, v8')
        I('v_mul_u32_u24 v8, 960, v8'); I('v_lshlrev_b32 v9, 5, v7'); I('v_add_u32 v8, v8, v9'); I(f'v_add_u32 v8, {LDS_LN8}, v8')
        self.exec_set('0x0fffffff','0x0fffffff')
        I(f'ds_write_b128 v8, {vr(V_T,4)} offset:0'); I(f'ds_write_b128 v8, {vr(V_T+4,4)} offset:16')
        self.exec_full()
        self.wait(lg='all'); I('s_barrier')
        I(f'v_and_b32 v7, 15, v{V_LANE}'); I('v_lshrrev_b32 v8, 2, v7'); I('v_mul_u32_u24 v8, 960, v8')
        I(f'v_lshrrev_b32 v9, 4, v{V_LANE}'); I('v_lshlrev_b32 v10, 5, v9'); I('v_add_u32 v8, v8, v10')
        I(f'v_and_b32 v10, 3, v{V_LANE}'); I('v_lshlrev_b32 v10, 3, v10'); I('v_add_u32 v8, v8, v10')
        I(f's_lshl_b32 s{S_T0}, s{S_W}, 7'); I(f's_add_u32 s{S_T0}, s{S_T0}, {LDS_LN8}'); I(f'v_add_u32 v8, s{S_T0}, v8')
        I('v_lshlrev_b32 v9, 10, v9'); I('v_lshlrev_b32 v7, 4, v7'); I('v_add_u32 v9, v9, v7')
        I(f's_lshr_b32 s{S_T0}, s{oct}, 2'); I(f's_lshl_b32 s{S_T0}, s{S_T0}, 12')
        I(f's_and_b32 s{S_T1}, s{oct}, 3'); I(f's_lshl_b32 s{S_T1}, s{S_T1}, 8'); I(f's_add_u32 s{S_T0}, s{S_T0}, s{S_T1}')
        I(f's_lshl_b32 s{S_T1}, s{S_W}, 18'); I(f's_add_u32 s{S_T0}, s{S_T0}, s{S_T1}')
        if self.opt.w1touch=='W':
            Lno=self.newlabel('ln8none'); L6=self.newlabel('ln8no6')
            I(f's_cmp_eq_u32 s{S_W}, 3'); I(f's_cbranch_scc1 {Lno}')
            snap=self.snapshot()
            for i in range(2):
                I(f'ds_read_b64_tr_b16 v[{16+4*i}:{17+4*i}], v8 offset:{384*i}', tag='t0')
                I(f'ds_read_b64_tr_b16 v[{18+4*i}:{19+4*i}], v8 offset:{384*i+3840}', tag='t0')
            I(f's_add_u32 s{S_T1}, s{S_T0}, {3*262144}')
            self.wait(lg='all')
            I(f'buffer_store_dwordx4 v[16:19], v9, {srd(SRD_WS)}, s{S_T0} offen sc1', tag='st0')
            I(f'buffer_store_dwordx4 v[20:23], v9, {srd(SRD_WS)}, s{S_T1} offen sc1', tag='st0')
            I(f's_cmp_lg_u32 s{S_W}, 0'); I(f's_cbranch_scc1 {L6}')
            I(f'ds_read_b64_tr_b16 v[24:25], v8 offset:768', tag='t0')
            I(f'ds_read_b64_tr_b16 v[26:27], v8 offset:{768+3840}', tag='t0')
            I(f's_add_u32 s{S_T1}, s{S_T0}, {6*262144}')
            self.wait(lg='all')
            I(f'buffer_store_dwordx4 v[24:27], v9, {srd(SRD_WS)}, s{S_T1} offen sc1', tag='st0')
            self.label(L6)
            self.label(Lno); self.merge(snap); self.vm['st0']=0
        else:
            I(f'ds_read_b64_tr_b16 v[16:17], v8 offset:0', tag='t0')
            I(f'ds_read_b64_tr_b16 v[18:19], v8 offset:3840', tag='t0')
            Lskip=self.newlabel('ln8skip')
            I(f's_cmp_eq_u32 s{S_W}, 3'); I(f's_cbranch_scc1 {Lskip}')
            snap=self.snapshot()
            I(f'ds_read_b64_tr_b16 v[20:21], v8 offset:512', tag='t1')
            I(f'ds_read_b64_tr_b16 v[22:23], v8 offset:{512+3840}', tag='t1')
            I(f's_add_u32 s{S_T1}, s{S_T0}, {4*262144}')
            self.wait(lg='all')
            I(f'buffer_store_dwordx4 v[20:23], v9, {srd(SRD_WS)}, s{S_T1} offen sc1', tag='st0')
            self.label(Lskip); self.merge(snap)
            self.wait(lg='all')
            I(f'buffer_store_dwordx4 v[16:19], v9, {srd(SRD_WS)}, s{S_T0} offen sc1', tag='st0')
        if not clears:
            I('s_barrier'); return
        Ln=self.newlabel('noclr')
        I(f's_cmp_lg_u32 s{S_W}, {1 if self.opt.w1touch=="W" else 3}'); I(f's_cbranch_scc1 {Ln}')
        snap=self.snapshot()
        I('v_mov_b32 v8, 0')
        I('v_mov_b32 v10, -1'); I('v_mov_b32 v11, -1'); I(f'v_lshlrev_b32 v9, 3, v{V_LANE}')
        I(f's_lshl_b32 s{S_T0}, s{S_G}, 5'); I(f's_add_u32 s{S_T0}, s{S_T0}, s{S_C}'); I(f's_lshl_b32 s{S_T0}, s{S_T0}, 9')
        I(f's_add_u32 s{S_T0}, s{S_T0}, {WS_E}')
        I(f'buffer_store_dwordx2 v[10:11], v9, {srd(SRD_WS)}, s{S_T0} offen sc1', tag='st0')
        I(f's_mul_i32 s{S_T0}, s{S_C}, 7'); I(f's_add_u32 s{S_T0}, s{S_T0}, s{S_G}'); I(f's_lshl_b32 s{S_T0}, s{S_T0}, 6')
        I(f's_add_u32 s{S_T0}, s{S_T0}, {WS_FH}')
        I('v_mov_b32 v10, 0')
        self.exec_set(1,0)
        I(f'buffer_store_dword v10, v8, {srd(SRD_WS)}, s{S_T0} offen sc1', tag='st0')
        Lg=self.newlabel('nog1clr'); Lc=self.newlabel('nocclr')
        I(f's_cmp_eq_u32 s{S_HASG1}, 0'); I(f's_cbranch_scc1 {Lg}')
        I(f's_mul_i32 s{S_T0}, s{S_DT1}, 28'); I(f's_add_u32 s{S_T0}, s{S_T0}, s{S_FT}'); I(f's_lshl_b32 s{S_T0}, s{S_T0}, 6')
        I(f's_add_u32 s{S_T0}, s{S_T0}, {WS_FG}')
        I(f'buffer_store_dword v10, v8, {srd(SRD_WS)}, s{S_T0} offen sc1', tag='st0')
        self.label(Lg)
        I('s_cmp_lg_u32 s95, 0'); I(f's_cbranch_scc1 {Lc}')
        I(f's_lshl_b32 s{S_T0}, s86, 6'); I(f's_add_u32 s{S_T0}, s{S_T0}, {WS_FC}')
        I(f'buffer_store_dword v10, v8, {srd(SRD_WS)}, s{S_T0} offen sc1', tag='st0')
        self.label(Lc)
        self.exec_full()
        self.label(Ln); self.merge(snap); self.vm['st0']=0
        I('s_barrier')

    def ln8_extra(self):
        I=self.I
        L=self.newlabel('noextra'); Lp=self.newlabel('extra')
        I(f's_cmp_lg_u32 s{S_HASG1}, 0'); I(f's_cbranch_scc1 {L}')
        snap=self.snapshot()
        I('s_lshr_b32 s3, s95, 1'); I('s_mul_i32 s3, s3, 7'); I('s_add_u32 s3, s3, s86'); I('s_add_u32 s3, s3, 203')
        self.label(Lp)
        self.x8_issue(3)
        I('s_waitcnt vmcnt(0)'); self.vm={}; self.vm['x8']=0
        self.ln8(oct=3, clears=False)
        I('s_add_u32 s3, s3, 28'); I('s_cmp_lt_u32 s3, 256'); I(f's_cbranch_scc1 {Lp}')
        I('s_waitcnt vmcnt(0)')
        self.label(L); self.restore(snap); self.vm['st0']=min(self.vm.get('st0',0),0)

    def arrive0(self):
        I=self.I
        self.wait(vm=['st0']); I('s_barrier')
        L=self.newlabel('arr')
        I(f's_cmp_lg_u32 s{S_W}, 0'); I(f's_cbranch_scc1 {L}')
        snap=self.snapshot()
        I('s_and_b32 s3, s2, 3'); I('s_lshl_b32 s3, s3, 6'); I('v_mov_b32 v8, s3'); I('v_mov_b32 v9, 1')
        self.exec_set(1,0)
        I(f'global_atomic_add v8, v9, {sp(P_DBG)} sc1')
        self.exec_full()
        self.label(L); self.merge(snap)

    def w1_setup(self):
        I=self.I
        self.ring_setup(3584, S_WH)
        I(f's_mul_i32 s{S_WBEG}, s{S_W}, {512*3584}'); I(f's_lshl_b32 s{S_T0}, s{S_FT}, 7'); I(f's_add_u32 s{S_WBEG}, s{S_WBEG}, s{S_T0}')
        I(f's_mov_b32 s{S_WO}, s{S_WBEG}')

    def lam_consts(self):
        I=self.I
        LRE,LIM,LDT=V_IN,V_IN+1,V_IN+2
        t=list(range(16,40))
        self.wait(vm=['lam'])
        for r in (LRE,LIM,LDT): I(f'v_lshlrev_b32 v{r}, 16, v{r}')
        I(f'v_mul_f32 v{LDT}, 0x3fb8aa3b, v{LDT}'); I(f'v_exp_f32 v{LDT}, v{LDT}')
        self.rnd_bf16(LDT)
        I(f'v_mul_f32 v16, v{LDT}, v{LRE}'); I(f'v_mul_f32 v17, v{LDT}, v{LIM}')
        I('v_mul_f32 v16, 0x3fb8aa3b, v16'); I('v_mul_f32 v17, 0.15915494, v17')
        I('v_exp_f32 v16, v16'); I('v_fract_f32 v17, v17')
        I('v_cos_f32 v18, v17'); I('v_sin_f32 v19, v17')
        I(f'v_mul_f32 v{V_LR}, v16, v18'); I(f'v_mul_f32 v{V_LI}, v16, v19')
        I(f'v_add_f32 v16, -1.0, v{V_LR}')
        I(f'v_mul_f32 v17, v{LRE}, v{LRE}'); I(f'v_fma_f32 v17, v{LIM}, v{LIM}, v17'); I('v_rcp_f32 v17, v17')
        I(f'v_mul_f32 v18, v16, v{LRE}'); I(f'v_fma_f32 v18, v{V_LI}, v{LIM}, v18')
        I(f'v_mul_f32 v19, v16, v{LIM}'); I(f'v_fma_f32 v19, v{V_LI}, v{LRE}, -v19')
        I('v_add_f32 v17, v17, v17')
        I(f'v_mul_f32 v{V_K1}, v18, v17'); I(f'v_mul_f32 v{V_K2}, v19, v17'); I(f'v_sub_f32 v{V_K2}, 0, v{V_K2}')
        self.csq(16,17,V_LR,V_LI,30); self.csq(18,19,16,17,30); self.csq(16,17,18,19,30); self.csq(20,21,16,17,30)
        self.csq(22,23,20,21,30)
        self.cmul(24,25,22,23,20,21,30,31)
        self.csq(V_L64R,V_L64I,22,23,30)
        self.csq(16,17,V_L64R,V_L64I,30); self.csq(18,19,16,17,30); self.csq(V_L512R,V_L512I,18,19,30)
        I(f'v_mov_b32 v{V_PR}, 1.0'); I(f'v_mov_b32 v{V_PI}, 0')
        for (lo,hi,r) in (('0xffff0000','-1',20),('0','-1',22),('0','0xffff0000',24)):
            self.exec_set(lo,hi); I(f'v_mov_b32 v{V_PR}, v{r}'); I(f'v_mov_b32 v{V_PI}, v{r+1}')
        self.exec_full()
        I(f'v_mov_b32 v{V_IN}, v20'); I(f'v_mov_b32 v{V_IN+1}, v21')

    def x_addr(self):
        I=self.I
        I(f'v_and_b32 v7, 15, v{V_LANE}'); I('v_lshrrev_b32 v8, 2, v7'); I('v_lshlrev_b32 v8, 4, v8')
        I('v_and_b32 v9, 3, v7'); I('v_add_u32 v8, v8, v9'); I('v_mul_u32_u24 v8, 896, v8')
        I(f'v_lshrrev_b32 v9, 4, v{V_LANE}'); I('v_lshrrev_b32 v7, 1, v7'); I('v_xor_b32 v9, v9, v7'); I('v_lshlrev_b32 v9, 4, v9')
        I('v_add_u32 v14, v8, v9'); I('v_xor_b32 v15, 64, v14')
    def ln64(self):
        I=self.I
        D=list(range(V_X64,V_X64+56)); SUM,SSQ,S2,Q2=24,25,26,27; R,C=28,30; TM=[32,34,36,38]
        I(f's_mul_i32 s{S_T0}, s{S_W}, 3584'); I(f'v_add_u32 v22, s{S_T0}, v14'); I(f'v_add_u32 v23, s{S_T0}, v15')
        self.allow_bread=True
        while self.nx<16: self.tick()
        if self.opt.w1touch!='W': self.wait(vm=['x64'])
        for j in range(14):
            I(f'ds_read_b128 {vr(V_X64+4*j,4)}, v{22+(j&1)} offset:{LDS_X+(j>>1)*128}', tag=('xr',j))
        accs=[SUM,SSQ,S2,Q2]
        for n,d in enumerate(D):
            if n%4==0: self.wait(lg=[('xr',n//4)])
            sa,qa = accs[2*(n&1)], accs[2*(n&1)+1]
            if n<2:
                I(f'v_dot2_f32_bf16 v{sa}, v{d}, s{S_ONES}, 0'); I(f'v_dot2_f32_bf16 v{qa}, v{d}, v{d}, 0')
            else:
                I(f'v_dot2_f32_bf16 v{sa}, v{d}, s{S_ONES}, v{sa}'); I(f'v_dot2_f32_bf16 v{qa}, v{d}, v{d}, v{qa}')
        I(f'v_add_f32 v{SUM}, v{SUM}, v{S2}'); I(f'v_add_f32 v{SSQ}, v{SSQ}, v{Q2}')
        for sw in ('16','32'):
            I(f'v_mov_b32 v{S2}, v{SUM}'); I(f'v_mov_b32 v{Q2}, v{SSQ}')
            I(f'v_permlane{sw}_swap_b32 v{SUM}, v{S2}'); I(f'v_permlane{sw}_swap_b32 v{SSQ}, v{Q2}')
            I(f'v_add_f32 v{SUM}, v{SUM}, v{S2}'); I(f'v_add_f32 v{SSQ}, v{SSQ}, v{Q2}')
        self.stamp('dots',fine=True)
        self.ln_stats(SUM,SSQ,R,C,None)
        self.allow_bread=True
        def h(n):
            I(f'ds_write_b128 v{22+(n&1)}, {vr(V_X64+4*n,4)} offset:{LDS_X+(n>>1)*128}', tag='xw')
        self.normalize(D,R,C,TM,hook=h)

    def row_stats(self):
        I=self.I
        D=list(range(V_X64,V_X64+56)); SUM,SSQ,S2,Q2=24,25,26,27; R,C=28,30
        I(f's_mul_i32 s{S_T0}, s{S_W}, 3584'); I(f'v_add_u32 v22, s{S_T0}, v14'); I(f'v_add_u32 v23, s{S_T0}, v15')
        for j in range(14):
            I(f'ds_read_b128 {vr(V_X64+4*j,4)}, v{22+(j&1)} offset:{LDS_X+(j>>1)*128}', tag=('xr',j))
        accs=[SUM,SSQ,S2,Q2]
        for n,d in enumerate(D):
            if n%4==0: self.wait(lg=[('xr',n//4)])
            sa,qa = accs[2*(n&1)], accs[2*(n&1)+1]
            if n<2:
                I(f'v_dot2_f32_bf16 v{sa}, v{d}, s{S_ONES}, 0'); I(f'v_dot2_f32_bf16 v{qa}, v{d}, v{d}, 0')
            else:
                I(f'v_dot2_f32_bf16 v{sa}, v{d}, s{S_ONES}, v{sa}'); I(f'v_dot2_f32_bf16 v{qa}, v{d}, v{d}, v{qa}')
        I(f'v_add_f32 v{SUM}, v{SUM}, v{S2}'); I(f'v_add_f32 v{SSQ}, v{SSQ}, v{Q2}')
        for sw in ('16','32'):
            I(f'v_mov_b32 v{S2}, v{SUM}'); I(f'v_mov_b32 v{Q2}, v{SSQ}')
            I(f'v_permlane{sw}_swap_b32 v{SUM}, v{S2}'); I(f'v_permlane{sw}_swap_b32 v{SSQ}, v{Q2}')
            I(f'v_add_f32 v{SUM}, v{SUM}, v{S2}'); I(f'v_add_f32 v{SSQ}, v{SSQ}, v{Q2}')
        self.ln_stats(SUM,SSQ,R,C,None)
        I(f'v_and_b32 v8, 15, v{V_LANE}'); I('v_lshlrev_b32 v8, 2, v8'); I(f's_add_u32 s{S_T0}, s{S_YB}, 24576'); I(f'v_add_u32 v8, s{S_T0}, v8')
        self.exec_set('0xffff','0')
        I(f'ds_write_b32 v8, v{SUM}', tag='stw'); I(f'ds_write_b32 v8, v{R} offset:64', tag='stw')
        self.exec_full()
    def stat_reads(self):
        I=self.I
        self.wait(lg=['stw']); I('s_barrier')
        I(f'v_lshrrev_b32 v8, 4, v{V_LANE}'); I('v_lshlrev_b32 v8, 4, v8'); I(f'v_add_u32 v8, {LDS_Y+24576}, v8'); I(f'v_add_u32 v9, {2*YW}, v8')
        for i in range(4):
            I(f'ds_read_b128 {vr(16+4*i,4)}, v{8+(i>>1)} offset:{(i&1)*YW}', tag='stat')
            I(f'ds_read_b128 {vr(88+4*i,4)}, v{8+(i>>1)} offset:{(i&1)*YW+64}', tag='stat')
    def bu_gemm(self):
        I=self.I
        BUF=[V_X64, V_X64+16]
        for r in range(4): I(f'v_mov_b32 v{36+r}, s{S_ONES}')
        def rd(j):
            for i in range(4):
                I(f'ds_read_b128 {vr(BUF[j%2]+4*i,4)}, v{14+(j&1)} offset:{LDS_X+i*3584+(j>>1)*128}', tag=('xa',j))
        rd(0); rd(1)
        bup=self.auto
        for j in range(14):
            self.auto = bup if j>=self.opt.bupj else 0
            self.wait(lg=[('xa',j)])
            for im in range(2):
                d=104+4*im
                I(f'v_mfma_f32_16x16x32_bf16 {vr(d,4)}, v[36:39], {vr(V_BF+56*im+4*j,4)}, {vr(d,4) if j else 0}')
            for i in range(4):
                for im in range(2):
                    d=V_RAW+16*im+4*i
                    cin = vr(d,4) if j else '0'
                    I(f'v_mfma_f32_16x16x32_bf16 {vr(d,4)}, {vr(BUF[j%2]+4*i,4)}, {vr(V_BF+56*im+4*j,4)}, {cin}')
            if j+2<14: rd(j+2)
            if j==12:
                sv=self.auto; self.auto=0
                self.stat_reads(); self.auto=sv
    def stat_loads(self):
        I=self.I
        I(f'v_lshrrev_b32 v8, 4, v{V_LANE}'); I('v_lshlrev_b32 v8, 6, v8')
        I(f's_lshl_b32 s{S_T0}, s{S_C}, 8'); I(f's_add_u32 s{S_T0}, s{S_T0}, {WS_STAT}'); I(f's_add_u32 s{S_T1}, s{S_T0}, 8192')
        for n in range(4):
            I(f'buffer_load_dwordx4 {vr(16+4*n,4)}, v8, {srd(SRD_WS)}, s{S_T0} offen offset:{16*n} sc1', tag='stat')
            I(f'buffer_load_dwordx4 {vr(88+4*n,4)}, v8, {srd(SRD_WS)}, s{S_T1} offen offset:{16*n} sc1', tag='stat')
    def x_resid_reads(self):
        I=self.I
        I(f'v_and_b32 v8, 15, v{V_LANE}'); I(f'v_lshrrev_b32 v9, 4, v{V_LANE}')
        I('v_lshrrev_b32 v10, 1, v9'); I('v_bfe_u32 v11, v8, 1, 1'); I('v_xor_b32 v10, v10, v11')
        I(f's_xor_b32 s{S_T0}, s{S_WH}, s{S_WL}'); I(f's_lshl_b32 s{S_T0}, s{S_T0}, 2'); I(f'v_xor_b32 v10, s{S_T0}, v10')
        I('v_lshlrev_b32 v10, 4, v10'); I('v_and_b32 v9, 1, v9'); I('v_lshlrev_b32 v9, 3, v9'); I('v_add_u32 v10, v10, v9')
        I(f's_lshl_b32 s{S_T0}, s{S_WL}, 5'); I(f'v_add_u32 v8, s{S_T0}, v8'); I('v_mul_u32_u24 v8, 896, v8'); I('v_add_u32 v8, v8, v10')
        I(f's_lshl_b32 s{S_T0}, s{S_G}, 7'); I(f'v_add_u32 v8, s{S_T0}, v8'); I('v_xor_b32 v9, 32, v8')
        for y in range(2):
            for x in range(2):
                I(f'ds_read_b64 {vr(V_XR+4*y+2*x,2)}, v{8+(x^y)} offset:{LDS_X+y*14336}', tag='xres')
    def ln_fix(self):
        I=self.I
        self.wait(lg=['stat'])
        for im in range(2):
            sb=104+4*im
            for t in range(0,16,2):
                r=V_RAW+16*im+t
                I(f'v_pk_fma_f32 v[{r}:{r+1}], v[{16+t}:{17+t}], v[{sb}:{sb+1}], v[{r}:{r+1}] neg_lo:[1,0,0] neg_hi:[1,0,0]')
            for t in range(0,16,2):
                r=V_RAW+16*im+t
                I(f'v_pk_mul_f32 v[{r}:{r+1}], v[{r}:{r+1}], v[{88+t}:{89+t}]')

    def scan1(self):
        I=self.I
        ER,EI,T0,T1=16,17,18,19
        L16R,L16I=V_IN,V_IN+1
        I(f'v_mov_b32 v{ER}, v{V_RAW}'); I(f'v_mov_b32 v{EI}, v{V_RAW+16}')
        for t in range(1,16):
            I(f'v_fma_f32 v{T0}, v{V_LR}, v{ER}, v{V_RAW+t}')
            I(f'v_fma_f32 v{T1}, v{V_LR}, v{EI}, v{V_RAW+16+t}')
            I(f'v_fma_f32 v{T0}, -v{V_LI}, v{EI}, v{T0}')
            I(f'v_fma_f32 v{EI}, v{V_LI}, v{ER}, v{T1}')
            ER,T0=T0,ER
        GR=[20,21,22,23]; GI=[24,25,26,27]
        self.allgather_q(ER,*GR); self.allgather_q(EI,*GI)
        for q in range(1,4):
            self.cfma(GR[q],GI[q],L16R,L16I,GR[q-1],GI[q-1],GR[q],GI[q],28,29)
        I(f'v_mov_b32 v{V_SR}, 0'); I(f'v_mov_b32 v{V_SI}, 0')
        for n,(lo,hi) in enumerate((('0xffff0000','-1'),('0','-1'),('0','0xffff0000'))):
            self.exec_set(lo,hi); I(f'v_mov_b32 v{V_SR}, v{GR[n]}'); I(f'v_mov_b32 v{V_SI}, v{GI[n]}')
        self.exec_full()
        I(f'v_mov_b32 v10, v{GR[3]}'); I(f'v_mov_b32 v11, v{GI[3]}')
        I(f'v_lshlrev_b32 v8, 3, v{V_LANE}')
        I(f's_lshl_b32 s{S_T0}, s{S_G}, 5'); I(f's_add_u32 s{S_T0}, s{S_T0}, s{S_C}'); I(f's_lshl_b32 s{S_T0}, s{S_T0}, 9')
        I(f's_lshl_b32 s{S_T1}, s{S_W}, 7'); I(f's_add_u32 s{S_T0}, s{S_T0}, s{S_T1}'); I(f's_add_u32 s{S_T0}, s{S_T0}, {WS_E}')
        self.exec_set('0xffff',0)
        I(f'buffer_store_dwordx2 v[10:11], v8, {srd(SRD_WS)}, s{S_T0} offen sc1', tag='stE')
        self.exec_full()

    def wait_e0(self):
        I=self.I
        L=self.newlabel('e0'); D=self.newlabel('e0d')
        self.wait(vm=['e0c'])
        I('v_cmp_gt_u32 vcc, 64, v34'); I(f's_cbranch_vccz {D}')
        snap=self.snapshot()
        I(f's_mov_b32 s{S_BOUND}, 0x40000')
        self.label(L)
        I(f'global_load_dword v34, v35, {sp(P_DBG)} sc1'); I('s_waitcnt vmcnt(0)')
        I('v_cmp_gt_u32 vcc, 64, v34'); I(f's_cbranch_vccz {D}')
        I('s_sleep 4'); I(f's_sub_u32 s{S_BOUND}, s{S_BOUND}, 1'); I(f's_cbranch_scc0 {L}')
        self.label(D); self.restore(snap)

    def dedup_touch(self, sbase, nl=64, dst=13):
        I=self.I
        I(f'v_lshlrev_b32 v9, 7, v{V_LANE}')
        if nl<64: self.exec_set('-1','0')
        I(f'buffer_load_dword v{dst}, v9, {srd(SRD_WS)}, s{sbase} offen sc1', tag='touch')
        if nl<64: self.exec_full()
    def gemm1(self):
        I=self.I
        SL=[V_RING+16*i for i in range(6)]
        DEP=len(SL)
        I(f's_mul_i32 s22, s{S_DT1}, 262144'); I(f's_lshl_b32 s{S_T0}, s{S_W}, 16'); I(f's_add_u32 s22, s22, s{S_T0}')
        I(f's_lshl_b32 s{S_T0}, s{S_WL}, 11'); I(f's_xor_b32 s{S_T1}, s{S_T0}, 2048')
        I(f's_add_u32 s23, s22, s{S_T1}'); I(f's_add_u32 s22, s22, s{S_T0}')
        I(f's_mov_b32 s{S_A}, s22'); I(f's_mov_b32 s{S_B}, s23')
        def ld(k,y):
            r=SL[k%DEP]
            sx=S_A if y<2 else S_B
            I(f'buffer_load_dwordx4 {vr(r+4*y,4)}, v{V_L16}, {srd(SRD_WS)}, s{sx} offen offset:{(y&1)*1024} sc1', tag=('ht',k,y))
            if (y&1) and k<15: I(f's_add_u32 s{sx}, s{sx}, 4096')
        pro=[(k,y) for k in range(DEP) for y in range(4)]
        while pro:
            ld(*pro.pop(0))
            if self.R['iss']<self.R['n']: self.ring_tick()
            if self.opt.tHT and len(pro)==self.opt.tHTpos:
                I(f's_mul_i32 s{S_T2}, s86, 37'); I(f's_lshr_b32 s{S_T2}, s{S_T2}, 8'); I(f's_lshl_b32 s{S_T2}, s{S_T2}, 13')
                I(f's_mul_i32 s{S_T3}, s{S_DT1}, 262144'); I(f's_add_u32 s{S_T2}, s{S_T2}, s{S_T3}'); I(f's_lshl_b32 s{S_T3}, s{S_W}, 16')
                I(f's_add_u32 s{S_T2}, s{S_T2}, s{S_T3}'); I(f's_add_u32 s{S_T2}, s{S_T2}, {6*4096}')
                self.dedup_touch(S_T2,dst=12)
        self.ring_finish(); self.wait(lg='all')
        self.stamp('w1 in regs')
        self.w2_setup(); self.R['maxrd']=0
        for k in range(16):
            r=SL[k%DEP]
            for y in range(4):
                if self.opt.waitstep:
                    if y==0: self.wait(vm=[('ht',k,yy) for yy in range(4)])
                else: self.wait(vm=[('ht',k,y)])
                if y==0: self.stamp(f'g1.{k}',fine=3)
                for x in range(4):
                    d=V_ACC+16*x+4*y
                    cin=vr(d,4) if k else '0'
                    I(f'v_mfma_f32_16x16x32_bf16 {vr(d,4)}, {ar(16*k+4*x,4)}, {vr(r+4*y,4)}, {cin}')
                if k+DEP<16: ld(k+DEP,y)
                else:
                    self.R['maxrd']=k
                    self.tick()
        self.R['maxrd']=99
        self.stamp('g1loop')

    def p2_flag_addr(self):
        I=self.I
        I(f's_mul_i32 s{S_T0}, s{S_W}, 7'); I(f's_lshr_b32 s{S_T1}, s{S_T0}, 2')
        I(f's_mul_i32 s{S_T2}, s{S_C}, 7'); I(f's_add_u32 s{S_T2}, s{S_T2}, s{S_T1}')
        I(f's_add_u32 s{S_T3}, s{S_T0}, 6'); I(f's_lshr_b32 s{S_T3}, s{S_T3}, 2'); I(f's_sub_u32 s{S_T3}, s{S_T3}, s{S_T1}')
        I(f'v_min_u32 v14, s{S_T3}, v{V_LANE}'); I(f'v_add_u32 v14, s{S_T2}, v14'); I('v_lshlrev_b32 v14, 6, v14')
        I(f'v_add_u32 v14, {WS_FH}, v14')
        I(f'v_min_u32 v8, 13, v{V_LANE}'); I('v_lshlrev_b32 v9, 6, v8')
        I(f's_mul_i32 s{S_T1}, s{S_G}, 28'); I(f's_add_u32 s{S_T1}, s{S_T1}, s{S_T0}'); I(f's_lshl_b32 s{S_T1}, s{S_T1}, 6'); I(f's_add_u32 s{S_T1}, s{S_T1}, {WS_FG}')
        I(f's_lshl_b32 s{S_T0}, s{S_T0}, 6'); I(f's_add_u32 s{S_T0}, s{S_T0}, {WS_FC-7*64}')
        I(f'v_mov_b32 v10, s{S_T1}'); I(f'v_mov_b32 v11, s{S_T0}'); I('v_cmp_gt_u32 vcc, 7, v8'); I('v_cndmask_b32 v10, v11, v10, vcc')
        I('v_add_u32 v12, v9, v10')

    def e_addr(self):
        I=self.I
        OF=V_EOF
        I(f's_lshl_b32 s{S_T0}, s{S_G}, 14'); I(f's_add_u32 s{S_T0}, s{S_T0}, {WS_E}')
        I(f's_add_u32 s{SRD_1}, s{P_WS}, s{S_T0}'); I(f's_addc_u32 s{SRD_1+1}, s{P_WS+1}, 0')
        I(f's_and_b32 s{SRD_1+1}, s{SRD_1+1}, 0xffff'); I(f's_mov_b32 s{SRD_1+2}, 16384'); I(f's_mov_b32 s{SRD_1+3}, 0x20000')
        I(f'v_lshrrev_b32 v8, 4, v{V_LANE}'); I('v_lshlrev_b32 v8, 12, v8')
        I(f'v_and_b32 v9, 15, v{V_LANE}'); I('v_lshlrev_b32 v9, 3, v9'); I('v_add_u32 v8, v8, v9')
        I(f's_sub_u32 s{S_T0}, s{S_C}, 32'); I(f's_lshl_b32 s{S_T0}, s{S_T0}, 9'); I(f's_lshl_b32 s{S_T1}, s{S_W}, 7')
        I(f's_add_u32 s{S_T0}, s{S_T0}, s{S_T1}'); I(f'v_add_u32 v8, s{S_T0}, v8')
        for i in range(8): I(f'v_add_u32 v{OF+i}, {512*i}, v8')
    def e_loads(self):
        for i in range(8):
            self.I(f'buffer_load_dwordx2 {vr(V_EL+2*i,2)}, v{V_EOF+i}, {srd(SRD_1)}, 0 offen sc1', tag='E')

    def finalize(self):
        I=self.I
        EL=V_EL
        L=self.newlabel('pollE'); Dn=self.newlabel('pollEd')
        sv=self.auto; self.auto=0
        self.wait(vm=['E'])
        I(f's_mov_b32 s{S_BOUND}, 0x40000')
        self.label(L)
        I(f'v_max3_u32 v8, v{EL}, v{EL+1}, v{EL+2}')
        for i in range(3,15,2): I(f'v_max3_u32 v8, v8, v{EL+i}, v{EL+i+1}')
        I(f'v_max_u32 v8, v8, v{EL+15}')
        I('v_cmp_eq_u32 vcc, -1, v8')
        I(f's_cbranch_vccz {Dn}')
        snap=self.snapshot()
        self.e_loads()
        I('s_waitcnt vmcnt(0)')
        I('s_sleep 4'); I(f's_sub_u32 s{S_BOUND}, s{S_BOUND}, 1'); I(f's_cbranch_scc0 {L}')
        self.label(Dn); self.restore(snap)
        self.auto=sv
        yield
        QR,QI=EL,EL+1
        for i in range(1,8):
            self.cfma(QR,QI,V_L64R,V_L64I,QR,QI,EL+2*i,EL+2*i+1,36,37)
            yield
        GR=[20,21,22,23]; GI=[24,25,26,27]
        self.allgather_q(QR,*GR); yield
        self.allgather_q(QI,*GI); yield
        for q in range(1,4):
            self.cfma(GR[q],GI[q],V_L512R,V_L512I,GR[q-1],GI[q-1],GR[q],GI[q],28,29)
            yield
        self.cfma(V_SR,V_SI,V_PR,V_PI,GR[3],GI[3],V_SR,V_SI,28,29)
        yield
        HR,HI,T0,T1=V_SR,V_SI,36,37
        OR,OI=V_RAW,V_RAW+16
        for t in range(16):
            I(f'v_fma_f32 v{T0}, v{V_LR}, v{HR}, v{OR+t}')
            I(f'v_fma_f32 v{T1}, v{V_LR}, v{HI}, v{OI+t}')
            I(f'v_fma_f32 v{T0}, -v{V_LI}, v{HI}, v{T0}')
            I(f'v_fma_f32 v{HI}, v{V_LI}, v{HR}, v{T1}')
            HR,T0=T0,HR
            yield
            I(f'v_mul_f32 v{OR+t}, v{V_K1}, v{HR}'); I(f'v_mul_f32 v{OI+t}, v{V_K2}, v{HR}')
            I(f'v_fma_f32 v{OR+t}, v{V_K2}, v{HI}, v{OR+t}'); I(f'v_fma_f32 v{OI+t}, -v{V_K1}, v{HI}, v{OI+t}')
            yield
        for t in range(8):
            I(f'v_cvt_pk_bf16_f32 v{OR+t}, v{OR+2*t}, v{OR+2*t+1}'); I(f'v_cvt_pk_bf16_f32 v{OI+t}, v{OI+2*t}, v{OI+2*t+1}')
            if t%2: yield
        I(f'v_and_b32 v8, 15, v{V_LANE}'); I(f's_lshl_b32 s{S_T0}, s{S_WL}, 4'); I(f'v_add_u32 v8, s{S_T0}, v8')
        I('v_lshrrev_b32 v9, 3, v8'); I('v_lshlrev_b32 v9, 2, v9')
        yield
        I('v_and_b32 v10, 3, v8'); I('v_add_u32 v9, v9, v10')
        I('v_bfe_u32 v10, v8, 2, 1'); I('v_lshlrev_b32 v11, 4, v10'); I('v_add_u32 v9, v9, v11')
        yield
        I('v_and_b32 v11, 7, v9'); I('v_lshlrev_b32 v10, 2, v10'); I('v_xor_b32 v11, v11, v10')
        I(f'v_lshrrev_b32 v10, 4, v{V_LANE}'); I('v_lshlrev_b32 v10, 1, v10')
        yield
        I('v_xor_b32 v10, v10, v11'); I('v_lshlrev_b32 v10, 4, v10')
        I('v_lshlrev_b32 v9, 7, v9'); I('v_add_u32 v9, v9, v10')
        yield
        I(f's_lshl_b32 s{S_T0}, s{S_WH}, 12'); I(f'v_add_u32 v9, s{S_T0}, v9')
        I('v_xor_b32 v10, 16, v9')
        I('s_barrier')
        I(f'ds_write_b128 v9, {vr(OR,4)} offset:{LDS_X}', tag='hw'); I(f'ds_write_b128 v10, {vr(OR+4,4)} offset:{LDS_X}', tag='hw')
        I(f'ds_write_b128 v9, {vr(OI,4)} offset:{LDS_X+8192}', tag='hw'); I(f'ds_write_b128 v10, {vr(OI+4,4)} offset:{LDS_X+8192}', tag='hw')
        yield
        I(f'v_lshrrev_b32 v8, 2, v{V_LANE}'); I('v_and_b32 v9, 7, v8'); I(f'v_bfe_u32 v10, v{V_LANE}, 1, 1')
        I('v_xor_b32 v9, v9, v10'); I('v_lshlrev_b32 v9, 4, v9')
        yield
        I('v_lshlrev_b32 v8, 7, v8'); I('v_add_u32 v8, v8, v9')
        I(f'v_and_b32 v9, 1, v{V_LANE}'); I('v_lshlrev_b32 v9, 3, v9'); I('v_add_u32 v8, v8, v9')
        I(f's_lshl_b32 s{S_T0}, s{S_W}, 12'); I(f'v_add_u32 v8, s{S_T0}, v8')
        yield
        self.wait(lg=['hw']); I('s_barrier')
        FR=16
        for nb in range(4):
            I(f'v_xor_b32 v9, {nb<<5}, v8'); I('v_xor_b32 v10, 64, v9')
            I(f'ds_read_b64_tr_b16 {vr(FR+4*nb,2)}, v9 offset:{LDS_X}', tag=('hp',nb))
            I(f'ds_read_b64_tr_b16 {vr(FR+4*nb+2,2)}, v10 offset:{LDS_X+2048}', tag=('hp',nb))
        I(f's_mul_i32 s{S_T0}, s{S_C}, {28*4096}'); I(f's_lshl_b32 s{S_T1}, s{S_G}, 14'); I(f's_add_u32 s{S_T0}, s{S_T0}, s{S_T1}')
        I(f's_lshl_b32 s{S_T1}, s{S_W}, 12'); I(f's_add_u32 s{S_T0}, s{S_T0}, s{S_T1}'); I(f's_add_u32 s94, s{S_T0}, {WS_HP}')
        yield
        if self.opt.gearly: I(f'global_load_dword v53, v12, {sp(P_WS)} sc1', tag='fg')
        for nb in range(4):
            self.wait(lg=[('hp',nb)])
            I(f'buffer_store_dwordx4 {vr(FR+4*nb,4)}, v{V_L16}, {srd(SRD_WS)}, s94 offen offset:{nb*1024} sc1', tag='stH')
            yield

    def flag_set(self, sa, mul, sb, base):
        I=self.I
        L=self.newlabel('flag')
        I(f's_cmp_lg_u32 s{S_W}, 0'); I(f's_cbranch_scc1 {L}')
        snap=self.snapshot()
        I(f's_mul_i32 s{S_T0}, s{sa}, {mul}'); I(f's_add_u32 s{S_T0}, s{S_T0}, s{sb}'); I(f's_lshl_b32 s{S_T0}, s{S_T0}, 6')
        I(f's_add_u32 s{S_T0}, s{S_T0}, {base}')
        I('v_mov_b32 v8, 0'); I('v_mov_b32 v9, 1')
        self.exec_set(1,0)
        I(f'buffer_store_dword v9, v8, {srd(SRD_WS)}, s{S_T0} offen sc1')
        self.exec_full()
        self.label(L); self.merge(snap)

    def g_bias_load(self):
        I=self.I
        I(f'v_lshrrev_b32 v8, 4, v{V_LANE}'); I('v_lshlrev_b32 v8, 3, v8')
        I(f's_lshl_b32 s{S_T0}, s{S_FT}, 7'); I(f's_lshl_b32 s{S_T1}, s{S_WH}, 6'); I(f's_add_u32 s{S_T0}, s{S_T0}, s{S_T1}')
        I(f'v_add_u32 v8, s{S_T0}, v8')
        I(f'global_load_dwordx2 v[32:33], v8, {sp(P_B1)}', tag='b1')
        I(f'global_load_dwordx2 v[34:35], v8, {sp(P_B1)} offset:32', tag='b1')

    def g_epilogue(self):
        I=self.I
        I('s_barrier')
        self.auto=self.opt.gepip
        self.reduce(V_RING)
        self.wait(vm=['b1'])
        for x in range(2):
            for h in range(2):
                I(f'v_lshlrev_b32 v{16+4*x+2*h}, 16, v{32+2*x+h}'); I(f'v_and_b32 v{17+4*x+2*h}, s{S_MASK}, v{32+2*x+h}')
        C1=-2.0*0.7978845608028654*1.4426950408889634
        C3=C1*0.044715
        import struct
        f2h=lambda f:'0x%08x'%struct.unpack('<I',struct.pack('<f',f))[0]
        if self.opt.pkgelu:
            I(f's_mov_b32 s100, {f2h(C3)}'); I(f's_mov_b32 s101, {f2h(C3)}')
            I(f'v_mov_b32 v30, {f2h(C1)}'); I(f'v_mov_b32 v31, {f2h(C1)}')
            TT=V_RING
            P=[(V_ACC+16*x+4*y+2*h, 16+4*x+2*h) for x in range(2) for y in range(2) for h in range(2)]
            pr=lambda r:f'v[{r}:{r+1}]'
            for n,(u,b) in enumerate(P): I(f'v_pk_add_f32 {pr(u)}, {pr(u)}, {pr(b)}')
            for n,(u,b) in enumerate(P): I(f'v_pk_mul_f32 {pr(TT+2*n)}, {pr(u)}, {pr(u)}')
            for n,(u,b) in enumerate(P): I(f'v_pk_fma_f32 {pr(TT+2*n)}, {pr(TT+2*n)}, s[100:101], v[30:31]')
            for n,(u,b) in enumerate(P): I(f'v_pk_mul_f32 {pr(TT+2*n)}, {pr(TT+2*n)}, {pr(u)}')
            for n in range(16): I(f'v_exp_f32 v{TT+n}, v{TT+n}')
            for n,(u,b) in enumerate(P): I(f'v_pk_add_f32 {pr(TT+2*n)}, {pr(TT+2*n)}, 1.0 op_sel_hi:[1,0]')
            for n in range(16): I(f'v_rcp_f32 v{TT+n}, v{TT+n}')
            for n,(u,b) in enumerate(P): I(f'v_pk_mul_f32 {pr(u)}, {pr(u)}, {pr(TT+2*n)}')
        else:
            I(f's_mov_b32 s{S_T2}, {f2h(C1)}'); I(f's_mov_b32 s{S_T3}, {f2h(C3)}')
            I(f'v_mov_b32 v31, s{S_T2}')
            U=[]
            for x in range(2):
                for y in range(2):
                    for r in range(4):
                        U.append((V_ACC+16*x+4*y+r, 16+4*x+r))
            TT=V_RING
            for n,(u,b) in enumerate(U): I(f'v_add_f32 v{u}, v{u}, v{b}')
            for n,(u,b) in enumerate(U): I(f'v_mul_f32 v{TT+n}, v{u}, v{u}')
            for n,(u,b) in enumerate(U): I(f'v_fma_f32 v{TT+n}, v{TT+n}, s{S_T3}, v31')
            for n,(u,b) in enumerate(U): I(f'v_mul_f32 v{TT+n}, v{TT+n}, v{u}')
            for n,(u,b) in enumerate(U): I(f'v_exp_f32 v{TT+n}, v{TT+n}')
            for n,(u,b) in enumerate(U): I(f'v_add_f32 v{TT+n}, 1.0, v{TT+n}')
            for n,(u,b) in enumerate(U): I(f'v_rcp_f32 v{TT+n}, v{TT+n}')
            for n,(u,b) in enumerate(U): I(f'v_mul_f32 v{u}, v{u}, v{TT+n}')
        F=V_RING+16
        for y in range(2):
            for x in range(2):
                a=V_ACC+16*x+4*y
                I(f'v_cvt_pk_bf16_f32 v{F+4*y+2*x}, v{a}, v{a+1}'); I(f'v_cvt_pk_bf16_f32 v{F+4*y+2*x+1}, v{a+2}, v{a+3}')
        I(f's_mul_i32 s{S_T0}, s{S_DT1}, {56*4096}'); I(f's_lshl_b32 s{S_T1}, s{S_FT}, 13'); I(f's_add_u32 s{S_T0}, s{S_T0}, s{S_T1}')
        I(f's_lshl_b32 s{S_T1}, s{S_WH}, 12'); I(f's_add_u32 s{S_T0}, s{S_T0}, s{S_T1}')
        I(f's_lshl_b32 s{S_T1}, s{S_WL}, 11'); I(f's_add_u32 s{S_T0}, s{S_T0}, s{S_T1}'); I(f's_add_u32 s{S_T0}, s{S_T0}, {WS_GT}')
        for y in range(2):
            I(f'buffer_store_dwordx4 {vr(F+4*y,4)}, v{V_L16}, {srd(SRD_WS)}, s{S_T0} offen offset:{y*1024} sc1', tag='stG')
        self.auto=0
        self.e_addr(); self.e_loads()
        self.p2_flag_addr(); self.p2_bases()
        I(f'global_load_dword v54, v12, {sp(P_WS)} sc1', tag='fc')
        for n in range(self.opt.gwait): self.tick()
        self.wait(vm=['stG']); I('s_barrier')
        self.flag_set(S_DT1,28,S_FT,WS_FG)

    def w2_setup(self):
        I=self.I
        self.make_srd(SRD_W, P_W2, 1792*4096)
        self.ring_setup(4096, S_WL)
        I(f's_mul_i32 s{S_WBEG}, s{S_W}, {448*4096}'); I(f's_lshl_b32 s{S_T0}, s{S_C}, 7'); I(f's_add_u32 s{S_WBEG}, s{S_WBEG}, s{S_T0}')
        I(f's_mov_b32 s{S_WO}, s{S_WBEG}')
        self.ring_init('w2',14,4096,range(6))

    def rot_g(self, dst):
        I=self.I
        I(f's_mul_i32 s{dst}, s86, 37'); I(f's_lshr_b32 s{dst}, s{dst}, 8')
        I(f's_mul_i32 s{dst}, s{dst}, {7*self.opt.rot2}'); I(f's_lshr_b32 s{dst}, s{dst}, 1')
    def cpack(self):
        I=self.I
        L=self.newlabel('nocp')
        I(f's_cmp_ge_u32 s{S_E}, 28'); I(f's_cbranch_scc1 {L}')
        I(f's_mov_b32 s{SRD_1+2}, {448*896}'); I(f's_mov_b32 s{SRD_1+3}, 0x20000')
        I(f's_bitcmp1_b32 s{S_E}, 1')
        I(f's_cselect_b32 s{SRD_1}, s{P_CIM}, s{P_CRE}'); I(f's_cselect_b32 s{SRD_1+1}, s{P_CIM+1}, s{P_CRE+1}')
        I(f'v_and_b32 v9, 15, v{V_LANE}'); I('v_mul_u32_u24 v9, 896, v9'); I(f'v_lshrrev_b32 v10, 4, v{V_LANE}')
        I('v_lshlrev_b32 v10, 4, v10'); I('v_add_u32 v10, v9, v10')
        I(f's_lshr_b32 s{S_T0}, s{S_E}, 2'); I(f's_lshl_b32 s{S_T0}, s{S_T0}, 7')
        I(f's_and_b32 s{S_T1}, s{S_E}, 1'); I(f's_lshl_b32 s{S_T1}, s{S_T1}, 6'); I(f's_add_u32 s{S_T0}, s{S_T0}, s{S_T1}')
        I(f's_mul_i32 s{S_T1}, s{S_W}, {16*896}'); I(f's_add_u32 s{S_T0}, s{S_T0}, s{S_T1}')
        for dt in range(7):
            I(f'buffer_load_dwordx4 {vr(56+4*dt,4)}, v10, {srd(SRD_1)}, s{S_T0} offen', tag=('cp',dt))
            if dt<6: I(f's_add_u32 s{S_T0}, s{S_T0}, {64*896}')
        I(f's_lshl_b32 s{S_T0}, s{S_E}, 12'); I(f's_lshl_b32 s{S_T1}, s{S_W}, 10'); I(f's_add_u32 s{S_T0}, s{S_T0}, s{S_T1}')
        I(f's_add_u32 s{S_T0}, s{S_T0}, {WS_CP}')
        for dt in range(7):
            self.wait(vm=[('cp',dt)])
            I(f'buffer_store_dwordx4 {vr(56+4*dt,4)}, v{V_L16}, {srd(SRD_WS)}, s{S_T0} offen sc1', tag='stC')
            if dt<6: I(f's_add_u32 s{S_T0}, s{S_T0}, {28*4096}')
        self.label(L)
    def cpack_flag(self):
        I=self.I
        L=self.newlabel('nocf')
        Lp=self.newlabel('w0poll')
        self.wait(vm='all')
        I(f's_cmp_lg_u32 s{S_W}, 0'); I(f's_cbranch_scc1 {Lp}')
        I(f'v_and_b32 v8, 3, v{V_LANE}'); I('v_lshlrev_b32 v8, 6, v8')
        self.poll('e0e', 8, P_DBG, 64)
        self.label(Lp)
        I('s_barrier')
        I(f's_cmp_ge_u32 s{S_E}, 28'); I(f's_cbranch_scc1 {L}')
        I(f's_mov_b32 s{S_T1}, 0')
        self.flag_set(S_T1,1,S_E,WS_FC)
        self.label(L)

    def p2_resid_loads(self):
        I=self.I
        self.make_srd(SRD_OUT, P_OUT, 2048*1792)
        I(f'v_and_b32 v7, 15, v{V_LANE}'); I(f'v_lshrrev_b32 v8, 4, v{V_LANE}')
        I('v_mul_u32_u24 v9, 896, v7'); I('v_lshlrev_b32 v10, 3, v8'); I('v_add_u32 v9, v9, v10')
        I(f's_lshl_b32 s{S_T0}, s{S_C}, 6'); I(f's_lshl_b32 s{S_T1}, s{S_WL}, 5'); I(f's_add_u32 s{S_T0}, s{S_T0}, s{S_T1}')
        I(f's_lshl_b32 s{S_T1}, s{S_G}, 6'); I(f's_lshl_b32 s{S_T2}, s{S_WH}, 5'); I(f's_add_u32 s{S_T1}, s{S_T1}, s{S_T2}')
        I('v_lshrrev_b32 v9, 2, v7'); I(f'v_mul_u32_u24 v9, {YW}, v9'); I('v_and_b32 v11, 3, v7'); I('v_lshlrev_b32 v11, 2, v11'); I('v_add_u32 v9, v9, v11')
        I(f's_lshl_b32 s{S_T2}, s{S_WL}, 5'); I(f's_add_u32 s{S_T2}, s{S_T2}, {LDS_Y+24576}'); I(f'v_add_u32 v9, s{S_T2}, v9')
        for y in range(2):
            I(f'ds_read_b32 v{24+2*y}, v9 offset:{16*y}', tag='rstat'); I(f'ds_read_b32 v{25+2*y}, v9 offset:{16*y+64}', tag='rstat')
        I(f's_lshl_b32 s{S_T2}, s{S_T1}, 1'); I(f'v_add_u32 v9, s{S_T2}, v10')
        I(f'global_load_dwordx2 v[28:29], v9, {sp(P_DSK)}', tag='res')
        I(f'global_load_dwordx2 v[30:31], v9, {sp(P_DSK)} offset:32', tag='res')
        I(f'v_add_u32 v9, s{S_T0}, v7'); I('v_lshlrev_b32 v9, 1, v9')
        I(f'global_load_ushort v10, v9, {sp(P_B2)}', tag='res')
        I(f'global_load_ushort v38, v9, {sp(P_B2)} offset:32', tag='res')
    def resid_compute(self):
        I=self.I
        self.wait(vm=['res'], lg=['rstat'])
        I('v_lshlrev_b32 v10, 16, v10'); I('v_lshlrev_b32 v38, 16, v38')
        yield
        for x in range(2):
            for h in range(2):
                I(f'v_lshlrev_b32 v{32+2*h}, 16, v{28+2*x+h}'); I(f'v_and_b32 v{33+2*h}, s{S_MASK}, v{28+2*x+h}')
            yield
            for y in range(2):
                xs=V_XR+4*y+2*x; st=24+2*y; b2=10 if y==0 else 38
                for h in range(2):
                    r=240+8*y+4*x+2*h
                    I(f'v_lshlrev_b32 v{r}, 16, v{xs+h}'); I(f'v_and_b32 v{r+1}, s{S_MASK}, v{xs+h}')
                    I(f'v_pk_add_f32 v[36:37], v[{r}:{r+1}], v[{st}:{st+1}] op_sel_hi:[1,0] neg_lo:[0,1] neg_hi:[0,1]')
                    yield
                    I(f'v_pk_mul_f32 v[36:37], v[36:37], v[{st}:{st+1}] op_sel:[0,1] op_sel_hi:[1,1]')
                    I(f'v_pk_add_f32 v[{r}:{r+1}], v[{r}:{r+1}], v[{b2}:{b2+1}] op_sel_hi:[1,0]')
                    I(f'v_pk_fma_f32 v[{r}:{r+1}], v[36:37], v[{32+2*h}:{33+2*h}], v[{r}:{r+1}]')
                    yield

    CREG=[['v16','v20','v24','v28'],['v32','v36','v40','v44'],['v48','v52','v216','v220'],['v224','v228','v232','v236'],
          ['a0','a4','a8','a12'],['a224','a228','a232','a236'],['a240','a244','a248','a252']]
    def creg(self,i,x):
        r=self.CREG[i][x]; n=int(r[1:]); return f'{r[0]}[{n}:{n+3}]'
    def p2_bases(self):
        I=self.I
        I(f's_mul_i32 s90, s{S_G}, {56*4096}'); I(f's_mul_i32 s{S_T0}, s{S_W}, {14*4096}'); I(f's_add_u32 s90, s90, s{S_T0}')
        I(f's_add_u32 s90, s90, {WS_GT}')
        I(f's_lshl_b32 s{S_T1}, s{S_WH}, 11'); I(f's_xor_b32 s{S_T2}, s{S_T1}, 2048')
        I(f's_add_u32 s92, s90, s{S_T2}'); I(f's_add_u32 s90, s90, s{S_T1}')
        I(f's_mul_i32 s22, s{S_G}, {28*4096}'); I(f's_mul_i32 s{S_T0}, s{S_W}, {7*4096}'); I(f's_add_u32 s22, s22, s{S_T0}')
        I(f's_add_u32 s22, s22, {WS_CP}')
        I(f's_add_u32 s23, s22, s{S_T2}'); I(f's_add_u32 s22, s22, s{S_T1}')
        I(f's_mul_i32 s38, s{S_C}, {28*4096}'); I(f's_add_u32 s38, s38, s{S_T0}'); I(f's_add_u32 s38, s38, {WS_HP}')
        I(f's_lshl_b32 s{S_T1}, s{S_WL}, 11'); I(f's_xor_b32 s{S_T2}, s{S_T1}, 2048')
        I(f's_add_u32 s39, s38, s{S_T2}'); I(f's_add_u32 s38, s38, s{S_T1}')
    def q_c(self, steps):
        I=self.I
        def one(i,x):
            def f():
                b=22 if x<2 else 23
                I(f's_add_u32 s91, s{b}, {i*4096}')
                I(f'buffer_load_dwordx4 {self.creg(i,x)}, v{V_L16}, {srd(SRD_WS)}, s91 offen offset:{(x&1)*1024} sc1', tag=('c',i,x))
            return f
        for i in steps:
            for x in range(4): self.q.append(one(i,x))
    def cflag_check(self):
        I=self.I
        L=self.newlabel('cf'); D=self.newlabel('cfd')
        self.wait(vm=['fc'])
        self.exec_set('0x3f80','0')
        I('v_cmp_gt_u32 vcc, 1, v54'); I(f's_cbranch_vccz {D}')
        snap=self.snapshot()
        I(f's_mov_b32 s{S_BOUND}, 0x40000')
        self.label(L)
        I(f'global_load_dword v54, v12, {sp(P_WS)} sc1'); I('s_waitcnt vmcnt(0)')
        I('v_cmp_gt_u32 vcc, 1, v54'); I(f's_cbranch_vccz {D}')
        I('s_sleep 4'); I(f's_sub_u32 s{S_BOUND}, s{S_BOUND}, 1'); I(f's_cbranch_scc0 {L}')
        self.label(D); self.restore(snap)
        self.exec_full()
    def flag_wait(self, vaddr, vdst, tag):
        I=self.I
        L=self.newlabel('fw'); D=self.newlabel('fwd')
        self.wait(vm=[tag])
        I(f'v_cmp_gt_u32 vcc, 1, v{vdst}'); I(f's_cbranch_vccz {D}')
        snap=self.snapshot()
        I(f's_mov_b32 s{S_BOUND}, 0x40000')
        self.label(L)
        I(f'global_load_dword v{vdst}, v{vaddr}, {sp(P_WS)} sc1'); I('s_waitcnt vmcnt(0)')
        I(f'v_cmp_gt_u32 vcc, 1, v{vdst}'); I(f's_cbranch_vccz {D}')
        I('s_sleep 4'); I(f's_sub_u32 s{S_BOUND}, s{S_BOUND}, 1'); I(f's_cbranch_scc0 {L}')
        self.label(D); self.restore(snap)
    def p2_main(self, pre_only=False):
        I=self.I
        NS=6
        g0=self.opt.sfirst
        steps=[('g',k) for k in range(g0)]
        gi,si=g0,0
        while gi<14 or si<7:
            if si<7: steps.append(('s',si)); si+=1
            if gi<14: steps.append(('g',gi)); gi+=1
        groups=[('g',i) if k=='g' else ('h',i) for k,i in steps]
        gidx={g:n for n,g in enumerate(groups)}
        reg=lambda g: V_RING+16*(gidx[g]%NS)
        pend=[(g,x) for g in groups for x in range(4)]
        done=set(); state={}
        if not pre_only and self.opt.gearly: pend,done,state=self.p2state
        def can(g,x):
            n=gidx[g]-NS
            return n<0 or (groups[n],x) in done
        def issue(nmax):
            n=0
            while n<nmax and pend and can(*pend[0]):
                g,x=pend[0]
                if g[0]=='h' and not state.get('hflag'):
                    self.flag_wait(14,11,'fh'); state['hflag']=True
                    if self.opt.tH:
                        I(f's_lshl_b32 s{S_T2}, s{S_G}, 12'); I(f's_mul_i32 s{S_T3}, s{S_C}, {28*4096}'); I(f's_add_u32 s{S_T2}, s{S_T2}, s{S_T3}')
                        I(f's_mul_i32 s{S_T3}, s{S_W}, {7*4096}'); I(f's_add_u32 s{S_T2}, s{S_T2}, s{S_T3}'); I(f's_add_u32 s{S_T2}, s{S_T2}, {WS_HP}')
                        self.dedup_touch(S_T2,32)
                pend.pop(0)
                b0,b1,nst={'g':(90,92,14),'h':(38,39,7)}[g[0]]
                sx=b0 if x<2 else b1
                I(f'buffer_load_dwordx4 {vr(reg(g)+4*x,4)}, v{V_L16}, {srd(SRD_WS)}, s{sx} offen offset:{(x&1)*1024} sc1', tag=(g,x))
                if (x&1) and g[1]<nst-1: I(f's_add_u32 s{sx}, s{sx}, 4096')
                n+=1
        if pre_only:
            issue(4*NS); self.p2state=(pend,done,state); return
        if not self.opt.gearly:
            issue(self.opt.tGpos)
            if self.opt.tG:
                I(f's_mul_i32 s{S_T2}, s86, 37'); I(f's_lshr_b32 s{S_T2}, s{S_T2}, 8'); I(f's_lshl_b32 s{S_T2}, s{S_T2}, 13')
                I(f's_mul_i32 s{S_T3}, s{S_G}, {56*4096}'); I(f's_add_u32 s{S_T2}, s{S_T2}, s{S_T3}'); I(f's_mul_i32 s{S_T3}, s{S_W}, {14*4096}')
                I(f's_add_u32 s{S_T2}, s{S_T2}, s{S_T3}'); I(f's_add_u32 s{S_T2}, s{S_T2}, {WS_GT+6*4096}')
                self.dedup_touch(S_T2)
            issue(4*NS-self.opt.tGpos)
        first=True
        self.q_c([4])
        for pos,(kind,i) in enumerate(steps):
            if kind=='g' and i==3: I(f'global_load_dword v11, v14, {sp(P_WS)} sc1', tag='fh')
            if kind=='s':
                H=('h',i)
                for x in range(4):
                    self.wait(vm=[('c',i,x)]+([(H,y) for y in range(4)] if x==0 else []))
                    if x==0: self.stamp(f'p2.s{i}',fine=2)
                    for y in range(4):
                        d=V_ACC+16*x+4*y
                        I(f'v_mfma_f32_16x16x32_bf16 {vr(d,4)}, {self.creg(i,x)}, {vr(reg(H)+4*y,4)}, {vr(d,4)}')
                    if x<3: issue(1)
                for y in range(4): done.add((H,y))
                issue(2)
            else:
                A=('g',i)
                for x in range(4):
                    if self.opt.waitstep:
                        if x==0: self.wait(vm=[(A,xx) for xx in range(4)])
                    else: self.wait(vm=[(A,x)])
                    if x==0: self.stamp(f'p2.g{i}',fine=2)
                    for y in range(4):
                        d=V_ACC+16*x+4*y
                        cin='0' if first else vr(d,4)
                        I(f'v_mfma_f32_16x16x32_bf16 {vr(d,4)}, {vr(reg(A)+4*x,4)}, {ar(16*i+4*y,4)}, {cin}')
                    done.add((A,x))
                    issue(1)
                    if i==1: self.q.pop(0)()
            first=False
        assert not pend

    def p2_epilogue(self):
        I=self.I
        if self.opt.outlds: self.out_addr()
        self.reduce(V_RING)
        for y in range(2):
            for x in range(2):
                a=V_ACC+16*x+4*y; r=240+8*y+4*x
                for h in range(2):
                    I(f'v_pk_add_f32 v[{a+2*h}:{a+2*h+1}], v[{a+2*h}:{a+2*h+1}], v[{r+2*h}:{r+2*h+1}]')
        if self.opt.delta:
            import struct
            hx='0x%08x'%struct.unpack('<I',struct.pack('<f',self.opt.delta))[0]
            for y in range(2):
                for x in range(2):
                    for r in range(4):
                        a=V_ACC+16*x+4*y+r
                        I(f'v_add_f32 v{a}, {hx}, v{a}')
        if not self.opt.outlds:
            I(f'v_and_b32 v7, 15, v{V_LANE}'); I(f'v_lshrrev_b32 v8, 4, v{V_LANE}')
            I('v_mul_u32_u24 v9, 1792, v7'); I('v_lshlrev_b32 v10, 4, v8'); I('v_add_u32 v9, v9, v10')
            I(f's_lshl_b32 s{S_T0}, s{S_C}, 6'); I(f's_lshl_b32 s{S_T1}, s{S_WL}, 5'); I(f's_add_u32 s{S_T0}, s{S_T0}, s{S_T1}')
            I(f's_lshl_b32 s{S_T1}, s{S_G}, 6'); I(f's_lshl_b32 s{S_T2}, s{S_WH}, 5'); I(f's_add_u32 s{S_T1}, s{S_T1}, s{S_T2}')
            for y in range(2):
                for x in range(2):
                    I(f's_add_u32 s{S_T2}, s{S_T0}, {16*y}'); I(f's_mul_i32 s{S_T2}, s{S_T2}, 1792')
                    I(f's_add_u32 s{S_T3}, s{S_T1}, {16*x}'); I(f's_lshl_b32 s{S_T3}, s{S_T3}, 2'); I(f's_add_u32 s{S_T2}, s{S_T2}, s{S_T3}')
                    a=V_ACC+16*x+4*y
                    I(f'buffer_store_dwordx4 {vr(a,4)}, v9, {srd(SRD_OUT)}, s{S_T2} offen {self.opt.outmod}')
        else:
            for y in range(2):
                for x in range(2):
                    a=V_ACC+16*x+4*y
                    I(f'ds_write_b128 v{8+x}, {vr(a,4)} offset:{2048*y}', tag='ow')
            self.wait(lg=['ow'])
            for j in range(4):
                I(f'ds_read_b128 {vr(V_RING+4*j,4)}, v10 offset:{1024*j}', tag=('or',j))
            for j in range(4):
                self.wait(lg=[('or',j)])
                I(f'buffer_store_dwordx4 {vr(V_RING+4*j,4)}, v11, {srd(SRD_OUT)}, s{S_A} offen {self.opt.outmod}')
                if j<3: I(f's_add_u32 s{S_A}, s{S_A}, {8*1792}')
    def out_addr(self):
        I=self.I
        I(f'v_and_b32 v7, 15, v{V_LANE}'); I(f'v_lshrrev_b32 v8, 4, v{V_LANE}'); I('v_and_b32 v9, 7, v7'); I('v_xor_b32 v8, v8, v9')
        I('v_lshlrev_b32 v8, 4, v8'); I('v_lshlrev_b32 v7, 7, v7'); I('v_add_u32 v8, v8, v7'); I(f'v_add_u32 v8, s{S_YB}, v8'); I('v_xor_b32 v9, 64, v8')
        I(f'v_lshrrev_b32 v7, 3, v{V_LANE}'); I(f'v_and_b32 v11, 7, v{V_LANE}'); I('v_xor_b32 v10, v11, v7'); I('v_lshlrev_b32 v10, 4, v10')
        I('v_lshlrev_b32 v6, 7, v7'); I('v_add_u32 v10, v10, v6'); I(f'v_add_u32 v10, s{S_YB}, v10')
        I('v_mul_u32_u24 v7, 1792, v7'); I('v_lshlrev_b32 v11, 4, v11'); I('v_add_u32 v11, v11, v7')
        I(f's_lshl_b32 s{S_T0}, s{S_C}, 6'); I(f's_lshl_b32 s{S_T1}, s{S_WL}, 5'); I(f's_add_u32 s{S_T0}, s{S_T0}, s{S_T1}'); I(f's_mul_i32 s{S_T0}, s{S_T0}, 1792')
        I(f's_lshl_b32 s{S_T1}, s{S_G}, 6'); I(f's_lshl_b32 s{S_T2}, s{S_WH}, 5'); I(f's_add_u32 s{S_T1}, s{S_T1}, s{S_T2}'); I(f's_lshl_b32 s{S_T1}, s{S_T1}, 2')
        I(f's_add_u32 s{S_A}, s{S_T0}, s{S_T1}')

    def write_stamps(self):
        if not self.opt.stamps: return
        I=self.I
        I('s_lshl_b32 s3, s2, 2'); I(f's_add_u32 s3, s3, s{S_W}'); I('s_lshl_b32 s3, s3, 8'); I(f's_add_u32 s3, s3, {WS_DBG}')
        I(f'v_lshlrev_b32 v9, 2, v{V_LANE}')
        I(f'buffer_store_dword v{self.vst}, v9, {srd(SRD_WS)}, s3 offen')
        if getattr(self.opt,'dbgwg',-1)>=0 and self.final_stamps:
            L=self.newlabel('dbgout')
            I(f's_cmp_lg_u32 s2, {self.opt.dbgwg}'); I(f's_cbranch_scc1 {L}')
            I(f's_cmp_lg_u32 s{S_W}, 0'); I(f's_cbranch_scc1 {L}')
            I(f'v_readlane_b32 s3, v{self.vst}, 0'); I('s_nop 4')
            I(f'v_subrev_u32 v8, s3, v{self.vst}')
            I(f'v_add_u32 v9, {self.opt.dbgoff}, v{V_LANE}'); I('v_lshlrev_b32 v9, 2, v9')
            I('ds_bpermute_b32 v8, v9, v8'); I('s_waitcnt lgkmcnt(0)')
            I(f'v_lshlrev_b32 v9, 2, v{V_LANE}')
            self.exec_set('0xfffe','0')
            I(f'global_store_dword v9, v8, {sp(P_DBG)}')
            self.exec_full()
            self.label(L)
    def build(self):
        I=self.I; o=self.opt
        if o.stamps: I('v_mov_b32 v55, 0')
        self.prologue()
        self.touches_pre()
        wt=self.opt.w1touch
        if wt=='A' or self.opt.alsoA: self.touch_w1()
        if self.opt.t3start:
            Lt=self.newlabel('t3s')
            I(f's_cmp_lg_u32 s{S_W}, 3'); I(f's_cbranch_scc1 {Lt}')
            snap=self.snapshot()
            self.touch_w1_wg()
            self.label(Lt); self.merge(snap)
        Lcont=self.newlabel('cont')
        I('s_cmp_eq_u32 s74, 1'); I(f's_cbranch_scc1 {Lcont}')
        snap=self.snapshot()
        self.ln8(clears=False)
        self.vm['st0']=0
        self.arrive0()
        if wt=='F': self.touch_w1()
        if wt in ('S','T','U'): self.touch_w1_split(True)
        self.stamp('pf1')
        if self.opt.eorder==3:
            self.touch_pf(2)
            self.wait(vm='all')
        elif self.opt.eorder==0:
            self.cpack()
            self.stamp('cp')
            self.touch_pf(2)
            self.cpack_flag()
        elif self.opt.eorder==1:
            self.touch_pf(2)
            self.stamp('cp')
            self.cpack()
            self.cpack_flag()
        else:
            self.cpack()
            self.cpack_flag()
            self.stamp('cp')
            self.touch_pf(2)
            self.wait(vm='all')
        self.stamp('pf2')
        self.write_stamps()
        I('s_endpgm')
        self.label(Lcont); self.restore(snap)
        if wt=='T': self.touch_w1_split(False)
        self.dma_setup()
        if wt=='E': self.touch_w1(setup_only=True)
        self.w1_setup()
        if self.opt.bfirst: self.q_b(); self.q_x([0,1,2])
        else: self.q_x([0,1,2]); self.q_b()
        for n in range(self.opt.pre): self.tick()
        self.stamp('issued')
        self.auto=self.opt.period if self.opt.ln8tick else 0
        self.ln8()
        self.auto=0
        if wt=='U': self.touch_w1_split(False)
        self.stamp('ln8 stored')
        if self.opt.bfirst: self.q_x([3])
        else:
            rest=self.q; self.q=[]; self.q_x([3]); self.q+=rest
        self.auto=self.opt.period
        self.x_addr()
        self.lam_consts()
        self.auto=0
        self.stamp('lam')
        self.arrive0()
        self.stamp('arrived')
        self.drain_q(batch=True)
        if wt=='F': self.touch_w1()
        if wt=='S': self.touch_w1_split(False)
        self.stamp('drained')
        self.wait(vm=['x64','bdma']); I('s_barrier')
        self.do_bread()
        if self.opt.b13dma:
            for im in range(2):
                I(f's_add_u32 m0, s{S_YB}, {SLOT_OFF[5]+1024*im}'); I('s_nop 0')
                I(f'buffer_load_dwordx4 v236, {srd(SRD_1 if im==0 else SRD_2)}, s89 offen lds', tag='b13')
        self.auto=self.opt.statp
        self.row_stats()
        self.auto=0
        self.wait(vm=['b13'])
        if self.opt.b13dma:
            I(f'v_and_b32 v8, 15, v{V_LANE}'); I('v_lshlrev_b32 v8, 6, v8'); I(f'v_lshrrev_b32 v9, 4, v{V_LANE}'); I('v_lshlrev_b32 v9, 4, v9')
            I('v_add_u32 v8, v8, v9'); I(f'v_add_u32 v8, s{S_YB}, v8')
            I(f'ds_read_b128 {vr(V_BF+52,4)}, v8 offset:{SLOT_OFF[5]}', tag='b13r'); I(f'ds_read_b128 {vr(V_BF+56+52,4)}, v8 offset:{SLOT_OFF[5]+1024}', tag='b13r')
            self.wait(lg=['b13r'])
        self.stamp('ln64')
        I(f'v_and_b32 v35, 3, v{V_LANE}'); I('v_lshlrev_b32 v35, 6, v35')
        I(f'global_load_dword v34, v35, {sp(P_DBG)} sc1', tag='e0c')
        self.auto=self.opt.bup
        self.bu_gemm()
        self.stamp('bu',fine=True)
        self.auto=0
        self.x_resid_reads()
        self.auto=self.opt.scanp
        self.ln_fix()
        self.scan1()
        self.auto=0
        self.stamp('scan1')
        self.wait_e0()
        self.stamp('e0')
        Lnog=self.newlabel('nog1'); Lj=self.newlabel('g1join')
        I(f's_cmp_eq_u32 s{S_HASG1}, 0'); I(f's_cbranch_scc1 {Lnog}')
        snap=self.snapshot()
        R1=dict(self.R); R1['free']=list(self.R['free']); R1['slot']=dict(self.R['slot'])
        self.g_bias_load()
        self.gemm1()
        self.stamp('gemm1')
        self.g_epilogue()
        self.stamp('gepi')
        I(f's_branch {Lj}')
        snapA=self.snapshot()
        RA={k:self.R[k] for k in ('iss','rd','rel','piece')}; RA['free']=list(self.R['free']); RA['slot']=dict(self.R['slot'])
        self.label(Lnog); self.restore(snap); self.R=R1
        if self.opt.eorder==3:
            I(f's_lshr_b32 s{S_E}, s95, 1'); I(f's_mul_i32 s{S_E}, s{S_E}, 7'); I(f's_add_u32 s{S_E}, s{S_E}, s86'); I(f's_sub_u32 s{S_E}, s{S_E}, 21')
            self.cpack()
            self.wait(vm=['stC']); I('s_barrier')
            I(f's_mov_b32 s{S_T1}, 0')
            self.flag_set(S_T1,1,S_E,WS_FC)
        self.ring_finish(); self.wait(lg='all')
        self.w2_setup()
        self.replay_ring(RA)
        self.e_addr(); self.e_loads()
        self.p2_flag_addr(); self.p2_bases()
        I(f'global_load_dword v54, v12, {sp(P_WS)} sc1', tag='fc')
        self.label(Lj); self.merge(snapA)
        self.cflag_check()
        self.q_c([5,6])
        self.auto=self.opt.finp
        for _ in self.finalize(): pass
        self.auto=0
        self.stamp('final')
        if o.stamps: I('v_mov_b32 v15, v55'); self.vst=15
        self.drain_q()
        if self.opt.gearly:
            self.flag_wait(12,53,'fg')
            self.stamp('flagG')
            self.p2_main(pre_only=True)
        self.p2_resid_loads()
        for n in range(self.opt.rwait):
            if self.R is not None and not self.ring_tick(): self.ring_finish()
        if self.opt.hearly:
            self.wait(vm=['stH']); I('s_barrier')
            self.flag_set(S_C,7,S_G,WS_FH)
        self.auto=self.opt.finp
        for _ in self.resid_compute(): pass
        self.auto=0
        if not self.opt.hearly:
            self.wait(vm=['stH']); I('s_barrier')
            self.flag_set(S_C,7,S_G,WS_FH)
        self.q_c([0,1,2,3])
        while self.q or self.R is not None:
            if self.q:
                self.tick()
                if len(self.q)==self.opt.fglead and not self.opt.gearly: I(f'global_load_dword v11, v12, {sp(P_WS)} sc1', tag='fg')
            if self.R is not None:
                if not self.ring_tick(): self.ring_finish()
        self.wait(lg='all')
        self.stamp('w2 in regs')
        if not self.opt.gearly:
            self.flag_wait(12,11,'fg')
            self.stamp('flagG')
        self.p2_main()
        self.stamp('p2')
        self.p2_epilogue()
        self.stamp('end'); self.cstamp('c1')
        self.final_stamps=True
        self.write_stamps()
        self.label('L_exit')
        I('s_endpgm')
        self.label('L_code_end')

def header(lds):
    return f"""; Fused S5 SSM + MLP-Mixer token MLP: out = x + SSM(LN(x)) + MLP(LN(LN(x))^T)^T in one persistent launch.
; @launch grid=(256,1,1) block=(256,1,1) lds={lds}
.amdgcn_target "amdgcn-amd-amdhsa--gfx950"
.text
.globl {KN}
.p2align 8
.type {KN},@function
{KN}:
"""
def footer():
    return f"""
.section .rodata,"a"
.p2align 6
.amdhsa_kernel {KN}
  .amdhsa_next_free_vgpr 512
  .amdhsa_next_free_sgpr 102
  .amdhsa_accum_offset 256
  .amdhsa_group_segment_fixed_size 0
  .amdhsa_kernarg_size 136
  .amdhsa_user_sgpr_count 2
  .amdhsa_user_sgpr_kernarg_segment_ptr 1
  .amdhsa_system_sgpr_workgroup_id_x 1
  .amdhsa_float_denorm_mode_32 3
.end_amdhsa_kernel
"""
if __name__=='__main__':
    ap=argparse.ArgumentParser()
    ap.add_argument('-o',default='k.s'); ap.add_argument('--stamps',action='store_true'); ap.add_argument('--stop',default=''); ap.add_argument('--fine',type=int,default=0); ap.add_argument('--period',type=int,default=48); ap.add_argument('--hearly',type=int,default=0); ap.add_argument('--g1map',type=int,default=0); ap.add_argument('--pkgelu',type=int,default=1); ap.add_argument('--batchexec',type=int,default=1); ap.add_argument('--waitstep',type=int,default=0); ap.add_argument('--tHT',type=int,default=0); ap.add_argument('--tHTpos',type=int,default=12); ap.add_argument('--tG',type=int,default=0); ap.add_argument('--tGpos',type=int,default=8); ap.add_argument('--tH',type=int,default=0); ap.add_argument('--outlds',type=int,default=1); ap.add_argument('--b13dma',type=int,default=1); ap.add_argument('--bupj',type=int,default=0); ap.add_argument('--scanp',type=int,default=64); ap.add_argument('--pfearly',type=int,default=1); ap.add_argument('--eorder',type=int,default=1); ap.add_argument('--statp',type=int,default=0); ap.add_argument('--gearly',type=int,default=1); ap.add_argument('--delta',type=float,default=0.0); ap.add_argument('--bup',type=int,default=0); ap.add_argument('--statj',type=int,default=9); ap.add_argument('--outmod',default=''); ap.add_argument('--dbgwg',type=int,default=-1); ap.add_argument('--dbgoff',type=int,default=0); ap.add_argument('--arrlead',type=int,default=10); ap.add_argument('--t3start',type=int,default=0); ap.add_argument('--notouch3',type=int,default=0); ap.add_argument('--own3',type=int,default=0); ap.add_argument('--alsoA',type=int,default=0); ap.add_argument('--now2',type=int,default=0); ap.add_argument('--gepip',type=int,default=0); ap.add_argument('--finp',type=int,default=36); ap.add_argument('--sfirst',type=int,default=10); ap.add_argument('--rwait',type=int,default=8); ap.add_argument('--fglead',type=int,default=6); ap.add_argument('--ln64p',type=int,default=48); ap.add_argument('--bfirst',type=int,default=0); ap.add_argument('--w2late',type=int,default=1); ap.add_argument('--rot1',type=int,default=4); ap.add_argument('--rot2',type=int,default=1); ap.add_argument('--rot3',type=int,default=1); ap.add_argument('--ln8tick',type=int,default=0); ap.add_argument('--bdelay',type=int,default=2); ap.add_argument('--w1touch',default='A'); ap.add_argument('--fin0',type=int,default=4); ap.add_argument('--finrate',type=int,default=2); ap.add_argument('--p2rate',type=int,default=3); ap.add_argument('--pre',type=int,default=1); ap.add_argument('--pre1',type=int,default=8); ap.add_argument('--gwait',type=int,default=6); ap.add_argument('--ht_touch',type=int,default=0); ap.add_argument('--g_touch',type=int,default=0)
    o=ap.parse_args()
    k=K(o); k.build()
    t,n=k.text()
    open(o.o,'w').write(header(LDS_TOTAL)+t+footer())
    print('wrote',o.o,'lines',t.count('\n'),'nop states inserted',n)
    if o.stamps: open(o.o+'.names','w').write(','.join(k.stampnames)); print(k.stampnames)
```
